```python
import torch

def _softmax(x, axis=-1):
    return torch.softmax(x, dim=axis)
def _gelu(x):
    return torch.nn.functional.gelu(x, approximate="tanh")
def _silu(x):
    return torch.nn.functional.silu(x)
def _sigmoid(x):
    return torch.sigmoid(x)
def _layernorm(x, axis=-1, eps=1e-5):
    m = x.mean(dim=axis, keepdim=True)
    v = x.var(dim=axis, keepdim=True, unbiased=False)
    return (x - m) / torch.sqrt(v + eps)
def _scatter_add(tgt, idx, src, axis=0):
    return tgt.clone().index_add_(axis, idx, src)
def _segment_sum(src, seg, n):
    out = torch.zeros((n,) + src.shape[1:], dtype=src.dtype)
    return out.index_add_(0, seg, src)
def _pad(x, pw):
    flat = tuple(v for pair in reversed(pw) for v in pair)
    return torch.nn.functional.pad(x, flat)

kernel_name = 'interleave_layers__linear_attn_block__dense_activation_silu__prompt'

def setup_inputs():

    _w = (lambda a: (lambda t: t.to(torch.bfloat16) if t.is_floating_point() else t)(torch.as_tensor(a)))
    def _A_setup():
        B, S, D = 1, 2048, 512
        return {
            "x": _w((lambda *s: torch.randn(*s, dtype=torch.bfloat16) * 0.05)(B, S, D)),
            "wqkv": _w((lambda *s: torch.randn(*s, dtype=torch.bfloat16) * 0.05)(D, 3 * D)),
            "wo": _w((lambda *s: torch.randn(*s, dtype=torch.bfloat16) * 0.05)(D, D)),
        }
    _A_in = _A_setup()

    def _B_setup():
        B, S, D, F = 1, 2048, 512, 1376
        return {
            "x": _w((lambda *s: torch.randn(*s, dtype=torch.bfloat16) * 0.05)(B, S, D)),
            "w1": _w((lambda *s: torch.randn(*s, dtype=torch.bfloat16) * 0.8)(D, F) * (D ** -0.5)),
            "w2": _w((lambda *s: torch.randn(*s, dtype=torch.bfloat16) * 0.8)(F, D) * (F ** -0.5)),
        }
    _B_in = _B_setup()

    return {
        "A_x": _A_in["x"],
        "A_wqkv": _A_in["wqkv"],
        "A_wo": _A_in["wo"],
        "B_x": _B_in["x"],
        "B_w1": _B_in["w1"],
        "B_w2": _B_in["w2"],
    }

def reference(A_x, A_wqkv, A_wo, B_x, B_w1, B_w2):
    def _A_ref(x, wqkv, wo):
        B, S, D = x.shape
        H = 32; Dh = D // H
        qkv = (lambda x, *d: x.permute(*d))((x @ wqkv).reshape(B, S, 3, H, Dh), 2, 0, 3, 1, 4)
        q, k, v = qkv[0], qkv[1], qkv[2]
        phi = lambda t: torch.where(t > 0, t + 1, torch.exp(t)) + 1e-6
        pq, pk = phi(q), phi(k)
        kv = torch.einsum("bhsd,bhse->bhde", pk, v)
        z = torch.einsum("bhsd->bhd", pk)
        num = torch.einsum("bhqd,bhde->bhqe", pq, kv)
        den = torch.einsum("bhqd,bhd->bhq", pq, z)[..., None] + 1e-6
        o = num / den
        return (lambda x, *d: x.permute(*d))(o, 0, 2, 1, 3).reshape(B, S, D) @ wo

    def _B_ref(x, w1, w2):
        h = torch.einsum("bsd,df->bsf", x, w1)
        h = _silu(h)
        out = torch.einsum("bsf,fd->bsd", h, w2)
        return out

    x = A_x
    x = x + _A_ref(_layernorm(x, axis=-1), A_wqkv, A_wo)
    x = x + _B_ref(_layernorm(x, axis=-1), B_w1, B_w2)
    x = x + _A_ref(_layernorm(x, axis=-1), A_wqkv, A_wo)
    x = x + _B_ref(_layernorm(x, axis=-1), B_w1, B_w2)
    return x
```

```python
import re

TRANS = ("v_exp_f32", "v_log_f32", "v_rcp_f32", "v_rsq_f32", "v_sqrt_f32", "v_sin_f32", "v_cos_f32")

_reg_re = re.compile(r"^-?\|?(?:abs\()?([vas])(?:(\d+)|\[(\d+):(\d+)\])\)?\|?$")


def parse_reg(tok):
    tok = tok.strip()
    if tok == "vcc":
        return {("s", 106), ("s", 107)}
    if tok == "vcc_lo":
        return {("s", 106)}
    if tok == "vcc_hi":
        return {("s", 107)}
    if tok == "exec":
        return {("s", 126), ("s", 127)}
    if tok == "exec_lo":
        return {("s", 126)}
    if tok == "exec_hi":
        return {("s", 127)}
    if tok == "m0":
        return {("s", 124)}
    m = _reg_re.match(tok)
    if not m:
        return set()
    k = m.group(1)
    if m.group(2) is not None:
        return {(k, int(m.group(2)))}
    return {(k, i) for i in range(int(m.group(3)), int(m.group(4)) + 1)}


def split_ops(s):
    out, depth, cur = [], 0, ""
    for ch in s:
        if ch in "[(":
            depth += 1
        if ch in "])":
            depth -= 1
        if ch == "," and depth == 0:
            out.append(cur.strip())
            cur = ""
        else:
            cur += ch
    if cur.strip():
        out.append(cur.strip())
    return out


VCC = {("s", 106), ("s", 107)}
EXEC = {("s", 126), ("s", 127)}
M0 = {("s", 124)}


class Ins:
    __slots__ = ("text", "op", "defs", "uses", "kind", "states", "srcC", "srcAB", "passes", "stdata", "lds")

    def __init__(self, text):
        self.text = text
        t = text.split(";")[0].strip()
        parts = t.split(None, 1)
        op = parts[0]
        self.op = op
        rest = parts[1] if len(parts) > 1 else ""
        ops = split_ops(rest)
        mods = ""
        if ops:
            lastp = ops[-1].split(None, 1)
            ops[-1] = lastp[0]
            if len(lastp) > 1:
                mods = lastp[1]
        regs = [parse_reg(o) for o in ops]
        self.defs, self.uses = set(), set()
        self.srcC, self.srcAB, self.stdata = set(), set(), set()
        self.passes = 0
        self.states = 1
        self.lds = False
        base = re.sub(r"_(e32|e64|dpp|sdwa)$", "", op)
        if op == "s_nop":
            self.kind = "nop"
            self.states = int(ops[0], 0) + 1
        elif op.startswith("v_mfma"):
            self.kind = "mfma"
            self.defs = regs[0]
            self.srcAB = regs[1] | regs[2]
            self.srcC = regs[3]
            self.uses = self.srcAB | self.srcC
            if "32x32x16" in op or "32x32x8" in op:
                self.passes = 8
            elif "16x16x32" in op or "16x16x16" in op:
                self.passes = 4
            else:
                raise ValueError("unknown mfma " + op)
        elif op.startswith("v_"):
            self.kind = "trans" if base in TRANS else "valu"
            if base.startswith("v_cmp"):
                self.defs = regs[0]
                self.uses = set().union(*regs[1:])
                if base.startswith("v_cmpx"):
                    self.defs |= EXEC
            elif base.startswith("v_permlane") and "swap" in base:
                self.kind = "perm"
                self.defs = regs[0] | regs[1]
                self.uses = regs[0] | regs[1]
            elif base in ("v_readlane_b32", "v_readfirstlane_b32"):
                self.kind = "rdlane"
                self.defs = regs[0]
                self.uses = set().union(*regs[1:])
            elif base == "v_writelane_b32":
                self.kind = "wrlane"
                self.defs = regs[0]
                self.uses = set().union(*regs)
            elif base in ("v_add_co_u32", "v_sub_co_u32", "v_addc_co_u32", "v_subb_co_u32"):
                self.defs = regs[0] | regs[1]
                self.uses = set().union(*regs[2:])
            else:
                self.defs = regs[0]
                self.uses = set().union(*regs[1:]) if len(regs) > 1 else set()
                if base.startswith("v_fmac") or base.startswith("v_pk_fmac") or base.startswith("v_dot2c"):
                    self.uses |= regs[0]
                if base == "v_cndmask_b32" and len(regs) == 3:
                    self.uses |= VCC
            if op.endswith("_dpp") or "row_" in mods or "quad_perm" in mods:
                self.kind = "dpp"
                self.uses |= regs[0]
        elif op.startswith("ds_"):
            self.kind = "ds"
            if op.startswith("ds_read") or op.startswith("ds_bpermute") or op.startswith("ds_swizzle") or op.startswith("ds_permute"):
                self.defs = regs[0]
                self.uses = set().union(*regs[1:])
            else:
                self.uses = set().union(*regs)
        elif op.startswith("buffer_") or op.startswith("global_"):
            self.kind = "vmem"
            allm = " " + mods + " "
            if op.startswith("buffer_load") or op.startswith("global_load"):
                if " lds " in allm or "_lds_" in op:
                    self.lds = True
                    self.uses = set().union(*regs) | M0
                else:
                    self.defs = regs[0]
                    self.uses = set().union(*regs[1:])
            elif op.startswith("buffer_wbl2") or op.startswith("buffer_inv"):
                pass
            else:
                self.uses = set().union(*regs)
                if "atomic" in op and " sc0 " in allm:
                    self.defs = regs[0]
                if op.endswith("x3") or op.endswith("x4"):
                    self.stdata = regs[0] if op.startswith("buffer_") else regs[1]
        elif op.startswith("s_load") or op.startswith("s_memtime") or op.startswith("s_memrealtime"):
            self.kind = "smem"
            self.defs = regs[0]
            self.uses = set().union(*regs[1:]) if len(regs) > 1 else set()
        elif op.startswith("s_"):
            self.kind = "salu"
            if op.startswith("s_cmp") or op.startswith("s_cbranch") or op in ("s_branch", "s_barrier", "s_waitcnt", "s_endpgm", "s_sleep", "s_setprio", "s_bitcmp1_b32", "s_bitcmp0_b32"):
                self.uses = set().union(*regs) if regs else set()
            else:
                self.defs = regs[0] if regs else set()
                self.uses = set().union(*regs[1:]) if len(regs) > 1 else set()
                if "saveexec" in op:
                    self.defs |= EXEC
        else:
            raise ValueError("cannot classify: " + text)


def is_valu(i):
    return i.kind in ("valu", "trans", "perm", "rdlane", "wrlane", "dpp")


def vregs(s):
    return {r for r in s if r[0] in "va"}


def sregs(s):
    return {r for r in s if r[0] == "s"}


def need_states(p, c):
    n = 0
    if is_valu(p):
        pv = vregs(p.defs)
        ps = sregs(p.defs)
        if c.kind == "mfma":
            if pv & c.uses:
                n = max(n, 2)
            if ps & EXEC:
                n = max(n, 4)
        if c.kind in ("perm", "dpp") and pv & c.uses:
            n = max(n, 2)
        if c.kind == "rdlane" and pv & c.uses:
            n = max(n, 1)
        if p.kind == "trans" and is_valu(c) and c.kind != "trans" and pv & c.uses:
            n = max(n, 1)
        if p.kind == "trans" and c.kind == "mfma" and pv & c.uses:
            n = max(n, 2)
        if ps:
            if is_valu(c) and ps & c.uses:
                n = max(n, 4 if c.kind in ("rdlane", "wrlane") else 2)
            if c.kind == "vmem" and ps & c.uses:
                n = max(n, 5)
            if c.kind == "salu" and ps & c.uses:
                n = max(n, 2)
            if ps & EXEC:
                if c.kind == "dpp":
                    n = max(n, 5)
                if c.kind in ("rdlane", "wrlane", "perm"):
                    n = max(n, 4)
    if p.kind == "mfma":
        big = {4: 8, 8: 12}[p.passes]
        if c.kind == "mfma":
            if p.defs & c.srcAB:
                n = max(n, big)
            if p.defs & c.srcC:
                if p.defs == c.srcC and p.passes == c.passes:
                    pass
                else:
                    n = max(n, {4: 6, 8: 10}[p.passes])
            elif p.defs & c.defs:
                n = max(n, big)
        elif is_valu(c):
            if p.defs & (c.uses | c.defs):
                n = max(n, big)
            if p.srcC & c.defs:
                n = max(n, {4: 3, 8: 7}[p.passes])
        elif c.kind in ("vmem", "ds"):
            if p.defs & (c.uses | c.defs):
                n = max(n, big)
    if p.kind == "salu":
        if p.defs & M0 and c.kind == "vmem" and c.lds:
            n = max(n, 1)
    if p.kind == "vmem" and p.stdata:
        if p.stdata & c.defs:
            n = max(n, 2 if is_valu(c) else 1)
    return n


class Builder:
    def __init__(self):
        self.out = []
        self.hists = [[]]
        self.saved = {}
        self.vm_issued = 0
        self.vm_done = 0
        self.lg_issued = 0
        self.lg_done = 0
        self.nlabel = 0
        self.nins = 0
        self.nops = 0

    def raw(self, text):
        self.out.append(text)

    def comment(self, text):
        self.out.append("    ; " + text)

    def _push(self, ins):
        for h in self.hists:
            h.append(ins)
            if len(h) > 24:
                del h[0]
        self.out.append("    " + ins.text)
        self.nins += 1

    def I(self, text):
        ins = Ins(text)
        need = 0
        for h in self.hists:
            dist = 0
            for p in reversed(h):
                r = need_states(p, ins) - dist
                need = max(need, r)
                dist += p.states
        while need > 0:
            k = min(need, 16)
            self._push(Ins("s_nop %d" % (k - 1)))
            self.nops += 1
            need -= k
        self._push(ins)
        tok = None
        if ins.kind == "vmem" and not ins.op.startswith("buffer_inv"):
            tok = ("vm", self.vm_issued)
            self.vm_issued += 1
        elif ins.kind == "ds":
            tok = ("lg", self.lg_issued)
            self.lg_issued += 1
        if ins.op.startswith("s_cbranch") or ins.op == "s_branch":
            lab = text.split()[1]
            self.saved.setdefault(lab, []).extend([list(h) for h in self.hists])
            if ins.op == "s_branch":
                self.hists = [[]]
                self._dead = True
        return tok

    def label(self, name):
        self.out.append(name + ":")
        hs = [h for h in self.hists if h] + self.saved.pop(name, [])
        uniq = []
        for h in hs:
            if not any(len(h) == len(u) and all(a is b for a, b in zip(h, u)) for u in uniq):
                uniq.append(h)
        self.hists = uniq[:8] if uniq else [[]]

    def newlabel(self, stem="L"):
        self.nlabel += 1
        return "%s_%d" % (stem, self.nlabel)

    def wait(self, *toks, vm=None, lg=None):
        vmn, lgn = vm, lg
        for t in toks:
            if t is None:
                continue
            if isinstance(t, list):
                self_toks = t
            else:
                self_toks = [t]
            for k, idx in self_toks:
                if k == "vm":
                    if idx >= self.vm_done:
                        n = self.vm_issued - idx - 1
                        vmn = n if vmn is None else min(vmn, n)
                else:
                    if idx >= self.lg_done:
                        n = self.lg_issued - idx - 1
                        lgn = n if lgn is None else min(lgn, n)
        parts = []
        if vmn is not None:
            vmn = min(vmn, 63)
            parts.append("vmcnt(%d)" % vmn)
            self.vm_done = max(self.vm_done, self.vm_issued - vmn)
        if lgn is not None:
            lgn = min(lgn, 15)
            parts.append("lgkmcnt(%d)" % lgn)
            self.lg_done = max(self.lg_done, self.lg_issued - lgn)
        if parts:
            self.I("s_waitcnt " + " ".join(parts))

    def text(self):
        return "\n".join(self.out) + "\n"


def vr(base, n=1, k="v"):
    if n == 1:
        return "%s%d" % (k, base)
    return "%s[%d:%d]" % (k, base, base + n - 1)


def sr(base, n=1):
    return vr(base, n, "s")
```

```python
import sys
import os
sys.path.insert(0, os.path.dirname(os.path.abspath(__file__)))
from asmb import Builder, vr, sr

NAME = "interleave_layers__linear_attn_block__dense_activation_silu__prompt"

PKW = 155 * 1024
WS_KV = 0x4E0000
KVH = 2560
WS_FL = 0x500000
WS_O = 0x600000
WS_X = 0x800000
WS_H = 0xA00000
HSZ = 22 * 8192
WS_STAMP = 0x3000000
WS_SIZE = 0x3100000
OOB = 0x4000000
F_QKV, F_WO, F_W1, F_W2 = 0, 48, 64, 112

L_RING = 65536
L_PACK = 131072
L_STA = 126976
L_STA2 = 155648
LDS_BYTES = 163840

S_X, S_WQ, S_WO, S_W1, S_W2, S_OUT, S_DBG, S_WS = 4, 6, 8, 12, 14, 16, 18, 20
R_X, R_WQ, R_WS, R_OUT, R_DBG, R_PK = 24, 28, 32, 36, 40, 44
sRG, sC, sW, sFAST, sPK, sKV, sFL, sRG64, sRGH, sSTO = 48, 49, 50, 51, 52, 53, 54, 55, 56, 57
sH0 = 58
sSPIN = 61
sEPS, sL2E, sNL2E = 62, 64, 66
sM1, sM2, sM3, sDIAG = 68, 70, 72, 74
sT = 76
sPKC = 96
sXCC = 97

vL16, vA1, vA2, vDMA, vST = 1, 2, 3, 4, 5
vX0, vX1, vOW0, vOW1, vTR, vXS0, vXS1, vWS = 6, 7, 8, 9, 10, 11, 12, 13
vFL, vL4, vSTAMP, vSTA, vSTQ, vZL = 14, 15, 16, 17, 18, 19
vX = 20
vCSQ, vCSK, vCSV = 36, 40, 44
vCS1 = 48
vONE = 60
vACC = 64
vAF = 112
NAF = 12
vS1, vS2 = 160, 164
vAB = 168
vT = 176
SLOTS = [("a", 4 * i) for i in range(64)] + [("v", 192 + 4 * i) for i in range(16)]


def slot_r(s):
    return vr(s[1], 4, s[0])


class Gen:
    def __init__(self, diag=False, sep=False, stop=99):
        self.b = Builder()
        self.diag = diag
        self.sep = sep
        self.stop = stop
        self.free = list(SLOTS)
        self.wq = []
        self.wslot = {}
        self.pk_cur = None
        self.nstamp = 0

    def I(self, t):
        return self.b.I(t)

    def Inc(self, t):
        tok = self.b.I(t)
        self.b.vm_issued -= 1
        return None

    def stamp(self, name):
        if not self.diag:
            return
        b = self.b
        k = self.nstamp
        self.nstamp += 1
        b.comment("stamp %d %s" % (k, name))
        self.I("s_memtime s[94:95]")
        b.wait(lg=0)
        self.I("v_writelane_b32 v%d, s94, %d" % (vSTAMP, k))
        self.stamp_names = getattr(self, "stamp_names", []) + [name]

    def buf(self, kind, idx):
        base = {"O": WS_O, "X": WS_X, "H": WS_H}[kind]
        return base + (idx * 0x1000000 if self.sep else 0)

    def srd(self, r, ptr, size):
        self.I("s_mov_b32 s%d, s%d" % (r, ptr))
        self.I("s_and_b32 s%d, s%d, 0xffff" % (r + 1, ptr + 1))
        self.I("s_mov_b32 s%d, 0x%x" % (r + 2, size))
        self.I("s_mov_b32 s%d, 0x20000" % (r + 3))

    def w_enqueue(self, name, layer, f0, n):
        for i in range(n):
            self.wq.append(((name, layer, i), f0 + i))

    def w_prefetch(self, n):
        k = 0
        while k < n and self.wq and self.free:
            key, f = self.wq.pop(0)
            s = self.free.pop(0)
            grp = f // 4
            if self.pk_cur != grp:
                self.I("s_add_u32 s%d, s%d, 0x%x" % (sPKC, sPK, grp * 4096))
                self.pk_cur = grp
            tok = self.I("buffer_load_dwordx4 %s, v%d, s[%d:%d], s%d offen offset:%d sc1" % (
                slot_r(s), vL16, R_WS, R_WS + 3, sPKC, (f % 4) * 1024))
            self.wslot[key] = (s, tok)
            k += 1
        return k

    def w_get(self, key):
        while key not in self.wslot:
            assert self.w_prefetch(1) == 1, "no free slot for %s" % (key,)
        s, tok = self.wslot[key]
        self.b.wait(tok)
        return slot_r(s)

    def w_release(self, key):
        s, _ = self.wslot.pop(key)
        self.free.append(s)

    def stores2(self, texts):
        b = self.b
        lf, lj = b.newlabel("Lfast"), b.newlabel("Ljoin")
        self.I("s_cmp_eq_u32 s%d, 1" % sFAST)
        self.I("s_cbranch_scc1 %s" % lf)
        for t in texts:
            self.Inc(t + " sc1")
        self.I("s_branch %s" % lj)
        b.label(lf)
        toks = [self.I(t) for t in texts]
        b.label(lj)
        return toks

    def spin_guard(self, lab_loop):
        self.I("s_sub_u32 s%d, s%d, 1" % (sSPIN, sSPIN))
        self.I("s_cmp_lg_u32 s%d, 0" % sSPIN)
        self.I("s_cbranch_scc1 %s" % lab_loop)
        self.I("s_branch L_end")

    def publish(self, toks, phase):
        b = self.b
        b.wait(toks)
        self.I("v_mov_b32 v%d, %d" % (vT, phase))
        self.I("s_lshl_b32 s%d, s%d, 4" % (sT, sC))
        self.I("s_lshl_b32 s%d, s%d, 2" % (sT + 1, sW))
        self.I("s_add_u32 s%d, s%d, s%d" % (sT, sT, sT + 1))
        self.I("s_add_u32 s%d, s%d, s%d" % (sT, sT, sFL))
        self.I("s_mov_b64 exec, 1")
        self.stores2(["buffer_store_dword v%d, off, s[%d:%d], s%d" % (vT, R_WS, R_WS + 3, sT)])
        self.I("s_mov_b64 exec, -1")

    def poll_flags(self, phase):
        b = self.b
        lp, ld = b.newlabel("Lpoll"), b.newlabel("Lpd")
        b.label(lp)
        self.I("buffer_load_dword v%d, v%d, s[%d:%d], s%d offen sc1" % (vT, vFL, R_WS, R_WS + 3, sFL))
        b.wait(vm=0)
        self.I("v_cmp_le_u32 vcc, %d, v%d" % (phase, vT))
        self.I("s_cmp_eq_u64 vcc, exec")
        self.I("s_cbranch_scc1 %s" % ld)
        self.spin_guard(lp)
        b.label(ld)

    def dma_fm(self, base_s, ds_list, slot_of):
        toks = {}
        for ds in ds_list:
            n = 1 if ds == 21 else 2
            self.I("s_add_u32 s%d, s%d, 0x%x" % (sT + 2, base_s, ds * 8192))
            self.I("s_add_u32 m0, s%d, 0x%x" % (sT + 3, slot_of(ds) * 8192))
            toks[ds] = [self.I("buffer_load_dwordx4 v%d, s[%d:%d], s%d offen offset:%d sc1 lds" % (
                vDMA, R_WS, R_WS + 3, sT + 2, h * 1024)) for h in range(n)]
        return toks

    def lds_addr(self, off):
        return ((vL16, vA1, vA2)[off >> 16], off & 0xffff)

    def gemm(self, items, chunk_open, depth, fillers=None):
        b = self.b
        fillers = fillers or {}
        n = len(items)
        toks = [None] * n
        opened = set()
        state = {"ip": 0}

        def issue():
            k = state["ip"]
            a, off, ch, _ = items[k]
            if ch is not None and ch not in opened:
                opened.add(ch)
                chunk_open(ch)
            toks[k] = self.I("ds_read_b128 %s, v%d offset:%d" % (vr(vAF + 4 * (k % NAF), 4), a, off))
            state["ip"] += 1

        while state["ip"] < min(depth, n):
            issue()
        for j in range(n):
            thunks = items[j][3](vr(vAF + 4 * (j % NAF), 4))
            b.wait(toks[j])
            first = True
            for th in thunks:
                th()
                if first and state["ip"] < n and state["ip"] < j + 1 + depth:
                    issue()
                first = False
            for f in fillers.get(j, []):
                f()

    def mf(self, d, a, bb, c=None):
        dd = vr(d, 4)
        cc = dd if c is None else c
        return lambda: self.I("v_mfma_f32_16x16x32_bf16 %s, %s, %s, %s" % (dd, a, bb, cc))

    def stats_publish(self, lsta):
        b = self.b
        t = vT
        self.I("v_cndmask_b32 v%d, v%d, v%d, s[%d:%d]" % (t, vS2, vS2 + 1, sM1, sM1 + 1))
        self.I("v_cndmask_b32 v%d, v%d, v%d, s[%d:%d]" % (t, t, vS2 + 2, sM2, sM2 + 1))
        self.I("v_cndmask_b32 v%d, v%d, v%d, s[%d:%d]" % (t, t, vS2 + 3, sM3, sM3 + 1))
        self.I("v_mul_f32 v%d, 0x3b000000, v%d" % (t + 1, vS1))
        self.I("v_mul_f32 v%d, 0x3b000000, v%d" % (t, t))
        self.I("v_fma_f32 v%d, -v%d, v%d, v%d" % (t, t + 1, t + 1, t))
        self.I("v_max_f32 v%d, 0, v%d" % (t, t))
        self.I("v_add_f32 v%d, 0x3727c5ac, v%d" % (t, t))
        self.I("v_rsq_f32 v%d, v%d" % (t + 2, t))
        self.I("v_mul_f32_e64 v%d, -v%d, v%d" % (t + 3, t + 1, t + 2))
        self.I("v_and_b32 v%d, 15, v0" % (t + 4))
        self.I("s_lshl_b32 s%d, s%d, 4" % (sT, sW))
        self.I("v_add_u32 v%d, s%d, v%d" % (t + 4, sT, t + 4))
        self.I("v_lshlrev_b32 v%d, 2, v%d" % (t + 5, t + 4))
        self.I("v_lshlrev_b32 v%d, 3, v%d" % (t + 4, t + 4))
        self.I("v_add_u32 v%d, 0x%x, v%d" % (t + 5, lsta, t + 5))
        self.I("v_add_u32 v%d, 0x%x, v%d" % (t + 4, lsta + 512, t + 4))
        self.I("s_mov_b64 exec, s[%d:%d]" % (sDIAG, sDIAG + 1))
        self.I("ds_write_b32 v%d, v%d" % (t + 5, t + 2))
        self.I("ds_write_b32 v%d, v%d offset:256" % (t + 5, t + 3))
        self.I("ds_write_b64 v%d, v[%d:%d]" % (t + 4, t + 2, t + 3))
        self.I("s_mov_b64 exec, -1")
        b.wait(lg=0)
        self.I("s_barrier")

    def stats_read_q(self, lsta):
        self.I("v_add_u32 v%d, 0x%x, v%d" % (vT + 4, lsta + 512, vSTQ))
        return [self.I("ds_read_b64 v[%d:%d], v%d offset:%d" % (vAB + 2 * rt, vAB + 2 * rt + 1, vT + 4, rt * 128))
                for rt in range(4)]

    def stats_read_kv(self, lsta):
        self.I("v_add_u32 v%d, 0x%x, v%d" % (vT + 5, lsta, vSTA))
        toks = []
        for rt in range(4):
            toks.append(self.I("ds_read_b128 %s, v%d offset:%d" % (vr(vAF + 4 * rt, 4), vT + 5, rt * 64)))
            toks.append(self.I("ds_read_b128 %s, v%d offset:%d" % (vr(vAF + 16 + 4 * rt, 4), vT + 5, 256 + rt * 64)))
        return toks

    def phi_pairs(self, pairs):
        for c0 in range(0, len(pairs), 4):
            grp = pairs[c0:c0 + 4]
            for k, (t, d) in enumerate(grp):
                self.I("v_pk_mul_f32 v[%d:%d], v[%d:%d], s[%d:%d]" % (vT + 2 * k, vT + 2 * k + 1, t, t + 1, sL2E, sL2E + 1))
            for k, (t, d) in enumerate(grp):
                self.I("v_exp_f32_e64 v%d, v%d clamp" % (vT + 2 * k, vT + 2 * k))
                self.I("v_max_f32 v%d, s%d, v%d" % (t, sEPS, t))
                self.I("v_exp_f32_e64 v%d, v%d clamp" % (vT + 2 * k + 1, vT + 2 * k + 1))
                self.I("v_max_f32 v%d, s%d, v%d" % (t + 1, sEPS, t + 1))
            for k, (t, d) in enumerate(grp):
                self.I("v_pk_add_f32 v[%d:%d], v[%d:%d], v[%d:%d]" % (t, t + 1, t, t + 1, vT + 2 * k, vT + 2 * k + 1))
            for k, (t, d) in enumerate(grp):
                self.I("v_cvt_pk_bf16_f32 v%d, v%d, v%d" % (d, t, t + 1))

    def prologue(self):
        b = self.b
        I = self.I
        I("s_cmp_ge_u32 s2, 256")
        I("s_cbranch_scc1 L_end")
        I("s_load_dwordx4 s[4:7], s[0:1], 0")
        I("s_load_dwordx2 s[8:9], s[0:1], 16")
        I("s_load_dwordx4 s[12:15], s[0:1], 32")
        I("s_load_dwordx4 s[16:19], s[0:1], 48")
        I("s_load_dwordx2 s[20:21], s[0:1], 64")
        if self.diag:
            I("v_mov_b32 v%d, 0" % vSTAMP)
        I("s_getreg_b32 s%d, hwreg(HW_REG_XCC_ID, 0, 4)" % sXCC)
        I("v_lshrrev_b32 v%d, 6, v0" % vT)
        I("v_and_b32 v0, 63, v0")
        I("v_readfirstlane_b32 s%d, v%d" % (sW, vT))
        I("s_and_b32 s%d, s2, 7" % sT)
        I("s_lshr_b32 s%d, s2, 3" % (sT + 1))
        I("s_and_b32 s%d, s%d, 7" % (sC, sT + 1))
        I("s_lshr_b32 s%d, s%d, 3" % (sT + 1, sT + 1))
        I("s_lshl_b32 s%d, s%d, 2" % (sT, sT))
        I("s_add_u32 s%d, s%d, s%d" % (sRG, sT, sT + 1))
        I("s_mov_b32 s%d, 0x100000" % sSPIN)
        I("s_getpc_b64 s[90:91]")
        b.label("L_pc")
        I("s_lshr_b32 s%d, s2, 3" % sT)
        I("s_lshl_b32 s%d, s%d, 2" % (sT, sT))
        I("s_add_u32 s%d, s%d, s%d" % (sT, sT, sW))
        I("s_and_b32 s%d, s%d, 15" % (sT, sT))
        I("s_lshl_b32 s%d, s%d, 13" % (sT, sT))
        I("v_lshlrev_b32 v%d, 7, v0" % vT)
        I("v_add_u32 v%d, s%d, v%d" % (vT, sT, vT))
        I("v_min_u32 v%d, L_end-L_pc, v%d" % (vT, vT))
        I("global_load_dword v%d, v%d, s[90:91]" % (vT + 1, vT))
        I("v_lshlrev_b32 v%d, 4, v0" % vL16)
        I("v_add_u32 v%d, 0x10000, v%d" % (vA1, vL16))
        I("v_add_u32 v%d, 0x20000, v%d" % (vA2, vL16))
        I("s_lshl_b32 s%d, s%d, 11" % (sT, sW))
        I("v_add_u32 v%d, s%d, v%d" % (vDMA, sT, vL16))
        I("v_lshlrev_b32 v%d, 2, v0" % vL4)
        I("v_and_b32 v%d, 0x7c, v%d" % (vFL, vL4))
        i_, g_ = vT + 2, vT + 3
        I("v_and_b32 v%d, 15, v0" % i_)
        I("v_lshrrev_b32 v%d, 4, v0" % g_)
        I("v_lshrrev_b32 v%d, 1, v%d" % (vT + 4, g_))
        I("v_lshlrev_b32 v%d, 8, v%d" % (vT + 4, vT + 4))
        I("v_lshl_add_u32 v%d, v%d, 4, v%d" % (vT + 4, i_, vT + 4))
        I("v_and_b32 v%d, 1, v%d" % (vT + 5, g_))
        I("v_lshl_add_u32 v%d, v%d, 3, v%d" % (vST, vT + 5, vT + 4))
        I("v_lshlrev_b32 v%d, 4, v%d" % (vSTA, g_))
        I("v_lshlrev_b32 v%d, 3, v%d" % (vSTQ, i_))
        I("v_add_u32 v%d, 0x400, v%d" % (vZL, vSTA))
        I("v_lshrrev_b32 v%d, 3, v%d" % (vT + 4, i_))
        I("v_lshlrev_b32 v%d, 10, v%d" % (vT + 4, vT + 4))
        I("v_and_b32 v%d, 7, v%d" % (vT + 5, i_))
        I("v_lshl_add_u32 v%d, v%d, 7, v%d" % (vT + 4, vT + 5, vT + 4))
        I("v_lshrrev_b32 v%d, 1, v%d" % (vT + 5, i_))
        I("v_xor_b32 v%d, v%d, v%d" % (vT + 5, vT + 5, g_))
        I("v_lshl_add_u32 v%d, v%d, 4, v%d" % (vX0, vT + 5, vT + 4))
        I("v_xor_b32 v%d, 64, v%d" % (vX1, vX0))
        I("v_add_u32 v%d, s%d, v%d" % (vOW0, sT, vX0))
        I("v_add_u32 v%d, s%d, v%d" % (vOW1, sT, vX1))
        l3, l7 = vT + 6, vT + 7
        I("v_lshrrev_b32 v%d, 3, v0" % l3)
        I("v_and_b32 v%d, 7, v0" % l7)
        I("v_xor_b32 v%d, v%d, v%d" % (vT + 4, l7, g_))
        I("v_lshlrev_b32 v%d, 4, v%d" % (vT + 4, vT + 4))
        I("v_lshl_add_u32 v%d, v%d, 10, v%d" % (vT + 4, l3, vT + 4))
        I("s_lshl_b32 s%d, s%d, 14" % (sT + 1, sW))
        I("v_add_u32 v%d, s%d, v%d" % (vXS0, sT + 1, vT + 4))
        I("v_xor_b32 v%d, 64, v%d" % (vXS1, vXS0))
        I("v_add_u32 v%d, 7168, v%d" % (vXS1, vXS1))
        q0 = vT + 8
        I("v_and_b32 v%d, 1, v%d" % (vT + 4, g_))
        I("v_lshlrev_b32 v%d, 1, v%d" % (vT + 4, vT + 4))
        I("v_xor_b32 v%d, v%d, v%d" % (q0, l7, vT + 4))
        I("v_lshlrev_b32 v%d, 4, v%d" % (q0, q0))
        I("s_and_b32 s%d, s%d, 1" % (sT + 1, sW))
        I("s_lshl_b32 s%d, s%d, 6" % (sT + 1, sT + 1))
        I("v_xor_b32 v%d, s%d, v%d" % (vT + 4, sT + 1, q0))
        I("s_lshl_b32 s%d, s%d, 3" % (sT + 1, sW))
        I("v_add_u32 v%d, s%d, v%d" % (vT + 5, sT + 1, l3))
        I("v_mul_u32_u24 v%d, 3072, v%d" % (vT + 5, vT + 5))
        I("v_add_u32 v%d, v%d, v%d" % (vWS, vT + 4, vT + 5))
        tc = vT + 9
        I("v_bfe_u32 v%d, v0, 2, 2" % (vT + 4))
        I("v_bfe_u32 v%d, v0, 3, 1" % (vT + 5))
        I("v_lshlrev_b32 v%d, 1, v%d" % (vT + 5, vT + 5))
        I("v_bfe_u32 v%d, v0, 4, 1" % (vT + 10))
        I("v_lshl_add_u32 v%d, v%d, 2, v%d" % (vT + 5, vT + 10, vT + 5))
        I("v_bfe_u32 v%d, v0, 1, 1" % (vT + 10))
        I("v_xor_b32 v%d, v%d, v%d" % (vT + 5, vT + 5, vT + 10))
        I("v_lshlrev_b32 v%d, 4, v%d" % (vT + 5, vT + 5))
        I("v_lshl_add_u32 v%d, v%d, 7, v%d" % (tc, vT + 4, vT + 5))
        I("v_and_b32 v%d, 1, v0" % (vT + 10))
        I("v_lshl_add_u32 v%d, v%d, 3, v%d" % (tc, vT + 10, tc))
        I("s_lshl_b32 s%d, s%d, 5" % (sT + 1, sW))
        I("v_xor_b32 v%d, s%d, v%d" % (vT + 4, sT + 1, tc))
        I("v_mul_u32_u24 v%d, 3072, v%d" % (vT + 5, g_))
        I("v_add_u32 v%d, v%d, v%d" % (vT + 4, vT + 4, vT + 5))
        I("v_add_u32 v%d, 0x%x, v%d" % (vTR, L_RING, vT + 4))
        for k in range(4):
            I("v_mov_b32 v%d, 0x3f803f80" % (vONE + k))
        for r, val in ((sEPS, 0x358637bd), (sL2E, 0x3fb8aa3b), (sNL2E, 0xbfb8aa3b)):
            I("s_mov_b32 s%d, 0x%x" % (r, val))
            I("s_mov_b32 s%d, 0x%x" % (r + 1, val))
        for r, val in ((sM1, 0x22222222), (sM2, 0x44444444), (sM3, 0x88888888)):
            I("s_mov_b32 s%d, 0x%x" % (r, val))
            I("s_mov_b32 s%d, 0x%x" % (r + 1, val))
        I("s_mov_b32 s%d, 0x00f0000f" % sDIAG)
        I("s_mov_b32 s%d, 0xf0000f00" % (sDIAG + 1))
        I("s_lshl_b32 s%d, s%d, 2" % (sT, sC))
        I("s_add_u32 s%d, s%d, s%d" % (sT, sT, sW))
        I("s_mul_i32 s%d, s%d, %d" % (sPK, sT, PKW))
        I("s_mul_i32 s%d, s%d, %d" % (sKV, sT, KVH))
        I("s_add_u32 s%d, s%d, 0x%x" % (sKV, sKV, WS_KV))
        I("s_lshl_b32 s%d, s%d, 7" % (sFL, sRG))
        I("s_add_u32 s%d, s%d, 0x%x" % (sFL, sFL, WS_FL))
        I("s_lshl_b32 s%d, s%d, 16" % (sRG64, sRG))
        I("s_mul_i32 s%d, s%d, %d" % (sRGH, sRG, HSZ))
        I("s_lshl_b32 s%d, s%d, 13" % (sSTO, sC))
        I("s_lshl_b32 s%d, s%d, 9" % (sT + 1, sW))
        I("s_add_u32 s%d, s%d, s%d" % (sSTO, sSTO, sT + 1))
        I("s_mul_i32 s%d, s%d, 3" % (sT, sT))
        for t in range(3):
            I("s_add_u32 s%d, s%d, %d" % (sT + 1, sT, t))
            I("s_lshr_b32 s%d, s%d, 2" % (sT + 2, sT + 1))
            I("s_lshl_b32 s%d, s%d, 13" % (sT + 2, sT + 2))
            I("s_and_b32 s%d, s%d, 3" % (sT + 3, sT + 1))
            I("s_lshl_b32 s%d, s%d, 9" % (sT + 3, sT + 3))
            I("s_add_u32 s%d, s%d, s%d" % (sT + 2, sT + 2, sT + 3))
            I("s_add_u32 s%d, s%d, s%d" % (sT + 2, sT + 2, sRGH))
            I("s_cmp_lt_u32 s%d, 86" % (sT + 1))
            I("s_cselect_b32 s%d, s%d, 0x%x" % (sH0 + t, sT + 2, OOB))
        b.wait(lg=0)
        self.stamp("start")
        self.srd(R_X, S_X, 2048 * 1024)
        self.srd(R_WQ, S_WQ, 512 * 3072)
        self.srd(R_WS, S_WS, WS_SIZE)
        self.srd(R_OUT, S_OUT, 2048 * 1024)
        self.srd(R_DBG, S_DBG, 256)

        pack_toks = []
        for u in range(2):
            dst = 80 + 4 * u
            uid = sT
            I("s_lshl_b32 s%d, s%d, 2" % (uid, sRG))
            I("s_add_u32 s%d, s%d, s%d" % (uid, uid, sW))
            if u:
                I("s_add_u32 s%d, s%d, 128" % (uid, uid))
            src, strd = sT + 1, sT + 2
            lw1, lw2, lq, lnone, lgo = [b.newlabel("Lpk") for _ in range(5)]
            I("s_mul_i32 s88, s%d, %d" % (sC, 4 * PKW))
            I("s_mov_b32 s%d, 0x20000" % (R_PK + 3))
            if u == 0:
                I("s_cmp_ge_u32 s%d, 16" % uid)
                I("s_cbranch_scc1 %s" % lw1)
                I("s_mov_b32 s%d, s%d" % (R_PK, S_WO))
                I("s_and_b32 s%d, s%d, 0xffff" % (R_PK + 1, S_WO + 1))
                I("s_mov_b32 s%d, %d" % (R_PK + 2, 512 * 1024))
                I("s_movk_i32 s%d, 1024" % strd)
                I("s_lshl_b32 s%d, s%d, 15" % (src, uid))
                I("s_lshl_b32 s89, s%d, 7" % sC)
                I("s_add_u32 s%d, s%d, s89" % (src, src))
                I("s_add_u32 s89, s%d, %d" % (uid, F_WO))
                I("s_lshl_b32 s89, s89, 10")
                I("s_add_u32 s88, s88, s89")
                for t in range(4):
                    I("s_add_u32 s%d, s88, %d" % (dst + t, t * PKW))
                I("s_branch %s" % lgo)
                b.label(lw1)
                I("s_cmp_ge_u32 s%d, 64" % uid)
                I("s_cbranch_scc1 %s" % lw2)
                I("s_sub_u32 s%d, s%d, 16" % (uid, uid))
                I("s_mul_i32 s89, s%d, 43" % uid)
                I("s_lshr_b32 s89, s89, 7")
                I("s_mul_i32 s92, s89, 3")
                I("s_sub_u32 s92, s%d, s92" % uid)
                I("s_mov_b32 s%d, s%d" % (R_PK, S_W1))
                I("s_and_b32 s%d, s%d, 0xffff" % (R_PK + 1, S_W1 + 1))
                I("s_mov_b32 s%d, %d" % (R_PK + 2, 512 * 2752))
                I("s_movk_i32 s%d, 2752" % strd)
                I("s_mul_i32 s%d, s89, %d" % (src, 32 * 2752))
                I("s_mul_i32 s93, s%d, 384" % sC)
                I("s_add_u32 s%d, s%d, s93" % (src, src))
                I("s_lshl_b32 s93, s92, 7")
                I("s_add_u32 s%d, s%d, s93" % (src, src))
                I("s_mul_i32 s89, s89, 3072")
                I("s_add_u32 s88, s88, s89")
                I("s_add_u32 s88, s88, %d" % (F_W1 * 1024))
                for t in range(4):
                    I("s_lshl_b32 s93, s92, 2")
                    I("s_add_u32 s93, s93, %d" % t)
                    I("s_mul_i32 s89, s93, 43")
                    I("s_lshr_b32 s89, s89, 7")
                    I("s_mul_i32 s%d, s89, %d" % (dst + t, PKW - 3072))
                    I("s_lshl_b32 s93, s93, 10")
                    I("s_add_u32 s%d, s%d, s93" % (dst + t, dst + t))
                    I("s_add_u32 s%d, s%d, s88" % (dst + t, dst + t))
                I("s_mul_i32 s93, s%d, 3" % sC)
                I("s_add_u32 s93, s93, s92")
                I("s_cmp_ge_u32 s93, 22")
                I("s_cbranch_scc1 %s" % lnone)
                I("s_branch %s" % lgo)
                b.label(lw2)
                I("s_cmp_ge_u32 s%d, 107" % uid)
                I("s_cbranch_scc1 %s" % lq)
                I("s_sub_u32 s%d, s%d, 64" % (uid, uid))
                I("s_mov_b32 s%d, s%d" % (R_PK, S_W2))
                I("s_and_b32 s%d, s%d, 0xffff" % (R_PK + 1, S_W2 + 1))
                I("s_mov_b32 s%d, %d" % (R_PK + 2, 1376 * 1024))
                I("s_movk_i32 s%d, 1024" % strd)
                I("s_lshl_b32 s%d, s%d, 15" % (src, uid))
                I("s_lshl_b32 s89, s%d, 7" % sC)
                I("s_add_u32 s%d, s%d, s89" % (src, src))
                I("s_add_u32 s89, s%d, %d" % (uid, F_W2))
                I("s_lshl_b32 s89, s89, 10")
                I("s_add_u32 s88, s88, s89")
                for t in range(4):
                    I("s_add_u32 s%d, s88, %d" % (dst + t, t * PKW))
                I("s_branch %s" % lgo)
            else:
                I("s_cmp_ge_u32 s%d, 155" % uid)
                I("s_cbranch_scc1 %s" % lnone)
            b.label(lq)
            I("s_sub_u32 s%d, s%d, 107" % (uid, uid))
            I("s_mul_i32 s89, s%d, 43" % uid)
            I("s_lshr_b32 s89, s89, 7")
            I("s_mul_i32 s92, s89, 3")
            I("s_sub_u32 s92, s%d, s92" % uid)
            I("s_mov_b32 s%d, s%d" % (R_PK, S_WQ))
            I("s_and_b32 s%d, s%d, 0xffff" % (R_PK + 1, S_WQ + 1))
            I("s_mov_b32 s%d, %d" % (R_PK + 2, 512 * 3072))
            I("s_movk_i32 s%d, 3072" % strd)
            I("s_mul_i32 s%d, s89, %d" % (src, 32 * 3072))
            I("s_lshl_b32 s93, s92, 10")
            I("s_add_u32 s%d, s%d, s93" % (src, src))
            I("s_lshl_b32 s93, s%d, 7" % sC)
            I("s_add_u32 s%d, s%d, s93" % (src, src))
            I("s_lshl_b32 s89, s%d, 10" % uid)
            I("s_add_u32 s88, s88, s89")
            for t in range(4):
                I("s_add_u32 s%d, s88, %d" % (dst + t, t * PKW))
            I("s_branch %s" % lgo)
            b.label(lnone)
            I("s_mov_b32 s%d, s%d" % (R_PK, S_WQ))
            I("s_and_b32 s%d, s%d, 0xffff" % (R_PK + 1, S_WQ + 1))
            I("s_mov_b32 s%d, 0" % (R_PK + 2))
            I("s_movk_i32 s%d, 1024" % strd)
            I("s_mov_b32 s%d, 0" % src)
            for t in range(4):
                I("s_mov_b32 s%d, 0x%x" % (dst + t, OOB))
            b.label(lgo)
            I("v_mul_lo_u32 v%d, v%d, s%d" % (vT + 4, l3, strd))
            I("v_add_u32 v%d, v%d, v%d" % (vT + 10, vT + 4, q0))
            I("v_xor_b32 v%d, 64, v%d" % (vT + 5, q0))
            I("v_add_u32 v%d, v%d, v%d" % (vT + 11, vT + 4, vT + 5))
            I("s_lshl_b32 s%d, s%d, 3" % (strd, strd))
            I("s_lshl_b32 s89, s%d, 13" % sW)
            I("s_add_u32 m0, s89, 0x%x" % (L_PACK + u * 4096))
            for q in range(4):
                pack_toks.append(I("buffer_load_dwordx4 v%d, s[%d:%d], s%d offen lds" % (
                    vT + 10 + (q & 1), R_PK, R_PK + 3, src)))
                if q < 3:
                    I("s_add_u32 s%d, s%d, s%d" % (src, src, strd))
                    I("s_add_u32 m0, m0, 1024")
        I("v_lshlrev_b32 v%d, 10, v%d" % (vT + 4, i_))
        I("v_lshl_add_u32 v%d, v%d, 3, v%d" % (vT + 4, g_, vT + 4))
        I("s_lshl_b32 s%d, s%d, 7" % (sT, sC))
        I("s_lshl_b32 s%d, s%d, 5" % (sT + 1, sW))
        I("s_add_u32 s%d, s%d, s%d" % (sT, sT, sT + 1))
        I("s_add_u32 s%d, s%d, s%d" % (sT, sT, sRG64))
        res_toks = []
        for rt in range(4):
            res_toks.append(I("buffer_load_dwordx2 v[%d:%d], v%d, s[%d:%d], s%d offen" % (
                vAB + 2 * rt, vAB + 2 * rt + 1, vT + 4, R_X, R_X + 3, sT)))
            if rt < 3:
                I("s_add_u32 s%d, s%d, 16384" % (sT, sT))
        I("v_mov_b32 v%d, 0" % (vT + 12))
        I("s_lshl_b32 s%d, s%d, 4" % (sT, sC))
        I("s_lshl_b32 s%d, s%d, 2" % (sT + 1, sW))
        I("s_add_u32 s%d, s%d, s%d" % (sT, sT, sT + 1))
        I("s_add_u32 s%d, s%d, s%d" % (sT, sT, sFL))
        I("s_mul_i32 s%d, s%d, 80" % (sT + 1, sRG))
        I("s_add_u32 s%d, s%d, s%d" % (sT + 1, sT + 1, sKV))
        I("s_mov_b64 exec, 1")
        I("buffer_store_dword v%d, off, s[%d:%d], s%d sc1" % (vT + 12, R_WS, R_WS + 3, sT))
        I("s_mov_b64 exec, 0xfffff")
        I("buffer_store_dword v%d, v%d, s[%d:%d], s%d offen sc1" % (vT + 12, vL4, R_WS, R_WS + 3, sT + 1))
        I("s_mov_b64 exec, -1")
        return pack_toks, res_toks, tc, g_

    def p1_first(self, pack_toks, res_toks, tc, g_):
        b = self.b
        I = self.I
        sXO, sWO_ = 78, 79
        I("s_mov_b32 s%d, s%d" % (sXO, sRG64))
        I("s_lshl_b32 s%d, s%d, 7" % (sWO_, sC))
        I("s_lshl_b32 s92, s%d, 11" % sW)
        I("s_mul_i32 s93, s%d, 3072" % sW)
        I("s_add_u32 s93, s93, 0x%x" % L_RING)
        tokA, tokW = {}, {}

        def issue(ks):
            if ks % 2 == 0:
                ds = ks // 2
                I("s_add_u32 m0, s92, 0x%x" % (ds * 8192))
                tokA[ds] = [I("buffer_load_dwordx4 v%d, s[%d:%d], s%d offen lds" % (vXS0, R_X, R_X + 3, sXO)),
                            I("buffer_load_dwordx4 v%d, s[%d:%d], s%d offen offset:1024 lds" % (vXS1, R_X, R_X + 3, sXO))]
                I("s_add_u32 s%d, s%d, 128" % (sXO, sXO))
            I("s_add_u32 m0, s93, 0x%x" % ((ks % 5) * 12288))
            tokW[ks] = [I("buffer_load_dwordx4 v%d, s[%d:%d], s%d offen offset:%d lds" % (
                vWS, R_WQ, R_WQ + 3, sWO_, p * 1024)) for p in range(3)]
            I("s_add_u32 s%d, s%d, %d" % (sWO_, sWO_, 32 * 3072))

        for ks in range(5):
            issue(ks)
        I("s_lshl_b32 s%d, s%d, 13" % (sT, sW))
        I("s_add_u32 s%d, s%d, 0x%x" % (sT, sT, L_PACK))
        I("v_lshlrev_b32 v%d, 10, v%d" % (vT + 4, g_))
        I("v_add_u32 v%d, s%d, v%d" % (vT + 4, sT, vT + 4))
        for t in range(4):
            I("v_xor_b32 v%d, %d, v%d" % (vT + 12 + t, 32 * t, tc))
            I("v_add_u32 v%d, v%d, v%d" % (vT + 12 + t, vT + 12 + t, vT + 4))
        b.wait(pack_toks, res_toks)
        self.stamp("packld")
        rt_ = []
        for u in range(2):
            for t in range(4):
                d = vACC + (u * 4 + t) * 4
                for hh in range(2):
                    rt_.append(I("ds_read_b64_tr_b16 v[%d:%d], v%d offset:%d" % (
                        d + 2 * hh, d + 2 * hh + 1, vT + 12 + t, u * 4096 + hh * 512)))
        for rt in range(4):
            for k in range(2):
                s = vAB + 2 * rt + k
                I("v_lshlrev_b32 v%d, 16, v%d" % (vX + 4 * rt + 2 * k, s))
                I("v_and_b32 v%d, 0xffff0000, v%d" % (vX + 4 * rt + 2 * k + 1, s))
        b.wait(lg=0)
        for u in range(2):
            for t in range(4):
                I("buffer_store_dwordx4 %s, v%d, s[%d:%d], s%d offen sc1" % (
                    vr(vACC + (u * 4 + t) * 4, 4), vL16, R_WS, R_WS + 3, 80 + 4 * u + t))
        for ks in range(17):
            if ks < 16:
                b.wait(tokW[ks], tokA[ks // 2])
                I("s_barrier")
                if ks == 0:
                    self.stamp("w0")
                if ks >= 1 and ks + 4 < 16:
                    issue(ks + 4)
                if ks == 5:
                    lx = b.newlabel("Lann")
                    I("s_cmp_lg_u32 s%d, 0" % sW)
                    I("s_cbranch_scc1 %s" % lx)
                    I("s_or_b32 s%d, s%d, 0x80" % (sT, sXCC))
                    I("v_mov_b32 v%d, s%d" % (vT, sT))
                    I("s_lshl_b32 s%d, s%d, 3" % (sT, sRG))
                    I("s_add_u32 s%d, s%d, s%d" % (sT, sT, sC))
                    I("s_mov_b64 exec, 1")
                    self.Inc("buffer_store_byte v%d, off, s[%d:%d], s%d sc1" % (vT, R_DBG, R_DBG + 3, sT))
                    I("s_mov_b64 exec, -1")
                    b.label(lx)
                for p in range(3):
                    s = self.free.pop(0)
                    self.wslot[("qkv", 0, 3 * ks + p)] = (s, None)
                    for hh in range(2):
                        I("ds_read_b64_tr_b16 %s, v%d offset:%d" % (
                            vr(s[1] + 2 * hh, 2, s[0]), vTR, (ks % 5) * 12288 + p * 1024 + hh * 512))
                fb = vAF + (ks & 1) * 20
                ds, h = ks // 2, ks & 1
                for rt in range(4):
                    I("ds_read_b128 %s, v%d offset:%d" % (vr(fb + 4 * rt, 4), (vX0, vX1)[h], ds * 8192 + rt * 2048))
                I("ds_read_b128 %s, v%d offset:%d" % (vr(fb + 16, 4), (vOW0, vOW1)[h], ds * 8192))
            if ks >= 1:
                k1 = ks - 1
                fb = vAF + (k1 & 1) * 20
                c0 = "0" if k1 == 0 else None
                wq = slot_r(self.wslot[("qkv", 0, 3 * k1)][0])
                wk = slot_r(self.wslot[("qkv", 0, 3 * k1 + 1)][0])
                wv = slot_r(self.wslot[("qkv", 0, 3 * k1 + 2)][0])
                one = vr(vONE, 4)
                for rt in range(4):
                    self.mf(vACC + 16 + 4 * rt, vr(fb + 4 * rt, 4), wk, c0)()
                    self.mf(vACC + 32 + 4 * rt, vr(fb + 4 * rt, 4), wv, c0)()
                own = vr(fb + 16, 4)
                self.mf(vS1, one, own, c0)()
                self.mf(vS2, own, own, c0)()
                self.mf(vCSQ, wq, one, c0)()
                self.mf(vCSK, one, wk, c0)()
                self.mf(vCSV, one, wv, c0)()
            b.wait(lg=0)

    def dbg_check(self):
        b = self.b
        I = self.I
        lp, ld = b.newlabel("Ldbg"), b.newlabel("Ldbgd")
        b.label(lp)
        I("buffer_load_dword v%d, v%d, s[%d:%d], 0 offen sc1" % (vT + 8, vL4, R_DBG, R_DBG + 3))
        b.wait(vm=0)
        I("v_and_b32 v%d, 0x80808080, v%d" % (vT + 9, vT + 8))
        I("v_cmp_eq_u32 vcc, 0x80808080, v%d" % (vT + 9))
        I("s_cmp_eq_u64 vcc, exec")
        I("s_cbranch_scc1 %s" % ld)
        self.spin_guard(lp)
        b.label(ld)
        I("s_lshl_b32 s%d, s%d, 1" % (sT, sRG))
        I("s_add_u32 s%d, s%d, 1" % (sT + 1, sT))
        I("v_readlane_b32 s%d, v%d, s%d" % (sT + 2, vT + 8, sT))
        I("v_readlane_b32 s%d, v%d, s%d" % (sT + 3, vT + 8, sT + 1))
        I("s_and_b32 s%d, s%d, 0xff" % (sT, sT + 2))
        I("s_mul_i32 s%d, s%d, 0x01010101" % (sT, sT))
        I("s_xor_b32 s%d, s%d, s%d" % (sT + 2, sT + 2, sT))
        I("s_xor_b32 s%d, s%d, s%d" % (sT + 3, sT + 3, sT))
        I("s_or_b32 s%d, s%d, s%d" % (sT + 2, sT + 2, sT + 3))
        I("s_cmp_eq_u32 s%d, 0" % (sT + 2))
        I("s_cselect_b32 s%d, 1, 0" % sFAST)
        if os.environ.get("FORCE_SLOW"):
            I("s_mov_b32 s%d, 0" % sFAST)

    def start_tile(self, kind, idx, nds, first):
        I = self.I
        rg = sRGH if kind == "H" else sRG64
        I("s_add_u32 s%d, s%d, 0x%x" % (sT + 4, rg, self.buf(kind, idx)))
        I("s_lshl_b32 s%d, s%d, 11" % (sT + 3, sW))
        return self.dma_fm(sT + 4, list(range(min(first, nds))), lambda ds: ds % 19)

    def chunker(self, toks, bounds, extra=None):
        def chunk_of(ds):
            for k, e in enumerate(bounds):
                if ds <= e:
                    return k
            raise ValueError

        def chunk_open(ch):
            lo = 0 if ch == 0 else bounds[ch - 1] + 1
            self.b.wait(*[toks[d] for d in range(lo, bounds[ch] + 1)])
            self.I("s_barrier")
            if extra:
                extra(ch)
        return chunk_of, chunk_open

    def p1_kv_pass(self, layer, toks):
        chunk_of, chunk_open = self.chunker(toks, [0, 1, 3, 7])
        items = []
        one = vr(vONE, 4)
        for ks in range(16):
            ds, h = ks // 2, ks & 1
            c0 = "0" if ks == 0 else None
            for rt in range(4):
                def mfs(fr, ks=ks, rt=rt, c0=c0):
                    wk = self.w_get(("qkv", layer, 3 * ks + 1))
                    wv = self.w_get(("qkv", layer, 3 * ks + 2))
                    return [self.mf(vACC + 16 + 4 * rt, fr, wk, c0), self.mf(vACC + 32 + 4 * rt, fr, wv, c0)]
                items.append((vL16, ds * 8192 + rt * 2048 + h * 1024, chunk_of(ds), mfs))
            items.append((vDMA, ds * 8192 + h * 1024, chunk_of(ds),
                          lambda fr, c0=c0: [self.mf(vS1, one, fr, c0), self.mf(vS2, fr, fr, c0)]))
        self.gemm(items, chunk_open, 8, fillers={20: [lambda: self.w_prefetch(16)], 40: [lambda: self.w_prefetch(16)]})

    def p1_rest(self, layer):
        b = self.b
        I = self.I
        lsta = L_STA if layer == 0 else L_STA2
        self.stamp("kvpass")
        for ks in range(16):
            self.w_release(("qkv", layer, 3 * ks + 1))
            self.w_release(("qkv", layer, 3 * ks + 2))
        self.stats_publish(lsta)
        t1 = self.stats_read_kv(lsta)
        t2 = self.stats_read_q(lsta)
        b.wait(t1, t2)
        aK, aV = vACC + 16, vACC + 32
        for rt in range(4):
            for r in (0, 2):
                a_, b_ = vAF + 4 * rt + r, vAF + 16 + 4 * rt + r
                k_, v_ = aK + 4 * rt + r, aV + 4 * rt + r
                u = vT + 4 * ((rt * 2 + r // 2) % 4)
                I("v_pk_fma_f32 v[%d:%d], v[%d:%d], v[%d:%d], s[%d:%d]" % (u, u + 1, b_, b_ + 1, vCSK, vCSK + 1, sEPS, sEPS + 1))
                I("v_pk_mul_f32 v[%d:%d], v[%d:%d], v[%d:%d]" % (u + 2, u + 3, b_, b_ + 1, vCSV, vCSV + 1))
                I("v_pk_fma_f32 v[%d:%d], v[%d:%d], v[%d:%d], v[%d:%d]" % (k_, k_ + 1, a_, a_ + 1, k_, k_ + 1, u, u + 1))
                I("v_pk_fma_f32 v[%d:%d], v[%d:%d], v[%d:%d], v[%d:%d]" % (v_, v_ + 1, a_, a_ + 1, v_, v_ + 1, u + 2, u + 3))
        PKK, PKV = vAF + 32, vAF + 40
        for rt in range(4):
            for r in (0, 2):
                I("v_cvt_pk_bf16_f32 v%d, v%d, v%d" % (PKV + 2 * rt + r // 2, aV + 4 * rt + r, aV + 4 * rt + r + 1))
        self.phi_pairs([(aK + 4 * rt + r, PKK + 2 * rt + r // 2) for rt in range(4) for r in (0, 2)])
        KVD, ZD = vS1, vS2
        one = vr(vONE, 4)
        for p in range(2):
            c0 = "0" if p == 0 else None
            self.mf(KVD, vr(PKK + 4 * p, 4), vr(PKV + 4 * p, 4), c0)()
            self.mf(ZD, vr(PKK + 4 * p, 4), one, c0)()
        if layer == 0:
            self.dbg_check()
        I("s_add_u32 s%d, s%d, %d" % (sT + 5, sKV, layer * 1280))
        at = []
        for r in range(4):
            at.append(I("buffer_atomic_add_f32 v%d, v%d, s[%d:%d], s%d offen offset:%d" % (
                KVD + r, vL4, R_WS, R_WS + 3, sT + 5, r * 256)))
        I("v_cndmask_b32 v%d, v%d, v%d, s[%d:%d]" % (vT, ZD, ZD + 1, sM1, sM1 + 1))
        I("v_cndmask_b32 v%d, v%d, v%d, s[%d:%d]" % (vT, vT, ZD + 2, sM2, sM2 + 1))
        I("v_cndmask_b32 v%d, v%d, v%d, s[%d:%d]" % (vT, vT, ZD + 3, sM3, sM3 + 1))
        I("v_and_b32 v%d, 12, v%d" % (vT + 1, vL4))
        I("v_add_u32 v%d, v%d, v%d" % (vT + 1, vT + 1, vZL))
        I("s_mov_b32 exec_lo, 0x000f000f")
        I("s_mov_b32 exec_hi, 0x000f000f")
        at.append(I("buffer_atomic_add_f32 v%d, v%d, s[%d:%d], s%d offen" % (vT, vT + 1, R_WS, R_WS + 3, sT + 5)))
        I("s_mov_b64 exec, -1")
        self.stamp("atom")
        self.w_prefetch(24)
        items = []
        for ks in range(16):
            ds, h = ks // 2, ks & 1
            c0 = "0" if ks == 0 else None
            for rt in range(4):
                def mfs(fr, ks=ks, rt=rt, c0=c0):
                    wq = self.w_get(("qkv", layer, 3 * ks))
                    return [self.mf(vACC + 4 * rt, wq, fr, c0)]
                if layer == 0:
                    items.append(((vX0, vX1)[h], ds * 8192 + rt * 2048, None, mfs))
                else:
                    items.append((vL16, ds * 8192 + rt * 2048 + h * 1024, None, mfs))
        self.gemm(items, None, 11)
        for ks in range(16):
            self.w_release(("qkv", layer, 3 * ks))
        PQ = vACC + 16
        for rt in range(4):
            ab = vAB + 2 * rt
            for r in (0, 2):
                q_ = vACC + 4 * rt + r
                u = vT + 2 * ((rt * 2 + r // 2) % 8)
                I("v_pk_fma_f32 v[%d:%d], v[%d:%d], v[%d:%d], s[%d:%d] op_sel:[0,1,0] op_sel_hi:[1,1,1]" % (
                    u, u + 1, vCSQ + r, vCSQ + r + 1, ab, ab + 1, sEPS, sEPS + 1))
                I("v_pk_fma_f32 v[%d:%d], v[%d:%d], v[%d:%d], v[%d:%d] op_sel:[0,0,0] op_sel_hi:[1,0,1]" % (
                    q_, q_ + 1, q_, q_ + 1, ab, ab + 1, u, u + 1))
        self.phi_pairs([(vACC + 4 * rt + r, PQ + 2 * rt + r // 2) for rt in range(4) for r in (0, 2)])
        self.stamp("qpass")
        b.wait(at)
        I("v_mov_b32 v%d, 1" % vT)
        I("s_mov_b64 exec, 1")
        I("buffer_atomic_add v%d, off, s[%d:%d], s%d offset:1152" % (vT, R_WS, R_WS + 3, sT + 5))
        I("s_mov_b64 exec, -1")
        lp, ld = b.newlabel("Lkv"), b.newlabel("Lkvd")
        b.label(lp)
        I("buffer_load_dword v%d, off, s[%d:%d], s%d offset:1152 sc1" % (vT, R_WS, R_WS + 3, sT + 5))
        b.wait(vm=0)
        I("v_readfirstlane_b32 s%d, v%d" % (sT, vT))
        I("s_cmp_ge_u32 s%d, 32" % sT)
        I("s_cbranch_scc1 %s" % ld)
        self.spin_guard(lp)
        b.label(ld)
        self.stamp("kvsync")
        lt = [I("buffer_load_dword v%d, v%d, s[%d:%d], s%d offen offset:%d sc1" % (
            vT + r, vL4, R_WS, R_WS + 3, sT + 5, r * 256)) for r in range(4)]
        lt.append(I("buffer_load_dwordx4 v[%d:%d], v%d, s[%d:%d], s%d offen sc1" % (
            vT + 4, vT + 7, vZL, R_WS, R_WS + 3, sT + 5)))
        I("s_add_u32 s%d, s%d, s%d" % (sT + 6, sRG64, sSTO))
        I("s_add_u32 s%d, s%d, 0x%x" % (sT + 6, sT + 6, self.buf("O", layer)))
        I("s_add_u32 s%d, s%d, 4096" % (sT + 7, sT + 6))
        b.wait(lt)
        for k in range(4):
            I("v_cvt_pk_bf16_f32 v%d, v%d, v%d" % (vT + 8 + k, vT + 2 * k, vT + 2 * k + 1))
        NUM, DEN = vACC, vACC + 32
        for rt in range(4):
            I("v_mfma_f32_16x16x16_bf16 %s, v[%d:%d], v[%d:%d], 0" % (vr(DEN + 4 * rt, 4), vT + 10, vT + 11, PQ + 2 * rt, PQ + 2 * rt + 1))
        for rt in range(4):
            I("v_mfma_f32_16x16x16_bf16 %s, v[%d:%d], v[%d:%d], 0" % (vr(NUM + 4 * rt, 4), vT + 8, vT + 9, PQ + 2 * rt, PQ + 2 * rt + 1))
        for rt in range(4):
            I("v_add_f32 v%d, s%d, v%d" % (DEN + 4 * rt, sEPS, DEN + 4 * rt))
        for rt in range(4):
            I("v_rcp_f32 v%d, v%d" % (DEN + 4 * rt, DEN + 4 * rt))
        for rt in range(4):
            for r in (0, 2):
                n_ = NUM + 4 * rt + r
                I("v_pk_mul_f32 v[%d:%d], v[%d:%d], v[%d:%d] op_sel_hi:[1,0]" % (n_, n_ + 1, n_, n_ + 1, DEN + 4 * rt, DEN + 4 * rt + 1))
        for rt in range(4):
            for r in (0, 2):
                I("v_cvt_pk_bf16_f32 v%d, v%d, v%d" % (vT + 2 * rt + r // 2, NUM + 4 * rt + r, NUM + 4 * rt + r + 1))
        st = self.stores2(["buffer_store_dwordx2 v[%d:%d], v%d, s[%d:%d], s%d offen offset:%d" % (
            vT + 2 * rt, vT + 2 * rt + 1, vST, R_WS, R_WS + 3, sT + 6 + rt // 2, (rt & 1) * 2048) for rt in range(4)])
        return st

    def n16_pass(self, name, layer, nks, toks, bounds, extra=None, fillers=None):
        chunk_of, chunk_open = self.chunker(toks, bounds, extra)
        items = []
        for ks in range(nks):
            ds, h = ks // 2, ks & 1
            for rt in range(4):
                def mfs(fr, ks=ks, rt=rt):
                    w = self.w_get((name, layer, ks))
                    th = [self.mf(vX + 4 * rt, w, fr)]
                    if rt == 3:
                        th.append(lambda: self.w_release((name, layer, ks)))
                    return th
                a, off = self.lds_addr((ds % 19) * 8192 + rt * 2048 + h * 1024)
                items.append((a, off, chunk_of(ds), mfs))
        self.gemm(items, chunk_open, 11, fillers)

    def x_store(self, idx):
        I = self.I
        for rt in range(4):
            for r in (0, 2):
                I("v_cvt_pk_bf16_f32 v%d, v%d, v%d" % (vT + 2 * rt + r // 2, vX + 4 * rt + r, vX + 4 * rt + r + 1))
        I("s_add_u32 s%d, s%d, s%d" % (sT + 6, sRG64, sSTO))
        I("s_add_u32 s%d, s%d, 0x%x" % (sT + 6, sT + 6, self.buf("X", idx)))
        I("s_add_u32 s%d, s%d, 4096" % (sT + 7, sT + 6))
        return self.stores2(["buffer_store_dwordx2 v[%d:%d], v%d, s[%d:%d], s%d offen offset:%d" % (
            vT + 2 * rt, vT + 2 * rt + 1, vST, R_WS, R_WS + 3, sT + 6 + rt // 2, (rt & 1) * 2048) for rt in range(4)])

    def p3(self, layer, toks):
        b = self.b
        I = self.I
        chunk_of, chunk_open = self.chunker(toks, [0, 1, 3, 7])
        items = []
        one = vr(vONE, 4)
        for ks in range(16):
            ds, h = ks // 2, ks & 1
            c0 = "0" if ks == 0 else None
            for rt in range(4):
                def mfs(fr, ks=ks, rt=rt, c0=c0):
                    th = []
                    for t in range(3):
                        w = self.w_get(("w1", layer, 3 * ks + t))
                        th.append(self.mf(vACC + 16 * t + 4 * rt, w, fr, c0))
                    return th
                items.append((vL16, ds * 8192 + rt * 2048 + h * 1024, chunk_of(ds), mfs))
            items.append((vDMA, ds * 8192 + h * 1024, chunk_of(ds),
                          lambda fr, c0=c0: [self.mf(vS1, one, fr, c0), self.mf(vS2, fr, fr, c0)]))
        self.gemm(items, chunk_open, 8, fillers={20: [lambda: self.w_prefetch(40)]})
        for f in range(48):
            self.w_release(("w1", layer, f))
        self.stamp("p3gemm")
        self.stats_publish(L_STA2)
        t2 = self.stats_read_q(L_STA2)
        for t in range(3):
            I("s_add_u32 s%d, s%d, 0x%x" % (sT + 6 + 2 * t, sH0 + t, self.buf("H", layer)))
            I("s_add_u32 s%d, s%d, 4096" % (sT + 7 + 2 * t, sT + 6 + 2 * t))
        b.wait(t2)
        sts = []
        P = vAF
        for t in range(3):
            for r2 in range(2):
                prs = [(rt, r) for rt in (2 * r2, 2 * r2 + 1) for r in (0, 2)]
                for k, (rt, r) in enumerate(prs):
                    ab = vAB + 2 * rt
                    I("v_pk_mul_f32 v[%d:%d], v[%d:%d], v[%d:%d] op_sel:[0,1] op_sel_hi:[1,1]" % (
                        vT + 2 * k, vT + 2 * k + 1, vCS1 + 4 * t + r, vCS1 + 4 * t + r + 1, ab, ab + 1))
                for k, (rt, r) in enumerate(prs):
                    ab = vAB + 2 * rt
                    x_ = vACC + 16 * t + 4 * rt + r
                    I("v_pk_fma_f32 v[%d:%d], v[%d:%d], v[%d:%d], v[%d:%d] op_sel:[0,0,0] op_sel_hi:[1,0,1]" % (
                        x_, x_ + 1, x_, x_ + 1, ab, ab + 1, vT + 2 * k, vT + 2 * k + 1))
                for k, (rt, r) in enumerate(prs):
                    x_ = vACC + 16 * t + 4 * rt + r
                    I("v_pk_mul_f32 v[%d:%d], v[%d:%d], s[%d:%d]" % (vT + 2 * k, vT + 2 * k + 1, x_, x_ + 1, sNL2E, sNL2E + 1))
                for k in range(8):
                    I("v_exp_f32 v%d, v%d" % (vT + k, vT + k))
                for k in range(4):
                    I("v_pk_add_f32 v[%d:%d], v[%d:%d], 1.0 op_sel_hi:[1,0]" % (vT + 2 * k, vT + 2 * k + 1, vT + 2 * k, vT + 2 * k + 1))
                for k in range(8):
                    I("v_rcp_f32 v%d, v%d" % (vT + k, vT + k))
                for k, (rt, r) in enumerate(prs):
                    x_ = vACC + 16 * t + 4 * rt + r
                    I("v_pk_mul_f32 v[%d:%d], v[%d:%d], v[%d:%d]" % (x_, x_ + 1, x_, x_ + 1, vT + 2 * k, vT + 2 * k + 1))
                for k, (rt, r) in enumerate(prs):
                    x_ = vACC + 16 * t + 4 * rt + r
                    I("v_cvt_pk_bf16_f32 v%d, v%d, v%d" % (P + 8 * t + 2 * rt + r // 2, x_, x_ + 1))
            sts += self.stores2(["buffer_store_dwordx2 v[%d:%d], v%d, s[%d:%d], s%d offen offset:%d" % (
                P + 8 * t + 2 * rt, P + 8 * t + 2 * rt + 1, vST, R_WS, R_WS + 3, sT + 6 + 2 * t + rt // 2, (rt & 1) * 2048)
                for rt in range(4)])
        return sts

    def cs1(self):
        one = vr(vONE, 4)
        for ks in range(16):
            for t in range(3):
                w = self.w_get(("w1", 0, 3 * ks + t))
                self.mf(vCS1 + 4 * t, w, one, "0" if ks == 0 else None)()

    def final_store(self):
        I = self.I
        for rt in range(4):
            for r in (0, 2):
                I("v_cvt_pk_bf16_f32 v%d, v%d, v%d" % (vT + 2 * rt + r // 2, vX + 4 * rt + r, vX + 4 * rt + r + 1))
        I("v_and_b32 v%d, 15, v0" % (vT + 8))
        I("v_lshlrev_b32 v%d, 10, v%d" % (vT + 8, vT + 8))
        I("v_lshrrev_b32 v%d, 4, v0" % (vT + 9))
        I("v_lshl_add_u32 v%d, v%d, 3, v%d" % (vT + 8, vT + 9, vT + 8))
        I("s_lshl_b32 s%d, s%d, 7" % (sT, sC))
        I("s_lshl_b32 s%d, s%d, 5" % (sT + 1, sW))
        I("s_add_u32 s%d, s%d, s%d" % (sT, sT, sT + 1))
        I("s_add_u32 s%d, s%d, s%d" % (sT, sT, sRG64))
        for rt in range(4):
            I("buffer_store_dwordx2 v[%d:%d], v%d, s[%d:%d], s%d offen" % (
                vT + 2 * rt, vT + 2 * rt + 1, vT + 8, R_OUT, R_OUT + 3, sT))
            if rt < 3:
                I("s_add_u32 s%d, s%d, 16384" % (sT, sT))

    def body(self):
        b = self.b
        I = self.I
        pk, res, tc, g_ = self.prologue()
        for layer in range(2):
            self.w_enqueue("wo", layer, F_WO, 16)
            self.w_enqueue("w1", layer, F_W1, 48)
            self.w_enqueue("w2", layer, F_W2, 43)
            if layer == 0:
                self.w_enqueue("qkv", 1, F_QKV, 48)
        ph = 0
        for layer in range(2):
            if layer == 0:
                self.p1_first(pk, res, tc, g_)
            else:
                toks = self.start_tile("X", 1, 8, 8)
                self.p1_kv_pass(layer, toks)
            st = self.p1_rest(layer)
            ph += 1
            self.publish(st, ph)
            self.stamp("o_pub")
            if self.stop == ph:
                break
            self.w_prefetch(12)
            self.poll_flags(ph)
            self.stamp("o_rdy")
            toks = self.start_tile("O", layer, 8, 8)
            self.n16_pass("wo", layer, 16, toks, [0, 1, 2, 3, 5, 7])
            self.stamp("p2gemm")
            st = self.x_store(2 * layer)
            ph += 1
            self.publish(st, ph)
            self.stamp("x1_pub")
            if self.stop == ph:
                break
            self.w_prefetch(12)
            if layer == 0:
                self.cs1()
            self.poll_flags(ph)
            self.stamp("x1_rdy")
            toks = self.start_tile("X", 2 * layer, 8, 8)
            st = self.p3(layer, toks)
            ph += 1
            self.publish(st, ph)
            self.stamp("h_pub")
            if self.stop == ph:
                break
            self.w_prefetch(16)
            self.poll_flags(ph)
            self.stamp("h_rdy")
            toks = self.start_tile("H", layer, 22, 19)
            bounds = [0, 1, 2, 3, 5, 7, 9, 11, 13, 15, 17, 19, 21]

            def extra(ch, toks=toks):
                if bounds[ch] == 7:
                    toks.update(self.dma_fm(sT + 4, [19, 20, 21], lambda ds: ds % 19))
                    self.w_prefetch(20)
            self.n16_pass("w2", layer, 43, toks, bounds, extra)
            self.stamp("p4gemm")
            if layer == 0:
                st = self.x_store(1)
                ph += 1
                self.publish(st, ph)
                self.stamp("x2_pub")
                if self.stop == ph:
                    break
                self.w_prefetch(16)
                self.poll_flags(ph)
                self.stamp("x2_rdy")
            else:
                self.final_store()
                self.stamp("end")
        if self.diag:
            I("s_lshl_b32 s%d, s2, 2" % sT)
            I("s_add_u32 s%d, s%d, s%d" % (sT, sT, sW))
            I("s_lshl_b32 s%d, s%d, 8" % (sT, sT))
            I("s_add_u32 s%d, s%d, 0x%x" % (sT, sT, WS_STAMP))
            I("buffer_store_dword v%d, v%d, s[%d:%d], s%d offen" % (vSTAMP, vL4, R_WS, R_WS + 3, sT))
        b.label("L_end")
        I("s_endpgm")

    def emit(self):
        self.body()
        head = """; @launch grid=(256,1,1) block=(256,1,1) lds=%d
; persistent fused kernel: 32 row groups (64 rows) x 8 column groups, generated by gen1.py
.amdgcn_target "amdgcn-amd-amdhsa--gfx950"
.text
.globl %s_kernel
.p2align 8
.type %s_kernel,@function
%s_kernel:
""" % (LDS_BYTES, NAME, NAME, NAME)
        tail = """.section .rodata,"a"
.p2align 6
.amdhsa_kernel %s_kernel
  .amdhsa_next_free_vgpr 512
  .amdhsa_next_free_sgpr 102
  .amdhsa_accum_offset 256
  .amdhsa_group_segment_fixed_size 0
  .amdhsa_kernarg_size 72
  .amdhsa_user_sgpr_count 2
  .amdhsa_user_sgpr_kernarg_segment_ptr 1
  .amdhsa_system_sgpr_workgroup_id_x 1
.end_amdhsa_kernel
""" % NAME
        return head + self.b.text() + tail


if __name__ == "__main__":
    import argparse
    ap = argparse.ArgumentParser()
    ap.add_argument("-o", default="cdna_kernels/%s.s" % NAME)
    ap.add_argument("--diag", action="store_true")
    ap.add_argument("--sep", action="store_true")
    ap.add_argument("--stop", type=int, default=99)
    a = ap.parse_args()
    g = Gen(a.diag, a.sep, a.stop)
    txt = g.emit()
    if a.diag:
        txt = txt.replace(".amdgcn_target", "; stamps: " + ",".join(g.stamp_names) + "\n.amdgcn_target", 1)
    open(a.o, "w").write(txt)
    print("instructions", g.b.nins, "nops", g.b.nops, file=sys.stderr)
```

```python
import sys
import os
sys.path.insert(0, os.path.dirname(os.path.abspath(__file__)))
from asmb import Builder, vr, sr

NAME = "interleave_layers__linear_attn_block__dense_activation_silu__prompt"


def env(name, default):
    v = os.environ.get(name)
    return default if v is None else eval(v)


PKW = 107 * 1024
WS_FL = 0x500000
WS_EP = 0x510000
WS_R2 = 0x518000
WS_R1 = 0x560000
WS_KV = 0x520000
KVH = 5120
WS_O = 0x600000
WS_X = 0x800000
WS_H = 0xA00000
HSZ = 22 * 8192
WS_STAMP = 0x3000000
WS_SIZE = 0x3100000
OOB = 0x4000000
F_WO, F_W1, F_W2 = 0, 16, 64

L_RING = 65536
L_STA = 157696
L_WQ = 81920
L_PACK = 131072
L_PACK2 = 147456
L_KVI = 147456
NRING = 10
LDS_BYTES = 163840

S_X, S_WQ, S_WO, S_W1, S_W2, S_OUT, S_DBG, S_WS = 4, 6, 8, 12, 14, 16, 18, 20
R_X, R_WQ, R_WS, R_OUT, R_DBG, R_PK = 24, 28, 32, 36, 40, 44
sRG, sC, sW, sFAST, sPK, sKV, sFL, sRG64, sRGH, sSTO = 48, 49, 50, 51, 52, 53, 54, 55, 56, 57
sH0 = 58
sSPIN = 61
sEPS, sL2E, sNL2E = 62, 64, 66
sM1, sM2, sM3, sDIAG = 68, 70, 72, 74
sT = 76
sPKC = 96
sXCC = 97
sMYF = 98
sW2K = 99
sAB = 100
sAO = 101
sTAG = 22
sEP = 23
sQ = 10
sTC = 11
sR1 = 3
sKB = 88

vL16, vA1, vKVL, vDMA, vST = 1, 2, 3, 4, 5
vX0, vX1, vOW0, vOW1, vTR, vXS0, vXS1, vWS = 6, 7, 8, 9, 10, 11, 12, 13
vFL, vL4, vSTAMP, vSTA, vSTQ, vC2 = 14, 15, 16, 17, 18, 19
vX = 20
vCSQ, vCSK, vCSV = 36, 40, 44
vCS1 = 48
vONE = 60
vACC = 64
vAF = 112
NAF = 12
vS1, vS2 = 160, 164
vAB = 168
vT = 176
vPOS = 192
vZP = 196
vWQ = 13
vSW = 197
vTCH = 199
vDUM = 198
SLOTS = [("a", 4 * i) for i in range(64)] + [("v", 200 + 4 * i) for i in range(14)]
PACE = env("PACE", 60)
LEAD = env("LEAD", 0)
NTSET = env("NT", lambda key: False)
TB = env("TB", 16)
TPACE = env("TPACE", 250)
MINLEAD = env("MINLEAD", 0)
COST = {"mfma": 16, "trans": 8, "ds": 4, "valu": 4, "perm": 4, "dpp": 4, "rdlane": 4, "wrlane": 4, "salu": 2, "vmem": 8}


def slot_r(s):
    return vr(s[1], 4, s[0])


class Gen:
    def __init__(self, diag=False, sep=False):
        self.b = Builder()
        self.diag = diag
        self.sep = sep
        self.free = list(SLOTS)
        self.wq = []
        self.wslot = {}
        self.pk_cur = None
        self.nstamp = 0
        self.stamp_names = []
        self.aq = []
        self.clock = 0
        self.last_bg = -1000
        self.bg_w = 0
        self.in_bg = False
        self.wall = []
        self.touched = 0
        self.lead = 0
        self.pace_w = 70
        self.last_touch = -10000
        self.issued = 0

    def I(self, t):
        tok = self.b.I(t)
        k = self.b.hists[0][-1].kind if self.b.hists and self.b.hists[0] else "salu"
        self.clock += COST.get(k, 4)
        if not self.in_bg and k in ("mfma", "valu", "trans") and self.clock - self.last_bg >= (PACE if self.aq else self.pace_w):
            self.bg_step()
        return tok

    def bg_step(self):
        self.in_bg = True
        done = False
        can_w = self.bg_w > 0 and self.wq and self.free and (self.touched > self.issued + MINLEAD or self.touched >= len(self.wall) or not LEAD)
        can_t = (self.lead > 0 and LEAD and not os.environ.get("NOW") and self.touched < min(self.issued + self.lead, len(self.wall))
                 and self.clock - self.last_touch >= TPACE)
        if os.environ.get("NOW"):
            can_w = self.bg_w > 0 and self.wq and self.free
        if self.aq:
            if getattr(self.aq[0], "ds", 0) <= self.a_safe:
                self.aq.pop(0)()
                done = True
        elif can_t:
            self.w_touch()
            self.last_touch = self.clock
            done = True
        elif can_w:
            self.w_issue()
            self.bg_w -= 1
            done = True
        if done:
            self.last_bg = self.clock
        self.in_bg = False

    def Inc(self, t):
        self.b.I(t)
        self.b.vm_issued -= 1

    def stamp(self, name):
        if os.environ.get("WLOG"):
            print("%-8s clock %6d  wq left %3d next %s free %d lead %d" % (name, self.clock, len(self.wq), self.wq[0][0] if self.wq else None, len(self.free), self.touched - self.issued), file=sys.stderr)
        if not self.diag:
            return
        b = self.b
        k = self.nstamp
        self.nstamp += 1
        b.comment("stamp %d %s" % (k, name))
        b.I("s_memtime s[94:95]")
        b.wait(lg=0)
        b.I("v_writelane_b32 v%d, s94, %d" % (vSTAMP, k))
        if name in ("start", "end"):
            b.I("s_memrealtime s[94:95]")
            b.wait(lg=0)
            b.I("v_writelane_b32 v%d, s94, %d" % (vSTAMP, 62 if name == "start" else 63))
        self.stamp_names.append(name)

    def buf(self, kind, idx):
        base = {"O": WS_O if self.sep else WS_H, "X": WS_X, "H": WS_H}[kind]
        return base + (idx * 0x1000000 if self.sep else 0)

    def rgs(self, kind):
        return sRGH if kind == "H" or (kind == "O" and not self.sep) else sRG64

    def srd(self, r, ptr, size):
        self.I("s_mov_b32 s%d, s%d" % (r, ptr))
        self.I("s_and_b32 s%d, s%d, 0xffff" % (r + 1, ptr + 1))
        self.I("s_mov_b32 s%d, 0x%x" % (r + 2, size))
        self.I("s_mov_b32 s%d, 0x20000" % (r + 3))

    def w_enqueue(self, name, layer, f0, n):
        for i in range(n):
            self.wq.append(((name, layer, i), f0 + i))
            self.wall.append(f0 + i)

    def w_touch(self, TB=TB):
        p = self.touched
        f0 = self.wall[p]
        n = 0
        while n < TB and p + n < len(self.wall) and self.wall[p + n] == f0 + n:
            n += 1
        m = (n + 3) // 4
        b = self.b
        b.I("s_mul_i32 s%d, s%d, %d" % (sTC, sQ, m * 1024))
        b.I("s_add_u32 s%d, s%d, s%d" % (sTC, sTC, sPK))
        b.I("s_add_u32 s%d, s%d, %d" % (sTC, sTC, f0 * 1024))
        if m < 8:
            mask = (1 << (8 * m)) - 1
            b.I("s_mov_b32 exec_lo, 0x%x" % (mask & 0xffffffff))
            b.I("s_mov_b32 exec_hi, 0x%x" % (mask >> 32))
        b.I("buffer_load_dword v%d, v%d, s[%d:%d], s%d offen sc1" % (vDUM, vTCH, R_WS, R_WS + 3, sTC))
        if m < 8:
            b.I("s_mov_b64 exec, -1")
        self.touched += n

    def w_issue(self):
        key, f = self.wq.pop(0)
        s = self.free.pop(0)
        self.issued += 1
        if os.environ.get("NOW"):
            self.wslot[key] = (s, None)
            return
        if LEAD and self.touched < self.issued:
            print("WARNING: untouched W load", key, file=sys.stderr)
            self.touched = self.issued
        if os.environ.get("FAKEW"):
            f = f % 8
        grp = f // 4
        if self.pk_cur != grp:
            self.b.I("s_add_u32 s%d, s%d, 0x%x" % (sPKC, sPK, grp * 4096))
            self.pk_cur = grp
        tok = self.b.I("buffer_load_dwordx4 %s, v%d, s[%d:%d], s%d offen offset:%d sc1%s" % (
            slot_r(s), vL16, R_WS, R_WS + 3, sPKC, (f % 4) * 1024, " nt" if NTSET(key) else ""))
        self.wslot[key] = (s, tok)

    def w_burst(self, n):
        k = 0
        while k < n and self.wq and self.free:
            self.w_issue()
            k += 1
        self.last_bg = self.clock

    def w_get(self, key):
        if key not in self.wslot:
            print("WARNING: late W load", key, file=sys.stderr)
        while key not in self.wslot:
            assert self.wq and self.free, "no free slot for %s" % (key,)
            self.w_issue()
        s, tok = self.wslot[key]
        self.b.wait(tok)
        return slot_r(s)

    def w_release(self, key):
        s, _ = self.wslot.pop(key)
        self.free.append(s)

    def stores2(self, texts):
        b = self.b
        lf, lj = b.newlabel("Lfast"), b.newlabel("Ljoin")
        b.I("s_cmp_eq_u32 s%d, 1" % sFAST)
        b.I("s_cbranch_scc1 %s" % lf)
        for t in texts:
            self.Inc(t + " sc1")
        b.I("s_branch %s" % lj)
        b.label(lf)
        toks = [b.I(t) for t in texts]
        b.label(lj)
        return toks

    def tile_stores(self, p, sreg):
        for pr in range(2):
            for k in range(2):
                self.b.I("v_permlane16_swap_b32 v%d, v%d" % (p + 4 * pr + k, p + 4 * pr + 2 + k))
        return ["buffer_store_dwordx4 %s, v%d, s[%d:%d], s%d offen" % (vr(p + 4 * pr, 4), vST, R_WS, R_WS + 3, sreg + pr)
                for pr in range(2)]

    def spin_guard(self, lab_loop):
        b = self.b
        b.I("s_sub_u32 s%d, s%d, 1" % (sSPIN, sSPIN))
        b.I("s_cmp_lg_u32 s%d, 0" % sSPIN)
        b.I("s_cbranch_scc1 %s" % lab_loop)
        b.I("s_branch L_end")

    def publish(self, toks, phase, burst):
        b = self.b
        self.bg_w = 0
        self.w_burst(burst)
        b.I("s_add_u32 s%d, s%d, %d" % (sT, sTAG, phase))
        b.I("v_mov_b32 v%d, s%d" % (vC2, sT))
        b.wait(toks)
        b.I("s_mov_b64 exec, 1")
        self.stores2(["buffer_store_dword v%d, off, s[%d:%d], s%d" % (vC2, R_WS, R_WS + 3, sMYF)])
        b.I("s_mov_b64 exec, -1")

    def poll_flags(self, phase):
        b = self.b
        lp, ld = b.newlabel("Lpoll"), b.newlabel("Lpd")
        b.label(lp)
        b.I("buffer_load_dword v%d, v%d, s[%d:%d], s%d offen sc1" % (vT, vFL, R_WS, R_WS + 3, sFL))
        b.wait(vm=0)
        b.I("v_sub_u32 v%d, v%d, v%d" % (vT, vT, vC2))
        b.I("v_cmp_gt_u32 vcc, %d, v%d" % (16 - phase, vT))
        b.I("s_cmp_eq_u64 vcc, exec")
        b.I("s_cbranch_scc1 %s" % ld)
        self.spin_guard(lp)
        b.label(ld)

    def start_tile(self, kind, idx, nks, first):
        b = self.b
        rg = self.rgs(kind)
        b.I("s_add_u32 s%d, s%d, 0x%x" % (sAB, rg, self.buf(kind, idx)))
        toks = {}
        self.a_safe = NRING - 1

        def mk(ks):
            def th():
                ds, h = ks // 2, ks & 1
                assert ds <= self.a_safe, "ring slot not free for ds %d" % ds
                if h == 0:
                    b.I("s_add_u32 m0, s%d, 0x%x" % (sW2K, (ds % NRING) * 8192))
                    b.I("s_add_u32 s%d, s%d, 0x%x" % (sAO, sAB, ds * 8192))
                toks.setdefault(ds, []).append(b.I(
                    "buffer_load_dwordx4 v%d, s[%d:%d], s%d offen offset:%d sc1 lds" % (vDMA, R_WS, R_WS + 3, sAO, h * 1024)))
            th.ds = ks // 2
            return th
        self.aq = [mk(ks) for ks in range(nks)]
        self.a_nks = nks
        self.a_real = nks
        for _ in range(first):
            self.aq.pop(0)()
        self.last_bg = self.clock
        return toks

    def chunker(self, toks, bounds):
        def chunk_of(ds):
            for k, e in enumerate(bounds):
                if ds <= e:
                    return k
            raise ValueError

        def chunk_open(ch, consumed_ds):
            lo = 0 if ch == 0 else bounds[ch - 1] + 1
            hi = bounds[ch]
            need = min(2 * hi + 2, self.a_real)
            while self.a_nks - len(self.aq) < need:
                self.aq.pop(0)()
                self.last_bg = self.clock
            self.b.wait(*[toks[d] for d in range(lo, hi + 1)])
            self.b.I("s_barrier")
            self.a_safe = max(self.a_safe, consumed_ds + NRING)
        return chunk_of, chunk_open

    def lds_addr(self, off):
        return ((vL16, vA1)[off >> 16], off & 0xffff)

    def gemm(self, items, chunk_open, depth):
        b = self.b
        n = len(items)
        toks = [None] * n
        opened = set()
        st = {"ip": 0, "j": 0}

        def issue():
            k = st["ip"]
            a, off, ch, ds, _ = items[k]
            if ch is not None and ch not in opened:
                opened.add(ch)
                chunk_open(ch, items[st["j"]][3] - 1)
            toks[k] = self.I("ds_read_b128 %s, v%d offset:%d" % (vr(vAF + 4 * (k % NAF), 4), a, off))
            st["ip"] += 1

        while st["ip"] < min(depth, n):
            issue()
        for j in range(n):
            st["j"] = j
            thunks = items[j][4](vr(vAF + 4 * (j % NAF), 4))
            b.wait(toks[j])
            first = True
            if not thunks and st["ip"] < n and st["ip"] < j + 1 + depth:
                issue()
            for th in thunks:
                th()
                if first and st["ip"] < n and st["ip"] < j + 1 + depth:
                    issue()
                first = False

    def mf(self, d, a, bb, c=None):
        dd = vr(d, 4)
        cc = dd if c is None else c
        return lambda: self.I("v_mfma_f32_16x16x32_bf16 %s, %s, %s, %s" % (dd, a, bb, cc))

    def stats_publish(self):
        b = self.b
        I = self.I
        t = vT
        I("v_mul_f32 v%d, 0x3b000000, v%d" % (t + 1, vS1))
        I("v_cndmask_b32 v%d, v%d, v%d, s[%d:%d]" % (t, vS2, vS2 + 1, sM1, sM1 + 1))
        I("v_cndmask_b32 v%d, v%d, v%d, s[%d:%d]" % (t, t, vS2 + 2, sM2, sM2 + 1))
        I("v_cndmask_b32 v%d, v%d, v%d, s[%d:%d]" % (t, t, vS2 + 3, sM3, sM3 + 1))
        I("v_mul_f32 v%d, 0x3b000000, v%d" % (t, t))
        I("v_fma_f32 v%d, -v%d, v%d, v%d" % (t, t + 1, t + 1, t))
        I("v_max_f32 v%d, 0, v%d" % (t, t))
        I("v_add_f32 v%d, 0x3727c5ac, v%d" % (t, t))
        I("v_rsq_f32 v%d, v%d" % (t + 2, t))
        I("v_lshlrev_b32 v%d, 1, v%d" % (t + 4, vSW))
        I("v_mul_f32_e64 v%d, -v%d, v%d" % (t + 3, t + 1, t + 2))
        I("v_subrev_u32 v%d, 0x%x, v%d" % (t + 4, L_STA - 512, t + 4))
        b.I("s_mov_b64 exec, s[%d:%d]" % (sDIAG, sDIAG + 1))
        b.I("ds_write_b32 v%d, v%d" % (vSW, t + 2))
        b.I("ds_write_b32 v%d, v%d offset:256" % (vSW, t + 3))
        b.I("ds_write_b64 v%d, v[%d:%d]" % (t + 4, t + 2, t + 3))
        b.I("s_mov_b64 exec, -1")
        b.wait(lg=0)
        b.I("s_barrier")

    def stats_read_q(self):
        return [self.I("ds_read_b64 v[%d:%d], v%d offset:%d" % (vAB + 2 * rt, vAB + 2 * rt + 1, vSTQ, rt * 128))
                for rt in range(4)]

    def stats_read_kv(self):
        toks = []
        for rt in range(4):
            toks.append(self.I("ds_read_b128 %s, v%d offset:%d" % (vr(vAF + 4 * rt, 4), vSTA, rt * 64)))
            toks.append(self.I("ds_read_b128 %s, v%d offset:%d" % (vr(vAF + 16 + 4 * rt, 4), vSTA, 256 + rt * 64)))
        return toks

    def phi_pairs(self, pairs):
        I = self.I
        for c0 in range(0, len(pairs), 4):
            grp = pairs[c0:c0 + 4]
            for k, (t, d) in enumerate(grp):
                I("v_pk_mul_f32 v[%d:%d], v[%d:%d], s[%d:%d]" % (vT + 2 * k, vT + 2 * k + 1, t, t + 1, sL2E, sL2E + 1))
            for k, (t, d) in enumerate(grp):
                I("v_exp_f32_e64 v%d, v%d clamp" % (vT + 2 * k, vT + 2 * k))
                I("v_max_f32 v%d, s%d, v%d" % (t, sEPS, t))
                I("v_exp_f32_e64 v%d, v%d clamp" % (vT + 2 * k + 1, vT + 2 * k + 1))
                I("v_max_f32 v%d, s%d, v%d" % (t + 1, sEPS, t + 1))
            for k, (t, d) in enumerate(grp):
                I("v_pk_add_f32 v[%d:%d], v[%d:%d], v[%d:%d]" % (t, t + 1, t, t + 1, vT + 2 * k, vT + 2 * k + 1))
            for k, (t, d) in enumerate(grp):
                I("v_cvt_pk_bf16_f32 v%d, v%d, v%d" % (d, t, t + 1))

    def startup(self):
        b = self.b
        I = b.I
        i_, g_, l3, l7, q0, tc = vT + 2, vT + 3, vT + 6, vT + 7, vT + 8, vT + 9
        self.l3, self.q0, self.tc, self.g_ = l3, q0, tc, g_
        I("s_cmp_ge_u32 s2, 256")
        I("s_cbranch_scc1 L_end")
        I("s_load_dwordx4 s[4:7], s[0:1], 0")
        I("s_load_dwordx2 s[20:21], s[0:1], 64")
        I("s_load_dwordx2 s[8:9], s[0:1], 16")
        I("s_load_dwordx4 s[12:15], s[0:1], 32")
        I("s_load_dwordx4 s[16:19], s[0:1], 48")
        I("s_getpc_b64 s[90:91]")
        b.label("L_pc")
        I("v_lshrrev_b32 v%d, 6, v0" % vT)
        I("v_and_b32 v0, 63, v0")
        I("v_readfirstlane_b32 s%d, v%d" % (sW, vT))
        I("s_lshr_b32 s%d, s2, 3" % (sT + 1))
        I("s_lshl_b32 s%d, s%d, 2" % (sT, sT + 1))
        I("s_add_u32 s%d, s%d, s%d" % (sT, sT, sW))
        I("s_and_b32 s%d, s%d, 31" % (sT, sT))
        I("s_lshl_b32 s%d, s%d, 11" % (sT, sT))
        I("v_lshlrev_b32 v%d, 7, v0" % vTCH)
        I("v_add_u32 v%d, s%d, v%d" % (vT, sT, vTCH))
        I("v_min_u32 v%d, L_end-L_pc, v%d" % (vT, vT))
        I("s_mov_b64 exec, 0xffff")
        I("global_load_dword v%d, v%d, s[90:91]" % (vDUM, vT))
        I("s_mov_b64 exec, -1")
        I("s_and_b32 s%d, s2, 7" % sT)
        I("s_and_b32 s%d, s%d, 7" % (sC, sT + 1))
        I("s_lshr_b32 s%d, s%d, 3" % (sQ, sT + 1))
        I("s_lshl_b32 s%d, s%d, 2" % (sT, sT))
        I("s_add_u32 s%d, s%d, s%d" % (sRG, sT, sQ))
        I("s_lshl_b32 s%d, s%d, 16" % (sRG64, sRG))
        I("s_lshl_b32 s%d, s%d, 11" % (sW2K, sW))
        I("v_lshrrev_b32 v%d, 4, v0" % g_)
        I("v_and_b32 v%d, 15, v0" % i_)
        tw, tx = vT + 12, vT + 13
        I("s_lshl_b32 s%d, s%d, 2" % (sT, sQ))
        I("s_add_u32 s%d, s%d, s%d" % (sT, sT, sW))
        I("s_mul_i32 s%d, s%d, 3072" % (sT, sT))
        I("v_mul_u32_u24 v%d, 49152, v%d" % (tw, i_))
        I("v_lshl_add_u32 v%d, v%d, 10, v%d" % (tw, g_, tw))
        I("v_add_u32 v%d, s%d, v%d" % (tw, sT, tw))
        I("s_lshl_b32 s%d, s%d, 13" % (sT, sC))
        I("s_add_u32 s%d, s%d, s%d" % (sT, sT, sW2K))
        I("v_and_b32 v%d, 3, v0" % tx)
        I("v_lshlrev_b32 v%d, 7, v%d" % (tx, tx))
        I("v_bfe_u32 v%d, v0, 2, 1" % (vT + 4))
        I("v_lshl_add_u32 v%d, v%d, 10, v%d" % (tx, vT + 4, tx))
        I("v_add_u32 v%d, s%d, v%d" % (tx, sT, tx))
        I("v_lshrrev_b32 v%d, 3, v0" % l3)
        I("v_and_b32 v%d, 7, v0" % l7)
        I("v_xor_b32 v%d, v%d, v%d" % (vT + 4, l7, g_))
        I("v_lshlrev_b32 v%d, 4, v%d" % (vT + 4, vT + 4))
        I("v_lshl_add_u32 v%d, v%d, 10, v%d" % (vT + 4, l3, vT + 4))
        I("s_lshl_b32 s%d, s%d, 14" % (sT + 1, sW))
        I("v_add_u32 v%d, s%d, v%d" % (vXS0, sT + 1, vT + 4))
        I("v_xor_b32 v%d, 64, v%d" % (vXS1, vXS0))
        I("v_add_u32 v%d, 7168, v%d" % (vXS1, vXS1))
        I("v_and_b32 v%d, 1, v%d" % (vT + 4, g_))
        I("v_lshlrev_b32 v%d, 1, v%d" % (vT + 4, vT + 4))
        I("v_xor_b32 v%d, v%d, v%d" % (q0, l7, vT + 4))
        I("v_lshlrev_b32 v%d, 4, v%d" % (q0, q0))
        I("s_and_b32 s%d, s%d, 1" % (sT + 1, sW))
        I("s_lshl_b32 s%d, s%d, 6" % (sT + 1, sT + 1))
        I("v_xor_b32 v%d, s%d, v%d" % (vT + 4, sT + 1, q0))
        I("s_lshl_b32 s%d, s%d, 3" % (sT + 1, sW))
        I("v_add_u32 v%d, s%d, v%d" % (vT + 5, sT + 1, l3))
        I("v_mul_u32_u24 v%d, 3072, v%d" % (vT + 5, vT + 5))
        I("v_add_u32 v%d, v%d, v%d" % (vWS, vT + 4, vT + 5))
        sXO, sWO_, sRB, sCB = sAB, sAO, 93, sTC
        I("s_mov_b32 s%d, s%d" % (sXO, sRG64))
        I("s_lshl_b32 s%d, s%d, 7" % (sWO_, sC))
        I("s_mov_b32 s%d, s%d" % (sCB, sWO_))
        I("s_mul_i32 s%d, s%d, 3072" % (sRB, sW))
        I("s_add_u32 s%d, s%d, 0x%x" % (sRB, sRB, L_RING))
        if self.diag:
            I("v_mov_b32 v%d, 0" % vSTAMP)
        b.wait(lg=0)
        self.stamp("start")
        I("s_add_u32 s88, s%d, 0x%x" % (S_WS, WS_EP))
        I("s_addc_u32 s89, s%d, 0" % (S_WS + 1))
        I("s_load_dword s%d, s[88:89], 0" % sEP)
        self.srd(R_WQ, S_WQ, 512 * 3072)
        self.srd(R_X, S_X, 2048 * 1024)
        tokA, tokW = {}, {}

        def touch(batch):
            if not env("T0", 1):
                return
            I("s_mov_b32 exec_hi, 0xffff")
            if batch:
                I("s_add_u32 s%d, s%d, %d" % (sCB, sCB, 256 * 3072))
            I("buffer_load_dword v%d, v%d, s[%d:%d], s%d offen" % (vDUM, tw, R_WQ, R_WQ + 3, sCB))
            I("s_mov_b64 exec, 0xff")
            I("buffer_load_dword v%d, v%d, s[%d:%d], s%d offen offset:%d" % (vDUM, tx, R_X, R_X + 3, sRG64, 512 * batch))
            I("s_mov_b64 exec, -1")

        def issue_thunks(ks):
            th = []
            if ks % 2 == 0:
                ds = ks // 2

                def a0():
                    I("s_add_u32 m0, s%d, 0x%x" % (sW2K, ds * 8192))
                    tokA[ds] = [I("buffer_load_dwordx4 v%d, s[%d:%d], s%d offen lds" % (vXS0, R_X, R_X + 3, sXO))]

                def a1():
                    tokA[ds].append(I("buffer_load_dwordx4 v%d, s[%d:%d], s%d offen offset:1024 lds" % (vXS1, R_X, R_X + 3, sXO)))
                    I("s_add_u32 s%d, s%d, 128" % (sXO, sXO))
                th += [a0, a1]
            for p in range(3):
                def w(p=p):
                    if p == 0:
                        I("s_add_u32 m0, s%d, 0x%x" % (sRB, (ks % 5) * 12288))
                        tokW[ks] = []
                    tokW[ks].append(I("buffer_load_dwordx4 v%d, s[%d:%d], s%d offen offset:%d lds" % (
                        vWS, R_WQ, R_WQ + 3, sWO_, p * 1024)))
                    if p == 2:
                        I("s_add_u32 s%d, s%d, %d" % (sWO_, sWO_, 32 * 3072))
                th.append(w)
            return th

        touch(0)
        NFIRST = env("NFIRST", 2)
        for ks in range(NFIRST):
            for th in issue_thunks(ks):
                th()
        self.stamp("first")
        I("s_getreg_b32 s%d, hwreg(HW_REG_XCC_ID, 0, 4)" % sXCC)
        I("s_mov_b32 s%d, 0x100000" % sSPIN)
        self.srd(R_WS, S_WS, WS_SIZE)
        self.srd(R_OUT, S_OUT, 2048 * 1024)
        I("v_lshlrev_b32 v%d, 4, v0" % vL16)
        I("v_lshlrev_b32 v%d, 2, v0" % vL4)
        I("s_lshl_b32 s%d, s%d, 2" % (sT, sC))
        I("s_add_u32 s%d, s%d, s%d" % (sT, sT, sW))
        I("s_mul_i32 s%d, s%d, %d" % (sKV, sT, KVH))
        I("s_add_u32 s%d, s%d, 0x%x" % (sKV, sKV, WS_KV))
        I("v_mov_b32 v%d, 0" % vC2)
        I("s_mul_i32 s%d, s%d, 160" % (sT + 1, sRG))
        I("s_add_u32 s%d, s%d, s%d" % (sT + 1, sT + 1, sKV))
        I("s_mov_b32 exec_hi, 0xff")
        ztok = I("buffer_store_dword v%d, v%d, s[%d:%d], s%d offen sc1" % (vC2, vL4, R_WS, R_WS + 3, sT + 1))
        I("s_mov_b64 exec, -1")
        I("s_mul_i32 s%d, s%d, %d" % (sPK, sT, PKW))
        I("s_lshl_b32 s%d, s%d, 7" % (sFL, sRG))
        I("s_lshl_b32 s%d, s%d, 12" % (sR1, sT))
        I("s_add_u32 s%d, s%d, 0x%x" % (sR1, sR1, WS_R1))
        I("s_add_u32 s%d, s%d, s%d" % (sT + 8, sR1, sFL))
        I("s_add_u32 s%d, s%d, 0x%x" % (sFL, sFL, WS_FL))
        I("s_lshl_b32 s%d, s%d, 2" % (sMYF, sT))
        I("s_add_u32 s%d, s%d, s%d" % (sMYF, sMYF, sFL))
        I("s_mul_i32 s%d, s%d, %d" % (sRGH, sRG, HSZ))
        I("s_lshl_b32 s%d, s%d, 13" % (sSTO, sC))
        I("s_lshl_b32 s%d, s%d, 9" % (sT + 1, sW))
        I("s_add_u32 s%d, s%d, s%d" % (sSTO, sSTO, sT + 1))
        I("s_mul_i32 s%d, s%d, 3" % (sT, sT))
        for t in range(3):
            I("s_add_u32 s%d, s%d, %d" % (sT + 1, sT, t))
            I("s_lshr_b32 s%d, s%d, 2" % (sT + 2, sT + 1))
            I("s_lshl_b32 s%d, s%d, 13" % (sT + 2, sT + 2))
            I("s_and_b32 s%d, s%d, 3" % (sT + 3, sT + 1))
            I("s_lshl_b32 s%d, s%d, 9" % (sT + 3, sT + 3))
            I("s_add_u32 s%d, s%d, s%d" % (sT + 2, sT + 2, sT + 3))
            I("s_add_u32 s%d, s%d, s%d" % (sT + 2, sT + 2, sRGH))
            I("s_cmp_lt_u32 s%d, 86" % (sT + 1))
            I("s_cselect_b32 s%d, s%d, 0x%x" % (sH0 + t, sT + 2, OOB))
        I("v_mov_b32 v%d, v%d" % (vCS1, l3))
        I("v_mov_b32 v%d, v%d" % (vCS1 + 1, q0))
        self.pack_toks = []
        for ks in range(NFIRST, 5):
            for th in issue_thunks(ks):
                th()
        I("v_add_u32 v%d, 0x10000, v%d" % (vA1, vL16))
        I("v_add_u32 v%d, s%d, v%d" % (vDMA, sW2K, vL16))
        I("v_and_b32 v%d, 0x7c, v%d" % (vFL, vL4))
        I("v_lshrrev_b32 v%d, 1, v%d" % (vT + 4, g_))
        I("v_lshlrev_b32 v%d, 8, v%d" % (vT + 4, vT + 4))
        I("v_lshl_add_u32 v%d, v%d, 4, v%d" % (vT + 4, i_, vT + 4))
        I("v_and_b32 v%d, 1, v%d" % (vT + 5, g_))
        I("v_lshl_add_u32 v%d, v%d, 11, v%d" % (vST, vT + 5, vT + 4))
        I("v_lshlrev_b32 v%d, 4, v%d" % (vSTA, g_))
        I("v_add_u32 v%d, 0x%x, v%d" % (vSTA, L_STA, vSTA))
        I("v_lshlrev_b32 v%d, 3, v%d" % (vSTQ, i_))
        I("v_add_u32 v%d, 0x%x, v%d" % (vSTQ, L_STA + 512, vSTQ))
        I("s_lshl_b32 s%d, s%d, 6" % (sT, sW))
        I("s_add_u32 s%d, s%d, 0x%x" % (sT, sT, L_STA))
        I("v_lshlrev_b32 v%d, 2, v%d" % (vSW, i_))
        I("v_add_u32 v%d, s%d, v%d" % (vSW, sT, vSW))
        I("v_lshrrev_b32 v%d, 3, v%d" % (vT + 4, i_))
        I("v_lshlrev_b32 v%d, 10, v%d" % (vT + 4, vT + 4))
        I("v_and_b32 v%d, 7, v%d" % (vT + 5, i_))
        I("v_lshl_add_u32 v%d, v%d, 7, v%d" % (vT + 4, vT + 5, vT + 4))
        I("v_lshrrev_b32 v%d, 1, v%d" % (vT + 5, i_))
        I("v_xor_b32 v%d, v%d, v%d" % (vT + 5, vT + 5, g_))
        I("v_lshl_add_u32 v%d, v%d, 4, v%d" % (vX0, vT + 5, vT + 4))
        I("v_xor_b32 v%d, 64, v%d" % (vX1, vX0))
        I("v_add_u32 v%d, s%d, v%d" % (vOW0, sW2K, vX0))
        I("v_add_u32 v%d, s%d, v%d" % (vOW1, sW2K, vX1))
        I("v_bfe_u32 v%d, v0, 2, 2" % (vT + 4))
        I("v_bfe_u32 v%d, v0, 3, 1" % (vT + 5))
        I("v_lshlrev_b32 v%d, 1, v%d" % (vT + 5, vT + 5))
        I("v_bfe_u32 v%d, v0, 4, 1" % (vT + 10))
        I("v_lshl_add_u32 v%d, v%d, 2, v%d" % (vT + 5, vT + 10, vT + 5))
        I("v_bfe_u32 v%d, v0, 1, 1" % (vT + 10))
        I("v_xor_b32 v%d, v%d, v%d" % (vT + 5, vT + 5, vT + 10))
        I("v_lshlrev_b32 v%d, 4, v%d" % (vT + 5, vT + 5))
        I("v_lshl_add_u32 v%d, v%d, 7, v%d" % (tc, vT + 4, vT + 5))
        I("v_and_b32 v%d, 1, v0" % (vT + 10))
        I("v_lshl_add_u32 v%d, v%d, 3, v%d" % (tc, vT + 10, tc))
        I("s_lshl_b32 s%d, s%d, 5" % (sT + 1, sW))
        I("v_xor_b32 v%d, s%d, v%d" % (vT + 4, sT + 1, tc))
        I("v_mul_u32_u24 v%d, 3072, v%d" % (vT + 5, g_))
        I("v_add_u32 v%d, v%d, v%d" % (vT + 4, vT + 4, vT + 5))
        I("v_add_u32 v%d, 0x%x, v%d" % (vTR, L_RING, vT + 4))
        for k in range(4):
            I("v_mov_b32 v%d, 0x3f803f80" % (vONE + k))
        I("s_mul_i32 s%d, s%d, 2560" % (sT, sW))
        I("s_add_u32 s%d, s%d, 0x%x" % (sT, sT, L_KVI))
        I("v_add_u32 v%d, s%d, v%d" % (vKVL, sT, vL4))
        for r in range(4):
            I("v_add_u32 v%d, %d, v0" % (vT + 4, 64 * r))
            I("v_mul_u32_u24 v%d, 4370, v%d" % (vT + 5, vT + 4))
            I("v_lshrrev_b32 v%d, 16, v%d" % (vT + 5, vT + 5))
            I("v_add_u32 v%d, v%d, v%d" % (vT + 4, vT + 4, vT + 5))
            I("v_lshlrev_b32 v%d, 2, v%d" % (vT + 4, vT + 4))
            I("v_add_u32 v%d, s%d, v%d" % (vPOS + r, sT, vT + 4))
        I("v_lshrrev_b32 v%d, 1, v%d" % (vT + 4, g_))
        I("v_add_u32 v%d, v%d, v%d" % (vT + 4, vT + 4, g_))
        I("v_lshlrev_b32 v%d, 4, v%d" % (vT + 4, vT + 4))
        I("s_add_u32 s%d, s%d, %d" % (sT, sT, 276 * 4))
        I("v_add_u32 v%d, s%d, v%d" % (vZP, sT, vT + 4))
        I("v_cmp_eq_u32 vcc, 15, v%d" % i_)
        I("v_cndmask_b32 v%d, 0, 1.0, vcc" % (vCS1 + 3))
        b.wait(lg=0)
        I("s_xor_b32 s%d, s%d, 0x80000000" % (sTAG, sEP))
        I("s_and_b32 s%d, s%d, 0xfffffff0" % (sTAG, sTAG))
        for r, val in ((sEPS, 0x358637bd), (sL2E, 0x3fb8aa3b), (sNL2E, 0xbfb8aa3b),
                       (sM1, 0x22222222), (sM2, 0x44444444), (sM3, 0x88888888)):
            I("s_mov_b32 s%d, 0x%x" % (r, val))
            I("s_mov_b32 s%d, 0x%x" % (r + 1, val))
        I("s_mov_b32 s%d, 0x00f0000f" % sDIAG)
        I("s_mov_b32 s%d, 0xf0000f00" % (sDIAG + 1))
        I("v_lshlrev_b32 v%d, 10, v%d" % (vT + 4, g_))
        I("s_lshl_b32 s%d, s%d, 12" % (sT, sW))
        I("v_add_u32 v%d, s%d, v%d" % (vT + 4, sT, vT + 4))
        for t in range(4):
            I("v_xor_b32 v%d, %d, v%d" % (vCS1 + 4 + t, 32 * t, tc))
            I("v_add_u32 v%d, v%d, v%d" % (vCS1 + 4 + t, vCS1 + 4 + t, vT + 4))
            I("v_add_u32 v%d, 0x%x, v%d" % (vCS1 + 4 + t, L_PACK, vCS1 + 4 + t))
        I("v_lshlrev_b32 v%d, 10, v%d" % (vT + 14, i_))
        I("v_lshl_add_u32 v%d, v%d, 3, v%d" % (vT + 14, g_, vT + 14))
        I("s_add_u32 s%d, s%d, s%d" % (sT, sTAG, sXCC))
        I("v_mov_b32 v%d, s%d" % (vT + 15, sT))
        self.stamp("setup")

        res_toks = []
        KL, KP = env('KL', 5), env('KP', 12)
        for ks in range(17):
            fill = []
            if ks < 16:
                b.wait(tokW[ks], tokA[ks // 2])
                I("s_barrier")
                if ks == 0:
                    self.stamp("w0")
                    touch(1)
                if ks == 1:
                    for k in range(5):
                        I("ds_write_b32 v%d, v%d offset:%d" % (vKVL, vCS1 + 3, 256 * k))
                if ks == env("KR1", 3):
                    assert b.vm_done > ztok[1]
                    I("s_mov_b64 exec, 1")
                    I("buffer_store_dword v%d, off, s[%d:%d], s%d sc1" % (vT + 15, R_WS, R_WS + 3, sT + 8))
                    I("s_mov_b64 exec, -1")
                for p in range(3):
                    s = self.free.pop(0)
                    self.wslot[("qkv", 0, (32 + ks, 2 * ks, 2 * ks + 1)[p])] = (s, None)
                    for hh in range(2):
                        fill.append(lambda s=s, hh=hh, p=p: I("ds_read_b64_tr_b16 %s, v%d offset:%d" % (
                            vr(s[1] + 2 * hh, 2, s[0]), vTR, (ks % 5) * 12288 + p * 1024 + hh * 512)))
                fb = vAF + (ks & 1) * 20
                ds, h = ks // 2, ks & 1
                for rt in range(4):
                    fill.append(lambda rt=rt: I("ds_read_b128 %s, v%d offset:%d" % (
                        vr(fb + 4 * rt, 4), (vX0, vX1)[h], ds * 8192 + rt * 2048)))
                fill.append(lambda: I("ds_read_b128 %s, v%d offset:%d" % (vr(fb + 16, 4), (vOW0, vOW1)[h], ds * 8192)))
                if ks >= 1 and ks + 4 < 16:
                    dm = issue_thunks(ks + 4)
                    for k, th in enumerate(dm):
                        fill.insert(2 * k + 1, th)
                if ks == 11:
                    def resid():
                        I("s_lshl_b32 s%d, s%d, 7" % (sT, sC))
                        I("s_lshl_b32 s%d, s%d, 5" % (sT + 1, sW))
                        I("s_add_u32 s%d, s%d, s%d" % (sT, sT, sT + 1))
                        I("s_add_u32 s%d, s%d, s%d" % (sT, sT, sRG64))
                        for rt in range(4):
                            res_toks.append(I("buffer_load_dwordx2 v[%d:%d], v%d, s[%d:%d], s%d offen" % (
                                vAB + 2 * rt, vAB + 2 * rt + 1, vT + 14, R_X, R_X + 3, sT)))
                            if rt < 3:
                                I("s_add_u32 s%d, s%d, 16384" % (sT, sT))
                    fill.append(resid)
                if ks == 11:
                    fill.append(self.r1_issue)
                if ks == KL:
                    fill.append(lambda: self.pack_load([0]))
                if ks == KP:
                    u = ks - KP

                    def prd(u=u):
                        b.wait(self.pack_toks[4 * u:4 * u + 4])
                        for t in range(4):
                            if u:
                                I("v_add_u32 v%d, %d, v%d" % (vCS1 + 4 + t, L_PACK2 - L_PACK, vCS1 + 4 + t))
                            for hh in range(2):
                                d = vACC + 4 * t + 2 * hh
                                I("ds_read_b64_tr_b16 v[%d:%d], v%d offset:%d" % (d, d + 1, vCS1 + 4 + t, hh * 512))
                    fill.append(prd)
            mfs = []
            if ks >= 1:
                k1 = ks - 1
                fb1 = vAF + (k1 & 1) * 20
                c0 = "0" if k1 == 0 else None
                wq, wk, wv = [slot_r(self.wslot[("qkv", 0, k)][0]) for k in (32 + k1, 2 * k1, 2 * k1 + 1)]
                one = vr(vONE, 4)
                for rt in range(4):
                    mfs.append(self.mf(vACC + 16 + 4 * rt, vr(fb1 + 4 * rt, 4), wk, c0))
                    mfs.append(self.mf(vACC + 32 + 4 * rt, vr(fb1 + 4 * rt, 4), wv, c0))
                own = vr(fb1 + 16, 4)
                mfs += [self.mf(vS1, one, own, c0), self.mf(vS2, own, own, c0), self.mf(vCSQ, wq, one, c0),
                        self.mf(vCSK, one, wk, c0), self.mf(vCSV, one, wv, c0)]
            while mfs or fill:
                if fill:
                    fill.pop(0)()
                if len(fill) > len(mfs) and fill:
                    fill.pop(0)()
                if mfs:
                    mfs.pop(0)()
            b.wait(lg=0)
            if ks == KP:
                self.ptoks = []
                for t in range(4):
                    tk = I("buffer_store_dwordx4 %s, v%d, s[%d:%d], s%d offen sc1" % (
                        vr(vACC + 4 * t, 4), vL16, R_WS, R_WS + 3, 80 + 4 * (ks - KP) + t))
                    self.ptoks.append(tk)
        b.wait(res_toks)
        for rt in range(4):
            for k in range(2):
                s = vAB + 2 * rt + k
                I("v_lshlrev_b32 v%d, 16, v%d" % (vX + 4 * rt + 2 * k, s))
                I("v_and_b32 v%d, 0xffff0000, v%d" % (vX + 4 * rt + 2 * k + 1, s))

    def pack_load(self, units):
        b = self.b
        I = b.I
        l3, q0 = vCS1, vCS1 + 1
        for u in units:
            dst = 80 + 4 * u
            uid, src, strd = sT, sT + 1, sT + 2
            I("s_lshl_b32 s%d, s%d, 2" % (uid, sRG))
            I("s_add_u32 s%d, s%d, s%d" % (uid, uid, sW))
            if u:
                I("s_add_u32 s%d, s%d, 128" % (uid, uid))
            lw1, lw2, lq, lnone, lgo = [b.newlabel("Lpk") for _ in range(5)]
            I("s_mul_i32 s88, s%d, %d" % (sC, 4 * PKW))
            I("s_mov_b32 s%d, 0x20000" % (R_PK + 3))

            def setsrd(ptr, size, stride):
                I("s_mov_b32 s%d, s%d" % (R_PK, ptr))
                I("s_and_b32 s%d, s%d, 0xffff" % (R_PK + 1, ptr + 1))
                I("s_mov_b32 s%d, %d" % (R_PK + 2, size))
                I("s_movk_i32 s%d, %d" % (strd, stride))

            def simple(f0):
                I("s_lshl_b32 s%d, s%d, 15" % (src, uid))
                I("s_lshl_b32 s89, s%d, 7" % sC)
                I("s_add_u32 s%d, s%d, s89" % (src, src))
                I("s_add_u32 s89, s%d, %d" % (uid, f0))
                I("s_lshl_b32 s89, s89, 10")
                I("s_add_u32 s88, s88, s89")
                for t in range(4):
                    I("s_add_u32 s%d, s88, %d" % (dst + t, t * PKW))
                I("s_branch %s" % lgo)

            if u == 0:
                I("s_cmp_ge_u32 s%d, 16" % uid)
                I("s_cbranch_scc1 %s" % lw1)
                setsrd(S_WO, 512 * 1024, 1024)
                simple(F_WO)
                b.label(lw1)
                I("s_cmp_ge_u32 s%d, 64" % uid)
                I("s_cbranch_scc1 %s" % lw2)
                I("s_sub_u32 s%d, s%d, 16" % (uid, uid))
                I("s_mul_i32 s89, s%d, 43" % uid)
                I("s_lshr_b32 s89, s89, 7")
                I("s_mul_i32 s92, s89, 3")
                I("s_sub_u32 s92, s%d, s92" % uid)
                setsrd(S_W1, 512 * 2752, 2752)
                I("s_mul_i32 s%d, s89, %d" % (src, 32 * 2752))
                I("s_mul_i32 s79, s%d, 384" % sC)
                I("s_add_u32 s%d, s%d, s79" % (src, src))
                I("s_lshl_b32 s79, s92, 7")
                I("s_add_u32 s%d, s%d, s79" % (src, src))
                I("s_mul_i32 s89, s89, 3072")
                I("s_add_u32 s88, s88, s89")
                I("s_add_u32 s88, s88, %d" % (F_W1 * 1024))
                for t in range(4):
                    I("s_lshl_b32 s79, s92, 2")
                    I("s_add_u32 s79, s79, %d" % t)
                    I("s_mul_i32 s89, s79, 43")
                    I("s_lshr_b32 s89, s89, 7")
                    I("s_mul_i32 s%d, s89, %d" % (dst + t, PKW - 3072))
                    I("s_lshl_b32 s79, s79, 10")
                    I("s_add_u32 s%d, s%d, s79" % (dst + t, dst + t))
                    I("s_add_u32 s%d, s%d, s88" % (dst + t, dst + t))
                I("s_mul_i32 s79, s%d, 3" % sC)
                I("s_add_u32 s79, s79, s92")
                I("s_cmp_ge_u32 s79, 22")
                I("s_cbranch_scc1 %s" % lnone)
                I("s_branch %s" % lgo)
                b.label(lw2)
                I("s_cmp_ge_u32 s%d, 107" % uid)
                I("s_cbranch_scc1 %s" % lnone)
                I("s_sub_u32 s%d, s%d, 64" % (uid, uid))
                setsrd(S_W2, 1376 * 1024, 1024)
                simple(F_W2)
            b.label(lnone)
            setsrd(S_WQ, 0, 1024)
            I("s_mov_b32 s%d, 0" % src)
            for t in range(4):
                I("s_mov_b32 s%d, 0x%x" % (dst + t, OOB))
            b.label(lgo)
            I("v_mul_lo_u32 v%d, v%d, s%d" % (vT + 4, l3, strd))
            I("v_add_u32 v%d, v%d, v%d" % (vT + 10, vT + 4, q0))
            I("v_xor_b32 v%d, 64, v%d" % (vT + 5, q0))
            I("v_add_u32 v%d, v%d, v%d" % (vT + 11, vT + 4, vT + 5))
            I("s_lshl_b32 s%d, s%d, 3" % (strd, strd))
            I("s_lshl_b32 s89, s%d, 12" % sW)
            I("s_add_u32 m0, s89, 0x%x" % ((L_PACK, L_PACK2)[u]))
            for q in range(4):
                self.pack_toks.append(I("buffer_load_dwordx4 v%d, s[%d:%d], s%d offen lds" % (
                    vT + 10 + (q & 1), R_PK, R_PK + 3, src)))
                if q < 3:
                    I("s_add_u32 s%d, s%d, s%d" % (src, src, strd))
                    I("s_add_u32 m0, m0, 1024")

    def tag_poll(self, voff, soff, vd, first_tok=None):
        b = self.b
        I = b.I
        lp, ld, lc = b.newlabel("Ltag"), b.newlabel("Ltagd"), b.newlabel("Ltagc")
        if first_tok is not None:
            b.wait(first_tok)
            I("s_branch %s" % lc)
        b.label(lp)
        self.Inc("buffer_load_dword v%d, v%d, s[%d:%d], s%d offen sc1" % (vd, voff, R_WS, R_WS + 3, soff))
        if first_tok is None:
            b.wait(vm=0)
        else:
            I("s_waitcnt vmcnt(0)")
        b.label(lc)
        I("v_subrev_u32 v%d, s%d, v%d" % (vd + 1, sTAG, vd))
        I("v_cmp_gt_u32 vcc, 16, v%d" % (vd + 1))
        I("s_cmp_eq_u64 vcc, exec")
        I("s_cbranch_scc1 %s" % ld)
        self.spin_guard(lp)
        b.label(ld)

    def r1_issue(self):
        I = self.b.I
        a = vCS1 + 2
        I("v_and_b32 v%d, 7, v0" % a)
        I("v_subrev_u32 v%d, s%d, v%d" % (a, sC, a))
        I("v_lshlrev_b32 v%d, 14, v%d" % (a, a))
        I("s_lshl_b32 s%d, s%d, 7" % (sT, sRG))
        I("s_add_u32 s%d, s%d, s%d" % (sT, sT, sR1))
        I("v_add_u32 v%d, s%d, v%d" % (a, sT, a))
        I("v_add_u32 v%d, s%d, v%d" % (vT + 5, sR1, vTCH))
        I("v_cmp_gt_u32 vcc, 32, v0")
        I("v_cndmask_b32 v%d, v%d, v%d, vcc" % (a, a, vT + 5))
        self.r1_tok = I("buffer_load_dword v%d, v%d, s[%d:%d], 0 offen sc1" % (vT + 12, a, R_WS, R_WS + 3))

    def r1_check(self):
        I = self.b.I
        I("s_mov_b32 s%d, 0" % sT)
        self.tag_poll(vCS1 + 2, sT, vT + 12, self.r1_tok)
        I("v_cmp_eq_u32 vcc, s%d, v%d" % (sXCC, vT + 13))
        I("s_cmp_eq_u32 vcc_hi, -1")
        I("s_cselect_b32 s%d, 1, 0" % sFAST)

    def r2_publish(self):
        b = self.b
        I = b.I
        lx = b.newlabel("Lr2")
        I("s_lshl_b32 s%d, s%d, 12" % (sT + 8, sC))
        I("s_add_u32 s%d, s%d, 0x%x" % (sT + 8, sT + 8, WS_R2))
        I("s_cmp_lg_u32 s%d, 0" % sW)
        I("s_cbranch_scc1 %s" % lx)
        I("s_lshl_b32 s%d, s%d, 7" % (sT, sRG))
        I("s_add_u32 s%d, s%d, s%d" % (sT, sT, sT + 8))
        I("v_mov_b32 v%d, s%d" % (vCS1 + 3, sTAG))
        I("s_mov_b64 exec, 1")
        self.Inc("buffer_store_dword v%d, off, s[%d:%d], s%d sc1" % (vCS1 + 3, R_WS, R_WS + 3, sT))
        I("s_mov_b64 exec, -1")
        b.label(lx)

    def touch_ox(self, layer):
        I = self.b.I
        I("s_add_u32 s%d, s%d, 0x%x" % (sT, sRG64, self.buf("X", 2 * layer)))
        I("s_add_u32 s%d, s%d, 0x%x" % (sT + 1, self.rgs("O"), self.buf("O", layer)))
        I("s_bitcmp1_b32 s%d, 0" % sW)
        I("s_cselect_b32 s%d, s%d, s%d" % (sT, sT, sT + 1))
        I("s_lshl_b32 s%d, s%d, 13" % (sT + 1, sC))
        I("s_add_u32 s%d, s%d, s%d" % (sT, sT, sT + 1))
        I("buffer_load_dword v%d, v%d, s[%d:%d], s%d offen sc1" % (vDUM, vTCH, R_WS, R_WS + 3, sT))

    def touch_h(self, layer):
        I = self.b.I
        I("s_lshl_b32 s%d, s%d, 13" % (sT, sC))
        I("s_add_u32 s%d, s%d, s%d" % (sT, sT, sRG64))
        I("s_add_u32 s%d, s%d, 0x%x" % (sT, sT, self.buf("X", 1)))
        I("s_mul_i32 s%d, s%d, 3" % (sT + 1, sC))
        I("s_add_u32 s%d, s%d, s%d" % (sT + 1, sT + 1, sW))
        I("s_sub_u32 s%d, s%d, 1" % (sT + 1, sT + 1))
        I("s_lshl_b32 s%d, s%d, 13" % (sT + 2, sT + 1))
        I("s_add_u32 s%d, s%d, s%d" % (sT + 2, sT + 2, sRGH))
        I("s_add_u32 s%d, s%d, 0x%x" % (sT + 2, sT + 2, self.buf("H", layer)))
        I("s_cmp_lt_u32 s%d, 22" % (sT + 1))
        I("s_cselect_b32 s%d, s%d, 0x%x" % (sT + 2, sT + 2, OOB))
        I("s_cmp_eq_u32 s%d, 0" % sW)
        I("s_cselect_b32 s%d, s%d, s%d" % (sT, sT, sT + 2))
        I("buffer_load_dword v%d, v%d, s[%d:%d], s%d offen sc1" % (vDUM, vTCH, R_WS, R_WS + 3, sT))

    def p1_kv_pass(self, layer, toks):
        chunk_of, chunk_open = self.chunker(toks, env("B1", [0, 1, 3, 7]))
        items = []
        one = vr(vONE, 4)
        for ks in range(16):
            ds, h = ks // 2, ks & 1
            c0 = "0" if ks == 0 else None
            for rt in range(4):
                def mfs(fr, ks=ks, rt=rt, c0=c0):
                    kk, kv_ = ("qkv", 0, 2 * ks), ("qkv", 0, 2 * ks + 1)
                    wk, wv = self.w_get(kk), self.w_get(kv_)
                    th = [self.mf(vACC + 16 + 4 * rt, fr, wk, c0), self.mf(vACC + 32 + 4 * rt, fr, wv, c0)]
                    if rt == 3:
                        th.append(lambda: (self.w_release(kk), self.w_release(kv_)))
                    return th
                items.append((vL16, ds * 8192 + rt * 2048 + h * 1024, chunk_of(ds), ds, mfs))
            items.append((vDMA, ds * 8192 + h * 1024, chunk_of(ds), ds,
                          lambda fr, c0=c0: [self.mf(vS1, one, fr, c0), self.mf(vS2, fr, fr, c0)]))
        self.bg_w = env("W_P1", 99)
        self.lead = env("LEAD1", 64)
        self.gemm(items, chunk_open, 8)

    def p1_rest(self, layer):
        b = self.b
        I = self.I
        self.stamp("kvpass")
        if layer == 0:
            self.r1_check()
            b.wait(self.ptoks)
        self.touch_ox(layer)
        self.bg_w = env("W_KVE", 14) if layer else 0
        self.stats_publish()
        if layer == 0:
            self.r2_publish()
        t1 = self.stats_read_kv()
        t2 = self.stats_read_q()
        b.wait(t1, t2)
        aK, aV = vACC + 16, vACC + 32
        for rt in range(4):
            for r in (0, 2):
                a_, b_ = vAF + 4 * rt + r, vAF + 16 + 4 * rt + r
                k_, v_ = aK + 4 * rt + r, aV + 4 * rt + r
                u = vT + 4 * ((rt * 2 + r // 2) % 4)
                I("v_pk_fma_f32 v[%d:%d], v[%d:%d], v[%d:%d], s[%d:%d]" % (u, u + 1, b_, b_ + 1, vCSK, vCSK + 1, sEPS, sEPS + 1))
                I("v_pk_mul_f32 v[%d:%d], v[%d:%d], v[%d:%d]" % (u + 2, u + 3, b_, b_ + 1, vCSV, vCSV + 1))
                I("v_pk_fma_f32 v[%d:%d], v[%d:%d], v[%d:%d], v[%d:%d]" % (k_, k_ + 1, a_, a_ + 1, k_, k_ + 1, u, u + 1))
                I("v_pk_fma_f32 v[%d:%d], v[%d:%d], v[%d:%d], v[%d:%d]" % (v_, v_ + 1, a_, a_ + 1, v_, v_ + 1, u + 2, u + 3))
        PKK, PKV = vAF + 32, vAF + 40
        for rt in range(4):
            for r in (0, 2):
                I("v_cvt_pk_bf16_f32 v%d, v%d, v%d" % (PKV + 2 * rt + r // 2, aV + 4 * rt + r, aV + 4 * rt + r + 1))
        self.phi_pairs([(aK + 4 * rt + r, PKK + 2 * rt + r // 2) for rt in range(4) for r in (0, 2)])
        KVD, ZD = vS1, vS2
        one = vr(vONE, 4)
        self.bg_w = 0
        for p in range(2):
            c0 = "0" if p == 0 else None
            self.mf(KVD, vr(PKK + 4 * p, 4), vr(PKV + 4 * p, 4), c0)()
            self.mf(ZD, vr(PKK + 4 * p, 4), one, c0)()
        b.I("s_add_u32 s%d, s%d, %d" % (sKB, sKV, layer * 2560))
        b.I("s_and_b32 s%d, s%d, 1" % (sKB + 1, sRG))
        b.I("s_mul_i32 s%d, s%d, 1280" % (sKB + 1, sKB + 1))
        b.I("s_add_u32 s%d, s%d, s%d" % (sKB + 1, sKB + 1, sKB))
        for r in range(4):
            b.I("ds_write_b32 v%d, v%d" % (vPOS + r, KVD + r))
        b.I("s_mov_b32 exec_lo, 0x00010001")
        b.I("s_mov_b32 exec_hi, 0x00010001")
        b.I("ds_write_b128 v%d, %s" % (vZP, vr(ZD, 4)))
        b.I("s_mov_b64 exec, -1")
        rd = [b.I("ds_read_b32 v%d, v%d offset:%d" % (vT + k, vKVL, 256 * k)) for k in range(5)]
        for k in range(5):
            b.wait(rd[k])
            if k == 4:
                b.I("s_mov_b32 exec_hi, 0xffff")
            b.I("buffer_atomic_add_f32 v%d, v%d, s[%d:%d], s%d offen offset:%d" % (
                vT + k, vL4, R_WS, R_WS + 3, sKB + 1, k * 256))
        b.I("s_mov_b64 exec, -1")
        self.stamp("atom")
        self.last_bg = self.clock
        self.bg_w = env("W_Q", 99) if layer else 0
        items = []
        for ks in range(16):
            ds, h = ks // 2, ks & 1
            c0 = "0" if ks == 0 else None
            if layer:
                def keep(fr):
                    self.wq_reg = fr
                    return []
                items.append((vWQ, ks * 1024, None, ds, keep))
            for rt in range(4):
                def mfs(fr, ks=ks, rt=rt, c0=c0):
                    w = self.w_get(("qkv", 0, 32 + ks)) if layer == 0 else self.wq_reg
                    return [self.mf(vACC + 4 * rt, w, fr, c0)]
                if layer == 0:
                    items.append(((vX0, vX1)[h], ds * 8192 + rt * 2048, None, ds, mfs))
                else:
                    items.append((vL16, ds * 8192 + rt * 2048 + h * 1024, None, ds, mfs))
        self.gemm(items, None, 11 if layer == 0 else 7)
        if layer == 0:
            b.I("s_lshl_b32 s%d, s%d, 14" % (sT, sW))
            b.I("s_add_u32 s%d, s%d, 0x%x" % (sT, sT, L_WQ))
            b.I("v_add_u32 v%d, s%d, v%d" % (vWQ, sT, vL16))
            b.I("v_and_b32 v%d, 0xfff, v%d" % (vCS1, vTCH))
            r2tok = b.I("buffer_load_dword v%d, v%d, s[%d:%d], s%d offen sc1" % (vCS1 + 2, vCS1, R_WS, R_WS + 3, sT + 8))
            for ks in range(16):
                k = ("qkv", 0, 32 + ks)
                b.I("ds_write_b128 v%d, %s offset:%d" % (vWQ, slot_r(self.wslot[k][0]), ks * 1024))
            b.wait(lg=0)
            for ks in range(16):
                self.w_release(("qkv", 0, 32 + ks))
        PQ = vACC + 16
        for rt in range(4):
            ab = vAB + 2 * rt
            for r in (0, 2):
                q_ = vACC + 4 * rt + r
                u = vT + 2 * ((rt * 2 + r // 2) % 8)
                I("v_pk_fma_f32 v[%d:%d], v[%d:%d], v[%d:%d], s[%d:%d] op_sel:[0,1,0] op_sel_hi:[1,1,1]" % (
                    u, u + 1, vCSQ + r, vCSQ + r + 1, ab, ab + 1, sEPS, sEPS + 1))
                I("v_pk_fma_f32 v[%d:%d], v[%d:%d], v[%d:%d], v[%d:%d] op_sel:[0,0,0] op_sel_hi:[1,0,1]" % (
                    q_, q_ + 1, q_, q_ + 1, ab, ab + 1, u, u + 1))
        self.phi_pairs([(vACC + 4 * rt + r, PQ + 2 * rt + r // 2) for rt in range(4) for r in (0, 2)])
        self.stamp("qpass")
        self.bg_w = 0
        if layer == 0:
            self.tag_poll(vCS1, sT + 8, vCS1 + 2, r2tok)
            self.stamp("r2chk")
        self.w_burst(env("W_S1", [24, 16])[layer])
        b.I("v_add_u32 v%d, 0x400, v%d" % (vC2, vL16))
        b.I("v_cmp_gt_u32 vcc, 12, v0")
        b.I("v_mov_b32 v%d, 0x%x" % (vT, OOB))
        b.I("v_cndmask_b32 v%d, v%d, v%d, vcc" % (vC2, vT, vC2))
        b.I("s_add_u32 s%d, s%d, s%d" % (sT + 6, self.rgs("O"), sSTO))
        b.I("s_add_u32 s%d, s%d, 0x%x" % (sT + 6, sT + 6, self.buf("O", layer)))
        b.I("s_add_u32 s%d, s%d, 4096" % (sT + 7, sT + 6))
        self.stamp("s1burst")
        lp, ld = b.newlabel("Lkv"), b.newlabel("Lkvd")
        b.label(lp)
        b.I("buffer_load_dwordx4 %s, v%d, s[%d:%d], s%d offen sc1" % (vr(vT, 4), vL16, R_WS, R_WS + 3, sKB))
        b.I("buffer_load_dwordx4 %s, v%d, s[%d:%d], s%d offen offset:1280 sc1" % (vr(vT + 4, 4), vL16, R_WS, R_WS + 3, sKB))
        b.I("buffer_load_dwordx4 %s, v%d, s[%d:%d], s%d offen sc1" % (vr(vT + 8, 4), vC2, R_WS, R_WS + 3, sKB))
        b.I("buffer_load_dwordx4 %s, v%d, s[%d:%d], s%d offen offset:1280 sc1" % (vr(vT + 12, 4), vC2, R_WS, R_WS + 3, sKB))
        b.wait(vm=0)
        for k in (0, 2, 8, 10):
            b.I("v_pk_add_f32 v[%d:%d], v[%d:%d], v[%d:%d]" % (vT + k, vT + k + 1, vT + k, vT + k + 1, vT + k + 4, vT + k + 5))
        b.I("v_cmp_eq_f32 vcc, 0x42000000, v%d" % (vT + 3))
        b.I("v_cmp_eq_f32 s[%d:%d], v%d, v%d" % (sT, sT + 1, vT + 11, vT + 3))
        b.I("s_and_b64 vcc, vcc, s[%d:%d]" % (sM3, sM3 + 1))
        b.I("s_and_b32 s%d, s%d, 0x888" % (sT, sT))
        b.I("s_xor_b32 s%d, s%d, 0x888" % (sT, sT))
        b.I("s_xor_b64 vcc, vcc, s[%d:%d]" % (sM3, sM3 + 1))
        b.I("s_or_b32 s%d, s%d, vcc_lo" % (sT, sT))
        b.I("s_or_b32 s%d, s%d, vcc_hi" % (sT, sT))
        b.I("s_cbranch_scc0 %s" % ld)
        self.spin_guard(lp)
        b.label(ld)
        self.stamp("kvsync")
        b.I("v_lshl_add_u32 v%d, v0, 4, v%d" % (vT + 4, vKVL))
        b.I("v_sub_u32 v%d, v%d, v%d" % (vT + 4, vT + 4, vL4))
        b.I("ds_write_b128 v%d, %s offset:1280" % (vT + 4, vr(vT, 4)))
        b.I("s_mov_b64 exec, 0xfff")
        b.I("ds_write_b128 v%d, %s offset:2304" % (vT + 4, vr(vT + 8, 4)))
        b.I("s_mov_b64 exec, -1")
        lt = [b.I("ds_read_b32 v%d, v%d offset:1280" % (vT + 12 + r, vPOS + r)) for r in range(4)]
        lt.append(b.I("ds_read_b128 %s, v%d offset:1280" % (vr(vT + 4, 4), vZP)))
        b.wait(lt)
        I("v_cvt_pk_bf16_f32 v%d, v%d, v%d" % (vT + 10, vT + 4, vT + 5))
        I("v_cvt_pk_bf16_f32 v%d, v%d, v%d" % (vT + 11, vT + 6, vT + 7))
        I("v_cvt_pk_bf16_f32 v%d, v%d, v%d" % (vT + 8, vT + 12, vT + 13))
        I("v_cvt_pk_bf16_f32 v%d, v%d, v%d" % (vT + 9, vT + 14, vT + 15))
        NUM, DEN = vACC, vACC + 32
        for rt in range(4):
            I("v_mfma_f32_16x16x16_bf16 %s, v[%d:%d], v[%d:%d], 0" % (vr(DEN + 4 * rt, 4), vT + 10, vT + 11, PQ + 2 * rt, PQ + 2 * rt + 1))
        for rt in range(4):
            I("v_mfma_f32_16x16x16_bf16 %s, v[%d:%d], v[%d:%d], 0" % (vr(NUM + 4 * rt, 4), vT + 8, vT + 9, PQ + 2 * rt, PQ + 2 * rt + 1))
        for rt in range(4):
            I("v_add_f32 v%d, s%d, v%d" % (DEN + 4 * rt, sEPS, DEN + 4 * rt))
        for rt in range(4):
            I("v_rcp_f32 v%d, v%d" % (DEN + 4 * rt, DEN + 4 * rt))
        for rt in range(4):
            for r in (0, 2):
                n_ = NUM + 4 * rt + r
                I("v_pk_mul_f32 v[%d:%d], v[%d:%d], v[%d:%d] op_sel_hi:[1,0]" % (n_, n_ + 1, n_, n_ + 1, DEN + 4 * rt, DEN + 4 * rt + 1))
        for rt in range(4):
            for r in (0, 2):
                I("v_cvt_pk_bf16_f32 v%d, v%d, v%d" % (vT + 2 * rt + r // 2, NUM + 4 * rt + r, NUM + 4 * rt + r + 1))
        return self.stores2(self.tile_stores(vT, sT + 6))

    def n16_pass(self, name, layer, nks, toks, bounds):
        chunk_of, chunk_open = self.chunker(toks, bounds)
        items = []
        for ks in range(nks):
            ds, h = ks // 2, ks & 1
            for rt in range(4):
                def mfs(fr, ks=ks, rt=rt):
                    w = self.w_get((name, layer, ks))
                    th = [self.mf(vX + 4 * rt, w, fr)]
                    if rt == 3:
                        th.append(lambda: self.w_release((name, layer, ks)))
                    return th
                a, off = self.lds_addr((ds % NRING) * 8192 + rt * 2048 + h * 1024)
                items.append((a, off, chunk_of(ds), ds, mfs))
        self.gemm(items, chunk_open, 11)

    def x_store(self, idx):
        I = self.I
        self.bg_w = 0
        self.b.I("s_add_u32 s%d, s%d, s%d" % (sT + 6, sRG64, sSTO))
        self.b.I("s_add_u32 s%d, s%d, 0x%x" % (sT + 6, sT + 6, self.buf("X", idx)))
        self.b.I("s_add_u32 s%d, s%d, 4096" % (sT + 7, sT + 6))
        for rt in range(4):
            for r in (0, 2):
                I("v_cvt_pk_bf16_f32 v%d, v%d, v%d" % (vT + 2 * rt + r // 2, vX + 4 * rt + r, vX + 4 * rt + r + 1))
        return self.stores2(self.tile_stores(vT, sT + 6))

    def p3(self, layer, toks):
        b = self.b
        I = self.I
        chunk_of, chunk_open = self.chunker(toks, env("B3", [0, 1, 3, 7]))
        items = []
        one = vr(vONE, 4)
        for ks in range(16):
            ds, h = ks // 2, ks & 1
            c0 = "0" if ks == 0 else None
            for rt in range(4):
                def mfs(fr, ks=ks, rt=rt, c0=c0):
                    th = []
                    for t in range(3):
                        w = self.w_get(("w1", layer, 3 * ks + t))
                        th.append(self.mf(vACC + 16 * t + 4 * rt, w, fr, c0))
                        if layer == 0 and rt == 0:
                            th.append(self.mf(vCS1 + 4 * t, w, one, c0))
                    if rt == 3:
                        th.append(lambda: [self.w_release(("w1", layer, 3 * ks + t)) for t in range(3)])
                    return th
                items.append((vL16, ds * 8192 + rt * 2048 + h * 1024, chunk_of(ds), ds, mfs))
            items.append((vDMA, ds * 8192 + h * 1024, chunk_of(ds), ds,
                          lambda fr, c0=c0: [self.mf(vS1, one, fr, c0), self.mf(vS2, fr, fr, c0)]))
        self.bg_w = env("W_P3", 99)
        self.lead = env("LEAD3", 64)
        self.gemm(items, chunk_open, 8)
        self.stamp("p3gemm")
        self.bg_w = env("W_P3E", 20)
        self.lead = 0
        self.stats_publish()
        t2 = self.stats_read_q()
        for t in range(3):
            b.I("s_add_u32 s%d, s%d, 0x%x" % (sT + 6 + 2 * t, sH0 + t, self.buf("H", layer)))
            b.I("s_add_u32 s%d, s%d, 4096" % (sT + 7 + 2 * t, sT + 6 + 2 * t))
        b.wait(t2)
        sts = []
        P = vAF
        for t in range(3):
            for r2 in range(2):
                prs = [(rt, r) for rt in (2 * r2, 2 * r2 + 1) for r in (0, 2)]
                for k, (rt, r) in enumerate(prs):
                    ab = vAB + 2 * rt
                    I("v_pk_mul_f32 v[%d:%d], v[%d:%d], v[%d:%d] op_sel:[0,1] op_sel_hi:[1,1]" % (
                        vT + 2 * k, vT + 2 * k + 1, vCS1 + 4 * t + r, vCS1 + 4 * t + r + 1, ab, ab + 1))
                for k, (rt, r) in enumerate(prs):
                    ab = vAB + 2 * rt
                    x_ = vACC + 16 * t + 4 * rt + r
                    I("v_pk_fma_f32 v[%d:%d], v[%d:%d], v[%d:%d], v[%d:%d] op_sel:[0,0,0] op_sel_hi:[1,0,1]" % (
                        x_, x_ + 1, x_, x_ + 1, ab, ab + 1, vT + 2 * k, vT + 2 * k + 1))
                for k, (rt, r) in enumerate(prs):
                    x_ = vACC + 16 * t + 4 * rt + r
                    I("v_pk_mul_f32 v[%d:%d], v[%d:%d], s[%d:%d]" % (vT + 2 * k, vT + 2 * k + 1, x_, x_ + 1, sNL2E, sNL2E + 1))
                for k in range(8):
                    I("v_exp_f32 v%d, v%d" % (vT + k, vT + k))
                for k in range(4):
                    I("v_pk_add_f32 v[%d:%d], v[%d:%d], 1.0 op_sel_hi:[1,0]" % (vT + 2 * k, vT + 2 * k + 1, vT + 2 * k, vT + 2 * k + 1))
                for k in range(8):
                    I("v_rcp_f32 v%d, v%d" % (vT + k, vT + k))
                for k, (rt, r) in enumerate(prs):
                    x_ = vACC + 16 * t + 4 * rt + r
                    I("v_pk_mul_f32 v[%d:%d], v[%d:%d], v[%d:%d]" % (x_, x_ + 1, x_, x_ + 1, vT + 2 * k, vT + 2 * k + 1))
                for k, (rt, r) in enumerate(prs):
                    x_ = vACC + 16 * t + 4 * rt + r
                    I("v_cvt_pk_bf16_f32 v%d, v%d, v%d" % (P + 8 * t + 2 * rt + r // 2, x_, x_ + 1))
            sts += self.stores2(self.tile_stores(P + 8 * t, sT + 6 + 2 * t))
        return sts

    def final_store(self):
        I = self.b.I
        I("v_and_b32 v%d, 15, v0" % (vT + 8))
        I("v_lshlrev_b32 v%d, 10, v%d" % (vT + 8, vT + 8))
        I("v_lshrrev_b32 v%d, 4, v0" % (vT + 9))
        I("v_lshl_add_u32 v%d, v%d, 3, v%d" % (vT + 8, vT + 9, vT + 8))
        I("s_lshl_b32 s%d, s%d, 7" % (sT, sC))
        I("s_lshl_b32 s%d, s%d, 5" % (sT + 1, sW))
        I("s_add_u32 s%d, s%d, s%d" % (sT, sT, sT + 1))
        I("s_add_u32 s%d, s%d, s%d" % (sT, sT, sRG64))
        for rt in range(4):
            for r in (0, 2):
                I("v_cvt_pk_bf16_f32 v%d, v%d, v%d" % (vT + 2 * rt + r // 2, vX + 4 * rt + r, vX + 4 * rt + r + 1))
            I("buffer_store_dwordx2 v[%d:%d], v%d, s[%d:%d], s%d offen" % (
                vT + 2 * rt, vT + 2 * rt + 1, vT + 8, R_OUT, R_OUT + 3, sT))
            if rt < 3:
                I("s_add_u32 s%d, s%d, 16384" % (sT, sT))

    def body(self):
        b = self.b
        for layer in range(2):
            self.w_enqueue("wo", layer, F_WO, 16)
            self.w_enqueue("w1", layer, F_W1, 48)
            self.w_enqueue("w2", layer, F_W2, 43)
        ph = 0
        BURSTS = env("W_PUB", [[8, 8, 8, 8], [8, 8, 8, 8]])
        AF = env("AFIRST", 8)
        for layer in range(2):
            BURST = BURSTS[layer]
            self.pace_w = env('PACEW', [75, 62])[layer]
            if layer == 0:
                self.startup()
            else:
                toks = self.start_tile("X", 1, 16, AF)
                self.p1_kv_pass(layer, toks)
            st = self.p1_rest(layer)
            ph += 1
            self.publish(st, ph, BURST[0])
            self.stamp("o_pub")
            self.poll_flags(ph)
            self.stamp("o_rdy")
            toks = self.start_tile("O", layer, 16, AF)
            self.bg_w = env("W_P2", 99)
            self.n16_pass("wo", layer, 16, toks, env("B2", [0, 1, 2, 3, 5, 7]))
            self.stamp("p2gemm")
            st = self.x_store(2 * layer)
            ph += 1
            self.publish(st, ph, BURST[1])
            self.stamp("x1_pub")
            self.poll_flags(ph)
            self.stamp("x1_rdy")
            toks = self.start_tile("X", 2 * layer, 16, AF)
            self.aq.append(lambda layer=layer: self.touch_h(layer))
            self.a_nks += 1
            st = self.p3(layer, toks)
            ph += 1
            self.publish(st, ph, BURST[2])
            self.stamp("h_pub")
            self.poll_flags(ph)
            self.stamp("h_rdy")
            toks = self.start_tile("H", layer, 43, AF)
            self.bg_w = env("W_P4", 99)
            self.n16_pass("w2", layer, 43, toks, env("B4", [0, 1, 2, 3, 5, 7, 9, 11, 13, 15, 17, 19, 21]))
            self.stamp("p4gemm")
            if layer == 0:
                st = self.x_store(1)
                ph += 1
                self.publish(st, ph, BURST[3])
                self.stamp("x2_pub")
                self.poll_flags(ph)
                self.stamp("x2_rdy")
            else:
                self.final_store()
                lx = b.newlabel("Lep")
                b.I("s_or_b32 s%d, s2, s%d" % (sT, sW))
                b.I("s_cbranch_scc1 %s" % lx)
                b.I("s_add_u32 s%d, s%d, 16" % (sT, sEP))
                b.I("v_mov_b32 v%d, s%d" % (vT + 9, sT))
                b.I("s_mov_b32 s%d, 0x%x" % (sT, WS_EP))
                b.I("s_mov_b64 exec, 1")
                self.Inc("buffer_store_dword v%d, off, s[%d:%d], s%d sc1" % (vT + 9, R_WS, R_WS + 3, sT))
                b.I("s_mov_b64 exec, -1")
                b.label(lx)
                self.stamp("end")
        if self.diag:
            b.I("s_lshl_b32 s%d, s2, 2" % sT)
            b.I("s_add_u32 s%d, s%d, s%d" % (sT, sT, sW))
            b.I("s_lshl_b32 s%d, s%d, 8" % (sT, sT))
            b.I("s_add_u32 s%d, s%d, 0x%x" % (sT, sT, WS_STAMP))
            b.I("buffer_store_dword v%d, v%d, s[%d:%d], s%d offen" % (vSTAMP, vL4, R_WS, R_WS + 3, sT))
        b.label("L_end")
        b.I("s_endpgm")

    def emit(self):
        self.body()
        head = """; @launch grid=(256,1,1) block=(256,1,1) lds=%d
; persistent fused kernel: 32 row groups (64 rows) x 8 column groups (generated by my own script)
.amdgcn_target "amdgcn-amd-amdhsa--gfx950"
.text
.globl %s_kernel
.p2align 8
.type %s_kernel,@function
%s_kernel:
""" % (LDS_BYTES, NAME, NAME, NAME)
        tail = """.section .rodata,"a"
.p2align 6
.amdhsa_kernel %s_kernel
  .amdhsa_next_free_vgpr 512
  .amdhsa_next_free_sgpr 102
  .amdhsa_accum_offset 256
  .amdhsa_group_segment_fixed_size 0
  .amdhsa_kernarg_size 72
  .amdhsa_user_sgpr_count 2
  .amdhsa_user_sgpr_kernarg_segment_ptr 1
  .amdhsa_system_sgpr_workgroup_id_x 1
.end_amdhsa_kernel
""" % NAME
        return head + self.b.text() + tail


if __name__ == "__main__":
    import argparse
    ap = argparse.ArgumentParser()
    ap.add_argument("-o", default="cdna_kernels/%s.s" % NAME)
    ap.add_argument("--diag", action="store_true")
    ap.add_argument("--sep", action="store_true")
    a = ap.parse_args()
    g = Gen(a.diag, a.sep)
    txt = g.emit()
    if a.diag:
        txt = txt.replace(".amdgcn_target", "; stamps: " + ",".join(g.stamp_names) + "\n.amdgcn_target", 1)
    open(a.o, "w").write(txt)
    print("instructions", g.b.nins, "nops", g.b.nops, file=sys.stderr)
```

```python
import sys
import os
sys.path.insert(0, os.path.dirname(os.path.abspath(__file__)))
from asmb import Builder, vr, sr

NAME = "interleave_layers__linear_attn_block__dense_activation_silu__prompt"


def env(name, default):
    v = os.environ.get(name)
    return default if v is None else eval(v)


PKW = 107 * 1024
WS_FL = 0x500000
WS_EP = 0x510000
WS_R2 = 0x518000
WS_R1 = 0x560000
WS_KV = 0x520000
KVH = 5120
WS_O = 0x600000
WS_X = 0x800000
WS_H = 0xA00000
HSZ = 22 * 8192
WS_STAMP = 0x3000000
WS_SIZE = 0x3100000
OOB = 0x4000000
F_WO, F_W1, F_W2 = 0, 16, 64

L_RING = 65536
L_STA = 157696
L_WQ = 81920
L_PACK = 131072
L_PACK2 = 147456
L_KVI = 147456
NRING = 10
LDS_BYTES = 163840

S_X, S_WQ, S_WO, S_W1, S_W2, S_OUT, S_DBG, S_WS = 4, 6, 8, 12, 14, 16, 18, 20
R_X, R_WQ, R_WS, R_OUT, R_DBG, R_PK = 24, 28, 32, 36, 40, 44
sRG, sC, sW, sFAST, sPK, sKV, sFL, sRG64, sRGH, sSTO = 48, 49, 50, 51, 52, 53, 54, 55, 56, 57
sH0 = 58
sSPIN = 61
sEPS, sL2E, sNL2E = 62, 64, 66
sM1, sM2, sM3, sDIAG = 68, 70, 72, 74
sT = 76
sPKC = 96
sXCC = 97
sMYF = 98
sW2K = 99
sAB = 100
sAO = 101
sTAG = 22
sEP = 23
sQ = 10
sTC = 11
sR1 = 3
sROT = 40
sKB = 88

vL16, vA1, vKVL, vDMA, vST = 1, 2, 3, 4, 5
vX0, vX1, vOW0, vOW1, vTR, vXS0, vXS1, vWS = 6, 7, 8, 9, 10, 11, 12, 13
vFL, vL4, vSTAMP, vSTA, vSTQ, vC2 = 14, 15, 16, 17, 18, 19
vX = 20
vCSQ, vCSK, vCSV = 36, 40, 44
vCS1 = 48
vONE = 60
vACC = 64
vAF = 112
NAF = 12
vS1, vS2 = 160, 164
vAB = 168
vT = 176
vPOS = 192
vZP = 196
vWQ = 13
vSW = 197
vTCH = 199
vDUM = 198
SLOTS = [("a", 4 * i) for i in range(64)] + [("v", 200 + 4 * i) for i in range(14)]
PACE = env("PACE", 60)
LEAD = env("LEAD", 0)
NTSET = env("NT", lambda key: False)
TB = env("TB", 16)
TPACE = env("TPACE", 250)
MINLEAD = env("MINLEAD", 0)
COST = {"mfma": 16, "trans": 8, "ds": 4, "valu": 4, "perm": 4, "dpp": 4, "rdlane": 4, "wrlane": 4, "salu": 2, "vmem": 8}


def slot_r(s):
    return vr(s[1], 4, s[0])


class Gen:
    def __init__(self, diag=False, sep=False):
        self.b = Builder()
        self.diag = diag
        self.sep = sep
        self.free = list(SLOTS)
        self.wq = []
        self.wslot = {}
        self.pk_cur = None
        self.nstamp = 0
        self.stamp_names = []
        self.aq = []
        self.clock = 0
        self.last_bg = -1000
        self.bg_w = 0
        self.in_bg = False
        self.wall = []
        self.touched = 0
        self.lead = 0
        self.pace_w = 70
        self.last_touch = -10000
        self.issued = 0

    def I(self, t):
        tok = self.b.I(t)
        k = self.b.hists[0][-1].kind if self.b.hists and self.b.hists[0] else "salu"
        self.clock += COST.get(k, 4)
        if not self.in_bg and k in ("mfma", "valu", "trans") and self.clock - self.last_bg >= (PACE if self.aq else self.pace_w):
            self.bg_step()
        return tok

    def bg_step(self):
        self.in_bg = True
        done = False
        can_w = self.bg_w > 0 and self.wq and self.free and (self.touched > self.issued + MINLEAD or self.touched >= len(self.wall) or not LEAD)
        can_t = (self.lead > 0 and LEAD and not os.environ.get("NOW") and self.touched < min(self.issued + self.lead, len(self.wall))
                 and self.clock - self.last_touch >= TPACE)
        if os.environ.get("NOW"):
            can_w = self.bg_w > 0 and self.wq and self.free
        if self.aq:
            if getattr(self.aq[0], "ds", 0) <= self.a_safe:
                self.aq.pop(0)()
                done = True
        elif can_t:
            self.w_touch()
            self.last_touch = self.clock
            done = True
        elif can_w:
            self.w_issue()
            self.bg_w -= 1
            done = True
        if done:
            self.last_bg = self.clock
        self.in_bg = False

    def Inc(self, t):
        self.b.I(t)
        self.b.vm_issued -= 1

    def stamp(self, name):
        if os.environ.get("WLOG"):
            print("%-8s clock %6d  wq left %3d next %s free %d lead %d" % (name, self.clock, len(self.wq), self.wq[0][0] if self.wq else None, len(self.free), self.touched - self.issued), file=sys.stderr)
        if not self.diag:
            return
        b = self.b
        k = self.nstamp
        self.nstamp += 1
        b.comment("stamp %d %s" % (k, name))
        b.I("s_memtime s[94:95]")
        b.wait(lg=0)
        b.I("v_writelane_b32 v%d, s94, %d" % (vSTAMP, k))
        if name in ("start", "end"):
            b.I("s_memrealtime s[94:95]")
            b.wait(lg=0)
            b.I("v_writelane_b32 v%d, s94, %d" % (vSTAMP, 62 if name == "start" else 63))
        self.stamp_names.append(name)

    def buf(self, kind, idx):
        base = {"O": WS_O if self.sep else WS_H, "X": WS_X, "H": WS_H}[kind]
        return base + (idx * 0x1000000 if self.sep else 0)

    def rgs(self, kind):
        return sRGH if kind == "H" or (kind == "O" and not self.sep) else sRG64

    def srd(self, r, ptr, size):
        self.I("s_mov_b32 s%d, s%d" % (r, ptr))
        self.I("s_and_b32 s%d, s%d, 0xffff" % (r + 1, ptr + 1))
        self.I("s_mov_b32 s%d, 0x%x" % (r + 2, size))
        self.I("s_mov_b32 s%d, 0x20000" % (r + 3))

    def w_enqueue(self, name, layer, f0, n):
        for i in range(n):
            self.wq.append(((name, layer, i), f0 + i))
            self.wall.append(f0 + i)

    def w_touch(self, TB=TB):
        p = self.touched
        f0 = self.wall[p]
        n = 0
        while n < TB and p + n < len(self.wall) and self.wall[p + n] == f0 + n:
            n += 1
        m = (n + 3) // 4
        b = self.b
        b.I("s_mul_i32 s%d, s%d, %d" % (sTC, sQ, m * 1024))
        b.I("s_add_u32 s%d, s%d, s%d" % (sTC, sTC, sPK))
        b.I("s_add_u32 s%d, s%d, %d" % (sTC, sTC, f0 * 1024))
        if m < 8:
            mask = (1 << (8 * m)) - 1
            b.I("s_mov_b32 exec_lo, 0x%x" % (mask & 0xffffffff))
            b.I("s_mov_b32 exec_hi, 0x%x" % (mask >> 32))
        b.I("buffer_load_dword v%d, v%d, s[%d:%d], s%d offen sc1" % (vDUM, vTCH, R_WS, R_WS + 3, sTC))
        if m < 8:
            b.I("s_mov_b64 exec, -1")
        self.touched += n

    def w_issue(self):
        key, f = self.wq.pop(0)
        s = self.free.pop(0)
        self.issued += 1
        if os.environ.get("NOW"):
            self.wslot[key] = (s, None)
            return
        if LEAD and self.touched < self.issued:
            print("WARNING: untouched W load", key, file=sys.stderr)
            self.touched = self.issued
        if os.environ.get("FAKEW"):
            f = f % 8
        grp = f // 4
        if self.pk_cur != grp:
            self.b.I("s_add_u32 s%d, s%d, 0x%x" % (sPKC, sPK, grp * 4096))
            self.pk_cur = grp
        tok = self.b.I("buffer_load_dwordx4 %s, v%d, s[%d:%d], s%d offen offset:%d sc1%s" % (
            slot_r(s), vL16, R_WS, R_WS + 3, sPKC, (f % 4) * 1024, " nt" if NTSET(key) else ""))
        self.wslot[key] = (s, tok)

    def w_burst(self, n):
        k = 0
        while k < n and self.wq and self.free:
            self.w_issue()
            k += 1
        self.last_bg = self.clock

    def w_get(self, key):
        if key not in self.wslot:
            print("WARNING: late W load", key, file=sys.stderr)
        while key not in self.wslot:
            assert self.wq and self.free, "no free slot for %s" % (key,)
            self.w_issue()
        s, tok = self.wslot[key]
        self.b.wait(tok)
        return slot_r(s)

    def w_release(self, key):
        s, _ = self.wslot.pop(key)
        self.free.append(s)

    def stores2(self, texts, wt=False):
        b = self.b
        if wt:
            return [b.I(t + " sc1") for t in texts]
        lf, lj = b.newlabel("Lfast"), b.newlabel("Ljoin")
        b.I("s_cmp_eq_u32 s%d, 1" % sFAST)
        b.I("s_cbranch_scc1 %s" % lf)
        for t in texts:
            self.Inc(t + " sc1")
        b.I("s_branch %s" % lj)
        b.label(lf)
        toks = [b.I(t) for t in texts]
        b.label(lj)
        return toks

    def tile_stores(self, p, sreg):
        for pr in range(2):
            for k in range(2):
                self.b.I("v_permlane16_swap_b32 v%d, v%d" % (p + 4 * pr + k, p + 4 * pr + 2 + k))
        return ["buffer_store_dwordx4 %s, v%d, s[%d:%d], s%d offen" % (vr(p + 4 * pr, 4), vST, R_WS, R_WS + 3, sreg + pr)
                for pr in range(2)]

    def spin_guard(self, lab_loop):
        b = self.b
        b.I("s_sub_u32 s%d, s%d, 1" % (sSPIN, sSPIN))
        b.I("s_cmp_lg_u32 s%d, 0" % sSPIN)
        b.I("s_cbranch_scc1 %s" % lab_loop)
        b.I("s_branch L_end")

    def publish(self, toks, phase, burst):
        b = self.b
        self.bg_w = 0
        self.w_burst(burst)
        b.I("s_add_u32 s%d, s%d, %d" % (sT, sTAG, phase))
        b.I("v_mov_b32 v%d, s%d" % (vC2, sT))
        b.wait(toks)
        b.I("s_mov_b64 exec, 1")
        self.stores2(["buffer_store_dword v%d, off, s[%d:%d], s%d" % (vC2, R_WS, R_WS + 3, sMYF)])
        b.I("s_mov_b64 exec, -1")

    def poll_flags(self, phase):
        b = self.b
        lp, ld = b.newlabel("Lpoll"), b.newlabel("Lpd")
        b.label(lp)
        b.I("buffer_load_dword v%d, v%d, s[%d:%d], s%d offen sc1" % (vT, vFL, R_WS, R_WS + 3, sFL))
        b.wait(vm=0)
        b.I("v_sub_u32 v%d, v%d, v%d" % (vT, vT, vC2))
        b.I("v_cmp_gt_u32 vcc, %d, v%d" % (16 - phase, vT))
        b.I("s_cmp_eq_u64 vcc, exec")
        b.I("s_cbranch_scc1 %s" % ld)
        self.spin_guard(lp)
        b.label(ld)

    def start_tile(self, kind, idx, nks, first, rot=False):
        b = self.b
        rg = self.rgs(kind)
        b.I("s_add_u32 s%d, s%d, 0x%x" % (sAB, rg, self.buf(kind, idx)))
        toks = {}
        self.a_safe = NRING - 1

        def mk(ks):
            def th():
                ds, h = ks // 2, ks & 1
                assert ds <= self.a_safe, "ring slot not free for ds %d" % ds
                if h == 0:
                    if rot:
                        b.I("s_add_u32 s%d, s%d, %d" % (sAO, sROT, ds))
                        b.I("s_and_b32 s%d, s%d, 7" % (sAO, sAO))
                        b.I("s_lshl_b32 s%d, s%d, 13" % (sAO, sAO))
                        b.I("s_add_u32 m0, s%d, 0x%x" % (sW2K, (ds % NRING) * 8192))
                        b.I("s_add_u32 s%d, s%d, s%d" % (sAO, sAO, sAB))
                    else:
                        b.I("s_add_u32 m0, s%d, 0x%x" % (sW2K, (ds % NRING) * 8192))
                        b.I("s_add_u32 s%d, s%d, 0x%x" % (sAO, sAB, ds * 8192))
                toks.setdefault(ds, []).append(b.I(
                    "buffer_load_dwordx4 v%d, s[%d:%d], s%d offen offset:%d sc1 lds" % (vDMA, R_WS, R_WS + 3, sAO, h * 1024)))
            th.ds = ks // 2
            return th
        self.aq = [mk(ks) for ks in range(nks)]
        self.a_nks = nks
        self.a_real = nks
        for _ in range(first):
            self.aq.pop(0)()
        self.last_bg = self.clock
        return toks

    def chunker(self, toks, bounds):
        def chunk_of(ds):
            for k, e in enumerate(bounds):
                if ds <= e:
                    return k
            raise ValueError

        def chunk_open(ch, consumed_ds):
            lo = 0 if ch == 0 else bounds[ch - 1] + 1
            hi = bounds[ch]
            need = min(2 * hi + 2, self.a_real)
            while self.a_nks - len(self.aq) < need:
                self.aq.pop(0)()
                self.last_bg = self.clock
            self.b.wait(*[toks[d] for d in range(lo, hi + 1)])
            self.b.I("s_barrier")
            self.a_safe = max(self.a_safe, consumed_ds + NRING)
        return chunk_of, chunk_open

    def lds_addr(self, off):
        return ((vL16, vA1)[off >> 16], off & 0xffff)

    def gemm(self, items, chunk_open, depth):
        b = self.b
        n = len(items)
        toks = [None] * n
        opened = set()
        st = {"ip": 0, "j": 0}

        def issue():
            k = st["ip"]
            a, off, ch, ds, _ = items[k]
            if ch is not None and ch not in opened:
                opened.add(ch)
                chunk_open(ch, items[st["j"]][3] - 1)
            toks[k] = self.I("ds_read_b128 %s, v%d offset:%d" % (vr(vAF + 4 * (k % NAF), 4), a, off))
            st["ip"] += 1

        while st["ip"] < min(depth, n):
            issue()
        for j in range(n):
            st["j"] = j
            thunks = items[j][4](vr(vAF + 4 * (j % NAF), 4))
            b.wait(toks[j])
            first = True
            if not thunks and st["ip"] < n and st["ip"] < j + 1 + depth:
                issue()
            for th in thunks:
                th()
                if first and st["ip"] < n and st["ip"] < j + 1 + depth:
                    issue()
                first = False

    def mf(self, d, a, bb, c=None):
        dd = vr(d, 4)
        cc = dd if c is None else c
        return lambda: self.I("v_mfma_f32_16x16x32_bf16 %s, %s, %s, %s" % (dd, a, bb, cc))

    def stats_publish(self):
        b = self.b
        I = self.I
        t = vT
        I("v_mul_f32 v%d, 0x3b000000, v%d" % (t + 1, vS1))
        I("v_cndmask_b32 v%d, v%d, v%d, s[%d:%d]" % (t, vS2, vS2 + 1, sM1, sM1 + 1))
        I("v_cndmask_b32 v%d, v%d, v%d, s[%d:%d]" % (t, t, vS2 + 2, sM2, sM2 + 1))
        I("v_cndmask_b32 v%d, v%d, v%d, s[%d:%d]" % (t, t, vS2 + 3, sM3, sM3 + 1))
        I("v_mul_f32 v%d, 0x3b000000, v%d" % (t, t))
        I("v_fma_f32 v%d, -v%d, v%d, v%d" % (t, t + 1, t + 1, t))
        I("v_max_f32 v%d, 0, v%d" % (t, t))
        I("v_add_f32 v%d, 0x3727c5ac, v%d" % (t, t))
        I("v_rsq_f32 v%d, v%d" % (t + 2, t))
        I("v_lshlrev_b32 v%d, 1, v%d" % (t + 4, vSW))
        I("v_mul_f32_e64 v%d, -v%d, v%d" % (t + 3, t + 1, t + 2))
        I("v_subrev_u32 v%d, 0x%x, v%d" % (t + 4, L_STA - 512, t + 4))
        b.I("s_mov_b64 exec, s[%d:%d]" % (sDIAG, sDIAG + 1))
        b.I("ds_write_b32 v%d, v%d" % (vSW, t + 2))
        b.I("ds_write_b32 v%d, v%d offset:256" % (vSW, t + 3))
        b.I("ds_write_b64 v%d, v[%d:%d]" % (t + 4, t + 2, t + 3))
        b.I("s_mov_b64 exec, -1")
        b.wait(lg=0)
        b.I("s_barrier")

    def stats_read_q(self):
        return [self.I("ds_read_b64 v[%d:%d], v%d offset:%d" % (vAB + 2 * rt, vAB + 2 * rt + 1, vSTQ, rt * 128))
                for rt in range(4)]

    def stats_read_kv(self):
        toks = []
        for rt in range(4):
            toks.append(self.I("ds_read_b128 %s, v%d offset:%d" % (vr(vAF + 4 * rt, 4), vSTA, rt * 64)))
            toks.append(self.I("ds_read_b128 %s, v%d offset:%d" % (vr(vAF + 16 + 4 * rt, 4), vSTA, 256 + rt * 64)))
        return toks

    def phi_pairs(self, pairs):
        I = self.I
        for c0 in range(0, len(pairs), 4):
            grp = pairs[c0:c0 + 4]
            for k, (t, d) in enumerate(grp):
                I("v_pk_mul_f32 v[%d:%d], v[%d:%d], s[%d:%d]" % (vT + 2 * k, vT + 2 * k + 1, t, t + 1, sL2E, sL2E + 1))
            for k, (t, d) in enumerate(grp):
                I("v_exp_f32_e64 v%d, v%d clamp" % (vT + 2 * k, vT + 2 * k))
                I("v_max_f32 v%d, s%d, v%d" % (t, sEPS, t))
                I("v_exp_f32_e64 v%d, v%d clamp" % (vT + 2 * k + 1, vT + 2 * k + 1))
                I("v_max_f32 v%d, s%d, v%d" % (t + 1, sEPS, t + 1))
            for k, (t, d) in enumerate(grp):
                I("v_pk_add_f32 v[%d:%d], v[%d:%d], v[%d:%d]" % (t, t + 1, t, t + 1, vT + 2 * k, vT + 2 * k + 1))
            for k, (t, d) in enumerate(grp):
                I("v_cvt_pk_bf16_f32 v%d, v%d, v%d" % (d, t, t + 1))

    def startup(self):
        b = self.b
        I = b.I
        i_, g_, l3, l7, q0, tc = vT + 2, vT + 3, vT + 6, vT + 7, vT + 8, vT + 9
        self.l3, self.q0, self.tc, self.g_ = l3, q0, tc, g_
        I("s_cmp_ge_u32 s2, 256")
        I("s_cbranch_scc1 L_end")
        I("s_load_dwordx4 s[4:7], s[0:1], 0")
        I("s_load_dwordx2 s[20:21], s[0:1], 64")
        I("s_load_dwordx2 s[8:9], s[0:1], 16")
        I("s_load_dwordx4 s[12:15], s[0:1], 32")
        I("s_load_dwordx4 s[16:19], s[0:1], 48")
        I("s_getpc_b64 s[90:91]")
        b.label("L_pc")
        I("v_lshrrev_b32 v%d, 6, v0" % vT)
        I("v_and_b32 v0, 63, v0")
        I("v_readfirstlane_b32 s%d, v%d" % (sW, vT))
        I("s_lshr_b32 s%d, s2, 3" % (sT + 1))
        I("s_lshl_b32 s%d, s%d, 2" % (sT, sT + 1))
        I("s_add_u32 s%d, s%d, s%d" % (sT, sT, sW))
        I("s_and_b32 s%d, s%d, 31" % (sT, sT))
        I("s_lshl_b32 s%d, s%d, 11" % (sT, sT))
        I("v_lshlrev_b32 v%d, 7, v0" % vTCH)
        I("v_add_u32 v%d, s%d, v%d" % (vT, sT, vTCH))
        I("v_min_u32 v%d, L_end-L_pc, v%d" % (vT, vT))
        I("s_mov_b64 exec, 0xffff")
        I("global_load_dword v%d, v%d, s[90:91]" % (vDUM, vT))
        I("s_mov_b64 exec, -1")
        I("s_and_b32 s%d, s2, 7" % sT)
        I("s_and_b32 s%d, s%d, 7" % (sC, sT + 1))
        I("s_lshr_b32 s%d, s%d, 3" % (sQ, sT + 1))
        I("s_lshl_b32 s%d, s%d, 2" % (sT, sT))
        I("s_add_u32 s%d, s%d, s%d" % (sRG, sT, sQ))
        I("s_lshl_b32 s%d, s%d, 16" % (sRG64, sRG))
        I("s_lshl_b32 s%d, s%d, 11" % (sW2K, sW))
        I("v_lshrrev_b32 v%d, 4, v0" % g_)
        I("v_and_b32 v%d, 15, v0" % i_)
        tw, tx = vT + 12, vT + 13
        I("s_lshl_b32 s%d, s%d, 2" % (sT, sT + 1))
        I("s_add_u32 s%d, s%d, s%d" % (sT, sT, sW))
        I("s_mul_i32 s%d, s%d, %d" % (sT + 2, sT, 4 * 3072))
        I("v_lshlrev_b32 v%d, 10, v0" % tw)
        I("v_add_u32 v%d, s%d, v%d" % (tw, sT + 2, tw))
        I("s_and_b32 s%d, s%d, 28" % (sT + 2, sRG))
        I("s_lshl_b32 s%d, s%d, 16" % (sT + 2, sT + 2))
        I("s_lshl_b32 s%d, s%d, 11" % (sT, sT))
        I("s_add_u32 s%d, s%d, s%d" % (sT, sT, sT + 2))
        I("v_lshlrev_b32 v%d, 10, v0" % tx)
        I("v_add_u32 v%d, s%d, v%d" % (tx, sT, tx))
        tw2, tx2 = vCS1 + 8, vCS1 + 9
        I("v_lshrrev_b32 v%d, 1, v0" % tx2)
        I("v_lshlrev_b32 v%d, 10, v%d" % (tx2, tx2))
        I("v_add_u32 v%d, s%d, v%d" % (tx2, sT, tx2))
        I("s_and_b32 s%d, s2, %d" % (sROT, env("ROTM", 7)))
        I("v_and_b32 v%d, 1, v0" % (tx2 + 1))
        I("v_add_u32 v%d, s%d, v%d" % (tx2 + 1, sROT, tx2 + 1))
        I("s_lshl_b32 s%d, s%d, 2" % (sT, sT + 1))
        I("s_add_u32 s%d, s%d, s%d" % (sT, sT, sW))
        I("s_lshl_b32 s%d, s%d, 6" % (sT + 2, sROT))
        I("s_add_u32 s%d, s%d, s%d" % (sT, sT, sT + 2))
        I("v_mov_b32 v%d, s%d" % (tw2, sT))
        I("v_lshrrev_b32 v%d, 3, v0" % l3)
        I("v_and_b32 v%d, 7, v0" % l7)
        I("v_xor_b32 v%d, v%d, v%d" % (vT + 4, l7, g_))
        I("v_lshlrev_b32 v%d, 4, v%d" % (vT + 4, vT + 4))
        I("v_lshl_add_u32 v%d, v%d, 10, v%d" % (vT + 4, l3, vT + 4))
        I("s_lshl_b32 s%d, s%d, 14" % (sT + 1, sW))
        I("v_add_u32 v%d, s%d, v%d" % (vXS0, sT + 1, vT + 4))
        I("v_xor_b32 v%d, 64, v%d" % (vXS1, vXS0))
        I("v_add_u32 v%d, 7168, v%d" % (vXS1, vXS1))
        I("v_and_b32 v%d, 1, v%d" % (vT + 4, g_))
        I("v_lshlrev_b32 v%d, 1, v%d" % (vT + 4, vT + 4))
        I("v_xor_b32 v%d, v%d, v%d" % (q0, l7, vT + 4))
        I("v_lshlrev_b32 v%d, 4, v%d" % (q0, q0))
        I("s_and_b32 s%d, s%d, 1" % (sT + 1, sW))
        I("s_lshl_b32 s%d, s%d, 6" % (sT + 1, sT + 1))
        I("v_xor_b32 v%d, s%d, v%d" % (vT + 4, sT + 1, q0))
        I("s_lshl_b32 s%d, s%d, 3" % (sT + 1, sW))
        I("v_add_u32 v%d, s%d, v%d" % (vT + 5, sT + 1, l3))
        I("v_mul_u32_u24 v%d, 3072, v%d" % (vT + 5, vT + 5))
        I("v_add_u32 v%d, v%d, v%d" % (vWS, vT + 4, vT + 5))
        sXO, sWO_, sRB, sCB = sAB, sAO, 93, sTC
        I("s_lshl_b32 s%d, s%d, 7" % (sWO_, sC))
        I("v_add_u32 v%d, s%d, v%d" % (vWS, sWO_, vWS))
        I("s_and_b32 s%d, s2, %d" % (sROT, env("ROTM", 7)))
        I("s_mul_i32 s%d, s%d, 3072" % (sRB, sW))
        I("s_add_u32 s%d, s%d, 0x%x" % (sRB, sRB, L_RING))
        if self.diag:
            I("v_mov_b32 v%d, 0" % vSTAMP)
        b.wait(lg=0)
        self.stamp("start")
        I("s_add_u32 s88, s%d, 0x%x" % (S_WS, WS_EP))
        I("s_addc_u32 s89, s%d, 0" % (S_WS + 1))
        I("s_load_dword s%d, s[88:89], 0" % sEP)
        self.srd(R_WQ, S_WQ, 512 * 3072)
        self.srd(R_X, S_X, 2048 * 1024)
        tokA, tokW = {}, {}

        def touch(batch):
            if not env("T0", 1) or batch:
                return
            for ptr, srd, v, mask in ((S_WQ, R_WQ, tw, 0xfff), (S_X, R_X, tx, 3)):
                I("s_sub_u32 s%d, 0x180, s%d" % (sT, ptr))
                I("s_and_b32 s%d, s%d, 0x380" % (sT, sT))
                I("s_mov_b64 exec, 0x%x" % mask)
                I("buffer_load_dword v%d, v%d, s[%d:%d], s%d offen" % (vDUM, v, srd, srd + 3, sT))
            I("s_mov_b64 exec, -1")

        def btouch(bt):
            if not env("BT", 0):
                return
            I("v_add_u32 v%d, %d, v%d" % (vT + 10, 128 * bt, tw2))
            I("v_and_b32 v%d, 511, v%d" % (vT + 10, vT + 10))
            I("v_mul_u32_u24 v%d, 3072, v%d" % (vT + 10, vT + 10))
            I("v_add_u32 v%d, v%d, v%d" % (vT + 10, vT + 10, vTCH))
            I("v_add_u32 v%d, %d, v%d" % (vT + 11, 2 * bt, tx2 + 1))
            I("v_and_b32 v%d, 7, v%d" % (vT + 11, vT + 11))
            I("v_lshl_add_u32 v%d, v%d, 7, v%d" % (vT + 11, vT + 11, tx2))
            I("s_mov_b64 exec, 0xffffff")
            I("buffer_load_dword v%d, v%d, s[%d:%d], 0 offen" % (vDUM, vT + 10, R_WQ, R_WQ + 3))
            I("s_mov_b64 exec, 0xf")
            I("buffer_load_dword v%d, v%d, s[%d:%d], 0 offen" % (vDUM, vT + 11, R_X, R_X + 3))
            I("s_mov_b64 exec, -1")

        def issue_thunks(ks):
            th = []
            if ks % 2 == 0:
                ds = ks // 2

                def a0():
                    I("s_add_u32 s%d, s%d, %d" % (sXO, sROT, ds))
                    I("s_and_b32 s%d, s%d, 7" % (sXO, sXO))
                    I("s_lshl_b32 s%d, s%d, 7" % (sXO, sXO))
                    I("s_add_u32 m0, s%d, 0x%x" % (sW2K, ds * 8192))
                    I("s_add_u32 s%d, s%d, s%d" % (sXO, sXO, sRG64))
                    tokA[ds] = [I("buffer_load_dwordx4 v%d, s[%d:%d], s%d offen lds" % (vXS0, R_X, R_X + 3, sXO))]

                def a1():
                    tokA[ds].append(I("buffer_load_dwordx4 v%d, s[%d:%d], s%d offen offset:1024 lds" % (vXS1, R_X, R_X + 3, sXO)))
                th += [a0, a1]
            for p in range(3):
                def w(p=p):
                    if p == 0:
                        I("s_lshl_b32 s%d, s%d, 1" % (sWO_, sROT))
                        I("s_add_u32 s%d, s%d, %d" % (sWO_, sWO_, ks))
                        I("s_and_b32 s%d, s%d, 15" % (sWO_, sWO_))
                        I("s_add_u32 m0, s%d, 0x%x" % (sRB, (ks % 5) * 12288))
                        I("s_mul_i32 s%d, s%d, %d" % (sWO_, sWO_, 32 * 3072))
                        tokW[ks] = []
                    tokW[ks].append(I("buffer_load_dwordx4 v%d, s[%d:%d], s%d offen offset:%d lds" % (
                        vWS, R_WQ, R_WQ + 3, sWO_, p * 1024)))
                th.append(w)
            return th

        btouch(0)
        touch(0)
        NFIRST = env("NFIRST", 2)
        for ks in range(NFIRST):
            for th in issue_thunks(ks):
                th()
        btouch(1)
        self.pack_toks = []
        if env("KL", -1) == -2:
            I("v_mov_b32 v%d, v%d" % (vCS1, l3))
            I("v_mov_b32 v%d, v%d" % (vCS1 + 1, q0))
            self.pack_load([0])
            for th in issue_thunks(NFIRST):
                th()
            NFIRST += 1
        self.stamp("first")
        I("s_getreg_b32 s%d, hwreg(HW_REG_XCC_ID, 0, 4)" % sXCC)
        I("s_mov_b32 s%d, 0x100000" % sSPIN)
        self.srd(R_WS, S_WS, WS_SIZE)
        self.srd(R_OUT, S_OUT, 2048 * 1024)
        I("v_lshlrev_b32 v%d, 4, v0" % vL16)
        I("v_lshlrev_b32 v%d, 2, v0" % vL4)
        I("s_lshl_b32 s%d, s%d, 2" % (sT, sC))
        I("s_add_u32 s%d, s%d, s%d" % (sT, sT, sW))
        I("s_mul_i32 s%d, s%d, %d" % (sKV, sT, KVH))
        I("s_add_u32 s%d, s%d, 0x%x" % (sKV, sKV, WS_KV))
        I("v_mov_b32 v%d, 0" % vC2)
        I("s_mul_i32 s%d, s%d, 160" % (sT + 1, sRG))
        I("s_add_u32 s%d, s%d, s%d" % (sT + 1, sT + 1, sKV))
        I("s_mov_b32 exec_hi, 0xff")
        ztok = I("buffer_store_dword v%d, v%d, s[%d:%d], s%d offen sc1" % (vC2, vL4, R_WS, R_WS + 3, sT + 1))
        I("s_mov_b64 exec, -1")
        I("s_mul_i32 s%d, s%d, %d" % (sPK, sT, PKW))
        I("s_lshl_b32 s%d, s%d, 7" % (sFL, sRG))
        I("s_lshl_b32 s%d, s%d, 12" % (sR1, sC))
        I("s_add_u32 s%d, s%d, 0x%x" % (sR1, sR1, WS_R2))
        I("s_add_u32 s%d, s%d, 0x%x" % (sFL, sFL, WS_FL))
        I("s_lshl_b32 s%d, s%d, 2" % (sMYF, sT))
        I("s_add_u32 s%d, s%d, s%d" % (sMYF, sMYF, sFL))
        I("s_mul_i32 s%d, s%d, %d" % (sRGH, sRG, HSZ))
        I("s_lshl_b32 s%d, s%d, 13" % (sSTO, sC))
        I("s_lshl_b32 s%d, s%d, 9" % (sT + 1, sW))
        I("s_add_u32 s%d, s%d, s%d" % (sSTO, sSTO, sT + 1))
        I("s_mul_i32 s%d, s%d, 3" % (sT, sT))
        for t in range(3):
            I("s_add_u32 s%d, s%d, %d" % (sT + 1, sT, t))
            I("s_lshr_b32 s%d, s%d, 2" % (sT + 2, sT + 1))
            I("s_lshl_b32 s%d, s%d, 13" % (sT + 2, sT + 2))
            I("s_and_b32 s%d, s%d, 3" % (sT + 3, sT + 1))
            I("s_lshl_b32 s%d, s%d, 9" % (sT + 3, sT + 3))
            I("s_add_u32 s%d, s%d, s%d" % (sT + 2, sT + 2, sT + 3))
            I("s_add_u32 s%d, s%d, s%d" % (sT + 2, sT + 2, sRGH))
            I("s_cmp_lt_u32 s%d, 86" % (sT + 1))
            I("s_cselect_b32 s%d, s%d, 0x%x" % (sH0 + t, sT + 2, OOB))
        I("v_add_u32 v%d, 0x10000, v%d" % (vA1, vL16))
        I("v_add_u32 v%d, s%d, v%d" % (vDMA, sW2K, vL16))
        I("v_and_b32 v%d, 0x7c, v%d" % (vFL, vL4))
        I("v_lshrrev_b32 v%d, 1, v%d" % (vT + 4, g_))
        I("v_lshlrev_b32 v%d, 8, v%d" % (vT + 4, vT + 4))
        I("v_lshl_add_u32 v%d, v%d, 4, v%d" % (vT + 4, i_, vT + 4))
        I("v_and_b32 v%d, 1, v%d" % (vT + 5, g_))
        I("v_lshl_add_u32 v%d, v%d, 11, v%d" % (vST, vT + 5, vT + 4))
        I("v_lshlrev_b32 v%d, 4, v%d" % (vSTA, g_))
        I("v_add_u32 v%d, 0x%x, v%d" % (vSTA, L_STA, vSTA))
        I("v_lshlrev_b32 v%d, 3, v%d" % (vSTQ, i_))
        I("v_add_u32 v%d, 0x%x, v%d" % (vSTQ, L_STA + 512, vSTQ))
        I("s_lshl_b32 s%d, s%d, 6" % (sT, sW))
        I("s_add_u32 s%d, s%d, 0x%x" % (sT, sT, L_STA))
        I("v_lshlrev_b32 v%d, 2, v%d" % (vSW, i_))
        I("v_add_u32 v%d, s%d, v%d" % (vSW, sT, vSW))
        I("v_lshrrev_b32 v%d, 3, v%d" % (vT + 4, i_))
        I("v_lshlrev_b32 v%d, 10, v%d" % (vT + 4, vT + 4))
        I("v_and_b32 v%d, 7, v%d" % (vT + 5, i_))
        I("v_lshl_add_u32 v%d, v%d, 7, v%d" % (vT + 4, vT + 5, vT + 4))
        I("v_lshrrev_b32 v%d, 1, v%d" % (vT + 5, i_))
        I("v_xor_b32 v%d, v%d, v%d" % (vT + 5, vT + 5, g_))
        I("v_lshl_add_u32 v%d, v%d, 4, v%d" % (vX0, vT + 5, vT + 4))
        I("v_xor_b32 v%d, 64, v%d" % (vX1, vX0))
        I("v_add_u32 v%d, s%d, v%d" % (vOW0, sW2K, vX0))
        I("v_add_u32 v%d, s%d, v%d" % (vOW1, sW2K, vX1))
        I("v_bfe_u32 v%d, v0, 2, 2" % (vT + 4))
        I("v_bfe_u32 v%d, v0, 3, 1" % (vT + 5))
        I("v_lshlrev_b32 v%d, 1, v%d" % (vT + 5, vT + 5))
        I("v_bfe_u32 v%d, v0, 4, 1" % (vT + 10))
        I("v_lshl_add_u32 v%d, v%d, 2, v%d" % (vT + 5, vT + 10, vT + 5))
        I("v_bfe_u32 v%d, v0, 1, 1" % (vT + 10))
        I("v_xor_b32 v%d, v%d, v%d" % (vT + 5, vT + 5, vT + 10))
        I("v_lshlrev_b32 v%d, 4, v%d" % (vT + 5, vT + 5))
        I("v_lshl_add_u32 v%d, v%d, 7, v%d" % (tc, vT + 4, vT + 5))
        I("v_and_b32 v%d, 1, v0" % (vT + 10))
        I("v_lshl_add_u32 v%d, v%d, 3, v%d" % (tc, vT + 10, tc))
        I("s_lshl_b32 s%d, s%d, 5" % (sT + 1, sW))
        I("v_xor_b32 v%d, s%d, v%d" % (vT + 4, sT + 1, tc))
        I("v_mul_u32_u24 v%d, 3072, v%d" % (vT + 5, g_))
        I("v_add_u32 v%d, v%d, v%d" % (vT + 4, vT + 4, vT + 5))
        I("v_add_u32 v%d, 0x%x, v%d" % (vTR, L_RING, vT + 4))
        for k in range(4):
            I("v_mov_b32 v%d, 0x3f803f80" % (vONE + k))
        I("s_mul_i32 s%d, s%d, 2560" % (sT, sW))
        I("s_add_u32 s%d, s%d, 0x%x" % (sT, sT, L_KVI))
        I("v_add_u32 v%d, s%d, v%d" % (vKVL, sT, vL4))
        for r in range(4):
            I("v_add_u32 v%d, %d, v0" % (vT + 4, 64 * r))
            I("v_mul_u32_u24 v%d, 4370, v%d" % (vT + 5, vT + 4))
            I("v_lshrrev_b32 v%d, 16, v%d" % (vT + 5, vT + 5))
            I("v_add_u32 v%d, v%d, v%d" % (vT + 4, vT + 4, vT + 5))
            I("v_lshlrev_b32 v%d, 2, v%d" % (vT + 4, vT + 4))
            I("v_add_u32 v%d, s%d, v%d" % (vPOS + r, sT, vT + 4))
        I("v_lshrrev_b32 v%d, 1, v%d" % (vT + 4, g_))
        I("v_add_u32 v%d, v%d, v%d" % (vT + 4, vT + 4, g_))
        I("v_lshlrev_b32 v%d, 4, v%d" % (vT + 4, vT + 4))
        I("s_add_u32 s%d, s%d, %d" % (sT, sT, 276 * 4))
        I("v_add_u32 v%d, s%d, v%d" % (vZP, sT, vT + 4))
        I("v_cmp_eq_u32 vcc, 15, v%d" % i_)
        I("v_cndmask_b32 v%d, 0, 1.0, vcc" % (vCS1 + 3))
        b.wait(lg=0)
        I("s_xor_b32 s%d, s%d, 0x80000000" % (sTAG, sEP))
        I("s_and_b32 s%d, s%d, 0xfffffff0" % (sTAG, sTAG))
        for r, val in ((sEPS, 0x358637bd), (sL2E, 0x3fb8aa3b), (sNL2E, 0xbfb8aa3b),
                       (sM1, 0x22222222), (sM2, 0x44444444), (sM3, 0x88888888)):
            I("s_mov_b32 s%d, 0x%x" % (r, val))
            I("s_mov_b32 s%d, 0x%x" % (r + 1, val))
        I("s_mov_b32 s%d, 0x00f0000f" % sDIAG)
        I("s_mov_b32 s%d, 0xf0000f00" % (sDIAG + 1))
        I("v_lshlrev_b32 v%d, 10, v%d" % (vT + 4, g_))
        I("s_lshl_b32 s%d, s%d, 12" % (sT, sW))
        I("v_add_u32 v%d, s%d, v%d" % (vT + 4, sT, vT + 4))
        for t in range(4):
            I("v_xor_b32 v%d, %d, v%d" % (vCS1 + 4 + t, 32 * t, tc))
            I("v_add_u32 v%d, v%d, v%d" % (vCS1 + 4 + t, vCS1 + 4 + t, vT + 4))
            I("v_add_u32 v%d, 0x%x, v%d" % (vCS1 + 4 + t, L_PACK, vCS1 + 4 + t))
        I("v_lshlrev_b32 v%d, 10, v%d" % (vT + 14, i_))
        I("v_lshl_add_u32 v%d, v%d, 3, v%d" % (vT + 14, g_, vT + 14))
        I("s_add_u32 s%d, s%d, s%d" % (sT, sTAG, sXCC))
        I("v_mov_b32 v%d, s%d" % (vT + 15, sT))
        self.stamp("setup0")
        I("v_mov_b32 v%d, v%d" % (vCS1, l3))
        I("v_mov_b32 v%d, v%d" % (vCS1 + 1, q0))
        KL = env("KL", -1)
        for ks in range(NFIRST, 5):
            if ks == 4:
                btouch(2)
            for th in issue_thunks(ks):
                th()
        if KL == -1:
            self.pack_load([0])
        I("s_mov_b64 exec, 1")
        I("buffer_load_dword v%d, off, s[%d:%d], s%d sc1" % (vDUM, R_WS, R_WS + 3, sFL))
        I("s_mov_b64 exec, -1")
        self.stamp("setup")

        res_toks = []
        KP, KANN, KI = env('KP', 4), env('KANN', 9), env('KI', 13)
        for ks in range(17):
            fill = []
            if ks < 16:
                b.wait(tokW[ks], tokA[ks // 2])
                I("s_barrier")
                if ks == 0:
                    self.stamp("w0")
                if ks == env("KT3", 1):
                    btouch(3)
                if ks > 0 and env("LSTAMP", 0):
                    self.stamp("it%d" % ks)
                if ks == 1:
                    for k in range(5):
                        I("ds_write_b32 v%d, v%d offset:%d" % (vKVL, vCS1 + 3, 256 * k))
                if ks == KANN:
                    assert b.vm_done > self.ptoks[-1][1] and b.vm_done > ztok[1]
                    lx = b.newlabel("Lann")
                    I("s_cmp_lg_u32 s%d, 0" % sW)
                    I("s_cbranch_scc1 %s" % lx)
                    I("s_lshl_b32 s%d, s%d, 7" % (sT, sRG))
                    I("s_add_u32 s%d, s%d, s%d" % (sT, sT, sR1))
                    I("s_mov_b64 exec, 1")
                    self.Inc("buffer_store_dword v%d, off, s[%d:%d], s%d sc1" % (vT + 15, R_WS, R_WS + 3, sT))
                    I("s_mov_b64 exec, -1")
                    b.label(lx)
                for p in range(3):
                    s = self.free.pop(0)
                    self.wslot[("qkv", 0, (32 + ks, 2 * ks, 2 * ks + 1)[p])] = (s, None)
                    for hh in range(2):
                        fill.append(lambda s=s, hh=hh, p=p: I("ds_read_b64_tr_b16 %s, v%d offset:%d" % (
                            vr(s[1] + 2 * hh, 2, s[0]), vTR, (ks % 5) * 12288 + p * 1024 + hh * 512)))
                fb = vAF + (ks & 1) * 20
                ds, h = ks // 2, ks & 1
                for rt in range(4):
                    fill.append(lambda rt=rt: I("ds_read_b128 %s, v%d offset:%d" % (
                        vr(fb + 4 * rt, 4), (vX0, vX1)[h], ds * 8192 + rt * 2048)))
                fill.append(lambda: I("ds_read_b128 %s, v%d offset:%d" % (vr(fb + 16, 4), (vOW0, vOW1)[h], ds * 8192)))
                if ks >= 1 and ks + 4 < 16:
                    dm = issue_thunks(ks + 4)
                    for k, th in enumerate(dm):
                        fill.insert(2 * k + 1, th)
                if ks == 11:
                    def resid():
                        I("s_lshl_b32 s%d, s%d, 7" % (sT, sC))
                        I("s_lshl_b32 s%d, s%d, 5" % (sT + 1, sW))
                        I("s_add_u32 s%d, s%d, s%d" % (sT, sT, sT + 1))
                        I("s_add_u32 s%d, s%d, s%d" % (sT, sT, sRG64))
                        for rt in range(4):
                            res_toks.append(I("buffer_load_dwordx2 v[%d:%d], v%d, s[%d:%d], s%d offen" % (
                                vAB + 2 * rt, vAB + 2 * rt + 1, vT + 14, R_X, R_X + 3, sT)))
                            if rt < 3:
                                I("s_add_u32 s%d, s%d, 16384" % (sT, sT))
                    fill.append(resid)
                if ks == KL:
                    fill.append(lambda: self.pack_load([0]))
                if ks == env('KOX', 99):
                    fill.append(lambda: self.touch_ox(0))
                if ks == env('KH', 99):
                    fill.append(lambda: self.touch_h(0))
                if ks == KI:
                    fill.append(self.r1_issue)
                if ks == KP:
                    u = ks - KP

                    def prd(u=u):
                        b.wait(self.pack_toks[4 * u:4 * u + 4])
                        for t in range(4):
                            if u:
                                I("v_add_u32 v%d, %d, v%d" % (vCS1 + 4 + t, L_PACK2 - L_PACK, vCS1 + 4 + t))
                            for hh in range(2):
                                d = vACC + 4 * t + 2 * hh
                                I("ds_read_b64_tr_b16 v[%d:%d], v%d offset:%d" % (d, d + 1, vCS1 + 4 + t, hh * 512))
                    fill.append(prd)
            mfs = []
            if ks >= 1:
                k1 = ks - 1
                fb1 = vAF + (k1 & 1) * 20
                c0 = "0" if k1 == 0 else None
                wq, wk, wv = [slot_r(self.wslot[("qkv", 0, k)][0]) for k in (32 + k1, 2 * k1, 2 * k1 + 1)]
                one = vr(vONE, 4)
                for rt in range(4):
                    mfs.append(self.mf(vACC + 16 + 4 * rt, vr(fb1 + 4 * rt, 4), wk, c0))
                    mfs.append(self.mf(vACC + 32 + 4 * rt, vr(fb1 + 4 * rt, 4), wv, c0))
                own = vr(fb1 + 16, 4)
                mfs += [self.mf(vS1, one, own, c0), self.mf(vS2, own, own, c0),
                        self.mf(vCSK, one, wk, c0), self.mf(vCSV, one, wv, c0)]
            while mfs or fill:
                if fill:
                    fill.pop(0)()
                if len(fill) > len(mfs) and fill:
                    fill.pop(0)()
                if mfs:
                    mfs.pop(0)()
            b.wait(lg=0)
            if ks == KP:
                self.ptoks = []
                for t in range(4):
                    tk = I("buffer_store_dwordx4 %s, v%d, s[%d:%d], s%d offen sc1" % (
                        vr(vACC + 4 * t, 4), vL16, R_WS, R_WS + 3, 80 + 4 * (ks - KP) + t))
                    self.ptoks.append(tk)
        b.wait(res_toks)
        for rt in range(4):
            for k in range(2):
                s = vAB + 2 * rt + k
                I("v_lshlrev_b32 v%d, 16, v%d" % (vX + 4 * rt + 2 * k, s))
                I("v_and_b32 v%d, 0xffff0000, v%d" % (vX + 4 * rt + 2 * k + 1, s))

    def pack_load(self, units):
        b = self.b
        I = b.I
        l3, q0 = vCS1, vCS1 + 1
        for u in units:
            dst = 80 + 4 * u
            uid, src, strd = sT, sT + 1, sT + 2
            I("s_lshl_b32 s%d, s%d, 2" % (uid, sRG))
            I("s_add_u32 s%d, s%d, s%d" % (uid, uid, sW))
            if u:
                I("s_add_u32 s%d, s%d, 128" % (uid, uid))
            lw1, lw2, lq, lnone, lgo = [b.newlabel("Lpk") for _ in range(5)]
            I("s_mul_i32 s88, s%d, %d" % (sC, 4 * PKW))
            I("s_mov_b32 s%d, 0x20000" % (R_PK + 3))

            def setsrd(ptr, size, stride):
                I("s_mov_b32 s%d, s%d" % (R_PK, ptr))
                I("s_and_b32 s%d, s%d, 0xffff" % (R_PK + 1, ptr + 1))
                I("s_mov_b32 s%d, %d" % (R_PK + 2, size))
                I("s_movk_i32 s%d, %d" % (strd, stride))

            def simple(f0):
                I("s_lshl_b32 s%d, s%d, 15" % (src, uid))
                I("s_lshl_b32 s89, s%d, 7" % sC)
                I("s_add_u32 s%d, s%d, s89" % (src, src))
                I("s_add_u32 s89, s%d, %d" % (uid, f0))
                I("s_lshl_b32 s89, s89, 10")
                I("s_add_u32 s88, s88, s89")
                for t in range(4):
                    I("s_add_u32 s%d, s88, %d" % (dst + t, t * PKW))
                I("s_branch %s" % lgo)

            if env("NOPACK", 0):
                I("s_branch %s" % lnone)
            if u == 0:
                I("s_cmp_ge_u32 s%d, 16" % uid)
                I("s_cbranch_scc1 %s" % lw1)
                setsrd(S_WO, 512 * 1024, 1024)
                simple(F_WO)
                b.label(lw1)
                I("s_cmp_ge_u32 s%d, 64" % uid)
                I("s_cbranch_scc1 %s" % lw2)
                I("s_sub_u32 s%d, s%d, 16" % (uid, uid))
                I("s_mul_i32 s89, s%d, 43" % uid)
                I("s_lshr_b32 s89, s89, 7")
                I("s_mul_i32 s92, s89, 3")
                I("s_sub_u32 s92, s%d, s92" % uid)
                setsrd(S_W1, 512 * 2752, 2752)
                I("s_mul_i32 s%d, s89, %d" % (src, 32 * 2752))
                I("s_mul_i32 s79, s%d, 384" % sC)
                I("s_add_u32 s%d, s%d, s79" % (src, src))
                I("s_lshl_b32 s79, s92, 7")
                I("s_add_u32 s%d, s%d, s79" % (src, src))
                I("s_mul_i32 s89, s89, 3072")
                I("s_add_u32 s88, s88, s89")
                I("s_add_u32 s88, s88, %d" % (F_W1 * 1024))
                for t in range(4):
                    I("s_lshl_b32 s79, s92, 2")
                    I("s_add_u32 s79, s79, %d" % t)
                    I("s_mul_i32 s89, s79, 43")
                    I("s_lshr_b32 s89, s89, 7")
                    I("s_mul_i32 s%d, s89, %d" % (dst + t, PKW - 3072))
                    I("s_lshl_b32 s79, s79, 10")
                    I("s_add_u32 s%d, s%d, s79" % (dst + t, dst + t))
                    I("s_add_u32 s%d, s%d, s88" % (dst + t, dst + t))
                I("s_mul_i32 s79, s%d, 3" % sC)
                I("s_add_u32 s79, s79, s92")
                I("s_cmp_ge_u32 s79, 22")
                I("s_cbranch_scc1 %s" % lnone)
                I("s_branch %s" % lgo)
                b.label(lw2)
                I("s_cmp_ge_u32 s%d, 107" % uid)
                I("s_cbranch_scc1 %s" % lnone)
                I("s_sub_u32 s%d, s%d, 64" % (uid, uid))
                setsrd(S_W2, 1376 * 1024, 1024)
                simple(F_W2)
            b.label(lnone)
            setsrd(S_WQ, 0, 1024)
            I("s_mov_b32 s%d, 0" % src)
            for t in range(4):
                I("s_mov_b32 s%d, 0x%x" % (dst + t, OOB))
            b.label(lgo)
            I("v_mul_lo_u32 v%d, v%d, s%d" % (vT + 4, l3, strd))
            I("v_add_u32 v%d, v%d, v%d" % (vT + 10, vT + 4, q0))
            I("v_xor_b32 v%d, 64, v%d" % (vT + 5, q0))
            I("v_add_u32 v%d, v%d, v%d" % (vT + 11, vT + 4, vT + 5))
            I("s_lshl_b32 s%d, s%d, 3" % (strd, strd))
            I("s_lshl_b32 s89, s%d, 12" % sW)
            I("s_add_u32 m0, s89, 0x%x" % ((L_PACK, L_PACK2)[u]))
            for q in range(4):
                self.pack_toks.append(I("buffer_load_dwordx4 v%d, s[%d:%d], s%d offen lds" % (
                    vT + 10 + (q & 1), R_PK, R_PK + 3, src)))
                if q < 3:
                    I("s_add_u32 s%d, s%d, s%d" % (src, src, strd))
                    I("s_add_u32 m0, m0, 1024")

    def tag_poll(self, voff, soff, vd, first_tok=None):
        b = self.b
        I = b.I
        lp, ld, lc = b.newlabel("Ltag"), b.newlabel("Ltagd"), b.newlabel("Ltagc")
        if first_tok is not None:
            b.wait(first_tok)
            I("s_branch %s" % lc)
        b.label(lp)
        self.Inc("buffer_load_dword v%d, v%d, s[%d:%d], s%d offen sc1" % (vd, voff, R_WS, R_WS + 3, soff))
        if first_tok is None:
            b.wait(vm=0)
        else:
            I("s_waitcnt vmcnt(0)")
        b.label(lc)
        I("v_subrev_u32 v%d, s%d, v%d" % (vd + 1, sTAG, vd))
        I("v_cmp_gt_u32 vcc, 16, v%d" % (vd + 1))
        I("s_cmp_eq_u64 vcc, exec")
        I("s_cbranch_scc1 %s" % ld)
        self.spin_guard(lp)
        b.label(ld)

    def r1_issue(self):
        I = self.b.I
        a = vCS1 + 2
        I("v_and_b32 v%d, 7, v0" % a)
        I("v_subrev_u32 v%d, s%d, v%d" % (a, sC, a))
        I("v_lshlrev_b32 v%d, 12, v%d" % (a, a))
        I("s_lshl_b32 s%d, s%d, 7" % (sT, sRG))
        I("s_add_u32 s%d, s%d, s%d" % (sT, sT, sR1))
        I("v_add_u32 v%d, s%d, v%d" % (a, sT, a))
        I("v_add_u32 v%d, s%d, v%d" % (vT + 5, sR1, vTCH))
        I("v_cmp_gt_u32 vcc, 32, v0")
        I("v_cndmask_b32 v%d, v%d, v%d, vcc" % (a, a, vT + 5))
        self.r1_tok = I("buffer_load_dword v%d, v%d, s[%d:%d], 0 offen sc1" % (vT + 12, a, R_WS, R_WS + 3))

    def r1_check(self):
        I = self.b.I
        I("s_mov_b32 s%d, 0" % sT)
        self.tag_poll(vCS1 + 2, sT, vT + 12, self.r1_tok)
        I("v_cmp_eq_u32 vcc, s%d, v%d" % (sXCC, vT + 13))
        I("s_cmp_eq_u32 vcc_hi, -1")
        I("s_cselect_b32 s%d, 1, 0" % sFAST)

    def touch_ox(self, layer):
        I = self.b.I
        I("s_add_u32 s%d, s%d, 0x%x" % (sT, sRG64, self.buf("X", 2 * layer) - 8192))
        I("s_add_u32 s%d, s%d, 0x%x" % (sT + 1, self.rgs("O"), self.buf("O", layer)))
        I("s_bitcmp1_b32 s%d, 1" % sW)
        I("s_cselect_b32 s%d, s%d, s%d" % (sT, sT, sT + 1))
        I("s_lshl_b32 s%d, s%d, 13" % (sT + 1, sC))
        I("s_add_u32 s%d, s%d, s%d" % (sT, sT, sT + 1))
        I("s_lshl_b32 s%d, s%d, 12" % (sT + 1, sW))
        I("s_add_u32 s%d, s%d, s%d" % (sT, sT, sT + 1))
        I("s_mov_b32 exec_hi, 0")
        I("buffer_load_dword v%d, v%d, s[%d:%d], s%d offen sc1" % (vDUM, vTCH, R_WS, R_WS + 3, sT))
        I("s_mov_b32 exec_hi, -1")

    def touch_h(self, layer):
        I = self.b.I
        I("s_lshl_b32 s%d, s%d, 13" % (sT, sC))
        I("s_add_u32 s%d, s%d, s%d" % (sT, sT, sRG64))
        I("s_add_u32 s%d, s%d, 0x%x" % (sT, sT, self.buf("X", 1)))
        I("s_mul_i32 s%d, s%d, 3" % (sT + 1, sC))
        I("s_add_u32 s%d, s%d, s%d" % (sT + 1, sT + 1, sW))
        I("s_sub_u32 s%d, s%d, 1" % (sT + 1, sT + 1))
        I("s_lshl_b32 s%d, s%d, 13" % (sT + 2, sT + 1))
        I("s_add_u32 s%d, s%d, s%d" % (sT + 2, sT + 2, sRGH))
        I("s_add_u32 s%d, s%d, 0x%x" % (sT + 2, sT + 2, self.buf("H", layer)))
        I("s_cmp_lt_u32 s%d, 22" % (sT + 1))
        I("s_cselect_b32 s%d, s%d, 0x%x" % (sT + 2, sT + 2, OOB))
        I("s_cmp_eq_u32 s%d, 0" % sW)
        I("s_cselect_b32 s%d, s%d, s%d" % (sT, sT, sT + 2))
        I("buffer_load_dword v%d, v%d, s[%d:%d], s%d offen sc1" % (vDUM, vTCH, R_WS, R_WS + 3, sT))

    def p1_kv_pass(self, layer, toks):
        chunk_of, chunk_open = self.chunker(toks, env("B1", [0, 1, 3, 7]))
        items = []
        one = vr(vONE, 4)
        for ks in range(16):
            ds, h = ks // 2, ks & 1
            c0 = "0" if ks == 0 else None
            for rt in range(4):
                def mfs(fr, ks=ks, rt=rt, c0=c0):
                    kk, kv_ = ("qkv", 0, 2 * ks), ("qkv", 0, 2 * ks + 1)
                    wk, wv = self.w_get(kk), self.w_get(kv_)
                    th = [self.mf(vACC + 16 + 4 * rt, fr, wk, c0), self.mf(vACC + 32 + 4 * rt, fr, wv, c0)]
                    if rt == 3:
                        th.append(lambda: (self.w_release(kk), self.w_release(kv_)))
                    return th
                items.append((vL16, ds * 8192 + rt * 2048 + h * 1024, chunk_of(ds), ds, mfs))
            items.append((vDMA, ds * 8192 + h * 1024, chunk_of(ds), ds,
                          lambda fr, c0=c0: [self.mf(vS1, one, fr, c0), self.mf(vS2, fr, fr, c0)]))
        self.bg_w = env("W_P1", 99)
        self.lead = env("LEAD1", 64)
        self.gemm(items, chunk_open, 8)

    def p1_rest(self, layer):
        b = self.b
        I = self.I
        self.stamp("kvpass")
        if layer == 0:
            self.r1_check()
            self.stamp("rchk")
        self.bg_w = env("W_KVE", 14)
        self.stats_publish()
        t1 = self.stats_read_kv()
        t2 = self.stats_read_q()
        b.wait(t1, t2)
        aK, aV = vACC + 16, vACC + 32
        for rt in range(4):
            for r in (0, 2):
                a_, b_ = vAF + 4 * rt + r, vAF + 16 + 4 * rt + r
                k_, v_ = aK + 4 * rt + r, aV + 4 * rt + r
                u = vT + 4 * ((rt * 2 + r // 2) % 4)
                I("v_pk_fma_f32 v[%d:%d], v[%d:%d], v[%d:%d], s[%d:%d]" % (u, u + 1, b_, b_ + 1, vCSK, vCSK + 1, sEPS, sEPS + 1))
                I("v_pk_mul_f32 v[%d:%d], v[%d:%d], v[%d:%d]" % (u + 2, u + 3, b_, b_ + 1, vCSV, vCSV + 1))
                I("v_pk_fma_f32 v[%d:%d], v[%d:%d], v[%d:%d], v[%d:%d]" % (k_, k_ + 1, a_, a_ + 1, k_, k_ + 1, u, u + 1))
                I("v_pk_fma_f32 v[%d:%d], v[%d:%d], v[%d:%d], v[%d:%d]" % (v_, v_ + 1, a_, a_ + 1, v_, v_ + 1, u + 2, u + 3))
        PKK, PKV = vAF + 32, vAF + 40
        for rt in range(4):
            for r in (0, 2):
                I("v_cvt_pk_bf16_f32 v%d, v%d, v%d" % (PKV + 2 * rt + r // 2, aV + 4 * rt + r, aV + 4 * rt + r + 1))
        self.phi_pairs([(aK + 4 * rt + r, PKK + 2 * rt + r // 2) for rt in range(4) for r in (0, 2)])
        KVD, ZD = vS1, vS2
        one = vr(vONE, 4)
        self.bg_w = 0
        for p in range(2):
            c0 = "0" if p == 0 else None
            self.mf(KVD, vr(PKK + 4 * p, 4), vr(PKV + 4 * p, 4), c0)()
            self.mf(ZD, vr(PKK + 4 * p, 4), one, c0)()
        b.I("s_add_u32 s%d, s%d, %d" % (sKB, sKV, layer * 2560))
        b.I("s_and_b32 s%d, s%d, 1" % (sKB + 1, sRG))
        b.I("s_mul_i32 s%d, s%d, 1280" % (sKB + 1, sKB + 1))
        b.I("s_add_u32 s%d, s%d, s%d" % (sKB + 1, sKB + 1, sKB))
        for r in range(4):
            b.I("ds_write_b32 v%d, v%d" % (vPOS + r, KVD + r))
        b.I("s_mov_b32 exec_lo, 0x00010001")
        b.I("s_mov_b32 exec_hi, 0x00010001")
        b.I("ds_write_b128 v%d, %s" % (vZP, vr(ZD, 4)))
        b.I("s_mov_b64 exec, -1")
        rd = [b.I("ds_read_b32 v%d, v%d offset:%d" % (vT + k, vKVL, 256 * k)) for k in range(5)]
        for k in range(5):
            b.wait(rd[k])
            if k == 4:
                b.I("s_mov_b32 exec_hi, 0xffff")
            b.I("buffer_atomic_add_f32 v%d, v%d, s[%d:%d], s%d offen offset:%d" % (
                vT + k, vL4, R_WS, R_WS + 3, sKB + 1, k * 256))
        b.I("s_mov_b64 exec, -1")
        self.stamp("atom")
        if layer:
            self.touch_ox(layer)
        self.last_bg = self.clock + env("QDELAY", [0, 0])[layer]
        self.bg_w = env("W_Q", 99)
        items = []
        for ks in range(16):
            ds, h = ks // 2, ks & 1
            c0 = "0" if ks == 0 else None
            if layer:
                def keep(fr):
                    self.wq_reg = fr
                    return []
                items.append((vWQ, ks * 1024, None, ds, keep))
            for rt in range(4):
                def mfs(fr, ks=ks, rt=rt, c0=c0):
                    w = self.w_get(("qkv", 0, 32 + ks)) if layer == 0 else self.wq_reg
                    th = [self.mf(vACC + 4 * rt, w, fr, c0)]
                    if layer == 0 and rt == 0:
                        th.append(self.mf(vCSQ, w, one, c0))
                    return th
                if layer == 0:
                    items.append(((vX0, vX1)[h], ds * 8192 + rt * 2048, None, ds, mfs))
                else:
                    items.append((vL16, ds * 8192 + rt * 2048 + h * 1024, None, ds, mfs))
        self.gemm(items, None, 11 if layer == 0 else 7)
        if layer == 0:
            b.I("s_lshl_b32 s%d, s%d, 14" % (sT, sW))
            b.I("s_add_u32 s%d, s%d, 0x%x" % (sT, sT, L_WQ))
            b.I("v_add_u32 v%d, s%d, v%d" % (vWQ, sT, vL16))
            for ks in range(16):
                k = ("qkv", 0, 32 + ks)
                b.I("ds_write_b128 v%d, %s offset:%d" % (vWQ, slot_r(self.wslot[k][0]), ks * 1024))
            b.wait(lg=0)
            for ks in range(16):
                self.w_release(("qkv", 0, 32 + ks))
        PQ = vACC + 16
        for rt in range(4):
            ab = vAB + 2 * rt
            for r in (0, 2):
                q_ = vACC + 4 * rt + r
                u = vT + 2 * ((rt * 2 + r // 2) % 8)
                I("v_pk_fma_f32 v[%d:%d], v[%d:%d], v[%d:%d], s[%d:%d] op_sel:[0,1,0] op_sel_hi:[1,1,1]" % (
                    u, u + 1, vCSQ + r, vCSQ + r + 1, ab, ab + 1, sEPS, sEPS + 1))
                I("v_pk_fma_f32 v[%d:%d], v[%d:%d], v[%d:%d], v[%d:%d] op_sel:[0,0,0] op_sel_hi:[1,0,1]" % (
                    q_, q_ + 1, q_, q_ + 1, ab, ab + 1, u, u + 1))
        self.phi_pairs([(vACC + 4 * rt + r, PQ + 2 * rt + r // 2) for rt in range(4) for r in (0, 2)])
        self.stamp("qpass")
        self.bg_w = 0
        self.w_burst(env("W_S1", [16, 16])[layer])
        b.I("v_add_u32 v%d, 0x400, v%d" % (vC2, vL16))
        b.I("v_cmp_gt_u32 vcc, 12, v0")
        b.I("v_mov_b32 v%d, 0x%x" % (vT, OOB))
        b.I("v_cndmask_b32 v%d, v%d, v%d, vcc" % (vC2, vT, vC2))
        b.I("s_add_u32 s%d, s%d, s%d" % (sT + 6, self.rgs("O"), sSTO))
        b.I("s_add_u32 s%d, s%d, 0x%x" % (sT + 6, sT + 6, self.buf("O", layer)))
        b.I("s_add_u32 s%d, s%d, 4096" % (sT + 7, sT + 6))
        self.stamp("s1burst")
        lp, ld = b.newlabel("Lkv"), b.newlabel("Lkvd")
        b.label(lp)
        b.I("buffer_load_dwordx4 %s, v%d, s[%d:%d], s%d offen sc1" % (vr(vT, 4), vL16, R_WS, R_WS + 3, sKB))
        b.I("buffer_load_dwordx4 %s, v%d, s[%d:%d], s%d offen offset:1280 sc1" % (vr(vT + 4, 4), vL16, R_WS, R_WS + 3, sKB))
        b.I("buffer_load_dwordx4 %s, v%d, s[%d:%d], s%d offen sc1" % (vr(vT + 8, 4), vC2, R_WS, R_WS + 3, sKB))
        b.I("buffer_load_dwordx4 %s, v%d, s[%d:%d], s%d offen offset:1280 sc1" % (vr(vT + 12, 4), vC2, R_WS, R_WS + 3, sKB))
        b.wait(vm=0)
        for k in (0, 2, 8, 10):
            b.I("v_pk_add_f32 v[%d:%d], v[%d:%d], v[%d:%d]" % (vT + k, vT + k + 1, vT + k, vT + k + 1, vT + k + 4, vT + k + 5))
        b.I("v_cmp_eq_f32 vcc, 0x42000000, v%d" % (vT + 3))
        b.I("v_cmp_eq_f32 s[%d:%d], v%d, v%d" % (sT, sT + 1, vT + 11, vT + 3))
        b.I("s_and_b64 vcc, vcc, s[%d:%d]" % (sM3, sM3 + 1))
        b.I("s_and_b32 s%d, s%d, 0x888" % (sT, sT))
        b.I("s_xor_b32 s%d, s%d, 0x888" % (sT, sT))
        b.I("s_xor_b64 vcc, vcc, s[%d:%d]" % (sM3, sM3 + 1))
        b.I("s_or_b32 s%d, s%d, vcc_lo" % (sT, sT))
        b.I("s_or_b32 s%d, s%d, vcc_hi" % (sT, sT))
        b.I("s_cbranch_scc0 %s" % ld)
        self.spin_guard(lp)
        b.label(ld)
        self.stamp("kvsync")
        b.I("v_lshl_add_u32 v%d, v0, 4, v%d" % (vT + 4, vKVL))
        b.I("v_sub_u32 v%d, v%d, v%d" % (vT + 4, vT + 4, vL4))
        b.I("ds_write_b128 v%d, %s offset:1280" % (vT + 4, vr(vT, 4)))
        b.I("s_mov_b64 exec, 0xfff")
        b.I("ds_write_b128 v%d, %s offset:2304" % (vT + 4, vr(vT + 8, 4)))
        b.I("s_mov_b64 exec, -1")
        lt = [b.I("ds_read_b32 v%d, v%d offset:1280" % (vT + 12 + r, vPOS + r)) for r in range(4)]
        lt.append(b.I("ds_read_b128 %s, v%d offset:1280" % (vr(vT + 4, 4), vZP)))
        b.wait(lt)
        I("v_cvt_pk_bf16_f32 v%d, v%d, v%d" % (vT + 10, vT + 4, vT + 5))
        I("v_cvt_pk_bf16_f32 v%d, v%d, v%d" % (vT + 11, vT + 6, vT + 7))
        I("v_cvt_pk_bf16_f32 v%d, v%d, v%d" % (vT + 8, vT + 12, vT + 13))
        I("v_cvt_pk_bf16_f32 v%d, v%d, v%d" % (vT + 9, vT + 14, vT + 15))
        NUM, DEN = vACC, vACC + 32
        for rt in range(4):
            I("v_mfma_f32_16x16x16_bf16 %s, v[%d:%d], v[%d:%d], 0" % (vr(DEN + 4 * rt, 4), vT + 10, vT + 11, PQ + 2 * rt, PQ + 2 * rt + 1))
        for rt in range(4):
            I("v_mfma_f32_16x16x16_bf16 %s, v[%d:%d], v[%d:%d], 0" % (vr(NUM + 4 * rt, 4), vT + 8, vT + 9, PQ + 2 * rt, PQ + 2 * rt + 1))
        for rt in range(4):
            I("v_add_f32 v%d, s%d, v%d" % (DEN + 4 * rt, sEPS, DEN + 4 * rt))
        for rt in range(4):
            I("v_rcp_f32 v%d, v%d" % (DEN + 4 * rt, DEN + 4 * rt))
        for rt in range(4):
            for r in (0, 2):
                n_ = NUM + 4 * rt + r
                I("v_pk_mul_f32 v[%d:%d], v[%d:%d], v[%d:%d] op_sel_hi:[1,0]" % (n_, n_ + 1, n_, n_ + 1, DEN + 4 * rt, DEN + 4 * rt + 1))
        for rt in range(4):
            for r in (0, 2):
                I("v_cvt_pk_bf16_f32 v%d, v%d, v%d" % (vT + 2 * rt + r // 2, NUM + 4 * rt + r, NUM + 4 * rt + r + 1))
        return self.stores2(self.tile_stores(vT, sT + 6), layer == 0)

    def n16_pass(self, name, layer, nks, toks, bounds):
        chunk_of, chunk_open = self.chunker(toks, bounds)
        items = []
        for ks in range(nks):
            ds, h = ks // 2, ks & 1
            for rt in range(4):
                def mfs(fr, ks=ks, rt=rt):
                    w = self.w_get((name, layer, ks))
                    th = [self.mf(vX + 4 * rt, w, fr)]
                    if rt == 3:
                        th.append(lambda: self.w_release((name, layer, ks)))
                    return th
                a, off = self.lds_addr((ds % NRING) * 8192 + rt * 2048 + h * 1024)
                items.append((a, off, chunk_of(ds), ds, mfs))
        self.gemm(items, chunk_open, 11)

    def x_store(self, idx):
        I = self.I
        self.bg_w = 0
        self.b.I("s_add_u32 s%d, s%d, s%d" % (sT + 6, sRG64, sSTO))
        self.b.I("s_add_u32 s%d, s%d, 0x%x" % (sT + 6, sT + 6, self.buf("X", idx)))
        self.b.I("s_add_u32 s%d, s%d, 4096" % (sT + 7, sT + 6))
        for rt in range(4):
            for r in (0, 2):
                I("v_cvt_pk_bf16_f32 v%d, v%d, v%d" % (vT + 2 * rt + r // 2, vX + 4 * rt + r, vX + 4 * rt + r + 1))
        return self.stores2(self.tile_stores(vT, sT + 6), idx == 0 or self.sep)

    def p3(self, layer, toks):
        b = self.b
        I = self.I
        chunk_of, chunk_open = self.chunker(toks, env("B3", [0, 1, 3, 7]))
        items = []
        one = vr(vONE, 4)
        for ks in range(16):
            ds, h = ks // 2, ks & 1
            c0 = "0" if ks == 0 else None
            for rt in range(4):
                def mfs(fr, ks=ks, rt=rt, c0=c0):
                    th = []
                    for t in range(3):
                        w = self.w_get(("w1", layer, 3 * ks + t))
                        th.append(self.mf(vACC + 16 * t + 4 * rt, w, fr, c0))
                        if layer == 0 and rt == 0:
                            th.append(self.mf(vCS1 + 4 * t, w, one, c0))
                    if rt == 3:
                        th.append(lambda: [self.w_release(("w1", layer, 3 * ks + t)) for t in range(3)])
                    return th
                items.append((vL16, ds * 8192 + rt * 2048 + h * 1024, chunk_of(ds), ds, mfs))
            items.append((vDMA, ds * 8192 + h * 1024, chunk_of(ds), ds,
                          lambda fr, c0=c0: [self.mf(vS1, one, fr, c0), self.mf(vS2, fr, fr, c0)]))
        self.bg_w = env("W_P3", 99)
        self.lead = env("LEAD3", 64)
        self.gemm(items, chunk_open, 8)
        self.stamp("p3gemm")
        self.bg_w = env("W_P3E", 20)
        self.lead = 0
        self.stats_publish()
        t2 = self.stats_read_q()
        for t in range(3):
            b.I("s_add_u32 s%d, s%d, 0x%x" % (sT + 6 + 2 * t, sH0 + t, self.buf("H", layer)))
            b.I("s_add_u32 s%d, s%d, 4096" % (sT + 7 + 2 * t, sT + 6 + 2 * t))
        b.wait(t2)
        sts = []
        P = vAF
        for t in range(3):
            for r2 in range(2):
                prs = [(rt, r) for rt in (2 * r2, 2 * r2 + 1) for r in (0, 2)]
                for k, (rt, r) in enumerate(prs):
                    ab = vAB + 2 * rt
                    I("v_pk_mul_f32 v[%d:%d], v[%d:%d], v[%d:%d] op_sel:[0,1] op_sel_hi:[1,1]" % (
                        vT + 2 * k, vT + 2 * k + 1, vCS1 + 4 * t + r, vCS1 + 4 * t + r + 1, ab, ab + 1))
                for k, (rt, r) in enumerate(prs):
                    ab = vAB + 2 * rt
                    x_ = vACC + 16 * t + 4 * rt + r
                    I("v_pk_fma_f32 v[%d:%d], v[%d:%d], v[%d:%d], v[%d:%d] op_sel:[0,0,0] op_sel_hi:[1,0,1]" % (
                        x_, x_ + 1, x_, x_ + 1, ab, ab + 1, vT + 2 * k, vT + 2 * k + 1))
                for k, (rt, r) in enumerate(prs):
                    x_ = vACC + 16 * t + 4 * rt + r
                    I("v_pk_mul_f32 v[%d:%d], v[%d:%d], s[%d:%d]" % (vT + 2 * k, vT + 2 * k + 1, x_, x_ + 1, sNL2E, sNL2E + 1))
                for k in range(8):
                    I("v_exp_f32 v%d, v%d" % (vT + k, vT + k))
                for k in range(4):
                    I("v_pk_add_f32 v[%d:%d], v[%d:%d], 1.0 op_sel_hi:[1,0]" % (vT + 2 * k, vT + 2 * k + 1, vT + 2 * k, vT + 2 * k + 1))
                for k in range(8):
                    I("v_rcp_f32 v%d, v%d" % (vT + k, vT + k))
                for k, (rt, r) in enumerate(prs):
                    x_ = vACC + 16 * t + 4 * rt + r
                    I("v_pk_mul_f32 v[%d:%d], v[%d:%d], v[%d:%d]" % (x_, x_ + 1, x_, x_ + 1, vT + 2 * k, vT + 2 * k + 1))
                for k, (rt, r) in enumerate(prs):
                    x_ = vACC + 16 * t + 4 * rt + r
                    I("v_cvt_pk_bf16_f32 v%d, v%d, v%d" % (P + 8 * t + 2 * rt + r // 2, x_, x_ + 1))
            sts += self.stores2(self.tile_stores(P + 8 * t, sT + 6 + 2 * t), layer == 0)
        return sts

    def final_store(self):
        I = self.b.I
        I("v_and_b32 v%d, 15, v0" % (vT + 8))
        I("v_lshlrev_b32 v%d, 10, v%d" % (vT + 8, vT + 8))
        I("v_lshrrev_b32 v%d, 4, v0" % (vT + 9))
        I("v_lshl_add_u32 v%d, v%d, 3, v%d" % (vT + 8, vT + 9, vT + 8))
        I("s_lshl_b32 s%d, s%d, 7" % (sT, sC))
        I("s_lshl_b32 s%d, s%d, 5" % (sT + 1, sW))
        I("s_add_u32 s%d, s%d, s%d" % (sT, sT, sT + 1))
        I("s_add_u32 s%d, s%d, s%d" % (sT, sT, sRG64))
        for rt in range(4):
            for r in (0, 2):
                I("v_cvt_pk_bf16_f32 v%d, v%d, v%d" % (vT + 2 * rt + r // 2, vX + 4 * rt + r, vX + 4 * rt + r + 1))
            I("buffer_store_dwordx2 v[%d:%d], v%d, s[%d:%d], s%d offen" % (
                vT + 2 * rt, vT + 2 * rt + 1, vT + 8, R_OUT, R_OUT + 3, sT))
            if rt < 3:
                I("s_add_u32 s%d, s%d, 16384" % (sT, sT))

    def body(self):
        b = self.b
        for layer in range(2):
            self.w_enqueue("wo", layer, F_WO, 16)
            self.w_enqueue("w1", layer, F_W1, 48)
            self.w_enqueue("w2", layer, F_W2, 43)
        ph = 0
        BURSTS = env("W_PUB", [[8, 8, 8, 8], [8, 8, 8, 8]])
        AF = env("AFIRST", 8)
        for layer in range(2):
            BURST = BURSTS[layer]
            self.pace_w = env('PACEW', [75, 62])[layer]
            if layer == 0:
                self.startup()
            else:
                toks = self.start_tile("X", 1, 16, AF, rot=True)
                self.p1_kv_pass(layer, toks)
            st = self.p1_rest(layer)
            ph += 1
            self.publish(st, ph, BURST[0])
            self.stamp("o_pub")
            self.poll_flags(ph)
            self.stamp("o_rdy")
            toks = self.start_tile("O", layer, 16, AF)
            self.bg_w = env("W_P2", 99)
            self.n16_pass("wo", layer, 16, toks, env("B2", [0, 1, 2, 3, 5, 7]))
            self.stamp("p2gemm")
            st = self.x_store(2 * layer)
            ph += 1
            self.publish(st, ph, BURST[1])
            self.stamp("x1_pub")
            self.poll_flags(ph)
            self.stamp("x1_rdy")
            toks = self.start_tile("X", 2 * layer, 16, AF)
            if layer:
                self.aq.append(lambda layer=layer: self.touch_h(layer))
                self.a_nks += 1
            st = self.p3(layer, toks)
            ph += 1
            self.publish(st, ph, BURST[2])
            self.stamp("h_pub")
            self.poll_flags(ph)
            self.stamp("h_rdy")
            toks = self.start_tile("H", layer, 43, AF)
            self.bg_w = env("W_P4", 99)
            self.n16_pass("w2", layer, 43, toks, env("B4", [0, 1, 2, 3, 5, 7, 9, 11, 13, 15, 17, 19, 21]))
            self.stamp("p4gemm")
            if layer == 0:
                st = self.x_store(1)
                ph += 1
                self.publish(st, ph, BURST[3])
                self.stamp("x2_pub")
                self.poll_flags(ph)
                self.stamp("x2_rdy")
            else:
                self.final_store()
                lx = b.newlabel("Lep")
                b.I("s_or_b32 s%d, s2, s%d" % (sT, sW))
                b.I("s_cbranch_scc1 %s" % lx)
                b.I("s_add_u32 s%d, s%d, 16" % (sT, sEP))
                b.I("v_mov_b32 v%d, s%d" % (vT + 9, sT))
                b.I("s_mov_b32 s%d, 0x%x" % (sT, WS_EP))
                b.I("s_mov_b64 exec, 1")
                self.Inc("buffer_store_dword v%d, off, s[%d:%d], s%d sc1" % (vT + 9, R_WS, R_WS + 3, sT))
                b.I("s_mov_b64 exec, -1")
                b.label(lx)
                self.stamp("end")
        if self.diag:
            b.I("s_lshl_b32 s%d, s2, 2" % sT)
            b.I("s_add_u32 s%d, s%d, s%d" % (sT, sT, sW))
            b.I("s_lshl_b32 s%d, s%d, 8" % (sT, sT))
            b.I("s_add_u32 s%d, s%d, 0x%x" % (sT, sT, WS_STAMP))
            b.I("buffer_store_dword v%d, v%d, s[%d:%d], s%d offen" % (vSTAMP, vL4, R_WS, R_WS + 3, sT))
        b.label("L_end")
        b.I("s_endpgm")

    def emit(self):
        self.body()
        head = """; @launch grid=(256,1,1) block=(256,1,1) lds=%d
; persistent fused kernel: 32 row groups (64 rows) x 8 column groups (generated by my own script)
.amdgcn_target "amdgcn-amd-amdhsa--gfx950"
.text
.globl %s_kernel
.p2align 8
.type %s_kernel,@function
%s_kernel:
""" % (LDS_BYTES, NAME, NAME, NAME)
        tail = """.section .rodata,"a"
.p2align 6
.amdhsa_kernel %s_kernel
  .amdhsa_next_free_vgpr 512
  .amdhsa_next_free_sgpr 102
  .amdhsa_accum_offset 256
  .amdhsa_group_segment_fixed_size 0
  .amdhsa_kernarg_size 72
  .amdhsa_user_sgpr_count 2
  .amdhsa_user_sgpr_kernarg_segment_ptr 1
  .amdhsa_system_sgpr_workgroup_id_x 1
.end_amdhsa_kernel
""" % NAME
        return head + self.b.text() + tail


if __name__ == "__main__":
    import argparse
    ap = argparse.ArgumentParser()
    ap.add_argument("-o", default="cdna_kernels/%s.s" % NAME)
    ap.add_argument("--diag", action="store_true")
    ap.add_argument("--sep", action="store_true")
    a = ap.parse_args()
    g = Gen(a.diag, a.sep)
    txt = g.emit()
    if a.diag:
        txt = txt.replace(".amdgcn_target", "; stamps: " + ",".join(g.stamp_names) + "\n.amdgcn_target", 1)
    open(a.o, "w").write(txt)
    print("instructions", g.b.nins, "nops", g.b.nops, file=sys.stderr)
```

```python
import sys
import os
sys.path.insert(0, os.path.dirname(os.path.abspath(__file__)))
from asmb import Builder, vr

NAME = "interleave_layers__linear_attn_block__dense_activation_silu__prompt"


def env(name, default):
    v = os.environ.get(name)
    return default if v is None else eval(v)


PKW = 107 * 1024
WS_FL = 0x380000
WS_EP = 0x390000
WS_R2 = 0x398000
WS_KV = 0x3A0000
KVH = 5120
WS_ST = 0x400000
WS_O = 0x600000
WS_X = 0x800000
WS_H = 0xA00000
HSZ = 22 * 8192
WS_STAMP = 0x3000000
WS_SIZE = 0x3100000
OOB = 0x4000000
F_WO, F_W1, F_W2 = 0, 16, 64

L_RING = 65536
L_WQ = 81920
L_PACK = 131072
L_KVI = 147456
L_STA = 157696
L_EX = 158720
NSLOT = 20
LDS_BYTES = 163840

S_X, S_WQ, S_WO, S_W1, S_W2, S_OUT, S_DBG, S_WS = 4, 6, 8, 12, 14, 16, 18, 20
R_X, R_WQ, R_WS, R_OUT, R_PK = 24, 28, 32, 36, 44
sR1, sQ, sTC, sTAG, sEP = 3, 10, 11, 22, 23
sROT, sSTP, sSTC, sW1K = 40, 41, 42, 43
sRG, sC, sW, sFAST, sPK, sKV, sFL, sRG64, sRGH, sSTO = 48, 49, 50, 51, 52, 53, 54, 55, 56, 57
sH0 = 58
sSPIN = 61
sEPS = 62
sOUT = 63
sXS = 64
sM1, sM2, sM3, sDIAG = 68, 70, 72, 74
sT = 76
sKB = 88
sPKC, sXCC, sMYF, sW2K, sAB, sAO = 96, 97, 98, 99, 100, 101

vL16, vA1, vKVL, vDMA, vST = 1, 2, 3, 4, 5
vX0, vX1, vOW0, vOW1, vTR, vXS0, vXS1, vWS = 6, 7, 8, 9, 10, 11, 12, 13
vWQ = 13
vSB, vEX, vSWR, vOA = 8, 9, 10, 11
vFL, vL4, vSTAMP, vSTA, vSTQ, vC2 = 14, 15, 16, 17, 18, 19
vX = 20
vCSQ, vCSK, vCSV = 36, 40, 42
vCS1 = 44
vONE = 56
vACC = 60
vAF = 92
NAF = 10
vAB = 132
vT = 140
vPOS = 156
vZP, vSW, vDUM, vTCH, vPOLL, vDM2 = 160, 161, 162, 163, 164, 165
vK = 166
vS1, vS2 = 168, 172
vW1 = 176
SLOTS = [("a", 4 * i) for i in range(64)] + [("v", 180 + 4 * i) for i in range(19)]
PACE = env("PACE", 50)
WMIN = env("WMIN", 10)
AMIN = env("AMIN", 5)
RDSLACK = env("RDSLACK", 2)
SIDEMIN = env("SIDEMIN", 1)
COST = {"mfma": 16, "trans": 8, "ds": 4, "valu": 4, "perm": 4, "dpp": 4, "rdlane": 4, "wrlane": 4, "salu": 2, "vmem": 8}
K_L2E = "op_sel:[0,0] op_sel_hi:[1,0]"


def slot_r(s):
    return vr(s[1], 4, s[0])


def p2(r):
    return "v[%d:%d]" % (r, r + 1)


class Gen:
    def __init__(self, diag=False, sep=False):
        self.b = Builder()
        self.diag = diag
        self.sep = sep
        self.free = list(SLOTS)
        self.wq = []
        self.wslot = {}
        self.pk_cur = None
        self.nstamp = 0
        self.stamp_names = []
        self.aq = []
        self.atok = {}
        self.seq = 0
        self.consumed = -1
        self.mine = -1
        self.pub_mine = {}
        self.clock = 0
        self.last_bg = -1000
        self.bg_w = 0
        self.pace_w = 70
        self.in_bg = False
        self.npub = 0
        self.flagged = set()
        self.cold = []
        self.slotted = False
        self.prepped = None
        self.wprep = []
        self.pinned = set()
        self.side = []
        self.side_rate = 2
        self.w_issued = 0
        self.w_need = 0
        self.w_cur = None
        self.w_index = {}
        self.wlead = env('WLEAD', 14)
        self.cur_seq = 0
        self.alead = env('ALEAD', 8)

    def I(self, t):
        tok = self.b.I(t)
        k = self.b.hists[0][-1].kind if self.b.hists and self.b.hists[0] else "salu"
        self.clock += COST.get(k, 4)
        if not self.in_bg and not self.slotted and k in ("mfma", "valu", "trans"):
            c = self.bg_pick()
            if c is not None and c[1]:
                self.bg_emit(c[0], True)
        return tok

    def side_step(self, n):
        self.in_bg = True
        done = 0
        while n > 0 and self.side:
            e = self.side[0]
            if isinstance(e, int):
                if e <= 1:
                    self.side.pop(0)
                else:
                    self.side[0] = e - 1
                break
            self.side.pop(0)
            if isinstance(e, str):
                self.b.I(e)
            else:
                e()
            n -= 1
            done += 1
        self.in_bg = False
        return done

    def side_flush(self):
        while self.side:
            self.side_step(1000)

    def bg_pick(self):
        a_ok = self.aq and self.aq[0].seq - NSLOT <= self.consumed
        w_ok = self.bg_w > 0 and self.wq and self.free
        same = w_ok and self.wq[0][0][:2] == self.w_cur
        el = self.clock - self.last_bg
        if self.prepped == "A" and a_ok:
            return "A", el >= PACE or self.aq[0].seq - self.cur_seq < AMIN
        if same and self.w_issued - self.w_need < WMIN:
            return "W", True
        if a_ok and w_ok:
            a_lead = self.aq[0].seq - self.cur_seq
            if a_lead > self.alead or (same and self.w_issued - self.w_need < self.wlead and a_lead > 3):
                a_ok = False
        if a_ok:
            return "A", el >= PACE or self.aq[0].seq - self.cur_seq < AMIN
        if w_ok:
            return "W", el >= self.pace_w
        return None

    def bg_prep_list(self, kind):
        if kind == "A":
            return self.aq[0].prep
        grp = self.wq[0][1] // 4
        if self.pk_cur != grp and not os.environ.get("NOW"):
            self.pk_cur = grp
            self.wprep = ["s_add_u32 s%d, s%d, 0x%x" % (sPKC, sPK, grp * 4096)]
        return self.wprep

    def bg_emit(self, kind, inline):
        self.in_bg = True
        if kind == "A":
            self.a_pop()
        else:
            self.w_issue()
            self.bg_w -= 1
        self.last_bg = self.clock
        self.in_bg = False

    def a_pop(self):
        th = self.aq.pop(0)
        while th.prep:
            self.b.I(th.prep.pop(0))
        th()
        self.prepped = None

    def slot_fill(self, rd_lag, issue_read):
        c = self.bg_pick()
        if c is not None and c[1] and rd_lag <= RDSLACK and not self.bg_prep_list(c[0]):
            self.bg_emit(c[0], False)
            self.clock += 8
            return
        budget = 2
        if rd_lag > 0:
            issue_read()
            budget -= 1
            if rd_lag > 1:
                issue_read()
                budget -= 1
        if c is not None:
            pl = self.bg_prep_list(c[0])
            while budget > 0 and pl:
                self.b.I(pl.pop(0))
                budget -= 1
                if c[0] == "A":
                    self.prepped = "A"
        self.side_step(max(budget, SIDEMIN))

    def Inc(self, t):
        self.b.I(t)
        self.b.vm_issued -= 1

    def stamp(self, name):
        if os.environ.get("WLOG"):
            print("%-8s clock %6d  wq left %3d next %s free %d aq %d" % (
                name, self.clock, len(self.wq), self.wq[0][0] if self.wq else None, len(self.free), len(self.aq)), file=sys.stderr)
        if not self.diag:
            return
        b = self.b
        k = self.nstamp
        self.nstamp += 1
        assert k < 62
        b.comment("stamp %d %s" % (k, name))
        b.I("s_memtime s[94:95]")
        b.wait(lg=0)
        b.I("v_writelane_b32 v%d, s94, %d" % (vSTAMP, k))
        if name in ("start", "end"):
            b.I("s_memrealtime s[94:95]")
            b.wait(lg=0)
            b.I("v_writelane_b32 v%d, s94, %d" % (vSTAMP, 62 if name == "start" else 63))
        self.stamp_names.append(name)

    def buf(self, kind, idx):
        base = {"O": WS_O if self.sep else WS_H, "X": WS_X, "H": WS_H}[kind]
        return base + (idx * 0x1000000 if self.sep else 0)

    def hstride(self, kind):
        return HSZ // 2 if self.rgs(kind) == sRGH else 32768

    def rgs(self, kind):
        return sRGH if kind == "H" or (kind == "O" and not self.sep) else sRG64

    def srd(self, r, ptr, size):
        I = self.b.I
        I("s_mov_b32 s%d, s%d" % (r, ptr))
        I("s_and_b32 s%d, s%d, 0xffff" % (r + 1, ptr + 1))
        I("s_mov_b32 s%d, 0x%x" % (r + 2, size))
        I("s_mov_b32 s%d, 0x20000" % (r + 3))

    def ws(self):
        return "s[%d:%d]" % (R_WS, R_WS + 3)

    def w_enqueue(self, name, layer, f0, n):
        for i in range(n):
            self.w_index[(name, layer, i)] = len(self.w_index)
            self.wq.append(((name, layer, i), f0 + i))

    def w_issue(self):
        key, f = self.wq.pop(0)
        s = self.free.pop(0)
        self.w_issued += 1
        if os.environ.get("NOW"):
            self.wslot[key] = (s, None)
            return
        grp = f // 4
        while self.wprep:
            self.b.I(self.wprep.pop(0))
        if self.pk_cur != grp:
            self.b.I("s_add_u32 s%d, s%d, 0x%x" % (sPKC, sPK, grp * 4096))
            self.pk_cur = grp
        va = vW1 + key[2] % 3 if key[0] == "w1" and env("SKIPW1", 1) else vL16
        tok = self.b.I("buffer_load_dwordx4 %s, v%d, %s, s%d offen offset:%d sc1" % (
            slot_r(s), va, self.ws(), sPKC, (f % 4) * 1024))
        self.wslot[key] = (s, tok)

    def w_burst(self, n):
        k = 0
        while k < n and self.wq and self.free:
            self.w_issue()
            k += 1
        self.last_bg = self.clock

    def w_get(self, key):
        self.w_need = max(self.w_need, self.w_index.get(key, 0))
        self.w_cur = key[:2]
        if key not in self.wslot:
            print("WARNING: late W load", key, file=sys.stderr)
        while key not in self.wslot:
            assert self.wq and self.free, "no free slot for %s" % (key,)
            self.w_issue()
        s, tok = self.wslot[key]
        self.b.wait(tok)
        return slot_r(s)

    def w_release(self, key):
        s, _ = self.wslot.pop(key)
        self.free.append(s)

    def stores2(self, texts, wt=False):
        b = self.b
        if wt:
            return [b.I(t + " sc1") for t in texts]
        ls, lj = b.newlabel("Lslow"), b.newlabel("Ljoin")
        b.I("s_cmp_eq_u32 s%d, 1" % sFAST)
        b.I("s_cbranch_scc0 %s" % ls)
        b.saved.pop(ls)
        toks = [b.I(t) for t in texts]
        b.raw(lj + ":")
        self.cold += [ls + ":"] + ["    " + t + " sc1" for t in texts] + ["    s_branch " + lj]
        return toks

    def pair_store(self, p, sreg, off):
        for k in range(2):
            self.b.I("v_permlane16_swap_b32 v%d, v%d" % (p + k, p + 2 + k))
        return "buffer_store_dwordx4 %s, v%d, %s, s%d offen offset:%d" % (vr(p, 4), vST, self.ws(), sreg, off)

    def spin_guard(self, lab_loop):
        b = self.b
        b.I("s_sub_u32 s%d, s%d, 1" % (sSPIN, sSPIN))
        b.I("s_cmp_lg_u32 s%d, 0" % sSPIN)
        b.I("s_cbranch_scc1 %s" % lab_loop)
        b.I("s_branch L_end")

    def new_pub(self, toks):
        self.npub += 1
        k = self.npub
        self.pub_mine[k] = self.mine

        def flag():
            b = self.b
            b.I("s_add_u32 s%d, s%d, %d" % (sT, sTAG, k))
            b.I("v_mov_b32 v%d, s%d" % (vC2, sT))
            b.wait(toks)
            b.I("s_mov_b64 exec, 1")
            self.stores2(["buffer_store_dword v%d, off, %s, s%d" % (vC2, self.ws(), sMYF)])
            b.I("s_mov_b64 exec, -1")
            self.flagged.add(k)
        return k, flag

    def poll_issue(self):
        return self.b.I("buffer_load_dword v%d, v%d, %s, s%d offen sc1" % (vPOLL, vFL, self.ws(), sFL))

    def poll_check(self, k, tok=None):
        b = self.b
        if k not in self.flagged:
            print("WARNING: side stream late for flag", k, file=sys.stderr)
        while k not in self.flagged:
            assert self.side, "flag %d never raised before its poll" % k
            self.side_step(1)
        lp, ld, lc = b.newlabel("Lpoll"), b.newlabel("Lpd"), b.newlabel("Lpc")
        b.I("s_add_u32 s%d, s%d, %d" % (sT, sTAG, k))
        if tok is not None:
            b.wait(tok)
            b.I("s_branch %s" % lc)
        b.label(lp)
        self.Inc("buffer_load_dword v%d, v%d, %s, s%d offen sc1" % (vPOLL, vFL, self.ws(), sFL))
        if tok is None:
            b.wait(vm=0)
        else:
            b.I("s_waitcnt vmcnt(0)")
        b.label(lc)
        b.I("v_subrev_u32 v%d, s%d, v%d" % (vPOLL, sT, vPOLL))
        b.I("v_cmp_gt_u32 vcc, %d, v%d" % (16 - k, vPOLL))
        b.I("s_cmp_eq_u64 vcc, exec")
        b.I("s_cbranch_scc1 %s" % ld)
        self.spin_guard(lp)
        b.label(ld)
        self.consumed = max(self.consumed, self.pub_mine[k])

    def queue_stats(self, hf, plan):
        b = self.b
        s0 = self.seq
        assert s0 % 2 == 0
        self.seq += 2
        for j in range(2):
            def th(j=j):
                assert s0 + 1 - NSLOT <= self.consumed
                self.atok.setdefault(s0, []).append(b.I(
                    "buffer_load_dwordx4 v%d, %s, s%d offen offset:%d sc1 lds" % (vL16, self.ws(), sAO, j * 1024)))
            th.seq = s0 + 1
            th.prep = [] if j else ["s_add_u32 m0, s%d, 0x%x" % (sW2K, (s0 % NSLOT) * 4096),
                                    "s_add_u32 s%d, s%d, 0x%x" % (sAO, sSTC, hf * 8192)]
            plan.append(th)
        return s0

    def queue_half(self, kind, idx, hf, nds, plan, rot=False):
        b = self.b
        seqs = []
        base = self.buf(kind, idx) + hf * self.hstride(kind)
        rg = self.rgs(kind)
        assert self.seq % 2 == 0 and nds % 2 == 0
        for ds in range(nds):
            sq = self.seq
            self.seq += 1
            seqs.append(sq)
            if rot:
                def th(sq=sq):
                    assert sq - NSLOT <= self.consumed, "ring slot busy"
                    self.atok[sq] = [b.I("buffer_load_dwordx4 v%d, %s, s%d offen sc1 lds" % (vDMA, self.ws(), sAO))]
                th.seq = sq
                if ds == 0:
                    th.prep = ["s_add_u32 s%d, s%d, 0x%x" % (sAB, rg, base), "s_lshl_b32 s%d, s%d, 12" % (sXS, sROT)]
                else:
                    th.prep = ["s_add_u32 s%d, s%d, 0x1000" % (sXS, sXS), "s_and_b32 s%d, s%d, 0x7fff" % (sXS, sXS)]
                th.prep += ["s_add_u32 m0, s%d, 0x%x" % (sW1K, (sq % NSLOT) * 4096), "s_add_u32 s%d, s%d, s%d" % (sAO, sAB, sXS)]
            else:
                s0 = sq & ~1

                def th(sq=sq, s0=s0):
                    assert s0 + 1 - NSLOT <= self.consumed, "ring slot busy"
                    tk = b.I("buffer_load_dwordx4 v%d, %s, s%d offen offset:%d sc1%s lds" % (
                        vDM2, self.ws(), sAO, (sq & 1) * 1024, " nt" if (kind, idx) in env("NTA", []) else ""))
                    if sq & 1:
                        self.atok[s0] = self.atok[s0 + 1] = [tk]
                th.seq = s0 + 1
                th.prep = [] if sq & 1 else ["s_add_u32 m0, s%d, 0x%x" % (sW2K, (sq % NSLOT) * 4096),
                                             "s_add_u32 s%d, s%d, 0x%x" % (sAO, rg, base + ds * 4096)]
            plan.append(th)
        return seqs

    def a_burst(self, n):
        k = 0
        while k < n and self.aq and self.aq[0].seq - NSLOT <= self.consumed:
            self.a_pop()
            k += 1
        self.last_bg = self.clock

    def frag_addr(self, sq, r, h):
        off = (sq % NSLOT) * 4096 + r * 2048 + h * 1024
        return ((vL16, vA1)[off >> 16], off & 0xffff)

    def gemm_prep(self, items, groups=None, depth=8, hooks=None, pre=None, post=None, pairw=False, buf0=0):
        b = self.b
        hooks, pre, post = hooks or {}, pre or {}, post or {}
        n = len(items)
        toks = [None] * n
        grp_of = {}
        for gi, g in enumerate(groups or []):
            for sq in g:
                grp_of[sq] = gi
        opened = set()
        st = {"ip": 0}

        def reg(k):
            return vr(vAF + 4 * ((k + buf0) % NAF), 4)

        def issue():
            k = st["ip"]
            a, off, sq, _ = items[k]
            if sq in grp_of and grp_of[sq] not in opened:
                gi = grp_of[sq]
                opened.add(gi)
                while any(s not in self.atok for s in groups[gi]):
                    self.a_pop()
                    self.last_bg = self.clock
                for f in pre.get(gi, []):
                    f()
                b.wait(*[self.atok[s] for s in groups[gi]])
                b.I("s_barrier")
                self.consumed = max(self.consumed, self.mine)
                for f in post.get(gi, []):
                    f()
            toks[k] = self.I("ds_read_b128 %s, v%d offset:%d" % (reg(k), a, off))
            st["ip"] += 1

        def prestart(m=None):
            while st["ip"] < min(depth if m is None else m, n):
                issue()

        def run():
            prestart()
            self.slotted = True
            for j in range(n):
                thunks = items[j][3](reg(j))
                while st["ip"] <= min(j + (1 if pairw else 0), n - 1):
                    issue()
                if pairw and j % 2 == 0 and j + 1 < st["ip"]:
                    b.wait(toks[j + 1])
                b.wait(toks[j])
                if items[j][2] is not None:
                    self.cur_seq = items[j][2]
                    lim = min(self.pinned) - 3 if self.pinned else 1 << 30
                    self.mine = max(self.mine, min(items[j][2] - 1, lim))
                if not thunks and st["ip"] < min(n, j + 1 + depth):
                    issue()
                for th in thunks:
                    n0 = b.nins
                    th()
                    if b.nins > n0:
                        self.slot_fill(min(n, j + 1 + depth) - st["ip"], issue)
                for f in hooks.get(j, []):
                    f()
            self.slotted = False
            self.side_flush()
            sq = [it[2] for it in items if it[2] is not None]
            if sq:
                self.cur_seq = max(sq) + 1
                lim = min(self.pinned) - 3 if self.pinned else 1 << 30
                self.mine = max(self.mine, min(max(sq), lim))
        return prestart, run

    def gemm(self, *a, **k):
        self.gemm_prep(*a, **k)[1]()

    def mf(self, d, a, bb, c=None):
        dd = vr(d, 4)
        cc = dd if c is None else c
        return lambda: self.I("v_mfma_f32_16x16x32_bf16 %s, %s, %s, %s" % (dd, a, bb, cc))

    @staticmethod
    def split(seqs, sizes):
        out, k = [], 0
        for s in sizes:
            out.append(seqs[k:k + s])
            k += s
        assert k == len(seqs)
        return out

    def stats_stage1(self, s0, hf):
        b = self.b
        t = vS1
        tk = {}
        out = ["v_add_u32 v%d, 0x%x, v%d" % (vT, (s0 % NSLOT) * 4096, vSB), lambda: b.wait(self.atok[s0])]
        for k in range(4):
            out.append(lambda k=k: tk.__setitem__(k, b.I("ds_read2st64_b32 %s, v%d offset0:%d offset1:%d" % (
                p2(t + 2 * k), vT, 2 * k, 2 * k + 1))))
        out += [6, lambda: b.wait(tk[3])]
        out += ["v_add_f32 v%d, v%d, v%d" % (t + k, t + k, t + 4 + k) for k in range(4)]
        out += ["v_add_f32 v%d, v%d, v%d" % (t + k, t + k, t + 2 + k) for k in range(2)]
        out += ["v_add_f32 v%d, v%d, v%d" % (t, t, t + 1)]
        out.append(lambda: tk.__setitem__("w", b.I("ds_write_b32 v%d, v%d offset:%d" % (vSW, t, hf * 1024))))

        def before_barrier():
            self.side_flush()
            b.wait(tk["w"])
        return out, before_barrier

    def stats_stage2(self, hf, scale, kv):
        b = self.b
        t = vS1
        tk = {}
        out = []
        for k in range(2):
            out.append(lambda k=k: tk.__setitem__(k, b.I("ds_read2st64_b32 %s, v%d offset0:%d offset1:%d" % (
                p2(t + 2 * k), vEX, hf * 4 + 2 * k, hf * 4 + 2 * k + 1))))
        a0, b0, a1, b1 = [vAB + 4 * hf + k for k in range(4)]
        out += [6, lambda: b.wait(tk[1]),
                "v_add_f32 v%d, v%d, v%d" % (t, t, t + 2), "v_add_f32 v%d, v%d, v%d" % (t + 1, t + 1, t + 3),
                "v_add_f32 v%d, v%d, v%d" % (t, t, t + 1), "v_mul_f32 v%d, 0x3b000000, v%d" % (t, t),
                "v_mov_b32 v%d, v%d" % (t + 1, t), 1,
                "v_permlane16_swap_b32 v%d, v%d" % (t, t + 1), 1,
                "v_fma_f32 v%d, -v%d, v%d, v%d" % (t + 1, t, t, t + 1), "v_max_f32 v%d, 0, v%d" % (t + 1, t + 1),
                "v_add_f32 v%d, 0x3727c5ac, v%d" % (t + 1, t + 1), "v_rsq_f32 v%d, v%d" % (a0, t + 1), 1]
        if scale:
            out.append("v_mul_f32 v%d, v%d, v%d" % (a0, a0, vK))
        out.append("v_mul_f32_e64 v%d, -v%d, v%d" % (b0, t, a0))
        if kv:
            def wr():
                b.I("s_mov_b32 exec_lo, 0xffff")
                b.I("s_mov_b32 exec_hi, 0xffff")
                b.I("ds_write_b32 v%d, v%d" % (vSWR, a0))
                b.I("ds_write_b32 v%d, v%d offset:128" % (vSWR, b0))
                b.I("s_mov_b64 exec, -1")
            out.append(wr)
        out += ["v_mov_b32 v%d, v%d" % (a1, a0), "v_mov_b32 v%d, v%d" % (b1, b0), 1,
                "v_permlane32_swap_b32 v%d, v%d" % (a0, a1), "v_permlane32_swap_b32 v%d, v%d" % (b0, b1)]
        return out

    def stats_hooks(self, s0, hf, scale, kv, j1, gi, hooks, pre, post):
        s1, bb = self.stats_stage1(s0, hf)
        hooks.setdefault(j1, []).append(lambda: self.side.extend(s1))
        pre.setdefault(gi, []).append(bb)
        post.setdefault(gi, []).append(lambda: self.side.extend(self.stats_stage2(hf, scale, kv)))

    def stats_startup(self):
        b = self.b
        I = b.I
        t = vT
        I("v_mul_f32 v%d, 0x3b000000, v%d" % (t + 1, vS1))
        I("v_cndmask_b32 v%d, v%d, v%d, s[%d:%d]" % (t, vS2, vS2 + 1, sM1, sM1 + 1))
        I("v_cndmask_b32 v%d, v%d, v%d, s[%d:%d]" % (t, t, vS2 + 2, sM2, sM2 + 1))
        I("v_cndmask_b32 v%d, v%d, v%d, s[%d:%d]" % (t, t, vS2 + 3, sM3, sM3 + 1))
        I("v_mul_f32 v%d, 0x3b000000, v%d" % (t, t))
        I("v_fma_f32 v%d, -v%d, v%d, v%d" % (t, t + 1, t + 1, t))
        I("v_max_f32 v%d, 0, v%d" % (t, t))
        I("v_add_f32 v%d, 0x3727c5ac, v%d" % (t, t))
        I("v_rsq_f32 v%d, v%d" % (t + 2, t))
        I("v_lshlrev_b32 v%d, 1, v%d" % (t + 4, vSW))
        I("v_mul_f32_e64 v%d, -v%d, v%d" % (t + 3, t + 1, t + 2))
        I("v_subrev_u32 v%d, 0x%x, v%d" % (t + 4, L_STA - 512, t + 4))
        I("s_mov_b64 exec, s[%d:%d]" % (sDIAG, sDIAG + 1))
        I("ds_write_b32 v%d, v%d" % (vSW, t + 2))
        I("ds_write_b32 v%d, v%d offset:256" % (vSW, t + 3))
        I("ds_write_b64 v%d, v[%d:%d]" % (t + 4, t + 2, t + 3))
        I("s_mov_b64 exec, -1")
        b.wait(lg=0)
        I("s_barrier")

    def phi_pairs(self, pairs):
        I = self.I
        for c0 in range(0, len(pairs), 4):
            grp = pairs[c0:c0 + 4]
            for k, (t, d) in enumerate(grp):
                I("v_pk_mul_f32 %s, %s, %s %s" % (p2(vT + 2 * k), p2(t), p2(vK), K_L2E))
            for k, (t, d) in enumerate(grp):
                I("v_exp_f32_e64 v%d, v%d clamp" % (vT + 2 * k, vT + 2 * k))
                I("v_max_f32 v%d, v%d, v%d" % (t, vK + 1, t))
                I("v_exp_f32_e64 v%d, v%d clamp" % (vT + 2 * k + 1, vT + 2 * k + 1))
                I("v_max_f32 v%d, v%d, v%d" % (t + 1, vK + 1, t + 1))
            for k, (t, d) in enumerate(grp):
                I("v_pk_add_f32 %s, %s, %s" % (p2(t), p2(t), p2(vT + 2 * k)))
            for k, (t, d) in enumerate(grp):
                I("v_cvt_pk_bf16_f32 v%d, v%d, v%d" % (d, t, t + 1))

    def kv_epilogue(self, hf, ra, rb):
        I = self.I
        K, V = vACC + 8 * hf, vACC + 16 + 8 * hf
        for j in range(4):
            I("v_pk_fma_f32 %s, %s, %s, %s op_sel:[0,0,1] op_sel_hi:[1,1,1]" % (p2(vT + 2 * j), p2(rb + 2 * j), p2(vCSK), p2(vK)))
            I("v_pk_mul_f32 %s, %s, %s" % (p2(vT + 8 + 2 * j), p2(rb + 2 * j), p2(vCSV)))
        for j in range(4):
            I("v_pk_fma_f32 %s, %s, %s, %s" % (p2(K + 2 * j), p2(ra + 2 * j), p2(K + 2 * j), p2(vT + 2 * j)))
            I("v_pk_fma_f32 %s, %s, %s, %s" % (p2(V + 2 * j), p2(ra + 2 * j), p2(V + 2 * j), p2(vT + 8 + 2 * j)))
        for j in range(4):
            I("v_cvt_pk_bf16_f32 v%d, v%d, v%d" % (V + j, V + 2 * j, V + 2 * j + 1))
        self.phi_pairs([(K + 2 * j, K + j) for j in range(4)])

    def startup(self):
        b = self.b
        I = b.I
        i_, g_, l3, l7, q0, tc = vT + 2, vT + 3, vT + 6, vT + 7, vT + 8, vT + 9
        I("s_cmp_ge_u32 s2, 256")
        I("s_cbranch_scc1 L_end")
        I("s_load_dwordx4 s[4:7], s[0:1], 0")
        I("s_load_dwordx2 s[20:21], s[0:1], 64")
        I("s_load_dwordx2 s[8:9], s[0:1], 16")
        I("s_load_dwordx4 s[12:15], s[0:1], 32")
        I("s_load_dwordx4 s[16:19], s[0:1], 48")
        I("s_getpc_b64 s[90:91]")
        b.label("L_pc")
        I("v_lshrrev_b32 v%d, 6, v0" % vT)
        I("v_and_b32 v0, 63, v0")
        I("v_readfirstlane_b32 s%d, v%d" % (sW, vT))
        I("s_lshr_b32 s%d, s2, 3" % (sT + 1))
        I("s_lshl_b32 s%d, s%d, 2" % (sT + 3, sT + 1))
        I("s_add_u32 s%d, s%d, s%d" % (sT + 3, sT + 3, sW))
        I("s_and_b32 s%d, s%d, 31" % (sT, sT + 3))
        I("s_lshl_b32 s%d, s%d, 11" % (sT, sT))
        I("v_lshlrev_b32 v%d, 7, v0" % vTCH)
        I("v_add_u32 v%d, s%d, v%d" % (vT, sT, vTCH))
        I("v_min_u32 v%d, L_end-L_pc, v%d" % (vT, vT))
        I("s_mov_b64 exec, 0xffff")
        I("global_load_dword v%d, v%d, s[90:91]" % (vDUM, vT))
        I("s_mov_b64 exec, -1")
        I("s_and_b32 s%d, s2, 7" % sROT)
        I("s_and_b32 s%d, s%d, 7" % (sC, sT + 1))
        I("s_lshr_b32 s%d, s%d, 3" % (sQ, sT + 1))
        I("s_lshl_b32 s%d, s%d, 2" % (sT, sROT))
        I("s_add_u32 s%d, s%d, s%d" % (sRG, sT, sQ))
        I("s_lshl_b32 s%d, s%d, 16" % (sRG64, sRG))
        I("s_lshl_b32 s%d, s%d, 11" % (sW2K, sW))
        I("v_lshrrev_b32 v%d, 4, v0" % g_)
        I("v_and_b32 v%d, 15, v0" % i_)
        tw, tx = vT + 12, vT + 13
        I("s_mul_i32 s%d, s%d, %d" % (sT + 2, sT + 3, 4 * 3072))
        I("v_lshlrev_b32 v%d, 10, v0" % tx)
        I("v_add_u32 v%d, s%d, v%d" % (tw, sT + 2, tx))
        I("s_lshl_b32 s%d, s%d, 18" % (sT + 2, sROT))
        I("s_lshl_b32 s%d, s%d, 11" % (sT, sT + 3))
        I("s_add_u32 s%d, s%d, s%d" % (sT, sT, sT + 2))
        I("v_add_u32 v%d, s%d, v%d" % (tx, sT, tx))
        I("v_lshrrev_b32 v%d, 3, v0" % l3)
        I("v_and_b32 v%d, 7, v0" % l7)
        I("v_xor_b32 v%d, v%d, v%d" % (vT + 4, l7, g_))
        I("v_lshlrev_b32 v%d, 4, v%d" % (vT + 4, vT + 4))
        I("v_lshl_add_u32 v%d, v%d, 10, v%d" % (vT + 4, l3, vT + 4))
        I("s_lshl_b32 s%d, s%d, 14" % (sT + 1, sW))
        I("v_add_u32 v%d, s%d, v%d" % (vXS0, sT + 1, vT + 4))
        I("v_xor_b32 v%d, 64, v%d" % (vXS1, vXS0))
        I("v_add_u32 v%d, 7168, v%d" % (vXS1, vXS1))
        I("v_and_b32 v%d, 1, v%d" % (vT + 4, g_))
        I("v_lshlrev_b32 v%d, 1, v%d" % (vT + 4, vT + 4))
        I("v_xor_b32 v%d, v%d, v%d" % (q0, l7, vT + 4))
        I("v_lshlrev_b32 v%d, 4, v%d" % (q0, q0))
        I("s_and_b32 s%d, s%d, 1" % (sT + 1, sW))
        I("s_lshl_b32 s%d, s%d, 6" % (sT + 1, sT + 1))
        I("v_xor_b32 v%d, s%d, v%d" % (vT + 4, sT + 1, q0))
        I("s_lshl_b32 s%d, s%d, 3" % (sT + 1, sW))
        I("v_add_u32 v%d, s%d, v%d" % (vT + 5, sT + 1, l3))
        I("v_mul_u32_u24 v%d, 3072, v%d" % (vT + 5, vT + 5))
        I("v_add_u32 v%d, v%d, v%d" % (vWS, vT + 4, vT + 5))
        sXO, sWO_, sRB = sAB, sAO, 93
        I("s_lshl_b32 s%d, s%d, 7" % (sWO_, sC))
        I("v_add_u32 v%d, s%d, v%d" % (vWS, sWO_, vWS))
        I("s_mul_i32 s%d, s%d, 3072" % (sRB, sW))
        I("s_add_u32 s%d, s%d, 0x%x" % (sRB, sRB, L_RING))
        I("s_lshl_b32 s%d, s%d, 7" % (sXO, sROT))
        I("s_mul_i32 s%d, s%d, %d" % (sWO_, sROT, 64 * 3072))
        if self.diag:
            I("v_mov_b32 v%d, 0" % vSTAMP)
        b.wait(lg=0)
        self.stamp("start")
        I("s_add_u32 s88, s%d, 0x%x" % (S_WS, WS_EP))
        I("s_addc_u32 s89, s%d, 0" % (S_WS + 1))
        I("s_load_dword s%d, s[88:89], 0" % sEP)
        self.srd(R_WQ, S_WQ, 512 * 3072)
        I("s_add_u32 s%d, s%d, s%d" % (R_X, S_X, sRG64))
        I("s_addc_u32 s%d, s%d, 0" % (R_X + 1, S_X + 1))
        I("s_and_b32 s%d, s%d, 0xffff" % (R_X + 1, R_X + 1))
        I("s_mov_b32 s%d, 0x10000" % (R_X + 2))
        I("s_mov_b32 s%d, 0x20000" % (R_X + 3))
        tokA, tokW = {}, {}

        def issue_thunks(ks):
            th = []
            if ks % 2 == 0:
                ds = ks // 2

                def a0():
                    I("s_add_u32 m0, s%d, 0x%x" % (sW2K, ds * 8192))
                    tokA[ds] = [I("buffer_load_dwordx4 v%d, s[%d:%d], s%d offen lds" % (vXS0, R_X, R_X + 3, sXO))]

                def a1():
                    tokA[ds].append(I("buffer_load_dwordx4 v%d, s[%d:%d], s%d offen offset:1024 lds" % (vXS1, R_X, R_X + 3, sXO)))
                    I("s_add_u32 s%d, s%d, 128" % (sXO, sXO))
                    I("s_and_b32 s%d, s%d, 0x380" % (sXO, sXO))
                th += [a0, a1]
            for p in range(3):
                def w(p=p):
                    if p == 0:
                        I("s_add_u32 m0, s%d, 0x%x" % (sRB, (ks % 5) * 12288))
                        tokW[ks] = []
                    tokW[ks].append(I("buffer_load_dwordx4 v%d, s[%d:%d], s%d offen offset:%d lds" % (
                        vWS, R_WQ, R_WQ + 3, sWO_, p * 1024)))
                    if p == 2:
                        I("s_add_u32 s%d, s%d, %d" % (sWO_, sWO_, 32 * 3072))
                        if ks % 2 == 1:
                            I("s_cmp_eq_u32 s%d, %d" % (sWO_, 512 * 3072))
                            I("s_cselect_b32 s%d, 0, s%d" % (sWO_, sWO_))
                th.append(w)
            return th

        if env("T0", 1):
            self.srd(R_PK, S_X, 2048 * 1024)
            for ptr, srd, v, mask in ((S_WQ, R_WQ, tw, 0xfff), (S_X, R_PK, tx, 3)):
                I("s_sub_u32 s%d, 0x180, s%d" % (sT, ptr))
                I("s_and_b32 s%d, s%d, 0x380" % (sT, sT))
                I("s_mov_b64 exec, 0x%x" % mask)
                I("buffer_load_dword v%d, v%d, s[%d:%d], s%d offen" % (vDUM, v, srd, srd + 3, sT))
            I("s_mov_b64 exec, -1")
        NFIRST = env("NFIRST", 2)
        for ks in range(NFIRST):
            for th in issue_thunks(ks):
                th()
        self.stamp("first")
        I("s_getreg_b32 s%d, hwreg(HW_REG_XCC_ID, 0, 4)" % sXCC)
        I("s_mov_b32 s%d, 0x100000" % sSPIN)
        self.srd(R_WS, S_WS, WS_SIZE)
        self.srd(R_OUT, S_OUT, 2048 * 1024)
        I("v_lshlrev_b32 v%d, 4, v0" % vL16)
        I("v_lshlrev_b32 v%d, 2, v0" % vL4)
        I("s_lshl_b32 s%d, s%d, 10" % (sW1K, sW))
        I("s_lshl_b32 s%d, s%d, 2" % (sT, sC))
        I("s_add_u32 s%d, s%d, s%d" % (sT, sT, sW))
        I("s_mul_i32 s%d, s%d, %d" % (sKV, sT, KVH))
        I("s_add_u32 s%d, s%d, 0x%x" % (sKV, sKV, WS_KV))
        I("v_mov_b32 v%d, 0" % vC2)
        I("s_mul_i32 s%d, s%d, 160" % (sT + 1, sRG))
        I("s_add_u32 s%d, s%d, s%d" % (sT + 1, sT + 1, sKV))
        I("s_mov_b32 exec_hi, 0xff")
        ztok = I("buffer_store_dword v%d, v%d, %s, s%d offen sc1" % (vC2, vL4, self.ws(), sT + 1))
        I("s_mov_b64 exec, -1")
        I("s_mul_i32 s%d, s%d, %d" % (sPK, sT, PKW))
        I("s_lshl_b32 s%d, s%d, 7" % (sFL, sRG))
        I("s_lshl_b32 s%d, s%d, 12" % (sR1, sC))
        I("s_add_u32 s%d, s%d, 0x%x" % (sR1, sR1, WS_R2))
        I("s_add_u32 s%d, s%d, 0x%x" % (sFL, sFL, WS_FL))
        I("s_lshl_b32 s%d, s%d, 2" % (sMYF, sT))
        I("s_add_u32 s%d, s%d, s%d" % (sMYF, sMYF, sFL))
        I("s_lshl_b32 s%d, s%d, 14" % (sSTC, sRG))
        I("s_add_u32 s%d, s%d, 0x%x" % (sSTC, sSTC, WS_ST))
        I("s_lshl_b32 s%d, s%d, 8" % (sSTP, sT))
        I("s_add_u32 s%d, s%d, s%d" % (sSTP, sSTP, sSTC))
        I("s_add_u32 s%d, s%d, s%d" % (sSTC, sSTC, sW2K))
        I("s_mul_i32 s%d, s%d, %d" % (sRGH, sRG, HSZ))
        I("s_lshl_b32 s%d, s%d, 12" % (sSTO, sC))
        I("s_lshl_b32 s%d, s%d, 9" % (sT + 1, sW))
        I("s_add_u32 s%d, s%d, s%d" % (sSTO, sSTO, sT + 1))
        I("s_lshl_b32 s%d, s%d, 5" % (sOUT, sT))
        I("s_mul_i32 s%d, s%d, 3" % (sT, sT))
        for t in range(3):
            I("s_add_u32 s%d, s%d, %d" % (sT + 1, sT, t))
            I("s_lshr_b32 s%d, s%d, 2" % (sT + 2, sT + 1))
            I("s_lshl_b32 s%d, s%d, 12" % (sT + 2, sT + 2))
            I("s_and_b32 s%d, s%d, 3" % (sT + 3, sT + 1))
            I("s_lshl_b32 s%d, s%d, 9" % (sT + 3, sT + 3))
            I("s_add_u32 s%d, s%d, s%d" % (sT + 2, sT + 2, sT + 3))
            I("s_add_u32 s%d, s%d, s%d" % (sT + 2, sT + 2, sRGH))
            I("s_cmp_lt_u32 s%d, 86" % (sT + 1))
            I("s_cselect_b32 s%d, s%d, 0x%x" % (sH0 + t, sT + 2, OOB))
            I("s_cselect_b32 s%d, 0, 0x%x" % (sT + 2, OOB))
            I("v_add_u32 v%d, s%d, v%d" % (vW1 + t, sT + 2, vL16))
        I("v_add_u32 v%d, 0x10000, v%d" % (vA1, vL16))
        I("v_add_u32 v%d, s%d, v%d" % (vDMA, sW1K, vL16))
        I("v_add_u32 v%d, s%d, v%d" % (vDM2, sW2K, vL16))
        I("v_and_b32 v%d, 0x7c, v%d" % (vFL, vL4))
        I("v_lshrrev_b32 v%d, 1, v%d" % (vT + 4, g_))
        I("v_lshlrev_b32 v%d, 8, v%d" % (vT + 4, vT + 4))
        I("v_lshl_add_u32 v%d, v%d, 4, v%d" % (vT + 4, i_, vT + 4))
        I("v_and_b32 v%d, 1, v%d" % (vT + 5, g_))
        I("v_lshl_add_u32 v%d, v%d, 11, v%d" % (vST, vT + 5, vT + 4))
        I("v_lshlrev_b32 v%d, 4, v%d" % (vSTA, g_))
        I("v_add_u32 v%d, 0x%x, v%d" % (vSTA, L_STA, vSTA))
        I("v_lshlrev_b32 v%d, 3, v%d" % (vSTQ, i_))
        I("v_add_u32 v%d, 0x%x, v%d" % (vSTQ, L_STA + 512, vSTQ))
        I("s_lshl_b32 s%d, s%d, 6" % (sT, sW))
        I("s_add_u32 s%d, s%d, 0x%x" % (sT, sT, L_STA))
        I("v_lshlrev_b32 v%d, 2, v%d" % (vSW, i_))
        I("v_add_u32 v%d, s%d, v%d" % (vSW, sT, vSW))
        I("v_lshrrev_b32 v%d, 3, v%d" % (vT + 4, i_))
        I("v_lshlrev_b32 v%d, 10, v%d" % (vT + 4, vT + 4))
        I("v_and_b32 v%d, 7, v%d" % (vT + 5, i_))
        I("v_lshl_add_u32 v%d, v%d, 7, v%d" % (vT + 4, vT + 5, vT + 4))
        I("v_lshrrev_b32 v%d, 1, v%d" % (vT + 5, i_))
        I("v_xor_b32 v%d, v%d, v%d" % (vT + 5, vT + 5, g_))
        I("v_lshl_add_u32 v%d, v%d, 4, v%d" % (vX0, vT + 5, vT + 4))
        I("v_xor_b32 v%d, 64, v%d" % (vX1, vX0))
        I("v_add_u32 v%d, s%d, v%d" % (vOW0, sW2K, vX0))
        I("v_add_u32 v%d, s%d, v%d" % (vOW1, sW2K, vX1))
        I("v_bfe_u32 v%d, v0, 2, 2" % (vT + 4))
        I("v_bfe_u32 v%d, v0, 3, 1" % (vT + 5))
        I("v_lshlrev_b32 v%d, 1, v%d" % (vT + 5, vT + 5))
        I("v_bfe_u32 v%d, v0, 4, 1" % (vT + 10))
        I("v_lshl_add_u32 v%d, v%d, 2, v%d" % (vT + 5, vT + 10, vT + 5))
        I("v_bfe_u32 v%d, v0, 1, 1" % (vT + 10))
        I("v_xor_b32 v%d, v%d, v%d" % (vT + 5, vT + 5, vT + 10))
        I("v_lshlrev_b32 v%d, 4, v%d" % (vT + 5, vT + 5))
        I("v_lshl_add_u32 v%d, v%d, 7, v%d" % (tc, vT + 4, vT + 5))
        I("v_and_b32 v%d, 1, v0" % (vT + 10))
        I("v_lshl_add_u32 v%d, v%d, 3, v%d" % (tc, vT + 10, tc))
        I("s_lshl_b32 s%d, s%d, 5" % (sT + 1, sW))
        I("v_xor_b32 v%d, s%d, v%d" % (vT + 4, sT + 1, tc))
        I("v_mul_u32_u24 v%d, 3072, v%d" % (vT + 5, g_))
        I("v_add_u32 v%d, v%d, v%d" % (vT + 4, vT + 4, vT + 5))
        I("v_add_u32 v%d, 0x%x, v%d" % (vTR, L_RING, vT + 4))
        for k in range(4):
            I("v_mov_b32 v%d, 0x3f803f80" % (vONE + k))
        I("v_mov_b32 v%d, 0x3fb8aa3b" % vK)
        I("v_mov_b32 v%d, 0x358637bd" % (vK + 1))
        I("s_mul_i32 s%d, s%d, 2560" % (sT, sW))
        I("s_add_u32 s%d, s%d, 0x%x" % (sT, sT, L_KVI))
        I("v_add_u32 v%d, s%d, v%d" % (vKVL, sT, vL4))
        for r in range(4):
            I("v_add_u32 v%d, %d, v0" % (vT + 4, 64 * r))
            I("v_mul_u32_u24 v%d, 4370, v%d" % (vT + 5, vT + 4))
            I("v_lshrrev_b32 v%d, 16, v%d" % (vT + 5, vT + 5))
            I("v_add_u32 v%d, v%d, v%d" % (vT + 4, vT + 4, vT + 5))
            I("v_lshlrev_b32 v%d, 2, v%d" % (vT + 4, vT + 4))
            I("v_add_u32 v%d, s%d, v%d" % (vPOS + r, sT, vT + 4))
        I("v_lshrrev_b32 v%d, 1, v%d" % (vT + 4, g_))
        I("v_add_u32 v%d, v%d, v%d" % (vT + 4, vT + 4, g_))
        I("v_lshlrev_b32 v%d, 4, v%d" % (vT + 4, vT + 4))
        I("s_add_u32 s%d, s%d, %d" % (sT, sT, 276 * 4))
        I("v_add_u32 v%d, s%d, v%d" % (vZP, sT, vT + 4))
        I("v_cmp_eq_u32 vcc, 15, v%d" % i_)
        I("v_cndmask_b32 v%d, 0, 1.0, vcc" % (vT + 4))
        b.wait(lg=0)
        for k in range(5):
            I("ds_write_b32 v%d, v%d offset:%d" % (vKVL, vT + 4, 256 * k))
        I("s_xor_b32 s%d, s%d, 0x80000000" % (sTAG, sEP))
        I("s_and_b32 s%d, s%d, 0xfffffff0" % (sTAG, sTAG))
        I("s_mov_b32 s%d, 0x358637bd" % sEPS)
        for r, val in ((sM1, 0x22222222), (sM2, 0x44444444), (sM3, 0x88888888)):
            I("s_mov_b32 s%d, 0x%x" % (r, val))
            I("s_mov_b32 s%d, 0x%x" % (r + 1, val))
        I("s_mov_b32 s%d, 0x00f0000f" % sDIAG)
        I("s_mov_b32 s%d, 0xf0000f00" % (sDIAG + 1))
        I("v_lshlrev_b32 v%d, 10, v%d" % (vT + 4, g_))
        I("s_lshl_b32 s%d, s%d, 12" % (sT, sW))
        I("v_add_u32 v%d, s%d, v%d" % (vT + 4, sT, vT + 4))
        for t in range(4):
            I("v_xor_b32 v%d, %d, v%d" % (vCS1 + 4 + t, 32 * t, tc))
            I("v_add_u32 v%d, v%d, v%d" % (vCS1 + 4 + t, vCS1 + 4 + t, vT + 4))
            I("v_add_u32 v%d, 0x%x, v%d" % (vCS1 + 4 + t, L_PACK, vCS1 + 4 + t))
        I("v_lshlrev_b32 v%d, 10, v%d" % (vT + 14, i_))
        I("v_lshl_add_u32 v%d, v%d, 3, v%d" % (vT + 14, g_, vT + 14))
        I("s_add_u32 s%d, s%d, s%d" % (sT, sTAG, sXCC))
        I("v_mov_b32 v%d, s%d" % (vT + 15, sT))
        for ks in range(NFIRST, 5):
            for th in issue_thunks(ks):
                th()
        ptk = self.pack_load(l3, q0)
        I("s_mov_b64 exec, 1")
        I("buffer_load_dword v%d, off, %s, s%d sc1" % (vDUM, self.ws(), sFL))
        I("s_mov_b64 exec, -1")
        self.stamp("setup")

        tmp = [self.free.pop() for _ in range(6)]
        assert all(s[0] == "v" for s in tmp)
        cK, cV = tmp[4][1], tmp[5][1]
        res_toks = []
        KP, KANN, KI = env("KP", 4), env("KANN", 9), env("KI", 13)
        for ks in range(17):
            fill = []
            if ks < 16:
                b.wait(tokW[ks], tokA[ks // 2])
                I("s_barrier")
                if ks == 0:
                    self.stamp("w0")
                if ks == KANN:
                    assert b.vm_done > pst[-1][1] and b.vm_done > ztok[1]
                    lx = b.newlabel("Lann")
                    I("s_cmp_lg_u32 s%d, 0" % sW)
                    I("s_cbranch_scc1 %s" % lx)
                    I("s_lshl_b32 s%d, s%d, 7" % (sT, sRG))
                    I("s_add_u32 s%d, s%d, s%d" % (sT, sT, sR1))
                    I("s_mov_b64 exec, 1")
                    self.Inc("buffer_store_dword v%d, off, %s, s%d sc1" % (vT + 15, self.ws(), sT))
                    I("s_mov_b64 exec, -1")
                    b.label(lx)
                for p in range(3):
                    s = self.free.pop(0)
                    self.wslot[("qkv", 0, (32 + ks, 2 * ks, 2 * ks + 1)[p])] = (s, None)
                    for hh in range(2):
                        fill.append(lambda s=s, hh=hh, p=p: I("ds_read_b64_tr_b16 %s, v%d offset:%d" % (
                            vr(s[1] + 2 * hh, 2, s[0]), vTR, (ks % 5) * 12288 + p * 1024 + hh * 512)))
                fb = vAF + (ks & 1) * 20
                ds, h = ks // 2, ks & 1
                for rt in range(4):
                    fill.append(lambda rt=rt: I("ds_read_b128 %s, v%d offset:%d" % (
                        vr(fb + 4 * rt, 4), (vX0, vX1)[h], ds * 8192 + rt * 2048)))
                fill.append(lambda: I("ds_read_b128 %s, v%d offset:%d" % (vr(fb + 16, 4), (vOW0, vOW1)[h], ds * 8192)))
                if ks >= 1 and ks + 4 < 16:
                    for k, th in enumerate(issue_thunks(ks + 4)):
                        fill.insert(2 * k + 1, th)
                if ks == 11:
                    def resid():
                        I("s_mov_b32 s%d, s%d" % (sT, sOUT))
                        for rt in range(4):
                            res_toks.append(I("buffer_load_dwordx2 %s, v%d, s[%d:%d], s%d offen" % (
                                p2(vAB + 2 * rt), vT + 14, R_X, R_X + 3, sT)))
                            if rt < 3:
                                I("s_add_u32 s%d, s%d, 16384" % (sT, sT))
                    fill.append(resid)
                if ks == KI:
                    fill.append(self.r1_issue)
                if ks == KP:
                    def prd():
                        b.wait(ptk)
                        for t in range(4):
                            for hh in range(2):
                                I("ds_read_b64_tr_b16 %s, v%d offset:%d" % (p2(tmp[t][1] + 2 * hh), vCS1 + 4 + t, hh * 512))
                    fill.append(prd)
            mfs = []
            if ks >= 1:
                k1 = ks - 1
                fb1 = vAF + (k1 & 1) * 20
                c0 = "0" if k1 == 0 else None
                wk, wv = [slot_r(self.wslot[("qkv", 0, k)][0]) for k in (2 * k1, 2 * k1 + 1)]
                one = vr(vONE, 4)
                for rt in range(4):
                    mfs.append(self.mf(vACC + 4 * rt, vr(fb1 + 4 * rt, 4), wk, c0))
                    mfs.append(self.mf(vACC + 16 + 4 * rt, vr(fb1 + 4 * rt, 4), wv, c0))
                own = vr(fb1 + 16, 4)
                mfs += [self.mf(vS1, one, own, c0), self.mf(vS2, own, own, c0),
                        self.mf(cK, one, wk, c0), self.mf(cV, one, wv, c0)]
            while mfs or fill:
                if fill:
                    fill.pop(0)()
                if len(fill) > len(mfs) and fill:
                    fill.pop(0)()
                if mfs:
                    mfs.pop(0)()
            b.wait(lg=0)
            if ks == KP:
                pst = [I("buffer_store_dwordx4 %s, v%d, %s, s%d offen sc1" % (slot_r(tmp[t]), vL16, self.ws(), 80 + t))
                       for t in range(4)]
        b.wait(res_toks)
        for rt in range(4):
            for k in range(2):
                s = vAB + 2 * rt + k
                I("v_lshlrev_b32 v%d, 16, v%d" % (vX + 4 * rt + 2 * k, s))
                I("v_and_b32 v%d, 0xffff0000, v%d" % (vX + 4 * rt + 2 * k + 1, s))
        I("v_mov_b32 v%d, v%d" % (vOA, vT + 14))
        self.stamp("kvpass")
        self.r1_check()
        self.stats_startup()
        t1 = []
        for rt in range(4):
            t1.append(I("ds_read_b128 %s, v%d offset:%d" % (vr(vAF + 4 * rt, 4), vSTA, rt * 64)))
            t1.append(I("ds_read_b128 %s, v%d offset:%d" % (vr(vAF + 16 + 4 * rt, 4), vSTA, 256 + rt * 64)))
        for rt in range(4):
            t1.append(I("ds_read_b64 %s, v%d offset:%d" % (p2(vAB + 2 * rt), vSTQ, rt * 128)))
        for k in range(2):
            I("v_mov_b32 v%d, v%d" % (vCSK + k, cK))
            I("v_mov_b32 v%d, v%d" % (vCSV + k, cV))
        self.free += tmp
        I("v_add_u32 v%d, s%d, v%d" % (vSB, sW2K, vL4))
        I("v_add_u32 v%d, 0x%x, v%d" % (vEX, L_EX, vL4))
        I("s_lshl_b32 s%d, s%d, 8" % (sT, sW))
        I("v_add_u32 v%d, s%d, v%d" % (vSW, sT, vEX))
        I("v_and_b32 v%d, 15, v0" % vT)
        I("v_lshrrev_b32 v%d, 5, v0" % (vT + 1))
        I("v_lshlrev_b32 v%d, 6, v%d" % (vT + 1, vT + 1))
        I("v_lshl_add_u32 v%d, v%d, 2, v%d" % (vSWR, vT, vT + 1))
        I("s_add_u32 s%d, s%d, 0x%x" % (sT, sT, L_STA))
        I("v_add_u32 v%d, s%d, v%d" % (vSWR, sT, vSWR))
        self.bg_w = env("W_KVE", 14)
        b.wait(t1)
        I("s_lshl_b32 s%d, s%d, 8" % (sT, sW))
        I("v_add_u32 v%d, s%d, v%d" % (vSTA, sT, vSTA))
        for hf in range(2):
            self.kv_epilogue(hf, vAF + 8 * hf, vAF + 16 + 8 * hf)

    def pack_load(self, l3, q0):
        b = self.b
        I = b.I
        dst = 80
        uid, src, strd = sT, sT + 1, sT + 2
        I("s_lshl_b32 s%d, s%d, 2" % (uid, sRG))
        I("s_add_u32 s%d, s%d, s%d" % (uid, uid, sW))
        lw1, lw2, lnone, lgo = [b.newlabel("Lpk") for _ in range(4)]
        I("s_mul_i32 s88, s%d, %d" % (sC, 4 * PKW))
        I("s_mov_b32 s%d, 0x20000" % (R_PK + 3))

        def setsrd(ptr, size, stride):
            I("s_mov_b32 s%d, s%d" % (R_PK, ptr))
            I("s_and_b32 s%d, s%d, 0xffff" % (R_PK + 1, ptr + 1))
            I("s_mov_b32 s%d, %d" % (R_PK + 2, size))
            I("s_movk_i32 s%d, %d" % (strd, stride))

        def simple(f0):
            I("s_lshl_b32 s%d, s%d, 15" % (src, uid))
            I("s_lshl_b32 s89, s%d, 7" % sC)
            I("s_add_u32 s%d, s%d, s89" % (src, src))
            I("s_add_u32 s89, s%d, %d" % (uid, f0))
            I("s_lshl_b32 s89, s89, 10")
            I("s_add_u32 s88, s88, s89")
            for t in range(4):
                I("s_add_u32 s%d, s88, %d" % (dst + t, t * PKW))
            I("s_branch %s" % lgo)

        I("s_cmp_ge_u32 s%d, 16" % uid)
        I("s_cbranch_scc1 %s" % lw1)
        setsrd(S_WO, 512 * 1024, 1024)
        simple(F_WO)
        b.label(lw1)
        I("s_cmp_ge_u32 s%d, 64" % uid)
        I("s_cbranch_scc1 %s" % lw2)
        I("s_sub_u32 s%d, s%d, 16" % (uid, uid))
        I("s_mul_i32 s89, s%d, 43" % uid)
        I("s_lshr_b32 s89, s89, 7")
        I("s_mul_i32 s92, s89, 3")
        I("s_sub_u32 s92, s%d, s92" % uid)
        setsrd(S_W1, 512 * 2752, 2752)
        I("s_mul_i32 s%d, s89, %d" % (src, 32 * 2752))
        I("s_mul_i32 s79, s%d, 384" % sC)
        I("s_add_u32 s%d, s%d, s79" % (src, src))
        I("s_lshl_b32 s79, s92, 7")
        I("s_add_u32 s%d, s%d, s79" % (src, src))
        I("s_mul_i32 s89, s89, 3072")
        I("s_add_u32 s88, s88, s89")
        I("s_add_u32 s88, s88, %d" % (F_W1 * 1024))
        for t in range(4):
            I("s_lshl_b32 s79, s92, 2")
            I("s_add_u32 s79, s79, %d" % t)
            I("s_mul_i32 s89, s79, 43")
            I("s_lshr_b32 s89, s89, 7")
            I("s_mul_i32 s%d, s89, %d" % (dst + t, PKW - 3072))
            I("s_lshl_b32 s79, s79, 10")
            I("s_add_u32 s%d, s%d, s79" % (dst + t, dst + t))
            I("s_add_u32 s%d, s%d, s88" % (dst + t, dst + t))
        I("s_mul_i32 s79, s%d, 3" % sC)
        I("s_add_u32 s79, s79, s92")
        I("s_cmp_ge_u32 s79, 22")
        I("s_cbranch_scc1 %s" % lnone)
        I("s_branch %s" % lgo)
        b.label(lw2)
        I("s_cmp_ge_u32 s%d, 107" % uid)
        I("s_cbranch_scc1 %s" % lnone)
        I("s_sub_u32 s%d, s%d, 64" % (uid, uid))
        setsrd(S_W2, 1376 * 1024, 1024)
        simple(F_W2)
        b.label(lnone)
        setsrd(S_WQ, 0, 1024)
        I("s_mov_b32 s%d, 0" % src)
        for t in range(4):
            I("s_mov_b32 s%d, 0x%x" % (dst + t, OOB))
        b.label(lgo)
        I("v_mul_lo_u32 v%d, v%d, s%d" % (vT + 4, l3, strd))
        I("v_add_u32 v%d, v%d, v%d" % (vT + 10, vT + 4, q0))
        I("v_xor_b32 v%d, 64, v%d" % (vT + 5, q0))
        I("v_add_u32 v%d, v%d, v%d" % (vT + 11, vT + 4, vT + 5))
        I("s_lshl_b32 s%d, s%d, 3" % (strd, strd))
        I("s_lshl_b32 s89, s%d, 12" % sW)
        I("s_add_u32 m0, s89, 0x%x" % L_PACK)
        toks = []
        for q in range(4):
            toks.append(I("buffer_load_dwordx4 v%d, s[%d:%d], s%d offen lds" % (vT + 10 + (q & 1), R_PK, R_PK + 3, src)))
            if q < 3:
                I("s_add_u32 s%d, s%d, s%d" % (src, src, strd))
                I("s_add_u32 m0, m0, 1024")
        return toks

    def r1_issue(self):
        I = self.b.I
        a = vCS1 + 2
        I("v_and_b32 v%d, 7, v0" % a)
        I("v_subrev_u32 v%d, s%d, v%d" % (a, sC, a))
        I("v_lshlrev_b32 v%d, 12, v%d" % (a, a))
        I("s_lshl_b32 s%d, s%d, 7" % (sT, sRG))
        I("s_add_u32 s%d, s%d, s%d" % (sT, sT, sR1))
        I("v_add_u32 v%d, s%d, v%d" % (a, sT, a))
        I("v_add_u32 v%d, s%d, v%d" % (vT + 5, sR1, vTCH))
        I("v_cmp_gt_u32 vcc, 32, v0")
        I("v_cndmask_b32 v%d, v%d, v%d, vcc" % (a, a, vT + 5))
        self.r1_tok = I("buffer_load_dword v%d, v%d, %s, 0 offen sc1" % (vPOLL, a, self.ws()))

    def r1_check(self):
        b = self.b
        I = b.I
        lp, ld, lc = b.newlabel("Ltag"), b.newlabel("Ltagd"), b.newlabel("Ltagc")
        b.wait(self.r1_tok)
        I("s_branch %s" % lc)
        b.label(lp)
        self.Inc("buffer_load_dword v%d, v%d, %s, 0 offen sc1" % (vPOLL, vCS1 + 2, self.ws()))
        I("s_waitcnt vmcnt(0)")
        b.label(lc)
        I("v_subrev_u32 v%d, s%d, v%d" % (vPOLL, sTAG, vPOLL))
        I("v_cmp_gt_u32 vcc, 16, v%d" % vPOLL)
        I("s_cmp_eq_u64 vcc, exec")
        I("s_cbranch_scc1 %s" % ld)
        self.spin_guard(lp)
        b.label(ld)
        I("v_cmp_eq_u32 vcc, s%d, v%d" % (sXCC, vPOLL))
        I("s_cmp_eq_u32 vcc_hi, -1")
        I("s_cselect_b32 s%d, 1, 0" % sFAST)

    def touch_ox(self, layer):
        I = self.b.I
        I("s_and_b32 s%d, s%d, 1" % (sT + 2, sW))
        I("s_lshl_b32 s%d, s%d, 15" % (sT, sT + 2))
        I("s_add_u32 s%d, s%d, s%d" % (sT, sT, sRG64))
        I("s_add_u32 s%d, s%d, 0x%x" % (sT, sT, self.buf("X", 2 * layer)))
        I("s_mul_i32 s%d, s%d, %d" % (sT + 1, sT + 2, self.hstride("O")))
        I("s_add_u32 s%d, s%d, s%d" % (sT + 1, sT + 1, self.rgs("O")))
        I("s_add_u32 s%d, s%d, 0x%x" % (sT + 1, sT + 1, self.buf("O", layer)))
        I("s_bitcmp1_b32 s%d, 1" % sW)
        I("s_cselect_b32 s%d, s%d, s%d" % (sT, sT, sT + 1))
        I("s_lshl_b32 s%d, s%d, 12" % (sT + 1, sC))
        I("s_add_u32 s%d, s%d, s%d" % (sT, sT, sT + 1))
        I("s_mov_b32 exec_hi, 0")
        I("buffer_load_dword v%d, v%d, %s, s%d offen sc1" % (vDUM, vTCH, self.ws(), sT))
        I("s_mov_b32 exec_hi, -1")

    def touch_h(self, layer):
        I = self.b.I
        I("s_lshr_b32 s%d, s%d, 1" % (sT + 1, sW))
        I("s_mul_i32 s%d, s%d, %d" % (sT + 1, sT + 1, HSZ // 2 - 12288))
        I("s_mul_i32 s%d, s%d, 6144" % (sT + 2, sW))
        I("s_add_u32 s%d, s%d, s%d" % (sT + 1, sT + 1, sT + 2))
        I("s_mul_i32 s%d, s%d, 12288" % (sT + 2, sC))
        I("s_add_u32 s%d, s%d, s%d" % (sT + 1, sT + 1, sT + 2))
        I("s_add_u32 s%d, s%d, s%d" % (sT + 1, sT + 1, sRGH))
        I("s_add_u32 s%d, s%d, 0x%x" % (sT + 1, sT + 1, self.buf("H", layer)))
        I("s_cmp_lt_u32 s%d, 7" % sC)
        I("s_cselect_b32 s%d, s%d, 0x%x" % (sT + 1, sT + 1, OOB))
        I("s_mov_b32 exec_hi, 0xffff")
        I("buffer_load_dword v%d, v%d, %s, s%d offen sc1" % (vDUM, vTCH, self.ws(), sT + 1))
        I("s_mov_b32 exec_hi, -1")

    def kv_items(self, hf, seqs):
        items = []
        for ks in range(16):
            c0 = "0" if ks == 0 else None
            for r in range(2):
                def mfs(fr, ks=ks, r=r, c0=c0):
                    kk, kv_ = ("qkv", 0, 2 * ks), ("qkv", 0, 2 * ks + 1)
                    th = [self.mf(vACC + 8 * hf + 4 * r, fr, self.w_get(kk), c0),
                          self.mf(vACC + 16 + 8 * hf + 4 * r, fr, self.w_get(kv_), c0)]
                    if hf == 1 and r == 1:
                        th.append(lambda: (self.w_release(kk), self.w_release(kv_)))
                    return th
                a, off = self.frag_addr(seqs[ks // 2], r, ks & 1)
                items.append((a, off, seqs[ks // 2], mfs))
        self.pinned.update(seqs)
        return items

    def kv_finish(self, hf):
        b = self.b
        rd = [b.I("ds_read_b128 %s, v%d offset:%d" % (vr(vAF + 4 * k, 4), vSTA, (k & 1) * 64 + (k >> 1) * 128)) for k in range(4)]
        b.wait(rd)
        self.kv_epilogue(hf, vAF, vAF + 8)

    def attention(self, layer, xseqs):
        b = self.b
        I = self.I
        KVD, ZD = vS1, vS2
        one = vr(vONE, 4)
        self.bg_w = 0
        for p in range(2):
            c0 = "0" if p == 0 else None
            self.mf(KVD, vr(vACC + 8 * p, 4), vr(vACC + 16 + 8 * p, 4), c0)()
            self.mf(ZD, vr(vACC + 8 * p, 4), one, c0)()
        b.I("s_add_u32 s%d, s%d, %d" % (sKB, sKV, layer * 2560))
        b.I("s_and_b32 s%d, s%d, 1" % (sKB + 1, sRG))
        b.I("s_mul_i32 s%d, s%d, 1280" % (sKB + 1, sKB + 1))
        b.I("s_add_u32 s%d, s%d, s%d" % (sKB + 1, sKB + 1, sKB))
        for r in range(4):
            b.I("ds_write_b32 v%d, v%d" % (vPOS + r, KVD + r))
        b.I("s_mov_b32 exec_lo, 0x00010001")
        b.I("s_mov_b32 exec_hi, 0x00010001")
        b.I("ds_write_b128 v%d, %s" % (vZP, vr(ZD, 4)))
        b.I("s_mov_b64 exec, -1")
        rd = [b.I("ds_read_b32 v%d, v%d offset:%d" % (vT + k, vKVL, 256 * k)) for k in range(5)]
        for k in range(5):
            b.wait(rd[k])
            if k == 4:
                b.I("s_mov_b32 exec_hi, 0xffff")
            b.I("buffer_atomic_add_f32 v%d, v%d, %s, s%d offen offset:%d" % (vT + k, vL4, self.ws(), sKB + 1, k * 256))
        b.I("s_mov_b64 exec, -1")
        self.stamp("atom")
        if layer:
            self.touch_ox(layer)
        self.last_bg = self.clock
        self.bg_w = env("W_Q", [99, 99])[layer]
        items = []
        for ks in range(16):
            ds, h = ks // 2, ks & 1
            c0 = "0" if ks == 0 else None
            if layer:
                def keep(fr):
                    self.wq_reg = fr
                    return []
                items.append((vWQ, ks * 1024, None, keep))
            for rt in range(4):
                def mfs(fr, ks=ks, rt=rt, c0=c0):
                    w = self.w_get(("qkv", 0, 32 + ks)) if layer == 0 else self.wq_reg
                    th = [self.mf(vACC + 4 * rt, w, fr, c0)]
                    if layer == 0 and rt == 0:
                        th.append(self.mf(vCSQ, w, one, c0))
                    return th
                if layer == 0:
                    items.append(((vX0, vX1)[h], ds * 8192 + rt * 2048, None, mfs))
                else:
                    a, off = self.frag_addr(xseqs[rt >> 1][ds], rt & 1, h)
                    items.append((a, off, None, mfs))
        self.gemm(items, None, 9 if layer == 0 else 5)
        self.pinned = set()
        self.mine = self.seq - 1
        if layer == 0:
            b.I("s_lshl_b32 s%d, s%d, 14" % (sT, sW))
            b.I("s_add_u32 s%d, s%d, 0x%x" % (sT, sT, L_WQ))
            b.I("v_add_u32 v%d, s%d, v%d" % (vWQ, sT, vL16))
            for ks in range(16):
                b.I("ds_write_b128 v%d, %s offset:%d" % (vWQ, slot_r(self.wslot[("qkv", 0, 32 + ks)][0]), ks * 1024))
            b.wait(lg=0)
            for ks in range(16):
                self.w_release(("qkv", 0, 32 + ks))
        PQ = vACC + 16
        for rt in range(4):
            ab = vAB + 2 * rt
            for r in (0, 2):
                u = vT + 2 * ((rt * 2 + r // 2) % 8)
                I("v_pk_fma_f32 %s, %s, %s, %s op_sel:[0,1,1] op_sel_hi:[1,1,1]" % (p2(u), p2(vCSQ + r), p2(ab), p2(vK)))
        for rt in range(4):
            ab = vAB + 2 * rt
            for r in (0, 2):
                q_ = vACC + 4 * rt + r
                u = vT + 2 * ((rt * 2 + r // 2) % 8)
                I("v_pk_fma_f32 %s, %s, %s, %s op_sel:[0,0,0] op_sel_hi:[1,0,1]" % (p2(q_), p2(q_), p2(ab), p2(u)))
        self.phi_pairs([(vACC + 4 * rt + r, PQ + 2 * rt + r // 2) for rt in range(4) for r in (0, 2)])
        self.stamp("qpass")
        self.bg_w = 0
        self.w_burst(env("W_S1", [16, 16])[layer])
        b.I("v_add_u32 v%d, 0x400, v%d" % (vC2, vL16))
        b.I("v_cmp_gt_u32 vcc, 12, v0")
        b.I("v_mov_b32 v%d, 0x%x" % (vT, OOB))
        b.I("v_cndmask_b32 v%d, v%d, v%d, vcc" % (vC2, vT, vC2))
        b.I("s_add_u32 s%d, s%d, s%d" % (sT + 6, self.rgs("O"), sSTO))
        b.I("s_add_u32 s%d, s%d, 0x%x" % (sT + 6, sT + 6, self.buf("O", layer)))
        b.I("s_add_u32 s%d, s%d, %d" % (sT + 7, sT + 6, self.hstride("O")))
        lp, ld = b.newlabel("Lkv"), b.newlabel("Lkvd")
        b.label(lp)
        b.I("buffer_load_dwordx4 %s, v%d, %s, s%d offen sc1" % (vr(vT, 4), vL16, self.ws(), sKB))
        b.I("buffer_load_dwordx4 %s, v%d, %s, s%d offen offset:1280 sc1" % (vr(vT + 4, 4), vL16, self.ws(), sKB))
        b.I("buffer_load_dwordx4 %s, v%d, %s, s%d offen sc1" % (vr(vT + 8, 4), vC2, self.ws(), sKB))
        b.I("buffer_load_dwordx4 %s, v%d, %s, s%d offen offset:1280 sc1" % (vr(vT + 12, 4), vC2, self.ws(), sKB))
        b.wait(vm=0)
        for k in (0, 2, 8, 10):
            b.I("v_pk_add_f32 %s, %s, %s" % (p2(vT + k), p2(vT + k), p2(vT + k + 4)))
        b.I("v_cmp_eq_f32 vcc, 0x42000000, v%d" % (vT + 3))
        b.I("v_cmp_eq_f32 s[%d:%d], v%d, v%d" % (sT, sT + 1, vT + 11, vT + 3))
        b.I("s_and_b64 vcc, vcc, s[%d:%d]" % (sM3, sM3 + 1))
        b.I("s_and_b32 s%d, s%d, 0x888" % (sT, sT))
        b.I("s_xor_b32 s%d, s%d, 0x888" % (sT, sT))
        b.I("s_xor_b64 vcc, vcc, s[%d:%d]" % (sM3, sM3 + 1))
        b.I("s_or_b32 s%d, s%d, vcc_lo" % (sT, sT))
        b.I("s_or_b32 s%d, s%d, vcc_hi" % (sT, sT))
        b.I("s_cbranch_scc0 %s" % ld)
        self.spin_guard(lp)
        b.label(ld)
        self.stamp("kvsync")
        b.I("v_lshl_add_u32 v%d, v0, 4, v%d" % (vT + 4, vKVL))
        b.I("v_sub_u32 v%d, v%d, v%d" % (vT + 4, vT + 4, vL4))
        b.I("ds_write_b128 v%d, %s offset:1280" % (vT + 4, vr(vT, 4)))
        b.I("s_mov_b64 exec, 0xfff")
        b.I("ds_write_b128 v%d, %s offset:2304" % (vT + 4, vr(vT + 8, 4)))
        b.I("s_mov_b64 exec, -1")
        lz = b.I("ds_read_b128 %s, v%d offset:1280" % (vr(vT + 4, 4), vZP))
        lt = [b.I("ds_read_b32 v%d, v%d offset:1280" % (vT + 12 + r, vPOS + r)) for r in range(4)]
        b.wait(lz)
        I("v_cvt_pk_bf16_f32 v%d, v%d, v%d" % (vT + 10, vT + 4, vT + 5))
        I("v_cvt_pk_bf16_f32 v%d, v%d, v%d" % (vT + 11, vT + 6, vT + 7))
        NUM, DEN = vACC, vAF
        for rt in range(4):
            I("v_mfma_f32_16x16x16_bf16 %s, %s, %s, 0" % (vr(DEN + 4 * rt, 4), p2(vT + 10), p2(PQ + 2 * rt)))
        b.wait(lt)
        I("v_cvt_pk_bf16_f32 v%d, v%d, v%d" % (vT + 8, vT + 12, vT + 13))
        I("v_cvt_pk_bf16_f32 v%d, v%d, v%d" % (vT + 9, vT + 14, vT + 15))
        for rt in range(4):
            I("v_mfma_f32_16x16x16_bf16 %s, %s, %s, 0" % (vr(NUM + 4 * rt, 4), p2(vT + 8), p2(PQ + 2 * rt)))
        for rt in range(4):
            I("v_add_f32 v%d, s%d, v%d" % (DEN + 4 * rt, sEPS, DEN + 4 * rt))
        for rt in range(4):
            I("v_rcp_f32 v%d, v%d" % (DEN + 4 * rt, DEN + 4 * rt))
        for rt in range(4):
            for r in (0, 2):
                n_ = NUM + 4 * rt + r
                I("v_pk_mul_f32 %s, %s, %s op_sel_hi:[1,0]" % (p2(n_), p2(n_), p2(DEN + 4 * rt)))
        for rt in range(4):
            for r in (0, 2):
                I("v_cvt_pk_bf16_f32 v%d, v%d, v%d" % (vT + 2 * rt + r // 2, NUM + 4 * rt + r, NUM + 4 * rt + r + 1))
        return self.stores2([self.pair_store(vT + 4 * pr, sT + 6 + pr, 0) for pr in range(2)], layer == 0 or self.sep)

    def n16_items(self, name, layer, nks, hf, seqs):
        items = []
        for ks in range(nks):
            for r in range(2):
                def mfs(fr, ks=ks, r=r):
                    th = [self.mf(vX + 8 * hf + 4 * r, self.w_get((name, layer, ks)), fr)]
                    if hf == 1 and r == 1:
                        th.append(lambda: self.w_release((name, layer, ks)))
                    return th
                a, off = self.frag_addr(seqs[ks // 2], r, ks & 1)
                items.append((a, off, seqs[ks // 2], mfs))
        return items

    def x_half_store(self, idx, hf, wt, delay):
        x = vX + 8 * hf
        o = vT + 1
        o += o & 1
        tk = []
        k, fl = self.new_pub(tk)
        s = o + 4
        e = ["s_add_u32 s%d, s%d, s%d" % (sT + 6, sRG64, sSTO),
             "s_add_u32 s%d, s%d, 0x%x" % (sT + 6, sT + 6, self.buf("X", idx) + hf * 32768),
             "s_add_u32 s%d, s%d, %d" % (sT + 7, sSTP, hf * 8192), 2]
        e += ["v_cvt_pk_bf16_f32 v%d, v%d, v%d" % (o + j, x + 2 * j, x + 2 * j + 1) for j in range(4)]
        for r in range(2):
            e += ["v_add_f32 v%d, v%d, v%d" % (s + 2 * r, x + 4 * r, x + 4 * r + 1),
                  "v_mul_f32 v%d, v%d, v%d" % (s + 2 * r + 1, x + 4 * r, x + 4 * r)]
        e.append(lambda: tk.extend(self.stores2([self.pair_store(o, sT + 6, 0)], wt)))
        for q in (1, 2, 3):
            for r in range(2):
                if q > 1:
                    e.append("v_add_f32 v%d, v%d, v%d" % (s + 2 * r, s + 2 * r, x + 4 * r + q))
                e.append("v_fmac_f32 v%d, v%d, v%d" % (s + 2 * r + 1, x + 4 * r + q, x + 4 * r + q))
        e += [1, "v_permlane32_swap_b32 v%d, v%d" % (s, s + 2), "v_permlane32_swap_b32 v%d, v%d" % (s + 1, s + 3), 1,
              "v_add_f32 v%d, v%d, v%d" % (s, s, s + 2), "v_add_f32 v%d, v%d, v%d" % (s + 1, s + 1, s + 3), 1,
              "v_permlane16_swap_b32 v%d, v%d" % (s, s + 1), 1, "v_add_f32 v%d, v%d, v%d" % (s, s, s + 1),
              lambda: tk.extend(self.stores2(["buffer_store_dword v%d, v%d, %s, s%d offen" % (s, vL4, self.ws(), sT + 7)], wt))]
        if delay is not None:
            e += [delay, fl]
        return k, e, fl

    def out_half_store(self, hf):
        x = vX + 8 * hf
        e = ["s_add_u32 s%d, s%d, s%d" % (sT + 6, sRG64, sOUT), "s_add_u32 s%d, s%d, %d" % (sT + 6, sT + 6, hf * 32768),
             "s_add_u32 s%d, s%d, 16384" % (sT + 7, sT + 6), 2]
        e += ["v_cvt_pk_bf16_f32 v%d, v%d, v%d" % (vT + 4 * hf + j, x + 2 * j, x + 2 * j + 1) for j in range(4)]
        e += ["buffer_store_dwordx2 %s, v%d, s[%d:%d], s%d offen" % (p2(vT + 4 * hf + 2 * r), vOA, R_OUT, R_OUT + 3, sT + 6 + r)
              for r in range(2)]
        return e

    def p3_half(self, layer, hf, seqs, groups, hooks, pre, post):
        b = self.b
        I = self.I
        items = []
        one = vr(vONE, 4)
        for ks in range(16):
            c0 = "0" if ks == 0 else None
            for r in range(2):
                def mfs(fr, ks=ks, r=r, c0=c0):
                    th = []
                    for t in range(3):
                        w = self.w_get(("w1", layer, 3 * ks + t))
                        th.append(self.mf(vACC + 8 * t + 4 * r, w, fr, c0))
                        if layer == 0 and hf == 0 and r == 0:
                            th.append(self.mf(vCS1 + 4 * t, w, one, c0))
                    if hf == 1 and r == 1:
                        th.append(lambda: [self.w_release(("w1", layer, 3 * ks + t)) for t in range(3)])
                    return th
                a, off = self.frag_addr(seqs[ks // 2], r, ks & 1)
                items.append((a, off, seqs[ks // 2], mfs))
        return self.gemm_prep(items, groups, 6, hooks, pre, post, pairw=True)

    def silu(self, layer, hf):
        b = self.b
        I = self.I
        for t in range(3):
            b.I("s_add_u32 s%d, s%d, 0x%x" % (sT + 6 + t, sH0 + t, self.buf("H", layer) + hf * (HSZ // 2)))
        sts = []
        for t in range(3):
            A = vACC + 8 * t
            u = vT + 8 * (t & 1)
            for j in range(4):
                I("v_pk_mul_f32 %s, %s, %s op_sel:[0,1] op_sel_hi:[1,1]" % (
                    p2(u + 2 * j), p2(vCS1 + 4 * t + 2 * (j & 1)), p2(vAB + 4 * hf + 2 * (j >> 1))))
            for j in range(4):
                I("v_pk_fma_f32 %s, %s, %s, %s op_sel:[0,0,0] op_sel_hi:[1,0,1]" % (
                    p2(A + 2 * j), p2(A + 2 * j), p2(vAB + 4 * hf + 2 * (j >> 1)), p2(u + 2 * j)))
            for k in range(8):
                I("v_exp_f32_e64 v%d, -v%d" % (u + k, A + k))
            for j in range(4):
                I("v_pk_fma_f32 %s, %s, %s, %s op_sel:[0,0,0] op_sel_hi:[1,0,0]" % (p2(u + 2 * j), p2(u + 2 * j), p2(vK), p2(vK)))
            for k in range(8):
                I("v_rcp_f32 v%d, v%d" % (u + k, u + k))
            for j in range(4):
                I("v_pk_mul_f32 %s, %s, %s" % (p2(A + 2 * j), p2(A + 2 * j), p2(u + 2 * j)))
            for j in range(4):
                I("v_cvt_pk_bf16_f32 v%d, v%d, v%d" % (A + j, A + 2 * j, A + 2 * j + 1))
            sts += self.stores2([self.pair_store(A, sT + 6 + t, 0)], layer == 0 or self.sep)
        return sts

    def body(self):
        b = self.b
        for layer in range(2):
            self.w_enqueue("wo", layer, F_WO, 16)
            self.w_enqueue("w1", layer, F_W1, 48)
            self.w_enqueue("w2", layer, F_W2, 43)
        AF = env("AFIRST", 8)
        G8c = env("G8C", [2, 2, 2, 2])
        G8w = env("G8W", [4, 4])
        G22 = env("G22", [4, 4, 4, 4, 6])
        st = {}
        self.pace_w = env("PACEW", [75, 62])[0]
        self.startup()
        xs = None
        for layer in range(2):
            self.pace_w = env("PACEW", [75, 62])[layer]
            tk = self.attention(layer, xs)
            k_o, fl = self.new_pub(tk)
            self.w_burst(env("W_PUB", [6, 6])[layer])
            fl()
            self.stamp("o_pub")
            self.poll_check(k_o)
            self.stamp("o_rdy")
            oa = self.queue_half("O", layer, 0, 8, self.aq)
            ob = self.queue_half("O", layer, 1, 8, self.aq)
            self.a_burst(AF)
            self.bg_w = 99
            wt = layer == 0 or self.sep
            D16, PW = env("D16", 9), env("PAIRW", True)

            def xa_out():
                st["k_xa"], e, _ = self.x_half_store(2 * layer, 0, wt, env("D_XA", [20, 10])[layer])
                self.side += e
                self.bg_w = env("W_P2B", 4)
            self.gemm(self.n16_items("wo", layer, 16, 0, oa) + self.n16_items("wo", layer, 16, 1, ob),
                      self.split(oa, G8c) + self.split(ob, G8w), D16, {31: [xa_out]}, pairw=PW)
            self.bg_w = 0
            self.stamp("p2b")
            k_xb, e, fl_xb = self.x_half_store(2 * layer, 1, wt, None)
            self.side = e
            self.side_flush()
            self.poll_check(st["k_xa"])
            self.stamp("xa_rdy")
            sa = self.queue_stats(0, self.aq)
            xa = self.queue_half("X", 2 * layer, 0, 8, self.aq)
            self.a_burst(4)
            fl_xb()
            self.a_burst(AF - 2)
            self.bg_w = 99
            poll = lambda: st.update(tok=self.poll_issue())

            def when(k, plan, burst=0):
                def f():
                    self.poll_check(k() if callable(k) else k, st["tok"])
                    self.aq += plan
                    self.a_burst(burst)
                return f
            pl_b, pl_ha, pl_hb, pl_ya = [], [], [], []
            sb = self.queue_stats(1, pl_b)
            xb = self.queue_half("X", 2 * layer, 1, 8, pl_b)
            if layer:
                th = lambda: self.touch_h(layer)
                th.seq = -1
                th.prep = []
                pl_b.append(th)
            ha = self.queue_half("H", layer, 0, 22, pl_ha)
            hb = self.queue_half("H", layer, 1, 22, pl_hb)
            j = env("H_P3A", 12)
            hooks, pre, post = {j: [poll], j + 5: [when(k_xb, pl_b)]}, {}, {}
            self.stats_hooks(sa, 0, True, False, 0, len(G8c) - 1, hooks, pre, post)
            self.p3_half(layer, 0, xa, self.split(xa, G8c), hooks, pre, post)[1]()
            self.stamp("p3a")
            j = env("H_P3B", [22, 16])[layer]
            tka = []
            k_ha, fl_ha = self.new_pub(tka)
            hooks = {env("H_FL3", [14, 7])[layer]: [fl_ha], j: [poll], j + 5: [when(k_ha, pl_ha, env('BU_HA', [8, 0])[layer])]}
            pre, post = {}, {}
            self.stats_hooks(sb, 1, True, False, 0, 1, hooks, pre, post)
            jb = self.p3_half(layer, 1, xb, self.split(xb, G8w), hooks, pre, post)
            jb[0]()
            tka += self.silu(layer, 0)
            self.stamp("silu_a")
            jb[1]()
            self.stamp("p3b")
            j = env("H_P4A", [48, 32])[layer]
            tkb = []
            k_hb, fl_hb = self.new_pub(tkb)
            self.alead = env("ALEAD4", [16, 12])[layer]
            self.w_need = self.w_index[("w2", layer, 0)] + env("WPRE", 12)
            self.w_cur = ("w2", layer)
            items = self.n16_items("w2", layer, 43, 0, ha) + self.n16_items("w2", layer, 43, 1, hb)
            groups = self.split(ha, G22) + self.split(hb, G22)
            hooks = {env("H_FL4", [40, 20])[layer]: [fl_hb], j: [poll], j + env('CK4', 12): [when(k_hb, pl_hb, env('BU_HB', [10, 6])[layer])]}
            pre, post = {}, {}
            if layer == 0:
                sa = self.queue_stats(0, pl_ya)
                ya = self.queue_half("X", 1, 0, 8, pl_ya, rot=True)

                def y_out(hf, delay):
                    def f():
                        self.stamp("p4a" if hf == 0 else "p4b")
                        st["k_y%d" % hf], e, _ = self.x_half_store(1, hf, self.sep, delay)
                        self.side += e
                        if hf:
                            self.alead = env("ALEAD", 8)
                            self.pace_w = env("PACEW", [75, 62])[1]
                    return f
                j = 86 + env("H_P4B", 54)
                hooks.update({85: [y_out(0, 14)], j: [poll], j + env('CK4', 12): [when(lambda: st["k_y0"], pl_ya, env('BU_YA', 0))], 171: [y_out(1, 12)],
                              172 + env("H_P1A", 28): [poll]})
                ng = len(groups)
                groups += self.split(ya, env("G8K", [3, 3, 2]))
                self.stats_hooks(sa, 0, False, True, 172, ng + 2, hooks, pre, post)
                items += self.kv_items(0, ya)
            else:
                hooks[85] = [lambda: (self.stamp("p4a"), self.side.extend(self.out_half_store(0)))]
            ja = self.gemm_prep(items, groups, D16, hooks, pre, post, pairw=PW)
            ja[0]()
            tkb += self.silu(layer, 1)
            self.stamp("silu_b")
            ja[1]()
            if layer == 0:
                self.stamp("p1a")
                self.poll_check(st["k_y1"], st["tok"])
                self.stamp("yb_rdy")
                sb = self.queue_stats(1, self.aq)
                yb = self.queue_half("X", 1, 1, 8, self.aq, rot=True)
                self.a_burst(AF + 2)
                self.pace_w = env("PACEW1", 62)
                self.kv_finish(0)
                hooks, pre, post = {}, {}, {}
                self.stats_hooks(sb, 1, False, True, 0, 1, hooks, pre, post)
                self.gemm(self.kv_items(1, yb), self.split(yb, G8w), 8, hooks, pre, post, pairw=True)
                self.kv_finish(1)
                self.stamp("p1b")
                xs = [ya, yb]
            else:
                self.stamp("p4b")
                self.side = self.out_half_store(1)
                self.side_flush()
                lx = b.newlabel("Lep")
                b.I("s_or_b32 s%d, s2, s%d" % (sT, sW))
                b.I("s_cbranch_scc1 %s" % lx)
                b.I("s_add_u32 s%d, s%d, 16" % (sT, sEP))
                b.I("v_mov_b32 v%d, s%d" % (vT + 9, sT))
                b.I("s_mov_b32 s%d, 0x%x" % (sT, WS_EP))
                b.I("s_mov_b64 exec, 1")
                self.Inc("buffer_store_dword v%d, off, %s, s%d sc1" % (vT + 9, self.ws(), sT))
                b.I("s_mov_b64 exec, -1")
                b.label(lx)
                self.stamp("end")
        if self.diag:
            b.I("s_lshl_b32 s%d, s2, 2" % sT)
            b.I("s_add_u32 s%d, s%d, s%d" % (sT, sT, sW))
            b.I("s_lshl_b32 s%d, s%d, 8" % (sT, sT))
            b.I("s_add_u32 s%d, s%d, 0x%x" % (sT, sT, WS_STAMP))
            b.I("buffer_store_dword v%d, v%d, %s, s%d offen" % (vSTAMP, vL4, self.ws(), sT))
        b.label("L_end")
        b.I("s_endpgm")
        for t in self.cold:
            b.raw(t)

    def emit(self):
        self.body()
        head = """; @launch grid=(256,1,1) block=(256,1,1) lds=%d
; persistent fused kernel: 32 row groups (64 rows) x 8 column groups (generated by my own script)
.amdgcn_target "amdgcn-amd-amdhsa--gfx950"
.text
.globl %s_kernel
.p2align 8
.type %s_kernel,@function
%s_kernel:
""" % (LDS_BYTES, NAME, NAME, NAME)
        tail = """.section .rodata,"a"
.p2align 6
.amdhsa_kernel %s_kernel
  .amdhsa_next_free_vgpr 512
  .amdhsa_next_free_sgpr 102
  .amdhsa_accum_offset 256
  .amdhsa_group_segment_fixed_size 0
  .amdhsa_kernarg_size 72
  .amdhsa_user_sgpr_count 2
  .amdhsa_user_sgpr_kernarg_segment_ptr 1
  .amdhsa_system_sgpr_workgroup_id_x 1
.end_amdhsa_kernel
""" % NAME
        return head + self.b.text() + tail


if __name__ == "__main__":
    import argparse
    ap = argparse.ArgumentParser()
    ap.add_argument("-o", default="cdna_kernels/%s.s" % NAME)
    ap.add_argument("--diag", action="store_true")
    ap.add_argument("--sep", action="store_true")
    a = ap.parse_args()
    g = Gen(a.diag, a.sep)
    txt = g.emit()
    if a.diag:
        txt = txt.replace(".amdgcn_target", "; stamps: " + ",".join(g.stamp_names) + "\n.amdgcn_target", 1)
    open(a.o, "w").write(txt)
    print("instructions", g.b.nins, "nops", g.b.nops, file=sys.stderr)
```

```python
import sys
import os
sys.path.insert(0, os.path.dirname(os.path.abspath(__file__)))
from asmb import Builder, vr, sr

NAME = "interleave_layers__linear_attn_block__dense_activation_silu__prompt"


def env(name, default):
    v = os.environ.get(name)
    return default if v is None else eval(v)


PKW = 107 * 1024
CP = env("COMPACT", 0)
WS_FL = 0x380000 if CP else 0x500000
WS_EP = WS_FL + 0x10000
WS_R2 = WS_FL + 0x18000
WS_KV = WS_FL + 0x20000
KVH = 5120
WS_O = 0x600000
WS_X = 0x400000 if CP else 0x800000
WS_H = 0x600000 if CP else 0xA00000
HSZ = 22 * 8192
WS_STAMP = 0x3000000
WS_SIZE = 0x3100000 if '--diag' in sys.argv else 0x1000000
OOB = 0x4000000 if '--diag' in sys.argv else 0x1000000
F_WO, F_W1, F_W2 = 0, 16, 64

L_RING = 65536
L_STA = 157696
L_WQ = 81920
L_PACK = 131072
L_PACK2 = 147456
L_KVI = 147456
NRING = 10
LDS_BYTES = 163840

S_X, S_WQ, S_WO, S_W1, S_W2, S_OUT, S_DBG, S_WS = 4, 6, 8, 12, 14, 16, 18, 20
R_X, R_WQ, R_WS, R_OUT, R_DBG, R_PK = 24, 28, 32, 36, 40, 44
sRG, sC, sW, sFAST, sPK, sKV, sFL, sRG64, sRGH, sSTO = 48, 49, 50, 51, 52, 53, 54, 55, 56, 57
sH0 = 58
sSPIN = 61
sEPS, sL2E, sNL2E = 62, 64, 66
sM1, sM2, sM3, sDIAG = 68, 70, 72, 74
sT = 76
sPKC = 96
sXCC = 97
sMYF = 98
sW2K = 99
sAB = 100
sAO = 101
sTAG = 22
sEP = 23
sQ = 10
sTC = 11
sR1 = 3
sROT = 40
sKB = 88

vL16, vA1, vKVL, vDMA, vST = 1, 2, 3, 4, 5
vX0, vX1, vOW0, vOW1, vTR, vXS0, vXS1, vWS = 6, 7, 8, 9, 10, 11, 12, 13
vFL, vL4, vSTAMP, vSTA, vSTQ, vC2 = 14, 15, 16, 17, 18, 19
vX = 20
vCSQ, vCSK, vCSV = 36, 40, 44
vCS1 = 48
vONE = 60
vACC = 64
vAF = 112
NAF = 12
vS1, vS2 = 160, 164
vAB = 168
vT = 176
vPOS = 192
vZP = 196
vWQ = 13
vSW = 197
vTCH = 199
vDUM = 198
SLOTS = [("a", 4 * i) for i in range(64)] + [("v", 204 + 4 * i) for i in range(13)]
PACE = env("PACE", 60)
LEAD = env("LEAD", 0)
NTSET = env("NT", lambda key: False)
TB = env("TB", 16)
TPACE = env("TPACE", 250)
MINLEAD = env("MINLEAD", 0)
COST = {"mfma": 16, "trans": 8, "ds": 4, "valu": 4, "perm": 4, "dpp": 4, "rdlane": 4, "wrlane": 4, "salu": 2, "vmem": 8}


def slot_r(s):
    return vr(s[1], 4, s[0])


class Gen:
    def __init__(self, diag=False, sep=False):
        self.b = Builder()
        self.diag = diag
        self.sep = sep
        self.free = list(SLOTS)
        self.wq = []
        self.wslot = {}
        self.pk_cur = None
        self.nstamp = 0
        self.stamp_names = []
        self.aq = []
        self.clock = 0
        self.last_bg = -1000
        self.bg_w = 0
        self.in_bg = False
        self.wall = []
        self.touched = 0
        self.lead = 0
        self.pace_w = 70
        self.last_touch = -10000
        self.issued = 0

    def I(self, t):
        tok = self.b.I(t)
        k = self.b.hists[0][-1].kind if self.b.hists and self.b.hists[0] else "salu"
        self.clock += COST.get(k, 4)
        if not self.in_bg and k in ("mfma", "valu", "trans") and self.clock - self.last_bg >= (PACE if self.aq else self.pace_w):
            self.bg_step()
        return tok

    def bg_step(self):
        self.in_bg = True
        done = False
        can_w = self.bg_w > 0 and self.wq and self.free and (self.touched > self.issued + MINLEAD or self.touched >= len(self.wall) or not LEAD)
        can_t = (self.lead > 0 and LEAD and not os.environ.get("NOW") and self.touched < min(self.issued + self.lead, len(self.wall))
                 and self.clock - self.last_touch >= TPACE)
        if os.environ.get("NOW"):
            can_w = self.bg_w > 0 and self.wq and self.free
        if self.aq:
            if getattr(self.aq[0], "ds", 0) <= self.a_safe:
                self.aq.pop(0)()
                done = True
        elif can_t:
            self.w_touch()
            self.last_touch = self.clock
            done = True
        elif can_w:
            self.w_issue()
            self.bg_w -= 1
            done = True
        if done:
            self.last_bg = self.clock
        self.in_bg = False

    def Inc(self, t):
        self.b.I(t)
        self.b.vm_issued -= 1

    def stamp(self, name):
        if os.environ.get("WLOG"):
            print("%-8s clock %6d  wq left %3d next %s free %d lead %d" % (name, self.clock, len(self.wq), self.wq[0][0] if self.wq else None, len(self.free), self.touched - self.issued), file=sys.stderr)
        if not self.diag:
            return
        b = self.b
        k = self.nstamp
        self.nstamp += 1
        b.comment("stamp %d %s" % (k, name))
        b.I("s_memtime s[94:95]")
        b.wait(lg=0)
        b.I("v_writelane_b32 v%d, s94, %d" % (vSTAMP, k))
        if name in ("start", "end"):
            b.I("s_memrealtime s[94:95]")
            b.wait(lg=0)
            b.I("v_writelane_b32 v%d, s94, %d" % (vSTAMP, 62 if name == "start" else 63))
        self.stamp_names.append(name)

    def buf(self, kind, idx):
        base = {"O": WS_O if self.sep else WS_H, "X": WS_X, "H": WS_H}[kind]
        return base + (idx * 0x1000000 if self.sep else 0)

    def rgs(self, kind):
        return sRGH if kind == "H" or (kind == "O" and not self.sep) else sRG64

    def srd(self, r, ptr, size):
        self.I("s_mov_b32 s%d, s%d" % (r, ptr))
        self.I("s_and_b32 s%d, s%d, 0xffff" % (r + 1, ptr + 1))
        self.I("s_mov_b32 s%d, 0x%x" % (r + 2, size))
        self.I("s_mov_b32 s%d, 0x20000" % (r + 3))

    def w_enqueue(self, name, layer, f0, n):
        for i in range(n):
            self.wq.append(((name, layer, i), f0 + i))
            self.wall.append(f0 + i)

    def w_touch(self, TB=TB):
        p = self.touched
        f0 = self.wall[p]
        n = 0
        while n < TB and p + n < len(self.wall) and self.wall[p + n] == f0 + n:
            n += 1
        m = (n + 3) // 4
        b = self.b
        b.I("s_mul_i32 s%d, s%d, %d" % (sTC, sQ, m * 1024))
        b.I("s_add_u32 s%d, s%d, s%d" % (sTC, sTC, sPK))
        b.I("s_add_u32 s%d, s%d, %d" % (sTC, sTC, f0 * 1024))
        if m < 8:
            mask = (1 << (8 * m)) - 1
            b.I("s_mov_b32 exec_lo, 0x%x" % (mask & 0xffffffff))
            b.I("s_mov_b32 exec_hi, 0x%x" % (mask >> 32))
        b.I("buffer_load_dword v%d, v%d, s[%d:%d], s%d offen sc1" % (vDUM, vTCH, R_WS, R_WS + 3, sTC))
        if m < 8:
            b.I("s_mov_b64 exec, -1")
        self.touched += n

    def w_issue(self):
        key, f = self.wq.pop(0)
        s = self.free.pop(0)
        self.issued += 1
        if os.environ.get("NOW"):
            self.wslot[key] = (s, None)
            return
        if LEAD and self.touched < self.issued:
            print("WARNING: untouched W load", key, file=sys.stderr)
            self.touched = self.issued
        if os.environ.get("FAKEW"):
            f = f % 8
        grp = f // 4
        if self.pk_cur != grp:
            self.b.I("s_add_u32 s%d, s%d, 0x%x" % (sPKC, sPK, grp * 4096))
            self.pk_cur = grp
        tok = self.b.I("buffer_load_dwordx4 %s, v%d, s[%d:%d], s%d offen offset:%d sc1%s" % (
            slot_r(s), (200 + key[2] % 3 if key[0] == "w1" else vL16), R_WS, R_WS + 3, sPKC, (f % 4) * 1024, " nt" if NTSET(key) else ""))
        self.wslot[key] = (s, tok)

    def w_burst(self, n):
        k = 0
        while k < n and self.wq and self.free:
            self.w_issue()
            k += 1
        self.last_bg = self.clock

    def w_get(self, key):
        if key not in self.wslot:
            print("WARNING: late W load", key, file=sys.stderr)
        while key not in self.wslot:
            assert self.wq and self.free, "no free slot for %s" % (key,)
            self.w_issue()
        s, tok = self.wslot[key]
        self.b.wait(tok)
        return slot_r(s)

    def w_release(self, key):
        s, _ = self.wslot.pop(key)
        self.free.append(s)

    def stores2(self, texts, wt=False):
        b = self.b
        if wt and not env("FTOUCH", 0):
            return [b.I(t + " sc1") for t in texts]
        lf, lj = b.newlabel("Lfast"), b.newlabel("Ljoin")
        b.I("s_cmp_eq_u32 s%d, 1" % sFAST)
        b.I("s_cbranch_scc1 %s" % lf)
        for t in texts:
            self.Inc(t + " sc1")
        b.I("s_branch %s" % lj)
        b.label(lf)
        toks = [b.I(t) for t in texts]
        b.label(lj)
        return toks

    def tile_stores(self, p, sreg):
        for pr in range(2):
            for k in range(2):
                self.b.I("v_permlane16_swap_b32 v%d, v%d" % (p + 4 * pr + k, p + 4 * pr + 2 + k))
        return ["buffer_store_dwordx4 %s, v%d, s[%d:%d], s%d offen" % (vr(p + 4 * pr, 4), vST, R_WS, R_WS + 3, sreg + pr)
                for pr in range(2)]

    def spin_guard(self, lab_loop):
        b = self.b
        b.I("s_sub_u32 s%d, s%d, 1" % (sSPIN, sSPIN))
        b.I("s_cmp_lg_u32 s%d, 0" % sSPIN)
        b.I("s_cbranch_scc1 %s" % lab_loop)
        b.I("s_branch L_end")

    def publish(self, toks, phase, burst):
        b = self.b
        self.bg_w = 0
        self.w_burst(burst)
        b.I("s_add_u32 s%d, s%d, %d" % (sT, sTAG, phase))
        b.I("v_mov_b32 v%d, s%d" % (vC2, sT))
        b.wait(toks)
        b.I("s_mov_b64 exec, 1")
        self.stores2(["buffer_store_dword v%d, off, s[%d:%d], s%d" % (vC2, R_WS, R_WS + 3, sMYF)])
        b.I("s_mov_b64 exec, -1")

    def poll_flags(self, phase):
        b = self.b
        lp, ld = b.newlabel("Lpoll"), b.newlabel("Lpd")
        b.label(lp)
        b.I("buffer_load_dword v%d, v%d, s[%d:%d], s%d offen sc1" % (vT, vFL, R_WS, R_WS + 3, sFL))
        b.wait(vm=0)
        b.I("v_sub_u32 v%d, v%d, v%d" % (vT, vT, vC2))
        b.I("v_cmp_gt_u32 vcc, %d, v%d" % (16 - phase, vT))
        b.I("s_cmp_eq_u64 vcc, exec")
        b.I("s_cbranch_scc1 %s" % ld)
        self.spin_guard(lp)
        b.label(ld)

    def start_tile(self, kind, idx, nks, first, rot=False):
        b = self.b
        rg = self.rgs(kind)
        b.I("s_add_u32 s%d, s%d, 0x%x" % (sAB, rg, self.buf(kind, idx)))
        toks = {}
        self.a_safe = NRING - 1

        def mk(ks):
            def th():
                ds, h = ks // 2, ks & 1
                assert ds <= self.a_safe, "ring slot not free for ds %d" % ds
                if h == 0:
                    if rot:
                        b.I("s_add_u32 s%d, s%d, %d" % (sAO, sROT, ds))
                        b.I("s_and_b32 s%d, s%d, 7" % (sAO, sAO))
                        b.I("s_lshl_b32 s%d, s%d, 13" % (sAO, sAO))
                        b.I("s_add_u32 m0, s%d, 0x%x" % (sW2K, (ds % NRING) * 8192))
                        b.I("s_add_u32 s%d, s%d, s%d" % (sAO, sAO, sAB))
                    else:
                        b.I("s_add_u32 m0, s%d, 0x%x" % (sW2K, (ds % NRING) * 8192))
                        b.I("s_add_u32 s%d, s%d, 0x%x" % (sAO, sAB, ds * 8192))
                toks.setdefault(ds, []).append(b.I(
                    "buffer_load_dwordx4 v%d, s[%d:%d], s%d offen offset:%d sc1 lds" % (vDMA, R_WS, R_WS + 3, sAO, h * 1024)))
            th.ds = ks // 2
            return th
        self.aq = [mk(ks) for ks in range(nks)]
        self.a_nks = nks
        self.a_real = nks
        for _ in range(first):
            self.aq.pop(0)()
        self.last_bg = self.clock
        return toks

    def chunker(self, toks, bounds):
        def chunk_of(ds):
            for k, e in enumerate(bounds):
                if ds <= e:
                    return k
            raise ValueError

        def chunk_open(ch, consumed_ds):
            lo = 0 if ch == 0 else bounds[ch - 1] + 1
            hi = bounds[ch]
            need = min(2 * hi + 2, self.a_real)
            while self.a_nks - len(self.aq) < need:
                self.aq.pop(0)()
                self.last_bg = self.clock
            self.b.wait(*[toks[d] for d in range(lo, hi + 1)])
            self.b.I("s_barrier")
            self.a_safe = max(self.a_safe, consumed_ds + NRING)
        return chunk_of, chunk_open

    def lds_addr(self, off):
        return ((vL16, vA1)[off >> 16], off & 0xffff)

    def gemm(self, items, chunk_open, depth):
        b = self.b
        n = len(items)
        toks = [None] * n
        opened = set()
        st = {"ip": 0, "j": 0}

        def issue():
            k = st["ip"]
            a, off, ch, ds, _ = items[k]
            if ch is not None and ch not in opened:
                opened.add(ch)
                chunk_open(ch, items[st["j"]][3] - 1)
            toks[k] = self.I("ds_read_b128 %s, v%d offset:%d" % (vr(vAF + 4 * (k % NAF), 4), a, off))
            st["ip"] += 1

        while st["ip"] < min(depth, n):
            issue()
        for j in range(n):
            st["j"] = j
            thunks = items[j][4](vr(vAF + 4 * (j % NAF), 4))
            b.wait(toks[j])
            first = True
            if not thunks and st["ip"] < n and st["ip"] < j + 1 + depth:
                issue()
            for th in thunks:
                th()
                if first and st["ip"] < n and st["ip"] < j + 1 + depth:
                    issue()
                first = False

    def mf(self, d, a, bb, c=None):
        dd = vr(d, 4)
        cc = dd if c is None else c
        return lambda: self.I("v_mfma_f32_16x16x32_bf16 %s, %s, %s, %s" % (dd, a, bb, cc))

    def stats_publish(self):
        b = self.b
        I = self.I
        t = vT
        I("v_mul_f32 v%d, 0x3b000000, v%d" % (t + 1, vS1))
        I("v_cndmask_b32 v%d, v%d, v%d, s[%d:%d]" % (t, vS2, vS2 + 1, sM1, sM1 + 1))
        I("v_cndmask_b32 v%d, v%d, v%d, s[%d:%d]" % (t, t, vS2 + 2, sM2, sM2 + 1))
        I("v_cndmask_b32 v%d, v%d, v%d, s[%d:%d]" % (t, t, vS2 + 3, sM3, sM3 + 1))
        I("v_mul_f32 v%d, 0x3b000000, v%d" % (t, t))
        I("v_fma_f32 v%d, -v%d, v%d, v%d" % (t, t + 1, t + 1, t))
        I("v_max_f32 v%d, 0, v%d" % (t, t))
        I("v_add_f32 v%d, 0x3727c5ac, v%d" % (t, t))
        I("v_rsq_f32 v%d, v%d" % (t + 2, t))
        I("v_lshlrev_b32 v%d, 1, v%d" % (t + 4, vSW))
        I("v_mul_f32_e64 v%d, -v%d, v%d" % (t + 3, t + 1, t + 2))
        I("v_subrev_u32 v%d, 0x%x, v%d" % (t + 4, L_STA - 512, t + 4))
        b.I("s_mov_b64 exec, s[%d:%d]" % (sDIAG, sDIAG + 1))
        b.I("ds_write_b32 v%d, v%d" % (vSW, t + 2))
        b.I("ds_write_b32 v%d, v%d offset:256" % (vSW, t + 3))
        b.I("ds_write_b64 v%d, v[%d:%d]" % (t + 4, t + 2, t + 3))
        b.I("s_mov_b64 exec, -1")
        b.wait(lg=0)
        b.I("s_barrier")

    def stats_read_q(self):
        return [self.I("ds_read_b64 v[%d:%d], v%d offset:%d" % (vAB + 2 * rt, vAB + 2 * rt + 1, vSTQ, rt * 128))
                for rt in range(4)]

    def stats_read_kv(self):
        toks = []
        for rt in range(4):
            toks.append(self.I("ds_read_b128 %s, v%d offset:%d" % (vr(vAF + 4 * rt, 4), vSTA, rt * 64)))
            toks.append(self.I("ds_read_b128 %s, v%d offset:%d" % (vr(vAF + 16 + 4 * rt, 4), vSTA, 256 + rt * 64)))
        return toks

    def phi_pairs(self, pairs):
        I = self.I
        for c0 in range(0, len(pairs), 4):
            grp = pairs[c0:c0 + 4]
            for k, (t, d) in enumerate(grp):
                I("v_pk_mul_f32 v[%d:%d], v[%d:%d], s[%d:%d]" % (vT + 2 * k, vT + 2 * k + 1, t, t + 1, sL2E, sL2E + 1))
            for k, (t, d) in enumerate(grp):
                I("v_exp_f32_e64 v%d, v%d clamp" % (vT + 2 * k, vT + 2 * k))
                I("v_max_f32 v%d, s%d, v%d" % (t, sEPS, t))
                I("v_exp_f32_e64 v%d, v%d clamp" % (vT + 2 * k + 1, vT + 2 * k + 1))
                I("v_max_f32 v%d, s%d, v%d" % (t + 1, sEPS, t + 1))
            for k, (t, d) in enumerate(grp):
                I("v_pk_add_f32 v[%d:%d], v[%d:%d], v[%d:%d]" % (t, t + 1, t, t + 1, vT + 2 * k, vT + 2 * k + 1))
            for k, (t, d) in enumerate(grp):
                I("v_cvt_pk_bf16_f32 v%d, v%d, v%d" % (d, t, t + 1))

    def startup(self):
        b = self.b
        I = b.I
        i_, g_, l3, l7, q0, tc = vT + 2, vT + 3, vT + 6, vT + 7, vT + 8, vT + 9
        self.l3, self.q0, self.tc, self.g_ = l3, q0, tc, g_
        I("s_cmp_ge_u32 s2, 256")
        I("s_cbranch_scc1 L_end")
        I("s_load_dwordx4 s[4:7], s[0:1], 0")
        I("s_load_dwordx2 s[20:21], s[0:1], 64")
        I("s_load_dwordx2 s[8:9], s[0:1], 16")
        I("s_load_dwordx4 s[12:15], s[0:1], 32")
        I("s_load_dwordx4 s[16:19], s[0:1], 48")
        I("s_getpc_b64 s[90:91]")
        b.label("L_pc")
        I("v_lshrrev_b32 v%d, 6, v0" % vT)
        I("v_and_b32 v0, 63, v0")
        I("v_readfirstlane_b32 s%d, v%d" % (sW, vT))
        I("s_lshr_b32 s%d, s2, 3" % (sT + 1))
        I("s_lshl_b32 s%d, s%d, 2" % (sT, sT + 1))
        I("s_add_u32 s%d, s%d, s%d" % (sT, sT, sW))
        I("s_and_b32 s%d, s%d, 31" % (sT, sT))
        I("s_lshl_b32 s%d, s%d, 11" % (sT, sT))
        I("v_lshlrev_b32 v%d, 7, v0" % vTCH)
        I("v_add_u32 v%d, s%d, v%d" % (vT, sT, vTCH))
        I("v_min_u32 v%d, L_end-L_pc, v%d" % (vT, vT))
        I("s_mov_b64 exec, 0xffff")
        I("global_load_dword v%d, v%d, s[90:91]" % (vDUM, vT))
        I("s_mov_b64 exec, -1")
        I("s_and_b32 s%d, s2, 7" % sT)
        I("s_and_b32 s%d, s%d, 7" % (sC, sT + 1))
        I("s_lshr_b32 s%d, s%d, 3" % (sQ, sT + 1))
        I("s_lshl_b32 s%d, s%d, 2" % (sT, sT))
        I("s_add_u32 s%d, s%d, s%d" % (sRG, sT, sQ))
        I("s_lshl_b32 s%d, s%d, 16" % (sRG64, sRG))
        I("s_lshl_b32 s%d, s%d, 11" % (sW2K, sW))
        I("v_lshrrev_b32 v%d, 4, v0" % g_)
        I("v_and_b32 v%d, 15, v0" % i_)
        tw, tx = vT + 12, vT + 13
        I("s_lshl_b32 s%d, s%d, 2" % (sT, sT + 1))
        I("s_add_u32 s%d, s%d, s%d" % (sT, sT, sW))
        I("s_mul_i32 s%d, s%d, %d" % (sT + 2, sT, 4 * 3072))
        I("v_lshlrev_b32 v%d, 10, v0" % tw)
        I("v_add_u32 v%d, s%d, v%d" % (tw, sT + 2, tw))
        I("s_and_b32 s%d, s%d, 28" % (sT + 2, sRG))
        I("s_lshl_b32 s%d, s%d, 16" % (sT + 2, sT + 2))
        I("s_lshl_b32 s%d, s%d, 11" % (sT, sT))
        I("s_add_u32 s%d, s%d, s%d" % (sT, sT, sT + 2))
        I("v_lshlrev_b32 v%d, 10, v0" % tx)
        I("v_add_u32 v%d, s%d, v%d" % (tx, sT, tx))
        tw2, tx2 = vCS1 + 8, vCS1 + 9
        I("v_lshrrev_b32 v%d, 1, v0" % tx2)
        I("v_lshlrev_b32 v%d, 10, v%d" % (tx2, tx2))
        I("v_add_u32 v%d, s%d, v%d" % (tx2, sT, tx2))
        I("s_and_b32 s%d, s2, %d" % (sROT, env("ROTM", 7)))
        I("v_and_b32 v%d, 1, v0" % (tx2 + 1))
        I("v_add_u32 v%d, s%d, v%d" % (tx2 + 1, sROT, tx2 + 1))
        I("s_lshl_b32 s%d, s%d, 2" % (sT, sT + 1))
        I("s_add_u32 s%d, s%d, s%d" % (sT, sT, sW))
        I("s_lshl_b32 s%d, s%d, 6" % (sT + 2, sROT))
        I("s_add_u32 s%d, s%d, s%d" % (sT, sT, sT + 2))
        I("v_mov_b32 v%d, s%d" % (tw2, sT))
        I("v_lshrrev_b32 v%d, 3, v0" % l3)
        I("v_and_b32 v%d, 7, v0" % l7)
        I("v_xor_b32 v%d, v%d, v%d" % (vT + 4, l7, g_))
        I("v_lshlrev_b32 v%d, 4, v%d" % (vT + 4, vT + 4))
        I("v_lshl_add_u32 v%d, v%d, 10, v%d" % (vT + 4, l3, vT + 4))
        I("s_lshl_b32 s%d, s%d, 14" % (sT + 1, sW))
        I("v_add_u32 v%d, s%d, v%d" % (vXS0, sT + 1, vT + 4))
        I("v_xor_b32 v%d, 64, v%d" % (vXS1, vXS0))
        I("v_add_u32 v%d, 7168, v%d" % (vXS1, vXS1))
        I("v_and_b32 v%d, 1, v%d" % (vT + 4, g_))
        I("v_lshlrev_b32 v%d, 1, v%d" % (vT + 4, vT + 4))
        I("v_xor_b32 v%d, v%d, v%d" % (q0, l7, vT + 4))
        I("v_lshlrev_b32 v%d, 4, v%d" % (q0, q0))
        I("s_and_b32 s%d, s%d, 1" % (sT + 1, sW))
        I("s_lshl_b32 s%d, s%d, 6" % (sT + 1, sT + 1))
        I("v_xor_b32 v%d, s%d, v%d" % (vT + 4, sT + 1, q0))
        I("s_lshl_b32 s%d, s%d, 3" % (sT + 1, sW))
        I("v_add_u32 v%d, s%d, v%d" % (vT + 5, sT + 1, l3))
        I("v_mul_u32_u24 v%d, 3072, v%d" % (vT + 5, vT + 5))
        I("v_add_u32 v%d, v%d, v%d" % (vWS, vT + 4, vT + 5))
        sXO, sWO_, sRB, sCB = sAB, sAO, 93, sTC
        I("s_lshl_b32 s%d, s%d, 7" % (sWO_, sC))
        I("v_add_u32 v%d, s%d, v%d" % (vWS, sWO_, vWS))
        I("s_and_b32 s%d, s2, %d" % (sROT, env("ROTM", 7)))
        I("s_mul_i32 s%d, s%d, 3072" % (sRB, sW))
        I("s_add_u32 s%d, s%d, 0x%x" % (sRB, sRB, L_RING))
        if self.diag:
            I("v_mov_b32 v%d, 0" % vSTAMP)
        b.wait(lg=0)
        if env("WSBASE", 0):
            I("s_add_u32 s%d, s%d, 0x%x" % (S_WS, S_WS, env("WSBASE", 0)))
            I("s_addc_u32 s%d, s%d, 0" % (S_WS + 1, S_WS + 1))
        self.stamp("start")
        I("s_add_u32 s88, s%d, 0x%x" % (S_WS, WS_EP))
        I("s_addc_u32 s89, s%d, 0" % (S_WS + 1))
        I("s_load_dword s%d, s[88:89], 0" % sEP)
        self.srd(R_WQ, S_WQ, 512 * 3072)
        self.srd(R_X, S_X, 2048 * 1024)
        tokA, tokW = {}, {}

        def touch(batch):
            if not env("T0", 1) or batch:
                return
            for ptr, srd, v, mask in ((S_WQ, R_WQ, tw, 0xfff), (S_X, R_X, tx, 3)):
                I("s_sub_u32 s%d, 0x180, s%d" % (sT, ptr))
                I("s_and_b32 s%d, s%d, 0x380" % (sT, sT))
                I("s_mov_b64 exec, 0x%x" % mask)
                I("buffer_load_dword v%d, v%d, s[%d:%d], s%d offen" % (vDUM, v, srd, srd + 3, sT))
            I("s_mov_b64 exec, -1")

        def btouch(bt):
            if not env("BT", 0):
                return
            I("v_add_u32 v%d, %d, v%d" % (vT + 10, 128 * bt, tw2))
            I("v_and_b32 v%d, 511, v%d" % (vT + 10, vT + 10))
            I("v_mul_u32_u24 v%d, 3072, v%d" % (vT + 10, vT + 10))
            I("v_add_u32 v%d, v%d, v%d" % (vT + 10, vT + 10, vTCH))
            I("v_add_u32 v%d, %d, v%d" % (vT + 11, 2 * bt, tx2 + 1))
            I("v_and_b32 v%d, 7, v%d" % (vT + 11, vT + 11))
            I("v_lshl_add_u32 v%d, v%d, 7, v%d" % (vT + 11, vT + 11, tx2))
            I("s_mov_b64 exec, 0xffffff")
            I("buffer_load_dword v%d, v%d, s[%d:%d], 0 offen" % (vDUM, vT + 10, R_WQ, R_WQ + 3))
            I("s_mov_b64 exec, 0xf")
            I("buffer_load_dword v%d, v%d, s[%d:%d], 0 offen" % (vDUM, vT + 11, R_X, R_X + 3))
            I("s_mov_b64 exec, -1")

        def issue_thunks(ks):
            th = []
            if ks % 2 == 0:
                ds = ks // 2

                def a0():
                    I("s_add_u32 s%d, s%d, %d" % (sXO, sROT, ds))
                    I("s_and_b32 s%d, s%d, 7" % (sXO, sXO))
                    I("s_lshl_b32 s%d, s%d, 7" % (sXO, sXO))
                    I("s_add_u32 m0, s%d, 0x%x" % (sW2K, ds * 8192))
                    I("s_add_u32 s%d, s%d, s%d" % (sXO, sXO, sRG64))
                    tokA[ds] = [I("buffer_load_dwordx4 v%d, s[%d:%d], s%d offen lds" % (vXS0, R_X, R_X + 3, sXO))]

                def a1():
                    tokA[ds].append(I("buffer_load_dwordx4 v%d, s[%d:%d], s%d offen offset:1024 lds" % (vXS1, R_X, R_X + 3, sXO)))
                th += [a0, a1]
            for p in range(3):
                def w(p=p):
                    if p == 0:
                        I("s_lshl_b32 s%d, s%d, 1" % (sWO_, sROT))
                        I("s_add_u32 s%d, s%d, %d" % (sWO_, sWO_, ks))
                        I("s_and_b32 s%d, s%d, 15" % (sWO_, sWO_))
                        I("s_add_u32 m0, s%d, 0x%x" % (sRB, (ks % 5) * 12288))
                        I("s_mul_i32 s%d, s%d, %d" % (sWO_, sWO_, 32 * 3072))
                        tokW[ks] = []
                    tokW[ks].append(I("buffer_load_dwordx4 v%d, s[%d:%d], s%d offen offset:%d lds" % (
                        vWS, R_WQ, R_WQ + 3, sWO_, p * 1024)))
                th.append(w)
            return th

        btouch(0)
        touch(0)
        NFIRST = env("NFIRST", 2)
        for ks in range(NFIRST):
            for th in issue_thunks(ks):
                th()
        btouch(1)
        self.pack_toks = []
        if env("KL", -1) == -2:
            I("v_mov_b32 v%d, v%d" % (vCS1, l3))
            I("v_mov_b32 v%d, v%d" % (vCS1 + 1, q0))
            self.pack_load([0])
            for th in issue_thunks(NFIRST):
                th()
            NFIRST += 1
        self.stamp("first")
        I("s_getreg_b32 s%d, hwreg(HW_REG_XCC_ID, 0, 4)" % sXCC)
        I("s_mov_b32 s%d, 0x100000" % sSPIN)
        self.srd(R_WS, S_WS, WS_SIZE)
        self.srd(R_OUT, S_OUT, 2048 * 1024)
        I("v_lshlrev_b32 v%d, 4, v0" % vL16)
        I("v_lshlrev_b32 v%d, 2, v0" % vL4)
        I("s_lshl_b32 s%d, s%d, 2" % (sT, sC))
        I("s_add_u32 s%d, s%d, s%d" % (sT, sT, sW))
        I("s_mul_i32 s%d, s%d, %d" % (sKV, sT, KVH))
        I("s_add_u32 s%d, s%d, 0x%x" % (sKV, sKV, WS_KV))
        I("v_mov_b32 v%d, 0" % vC2)
        I("s_mul_i32 s%d, s%d, 160" % (sT + 1, sRG))
        I("s_add_u32 s%d, s%d, s%d" % (sT + 1, sT + 1, sKV))
        I("s_mov_b32 exec_hi, 0xff")
        ztok = I("buffer_store_dword v%d, v%d, s[%d:%d], s%d offen sc1" % (vC2, vL4, R_WS, R_WS + 3, sT + 1))
        I("s_mov_b64 exec, -1")
        I("s_mul_i32 s%d, s%d, %d" % (sPK, sT, PKW))
        I("s_lshl_b32 s%d, s%d, 7" % (sFL, sRG))
        I("s_lshl_b32 s%d, s%d, 12" % (sR1, sC))
        I("s_add_u32 s%d, s%d, 0x%x" % (sR1, sR1, WS_R2))
        I("s_add_u32 s%d, s%d, 0x%x" % (sFL, sFL, WS_FL))
        I("s_lshl_b32 s%d, s%d, 2" % (sMYF, sT))
        I("s_add_u32 s%d, s%d, s%d" % (sMYF, sMYF, sFL))
        I("s_mul_i32 s%d, s%d, %d" % (sRGH, sRG, HSZ))
        I("s_lshl_b32 s%d, s%d, 13" % (sSTO, sC))
        I("s_lshl_b32 s%d, s%d, 9" % (sT + 1, sW))
        I("s_add_u32 s%d, s%d, s%d" % (sSTO, sSTO, sT + 1))
        I("s_mul_i32 s%d, s%d, 3" % (sT, sT))
        for t in range(3):
            I("s_add_u32 s%d, s%d, %d" % (sT + 1, sT, t))
            I("s_lshr_b32 s%d, s%d, 2" % (sT + 2, sT + 1))
            I("s_lshl_b32 s%d, s%d, 13" % (sT + 2, sT + 2))
            I("s_and_b32 s%d, s%d, 3" % (sT + 3, sT + 1))
            I("s_lshl_b32 s%d, s%d, 9" % (sT + 3, sT + 3))
            I("s_add_u32 s%d, s%d, s%d" % (sT + 2, sT + 2, sT + 3))
            I("s_add_u32 s%d, s%d, s%d" % (sT + 2, sT + 2, sRGH))
            I("s_cmp_lt_u32 s%d, 86" % (sT + 1))
            I("s_cselect_b32 s%d, s%d, 0x%x" % (sH0 + t, sT + 2, OOB))
            I("s_cselect_b32 s%d, 0, 0x%x" % (sT + 2, OOB))
            I("v_add_u32 v%d, s%d, v%d" % (200 + t, sT + 2, vL16))
        I("v_add_u32 v%d, 0x10000, v%d" % (vA1, vL16))
        I("v_add_u32 v%d, s%d, v%d" % (vDMA, sW2K, vL16))
        I("v_and_b32 v%d, 0x7c, v%d" % (vFL, vL4))
        I("v_lshrrev_b32 v%d, 1, v%d" % (vT + 4, g_))
        I("v_lshlrev_b32 v%d, 8, v%d" % (vT + 4, vT + 4))
        I("v_lshl_add_u32 v%d, v%d, 4, v%d" % (vT + 4, i_, vT + 4))
        I("v_and_b32 v%d, 1, v%d" % (vT + 5, g_))
        I("v_lshl_add_u32 v%d, v%d, 11, v%d" % (vST, vT + 5, vT + 4))
        I("v_lshlrev_b32 v%d, 4, v%d" % (vSTA, g_))
        I("v_add_u32 v%d, 0x%x, v%d" % (vSTA, L_STA, vSTA))
        I("v_lshlrev_b32 v%d, 3, v%d" % (vSTQ, i_))
        I("v_add_u32 v%d, 0x%x, v%d" % (vSTQ, L_STA + 512, vSTQ))
        I("s_lshl_b32 s%d, s%d, 6" % (sT, sW))
        I("s_add_u32 s%d, s%d, 0x%x" % (sT, sT, L_STA))
        I("v_lshlrev_b32 v%d, 2, v%d" % (vSW, i_))
        I("v_add_u32 v%d, s%d, v%d" % (vSW, sT, vSW))
        I("v_lshrrev_b32 v%d, 3, v%d" % (vT + 4, i_))
        I("v_lshlrev_b32 v%d, 10, v%d" % (vT + 4, vT + 4))
        I("v_and_b32 v%d, 7, v%d" % (vT + 5, i_))
        I("v_lshl_add_u32 v%d, v%d, 7, v%d" % (vT + 4, vT + 5, vT + 4))
        I("v_lshrrev_b32 v%d, 1, v%d" % (vT + 5, i_))
        I("v_xor_b32 v%d, v%d, v%d" % (vT + 5, vT + 5, g_))
        I("v_lshl_add_u32 v%d, v%d, 4, v%d" % (vX0, vT + 5, vT + 4))
        I("v_xor_b32 v%d, 64, v%d" % (vX1, vX0))
        I("v_add_u32 v%d, s%d, v%d" % (vOW0, sW2K, vX0))
        I("v_add_u32 v%d, s%d, v%d" % (vOW1, sW2K, vX1))
        I("v_bfe_u32 v%d, v0, 2, 2" % (vT + 4))
        I("v_bfe_u32 v%d, v0, 3, 1" % (vT + 5))
        I("v_lshlrev_b32 v%d, 1, v%d" % (vT + 5, vT + 5))
        I("v_bfe_u32 v%d, v0, 4, 1" % (vT + 10))
        I("v_lshl_add_u32 v%d, v%d, 2, v%d" % (vT + 5, vT + 10, vT + 5))
        I("v_bfe_u32 v%d, v0, 1, 1" % (vT + 10))
        I("v_xor_b32 v%d, v%d, v%d" % (vT + 5, vT + 5, vT + 10))
        I("v_lshlrev_b32 v%d, 4, v%d" % (vT + 5, vT + 5))
        I("v_lshl_add_u32 v%d, v%d, 7, v%d" % (tc, vT + 4, vT + 5))
        I("v_and_b32 v%d, 1, v0" % (vT + 10))
        I("v_lshl_add_u32 v%d, v%d, 3, v%d" % (tc, vT + 10, tc))
        I("s_lshl_b32 s%d, s%d, 5" % (sT + 1, sW))
        I("v_xor_b32 v%d, s%d, v%d" % (vT + 4, sT + 1, tc))
        I("v_mul_u32_u24 v%d, 3072, v%d" % (vT + 5, g_))
        I("v_add_u32 v%d, v%d, v%d" % (vT + 4, vT + 4, vT + 5))
        I("v_add_u32 v%d, 0x%x, v%d" % (vTR, L_RING, vT + 4))
        for k in range(4):
            I("v_mov_b32 v%d, 0x3f803f80" % (vONE + k))
        I("s_mul_i32 s%d, s%d, 2560" % (sT, sW))
        I("s_add_u32 s%d, s%d, 0x%x" % (sT, sT, L_KVI))
        I("v_add_u32 v%d, s%d, v%d" % (vKVL, sT, vL4))
        for r in range(4):
            I("v_add_u32 v%d, %d, v0" % (vT + 4, 64 * r))
            I("v_mul_u32_u24 v%d, 4370, v%d" % (vT + 5, vT + 4))
            I("v_lshrrev_b32 v%d, 16, v%d" % (vT + 5, vT + 5))
            I("v_add_u32 v%d, v%d, v%d" % (vT + 4, vT + 4, vT + 5))
            I("v_lshlrev_b32 v%d, 2, v%d" % (vT + 4, vT + 4))
            I("v_add_u32 v%d, s%d, v%d" % (vPOS + r, sT, vT + 4))
        I("v_lshrrev_b32 v%d, 1, v%d" % (vT + 4, g_))
        I("v_add_u32 v%d, v%d, v%d" % (vT + 4, vT + 4, g_))
        I("v_lshlrev_b32 v%d, 4, v%d" % (vT + 4, vT + 4))
        I("s_add_u32 s%d, s%d, %d" % (sT, sT, 276 * 4))
        I("v_add_u32 v%d, s%d, v%d" % (vZP, sT, vT + 4))
        I("v_cmp_eq_u32 vcc, 15, v%d" % i_)
        I("v_cndmask_b32 v%d, 0, 1.0, vcc" % (vCS1 + 3))
        b.wait(lg=0)
        I("s_xor_b32 s%d, s%d, 0x80000000" % (sTAG, sEP))
        I("s_and_b32 s%d, s%d, 0xfffffff0" % (sTAG, sTAG))
        for r, val in ((sEPS, 0x358637bd), (sL2E, 0x3fb8aa3b), (sNL2E, 0xbfb8aa3b),
                       (sM1, 0x22222222), (sM2, 0x44444444), (sM3, 0x88888888)):
            I("s_mov_b32 s%d, 0x%x" % (r, val))
            I("s_mov_b32 s%d, 0x%x" % (r + 1, val))
        I("s_mov_b32 s%d, 0x00f0000f" % sDIAG)
        I("s_mov_b32 s%d, 0xf0000f00" % (sDIAG + 1))
        I("v_lshlrev_b32 v%d, 10, v%d" % (vT + 4, g_))
        I("s_lshl_b32 s%d, s%d, 12" % (sT, sW))
        I("v_add_u32 v%d, s%d, v%d" % (vT + 4, sT, vT + 4))
        for t in range(4):
            I("v_xor_b32 v%d, %d, v%d" % (vCS1 + 4 + t, 32 * t, tc))
            I("v_add_u32 v%d, v%d, v%d" % (vCS1 + 4 + t, vCS1 + 4 + t, vT + 4))
            I("v_add_u32 v%d, 0x%x, v%d" % (vCS1 + 4 + t, L_PACK, vCS1 + 4 + t))
        I("v_lshlrev_b32 v%d, 10, v%d" % (vT + 14, i_))
        I("v_lshl_add_u32 v%d, v%d, 3, v%d" % (vT + 14, g_, vT + 14))
        I("s_add_u32 s%d, s%d, s%d" % (sT, sTAG, sXCC))
        I("v_mov_b32 v%d, s%d" % (vT + 15, sT))
        self.stamp("setup0")
        I("v_mov_b32 v%d, v%d" % (vCS1, l3))
        I("v_mov_b32 v%d, v%d" % (vCS1 + 1, q0))
        KL = env("KL", -1)
        for ks in range(NFIRST, 5):
            if ks == 4:
                btouch(2)
            for th in issue_thunks(ks):
                th()
        if KL == -1:
            self.pack_load([0])
        if env("TLBW", 0):
            I("s_add_u32 s%d, s%d, 0x%x" % (sT, sRG64, WS_X))
            I("v_mov_b32 v%d, s%d" % (vT + 4, sT))
            I("s_add_u32 s%d, s%d, 0x%x" % (sT, sRGH, WS_H))
            for k, (sg, off) in enumerate(((sT, 0), (sT, 65536), (sT, 131072), (sT, HSZ - 128), (sPK, 0), (sPK, 65536), (sPK, PKW - 128))):
                I("s_add_u32 s%d, s%d, 0x%x" % (sT + 1, sg, off))
                I("v_writelane_b32 v%d, s%d, %d" % (vT + 4, sT + 1, k + 1))
            I("s_mov_b64 exec, 0xff")
            I("buffer_load_dword v%d, v%d, s[%d:%d], 0 offen sc1" % (vDUM, vT + 4, R_WS, R_WS + 3))
            I("s_mov_b64 exec, 1")
            I("buffer_load_dword v%d, off, s[%d:%d], s%d" % (vDUM, R_OUT, R_OUT + 3, sRG64))
            I("s_mov_b64 exec, -1")
        I("s_mov_b64 exec, 1")
        I("buffer_load_dword v%d, off, s[%d:%d], s%d sc1" % (vDUM, R_WS, R_WS + 3, sFL))
        I("s_mov_b64 exec, -1")
        self.stamp("setup")

        res_toks = []
        KP, KANN, KI = env('KP', 4), env('KANN', 9), env('KI', 13)
        for ks in range(17):
            fill = []
            if ks < 16:
                b.wait(tokW[ks], tokA[ks // 2])
                I("s_barrier")
                if ks == 0:
                    self.stamp("w0")
                if ks == env("KT3", 1):
                    btouch(3)
                if ks > 0 and env("LSTAMP", 0):
                    self.stamp("it%d" % ks)
                if ks == 1:
                    for k in range(5):
                        I("ds_write_b32 v%d, v%d offset:%d" % (vKVL, vCS1 + 3, 256 * k))
                if ks == KANN:
                    assert b.vm_done > self.ptoks[-1][1] and b.vm_done > ztok[1]
                    lx = b.newlabel("Lann")
                    I("s_cmp_lg_u32 s%d, 0" % sW)
                    I("s_cbranch_scc1 %s" % lx)
                    I("s_lshl_b32 s%d, s%d, 7" % (sT, sRG))
                    I("s_add_u32 s%d, s%d, s%d" % (sT, sT, sR1))
                    I("s_mov_b64 exec, 1")
                    self.Inc("buffer_store_dword v%d, off, s[%d:%d], s%d sc1" % (vT + 15, R_WS, R_WS + 3, sT))
                    I("s_mov_b64 exec, -1")
                    b.label(lx)
                for p in range(3):
                    s = self.free.pop(0)
                    self.wslot[("qkv", 0, (32 + ks, 2 * ks, 2 * ks + 1)[p])] = (s, None)
                    for hh in range(2):
                        fill.append(lambda s=s, hh=hh, p=p: I("ds_read_b64_tr_b16 %s, v%d offset:%d" % (
                            vr(s[1] + 2 * hh, 2, s[0]), vTR, (ks % 5) * 12288 + p * 1024 + hh * 512)))
                fb = vAF + (ks & 1) * 20
                ds, h = ks // 2, ks & 1
                for rt in range(4):
                    fill.append(lambda rt=rt: I("ds_read_b128 %s, v%d offset:%d" % (
                        vr(fb + 4 * rt, 4), (vX0, vX1)[h], ds * 8192 + rt * 2048)))
                fill.append(lambda: I("ds_read_b128 %s, v%d offset:%d" % (vr(fb + 16, 4), (vOW0, vOW1)[h], ds * 8192)))
                if ks >= 1 and ks + 4 < 16:
                    dm = issue_thunks(ks + 4)
                    for k, th in enumerate(dm):
                        fill.insert(2 * k + 1, th)
                if ks == 11:
                    def resid():
                        I("s_lshl_b32 s%d, s%d, 7" % (sT, sC))
                        I("s_lshl_b32 s%d, s%d, 5" % (sT + 1, sW))
                        I("s_add_u32 s%d, s%d, s%d" % (sT, sT, sT + 1))
                        I("s_add_u32 s%d, s%d, s%d" % (sT, sT, sRG64))
                        for rt in range(4):
                            res_toks.append(I("buffer_load_dwordx2 v[%d:%d], v%d, s[%d:%d], s%d offen" % (
                                vAB + 2 * rt, vAB + 2 * rt + 1, vT + 14, R_X, R_X + 3, sT)))
                            if rt < 3:
                                I("s_add_u32 s%d, s%d, 16384" % (sT, sT))
                    fill.append(resid)
                if ks == KL:
                    fill.append(lambda: self.pack_load([0]))
                if ks == env('KOX', 99):
                    fill.append(lambda: self.touch_ox(0))
                if ks == env('KH', 99):
                    fill.append(lambda: self.touch_h(0))
                if ks == KI:
                    fill.append(self.r1_issue)
                if ks == KP:
                    u = ks - KP

                    def prd(u=u):
                        b.wait(self.pack_toks[4 * u:4 * u + 4])
                        for t in range(4):
                            if u:
                                I("v_add_u32 v%d, %d, v%d" % (vCS1 + 4 + t, L_PACK2 - L_PACK, vCS1 + 4 + t))
                            for hh in range(2):
                                d = vACC + 4 * t + 2 * hh
                                I("ds_read_b64_tr_b16 v[%d:%d], v%d offset:%d" % (d, d + 1, vCS1 + 4 + t, hh * 512))
                    fill.append(prd)
            mfs = []
            if ks >= 1:
                k1 = ks - 1
                fb1 = vAF + (k1 & 1) * 20
                c0 = "0" if k1 == 0 else None
                wq, wk, wv = [slot_r(self.wslot[("qkv", 0, k)][0]) for k in (32 + k1, 2 * k1, 2 * k1 + 1)]
                one = vr(vONE, 4)
                for rt in range(4):
                    mfs.append(self.mf(vACC + 16 + 4 * rt, vr(fb1 + 4 * rt, 4), wk, c0))
                    mfs.append(self.mf(vACC + 32 + 4 * rt, vr(fb1 + 4 * rt, 4), wv, c0))
                own = vr(fb1 + 16, 4)
                mfs += [self.mf(vS1, one, own, c0), self.mf(vS2, own, own, c0),
                        self.mf(vCSK, one, wk, c0), self.mf(vCSV, one, wv, c0)]
            while mfs or fill:
                if fill:
                    fill.pop(0)()
                if len(fill) > len(mfs) and fill:
                    fill.pop(0)()
                if mfs:
                    mfs.pop(0)()
            b.wait(lg=0)
            if ks == KP:
                self.ptoks = []
                for t in range(4):
                    tk = I("buffer_store_dwordx4 %s, v%d, s[%d:%d], s%d offen sc1" % (
                        vr(vACC + 4 * t, 4), vL16, R_WS, R_WS + 3, 80 + 4 * (ks - KP) + t))
                    self.ptoks.append(tk)
        b.wait(res_toks)
        for rt in range(4):
            for k in range(2):
                s = vAB + 2 * rt + k
                I("v_lshlrev_b32 v%d, 16, v%d" % (vX + 4 * rt + 2 * k, s))
                I("v_and_b32 v%d, 0xffff0000, v%d" % (vX + 4 * rt + 2 * k + 1, s))

    def pack_load(self, units):
        b = self.b
        I = b.I
        l3, q0 = vCS1, vCS1 + 1
        for u in units:
            dst = 80 + 4 * u
            uid, src, strd = sT, sT + 1, sT + 2
            I("s_lshl_b32 s%d, s%d, 2" % (uid, sRG))
            I("s_add_u32 s%d, s%d, s%d" % (uid, uid, sW))
            if u:
                I("s_add_u32 s%d, s%d, 128" % (uid, uid))
            lw1, lw2, lq, lnone, lgo = [b.newlabel("Lpk") for _ in range(5)]
            I("s_mul_i32 s88, s%d, %d" % (sC, 4 * PKW))
            I("s_mov_b32 s%d, 0x20000" % (R_PK + 3))

            def setsrd(ptr, size, stride):
                I("s_mov_b32 s%d, s%d" % (R_PK, ptr))
                I("s_and_b32 s%d, s%d, 0xffff" % (R_PK + 1, ptr + 1))
                I("s_mov_b32 s%d, %d" % (R_PK + 2, size))
                I("s_movk_i32 s%d, %d" % (strd, stride))

            def simple(f0):
                I("s_lshl_b32 s%d, s%d, 15" % (src, uid))
                I("s_lshl_b32 s89, s%d, 7" % sC)
                I("s_add_u32 s%d, s%d, s89" % (src, src))
                I("s_add_u32 s89, s%d, %d" % (uid, f0))
                I("s_lshl_b32 s89, s89, 10")
                I("s_add_u32 s88, s88, s89")
                for t in range(4):
                    I("s_add_u32 s%d, s88, %d" % (dst + t, t * PKW))
                I("s_branch %s" % lgo)

            if env("NOPACK", 0):
                I("s_branch %s" % lnone)
            if u == 0:
                I("s_cmp_ge_u32 s%d, 16" % uid)
                I("s_cbranch_scc1 %s" % lw1)
                setsrd(S_WO, 512 * 1024, 1024)
                simple(F_WO)
                b.label(lw1)
                I("s_cmp_ge_u32 s%d, 64" % uid)
                I("s_cbranch_scc1 %s" % lw2)
                I("s_sub_u32 s%d, s%d, 16" % (uid, uid))
                I("s_mul_i32 s89, s%d, 43" % uid)
                I("s_lshr_b32 s89, s89, 7")
                I("s_mul_i32 s92, s89, 3")
                I("s_sub_u32 s92, s%d, s92" % uid)
                setsrd(S_W1, 512 * 2752, 2752)
                I("s_mul_i32 s%d, s89, %d" % (src, 32 * 2752))
                I("s_mul_i32 s79, s%d, 384" % sC)
                I("s_add_u32 s%d, s%d, s79" % (src, src))
                I("s_lshl_b32 s79, s92, 7")
                I("s_add_u32 s%d, s%d, s79" % (src, src))
                I("s_mul_i32 s89, s89, 3072")
                I("s_add_u32 s88, s88, s89")
                I("s_add_u32 s88, s88, %d" % (F_W1 * 1024))
                for t in range(4):
                    I("s_lshl_b32 s79, s92, 2")
                    I("s_add_u32 s79, s79, %d" % t)
                    I("s_mul_i32 s89, s79, 43")
                    I("s_lshr_b32 s89, s89, 7")
                    I("s_mul_i32 s%d, s89, %d" % (dst + t, PKW - 3072))
                    I("s_lshl_b32 s79, s79, 10")
                    I("s_add_u32 s%d, s%d, s79" % (dst + t, dst + t))
                    I("s_add_u32 s%d, s%d, s88" % (dst + t, dst + t))
                I("s_mul_i32 s79, s%d, 3" % sC)
                I("s_add_u32 s79, s79, s92")
                I("s_cmp_ge_u32 s79, 22")
                I("s_cbranch_scc1 %s" % lnone)
                I("s_branch %s" % lgo)
                b.label(lw2)
                I("s_cmp_ge_u32 s%d, 107" % uid)
                I("s_cbranch_scc1 %s" % lnone)
                I("s_sub_u32 s%d, s%d, 64" % (uid, uid))
                setsrd(S_W2, 1376 * 1024, 1024)
                simple(F_W2)
            b.label(lnone)
            setsrd(S_WQ, 0, 1024)
            I("s_mov_b32 s%d, 0" % src)
            for t in range(4):
                I("s_mov_b32 s%d, 0x%x" % (dst + t, OOB))
            b.label(lgo)
            I("v_mul_lo_u32 v%d, v%d, s%d" % (vT + 4, l3, strd))
            I("v_add_u32 v%d, v%d, v%d" % (vT + 10, vT + 4, q0))
            I("v_xor_b32 v%d, 64, v%d" % (vT + 5, q0))
            I("v_add_u32 v%d, v%d, v%d" % (vT + 11, vT + 4, vT + 5))
            I("s_lshl_b32 s%d, s%d, 3" % (strd, strd))
            I("s_lshl_b32 s89, s%d, 12" % sW)
            I("s_add_u32 m0, s89, 0x%x" % ((L_PACK, L_PACK2)[u]))
            for q in range(4):
                self.pack_toks.append(I("buffer_load_dwordx4 v%d, s[%d:%d], s%d offen lds" % (
                    vT + 10 + (q & 1), R_PK, R_PK + 3, src)))
                if q < 3:
                    I("s_add_u32 s%d, s%d, s%d" % (src, src, strd))
                    I("s_add_u32 m0, m0, 1024")

    def tag_poll(self, voff, soff, vd, first_tok=None):
        b = self.b
        I = b.I
        lp, ld, lc = b.newlabel("Ltag"), b.newlabel("Ltagd"), b.newlabel("Ltagc")
        if first_tok is not None:
            b.wait(first_tok)
            I("s_branch %s" % lc)
        b.label(lp)
        self.Inc("buffer_load_dword v%d, v%d, s[%d:%d], s%d offen sc1" % (vd, voff, R_WS, R_WS + 3, soff))
        if first_tok is None:
            b.wait(vm=0)
        else:
            I("s_waitcnt vmcnt(0)")
        b.label(lc)
        I("v_subrev_u32 v%d, s%d, v%d" % (vd + 1, sTAG, vd))
        I("v_cmp_gt_u32 vcc, 16, v%d" % (vd + 1))
        I("s_cmp_eq_u64 vcc, exec")
        I("s_cbranch_scc1 %s" % ld)
        self.spin_guard(lp)
        b.label(ld)

    def r1_issue(self):
        I = self.b.I
        a = vCS1 + 2
        I("v_and_b32 v%d, 7, v0" % a)
        I("v_subrev_u32 v%d, s%d, v%d" % (a, sC, a))
        I("v_lshlrev_b32 v%d, 12, v%d" % (a, a))
        I("s_lshl_b32 s%d, s%d, 7" % (sT, sRG))
        I("s_add_u32 s%d, s%d, s%d" % (sT, sT, sR1))
        I("v_add_u32 v%d, s%d, v%d" % (a, sT, a))
        I("v_add_u32 v%d, s%d, v%d" % (vT + 5, sR1, vTCH))
        I("v_cmp_gt_u32 vcc, 32, v0")
        I("v_cndmask_b32 v%d, v%d, v%d, vcc" % (a, a, vT + 5))
        self.r1_tok = I("buffer_load_dword v%d, v%d, s[%d:%d], 0 offen sc1" % (vT + 12, a, R_WS, R_WS + 3))

    def r1_check(self):
        I = self.b.I
        I("s_mov_b32 s%d, 0" % sT)
        self.tag_poll(vCS1 + 2, sT, vT + 12, self.r1_tok)
        I("v_cmp_eq_u32 vcc, s%d, v%d" % (sXCC, vT + 13))
        I("s_cmp_eq_u32 vcc_hi, -1")
        I("s_cselect_b32 s%d, 1, 0" % sFAST)

    def touch_ox(self, layer):
        I = self.b.I
        I("s_add_u32 s%d, s%d, 0x%x" % (sT, sRG64, self.buf("X", 2 * layer) - 8192))
        I("s_add_u32 s%d, s%d, 0x%x" % (sT + 1, self.rgs("O"), self.buf("O", layer)))
        I("s_bitcmp1_b32 s%d, 1" % sW)
        I("s_cselect_b32 s%d, s%d, s%d" % (sT, sT, sT + 1))
        I("s_lshl_b32 s%d, s%d, 13" % (sT + 1, sC))
        I("s_add_u32 s%d, s%d, s%d" % (sT, sT, sT + 1))
        I("s_lshl_b32 s%d, s%d, 12" % (sT + 1, sW))
        I("s_add_u32 s%d, s%d, s%d" % (sT, sT, sT + 1))
        I("s_mov_b32 exec_hi, 0")
        I("buffer_load_dword v%d, v%d, s[%d:%d], s%d offen sc1" % (vDUM, vTCH, R_WS, R_WS + 3, sT))
        I("s_mov_b32 exec_hi, -1")

    def touch_h(self, layer):
        I = self.b.I
        I("s_lshl_b32 s%d, s%d, 13" % (sT, sC))
        I("s_add_u32 s%d, s%d, s%d" % (sT, sT, sRG64))
        I("s_add_u32 s%d, s%d, 0x%x" % (sT, sT, self.buf("X", 1)))
        I("s_mul_i32 s%d, s%d, 3" % (sT + 1, sC))
        I("s_add_u32 s%d, s%d, s%d" % (sT + 1, sT + 1, sW))
        I("s_sub_u32 s%d, s%d, 1" % (sT + 1, sT + 1))
        I("s_lshl_b32 s%d, s%d, 13" % (sT + 2, sT + 1))
        I("s_add_u32 s%d, s%d, s%d" % (sT + 2, sT + 2, sRGH))
        I("s_add_u32 s%d, s%d, 0x%x" % (sT + 2, sT + 2, self.buf("H", layer)))
        I("s_cmp_lt_u32 s%d, 22" % (sT + 1))
        I("s_cselect_b32 s%d, s%d, 0x%x" % (sT + 2, sT + 2, OOB))
        I("s_cmp_eq_u32 s%d, 0" % sW)
        I("s_cselect_b32 s%d, s%d, s%d" % (sT, sT, sT + 2))
        I("buffer_load_dword v%d, v%d, s[%d:%d], s%d offen sc1" % (vDUM, vTCH, R_WS, R_WS + 3, sT))

    def p1_kv_pass(self, layer, toks):
        chunk_of, chunk_open = self.chunker(toks, env("B1", [0, 1, 3, 7]))
        items = []
        one = vr(vONE, 4)
        for ks in range(16):
            ds, h = ks // 2, ks & 1
            c0 = "0" if ks == 0 else None
            for rt in range(4):
                def mfs(fr, ks=ks, rt=rt, c0=c0):
                    kk, kv_ = ("qkv", 0, 2 * ks), ("qkv", 0, 2 * ks + 1)
                    wk, wv = self.w_get(kk), self.w_get(kv_)
                    th = [self.mf(vACC + 16 + 4 * rt, fr, wk, c0), self.mf(vACC + 32 + 4 * rt, fr, wv, c0)]
                    if rt == 3:
                        th.append(lambda: (self.w_release(kk), self.w_release(kv_)))
                    return th
                items.append((vL16, ds * 8192 + rt * 2048 + h * 1024, chunk_of(ds), ds, mfs))
            items.append((vDMA, ds * 8192 + h * 1024, chunk_of(ds), ds,
                          lambda fr, c0=c0: [self.mf(vS1, one, fr, c0), self.mf(vS2, fr, fr, c0)]))
        self.bg_w = env("W_P1", 99)
        self.lead = env("LEAD1", 64)
        self.gemm(items, chunk_open, 8)

    def p1_rest(self, layer):
        b = self.b
        I = self.I
        self.stamp("kvpass")
        if layer == 0:
            self.r1_check()
            self.stamp("rchk")
        self.bg_w = env("W_KVE", 14)
        self.stats_publish()
        t1 = self.stats_read_kv()
        t2 = self.stats_read_q()
        b.wait(t1, t2)
        aK, aV = vACC + 16, vACC + 32
        for rt in range(4):
            for r in (0, 2):
                a_, b_ = vAF + 4 * rt + r, vAF + 16 + 4 * rt + r
                k_, v_ = aK + 4 * rt + r, aV + 4 * rt + r
                u = vT + 4 * ((rt * 2 + r // 2) % 4)
                I("v_pk_fma_f32 v[%d:%d], v[%d:%d], v[%d:%d], s[%d:%d]" % (u, u + 1, b_, b_ + 1, vCSK, vCSK + 1, sEPS, sEPS + 1))
                I("v_pk_mul_f32 v[%d:%d], v[%d:%d], v[%d:%d]" % (u + 2, u + 3, b_, b_ + 1, vCSV, vCSV + 1))
                I("v_pk_fma_f32 v[%d:%d], v[%d:%d], v[%d:%d], v[%d:%d]" % (k_, k_ + 1, a_, a_ + 1, k_, k_ + 1, u, u + 1))
                I("v_pk_fma_f32 v[%d:%d], v[%d:%d], v[%d:%d], v[%d:%d]" % (v_, v_ + 1, a_, a_ + 1, v_, v_ + 1, u + 2, u + 3))
        PKK, PKV = vAF + 32, vAF + 40
        for rt in range(4):
            for r in (0, 2):
                I("v_cvt_pk_bf16_f32 v%d, v%d, v%d" % (PKV + 2 * rt + r // 2, aV + 4 * rt + r, aV + 4 * rt + r + 1))
        self.phi_pairs([(aK + 4 * rt + r, PKK + 2 * rt + r // 2) for rt in range(4) for r in (0, 2)])
        KVD, ZD = vS1, vS2
        one = vr(vONE, 4)
        self.bg_w = 0
        for p in range(2):
            c0 = "0" if p == 0 else None
            self.mf(KVD, vr(PKK + 4 * p, 4), vr(PKV + 4 * p, 4), c0)()
            self.mf(ZD, vr(PKK + 4 * p, 4), one, c0)()
        b.I("s_add_u32 s%d, s%d, %d" % (sKB, sKV, layer * 2560))
        b.I("s_and_b32 s%d, s%d, 1" % (sKB + 1, sRG))
        b.I("s_mul_i32 s%d, s%d, 1280" % (sKB + 1, sKB + 1))
        b.I("s_add_u32 s%d, s%d, s%d" % (sKB + 1, sKB + 1, sKB))
        for r in range(4):
            b.I("ds_write_b32 v%d, v%d" % (vPOS + r, KVD + r))
        b.I("s_mov_b32 exec_lo, 0x00010001")
        b.I("s_mov_b32 exec_hi, 0x00010001")
        b.I("ds_write_b128 v%d, %s" % (vZP, vr(ZD, 4)))
        b.I("s_mov_b64 exec, -1")
        rd = [b.I("ds_read_b32 v%d, v%d offset:%d" % (vT + k, vKVL, 256 * k)) for k in range(5)]
        for k in range(5):
            b.wait(rd[k])
            if k == 4:
                b.I("s_mov_b32 exec_hi, 0xffff")
            b.I("buffer_atomic_add_f32 v%d, v%d, s[%d:%d], s%d offen offset:%d" % (
                vT + k, vL4, R_WS, R_WS + 3, sKB + 1, k * 256))
        b.I("s_mov_b64 exec, -1")
        self.stamp("atom")
        if layer or env("FTOUCH", 0):
            self.touch_ox(layer)
        if layer == 0 and env("FTOUCH", 0):
            self.touch_h(0)
        self.last_bg = self.clock + env("QDELAY", [0, 0])[layer]
        self.bg_w = env("W_Q", 99)
        items = []
        for ks in range(16):
            ds, h = ks // 2, ks & 1
            c0 = "0" if ks == 0 else None
            if layer:
                def keep(fr):
                    self.wq_reg = fr
                    return []
                items.append((vWQ, ks * 1024, None, ds, keep))
            for rt in range(4):
                def mfs(fr, ks=ks, rt=rt, c0=c0):
                    w = self.w_get(("qkv", 0, 32 + ks)) if layer == 0 else self.wq_reg
                    th = [self.mf(vACC + 4 * rt, w, fr, c0)]
                    if layer == 0 and rt == 0:
                        th.append(self.mf(vCSQ, w, one, c0))
                    return th
                if layer == 0:
                    items.append(((vX0, vX1)[h], ds * 8192 + rt * 2048, None, ds, mfs))
                else:
                    items.append((vL16, ds * 8192 + rt * 2048 + h * 1024, None, ds, mfs))
        self.gemm(items, None, 11 if layer == 0 else 7)
        if layer == 0:
            b.I("s_lshl_b32 s%d, s%d, 14" % (sT, sW))
            b.I("s_add_u32 s%d, s%d, 0x%x" % (sT, sT, L_WQ))
            b.I("v_add_u32 v%d, s%d, v%d" % (vWQ, sT, vL16))
            for ks in range(16):
                k = ("qkv", 0, 32 + ks)
                b.I("ds_write_b128 v%d, %s offset:%d" % (vWQ, slot_r(self.wslot[k][0]), ks * 1024))
            b.wait(lg=0)
            for ks in range(16):
                self.w_release(("qkv", 0, 32 + ks))
        PQ = vACC + 16
        for rt in range(4):
            ab = vAB + 2 * rt
            for r in (0, 2):
                q_ = vACC + 4 * rt + r
                u = vT + 2 * ((rt * 2 + r // 2) % 8)
                I("v_pk_fma_f32 v[%d:%d], v[%d:%d], v[%d:%d], s[%d:%d] op_sel:[0,1,0] op_sel_hi:[1,1,1]" % (
                    u, u + 1, vCSQ + r, vCSQ + r + 1, ab, ab + 1, sEPS, sEPS + 1))
                I("v_pk_fma_f32 v[%d:%d], v[%d:%d], v[%d:%d], v[%d:%d] op_sel:[0,0,0] op_sel_hi:[1,0,1]" % (
                    q_, q_ + 1, q_, q_ + 1, ab, ab + 1, u, u + 1))
        self.phi_pairs([(vACC + 4 * rt + r, PQ + 2 * rt + r // 2) for rt in range(4) for r in (0, 2)])
        self.stamp("qpass")
        self.bg_w = 0
        self.w_burst(env("W_S1", [16, 16])[layer])
        b.I("v_add_u32 v%d, 0x400, v%d" % (vC2, vL16))
        b.I("v_cmp_gt_u32 vcc, 12, v0")
        b.I("v_mov_b32 v%d, 0x%x" % (vT, OOB))
        b.I("v_cndmask_b32 v%d, v%d, v%d, vcc" % (vC2, vT, vC2))
        b.I("s_add_u32 s%d, s%d, s%d" % (sT + 6, self.rgs("O"), sSTO))
        b.I("s_add_u32 s%d, s%d, 0x%x" % (sT + 6, sT + 6, self.buf("O", layer)))
        b.I("s_add_u32 s%d, s%d, 4096" % (sT + 7, sT + 6))
        self.stamp("s1burst")
        lp, ld = b.newlabel("Lkv"), b.newlabel("Lkvd")
        b.label(lp)
        b.I("buffer_load_dwordx4 %s, v%d, s[%d:%d], s%d offen sc1" % (vr(vT, 4), vL16, R_WS, R_WS + 3, sKB))
        b.I("buffer_load_dwordx4 %s, v%d, s[%d:%d], s%d offen offset:1280 sc1" % (vr(vT + 4, 4), vL16, R_WS, R_WS + 3, sKB))
        b.I("buffer_load_dwordx4 %s, v%d, s[%d:%d], s%d offen sc1" % (vr(vT + 8, 4), vC2, R_WS, R_WS + 3, sKB))
        b.I("buffer_load_dwordx4 %s, v%d, s[%d:%d], s%d offen offset:1280 sc1" % (vr(vT + 12, 4), vC2, R_WS, R_WS + 3, sKB))
        b.wait(vm=0)
        for k in (0, 2, 8, 10):
            b.I("v_pk_add_f32 v[%d:%d], v[%d:%d], v[%d:%d]" % (vT + k, vT + k + 1, vT + k, vT + k + 1, vT + k + 4, vT + k + 5))
        b.I("v_cmp_eq_f32 vcc, 0x42000000, v%d" % (vT + 3))
        b.I("v_cmp_eq_f32 s[%d:%d], v%d, v%d" % (sT, sT + 1, vT + 11, vT + 3))
        b.I("s_and_b64 vcc, vcc, s[%d:%d]" % (sM3, sM3 + 1))
        b.I("s_and_b32 s%d, s%d, 0x888" % (sT, sT))
        b.I("s_xor_b32 s%d, s%d, 0x888" % (sT, sT))
        b.I("s_xor_b64 vcc, vcc, s[%d:%d]" % (sM3, sM3 + 1))
        b.I("s_or_b32 s%d, s%d, vcc_lo" % (sT, sT))
        b.I("s_or_b32 s%d, s%d, vcc_hi" % (sT, sT))
        b.I("s_cbranch_scc0 %s" % ld)
        self.spin_guard(lp)
        b.label(ld)
        self.stamp("kvsync")
        b.I("v_lshl_add_u32 v%d, v0, 4, v%d" % (vT + 4, vKVL))
        b.I("v_sub_u32 v%d, v%d, v%d" % (vT + 4, vT + 4, vL4))
        b.I("ds_write_b128 v%d, %s offset:1280" % (vT + 4, vr(vT, 4)))
        b.I("s_mov_b64 exec, 0xfff")
        b.I("ds_write_b128 v%d, %s offset:2304" % (vT + 4, vr(vT + 8, 4)))
        b.I("s_mov_b64 exec, -1")
        lt = [b.I("ds_read_b32 v%d, v%d offset:1280" % (vT + 12 + r, vPOS + r)) for r in range(4)]
        lt.append(b.I("ds_read_b128 %s, v%d offset:1280" % (vr(vT + 4, 4), vZP)))
        b.wait(lt)
        I("v_cvt_pk_bf16_f32 v%d, v%d, v%d" % (vT + 10, vT + 4, vT + 5))
        I("v_cvt_pk_bf16_f32 v%d, v%d, v%d" % (vT + 11, vT + 6, vT + 7))
        I("v_cvt_pk_bf16_f32 v%d, v%d, v%d" % (vT + 8, vT + 12, vT + 13))
        I("v_cvt_pk_bf16_f32 v%d, v%d, v%d" % (vT + 9, vT + 14, vT + 15))
        NUM, DEN = vACC, vACC + 32
        for rt in range(4):
            I("v_mfma_f32_16x16x16_bf16 %s, v[%d:%d], v[%d:%d], 0" % (vr(DEN + 4 * rt, 4), vT + 10, vT + 11, PQ + 2 * rt, PQ + 2 * rt + 1))
        for rt in range(4):
            I("v_mfma_f32_16x16x16_bf16 %s, v[%d:%d], v[%d:%d], 0" % (vr(NUM + 4 * rt, 4), vT + 8, vT + 9, PQ + 2 * rt, PQ + 2 * rt + 1))
        for rt in range(4):
            I("v_add_f32 v%d, s%d, v%d" % (DEN + 4 * rt, sEPS, DEN + 4 * rt))
        for rt in range(4):
            I("v_rcp_f32 v%d, v%d" % (DEN + 4 * rt, DEN + 4 * rt))
        for rt in range(4):
            for r in (0, 2):
                n_ = NUM + 4 * rt + r
                I("v_pk_mul_f32 v[%d:%d], v[%d:%d], v[%d:%d] op_sel_hi:[1,0]" % (n_, n_ + 1, n_, n_ + 1, DEN + 4 * rt, DEN + 4 * rt + 1))
        for rt in range(4):
            for r in (0, 2):
                I("v_cvt_pk_bf16_f32 v%d, v%d, v%d" % (vT + 2 * rt + r // 2, NUM + 4 * rt + r, NUM + 4 * rt + r + 1))
        return self.stores2(self.tile_stores(vT, sT + 6), layer == 0)

    def n16_pass(self, name, layer, nks, toks, bounds):
        chunk_of, chunk_open = self.chunker(toks, bounds)
        items = []
        for ks in range(nks):
            ds, h = ks // 2, ks & 1
            for rt in range(4):
                def mfs(fr, ks=ks, rt=rt):
                    w = self.w_get((name, layer, ks))
                    th = [self.mf(vX + 4 * rt, w, fr)]
                    if rt == 3:
                        th.append(lambda: self.w_release((name, layer, ks)))
                    return th
                a, off = self.lds_addr((ds % NRING) * 8192 + rt * 2048 + h * 1024)
                items.append((a, off, chunk_of(ds), ds, mfs))
        self.gemm(items, chunk_open, 11)

    def x_store(self, idx):
        I = self.I
        self.bg_w = 0
        self.b.I("s_add_u32 s%d, s%d, s%d" % (sT + 6, sRG64, sSTO))
        self.b.I("s_add_u32 s%d, s%d, 0x%x" % (sT + 6, sT + 6, self.buf("X", idx)))
        self.b.I("s_add_u32 s%d, s%d, 4096" % (sT + 7, sT + 6))
        for rt in range(4):
            for r in (0, 2):
                I("v_cvt_pk_bf16_f32 v%d, v%d, v%d" % (vT + 2 * rt + r // 2, vX + 4 * rt + r, vX + 4 * rt + r + 1))
        return self.stores2(self.tile_stores(vT, sT + 6), idx == 0 or self.sep)

    def p3(self, layer, toks):
        b = self.b
        I = self.I
        chunk_of, chunk_open = self.chunker(toks, env("B3", [0, 1, 3, 7]))
        items = []
        one = vr(vONE, 4)
        for ks in range(16):
            ds, h = ks // 2, ks & 1
            c0 = "0" if ks == 0 else None
            for rt in range(4):
                def mfs(fr, ks=ks, rt=rt, c0=c0):
                    th = []
                    for t in range(3):
                        w = self.w_get(("w1", layer, 3 * ks + t))
                        th.append(self.mf(vACC + 16 * t + 4 * rt, w, fr, c0))
                        if layer == 0 and rt == 0:
                            th.append(self.mf(vCS1 + 4 * t, w, one, c0))
                    if rt == 3:
                        th.append(lambda: [self.w_release(("w1", layer, 3 * ks + t)) for t in range(3)])
                    return th
                items.append((vL16, ds * 8192 + rt * 2048 + h * 1024, chunk_of(ds), ds, mfs))
            items.append((vDMA, ds * 8192 + h * 1024, chunk_of(ds), ds,
                          lambda fr, c0=c0: [self.mf(vS1, one, fr, c0), self.mf(vS2, fr, fr, c0)]))
        self.bg_w = env("W_P3", 99)
        self.lead = env("LEAD3", 64)
        self.gemm(items, chunk_open, 8)
        self.stamp("p3gemm")
        self.bg_w = env("W_P3E", 20)
        self.lead = 0
        self.stats_publish()
        t2 = self.stats_read_q()
        for t in range(3):
            b.I("s_add_u32 s%d, s%d, 0x%x" % (sT + 6 + 2 * t, sH0 + t, self.buf("H", layer)))
            b.I("s_add_u32 s%d, s%d, 4096" % (sT + 7 + 2 * t, sT + 6 + 2 * t))
        b.wait(t2)
        sts = []
        P = vAF
        for t in range(3):
            for r2 in range(2):
                prs = [(rt, r) for rt in (2 * r2, 2 * r2 + 1) for r in (0, 2)]
                for k, (rt, r) in enumerate(prs):
                    ab = vAB + 2 * rt
                    I("v_pk_mul_f32 v[%d:%d], v[%d:%d], v[%d:%d] op_sel:[0,1] op_sel_hi:[1,1]" % (
                        vT + 2 * k, vT + 2 * k + 1, vCS1 + 4 * t + r, vCS1 + 4 * t + r + 1, ab, ab + 1))
                for k, (rt, r) in enumerate(prs):
                    ab = vAB + 2 * rt
                    x_ = vACC + 16 * t + 4 * rt + r
                    I("v_pk_fma_f32 v[%d:%d], v[%d:%d], v[%d:%d], v[%d:%d] op_sel:[0,0,0] op_sel_hi:[1,0,1]" % (
                        x_, x_ + 1, x_, x_ + 1, ab, ab + 1, vT + 2 * k, vT + 2 * k + 1))
                for k, (rt, r) in enumerate(prs):
                    x_ = vACC + 16 * t + 4 * rt + r
                    I("v_pk_mul_f32 v[%d:%d], v[%d:%d], s[%d:%d]" % (vT + 2 * k, vT + 2 * k + 1, x_, x_ + 1, sNL2E, sNL2E + 1))
                for k in range(8):
                    I("v_exp_f32 v%d, v%d" % (vT + k, vT + k))
                for k in range(4):
                    I("v_pk_add_f32 v[%d:%d], v[%d:%d], 1.0 op_sel_hi:[1,0]" % (vT + 2 * k, vT + 2 * k + 1, vT + 2 * k, vT + 2 * k + 1))
                for k in range(8):
                    I("v_rcp_f32 v%d, v%d" % (vT + k, vT + k))
                for k, (rt, r) in enumerate(prs):
                    x_ = vACC + 16 * t + 4 * rt + r
                    I("v_pk_mul_f32 v[%d:%d], v[%d:%d], v[%d:%d]" % (x_, x_ + 1, x_, x_ + 1, vT + 2 * k, vT + 2 * k + 1))
                for k, (rt, r) in enumerate(prs):
                    x_ = vACC + 16 * t + 4 * rt + r
                    I("v_cvt_pk_bf16_f32 v%d, v%d, v%d" % (P + 8 * t + 2 * rt + r // 2, x_, x_ + 1))
            sts += self.stores2(self.tile_stores(P + 8 * t, sT + 6 + 2 * t), layer == 0)
        return sts

    def final_store(self):
        I = self.b.I
        I("v_and_b32 v%d, 15, v0" % (vT + 8))
        I("v_lshlrev_b32 v%d, 10, v%d" % (vT + 8, vT + 8))
        I("v_lshrrev_b32 v%d, 4, v0" % (vT + 9))
        I("v_lshl_add_u32 v%d, v%d, 3, v%d" % (vT + 8, vT + 9, vT + 8))
        I("s_lshl_b32 s%d, s%d, 7" % (sT, sC))
        I("s_lshl_b32 s%d, s%d, 5" % (sT + 1, sW))
        I("s_add_u32 s%d, s%d, s%d" % (sT, sT, sT + 1))
        I("s_add_u32 s%d, s%d, s%d" % (sT, sT, sRG64))
        for rt in range(4):
            for r in (0, 2):
                I("v_cvt_pk_bf16_f32 v%d, v%d, v%d" % (vT + 2 * rt + r // 2, vX + 4 * rt + r, vX + 4 * rt + r + 1))
            I("buffer_store_dwordx2 v[%d:%d], v%d, s[%d:%d], s%d offen%s" % (
                vT + 2 * rt, vT + 2 * rt + 1, vT + 8, R_OUT, R_OUT + 3, sT, env("OUTPOL", "")))
            if rt < 3:
                I("s_add_u32 s%d, s%d, 16384" % (sT, sT))

    def body(self):
        b = self.b
        for layer in range(2):
            self.w_enqueue("wo", layer, F_WO, 16)
            self.w_enqueue("w1", layer, F_W1, 48)
            self.w_enqueue("w2", layer, F_W2, 43)
        ph = 0
        BURSTS = env("W_PUB", [[8, 8, 8, 8], [8, 8, 8, 8]])
        AF = env("AFIRST", 8)
        for layer in range(2):
            BURST = BURSTS[layer]
            self.pace_w = env('PACEW', [75, 62])[layer]
            if layer == 0:
                self.startup()
            else:
                toks = self.start_tile("X", 1, 16, AF, rot=True)
                self.p1_kv_pass(layer, toks)
            st = self.p1_rest(layer)
            ph += 1
            self.publish(st, ph, BURST[0])
            self.stamp("o_pub")
            self.poll_flags(ph)
            self.stamp("o_rdy")
            toks = self.start_tile("O", layer, 16, AF)
            self.bg_w = env("W_P2", 99)
            self.n16_pass("wo", layer, 16, toks, env("B2", [0, 1, 2, 3, 5, 7]))
            self.stamp("p2gemm")
            st = self.x_store(2 * layer)
            ph += 1
            self.publish(st, ph, BURST[1])
            self.stamp("x1_pub")
            self.poll_flags(ph)
            self.stamp("x1_rdy")
            toks = self.start_tile("X", 2 * layer, 16, AF)
            if layer:
                self.aq.append(lambda layer=layer: self.touch_h(layer))
                self.a_nks += 1
            st = self.p3(layer, toks)
            ph += 1
            self.publish(st, ph, BURST[2])
            self.stamp("h_pub")
            self.poll_flags(ph)
            self.stamp("h_rdy")
            toks = self.start_tile("H", layer, 43, AF)
            if layer == 1 and env("WBL2", 0):
                lx = b.newlabel("Lwb")
                b.I("s_cmp_lg_u32 s%d, 0" % sW)
                b.I("s_cbranch_scc1 %s" % lx)
                if env("WBL2", 0) == 2:
                    b.I("s_cmp_ge_u32 s2, 8")
                    b.I("s_cbranch_scc1 %s" % lx)
                self.Inc("buffer_wbl2 sc1")
                b.label(lx)
            self.bg_w = env("W_P4", 99)
            self.n16_pass("w2", layer, 43, toks, env("B4", [0, 1, 2, 3, 5, 7, 9, 11, 13, 15, 17, 19, 21]))
            self.stamp("p4gemm")
            if layer == 0:
                st = self.x_store(1)
                ph += 1
                self.publish(st, ph, BURST[3])
                self.stamp("x2_pub")
                self.poll_flags(ph)
                self.stamp("x2_rdy")
            else:
                self.final_store()
                lx = b.newlabel("Lep")
                b.I("s_or_b32 s%d, s2, s%d" % (sT, sW))
                b.I("s_cbranch_scc1 %s" % lx)
                b.I("s_add_u32 s%d, s%d, 16" % (sT, sEP))
                b.I("v_mov_b32 v%d, s%d" % (vT + 9, sT))
                b.I("s_mov_b32 s%d, 0x%x" % (sT, WS_EP))
                b.I("s_mov_b64 exec, 1")
                self.Inc("buffer_store_dword v%d, off, s[%d:%d], s%d sc1" % (vT + 9, R_WS, R_WS + 3, sT))
                b.I("s_mov_b64 exec, -1")
                b.label(lx)
                self.stamp("end")
        if self.diag:
            b.I("s_lshl_b32 s%d, s2, 2" % sT)
            b.I("s_add_u32 s%d, s%d, s%d" % (sT, sT, sW))
            b.I("s_lshl_b32 s%d, s%d, 8" % (sT, sT))
            b.I("s_add_u32 s%d, s%d, 0x%x" % (sT, sT, WS_STAMP))
            b.I("buffer_store_dword v%d, v%d, s[%d:%d], s%d offen" % (vSTAMP, vL4, R_WS, R_WS + 3, sT))
        if self.diag and env("DBGOUT", 0):
            lx = b.newlabel("Ldo")
            b.I("s_cmp_lg_u32 s2, 100")
            b.I("s_cbranch_scc1 %s" % lx)
            b.I("s_cmp_lg_u32 s%d, 0" % sW)
            b.I("s_cbranch_scc1 %s" % lx)
            self.srd(R_PK, S_DBG, 256)
            names = env("DBGOUT", 0)
            b.I("v_readlane_b32 s%d, v%d, 0" % (sT, vSTAMP))
            b.I("v_mov_b32 v%d, 0" % vT)
            for k, nm in enumerate(names):
                idx = [i for i, n in enumerate(self.stamp_names) if n == nm[0]][nm[1]]
                b.I("v_readlane_b32 s%d, v%d, %d" % (sT + 1, vSTAMP, idx))
                b.I("s_sub_u32 s%d, s%d, s%d" % (sT + 1, sT + 1, sT))
                b.I("v_writelane_b32 v%d, s%d, %d" % (vT, sT + 1, k))
            b.I("v_readlane_b32 s%d, v%d, 62" % (sT, vSTAMP))
            b.I("v_readlane_b32 s%d, v%d, 63" % (sT + 1, vSTAMP))
            b.I("s_sub_u32 s%d, s%d, s%d" % (sT + 1, sT + 1, sT))
            b.I("v_writelane_b32 v%d, s%d, 15" % (vT, sT + 1))
            b.I("buffer_store_dword v%d, v%d, s[%d:%d], 0 offen" % (vT, vL4, R_PK, R_PK + 3))
            b.label(lx)
        b.label("L_end")
        b.I("s_endpgm")

    def emit(self):
        self.body()
        head = """; @launch grid=(256,1,1) block=(256,1,1) lds=%d
; persistent fused kernel: 32 row groups (64 rows) x 8 column groups (generated by my own script)
.amdgcn_target "amdgcn-amd-amdhsa--gfx950"
.text
.globl %s_kernel
.p2align 8
.type %s_kernel,@function
%s_kernel:
""" % (LDS_BYTES, NAME, NAME, NAME)
        tail = """.section .rodata,"a"
.p2align 6
.amdhsa_kernel %s_kernel
  .amdhsa_next_free_vgpr 512
  .amdhsa_next_free_sgpr 102
  .amdhsa_accum_offset 256
  .amdhsa_group_segment_fixed_size 0
  .amdhsa_kernarg_size 72
  .amdhsa_user_sgpr_count 2
  .amdhsa_user_sgpr_kernarg_segment_ptr 1
  .amdhsa_system_sgpr_workgroup_id_x 1
.end_amdhsa_kernel
""" % NAME
        return head + self.b.text() + tail


if __name__ == "__main__":
    import argparse
    ap = argparse.ArgumentParser()
    ap.add_argument("-o", default="cdna_kernels/%s.s" % NAME)
    ap.add_argument("--diag", action="store_true")
    ap.add_argument("--sep", action="store_true")
    a = ap.parse_args()
    g = Gen(a.diag, a.sep)
    txt = g.emit()
    if a.diag:
        txt = txt.replace(".amdgcn_target", "; wsbase: %d\n.amdgcn_target" % env("WSBASE", 0), 1)
        txt = txt.replace(".amdgcn_target", "; stamps: " + ",".join(g.stamp_names) + "\n.amdgcn_target", 1)
    open(a.o, "w").write(txt)
    print("instructions", g.b.nins, "nops", g.b.nops, file=sys.stderr)
```

```python
import sys
import os
sys.path.insert(0, os.path.dirname(os.path.abspath(__file__)))
from asmb import Builder, vr

NAME = "interleave_layers__linear_attn_block__dense_activation_silu__prompt"


def env(name, default):
    v = os.environ.get(name)
    return default if v is None else eval(v)


PKW = 107 * 1024
WS_FL = 0x380000
WS_EP = 0x390000
WS_R2 = 0x398000
WS_KV = 0x3A0000
KVH = 5120
WS_ST = 0x400000
WS_O = 0x600000
WS_X = 0x800000
WS_H = 0xA00000
HSZ = 22 * 8192
WS_STAMP = 0x3000000
WS_SIZE = 0x3100000 if '--diag' in sys.argv else 0x1000000
OOB = 0x4000000 if '--diag' in sys.argv else 0x1000000
F_WO, F_W1, F_W2 = 0, 16, 64

L_RING = 65536
L_WQ = 81920
L_PACK = 131072
L_KVI = 147456
L_STA = 157696
L_EX = 158720
NSLOT = 20
LDS_BYTES = 163840

S_X, S_WQ, S_WO, S_W1, S_W2, S_OUT, S_DBG, S_WS = 4, 6, 8, 12, 14, 16, 18, 20
R_X, R_WQ, R_WS, R_OUT, R_PK = 24, 28, 32, 36, 44
sR1, sQ, sTC, sTAG, sEP = 3, 10, 11, 22, 23
sROT, sSTP, sSTC, sW1K = 40, 41, 42, 43
sRG, sC, sW, sFAST, sPK, sKV, sFL, sRG64, sRGH, sSTO = 48, 49, 50, 51, 52, 53, 54, 55, 56, 57
sH0 = 58
sSPIN = 61
sEPS = 62
sOUT = 63
sXS = 64
sM1, sM2, sM3, sDIAG = 68, 70, 72, 74
sT = 76
sKB = 88
sPKC, sXCC, sMYF, sW2K, sAB, sAO = 96, 97, 98, 99, 100, 101

vL16, vA1, vKVL, vDMA, vST = 1, 2, 3, 4, 5
vX0, vX1, vOW0, vOW1, vTR, vXS0, vXS1, vWS = 6, 7, 8, 9, 10, 11, 12, 13
vWQ = 13
vSB, vEX, vSWR, vOA = 8, 9, 10, 11
vFL, vL4, vSTAMP, vSTA, vSTQ, vC2 = 14, 15, 16, 17, 18, 19
vX = 20
vCSQ, vCSK, vCSV = 36, 40, 42
vCS1 = 44
vONE = 56
vACC = 60
vAF = 108
NAF = 10
vAB = 148
vT = 156
vPOS = 172
vZP, vSW, vDUM, vTCH, vPOLL, vDM2 = 176, 177, 178, 179, 180, 181
vK = 182
vS1, vS2 = 184, 188
vW1 = 192
SLOTS = [("a", 4 * i) for i in range(64)] + [("v", 196 + 4 * i) for i in range(15)]
PACE = env("PACE", 36)
FT = env("FTOUCH", 1)
WMIN = env("WMIN", 10)
AMIN = env("AMIN", 5)
RDSLACK = env("RDSLACK", 2)
SIDEMIN = env("SIDEMIN", 1)
COST = {"mfma": 16, "trans": 8, "ds": 4, "valu": 4, "perm": 4, "dpp": 4, "rdlane": 4, "wrlane": 4, "salu": 2, "vmem": 8}
K_L2E = "op_sel:[0,0] op_sel_hi:[1,0]"


def slot_r(s):
    return vr(s[1], 4, s[0])


def p2(r):
    return "v[%d:%d]" % (r, r + 1)


class Gen:
    def __init__(self, diag=False, sep=False):
        self.b = Builder()
        self.diag = diag
        self.sep = sep
        self.free = list(SLOTS)
        self.wq = []
        self.wslot = {}
        self.pk_cur = None
        self.nstamp = 0
        self.stamp_names = []
        self.aq = []
        self.atok = {}
        self.seq = 0
        self.consumed = -1
        self.mine = -1
        self.pub_mine = {}
        self.clock = 0
        self.last_bg = -1000
        self.bg_w = 0
        self.pace_w = 70
        self.in_bg = False
        self.npub = 0
        self.vclock = {}
        bI, bw = self.b.I, self.b.wait

        def I2(t):
            tok = bI(t)
            if tok and tok[0] == "vm":
                self.vclock[tok[1]] = self.clock
            return tok

        def w2(*toks, **kw):
            if os.environ.get("SLACK"):
                flat = []
                for t in toks:
                    if t is None:
                        continue
                    flat += t if isinstance(t, list) else [t]
                v = [i for k, i in flat if k == "vm" and i >= self.b.vm_done]
                if v:
                    d = self.clock - self.vclock.get(max(v), 0)
                    if d < int(os.environ["SLACK"]):
                        print("   slack %4d at clock %d (after %s)" % (d, self.clock, self.last_stamp), file=sys.stderr)
            return bw(*toks, **kw)
        self.b.I, self.b.wait = I2, w2
        self.last_stamp = ""
        self.flagged = set()
        self.cold = []
        self.slotted = False
        self.prepped = None
        self.wprep = []
        self.pinned = set()
        self.side = []
        self.side_rate = 2
        self.w_issued = 0
        self.w_need = 0
        self.w_cur = None
        self.w_index = {}
        self.wlead = env('WLEAD', 14)
        self.cur_seq = 0
        self.alead = env('ALEAD', 99)

    def I(self, t):
        tok = self.b.I(t)
        k = self.b.hists[0][-1].kind if self.b.hists and self.b.hists[0] else "salu"
        self.clock += COST.get(k, 4)
        if not self.in_bg and not self.slotted and k in ("mfma", "valu", "trans"):
            c = self.bg_pick()
            if c is not None and c[1]:
                self.bg_emit(c[0], True)
        return tok

    def side_step(self, n):
        self.in_bg = True
        done = 0
        while n > 0 and self.side:
            e = self.side[0]
            if isinstance(e, int):
                if e <= 1:
                    self.side.pop(0)
                else:
                    self.side[0] = e - 1
                break
            self.side.pop(0)
            if isinstance(e, str):
                self.b.I(e)
            else:
                e()
            n -= 1
            done += 1
        self.in_bg = False
        return done

    def side_flush(self):
        while self.side:
            self.side_step(1000)

    def bg_pick(self):
        a_ok = self.aq and self.aq[0].seq - NSLOT <= self.consumed
        w_ok = self.bg_w > 0 and self.wq and self.free
        same = w_ok and self.wq[0][0][:2] == self.w_cur
        el = self.clock - self.last_bg
        if self.prepped == "A" and a_ok:
            return "A", el >= PACE or self.aq[0].seq - self.cur_seq < AMIN
        if same and self.w_issued - self.w_need < WMIN:
            return "W", True
        if a_ok and w_ok:
            a_lead = self.aq[0].seq - self.cur_seq
            if a_lead > self.alead or (same and self.w_issued - self.w_need < self.wlead and a_lead > 3):
                a_ok = False
        if a_ok:
            return "A", el >= PACE or self.aq[0].seq - self.cur_seq < AMIN
        if w_ok:
            return "W", el >= self.pace_w
        return None

    def bg_prep_list(self, kind):
        if kind == "A":
            return self.aq[0].prep
        grp = self.wq[0][1] // 4
        if self.pk_cur != grp and not os.environ.get("NOW"):
            self.pk_cur = grp
            self.wprep = ["s_add_u32 s%d, s%d, 0x%x" % (sPKC, sPK, grp * 4096)]
        return self.wprep

    def bg_emit(self, kind, inline):
        self.in_bg = True
        if kind == "A":
            self.a_pop()
        else:
            self.w_issue()
            self.bg_w -= 1
        self.last_bg = self.clock
        self.in_bg = False

    def a_pop(self):
        th = self.aq.pop(0)
        while th.prep:
            self.b.I(th.prep.pop(0))
        th()
        self.prepped = None

    def slot_fill(self, rd_lag, issue_read):
        c = self.bg_pick()
        if c is not None and c[1] and rd_lag <= RDSLACK and not self.bg_prep_list(c[0]):
            self.bg_emit(c[0], False)
            self.clock += 8
            return
        budget = 2
        if rd_lag > 0:
            issue_read()
            budget -= 1
            if rd_lag > 1:
                issue_read()
                budget -= 1
        if c is not None:
            pl = self.bg_prep_list(c[0])
            while budget > 0 and pl:
                self.b.I(pl.pop(0))
                budget -= 1
                if c[0] == "A":
                    self.prepped = "A"
        self.side_step(max(budget, SIDEMIN))

    def Inc(self, t):
        self.b.I(t)
        self.b.vm_issued -= 1

    def stamp(self, name):
        self.last_stamp = name
        if os.environ.get("WLOG"):
            print("%-8s clock %6d  wq left %3d next %s free %d aq %d" % (
                name, self.clock, len(self.wq), self.wq[0][0] if self.wq else None, len(self.free), len(self.aq)), file=sys.stderr)
        if not self.diag:
            return
        b = self.b
        k = self.nstamp
        self.nstamp += 1
        assert k < 62
        b.comment("stamp %d %s" % (k, name))
        b.I("s_memtime s[94:95]")
        b.wait(lg=0)
        b.I("v_writelane_b32 v%d, s94, %d" % (vSTAMP, k))
        if name in ("start", "end"):
            b.I("s_memrealtime s[94:95]")
            b.wait(lg=0)
            b.I("v_writelane_b32 v%d, s94, %d" % (vSTAMP, 62 if name == "start" else 63))
        self.stamp_names.append(name)

    def buf(self, kind, idx):
        base = {"O": WS_O if self.sep else WS_H, "X": WS_X, "H": WS_H}[kind]
        return base + (idx * 0x1000000 if self.sep else 0)

    def hstride(self, kind):
        return HSZ // 2 if self.rgs(kind) == sRGH else 32768

    def rgs(self, kind):
        return sRGH if kind == "H" or (kind == "O" and not self.sep) else sRG64

    def srd(self, r, ptr, size):
        I = self.b.I
        I("s_mov_b32 s%d, s%d" % (r, ptr))
        I("s_and_b32 s%d, s%d, 0xffff" % (r + 1, ptr + 1))
        I("s_mov_b32 s%d, 0x%x" % (r + 2, size))
        I("s_mov_b32 s%d, 0x20000" % (r + 3))

    def ws(self):
        return "s[%d:%d]" % (R_WS, R_WS + 3)

    def w_enqueue(self, name, layer, f0, n):
        for i in range(n):
            self.w_index[(name, layer, i)] = len(self.w_index)
            self.wq.append(((name, layer, i), f0 + i))

    def w_issue(self):
        key, f = self.wq.pop(0)
        s = self.free.pop(0)
        self.w_issued += 1
        if os.environ.get("NOW"):
            self.wslot[key] = (s, None)
            return
        grp = f // 4
        while self.wprep:
            self.b.I(self.wprep.pop(0))
        if self.pk_cur != grp:
            self.b.I("s_add_u32 s%d, s%d, 0x%x" % (sPKC, sPK, grp * 4096))
            self.pk_cur = grp
        va = vW1 + key[2] % 3 if key[0] == "w1" and env("SKIPW1", 1) else vL16
        if os.environ.get("FAKEW"):
            self.b.I("s_mov_b32 s%d, s%d" % (sPKC, sPK))
        tok = self.b.I("buffer_load_dwordx4 %s, v%d, %s, s%d offen offset:%d sc1%s" % (
            slot_r(s), va, self.ws(), sPKC, (f % 4) * 1024, " nt" if env("NT", lambda k: False)(key) else ""))
        self.wslot[key] = (s, tok)

    def w_burst(self, n):
        k = 0
        while k < n and self.wq and self.free:
            self.w_issue()
            k += 1
        self.last_bg = self.clock

    def w_get(self, key):
        self.w_need = max(self.w_need, self.w_index.get(key, 0))
        self.w_cur = key[:2]
        if key not in self.wslot:
            print("WARNING: late W load", key, file=sys.stderr)
        while key not in self.wslot:
            assert self.wq and self.free, "no free slot for %s" % (key,)
            self.w_issue()
        s, tok = self.wslot[key]
        self.b.wait(tok)
        return slot_r(s)

    def w_release(self, key):
        s, _ = self.wslot.pop(key)
        self.free.append(s)

    def stores2(self, texts, wt=False):
        b = self.b
        if wt and not FT:
            return [b.I(t + " sc1") for t in texts]
        ls, lj = b.newlabel("Lslow"), b.newlabel("Ljoin")
        b.I("s_cmp_eq_u32 s%d, 1" % sFAST)
        b.I("s_cbranch_scc0 %s" % ls)
        b.saved.pop(ls)
        toks = [b.I(t) for t in texts]
        b.raw(lj + ":")
        self.cold += [ls + ":"] + ["    " + t + " sc1" for t in texts] + ["    s_branch " + lj]
        return toks

    def pair_store(self, p, sreg, off):
        for k in range(2):
            self.b.I("v_permlane16_swap_b32 v%d, v%d" % (p + k, p + 2 + k))
        return "buffer_store_dwordx4 %s, v%d, %s, s%d offen offset:%d" % (vr(p, 4), vST, self.ws(), sreg, off)

    def spin_guard(self, lab_loop):
        b = self.b
        b.I("s_sub_u32 s%d, s%d, 1" % (sSPIN, sSPIN))
        b.I("s_cmp_lg_u32 s%d, 0" % sSPIN)
        b.I("s_cbranch_scc1 %s" % lab_loop)
        b.I("s_branch L_end")

    def new_pub(self, toks):
        self.npub += 1
        k = self.npub
        self.pub_mine[k] = self.mine

        def flag():
            b = self.b
            b.I("s_add_u32 s%d, s%d, %d" % (sT, sTAG, k))
            b.I("v_mov_b32 v%d, s%d" % (vC2, sT))
            b.wait(toks)
            b.I("s_mov_b64 exec, 1")
            self.stores2(["buffer_store_dword v%d, off, %s, s%d" % (vC2, self.ws(), sMYF)])
            b.I("s_mov_b64 exec, -1")
            self.flagged.add(k)
        return k, flag

    def poll_issue(self):
        return self.b.I("buffer_load_dword v%d, v%d, %s, s%d offen sc1" % (vPOLL, vFL, self.ws(), sFL))

    def poll_check(self, k, tok=None):
        b = self.b
        if k not in self.flagged:
            print("WARNING: side stream late for flag", k, file=sys.stderr)
        while k not in self.flagged:
            assert self.side, "flag %d never raised before its poll" % k
            self.side_step(1)
        lp, ld, lc = b.newlabel("Lpoll"), b.newlabel("Lpd"), b.newlabel("Lpc")
        b.I("s_add_u32 s%d, s%d, %d" % (sT, sTAG, k))
        if tok is not None:
            b.wait(tok)
            b.I("s_branch %s" % lc)
        b.label(lp)
        self.Inc("buffer_load_dword v%d, v%d, %s, s%d offen sc1" % (vPOLL, vFL, self.ws(), sFL))
        if tok is None:
            b.wait(vm=0)
        else:
            b.I("s_waitcnt vmcnt(0)")
        b.label(lc)
        b.I("v_subrev_u32 v%d, s%d, v%d" % (vPOLL, sT, vPOLL))
        b.I("v_cmp_gt_u32 vcc, %d, v%d" % (16 - k, vPOLL))
        b.I("s_cmp_eq_u64 vcc, exec")
        b.I("s_cbranch_scc1 %s" % ld)
        self.spin_guard(lp)
        b.label(ld)
        self.consumed = max(self.consumed, self.pub_mine[k])

    def queue_stats(self, hf, plan):
        b = self.b
        s0 = self.seq
        assert s0 % 2 == 0
        self.seq += 2
        for j in range(2):
            def th(j=j):
                assert s0 + 1 - NSLOT <= self.consumed
                self.atok.setdefault(s0, []).append(b.I(
                    "buffer_load_dwordx4 v%d, %s, s%d offen offset:%d sc1 lds" % (vL16, self.ws(), sAO, j * 1024)))
            th.seq = s0 + 1
            th.prep = [] if j else ["s_add_u32 m0, s%d, 0x%x" % (sW2K, (s0 % NSLOT) * 4096),
                                    "s_add_u32 s%d, s%d, 0x%x" % (sAO, sSTC, hf * 8192)]
            plan.append(th)
        return s0

    def queue_half(self, kind, idx, hf, nds, plan, rot=False, ds0=0):
        b = self.b
        seqs = []
        base = self.buf(kind, idx) + hf * self.hstride(kind)
        rg = self.rgs(kind)
        assert self.seq % 2 == 0 and nds % 2 == 0
        for ds in range(ds0, ds0 + nds):
            sq = self.seq
            self.seq += 1
            seqs.append(sq)
            if rot:
                def th(sq=sq):
                    assert sq - NSLOT <= self.consumed, "ring slot busy"
                    self.atok[sq] = [b.I("buffer_load_dwordx4 v%d, %s, s%d offen sc1 lds" % (vDMA, self.ws(), sAO))]
                th.seq = sq
                if ds == 0:
                    th.prep = ["s_add_u32 s%d, s%d, 0x%x" % (sAB, rg, base), "s_lshl_b32 s%d, s%d, 12" % (sXS, sROT)]
                else:
                    th.prep = ["s_add_u32 s%d, s%d, 0x1000" % (sXS, sXS), "s_and_b32 s%d, s%d, 0x7fff" % (sXS, sXS)]
                th.prep += ["s_add_u32 m0, s%d, 0x%x" % (sW1K, (sq % NSLOT) * 4096), "s_add_u32 s%d, s%d, s%d" % (sAO, sAB, sXS)]
            else:
                s0 = sq & ~1

                def th(sq=sq, s0=s0):
                    assert s0 + 1 - NSLOT <= self.consumed, "ring slot busy"
                    tk = b.I("buffer_load_dwordx4 v%d, %s, s%d offen offset:%d sc1%s lds" % (
                        vDM2, self.ws(), sAO, (sq & 1) * 1024, " nt" if (kind, idx) in env("NTA", []) else ""))
                    if sq & 1:
                        self.atok[s0] = self.atok[s0 + 1] = [tk]
                th.seq = s0 + 1
                th.prep = [] if sq & 1 else ["s_add_u32 m0, s%d, 0x%x" % (sW2K, (sq % NSLOT) * 4096),
                                             "s_add_u32 s%d, s%d, 0x%x" % (sAO, rg, base + ds * 4096)]
            plan.append(th)
        return seqs

    def queue_both(self, kind, idx, nds, plan):
        out = ([], [])
        for d0 in range(0, nds, 2):
            for hf in range(2):
                out[hf].extend(self.queue_half(kind, idx, hf, 2, plan, ds0=d0))
        return out

    def a_burst(self, n):
        k = 0
        while k < n and self.aq and self.aq[0].seq - NSLOT <= self.consumed:
            self.a_pop()
            k += 1
        self.last_bg = self.clock

    def frag_addr(self, sq, r, h):
        off = (sq % NSLOT) * 4096 + r * 2048 + h * 1024
        return ((vL16, vA1)[off >> 16], off & 0xffff)

    def gemm_prep(self, items, groups=None, depth=8, hooks=None, pre=None, post=None, pairw=False, buf0=0):
        b = self.b
        hooks, pre, post = hooks or {}, pre or {}, post or {}
        n = len(items)
        toks = [None] * n
        grp_of = {}
        for gi, g in enumerate(groups or []):
            for sq in g:
                grp_of[sq] = gi
        opened = set()
        st = {"ip": 0}

        rem = [1 << 30] * (n + 1)
        for k in range(n - 1, -1, -1):
            rem[k] = min(rem[k + 1], items[k][2] if items[k][2] is not None else 1 << 30)

        def reg(k):
            return vr(vAF + 4 * ((k + buf0) % NAF), 4)

        def issue():
            k = st["ip"]
            a, off, sq, _ = items[k]
            if sq in grp_of and grp_of[sq] not in opened:
                gi = grp_of[sq]
                opened.add(gi)
                while any(s not in self.atok for s in groups[gi]):
                    self.a_pop()
                    self.last_bg = self.clock
                for f in pre.get(gi, []):
                    f()
                b.wait(*[self.atok[s] for s in groups[gi]])
                b.I("s_barrier")
                self.consumed = max(self.consumed, self.mine)
                for f in post.get(gi, []):
                    f()
            toks[k] = self.I("ds_read_b128 %s, v%d offset:%d" % (reg(k), a, off))
            st["ip"] += 1

        def prestart(m=None):
            while st["ip"] < min(depth if m is None else m, n):
                issue()

        def run():
            prestart()
            self.slotted = True
            for j in range(n):
                thunks = items[j][3](reg(j))
                while st["ip"] <= min(j + (1 if pairw else 0), n - 1):
                    issue()
                if pairw and j % 2 == 0 and j + 1 < st["ip"]:
                    b.wait(toks[j + 1])
                b.wait(toks[j])
                if items[j][2] is not None:
                    self.cur_seq = items[j][2]
                    lim = min(self.pinned) - 3 if self.pinned else 1 << 30
                    self.mine = max(self.mine, min(rem[j] - 1, lim))
                if not thunks and st["ip"] < min(n, j + 1 + depth):
                    issue()
                for th in thunks:
                    n0 = b.nins
                    th()
                    if b.nins > n0:
                        self.slot_fill(min(n, j + 1 + depth) - st["ip"], issue)
                for f in hooks.get(j, []):
                    f()
            self.slotted = False
            self.side_flush()
            sq = [it[2] for it in items if it[2] is not None]
            if sq:
                self.cur_seq = max(sq) + 1
                lim = min(self.pinned) - 3 if self.pinned else 1 << 30
                self.mine = max(self.mine, min(max(sq), lim))
        return prestart, run

    def gemm(self, *a, **k):
        self.gemm_prep(*a, **k)[1]()

    def mf(self, d, a, bb, c=None):
        dd = vr(d, 4)
        cc = dd if c is None else c
        return lambda: self.I("v_mfma_f32_16x16x32_bf16 %s, %s, %s, %s" % (dd, a, bb, cc))

    @staticmethod
    def split(seqs, sizes):
        out, k = [], 0
        for s in sizes:
            out.append(seqs[k:k + s])
            k += s
        assert k == len(seqs)
        return out

    def stats_stage1(self, s0, hf):
        b = self.b
        t = vS1
        tk = {}
        out = ["v_add_u32 v%d, 0x%x, v%d" % (vT, (s0 % NSLOT) * 4096, vSB), lambda: b.wait(self.atok[s0])]
        for k in range(4):
            out.append(lambda k=k: tk.__setitem__(k, b.I("ds_read2st64_b32 %s, v%d offset0:%d offset1:%d" % (
                p2(t + 2 * k), vT, 2 * k, 2 * k + 1))))
        out += [6, lambda: b.wait(tk[3])]
        out += ["v_add_f32 v%d, v%d, v%d" % (t + k, t + k, t + 4 + k) for k in range(4)]
        out += ["v_add_f32 v%d, v%d, v%d" % (t + k, t + k, t + 2 + k) for k in range(2)]
        out += ["v_add_f32 v%d, v%d, v%d" % (t, t, t + 1)]
        out.append(lambda: tk.__setitem__("w", b.I("ds_write_b32 v%d, v%d offset:%d" % (vSW, t, hf * 1024))))

        def before_barrier():
            self.side_flush()
            b.wait(tk["w"])
        return out, before_barrier

    def stats_stage2(self, hf, scale, kv):
        b = self.b
        t = vS1
        tk = {}
        out = []
        for k in range(2):
            out.append(lambda k=k: tk.__setitem__(k, b.I("ds_read2st64_b32 %s, v%d offset0:%d offset1:%d" % (
                p2(t + 2 * k), vEX, hf * 4 + 2 * k, hf * 4 + 2 * k + 1))))
        a0, b0, a1, b1 = [vAB + 4 * hf + k for k in range(4)]
        out += [6, lambda: b.wait(tk[1]),
                "v_add_f32 v%d, v%d, v%d" % (t, t, t + 2), "v_add_f32 v%d, v%d, v%d" % (t + 1, t + 1, t + 3),
                "v_add_f32 v%d, v%d, v%d" % (t, t, t + 1), "v_mul_f32 v%d, 0x3b000000, v%d" % (t, t),
                "v_mov_b32 v%d, v%d" % (t + 1, t), 1,
                "v_permlane16_swap_b32 v%d, v%d" % (t, t + 1), 1,
                "v_fma_f32 v%d, -v%d, v%d, v%d" % (t + 1, t, t, t + 1), "v_max_f32 v%d, 0, v%d" % (t + 1, t + 1),
                "v_add_f32 v%d, 0x3727c5ac, v%d" % (t + 1, t + 1), "v_rsq_f32 v%d, v%d" % (a0, t + 1), 1]
        if scale:
            out.append("v_mul_f32 v%d, v%d, v%d" % (a0, a0, vK))
        out.append("v_mul_f32_e64 v%d, -v%d, v%d" % (b0, t, a0))
        if kv:
            def wr():
                b.I("s_mov_b32 exec_lo, 0xffff")
                b.I("s_mov_b32 exec_hi, 0xffff")
                b.I("ds_write_b32 v%d, v%d" % (vSWR, a0))
                b.I("ds_write_b32 v%d, v%d offset:128" % (vSWR, b0))
                b.I("s_mov_b64 exec, -1")
            out.append(wr)
        out += ["v_mov_b32 v%d, v%d" % (a1, a0), "v_mov_b32 v%d, v%d" % (b1, b0), 1,
                "v_permlane32_swap_b32 v%d, v%d" % (a0, a1), "v_permlane32_swap_b32 v%d, v%d" % (b0, b1)]
        return out

    def stats_hooks(self, s0, hf, scale, kv, j1, gi, hooks, pre, post):
        s1, bb = self.stats_stage1(s0, hf)
        hooks.setdefault(j1, []).append(lambda: self.side.extend(s1))
        pre.setdefault(gi, []).append(bb)
        post.setdefault(gi, []).append(lambda: self.side.extend(self.stats_stage2(hf, scale, kv)))

    def stats_startup(self):
        b = self.b
        I = b.I
        t = vT
        I("v_mul_f32 v%d, 0x3b000000, v%d" % (t + 1, vS1))
        I("v_cndmask_b32 v%d, v%d, v%d, s[%d:%d]" % (t, vS2, vS2 + 1, sM1, sM1 + 1))
        I("v_cndmask_b32 v%d, v%d, v%d, s[%d:%d]" % (t, t, vS2 + 2, sM2, sM2 + 1))
        I("v_cndmask_b32 v%d, v%d, v%d, s[%d:%d]" % (t, t, vS2 + 3, sM3, sM3 + 1))
        I("v_mul_f32 v%d, 0x3b000000, v%d" % (t, t))
        I("v_fma_f32 v%d, -v%d, v%d, v%d" % (t, t + 1, t + 1, t))
        I("v_max_f32 v%d, 0, v%d" % (t, t))
        I("v_add_f32 v%d, 0x3727c5ac, v%d" % (t, t))
        I("v_rsq_f32 v%d, v%d" % (t + 2, t))
        I("v_lshlrev_b32 v%d, 1, v%d" % (t + 4, vSW))
        I("v_mul_f32_e64 v%d, -v%d, v%d" % (t + 3, t + 1, t + 2))
        I("v_subrev_u32 v%d, 0x%x, v%d" % (t + 4, L_STA - 512, t + 4))
        I("s_mov_b64 exec, s[%d:%d]" % (sDIAG, sDIAG + 1))
        I("ds_write_b32 v%d, v%d" % (vSW, t + 2))
        I("ds_write_b32 v%d, v%d offset:256" % (vSW, t + 3))
        I("ds_write_b64 v%d, v[%d:%d]" % (t + 4, t + 2, t + 3))
        I("s_mov_b64 exec, -1")
        b.wait(lg=0)
        I("s_barrier")

    def phi_pairs(self, pairs):
        I = self.I
        for c0 in range(0, len(pairs), 4):
            grp = pairs[c0:c0 + 4]
            for k, (t, d) in enumerate(grp):
                I("v_pk_mul_f32 %s, %s, %s %s" % (p2(vT + 2 * k), p2(t), p2(vK), K_L2E))
            for k, (t, d) in enumerate(grp):
                I("v_exp_f32_e64 v%d, v%d clamp" % (vT + 2 * k, vT + 2 * k))
                I("v_max_f32 v%d, v%d, v%d" % (t, vK + 1, t))
                I("v_exp_f32_e64 v%d, v%d clamp" % (vT + 2 * k + 1, vT + 2 * k + 1))
                I("v_max_f32 v%d, v%d, v%d" % (t + 1, vK + 1, t + 1))
            for k, (t, d) in enumerate(grp):
                I("v_pk_add_f32 %s, %s, %s" % (p2(t), p2(t), p2(vT + 2 * k)))
            for k, (t, d) in enumerate(grp):
                I("v_cvt_pk_bf16_f32 v%d, v%d, v%d" % (d, t, t + 1))

    def kv_epilogue(self, hf, ra, rb):
        I = self.I
        K, V = vACC + 8 * hf, vACC + 16 + 8 * hf
        for j in range(4):
            I("v_pk_fma_f32 %s, %s, %s, %s op_sel:[0,0,1] op_sel_hi:[1,1,1]" % (p2(vT + 2 * j), p2(rb + 2 * j), p2(vCSK), p2(vK)))
            I("v_pk_mul_f32 %s, %s, %s" % (p2(vT + 8 + 2 * j), p2(rb + 2 * j), p2(vCSV)))
        for j in range(4):
            I("v_pk_fma_f32 %s, %s, %s, %s" % (p2(K + 2 * j), p2(ra + 2 * j), p2(K + 2 * j), p2(vT + 2 * j)))
            I("v_pk_fma_f32 %s, %s, %s, %s" % (p2(V + 2 * j), p2(ra + 2 * j), p2(V + 2 * j), p2(vT + 8 + 2 * j)))
        for j in range(4):
            I("v_cvt_pk_bf16_f32 v%d, v%d, v%d" % (V + j, V + 2 * j, V + 2 * j + 1))
        self.phi_pairs([(K + 2 * j, K + j) for j in range(4)])

    def startup(self):
        b = self.b
        I = b.I
        i_, g_, l3, l7, q0, tc = vT + 2, vT + 3, vT + 6, vT + 7, vT + 8, vT + 9
        I("s_cmp_ge_u32 s2, 256")
        I("s_cbranch_scc1 L_end")
        I("s_load_dwordx4 s[4:7], s[0:1], 0")
        I("s_load_dwordx2 s[20:21], s[0:1], 64")
        I("s_load_dwordx2 s[8:9], s[0:1], 16")
        I("s_load_dwordx4 s[12:15], s[0:1], 32")
        I("s_load_dwordx4 s[16:19], s[0:1], 48")
        I("s_getpc_b64 s[90:91]")
        b.label("L_pc")
        I("v_lshrrev_b32 v%d, 6, v0" % vT)
        I("v_and_b32 v0, 63, v0")
        I("v_readfirstlane_b32 s%d, v%d" % (sW, vT))
        I("s_lshr_b32 s%d, s2, 3" % (sT + 1))
        I("s_lshl_b32 s%d, s%d, 2" % (sT + 3, sT + 1))
        I("s_add_u32 s%d, s%d, s%d" % (sT + 3, sT + 3, sW))
        I("s_and_b32 s%d, s%d, 31" % (sT, sT + 3))
        I("s_lshl_b32 s%d, s%d, 11" % (sT, sT))
        I("v_lshlrev_b32 v%d, 7, v0" % vTCH)
        I("v_add_u32 v%d, s%d, v%d" % (vT, sT, vTCH))
        I("v_min_u32 v%d, L_end-L_pc, v%d" % (vT, vT))
        I("s_mov_b64 exec, 0xffff")
        I("global_load_dword v%d, v%d, s[90:91]" % (vDUM, vT))
        I("s_mov_b64 exec, -1")
        I("s_and_b32 s%d, s2, 7" % sROT)
        I("s_and_b32 s%d, s%d, 7" % (sC, sT + 1))
        I("s_lshr_b32 s%d, s%d, 3" % (sQ, sT + 1))
        I("s_lshl_b32 s%d, s%d, 2" % (sT, sROT))
        I("s_add_u32 s%d, s%d, s%d" % (sRG, sT, sQ))
        I("s_lshl_b32 s%d, s%d, 16" % (sRG64, sRG))
        I("s_lshl_b32 s%d, s%d, 11" % (sW2K, sW))
        I("v_lshrrev_b32 v%d, 4, v0" % g_)
        I("v_and_b32 v%d, 15, v0" % i_)
        tw, tx = vT + 12, vT + 13
        I("s_mul_i32 s%d, s%d, %d" % (sT + 2, sT + 3, 4 * 3072))
        I("v_lshlrev_b32 v%d, 10, v0" % tx)
        I("v_add_u32 v%d, s%d, v%d" % (tw, sT + 2, tx))
        I("s_lshl_b32 s%d, s%d, 18" % (sT + 2, sROT))
        I("s_lshl_b32 s%d, s%d, 11" % (sT, sT + 3))
        I("s_add_u32 s%d, s%d, s%d" % (sT, sT, sT + 2))
        I("v_add_u32 v%d, s%d, v%d" % (tx, sT, tx))
        I("v_lshrrev_b32 v%d, 3, v0" % l3)
        I("v_and_b32 v%d, 7, v0" % l7)
        I("v_xor_b32 v%d, v%d, v%d" % (vT + 4, l7, g_))
        I("v_lshlrev_b32 v%d, 4, v%d" % (vT + 4, vT + 4))
        I("v_lshl_add_u32 v%d, v%d, 10, v%d" % (vT + 4, l3, vT + 4))
        I("s_lshl_b32 s%d, s%d, 14" % (sT + 1, sW))
        I("v_add_u32 v%d, s%d, v%d" % (vXS0, sT + 1, vT + 4))
        I("v_xor_b32 v%d, 64, v%d" % (vXS1, vXS0))
        I("v_add_u32 v%d, 7168, v%d" % (vXS1, vXS1))
        I("v_and_b32 v%d, 1, v%d" % (vT + 4, g_))
        I("v_lshlrev_b32 v%d, 1, v%d" % (vT + 4, vT + 4))
        I("v_xor_b32 v%d, v%d, v%d" % (q0, l7, vT + 4))
        I("v_lshlrev_b32 v%d, 4, v%d" % (q0, q0))
        I("s_and_b32 s%d, s%d, 1" % (sT + 1, sW))
        I("s_lshl_b32 s%d, s%d, 6" % (sT + 1, sT + 1))
        I("v_xor_b32 v%d, s%d, v%d" % (vT + 4, sT + 1, q0))
        I("s_lshl_b32 s%d, s%d, 3" % (sT + 1, sW))
        I("v_add_u32 v%d, s%d, v%d" % (vT + 5, sT + 1, l3))
        I("v_mul_u32_u24 v%d, 3072, v%d" % (vT + 5, vT + 5))
        I("v_add_u32 v%d, v%d, v%d" % (vWS, vT + 4, vT + 5))
        sXO, sWO_, sRB = sAB, sAO, 93
        I("s_lshl_b32 s%d, s%d, 7" % (sWO_, sC))
        I("v_add_u32 v%d, s%d, v%d" % (vWS, sWO_, vWS))
        I("s_mul_i32 s%d, s%d, 3072" % (sRB, sW))
        I("s_add_u32 s%d, s%d, 0x%x" % (sRB, sRB, L_RING))
        I("s_lshl_b32 s%d, s%d, 7" % (sXO, sROT))
        I("s_mul_i32 s%d, s%d, %d" % (sWO_, sROT, 64 * 3072))
        if self.diag:
            I("v_mov_b32 v%d, 0" % vSTAMP)
        b.wait(lg=0)
        self.stamp("start")
        I("s_add_u32 s88, s%d, 0x%x" % (S_WS, WS_EP))
        I("s_addc_u32 s89, s%d, 0" % (S_WS + 1))
        I("s_load_dword s%d, s[88:89], 0" % sEP)
        self.srd(R_WQ, S_WQ, 512 * 3072)
        I("s_add_u32 s%d, s%d, s%d" % (R_X, S_X, sRG64))
        I("s_addc_u32 s%d, s%d, 0" % (R_X + 1, S_X + 1))
        I("s_and_b32 s%d, s%d, 0xffff" % (R_X + 1, R_X + 1))
        I("s_mov_b32 s%d, 0x10000" % (R_X + 2))
        I("s_mov_b32 s%d, 0x20000" % (R_X + 3))
        tokA, tokW = {}, {}

        def issue_thunks(ks):
            th = []
            if ks % 2 == 0:
                ds = ks // 2

                def a0():
                    I("s_add_u32 m0, s%d, 0x%x" % (sW2K, ds * 8192))
                    tokA[ds] = [I("buffer_load_dwordx4 v%d, s[%d:%d], s%d offen lds" % (vXS0, R_X, R_X + 3, sXO))]

                def a1():
                    tokA[ds].append(I("buffer_load_dwordx4 v%d, s[%d:%d], s%d offen offset:1024 lds" % (vXS1, R_X, R_X + 3, sXO)))
                    I("s_add_u32 s%d, s%d, 128" % (sXO, sXO))
                    I("s_and_b32 s%d, s%d, 0x380" % (sXO, sXO))
                th += [a0, a1]
            for p in range(3):
                def w(p=p):
                    if p == 0:
                        I("s_add_u32 m0, s%d, 0x%x" % (sRB, (ks % 5) * 12288))
                        tokW[ks] = []
                    tokW[ks].append(I("buffer_load_dwordx4 v%d, s[%d:%d], s%d offen offset:%d lds" % (
                        vWS, R_WQ, R_WQ + 3, sWO_, p * 1024)))
                    if p == 2:
                        I("s_add_u32 s%d, s%d, %d" % (sWO_, sWO_, 32 * 3072))
                        if ks % 2 == 1:
                            I("s_cmp_eq_u32 s%d, %d" % (sWO_, 512 * 3072))
                            I("s_cselect_b32 s%d, 0, s%d" % (sWO_, sWO_))
                th.append(w)
            return th

        if env("T0", 1):
            self.srd(R_PK, S_X, 2048 * 1024)
            for ptr, srd, v, mask in ((S_WQ, R_WQ, tw, 0xfff), (S_X, R_PK, tx, 3)):
                I("s_sub_u32 s%d, 0x180, s%d" % (sT, ptr))
                I("s_and_b32 s%d, s%d, 0x380" % (sT, sT))
                I("s_mov_b64 exec, 0x%x" % mask)
                I("buffer_load_dword v%d, v%d, s[%d:%d], s%d offen" % (vDUM, v, srd, srd + 3, sT))
            I("s_mov_b64 exec, -1")
        NFIRST = env("NFIRST", 2)
        for ks in range(NFIRST):
            for th in issue_thunks(ks):
                th()
        if env("EARLYP", 0):
            ptk = self.pack_load(l3, q0)
        self.stamp("first")
        I("s_getreg_b32 s%d, hwreg(HW_REG_XCC_ID, 0, 4)" % sXCC)
        I("s_mov_b32 s%d, 0x100000" % sSPIN)
        self.srd(R_WS, S_WS, WS_SIZE)
        self.srd(R_OUT, S_OUT, 2048 * 1024)
        I("v_lshlrev_b32 v%d, 4, v0" % vL16)
        I("v_lshlrev_b32 v%d, 2, v0" % vL4)
        I("s_lshl_b32 s%d, s%d, 10" % (sW1K, sW))
        I("s_lshl_b32 s%d, s%d, 2" % (sT, sC))
        I("s_add_u32 s%d, s%d, s%d" % (sT, sT, sW))
        I("s_mul_i32 s%d, s%d, %d" % (sKV, sT, KVH))
        I("s_add_u32 s%d, s%d, 0x%x" % (sKV, sKV, WS_KV))
        I("v_mov_b32 v%d, 0" % vC2)
        I("s_mul_i32 s%d, s%d, 160" % (sT + 1, sRG))
        I("s_add_u32 s%d, s%d, s%d" % (sT + 1, sT + 1, sKV))
        I("s_mov_b32 exec_hi, 0xff")
        ztok = I("buffer_store_dword v%d, v%d, %s, s%d offen sc1" % (vC2, vL4, self.ws(), sT + 1))
        I("s_mov_b64 exec, -1")
        I("s_mul_i32 s%d, s%d, %d" % (sPK, sT, PKW))
        I("s_lshl_b32 s%d, s%d, 7" % (sFL, sRG))
        I("s_lshl_b32 s%d, s%d, 12" % (sR1, sC))
        I("s_add_u32 s%d, s%d, 0x%x" % (sR1, sR1, WS_R2))
        I("s_add_u32 s%d, s%d, 0x%x" % (sFL, sFL, WS_FL))
        I("s_lshl_b32 s%d, s%d, 2" % (sMYF, sT))
        I("s_add_u32 s%d, s%d, s%d" % (sMYF, sMYF, sFL))
        I("s_lshl_b32 s%d, s%d, 14" % (sSTC, sRG))
        I("s_add_u32 s%d, s%d, 0x%x" % (sSTC, sSTC, WS_ST))
        I("s_lshl_b32 s%d, s%d, 8" % (sSTP, sT))
        I("s_add_u32 s%d, s%d, s%d" % (sSTP, sSTP, sSTC))
        I("s_add_u32 s%d, s%d, s%d" % (sSTC, sSTC, sW2K))
        I("s_mul_i32 s%d, s%d, %d" % (sRGH, sRG, HSZ))
        I("s_lshl_b32 s%d, s%d, 12" % (sSTO, sC))
        I("s_lshl_b32 s%d, s%d, 9" % (sT + 1, sW))
        I("s_add_u32 s%d, s%d, s%d" % (sSTO, sSTO, sT + 1))
        I("s_lshl_b32 s%d, s%d, 5" % (sOUT, sT))
        I("s_mul_i32 s%d, s%d, 3" % (sT, sT))
        for t in range(3):
            I("s_add_u32 s%d, s%d, %d" % (sT + 1, sT, t))
            I("s_lshr_b32 s%d, s%d, 2" % (sT + 2, sT + 1))
            I("s_lshl_b32 s%d, s%d, 12" % (sT + 2, sT + 2))
            I("s_and_b32 s%d, s%d, 3" % (sT + 3, sT + 1))
            I("s_lshl_b32 s%d, s%d, 9" % (sT + 3, sT + 3))
            I("s_add_u32 s%d, s%d, s%d" % (sT + 2, sT + 2, sT + 3))
            I("s_add_u32 s%d, s%d, s%d" % (sT + 2, sT + 2, sRGH))
            I("s_cmp_lt_u32 s%d, 86" % (sT + 1))
            I("s_cselect_b32 s%d, s%d, 0x%x" % (sH0 + t, sT + 2, OOB))
            I("s_cselect_b32 s%d, 0, 0x%x" % (sT + 2, OOB))
            I("v_add_u32 v%d, s%d, v%d" % (vW1 + t, sT + 2, vL16))
        I("v_add_u32 v%d, 0x10000, v%d" % (vA1, vL16))
        I("v_add_u32 v%d, s%d, v%d" % (vDMA, sW1K, vL16))
        I("v_add_u32 v%d, s%d, v%d" % (vDM2, sW2K, vL16))
        I("v_and_b32 v%d, 0x7c, v%d" % (vFL, vL4))
        I("v_lshrrev_b32 v%d, 1, v%d" % (vT + 4, g_))
        I("v_lshlrev_b32 v%d, 8, v%d" % (vT + 4, vT + 4))
        I("v_lshl_add_u32 v%d, v%d, 4, v%d" % (vT + 4, i_, vT + 4))
        I("v_and_b32 v%d, 1, v%d" % (vT + 5, g_))
        I("v_lshl_add_u32 v%d, v%d, 11, v%d" % (vST, vT + 5, vT + 4))
        I("v_lshlrev_b32 v%d, 4, v%d" % (vSTA, g_))
        I("v_add_u32 v%d, 0x%x, v%d" % (vSTA, L_STA, vSTA))
        I("v_lshlrev_b32 v%d, 3, v%d" % (vSTQ, i_))
        I("v_add_u32 v%d, 0x%x, v%d" % (vSTQ, L_STA + 512, vSTQ))
        I("s_lshl_b32 s%d, s%d, 6" % (sT, sW))
        I("s_add_u32 s%d, s%d, 0x%x" % (sT, sT, L_STA))
        I("v_lshlrev_b32 v%d, 2, v%d" % (vSW, i_))
        I("v_add_u32 v%d, s%d, v%d" % (vSW, sT, vSW))
        I("v_lshrrev_b32 v%d, 3, v%d" % (vT + 4, i_))
        I("v_lshlrev_b32 v%d, 10, v%d" % (vT + 4, vT + 4))
        I("v_and_b32 v%d, 7, v%d" % (vT + 5, i_))
        I("v_lshl_add_u32 v%d, v%d, 7, v%d" % (vT + 4, vT + 5, vT + 4))
        I("v_lshrrev_b32 v%d, 1, v%d" % (vT + 5, i_))
        I("v_xor_b32 v%d, v%d, v%d" % (vT + 5, vT + 5, g_))
        I("v_lshl_add_u32 v%d, v%d, 4, v%d" % (vX0, vT + 5, vT + 4))
        I("v_xor_b32 v%d, 64, v%d" % (vX1, vX0))
        I("v_add_u32 v%d, s%d, v%d" % (vOW0, sW2K, vX0))
        I("v_add_u32 v%d, s%d, v%d" % (vOW1, sW2K, vX1))
        I("v_bfe_u32 v%d, v0, 2, 2" % (vT + 4))
        I("v_bfe_u32 v%d, v0, 3, 1" % (vT + 5))
        I("v_lshlrev_b32 v%d, 1, v%d" % (vT + 5, vT + 5))
        I("v_bfe_u32 v%d, v0, 4, 1" % (vT + 10))
        I("v_lshl_add_u32 v%d, v%d, 2, v%d" % (vT + 5, vT + 10, vT + 5))
        I("v_bfe_u32 v%d, v0, 1, 1" % (vT + 10))
        I("v_xor_b32 v%d, v%d, v%d" % (vT + 5, vT + 5, vT + 10))
        I("v_lshlrev_b32 v%d, 4, v%d" % (vT + 5, vT + 5))
        I("v_lshl_add_u32 v%d, v%d, 7, v%d" % (tc, vT + 4, vT + 5))
        I("v_and_b32 v%d, 1, v0" % (vT + 10))
        I("v_lshl_add_u32 v%d, v%d, 3, v%d" % (tc, vT + 10, tc))
        I("s_lshl_b32 s%d, s%d, 5" % (sT + 1, sW))
        I("v_xor_b32 v%d, s%d, v%d" % (vT + 4, sT + 1, tc))
        I("v_mul_u32_u24 v%d, 3072, v%d" % (vT + 5, g_))
        I("v_add_u32 v%d, v%d, v%d" % (vT + 4, vT + 4, vT + 5))
        I("v_add_u32 v%d, 0x%x, v%d" % (vTR, L_RING, vT + 4))
        for k in range(4):
            I("v_mov_b32 v%d, 0x3f803f80" % (vONE + k))
        I("v_mov_b32 v%d, 0x3fb8aa3b" % vK)
        I("v_mov_b32 v%d, 0x358637bd" % (vK + 1))
        I("s_mul_i32 s%d, s%d, 2560" % (sT, sW))
        I("s_add_u32 s%d, s%d, 0x%x" % (sT, sT, L_KVI))
        I("v_add_u32 v%d, s%d, v%d" % (vKVL, sT, vL4))
        for r in range(4):
            I("v_add_u32 v%d, %d, v0" % (vT + 4, 64 * r))
            I("v_mul_u32_u24 v%d, 4370, v%d" % (vT + 5, vT + 4))
            I("v_lshrrev_b32 v%d, 16, v%d" % (vT + 5, vT + 5))
            I("v_add_u32 v%d, v%d, v%d" % (vT + 4, vT + 4, vT + 5))
            I("v_lshlrev_b32 v%d, 2, v%d" % (vT + 4, vT + 4))
            I("v_add_u32 v%d, s%d, v%d" % (vPOS + r, sT, vT + 4))
        I("v_lshrrev_b32 v%d, 1, v%d" % (vT + 4, g_))
        I("v_add_u32 v%d, v%d, v%d" % (vT + 4, vT + 4, g_))
        I("v_lshlrev_b32 v%d, 4, v%d" % (vT + 4, vT + 4))
        I("s_add_u32 s%d, s%d, %d" % (sT, sT, 276 * 4))
        I("v_add_u32 v%d, s%d, v%d" % (vZP, sT, vT + 4))
        I("v_cmp_eq_u32 vcc, 15, v%d" % i_)
        I("v_cndmask_b32 v%d, 0, 1.0, vcc" % (vT + 4))
        b.wait(lg=0)
        for k in range(5):
            I("ds_write_b32 v%d, v%d offset:%d" % (vKVL, vT + 4, 256 * k))
        I("s_xor_b32 s%d, s%d, 0x80000000" % (sTAG, sEP))
        I("s_and_b32 s%d, s%d, 0xfffffff0" % (sTAG, sTAG))
        I("s_mov_b32 s%d, 0x358637bd" % sEPS)
        for r, val in ((sM1, 0x22222222), (sM2, 0x44444444), (sM3, 0x88888888)):
            I("s_mov_b32 s%d, 0x%x" % (r, val))
            I("s_mov_b32 s%d, 0x%x" % (r + 1, val))
        I("s_mov_b32 s%d, 0x00f0000f" % sDIAG)
        I("s_mov_b32 s%d, 0xf0000f00" % (sDIAG + 1))
        I("v_lshlrev_b32 v%d, 10, v%d" % (vT + 4, g_))
        I("s_lshl_b32 s%d, s%d, 12" % (sT, sW))
        I("v_add_u32 v%d, s%d, v%d" % (vT + 4, sT, vT + 4))
        for t in range(4):
            I("v_xor_b32 v%d, %d, v%d" % (vCS1 + 4 + t, 32 * t, tc))
            I("v_add_u32 v%d, v%d, v%d" % (vCS1 + 4 + t, vCS1 + 4 + t, vT + 4))
            I("v_add_u32 v%d, 0x%x, v%d" % (vCS1 + 4 + t, L_PACK, vCS1 + 4 + t))
        I("v_lshlrev_b32 v%d, 10, v%d" % (vT + 14, i_))
        I("v_lshl_add_u32 v%d, v%d, 3, v%d" % (vT + 14, g_, vT + 14))
        I("s_add_u32 s%d, s%d, s%d" % (sT, sTAG, sXCC))
        I("v_mov_b32 v%d, s%d" % (vT + 15, sT))
        for ks in range(NFIRST, 5):
            for th in issue_thunks(ks):
                th()
        if not env("EARLYP", 0):
            ptk = self.pack_load(l3, q0)
        I("s_mov_b64 exec, 1")
        I("buffer_load_dword v%d, off, %s, s%d sc1" % (vDUM, self.ws(), sFL))
        I("s_mov_b64 exec, -1")
        self.stamp("setup")

        tmp = [self.free.pop() for _ in range(6)]
        assert all(s[0] == "v" for s in tmp)
        cK, cV = tmp[4][1], tmp[5][1]
        res_toks = []
        KP, KANN, KI, KC = env("KP", 4), env("KANN", 9), env("KI", 13), env("KC", 99)
        for ks in range(17):
            fill = []
            if ks < 16:
                b.wait(tokW[ks], tokA[ks // 2])
                I("s_barrier")
                if ks == 0:
                    self.stamp("w0")
                if ks == KC:
                    self.r1_check()
                    self.bg_w = len(self.free) - 3 * (16 - ks)
                    self.last_bg = self.clock
                if ks == KANN:
                    assert b.vm_done > pst[-1][1] and b.vm_done > ztok[1]
                    lx = b.newlabel("Lann")
                    I("s_cmp_lg_u32 s%d, 0" % sW)
                    I("s_cbranch_scc1 %s" % lx)
                    I("s_lshl_b32 s%d, s%d, 7" % (sT, sRG))
                    I("s_add_u32 s%d, s%d, s%d" % (sT, sT, sR1))
                    I("s_mov_b64 exec, 1")
                    self.Inc("buffer_store_dword v%d, off, %s, s%d sc1" % (vT + 15, self.ws(), sT))
                    I("s_mov_b64 exec, -1")
                    b.label(lx)
                for p in range(3):
                    s = self.free.pop(0)
                    self.wslot[("qkv", 0, (32 + ks, 2 * ks, 2 * ks + 1)[p])] = (s, None)
                    for hh in range(2):
                        fill.append(lambda s=s, hh=hh, p=p: I("ds_read_b64_tr_b16 %s, v%d offset:%d" % (
                            vr(s[1] + 2 * hh, 2, s[0]), vTR, (ks % 5) * 12288 + p * 1024 + hh * 512)))
                fb = vAF + (ks & 1) * 20
                ds, h = ks // 2, ks & 1
                for rt in range(4):
                    fill.append(lambda rt=rt: I("ds_read_b128 %s, v%d offset:%d" % (
                        vr(fb + 4 * rt, 4), (vX0, vX1)[h], ds * 8192 + rt * 2048)))
                fill.append(lambda: I("ds_read_b128 %s, v%d offset:%d" % (vr(fb + 16, 4), (vOW0, vOW1)[h], ds * 8192)))
                if ks >= 1 and ks + 4 < 16:
                    for k, th in enumerate(issue_thunks(ks + 4)):
                        fill.insert(2 * k + 1, th)
                if ks == 11:
                    def resid():
                        I("s_mov_b32 s%d, s%d" % (sT, sOUT))
                        for rt in range(4):
                            res_toks.append(I("buffer_load_dwordx2 %s, v%d, s[%d:%d], s%d offen" % (
                                p2(vAB + 2 * rt), vT + 14, R_X, R_X + 3, sT)))
                            if rt < 3:
                                I("s_add_u32 s%d, s%d, 16384" % (sT, sT))
                    fill.append(resid)
                if ks == KI:
                    fill.append(self.r1_issue)
                if ks == env("KOX", 12) and FT:
                    def tch():
                        self.touch_ox(0)
                        I("v_and_b32 v%d, 1, v0" % vT)
                        I("v_lshrrev_b32 v%d, 1, v0" % (vT + 1))
                        I("v_lshlrev_b32 v%d, 13, v%d" % (vT + 1, vT + 1))
                        I("v_lshl_add_u32 v%d, v%d, 7, v%d" % (vT + 5, vT, vT + 1))
                        I("s_mov_b64 exec, 15")
                        I("buffer_load_dword v%d, v%d, %s, s%d offen sc1" % (vDUM, vT + 5, self.ws(), sSTP))
                        I("s_mov_b64 exec, -1")
                    fill.append(tch)
                if ks == KP:
                    def prd():
                        b.wait(ptk)
                        for t in range(4):
                            for hh in range(2):
                                I("ds_read_b64_tr_b16 %s, v%d offset:%d" % (p2(tmp[t][1] + 2 * hh), vCS1 + 4 + t, hh * 512))
                    fill.append(prd)
            mfs = []
            if ks >= 1:
                k1 = ks - 1
                fb1 = vAF + (k1 & 1) * 20
                c0 = "0" if k1 == 0 else None
                wk, wv = [slot_r(self.wslot[("qkv", 0, k)][0]) for k in (2 * k1, 2 * k1 + 1)]
                one = vr(vONE, 4)
                for rt in range(4):
                    mfs.append(self.mf(vACC + 4 * rt, vr(fb1 + 4 * rt, 4), wk, c0))
                    mfs.append(self.mf(vACC + 16 + 4 * rt, vr(fb1 + 4 * rt, 4), wv, c0))
                own = vr(fb1 + 16, 4)
                mfs += [self.mf(vS1, one, own, c0), self.mf(vS2, own, own, c0),
                        self.mf(cK, one, wk, c0), self.mf(cV, one, wv, c0)]
            while mfs or fill:
                if fill:
                    fill.pop(0)()
                if len(fill) > len(mfs) and fill:
                    fill.pop(0)()
                if mfs:
                    mfs.pop(0)()
            b.wait(lg=0)
            if ks == KP:
                pst = [I("buffer_store_dwordx4 %s, v%d, %s, s%d offen sc1" % (slot_r(tmp[t]), vL16, self.ws(), 80 + t))
                       for t in range(4)]
        b.wait(res_toks)
        for rt in range(4):
            for k in range(2):
                s = vAB + 2 * rt + k
                I("v_lshlrev_b32 v%d, 16, v%d" % (vX + 4 * rt + 2 * k, s))
                I("v_and_b32 v%d, 0xffff0000, v%d" % (vX + 4 * rt + 2 * k + 1, s))
        I("v_mov_b32 v%d, v%d" % (vOA, vT + 14))
        self.bg_w = 0
        self.stamp("kvpass")
        if KC > 16:
            self.r1_check()
        self.stats_startup()
        t1 = []
        for rt in range(4):
            t1.append(I("ds_read_b128 %s, v%d offset:%d" % (vr(vAF + 4 * rt, 4), vSTA, rt * 64)))
            t1.append(I("ds_read_b128 %s, v%d offset:%d" % (vr(vAF + 16 + 4 * rt, 4), vSTA, 256 + rt * 64)))
        for rt in range(4):
            t1.append(I("ds_read_b64 %s, v%d offset:%d" % (p2(vAB + 2 * rt), vSTQ, rt * 128)))
        for k in range(2):
            I("v_mov_b32 v%d, v%d" % (vCSK + k, cK))
            I("v_mov_b32 v%d, v%d" % (vCSV + k, cV))
        self.free += tmp
        I("v_add_u32 v%d, s%d, v%d" % (vSB, sW2K, vL4))
        I("v_add_u32 v%d, 0x%x, v%d" % (vEX, L_EX, vL4))
        I("s_lshl_b32 s%d, s%d, 8" % (sT, sW))
        I("v_add_u32 v%d, s%d, v%d" % (vSW, sT, vEX))
        I("v_and_b32 v%d, 15, v0" % vT)
        I("v_lshrrev_b32 v%d, 5, v0" % (vT + 1))
        I("v_lshlrev_b32 v%d, 6, v%d" % (vT + 1, vT + 1))
        I("v_lshl_add_u32 v%d, v%d, 2, v%d" % (vSWR, vT, vT + 1))
        I("s_add_u32 s%d, s%d, 0x%x" % (sT, sT, L_STA))
        I("v_add_u32 v%d, s%d, v%d" % (vSWR, sT, vSWR))
        self.bg_w = env("W_KVE", 14)
        b.wait(t1)
        I("s_lshl_b32 s%d, s%d, 8" % (sT, sW))
        I("v_add_u32 v%d, s%d, v%d" % (vSTA, sT, vSTA))
        for hf in range(2):
            self.kv_epilogue(hf, vAF + 8 * hf, vAF + 16 + 8 * hf)

    def pack_load(self, l3, q0):
        b = self.b
        I = b.I
        dst = 80
        uid, src, strd = sT, sT + 1, sT + 2
        I("s_lshl_b32 s%d, s%d, 2" % (uid, sRG))
        I("s_add_u32 s%d, s%d, s%d" % (uid, uid, sW))
        lw1, lw2, lnone, lgo = [b.newlabel("Lpk") for _ in range(4)]
        I("s_mul_i32 s88, s%d, %d" % (sC, 4 * PKW))
        I("s_mov_b32 s%d, 0x20000" % (R_PK + 3))

        def setsrd(ptr, size, stride):
            I("s_mov_b32 s%d, s%d" % (R_PK, ptr))
            I("s_and_b32 s%d, s%d, 0xffff" % (R_PK + 1, ptr + 1))
            I("s_mov_b32 s%d, %d" % (R_PK + 2, size))
            I("s_movk_i32 s%d, %d" % (strd, stride))

        def simple(f0):
            I("s_lshl_b32 s%d, s%d, 15" % (src, uid))
            I("s_lshl_b32 s89, s%d, 7" % sC)
            I("s_add_u32 s%d, s%d, s89" % (src, src))
            I("s_add_u32 s89, s%d, %d" % (uid, f0))
            I("s_lshl_b32 s89, s89, 10")
            I("s_add_u32 s88, s88, s89")
            for t in range(4):
                I("s_add_u32 s%d, s88, %d" % (dst + t, t * PKW))
            I("s_branch %s" % lgo)

        I("s_cmp_ge_u32 s%d, 16" % uid)
        I("s_cbranch_scc1 %s" % lw1)
        setsrd(S_WO, 512 * 1024, 1024)
        simple(F_WO)
        b.label(lw1)
        I("s_cmp_ge_u32 s%d, 64" % uid)
        I("s_cbranch_scc1 %s" % lw2)
        I("s_sub_u32 s%d, s%d, 16" % (uid, uid))
        I("s_mul_i32 s89, s%d, 43" % uid)
        I("s_lshr_b32 s89, s89, 7")
        I("s_mul_i32 s92, s89, 3")
        I("s_sub_u32 s92, s%d, s92" % uid)
        setsrd(S_W1, 512 * 2752, 2752)
        I("s_mul_i32 s%d, s89, %d" % (src, 32 * 2752))
        I("s_mul_i32 s79, s%d, 384" % sC)
        I("s_add_u32 s%d, s%d, s79" % (src, src))
        I("s_lshl_b32 s79, s92, 7")
        I("s_add_u32 s%d, s%d, s79" % (src, src))
        I("s_mul_i32 s89, s89, 3072")
        I("s_add_u32 s88, s88, s89")
        I("s_add_u32 s88, s88, %d" % (F_W1 * 1024))
        for t in range(4):
            I("s_lshl_b32 s79, s92, 2")
            I("s_add_u32 s79, s79, %d" % t)
            I("s_mul_i32 s89, s79, 43")
            I("s_lshr_b32 s89, s89, 7")
            I("s_mul_i32 s%d, s89, %d" % (dst + t, PKW - 3072))
            I("s_lshl_b32 s79, s79, 10")
            I("s_add_u32 s%d, s%d, s79" % (dst + t, dst + t))
            I("s_add_u32 s%d, s%d, s88" % (dst + t, dst + t))
        I("s_mul_i32 s79, s%d, 3" % sC)
        I("s_add_u32 s79, s79, s92")
        I("s_cmp_ge_u32 s79, 22")
        I("s_cbranch_scc1 %s" % lnone)
        I("s_branch %s" % lgo)
        b.label(lw2)
        I("s_cmp_ge_u32 s%d, 107" % uid)
        I("s_cbranch_scc1 %s" % lnone)
        I("s_sub_u32 s%d, s%d, 64" % (uid, uid))
        setsrd(S_W2, 1376 * 1024, 1024)
        simple(F_W2)
        b.label(lnone)
        setsrd(S_WQ, 0, 1024)
        I("s_mov_b32 s%d, 0" % src)
        for t in range(4):
            I("s_mov_b32 s%d, 0x%x" % (dst + t, OOB))
        b.label(lgo)
        I("v_mul_lo_u32 v%d, v%d, s%d" % (vT + 4, l3, strd))
        I("v_add_u32 v%d, v%d, v%d" % (vT + 10, vT + 4, q0))
        I("v_xor_b32 v%d, 64, v%d" % (vT + 5, q0))
        I("v_add_u32 v%d, v%d, v%d" % (vT + 11, vT + 4, vT + 5))
        I("s_lshl_b32 s%d, s%d, 3" % (strd, strd))
        I("s_lshl_b32 s89, s%d, 12" % sW)
        I("s_add_u32 m0, s89, 0x%x" % L_PACK)
        toks = []
        for q in range(4):
            toks.append(I("buffer_load_dwordx4 v%d, s[%d:%d], s%d offen lds" % (vT + 10 + (q & 1), R_PK, R_PK + 3, src)))
            if q < 3:
                I("s_add_u32 s%d, s%d, s%d" % (src, src, strd))
                I("s_add_u32 m0, m0, 1024")
        return toks

    def r1_issue(self):
        I = self.b.I
        a = vCS1 + 2
        I("v_and_b32 v%d, 7, v0" % a)
        I("v_subrev_u32 v%d, s%d, v%d" % (a, sC, a))
        I("v_lshlrev_b32 v%d, 12, v%d" % (a, a))
        I("s_lshl_b32 s%d, s%d, 7" % (sT, sRG))
        I("s_add_u32 s%d, s%d, s%d" % (sT, sT, sR1))
        I("v_add_u32 v%d, s%d, v%d" % (a, sT, a))
        I("v_add_u32 v%d, s%d, v%d" % (vT + 5, sR1, vTCH))
        I("v_cmp_gt_u32 vcc, 32, v0")
        I("v_cndmask_b32 v%d, v%d, v%d, vcc" % (a, a, vT + 5))
        self.r1_tok = I("buffer_load_dword v%d, v%d, %s, 0 offen sc1" % (vPOLL, a, self.ws()))

    def r1_check(self):
        b = self.b
        I = b.I
        lp, ld, lc = b.newlabel("Ltag"), b.newlabel("Ltagd"), b.newlabel("Ltagc")
        b.wait(self.r1_tok)
        I("s_branch %s" % lc)
        b.label(lp)
        self.Inc("buffer_load_dword v%d, v%d, %s, 0 offen sc1" % (vPOLL, vCS1 + 2, self.ws()))
        I("s_waitcnt vmcnt(0)")
        b.label(lc)
        I("v_subrev_u32 v%d, s%d, v%d" % (vPOLL, sTAG, vPOLL))
        I("v_cmp_gt_u32 vcc, 16, v%d" % vPOLL)
        I("s_cmp_eq_u64 vcc, exec")
        I("s_cbranch_scc1 %s" % ld)
        self.spin_guard(lp)
        b.label(ld)
        I("v_cmp_eq_u32 vcc, s%d, v%d" % (sXCC, vPOLL))
        I("s_cmp_eq_u32 vcc_hi, -1")
        I("s_cselect_b32 s%d, 1, 0" % sFAST)

    def touch_w(self, f0, m):
        I = self.b.I
        I("s_mul_i32 s%d, s%d, %d" % (sTC, sQ, m * 1024))
        I("s_add_u32 s%d, s%d, s%d" % (sTC, sTC, sPK))
        I("s_add_u32 s%d, s%d, %d" % (sTC, sTC, f0 * 1024))
        mask = (1 << (8 * m)) - 1
        I("s_mov_b32 exec_lo, 0x%x" % (mask & 0xffffffff))
        I("s_mov_b32 exec_hi, 0x%x" % (mask >> 32))
        I("buffer_load_dword v%d, v%d, %s, s%d offen sc1" % (vDUM, vTCH, self.ws(), sTC))
        I("s_mov_b64 exec, -1")

    def touch_ox(self, layer):
        I = self.b.I
        I("s_and_b32 s%d, s%d, 1" % (sT + 2, sW))
        I("s_lshl_b32 s%d, s%d, 15" % (sT, sT + 2))
        I("s_add_u32 s%d, s%d, s%d" % (sT, sT, sRG64))
        I("s_add_u32 s%d, s%d, 0x%x" % (sT, sT, self.buf("X", 2 * layer)))
        I("s_mul_i32 s%d, s%d, %d" % (sT + 1, sT + 2, self.hstride("O")))
        I("s_add_u32 s%d, s%d, s%d" % (sT + 1, sT + 1, self.rgs("O")))
        I("s_add_u32 s%d, s%d, 0x%x" % (sT + 1, sT + 1, self.buf("O", layer)))
        I("s_bitcmp1_b32 s%d, 1" % sW)
        I("s_cselect_b32 s%d, s%d, s%d" % (sT, sT, sT + 1))
        I("s_lshl_b32 s%d, s%d, 12" % (sT + 1, sC))
        I("s_add_u32 s%d, s%d, s%d" % (sT, sT, sT + 1))
        I("s_mov_b32 exec_hi, 0")
        I("buffer_load_dword v%d, v%d, %s, s%d offen sc1" % (vDUM, vTCH, self.ws(), sT))
        I("s_mov_b32 exec_hi, -1")

    def touch_h(self, layer):
        I = self.b.I
        I("s_lshr_b32 s%d, s%d, 1" % (sT + 1, sW))
        I("s_mul_i32 s%d, s%d, %d" % (sT + 1, sT + 1, HSZ // 2 - 12288))
        I("s_mul_i32 s%d, s%d, 6144" % (sT + 2, sW))
        I("s_add_u32 s%d, s%d, s%d" % (sT + 1, sT + 1, sT + 2))
        I("s_mul_i32 s%d, s%d, 12288" % (sT + 2, sC))
        I("s_add_u32 s%d, s%d, s%d" % (sT + 1, sT + 1, sT + 2))
        I("s_add_u32 s%d, s%d, s%d" % (sT + 1, sT + 1, sRGH))
        I("s_add_u32 s%d, s%d, 0x%x" % (sT + 1, sT + 1, self.buf("H", layer)))
        I("s_cmp_lt_u32 s%d, 7" % sC)
        I("s_cselect_b32 s%d, s%d, 0x%x" % (sT + 1, sT + 1, OOB))
        I("s_mov_b32 exec_hi, 0xffff")
        I("buffer_load_dword v%d, v%d, %s, s%d offen sc1" % (vDUM, vTCH, self.ws(), sT + 1))
        I("s_mov_b32 exec_hi, -1")

    def kv_items(self, hf, seqs):
        items = []
        for ks in range(16):
            c0 = "0" if ks == 0 else None
            for r in range(2):
                def mfs(fr, ks=ks, r=r, c0=c0):
                    kk, kv_ = ("qkv", 0, 2 * ks), ("qkv", 0, 2 * ks + 1)
                    th = [self.mf(vACC + 8 * hf + 4 * r, fr, self.w_get(kk), c0),
                          self.mf(vACC + 16 + 8 * hf + 4 * r, fr, self.w_get(kv_), c0)]
                    if hf == 1 and r == 1:
                        th.append(lambda: (self.w_release(kk), self.w_release(kv_)))
                    return th
                a, off = self.frag_addr(seqs[ks // 2], r, ks & 1)
                items.append((a, off, seqs[ks // 2], mfs))
        self.pinned.update(seqs)
        return items

    def kv_finish(self, hf):
        b = self.b
        rd = [b.I("ds_read_b128 %s, v%d offset:%d" % (vr(vAF + 4 * k, 4), vSTA, (k & 1) * 64 + (k >> 1) * 128)) for k in range(4)]
        b.wait(rd)
        self.kv_epilogue(hf, vAF, vAF + 8)

    def attention(self, layer, xseqs):
        b = self.b
        I = self.I
        KVD, ZD = vS1, vS2
        one = vr(vONE, 4)
        self.bg_w = 0
        for p in range(2):
            c0 = "0" if p == 0 else None
            self.mf(KVD, vr(vACC + 8 * p, 4), vr(vACC + 16 + 8 * p, 4), c0)()
            self.mf(ZD, vr(vACC + 8 * p, 4), one, c0)()
        b.I("s_add_u32 s%d, s%d, %d" % (sKB, sKV, layer * 2560))
        b.I("s_and_b32 s%d, s%d, 1" % (sKB + 1, sRG))
        b.I("s_mul_i32 s%d, s%d, 1280" % (sKB + 1, sKB + 1))
        b.I("s_add_u32 s%d, s%d, s%d" % (sKB + 1, sKB + 1, sKB))
        for r in range(4):
            b.I("ds_write_b32 v%d, v%d" % (vPOS + r, KVD + r))
        b.I("s_mov_b32 exec_lo, 0x00010001")
        b.I("s_mov_b32 exec_hi, 0x00010001")
        b.I("ds_write_b128 v%d, %s" % (vZP, vr(ZD, 4)))
        b.I("s_mov_b64 exec, -1")
        rd = [b.I("ds_read_b32 v%d, v%d offset:%d" % (vT + k, vKVL, 256 * k)) for k in range(5)]
        for k in range(5):
            b.wait(rd[k])
            if k == 4:
                b.I("s_mov_b32 exec_hi, 0xffff")
            b.I("buffer_atomic_add_f32 v%d, v%d, %s, s%d offen offset:%d" % (vT + k, vL4, self.ws(), sKB + 1, k * 256))
        b.I("s_mov_b64 exec, -1")
        self.stamp("atom")
        if layer:
            self.touch_ox(layer)
        self.last_bg = self.clock
        self.bg_w = env("W_Q", [99, 99])[layer]
        items = []
        for ks in range(16):
            ds, h = ks // 2, ks & 1
            c0 = "0" if ks == 0 else None
            if layer:
                def keep(fr):
                    self.wq_reg = fr
                    return []
                items.append((vWQ, ks * 1024, None, keep))
            for rt in range(4):
                def mfs(fr, ks=ks, rt=rt, c0=c0):
                    w = self.w_get(("qkv", 0, 32 + ks)) if layer == 0 else self.wq_reg
                    th = [self.mf(vACC + 4 * rt, w, fr, c0)]
                    if layer == 0 and rt == 0:
                        th.append(self.mf(vCSQ, w, one, c0))
                    return th
                if layer == 0:
                    items.append(((vX0, vX1)[h], ds * 8192 + rt * 2048, None, mfs))
                else:
                    a, off = self.frag_addr(xseqs[rt >> 1][ds], rt & 1, h)
                    items.append((a, off, None, mfs))
        self.gemm(items, None, 9 if layer == 0 else 5)
        self.pinned = set()
        self.mine = self.seq - 1
        if layer == 0:
            b.I("s_lshl_b32 s%d, s%d, 14" % (sT, sW))
            b.I("s_add_u32 s%d, s%d, 0x%x" % (sT, sT, L_WQ))
            b.I("v_add_u32 v%d, s%d, v%d" % (vWQ, sT, vL16))
            for ks in range(16):
                b.I("ds_write_b128 v%d, %s offset:%d" % (vWQ, slot_r(self.wslot[("qkv", 0, 32 + ks)][0]), ks * 1024))
            b.wait(lg=0)
            for ks in range(16):
                self.w_release(("qkv", 0, 32 + ks))
        PQ = vACC + 16
        for rt in range(4):
            ab = vAB + 2 * rt
            for r in (0, 2):
                u = vT + 2 * ((rt * 2 + r // 2) % 8)
                I("v_pk_fma_f32 %s, %s, %s, %s op_sel:[0,1,1] op_sel_hi:[1,1,1]" % (p2(u), p2(vCSQ + r), p2(ab), p2(vK)))
        for rt in range(4):
            ab = vAB + 2 * rt
            for r in (0, 2):
                q_ = vACC + 4 * rt + r
                u = vT + 2 * ((rt * 2 + r // 2) % 8)
                I("v_pk_fma_f32 %s, %s, %s, %s op_sel:[0,0,0] op_sel_hi:[1,0,1]" % (p2(q_), p2(q_), p2(ab), p2(u)))
        self.phi_pairs([(vACC + 4 * rt + r, PQ + 2 * rt + r // 2) for rt in range(4) for r in (0, 2)])
        self.stamp("qpass")
        self.bg_w = 0
        self.w_burst(env("W_S1", [16, 16])[layer])
        b.I("v_add_u32 v%d, 0x400, v%d" % (vC2, vL16))
        b.I("v_cmp_gt_u32 vcc, 12, v0")
        b.I("v_mov_b32 v%d, 0x%x" % (vT, OOB))
        b.I("v_cndmask_b32 v%d, v%d, v%d, vcc" % (vC2, vT, vC2))
        b.I("s_add_u32 s%d, s%d, s%d" % (sT + 6, self.rgs("O"), sSTO))
        b.I("s_add_u32 s%d, s%d, 0x%x" % (sT + 6, sT + 6, self.buf("O", layer)))
        b.I("s_add_u32 s%d, s%d, %d" % (sT + 7, sT + 6, self.hstride("O")))
        lp, ld = b.newlabel("Lkv"), b.newlabel("Lkvd")
        b.label(lp)
        b.I("buffer_load_dwordx4 %s, v%d, %s, s%d offen sc1" % (vr(vT, 4), vL16, self.ws(), sKB))
        b.I("buffer_load_dwordx4 %s, v%d, %s, s%d offen offset:1280 sc1" % (vr(vT + 4, 4), vL16, self.ws(), sKB))
        b.I("buffer_load_dwordx4 %s, v%d, %s, s%d offen sc1" % (vr(vT + 8, 4), vC2, self.ws(), sKB))
        b.I("buffer_load_dwordx4 %s, v%d, %s, s%d offen offset:1280 sc1" % (vr(vT + 12, 4), vC2, self.ws(), sKB))
        b.wait(vm=0)
        for k in (0, 2, 8, 10):
            b.I("v_pk_add_f32 %s, %s, %s" % (p2(vT + k), p2(vT + k), p2(vT + k + 4)))
        b.I("v_cmp_eq_f32 vcc, 0x42000000, v%d" % (vT + 3))
        b.I("v_cmp_eq_f32 s[%d:%d], v%d, v%d" % (sT, sT + 1, vT + 11, vT + 3))
        b.I("s_and_b64 vcc, vcc, s[%d:%d]" % (sM3, sM3 + 1))
        b.I("s_and_b32 s%d, s%d, 0x888" % (sT, sT))
        b.I("s_xor_b32 s%d, s%d, 0x888" % (sT, sT))
        b.I("s_xor_b64 vcc, vcc, s[%d:%d]" % (sM3, sM3 + 1))
        b.I("s_or_b32 s%d, s%d, vcc_lo" % (sT, sT))
        b.I("s_or_b32 s%d, s%d, vcc_hi" % (sT, sT))
        b.I("s_cbranch_scc0 %s" % ld)
        self.spin_guard(lp)
        b.label(ld)
        self.stamp("kvsync")
        b.I("v_lshl_add_u32 v%d, v0, 4, v%d" % (vT + 4, vKVL))
        b.I("v_sub_u32 v%d, v%d, v%d" % (vT + 4, vT + 4, vL4))
        b.I("ds_write_b128 v%d, %s offset:1280" % (vT + 4, vr(vT, 4)))
        b.I("s_mov_b64 exec, 0xfff")
        b.I("ds_write_b128 v%d, %s offset:2304" % (vT + 4, vr(vT + 8, 4)))
        b.I("s_mov_b64 exec, -1")
        lz = b.I("ds_read_b128 %s, v%d offset:1280" % (vr(vT + 4, 4), vZP))
        lt = [b.I("ds_read_b32 v%d, v%d offset:1280" % (vT + 12 + r, vPOS + r)) for r in range(4)]
        b.wait(lz)
        I("v_cvt_pk_bf16_f32 v%d, v%d, v%d" % (vT + 10, vT + 4, vT + 5))
        I("v_cvt_pk_bf16_f32 v%d, v%d, v%d" % (vT + 11, vT + 6, vT + 7))
        NUM, DEN = vACC, vAF
        for rt in range(4):
            I("v_mfma_f32_16x16x16_bf16 %s, %s, %s, 0" % (vr(DEN + 4 * rt, 4), p2(vT + 10), p2(PQ + 2 * rt)))
        b.wait(lt)
        I("v_cvt_pk_bf16_f32 v%d, v%d, v%d" % (vT + 8, vT + 12, vT + 13))
        I("v_cvt_pk_bf16_f32 v%d, v%d, v%d" % (vT + 9, vT + 14, vT + 15))
        for rt in range(4):
            I("v_mfma_f32_16x16x16_bf16 %s, %s, %s, 0" % (vr(NUM + 4 * rt, 4), p2(vT + 8), p2(PQ + 2 * rt)))
        for rt in range(4):
            I("v_add_f32 v%d, s%d, v%d" % (DEN + 4 * rt, sEPS, DEN + 4 * rt))
        for rt in range(4):
            I("v_rcp_f32 v%d, v%d" % (DEN + 4 * rt, DEN + 4 * rt))
        for rt in range(4):
            for r in (0, 2):
                n_ = NUM + 4 * rt + r
                I("v_pk_mul_f32 %s, %s, %s op_sel_hi:[1,0]" % (p2(n_), p2(n_), p2(DEN + 4 * rt)))
        for rt in range(4):
            for r in (0, 2):
                I("v_cvt_pk_bf16_f32 v%d, v%d, v%d" % (vT + 2 * rt + r // 2, NUM + 4 * rt + r, NUM + 4 * rt + r + 1))
        return self.stores2([self.pair_store(vT + 4 * pr, sT + 6 + pr, 0) for pr in range(2)], layer == 0 or self.sep)

    def n16_items(self, name, layer, nks, hf, seqs):
        items = []
        for ks in range(nks):
            for r in range(2):
                def mfs(fr, ks=ks, r=r):
                    th = [self.mf(vX + 8 * hf + 4 * r, self.w_get((name, layer, ks)), fr)]
                    if hf == 1 and r == 1:
                        th.append(lambda: self.w_release((name, layer, ks)))
                    return th
                a, off = self.frag_addr(seqs[ks // 2], r, ks & 1)
                items.append((a, off, seqs[ks // 2], mfs))
        return items

    def n16_full(self, name, layer, nks, seqs):
        items = []
        for ks in range(nks):
            for rt in range(4):
                def mfs(fr, ks=ks, rt=rt):
                    th = [self.mf(vX + 4 * rt, self.w_get((name, layer, ks)), fr)]
                    if rt == 3:
                        th.append(lambda: self.w_release((name, layer, ks)))
                    return th
                sq = seqs[rt >> 1][ks // 2]
                a, off = self.frag_addr(sq, rt & 1, ks & 1)
                items.append((a, off, sq, mfs))
        return items

    def x_full_store(self, idx, wt):
        I = self.b.I
        for hf in range(2):
            I("s_add_u32 s%d, s%d, s%d" % (sT + 6 + hf, sRG64, sSTO))
            I("s_add_u32 s%d, s%d, 0x%x" % (sT + 6 + hf, sT + 6 + hf, self.buf("X", idx) + hf * 32768))
        I("s_add_u32 s%d, s%d, 8192" % (sT + 8, sSTP))
        for j in range(8):
            I("v_cvt_pk_bf16_f32 v%d, v%d, v%d" % (vT + j, vX + 2 * j, vX + 2 * j + 1))
        s = vAF
        for rt in range(4):
            I("v_pk_add_f32 %s, %s, %s" % (p2(s + 4 * rt), p2(vX + 4 * rt), p2(vX + 4 * rt + 2)))
            I("v_pk_mul_f32 %s, %s, %s" % (p2(s + 4 * rt + 2), p2(vX + 4 * rt), p2(vX + 4 * rt)))
        tk = self.stores2([self.pair_store(vT + 4 * hf, sT + 6 + hf, 0) for hf in range(2)], wt)
        for rt in range(4):
            I("v_pk_fma_f32 %s, %s, %s, %s" % (p2(s + 4 * rt + 2), p2(vX + 4 * rt + 2), p2(vX + 4 * rt + 2), p2(s + 4 * rt + 2)))
        for rt in range(4):
            I("v_add_f32 v%d, v%d, v%d" % (s + 4 * rt, s + 4 * rt, s + 4 * rt + 1))
            I("v_add_f32 v%d, v%d, v%d" % (s + 4 * rt + 2, s + 4 * rt + 2, s + 4 * rt + 3))
        for hf in range(2):
            q = s + 8 * hf
            I("v_permlane32_swap_b32 v%d, v%d" % (q, q + 4))
            I("v_permlane32_swap_b32 v%d, v%d" % (q + 2, q + 6))
        for hf in range(2):
            q = s + 8 * hf
            I("v_add_f32 v%d, v%d, v%d" % (q, q, q + 4))
            I("v_add_f32 v%d, v%d, v%d" % (q + 2, q + 2, q + 6))
        for hf in range(2):
            I("v_permlane16_swap_b32 v%d, v%d" % (s + 8 * hf, s + 8 * hf + 2))
        for hf in range(2):
            I("v_add_f32 v%d, v%d, v%d" % (s + 8 * hf, s + 8 * hf, s + 8 * hf + 2))
        tk += self.stores2(["buffer_store_dword v%d, v%d, %s, s%d offen" % (s + 8 * hf, vL4, self.ws(), (sSTP, sT + 8)[hf])
                            for hf in range(2)], wt)
        return tk

    def x_half_now(self, idx, hf, wt):
        I = self.b.I
        x = vX + 8 * hf
        o = vT + 2
        s = o + 4
        I("s_add_u32 s%d, s%d, s%d" % (sT + 6, sRG64, sSTO))
        I("s_add_u32 s%d, s%d, 0x%x" % (sT + 6, sT + 6, self.buf("X", idx) + hf * 32768))
        I("s_add_u32 s%d, s%d, %d" % (sT + 7, sSTP, hf * 8192))
        for j in range(4):
            I("v_cvt_pk_bf16_f32 v%d, v%d, v%d" % (o + j, x + 2 * j, x + 2 * j + 1))
        for r in range(2):
            I("v_pk_add_f32 %s, %s, %s" % (p2(s + 4 * r), p2(x + 4 * r), p2(x + 4 * r + 2)))
            I("v_pk_mul_f32 %s, %s, %s" % (p2(s + 4 * r + 2), p2(x + 4 * r), p2(x + 4 * r)))
        tk = self.stores2([self.pair_store(o, sT + 6, 0)], wt)
        for r in range(2):
            I("v_pk_fma_f32 %s, %s, %s, %s" % (p2(s + 4 * r + 2), p2(x + 4 * r + 2), p2(x + 4 * r + 2), p2(s + 4 * r + 2)))
            I("v_add_f32 v%d, v%d, v%d" % (s + 4 * r, s + 4 * r, s + 4 * r + 1))
        for r in range(2):
            I("v_add_f32 v%d, v%d, v%d" % (s + 4 * r + 2, s + 4 * r + 2, s + 4 * r + 3))
        I("v_permlane32_swap_b32 v%d, v%d" % (s, s + 4))
        I("v_permlane32_swap_b32 v%d, v%d" % (s + 2, s + 6))
        I("v_add_f32 v%d, v%d, v%d" % (s, s, s + 4))
        I("v_add_f32 v%d, v%d, v%d" % (s + 2, s + 2, s + 6))
        I("v_permlane16_swap_b32 v%d, v%d" % (s, s + 2))
        I("v_add_f32 v%d, v%d, v%d" % (s, s, s + 2))
        tk += self.stores2(["buffer_store_dword v%d, v%d, %s, s%d offen" % (s, vL4, self.ws(), sT + 7)], wt)
        return self.new_pub(tk)

    def x_half_store(self, idx, hf, wt, delay):
        x = vX + 8 * hf
        o = vT + 1
        o += o & 1
        tk = []
        k, fl = self.new_pub(tk)
        s = o + 4
        e = ["s_add_u32 s%d, s%d, s%d" % (sT + 6, sRG64, sSTO),
             "s_add_u32 s%d, s%d, 0x%x" % (sT + 6, sT + 6, self.buf("X", idx) + hf * 32768),
             "s_add_u32 s%d, s%d, %d" % (sT + 7, sSTP, hf * 8192), 2]
        e += ["v_cvt_pk_bf16_f32 v%d, v%d, v%d" % (o + j, x + 2 * j, x + 2 * j + 1) for j in range(4)]
        for r in range(2):
            e += ["v_add_f32 v%d, v%d, v%d" % (s + 2 * r, x + 4 * r, x + 4 * r + 1),
                  "v_mul_f32 v%d, v%d, v%d" % (s + 2 * r + 1, x + 4 * r, x + 4 * r)]
        e.append(lambda: tk.extend(self.stores2([self.pair_store(o, sT + 6, 0)], wt)))
        for q in (1, 2, 3):
            for r in range(2):
                if q > 1:
                    e.append("v_add_f32 v%d, v%d, v%d" % (s + 2 * r, s + 2 * r, x + 4 * r + q))
                e.append("v_fmac_f32 v%d, v%d, v%d" % (s + 2 * r + 1, x + 4 * r + q, x + 4 * r + q))
        e += [1, "v_permlane32_swap_b32 v%d, v%d" % (s, s + 2), "v_permlane32_swap_b32 v%d, v%d" % (s + 1, s + 3), 1,
              "v_add_f32 v%d, v%d, v%d" % (s, s, s + 2), "v_add_f32 v%d, v%d, v%d" % (s + 1, s + 1, s + 3), 1,
              "v_permlane16_swap_b32 v%d, v%d" % (s, s + 1), 1, "v_add_f32 v%d, v%d, v%d" % (s, s, s + 1),
              lambda: tk.extend(self.stores2(["buffer_store_dword v%d, v%d, %s, s%d offen" % (s, vL4, self.ws(), sT + 7)], wt))]
        if delay is not None:
            e += [delay, fl]
        return k, e, fl

    def out_half_store(self, hf):
        x = vX + 8 * hf
        e = ["s_add_u32 s%d, s%d, s%d" % (sT + 6, sRG64, sOUT), "s_add_u32 s%d, s%d, %d" % (sT + 6, sT + 6, hf * 32768),
             "s_add_u32 s%d, s%d, 16384" % (sT + 7, sT + 6), 2]
        e += ["v_cvt_pk_bf16_f32 v%d, v%d, v%d" % (vT + 4 * hf + j, x + 2 * j, x + 2 * j + 1) for j in range(4)]
        e += ["buffer_store_dwordx2 %s, v%d, s[%d:%d], s%d offen" % (p2(vT + 4 * hf + 2 * r), vOA, R_OUT, R_OUT + 3, sT + 6 + r)
              for r in range(2)]
        return e

    def p3_items(self, layer, seqs):
        items = []
        one = vr(vONE, 4)
        for ks in range(16):
            c0 = "0" if ks == 0 else None
            for rt in range(4):
                def mfs(fr, ks=ks, rt=rt, c0=c0):
                    th = []
                    for t in range(3):
                        w = self.w_get(("w1", layer, 3 * ks + t))
                        th.append(self.mf(vACC + 24 * (rt >> 1) + 8 * t + 4 * (rt & 1), w, fr, c0))
                        if layer == 0 and rt == 0:
                            th.append(self.mf(vCS1 + 4 * t, w, one, c0))
                    if rt == 3:
                        th.append(lambda: [self.w_release(("w1", layer, 3 * ks + t)) for t in range(3)])
                    return th
                sq = seqs[rt >> 1][ks // 2]
                a, off = self.frag_addr(sq, rt & 1, ks & 1)
                items.append((a, off, sq, mfs))
        return items

    def silu(self, layer, hf, mid=None):
        b = self.b
        I = self.I
        for t in range(3):
            b.I("s_add_u32 s%d, s%d, 0x%x" % (sT + 6 + t, sH0 + t, self.buf("H", layer) + hf * (HSZ // 2)))
        sts = []
        for t in range(3):
            A = vACC + 24 * hf + 8 * t
            u = vT + 8 * (t & 1)
            if mid and t == mid[0]:
                mid[1]()
            for j in range(4):
                I("v_pk_mul_f32 %s, %s, %s op_sel:[0,1] op_sel_hi:[1,1]" % (
                    p2(u + 2 * j), p2(vCS1 + 4 * t + 2 * (j & 1)), p2(vAB + 4 * hf + 2 * (j >> 1))))
            for j in range(4):
                I("v_pk_fma_f32 %s, %s, %s, %s op_sel:[0,0,0] op_sel_hi:[1,0,1]" % (
                    p2(A + 2 * j), p2(A + 2 * j), p2(vAB + 4 * hf + 2 * (j >> 1)), p2(u + 2 * j)))
            for k in range(8):
                I("v_exp_f32_e64 v%d, -v%d" % (u + k, A + k))
            for j in range(4):
                I("v_pk_fma_f32 %s, %s, %s, %s op_sel:[0,0,0] op_sel_hi:[1,0,0]" % (p2(u + 2 * j), p2(u + 2 * j), p2(vK), p2(vK)))
            for k in range(8):
                I("v_rcp_f32 v%d, v%d" % (u + k, u + k))
            for j in range(4):
                I("v_pk_mul_f32 %s, %s, %s" % (p2(A + 2 * j), p2(A + 2 * j), p2(u + 2 * j)))
            for j in range(4):
                I("v_cvt_pk_bf16_f32 v%d, v%d, v%d" % (A + j, A + 2 * j, A + 2 * j + 1))
            sts += self.stores2([self.pair_store(A, sT + 6 + t, 0)], layer == 0 or self.sep)
        return sts

    def body(self):
        b = self.b
        for layer in range(2):
            self.w_enqueue("wo", layer, F_WO, 16)
            self.w_enqueue("w1", layer, F_W1, 48)
            self.w_enqueue("w2", layer, F_W2, 43)
        AF = env("AFIRST", 8)
        G8c = env("G8C", [2, 2, 2, 2])
        G8w = env("G8W", [4, 4])
        G22 = env("G22", [2, 2, 2, 4, 4, 4, 4])
        st = {}
        PA, PB = env("PA", [75, 62]), env("PB", [75, 62])
        self.pace_w = PA[0]
        self.startup()
        xs = None
        for layer in range(2):
            self.pace_w = PA[layer]
            tk = self.attention(layer, xs)
            k_o, fl = self.new_pub(tk)
            self.w_burst(env("W_PUB", [6, 6])[layer])
            fl()
            self.stamp("o_pub")
            self.poll_check(k_o)
            self.stamp("o_rdy")
            wt = layer == 0 or self.sep
            D16, PW = env("D16", 9), env("PAIRW", True)
            n0 = self.seq
            oo = self.queue_both("O", layer, 8, self.aq)
            self.a_burst(AF)
            self.bg_w = env("W_P2", 6)
            self.gemm(self.n16_full("wo", layer, 16, oo), self.split(list(range(n0, n0 + 16)), env("G16", [4, 4, 4, 4])), D16,
                      pairw=PW)
            self.bg_w = 0
            self.stamp("p2")
            k_x, fl_x = self.new_pub(self.x_full_store(2 * layer, wt))
            self.w_burst(env("W_PUB2", [6, 6])[layer])
            fl_x()
            self.stamp("x_pub")
            self.poll_check(k_x)
            self.stamp("x_rdy")
            poll = lambda: st.update(tok=self.poll_issue())

            def when(k, plan, burst=0):
                def f():
                    self.poll_check(k() if callable(k) else k, st["tok"])
                    self.aq += plan
                    self.a_burst(burst)
                return f
            n0 = self.seq
            xx = self.queue_both("X", 2 * layer, 2, self.aq)
            hold = self.seq
            sa = self.queue_stats(0, self.aq)
            sb = self.queue_stats(1, self.aq)
            n1 = self.seq
            x2 = [self.queue_both("X", 2 * layer, 2, self.aq) for _ in range(0)]
            rest = ([], [])
            for d0 in (2, 4, 6):
                for hf in range(2):
                    rest[hf].extend(self.queue_half("X", 2 * layer, hf, 2, self.aq, ds0=d0))
            xx = (xx[0] + rest[0], xx[1] + rest[1])
            if layer or FT:
                th = lambda: self.touch_h(layer)
                th.seq = -1
                th.prep = []
                self.aq.append(th)
            self.a_burst(AF)
            self.bg_w = 99
            self.pace_w = PB[layer]
            groups = [list(range(n0, n0 + 4))] + self.split(list(range(n1, n1 + 12)), env("G3", [4, 4, 4]))
            hooks, pre, post = {}, {}, {}
            s1a, bba = self.stats_stage1(sa, 0)
            s1b, bbb = self.stats_stage1(sb, 1)
            gi = len(groups) - 1
            hooks[env("H_ST", 10)] = [lambda: self.side.extend(s1a + s1b)]
            pre[gi] = [bba, bbb]
            post[gi] = [lambda: self.side.extend(self.stats_stage2(0, True, False) + self.stats_stage2(1, True, False))]
            self.pinned = {hold + 2}
            self.gemm(self.p3_items(layer, xx), groups, 6, hooks, pre, post, pairw=True)
            self.pinned = set()
            self.mine = self.seq - 1
            self.bg_w = env("W_SILU", 8)
            self.stamp("p3")
            k_ha, fl_ha = self.new_pub(self.silu(layer, 0))
            self.bg_w = 0
            tkb = self.silu(layer, 1, (env("MID", 2), fl_ha))
            k_hb, fl_hb = self.new_pub(tkb)
            self.stamp("silu")
            self.poll_check(k_ha)
            self.stamp("ha_rdy")
            pl_hb, pl_ya = [], []
            ha = self.queue_half("H", layer, 0, 22, self.aq)
            hb = self.queue_half("H", layer, 1, 22, pl_hb)
            self.a_burst(4)
            fl_hb()
            self.a_burst(AF - 2)
            self.bg_w = 99
            j = env("H_P4A", 24)
            self.alead = env("ALEAD4", 16)
            self.pace_w = PA[1]
            items = self.n16_items("w2", layer, 43, 0, ha) + self.n16_items("w2", layer, 43, 1, hb)
            groups = self.split(ha, env("G22C", [2, 2, 4, 4, 4, 6])) + self.split(hb, G22)
            hooks = {j: [poll], j + env('CK4', 12): [when(k_hb, pl_hb, env('BU_HB', 4))]}
            pre, post = {}, {}
            if layer == 0:
                sa = self.queue_stats(0, pl_ya)
                ya = self.queue_half("X", 1, 0, 8, pl_ya, rot=True)

                def y_out(hf, delay):
                    def f():
                        self.stamp("p4a" if hf == 0 else "p4b")
                        st["k_y%d" % hf], st["fl_y%d" % hf] = self.x_half_now(1, hf, self.sep)
                        self.pace_w = PA[1]
                        if hf:
                            self.alead = env("ALEAD", 99)
                    return f
                j = 86 + env("H_P4B", 44)
                hooks.update({87: [y_out(0, 0)], 87 + env("D_Y0", 22): [lambda: st["fl_y0"]()],
                              172 + env("D_Y1", 12): [lambda: st["fl_y1"]()], j: [poll], j + env('CK4', 12): [when(lambda: st["k_y0"], pl_ya, env("BU_YA", 6))], 172: [y_out(1, 0)],
                              172 + env("H_P1A", 28): [poll]})
                ng = len(groups)
                groups += self.split(ya, env("G8K", [3, 3, 2]))
                self.stats_hooks(sa, 0, False, True, 173, ng + 2, hooks, pre, post)
                items += self.kv_items(0, ya)
            else:
                hooks[85] = [lambda: (self.stamp("p4a"), self.side.extend(self.out_half_store(0)))]
            self.gemm(items, groups, D16, hooks, pre, post, pairw=PW)
            if layer == 0:
                self.stamp("p1a")
                self.poll_check(st["k_y1"], st["tok"])
                self.stamp("yb_rdy")
                sb = self.queue_stats(1, self.aq)
                yb = self.queue_half("X", 1, 1, 8, self.aq, rot=True)
                self.a_burst(AF + 2)
                self.kv_finish(0)
                hooks, pre, post = {}, {}, {}
                self.stats_hooks(sb, 1, False, True, 0, 1, hooks, pre, post)
                self.gemm(self.kv_items(1, yb), self.split(yb, G8w), 8, hooks, pre, post, pairw=True)
                self.kv_finish(1)
                self.stamp("p1b")
                xs = [ya, yb]
            else:
                self.stamp("p4b")
                self.side = self.out_half_store(1)
                self.side_flush()
                lx = b.newlabel("Lep")
                b.I("s_or_b32 s%d, s2, s%d" % (sT, sW))
                b.I("s_cbranch_scc1 %s" % lx)
                b.I("s_add_u32 s%d, s%d, 16" % (sT, sEP))
                b.I("v_mov_b32 v%d, s%d" % (vT + 9, sT))
                b.I("s_mov_b32 s%d, 0x%x" % (sT, WS_EP))
                b.I("s_mov_b64 exec, 1")
                self.Inc("buffer_store_dword v%d, off, %s, s%d sc1" % (vT + 9, self.ws(), sT))
                b.I("s_mov_b64 exec, -1")
                b.label(lx)
                self.stamp("end")
        if self.diag:
            b.I("s_lshl_b32 s%d, s2, 2" % sT)
            b.I("s_add_u32 s%d, s%d, s%d" % (sT, sT, sW))
            b.I("s_lshl_b32 s%d, s%d, 8" % (sT, sT))
            b.I("s_add_u32 s%d, s%d, 0x%x" % (sT, sT, WS_STAMP))
            b.I("buffer_store_dword v%d, v%d, %s, s%d offen" % (vSTAMP, vL4, self.ws(), sT))
        b.label("L_end")
        b.I("s_endpgm")
        for t in self.cold:
            b.raw(t)

    def emit(self):
        self.body()
        head = """; @launch grid=(256,1,1) block=(256,1,1) lds=%d
; persistent fused kernel: 32 row groups (64 rows) x 8 column groups (generated by my own script)
.amdgcn_target "amdgcn-amd-amdhsa--gfx950"
.text
.globl %s_kernel
.p2align 8
.type %s_kernel,@function
%s_kernel:
""" % (LDS_BYTES, NAME, NAME, NAME)
        tail = """.section .rodata,"a"
.p2align 6
.amdhsa_kernel %s_kernel
  .amdhsa_next_free_vgpr 512
  .amdhsa_next_free_sgpr 102
  .amdhsa_accum_offset 256
  .amdhsa_group_segment_fixed_size 0
  .amdhsa_kernarg_size 72
  .amdhsa_user_sgpr_count 2
  .amdhsa_user_sgpr_kernarg_segment_ptr 1
  .amdhsa_system_sgpr_workgroup_id_x 1
.end_amdhsa_kernel
""" % NAME
        return head + self.b.text() + tail


if __name__ == "__main__":
    import argparse
    ap = argparse.ArgumentParser()
    ap.add_argument("-o", default="cdna_kernels/%s.s" % NAME)
    ap.add_argument("--diag", action="store_true")
    ap.add_argument("--sep", action="store_true")
    a = ap.parse_args()
    g = Gen(a.diag, a.sep)
    txt = g.emit()
    if a.diag:
        txt = txt.replace(".amdgcn_target", "; stamps: " + ",".join(g.stamp_names) + "\n.amdgcn_target", 1)
    open(a.o, "w").write(txt)
    print("instructions", g.b.nins, "nops", g.b.nops, file=sys.stderr)
```

```python
import sys
import os
sys.path.insert(0, os.path.dirname(os.path.abspath(__file__)))
from asmb import Builder, vr

NAME = "interleave_layers__linear_attn_block__dense_activation_silu__prompt"


def env(name, default):
    v = os.environ.get(name)
    return default if v is None else eval(v)


PKW = 107 * 1024
WS_FL = 0x380000
WS_EP = 0x390000
WS_R2 = 0x398000
WS_KV = 0x3A0000
KVH = 5120
WS_ST = 0x400000
WS_O = 0x600000
WS_X = 0x800000
WS_H = 0xA00000
HSZ = 22 * 8192
WS_STAMP = 0x3000000
WS_SIZE = 0x3100000 if '--diag' in sys.argv else 0x1000000
OOB = 0x4000000 if '--diag' in sys.argv else 0x1000000
F_WO, F_W1, F_W2 = 0, 16, 64

L_RING = 65536
L_RQ = 106496
L_WQ = 81920
L_PACK = 131072
L_KVI = 147456
L_STA = 157696
L_EX = 158720
NR = env('NR', 8)
NSLOT = 20
LDS_BYTES = 163840

S_X, S_WQ, S_WO, S_W1, S_W2, S_OUT, S_DBG, S_WS = 4, 6, 8, 12, 14, 16, 18, 20
R_X, R_WQ, R_WS, R_OUT, R_PK = 24, 28, 32, 36, 44
sR1, sQ, sTC, sTAG, sEP = 3, 10, 11, 22, 23
sROT, sSTP, sSTC, sW1K = 40, 41, 42, 43
sRG, sC, sW, sFAST, sPK, sKV, sFL, sRG64, sRGH, sSTO = 48, 49, 50, 51, 52, 53, 54, 55, 56, 57
sH0 = 58
sSPIN = 61
sEPS = 62
sOUT = 63
sXS = 64
sM1, sM2, sM3, sDIAG = 68, 70, 72, 74
sT = 76
sKB = 88
sPKC, sXCC, sMYF, sW2K, sAB, sAO = 96, 97, 98, 99, 100, 101

vL16, vA1, vKVL, vDMA, vST = 1, 2, 3, 4, 5
vX0, vX1, vOW0, vOW1, vTR, vXS0, vXS1, vWS = 6, 7, 8, 9, 10, 11, 12, 13
vWQ = 13
vSB, vEX, vSWR, vOA = 8, 9, 10, 11
vFL, vL4, vSTAMP, vSTA, vSTQ, vC2 = 14, 15, 16, 17, 18, 19
vX = 20
vCSQ, vCSK, vCSV = 36, 40, 42
vCS1 = 44
vONE = 56
vACC = 60
vAF = 108
NAF = 10
vAB = 148
vT = 156
vPOS = 172
vZP, vSW, vDUM, vTCH, vPOLL, vDM2 = 176, 177, 178, 179, 180, 181
vK = 182
vS1, vS2 = 184, 188
vTQ = 195
vW1 = 192
SLOTS = [("a", 4 * i) for i in range(64)] + [("v", 196 + 4 * i) for i in range(15)]
PACE = env("PACE", 36)
FT = env("FTOUCH", 1)
WMIN = env("WMIN", 10)
AMIN = env("AMIN", 5)
RDSLACK = env("RDSLACK", 2)
SIDEMIN = env("SIDEMIN", 1)
COST = {"mfma": 16, "trans": 8, "ds": 4, "valu": 4, "perm": 4, "dpp": 4, "rdlane": 4, "wrlane": 4, "salu": 2, "vmem": 8}
K_L2E = "op_sel:[0,0] op_sel_hi:[1,0]"


def slot_r(s):
    return vr(s[1], 4, s[0])


def p2(r):
    return "v[%d:%d]" % (r, r + 1)


class Gen:
    def __init__(self, diag=False, sep=False):
        self.b = Builder()
        self.diag = diag
        self.sep = sep
        self.free = list(SLOTS)
        self.wq = []
        self.wslot = {}
        self.pk_cur = None
        self.nstamp = 0
        self.stamp_names = []
        self.aq = []
        self.atok = {}
        self.seq = 0
        self.consumed = -1
        self.mine = -1
        self.pub_mine = {}
        self.clock = 0
        self.last_bg = -1000
        self.bg_w = 0
        self.pace_w = 70
        self.in_bg = False
        self.npub = 0
        self.gstamp = False
        self.vclock = {}
        bI, bw = self.b.I, self.b.wait

        def I2(t):
            tok = bI(t)
            if tok and tok[0] == "vm":
                self.vclock[tok[1]] = self.clock
            return tok

        def w2(*toks, **kw):
            if os.environ.get("SLACK"):
                flat = []
                for t in toks:
                    if t is None:
                        continue
                    flat += t if isinstance(t, list) else [t]
                v = [i for k, i in flat if k == "vm" and i >= self.b.vm_done]
                if v:
                    d = self.clock - self.vclock.get(max(v), 0)
                    if d < int(os.environ["SLACK"]):
                        print("   slack %4d at clock %d (after %s)" % (d, self.clock, self.last_stamp), file=sys.stderr)
            return bw(*toks, **kw)
        self.b.I, self.b.wait = I2, w2
        self.last_stamp = ""
        self.flagged = set()
        self.cold = []
        self.slotted = False
        self.prepped = None
        self.wprep = []
        self.pinned = set()
        self.side = []
        self.side_rate = 2
        self.w_issued = 0
        self.w_need = 0
        self.w_cur = None
        self.w_index = {}
        self.wlead = env('WLEAD', 14)
        self.cur_seq = 0
        self.alead = env('ALEAD', 99)

    def I(self, t):
        tok = self.b.I(t)
        k = self.b.hists[0][-1].kind if self.b.hists and self.b.hists[0] else "salu"
        self.clock += COST.get(k, 4)
        if not self.in_bg and not self.slotted and k in ("mfma", "valu", "trans"):
            c = self.bg_pick()
            if c is not None and c[1]:
                self.bg_emit(c[0], True)
        return tok

    def side_step(self, n):
        self.in_bg = True
        done = 0
        while n > 0 and self.side:
            e = self.side[0]
            if isinstance(e, int):
                if e <= 1:
                    self.side.pop(0)
                else:
                    self.side[0] = e - 1
                break
            self.side.pop(0)
            if isinstance(e, str):
                self.b.I(e)
            else:
                e()
            n -= 1
            done += 1
        self.in_bg = False
        return done

    def side_flush(self):
        while self.side:
            self.side_step(1000)

    def bg_pick(self):
        a_ok = self.aq and self.aq[0].seq - NSLOT <= self.consumed
        w_ok = self.bg_w > 0 and self.wq and self.free
        same = w_ok and self.wq[0][0][:2] == self.w_cur
        el = self.clock - self.last_bg
        if self.prepped == "A" and a_ok:
            return "A", el >= PACE or self.aq[0].seq - self.cur_seq < AMIN
        if same and self.w_issued - self.w_need < WMIN:
            return "W", True
        if a_ok and w_ok:
            a_lead = self.aq[0].seq - self.cur_seq
            if a_lead > self.alead or (same and self.w_issued - self.w_need < self.wlead and a_lead > 3):
                a_ok = False
        if a_ok:
            return "A", el >= PACE or self.aq[0].seq - self.cur_seq < AMIN
        if w_ok:
            return "W", el >= self.pace_w
        return None

    def bg_prep_list(self, kind):
        if kind == "A":
            return self.aq[0].prep
        grp = self.wq[0][1] // 4
        if self.pk_cur != grp and not os.environ.get("NOW"):
            self.pk_cur = grp
            self.wprep = ["s_add_u32 s%d, s%d, 0x%x" % (sPKC, sPK, grp * 4096)]
        return self.wprep

    def bg_emit(self, kind, inline):
        self.in_bg = True
        if kind == "A":
            self.a_pop()
        else:
            self.w_issue()
            self.bg_w -= 1
        self.last_bg = self.clock
        self.in_bg = False

    def a_pop(self):
        th = self.aq.pop(0)
        while th.prep:
            self.b.I(th.prep.pop(0))
        th()
        self.prepped = None

    def slot_fill(self, rd_lag, issue_read):
        c = self.bg_pick()
        if c is not None and c[1] and rd_lag <= RDSLACK and not self.bg_prep_list(c[0]):
            self.bg_emit(c[0], False)
            self.clock += 8
            return
        budget = 2
        if rd_lag > 0:
            issue_read()
            budget -= 1
            if rd_lag > 1:
                issue_read()
                budget -= 1
        if c is not None:
            pl = self.bg_prep_list(c[0])
            while budget > 0 and pl:
                self.b.I(pl.pop(0))
                budget -= 1
                if c[0] == "A":
                    self.prepped = "A"
        self.side_step(max(budget, SIDEMIN))

    def Inc(self, t):
        self.b.I(t)
        self.b.vm_issued -= 1

    def stamp(self, name):
        self.last_stamp = name
        if os.environ.get("WLOG"):
            print("%-8s clock %6d  wq left %3d next %s free %d aq %d" % (
                name, self.clock, len(self.wq), self.wq[0][0] if self.wq else None, len(self.free), len(self.aq)), file=sys.stderr)
        if not self.diag:
            return
        b = self.b
        k = self.nstamp
        self.nstamp += 1
        assert k < 62
        b.comment("stamp %d %s" % (k, name))
        b.I("s_memtime s[94:95]")
        b.wait(lg=0)
        b.I("v_writelane_b32 v%d, s94, %d" % (vSTAMP, k))
        if name in ("start", "end"):
            b.I("s_memrealtime s[94:95]")
            b.wait(lg=0)
            b.I("v_writelane_b32 v%d, s94, %d" % (vSTAMP, 62 if name == "start" else 63))
        self.stamp_names.append(name)

    def buf(self, kind, idx):
        base = {"O": WS_O if self.sep else WS_H, "X": WS_X, "H": WS_H}[kind]
        return base + (idx * 0x1000000 if self.sep else 0)

    def hstride(self, kind):
        return HSZ // 2 if self.rgs(kind) == sRGH else 32768

    def rgs(self, kind):
        return sRGH if kind == "H" or (kind == "O" and not self.sep) else sRG64

    def srd(self, r, ptr, size):
        I = self.b.I
        I("s_mov_b32 s%d, s%d" % (r, ptr))
        I("s_and_b32 s%d, s%d, 0xffff" % (r + 1, ptr + 1))
        I("s_mov_b32 s%d, 0x%x" % (r + 2, size))
        I("s_mov_b32 s%d, 0x20000" % (r + 3))

    def ws(self):
        return "s[%d:%d]" % (R_WS, R_WS + 3)

    def w_enqueue(self, name, layer, f0, n, order=None):
        for i in (range(n) if order is None else order):
            self.w_index[(name, layer, i)] = len(self.w_index)
            self.wq.append(((name, layer, i), f0 + i))

    def w_issue(self):
        key, f = self.wq.pop(0)
        s = self.free.pop(0)
        self.w_issued += 1
        if os.environ.get("NOW"):
            self.wslot[key] = (s, None)
            return
        grp = f // 4
        while self.wprep:
            self.b.I(self.wprep.pop(0))
        if self.pk_cur != grp:
            self.b.I("s_add_u32 s%d, s%d, 0x%x" % (sPKC, sPK, grp * 4096))
            self.pk_cur = grp
        va = vW1 + key[2] % 3 if key[0] == "w1" and env("SKIPW1", 1) else vL16
        if os.environ.get("FAKEW"):
            self.b.I("s_mov_b32 s%d, s%d" % (sPKC, sPK))
        tok = self.b.I("buffer_load_dwordx4 %s, v%d, %s, s%d offen offset:%d sc1%s" % (
            slot_r(s), va, self.ws(), sPKC, (f % 4) * 1024, " nt" if env("NT", lambda k: False)(key) else ""))
        self.wslot[key] = (s, tok)

    def w_burst(self, n):
        k = 0
        while k < n and self.wq and self.free:
            self.w_issue()
            k += 1
        self.last_bg = self.clock

    def w_get(self, key):
        self.w_need = max(self.w_need, self.w_index.get(key, 0))
        self.w_cur = key[:2]
        if key not in self.wslot:
            print("WARNING: late W load", key, file=sys.stderr)
        while key not in self.wslot:
            assert self.wq and self.free, "no free slot for %s" % (key,)
            self.w_issue()
        s, tok = self.wslot[key]
        self.b.wait(tok)
        return slot_r(s)

    def w_release(self, key):
        s, _ = self.wslot.pop(key)
        self.free.append(s)

    def stores2(self, texts, wt=False):
        b = self.b
        if wt and not FT:
            return [b.I(t + " sc1") for t in texts]
        ls, lj = b.newlabel("Lslow"), b.newlabel("Ljoin")
        b.I("s_cmp_eq_u32 s%d, 1" % sFAST)
        b.I("s_cbranch_scc0 %s" % ls)
        b.saved.pop(ls)
        toks = [b.I(t) for t in texts]
        b.raw(lj + ":")
        self.cold += [ls + ":"] + ["    " + t + " sc1" for t in texts] + ["    s_branch " + lj]
        return toks

    def pair_store(self, p, sreg, off):
        for k in range(2):
            self.b.I("v_permlane16_swap_b32 v%d, v%d" % (p + k, p + 2 + k))
        return "buffer_store_dwordx4 %s, v%d, %s, s%d offen offset:%d" % (vr(p, 4), vST, self.ws(), sreg, off)

    def spin_guard(self, lab_loop):
        b = self.b
        b.I("s_sub_u32 s%d, s%d, 1" % (sSPIN, sSPIN))
        b.I("s_cmp_lg_u32 s%d, 0" % sSPIN)
        b.I("s_cbranch_scc1 %s" % lab_loop)
        b.I("s_branch L_end")

    def new_pub(self, toks):
        self.npub += 1
        k = self.npub
        self.pub_mine[k] = self.mine

        def flag():
            b = self.b
            b.I("s_add_u32 s%d, s%d, %d" % (sT, sTAG, k))
            b.I("v_mov_b32 v%d, s%d" % (vC2, sT))
            b.wait(toks)
            b.I("s_mov_b64 exec, 1")
            self.stores2(["buffer_store_dword v%d, off, %s, s%d" % (vC2, self.ws(), sMYF)])
            b.I("s_mov_b64 exec, -1")
            self.flagged.add(k)
        return k, flag

    def poll_issue(self):
        return self.b.I("buffer_load_dword v%d, v%d, %s, s%d offen sc1" % (vPOLL, vFL, self.ws(), sFL))

    def poll_check(self, k, tok=None):
        b = self.b
        if k not in self.flagged:
            print("WARNING: side stream late for flag", k, file=sys.stderr)
        while k not in self.flagged:
            assert self.side, "flag %d never raised before its poll" % k
            self.side_step(1)
        lp, ld, lc = b.newlabel("Lpoll"), b.newlabel("Lpd"), b.newlabel("Lpc")
        b.I("s_add_u32 s%d, s%d, %d" % (sT, sTAG, k))
        if tok is not None:
            b.wait(tok)
            b.I("s_branch %s" % lc)
        b.label(lp)
        self.Inc("buffer_load_dword v%d, v%d, %s, s%d offen sc1" % (vPOLL, vFL, self.ws(), sFL))
        if tok is None:
            b.wait(vm=0)
        else:
            b.I("s_waitcnt vmcnt(0)")
        b.label(lc)
        b.I("v_subrev_u32 v%d, s%d, v%d" % (vPOLL, sT, vPOLL))
        b.I("v_cmp_gt_u32 vcc, %d, v%d" % (16 - k, vPOLL))
        b.I("s_cmp_eq_u64 vcc, exec")
        b.I("s_cbranch_scc1 %s" % ld)
        self.spin_guard(lp)
        b.label(ld)
        self.consumed = max(self.consumed, self.pub_mine[k])

    def queue_stats(self, hf, plan):
        b = self.b
        s0 = self.seq
        assert s0 % 2 == 0
        self.seq += 2
        for j in range(2):
            def th(j=j):
                assert s0 + 1 - NSLOT <= self.consumed
                self.atok.setdefault(s0, []).append(b.I(
                    "buffer_load_dwordx4 v%d, %s, s%d offen offset:%d sc1 lds" % (vL16, self.ws(), sAO, j * 1024)))
            th.seq = s0 + 1
            th.prep = [] if j else ["s_add_u32 m0, s%d, 0x%x" % (sW2K, (s0 % NSLOT) * 4096),
                                    "s_add_u32 s%d, s%d, 0x%x" % (sAO, sSTC, hf * 8192)]
            plan.append(th)
        return s0

    def queue_half(self, kind, idx, hf, nds, plan, rot=False, ds0=0):
        b = self.b
        seqs = []
        base = self.buf(kind, idx) + hf * self.hstride(kind)
        rg = self.rgs(kind)
        assert self.seq % 2 == 0 and nds % 2 == 0
        for ds in range(ds0, ds0 + nds):
            sq = self.seq
            self.seq += 1
            seqs.append(sq)
            if rot:
                def th(sq=sq):
                    assert sq - NSLOT <= self.consumed, "ring slot busy"
                    self.atok[sq] = [b.I("buffer_load_dwordx4 v%d, %s, s%d offen sc1 lds" % (vDMA, self.ws(), sAO))]
                th.seq = sq
                if ds == 0:
                    th.prep = ["s_add_u32 s%d, s%d, 0x%x" % (sAB, rg, base), "s_lshl_b32 s%d, s%d, 12" % (sXS, sROT)]
                else:
                    th.prep = ["s_add_u32 s%d, s%d, 0x1000" % (sXS, sXS), "s_and_b32 s%d, s%d, 0x7fff" % (sXS, sXS)]
                th.prep += ["s_add_u32 m0, s%d, 0x%x" % (sW1K, (sq % NSLOT) * 4096), "s_add_u32 s%d, s%d, s%d" % (sAO, sAB, sXS)]
            else:
                s0 = sq & ~1

                def th(sq=sq, s0=s0):
                    assert s0 + 1 - NSLOT <= self.consumed, "ring slot busy"
                    tk = b.I("buffer_load_dwordx4 v%d, %s, s%d offen offset:%d sc1%s lds" % (
                        vDM2, self.ws(), sAO, (sq & 1) * 1024, " nt" if (kind, idx) in env("NTA", []) else ""))
                    if sq & 1:
                        self.atok[s0] = self.atok[s0 + 1] = [tk]
                th.seq = s0 + 1
                th.prep = [] if sq & 1 else ["s_add_u32 m0, s%d, 0x%x" % (sW2K, (sq % NSLOT) * 4096),
                                             "s_add_u32 s%d, s%d, 0x%x" % (sAO, rg, base + ds * 4096)]
            plan.append(th)
        return seqs

    def queue_both(self, kind, idx, nds, plan):
        out = ([], [])
        for d0 in range(0, nds, 2):
            for hf in range(2):
                out[hf].extend(self.queue_half(kind, idx, hf, 2, plan, ds0=d0))
        return out

    def a_burst(self, n):
        k = 0
        while k < n and self.aq and self.aq[0].seq - NSLOT <= self.consumed:
            self.a_pop()
            k += 1
        self.last_bg = self.clock

    def frag_addr(self, sq, r, h):
        off = (sq % NSLOT) * 4096 + r * 2048 + h * 1024
        return ((vL16, vA1)[off >> 16], off & 0xffff)

    def gemm_prep(self, items, groups=None, depth=8, hooks=None, pre=None, post=None, pairw=False, buf0=0):
        b = self.b
        hooks, pre, post = hooks or {}, pre or {}, post or {}
        n = len(items)
        toks = [None] * n
        grp_of = {}
        for gi, g in enumerate(groups or []):
            for sq in g:
                grp_of[sq] = gi
        opened = set()
        st = {"ip": 0}

        rem = [1 << 30] * (n + 1)
        for k in range(n - 1, -1, -1):
            rem[k] = min(rem[k + 1], items[k][2] if items[k][2] is not None else 1 << 30)

        def reg(k):
            return vr(vAF + 4 * ((k + buf0) % NAF), 4)

        def issue():
            k = st["ip"]
            a, off, sq, _ = items[k]
            if sq in grp_of and grp_of[sq] not in opened:
                gi = grp_of[sq]
                opened.add(gi)
                while any(s not in self.atok for s in groups[gi]):
                    self.a_pop()
                    self.last_bg = self.clock
                for f in pre.get(gi, []):
                    f()
                if self.gstamp:
                    self.stamp("g%d?" % gi)
                b.wait(*[self.atok[s] for s in groups[gi]])
                b.I("s_barrier")
                if self.gstamp:
                    self.stamp("g%d!" % gi)
                self.consumed = max(self.consumed, self.mine)
                for f in post.get(gi, []):
                    f()
            toks[k] = self.I("ds_read_b128 %s, v%d offset:%d" % (reg(k), a, off))
            st["ip"] += 1

        def prestart(m=None):
            while st["ip"] < min(depth if m is None else m, n):
                issue()

        def run():
            prestart()
            self.slotted = True
            for j in range(n):
                thunks = items[j][3](reg(j))
                while st["ip"] <= min(j + (1 if pairw else 0), n - 1):
                    issue()
                if pairw and j % 2 == 0 and j + 1 < st["ip"]:
                    b.wait(toks[j + 1])
                b.wait(toks[j])
                if items[j][2] is not None:
                    self.cur_seq = items[j][2]
                    lim = min(self.pinned) - 3 if self.pinned else 1 << 30
                    self.mine = max(self.mine, min(rem[j] - 1, lim))
                if not thunks and st["ip"] < min(n, j + 1 + depth):
                    issue()
                for th in thunks:
                    n0 = b.nins
                    th()
                    if b.nins > n0:
                        self.slot_fill(min(n, j + 1 + depth) - st["ip"], issue)
                for f in hooks.get(j, []):
                    f()
            self.slotted = False
            self.side_flush()
            sq = [it[2] for it in items if it[2] is not None]
            if sq:
                self.cur_seq = max(sq) + 1
                lim = min(self.pinned) - 3 if self.pinned else 1 << 30
                self.mine = max(self.mine, min(max(sq), lim))
        return prestart, run

    def gemm(self, *a, **k):
        self.gemm_prep(*a, **k)[1]()

    def mf(self, d, a, bb, c=None):
        dd = vr(d, 4)
        cc = dd if c is None else c
        return lambda: self.I("v_mfma_f32_16x16x32_bf16 %s, %s, %s, %s" % (dd, a, bb, cc))

    @staticmethod
    def split(seqs, sizes):
        out, k = [], 0
        for s in sizes:
            out.append(seqs[k:k + s])
            k += s
        assert k == len(seqs)
        return out

    def stats_stage1(self, s0, hf):
        b = self.b
        t = vS1
        tk = {}
        out = ["v_add_u32 v%d, 0x%x, v%d" % (vT, (s0 % NSLOT) * 4096, vSB), lambda: b.wait(self.atok[s0])]
        for k in range(4):
            out.append(lambda k=k: tk.__setitem__(k, b.I("ds_read2st64_b32 %s, v%d offset0:%d offset1:%d" % (
                p2(t + 2 * k), vT, 2 * k, 2 * k + 1))))
        out += [6, lambda: b.wait(tk[3])]
        out += ["v_add_f32 v%d, v%d, v%d" % (t + k, t + k, t + 4 + k) for k in range(4)]
        out += ["v_add_f32 v%d, v%d, v%d" % (t + k, t + k, t + 2 + k) for k in range(2)]
        out += ["v_add_f32 v%d, v%d, v%d" % (t, t, t + 1)]
        out.append(lambda: tk.__setitem__("w", b.I("ds_write_b32 v%d, v%d offset:%d" % (vSW, t, hf * 1024))))

        def before_barrier():
            self.side_flush()
            b.wait(tk["w"])
        return out, before_barrier

    def stats_stage2(self, hf, scale, kv):
        b = self.b
        t = vS1
        tk = {}
        out = []
        for k in range(2):
            out.append(lambda k=k: tk.__setitem__(k, b.I("ds_read2st64_b32 %s, v%d offset0:%d offset1:%d" % (
                p2(t + 2 * k), vEX, hf * 4 + 2 * k, hf * 4 + 2 * k + 1))))
        a0, b0, a1, b1 = [vAB + 4 * hf + k for k in range(4)]
        out += [6, lambda: b.wait(tk[1]),
                "v_add_f32 v%d, v%d, v%d" % (t, t, t + 2), "v_add_f32 v%d, v%d, v%d" % (t + 1, t + 1, t + 3),
                "v_add_f32 v%d, v%d, v%d" % (t, t, t + 1), "v_mul_f32 v%d, 0x3b000000, v%d" % (t, t),
                "v_mov_b32 v%d, v%d" % (t + 1, t), 1,
                "v_permlane16_swap_b32 v%d, v%d" % (t, t + 1), 1,
                "v_fma_f32 v%d, -v%d, v%d, v%d" % (t + 1, t, t, t + 1), "v_max_f32 v%d, 0, v%d" % (t + 1, t + 1),
                "v_add_f32 v%d, 0x3727c5ac, v%d" % (t + 1, t + 1), "v_rsq_f32 v%d, v%d" % (a0, t + 1), 1]
        if scale:
            out.append("v_mul_f32 v%d, v%d, v%d" % (a0, a0, vK))
        out.append("v_mul_f32_e64 v%d, -v%d, v%d" % (b0, t, a0))
        if kv:
            def wr():
                b.I("s_mov_b32 exec_lo, 0xffff")
                b.I("s_mov_b32 exec_hi, 0xffff")
                b.I("ds_write_b32 v%d, v%d" % (vSWR, a0))
                b.I("ds_write_b32 v%d, v%d offset:128" % (vSWR, b0))
                b.I("s_mov_b64 exec, -1")
            out.append(wr)
        out += ["v_mov_b32 v%d, v%d" % (a1, a0), "v_mov_b32 v%d, v%d" % (b1, b0), 1,
                "v_permlane32_swap_b32 v%d, v%d" % (a0, a1), "v_permlane32_swap_b32 v%d, v%d" % (b0, b1)]
        return out

    def stats_hooks(self, s0, hf, scale, kv, j1, gi, hooks, pre, post):
        s1, bb = self.stats_stage1(s0, hf)
        hooks.setdefault(j1, []).append(lambda: self.side.extend(s1))
        pre.setdefault(gi, []).append(bb)
        post.setdefault(gi, []).append(lambda: self.side.extend(self.stats_stage2(hf, scale, kv)))

    def stats_startup(self):
        b = self.b
        I = b.I
        t = vT
        I("v_mul_f32 v%d, 0x3b000000, v%d" % (t + 1, vS1))
        I("v_cndmask_b32 v%d, v%d, v%d, s[%d:%d]" % (t, vS2, vS2 + 1, sM1, sM1 + 1))
        I("v_cndmask_b32 v%d, v%d, v%d, s[%d:%d]" % (t, t, vS2 + 2, sM2, sM2 + 1))
        I("v_cndmask_b32 v%d, v%d, v%d, s[%d:%d]" % (t, t, vS2 + 3, sM3, sM3 + 1))
        I("v_mul_f32 v%d, 0x3b000000, v%d" % (t, t))
        I("v_fma_f32 v%d, -v%d, v%d, v%d" % (t, t + 1, t + 1, t))
        I("v_max_f32 v%d, 0, v%d" % (t, t))
        I("v_add_f32 v%d, 0x3727c5ac, v%d" % (t, t))
        I("v_rsq_f32 v%d, v%d" % (t + 2, t))
        I("v_lshlrev_b32 v%d, 1, v%d" % (t + 4, vSW))
        I("v_mul_f32_e64 v%d, -v%d, v%d" % (t + 3, t + 1, t + 2))
        I("v_subrev_u32 v%d, 0x%x, v%d" % (t + 4, L_STA - 512, t + 4))
        I("s_mov_b64 exec, s[%d:%d]" % (sDIAG, sDIAG + 1))
        I("ds_write_b32 v%d, v%d" % (vSW, t + 2))
        I("ds_write_b32 v%d, v%d offset:256" % (vSW, t + 3))
        I("ds_write_b64 v%d, v[%d:%d]" % (t + 4, t + 2, t + 3))
        I("s_mov_b64 exec, -1")
        b.wait(lg=0)
        I("s_barrier")

    def phi_pairs(self, pairs):
        I = self.I
        for c0 in range(0, len(pairs), 4):
            grp = pairs[c0:c0 + 4]
            for k, (t, d) in enumerate(grp):
                I("v_pk_mul_f32 %s, %s, %s %s" % (p2(vT + 2 * k), p2(t), p2(vK), K_L2E))
            for k, (t, d) in enumerate(grp):
                I("v_exp_f32_e64 v%d, v%d clamp" % (vT + 2 * k, vT + 2 * k))
                I("v_max_f32 v%d, v%d, v%d" % (t, vK + 1, t))
                I("v_exp_f32_e64 v%d, v%d clamp" % (vT + 2 * k + 1, vT + 2 * k + 1))
                I("v_max_f32 v%d, v%d, v%d" % (t + 1, vK + 1, t + 1))
            for k, (t, d) in enumerate(grp):
                I("v_pk_add_f32 %s, %s, %s" % (p2(t), p2(t), p2(vT + 2 * k)))
            for k, (t, d) in enumerate(grp):
                I("v_cvt_pk_bf16_f32 v%d, v%d, v%d" % (d, t, t + 1))

    def kv_epilogue(self, hf, ra, rb):
        I = self.I
        K, V = vACC + 8 * hf, vACC + 16 + 8 * hf
        for j in range(4):
            I("v_pk_fma_f32 %s, %s, %s, %s op_sel:[0,0,1] op_sel_hi:[1,1,1]" % (p2(vT + 2 * j), p2(rb + 2 * j), p2(vCSK), p2(vK)))
            I("v_pk_mul_f32 %s, %s, %s" % (p2(vT + 8 + 2 * j), p2(rb + 2 * j), p2(vCSV)))
        for j in range(4):
            I("v_pk_fma_f32 %s, %s, %s, %s" % (p2(K + 2 * j), p2(ra + 2 * j), p2(K + 2 * j), p2(vT + 2 * j)))
            I("v_pk_fma_f32 %s, %s, %s, %s" % (p2(V + 2 * j), p2(ra + 2 * j), p2(V + 2 * j), p2(vT + 8 + 2 * j)))
        for j in range(4):
            I("v_cvt_pk_bf16_f32 v%d, v%d, v%d" % (V + j, V + 2 * j, V + 2 * j + 1))
        self.phi_pairs([(K + 2 * j, K + j) for j in range(4)])

    def startup(self):
        b = self.b
        I = b.I
        i_, g_, l3, l7, q0, tc = vT + 2, vT + 3, vT + 6, vT + 7, vT + 8, vT + 9
        I("s_cmp_ge_u32 s2, 256")
        I("s_cbranch_scc1 L_end")
        I("s_load_dwordx4 s[4:7], s[0:1], 0")
        I("s_load_dwordx2 s[20:21], s[0:1], 64")
        I("s_load_dwordx2 s[8:9], s[0:1], 16")
        I("s_load_dwordx4 s[12:15], s[0:1], 32")
        I("s_load_dwordx4 s[16:19], s[0:1], 48")
        I("s_getpc_b64 s[90:91]")
        b.label("L_pc")
        I("v_lshrrev_b32 v%d, 6, v0" % vT)
        I("v_and_b32 v0, 63, v0")
        I("v_readfirstlane_b32 s%d, v%d" % (sW, vT))
        I("s_lshr_b32 s%d, s2, 3" % (sT + 1))
        I("s_lshl_b32 s%d, s%d, 2" % (sT + 3, sT + 1))
        I("s_add_u32 s%d, s%d, s%d" % (sT + 3, sT + 3, sW))
        I("s_and_b32 s%d, s%d, 31" % (sT, sT + 3))
        I("s_lshl_b32 s%d, s%d, 11" % (sT, sT))
        I("v_lshlrev_b32 v%d, 7, v0" % vTCH)
        I("v_add_u32 v%d, s%d, v%d" % (vT, sT, vTCH))
        I("v_min_u32 v%d, L_end-L_pc, v%d" % (vT, vT))
        I("s_mov_b64 exec, 0xffff")
        I("global_load_dword v%d, v%d, s[90:91]" % (vDUM, vT))
        I("s_mov_b64 exec, -1")
        I("s_and_b32 s%d, s2, 7" % sROT)
        I("s_and_b32 s%d, s%d, 7" % (sC, sT + 1))
        I("s_lshr_b32 s%d, s%d, 3" % (sQ, sT + 1))
        I("s_lshl_b32 s%d, s%d, 2" % (sT, sROT))
        I("s_add_u32 s%d, s%d, s%d" % (sRG, sT, sQ))
        I("s_lshl_b32 s%d, s%d, 16" % (sRG64, sRG))
        I("s_lshl_b32 s%d, s%d, 11" % (sW2K, sW))
        I("v_lshrrev_b32 v%d, 4, v0" % g_)
        I("v_and_b32 v%d, 15, v0" % i_)
        tw, tx = vT + 12, vT + 13
        I("s_mul_i32 s%d, s%d, %d" % (sT + 2, sT + 3, 4 * 3072))
        I("v_lshlrev_b32 v%d, 10, v0" % tx)
        I("v_add_u32 v%d, s%d, v%d" % (tw, sT + 2, tx))
        I("s_lshl_b32 s%d, s%d, 18" % (sT + 2, sROT))
        I("s_lshl_b32 s%d, s%d, 11" % (sT, sT + 3))
        I("s_add_u32 s%d, s%d, s%d" % (sT, sT, sT + 2))
        I("v_add_u32 v%d, s%d, v%d" % (tx, sT, tx))
        I("v_lshrrev_b32 v%d, 3, v0" % l3)
        I("v_and_b32 v%d, 7, v0" % l7)
        I("v_xor_b32 v%d, v%d, v%d" % (vT + 4, l7, g_))
        I("v_lshlrev_b32 v%d, 4, v%d" % (vT + 4, vT + 4))
        I("v_lshl_add_u32 v%d, v%d, 10, v%d" % (vT + 4, l3, vT + 4))
        I("s_lshl_b32 s%d, s%d, 14" % (sT + 1, sW))
        I("v_add_u32 v%d, s%d, v%d" % (vXS0, sT + 1, vT + 4))
        I("v_xor_b32 v%d, 64, v%d" % (vXS1, vXS0))
        I("v_add_u32 v%d, 7168, v%d" % (vXS1, vXS1))
        I("v_and_b32 v%d, 1, v%d" % (vT + 4, g_))
        I("v_lshlrev_b32 v%d, 1, v%d" % (vT + 4, vT + 4))
        I("v_xor_b32 v%d, v%d, v%d" % (q0, l7, vT + 4))
        I("v_lshlrev_b32 v%d, 4, v%d" % (q0, q0))
        I("s_and_b32 s%d, s%d, 1" % (sT + 1, sW))
        I("s_lshl_b32 s%d, s%d, 6" % (sT + 1, sT + 1))
        I("v_xor_b32 v%d, s%d, v%d" % (vT + 4, sT + 1, q0))
        I("s_lshl_b32 s%d, s%d, 3" % (sT + 1, sW))
        I("v_add_u32 v%d, s%d, v%d" % (vT + 5, sT + 1, l3))
        I("v_mul_u32_u24 v%d, 3072, v%d" % (vT + 5, vT + 5))
        I("v_add_u32 v%d, v%d, v%d" % (vWS, vT + 4, vT + 5))
        sXO, sWO_, sRB = sAB, sAO, 93
        I("s_lshl_b32 s%d, s%d, 7" % (sWO_, sC))
        I("v_add_u32 v%d, s%d, v%d" % (vWS, sWO_, vWS))
        I("s_add_u32 s%d, s%d, 0x%x" % (sRB, sW2K, L_RING - 1024))
        I("s_lshl_b32 s%d, s%d, 7" % (sXO, sROT))
        I("s_mul_i32 s%d, s%d, %d" % (sWO_, sROT, 64 * 3072))
        if self.diag:
            I("v_mov_b32 v%d, 0" % vSTAMP)
        b.wait(lg=0)
        self.stamp("start")
        I("s_add_u32 s88, s%d, 0x%x" % (S_WS, WS_EP))
        I("s_addc_u32 s89, s%d, 0" % (S_WS + 1))
        I("s_load_dword s%d, s[88:89], 0" % sEP)
        self.srd(R_WQ, S_WQ, 512 * 3072)
        I("s_add_u32 s%d, s%d, s%d" % (R_X, S_X, sRG64))
        I("s_addc_u32 s%d, s%d, 0" % (R_X + 1, S_X + 1))
        I("s_and_b32 s%d, s%d, 0xffff" % (R_X + 1, R_X + 1))
        I("s_mov_b32 s%d, 0x10000" % (R_X + 2))
        I("s_mov_b32 s%d, 0x20000" % (R_X + 3))
        tokA, tokW = {}, {}

        def issue_thunks(ks):
            th = []
            if ks % 2 == 0:
                ds = ks // 2
                tokA[ds] = []
                pre = ["s_add_u32 m0, s%d, 0x%x" % (sW2K, ds * 8192)]
                if ds:
                    pre += ["s_add_u32 s%d, s%d, 128" % (sXO, sXO), "s_and_b32 s%d, s%d, 0x380" % (sXO, sXO)]
                th.append((pre, lambda: tokA[ds].append(
                    I("buffer_load_dwordx4 v%d, s[%d:%d], s%d offen lds" % (vXS0, R_X, R_X + 3, sXO)))))
                th.append(([], lambda: tokA[ds].append(
                    I("buffer_load_dwordx4 v%d, s[%d:%d], s%d offen offset:1024 lds" % (vXS1, R_X, R_X + 3, sXO)))))
            tokW[ks] = []
            for p in range(2):
                pre = []
                if p == 0:
                    if ks:
                        pre.append("s_add_u32 s%d, s%d, %d" % (sWO_, sWO_, 32 * 3072))
                        if ks % 2 == 0:
                            pre += ["s_cmp_eq_u32 s%d, %d" % (sWO_, 512 * 3072), "s_cselect_b32 s%d, 0, s%d" % (sWO_, sWO_)]
                    pre.append("s_add_u32 m0, s%d, 0x%x" % (sRB, (ks % NR) * 8192))
                th.append((pre, lambda p=p: tokW[ks].append(I("buffer_load_dwordx4 v%d, s[%d:%d], s%d offen offset:%d lds" % (
                    vWS, R_WQ, R_WQ + 3, sWO_, (p + 1) * 1024)))))
            return th

        tokQ = []

        def rq_base(ks):
            return L_PACK + ks * 4096 if ks < 4 else L_RING + (ks - 4) * 4096

        def q_thunk(ks):
            pre = ["s_add_u32 s%d, s%d, %d" % (sWO_, sWO_, 32 * 3072)]
            if ks % 2 == 0:
                pre += ["s_cmp_eq_u32 s%d, %d" % (sWO_, 512 * 3072), "s_cselect_b32 s%d, 0, s%d" % (sWO_, sWO_)]
            pre.append("s_add_u32 m0, s%d, 0x%x" % (sW1K, rq_base(ks)))
            return (pre, lambda: tokQ.append(I("buffer_load_dwordx4 v%d, s[%d:%d], s%d offen lds" % (vWS, R_WQ, R_WQ + 3, sWO_))))
        self.tokQ, self.rq_base = tokQ, rq_base

        def issue_now(ks):
            for pre, th in issue_thunks(ks):
                for t in pre:
                    I(t)
                th()

        if env("T0", 1):
            self.srd(R_PK, S_X, 2048 * 1024)
            for ptr, srd, v, mask in ((S_WQ, R_WQ, tw, 0xfff), (S_X, R_PK, tx, 3)):
                I("s_sub_u32 s%d, 0x180, s%d" % (sT, ptr))
                I("s_and_b32 s%d, s%d, 0x380" % (sT, sT))
                I("s_mov_b64 exec, 0x%x" % mask)
                I("buffer_load_dword v%d, v%d, s[%d:%d], s%d offen" % (vDUM, v, srd, srd + 3, sT))
            I("s_mov_b64 exec, -1")
        NFIRST = env("NFIRST", 2)
        for ks in range(NFIRST):
            issue_now(ks)
        if env("EARLYP", 0):
            ptk = self.pack_load(l3, q0)
        self.stamp("first")
        I("s_getreg_b32 s%d, hwreg(HW_REG_XCC_ID, 0, 4)" % sXCC)
        I("s_mov_b32 s%d, 0x100000" % sSPIN)
        self.srd(R_WS, S_WS, WS_SIZE)
        self.srd(R_OUT, S_OUT, 2048 * 1024)
        I("v_lshlrev_b32 v%d, 4, v0" % vL16)
        I("v_lshlrev_b32 v%d, 2, v0" % vL4)
        I("s_lshl_b32 s%d, s%d, 10" % (sW1K, sW))
        I("s_lshl_b32 s%d, s%d, 2" % (sT, sC))
        I("s_add_u32 s%d, s%d, s%d" % (sT, sT, sW))
        I("s_mul_i32 s%d, s%d, %d" % (sKV, sT, KVH))
        I("s_add_u32 s%d, s%d, 0x%x" % (sKV, sKV, WS_KV))
        I("v_mov_b32 v%d, 0" % vC2)
        I("s_mul_i32 s%d, s%d, 160" % (sT + 1, sRG))
        I("s_add_u32 s%d, s%d, s%d" % (sT + 1, sT + 1, sKV))
        I("s_mov_b32 exec_hi, 0xff")
        ztok = I("buffer_store_dword v%d, v%d, %s, s%d offen sc1" % (vC2, vL4, self.ws(), sT + 1))
        I("s_mov_b64 exec, -1")
        I("s_mul_i32 s%d, s%d, %d" % (sPK, sT, PKW))
        I("s_lshl_b32 s%d, s%d, 7" % (sFL, sRG))
        I("s_lshl_b32 s%d, s%d, 12" % (sR1, sC))
        I("s_add_u32 s%d, s%d, 0x%x" % (sR1, sR1, WS_R2))
        I("s_add_u32 s%d, s%d, 0x%x" % (sFL, sFL, WS_FL))
        I("s_lshl_b32 s%d, s%d, 2" % (sMYF, sT))
        I("s_add_u32 s%d, s%d, s%d" % (sMYF, sMYF, sFL))
        I("s_lshl_b32 s%d, s%d, 14" % (sSTC, sRG))
        I("s_add_u32 s%d, s%d, 0x%x" % (sSTC, sSTC, WS_ST))
        I("s_lshl_b32 s%d, s%d, 8" % (sSTP, sT))
        I("s_add_u32 s%d, s%d, s%d" % (sSTP, sSTP, sSTC))
        I("s_add_u32 s%d, s%d, s%d" % (sSTC, sSTC, sW2K))
        I("s_mul_i32 s%d, s%d, %d" % (sRGH, sRG, HSZ))
        I("s_lshl_b32 s%d, s%d, 12" % (sSTO, sC))
        I("s_lshl_b32 s%d, s%d, 9" % (sT + 1, sW))
        I("s_add_u32 s%d, s%d, s%d" % (sSTO, sSTO, sT + 1))
        I("s_lshl_b32 s%d, s%d, 5" % (sOUT, sT))
        I("s_mul_i32 s%d, s%d, 3" % (sT, sT))
        for t in range(3):
            I("s_add_u32 s%d, s%d, %d" % (sT + 1, sT, t))
            I("s_lshr_b32 s%d, s%d, 2" % (sT + 2, sT + 1))
            I("s_lshl_b32 s%d, s%d, 12" % (sT + 2, sT + 2))
            I("s_and_b32 s%d, s%d, 3" % (sT + 3, sT + 1))
            I("s_lshl_b32 s%d, s%d, 9" % (sT + 3, sT + 3))
            I("s_add_u32 s%d, s%d, s%d" % (sT + 2, sT + 2, sT + 3))
            I("s_add_u32 s%d, s%d, s%d" % (sT + 2, sT + 2, sRGH))
            I("s_cmp_lt_u32 s%d, 86" % (sT + 1))
            I("s_cselect_b32 s%d, s%d, 0x%x" % (sH0 + t, sT + 2, OOB))
            I("s_cselect_b32 s%d, 0, 0x%x" % (sT + 2, OOB))
            I("v_add_u32 v%d, s%d, v%d" % (vW1 + t, sT + 2, vL16))
        I("v_add_u32 v%d, 0x10000, v%d" % (vA1, vL16))
        I("v_add_u32 v%d, s%d, v%d" % (vDMA, sW1K, vL16))
        I("v_add_u32 v%d, s%d, v%d" % (vDM2, sW2K, vL16))
        I("v_and_b32 v%d, 0x7c, v%d" % (vFL, vL4))
        I("v_lshrrev_b32 v%d, 1, v%d" % (vT + 4, g_))
        I("v_lshlrev_b32 v%d, 8, v%d" % (vT + 4, vT + 4))
        I("v_lshl_add_u32 v%d, v%d, 4, v%d" % (vT + 4, i_, vT + 4))
        I("v_and_b32 v%d, 1, v%d" % (vT + 5, g_))
        I("v_lshl_add_u32 v%d, v%d, 11, v%d" % (vST, vT + 5, vT + 4))
        I("v_lshlrev_b32 v%d, 4, v%d" % (vSTA, g_))
        I("v_add_u32 v%d, 0x%x, v%d" % (vSTA, L_STA, vSTA))
        I("v_lshlrev_b32 v%d, 3, v%d" % (vSTQ, i_))
        I("v_add_u32 v%d, 0x%x, v%d" % (vSTQ, L_STA + 512, vSTQ))
        I("s_lshl_b32 s%d, s%d, 6" % (sT, sW))
        I("s_add_u32 s%d, s%d, 0x%x" % (sT, sT, L_STA))
        I("v_lshlrev_b32 v%d, 2, v%d" % (vSW, i_))
        I("v_add_u32 v%d, s%d, v%d" % (vSW, sT, vSW))
        I("v_lshrrev_b32 v%d, 3, v%d" % (vT + 4, i_))
        I("v_lshlrev_b32 v%d, 10, v%d" % (vT + 4, vT + 4))
        I("v_and_b32 v%d, 7, v%d" % (vT + 5, i_))
        I("v_lshl_add_u32 v%d, v%d, 7, v%d" % (vT + 4, vT + 5, vT + 4))
        I("v_lshrrev_b32 v%d, 1, v%d" % (vT + 5, i_))
        I("v_xor_b32 v%d, v%d, v%d" % (vT + 5, vT + 5, g_))
        I("v_lshl_add_u32 v%d, v%d, 4, v%d" % (vX0, vT + 5, vT + 4))
        I("v_xor_b32 v%d, 64, v%d" % (vX1, vX0))
        I("v_add_u32 v%d, s%d, v%d" % (vOW0, sW2K, vX0))
        I("v_add_u32 v%d, s%d, v%d" % (vOW1, sW2K, vX1))
        I("v_bfe_u32 v%d, v0, 2, 2" % (vT + 4))
        I("v_bfe_u32 v%d, v0, 3, 1" % (vT + 5))
        I("v_lshlrev_b32 v%d, 1, v%d" % (vT + 5, vT + 5))
        I("v_bfe_u32 v%d, v0, 4, 1" % (vT + 10))
        I("v_lshl_add_u32 v%d, v%d, 2, v%d" % (vT + 5, vT + 10, vT + 5))
        I("v_bfe_u32 v%d, v0, 1, 1" % (vT + 10))
        I("v_xor_b32 v%d, v%d, v%d" % (vT + 5, vT + 5, vT + 10))
        I("v_lshlrev_b32 v%d, 4, v%d" % (vT + 5, vT + 5))
        I("v_lshl_add_u32 v%d, v%d, 7, v%d" % (tc, vT + 4, vT + 5))
        I("v_and_b32 v%d, 1, v0" % (vT + 10))
        I("v_lshl_add_u32 v%d, v%d, 3, v%d" % (tc, vT + 10, tc))
        I("s_lshl_b32 s%d, s%d, 5" % (sT + 1, sW))
        I("v_xor_b32 v%d, s%d, v%d" % (vT + 4, sT + 1, tc))
        I("v_lshl_add_u32 v%d, v%d, 10, v%d" % (vTQ, g_, vT + 4))
        I("v_add_u32 v%d, 0x%x, v%d" % (vTQ, L_RING, vTQ))
        I("v_lshl_add_u32 v%d, v%d, 11, v%d" % (vT + 4, g_, vT + 4))
        I("v_add_u32 v%d, 0x%x, v%d" % (vTR, L_RING, vT + 4))
        for k in range(4):
            I("v_mov_b32 v%d, 0x3f803f80" % (vONE + k))
        I("v_mov_b32 v%d, 0x3fb8aa3b" % vK)
        I("v_mov_b32 v%d, 0x358637bd" % (vK + 1))
        I("s_mul_i32 s%d, s%d, 2560" % (sT, sW))
        I("s_add_u32 s%d, s%d, 0x%x" % (sT, sT, L_KVI))
        I("v_add_u32 v%d, s%d, v%d" % (vKVL, sT, vL4))
        for r in range(4):
            I("v_add_u32 v%d, %d, v0" % (vT + 4, 64 * r))
            I("v_mul_u32_u24 v%d, 4370, v%d" % (vT + 5, vT + 4))
            I("v_lshrrev_b32 v%d, 16, v%d" % (vT + 5, vT + 5))
            I("v_add_u32 v%d, v%d, v%d" % (vT + 4, vT + 4, vT + 5))
            I("v_lshlrev_b32 v%d, 2, v%d" % (vT + 4, vT + 4))
            I("v_add_u32 v%d, s%d, v%d" % (vPOS + r, sT, vT + 4))
        I("v_lshrrev_b32 v%d, 1, v%d" % (vT + 4, g_))
        I("v_add_u32 v%d, v%d, v%d" % (vT + 4, vT + 4, g_))
        I("v_lshlrev_b32 v%d, 4, v%d" % (vT + 4, vT + 4))
        I("s_add_u32 s%d, s%d, %d" % (sT, sT, 276 * 4))
        I("v_add_u32 v%d, s%d, v%d" % (vZP, sT, vT + 4))
        I("v_cmp_eq_u32 vcc, 15, v%d" % i_)
        I("v_cndmask_b32 v%d, 0, 1.0, vcc" % (vT + 4))
        b.wait(lg=0)
        for k in range(5):
            I("ds_write_b32 v%d, v%d offset:%d" % (vKVL, vT + 4, 256 * k))
        I("s_xor_b32 s%d, s%d, 0x80000000" % (sTAG, sEP))
        I("s_and_b32 s%d, s%d, 0xfffffff0" % (sTAG, sTAG))
        I("s_mov_b32 s%d, 0x358637bd" % sEPS)
        for r, val in ((sM1, 0x22222222), (sM2, 0x44444444), (sM3, 0x88888888)):
            I("s_mov_b32 s%d, 0x%x" % (r, val))
            I("s_mov_b32 s%d, 0x%x" % (r + 1, val))
        I("s_mov_b32 s%d, 0x00f0000f" % sDIAG)
        I("s_mov_b32 s%d, 0xf0000f00" % (sDIAG + 1))
        I("v_lshlrev_b32 v%d, 10, v%d" % (vT + 4, g_))
        I("s_lshl_b32 s%d, s%d, 12" % (sT, sW))
        I("v_add_u32 v%d, s%d, v%d" % (vT + 4, sT, vT + 4))
        for t in range(4):
            I("v_xor_b32 v%d, %d, v%d" % (vCS1 + 4 + t, 32 * t, tc))
            I("v_add_u32 v%d, v%d, v%d" % (vCS1 + 4 + t, vCS1 + 4 + t, vT + 4))
            I("v_add_u32 v%d, 0x%x, v%d" % (vCS1 + 4 + t, L_PACK, vCS1 + 4 + t))
        I("v_lshlrev_b32 v%d, 10, v%d" % (vT + 14, i_))
        I("v_lshl_add_u32 v%d, v%d, 3, v%d" % (vT + 14, g_, vT + 14))
        I("s_add_u32 s%d, s%d, s%d" % (sT, sTAG, sXCC))
        I("v_mov_b32 v%d, s%d" % (vT + 15, sT))
        for ks in range(NFIRST, env('NINIT', 5)):
            issue_now(ks)
        nxt = env('NINIT', 5)
        nq = 0
        if not env("EARLYP", 0):
            ptk = self.pack_load(l3, q0)
        I("s_mov_b64 exec, 1")
        I("buffer_load_dword v%d, off, %s, s%d sc1" % (vDUM, self.ws(), sFL))
        I("s_mov_b64 exec, -1")
        self.stamp("setup")

        tmp = [self.free.pop() for _ in range(6)]
        assert all(s[0] == "v" for s in tmp)
        cK, cV = tmp[4][1], tmp[5][1]
        res_toks = []
        KP, KANN, KI, KC = env("KP", 3), env("KANN", 8), env("KI", 14), env("KC", 99)
        for ks in range(17):
            fill, dma, nrd = [], [], 0
            if ks < 16:
                b.wait(tokW[ks], tokA[ks // 2])
                if ks == KANN:
                    b.wait(pst)
                I("s_barrier")
                if ks == 0:
                    self.stamp("w0")
                elif env("LSTAMP", 0):
                    self.stamp("it%d" % ks)
                if ks == KC:
                    self.r1_check()
                    self.bg_w = len(self.free) - 2 * (16 - ks) - 16
                    self.last_bg = self.clock
                if ks == KANN:
                    assert b.vm_done > pst[-1][1] and b.vm_done > ztok[1]
                    lx = b.newlabel("Lann")
                    I("s_cmp_lg_u32 s%d, 0" % sW)
                    I("s_cbranch_scc1 %s" % lx)
                    I("s_lshl_b32 s%d, s%d, 7" % (sT, sRG))
                    I("s_add_u32 s%d, s%d, s%d" % (sT, sT, sR1))
                    I("s_mov_b64 exec, 1")
                    self.Inc("buffer_store_dword v%d, off, %s, s%d sc1" % (vT + 15, self.ws(), sT))
                    I("s_mov_b64 exec, -1")
                    b.label(lx)
                for p in range(2):
                    s = self.free.pop(0)
                    self.wslot[("qkv", 0, 2 * ks + p)] = (s, None)
                    for hh in range(2):
                        fill.append(lambda s=s, hh=hh, p=p: I("ds_read_b64_tr_b16 %s, v%d offset:%d" % (
                            vr(s[1] + 2 * hh, 2, s[0]), vTR, (ks % NR) * 8192 + p * 1024 + hh * 512)))
                fb = vAF + (ks & 1) * 20
                ds, h = ks // 2, ks & 1
                for rt in range(4):
                    fill.append(lambda rt=rt: I("ds_read_b128 %s, v%d offset:%d" % (
                        vr(fb + 4 * rt, 4), (vX0, vX1)[h], ds * 8192 + rt * 2048)))
                fill.append(lambda: I("ds_read_b128 %s, v%d offset:%d" % (vr(fb + 16, 4), (vOW0, vOW1)[h], ds * 8192)))
                nrd = len(fill)
                k2 = 0
                while nxt < min(16, ks + NR) and k2 < 2:
                    dma += issue_thunks(nxt)
                    nxt += 1
                    k2 += 1
                if nxt == 16 and not dma and ks > KP + 1:
                    while nq < 16 and len(dma) < env("QPER", 3) and (nq < 4 or 8 + (nq - 4) // 2 < ks):
                        dma.append(q_thunk(nq))
                        nq += 1
                if ks == KI:
                    fill.append(self.r1_issue)
                if ks == env("KOX", 15) and FT:
                    def tch():
                        self.touch_ox(0)
                        I("v_and_b32 v%d, 1, v0" % vT)
                        I("v_lshrrev_b32 v%d, 1, v0" % (vT + 1))
                        I("v_lshlrev_b32 v%d, 13, v%d" % (vT + 1, vT + 1))
                        I("v_lshl_add_u32 v%d, v%d, 7, v%d" % (vT + 5, vT, vT + 1))
                        I("s_mov_b64 exec, 15")
                        I("buffer_load_dword v%d, v%d, %s, s%d offen sc1" % (vDUM, vT + 5, self.ws(), sSTP))
                        I("s_mov_b64 exec, -1")
                    fill.append(tch)
                if ks == KP:
                    def prd():
                        b.wait(ptk)
                        for t in range(4):
                            for hh in range(2):
                                I("ds_read_b64_tr_b16 %s, v%d offset:%d" % (p2(tmp[t][1] + 2 * hh), vCS1 + 4 + t, hh * 512))
                    fill.append(prd)
            mfs = []
            if ks >= 1:
                k1 = ks - 1
                fb1 = vAF + (k1 & 1) * 20
                c0 = "0" if k1 == 0 else None
                wk, wv = [slot_r(self.wslot[("qkv", 0, k)][0]) for k in (2 * k1, 2 * k1 + 1)]
                one = vr(vONE, 4)
                for rt in range(4):
                    mfs.append(self.mf(vACC + 4 * rt, vr(fb1 + 4 * rt, 4), wk, c0))
                    mfs.append(self.mf(vACC + 16 + 4 * rt, vr(fb1 + 4 * rt, 4), wv, c0))
                own = vr(fb1 + 16, 4)
                mfs += [self.mf(vS1, one, own, c0), self.mf(vS2, own, own, c0),
                        self.mf(cK, one, wk, c0), self.mf(cV, one, wv, c0)]
            rds, extra = fill[:nrd], fill[nrd:]
            for _ in range(min(3, len(rds))):
                rds.pop(0)()
            while mfs:
                mfs.pop(0)()
                if rds:
                    for _ in range(min(2, len(rds))):
                        rds.pop(0)()
                    if len(rds) <= 2 and dma and dma[0][0]:
                        I(dma[0][0].pop(0))
                elif dma:
                    if dma[0][0]:
                        while dma[0][0]:
                            I(dma[0][0].pop(0))
                    else:
                        dma.pop(0)[1]()
                elif extra:
                    extra.pop(0)()
            for f in rds:
                f()
            for pre, th in dma:
                for t in pre:
                    I(t)
                th()
            for f in extra:
                f()
            b.wait(lg=0)
            if ks == KP:
                pst = [I("buffer_store_dwordx4 %s, v%d, %s, s%d offen sc1" % (slot_r(tmp[t]), vL16, self.ws(), 80 + t))
                       for t in range(4)]
        while nq < 16:
            assert nq < 4 or 8 + (nq - 4) // 2 < 15
            pre, th = q_thunk(nq)
            for t in pre:
                I(t)
            th()
            nq += 1
        I("s_sub_u32 s%d, s%d, s%d" % (sT, sC, sROT))
        I("s_and_b32 s%d, s%d, 7" % (sT, sT))
        I("s_lshl_b32 s%d, s%d, 13" % (sT, sT))
        I("v_lshrrev_b32 v%d, 4, v0" % vT)
        I("v_lshrrev_b32 v%d, 5, v0" % (vT + 1))
        I("v_xor_b32 v%d, v%d, v%d" % (vT + 1, vT + 1, vT))
        I("s_lshl_b32 s%d, s%d, 1" % (sT + 1, sW))
        I("v_xor_b32 v%d, s%d, v%d" % (vT + 1, sT + 1, vT + 1))
        I("v_lshlrev_b32 v%d, 4, v%d" % (vT + 1, vT + 1))
        I("v_xor_b32 v%d, v%d, v%d" % (vT + 1, vT + 1, vX0))
        I("v_and_b32 v%d, 1, v%d" % (vT, vT))
        I("v_lshl_add_u32 v%d, v%d, 3, v%d" % (vT + 1, vT, vT + 1))
        I("v_add_u32 v%d, s%d, v%d" % (vT + 1, sT, vT + 1))
        res = [I("ds_read_b64 %s, v%d offset:%d" % (p2(vS1 + 8 + 0) if False else p2(vACC + 32 + 2 * rt), vT + 1, rt * 2048)) for rt in range(4)]
        I("v_mov_b32 v%d, v%d" % (vOA, vT + 14))
        self.bg_w = 0
        self.stamp("kvpass")
        if KC > 16:
            self.r1_check()
        self.stats_startup()
        t1 = []
        for rt in range(4):
            t1.append(I("ds_read_b128 %s, v%d offset:%d" % (vr(vAF + 4 * rt, 4), vSTA, rt * 64)))
            t1.append(I("ds_read_b128 %s, v%d offset:%d" % (vr(vAF + 16 + 4 * rt, 4), vSTA, 256 + rt * 64)))
        for rt in range(4):
            t1.append(I("ds_read_b64 %s, v%d offset:%d" % (p2(vAB + 2 * rt), vSTQ, rt * 128)))
        for k in range(2):
            I("v_mov_b32 v%d, v%d" % (vCSK + k, cK))
            I("v_mov_b32 v%d, v%d" % (vCSV + k, cV))
        self.free += tmp
        I("v_add_u32 v%d, s%d, v%d" % (vSB, sW2K, vL4))
        I("v_add_u32 v%d, 0x%x, v%d" % (vEX, L_EX, vL4))
        I("s_lshl_b32 s%d, s%d, 8" % (sT, sW))
        I("v_add_u32 v%d, s%d, v%d" % (vSW, sT, vEX))
        I("v_and_b32 v%d, 15, v0" % vT)
        I("v_lshrrev_b32 v%d, 5, v0" % (vT + 1))
        I("v_lshlrev_b32 v%d, 6, v%d" % (vT + 1, vT + 1))
        I("v_lshl_add_u32 v%d, v%d, 2, v%d" % (vSWR, vT, vT + 1))
        I("s_add_u32 s%d, s%d, 0x%x" % (sT, sT, L_STA))
        I("v_add_u32 v%d, s%d, v%d" % (vSWR, sT, vSWR))
        for rt in range(4):
            for k in range(2):
                s = vACC + 32 + 2 * rt + k
                I("v_lshlrev_b32 v%d, 16, v%d" % (vX + 4 * rt + 2 * k, s))
                I("v_and_b32 v%d, 0xffff0000, v%d" % (vX + 4 * rt + 2 * k + 1, s))
        self.qslots = [self.free.pop(0) for _ in range(16)]
        self.bg_w = env("W_KVE", 14)
        b.wait(t1)
        I("s_lshl_b32 s%d, s%d, 8" % (sT, sW))
        I("v_add_u32 v%d, s%d, v%d" % (vSTA, sT, vSTA))
        for hf in range(2):
            self.kv_epilogue(hf, vAF + 8 * hf, vAF + 16 + 8 * hf)

    def pack_load(self, l3, q0):
        b = self.b
        I = b.I
        dst = 80
        uid, src, strd = sT, sT + 1, sT + 2
        I("s_lshl_b32 s%d, s%d, 2" % (uid, sRG))
        I("s_add_u32 s%d, s%d, s%d" % (uid, uid, sW))
        lw1, lw2, lnone, lgo = [b.newlabel("Lpk") for _ in range(4)]
        I("s_mul_i32 s88, s%d, %d" % (sC, 4 * PKW))
        I("s_mov_b32 s%d, 0x20000" % (R_PK + 3))

        def setsrd(ptr, size, stride):
            I("s_mov_b32 s%d, s%d" % (R_PK, ptr))
            I("s_and_b32 s%d, s%d, 0xffff" % (R_PK + 1, ptr + 1))
            I("s_mov_b32 s%d, %d" % (R_PK + 2, size))
            I("s_movk_i32 s%d, %d" % (strd, stride))

        def simple(f0):
            I("s_lshl_b32 s%d, s%d, 15" % (src, uid))
            I("s_lshl_b32 s89, s%d, 7" % sC)
            I("s_add_u32 s%d, s%d, s89" % (src, src))
            I("s_add_u32 s89, s%d, %d" % (uid, f0))
            I("s_lshl_b32 s89, s89, 10")
            I("s_add_u32 s88, s88, s89")
            for t in range(4):
                I("s_add_u32 s%d, s88, %d" % (dst + t, t * PKW))
            I("s_branch %s" % lgo)

        I("s_cmp_ge_u32 s%d, 16" % uid)
        I("s_cbranch_scc1 %s" % lw1)
        setsrd(S_WO, 512 * 1024, 1024)
        simple(F_WO)
        b.label(lw1)
        I("s_cmp_ge_u32 s%d, 64" % uid)
        I("s_cbranch_scc1 %s" % lw2)
        I("s_sub_u32 s%d, s%d, 16" % (uid, uid))
        I("s_mul_i32 s89, s%d, 43" % uid)
        I("s_lshr_b32 s89, s89, 7")
        I("s_mul_i32 s92, s89, 3")
        I("s_sub_u32 s92, s%d, s92" % uid)
        setsrd(S_W1, 512 * 2752, 2752)
        I("s_mul_i32 s%d, s89, %d" % (src, 32 * 2752))
        I("s_mul_i32 s79, s%d, 384" % sC)
        I("s_add_u32 s%d, s%d, s79" % (src, src))
        I("s_lshl_b32 s79, s92, 7")
        I("s_add_u32 s%d, s%d, s79" % (src, src))
        I("s_mul_i32 s89, s89, 3072")
        I("s_add_u32 s88, s88, s89")
        I("s_add_u32 s88, s88, %d" % (F_W1 * 1024))
        for t in range(4):
            I("s_lshl_b32 s79, s92, 2")
            I("s_add_u32 s79, s79, %d" % t)
            I("s_mul_i32 s89, s79, 43")
            I("s_lshr_b32 s89, s89, 7")
            I("s_mul_i32 s%d, s89, %d" % (dst + t, PKW - 3072))
            I("s_lshl_b32 s79, s79, 10")
            I("s_add_u32 s%d, s%d, s79" % (dst + t, dst + t))
            I("s_add_u32 s%d, s%d, s88" % (dst + t, dst + t))
        I("s_mul_i32 s79, s%d, 3" % sC)
        I("s_add_u32 s79, s79, s92")
        I("s_cmp_ge_u32 s79, 22")
        I("s_cbranch_scc1 %s" % lnone)
        I("s_branch %s" % lgo)
        b.label(lw2)
        I("s_cmp_ge_u32 s%d, 107" % uid)
        I("s_cbranch_scc1 %s" % lnone)
        I("s_sub_u32 s%d, s%d, 64" % (uid, uid))
        setsrd(S_W2, 1376 * 1024, 1024)
        simple(F_W2)
        b.label(lnone)
        setsrd(S_WQ, 0, 1024)
        I("s_mov_b32 s%d, 0" % src)
        for t in range(4):
            I("s_mov_b32 s%d, 0x%x" % (dst + t, OOB))
        b.label(lgo)
        I("v_mul_lo_u32 v%d, v%d, s%d" % (vT + 4, l3, strd))
        I("v_add_u32 v%d, v%d, v%d" % (vT + 10, vT + 4, q0))
        I("v_xor_b32 v%d, 64, v%d" % (vT + 5, q0))
        I("v_add_u32 v%d, v%d, v%d" % (vT + 11, vT + 4, vT + 5))
        I("s_lshl_b32 s%d, s%d, 3" % (strd, strd))
        I("s_lshl_b32 s89, s%d, 12" % sW)
        I("s_add_u32 m0, s89, 0x%x" % L_PACK)
        toks = []
        for q in range(4):
            toks.append(I("buffer_load_dwordx4 v%d, s[%d:%d], s%d offen lds" % (vT + 10 + (q & 1), R_PK, R_PK + 3, src)))
            if q < 3:
                I("s_add_u32 s%d, s%d, s%d" % (src, src, strd))
                I("s_add_u32 m0, m0, 1024")
        return toks

    def r1_issue(self):
        I = self.b.I
        a = vCS1 + 2
        I("v_and_b32 v%d, 7, v0" % a)
        I("v_subrev_u32 v%d, s%d, v%d" % (a, sC, a))
        I("v_lshlrev_b32 v%d, 12, v%d" % (a, a))
        I("s_lshl_b32 s%d, s%d, 7" % (sT, sRG))
        I("s_add_u32 s%d, s%d, s%d" % (sT, sT, sR1))
        I("v_add_u32 v%d, s%d, v%d" % (a, sT, a))
        I("v_add_u32 v%d, s%d, v%d" % (vT + 5, sR1, vTCH))
        I("v_cmp_gt_u32 vcc, 32, v0")
        I("v_cndmask_b32 v%d, v%d, v%d, vcc" % (a, a, vT + 5))
        self.r1_tok = I("buffer_load_dword v%d, v%d, %s, 0 offen sc1" % (vPOLL, a, self.ws()))

    def r1_check(self):
        b = self.b
        I = b.I
        lp, ld, lc = b.newlabel("Ltag"), b.newlabel("Ltagd"), b.newlabel("Ltagc")
        b.wait(self.r1_tok)
        I("s_branch %s" % lc)
        b.label(lp)
        self.Inc("buffer_load_dword v%d, v%d, %s, 0 offen sc1" % (vPOLL, vCS1 + 2, self.ws()))
        I("s_waitcnt vmcnt(0)")
        b.label(lc)
        I("v_subrev_u32 v%d, s%d, v%d" % (vPOLL, sTAG, vPOLL))
        I("v_cmp_gt_u32 vcc, 16, v%d" % vPOLL)
        I("s_cmp_eq_u64 vcc, exec")
        I("s_cbranch_scc1 %s" % ld)
        self.spin_guard(lp)
        b.label(ld)
        I("v_cmp_eq_u32 vcc, s%d, v%d" % (sXCC, vPOLL))
        I("s_cmp_eq_u32 vcc_hi, -1")
        I("s_cselect_b32 s%d, 1, 0" % sFAST)

    def touch_w(self, f0, m):
        I = self.b.I
        I("s_mul_i32 s%d, s%d, %d" % (sTC, sQ, m * 1024))
        I("s_add_u32 s%d, s%d, s%d" % (sTC, sTC, sPK))
        I("s_add_u32 s%d, s%d, %d" % (sTC, sTC, f0 * 1024))
        mask = (1 << (8 * m)) - 1
        I("s_mov_b32 exec_lo, 0x%x" % (mask & 0xffffffff))
        I("s_mov_b32 exec_hi, 0x%x" % (mask >> 32))
        I("buffer_load_dword v%d, v%d, %s, s%d offen sc1" % (vDUM, vTCH, self.ws(), sTC))
        I("s_mov_b64 exec, -1")

    def touch_ox(self, layer):
        I = self.b.I
        I("s_and_b32 s%d, s%d, 1" % (sT + 2, sW))
        I("s_lshl_b32 s%d, s%d, 15" % (sT, sT + 2))
        I("s_add_u32 s%d, s%d, s%d" % (sT, sT, sRG64))
        I("s_add_u32 s%d, s%d, 0x%x" % (sT, sT, self.buf("X", 2 * layer)))
        I("s_mul_i32 s%d, s%d, %d" % (sT + 1, sT + 2, self.hstride("O")))
        I("s_add_u32 s%d, s%d, s%d" % (sT + 1, sT + 1, self.rgs("O")))
        I("s_add_u32 s%d, s%d, 0x%x" % (sT + 1, sT + 1, self.buf("O", layer)))
        I("s_bitcmp1_b32 s%d, 1" % sW)
        I("s_cselect_b32 s%d, s%d, s%d" % (sT, sT, sT + 1))
        I("s_lshl_b32 s%d, s%d, 12" % (sT + 1, sC))
        I("s_add_u32 s%d, s%d, s%d" % (sT, sT, sT + 1))
        I("s_mov_b32 exec_hi, 0")
        I("buffer_load_dword v%d, v%d, %s, s%d offen sc1" % (vDUM, vTCH, self.ws(), sT))
        I("s_mov_b32 exec_hi, -1")

    def touch_h(self, layer):
        I = self.b.I
        I("s_lshr_b32 s%d, s%d, 1" % (sT + 1, sW))
        I("s_mul_i32 s%d, s%d, %d" % (sT + 1, sT + 1, HSZ // 2 - 12288))
        I("s_mul_i32 s%d, s%d, 6144" % (sT + 2, sW))
        I("s_add_u32 s%d, s%d, s%d" % (sT + 1, sT + 1, sT + 2))
        I("s_mul_i32 s%d, s%d, 12288" % (sT + 2, sC))
        I("s_add_u32 s%d, s%d, s%d" % (sT + 1, sT + 1, sT + 2))
        I("s_add_u32 s%d, s%d, s%d" % (sT + 1, sT + 1, sRGH))
        I("s_add_u32 s%d, s%d, 0x%x" % (sT + 1, sT + 1, self.buf("H", layer)))
        I("s_cmp_lt_u32 s%d, 7" % sC)
        I("s_cselect_b32 s%d, s%d, 0x%x" % (sT + 1, sT + 1, OOB))
        I("s_mov_b32 exec_hi, 0xffff")
        I("buffer_load_dword v%d, v%d, %s, s%d offen sc1" % (vDUM, vTCH, self.ws(), sT + 1))
        I("s_mov_b32 exec_hi, -1")

    def kv_items(self, hf, seqs):
        items = []
        for ks in range(16):
            c0 = "0" if ks == 0 else None
            for r in range(2):
                def mfs(fr, ks=ks, r=r, c0=c0):
                    kk, kv_ = ("qkv", 0, 2 * ks), ("qkv", 0, 2 * ks + 1)
                    th = [self.mf(vACC + 8 * hf + 4 * r, fr, self.w_get(kk), c0),
                          self.mf(vACC + 16 + 8 * hf + 4 * r, fr, self.w_get(kv_), c0)]
                    if hf == 1 and r == 1:
                        th.append(lambda: (self.w_release(kk), self.w_release(kv_)))
                    return th
                a, off = self.frag_addr(seqs[ks // 2], r, ks & 1)
                items.append((a, off, seqs[ks // 2], mfs))
        self.pinned.update(seqs)
        return items

    def kv_finish(self, hf):
        b = self.b
        rd = [b.I("ds_read_b128 %s, v%d offset:%d" % (vr(vAF + 4 * k, 4), vSTA, (k & 1) * 64 + (k >> 1) * 128)) for k in range(4)]
        b.wait(rd)
        self.kv_epilogue(hf, vAF, vAF + 8)

    def attention(self, layer, xseqs):
        b = self.b
        I = self.I
        KVD, ZD = vS1, vS2
        one = vr(vONE, 4)
        self.bg_w = 0
        for p in range(2):
            c0 = "0" if p == 0 else None
            self.mf(KVD, vr(vACC + 8 * p, 4), vr(vACC + 16 + 8 * p, 4), c0)()
            self.mf(ZD, vr(vACC + 8 * p, 4), one, c0)()
        b.I("s_add_u32 s%d, s%d, %d" % (sKB, sKV, layer * 2560))
        b.I("s_and_b32 s%d, s%d, 1" % (sKB + 1, sRG))
        b.I("s_mul_i32 s%d, s%d, 1280" % (sKB + 1, sKB + 1))
        b.I("s_add_u32 s%d, s%d, s%d" % (sKB + 1, sKB + 1, sKB))
        for r in range(4):
            b.I("ds_write_b32 v%d, v%d" % (vPOS + r, KVD + r))
        b.I("s_mov_b32 exec_lo, 0x00010001")
        b.I("s_mov_b32 exec_hi, 0x00010001")
        b.I("ds_write_b128 v%d, %s" % (vZP, vr(ZD, 4)))
        b.I("s_mov_b64 exec, -1")
        rd = [b.I("ds_read_b32 v%d, v%d offset:%d" % (vT + k, vKVL, 256 * k)) for k in range(5)]
        for k in range(5):
            b.wait(rd[k])
            if k == 4:
                b.I("s_mov_b32 exec_hi, 0xffff")
            b.I("buffer_atomic_add_f32 v%d, v%d, %s, s%d offen offset:%d" % (vT + k, vL4, self.ws(), sKB + 1, k * 256))
        b.I("s_mov_b64 exec, -1")
        self.stamp("atom")
        if layer:
            self.touch_ox(layer)
        else:
            b.wait(self.tokQ)
            b.I("s_barrier")
            for ks in range(16):
                s = self.qslots[ks]
                self.wslot[("qkv", 0, 32 + ks)] = (s, None)
                for hh in range(2):
                    off = self.rq_base(ks) - L_RING + hh * 512
                    a = vTQ
                    if off > 65535:
                        if ks == 0 and hh == 0:
                            b.I("v_add_u32 v%d, 0x10000, v%d" % (vT + 6, vTQ))
                        a, off = vT + 6, off - 65536
                    b.I("ds_read_b64_tr_b16 %s, v%d offset:%d" % (vr(s[1] + 2 * hh, 2, s[0]), a, off))
            b.wait(lg=0)
            b.I("s_barrier")
        self.w_burst(env("W_AT", [0, 0])[layer])
        self.last_bg = self.clock
        self.bg_w = env("W_Q", [99, 99])[layer]
        items = []
        for ks in range(16):
            ds, h = ks // 2, ks & 1
            c0 = "0" if ks == 0 else None
            if layer:
                def keep(fr):
                    self.wq_reg = fr
                    return []
                items.append((vWQ, ks * 1024, None, keep))
            for rt in range(4):
                def mfs(fr, ks=ks, rt=rt, c0=c0):
                    w = self.w_get(("qkv", 0, 32 + ks)) if layer == 0 else self.wq_reg
                    th = [self.mf(vACC + 4 * rt, w, fr, c0)]
                    if layer == 0 and rt == 0:
                        th.append(self.mf(vCSQ, w, one, c0))
                    return th
                if layer == 0:
                    items.append(((vX0, vX1)[h], ds * 8192 + rt * 2048, None, mfs))
                else:
                    a, off = self.frag_addr(xseqs[rt >> 1][ds], rt & 1, h)
                    items.append((a, off, None, mfs))
        self.gemm(items, None, 9 if layer == 0 else 5)
        self.pinned = set()
        self.mine = self.seq - 1
        if layer == 0:
            b.I("s_lshl_b32 s%d, s%d, 14" % (sT, sW))
            b.I("s_add_u32 s%d, s%d, 0x%x" % (sT, sT, L_WQ))
            b.I("v_add_u32 v%d, s%d, v%d" % (vWQ, sT, vL16))
            for ks in range(16):
                b.I("ds_write_b128 v%d, %s offset:%d" % (vWQ, slot_r(self.wslot[("qkv", 0, 32 + ks)][0]), ks * 1024))
            b.wait(lg=0)
            for ks in range(16):
                self.w_release(("qkv", 0, 32 + ks))
        PQ = vACC + 16
        for rt in range(4):
            ab = vAB + 2 * rt
            for r in (0, 2):
                u = vT + 2 * ((rt * 2 + r // 2) % 8)
                I("v_pk_fma_f32 %s, %s, %s, %s op_sel:[0,1,1] op_sel_hi:[1,1,1]" % (p2(u), p2(vCSQ + r), p2(ab), p2(vK)))
        for rt in range(4):
            ab = vAB + 2 * rt
            for r in (0, 2):
                q_ = vACC + 4 * rt + r
                u = vT + 2 * ((rt * 2 + r // 2) % 8)
                I("v_pk_fma_f32 %s, %s, %s, %s op_sel:[0,0,0] op_sel_hi:[1,0,1]" % (p2(q_), p2(q_), p2(ab), p2(u)))
        self.phi_pairs([(vACC + 4 * rt + r, PQ + 2 * rt + r // 2) for rt in range(4) for r in (0, 2)])
        self.stamp("qpass")
        self.bg_w = 0
        self.w_burst(env("W_S1", [16, 16])[layer])
        b.I("v_add_u32 v%d, 0x400, v%d" % (vC2, vL16))
        b.I("v_cmp_gt_u32 vcc, 12, v0")
        b.I("v_mov_b32 v%d, 0x%x" % (vT, OOB))
        b.I("v_cndmask_b32 v%d, v%d, v%d, vcc" % (vC2, vT, vC2))
        b.I("s_add_u32 s%d, s%d, s%d" % (sT + 6, self.rgs("O"), sSTO))
        b.I("s_add_u32 s%d, s%d, 0x%x" % (sT + 6, sT + 6, self.buf("O", layer)))
        b.I("s_add_u32 s%d, s%d, %d" % (sT + 7, sT + 6, self.hstride("O")))
        if layer == 0:
            self.ncs = 0
            while self.ncs < env("NCS", 8) and all(("w1", 0, 3 * self.ncs + t) in self.wslot for t in range(3)):
                for t in range(3):
                    self.mf(vCS1 + 4 * t, self.w_get(("w1", 0, 3 * self.ncs + t)), one, "0" if self.ncs == 0 else None)()
                self.ncs += 1
            self.w_need = 0
            self.w_cur = None
        lp, ld = b.newlabel("Lkv"), b.newlabel("Lkvd")
        b.label(lp)
        b.I("buffer_load_dwordx4 %s, v%d, %s, s%d offen sc1" % (vr(vT, 4), vL16, self.ws(), sKB))
        b.I("buffer_load_dwordx4 %s, v%d, %s, s%d offen offset:1280 sc1" % (vr(vT + 4, 4), vL16, self.ws(), sKB))
        b.I("buffer_load_dwordx4 %s, v%d, %s, s%d offen sc1" % (vr(vT + 8, 4), vC2, self.ws(), sKB))
        b.I("buffer_load_dwordx4 %s, v%d, %s, s%d offen offset:1280 sc1" % (vr(vT + 12, 4), vC2, self.ws(), sKB))
        b.wait(vm=0)
        for k in (0, 2, 8, 10):
            b.I("v_pk_add_f32 %s, %s, %s" % (p2(vT + k), p2(vT + k), p2(vT + k + 4)))
        b.I("v_cmp_eq_f32 vcc, 0x42000000, v%d" % (vT + 3))
        b.I("v_cmp_eq_f32 s[%d:%d], v%d, v%d" % (sT, sT + 1, vT + 11, vT + 3))
        b.I("s_and_b64 vcc, vcc, s[%d:%d]" % (sM3, sM3 + 1))
        b.I("s_and_b32 s%d, s%d, 0x888" % (sT, sT))
        b.I("s_xor_b32 s%d, s%d, 0x888" % (sT, sT))
        b.I("s_xor_b64 vcc, vcc, s[%d:%d]" % (sM3, sM3 + 1))
        b.I("s_or_b32 s%d, s%d, vcc_lo" % (sT, sT))
        b.I("s_or_b32 s%d, s%d, vcc_hi" % (sT, sT))
        b.I("s_cbranch_scc0 %s" % ld)
        self.spin_guard(lp)
        b.label(ld)
        self.stamp("kvsync")
        b.I("v_lshl_add_u32 v%d, v0, 4, v%d" % (vT + 4, vKVL))
        b.I("v_sub_u32 v%d, v%d, v%d" % (vT + 4, vT + 4, vL4))
        b.I("ds_write_b128 v%d, %s offset:1280" % (vT + 4, vr(vT, 4)))
        b.I("s_mov_b64 exec, 0xfff")
        b.I("ds_write_b128 v%d, %s offset:2304" % (vT + 4, vr(vT + 8, 4)))
        b.I("s_mov_b64 exec, -1")
        lz = b.I("ds_read_b128 %s, v%d offset:1280" % (vr(vT + 4, 4), vZP))
        lt = [b.I("ds_read_b32 v%d, v%d offset:1280" % (vT + 12 + r, vPOS + r)) for r in range(4)]
        b.wait(lz)
        I("v_cvt_pk_bf16_f32 v%d, v%d, v%d" % (vT + 10, vT + 4, vT + 5))
        I("v_cvt_pk_bf16_f32 v%d, v%d, v%d" % (vT + 11, vT + 6, vT + 7))
        NUM, DEN = vACC, vAF
        for rt in range(4):
            I("v_mfma_f32_16x16x16_bf16 %s, %s, %s, 0" % (vr(DEN + 4 * rt, 4), p2(vT + 10), p2(PQ + 2 * rt)))
        b.wait(lt)
        I("v_cvt_pk_bf16_f32 v%d, v%d, v%d" % (vT + 8, vT + 12, vT + 13))
        I("v_cvt_pk_bf16_f32 v%d, v%d, v%d" % (vT + 9, vT + 14, vT + 15))
        for rt in range(4):
            I("v_mfma_f32_16x16x16_bf16 %s, %s, %s, 0" % (vr(NUM + 4 * rt, 4), p2(vT + 8), p2(PQ + 2 * rt)))
        for rt in range(4):
            I("v_add_f32 v%d, s%d, v%d" % (DEN + 4 * rt, sEPS, DEN + 4 * rt))
        for rt in range(4):
            I("v_rcp_f32 v%d, v%d" % (DEN + 4 * rt, DEN + 4 * rt))
        for rt in range(4):
            for r in (0, 2):
                n_ = NUM + 4 * rt + r
                I("v_pk_mul_f32 %s, %s, %s op_sel_hi:[1,0]" % (p2(n_), p2(n_), p2(DEN + 4 * rt)))
        for rt in range(4):
            for r in (0, 2):
                I("v_cvt_pk_bf16_f32 v%d, v%d, v%d" % (vT + 2 * rt + r // 2, NUM + 4 * rt + r, NUM + 4 * rt + r + 1))
        return self.stores2([self.pair_store(vT + 4 * pr, sT + 6 + pr, 0) for pr in range(2)], layer == 0 or self.sep)

    def n16_items(self, name, layer, nks, hf, seqs):
        items = []
        for ks in range(nks):
            for r in range(2):
                def mfs(fr, ks=ks, r=r):
                    th = [self.mf(vX + 8 * hf + 4 * r, self.w_get((name, layer, ks)), fr)]
                    if hf == 1 and r == 1:
                        th.append(lambda: self.w_release((name, layer, ks)))
                    return th
                a, off = self.frag_addr(seqs[ks // 2], r, ks & 1)
                items.append((a, off, seqs[ks // 2], mfs))
        return items

    def n16_full(self, name, layer, nks, seqs):
        items = []
        for ks in range(nks):
            for rt in range(4):
                def mfs(fr, ks=ks, rt=rt):
                    th = [self.mf(vX + 4 * rt, self.w_get((name, layer, ks)), fr)]
                    if rt == 3:
                        th.append(lambda: self.w_release((name, layer, ks)))
                    return th
                sq = seqs[rt >> 1][ks // 2]
                a, off = self.frag_addr(sq, rt & 1, ks & 1)
                items.append((a, off, sq, mfs))
        return items

    def x_full_store(self, idx, wt):
        I = self.b.I
        for hf in range(2):
            I("s_add_u32 s%d, s%d, s%d" % (sT + 6 + hf, sRG64, sSTO))
            I("s_add_u32 s%d, s%d, 0x%x" % (sT + 6 + hf, sT + 6 + hf, self.buf("X", idx) + hf * 32768))
        I("s_add_u32 s%d, s%d, 8192" % (sT + 8, sSTP))
        for j in range(8):
            I("v_cvt_pk_bf16_f32 v%d, v%d, v%d" % (vT + j, vX + 2 * j, vX + 2 * j + 1))
        s = vAF
        tk = self.stores2([self.pair_store(vT + 4 * hf, sT + 6 + hf, 0) for hf in range(2)], wt)
        for rt in range(4):
            I("v_pk_add_f32 %s, %s, %s" % (p2(s + 4 * rt), p2(vX + 4 * rt), p2(vX + 4 * rt + 2)))
            I("v_pk_mul_f32 %s, %s, %s" % (p2(s + 4 * rt + 2), p2(vX + 4 * rt), p2(vX + 4 * rt)))
        for rt in range(4):
            I("v_pk_fma_f32 %s, %s, %s, %s" % (p2(s + 4 * rt + 2), p2(vX + 4 * rt + 2), p2(vX + 4 * rt + 2), p2(s + 4 * rt + 2)))
        for rt in range(4):
            I("v_add_f32 v%d, v%d, v%d" % (s + 4 * rt, s + 4 * rt, s + 4 * rt + 1))
            I("v_add_f32 v%d, v%d, v%d" % (s + 4 * rt + 2, s + 4 * rt + 2, s + 4 * rt + 3))
        for hf in range(2):
            q = s + 8 * hf
            I("v_permlane32_swap_b32 v%d, v%d" % (q, q + 4))
            I("v_permlane32_swap_b32 v%d, v%d" % (q + 2, q + 6))
        for hf in range(2):
            q = s + 8 * hf
            I("v_add_f32 v%d, v%d, v%d" % (q, q, q + 4))
            I("v_add_f32 v%d, v%d, v%d" % (q + 2, q + 2, q + 6))
        for hf in range(2):
            I("v_permlane16_swap_b32 v%d, v%d" % (s + 8 * hf, s + 8 * hf + 2))
        for hf in range(2):
            I("v_add_f32 v%d, v%d, v%d" % (s + 8 * hf, s + 8 * hf, s + 8 * hf + 2))
        tk2 = self.stores2(["buffer_store_dword v%d, v%d, %s, s%d offen" % (s + 8 * hf, vL4, self.ws(), (sSTP, sT + 8)[hf])
                            for hf in range(2)], wt)
        return tk, tk2

    def x_half_now(self, idx, hf, wt):
        I = self.b.I
        x = vX + 8 * hf
        o = vT + 2
        s = o + 4
        I("s_add_u32 s%d, s%d, s%d" % (sT + 6, sRG64, sSTO))
        I("s_add_u32 s%d, s%d, 0x%x" % (sT + 6, sT + 6, self.buf("X", idx) + hf * 32768))
        I("s_add_u32 s%d, s%d, %d" % (sT + 7, sSTP, hf * 8192))
        for j in range(4):
            I("v_cvt_pk_bf16_f32 v%d, v%d, v%d" % (o + j, x + 2 * j, x + 2 * j + 1))
        for r in range(2):
            I("v_pk_add_f32 %s, %s, %s" % (p2(s + 4 * r), p2(x + 4 * r), p2(x + 4 * r + 2)))
            I("v_pk_mul_f32 %s, %s, %s" % (p2(s + 4 * r + 2), p2(x + 4 * r), p2(x + 4 * r)))
        tk = self.stores2([self.pair_store(o, sT + 6, 0)], wt)
        for r in range(2):
            I("v_pk_fma_f32 %s, %s, %s, %s" % (p2(s + 4 * r + 2), p2(x + 4 * r + 2), p2(x + 4 * r + 2), p2(s + 4 * r + 2)))
            I("v_add_f32 v%d, v%d, v%d" % (s + 4 * r, s + 4 * r, s + 4 * r + 1))
        for r in range(2):
            I("v_add_f32 v%d, v%d, v%d" % (s + 4 * r + 2, s + 4 * r + 2, s + 4 * r + 3))
        I("v_permlane32_swap_b32 v%d, v%d" % (s, s + 4))
        I("v_permlane32_swap_b32 v%d, v%d" % (s + 2, s + 6))
        I("v_add_f32 v%d, v%d, v%d" % (s, s, s + 4))
        I("v_add_f32 v%d, v%d, v%d" % (s + 2, s + 2, s + 6))
        I("v_permlane16_swap_b32 v%d, v%d" % (s, s + 2))
        I("v_add_f32 v%d, v%d, v%d" % (s, s, s + 2))
        tk += self.stores2(["buffer_store_dword v%d, v%d, %s, s%d offen" % (s, vL4, self.ws(), sT + 7)], wt)
        return self.new_pub(tk)

    def x_half_store(self, idx, hf, wt, delay):
        x = vX + 8 * hf
        o = vT + 1
        o += o & 1
        tk = []
        k, fl = self.new_pub(tk)
        s = o + 4
        e = ["s_add_u32 s%d, s%d, s%d" % (sT + 6, sRG64, sSTO),
             "s_add_u32 s%d, s%d, 0x%x" % (sT + 6, sT + 6, self.buf("X", idx) + hf * 32768),
             "s_add_u32 s%d, s%d, %d" % (sT + 7, sSTP, hf * 8192), 2]
        e += ["v_cvt_pk_bf16_f32 v%d, v%d, v%d" % (o + j, x + 2 * j, x + 2 * j + 1) for j in range(4)]
        for r in range(2):
            e += ["v_add_f32 v%d, v%d, v%d" % (s + 2 * r, x + 4 * r, x + 4 * r + 1),
                  "v_mul_f32 v%d, v%d, v%d" % (s + 2 * r + 1, x + 4 * r, x + 4 * r)]
        e.append(lambda: tk.extend(self.stores2([self.pair_store(o, sT + 6, 0)], wt)))
        for q in (1, 2, 3):
            for r in range(2):
                if q > 1:
                    e.append("v_add_f32 v%d, v%d, v%d" % (s + 2 * r, s + 2 * r, x + 4 * r + q))
                e.append("v_fmac_f32 v%d, v%d, v%d" % (s + 2 * r + 1, x + 4 * r + q, x + 4 * r + q))
        e += [1, "v_permlane32_swap_b32 v%d, v%d" % (s, s + 2), "v_permlane32_swap_b32 v%d, v%d" % (s + 1, s + 3), 1,
              "v_add_f32 v%d, v%d, v%d" % (s, s, s + 2), "v_add_f32 v%d, v%d, v%d" % (s + 1, s + 1, s + 3), 1,
              "v_permlane16_swap_b32 v%d, v%d" % (s, s + 1), 1, "v_add_f32 v%d, v%d, v%d" % (s, s, s + 1),
              lambda: tk.extend(self.stores2(["buffer_store_dword v%d, v%d, %s, s%d offen" % (s, vL4, self.ws(), sT + 7)], wt))]
        if delay is not None:
            e += [delay, fl]
        return k, e, fl

    def out_half_store(self, hf):
        x = vX + 8 * hf
        e = ["s_add_u32 s%d, s%d, s%d" % (sT + 6, sRG64, sOUT), "s_add_u32 s%d, s%d, %d" % (sT + 6, sT + 6, hf * 32768),
             "s_add_u32 s%d, s%d, 16384" % (sT + 7, sT + 6), 2]
        e += ["v_cvt_pk_bf16_f32 v%d, v%d, v%d" % (vT + 4 * hf + j, x + 2 * j, x + 2 * j + 1) for j in range(4)]
        e += ["buffer_store_dwordx2 %s, v%d, s[%d:%d], s%d offen" % (p2(vT + 4 * hf + 2 * r), vOA, R_OUT, R_OUT + 3, sT + 6 + r)
              for r in range(2)]
        return e

    def p3_items(self, layer, seqs):
        items = []
        one = vr(vONE, 4)
        for ks in range(16):
            c0 = "0" if ks == 0 else None
            for rt in range(4):
                def mfs(fr, ks=ks, rt=rt, c0=c0):
                    th = []
                    for t in range(3):
                        w = self.w_get(("w1", layer, 3 * ks + t))
                        th.append(self.mf(vACC + 24 * (rt >> 1) + 8 * t + 4 * (rt & 1), w, fr, c0))
                        if layer == 0 and rt == 0 and ks >= self.ncs:
                            th.append(self.mf(vCS1 + 4 * t, w, one, c0))
                    if rt == 3:
                        th.append(lambda: [self.w_release(("w1", layer, 3 * ks + t)) for t in range(3)])
                    return th
                sq = seqs[rt >> 1][ks // 2]
                a, off = self.frag_addr(sq, rt & 1, ks & 1)
                items.append((a, off, sq, mfs))
        return items

    def silu(self, layer, hf, mid=None):
        b = self.b
        I = self.I
        for t in range(3):
            b.I("s_add_u32 s%d, s%d, 0x%x" % (sT + 6 + t, sH0 + t, self.buf("H", layer) + hf * (HSZ // 2)))
        sts = []
        for t in range(3):
            A = vACC + 24 * hf + 8 * t
            u = vT + 8 * (t & 1)
            if mid and t == mid[0]:
                mid[1]()
            for j in range(4):
                I("v_pk_mul_f32 %s, %s, %s op_sel:[0,1] op_sel_hi:[1,1]" % (
                    p2(u + 2 * j), p2(vCS1 + 4 * t + 2 * (j & 1)), p2(vAB + 4 * hf + 2 * (j >> 1))))
            for j in range(4):
                I("v_pk_fma_f32 %s, %s, %s, %s op_sel:[0,0,0] op_sel_hi:[1,0,1]" % (
                    p2(A + 2 * j), p2(A + 2 * j), p2(vAB + 4 * hf + 2 * (j >> 1)), p2(u + 2 * j)))
            for k in range(8):
                I("v_exp_f32_e64 v%d, -v%d" % (u + k, A + k))
            for j in range(4):
                I("v_pk_fma_f32 %s, %s, %s, %s op_sel:[0,0,0] op_sel_hi:[1,0,0]" % (p2(u + 2 * j), p2(u + 2 * j), p2(vK), p2(vK)))
            for k in range(8):
                I("v_rcp_f32 v%d, v%d" % (u + k, u + k))
            for j in range(4):
                I("v_pk_mul_f32 %s, %s, %s" % (p2(A + 2 * j), p2(A + 2 * j), p2(u + 2 * j)))
            for j in range(4):
                I("v_cvt_pk_bf16_f32 v%d, v%d, v%d" % (A + j, A + 2 * j, A + 2 * j + 1))
            sts += self.stores2([self.pair_store(A, sT + 6 + t, 0)], layer == 0 or self.sep)
        return sts

    def body(self):
        b = self.b
        for layer in range(2):
            R1, R2 = env("REV", (12, 43))
            if layer == 0:
                R1, R2 = 48, 43
            self.w_enqueue("w1", layer, F_W1, 48, range(47, R1 - 1, -1))
            self.w_enqueue("wo", layer, F_WO, 16)
            self.w_enqueue("w1", layer, F_W1, 48, range(R1))
            self.w_enqueue("w2", layer, F_W2, 43, range(42, R2 - 1, -1))
            self.w_enqueue("w2", layer, F_W2, 43, range(R2))
        AF = env("AFIRST", 12)
        G8c = env("G8C", [2, 2, 2, 2])
        G8w = env("G8W", [4, 4])
        G22 = env("G22", [2, 2, 2, 4, 4, 4, 4])
        st = {}
        PA, PB = env("PA", [75, 62]), env("PB", [75, 62])
        self.pace_w = PA[0]
        self.startup()
        xs = None
        for layer in range(2):
            self.pace_w = PA[layer]
            tk = self.attention(layer, xs)
            k_o, fl = self.new_pub(tk)
            self.w_burst(env("W_PUB", [0, 0])[layer])
            fl()
            self.stamp("o_pub")
            self.poll_check(k_o)
            self.stamp("o_rdy")
            wt = layer == 0 or self.sep
            D16, PW = env("D16", 9), env("PAIRW", True)
            n0 = self.seq
            oo = self.queue_both("O", layer, 8, self.aq)
            self.a_burst(AF)
            self.bg_w = env("W_P2", 12)
            self.gemm(self.n16_full("wo", layer, 16, oo), self.split(list(range(n0, n0 + 16)), env("G16", [4, 4, 4, 4])), D16,
                      pairw=PW)
            self.bg_w = 0
            self.stamp("p2")
            tk1, tk2 = self.x_full_store(2 * layer, wt)
            k_x, fl_x = self.new_pub(tk1)
            k_s, fl_s = self.new_pub(tk2)
            self.w_burst(env("W_PUB2", [0, 0])[layer])
            fl_x()
            self.stamp("x_pub")
            self.poll_check(k_x)
            self.stamp("x_rdy")
            poll = lambda: st.update(tok=self.poll_issue())

            def when(k, plan, burst=0):
                def f():
                    self.poll_check(k() if callable(k) else k, st["tok"])
                    self.aq += plan
                    self.a_burst(burst)
                return f
            n0 = self.seq
            xx = self.queue_both("X", 2 * layer, 8, self.aq)
            hold = self.seq
            pl_s = []
            sa = self.queue_stats(0, pl_s)
            sb = self.queue_stats(1, pl_s)
            if layer or FT:
                th = lambda: self.touch_h(layer)
                th.seq = -1
                th.prep = []
                pl_s.append(th)
            self.a_burst(4)
            fl_s()
            self.a_burst(AF - 4)
            self.bg_w = 0
            self.pace_w = PB[layer]
            groups = self.split(list(range(n0, n0 + 16)), env("G3", [4, 4, 8])) + [[hold]]
            hooks, pre, post = {}, {}, {}
            s1a, bba = self.stats_stage1(sa, 0)
            s1b, bbb = self.stats_stage1(sb, 1)
            j = env("H_ST", 8)
            hooks[j] = [poll]
            hooks[j + 6] = [when(k_s, pl_s), lambda: setattr(self, "bg_w", 99)]
            hooks[j + 18] = [lambda: self.side.extend(s1a + s1b)]

            def exch():
                bba()
                bbb()
                b.I("s_barrier")
                self.side.extend(self.stats_stage2(0, True, False) + self.stats_stage2(1, True, False))
            hooks[env("H_EX", 46)] = [exch]
            groups.pop()
            self.gemm(self.p3_items(layer, xx), groups, 6, hooks, pre, post, pairw=True)
            self.pinned = set()
            self.mine = self.seq - 1
            self.bg_w = env("W_SILU", 0)
            self.stamp("p3")
            k_ha, fl_ha = self.new_pub(self.silu(layer, 0))
            self.bg_w = 0
            tkb = self.silu(layer, 1, (env("MID", 2), fl_ha))
            k_hb, fl_hb = self.new_pub(tkb)
            self.stamp("silu")
            self.poll_check(k_ha)
            self.stamp("ha_rdy")
            self.gstamp = layer == 1 and env("GST", 0)
            pl_hb, pl_ya = [], []
            ha = self.queue_half("H", layer, 0, 22, self.aq)
            hb = self.queue_half("H", layer, 1, 22, pl_hb)
            self.a_burst(4)
            fl_hb()
            self.a_burst(AF - 4)
            self.bg_w = 99
            j = env("H_P4A", 24)
            self.alead = env("ALEAD4", 16)
            self.pace_w = PA[1]
            items = self.n16_items("w2", layer, 43, 0, ha) + self.n16_items("w2", layer, 43, 1, hb)
            groups = self.split(ha, env("G22C", [2, 2, 4, 4, 4, 6])) + self.split(hb, G22)
            hooks = {j: [poll], j + env('CK4', 12): [when(k_hb, pl_hb, env('BU_HB', 4))]}
            pre, post = {}, {}
            if layer == 0:
                sa = self.queue_stats(0, pl_ya)
                ya = self.queue_half("X", 1, 0, 8, pl_ya, rot=True)

                def y_out(hf, delay):
                    def f():
                        self.stamp("p4a" if hf == 0 else "p4b")
                        st["k_y%d" % hf], st["fl_y%d" % hf] = self.x_half_now(1, hf, self.sep)
                        self.pace_w = PA[1]
                        if hf:
                            self.alead = env("ALEAD", 99)
                    return f
                j = 86 + env("H_P4B", 44)
                hooks.update({87: [y_out(0, 0)], 87 + env("D_Y0", 22): [lambda: st["fl_y0"]()],
                              172 + env("D_Y1", 12): [lambda: st["fl_y1"]()], j: [poll], j + env('CK4', 12): [when(lambda: st["k_y0"], pl_ya, env("BU_YA", 6))], 172: [y_out(1, 0)],
                              172 + env("H_P1A", 28): [poll]})
                ng = len(groups)
                groups += self.split(ya, env("G8K", [3, 3, 2]))
                self.stats_hooks(sa, 0, False, True, 173, ng + 2, hooks, pre, post)
                items += self.kv_items(0, ya)
            else:
                hooks[85] = [lambda: (self.stamp("p4a"), self.side.extend(self.out_half_store(0)))]
            self.gemm(items, groups, D16, hooks, pre, post, pairw=PW)
            if layer == 0:
                self.stamp("p1a")
                self.poll_check(st["k_y1"], st["tok"])
                self.stamp("yb_rdy")
                sb = self.queue_stats(1, self.aq)
                yb = self.queue_half("X", 1, 1, 8, self.aq, rot=True)
                self.a_burst(env('AF1', 10))
                self.kv_finish(0)
                hooks, pre, post = {}, {}, {}
                self.stats_hooks(sb, 1, False, True, 0, 1, hooks, pre, post)
                self.gemm(self.kv_items(1, yb), self.split(yb, G8w), 8, hooks, pre, post, pairw=True)
                self.kv_finish(1)
                self.stamp("p1b")
                xs = [ya, yb]
            else:
                self.stamp("p4b")
                self.side = self.out_half_store(1)
                self.side_flush()
                lx = b.newlabel("Lep")
                b.I("s_or_b32 s%d, s2, s%d" % (sT, sW))
                b.I("s_cbranch_scc1 %s" % lx)
                b.I("s_add_u32 s%d, s%d, 16" % (sT, sEP))
                b.I("v_mov_b32 v%d, s%d" % (vT + 9, sT))
                b.I("s_mov_b32 s%d, 0x%x" % (sT, WS_EP))
                b.I("s_mov_b64 exec, 1")
                self.Inc("buffer_store_dword v%d, off, %s, s%d sc1" % (vT + 9, self.ws(), sT))
                b.I("s_mov_b64 exec, -1")
                b.label(lx)
                self.stamp("end")
        if self.diag:
            b.I("s_lshl_b32 s%d, s2, 2" % sT)
            b.I("s_add_u32 s%d, s%d, s%d" % (sT, sT, sW))
            b.I("s_lshl_b32 s%d, s%d, 8" % (sT, sT))
            b.I("s_add_u32 s%d, s%d, 0x%x" % (sT, sT, WS_STAMP))
            b.I("buffer_store_dword v%d, v%d, %s, s%d offen" % (vSTAMP, vL4, self.ws(), sT))
        b.label("L_end")
        b.I("s_endpgm")
        for t in self.cold:
            b.raw(t)

    def emit(self):
        self.body()
        head = """; @launch grid=(256,1,1) block=(256,1,1) lds=%d
; persistent fused kernel: 32 row groups (64 rows) x 8 column groups (generated by my own script)
.amdgcn_target "amdgcn-amd-amdhsa--gfx950"
.text
.globl %s_kernel
.p2align 8
.type %s_kernel,@function
%s_kernel:
""" % (LDS_BYTES, NAME, NAME, NAME)
        tail = """.section .rodata,"a"
.p2align 6
.amdhsa_kernel %s_kernel
  .amdhsa_next_free_vgpr 512
  .amdhsa_next_free_sgpr 102
  .amdhsa_accum_offset 256
  .amdhsa_group_segment_fixed_size 0
  .amdhsa_kernarg_size 72
  .amdhsa_user_sgpr_count 2
  .amdhsa_user_sgpr_kernarg_segment_ptr 1
  .amdhsa_system_sgpr_workgroup_id_x 1
.end_amdhsa_kernel
""" % NAME
        return head + self.b.text() + tail


if __name__ == "__main__":
    import argparse
    ap = argparse.ArgumentParser()
    ap.add_argument("-o", default="cdna_kernels/%s.s" % NAME)
    ap.add_argument("--diag", action="store_true")
    ap.add_argument("--sep", action="store_true")
    a = ap.parse_args()
    g = Gen(a.diag, a.sep)
    txt = g.emit()
    if a.diag:
        txt = txt.replace(".amdgcn_target", "; stamps: " + ",".join(g.stamp_names) + "\n.amdgcn_target", 1)
    open(a.o, "w").write(txt)
    print("instructions", g.b.nins, "nops", g.b.nops, file=sys.stderr)
```

```python
import sys
import os
sys.path.insert(0, os.path.dirname(os.path.abspath(__file__)))
from asmb import Builder, vr

NAME = "interleave_layers__linear_attn_block__dense_activation_silu__prompt"


def env(name, default):
    v = os.environ.get(name)
    return default if v is None else eval(v)


PKW = 107 * 1024
WS_FL = 0x380000
WS_EP = 0x390000
WS_R2 = 0x398000
WS_KV = 0x480000
NC = env('NC', 2)
KCS = env('KCS', 1344)
KVH = NC * KCS
KVL = 32 * KVH
KB0 = env('KB0', 0)
WS_ST = 0x400000
WS_O = 0x600000
WS_X = 0x800000
WS_H = 0xA00000
HSZ = 22 * 8192
WS_STAMP = 0x3000000
WS_SIZE = 0x3100000 if '--diag' in sys.argv else 0x1000000
OOB = 0x4000000 if '--diag' in sys.argv else 0x1000000
F_WO, F_W1, F_W2 = 0, 16, 64

L_RING = 65536
L_RQ = 106496
L_WQ = 81920
L_PACK = 131072
L_KVI = 147456
L_STA = 157696
L_EX = 158720
NR = env('NR', 8)
NSLOT = 20
LDS_BYTES = 163840

S_X, S_WQ, S_WO, S_W1, S_W2, S_OUT, S_DBG, S_WS = 4, 6, 8, 12, 14, 16, 18, 20
R_X, R_WQ, R_WS, R_OUT, R_PK = 24, 28, 32, 36, 44
sR1, sQ, sTC, sTAG, sEP = 3, 10, 11, 22, 23
sROT, sSTP, sSTC, sW1K = 40, 41, 42, 43
sRG, sC, sW, sFAST, sPK, sKV, sFL, sRG64, sRGH, sSTO = 48, 49, 50, 51, 52, 53, 54, 55, 56, 57
sH0 = 58
sSPIN = 61
sEPS = 62
sOUT = 63
sXS = 64
sM1, sM2, sM3, sDIAG = 68, 70, 72, 74
sT = 76
sKB = 88
sPKC, sXCC, sMYF, sW2K, sAB, sAO = 96, 97, 98, 99, 100, 101

vL16, vA1, vKVL, vDMA, vST = 1, 2, 3, 4, 5
vX0, vX1, vOW0, vOW1, vTR, vXS0, vXS1, vWS = 6, 7, 8, 9, 10, 11, 12, 13
vWQ = 13
vSB, vEX, vSWR, vOA = 8, 9, 10, 11
vFL, vL4, vSTAMP, vSTA, vSTQ, vC2 = 14, 15, 16, 17, 18, 19
vX = 20
vCSQ, vCSK, vCSV = 36, 40, 42
vCS1 = 44
vONE = 56
vACC = 60
vAF = 108
NAF = 10
vAB = 148
vT = 156
vPOS = 172
vZP, vSW, vDUM, vTCH, vPOLL, vDM2 = 176, 177, 178, 179, 180, 181
vK = 182
vS1, vS2 = 184, 188
vTQ = 195
vW1 = 192
SLOTS = [("a", 4 * i) for i in range(64)] + [("v", 196 + 4 * i) for i in range(15)]
PACE = env("PACE", 36)
FT = env("FTOUCH", 1)
WMIN = env("WMIN", 10)
AMIN = env("AMIN", 5)
RDSLACK = env("RDSLACK", 2)
SIDEMIN = env("SIDEMIN", 1)
COST = {"mfma": 16, "trans": 8, "ds": 4, "valu": 4, "perm": 4, "dpp": 4, "rdlane": 4, "wrlane": 4, "salu": 2, "vmem": 8}
K_L2E = "op_sel:[0,0] op_sel_hi:[1,0]"


def slot_r(s):
    return vr(s[1], 4, s[0])


def p2(r):
    return "v[%d:%d]" % (r, r + 1)


class Gen:
    def __init__(self, diag=False, sep=False):
        self.b = Builder()
        self.diag = diag
        self.sep = sep
        self.free = list(SLOTS)
        self.wq = []
        self.wslot = {}
        self.pk_cur = None
        self.nstamp = 0
        self.stamp_names = []
        self.aq = []
        self.atok = {}
        self.seq = 0
        self.consumed = -1
        self.mine = -1
        self.pub_mine = {}
        self.clock = 0
        self.last_bg = -1000
        self.bg_w = 0
        self.pace_w = 70
        self.in_bg = False
        self.npub = 0
        self.ncs = 0
        self.gstamp = False
        self.vclock = {}
        bI, bw = self.b.I, self.b.wait

        def I2(t):
            tok = bI(t)
            if tok and tok[0] == "vm":
                self.vclock[tok[1]] = self.clock
            return tok

        def w2(*toks, **kw):
            if os.environ.get("SLACK"):
                flat = []
                for t in toks:
                    if t is None:
                        continue
                    flat += t if isinstance(t, list) else [t]
                v = [i for k, i in flat if k == "vm" and i >= self.b.vm_done]
                if v:
                    d = self.clock - self.vclock.get(max(v), 0)
                    if d < int(os.environ["SLACK"]):
                        print("   slack %4d at clock %d (after %s)" % (d, self.clock, self.last_stamp), file=sys.stderr)
            return bw(*toks, **kw)
        self.b.I, self.b.wait = I2, w2
        self.last_stamp = ""
        self.flagged = set()
        self.cold = []
        self.slotted = False
        self.prepped = None
        self.wprep = []
        self.pinned = set()
        self.side = []
        self.side_rate = 2
        self.w_issued = 0
        self.w_need = 0
        self.w_cur = None
        self.w_index = {}
        self.wlead = env('WLEAD', 14)
        self.cur_seq = 0
        self.alead = env('ALEAD', 99)

    def I(self, t):
        tok = self.b.I(t)
        k = self.b.hists[0][-1].kind if self.b.hists and self.b.hists[0] else "salu"
        self.clock += COST.get(k, 4)
        if not self.in_bg and not self.slotted and k in ("mfma", "valu", "trans"):
            c = self.bg_pick()
            if c is not None and c[1]:
                self.bg_emit(c[0], True)
        return tok

    def side_step(self, n):
        self.in_bg = True
        done = 0
        while n > 0 and self.side:
            e = self.side[0]
            if isinstance(e, int):
                if e <= 1:
                    self.side.pop(0)
                else:
                    self.side[0] = e - 1
                break
            self.side.pop(0)
            if isinstance(e, str):
                self.b.I(e)
            else:
                e()
            n -= 1
            done += 1
        self.in_bg = False
        return done

    def side_flush(self):
        while self.side:
            self.side_step(1000)

    def bg_pick(self):
        a_ok = self.aq and self.aq[0].seq - NSLOT <= self.consumed
        w_ok = self.bg_w > 0 and self.wq and self.free
        same = w_ok and self.wq[0][0][:2] == self.w_cur
        el = self.clock - self.last_bg
        if self.prepped == "A" and a_ok:
            return "A", el >= PACE or self.aq[0].seq - self.cur_seq < AMIN
        if a_ok and getattr(self.aq[0], "urgent", False):
            return "A", True
        if same and self.w_issued - self.w_need < WMIN:
            return "W", True
        if a_ok and w_ok:
            a_lead = self.aq[0].seq - self.cur_seq
            if a_lead > self.alead or (same and self.w_issued - self.w_need < self.wlead and a_lead > 3):
                a_ok = False
        if a_ok:
            return "A", el >= PACE or self.aq[0].seq - self.cur_seq < AMIN
        if w_ok:
            return "W", el >= self.pace_w
        return None

    def bg_prep_list(self, kind):
        if kind == "A":
            return self.aq[0].prep
        grp = self.wq[0][1] // 4
        if self.pk_cur != grp and not os.environ.get("NOW"):
            self.pk_cur = grp
            self.wprep = ["s_add_u32 s%d, s%d, 0x%x" % (sPKC, sPK, grp * 4096)]
        return self.wprep

    def bg_emit(self, kind, inline):
        self.in_bg = True
        if kind == "A":
            self.a_pop()
        else:
            self.w_issue()
            self.bg_w -= 1
        self.last_bg = self.clock
        self.in_bg = False

    def a_pop(self):
        th = self.aq.pop(0)
        while th.prep:
            self.b.I(th.prep.pop(0))
        th()
        self.prepped = None

    def slot_fill(self, rd_lag, issue_read):
        c = self.bg_pick()
        if c is not None and c[1] and rd_lag <= RDSLACK and not self.bg_prep_list(c[0]):
            self.bg_emit(c[0], False)
            self.clock += 8
            return
        budget = 2
        if rd_lag > 0:
            issue_read()
            budget -= 1
            if rd_lag > 1:
                issue_read()
                budget -= 1
        if c is not None:
            pl = self.bg_prep_list(c[0])
            while budget > 0 and pl:
                self.b.I(pl.pop(0))
                budget -= 1
                if c[0] == "A":
                    self.prepped = "A"
        self.side_step(max(budget, SIDEMIN))

    def Inc(self, t):
        self.b.I(t)
        self.b.vm_issued -= 1

    def stamp(self, name):
        self.last_stamp = name
        if os.environ.get("WLOG"):
            print("%-8s clock %6d  wq left %3d next %s free %d aq %d" % (
                name, self.clock, len(self.wq), self.wq[0][0] if self.wq else None, len(self.free), len(self.aq)), file=sys.stderr)
        if not self.diag:
            return
        b = self.b
        k = self.nstamp
        self.nstamp += 1
        assert k < 62
        b.comment("stamp %d %s" % (k, name))
        b.I("s_memtime s[94:95]")
        b.wait(lg=0)
        b.I("v_writelane_b32 v%d, s94, %d" % (vSTAMP, k))
        if name in ("start", "end"):
            b.I("s_memrealtime s[94:95]")
            b.wait(lg=0)
            b.I("v_writelane_b32 v%d, s94, %d" % (vSTAMP, 62 if name == "start" else 63))
        self.stamp_names.append(name)

    def buf(self, kind, idx):
        base = {"O": WS_O if self.sep else WS_H, "X": WS_X, "H": WS_H}[kind]
        return base + (idx * 0x1000000 if self.sep else 0)

    def hstride(self, kind):
        return HSZ // 2 if self.rgs(kind) == sRGH else 32768

    def rgs(self, kind):
        return sRGH if kind == "H" or (kind == "O" and not self.sep) else sRG64

    def srd(self, r, ptr, size):
        I = self.b.I
        I("s_mov_b32 s%d, s%d" % (r, ptr))
        I("s_and_b32 s%d, s%d, 0xffff" % (r + 1, ptr + 1))
        I("s_mov_b32 s%d, 0x%x" % (r + 2, size))
        I("s_mov_b32 s%d, 0x20000" % (r + 3))

    def ws(self):
        return "s[%d:%d]" % (R_WS, R_WS + 3)

    def w_enqueue(self, name, layer, f0, n, order=None):
        for i in (range(n) if order is None else order):
            self.w_index[(name, layer, i)] = len(self.w_index)
            self.wq.append(((name, layer, i), f0 + i))

    def w_issue(self):
        key, f = self.wq.pop(0)
        s = self.free.pop(0)
        self.w_issued += 1
        if os.environ.get("NOW"):
            self.wslot[key] = (s, None)
            return
        grp = f // 4
        while self.wprep:
            self.b.I(self.wprep.pop(0))
        if self.pk_cur != grp:
            self.b.I("s_add_u32 s%d, s%d, 0x%x" % (sPKC, sPK, grp * 4096))
            self.pk_cur = grp
        va = vW1 + key[2] % 3 if key[0] == "w1" and env("SKIPW1", 1) else vL16
        if os.environ.get("FAKEW"):
            self.b.I("s_mov_b32 s%d, s%d" % (sPKC, sPK))
        tok = self.b.I("buffer_load_dwordx4 %s, v%d, %s, s%d offen offset:%d sc1%s" % (
            slot_r(s), va, self.ws(), sPKC, (f % 4) * 1024, " nt" if env("NT", lambda k: False)(key) else ""))
        self.wslot[key] = (s, tok)

    def w_burst(self, n):
        k = 0
        while k < n and self.wq and self.free:
            self.w_issue()
            k += 1
        self.last_bg = self.clock

    def w_get(self, key):
        self.w_need = max(self.w_need, self.w_index.get(key, 0))
        self.w_cur = key[:2]
        if key not in self.wslot:
            print("WARNING: late W load", key, file=sys.stderr)
        while key not in self.wslot:
            assert self.wq and self.free, "no free slot for %s" % (key,)
            self.w_issue()
        s, tok = self.wslot[key]
        self.b.wait(tok)
        return slot_r(s)

    def w_release(self, key):
        s, _ = self.wslot.pop(key)
        self.free.append(s)

    def stores2(self, texts, wt=False):
        b = self.b
        if wt and not FT:
            return [b.I(t + " sc1") for t in texts]
        ls, lj = b.newlabel("Lslow"), b.newlabel("Ljoin")
        b.I("s_cmp_eq_u32 s%d, 1" % sFAST)
        b.I("s_cbranch_scc0 %s" % ls)
        b.saved.pop(ls)
        toks = [b.I(t) for t in texts]
        b.raw(lj + ":")
        self.cold += [ls + ":"] + ["    " + t + " sc1" for t in texts] + ["    s_branch " + lj]
        return toks

    def pair_store(self, p, sreg, off):
        for k in range(2):
            self.b.I("v_permlane16_swap_b32 v%d, v%d" % (p + k, p + 2 + k))
        return "buffer_store_dwordx4 %s, v%d, %s, s%d offen offset:%d" % (vr(p, 4), vST, self.ws(), sreg, off)

    def spin_guard(self, lab_loop):
        b = self.b
        b.I("s_sub_u32 s%d, s%d, 1" % (sSPIN, sSPIN))
        b.I("s_cmp_lg_u32 s%d, 0" % sSPIN)
        b.I("s_cbranch_scc1 %s" % lab_loop)
        b.I("s_branch L_end")

    def new_pub(self, toks):
        self.npub += 1
        k = self.npub
        self.pub_mine[k] = self.mine

        def flag():
            b = self.b
            b.I("s_add_u32 s%d, s%d, %d" % (sT, sTAG, k))
            b.I("v_mov_b32 v%d, s%d" % (vC2, sT))
            b.wait(toks)
            b.I("s_mov_b64 exec, 1")
            self.stores2(["buffer_store_dword v%d, off, %s, s%d" % (vC2, self.ws(), sMYF)])
            b.I("s_mov_b64 exec, -1")
            self.flagged.add(k)
        return k, flag

    def poll_issue(self):
        return self.b.I("buffer_load_dword v%d, v%d, %s, s%d offen sc1" % (vPOLL, vFL, self.ws(), sFL))

    def poll_check(self, k, tok=None):
        b = self.b
        if k not in self.flagged:
            print("WARNING: side stream late for flag", k, file=sys.stderr)
        while k not in self.flagged:
            assert self.side, "flag %d never raised before its poll" % k
            self.side_step(1)
        lp, ld, lc = b.newlabel("Lpoll"), b.newlabel("Lpd"), b.newlabel("Lpc")
        b.I("s_add_u32 s%d, s%d, %d" % (sT, sTAG, k))
        if tok is not None:
            b.wait(tok)
            b.I("s_branch %s" % lc)
        b.label(lp)
        self.Inc("buffer_load_dword v%d, v%d, %s, s%d offen sc1" % (vPOLL, vFL, self.ws(), sFL))
        if tok is None:
            b.wait(vm=0)
        else:
            b.I("s_waitcnt vmcnt(0)")
        b.label(lc)
        b.I("v_subrev_u32 v%d, s%d, v%d" % (vPOLL, sT, vPOLL))
        b.I("v_cmp_gt_u32 vcc, %d, v%d" % (16 - k, vPOLL))
        b.I("s_cmp_eq_u64 vcc, exec")
        b.I("s_cbranch_scc1 %s" % ld)
        self.spin_guard(lp)
        b.label(ld)
        self.consumed = max(self.consumed, self.pub_mine[k])

    def queue_stats(self, hf, plan):
        b = self.b
        s0 = self.seq
        assert s0 % 2 == 0
        self.seq += 2
        for j in range(2):
            def th(j=j):
                assert s0 + 1 - NSLOT <= self.consumed
                self.atok.setdefault(s0, []).append(b.I(
                    "buffer_load_dwordx4 v%d, %s, s%d offen offset:%d sc1 lds" % (vL16, self.ws(), sAO, j * 1024)))
            th.seq = s0 + 1
            th.urgent = True
            th.prep = [] if j else ["s_add_u32 m0, s%d, 0x%x" % (sW2K, (s0 % NSLOT) * 4096),
                                    "s_add_u32 s%d, s%d, 0x%x" % (sAO, sSTC, hf * 8192)]
            plan.append(th)
        return s0

    def queue_half(self, kind, idx, hf, nds, plan, rot=False, ds0=0):
        b = self.b
        seqs = []
        base = self.buf(kind, idx) + hf * self.hstride(kind)
        rg = self.rgs(kind)
        assert self.seq % 2 == 0 and nds % 2 == 0
        for ds in range(ds0, ds0 + nds):
            sq = self.seq
            self.seq += 1
            seqs.append(sq)
            if rot:
                def th(sq=sq):
                    assert sq - NSLOT <= self.consumed, "ring slot busy"
                    self.atok[sq] = [b.I("buffer_load_dwordx4 v%d, %s, s%d offen sc1 lds" % (vDMA, self.ws(), sAO))]
                th.seq = sq
                if ds == 0:
                    th.prep = ["s_add_u32 s%d, s%d, 0x%x" % (sAB, rg, base), "s_lshl_b32 s%d, s%d, 12" % (sXS, sROT)]
                else:
                    th.prep = ["s_add_u32 s%d, s%d, 0x1000" % (sXS, sXS), "s_and_b32 s%d, s%d, 0x7fff" % (sXS, sXS)]
                th.prep += ["s_add_u32 m0, s%d, 0x%x" % (sW1K, (sq % NSLOT) * 4096), "s_add_u32 s%d, s%d, s%d" % (sAO, sAB, sXS)]
            else:
                s0 = sq & ~1

                def th(sq=sq, s0=s0):
                    assert s0 + 1 - NSLOT <= self.consumed, "ring slot busy"
                    tk = b.I("buffer_load_dwordx4 v%d, %s, s%d offen offset:%d sc1%s lds" % (
                        vDM2, self.ws(), sAO, (sq & 1) * 1024, " nt" if (kind, idx) in env("NTA", []) else ""))
                    if sq & 1:
                        self.atok[s0] = self.atok[s0 + 1] = [tk]
                th.seq = s0 + 1
                th.prep = [] if sq & 1 else ["s_add_u32 m0, s%d, 0x%x" % (sW2K, (sq % NSLOT) * 4096),
                                             "s_add_u32 s%d, s%d, 0x%x" % (sAO, rg, base + ds * 4096)]
            plan.append(th)
        return seqs

    def queue_both(self, kind, idx, nds, plan):
        out = ([], [])
        for d0 in range(0, nds, 2):
            for hf in range(2):
                out[hf].extend(self.queue_half(kind, idx, hf, 2, plan, ds0=d0))
        return out

    def a_burst(self, n):
        k = 0
        while k < n and self.aq and self.aq[0].seq - NSLOT <= self.consumed:
            self.a_pop()
            k += 1
        self.last_bg = self.clock

    def frag_addr(self, sq, r, h):
        off = (sq % NSLOT) * 4096 + r * 2048 + h * 1024
        return ((vL16, vA1)[off >> 16], off & 0xffff)

    def gemm_prep(self, items, groups=None, depth=8, hooks=None, pre=None, post=None, pairw=False, buf0=0):
        b = self.b
        hooks, pre, post = hooks or {}, pre or {}, post or {}
        n = len(items)
        toks = [None] * n
        grp_of = {}
        for gi, g in enumerate(groups or []):
            for sq in g:
                grp_of[sq] = gi
        opened = set()
        st = {"ip": 0}

        rem = [1 << 30] * (n + 1)
        for k in range(n - 1, -1, -1):
            rem[k] = min(rem[k + 1], items[k][2] if items[k][2] is not None else 1 << 30)

        def reg(k):
            return vr(vAF + 4 * ((k + buf0) % NAF), 4)

        def issue():
            k = st["ip"]
            a, off, sq, _ = items[k]
            if sq in grp_of and grp_of[sq] not in opened:
                gi = grp_of[sq]
                opened.add(gi)
                while any(s not in self.atok for s in groups[gi]):
                    self.a_pop()
                    self.last_bg = self.clock
                for f in pre.get(gi, []):
                    f()
                if self.gstamp:
                    self.stamp("g%d?" % gi)
                b.wait(*[self.atok[s] for s in groups[gi]])
                b.I("s_barrier")
                if self.gstamp:
                    self.stamp("g%d!" % gi)
                self.consumed = max(self.consumed, self.mine)
                for f in post.get(gi, []):
                    f()
            toks[k] = self.I("ds_read_b128 %s, v%d offset:%d" % (reg(k), a, off))
            st["ip"] += 1

        def prestart(m=None):
            while st["ip"] < min(depth if m is None else m, n):
                issue()

        def run():
            prestart()
            self.slotted = True
            for j in range(n):
                thunks = items[j][3](reg(j))
                while st["ip"] <= min(j + (1 if pairw else 0), n - 1):
                    issue()
                if pairw and j % 2 == 0 and j + 1 < st["ip"]:
                    b.wait(toks[j + 1])
                b.wait(toks[j])
                if items[j][2] is not None:
                    self.cur_seq = items[j][2]
                    lim = min(self.pinned) - 3 if self.pinned else 1 << 30
                    self.mine = max(self.mine, min(rem[j] - 1, lim))
                if not thunks and st["ip"] < min(n, j + 1 + depth):
                    issue()
                for th in thunks:
                    n0 = b.nins
                    th()
                    if b.nins > n0:
                        self.slot_fill(min(n, j + 1 + depth) - st["ip"], issue)
                for f in hooks.get(j, []):
                    f()
            self.slotted = False
            self.side_flush()
            sq = [it[2] for it in items if it[2] is not None]
            if sq:
                self.cur_seq = max(sq) + 1
                lim = min(self.pinned) - 3 if self.pinned else 1 << 30
                self.mine = max(self.mine, min(max(sq), lim))
        return prestart, run

    def gemm(self, *a, **k):
        self.gemm_prep(*a, **k)[1]()

    def mf(self, d, a, bb, c=None):
        dd = vr(d, 4)
        cc = dd if c is None else c
        return lambda: self.I("v_mfma_f32_16x16x32_bf16 %s, %s, %s, %s" % (dd, a, bb, cc))

    @staticmethod
    def split(seqs, sizes):
        out, k = [], 0
        for s in sizes:
            out.append(seqs[k:k + s])
            k += s
        assert k == len(seqs)
        return out

    def stats_stage1(self, s0, hf):
        b = self.b
        t = vS1
        tk = {}
        def landed():
            while len(self.atok.get(s0, [])) < 2:
                self.a_pop()
            b.wait(self.atok[s0])
        out = ["v_add_u32 v%d, 0x%x, v%d" % (vT, (s0 % NSLOT) * 4096, vSB), landed]
        for k in range(4):
            out.append(lambda k=k: tk.__setitem__(k, b.I("ds_read2st64_b32 %s, v%d offset0:%d offset1:%d" % (
                p2(t + 2 * k), vT, 2 * k, 2 * k + 1))))
        out += [6, lambda: b.wait(tk[3])]
        out += ["v_add_f32 v%d, v%d, v%d" % (t + k, t + k, t + 4 + k) for k in range(4)]
        out += ["v_add_f32 v%d, v%d, v%d" % (t + k, t + k, t + 2 + k) for k in range(2)]
        out += ["v_add_f32 v%d, v%d, v%d" % (t, t, t + 1)]
        out.append(lambda: tk.__setitem__("w", b.I("ds_write_b32 v%d, v%d offset:%d" % (vSW, t, hf * 1024))))

        def before_barrier():
            self.side_flush()
            b.wait(tk["w"])
        return out, before_barrier

    def stats_stage2(self, hf, scale, kv):
        b = self.b
        t = vS1
        tk = {}
        out = []
        for k in range(2):
            out.append(lambda k=k: tk.__setitem__(k, b.I("ds_read2st64_b32 %s, v%d offset0:%d offset1:%d" % (
                p2(t + 2 * k), vEX, hf * 4 + 2 * k, hf * 4 + 2 * k + 1))))
        a0, b0, a1, b1 = [vAB + 4 * hf + k for k in range(4)]
        out += [6, lambda: b.wait(tk[1]),
                "v_add_f32 v%d, v%d, v%d" % (t, t, t + 2), "v_add_f32 v%d, v%d, v%d" % (t + 1, t + 1, t + 3),
                "v_add_f32 v%d, v%d, v%d" % (t, t, t + 1), "v_mul_f32 v%d, 0x3b000000, v%d" % (t, t),
                "v_mov_b32 v%d, v%d" % (t + 1, t), 1,
                "v_permlane16_swap_b32 v%d, v%d" % (t, t + 1), 1,
                "v_fma_f32 v%d, -v%d, v%d, v%d" % (t + 1, t, t, t + 1), "v_max_f32 v%d, 0, v%d" % (t + 1, t + 1),
                "v_add_f32 v%d, 0x3727c5ac, v%d" % (t + 1, t + 1), "v_rsq_f32 v%d, v%d" % (a0, t + 1), 1]
        if scale:
            out.append("v_mul_f32 v%d, v%d, v%d" % (a0, a0, vK))
        out.append("v_mul_f32_e64 v%d, -v%d, v%d" % (b0, t, a0))
        if kv:
            def wr():
                b.I("s_mov_b32 exec_lo, 0xffff")
                b.I("s_mov_b32 exec_hi, 0xffff")
                b.I("ds_write_b32 v%d, v%d" % (vSWR, a0))
                b.I("ds_write_b32 v%d, v%d offset:128" % (vSWR, b0))
                b.I("s_mov_b64 exec, -1")
            out.append(wr)
        out += ["v_mov_b32 v%d, v%d" % (a1, a0), "v_mov_b32 v%d, v%d" % (b1, b0), 1,
                "v_permlane32_swap_b32 v%d, v%d" % (a0, a1), "v_permlane32_swap_b32 v%d, v%d" % (b0, b1)]
        return out

    def stats_hooks(self, s0, hf, scale, kv, j1, gi, hooks, pre, post):
        s1, bb = self.stats_stage1(s0, hf)
        hooks.setdefault(j1, []).append(lambda: self.side.extend(s1))
        pre.setdefault(gi, []).append(bb)
        post.setdefault(gi, []).append(lambda: self.side.extend(self.stats_stage2(hf, scale, kv)))

    def stats_startup(self):
        b = self.b
        I = b.I
        t = vT
        I("v_mul_f32 v%d, 0x3b000000, v%d" % (t + 1, vS1))
        I("v_cndmask_b32 v%d, v%d, v%d, s[%d:%d]" % (t, vS2, vS2 + 1, sM1, sM1 + 1))
        I("v_cndmask_b32 v%d, v%d, v%d, s[%d:%d]" % (t, t, vS2 + 2, sM2, sM2 + 1))
        I("v_cndmask_b32 v%d, v%d, v%d, s[%d:%d]" % (t, t, vS2 + 3, sM3, sM3 + 1))
        I("v_mul_f32 v%d, 0x3b000000, v%d" % (t, t))
        I("v_fma_f32 v%d, -v%d, v%d, v%d" % (t, t + 1, t + 1, t))
        I("v_max_f32 v%d, 0, v%d" % (t, t))
        I("v_add_f32 v%d, 0x3727c5ac, v%d" % (t, t))
        I("v_rsq_f32 v%d, v%d" % (t + 2, t))
        I("v_lshlrev_b32 v%d, 1, v%d" % (t + 4, vSW))
        I("v_mul_f32_e64 v%d, -v%d, v%d" % (t + 3, t + 1, t + 2))
        I("v_subrev_u32 v%d, 0x%x, v%d" % (t + 4, L_STA - 512, t + 4))
        I("s_mov_b64 exec, s[%d:%d]" % (sDIAG, sDIAG + 1))
        I("ds_write_b32 v%d, v%d" % (vSW, t + 2))
        I("ds_write_b32 v%d, v%d offset:256" % (vSW, t + 3))
        I("ds_write_b64 v%d, v[%d:%d]" % (t + 4, t + 2, t + 3))
        I("s_mov_b64 exec, -1")
        b.wait(lg=0)
        I("s_barrier")

    def phi_pairs(self, pairs):
        I = self.I
        for c0 in range(0, len(pairs), 4):
            grp = pairs[c0:c0 + 4]
            for k, (t, d) in enumerate(grp):
                I("v_pk_mul_f32 %s, %s, %s %s" % (p2(vT + 2 * k), p2(t), p2(vK), K_L2E))
            for k, (t, d) in enumerate(grp):
                I("v_exp_f32_e64 v%d, v%d clamp" % (vT + 2 * k, vT + 2 * k))
                I("v_max_f32 v%d, v%d, v%d" % (t, vK + 1, t))
                I("v_exp_f32_e64 v%d, v%d clamp" % (vT + 2 * k + 1, vT + 2 * k + 1))
                I("v_max_f32 v%d, v%d, v%d" % (t + 1, vK + 1, t + 1))
            for k, (t, d) in enumerate(grp):
                I("v_pk_add_f32 %s, %s, %s" % (p2(t), p2(t), p2(vT + 2 * k)))
            for k, (t, d) in enumerate(grp):
                I("v_cvt_pk_bf16_f32 v%d, v%d, v%d" % (d, t, t + 1))

    def kv_epilogue(self, hf, ra, rb):
        I = self.I
        K, V = vACC + 8 * hf, vACC + 16 + 8 * hf
        for j in range(4):
            I("v_pk_fma_f32 %s, %s, %s, %s op_sel:[0,0,1] op_sel_hi:[1,1,1]" % (p2(vT + 2 * j), p2(rb + 2 * j), p2(vCSK), p2(vK)))
            I("v_pk_mul_f32 %s, %s, %s" % (p2(vT + 8 + 2 * j), p2(rb + 2 * j), p2(vCSV)))
        for j in range(4):
            I("v_pk_fma_f32 %s, %s, %s, %s" % (p2(K + 2 * j), p2(ra + 2 * j), p2(K + 2 * j), p2(vT + 2 * j)))
            I("v_pk_fma_f32 %s, %s, %s, %s" % (p2(V + 2 * j), p2(ra + 2 * j), p2(V + 2 * j), p2(vT + 8 + 2 * j)))
        for j in range(4):
            I("v_cvt_pk_bf16_f32 v%d, v%d, v%d" % (V + j, V + 2 * j, V + 2 * j + 1))
        self.phi_pairs([(K + 2 * j, K + j) for j in range(4)])

    def startup(self):
        b = self.b
        I = b.I
        i_, g_, l3, l7, q0, tc = vT + 2, vT + 3, vT + 6, vT + 7, vT + 8, vT + 9
        if self.diag:
            I("s_memtime s[92:93]")
        I("s_cmp_ge_u32 s2, 256")
        I("s_cbranch_scc1 L_end")
        I("s_load_dwordx4 s[4:7], s[0:1], 0")
        I("s_load_dwordx2 s[20:21], s[0:1], 64")
        I("s_load_dwordx2 s[8:9], s[0:1], 16")
        I("s_load_dwordx4 s[12:15], s[0:1], 32")
        I("s_load_dwordx4 s[16:19], s[0:1], 48")
        I("s_getpc_b64 s[90:91]")
        b.label("L_pc")
        I("v_lshrrev_b32 v%d, 6, v0" % vT)
        I("v_and_b32 v0, 63, v0")
        I("v_readfirstlane_b32 s%d, v%d" % (sW, vT))
        I("s_lshr_b32 s%d, s2, 3" % (sT + 1))
        I("s_lshl_b32 s%d, s%d, 2" % (sT + 3, sT + 1))
        I("s_add_u32 s%d, s%d, s%d" % (sT + 3, sT + 3, sW))
        I("s_and_b32 s%d, s%d, 31" % (sT, sT + 3))
        I("s_lshl_b32 s%d, s%d, 11" % (sT, sT))
        I("v_lshlrev_b32 v%d, 7, v0" % vTCH)
        I("v_add_u32 v%d, s%d, v%d" % (vT, sT, vTCH))
        I("v_min_u32 v%d, L_end-L_pc, v%d" % (vT, vT))
        I("s_mov_b64 exec, 0xffff")
        I("global_load_dword v%d, v%d, s[90:91]" % (vDUM, vT))
        I("s_mov_b64 exec, -1")
        I("s_and_b32 s%d, s2, 7" % sROT)
        I("s_and_b32 s%d, s%d, 7" % (sC, sT + 1))
        I("s_lshr_b32 s%d, s%d, 3" % (sQ, sT + 1))
        I("s_lshl_b32 s%d, s%d, 2" % (sT, sROT))
        I("s_add_u32 s%d, s%d, s%d" % (sRG, sT, sQ))
        I("s_lshl_b32 s%d, s%d, 16" % (sRG64, sRG))
        I("s_lshl_b32 s%d, s%d, 11" % (sW2K, sW))
        I("v_lshrrev_b32 v%d, 4, v0" % g_)
        I("v_and_b32 v%d, 15, v0" % i_)
        tw, tx = vT + 12, vT + 13
        I("s_mul_i32 s%d, s%d, %d" % (sT + 2, sT + 3, 4 * 3072))
        I("v_lshlrev_b32 v%d, 10, v0" % tx)
        I("v_add_u32 v%d, s%d, v%d" % (tw, sT + 2, tx))
        I("s_lshl_b32 s%d, s%d, 18" % (sT + 2, sROT))
        I("s_lshl_b32 s%d, s%d, 11" % (sT, sT + 3))
        I("s_add_u32 s%d, s%d, s%d" % (sT, sT, sT + 2))
        I("v_add_u32 v%d, s%d, v%d" % (tx, sT, tx))
        I("v_lshrrev_b32 v%d, 3, v0" % l3)
        I("v_and_b32 v%d, 7, v0" % l7)
        I("v_xor_b32 v%d, v%d, v%d" % (vT + 4, l7, g_))
        I("v_lshlrev_b32 v%d, 4, v%d" % (vT + 4, vT + 4))
        I("v_lshl_add_u32 v%d, v%d, 10, v%d" % (vT + 4, l3, vT + 4))
        I("s_lshl_b32 s%d, s%d, 14" % (sT + 1, sW))
        I("v_add_u32 v%d, s%d, v%d" % (vXS0, sT + 1, vT + 4))
        I("v_xor_b32 v%d, 64, v%d" % (vXS1, vXS0))
        I("v_add_u32 v%d, 7168, v%d" % (vXS1, vXS1))
        I("v_and_b32 v%d, 1, v%d" % (vT + 4, g_))
        I("v_lshlrev_b32 v%d, 1, v%d" % (vT + 4, vT + 4))
        I("v_xor_b32 v%d, v%d, v%d" % (q0, l7, vT + 4))
        I("v_lshlrev_b32 v%d, 4, v%d" % (q0, q0))
        I("s_and_b32 s%d, s%d, 1" % (sT + 1, sW))
        I("s_lshl_b32 s%d, s%d, 6" % (sT + 1, sT + 1))
        I("v_xor_b32 v%d, s%d, v%d" % (vT + 4, sT + 1, q0))
        I("s_lshl_b32 s%d, s%d, 3" % (sT + 1, sW))
        I("v_add_u32 v%d, s%d, v%d" % (vT + 5, sT + 1, l3))
        I("v_mul_u32_u24 v%d, 3072, v%d" % (vT + 5, vT + 5))
        I("v_add_u32 v%d, v%d, v%d" % (vWS, vT + 4, vT + 5))
        sXO, sWO_, sRB = sAB, sAO, 93
        I("s_lshl_b32 s%d, s%d, 7" % (sWO_, sC))
        I("v_add_u32 v%d, s%d, v%d" % (vWS, sWO_, vWS))
        if self.diag:
            b.wait(lg=0)
            I("s_mov_b32 s91, s92")
        I("s_add_u32 s%d, s%d, 0x%x" % (sRB, sW2K, L_RING - 1024))
        I("s_lshl_b32 s%d, s%d, 7" % (sXO, sROT))
        I("s_mul_i32 s%d, s%d, %d" % (sWO_, sROT, 64 * 3072))
        if self.diag:
            I("v_mov_b32 v%d, 0" % vSTAMP)
        b.wait(lg=0)
        if self.diag:
            I("v_writelane_b32 v%d, s91, 61" % vSTAMP)
        self.stamp("start")
        I("s_add_u32 s88, s%d, 0x%x" % (S_WS, WS_EP))
        I("s_addc_u32 s89, s%d, 0" % (S_WS + 1))
        I("s_load_dword s%d, s[88:89], 0" % sEP)
        self.srd(R_WQ, S_WQ, 512 * 3072)
        I("s_add_u32 s%d, s%d, s%d" % (R_X, S_X, sRG64))
        I("s_addc_u32 s%d, s%d, 0" % (R_X + 1, S_X + 1))
        I("s_and_b32 s%d, s%d, 0xffff" % (R_X + 1, R_X + 1))
        I("s_mov_b32 s%d, 0x10000" % (R_X + 2))
        I("s_mov_b32 s%d, 0x20000" % (R_X + 3))
        tokA, tokW = {}, {}

        def issue_thunks(ks):
            th = []
            if ks % 2 == 0:
                ds = ks // 2
                tokA[ds] = []
                pre = ["s_add_u32 m0, s%d, 0x%x" % (sW2K, ds * 8192)]
                if ds:
                    pre += ["s_add_u32 s%d, s%d, 128" % (sXO, sXO), "s_and_b32 s%d, s%d, 0x380" % (sXO, sXO)]
                th.append((pre, lambda: tokA[ds].append(
                    I("buffer_load_dwordx4 v%d, s[%d:%d], s%d offen lds" % (vXS0, R_X, R_X + 3, sXO)))))
                th.append(([], lambda: tokA[ds].append(
                    I("buffer_load_dwordx4 v%d, s[%d:%d], s%d offen offset:1024 lds" % (vXS1, R_X, R_X + 3, sXO)))))
            tokW[ks] = []
            for p in range(2):
                pre = []
                if p == 0:
                    if ks:
                        pre.append("s_add_u32 s%d, s%d, %d" % (sWO_, sWO_, 32 * 3072))
                        if ks % 2 == 0:
                            pre += ["s_cmp_eq_u32 s%d, %d" % (sWO_, 512 * 3072), "s_cselect_b32 s%d, 0, s%d" % (sWO_, sWO_)]
                    pre.append("s_add_u32 m0, s%d, 0x%x" % (sRB, (ks % NR) * 8192))
                th.append((pre, lambda p=p: tokW[ks].append(I("buffer_load_dwordx4 v%d, s[%d:%d], s%d offen offset:%d lds" % (
                    vWS, R_WQ, R_WQ + 3, sWO_, (p + 1) * 1024)))))
            return th

        tokQ = []

        def rq_base(ks):
            return L_PACK + ks * 4096 if ks < 4 else L_RING + (ks - 4) * 4096

        def q_thunk(ks):
            pre = ["s_add_u32 s%d, s%d, %d" % (sWO_, sWO_, 32 * 3072)]
            if ks % 2 == 0:
                pre += ["s_cmp_eq_u32 s%d, %d" % (sWO_, 512 * 3072), "s_cselect_b32 s%d, 0, s%d" % (sWO_, sWO_)]
            pre.append("s_add_u32 m0, s%d, 0x%x" % (sW1K, rq_base(ks)))
            return (pre, lambda: tokQ.append(I("buffer_load_dwordx4 v%d, s[%d:%d], s%d offen lds" % (vWS, R_WQ, R_WQ + 3, sWO_))))
        self.tokQ, self.rq_base = tokQ, rq_base

        def issue_now(ks):
            for pre, th in issue_thunks(ks):
                for t in pre:
                    I(t)
                th()

        if env("T0", 1):
            self.srd(R_PK, S_X, 2048 * 1024)
            for ptr, srd, v, mask in ((S_WQ, R_WQ, tw, 0xfff), (S_X, R_PK, tx, 3)):
                I("s_sub_u32 s%d, 0x180, s%d" % (sT, ptr))
                I("s_and_b32 s%d, s%d, 0x380" % (sT, sT))
                I("s_mov_b64 exec, 0x%x" % mask)
                I("buffer_load_dword v%d, v%d, s[%d:%d], s%d offen" % (vDUM, v, srd, srd + 3, sT))
            I("s_mov_b64 exec, -1")
        NFIRST = env("NFIRST", 2)
        for ks in range(NFIRST):
            issue_now(ks)
        if env("EARLYP", 0):
            ptk = self.pack_load(l3, q0)
        self.stamp("first")
        I("s_getreg_b32 s%d, hwreg(HW_REG_XCC_ID, 0, 4)" % sXCC)
        I("s_mov_b32 s%d, 0x100000" % sSPIN)
        self.srd(R_WS, S_WS, WS_SIZE)
        self.srd(R_OUT, S_OUT, 2048 * 1024)
        I("v_lshlrev_b32 v%d, 4, v0" % vL16)
        I("v_lshlrev_b32 v%d, 2, v0" % vL4)
        I("s_lshl_b32 s%d, s%d, 10" % (sW1K, sW))
        I("s_lshl_b32 s%d, s%d, 2" % (sT, sC))
        I("s_add_u32 s%d, s%d, s%d" % (sT, sT, sW))
        I("s_mul_i32 s%d, s%d, %d" % (sKV, sT, KVH))
        I("s_add_u32 s%d, s%d, 0x%x" % (sKV, sKV, WS_KV + KB0))
        I("v_mov_b32 v%d, 0" % vC2)
        I("s_and_b32 s%d, s%d, 15" % (sT + 1, sRG))
        I("s_mul_i32 s%d, s%d, %d" % (sT + 1, sT + 1, KVH // 16))
        I("s_add_u32 s%d, s%d, s%d" % (sT + 1, sT + 1, sKV))
        I("s_lshr_b32 s%d, s%d, 4" % (sT + 2, sRG))
        I("s_mul_i32 s%d, s%d, %d" % (sT + 2, sT + 2, KVL))
        I("s_add_u32 s%d, s%d, s%d" % (sT + 1, sT + 1, sT + 2))
        I("v_mov_b32 v%d, 0" % vPOLL)
        I("v_mov_b32 v%d, 0" % (vPOLL + 1))
        I("v_lshlrev_b32 v%d, 3, v0" % (vT + 4))
        assert KVH % 128 == 0 and KVH // 128 <= 64
        mask = (1 << (KVH // 128)) - 1
        I("s_mov_b32 exec_lo, 0x%x" % (mask & 0xffffffff))
        I("s_mov_b32 exec_hi, 0x%x" % (mask >> 32))
        ztok = I("buffer_store_dwordx2 %s, v%d, %s, s%d offen sc1" % (p2(vPOLL), vT + 4, self.ws(), sT + 1))
        I("s_mov_b64 exec, -1")
        I("s_mul_i32 s%d, s%d, %d" % (sPK, sT, PKW))
        I("s_lshl_b32 s%d, s%d, 7" % (sFL, sRG))
        I("s_lshl_b32 s%d, s%d, 12" % (sR1, sC))
        I("s_add_u32 s%d, s%d, 0x%x" % (sR1, sR1, WS_R2))
        I("s_add_u32 s%d, s%d, 0x%x" % (sFL, sFL, WS_FL))
        I("s_lshl_b32 s%d, s%d, 2" % (sMYF, sT))
        I("s_add_u32 s%d, s%d, s%d" % (sMYF, sMYF, sFL))
        I("s_lshl_b32 s%d, s%d, 14" % (sSTC, sRG))
        I("s_add_u32 s%d, s%d, 0x%x" % (sSTC, sSTC, WS_ST))
        I("s_lshl_b32 s%d, s%d, 8" % (sSTP, sT))
        I("s_add_u32 s%d, s%d, s%d" % (sSTP, sSTP, sSTC))
        I("s_add_u32 s%d, s%d, s%d" % (sSTC, sSTC, sW2K))
        I("s_mul_i32 s%d, s%d, %d" % (sRGH, sRG, HSZ))
        I("s_lshl_b32 s%d, s%d, 12" % (sSTO, sC))
        I("s_lshl_b32 s%d, s%d, 9" % (sT + 1, sW))
        I("s_add_u32 s%d, s%d, s%d" % (sSTO, sSTO, sT + 1))
        I("s_lshl_b32 s%d, s%d, 5" % (sOUT, sT))
        I("s_mul_i32 s%d, s%d, 3" % (sT, sT))
        for t in range(3):
            I("s_add_u32 s%d, s%d, %d" % (sT + 1, sT, t))
            I("s_lshr_b32 s%d, s%d, 2" % (sT + 2, sT + 1))
            I("s_lshl_b32 s%d, s%d, 12" % (sT + 2, sT + 2))
            I("s_and_b32 s%d, s%d, 3" % (sT + 3, sT + 1))
            I("s_lshl_b32 s%d, s%d, 9" % (sT + 3, sT + 3))
            I("s_add_u32 s%d, s%d, s%d" % (sT + 2, sT + 2, sT + 3))
            I("s_add_u32 s%d, s%d, s%d" % (sT + 2, sT + 2, sRGH))
            I("s_cmp_lt_u32 s%d, 86" % (sT + 1))
            I("s_cselect_b32 s%d, s%d, 0x%x" % (sH0 + t, sT + 2, OOB))
            I("s_cselect_b32 s%d, 0, 0x%x" % (sT + 2, OOB))
            I("v_add_u32 v%d, s%d, v%d" % (vW1 + t, sT + 2, vL16))
        I("v_add_u32 v%d, 0x10000, v%d" % (vA1, vL16))
        I("v_add_u32 v%d, s%d, v%d" % (vDMA, sW1K, vL16))
        I("v_add_u32 v%d, s%d, v%d" % (vDM2, sW2K, vL16))
        I("v_and_b32 v%d, 0x7c, v%d" % (vFL, vL4))
        I("v_lshrrev_b32 v%d, 1, v%d" % (vT + 4, g_))
        I("v_lshlrev_b32 v%d, 8, v%d" % (vT + 4, vT + 4))
        I("v_lshl_add_u32 v%d, v%d, 4, v%d" % (vT + 4, i_, vT + 4))
        I("v_and_b32 v%d, 1, v%d" % (vT + 5, g_))
        I("v_lshl_add_u32 v%d, v%d, 11, v%d" % (vST, vT + 5, vT + 4))
        I("v_lshlrev_b32 v%d, 4, v%d" % (vSTA, g_))
        I("v_add_u32 v%d, 0x%x, v%d" % (vSTA, L_STA, vSTA))
        I("v_lshlrev_b32 v%d, 3, v%d" % (vSTQ, i_))
        I("v_add_u32 v%d, 0x%x, v%d" % (vSTQ, L_STA + 512, vSTQ))
        I("s_lshl_b32 s%d, s%d, 6" % (sT, sW))
        I("s_add_u32 s%d, s%d, 0x%x" % (sT, sT, L_STA))
        I("v_lshlrev_b32 v%d, 2, v%d" % (vSW, i_))
        I("v_add_u32 v%d, s%d, v%d" % (vSW, sT, vSW))
        I("v_lshrrev_b32 v%d, 3, v%d" % (vT + 4, i_))
        I("v_lshlrev_b32 v%d, 10, v%d" % (vT + 4, vT + 4))
        I("v_and_b32 v%d, 7, v%d" % (vT + 5, i_))
        I("v_lshl_add_u32 v%d, v%d, 7, v%d" % (vT + 4, vT + 5, vT + 4))
        I("v_lshrrev_b32 v%d, 1, v%d" % (vT + 5, i_))
        I("v_xor_b32 v%d, v%d, v%d" % (vT + 5, vT + 5, g_))
        I("v_lshl_add_u32 v%d, v%d, 4, v%d" % (vX0, vT + 5, vT + 4))
        I("v_xor_b32 v%d, 64, v%d" % (vX1, vX0))
        I("v_add_u32 v%d, s%d, v%d" % (vOW0, sW2K, vX0))
        I("v_add_u32 v%d, s%d, v%d" % (vOW1, sW2K, vX1))
        I("v_bfe_u32 v%d, v0, 2, 2" % (vT + 4))
        I("v_bfe_u32 v%d, v0, 3, 1" % (vT + 5))
        I("v_lshlrev_b32 v%d, 1, v%d" % (vT + 5, vT + 5))
        I("v_bfe_u32 v%d, v0, 4, 1" % (vT + 10))
        I("v_lshl_add_u32 v%d, v%d, 2, v%d" % (vT + 5, vT + 10, vT + 5))
        I("v_bfe_u32 v%d, v0, 1, 1" % (vT + 10))
        I("v_xor_b32 v%d, v%d, v%d" % (vT + 5, vT + 5, vT + 10))
        I("v_lshlrev_b32 v%d, 4, v%d" % (vT + 5, vT + 5))
        I("v_lshl_add_u32 v%d, v%d, 7, v%d" % (tc, vT + 4, vT + 5))
        I("v_and_b32 v%d, 1, v0" % (vT + 10))
        I("v_lshl_add_u32 v%d, v%d, 3, v%d" % (tc, vT + 10, tc))
        I("s_lshl_b32 s%d, s%d, 5" % (sT + 1, sW))
        I("v_xor_b32 v%d, s%d, v%d" % (vT + 4, sT + 1, tc))
        I("v_lshl_add_u32 v%d, v%d, 10, v%d" % (vTQ, g_, vT + 4))
        I("v_add_u32 v%d, 0x%x, v%d" % (vTQ, L_RING, vTQ))
        I("v_lshl_add_u32 v%d, v%d, 11, v%d" % (vT + 4, g_, vT + 4))
        I("v_add_u32 v%d, 0x%x, v%d" % (vTR, L_RING, vT + 4))
        for k in range(4):
            I("v_mov_b32 v%d, 0x3f803f80" % (vONE + k))
        I("v_mov_b32 v%d, 0x3fb8aa3b" % vK)
        I("v_mov_b32 v%d, 0x358637bd" % (vK + 1))
        I("s_mul_i32 s%d, s%d, 2560" % (sT, sW))
        I("s_add_u32 s%d, s%d, 0x%x" % (sT, sT, L_KVI))
        I("v_add_u32 v%d, s%d, v%d" % (vKVL, sT, vL4))
        for r in range(4):
            I("v_add_u32 v%d, %d, v0" % (vT + 4, 64 * r))
            I("v_mul_u32_u24 v%d, 4370, v%d" % (vT + 5, vT + 4))
            I("v_lshrrev_b32 v%d, 16, v%d" % (vT + 5, vT + 5))
            I("v_add_u32 v%d, v%d, v%d" % (vT + 4, vT + 4, vT + 5))
            I("v_lshlrev_b32 v%d, 2, v%d" % (vT + 4, vT + 4))
            I("v_add_u32 v%d, s%d, v%d" % (vPOS + r, sT, vT + 4))
        I("v_lshrrev_b32 v%d, 1, v%d" % (vT + 4, g_))
        I("v_add_u32 v%d, v%d, v%d" % (vT + 4, vT + 4, g_))
        I("v_lshlrev_b32 v%d, 4, v%d" % (vT + 4, vT + 4))
        I("s_add_u32 s%d, s%d, %d" % (sT, sT, 276 * 4))
        I("v_add_u32 v%d, s%d, v%d" % (vZP, sT, vT + 4))
        I("v_cmp_eq_u32 vcc, 15, v%d" % i_)
        I("v_cndmask_b32 v%d, 0, 1.0, vcc" % (vT + 4))
        b.wait(lg=0)
        for k in range(5):
            I("ds_write_b32 v%d, v%d offset:%d" % (vKVL, vT + 4, 256 * k))
        I("s_xor_b32 s%d, s%d, 0x80000000" % (sTAG, sEP))
        I("s_and_b32 s%d, s%d, 0xfffffff0" % (sTAG, sTAG))
        I("s_mov_b32 s%d, 0x358637bd" % sEPS)
        for r, val in ((sM1, 0x22222222), (sM2, 0x44444444), (sM3, 0x88888888)):
            I("s_mov_b32 s%d, 0x%x" % (r, val))
            I("s_mov_b32 s%d, 0x%x" % (r + 1, val))
        I("s_mov_b32 s%d, 0x00f0000f" % sDIAG)
        I("s_mov_b32 s%d, 0xf0000f00" % (sDIAG + 1))
        I("v_lshlrev_b32 v%d, 10, v%d" % (vT + 4, g_))
        I("s_lshl_b32 s%d, s%d, 12" % (sT, sW))
        I("v_add_u32 v%d, s%d, v%d" % (vT + 4, sT, vT + 4))
        for t in range(4):
            I("v_xor_b32 v%d, %d, v%d" % (vCS1 + 4 + t, 32 * t, tc))
            I("v_add_u32 v%d, v%d, v%d" % (vCS1 + 4 + t, vCS1 + 4 + t, vT + 4))
            I("v_add_u32 v%d, 0x%x, v%d" % (vCS1 + 4 + t, L_PACK, vCS1 + 4 + t))
        I("v_lshlrev_b32 v%d, 10, v%d" % (vT + 14, i_))
        I("v_lshl_add_u32 v%d, v%d, 3, v%d" % (vT + 14, g_, vT + 14))
        I("s_add_u32 s%d, s%d, s%d" % (sT, sTAG, sXCC))
        I("v_mov_b32 v%d, s%d" % (vT + 15, sT))
        for ks in range(NFIRST, env('NINIT', 5)):
            issue_now(ks)
        nxt = env('NINIT', 5)
        nq = 0
        if not env("EARLYP", 0):
            ptk = self.pack_load(l3, q0)
        I("s_mov_b64 exec, 1")
        I("buffer_load_dword v%d, off, %s, s%d sc1" % (vDUM, self.ws(), sFL))
        I("s_mov_b64 exec, -1")
        self.stamp("setup")

        tmp = [self.free.pop() for _ in range(6)]
        assert all(s[0] == "v" for s in tmp)
        cK, cV = tmp[4][1], tmp[5][1]
        res_toks = []
        KP, KANN, KI, KC = env("KP", 3), env("KANN", 8), env("KI", 14), env("KC", 99)
        for ks in range(17):
            fill, dma, nrd = [], [], 0
            if ks < 16:
                b.wait(tokW[ks], tokA[ks // 2])
                if ks == KANN:
                    b.wait(pst)
                I("s_barrier")
                if ks == 0:
                    self.stamp("w0")
                elif env("LSTAMP", 0):
                    self.stamp("it%d" % ks)
                if ks == KC:
                    self.r1_check()
                    self.bg_w = len(self.free) - 2 * (16 - ks) - 16
                    self.last_bg = self.clock
                if ks == KANN:
                    assert b.vm_done > pst[-1][1] and b.vm_done > ztok[1]
                    lx = b.newlabel("Lann")
                    I("s_cmp_lg_u32 s%d, 0" % sW)
                    I("s_cbranch_scc1 %s" % lx)
                    I("s_lshl_b32 s%d, s%d, 7" % (sT, sRG))
                    I("s_add_u32 s%d, s%d, s%d" % (sT, sT, sR1))
                    I("s_mov_b64 exec, 1")
                    self.Inc("buffer_store_dword v%d, off, %s, s%d sc1" % (vT + 15, self.ws(), sT))
                    I("s_mov_b64 exec, -1")
                    b.label(lx)
                for p in range(2):
                    s = self.free.pop(0)
                    self.wslot[("qkv", 0, 2 * ks + p)] = (s, None)
                    for hh in range(2):
                        fill.append(lambda s=s, hh=hh, p=p: I("ds_read_b64_tr_b16 %s, v%d offset:%d" % (
                            vr(s[1] + 2 * hh, 2, s[0]), vTR, (ks % NR) * 8192 + p * 1024 + hh * 512)))
                fb = vAF + (ks & 1) * 20
                ds, h = ks // 2, ks & 1
                for rt in range(4):
                    fill.append(lambda rt=rt: I("ds_read_b128 %s, v%d offset:%d" % (
                        vr(fb + 4 * rt, 4), (vX0, vX1)[h], ds * 8192 + rt * 2048)))
                fill.append(lambda: I("ds_read_b128 %s, v%d offset:%d" % (vr(fb + 16, 4), (vOW0, vOW1)[h], ds * 8192)))
                nrd = len(fill)
                k2 = 0
                while nxt < min(16, ks + NR) and k2 < 2:
                    dma += issue_thunks(nxt)
                    nxt += 1
                    k2 += 1
                if nxt == 16 and not dma and ks > KP + 1:
                    while nq < 16 and len(dma) < env("QPER", 3) and (nq < 4 or 8 + (nq - 4) // 2 < ks):
                        dma.append(q_thunk(nq))
                        nq += 1
                if ks == KI:
                    fill.append(self.r1_issue)
                if ks == env("KOX", 15) and FT:
                    def tch():
                        self.touch_ox(0)
                        I("v_and_b32 v%d, 1, v0" % vT)
                        I("v_lshrrev_b32 v%d, 1, v0" % (vT + 1))
                        I("v_lshlrev_b32 v%d, 13, v%d" % (vT + 1, vT + 1))
                        I("v_lshl_add_u32 v%d, v%d, 7, v%d" % (vT + 5, vT, vT + 1))
                        I("s_mov_b64 exec, 15")
                        I("buffer_load_dword v%d, v%d, %s, s%d offen sc1" % (vDUM, vT + 5, self.ws(), sSTP))
                        I("s_mov_b64 exec, -1")
                    fill.append(tch)
                if ks == KP:
                    def prd():
                        b.wait(ptk)
                        for t in range(4):
                            for hh in range(2):
                                I("ds_read_b64_tr_b16 %s, v%d offset:%d" % (p2(tmp[t][1] + 2 * hh), vCS1 + 4 + t, hh * 512))
                    fill.append(prd)
            mfs = []
            if ks >= 1:
                k1 = ks - 1
                fb1 = vAF + (k1 & 1) * 20
                c0 = "0" if k1 == 0 else None
                wk, wv = [slot_r(self.wslot[("qkv", 0, k)][0]) for k in (2 * k1, 2 * k1 + 1)]
                one = vr(vONE, 4)
                for rt in range(4):
                    mfs.append(self.mf(vACC + 4 * rt, vr(fb1 + 4 * rt, 4), wk, c0))
                    mfs.append(self.mf(vACC + 16 + 4 * rt, vr(fb1 + 4 * rt, 4), wv, c0))
                own = vr(fb1 + 16, 4)
                mfs += [self.mf(vS1, one, own, c0), self.mf(vS2, own, own, c0),
                        self.mf(cK, one, wk, c0), self.mf(cV, one, wv, c0)]
            rds, extra = fill[:nrd], fill[nrd:]
            for _ in range(min(3, len(rds))):
                rds.pop(0)()
            while mfs:
                mfs.pop(0)()
                if rds:
                    for _ in range(min(2, len(rds))):
                        rds.pop(0)()
                    if len(rds) <= 2 and dma and dma[0][0]:
                        I(dma[0][0].pop(0))
                elif dma:
                    if dma[0][0]:
                        while dma[0][0]:
                            I(dma[0][0].pop(0))
                    else:
                        dma.pop(0)[1]()
                elif extra:
                    extra.pop(0)()
            for f in rds:
                f()
            for pre, th in dma:
                for t in pre:
                    I(t)
                th()
            for f in extra:
                f()
            b.wait(lg=0)
            if ks == KP:
                pst = [I("buffer_store_dwordx4 %s, v%d, %s, s%d offen sc1" % (slot_r(tmp[t]), vL16, self.ws(), 80 + t))
                       for t in range(4)]
        while nq < 16:
            assert nq < 4 or 8 + (nq - 4) // 2 < 15
            pre, th = q_thunk(nq)
            for t in pre:
                I(t)
            th()
            nq += 1
        I("s_sub_u32 s%d, s%d, s%d" % (sT, sC, sROT))
        I("s_and_b32 s%d, s%d, 7" % (sT, sT))
        I("s_lshl_b32 s%d, s%d, 13" % (sT, sT))
        I("v_lshrrev_b32 v%d, 4, v0" % vT)
        I("v_lshrrev_b32 v%d, 5, v0" % (vT + 1))
        I("v_xor_b32 v%d, v%d, v%d" % (vT + 1, vT + 1, vT))
        I("s_lshl_b32 s%d, s%d, 1" % (sT + 1, sW))
        I("v_xor_b32 v%d, s%d, v%d" % (vT + 1, sT + 1, vT + 1))
        I("v_lshlrev_b32 v%d, 4, v%d" % (vT + 1, vT + 1))
        I("v_xor_b32 v%d, v%d, v%d" % (vT + 1, vT + 1, vX0))
        I("v_and_b32 v%d, 1, v%d" % (vT, vT))
        I("v_lshl_add_u32 v%d, v%d, 3, v%d" % (vT + 1, vT, vT + 1))
        I("v_add_u32 v%d, s%d, v%d" % (vT + 1, sT, vT + 1))
        res = [I("ds_read_b64 %s, v%d offset:%d" % (p2(vS1 + 8 + 0) if False else p2(vACC + 32 + 2 * rt), vT + 1, rt * 2048)) for rt in range(4)]
        I("v_mov_b32 v%d, v%d" % (vOA, vT + 14))
        self.bg_w = 0
        self.stamp("kvpass")
        if KC > 16:
            self.r1_check()
        self.stats_startup()
        t1 = []
        for rt in range(4):
            t1.append(I("ds_read_b128 %s, v%d offset:%d" % (vr(vAF + 4 * rt, 4), vSTA, rt * 64)))
            t1.append(I("ds_read_b128 %s, v%d offset:%d" % (vr(vAF + 16 + 4 * rt, 4), vSTA, 256 + rt * 64)))
        for rt in range(4):
            t1.append(I("ds_read_b64 %s, v%d offset:%d" % (p2(vAB + 2 * rt), vSTQ, rt * 128)))
        for k in range(2):
            I("v_mov_b32 v%d, v%d" % (vCSK + k, cK))
            I("v_mov_b32 v%d, v%d" % (vCSV + k, cV))
        self.free += tmp
        I("v_add_u32 v%d, s%d, v%d" % (vSB, sW2K, vL4))
        I("v_add_u32 v%d, 0x%x, v%d" % (vEX, L_EX, vL4))
        I("s_lshl_b32 s%d, s%d, 8" % (sT, sW))
        I("v_add_u32 v%d, s%d, v%d" % (vSW, sT, vEX))
        I("v_and_b32 v%d, 15, v0" % vT)
        I("v_lshrrev_b32 v%d, 5, v0" % (vT + 1))
        I("v_lshlrev_b32 v%d, 6, v%d" % (vT + 1, vT + 1))
        I("v_lshl_add_u32 v%d, v%d, 2, v%d" % (vSWR, vT, vT + 1))
        I("s_add_u32 s%d, s%d, 0x%x" % (sT, sT, L_STA))
        I("v_add_u32 v%d, s%d, v%d" % (vSWR, sT, vSWR))
        for rt in range(4):
            for k in range(2):
                s = vACC + 32 + 2 * rt + k
                I("v_lshlrev_b32 v%d, 16, v%d" % (vX + 4 * rt + 2 * k, s))
                I("v_and_b32 v%d, 0xffff0000, v%d" % (vX + 4 * rt + 2 * k + 1, s))
        self.qslots = [self.free.pop(0) for _ in range(16)]
        self.bg_w = env("W_KVE", 14)
        b.wait(t1)
        I("s_lshl_b32 s%d, s%d, 8" % (sT, sW))
        I("v_add_u32 v%d, s%d, v%d" % (vSTA, sT, vSTA))
        for hf in range(2):
            self.kv_epilogue(hf, vAF + 8 * hf, vAF + 16 + 8 * hf)

    def pack_load(self, l3, q0):
        b = self.b
        I = b.I
        dst = 80
        uid, src, strd = sT, sT + 1, sT + 2
        I("s_lshl_b32 s%d, s%d, 2" % (uid, sRG))
        I("s_add_u32 s%d, s%d, s%d" % (uid, uid, sW))
        lw1, lw2, lnone, lgo = [b.newlabel("Lpk") for _ in range(4)]
        I("s_mul_i32 s88, s%d, %d" % (sC, 4 * PKW))
        I("s_mov_b32 s%d, 0x20000" % (R_PK + 3))

        def setsrd(ptr, size, stride):
            I("s_mov_b32 s%d, s%d" % (R_PK, ptr))
            I("s_and_b32 s%d, s%d, 0xffff" % (R_PK + 1, ptr + 1))
            I("s_mov_b32 s%d, %d" % (R_PK + 2, size))
            I("s_movk_i32 s%d, %d" % (strd, stride))

        def simple(f0):
            I("s_lshl_b32 s%d, s%d, 15" % (src, uid))
            I("s_lshl_b32 s89, s%d, 7" % sC)
            I("s_add_u32 s%d, s%d, s89" % (src, src))
            I("s_add_u32 s89, s%d, %d" % (uid, f0))
            I("s_lshl_b32 s89, s89, 10")
            I("s_add_u32 s88, s88, s89")
            for t in range(4):
                I("s_add_u32 s%d, s88, %d" % (dst + t, t * PKW))
            I("s_branch %s" % lgo)

        I("s_cmp_ge_u32 s%d, 16" % uid)
        I("s_cbranch_scc1 %s" % lw1)
        setsrd(S_WO, 512 * 1024, 1024)
        simple(F_WO)
        b.label(lw1)
        I("s_cmp_ge_u32 s%d, 64" % uid)
        I("s_cbranch_scc1 %s" % lw2)
        I("s_sub_u32 s%d, s%d, 16" % (uid, uid))
        I("s_mul_i32 s89, s%d, 43" % uid)
        I("s_lshr_b32 s89, s89, 7")
        I("s_mul_i32 s92, s89, 3")
        I("s_sub_u32 s92, s%d, s92" % uid)
        setsrd(S_W1, 512 * 2752, 2752)
        I("s_mul_i32 s%d, s89, %d" % (src, 32 * 2752))
        I("s_mul_i32 s79, s%d, 384" % sC)
        I("s_add_u32 s%d, s%d, s79" % (src, src))
        I("s_lshl_b32 s79, s92, 7")
        I("s_add_u32 s%d, s%d, s79" % (src, src))
        I("s_mul_i32 s89, s89, 3072")
        I("s_add_u32 s88, s88, s89")
        I("s_add_u32 s88, s88, %d" % (F_W1 * 1024))
        for t in range(4):
            I("s_lshl_b32 s79, s92, 2")
            I("s_add_u32 s79, s79, %d" % t)
            I("s_mul_i32 s89, s79, 43")
            I("s_lshr_b32 s89, s89, 7")
            I("s_mul_i32 s%d, s89, %d" % (dst + t, PKW - 3072))
            I("s_lshl_b32 s79, s79, 10")
            I("s_add_u32 s%d, s%d, s79" % (dst + t, dst + t))
            I("s_add_u32 s%d, s%d, s88" % (dst + t, dst + t))
        I("s_mul_i32 s79, s%d, 3" % sC)
        I("s_add_u32 s79, s79, s92")
        I("s_cmp_ge_u32 s79, 22")
        I("s_cbranch_scc1 %s" % lnone)
        I("s_branch %s" % lgo)
        b.label(lw2)
        I("s_cmp_ge_u32 s%d, 107" % uid)
        I("s_cbranch_scc1 %s" % lnone)
        I("s_sub_u32 s%d, s%d, 64" % (uid, uid))
        setsrd(S_W2, 1376 * 1024, 1024)
        simple(F_W2)
        b.label(lnone)
        setsrd(S_WQ, 0, 1024)
        I("s_mov_b32 s%d, 0" % src)
        for t in range(4):
            I("s_mov_b32 s%d, 0x%x" % (dst + t, OOB))
        b.label(lgo)
        I("v_mul_lo_u32 v%d, v%d, s%d" % (vT + 4, l3, strd))
        I("v_add_u32 v%d, v%d, v%d" % (vT + 10, vT + 4, q0))
        I("v_xor_b32 v%d, 64, v%d" % (vT + 5, q0))
        I("v_add_u32 v%d, v%d, v%d" % (vT + 11, vT + 4, vT + 5))
        I("s_lshl_b32 s%d, s%d, 3" % (strd, strd))
        I("s_lshl_b32 s89, s%d, 12" % sW)
        I("s_add_u32 m0, s89, 0x%x" % L_PACK)
        toks = []
        for q in range(4):
            toks.append(I("buffer_load_dwordx4 v%d, s[%d:%d], s%d offen lds" % (vT + 10 + (q & 1), R_PK, R_PK + 3, src)))
            if q < 3:
                I("s_add_u32 s%d, s%d, s%d" % (src, src, strd))
                I("s_add_u32 m0, m0, 1024")
        return toks

    def r1_issue(self):
        I = self.b.I
        a = vCS1 + 2
        I("v_and_b32 v%d, 7, v0" % a)
        I("v_subrev_u32 v%d, s%d, v%d" % (a, sC, a))
        I("v_lshlrev_b32 v%d, 12, v%d" % (a, a))
        I("s_lshl_b32 s%d, s%d, 7" % (sT, sRG))
        I("s_add_u32 s%d, s%d, s%d" % (sT, sT, sR1))
        I("v_add_u32 v%d, s%d, v%d" % (a, sT, a))
        I("v_add_u32 v%d, s%d, v%d" % (vT + 5, sR1, vTCH))
        I("v_cmp_gt_u32 vcc, 32, v0")
        I("v_cndmask_b32 v%d, v%d, v%d, vcc" % (a, a, vT + 5))
        self.r1_tok = I("buffer_load_dword v%d, v%d, %s, 0 offen sc1" % (vPOLL, a, self.ws()))

    def r1_check(self):
        b = self.b
        I = b.I
        lp, ld, lc = b.newlabel("Ltag"), b.newlabel("Ltagd"), b.newlabel("Ltagc")
        b.wait(self.r1_tok)
        I("s_branch %s" % lc)
        b.label(lp)
        self.Inc("buffer_load_dword v%d, v%d, %s, 0 offen sc1" % (vPOLL, vCS1 + 2, self.ws()))
        I("s_waitcnt vmcnt(0)")
        b.label(lc)
        I("v_subrev_u32 v%d, s%d, v%d" % (vPOLL, sTAG, vPOLL))
        I("v_cmp_gt_u32 vcc, 16, v%d" % vPOLL)
        I("s_cmp_eq_u64 vcc, exec")
        I("s_cbranch_scc1 %s" % ld)
        self.spin_guard(lp)
        b.label(ld)
        I("v_cmp_eq_u32 vcc, s%d, v%d" % (sXCC, vPOLL))
        I("s_cmp_eq_u32 vcc_hi, -1")
        I("s_cselect_b32 s%d, 1, 0" % sFAST)

    def touch_w(self, f0, m):
        I = self.b.I
        I("s_mul_i32 s%d, s%d, %d" % (sTC, sQ, m * 1024))
        I("s_add_u32 s%d, s%d, s%d" % (sTC, sTC, sPK))
        I("s_add_u32 s%d, s%d, %d" % (sTC, sTC, f0 * 1024))
        mask = (1 << (8 * m)) - 1
        I("s_mov_b32 exec_lo, 0x%x" % (mask & 0xffffffff))
        I("s_mov_b32 exec_hi, 0x%x" % (mask >> 32))
        I("buffer_load_dword v%d, v%d, %s, s%d offen sc1" % (vDUM, vTCH, self.ws(), sTC))
        I("s_mov_b64 exec, -1")

    def touch_ox(self, layer):
        I = self.b.I
        I("s_and_b32 s%d, s%d, 1" % (sT + 2, sW))
        I("s_lshl_b32 s%d, s%d, 15" % (sT, sT + 2))
        I("s_add_u32 s%d, s%d, s%d" % (sT, sT, sRG64))
        I("s_add_u32 s%d, s%d, 0x%x" % (sT, sT, self.buf("X", 2 * layer)))
        I("s_mul_i32 s%d, s%d, %d" % (sT + 1, sT + 2, self.hstride("O")))
        I("s_add_u32 s%d, s%d, s%d" % (sT + 1, sT + 1, self.rgs("O")))
        I("s_add_u32 s%d, s%d, 0x%x" % (sT + 1, sT + 1, self.buf("O", layer)))
        I("s_bitcmp1_b32 s%d, 1" % sW)
        I("s_cselect_b32 s%d, s%d, s%d" % (sT, sT, sT + 1))
        I("s_lshl_b32 s%d, s%d, 12" % (sT + 1, sC))
        I("s_add_u32 s%d, s%d, s%d" % (sT, sT, sT + 1))
        I("s_mov_b32 exec_hi, 0")
        I("buffer_load_dword v%d, v%d, %s, s%d offen sc1" % (vDUM, vTCH, self.ws(), sT))
        I("s_mov_b32 exec_hi, -1")

    def touch_h(self, layer):
        I = self.b.I
        I("s_lshr_b32 s%d, s%d, 1" % (sT + 1, sW))
        I("s_mul_i32 s%d, s%d, %d" % (sT + 1, sT + 1, HSZ // 2 - 12288))
        I("s_mul_i32 s%d, s%d, 6144" % (sT + 2, sW))
        I("s_add_u32 s%d, s%d, s%d" % (sT + 1, sT + 1, sT + 2))
        I("s_mul_i32 s%d, s%d, 12288" % (sT + 2, sC))
        I("s_add_u32 s%d, s%d, s%d" % (sT + 1, sT + 1, sT + 2))
        I("s_add_u32 s%d, s%d, s%d" % (sT + 1, sT + 1, sRGH))
        I("s_add_u32 s%d, s%d, 0x%x" % (sT + 1, sT + 1, self.buf("H", layer)))
        I("s_cmp_lt_u32 s%d, 7" % sC)
        I("s_cselect_b32 s%d, s%d, 0x%x" % (sT + 1, sT + 1, OOB))
        I("s_mov_b32 exec_hi, 0xffff")
        I("buffer_load_dword v%d, v%d, %s, s%d offen sc1" % (vDUM, vTCH, self.ws(), sT + 1))
        I("s_mov_b32 exec_hi, -1")

    def kv_items(self, hf, seqs):
        items = []
        for ks in range(16):
            c0 = "0" if ks == 0 else None
            for r in range(2):
                def mfs(fr, ks=ks, r=r, c0=c0):
                    kk, kv_ = ("qkv", 0, 2 * ks), ("qkv", 0, 2 * ks + 1)
                    th = [self.mf(vACC + 8 * hf + 4 * r, fr, self.w_get(kk), c0),
                          self.mf(vACC + 16 + 8 * hf + 4 * r, fr, self.w_get(kv_), c0)]
                    if hf == 1 and r == 1:
                        th.append(lambda: (self.w_release(kk), self.w_release(kv_)))
                    return th
                a, off = self.frag_addr(seqs[ks // 2], r, ks & 1)
                items.append((a, off, seqs[ks // 2], mfs))
        self.pinned.update(seqs)
        return items

    def kv_finish(self, hf):
        b = self.b
        rd = [b.I("ds_read_b128 %s, v%d offset:%d" % (vr(vAF + 4 * k, 4), vSTA, (k & 1) * 64 + (k >> 1) * 128)) for k in range(4)]
        b.wait(rd)
        self.kv_epilogue(hf, vAF, vAF + 8)

    def attention(self, layer, xseqs):
        b = self.b
        I = self.I
        KVD, ZD = vS1, vS2
        one = vr(vONE, 4)
        self.bg_w = 0
        for p in range(2):
            c0 = "0" if p == 0 else None
            self.mf(KVD, vr(vACC + 8 * p, 4), vr(vACC + 16 + 8 * p, 4), c0)()
            self.mf(ZD, vr(vACC + 8 * p, 4), one, c0)()
        b.I("s_add_u32 s%d, s%d, %d" % (sKB, sKV, layer * KVL))
        b.I("s_and_b32 s%d, s%d, %d" % (sKB + 1, sRG, NC - 1))
        b.I("s_mul_i32 s%d, s%d, %d" % (sKB + 1, sKB + 1, KCS))
        b.I("s_add_u32 s%d, s%d, s%d" % (sKB + 1, sKB + 1, sKB))
        for r in range(4):
            b.I("ds_write_b32 v%d, v%d" % (vPOS + r, KVD + r))
        b.I("s_mov_b32 exec_lo, 0x00010001")
        b.I("s_mov_b32 exec_hi, 0x00010001")
        b.I("ds_write_b128 v%d, %s" % (vZP, vr(ZD, 4)))
        b.I("s_mov_b64 exec, -1")
        rd = [b.I("ds_read_b32 v%d, v%d offset:%d" % (vT + k, vKVL, 256 * k)) for k in range(5)]
        for k in range(5):
            b.wait(rd[k])
            if k == 4:
                b.I("s_mov_b32 exec_hi, 0xffff")
            b.I("buffer_atomic_add_f32 v%d, v%d, %s, s%d offen offset:%d" % (vT + k, vL4, self.ws(), sKB + 1, k * 256))
        b.I("s_mov_b64 exec, -1")
        self.stamp("atom")
        if layer:
            self.touch_ox(layer)
        else:
            b.wait(self.tokQ)
            b.I("s_barrier")
            for ks in range(16):
                s = self.qslots[ks]
                self.wslot[("qkv", 0, 32 + ks)] = (s, None)
                for hh in range(2):
                    off = self.rq_base(ks) - L_RING + hh * 512
                    a = vTQ
                    if off > 65535:
                        if ks == 0 and hh == 0:
                            b.I("v_add_u32 v%d, 0x10000, v%d" % (vT + 6, vTQ))
                        a, off = vT + 6, off - 65536
                    b.I("ds_read_b64_tr_b16 %s, v%d offset:%d" % (vr(s[1] + 2 * hh, 2, s[0]), a, off))
            b.wait(lg=0)
            b.I("s_barrier")
        self.w_burst(env("W_AT", [0, 0])[layer])
        self.last_bg = self.clock
        self.bg_w = env("W_Q", [99, 20])[layer]
        items = []
        for ks in range(16):
            ds, h = ks // 2, ks & 1
            c0 = "0" if ks == 0 else None
            if layer:
                def keep(fr):
                    self.wq_reg = fr
                    return []
                items.append((vWQ, ks * 1024, None, keep))
            for rt in range(4):
                def mfs(fr, ks=ks, rt=rt, c0=c0):
                    w = self.w_get(("qkv", 0, 32 + ks)) if layer == 0 else self.wq_reg
                    th = [self.mf(vACC + 4 * rt, w, fr, c0)]
                    if layer == 0 and rt == 0:
                        th.append(self.mf(vCSQ, w, one, c0))
                    return th
                if layer == 0:
                    items.append(((vX0, vX1)[h], ds * 8192 + rt * 2048, None, mfs))
                else:
                    a, off = self.frag_addr(xseqs[rt >> 1][ds], rt & 1, h)
                    items.append((a, off, None, mfs))
        self.gemm(items, None, 9 if layer == 0 else 5)
        self.pinned = set()
        self.mine = self.seq - 1
        if layer == 0 and env('PARKQ', 1):
            self.park_wq()
        PQ = vACC + 16
        for rt in range(4):
            ab = vAB + 2 * rt
            for r in (0, 2):
                u = vT + 2 * ((rt * 2 + r // 2) % 8)
                I("v_pk_fma_f32 %s, %s, %s, %s op_sel:[0,1,1] op_sel_hi:[1,1,1]" % (p2(u), p2(vCSQ + r), p2(ab), p2(vK)))
        for rt in range(4):
            ab = vAB + 2 * rt
            for r in (0, 2):
                q_ = vACC + 4 * rt + r
                u = vT + 2 * ((rt * 2 + r // 2) % 8)
                I("v_pk_fma_f32 %s, %s, %s, %s op_sel:[0,0,0] op_sel_hi:[1,0,1]" % (p2(q_), p2(q_), p2(ab), p2(u)))
        self.phi_pairs([(vACC + 4 * rt + r, PQ + 2 * rt + r // 2) for rt in range(4) for r in (0, 2)])
        self.stamp("qpass")
        self.bg_w = 0
        self.w_burst(env("W_S1", [16, 0])[layer])
        b.I("v_add_u32 v%d, 0x400, v%d" % (vC2, vL16))
        b.I("v_cmp_gt_u32 vcc, 12, v0")
        b.I("v_mov_b32 v%d, 0x%x" % (vT, OOB))
        b.I("v_cndmask_b32 v%d, v%d, v%d, vcc" % (vC2, vT, vC2))
        b.I("s_add_u32 s%d, s%d, s%d" % (sT + 6, self.rgs("O"), sSTO))
        b.I("s_add_u32 s%d, s%d, 0x%x" % (sT + 6, sT + 6, self.buf("O", layer)))
        b.I("s_add_u32 s%d, s%d, %d" % (sT + 7, sT + 6, self.hstride("O")))
        lp, ld = b.newlabel("Lkv"), b.newlabel("Lkvd")
        b.label(lp)
        dst = [(vT, vT + 8), (vT + 4, vT + 12), (vAF, vAF + 4), (vAF + 8, vAF + 12)]
        for c in range(NC):
            b.I("buffer_load_dwordx4 %s, v%d, %s, s%d offen offset:%d sc1" % (vr(dst[c][0], 4), vL16, self.ws(), sKB, c * KCS))
        for c in range(NC):
            b.I("buffer_load_dwordx4 %s, v%d, %s, s%d offen offset:%d sc1" % (vr(dst[c][1], 4), vC2, self.ws(), sKB, c * KCS))
        b.wait(vm=0)
        for c in range(1, NC):
            for h in range(2):
                for k in (0, 2):
                    b.I("v_pk_add_f32 %s, %s, %s" % (p2(dst[0][h] + k), p2(dst[0][h] + k), p2(dst[c][h] + k)))
        b.I("v_cmp_eq_f32 vcc, 0x42000000, v%d" % (vT + 3))
        b.I("v_cmp_eq_f32 s[%d:%d], v%d, v%d" % (sT, sT + 1, vT + 11, vT + 3))
        b.I("s_and_b64 vcc, vcc, s[%d:%d]" % (sM3, sM3 + 1))
        b.I("s_and_b32 s%d, s%d, 0x888" % (sT, sT))
        b.I("s_xor_b32 s%d, s%d, 0x888" % (sT, sT))
        b.I("s_xor_b64 vcc, vcc, s[%d:%d]" % (sM3, sM3 + 1))
        b.I("s_or_b32 s%d, s%d, vcc_lo" % (sT, sT))
        b.I("s_or_b32 s%d, s%d, vcc_hi" % (sT, sT))
        b.I("s_cbranch_scc0 %s" % ld)
        self.spin_guard(lp)
        b.label(ld)
        self.stamp("kvsync")
        b.I("v_lshl_add_u32 v%d, v0, 4, v%d" % (vT + 4, vKVL))
        b.I("v_sub_u32 v%d, v%d, v%d" % (vT + 4, vT + 4, vL4))
        b.I("ds_write_b128 v%d, %s offset:1280" % (vT + 4, vr(vT, 4)))
        b.I("s_mov_b64 exec, 0xfff")
        b.I("ds_write_b128 v%d, %s offset:2304" % (vT + 4, vr(vT + 8, 4)))
        b.I("s_mov_b64 exec, -1")
        lz = b.I("ds_read_b128 %s, v%d offset:1280" % (vr(vT + 4, 4), vZP))
        lt = [b.I("ds_read_b32 v%d, v%d offset:1280" % (vT + 12 + r, vPOS + r)) for r in range(4)]
        b.wait(lz)
        I("v_cvt_pk_bf16_f32 v%d, v%d, v%d" % (vT + 10, vT + 4, vT + 5))
        I("v_cvt_pk_bf16_f32 v%d, v%d, v%d" % (vT + 11, vT + 6, vT + 7))
        NUM, DEN = vACC, vAF
        for rt in range(4):
            I("v_mfma_f32_16x16x16_bf16 %s, %s, %s, 0" % (vr(DEN + 4 * rt, 4), p2(vT + 10), p2(PQ + 2 * rt)))
        b.wait(lt)
        I("v_cvt_pk_bf16_f32 v%d, v%d, v%d" % (vT + 8, vT + 12, vT + 13))
        I("v_cvt_pk_bf16_f32 v%d, v%d, v%d" % (vT + 9, vT + 14, vT + 15))
        for rt in range(4):
            I("v_mfma_f32_16x16x16_bf16 %s, %s, %s, 0" % (vr(NUM + 4 * rt, 4), p2(vT + 8), p2(PQ + 2 * rt)))
        for rt in range(4):
            I("v_add_f32 v%d, s%d, v%d" % (DEN + 4 * rt, sEPS, DEN + 4 * rt))
        for rt in range(4):
            I("v_rcp_f32 v%d, v%d" % (DEN + 4 * rt, DEN + 4 * rt))
        for rt in range(4):
            for r in (0, 2):
                n_ = NUM + 4 * rt + r
                I("v_pk_mul_f32 %s, %s, %s op_sel_hi:[1,0]" % (p2(n_), p2(n_), p2(DEN + 4 * rt)))
        for rt in range(4):
            for r in (0, 2):
                I("v_cvt_pk_bf16_f32 v%d, v%d, v%d" % (vT + 2 * rt + r // 2, NUM + 4 * rt + r, NUM + 4 * rt + r + 1))
        return self.stores2([self.pair_store(vT + 4 * pr, sT + 6 + pr, 0) for pr in range(2)], layer == 0 or self.sep)

    def park_wq(self):
        b = self.b
        b.I("s_lshl_b32 s%d, s%d, 14" % (sT, sW))
        b.I("s_add_u32 s%d, s%d, 0x%x" % (sT, sT, L_WQ))
        b.I("v_add_u32 v%d, s%d, v%d" % (vWQ, sT, vL16))
        for ks in range(16):
            b.I("ds_write_b128 v%d, %s offset:%d" % (vWQ, slot_r(self.wslot[("qkv", 0, 32 + ks)][0]), ks * 1024))
        b.wait(lg=0)
        for ks in range(16):
            self.w_release(("qkv", 0, 32 + ks))

    def cs1_some(self, n):
        one = vr(vONE, 4)
        k = 0
        while k < n and self.ncs < 16 and all(("w1", 0, 3 * self.ncs + t) in self.wslot and
                                             (self.wslot[("w1", 0, 3 * self.ncs + t)][1] is None or
                                              self.wslot[("w1", 0, 3 * self.ncs + t)][1][1] < self.b.vm_done) for t in range(3)):
            for t in range(3):
                self.mf(vCS1 + 4 * t, slot_r(self.wslot[("w1", 0, 3 * self.ncs + t)][0]), one, "0" if self.ncs == 0 else None)()
            self.ncs += 1
            k += 1

    def n16_items(self, name, layer, nks, hf, seqs):
        items = []
        for ks in range(nks):
            for r in range(2):
                def mfs(fr, ks=ks, r=r):
                    th = [self.mf(vX + 8 * hf + 4 * r, self.w_get((name, layer, ks)), fr)]
                    if hf == 1 and r == 1:
                        th.append(lambda: self.w_release((name, layer, ks)))
                    return th
                a, off = self.frag_addr(seqs[ks // 2], r, ks & 1)
                items.append((a, off, seqs[ks // 2], mfs))
        return items

    def n16_full(self, name, layer, nks, seqs):
        items = []
        for ks in range(nks):
            for rt in range(4):
                def mfs(fr, ks=ks, rt=rt):
                    th = [self.mf(vX + 4 * rt, self.w_get((name, layer, ks)), fr)]
                    if rt == 3:
                        th.append(lambda: self.w_release((name, layer, ks)))
                    return th
                sq = seqs[rt >> 1][ks // 2]
                a, off = self.frag_addr(sq, rt & 1, ks & 1)
                items.append((a, off, sq, mfs))
        return items

    def x_full_store(self, idx, wt):
        I = self.b.I
        for hf in range(2):
            I("s_add_u32 s%d, s%d, s%d" % (sT + 6 + hf, sRG64, sSTO))
            I("s_add_u32 s%d, s%d, 0x%x" % (sT + 6 + hf, sT + 6 + hf, self.buf("X", idx) + hf * 32768))
        I("s_add_u32 s%d, s%d, 8192" % (sT + 8, sSTP))
        for j in range(8):
            I("v_cvt_pk_bf16_f32 v%d, v%d, v%d" % (vT + j, vX + 2 * j, vX + 2 * j + 1))
        s = vAF
        tk = self.stores2([self.pair_store(vT + 4 * hf, sT + 6 + hf, 0) for hf in range(2)], wt)
        for rt in range(4):
            I("v_pk_add_f32 %s, %s, %s" % (p2(s + 4 * rt), p2(vX + 4 * rt), p2(vX + 4 * rt + 2)))
            I("v_pk_mul_f32 %s, %s, %s" % (p2(s + 4 * rt + 2), p2(vX + 4 * rt), p2(vX + 4 * rt)))
        for rt in range(4):
            I("v_pk_fma_f32 %s, %s, %s, %s" % (p2(s + 4 * rt + 2), p2(vX + 4 * rt + 2), p2(vX + 4 * rt + 2), p2(s + 4 * rt + 2)))
        for rt in range(4):
            I("v_add_f32 v%d, v%d, v%d" % (s + 4 * rt, s + 4 * rt, s + 4 * rt + 1))
            I("v_add_f32 v%d, v%d, v%d" % (s + 4 * rt + 2, s + 4 * rt + 2, s + 4 * rt + 3))
        for hf in range(2):
            q = s + 8 * hf
            I("v_permlane32_swap_b32 v%d, v%d" % (q, q + 4))
            I("v_permlane32_swap_b32 v%d, v%d" % (q + 2, q + 6))
        for hf in range(2):
            q = s + 8 * hf
            I("v_add_f32 v%d, v%d, v%d" % (q, q, q + 4))
            I("v_add_f32 v%d, v%d, v%d" % (q + 2, q + 2, q + 6))
        for hf in range(2):
            I("v_permlane16_swap_b32 v%d, v%d" % (s + 8 * hf, s + 8 * hf + 2))
        for hf in range(2):
            I("v_add_f32 v%d, v%d, v%d" % (s + 8 * hf, s + 8 * hf, s + 8 * hf + 2))
        tk2 = self.stores2(["buffer_store_dword v%d, v%d, %s, s%d offen" % (s + 8 * hf, vL4, self.ws(), (sSTP, sT + 8)[hf])
                            for hf in range(2)], wt)
        return tk, tk2

    def x_half_now(self, idx, hf, wt):
        I = self.b.I
        x = vX + 8 * hf
        o = vT + 2
        s = o + 4
        I("s_add_u32 s%d, s%d, s%d" % (sT + 6, sRG64, sSTO))
        I("s_add_u32 s%d, s%d, 0x%x" % (sT + 6, sT + 6, self.buf("X", idx) + hf * 32768))
        I("s_add_u32 s%d, s%d, %d" % (sT + 7, sSTP, hf * 8192))
        for j in range(4):
            I("v_cvt_pk_bf16_f32 v%d, v%d, v%d" % (o + j, x + 2 * j, x + 2 * j + 1))
        for r in range(2):
            I("v_pk_add_f32 %s, %s, %s" % (p2(s + 4 * r), p2(x + 4 * r), p2(x + 4 * r + 2)))
            I("v_pk_mul_f32 %s, %s, %s" % (p2(s + 4 * r + 2), p2(x + 4 * r), p2(x + 4 * r)))
        tk = self.stores2([self.pair_store(o, sT + 6, 0)], wt)
        for r in range(2):
            I("v_pk_fma_f32 %s, %s, %s, %s" % (p2(s + 4 * r + 2), p2(x + 4 * r + 2), p2(x + 4 * r + 2), p2(s + 4 * r + 2)))
            I("v_add_f32 v%d, v%d, v%d" % (s + 4 * r, s + 4 * r, s + 4 * r + 1))
        for r in range(2):
            I("v_add_f32 v%d, v%d, v%d" % (s + 4 * r + 2, s + 4 * r + 2, s + 4 * r + 3))
        I("v_permlane32_swap_b32 v%d, v%d" % (s, s + 4))
        I("v_permlane32_swap_b32 v%d, v%d" % (s + 2, s + 6))
        I("v_add_f32 v%d, v%d, v%d" % (s, s, s + 4))
        I("v_add_f32 v%d, v%d, v%d" % (s + 2, s + 2, s + 6))
        I("v_permlane16_swap_b32 v%d, v%d" % (s, s + 2))
        I("v_add_f32 v%d, v%d, v%d" % (s, s, s + 2))
        tk += self.stores2(["buffer_store_dword v%d, v%d, %s, s%d offen" % (s, vL4, self.ws(), sT + 7)], wt)
        return self.new_pub(tk)

    def x_half_store(self, idx, hf, wt, delay):
        x = vX + 8 * hf
        o = vT + 1
        o += o & 1
        tk = []
        k, fl = self.new_pub(tk)
        s = o + 4
        e = ["s_add_u32 s%d, s%d, s%d" % (sT + 6, sRG64, sSTO),
             "s_add_u32 s%d, s%d, 0x%x" % (sT + 6, sT + 6, self.buf("X", idx) + hf * 32768),
             "s_add_u32 s%d, s%d, %d" % (sT + 7, sSTP, hf * 8192), 2]
        e += ["v_cvt_pk_bf16_f32 v%d, v%d, v%d" % (o + j, x + 2 * j, x + 2 * j + 1) for j in range(4)]
        for r in range(2):
            e += ["v_add_f32 v%d, v%d, v%d" % (s + 2 * r, x + 4 * r, x + 4 * r + 1),
                  "v_mul_f32 v%d, v%d, v%d" % (s + 2 * r + 1, x + 4 * r, x + 4 * r)]
        e.append(lambda: tk.extend(self.stores2([self.pair_store(o, sT + 6, 0)], wt)))
        for q in (1, 2, 3):
            for r in range(2):
                if q > 1:
                    e.append("v_add_f32 v%d, v%d, v%d" % (s + 2 * r, s + 2 * r, x + 4 * r + q))
                e.append("v_fmac_f32 v%d, v%d, v%d" % (s + 2 * r + 1, x + 4 * r + q, x + 4 * r + q))
        e += [1, "v_permlane32_swap_b32 v%d, v%d" % (s, s + 2), "v_permlane32_swap_b32 v%d, v%d" % (s + 1, s + 3), 1,
              "v_add_f32 v%d, v%d, v%d" % (s, s, s + 2), "v_add_f32 v%d, v%d, v%d" % (s + 1, s + 1, s + 3), 1,
              "v_permlane16_swap_b32 v%d, v%d" % (s, s + 1), 1, "v_add_f32 v%d, v%d, v%d" % (s, s, s + 1),
              lambda: tk.extend(self.stores2(["buffer_store_dword v%d, v%d, %s, s%d offen" % (s, vL4, self.ws(), sT + 7)], wt))]
        if delay is not None:
            e += [delay, fl]
        return k, e, fl

    def out_half_store(self, hf):
        x = vX + 8 * hf
        e = ["s_add_u32 s%d, s%d, s%d" % (sT + 6, sRG64, sOUT), "s_add_u32 s%d, s%d, %d" % (sT + 6, sT + 6, hf * 32768),
             "s_add_u32 s%d, s%d, 16384" % (sT + 7, sT + 6), 2]
        e += ["v_cvt_pk_bf16_f32 v%d, v%d, v%d" % (vT + 4 * hf + j, x + 2 * j, x + 2 * j + 1) for j in range(4)]
        e += ["buffer_store_dwordx2 %s, v%d, s[%d:%d], s%d offen" % (p2(vT + 4 * hf + 2 * r), vOA, R_OUT, R_OUT + 3, sT + 6 + r)
              for r in range(2)]
        return e

    def p3_items(self, layer, seqs):
        items = []
        one = vr(vONE, 4)
        for ks in range(16):
            c0 = "0" if ks == 0 else None
            for rt in range(4):
                def mfs(fr, ks=ks, rt=rt, c0=c0):
                    th = []
                    for t in range(3):
                        w = self.w_get(("w1", layer, 3 * ks + t))
                        th.append(self.mf(vACC + 24 * (rt >> 1) + 8 * t + 4 * (rt & 1), w, fr, c0))
                        if layer == 0 and rt == 0 and ks >= self.ncs:
                            th.append(self.mf(vCS1 + 4 * t, w, one, c0))
                    if rt == 3:
                        th.append(lambda: [self.w_release(("w1", layer, 3 * ks + t)) for t in range(3)])
                    return th
                sq = seqs[rt >> 1][ks // 2]
                a, off = self.frag_addr(sq, rt & 1, ks & 1)
                items.append((a, off, sq, mfs))
        return items

    def silu(self, layer, hf, mid=None):
        b = self.b
        I = self.I
        for t in range(3):
            b.I("s_add_u32 s%d, s%d, 0x%x" % (sT + 6 + t, sH0 + t, self.buf("H", layer) + hf * (HSZ // 2)))
        sts = []
        for t in range(3):
            A = vACC + 24 * hf + 8 * t
            u = vT + 8 * (t & 1)
            if mid and t == mid[0]:
                mid[1]()
            for j in range(4):
                I("v_pk_mul_f32 %s, %s, %s op_sel:[0,1] op_sel_hi:[1,1]" % (
                    p2(u + 2 * j), p2(vCS1 + 4 * t + 2 * (j & 1)), p2(vAB + 4 * hf + 2 * (j >> 1))))
            for j in range(4):
                I("v_pk_fma_f32 %s, %s, %s, %s op_sel:[0,0,0] op_sel_hi:[1,0,1]" % (
                    p2(A + 2 * j), p2(A + 2 * j), p2(vAB + 4 * hf + 2 * (j >> 1)), p2(u + 2 * j)))
            for k in range(8):
                I("v_exp_f32_e64 v%d, -v%d" % (u + k, A + k))
            for j in range(4):
                I("v_pk_fma_f32 %s, %s, %s, %s op_sel:[0,0,0] op_sel_hi:[1,0,0]" % (p2(u + 2 * j), p2(u + 2 * j), p2(vK), p2(vK)))
            for k in range(8):
                I("v_rcp_f32 v%d, v%d" % (u + k, u + k))
            for j in range(4):
                I("v_pk_mul_f32 %s, %s, %s" % (p2(A + 2 * j), p2(A + 2 * j), p2(u + 2 * j)))
            for j in range(4):
                I("v_cvt_pk_bf16_f32 v%d, v%d, v%d" % (A + j, A + 2 * j, A + 2 * j + 1))
            sts += self.stores2([self.pair_store(A, sT + 6 + t, 0)], layer == 0 or self.sep)
        return sts

    def body(self):
        b = self.b
        for layer in range(2):
            R1, R2 = env("REV", (12, 43))
            if layer == 0:
                R1, R2 = 48, 43
            self.w_enqueue("w1", layer, F_W1, 48, range(47, R1 - 1, -1))
            self.w_enqueue("wo", layer, F_WO, 16)
            self.w_enqueue("w1", layer, F_W1, 48, range(R1))
            self.w_enqueue("w2", layer, F_W2, 43, range(42, R2 - 1, -1))
            self.w_enqueue("w2", layer, F_W2, 43, range(R2))
        AF = env("AFIRST", 12)
        G8c = env("G8C", [2, 2, 2, 2])
        G8w = env("G8W", [4, 4])
        G22 = env("G22", [2, 2, 2, 4, 4, 4, 4])
        st = {}
        PA, PB = env("PA", [75, 62]), env("PB", [75, 62])
        self.pace_w = PA[0]
        self.startup()
        xs = None
        for layer in range(2):
            self.pace_w = PA[layer]
            tk = self.attention(layer, xs)
            k_o, fl = self.new_pub(tk)
            if layer == 0 and not env('PARKQ', 1):
                self.park_wq()
            self.w_burst(env("W_PUB", [0, 0])[layer])
            fl()
            if layer == 0:
                self.cs1_some(env("NCS", [8, 8])[0])
            self.stamp("o_pub")
            self.poll_check(k_o)
            self.stamp("o_rdy")
            wt = layer == 0 or self.sep
            D16, PW = env("D16", 9), env("PAIRW", True)
            n0 = self.seq
            oo = self.queue_both("O", layer, 8, self.aq)
            self.a_burst(AF)
            self.bg_w = env("W_P2", 12)
            self.gemm(self.n16_full("wo", layer, 16, oo), self.split(list(range(n0, n0 + 16)), env("G16", [4, 4, 4, 4])), D16,
                      pairw=PW)
            self.bg_w = 0
            self.stamp("p2")
            tk1, tk2 = self.x_full_store(2 * layer, wt)
            k_x, fl_x = self.new_pub(tk1)
            k_s, fl_s = self.new_pub(tk2)
            self.w_burst(env("W_PUB2", [0, 0])[layer])
            fl_x()
            if layer == 0:
                self.cs1_some(env("NCS", [8, 8])[1])
            self.stamp("x_pub")
            self.poll_check(k_x)
            self.stamp("x_rdy")
            poll = lambda: st.update(tok=self.poll_issue())

            def when(k, plan, burst=0):
                def f():
                    self.poll_check(k() if callable(k) else k, st["tok"])
                    self.aq += plan
                    self.a_burst(burst)
                return f
            n0 = self.seq
            xx = self.queue_both("X", 2 * layer, 8, self.aq)
            hold = self.seq
            pl_s = []
            sa = self.queue_stats(0, pl_s)
            sb = self.queue_stats(1, pl_s)
            if layer or FT:
                th = lambda: self.touch_h(layer)
                th.seq = -1
                th.prep = []
                pl_s.append(th)
            self.a_burst(4)
            fl_s()
            self.a_burst(AF - 4)
            self.bg_w = 0
            self.pace_w = PB[layer]
            groups = self.split(list(range(n0, n0 + 16)), env("G3", [4, 4, 8])) + [[hold]]
            hooks, pre, post = {}, {}, {}
            s1a, bba = self.stats_stage1(sa, 0)
            s1b, bbb = self.stats_stage1(sb, 1)
            j = env("H_ST", 8)
            hooks[j] = [poll]
            hooks[j + 6] = [when(k_s, pl_s), lambda: setattr(self, "bg_w", 99)]
            hooks[j + 18] = [lambda: self.side.extend(s1a + s1b)]

            def exch():
                bba()
                bbb()
                b.I("s_barrier")
                self.side.extend(self.stats_stage2(0, True, False) + self.stats_stage2(1, True, False))
            hooks[env("H_EX", 46)] = [exch]
            groups.pop()
            self.gemm(self.p3_items(layer, xx), groups, 6, hooks, pre, post, pairw=True)
            self.pinned = set()
            self.mine = self.seq - 1
            self.bg_w = env("W_SILU", 0)
            self.stamp("p3")
            k_ha, fl_ha = self.new_pub(self.silu(layer, 0))
            self.bg_w = 0
            tkb = self.silu(layer, 1, (env("MID", 2), fl_ha))
            k_hb, fl_hb = self.new_pub(tkb)
            self.stamp("silu")
            self.poll_check(k_ha)
            self.stamp("ha_rdy")
            self.gstamp = layer == 1 and env("GST", 0)
            pl_hb, pl_ya = [], []
            ha = self.queue_half("H", layer, 0, 22, self.aq)
            hb = self.queue_half("H", layer, 1, 22, pl_hb)
            self.a_burst(4)
            fl_hb()
            self.a_burst(AF - 4)
            self.bg_w = 99
            j = env("H_P4A", 24)
            self.alead = env("ALEAD4", 16)
            self.pace_w = PA[1]
            items = self.n16_items("w2", layer, 43, 0, ha) + self.n16_items("w2", layer, 43, 1, hb)
            groups = self.split(ha, env("G22C", [2, 2, 4, 4, 4, 6])) + self.split(hb, G22)
            hooks = {j: [poll], j + env('CK4', 12): [when(k_hb, pl_hb, env('BU_HB', 4))]}
            pre, post = {}, {}
            if layer == 0:
                sa = self.queue_stats(0, pl_ya)
                ya = self.queue_half("X", 1, 0, 8, pl_ya, rot=True)

                def y_out(hf, delay):
                    def f():
                        self.stamp("p4a" if hf == 0 else "p4b")
                        st["k_y%d" % hf], st["fl_y%d" % hf] = self.x_half_now(1, hf, self.sep)
                        self.pace_w = PA[1]
                        if hf:
                            self.alead = env("ALEAD", 99)
                    return f
                j = 86 + env("H_P4B", 44)
                hooks.update({87: [y_out(0, 0)], 87 + env("D_Y0", 22): [lambda: st["fl_y0"]()],
                              172 + env("D_Y1", 12): [lambda: st["fl_y1"]()], j: [poll], j + env('CK4', 12): [when(lambda: st["k_y0"], pl_ya, env("BU_YA", 6))], 172: [y_out(1, 0)],
                              172 + env("H_P1A", 28): [poll]})
                ng = len(groups)
                groups += self.split(ya, env("G8K", [3, 3, 2]))
                self.stats_hooks(sa, 0, False, True, 173, ng + 2, hooks, pre, post)
                items += self.kv_items(0, ya)
            else:
                hooks[85] = [lambda: (self.stamp("p4a"), self.side.extend(self.out_half_store(0)))]
            self.gemm(items, groups, D16, hooks, pre, post, pairw=PW)
            if layer == 0:
                self.stamp("p1a")
                self.poll_check(st["k_y1"], st["tok"])
                self.stamp("yb_rdy")
                sb = self.queue_stats(1, self.aq)
                yb = self.queue_half("X", 1, 1, 8, self.aq, rot=True)
                self.a_burst(env('AF1', 10))
                self.kv_finish(0)
                hooks, pre, post = {}, {}, {}
                self.stats_hooks(sb, 1, False, True, 0, 1, hooks, pre, post)
                self.gemm(self.kv_items(1, yb), self.split(yb, G8w), 8, hooks, pre, post, pairw=True)
                self.kv_finish(1)
                self.stamp("p1b")
                xs = [ya, yb]
            else:
                self.stamp("p4b")
                self.side = self.out_half_store(1)
                self.side_flush()
                lx = b.newlabel("Lep")
                b.I("s_or_b32 s%d, s2, s%d" % (sT, sW))
                b.I("s_cbranch_scc1 %s" % lx)
                b.I("s_add_u32 s%d, s%d, 16" % (sT, sEP))
                b.I("v_mov_b32 v%d, s%d" % (vT + 9, sT))
                b.I("s_mov_b32 s%d, 0x%x" % (sT, WS_EP))
                b.I("s_mov_b64 exec, 1")
                self.Inc("buffer_store_dword v%d, off, %s, s%d sc1" % (vT + 9, self.ws(), sT))
                b.I("s_mov_b64 exec, -1")
                b.label(lx)
                self.stamp("end")
        if self.diag:
            b.I("s_lshl_b32 s%d, s2, 2" % sT)
            b.I("s_add_u32 s%d, s%d, s%d" % (sT, sT, sW))
            b.I("s_lshl_b32 s%d, s%d, 8" % (sT, sT))
            b.I("s_add_u32 s%d, s%d, 0x%x" % (sT, sT, WS_STAMP))
            b.I("buffer_store_dword v%d, v%d, %s, s%d offen" % (vSTAMP, vL4, self.ws(), sT))
        if self.diag and env("PROBE", 0):
            lx, lp = b.newlabel("Lpr"), b.newlabel("Lprl")
            i0, i1 = [61 if n == "entry" else [i for i, m in enumerate(self.stamp_names) if m == n[0]][n[1]] for n in env("PROBE", 0)]
            b.I("s_cmp_lg_u32 s2, %d" % env("PWG", 100))
            b.I("s_cbranch_scc1 %s" % lx)
            b.I("v_readlane_b32 s%d, v%d, %d" % (sT, vSTAMP, i0))
            b.I("v_readlane_b32 s%d, v%d, %d" % (sT + 1, vSTAMP, i1))
            b.I("v_readlane_b32 s%d, v%d, %d" % (sT + 2, vSTAMP, len(self.stamp_names) - 1))
            b.I("s_sub_u32 s%d, s%d, s%d" % (sT + 1, sT + 1, sT))
            b.I("s_mul_i32 s%d, s%d, %d" % (sT + 1, sT + 1, env("PMUL", 1)))
            b.I("s_add_u32 s%d, s%d, 4800" % (sT + 1, sT + 1))
            b.label(lp)
            b.I("s_memtime s[94:95]")
            b.I("s_waitcnt lgkmcnt(0)")
            b.I("s_sub_u32 s%d, s94, s%d" % (sT, sT + 2))
            b.I("s_cmp_lt_u32 s%d, s%d" % (sT, sT + 1))
            b.I("s_cbranch_scc1 %s" % lp)
            b.label(lx)
        b.label("L_end")
        b.I("s_endpgm")
        for t in self.cold:
            b.raw(t)

    def emit(self):
        self.body()
        head = """; @launch grid=(256,1,1) block=(256,1,1) lds=%d
; persistent fused kernel: 32 row groups (64 rows) x 8 column groups (generated by my own script)
.amdgcn_target "amdgcn-amd-amdhsa--gfx950"
.text
.globl %s_kernel
.p2align 8
.type %s_kernel,@function
%s_kernel:
""" % (LDS_BYTES, NAME, NAME, NAME)
        tail = """.section .rodata,"a"
.p2align 6
.amdhsa_kernel %s_kernel
  .amdhsa_next_free_vgpr 512
  .amdhsa_next_free_sgpr 102
  .amdhsa_accum_offset 256
  .amdhsa_group_segment_fixed_size 0
  .amdhsa_kernarg_size 72
  .amdhsa_user_sgpr_count 2
  .amdhsa_user_sgpr_kernarg_segment_ptr 1
  .amdhsa_system_sgpr_workgroup_id_x 1
.end_amdhsa_kernel
""" % NAME
        return head + self.b.text() + tail


if __name__ == "__main__":
    import argparse
    ap = argparse.ArgumentParser()
    ap.add_argument("-o", default="cdna_kernels/%s.s" % NAME)
    ap.add_argument("--diag", action="store_true")
    ap.add_argument("--sep", action="store_true")
    a = ap.parse_args()
    g = Gen(a.diag, a.sep)
    txt = g.emit()
    if a.diag:
        txt = txt.replace(".amdgcn_target", "; stamps: " + ",".join(g.stamp_names) + "\n.amdgcn_target", 1)
    open(a.o, "w").write(txt)
    print("instructions", g.b.nins, "nops", g.b.nops, file=sys.stderr)
```

```python
import sys
import os
sys.path.insert(0, os.path.dirname(os.path.abspath(__file__)))
from asmb import Builder, vr

NAME = "interleave_layers__linear_attn_block__dense_activation_silu__prompt"


def env(name, default):
    v = os.environ.get(name)
    return default if v is None else eval(v)


PKW = 107 * 1024
WS_FL = 0x380000
WS_EP = 0x390000
WS_R2 = 0x398000
WS_KV = 0x480000
NC = env('NC', 2)
KCS = env('KCS', 1344)
KVH = NC * KCS
KVL = 32 * KVH
KB0 = env('KB0', 0)
WS_ST = 0x400000
WS_O = 0x600000
WS_X = 0x800000
WS_H = 0xA00000
HSZ = 22 * 8192
WS_STAMP = 0x3000000
WS_SIZE = 0x3100000 if '--diag' in sys.argv else 0x1000000
OOB = 0x4000000 if '--diag' in sys.argv else 0x1000000
F_WO, F_W1, F_W2 = 0, 16, 64

L_RING = 65536
L_RQ = 106496
L_WQ = 81920
L_PACK = 131072
L_KVI = 147456
L_STA = 157696
L_EX = 158720
NR = env('NR', 8)
NSLOT = 20
LDS_BYTES = 163840

S_X, S_WQ, S_WO, S_W1, S_W2, S_OUT, S_DBG, S_WS = 4, 6, 8, 12, 14, 16, 18, 20
R_X, R_WQ, R_WS, R_OUT, R_PK = 24, 28, 32, 36, 44
sR1, sQ, sTC, sTAG, sEP = 3, 10, 11, 22, 23
sROT, sSTP, sSTC, sW1K = 40, 41, 42, 43
sRG, sC, sW, sFAST, sPK, sKV, sFL, sRG64, sRGH, sSTO = 48, 49, 50, 51, 52, 53, 54, 55, 56, 57
sH0 = 58
sSPIN = 61
sEPS = 62
sOUT = 63
sXS = 64
sM1, sM2, sM3, sDIAG = 68, 70, 72, 74
sT = 76
sKB = 88
sPKC, sXCC, sMYF, sW2K, sAB, sAO = 96, 97, 98, 99, 100, 101

vL16, vA1, vKVL, vDMA, vST = 1, 2, 3, 4, 5
vX0, vX1, vOW0, vOW1, vTR, vXS0, vXS1, vWS = 6, 7, 8, 9, 10, 11, 12, 13
vWQ = 13
vSB, vEX, vSWR, vOA = 8, 9, 10, 11
vFL, vL4, vSTAMP, vSTA, vSTQ, vC2 = 14, 15, 16, 17, 18, 19
vX = 20
vCSQ, vCSK, vCSV = 36, 40, 42
vCS1 = 44
vONE = 56
vACC = 60
vAF = 108
NAF = 10
vAB = 148
vT = 156
vPOS = 172
vZP, vSW, vDUM, vTCH, vPOLL, vDM2 = 176, 177, 178, 179, 180, 181
vK = 182
vS1, vS2 = 184, 188
vTQ = 195
vW1 = 192
SLOTS = [("a", 4 * i) for i in range(64)] + [("v", 196 + 4 * i) for i in range(15)]
PACE = env("PACE", 36)
FT = env("FTOUCH", 1)
WMIN = env("WMIN", 10)
AMIN = env("AMIN", 5)
RDSLACK = env("RDSLACK", 2)
SIDEMIN = env("SIDEMIN", 1)
COST = {"mfma": 16, "trans": 8, "ds": 4, "valu": 4, "perm": 4, "dpp": 4, "rdlane": 4, "wrlane": 4, "salu": 2, "vmem": 8}
K_L2E = "op_sel:[0,0] op_sel_hi:[1,0]"


def slot_r(s):
    return vr(s[1], 4, s[0])


def p2(r):
    return "v[%d:%d]" % (r, r + 1)


class Gen:
    def __init__(self, diag=False, sep=False):
        self.b = Builder()
        self.diag = diag
        self.sep = sep
        self.free = list(SLOTS)
        self.wq = []
        self.wslot = {}
        self.pk_cur = None
        self.nstamp = 0
        self.stamp_names = []
        self.aq = []
        self.atok = {}
        self.seq = 0
        self.consumed = -1
        self.mine = -1
        self.pub_mine = {}
        self.clock = 0
        self.last_bg = -1000
        self.bg_w = 0
        self.pace_w = 70
        self.in_bg = False
        self.npub = 0
        self.ncs = 0
        self.gstamp = False
        self.vclock = {}
        bI, bw = self.b.I, self.b.wait

        def I2(t):
            tok = bI(t)
            if tok and tok[0] == "vm":
                self.vclock[tok[1]] = self.clock
            return tok

        def w2(*toks, **kw):
            if os.environ.get("SLACK"):
                flat = []
                for t in toks:
                    if t is None:
                        continue
                    flat += t if isinstance(t, list) else [t]
                v = [i for k, i in flat if k == "vm" and i >= self.b.vm_done]
                if v:
                    d = self.clock - self.vclock.get(max(v), 0)
                    if d < int(os.environ["SLACK"]):
                        print("   slack %4d at clock %d (after %s)" % (d, self.clock, self.last_stamp), file=sys.stderr)
            return bw(*toks, **kw)
        self.b.I, self.b.wait = I2, w2
        self.last_stamp = ""
        self.flagged = set()
        self.cold = []
        self.slotted = False
        self.prepped = None
        self.wprep = []
        self.pinned = set()
        self.side = []
        self.side_rate = 2
        self.w_issued = 0
        self.w_need = 0
        self.w_cur = None
        self.w_index = {}
        self.wlead = env('WLEAD', 14)
        self.cur_seq = 0
        self.alead = env('ALEAD', 99)

    def I(self, t):
        tok = self.b.I(t)
        k = self.b.hists[0][-1].kind if self.b.hists and self.b.hists[0] else "salu"
        self.clock += COST.get(k, 4)
        if not self.in_bg and not self.slotted and k in ("mfma", "valu", "trans"):
            c = self.bg_pick()
            if c is not None and c[1]:
                self.bg_emit(c[0], True)
        return tok

    def side_step(self, n):
        self.in_bg = True
        done = 0
        while n > 0 and self.side:
            e = self.side[0]
            if isinstance(e, int):
                if e <= 1:
                    self.side.pop(0)
                else:
                    self.side[0] = e - 1
                break
            self.side.pop(0)
            if isinstance(e, str):
                self.b.I(e)
            else:
                e()
            n -= 1
            done += 1
        self.in_bg = False
        return done

    def side_flush(self):
        while self.side:
            self.side_step(1000)

    def bg_pick(self):
        a_ok = self.aq and self.aq[0].seq - NSLOT <= self.consumed
        w_ok = self.bg_w > 0 and self.wq and self.free
        same = w_ok and self.wq[0][0][:2] == self.w_cur
        el = self.clock - self.last_bg
        if self.prepped == "A" and a_ok:
            return "A", el >= PACE or self.aq[0].seq - self.cur_seq < AMIN
        if a_ok and getattr(self.aq[0], "urgent", False):
            return "A", True
        if same and self.w_issued - self.w_need < WMIN:
            return "W", True
        if a_ok and w_ok:
            a_lead = self.aq[0].seq - self.cur_seq
            if a_lead > self.alead or (same and self.w_issued - self.w_need < self.wlead and a_lead > 3):
                a_ok = False
        if a_ok:
            return "A", el >= PACE or self.aq[0].seq - self.cur_seq < AMIN
        if w_ok:
            return "W", el >= self.pace_w
        return None

    def bg_prep_list(self, kind):
        if kind == "A":
            return self.aq[0].prep
        grp = self.wq[0][1] // 4
        if self.pk_cur != grp and not os.environ.get("NOW"):
            self.pk_cur = grp
            self.wprep = ["s_add_u32 s%d, s%d, 0x%x" % (sPKC, sPK, grp * 4096)]
        return self.wprep

    def bg_emit(self, kind, inline):
        self.in_bg = True
        if kind == "A":
            self.a_pop()
        else:
            self.w_issue()
            self.bg_w -= 1
        self.last_bg = self.clock
        self.in_bg = False

    def a_pop(self):
        th = self.aq.pop(0)
        while th.prep:
            self.b.I(th.prep.pop(0))
        th()
        self.prepped = None

    def slot_fill(self, rd_lag, issue_read):
        c = self.bg_pick()
        if c is not None and c[1] and rd_lag <= RDSLACK and not self.bg_prep_list(c[0]):
            self.bg_emit(c[0], False)
            self.clock += 8
            return
        budget = 2
        if rd_lag > 0:
            issue_read()
            budget -= 1
            if rd_lag > 1:
                issue_read()
                budget -= 1
        if c is not None:
            pl = self.bg_prep_list(c[0])
            while budget > 0 and pl:
                self.b.I(pl.pop(0))
                budget -= 1
                if c[0] == "A":
                    self.prepped = "A"
        self.side_step(max(budget, SIDEMIN))

    def Inc(self, t):
        self.b.I(t)
        self.b.vm_issued -= 1

    def stamp(self, name):
        self.last_stamp = name
        if os.environ.get("WLOG"):
            print("%-8s clock %6d  wq left %3d next %s free %d aq %d" % (
                name, self.clock, len(self.wq), self.wq[0][0] if self.wq else None, len(self.free), len(self.aq)), file=sys.stderr)
        if not self.diag:
            return
        b = self.b
        k = self.nstamp
        self.nstamp += 1
        assert k < 62
        b.comment("stamp %d %s" % (k, name))
        b.I("s_memtime s[94:95]")
        b.wait(lg=0)
        b.I("v_writelane_b32 v%d, s94, %d" % (vSTAMP, k))
        if name in ("start", "end"):
            b.I("s_memrealtime s[94:95]")
            b.wait(lg=0)
            b.I("v_writelane_b32 v%d, s94, %d" % (vSTAMP, 62 if name == "start" else 63))
        self.stamp_names.append(name)

    def buf(self, kind, idx):
        base = {"O": WS_O if self.sep else WS_H, "X": WS_X, "H": WS_H}[kind]
        return base + (idx * 0x1000000 if self.sep else 0)

    def hstride(self, kind):
        return HSZ // 2 if self.rgs(kind) == sRGH else 32768

    def rgs(self, kind):
        return sRGH if kind == "H" or (kind == "O" and not self.sep) else sRG64

    def srd(self, r, ptr, size):
        I = self.b.I
        I("s_mov_b32 s%d, s%d" % (r, ptr))
        I("s_and_b32 s%d, s%d, 0xffff" % (r + 1, ptr + 1))
        I("s_mov_b32 s%d, 0x%x" % (r + 2, size))
        I("s_mov_b32 s%d, 0x20000" % (r + 3))

    def ws(self):
        return "s[%d:%d]" % (R_WS, R_WS + 3)

    def w_enqueue(self, name, layer, f0, n, order=None):
        for i in (range(n) if order is None else order):
            self.w_index[(name, layer, i)] = len(self.w_index)
            self.wq.append(((name, layer, i), f0 + i))

    def w_issue(self):
        key, f = self.wq.pop(0)
        s = self.free.pop(0)
        self.w_issued += 1
        if os.environ.get("NOW"):
            self.wslot[key] = (s, None)
            return
        grp = f // 4
        while self.wprep:
            self.b.I(self.wprep.pop(0))
        if self.pk_cur != grp:
            self.b.I("s_add_u32 s%d, s%d, 0x%x" % (sPKC, sPK, grp * 4096))
            self.pk_cur = grp
        va = vW1 + key[2] % 3 if key[0] == "w1" and env("SKIPW1", 1) else vL16
        if os.environ.get("FAKEW"):
            self.b.I("s_mov_b32 s%d, s%d" % (sPKC, sPK))
        tok = self.b.I("buffer_load_dwordx4 %s, v%d, %s, s%d offen offset:%d sc1%s" % (
            slot_r(s), va, self.ws(), sPKC, (f % 4) * 1024, " nt" if env("NT", lambda k: False)(key) else ""))
        self.wslot[key] = (s, tok)

    def w_burst(self, n):
        k = 0
        while k < n and self.wq and self.free:
            self.w_issue()
            k += 1
        self.last_bg = self.clock

    def w_get(self, key):
        self.w_need = max(self.w_need, self.w_index.get(key, 0))
        self.w_cur = key[:2]
        if key not in self.wslot:
            print("WARNING: late W load", key, file=sys.stderr)
        while key not in self.wslot:
            assert self.wq and self.free, "no free slot for %s" % (key,)
            self.w_issue()
        s, tok = self.wslot[key]
        self.b.wait(tok)
        return slot_r(s)

    def w_release(self, key):
        s, _ = self.wslot.pop(key)
        self.free.append(s)

    def stores2(self, texts, wt=False):
        b = self.b
        if wt and not FT:
            return [b.I(t + " sc1") for t in texts]
        ls, lj = b.newlabel("Lslow"), b.newlabel("Ljoin")
        b.I("s_cmp_eq_u32 s%d, 1" % sFAST)
        b.I("s_cbranch_scc0 %s" % ls)
        b.saved.pop(ls)
        toks = [b.I(t) for t in texts]
        b.raw(lj + ":")
        self.cold += [ls + ":"] + ["    " + t + " sc1" for t in texts] + ["    s_branch " + lj]
        return toks

    def pair_store(self, p, sreg, off):
        for k in range(2):
            self.b.I("v_permlane16_swap_b32 v%d, v%d" % (p + k, p + 2 + k))
        return "buffer_store_dwordx4 %s, v%d, %s, s%d offen offset:%d" % (vr(p, 4), vST, self.ws(), sreg, off)

    def spin_guard(self, lab_loop):
        b = self.b
        b.I("s_sub_u32 s%d, s%d, 1" % (sSPIN, sSPIN))
        b.I("s_cmp_lg_u32 s%d, 0" % sSPIN)
        b.I("s_cbranch_scc1 %s" % lab_loop)
        b.I("s_branch L_end")

    def new_pub(self, toks):
        self.npub += 1
        k = self.npub
        self.pub_mine[k] = self.mine

        def flag():
            b = self.b
            b.I("s_add_u32 s%d, s%d, %d" % (sT, sTAG, k))
            b.I("v_mov_b32 v%d, s%d" % (vC2, sT))
            b.wait(toks)
            b.I("s_mov_b64 exec, 1")
            self.stores2(["buffer_store_dword v%d, off, %s, s%d" % (vC2, self.ws(), sMYF)])
            b.I("s_mov_b64 exec, -1")
            self.flagged.add(k)
        return k, flag

    def poll_issue(self):
        return self.b.I("buffer_load_dword v%d, v%d, %s, s%d offen sc1" % (vPOLL, vFL, self.ws(), sFL))

    def poll_check(self, k, tok=None):
        b = self.b
        if k not in self.flagged:
            print("WARNING: side stream late for flag", k, file=sys.stderr)
        while k not in self.flagged:
            assert self.side, "flag %d never raised before its poll" % k
            self.side_step(1)
        lp, ld, lc = b.newlabel("Lpoll"), b.newlabel("Lpd"), b.newlabel("Lpc")
        b.I("s_add_u32 s%d, s%d, %d" % (sT, sTAG, k))
        if tok is not None:
            b.wait(tok)
            b.I("s_branch %s" % lc)
        b.label(lp)
        self.Inc("buffer_load_dword v%d, v%d, %s, s%d offen sc1" % (vPOLL, vFL, self.ws(), sFL))
        if tok is None:
            b.wait(vm=0)
        else:
            b.I("s_waitcnt vmcnt(0)")
        b.label(lc)
        b.I("v_subrev_u32 v%d, s%d, v%d" % (vPOLL, sT, vPOLL))
        b.I("v_cmp_gt_u32 vcc, %d, v%d" % (16 - k, vPOLL))
        b.I("s_cmp_eq_u64 vcc, exec")
        b.I("s_cbranch_scc1 %s" % ld)
        self.spin_guard(lp)
        b.label(ld)
        self.consumed = max(self.consumed, self.pub_mine[k])

    def queue_stats(self, hf, plan):
        b = self.b
        s0 = self.seq
        assert s0 % 2 == 0
        self.seq += 2
        for j in range(2):
            def th(j=j):
                assert s0 + 1 - NSLOT <= self.consumed
                self.atok.setdefault(s0, []).append(b.I(
                    "buffer_load_dwordx4 v%d, %s, s%d offen offset:%d sc1 lds" % (vL16, self.ws(), sAO, j * 1024)))
            th.seq = s0 + 1
            th.urgent = True
            th.prep = [] if j else ["s_add_u32 m0, s%d, 0x%x" % (sW2K, (s0 % NSLOT) * 4096),
                                    "s_add_u32 s%d, s%d, 0x%x" % (sAO, sSTC, hf * 8192)]
            plan.append(th)
        return s0

    def queue_half(self, kind, idx, hf, nds, plan, rot=False, ds0=0):
        b = self.b
        seqs = []
        base = self.buf(kind, idx) + hf * self.hstride(kind)
        rg = self.rgs(kind)
        assert self.seq % 2 == 0 and nds % 2 == 0
        for ds in range(ds0, ds0 + nds):
            sq = self.seq
            self.seq += 1
            seqs.append(sq)
            if rot:
                def th(sq=sq):
                    assert sq - NSLOT <= self.consumed, "ring slot busy"
                    self.atok[sq] = [b.I("buffer_load_dwordx4 v%d, %s, s%d offen sc1 lds" % (vDMA, self.ws(), sAO))]
                th.seq = sq
                if ds == 0:
                    th.prep = ["s_add_u32 s%d, s%d, 0x%x" % (sAB, rg, base), "s_lshl_b32 s%d, s%d, 12" % (sXS, sROT)]
                else:
                    th.prep = ["s_add_u32 s%d, s%d, 0x1000" % (sXS, sXS), "s_and_b32 s%d, s%d, 0x7fff" % (sXS, sXS)]
                th.prep += ["s_add_u32 m0, s%d, 0x%x" % (sW1K, (sq % NSLOT) * 4096), "s_add_u32 s%d, s%d, s%d" % (sAO, sAB, sXS)]
            else:
                s0 = sq & ~1

                def th(sq=sq, s0=s0):
                    assert s0 + 1 - NSLOT <= self.consumed, "ring slot busy"
                    tk = b.I("buffer_load_dwordx4 v%d, %s, s%d offen offset:%d sc1%s lds" % (
                        vDM2, self.ws(), sAO, (sq & 1) * 1024, " nt" if (kind, idx) in env("NTA", []) else ""))
                    if sq & 1:
                        self.atok[s0] = self.atok[s0 + 1] = [tk]
                th.seq = s0 + 1
                th.prep = [] if sq & 1 else ["s_add_u32 m0, s%d, 0x%x" % (sW2K, (sq % NSLOT) * 4096),
                                             "s_add_u32 s%d, s%d, 0x%x" % (sAO, rg, base + ds * 4096)]
            plan.append(th)
        return seqs

    def queue_both(self, kind, idx, nds, plan):
        out = ([], [])
        for d0 in range(0, nds, 2):
            for hf in range(2):
                out[hf].extend(self.queue_half(kind, idx, hf, 2, plan, ds0=d0))
        return out

    def a_burst(self, n):
        k = 0
        while k < n and self.aq and self.aq[0].seq - NSLOT <= self.consumed:
            self.a_pop()
            k += 1
        self.last_bg = self.clock

    def frag_addr(self, sq, r, h):
        off = (sq % NSLOT) * 4096 + r * 2048 + h * 1024
        return ((vL16, vA1)[off >> 16], off & 0xffff)

    def gemm_prep(self, items, groups=None, depth=8, hooks=None, pre=None, post=None, pairw=False, buf0=0):
        b = self.b
        hooks, pre, post = hooks or {}, pre or {}, post or {}
        n = len(items)
        toks = [None] * n
        grp_of = {}
        for gi, g in enumerate(groups or []):
            for sq in g:
                grp_of[sq] = gi
        opened = set()
        st = {"ip": 0}

        rem = [1 << 30] * (n + 1)
        for k in range(n - 1, -1, -1):
            rem[k] = min(rem[k + 1], items[k][2] if items[k][2] is not None else 1 << 30)

        def reg(k):
            return vr(vAF + 4 * ((k + buf0) % NAF), 4)

        def issue():
            k = st["ip"]
            a, off, sq, _ = items[k]
            if sq in grp_of and grp_of[sq] not in opened:
                gi = grp_of[sq]
                opened.add(gi)
                while any(s not in self.atok for s in groups[gi]):
                    self.a_pop()
                    self.last_bg = self.clock
                for f in pre.get(gi, []):
                    f()
                if self.gstamp:
                    self.stamp("g%d?" % gi)
                b.wait(*[self.atok[s] for s in groups[gi]])
                b.I("s_barrier")
                if self.gstamp:
                    self.stamp("g%d!" % gi)
                self.consumed = max(self.consumed, self.mine)
                for f in post.get(gi, []):
                    f()
            toks[k] = self.I("ds_read_b128 %s, v%d offset:%d" % (reg(k), a, off))
            st["ip"] += 1

        def prestart(m=None):
            while st["ip"] < min(depth if m is None else m, n):
                issue()

        def run():
            prestart()
            self.slotted = True
            for j in range(n):
                thunks = items[j][3](reg(j))
                while st["ip"] <= min(j + (1 if pairw else 0), n - 1):
                    issue()
                if pairw and j % 2 == 0 and j + 1 < st["ip"]:
                    b.wait(toks[j + 1])
                b.wait(toks[j])
                if items[j][2] is not None:
                    self.cur_seq = items[j][2]
                    lim = min(self.pinned) - 3 if self.pinned else 1 << 30
                    self.mine = max(self.mine, min(rem[j] - 1, lim))
                if not thunks and st["ip"] < min(n, j + 1 + depth):
                    issue()
                for th in thunks:
                    n0 = b.nins
                    th()
                    if b.nins > n0:
                        self.slot_fill(min(n, j + 1 + depth) - st["ip"], issue)
                for f in hooks.get(j, []):
                    f()
            self.slotted = False
            self.side_flush()
            sq = [it[2] for it in items if it[2] is not None]
            if sq:
                self.cur_seq = max(sq) + 1
                lim = min(self.pinned) - 3 if self.pinned else 1 << 30
                self.mine = max(self.mine, min(max(sq), lim))
        return prestart, run

    def gemm(self, *a, **k):
        self.gemm_prep(*a, **k)[1]()

    def mf(self, d, a, bb, c=None):
        dd = vr(d, 4)
        cc = dd if c is None else c
        return lambda: self.I("v_mfma_f32_16x16x32_bf16 %s, %s, %s, %s" % (dd, a, bb, cc))

    @staticmethod
    def split(seqs, sizes):
        out, k = [], 0
        for s in sizes:
            out.append(seqs[k:k + s])
            k += s
        assert k == len(seqs)
        return out

    def stats_stage1(self, s0, hf):
        b = self.b
        t = vS1
        tk = {}
        def landed():
            while len(self.atok.get(s0, [])) < 2:
                self.a_pop()
            b.wait(self.atok[s0])
        out = ["v_add_u32 v%d, 0x%x, v%d" % (vT, (s0 % NSLOT) * 4096, vSB), landed]
        for k in range(4):
            out.append(lambda k=k: tk.__setitem__(k, b.I("ds_read2st64_b32 %s, v%d offset0:%d offset1:%d" % (
                p2(t + 2 * k), vT, 2 * k, 2 * k + 1))))
        out += [6, lambda: b.wait(tk[3])]
        out += ["v_add_f32 v%d, v%d, v%d" % (t + k, t + k, t + 4 + k) for k in range(4)]
        out += ["v_add_f32 v%d, v%d, v%d" % (t + k, t + k, t + 2 + k) for k in range(2)]
        out += ["v_add_f32 v%d, v%d, v%d" % (t, t, t + 1)]
        out.append(lambda: tk.__setitem__("w", b.I("ds_write_b32 v%d, v%d offset:%d" % (vSW, t, hf * 1024))))

        def before_barrier():
            self.side_flush()
            b.wait(tk["w"])
        return out, before_barrier

    def stats_stage2(self, hf, scale, kv):
        b = self.b
        t = vS1
        tk = {}
        out = []
        for k in range(2):
            out.append(lambda k=k: tk.__setitem__(k, b.I("ds_read2st64_b32 %s, v%d offset0:%d offset1:%d" % (
                p2(t + 2 * k), vEX, hf * 4 + 2 * k, hf * 4 + 2 * k + 1))))
        a0, b0, a1, b1 = [vAB + 4 * hf + k for k in range(4)]
        out += [6, lambda: b.wait(tk[1]),
                "v_add_f32 v%d, v%d, v%d" % (t, t, t + 2), "v_add_f32 v%d, v%d, v%d" % (t + 1, t + 1, t + 3),
                "v_add_f32 v%d, v%d, v%d" % (t, t, t + 1), "v_mul_f32 v%d, 0x3b000000, v%d" % (t, t),
                "v_mov_b32 v%d, v%d" % (t + 1, t), 1,
                "v_permlane16_swap_b32 v%d, v%d" % (t, t + 1), 1,
                "v_fma_f32 v%d, -v%d, v%d, v%d" % (t + 1, t, t, t + 1), "v_max_f32 v%d, 0, v%d" % (t + 1, t + 1),
                "v_add_f32 v%d, 0x3727c5ac, v%d" % (t + 1, t + 1), "v_rsq_f32 v%d, v%d" % (a0, t + 1), 1]
        if scale:
            out.append("v_mul_f32 v%d, v%d, v%d" % (a0, a0, vK))
        out.append("v_mul_f32_e64 v%d, -v%d, v%d" % (b0, t, a0))
        if kv:
            def wr():
                b.I("s_mov_b32 exec_lo, 0xffff")
                b.I("s_mov_b32 exec_hi, 0xffff")
                b.I("ds_write_b32 v%d, v%d" % (vSWR, a0))
                b.I("ds_write_b32 v%d, v%d offset:128" % (vSWR, b0))
                b.I("s_mov_b64 exec, -1")
            out.append(wr)
        out += ["v_mov_b32 v%d, v%d" % (a1, a0), "v_mov_b32 v%d, v%d" % (b1, b0), 1,
                "v_permlane32_swap_b32 v%d, v%d" % (a0, a1), "v_permlane32_swap_b32 v%d, v%d" % (b0, b1)]
        return out

    def stats_hooks(self, s0, hf, scale, kv, j1, gi, hooks, pre, post):
        s1, bb = self.stats_stage1(s0, hf)
        hooks.setdefault(j1, []).append(lambda: self.side.extend(s1))
        pre.setdefault(gi, []).append(bb)
        post.setdefault(gi, []).append(lambda: self.side.extend(self.stats_stage2(hf, scale, kv)))

    def stats_startup(self):
        b = self.b
        I = b.I
        t = vT
        I("v_mul_f32 v%d, 0x3b000000, v%d" % (t + 1, vS1))
        I("v_cndmask_b32 v%d, v%d, v%d, s[%d:%d]" % (t, vS2, vS2 + 1, sM1, sM1 + 1))
        I("v_cndmask_b32 v%d, v%d, v%d, s[%d:%d]" % (t, t, vS2 + 2, sM2, sM2 + 1))
        I("v_cndmask_b32 v%d, v%d, v%d, s[%d:%d]" % (t, t, vS2 + 3, sM3, sM3 + 1))
        I("v_mul_f32 v%d, 0x3b000000, v%d" % (t, t))
        I("v_fma_f32 v%d, -v%d, v%d, v%d" % (t, t + 1, t + 1, t))
        I("v_max_f32 v%d, 0, v%d" % (t, t))
        I("v_add_f32 v%d, 0x3727c5ac, v%d" % (t, t))
        I("v_rsq_f32 v%d, v%d" % (t + 2, t))
        I("v_lshlrev_b32 v%d, 1, v%d" % (t + 4, vSW))
        I("v_mul_f32_e64 v%d, -v%d, v%d" % (t + 3, t + 1, t + 2))
        I("v_subrev_u32 v%d, 0x%x, v%d" % (t + 4, L_STA - 512, t + 4))
        I("s_mov_b64 exec, s[%d:%d]" % (sDIAG, sDIAG + 1))
        I("ds_write_b32 v%d, v%d" % (vSW, t + 2))
        I("ds_write_b32 v%d, v%d offset:256" % (vSW, t + 3))
        I("ds_write_b64 v%d, v[%d:%d]" % (t + 4, t + 2, t + 3))
        I("s_mov_b64 exec, -1")
        b.wait(lg=0)
        I("s_barrier")

    def phi_pairs(self, pairs):
        I = self.I
        for c0 in range(0, len(pairs), 4):
            grp = pairs[c0:c0 + 4]
            for k, (t, d) in enumerate(grp):
                I("v_pk_mul_f32 %s, %s, %s %s" % (p2(vT + 2 * k), p2(t), p2(vK), K_L2E))
            for k, (t, d) in enumerate(grp):
                I("v_exp_f32_e64 v%d, v%d clamp" % (vT + 2 * k, vT + 2 * k))
                I("v_max_f32 v%d, v%d, v%d" % (t, vK + 1, t))
                I("v_exp_f32_e64 v%d, v%d clamp" % (vT + 2 * k + 1, vT + 2 * k + 1))
                I("v_max_f32 v%d, v%d, v%d" % (t + 1, vK + 1, t + 1))
            for k, (t, d) in enumerate(grp):
                I("v_pk_add_f32 %s, %s, %s" % (p2(t), p2(t), p2(vT + 2 * k)))
            for k, (t, d) in enumerate(grp):
                I("v_cvt_pk_bf16_f32 v%d, v%d, v%d" % (d, t, t + 1))

    def kv_epilogue(self, hf, ra, rb):
        I = self.I
        K, V = vACC + 8 * hf, vACC + 16 + 8 * hf
        for j in range(4):
            I("v_pk_fma_f32 %s, %s, %s, %s op_sel:[0,0,1] op_sel_hi:[1,1,1]" % (p2(vT + 2 * j), p2(rb + 2 * j), p2(vCSK), p2(vK)))
            I("v_pk_mul_f32 %s, %s, %s" % (p2(vT + 8 + 2 * j), p2(rb + 2 * j), p2(vCSV)))
        for j in range(4):
            I("v_pk_fma_f32 %s, %s, %s, %s" % (p2(K + 2 * j), p2(ra + 2 * j), p2(K + 2 * j), p2(vT + 2 * j)))
            I("v_pk_fma_f32 %s, %s, %s, %s" % (p2(V + 2 * j), p2(ra + 2 * j), p2(V + 2 * j), p2(vT + 8 + 2 * j)))
        for j in range(4):
            I("v_cvt_pk_bf16_f32 v%d, v%d, v%d" % (V + j, V + 2 * j, V + 2 * j + 1))
        self.phi_pairs([(K + 2 * j, K + j) for j in range(4)])

    def startup(self):
        b = self.b
        I = b.I
        i_, g_, l3, l7, q0, tc = vT + 2, vT + 3, vT + 6, vT + 7, vT + 8, vT + 9
        if self.diag:
            I("s_memtime s[92:93]")
        I("s_cmp_ge_u32 s2, 256")
        I("s_cbranch_scc1 L_end")
        I("s_load_dwordx4 s[4:7], s[0:1], 0")
        I("s_load_dwordx2 s[20:21], s[0:1], 64")
        I("s_load_dwordx2 s[8:9], s[0:1], 16")
        I("s_load_dwordx4 s[12:15], s[0:1], 32")
        I("s_load_dwordx4 s[16:19], s[0:1], 48")
        I("s_getpc_b64 s[90:91]")
        b.label("L_pc")
        I("v_lshrrev_b32 v%d, 6, v0" % vT)
        I("v_and_b32 v0, 63, v0")
        I("v_readfirstlane_b32 s%d, v%d" % (sW, vT))
        I("s_lshr_b32 s%d, s2, 3" % (sT + 1))
        I("s_lshl_b32 s%d, s%d, 2" % (sT + 3, sT + 1))
        I("s_add_u32 s%d, s%d, s%d" % (sT + 3, sT + 3, sW))
        I("s_and_b32 s%d, s%d, 31" % (sT, sT + 3))
        I("s_lshl_b32 s%d, s%d, 11" % (sT, sT))
        I("v_lshlrev_b32 v%d, 7, v0" % vTCH)
        I("v_add_u32 v%d, s%d, v%d" % (vT, sT, vTCH))
        I("v_min_u32 v%d, L_end-L_pc, v%d" % (vT, vT))
        I("s_mov_b64 exec, 0xffff")
        I("global_load_dword v%d, v%d, s[90:91]" % (vDUM, vT))
        I("s_mov_b64 exec, -1")
        I("s_and_b32 s%d, s2, 7" % sROT)
        I("s_and_b32 s%d, s%d, 7" % (sC, sT + 1))
        I("s_lshr_b32 s%d, s%d, 3" % (sQ, sT + 1))
        I("s_lshl_b32 s%d, s%d, 2" % (sT, sROT))
        I("s_add_u32 s%d, s%d, s%d" % (sRG, sT, sQ))
        I("s_lshl_b32 s%d, s%d, 16" % (sRG64, sRG))
        I("s_lshl_b32 s%d, s%d, 11" % (sW2K, sW))
        I("v_lshrrev_b32 v%d, 4, v0" % g_)
        I("v_and_b32 v%d, 15, v0" % i_)
        tw, tx = vT + 12, vT + 13
        I("s_mul_i32 s%d, s%d, %d" % (sT + 2, sT + 3, 4 * 3072))
        I("v_lshlrev_b32 v%d, 10, v0" % tx)
        I("v_add_u32 v%d, s%d, v%d" % (tw, sT + 2, tx))
        I("s_lshl_b32 s%d, s%d, 18" % (sT + 2, sROT))
        I("s_lshl_b32 s%d, s%d, 11" % (sT, sT + 3))
        I("s_add_u32 s%d, s%d, s%d" % (sT, sT, sT + 2))
        I("v_add_u32 v%d, s%d, v%d" % (tx, sT, tx))
        I("v_lshrrev_b32 v%d, 3, v0" % l3)
        I("v_and_b32 v%d, 7, v0" % l7)
        I("v_xor_b32 v%d, v%d, v%d" % (vT + 4, l7, g_))
        I("v_lshlrev_b32 v%d, 4, v%d" % (vT + 4, vT + 4))
        I("v_lshl_add_u32 v%d, v%d, 10, v%d" % (vT + 4, l3, vT + 4))
        I("s_lshl_b32 s%d, s%d, 14" % (sT + 1, sW))
        I("v_add_u32 v%d, s%d, v%d" % (vXS0, sT + 1, vT + 4))
        I("v_xor_b32 v%d, 64, v%d" % (vXS1, vXS0))
        I("v_add_u32 v%d, 7168, v%d" % (vXS1, vXS1))
        I("v_and_b32 v%d, 1, v%d" % (vT + 4, g_))
        I("v_lshlrev_b32 v%d, 1, v%d" % (vT + 4, vT + 4))
        I("v_xor_b32 v%d, v%d, v%d" % (q0, l7, vT + 4))
        I("v_lshlrev_b32 v%d, 4, v%d" % (q0, q0))
        I("s_and_b32 s%d, s%d, 1" % (sT + 1, sW))
        I("s_lshl_b32 s%d, s%d, 6" % (sT + 1, sT + 1))
        I("v_xor_b32 v%d, s%d, v%d" % (vT + 4, sT + 1, q0))
        I("s_lshl_b32 s%d, s%d, 3" % (sT + 1, sW))
        I("v_add_u32 v%d, s%d, v%d" % (vT + 5, sT + 1, l3))
        I("v_mul_u32_u24 v%d, 3072, v%d" % (vT + 5, vT + 5))
        I("v_add_u32 v%d, v%d, v%d" % (vWS, vT + 4, vT + 5))
        sXO, sWO_, sRB = sAB, sAO, 93
        I("s_lshl_b32 s%d, s%d, 7" % (sWO_, sC))
        I("v_add_u32 v%d, s%d, v%d" % (vWS, sWO_, vWS))
        if self.diag:
            b.wait(lg=0)
            I("s_mov_b32 s91, s92")
        I("s_add_u32 s%d, s%d, 0x%x" % (sRB, sW2K, L_RING - 1024))
        I("s_lshl_b32 s%d, s%d, 7" % (sXO, sROT))
        I("s_mul_i32 s%d, s%d, %d" % (sWO_, sROT, 64 * 3072))
        if self.diag:
            I("v_mov_b32 v%d, 0" % vSTAMP)
        b.wait(lg=0)
        if self.diag:
            I("v_writelane_b32 v%d, s91, 61" % vSTAMP)
        self.stamp("start")
        I("s_add_u32 s88, s%d, 0x%x" % (S_WS, WS_EP))
        I("s_addc_u32 s89, s%d, 0" % (S_WS + 1))
        I("s_load_dword s%d, s[88:89], 0" % sEP)
        self.srd(R_WQ, S_WQ, 512 * 3072)
        I("s_add_u32 s%d, s%d, s%d" % (R_X, S_X, sRG64))
        I("s_addc_u32 s%d, s%d, 0" % (R_X + 1, S_X + 1))
        I("s_and_b32 s%d, s%d, 0xffff" % (R_X + 1, R_X + 1))
        I("s_mov_b32 s%d, 0x10000" % (R_X + 2))
        I("s_mov_b32 s%d, 0x20000" % (R_X + 3))
        tokA, tokW = {}, {}

        def issue_thunks(ks):
            th = []
            if ks % 2 == 0:
                ds = ks // 2
                tokA[ds] = []
                pre = ["s_add_u32 m0, s%d, 0x%x" % (sW2K, ds * 8192)]
                if ds:
                    pre += ["s_add_u32 s%d, s%d, 128" % (sXO, sXO), "s_and_b32 s%d, s%d, 0x380" % (sXO, sXO)]
                th.append((pre, lambda: tokA[ds].append(
                    I("buffer_load_dwordx4 v%d, s[%d:%d], s%d offen lds" % (vXS0, R_X, R_X + 3, sXO)))))
                th.append(([], lambda: tokA[ds].append(
                    I("buffer_load_dwordx4 v%d, s[%d:%d], s%d offen offset:1024 lds" % (vXS1, R_X, R_X + 3, sXO)))))
            tokW[ks] = []
            for p in range(2):
                pre = []
                if p == 0:
                    if ks:
                        pre.append("s_add_u32 s%d, s%d, %d" % (sWO_, sWO_, 32 * 3072))
                        if ks % 2 == 0:
                            pre += ["s_cmp_eq_u32 s%d, %d" % (sWO_, 512 * 3072), "s_cselect_b32 s%d, 0, s%d" % (sWO_, sWO_)]
                    pre.append("s_add_u32 m0, s%d, 0x%x" % (sRB, (ks % NR) * 8192))
                th.append((pre, lambda p=p: tokW[ks].append(I("buffer_load_dwordx4 v%d, s[%d:%d], s%d offen offset:%d lds" % (
                    vWS, R_WQ, R_WQ + 3, sWO_, (p + 1) * 1024)))))
            return th

        tokQ = []

        def rq_base(ks):
            return L_PACK + ks * 4096 if ks < 4 else L_RING + (ks - 4) * 4096

        def q_thunk(ks):
            pre = ["s_add_u32 s%d, s%d, %d" % (sWO_, sWO_, 32 * 3072)]
            if ks % 2 == 0:
                pre += ["s_cmp_eq_u32 s%d, %d" % (sWO_, 512 * 3072), "s_cselect_b32 s%d, 0, s%d" % (sWO_, sWO_)]
            pre.append("s_add_u32 m0, s%d, 0x%x" % (sW1K, rq_base(ks)))
            return (pre, lambda: tokQ.append(I("buffer_load_dwordx4 v%d, s[%d:%d], s%d offen lds" % (vWS, R_WQ, R_WQ + 3, sWO_))))
        self.tokQ, self.rq_base = tokQ, rq_base

        def issue_now(ks):
            for pre, th in issue_thunks(ks):
                for t in pre:
                    I(t)
                th()

        if env("T0", 1):
            self.srd(R_PK, S_X, 2048 * 1024)
            for ptr, srd, v, mask in ((S_WQ, R_WQ, tw, 0xfff), (S_X, R_PK, tx, 3)):
                I("s_sub_u32 s%d, 0x180, s%d" % (sT, ptr))
                I("s_and_b32 s%d, s%d, 0x380" % (sT, sT))
                I("s_mov_b64 exec, 0x%x" % mask)
                I("buffer_load_dword v%d, v%d, s[%d:%d], s%d offen" % (vDUM, v, srd, srd + 3, sT))
            I("s_mov_b64 exec, -1")
        NFIRST = env("NFIRST", 2)
        for ks in range(NFIRST):
            issue_now(ks)
        if env("EARLYP", 0):
            ptk = self.pack_load(l3, q0)
        self.stamp("first")
        I("s_getreg_b32 s%d, hwreg(HW_REG_XCC_ID, 0, 4)" % sXCC)
        I("s_mov_b32 s%d, 0x100000" % sSPIN)
        self.srd(R_WS, S_WS, WS_SIZE)
        self.srd(R_OUT, S_OUT, 2048 * 1024)
        I("v_lshlrev_b32 v%d, 4, v0" % vL16)
        I("v_lshlrev_b32 v%d, 2, v0" % vL4)
        I("s_lshl_b32 s%d, s%d, 10" % (sW1K, sW))
        I("s_lshl_b32 s%d, s%d, 2" % (sT, sC))
        I("s_add_u32 s%d, s%d, s%d" % (sT, sT, sW))
        I("s_mul_i32 s%d, s%d, %d" % (sKV, sT, KVH))
        I("s_add_u32 s%d, s%d, 0x%x" % (sKV, sKV, WS_KV + KB0))
        I("v_mov_b32 v%d, 0" % vC2)
        I("s_and_b32 s%d, s%d, 15" % (sT + 1, sRG))
        I("s_mul_i32 s%d, s%d, %d" % (sT + 1, sT + 1, KVH // 16))
        I("s_add_u32 s%d, s%d, s%d" % (sT + 1, sT + 1, sKV))
        I("s_lshr_b32 s%d, s%d, 4" % (sT + 2, sRG))
        I("s_mul_i32 s%d, s%d, %d" % (sT + 2, sT + 2, KVL))
        I("s_add_u32 s%d, s%d, s%d" % (sT + 1, sT + 1, sT + 2))
        I("v_mov_b32 v%d, 0" % vPOLL)
        I("v_mov_b32 v%d, 0" % (vPOLL + 1))
        I("v_lshlrev_b32 v%d, 3, v0" % (vT + 4))
        assert KVH % 128 == 0 and KVH // 128 <= 64
        mask = (1 << (KVH // 128)) - 1
        I("s_mov_b32 exec_lo, 0x%x" % (mask & 0xffffffff))
        I("s_mov_b32 exec_hi, 0x%x" % (mask >> 32))
        ztok = I("buffer_store_dwordx2 %s, v%d, %s, s%d offen sc1" % (p2(vPOLL), vT + 4, self.ws(), sT + 1))
        I("s_mov_b64 exec, -1")
        I("s_mul_i32 s%d, s%d, %d" % (sPK, sT, PKW))
        I("s_lshl_b32 s%d, s%d, 7" % (sFL, sRG))
        I("s_lshl_b32 s%d, s%d, 12" % (sR1, sC))
        I("s_add_u32 s%d, s%d, 0x%x" % (sR1, sR1, WS_R2))
        I("s_add_u32 s%d, s%d, 0x%x" % (sFL, sFL, WS_FL))
        I("s_lshl_b32 s%d, s%d, 2" % (sMYF, sT))
        I("s_add_u32 s%d, s%d, s%d" % (sMYF, sMYF, sFL))
        I("s_lshl_b32 s%d, s%d, 14" % (sSTC, sRG))
        I("s_add_u32 s%d, s%d, 0x%x" % (sSTC, sSTC, WS_ST))
        I("s_lshl_b32 s%d, s%d, 8" % (sSTP, sT))
        I("s_add_u32 s%d, s%d, s%d" % (sSTP, sSTP, sSTC))
        I("s_add_u32 s%d, s%d, s%d" % (sSTC, sSTC, sW2K))
        I("s_mul_i32 s%d, s%d, %d" % (sRGH, sRG, HSZ))
        I("s_lshl_b32 s%d, s%d, 12" % (sSTO, sC))
        I("s_lshl_b32 s%d, s%d, 9" % (sT + 1, sW))
        I("s_add_u32 s%d, s%d, s%d" % (sSTO, sSTO, sT + 1))
        I("s_lshl_b32 s%d, s%d, 5" % (sOUT, sT))
        I("s_mul_i32 s%d, s%d, 3" % (sT, sT))
        for t in range(3):
            I("s_add_u32 s%d, s%d, %d" % (sT + 1, sT, t))
            I("s_lshr_b32 s%d, s%d, 2" % (sT + 2, sT + 1))
            I("s_lshl_b32 s%d, s%d, 12" % (sT + 2, sT + 2))
            I("s_and_b32 s%d, s%d, 3" % (sT + 3, sT + 1))
            I("s_lshl_b32 s%d, s%d, 9" % (sT + 3, sT + 3))
            I("s_add_u32 s%d, s%d, s%d" % (sT + 2, sT + 2, sT + 3))
            I("s_add_u32 s%d, s%d, s%d" % (sT + 2, sT + 2, sRGH))
            I("s_cmp_lt_u32 s%d, 86" % (sT + 1))
            I("s_cselect_b32 s%d, s%d, 0x%x" % (sH0 + t, sT + 2, OOB))
            I("s_cselect_b32 s%d, 0, 0x%x" % (sT + 2, OOB))
            I("v_add_u32 v%d, s%d, v%d" % (vW1 + t, sT + 2, vL16))
        I("v_add_u32 v%d, 0x10000, v%d" % (vA1, vL16))
        I("v_add_u32 v%d, s%d, v%d" % (vDMA, sW1K, vL16))
        I("v_add_u32 v%d, s%d, v%d" % (vDM2, sW2K, vL16))
        I("v_and_b32 v%d, 0x7c, v%d" % (vFL, vL4))
        I("v_lshrrev_b32 v%d, 1, v%d" % (vT + 4, g_))
        I("v_lshlrev_b32 v%d, 8, v%d" % (vT + 4, vT + 4))
        I("v_lshl_add_u32 v%d, v%d, 4, v%d" % (vT + 4, i_, vT + 4))
        I("v_and_b32 v%d, 1, v%d" % (vT + 5, g_))
        I("v_lshl_add_u32 v%d, v%d, 11, v%d" % (vST, vT + 5, vT + 4))
        I("v_lshlrev_b32 v%d, 4, v%d" % (vSTA, g_))
        I("v_add_u32 v%d, 0x%x, v%d" % (vSTA, L_STA, vSTA))
        I("v_lshlrev_b32 v%d, 3, v%d" % (vSTQ, i_))
        I("v_add_u32 v%d, 0x%x, v%d" % (vSTQ, L_STA + 512, vSTQ))
        I("s_lshl_b32 s%d, s%d, 6" % (sT, sW))
        I("s_add_u32 s%d, s%d, 0x%x" % (sT, sT, L_STA))
        I("v_lshlrev_b32 v%d, 2, v%d" % (vSW, i_))
        I("v_add_u32 v%d, s%d, v%d" % (vSW, sT, vSW))
        I("v_lshrrev_b32 v%d, 3, v%d" % (vT + 4, i_))
        I("v_lshlrev_b32 v%d, 10, v%d" % (vT + 4, vT + 4))
        I("v_and_b32 v%d, 7, v%d" % (vT + 5, i_))
        I("v_lshl_add_u32 v%d, v%d, 7, v%d" % (vT + 4, vT + 5, vT + 4))
        I("v_lshrrev_b32 v%d, 1, v%d" % (vT + 5, i_))
        I("v_xor_b32 v%d, v%d, v%d" % (vT + 5, vT + 5, g_))
        I("v_lshl_add_u32 v%d, v%d, 4, v%d" % (vX0, vT + 5, vT + 4))
        I("v_xor_b32 v%d, 64, v%d" % (vX1, vX0))
        I("v_add_u32 v%d, s%d, v%d" % (vOW0, sW2K, vX0))
        I("v_add_u32 v%d, s%d, v%d" % (vOW1, sW2K, vX1))
        I("v_bfe_u32 v%d, v0, 2, 2" % (vT + 4))
        I("v_bfe_u32 v%d, v0, 3, 1" % (vT + 5))
        I("v_lshlrev_b32 v%d, 1, v%d" % (vT + 5, vT + 5))
        I("v_bfe_u32 v%d, v0, 4, 1" % (vT + 10))
        I("v_lshl_add_u32 v%d, v%d, 2, v%d" % (vT + 5, vT + 10, vT + 5))
        I("v_bfe_u32 v%d, v0, 1, 1" % (vT + 10))
        I("v_xor_b32 v%d, v%d, v%d" % (vT + 5, vT + 5, vT + 10))
        I("v_lshlrev_b32 v%d, 4, v%d" % (vT + 5, vT + 5))
        I("v_lshl_add_u32 v%d, v%d, 7, v%d" % (tc, vT + 4, vT + 5))
        I("v_and_b32 v%d, 1, v0" % (vT + 10))
        I("v_lshl_add_u32 v%d, v%d, 3, v%d" % (tc, vT + 10, tc))
        I("s_lshl_b32 s%d, s%d, 5" % (sT + 1, sW))
        I("v_xor_b32 v%d, s%d, v%d" % (vT + 4, sT + 1, tc))
        I("v_lshl_add_u32 v%d, v%d, 10, v%d" % (vTQ, g_, vT + 4))
        I("v_add_u32 v%d, 0x%x, v%d" % (vTQ, L_RING, vTQ))
        I("v_lshl_add_u32 v%d, v%d, 11, v%d" % (vT + 4, g_, vT + 4))
        I("v_add_u32 v%d, 0x%x, v%d" % (vTR, L_RING, vT + 4))
        for k in range(4):
            I("v_mov_b32 v%d, 0x3f803f80" % (vONE + k))
        I("v_mov_b32 v%d, 0x3fb8aa3b" % vK)
        I("v_mov_b32 v%d, 0x358637bd" % (vK + 1))
        I("s_mul_i32 s%d, s%d, 2560" % (sT, sW))
        I("s_add_u32 s%d, s%d, 0x%x" % (sT, sT, L_KVI))
        I("v_add_u32 v%d, s%d, v%d" % (vKVL, sT, vL4))
        for r in range(4):
            I("v_add_u32 v%d, %d, v0" % (vT + 4, 64 * r))
            I("v_mul_u32_u24 v%d, 4370, v%d" % (vT + 5, vT + 4))
            I("v_lshrrev_b32 v%d, 16, v%d" % (vT + 5, vT + 5))
            I("v_add_u32 v%d, v%d, v%d" % (vT + 4, vT + 4, vT + 5))
            I("v_lshlrev_b32 v%d, 2, v%d" % (vT + 4, vT + 4))
            I("v_add_u32 v%d, s%d, v%d" % (vPOS + r, sT, vT + 4))
        I("v_lshrrev_b32 v%d, 1, v%d" % (vT + 4, g_))
        I("v_add_u32 v%d, v%d, v%d" % (vT + 4, vT + 4, g_))
        I("v_lshlrev_b32 v%d, 4, v%d" % (vT + 4, vT + 4))
        I("s_add_u32 s%d, s%d, %d" % (sT, sT, 276 * 4))
        I("v_add_u32 v%d, s%d, v%d" % (vZP, sT, vT + 4))
        I("v_cmp_eq_u32 vcc, 15, v%d" % i_)
        I("v_cndmask_b32 v%d, 0, 1.0, vcc" % (vT + 4))
        b.wait(lg=0)
        for k in range(5):
            I("ds_write_b32 v%d, v%d offset:%d" % (vKVL, vT + 4, 256 * k))
        I("s_xor_b32 s%d, s%d, 0x80000000" % (sTAG, sEP))
        I("s_and_b32 s%d, s%d, 0xfffffff0" % (sTAG, sTAG))
        I("s_mov_b32 s%d, 0x358637bd" % sEPS)
        for r, val in ((sM1, 0x22222222), (sM2, 0x44444444), (sM3, 0x88888888)):
            I("s_mov_b32 s%d, 0x%x" % (r, val))
            I("s_mov_b32 s%d, 0x%x" % (r + 1, val))
        I("s_mov_b32 s%d, 0x00f0000f" % sDIAG)
        I("s_mov_b32 s%d, 0xf0000f00" % (sDIAG + 1))
        I("v_lshlrev_b32 v%d, 10, v%d" % (vT + 4, g_))
        I("s_lshl_b32 s%d, s%d, 12" % (sT, sW))
        I("v_add_u32 v%d, s%d, v%d" % (vT + 4, sT, vT + 4))
        for t in range(4):
            I("v_xor_b32 v%d, %d, v%d" % (vCS1 + 4 + t, 32 * t, tc))
            I("v_add_u32 v%d, v%d, v%d" % (vCS1 + 4 + t, vCS1 + 4 + t, vT + 4))
            I("v_add_u32 v%d, 0x%x, v%d" % (vCS1 + 4 + t, L_PACK, vCS1 + 4 + t))
        I("v_lshlrev_b32 v%d, 10, v%d" % (vT + 14, i_))
        I("v_lshl_add_u32 v%d, v%d, 3, v%d" % (vT + 14, g_, vT + 14))
        I("s_add_u32 s%d, s%d, s%d" % (sT, sTAG, sXCC))
        I("v_mov_b32 v%d, s%d" % (vT + 15, sT))
        for ks in range(NFIRST, env('NINIT', 5)):
            issue_now(ks)
        nxt = env('NINIT', 5)
        nq = 0
        if not env("EARLYP", 0):
            ptk = self.pack_load(l3, q0)
        I("s_mov_b64 exec, 1")
        I("buffer_load_dword v%d, off, %s, s%d sc1" % (vDUM, self.ws(), sFL))
        I("s_mov_b64 exec, -1")
        self.stamp("setup")

        tmp = [self.free.pop() for _ in range(6)]
        assert all(s[0] == "v" for s in tmp)
        cK, cV = tmp[4][1], tmp[5][1]
        res_toks = []
        KP, KANN, KI, KC = env("KP", 3), env("KANN", 8), env("KI", 14), env("KC", 99)
        for ks in range(17):
            fill, dma, nrd = [], [], 0
            if ks < 16:
                b.wait(tokW[ks], tokA[ks // 2])
                if ks == KANN:
                    b.wait(pst)
                I("s_barrier")
                if ks == 0:
                    self.stamp("w0")
                elif env("LSTAMP", 0):
                    self.stamp("it%d" % ks)
                if ks == KC:
                    self.r1_check()
                    self.bg_w = len(self.free) - 2 * (16 - ks) - 16
                    self.last_bg = self.clock
                if ks == KANN:
                    assert b.vm_done > pst[-1][1] and b.vm_done > ztok[1]
                    lx = b.newlabel("Lann")
                    I("s_cmp_lg_u32 s%d, 0" % sW)
                    I("s_cbranch_scc1 %s" % lx)
                    I("s_lshl_b32 s%d, s%d, 7" % (sT, sRG))
                    I("s_add_u32 s%d, s%d, s%d" % (sT, sT, sR1))
                    I("s_mov_b64 exec, 1")
                    self.Inc("buffer_store_dword v%d, off, %s, s%d sc1" % (vT + 15, self.ws(), sT))
                    I("s_mov_b64 exec, -1")
                    b.label(lx)
                for p in range(2):
                    s = self.free.pop(0)
                    self.wslot[("qkv", 0, 2 * ks + p)] = (s, None)
                    for hh in range(2):
                        fill.append(lambda s=s, hh=hh, p=p: I("ds_read_b64_tr_b16 %s, v%d offset:%d" % (
                            vr(s[1] + 2 * hh, 2, s[0]), vTR, (ks % NR) * 8192 + p * 1024 + hh * 512)))
                fb = vAF + (ks & 1) * 20
                ds, h = ks // 2, ks & 1
                for rt in range(4):
                    fill.append(lambda rt=rt: I("ds_read_b128 %s, v%d offset:%d" % (
                        vr(fb + 4 * rt, 4), (vX0, vX1)[h], ds * 8192 + rt * 2048)))
                fill.append(lambda: I("ds_read_b128 %s, v%d offset:%d" % (vr(fb + 16, 4), (vOW0, vOW1)[h], ds * 8192)))
                nrd = len(fill)
                k2 = 0
                while nxt < min(16, ks + NR) and k2 < 2:
                    dma += issue_thunks(nxt)
                    nxt += 1
                    k2 += 1
                if nxt == 16 and not dma and ks > KP + 1:
                    while nq < 16 and len(dma) < env("QPER", 3) and (nq < 4 or 8 + (nq - 4) // 2 < ks):
                        dma.append(q_thunk(nq))
                        nq += 1
                if ks == KI:
                    fill.append(self.r1_issue)
                if ks == env("KOX", 15) and FT:
                    def tch():
                        self.touch_ox(0)
                        I("v_and_b32 v%d, 1, v0" % vT)
                        I("v_lshrrev_b32 v%d, 1, v0" % (vT + 1))
                        I("v_lshlrev_b32 v%d, 13, v%d" % (vT + 1, vT + 1))
                        I("v_lshl_add_u32 v%d, v%d, 7, v%d" % (vT + 5, vT, vT + 1))
                        I("s_mov_b64 exec, 15")
                        I("buffer_load_dword v%d, v%d, %s, s%d offen sc1" % (vDUM, vT + 5, self.ws(), sSTP))
                        I("s_mov_b64 exec, -1")
                    fill.append(tch)
                if ks == KP:
                    def prd():
                        b.wait(ptk)
                        for t in range(4):
                            for hh in range(2):
                                I("ds_read_b64_tr_b16 %s, v%d offset:%d" % (p2(tmp[t][1] + 2 * hh), vCS1 + 4 + t, hh * 512))
                    fill.append(prd)
            mfs = []
            if ks >= 1:
                k1 = ks - 1
                fb1 = vAF + (k1 & 1) * 20
                c0 = "0" if k1 == 0 else None
                wk, wv = [slot_r(self.wslot[("qkv", 0, k)][0]) for k in (2 * k1, 2 * k1 + 1)]
                one = vr(vONE, 4)
                for rt in range(4):
                    mfs.append(self.mf(vACC + 4 * rt, vr(fb1 + 4 * rt, 4), wk, c0))
                    mfs.append(self.mf(vACC + 16 + 4 * rt, vr(fb1 + 4 * rt, 4), wv, c0))
                own = vr(fb1 + 16, 4)
                mfs += [self.mf(vS1, one, own, c0), self.mf(vS2, own, own, c0),
                        self.mf(cK, one, wk, c0), self.mf(cV, one, wv, c0)]
            rds, extra = fill[:nrd], fill[nrd:]
            for _ in range(min(3, len(rds))):
                rds.pop(0)()
            while mfs:
                mfs.pop(0)()
                if rds:
                    for _ in range(min(2, len(rds))):
                        rds.pop(0)()
                    if len(rds) <= 2 and dma and dma[0][0]:
                        I(dma[0][0].pop(0))
                elif dma:
                    if dma[0][0]:
                        while dma[0][0]:
                            I(dma[0][0].pop(0))
                    else:
                        dma.pop(0)[1]()
                elif extra:
                    extra.pop(0)()
            for f in rds:
                f()
            for pre, th in dma:
                for t in pre:
                    I(t)
                th()
            for f in extra:
                f()
            b.wait(lg=0)
            if ks == KP:
                pst = [I("buffer_store_dwordx4 %s, v%d, %s, s%d offen sc1" % (slot_r(tmp[t]), vL16, self.ws(), 80 + t))
                       for t in range(4)]
        while nq < 16:
            assert nq < 4 or 8 + (nq - 4) // 2 < 15
            pre, th = q_thunk(nq)
            for t in pre:
                I(t)
            th()
            nq += 1
        I("s_sub_u32 s%d, s%d, s%d" % (sT, sC, sROT))
        I("s_and_b32 s%d, s%d, 7" % (sT, sT))
        I("s_lshl_b32 s%d, s%d, 13" % (sT, sT))
        I("v_lshrrev_b32 v%d, 4, v0" % vT)
        I("v_lshrrev_b32 v%d, 5, v0" % (vT + 1))
        I("v_xor_b32 v%d, v%d, v%d" % (vT + 1, vT + 1, vT))
        I("s_lshl_b32 s%d, s%d, 1" % (sT + 1, sW))
        I("v_xor_b32 v%d, s%d, v%d" % (vT + 1, sT + 1, vT + 1))
        I("v_lshlrev_b32 v%d, 4, v%d" % (vT + 1, vT + 1))
        I("v_xor_b32 v%d, v%d, v%d" % (vT + 1, vT + 1, vX0))
        I("v_and_b32 v%d, 1, v%d" % (vT, vT))
        I("v_lshl_add_u32 v%d, v%d, 3, v%d" % (vT + 1, vT, vT + 1))
        I("v_add_u32 v%d, s%d, v%d" % (vT + 1, sT, vT + 1))
        res = [I("ds_read_b64 %s, v%d offset:%d" % (p2(vS1 + 8 + 0) if False else p2(vACC + 32 + 2 * rt), vT + 1, rt * 2048)) for rt in range(4)]
        I("v_mov_b32 v%d, v%d" % (vOA, vT + 14))
        self.bg_w = 0
        self.stamp("kvpass")
        if KC > 16:
            self.r1_check()
        self.stats_startup()
        t1 = []
        for rt in range(4):
            t1.append(I("ds_read_b128 %s, v%d offset:%d" % (vr(vAF + 4 * rt, 4), vSTA, rt * 64)))
            t1.append(I("ds_read_b128 %s, v%d offset:%d" % (vr(vAF + 16 + 4 * rt, 4), vSTA, 256 + rt * 64)))
        for rt in range(4):
            t1.append(I("ds_read_b64 %s, v%d offset:%d" % (p2(vAB + 2 * rt), vSTQ, rt * 128)))
        for k in range(2):
            I("v_mov_b32 v%d, v%d" % (vCSK + k, cK))
            I("v_mov_b32 v%d, v%d" % (vCSV + k, cV))
        self.free += tmp
        I("v_add_u32 v%d, s%d, v%d" % (vSB, sW2K, vL4))
        I("v_add_u32 v%d, 0x%x, v%d" % (vEX, L_EX, vL4))
        I("s_lshl_b32 s%d, s%d, 8" % (sT, sW))
        I("v_add_u32 v%d, s%d, v%d" % (vSW, sT, vEX))
        I("v_and_b32 v%d, 15, v0" % vT)
        I("v_lshrrev_b32 v%d, 5, v0" % (vT + 1))
        I("v_lshlrev_b32 v%d, 6, v%d" % (vT + 1, vT + 1))
        I("v_lshl_add_u32 v%d, v%d, 2, v%d" % (vSWR, vT, vT + 1))
        I("s_add_u32 s%d, s%d, 0x%x" % (sT, sT, L_STA))
        I("v_add_u32 v%d, s%d, v%d" % (vSWR, sT, vSWR))
        for rt in range(4):
            for k in range(2):
                s = vACC + 32 + 2 * rt + k
                I("v_lshlrev_b32 v%d, 16, v%d" % (vX + 4 * rt + 2 * k, s))
                I("v_and_b32 v%d, 0xffff0000, v%d" % (vX + 4 * rt + 2 * k + 1, s))
        self.qslots = [self.free.pop(0) for _ in range(16)]
        self.bg_w = env("W_KVE", 14)
        b.wait(t1)
        I("s_lshl_b32 s%d, s%d, 8" % (sT, sW))
        I("v_add_u32 v%d, s%d, v%d" % (vSTA, sT, vSTA))
        for hf in range(2):
            self.kv_epilogue(hf, vAF + 8 * hf, vAF + 16 + 8 * hf)

    def pack_load(self, l3, q0):
        b = self.b
        I = b.I
        dst = 80
        uid, src, strd = sT, sT + 1, sT + 2
        I("s_lshl_b32 s%d, s%d, 2" % (uid, sRG))
        I("s_add_u32 s%d, s%d, s%d" % (uid, uid, sW))
        lw1, lw2, lnone, lgo = [b.newlabel("Lpk") for _ in range(4)]
        I("s_mul_i32 s88, s%d, %d" % (sC, 4 * PKW))
        I("s_mov_b32 s%d, 0x20000" % (R_PK + 3))

        def setsrd(ptr, size, stride):
            I("s_mov_b32 s%d, s%d" % (R_PK, ptr))
            I("s_and_b32 s%d, s%d, 0xffff" % (R_PK + 1, ptr + 1))
            I("s_mov_b32 s%d, %d" % (R_PK + 2, size))
            I("s_movk_i32 s%d, %d" % (strd, stride))

        def simple(f0):
            I("s_lshl_b32 s%d, s%d, 15" % (src, uid))
            I("s_lshl_b32 s89, s%d, 7" % sC)
            I("s_add_u32 s%d, s%d, s89" % (src, src))
            I("s_add_u32 s89, s%d, %d" % (uid, f0))
            I("s_lshl_b32 s89, s89, 10")
            I("s_add_u32 s88, s88, s89")
            for t in range(4):
                I("s_add_u32 s%d, s88, %d" % (dst + t, t * PKW))
            I("s_branch %s" % lgo)

        I("s_cmp_ge_u32 s%d, 16" % uid)
        I("s_cbranch_scc1 %s" % lw1)
        setsrd(S_WO, 512 * 1024, 1024)
        simple(F_WO)
        b.label(lw1)
        I("s_cmp_ge_u32 s%d, 64" % uid)
        I("s_cbranch_scc1 %s" % lw2)
        I("s_sub_u32 s%d, s%d, 16" % (uid, uid))
        I("s_mul_i32 s89, s%d, 43" % uid)
        I("s_lshr_b32 s89, s89, 7")
        I("s_mul_i32 s92, s89, 3")
        I("s_sub_u32 s92, s%d, s92" % uid)
        setsrd(S_W1, 512 * 2752, 2752)
        I("s_mul_i32 s%d, s89, %d" % (src, 32 * 2752))
        I("s_mul_i32 s79, s%d, 384" % sC)
        I("s_add_u32 s%d, s%d, s79" % (src, src))
        I("s_lshl_b32 s79, s92, 7")
        I("s_add_u32 s%d, s%d, s79" % (src, src))
        I("s_mul_i32 s89, s89, 3072")
        I("s_add_u32 s88, s88, s89")
        I("s_add_u32 s88, s88, %d" % (F_W1 * 1024))
        for t in range(4):
            I("s_lshl_b32 s79, s92, 2")
            I("s_add_u32 s79, s79, %d" % t)
            I("s_mul_i32 s89, s79, 43")
            I("s_lshr_b32 s89, s89, 7")
            I("s_mul_i32 s%d, s89, %d" % (dst + t, PKW - 3072))
            I("s_lshl_b32 s79, s79, 10")
            I("s_add_u32 s%d, s%d, s79" % (dst + t, dst + t))
            I("s_add_u32 s%d, s%d, s88" % (dst + t, dst + t))
        I("s_mul_i32 s79, s%d, 3" % sC)
        I("s_add_u32 s79, s79, s92")
        I("s_cmp_ge_u32 s79, 22")
        I("s_cbranch_scc1 %s" % lnone)
        I("s_branch %s" % lgo)
        b.label(lw2)
        I("s_cmp_ge_u32 s%d, 107" % uid)
        I("s_cbranch_scc1 %s" % lnone)
        I("s_sub_u32 s%d, s%d, 64" % (uid, uid))
        setsrd(S_W2, 1376 * 1024, 1024)
        simple(F_W2)
        b.label(lnone)
        setsrd(S_WQ, 0, 1024)
        I("s_mov_b32 s%d, 0" % src)
        for t in range(4):
            I("s_mov_b32 s%d, 0x%x" % (dst + t, OOB))
        b.label(lgo)
        I("v_mul_lo_u32 v%d, v%d, s%d" % (vT + 4, l3, strd))
        I("v_add_u32 v%d, v%d, v%d" % (vT + 10, vT + 4, q0))
        I("v_xor_b32 v%d, 64, v%d" % (vT + 5, q0))
        I("v_add_u32 v%d, v%d, v%d" % (vT + 11, vT + 4, vT + 5))
        I("s_lshl_b32 s%d, s%d, 3" % (strd, strd))
        I("s_lshl_b32 s89, s%d, 12" % sW)
        I("s_add_u32 m0, s89, 0x%x" % L_PACK)
        toks = []
        for q in range(4):
            toks.append(I("buffer_load_dwordx4 v%d, s[%d:%d], s%d offen lds" % (vT + 10 + (q & 1), R_PK, R_PK + 3, src)))
            if q < 3:
                I("s_add_u32 s%d, s%d, s%d" % (src, src, strd))
                I("s_add_u32 m0, m0, 1024")
        return toks

    def r1_issue(self):
        I = self.b.I
        a = vCS1 + 2
        I("v_and_b32 v%d, 7, v0" % a)
        I("v_subrev_u32 v%d, s%d, v%d" % (a, sC, a))
        I("v_lshlrev_b32 v%d, 12, v%d" % (a, a))
        I("s_lshl_b32 s%d, s%d, 7" % (sT, sRG))
        I("s_add_u32 s%d, s%d, s%d" % (sT, sT, sR1))
        I("v_add_u32 v%d, s%d, v%d" % (a, sT, a))
        I("v_add_u32 v%d, s%d, v%d" % (vT + 5, sR1, vTCH))
        I("v_cmp_gt_u32 vcc, 32, v0")
        I("v_cndmask_b32 v%d, v%d, v%d, vcc" % (a, a, vT + 5))
        self.r1_tok = I("buffer_load_dword v%d, v%d, %s, 0 offen sc1" % (vPOLL, a, self.ws()))

    def r1_check(self):
        b = self.b
        I = b.I
        lp, ld, lc = b.newlabel("Ltag"), b.newlabel("Ltagd"), b.newlabel("Ltagc")
        b.wait(self.r1_tok)
        I("s_branch %s" % lc)
        b.label(lp)
        self.Inc("buffer_load_dword v%d, v%d, %s, 0 offen sc1" % (vPOLL, vCS1 + 2, self.ws()))
        I("s_waitcnt vmcnt(0)")
        b.label(lc)
        I("v_subrev_u32 v%d, s%d, v%d" % (vPOLL, sTAG, vPOLL))
        I("v_cmp_gt_u32 vcc, 16, v%d" % vPOLL)
        I("s_cmp_eq_u64 vcc, exec")
        I("s_cbranch_scc1 %s" % ld)
        self.spin_guard(lp)
        b.label(ld)
        I("v_cmp_eq_u32 vcc, s%d, v%d" % (sXCC, vPOLL))
        I("s_cmp_eq_u32 vcc_hi, -1")
        I("s_cselect_b32 s%d, 1, 0" % sFAST)

    def touch_w(self, f0, m):
        I = self.b.I
        I("s_mul_i32 s%d, s%d, %d" % (sTC, sQ, m * 1024))
        I("s_add_u32 s%d, s%d, s%d" % (sTC, sTC, sPK))
        I("s_add_u32 s%d, s%d, %d" % (sTC, sTC, f0 * 1024))
        mask = (1 << (8 * m)) - 1
        I("s_mov_b32 exec_lo, 0x%x" % (mask & 0xffffffff))
        I("s_mov_b32 exec_hi, 0x%x" % (mask >> 32))
        I("buffer_load_dword v%d, v%d, %s, s%d offen sc1" % (vDUM, vTCH, self.ws(), sTC))
        I("s_mov_b64 exec, -1")

    def touch_ox(self, layer):
        I = self.b.I
        I("s_and_b32 s%d, s%d, 1" % (sT + 2, sW))
        I("s_lshl_b32 s%d, s%d, 15" % (sT, sT + 2))
        I("s_add_u32 s%d, s%d, s%d" % (sT, sT, sRG64))
        I("s_add_u32 s%d, s%d, 0x%x" % (sT, sT, self.buf("X", 2 * layer)))
        I("s_mul_i32 s%d, s%d, %d" % (sT + 1, sT + 2, self.hstride("O")))
        I("s_add_u32 s%d, s%d, s%d" % (sT + 1, sT + 1, self.rgs("O")))
        I("s_add_u32 s%d, s%d, 0x%x" % (sT + 1, sT + 1, self.buf("O", layer)))
        I("s_bitcmp1_b32 s%d, 1" % sW)
        I("s_cselect_b32 s%d, s%d, s%d" % (sT, sT, sT + 1))
        I("s_lshl_b32 s%d, s%d, 12" % (sT + 1, sC))
        I("s_add_u32 s%d, s%d, s%d" % (sT, sT, sT + 1))
        I("s_mov_b32 exec_hi, 0")
        I("buffer_load_dword v%d, v%d, %s, s%d offen sc1" % (vDUM, vTCH, self.ws(), sT))
        I("s_mov_b32 exec_hi, -1")

    def touch_h(self, layer):
        I = self.b.I
        I("s_lshr_b32 s%d, s%d, 1" % (sT + 1, sW))
        I("s_mul_i32 s%d, s%d, %d" % (sT + 1, sT + 1, HSZ // 2 - 12288))
        I("s_mul_i32 s%d, s%d, 6144" % (sT + 2, sW))
        I("s_add_u32 s%d, s%d, s%d" % (sT + 1, sT + 1, sT + 2))
        I("s_mul_i32 s%d, s%d, 12288" % (sT + 2, sC))
        I("s_add_u32 s%d, s%d, s%d" % (sT + 1, sT + 1, sT + 2))
        I("s_add_u32 s%d, s%d, s%d" % (sT + 1, sT + 1, sRGH))
        I("s_add_u32 s%d, s%d, 0x%x" % (sT + 1, sT + 1, self.buf("H", layer)))
        I("s_cmp_lt_u32 s%d, 7" % sC)
        I("s_cselect_b32 s%d, s%d, 0x%x" % (sT + 1, sT + 1, OOB))
        I("s_mov_b32 exec_hi, 0xffff")
        I("buffer_load_dword v%d, v%d, %s, s%d offen sc1" % (vDUM, vTCH, self.ws(), sT + 1))
        I("s_mov_b32 exec_hi, -1")

    def kv_items(self, hf, seqs):
        items = []
        for ks in range(16):
            c0 = "0" if ks == 0 else None
            for r in range(2):
                def mfs(fr, ks=ks, r=r, c0=c0):
                    kk, kv_ = ("qkv", 0, 2 * ks), ("qkv", 0, 2 * ks + 1)
                    th = [self.mf(vACC + 8 * hf + 4 * r, fr, self.w_get(kk), c0),
                          self.mf(vACC + 16 + 8 * hf + 4 * r, fr, self.w_get(kv_), c0)]
                    if hf == 1 and r == 1:
                        th.append(lambda: (self.w_release(kk), self.w_release(kv_)))
                    return th
                a, off = self.frag_addr(seqs[ks // 2], r, ks & 1)
                items.append((a, off, seqs[ks // 2], mfs))
        self.pinned.update(seqs)
        return items

    def kv_finish(self, hf):
        b = self.b
        rd = [b.I("ds_read_b128 %s, v%d offset:%d" % (vr(vAF + 4 * k, 4), vSTA, (k & 1) * 64 + (k >> 1) * 128)) for k in range(4)]
        b.wait(rd)
        self.kv_epilogue(hf, vAF, vAF + 8)

    def attention(self, layer, xseqs):
        b = self.b
        I = self.I
        KVD, ZD = vS1, vS2
        one = vr(vONE, 4)
        self.bg_w = 0
        for p in range(2):
            c0 = "0" if p == 0 else None
            self.mf(KVD, vr(vACC + 8 * p, 4), vr(vACC + 16 + 8 * p, 4), c0)()
            self.mf(ZD, vr(vACC + 8 * p, 4), one, c0)()
        b.I("s_add_u32 s%d, s%d, %d" % (sKB, sKV, layer * KVL))
        b.I("s_and_b32 s%d, s%d, %d" % (sKB + 1, sRG, NC - 1))
        b.I("s_mul_i32 s%d, s%d, %d" % (sKB + 1, sKB + 1, KCS))
        b.I("s_add_u32 s%d, s%d, s%d" % (sKB + 1, sKB + 1, sKB))
        for r in range(4):
            b.I("ds_write_b32 v%d, v%d" % (vPOS + r, KVD + r))
        b.I("s_mov_b32 exec_lo, 0x00010001")
        b.I("s_mov_b32 exec_hi, 0x00010001")
        b.I("ds_write_b128 v%d, %s" % (vZP, vr(ZD, 4)))
        b.I("s_mov_b64 exec, -1")
        rd = [b.I("ds_read_b32 v%d, v%d offset:%d" % (vT + k, vKVL, 256 * k)) for k in range(5)]
        for k in range(5):
            b.wait(rd[k])
            if k == 4:
                b.I("s_mov_b32 exec_hi, 0xffff")
            b.I("buffer_atomic_add_f32 v%d, v%d, %s, s%d offen offset:%d" % (vT + k, vL4, self.ws(), sKB + 1, k * 256))
        b.I("s_mov_b64 exec, -1")
        self.stamp("atom")
        if layer:
            self.touch_ox(layer)
        else:
            b.wait(self.tokQ)
            b.I("s_barrier")
            for ks in range(16):
                s = self.qslots[ks]
                self.wslot[("qkv", 0, 32 + ks)] = (s, None)
                for hh in range(2):
                    off = self.rq_base(ks) - L_RING + hh * 512
                    a = vTQ
                    if off > 65535:
                        if ks == 0 and hh == 0:
                            b.I("v_add_u32 v%d, 0x10000, v%d" % (vT + 6, vTQ))
                        a, off = vT + 6, off - 65536
                    b.I("ds_read_b64_tr_b16 %s, v%d offset:%d" % (vr(s[1] + 2 * hh, 2, s[0]), a, off))
            b.wait(lg=0)
            b.I("s_barrier")
        self.w_burst(env("W_AT", [0, 0])[layer])
        self.last_bg = self.clock
        self.bg_w = env("W_Q", [99, 20])[layer]
        items = []
        for ks in range(16):
            ds, h = ks // 2, ks & 1
            c0 = "0" if ks == 0 else None
            if layer:
                def keep(fr):
                    self.wq_reg = fr
                    return []
                items.append((vWQ, ks * 1024, None, keep))
            for rt in range(4):
                def mfs(fr, ks=ks, rt=rt, c0=c0):
                    w = self.w_get(("qkv", 0, 32 + ks)) if layer == 0 else self.wq_reg
                    th = [self.mf(vACC + 4 * rt, w, fr, c0)]
                    if layer == 0 and rt == 0:
                        th.append(self.mf(vCSQ, w, one, c0))
                    return th
                if layer == 0:
                    items.append(((vX0, vX1)[h], ds * 8192 + rt * 2048, None, mfs))
                else:
                    a, off = self.frag_addr(xseqs[rt >> 1][ds], rt & 1, h)
                    items.append((a, off, None, mfs))
        assert NC == 2
        KD = vACC + 32
        dst = [(KD, KD + 8), (KD + 4, KD + 12)]
        kvl = ["buffer_load_dwordx4 %s, v%d, %s, s%d offen offset:%d sc1" % (vr(dst[c][h], 4), (vL16, vC2)[h], self.ws(), sKB, c * KCS)
               for h in range(2) for c in range(NC)]
        b.I("v_add_u32 v%d, 0x400, v%d" % (vC2, vL16))
        b.I("v_cmp_gt_u32 vcc, 12, v0")
        b.I("v_mov_b32 v%d, 0x%x" % (vT + 8, OOB))
        b.I("v_cndmask_b32 v%d, v%d, v%d, vcc" % (vC2, vT + 8, vC2))
        kp = {}

        def kv_early():
            self.bg_w = 0
            kp["tok"] = [b.I(t) for t in kvl]
        j = env("H_KVP", [63, 99])[layer]
        self.gemm(items, None, 9 if layer == 0 else 5, {j: [kv_early]})
        self.pinned = set()
        self.mine = self.seq - 1
        if layer == 0 and env('PARKQ', 1):
            self.park_wq()
        PQ = vACC + 16
        for rt in range(4):
            ab = vAB + 2 * rt
            for r in (0, 2):
                u = vT + 2 * ((rt * 2 + r // 2) % 8)
                I("v_pk_fma_f32 %s, %s, %s, %s op_sel:[0,1,1] op_sel_hi:[1,1,1]" % (p2(u), p2(vCSQ + r), p2(ab), p2(vK)))
        for rt in range(4):
            ab = vAB + 2 * rt
            for r in (0, 2):
                q_ = vACC + 4 * rt + r
                u = vT + 2 * ((rt * 2 + r // 2) % 8)
                I("v_pk_fma_f32 %s, %s, %s, %s op_sel:[0,0,0] op_sel_hi:[1,0,1]" % (p2(q_), p2(q_), p2(ab), p2(u)))
        if env("H_KVP", [63, 99])[layer] == 98:
            kv_early()
        self.phi_pairs([(vACC + 4 * rt + r, PQ + 2 * rt + r // 2) for rt in range(4) for r in (0, 2)])
        self.stamp("qpass")
        self.bg_w = 0
        self.w_burst(env("W_S1", [16, 0])[layer])
        b.I("s_add_u32 s%d, s%d, s%d" % (sT + 6, self.rgs("O"), sSTO))
        b.I("s_add_u32 s%d, s%d, 0x%x" % (sT + 6, sT + 6, self.buf("O", layer)))
        b.I("s_add_u32 s%d, s%d, %d" % (sT + 7, sT + 6, self.hstride("O")))
        lp, ld, lc = b.newlabel("Lkv"), b.newlabel("Lkvd"), b.newlabel("Lkvc")
        if kp:
            b.wait(kp["tok"])
            b.I("s_branch %s" % lc)
        b.label(lp)
        if kp:
            for t in kvl:
                self.Inc(t)
            b.I("s_waitcnt vmcnt(0)")
        else:
            for t in kvl:
                b.I(t)
            b.wait(vm=0)
        b.label(lc)
        for h in range(2):
            for k in (0, 2):
                b.I("v_pk_add_f32 %s, %s, %s" % (p2(vT + 8 * h + k), p2(dst[0][h] + k), p2(dst[1][h] + k)))
        b.I("v_cmp_eq_f32 vcc, 0x42000000, v%d" % (vT + 3))
        b.I("v_cmp_eq_f32 s[%d:%d], v%d, v%d" % (sT, sT + 1, vT + 11, vT + 3))
        b.I("s_and_b64 vcc, vcc, s[%d:%d]" % (sM3, sM3 + 1))
        b.I("s_and_b32 s%d, s%d, 0x888" % (sT, sT))
        b.I("s_xor_b32 s%d, s%d, 0x888" % (sT, sT))
        b.I("s_xor_b64 vcc, vcc, s[%d:%d]" % (sM3, sM3 + 1))
        b.I("s_or_b32 s%d, s%d, vcc_lo" % (sT, sT))
        b.I("s_or_b32 s%d, s%d, vcc_hi" % (sT, sT))
        b.I("s_cbranch_scc0 %s" % ld)
        self.spin_guard(lp)
        b.label(ld)
        self.stamp("kvsync")
        b.I("v_lshl_add_u32 v%d, v0, 4, v%d" % (vT + 4, vKVL))
        b.I("v_sub_u32 v%d, v%d, v%d" % (vT + 4, vT + 4, vL4))
        b.I("ds_write_b128 v%d, %s offset:1280" % (vT + 4, vr(vT, 4)))
        b.I("s_mov_b64 exec, 0xfff")
        b.I("ds_write_b128 v%d, %s offset:2304" % (vT + 4, vr(vT + 8, 4)))
        b.I("s_mov_b64 exec, -1")
        lz = b.I("ds_read_b128 %s, v%d offset:1280" % (vr(vT + 4, 4), vZP))
        lt = [b.I("ds_read_b32 v%d, v%d offset:1280" % (vT + 12 + r, vPOS + r)) for r in range(4)]
        b.wait(lz)
        I("v_cvt_pk_bf16_f32 v%d, v%d, v%d" % (vT + 10, vT + 4, vT + 5))
        I("v_cvt_pk_bf16_f32 v%d, v%d, v%d" % (vT + 11, vT + 6, vT + 7))
        NUM, DEN = vACC, vAF
        for rt in range(4):
            I("v_mfma_f32_16x16x16_bf16 %s, %s, %s, 0" % (vr(DEN + 4 * rt, 4), p2(vT + 10), p2(PQ + 2 * rt)))
        b.wait(lt)
        I("v_cvt_pk_bf16_f32 v%d, v%d, v%d" % (vT + 8, vT + 12, vT + 13))
        I("v_cvt_pk_bf16_f32 v%d, v%d, v%d" % (vT + 9, vT + 14, vT + 15))
        for rt in range(4):
            I("v_mfma_f32_16x16x16_bf16 %s, %s, %s, 0" % (vr(NUM + 4 * rt, 4), p2(vT + 8), p2(PQ + 2 * rt)))
        for rt in range(4):
            I("v_add_f32 v%d, s%d, v%d" % (DEN + 4 * rt, sEPS, DEN + 4 * rt))
        for rt in range(4):
            I("v_rcp_f32 v%d, v%d" % (DEN + 4 * rt, DEN + 4 * rt))
        for rt in range(4):
            for r in (0, 2):
                n_ = NUM + 4 * rt + r
                I("v_pk_mul_f32 %s, %s, %s op_sel_hi:[1,0]" % (p2(n_), p2(n_), p2(DEN + 4 * rt)))
        for rt in range(4):
            for r in (0, 2):
                I("v_cvt_pk_bf16_f32 v%d, v%d, v%d" % (vT + 2 * rt + r // 2, NUM + 4 * rt + r, NUM + 4 * rt + r + 1))
        return self.stores2([self.pair_store(vT + 4 * pr, sT + 6 + pr, 0) for pr in range(2)], layer == 0 or self.sep)

    def park_wq(self):
        b = self.b
        b.I("s_lshl_b32 s%d, s%d, 14" % (sT, sW))
        b.I("s_add_u32 s%d, s%d, 0x%x" % (sT, sT, L_WQ))
        b.I("v_add_u32 v%d, s%d, v%d" % (vWQ, sT, vL16))
        for ks in range(16):
            b.I("ds_write_b128 v%d, %s offset:%d" % (vWQ, slot_r(self.wslot[("qkv", 0, 32 + ks)][0]), ks * 1024))
        b.wait(lg=0)
        for ks in range(16):
            self.w_release(("qkv", 0, 32 + ks))

    def cs1_some(self, n):
        one = vr(vONE, 4)
        k = 0
        while k < n and self.ncs < 16 and all(("w1", 0, 3 * self.ncs + t) in self.wslot and
                                             (self.wslot[("w1", 0, 3 * self.ncs + t)][1] is None or
                                              self.wslot[("w1", 0, 3 * self.ncs + t)][1][1] < self.b.vm_done) for t in range(3)):
            for t in range(3):
                self.mf(vCS1 + 4 * t, slot_r(self.wslot[("w1", 0, 3 * self.ncs + t)][0]), one, "0" if self.ncs == 0 else None)()
            self.ncs += 1
            k += 1

    def n16_items(self, name, layer, nks, hf, seqs):
        items = []
        for ks in range(nks):
            for r in range(2):
                def mfs(fr, ks=ks, r=r):
                    th = [self.mf(vX + 8 * hf + 4 * r, self.w_get((name, layer, ks)), fr)]
                    if hf == 1 and r == 1:
                        th.append(lambda: self.w_release((name, layer, ks)))
                    return th
                a, off = self.frag_addr(seqs[ks // 2], r, ks & 1)
                items.append((a, off, seqs[ks // 2], mfs))
        return items

    def n16_full(self, name, layer, nks, seqs):
        items = []
        for ks in range(nks):
            for rt in range(4):
                def mfs(fr, ks=ks, rt=rt):
                    th = [self.mf(vX + 4 * rt, self.w_get((name, layer, ks)), fr)]
                    if rt == 3:
                        th.append(lambda: self.w_release((name, layer, ks)))
                    return th
                sq = seqs[rt >> 1][ks // 2]
                a, off = self.frag_addr(sq, rt & 1, ks & 1)
                items.append((a, off, sq, mfs))
        return items

    def x_full_store(self, idx, wt):
        I = self.b.I
        for hf in range(2):
            I("s_add_u32 s%d, s%d, s%d" % (sT + 6 + hf, sRG64, sSTO))
            I("s_add_u32 s%d, s%d, 0x%x" % (sT + 6 + hf, sT + 6 + hf, self.buf("X", idx) + hf * 32768))
        I("s_add_u32 s%d, s%d, 8192" % (sT + 8, sSTP))
        for j in range(8):
            I("v_cvt_pk_bf16_f32 v%d, v%d, v%d" % (vT + j, vX + 2 * j, vX + 2 * j + 1))
        s = vAF
        tk = self.stores2([self.pair_store(vT + 4 * hf, sT + 6 + hf, 0) for hf in range(2)], wt)
        for rt in range(4):
            I("v_pk_add_f32 %s, %s, %s" % (p2(s + 4 * rt), p2(vX + 4 * rt), p2(vX + 4 * rt + 2)))
            I("v_pk_mul_f32 %s, %s, %s" % (p2(s + 4 * rt + 2), p2(vX + 4 * rt), p2(vX + 4 * rt)))
        for rt in range(4):
            I("v_pk_fma_f32 %s, %s, %s, %s" % (p2(s + 4 * rt + 2), p2(vX + 4 * rt + 2), p2(vX + 4 * rt + 2), p2(s + 4 * rt + 2)))
        for rt in range(4):
            I("v_add_f32 v%d, v%d, v%d" % (s + 4 * rt, s + 4 * rt, s + 4 * rt + 1))
            I("v_add_f32 v%d, v%d, v%d" % (s + 4 * rt + 2, s + 4 * rt + 2, s + 4 * rt + 3))
        for hf in range(2):
            q = s + 8 * hf
            I("v_permlane32_swap_b32 v%d, v%d" % (q, q + 4))
            I("v_permlane32_swap_b32 v%d, v%d" % (q + 2, q + 6))
        for hf in range(2):
            q = s + 8 * hf
            I("v_add_f32 v%d, v%d, v%d" % (q, q, q + 4))
            I("v_add_f32 v%d, v%d, v%d" % (q + 2, q + 2, q + 6))
        for hf in range(2):
            I("v_permlane16_swap_b32 v%d, v%d" % (s + 8 * hf, s + 8 * hf + 2))
        for hf in range(2):
            I("v_add_f32 v%d, v%d, v%d" % (s + 8 * hf, s + 8 * hf, s + 8 * hf + 2))
        tk2 = self.stores2(["buffer_store_dword v%d, v%d, %s, s%d offen" % (s + 8 * hf, vL4, self.ws(), (sSTP, sT + 8)[hf])
                            for hf in range(2)], wt)
        return tk, tk2

    def x_half_now(self, idx, hf, wt):
        I = self.b.I
        x = vX + 8 * hf
        o = vT + 2
        s = o + 4
        I("s_add_u32 s%d, s%d, s%d" % (sT + 6, sRG64, sSTO))
        I("s_add_u32 s%d, s%d, 0x%x" % (sT + 6, sT + 6, self.buf("X", idx) + hf * 32768))
        I("s_add_u32 s%d, s%d, %d" % (sT + 7, sSTP, hf * 8192))
        for j in range(4):
            I("v_cvt_pk_bf16_f32 v%d, v%d, v%d" % (o + j, x + 2 * j, x + 2 * j + 1))
        for r in range(2):
            I("v_pk_add_f32 %s, %s, %s" % (p2(s + 4 * r), p2(x + 4 * r), p2(x + 4 * r + 2)))
            I("v_pk_mul_f32 %s, %s, %s" % (p2(s + 4 * r + 2), p2(x + 4 * r), p2(x + 4 * r)))
        tk = self.stores2([self.pair_store(o, sT + 6, 0)], wt)
        for r in range(2):
            I("v_pk_fma_f32 %s, %s, %s, %s" % (p2(s + 4 * r + 2), p2(x + 4 * r + 2), p2(x + 4 * r + 2), p2(s + 4 * r + 2)))
            I("v_add_f32 v%d, v%d, v%d" % (s + 4 * r, s + 4 * r, s + 4 * r + 1))
        for r in range(2):
            I("v_add_f32 v%d, v%d, v%d" % (s + 4 * r + 2, s + 4 * r + 2, s + 4 * r + 3))
        I("v_permlane32_swap_b32 v%d, v%d" % (s, s + 4))
        I("v_permlane32_swap_b32 v%d, v%d" % (s + 2, s + 6))
        I("v_add_f32 v%d, v%d, v%d" % (s, s, s + 4))
        I("v_add_f32 v%d, v%d, v%d" % (s + 2, s + 2, s + 6))
        I("v_permlane16_swap_b32 v%d, v%d" % (s, s + 2))
        I("v_add_f32 v%d, v%d, v%d" % (s, s, s + 2))
        tk += self.stores2(["buffer_store_dword v%d, v%d, %s, s%d offen" % (s, vL4, self.ws(), sT + 7)], wt)
        return self.new_pub(tk)

    def x_half_store(self, idx, hf, wt, delay):
        x = vX + 8 * hf
        o = vT + 1
        o += o & 1
        tk = []
        k, fl = self.new_pub(tk)
        s = o + 4
        e = ["s_add_u32 s%d, s%d, s%d" % (sT + 6, sRG64, sSTO),
             "s_add_u32 s%d, s%d, 0x%x" % (sT + 6, sT + 6, self.buf("X", idx) + hf * 32768),
             "s_add_u32 s%d, s%d, %d" % (sT + 7, sSTP, hf * 8192), 2]
        e += ["v_cvt_pk_bf16_f32 v%d, v%d, v%d" % (o + j, x + 2 * j, x + 2 * j + 1) for j in range(4)]
        for r in range(2):
            e += ["v_add_f32 v%d, v%d, v%d" % (s + 2 * r, x + 4 * r, x + 4 * r + 1),
                  "v_mul_f32 v%d, v%d, v%d" % (s + 2 * r + 1, x + 4 * r, x + 4 * r)]
        e.append(lambda: tk.extend(self.stores2([self.pair_store(o, sT + 6, 0)], wt)))
        for q in (1, 2, 3):
            for r in range(2):
                if q > 1:
                    e.append("v_add_f32 v%d, v%d, v%d" % (s + 2 * r, s + 2 * r, x + 4 * r + q))
                e.append("v_fmac_f32 v%d, v%d, v%d" % (s + 2 * r + 1, x + 4 * r + q, x + 4 * r + q))
        e += [1, "v_permlane32_swap_b32 v%d, v%d" % (s, s + 2), "v_permlane32_swap_b32 v%d, v%d" % (s + 1, s + 3), 1,
              "v_add_f32 v%d, v%d, v%d" % (s, s, s + 2), "v_add_f32 v%d, v%d, v%d" % (s + 1, s + 1, s + 3), 1,
              "v_permlane16_swap_b32 v%d, v%d" % (s, s + 1), 1, "v_add_f32 v%d, v%d, v%d" % (s, s, s + 1),
              lambda: tk.extend(self.stores2(["buffer_store_dword v%d, v%d, %s, s%d offen" % (s, vL4, self.ws(), sT + 7)], wt))]
        if delay is not None:
            e += [delay, fl]
        return k, e, fl

    def out_half_store(self, hf):
        x = vX + 8 * hf
        e = ["s_add_u32 s%d, s%d, s%d" % (sT + 6, sRG64, sOUT), "s_add_u32 s%d, s%d, %d" % (sT + 6, sT + 6, hf * 32768),
             "s_add_u32 s%d, s%d, 16384" % (sT + 7, sT + 6), 2]
        e += ["v_cvt_pk_bf16_f32 v%d, v%d, v%d" % (vT + 4 * hf + j, x + 2 * j, x + 2 * j + 1) for j in range(4)]
        e += ["buffer_store_dwordx2 %s, v%d, s[%d:%d], s%d offen" % (p2(vT + 4 * hf + 2 * r), vOA, R_OUT, R_OUT + 3, sT + 6 + r)
              for r in range(2)]
        return e

    def p3_items(self, layer, seqs):
        items = []
        one = vr(vONE, 4)
        for ks in range(16):
            c0 = "0" if ks == 0 else None
            for rt in range(4):
                def mfs(fr, ks=ks, rt=rt, c0=c0):
                    th = []
                    for t in range(3):
                        w = self.w_get(("w1", layer, 3 * ks + t))
                        th.append(self.mf(vACC + 24 * (rt >> 1) + 8 * t + 4 * (rt & 1), w, fr, c0))
                        if layer == 0 and rt == 0 and ks >= self.ncs:
                            th.append(self.mf(vCS1 + 4 * t, w, one, c0))
                    if rt == 3:
                        th.append(lambda: [self.w_release(("w1", layer, 3 * ks + t)) for t in range(3)])
                    return th
                sq = seqs[rt >> 1][ks // 2]
                a, off = self.frag_addr(sq, rt & 1, ks & 1)
                items.append((a, off, sq, mfs))
        return items

    def silu(self, layer, hf, mid=None):
        b = self.b
        I = self.I
        for t in range(3):
            b.I("s_add_u32 s%d, s%d, 0x%x" % (sT + 6 + t, sH0 + t, self.buf("H", layer) + hf * (HSZ // 2)))
        sts = []
        for t in range(3):
            A = vACC + 24 * hf + 8 * t
            u = vT + 8 * (t & 1)
            if mid and t == mid[0]:
                mid[1]()
            for j in range(4):
                I("v_pk_mul_f32 %s, %s, %s op_sel:[0,1] op_sel_hi:[1,1]" % (
                    p2(u + 2 * j), p2(vCS1 + 4 * t + 2 * (j & 1)), p2(vAB + 4 * hf + 2 * (j >> 1))))
            for j in range(4):
                I("v_pk_fma_f32 %s, %s, %s, %s op_sel:[0,0,0] op_sel_hi:[1,0,1]" % (
                    p2(A + 2 * j), p2(A + 2 * j), p2(vAB + 4 * hf + 2 * (j >> 1)), p2(u + 2 * j)))
            for k in range(8):
                I("v_exp_f32_e64 v%d, -v%d" % (u + k, A + k))
            for j in range(4):
                I("v_pk_fma_f32 %s, %s, %s, %s op_sel:[0,0,0] op_sel_hi:[1,0,0]" % (p2(u + 2 * j), p2(u + 2 * j), p2(vK), p2(vK)))
            for k in range(8):
                I("v_rcp_f32 v%d, v%d" % (u + k, u + k))
            for j in range(4):
                I("v_pk_mul_f32 %s, %s, %s" % (p2(A + 2 * j), p2(A + 2 * j), p2(u + 2 * j)))
            for j in range(4):
                I("v_cvt_pk_bf16_f32 v%d, v%d, v%d" % (A + j, A + 2 * j, A + 2 * j + 1))
            sts += self.stores2([self.pair_store(A, sT + 6 + t, 0)], layer == 0 or self.sep)
        return sts

    def body(self):
        b = self.b
        for layer in range(2):
            R1, R2 = env("REV", (12, 43))
            if layer == 0:
                R1, R2 = 48, 43
            self.w_enqueue("w1", layer, F_W1, 48, range(47, R1 - 1, -1))
            self.w_enqueue("wo", layer, F_WO, 16)
            self.w_enqueue("w1", layer, F_W1, 48, range(R1))
            self.w_enqueue("w2", layer, F_W2, 43, range(42, R2 - 1, -1))
            self.w_enqueue("w2", layer, F_W2, 43, range(R2))
        AF = env("AFIRST", 12)
        G8c = env("G8C", [2, 2, 2, 2])
        G8w = env("G8W", [4, 4])
        G22 = env("G22", [2, 2, 2, 4, 4, 4, 4])
        st = {}
        PA, PB = env("PA", [75, 62]), env("PB", [75, 62])
        self.pace_w = PA[0]
        self.startup()
        xs = None
        for layer in range(2):
            self.pace_w = PA[layer]
            tk = self.attention(layer, xs)
            k_o, fl = self.new_pub(tk)
            if layer == 0 and not env('PARKQ', 1):
                self.park_wq()
            self.w_burst(env("W_PUB", [0, 0])[layer])
            fl()
            if layer == 0:
                self.cs1_some(env("NCS", [0, 0])[0])
            self.stamp("o_pub")
            self.poll_check(k_o)
            self.stamp("o_rdy")
            wt = layer == 0 or self.sep
            D16, PW = env("D16", 9), env("PAIRW", True)
            n0 = self.seq
            oo = self.queue_both("O", layer, 8, self.aq)
            self.a_burst(AF)
            self.bg_w = env("W_P2", 12)
            self.gemm(self.n16_full("wo", layer, 16, oo), self.split(list(range(n0, n0 + 16)), env("G16", [4, 4, 4, 4])), D16,
                      pairw=PW)
            self.bg_w = 0
            self.stamp("p2")
            tk1, tk2 = self.x_full_store(2 * layer, wt)
            k_x, fl_x = self.new_pub(tk1)
            k_s, fl_s = self.new_pub(tk2)
            self.w_burst(env("W_PUB2", [0, 0])[layer])
            fl_x()
            if layer == 0:
                self.cs1_some(env("NCS", [0, 0])[1])
            self.stamp("x_pub")
            self.poll_check(k_x)
            self.stamp("x_rdy")
            poll = lambda: st.update(tok=self.poll_issue())

            def when(k, plan, burst=0):
                def f():
                    self.poll_check(k() if callable(k) else k, st["tok"])
                    self.aq += plan
                    self.a_burst(burst)
                return f
            n0 = self.seq
            xx = self.queue_both("X", 2 * layer, 8, self.aq)
            hold = self.seq
            pl_s = []
            sa = self.queue_stats(0, pl_s)
            sb = self.queue_stats(1, pl_s)
            if layer or FT:
                th = lambda: self.touch_h(layer)
                th.seq = -1
                th.prep = []
                pl_s.append(th)
            self.a_burst(4)
            fl_s()
            self.a_burst(AF - 4)
            self.bg_w = 0
            self.pace_w = PB[layer]
            groups = self.split(list(range(n0, n0 + 16)), env("G3", [4, 4, 8])) + [[hold]]
            hooks, pre, post = {}, {}, {}
            s1a, bba = self.stats_stage1(sa, 0)
            s1b, bbb = self.stats_stage1(sb, 1)
            j = env("H_ST", 8)
            hooks[j] = [poll]
            hooks[j + 6] = [when(k_s, pl_s), lambda: setattr(self, "bg_w", 99)]
            hooks[j + 18] = [lambda: self.side.extend(s1a + s1b)]

            def exch():
                bba()
                bbb()
                b.I("s_barrier")
                self.side.extend(self.stats_stage2(0, True, False) + self.stats_stage2(1, True, False))
            hooks[env("H_EX", 46)] = [exch]
            groups.pop()
            self.gemm(self.p3_items(layer, xx), groups, 6, hooks, pre, post, pairw=True)
            self.pinned = set()
            self.mine = self.seq - 1
            self.bg_w = env("W_SILU", 0)
            self.stamp("p3")
            k_ha, fl_ha = self.new_pub(self.silu(layer, 0))
            self.bg_w = 0
            tkb = self.silu(layer, 1, (env("MID", 2), fl_ha))
            k_hb, fl_hb = self.new_pub(tkb)
            self.stamp("silu")
            self.poll_check(k_ha)
            self.stamp("ha_rdy")
            self.gstamp = layer == 1 and env("GST", 0)
            pl_hb, pl_ya = [], []
            ha = self.queue_half("H", layer, 0, 22, self.aq)
            hb = self.queue_half("H", layer, 1, 22, pl_hb)
            self.a_burst(4)
            fl_hb()
            self.a_burst(AF - 4)
            self.bg_w = 99
            j = env("H_P4A", 24)
            self.alead = env("ALEAD4", 16)
            self.pace_w = PA[1]
            items = self.n16_items("w2", layer, 43, 0, ha) + self.n16_items("w2", layer, 43, 1, hb)
            groups = self.split(ha, env("G22C", [2, 2, 4, 4, 4, 6])) + self.split(hb, G22)
            hooks = {j: [poll], j + env('CK4', 12): [when(k_hb, pl_hb, env('BU_HB', 4))]}
            pre, post = {}, {}
            if layer == 0:
                sa = self.queue_stats(0, pl_ya)
                ya = self.queue_half("X", 1, 0, 8, pl_ya, rot=True)

                def y_out(hf, delay):
                    def f():
                        self.stamp("p4a" if hf == 0 else "p4b")
                        st["k_y%d" % hf], st["fl_y%d" % hf] = self.x_half_now(1, hf, self.sep)
                        self.pace_w = PA[1]
                        if hf:
                            self.alead = env("ALEAD", 99)
                    return f
                j = 86 + env("H_P4B", 44)
                hooks.update({87: [y_out(0, 0)], 87 + env("D_Y0", 22): [lambda: st["fl_y0"]()],
                              172 + env("D_Y1", 12): [lambda: st["fl_y1"]()], j: [poll], j + env('CK4', 12): [when(lambda: st["k_y0"], pl_ya, env("BU_YA", 6))], 172: [y_out(1, 0)],
                              172 + env("H_P1A", 28): [poll]})
                ng = len(groups)
                groups += self.split(ya, env("G8K", [3, 3, 2]))
                self.stats_hooks(sa, 0, False, True, 173, ng + 2, hooks, pre, post)
                items += self.kv_items(0, ya)
            else:
                hooks[85] = [lambda: (self.stamp("p4a"), self.side.extend(self.out_half_store(0)))]
            self.gemm(items, groups, D16, hooks, pre, post, pairw=PW)
            if layer == 0:
                self.stamp("p1a")
                self.poll_check(st["k_y1"], st["tok"])
                self.stamp("yb_rdy")
                sb = self.queue_stats(1, self.aq)
                yb = self.queue_half("X", 1, 1, 8, self.aq, rot=True)
                self.a_burst(env('AF1', 10))
                self.kv_finish(0)
                hooks, pre, post = {}, {}, {}
                self.stats_hooks(sb, 1, False, True, 0, 1, hooks, pre, post)
                self.gemm(self.kv_items(1, yb), self.split(yb, G8w), 8, hooks, pre, post, pairw=True)
                self.kv_finish(1)
                self.stamp("p1b")
                xs = [ya, yb]
            else:
                self.stamp("p4b")
                self.side = self.out_half_store(1)
                self.side_flush()
                lx = b.newlabel("Lep")
                b.I("s_or_b32 s%d, s2, s%d" % (sT, sW))
                b.I("s_cbranch_scc1 %s" % lx)
                b.I("s_add_u32 s%d, s%d, 16" % (sT, sEP))
                b.I("v_mov_b32 v%d, s%d" % (vT + 9, sT))
                b.I("s_mov_b32 s%d, 0x%x" % (sT, WS_EP))
                b.I("s_mov_b64 exec, 1")
                self.Inc("buffer_store_dword v%d, off, %s, s%d sc1" % (vT + 9, self.ws(), sT))
                b.I("s_mov_b64 exec, -1")
                b.label(lx)
                self.stamp("end")
        if self.diag:
            b.I("s_lshl_b32 s%d, s2, 2" % sT)
            b.I("s_add_u32 s%d, s%d, s%d" % (sT, sT, sW))
            b.I("s_lshl_b32 s%d, s%d, 8" % (sT, sT))
            b.I("s_add_u32 s%d, s%d, 0x%x" % (sT, sT, WS_STAMP))
            b.I("buffer_store_dword v%d, v%d, %s, s%d offen" % (vSTAMP, vL4, self.ws(), sT))
        if self.diag and env("PROBE", 0):
            lx, lp = b.newlabel("Lpr"), b.newlabel("Lprl")
            i0, i1 = [61 if n == "entry" else [i for i, m in enumerate(self.stamp_names) if m == n[0]][n[1]] for n in env("PROBE", 0)]
            b.I("s_cmp_lg_u32 s2, %d" % env("PWG", 100))
            b.I("s_cbranch_scc1 %s" % lx)
            b.I("v_readlane_b32 s%d, v%d, %d" % (sT, vSTAMP, i0))
            b.I("v_readlane_b32 s%d, v%d, %d" % (sT + 1, vSTAMP, i1))
            b.I("v_readlane_b32 s%d, v%d, %d" % (sT + 2, vSTAMP, len(self.stamp_names) - 1))
            b.I("s_sub_u32 s%d, s%d, s%d" % (sT + 1, sT + 1, sT))
            b.I("s_mul_i32 s%d, s%d, %d" % (sT + 1, sT + 1, env("PMUL", 1)))
            b.I("s_add_u32 s%d, s%d, 4800" % (sT + 1, sT + 1))
            b.label(lp)
            b.I("s_memtime s[94:95]")
            b.I("s_waitcnt lgkmcnt(0)")
            b.I("s_sub_u32 s%d, s94, s%d" % (sT, sT + 2))
            b.I("s_cmp_lt_u32 s%d, s%d" % (sT, sT + 1))
            b.I("s_cbranch_scc1 %s" % lp)
            b.label(lx)
        b.label("L_end")
        b.I("s_endpgm")
        for t in self.cold:
            b.raw(t)

    def emit(self):
        self.body()
        head = """; @launch grid=(256,1,1) block=(256,1,1) lds=%d
; persistent fused kernel: 32 row groups (64 rows) x 8 column groups (generated by my own script)
.amdgcn_target "amdgcn-amd-amdhsa--gfx950"
.text
.globl %s_kernel
.p2align 8
.type %s_kernel,@function
%s_kernel:
""" % (LDS_BYTES, NAME, NAME, NAME)
        tail = """.section .rodata,"a"
.p2align 6
.amdhsa_kernel %s_kernel
  .amdhsa_next_free_vgpr 512
  .amdhsa_next_free_sgpr 102
  .amdhsa_accum_offset 256
  .amdhsa_group_segment_fixed_size 0
  .amdhsa_kernarg_size 72
  .amdhsa_user_sgpr_count 2
  .amdhsa_user_sgpr_kernarg_segment_ptr 1
  .amdhsa_system_sgpr_workgroup_id_x 1
.end_amdhsa_kernel
""" % NAME
        return head + self.b.text() + tail


if __name__ == "__main__":
    import argparse
    ap = argparse.ArgumentParser()
    ap.add_argument("-o", default="cdna_kernels/%s.s" % NAME)
    ap.add_argument("--diag", action="store_true")
    ap.add_argument("--sep", action="store_true")
    a = ap.parse_args()
    g = Gen(a.diag, a.sep)
    txt = g.emit()
    if a.diag:
        txt = txt.replace(".amdgcn_target", "; stamps: " + ",".join(g.stamp_names) + "\n.amdgcn_target", 1)
    open(a.o, "w").write(txt)
    print("instructions", g.b.nins, "nops", g.b.nops, file=sys.stderr)
```

```python
import sys
import os
sys.path.insert(0, os.path.dirname(os.path.abspath(__file__)))
from asmb import Builder, vr

NAME = "interleave_layers__linear_attn_block__dense_activation_silu__prompt"


def env(name, default):
    v = os.environ.get(name)
    return default if v is None else eval(v)


PKW = 107 * 1024
WS_FL = 0x380000
WS_EP = 0x390000
WS_R2 = 0x398000
WS_KV = 0x480000
NC = env('NC', 2)
KCS = env('KCS', 1344)
KVH = NC * KCS
KVL = 32 * KVH
KB0 = env('KB0', 0)
WS_R3 = 0x3D0000
WS_ST = 0x400000
WS_O = 0x600000
WS_X = 0x800000
WS_H = 0xA00000
HSZ = 22 * 8192
WS_STAMP = 0x3000000
WS_SIZE = 0x3100000 if '--diag' in sys.argv else 0x1000000
OOB = 0x4000000 if '--diag' in sys.argv else 0x1000000
F_WO, F_W1, F_W2 = 0, 16, 64

L_RING = 65536
L_RQ = 106496
L_WQ = 81920
L_PACK = 131072
L_KVI = 147456
L_STA = 157696
L_EX = 158720
NR = env('NR', 8)
NSLOT = 20
LDS_BYTES = 163840

S_X, S_WQ, S_WO, S_W1, S_W2, S_OUT, S_DBG, S_WS = 4, 6, 8, 12, 14, 16, 18, 20
R_X, R_WQ, R_WS, R_OUT, R_PK = 24, 28, 32, 36, 44
sR1, sQ, sTC, sTAG, sEP = 3, 10, 11, 22, 23
sROT, sSTP, sSTC, sW1K = 40, 41, 42, 43
sRG, sC, sW, sFAST, sPK, sKV, sFL, sRG64, sRGH, sSTO = 48, 49, 50, 51, 52, 53, 54, 55, 56, 57
sH0 = 58
sSPIN = 61
sEPS = 62
sOUT = 63
sXS = 64
sM1, sM2, sM3, sDIAG = 68, 70, 72, 74
sT = 76
sKB = 88
sPKC, sXCC, sMYF, sW2K, sAB, sAO = 96, 97, 98, 99, 100, 101

vL16, vA1, vKVL, vDMA, vST = 1, 2, 3, 4, 5
vX0, vX1, vOW0, vOW1, vTR, vXS0, vXS1, vWS = 6, 7, 8, 9, 10, 11, 12, 13
vWQ = 13
vSB, vEX, vSWR, vOA = 8, 9, 10, 11
vFL, vL4, vSTAMP, vSTA, vSTQ, vC2 = 14, 15, 16, 17, 18, 19
vX = 20
vCSQ, vCSK, vCSV = 36, 40, 42
vCS1 = 44
vONE = 56
vACC = 60
vAF = 108
NAF = 10
vAB = 148
vT = 156
vPOS = 172
vZP, vSW, vDUM, vTCH, vPOLL, vDM2 = 176, 177, 178, 179, 180, 181
vK = 182
vS1, vS2 = 184, 188
vTQ = 195
vW1 = 192
SLOTS = [("a", 4 * i) for i in range(64)] + [("v", 196 + 4 * i) for i in range(15)]
PACE = env("PACE", 36)
FT = env("FTOUCH", 1)
WMIN = env("WMIN", 10)
AMIN = env("AMIN", 5)
RDSLACK = env("RDSLACK", 2)
SIDEMIN = env("SIDEMIN", 1)
COST = {"mfma": 16, "trans": 8, "ds": 4, "valu": 4, "perm": 4, "dpp": 4, "rdlane": 4, "wrlane": 4, "salu": 2, "vmem": 8}
K_L2E = "op_sel:[0,0] op_sel_hi:[1,0]"


def slot_r(s):
    return vr(s[1], 4, s[0])


def p2(r):
    return "v[%d:%d]" % (r, r + 1)


class Gen:
    def __init__(self, diag=False, sep=False):
        self.b = Builder()
        self.diag = diag
        self.sep = sep
        self.free = list(SLOTS)
        self.wq = []
        self.wslot = {}
        self.pk_cur = None
        self.nstamp = 0
        self.stamp_names = []
        self.aq = []
        self.atok = {}
        self.seq = 0
        self.consumed = -1
        self.mine = -1
        self.pub_mine = {}
        self.clock = 0
        self.last_bg = -1000
        self.bg_w = 0
        self.pace_w = 70
        self.in_bg = False
        self.npub = 0
        self.ncs = 0
        self.gstamp = False
        self.vclock = {}
        bI, bw = self.b.I, self.b.wait

        def I2(t):
            tok = bI(t)
            if tok and tok[0] == "vm":
                self.vclock[tok[1]] = self.clock
            return tok

        def w2(*toks, **kw):
            if os.environ.get("SLACK"):
                flat = []
                for t in toks:
                    if t is None:
                        continue
                    flat += t if isinstance(t, list) else [t]
                v = [i for k, i in flat if k == "vm" and i >= self.b.vm_done]
                if v:
                    d = self.clock - self.vclock.get(max(v), 0)
                    if d < int(os.environ["SLACK"]):
                        print("   slack %4d at clock %d (after %s)" % (d, self.clock, self.last_stamp), file=sys.stderr)
            return bw(*toks, **kw)
        self.b.I, self.b.wait = I2, w2
        self.last_stamp = ""
        self.flagged = set()
        self.cold = []
        self.slotted = False
        self.prepped = None
        self.wprep = []
        self.pinned = set()
        self.side = []
        self.side_rate = 2
        self.w_issued = 0
        self.w_need = 0
        self.w_cur = None
        self.w_index = {}
        self.wlead = env('WLEAD', 14)
        self.cur_seq = 0
        self.alead = env('ALEAD', 99)

    def I(self, t):
        tok = self.b.I(t)
        k = self.b.hists[0][-1].kind if self.b.hists and self.b.hists[0] else "salu"
        self.clock += COST.get(k, 4)
        if not self.in_bg and not self.slotted and k in ("mfma", "valu", "trans"):
            c = self.bg_pick()
            if c is not None and c[1]:
                self.bg_emit(c[0], True)
        return tok

    def side_step(self, n):
        self.in_bg = True
        done = 0
        while n > 0 and self.side:
            e = self.side[0]
            if isinstance(e, int):
                if e <= 1:
                    self.side.pop(0)
                else:
                    self.side[0] = e - 1
                break
            self.side.pop(0)
            if isinstance(e, str):
                self.b.I(e)
            else:
                e()
            n -= 1
            done += 1
        self.in_bg = False
        return done

    def side_flush(self):
        while self.side:
            self.side_step(1000)

    def bg_pick(self):
        a_ok = self.aq and self.aq[0].seq - NSLOT <= self.consumed
        w_ok = self.bg_w > 0 and self.wq and self.free
        same = w_ok and self.wq[0][0][:2] == self.w_cur
        el = self.clock - self.last_bg
        if self.prepped == "A" and a_ok:
            return "A", el >= PACE or self.aq[0].seq - self.cur_seq < AMIN
        if a_ok and getattr(self.aq[0], "urgent", False):
            return "A", True
        if same and self.w_issued - self.w_need < WMIN:
            return "W", True
        if a_ok and w_ok:
            a_lead = self.aq[0].seq - self.cur_seq
            if a_lead > self.alead or (same and self.w_issued - self.w_need < self.wlead and a_lead > 3):
                a_ok = False
        if a_ok:
            return "A", el >= PACE or self.aq[0].seq - self.cur_seq < AMIN
        if w_ok:
            return "W", el >= self.pace_w
        return None

    def bg_prep_list(self, kind):
        if kind == "A":
            return self.aq[0].prep
        grp = self.wq[0][1] // 4
        if self.pk_cur != grp and not os.environ.get("NOW"):
            self.pk_cur = grp
            self.wprep = ["s_add_u32 s%d, s%d, 0x%x" % (sPKC, sPK, grp * 4096)]
        return self.wprep

    def bg_emit(self, kind, inline):
        self.in_bg = True
        if kind == "A":
            self.a_pop()
        else:
            self.w_issue()
            self.bg_w -= 1
        self.last_bg = self.clock
        self.in_bg = False

    def a_pop(self):
        th = self.aq.pop(0)
        while th.prep:
            self.b.I(th.prep.pop(0))
        th()
        self.prepped = None

    def slot_fill(self, rd_lag, issue_read):
        c = self.bg_pick()
        if c is not None and c[1] and rd_lag <= RDSLACK and not self.bg_prep_list(c[0]):
            self.bg_emit(c[0], False)
            self.clock += 8
            return
        budget = 2
        if rd_lag > 0:
            issue_read()
            budget -= 1
            if rd_lag > 1:
                issue_read()
                budget -= 1
        if c is not None:
            pl = self.bg_prep_list(c[0])
            while budget > 0 and pl:
                self.b.I(pl.pop(0))
                budget -= 1
                if c[0] == "A":
                    self.prepped = "A"
        self.side_step(max(budget, SIDEMIN))

    def Inc(self, t):
        self.b.I(t)
        self.b.vm_issued -= 1

    def stamp(self, name):
        self.last_stamp = name
        if os.environ.get("WLOG"):
            print("%-8s clock %6d  wq left %3d next %s free %d aq %d" % (
                name, self.clock, len(self.wq), self.wq[0][0] if self.wq else None, len(self.free), len(self.aq)), file=sys.stderr)
        if not self.diag:
            return
        b = self.b
        k = self.nstamp
        self.nstamp += 1
        assert k < 62
        b.comment("stamp %d %s" % (k, name))
        b.I("s_memtime s[94:95]")
        b.wait(lg=0)
        b.I("v_writelane_b32 v%d, s94, %d" % (vSTAMP, k))
        if name in ("start", "end"):
            b.I("s_memrealtime s[94:95]")
            b.wait(lg=0)
            b.I("v_writelane_b32 v%d, s94, %d" % (vSTAMP, 62 if name == "start" else 63))
        self.stamp_names.append(name)

    def buf(self, kind, idx):
        base = {"O": WS_O if self.sep else WS_H, "X": WS_X, "H": WS_H}[kind]
        return base + (idx * 0x1000000 if self.sep else 0)

    def hstride(self, kind):
        return HSZ // 2 if self.rgs(kind) == sRGH else 32768

    def rgs(self, kind):
        return sRGH if kind == "H" or (kind == "O" and not self.sep) else sRG64

    def srd(self, r, ptr, size):
        I = self.b.I
        I("s_mov_b32 s%d, s%d" % (r, ptr))
        I("s_and_b32 s%d, s%d, 0xffff" % (r + 1, ptr + 1))
        I("s_mov_b32 s%d, 0x%x" % (r + 2, size))
        I("s_mov_b32 s%d, 0x20000" % (r + 3))

    def ws(self):
        return "s[%d:%d]" % (R_WS, R_WS + 3)

    def w_enqueue(self, name, layer, f0, n, order=None):
        for i in (range(n) if order is None else order):
            self.w_index[(name, layer, i)] = len(self.w_index)
            self.wq.append(((name, layer, i), f0 + i))

    def w_issue(self):
        key, f = self.wq.pop(0)
        s = self.free.pop(0)
        self.w_issued += 1
        if os.environ.get("NOW"):
            self.wslot[key] = (s, None)
            return
        grp = f // 4
        while self.wprep:
            self.b.I(self.wprep.pop(0))
        if self.pk_cur != grp:
            self.b.I("s_add_u32 s%d, s%d, 0x%x" % (sPKC, sPK, grp * 4096))
            self.pk_cur = grp
        va = vW1 + key[2] % 3 if key[0] == "w1" and env("SKIPW1", 1) else vL16
        if os.environ.get("FAKEW"):
            self.b.I("s_mov_b32 s%d, s%d" % (sPKC, sPK))
        tok = self.b.I("buffer_load_dwordx4 %s, v%d, %s, s%d offen offset:%d sc1%s" % (
            slot_r(s), va, self.ws(), sPKC, (f % 4) * 1024, " nt" if env("NT", lambda k: False)(key) else ""))
        self.wslot[key] = (s, tok)

    def w_burst(self, n):
        k = 0
        while k < n and self.wq and self.free:
            self.w_issue()
            k += 1
        self.last_bg = self.clock

    def w_get(self, key):
        self.w_need = max(self.w_need, self.w_index.get(key, 0))
        self.w_cur = key[:2]
        if key not in self.wslot:
            print("WARNING: late W load", key, file=sys.stderr)
        while key not in self.wslot:
            assert self.wq and self.free, "no free slot for %s" % (key,)
            self.w_issue()
        s, tok = self.wslot[key]
        self.b.wait(tok)
        return slot_r(s)

    def w_release(self, key):
        s, _ = self.wslot.pop(key)
        self.free.append(s)

    def stores2(self, texts, wt=False):
        b = self.b
        if wt and not FT:
            return [b.I(t + " sc1") for t in texts]
        ls, lj = b.newlabel("Lslow"), b.newlabel("Ljoin")
        b.I("s_cmp_eq_u32 s%d, 1" % sFAST)
        b.I("s_cbranch_scc0 %s" % ls)
        b.saved.pop(ls)
        toks = [b.I(t) for t in texts]
        b.raw(lj + ":")
        self.cold += [ls + ":"] + ["    " + t + " sc1" for t in texts] + ["    s_branch " + lj]
        return toks

    def pair_store(self, p, sreg, off):
        for k in range(2):
            self.b.I("v_permlane16_swap_b32 v%d, v%d" % (p + k, p + 2 + k))
        return "buffer_store_dwordx4 %s, v%d, %s, s%d offen offset:%d" % (vr(p, 4), vST, self.ws(), sreg, off)

    def spin_guard(self, lab_loop):
        b = self.b
        b.I("s_sub_u32 s%d, s%d, 1" % (sSPIN, sSPIN))
        b.I("s_cmp_lg_u32 s%d, 0" % sSPIN)
        b.I("s_cbranch_scc1 %s" % lab_loop)
        b.I("s_branch L_end")

    def new_pub(self, toks):
        self.npub += 1
        k = self.npub
        self.pub_mine[k] = self.mine

        def flag():
            b = self.b
            b.I("s_add_u32 s%d, s%d, %d" % (sT, sTAG, k))
            b.I("v_mov_b32 v%d, s%d" % (vC2, sT))
            b.wait(toks)
            b.I("s_mov_b64 exec, 1")
            self.stores2(["buffer_store_dword v%d, off, %s, s%d" % (vC2, self.ws(), sMYF)])
            b.I("s_mov_b64 exec, -1")
            self.flagged.add(k)
        return k, flag

    def poll_issue(self):
        return self.b.I("buffer_load_dword v%d, v%d, %s, s%d offen sc1" % (vPOLL, vFL, self.ws(), sFL))

    def poll_check(self, k, tok=None):
        b = self.b
        if k not in self.flagged:
            print("WARNING: side stream late for flag", k, file=sys.stderr)
        while k not in self.flagged:
            assert self.side, "flag %d never raised before its poll" % k
            self.side_step(1)
        lp, ld, lc = b.newlabel("Lpoll"), b.newlabel("Lpd"), b.newlabel("Lpc")
        b.I("s_add_u32 s%d, s%d, %d" % (sT, sTAG, k))
        if tok is not None:
            b.wait(tok)
            b.I("s_branch %s" % lc)
        b.label(lp)
        self.Inc("buffer_load_dword v%d, v%d, %s, s%d offen sc1" % (vPOLL, vFL, self.ws(), sFL))
        if tok is None:
            b.wait(vm=0)
        else:
            b.I("s_waitcnt vmcnt(0)")
        b.label(lc)
        b.I("v_subrev_u32 v%d, s%d, v%d" % (vPOLL, sT, vPOLL))
        b.I("v_cmp_gt_u32 vcc, %d, v%d" % (16 - k, vPOLL))
        b.I("s_cmp_eq_u64 vcc, exec")
        b.I("s_cbranch_scc1 %s" % ld)
        self.spin_guard(lp)
        b.label(ld)
        self.consumed = max(self.consumed, self.pub_mine[k])

    def queue_stats(self, hf, plan):
        b = self.b
        s0 = self.seq
        assert s0 % 2 == 0
        self.seq += 2
        for j in range(2):
            def th(j=j):
                assert s0 + 1 - NSLOT <= self.consumed
                self.atok.setdefault(s0, []).append(b.I(
                    "buffer_load_dwordx4 v%d, %s, s%d offen offset:%d sc1 lds" % (vL16, self.ws(), sAO, j * 1024)))
            th.seq = s0 + 1
            th.urgent = True
            th.prep = [] if j else ["s_add_u32 m0, s%d, 0x%x" % (sW2K, (s0 % NSLOT) * 4096),
                                    "s_add_u32 s%d, s%d, 0x%x" % (sAO, sSTC, hf * 8192)]
            plan.append(th)
        return s0

    def queue_half(self, kind, idx, hf, nds, plan, rot=False, ds0=0):
        b = self.b
        seqs = []
        base = self.buf(kind, idx) + hf * self.hstride(kind)
        rg = self.rgs(kind)
        assert self.seq % 2 == 0 and nds % 2 == 0
        for ds in range(ds0, ds0 + nds):
            sq = self.seq
            self.seq += 1
            seqs.append(sq)
            if rot:
                def th(sq=sq):
                    assert sq - NSLOT <= self.consumed, "ring slot busy"
                    self.atok[sq] = [b.I("buffer_load_dwordx4 v%d, %s, s%d offen sc1 lds" % (vDMA, self.ws(), sAO))]
                th.seq = sq
                if ds == 0:
                    th.prep = ["s_add_u32 s%d, s%d, 0x%x" % (sAB, rg, base), "s_lshl_b32 s%d, s%d, 12" % (sXS, sROT)]
                else:
                    th.prep = ["s_add_u32 s%d, s%d, 0x1000" % (sXS, sXS), "s_and_b32 s%d, s%d, 0x7fff" % (sXS, sXS)]
                th.prep += ["s_add_u32 m0, s%d, 0x%x" % (sW1K, (sq % NSLOT) * 4096), "s_add_u32 s%d, s%d, s%d" % (sAO, sAB, sXS)]
            else:
                s0 = sq & ~1

                def th(sq=sq, s0=s0):
                    assert s0 + 1 - NSLOT <= self.consumed, "ring slot busy"
                    tk = b.I("buffer_load_dwordx4 v%d, %s, s%d offen offset:%d sc1%s lds" % (
                        vDM2, self.ws(), sAO, (sq & 1) * 1024, " nt" if (kind, idx) in env("NTA", []) else ""))
                    if sq & 1:
                        self.atok[s0] = self.atok[s0 + 1] = [tk]
                th.seq = s0 + 1
                th.prep = [] if sq & 1 else ["s_add_u32 m0, s%d, 0x%x" % (sW2K, (sq % NSLOT) * 4096),
                                             "s_add_u32 s%d, s%d, 0x%x" % (sAO, rg, base + ds * 4096)]
            plan.append(th)
        return seqs

    def queue_both(self, kind, idx, nds, plan):
        out = ([], [])
        for d0 in range(0, nds, 2):
            for hf in range(2):
                out[hf].extend(self.queue_half(kind, idx, hf, 2, plan, ds0=d0))
        return out

    def a_burst(self, n):
        k = 0
        while k < n and self.aq and self.aq[0].seq - NSLOT <= self.consumed:
            self.a_pop()
            k += 1
        self.last_bg = self.clock

    def frag_addr(self, sq, r, h):
        off = (sq % NSLOT) * 4096 + r * 2048 + h * 1024
        return ((vL16, vA1)[off >> 16], off & 0xffff)

    def gemm_prep(self, items, groups=None, depth=8, hooks=None, pre=None, post=None, pairw=False, buf0=0):
        b = self.b
        hooks, pre, post = hooks or {}, pre or {}, post or {}
        n = len(items)
        toks = [None] * n
        grp_of = {}
        for gi, g in enumerate(groups or []):
            for sq in g:
                grp_of[sq] = gi
        opened = set()
        st = {"ip": 0}

        rem = [1 << 30] * (n + 1)
        for k in range(n - 1, -1, -1):
            rem[k] = min(rem[k + 1], items[k][2] if items[k][2] is not None else 1 << 30)

        def reg(k):
            return vr(vAF + 4 * ((k + buf0) % NAF), 4)

        def issue():
            k = st["ip"]
            a, off, sq, _ = items[k]
            if sq in grp_of and grp_of[sq] not in opened:
                gi = grp_of[sq]
                opened.add(gi)
                while any(s not in self.atok for s in groups[gi]):
                    self.a_pop()
                    self.last_bg = self.clock
                for f in pre.get(gi, []):
                    f()
                if self.gstamp:
                    self.stamp("g%d?" % gi)
                b.wait(*[self.atok[s] for s in groups[gi]])
                b.I("s_barrier")
                if self.gstamp:
                    self.stamp("g%d!" % gi)
                self.consumed = max(self.consumed, self.mine)
                for f in post.get(gi, []):
                    f()
            if a == "tr":
                r0 = vAF + 4 * ((k + buf0) % NAF)
                self.I("ds_read_b64_tr_b16 %s, v%d offset:%d" % (p2(r0), vTQ, off))
                toks[k] = self.I("ds_read_b64_tr_b16 %s, v%d offset:%d" % (p2(r0 + 2), vTQ, off + 512))
            else:
                toks[k] = self.I("ds_read_b128 %s, v%d offset:%d" % (reg(k), a, off))
            st["ip"] += 1

        def prestart(m=None):
            while st["ip"] < min(depth if m is None else m, n):
                issue()

        def run():
            prestart()
            self.slotted = True
            for j in range(n):
                thunks = items[j][3](reg(j))
                while st["ip"] <= min(j + (1 if pairw else 0), n - 1):
                    issue()
                if pairw and j % 2 == 0 and j + 1 < st["ip"]:
                    b.wait(toks[j + 1])
                b.wait(toks[j])
                if items[j][2] is not None:
                    self.cur_seq = items[j][2]
                    lim = min(self.pinned) - 3 if self.pinned else 1 << 30
                    self.mine = max(self.mine, min(rem[j] - 1, lim))
                if not thunks and st["ip"] < min(n, j + 1 + depth):
                    issue()
                for th in thunks:
                    n0 = b.nins
                    th()
                    if b.nins > n0:
                        self.slot_fill(min(n, j + 1 + depth) - st["ip"], issue)
                for f in hooks.get(j, []):
                    f()
            self.slotted = False
            self.side_flush()
            sq = [it[2] for it in items if it[2] is not None]
            if sq:
                self.cur_seq = max(sq) + 1
                lim = min(self.pinned) - 3 if self.pinned else 1 << 30
                self.mine = max(self.mine, min(max(sq), lim))
        return prestart, run

    def gemm(self, *a, **k):
        self.gemm_prep(*a, **k)[1]()

    def mf(self, d, a, bb, c=None):
        dd = vr(d, 4)
        cc = dd if c is None else c
        return lambda: self.I("v_mfma_f32_16x16x32_bf16 %s, %s, %s, %s" % (dd, a, bb, cc))

    @staticmethod
    def split(seqs, sizes):
        out, k = [], 0
        for s in sizes:
            out.append(seqs[k:k + s])
            k += s
        assert k == len(seqs)
        return out

    def stats_stage1(self, s0, hf):
        b = self.b
        t = vS1
        tk = {}
        def landed():
            while len(self.atok.get(s0, [])) < 2:
                self.a_pop()
            b.wait(self.atok[s0])
        out = ["v_add_u32 v%d, 0x%x, v%d" % (vT, (s0 % NSLOT) * 4096, vSB), landed]
        for k in range(4):
            out.append(lambda k=k: tk.__setitem__(k, b.I("ds_read2st64_b32 %s, v%d offset0:%d offset1:%d" % (
                p2(t + 2 * k), vT, 2 * k, 2 * k + 1))))
        out += [6, lambda: b.wait(tk[3])]
        out += ["v_add_f32 v%d, v%d, v%d" % (t + k, t + k, t + 4 + k) for k in range(4)]
        out += ["v_add_f32 v%d, v%d, v%d" % (t + k, t + k, t + 2 + k) for k in range(2)]
        out += ["v_add_f32 v%d, v%d, v%d" % (t, t, t + 1)]
        out.append(lambda: tk.__setitem__("w", b.I("ds_write_b32 v%d, v%d offset:%d" % (vSW, t, hf * 1024))))

        def before_barrier():
            self.side_flush()
            b.wait(tk["w"])
        return out, before_barrier

    def stats_stage2(self, hf, scale, kv):
        b = self.b
        t = vS1
        tk = {}
        out = []
        for k in range(2):
            out.append(lambda k=k: tk.__setitem__(k, b.I("ds_read2st64_b32 %s, v%d offset0:%d offset1:%d" % (
                p2(t + 2 * k), vEX, hf * 4 + 2 * k, hf * 4 + 2 * k + 1))))
        a0, b0, a1, b1 = [vAB + 4 * hf + k for k in range(4)]
        out += [6, lambda: b.wait(tk[1]),
                "v_add_f32 v%d, v%d, v%d" % (t, t, t + 2), "v_add_f32 v%d, v%d, v%d" % (t + 1, t + 1, t + 3),
                "v_add_f32 v%d, v%d, v%d" % (t, t, t + 1), "v_mul_f32 v%d, 0x3b000000, v%d" % (t, t),
                "v_mov_b32 v%d, v%d" % (t + 1, t), 1,
                "v_permlane16_swap_b32 v%d, v%d" % (t, t + 1), 1,
                "v_fma_f32 v%d, -v%d, v%d, v%d" % (t + 1, t, t, t + 1), "v_max_f32 v%d, 0, v%d" % (t + 1, t + 1),
                "v_add_f32 v%d, 0x3727c5ac, v%d" % (t + 1, t + 1), "v_rsq_f32 v%d, v%d" % (a0, t + 1), 1]
        if scale:
            out.append("v_mul_f32 v%d, v%d, v%d" % (a0, a0, vK))
        out.append("v_mul_f32_e64 v%d, -v%d, v%d" % (b0, t, a0))
        if kv:
            def wr():
                b.I("s_mov_b32 exec_lo, 0xffff")
                b.I("s_mov_b32 exec_hi, 0xffff")
                b.I("ds_write_b32 v%d, v%d" % (vSWR, a0))
                b.I("ds_write_b32 v%d, v%d offset:128" % (vSWR, b0))
                b.I("s_mov_b64 exec, -1")
            out.append(wr)
        out += ["v_mov_b32 v%d, v%d" % (a1, a0), "v_mov_b32 v%d, v%d" % (b1, b0), 1,
                "v_permlane32_swap_b32 v%d, v%d" % (a0, a1), "v_permlane32_swap_b32 v%d, v%d" % (b0, b1)]
        return out

    def stats_hooks(self, s0, hf, scale, kv, j1, gi, hooks, pre, post):
        s1, bb = self.stats_stage1(s0, hf)
        hooks.setdefault(j1, []).append(lambda: self.side.extend(s1))
        pre.setdefault(gi, []).append(bb)
        post.setdefault(gi, []).append(lambda: self.side.extend(self.stats_stage2(hf, scale, kv)))

    def stats_startup(self):
        b = self.b
        I = b.I
        t = vT
        I("v_mul_f32 v%d, 0x3b000000, v%d" % (t + 1, vS1))
        I("v_cndmask_b32 v%d, v%d, v%d, s[%d:%d]" % (t, vS2, vS2 + 1, sM1, sM1 + 1))
        I("v_cndmask_b32 v%d, v%d, v%d, s[%d:%d]" % (t, t, vS2 + 2, sM2, sM2 + 1))
        I("v_cndmask_b32 v%d, v%d, v%d, s[%d:%d]" % (t, t, vS2 + 3, sM3, sM3 + 1))
        I("v_mul_f32 v%d, 0x3b000000, v%d" % (t, t))
        I("v_fma_f32 v%d, -v%d, v%d, v%d" % (t, t + 1, t + 1, t))
        I("v_max_f32 v%d, 0, v%d" % (t, t))
        I("v_add_f32 v%d, 0x3727c5ac, v%d" % (t, t))
        I("v_rsq_f32 v%d, v%d" % (t + 2, t))
        I("v_lshlrev_b32 v%d, 1, v%d" % (t + 4, vSW))
        I("v_mul_f32_e64 v%d, -v%d, v%d" % (t + 3, t + 1, t + 2))
        I("v_subrev_u32 v%d, 0x%x, v%d" % (t + 4, L_STA - 512, t + 4))
        I("s_mov_b64 exec, s[%d:%d]" % (sDIAG, sDIAG + 1))
        I("ds_write_b32 v%d, v%d" % (vSW, t + 2))
        I("ds_write_b32 v%d, v%d offset:256" % (vSW, t + 3))
        I("ds_write_b64 v%d, v[%d:%d]" % (t + 4, t + 2, t + 3))
        I("s_mov_b64 exec, -1")
        b.wait(lg=0)
        I("s_barrier")

    def phi_pairs(self, pairs):
        I = self.I
        for c0 in range(0, len(pairs), 4):
            grp = pairs[c0:c0 + 4]
            for k, (t, d) in enumerate(grp):
                I("v_pk_mul_f32 %s, %s, %s %s" % (p2(vT + 2 * k), p2(t), p2(vK), K_L2E))
            for k, (t, d) in enumerate(grp):
                I("v_exp_f32_e64 v%d, v%d clamp" % (vT + 2 * k, vT + 2 * k))
                I("v_max_f32 v%d, v%d, v%d" % (t, vK + 1, t))
                I("v_exp_f32_e64 v%d, v%d clamp" % (vT + 2 * k + 1, vT + 2 * k + 1))
                I("v_max_f32 v%d, v%d, v%d" % (t + 1, vK + 1, t + 1))
            for k, (t, d) in enumerate(grp):
                I("v_pk_add_f32 %s, %s, %s" % (p2(t), p2(t), p2(vT + 2 * k)))
            for k, (t, d) in enumerate(grp):
                I("v_cvt_pk_bf16_f32 v%d, v%d, v%d" % (d, t, t + 1))

    def kv_epilogue(self, hf, ra, rb):
        I = self.I
        K, V = vACC + 8 * hf, vACC + 16 + 8 * hf
        for j in range(4):
            I("v_pk_fma_f32 %s, %s, %s, %s op_sel:[0,0,1] op_sel_hi:[1,1,1]" % (p2(vT + 2 * j), p2(rb + 2 * j), p2(vCSK), p2(vK)))
            I("v_pk_mul_f32 %s, %s, %s" % (p2(vT + 8 + 2 * j), p2(rb + 2 * j), p2(vCSV)))
        for j in range(4):
            I("v_pk_fma_f32 %s, %s, %s, %s" % (p2(K + 2 * j), p2(ra + 2 * j), p2(K + 2 * j), p2(vT + 2 * j)))
            I("v_pk_fma_f32 %s, %s, %s, %s" % (p2(V + 2 * j), p2(ra + 2 * j), p2(V + 2 * j), p2(vT + 8 + 2 * j)))
        for j in range(4):
            I("v_cvt_pk_bf16_f32 v%d, v%d, v%d" % (V + j, V + 2 * j, V + 2 * j + 1))
        self.phi_pairs([(K + 2 * j, K + j) for j in range(4)])

    def startup(self):
        b = self.b
        I = b.I
        i_, g_, l3, l7, q0, tc = vT + 2, vT + 3, vT + 6, vT + 7, vT + 8, vT + 9
        if self.diag:
            I("s_memtime s[92:93]")
        I("s_cmp_ge_u32 s2, 256")
        I("s_cbranch_scc1 L_end")
        I("s_load_dwordx4 s[4:7], s[0:1], 0")
        I("s_load_dwordx2 s[20:21], s[0:1], 64")
        I("s_load_dwordx2 s[8:9], s[0:1], 16")
        I("s_load_dwordx4 s[12:15], s[0:1], 32")
        I("s_load_dwordx4 s[16:19], s[0:1], 48")
        I("s_getpc_b64 s[90:91]")
        b.label("L_pc")
        I("v_lshrrev_b32 v%d, 6, v0" % vT)
        I("v_and_b32 v0, 63, v0")
        I("v_readfirstlane_b32 s%d, v%d" % (sW, vT))
        I("s_lshr_b32 s%d, s2, 3" % (sT + 1))
        I("s_lshl_b32 s%d, s%d, 2" % (sT + 3, sT + 1))
        I("s_add_u32 s%d, s%d, s%d" % (sT + 3, sT + 3, sW))
        I("s_and_b32 s%d, s%d, 31" % (sT, sT + 3))
        I("s_lshl_b32 s%d, s%d, 11" % (sT, sT))
        I("v_lshlrev_b32 v%d, 7, v0" % vTCH)
        I("v_add_u32 v%d, s%d, v%d" % (vT, sT, vTCH))
        I("v_min_u32 v%d, L_end-L_pc, v%d" % (vT, vT))
        I("s_mov_b64 exec, 0xffff")
        I("global_load_dword v%d, v%d, s[90:91]" % (vDUM, vT))
        I("s_mov_b64 exec, -1")
        I("s_and_b32 s%d, s2, 7" % sROT)
        I("s_and_b32 s%d, s%d, 7" % (sC, sT + 1))
        I("s_lshr_b32 s%d, s%d, 3" % (sQ, sT + 1))
        I("s_lshl_b32 s%d, s%d, 2" % (sT, sROT))
        I("s_add_u32 s%d, s%d, s%d" % (sRG, sT, sQ))
        I("s_lshl_b32 s%d, s%d, 16" % (sRG64, sRG))
        I("s_lshl_b32 s%d, s%d, 11" % (sW2K, sW))
        I("v_lshrrev_b32 v%d, 4, v0" % g_)
        I("v_and_b32 v%d, 15, v0" % i_)
        tw, tx = vT + 12, vT + 13
        I("s_mul_i32 s%d, s%d, %d" % (sT + 2, sT + 3, 4 * 3072))
        I("v_lshlrev_b32 v%d, 10, v0" % tx)
        I("v_add_u32 v%d, s%d, v%d" % (tw, sT + 2, tx))
        I("s_lshl_b32 s%d, s%d, 18" % (sT + 2, sROT))
        I("s_lshl_b32 s%d, s%d, 11" % (sT, sT + 3))
        I("s_add_u32 s%d, s%d, s%d" % (sT, sT, sT + 2))
        I("v_add_u32 v%d, s%d, v%d" % (tx, sT, tx))
        I("v_lshrrev_b32 v%d, 3, v0" % l3)
        I("v_and_b32 v%d, 7, v0" % l7)
        I("v_xor_b32 v%d, v%d, v%d" % (vT + 4, l7, g_))
        I("v_lshlrev_b32 v%d, 4, v%d" % (vT + 4, vT + 4))
        I("v_lshl_add_u32 v%d, v%d, 10, v%d" % (vT + 4, l3, vT + 4))
        I("s_lshl_b32 s%d, s%d, 14" % (sT + 1, sW))
        I("v_add_u32 v%d, s%d, v%d" % (vXS0, sT + 1, vT + 4))
        I("v_xor_b32 v%d, 64, v%d" % (vXS1, vXS0))
        I("v_add_u32 v%d, 7168, v%d" % (vXS1, vXS1))
        I("v_and_b32 v%d, 1, v%d" % (vT + 4, g_))
        I("v_lshlrev_b32 v%d, 1, v%d" % (vT + 4, vT + 4))
        I("v_xor_b32 v%d, v%d, v%d" % (q0, l7, vT + 4))
        I("v_lshlrev_b32 v%d, 4, v%d" % (q0, q0))
        I("s_and_b32 s%d, s%d, 1" % (sT + 1, sW))
        I("s_lshl_b32 s%d, s%d, 6" % (sT + 1, sT + 1))
        I("v_xor_b32 v%d, s%d, v%d" % (vT + 4, sT + 1, q0))
        I("s_lshl_b32 s%d, s%d, 3" % (sT + 1, sW))
        I("v_add_u32 v%d, s%d, v%d" % (vT + 5, sT + 1, l3))
        I("v_mul_u32_u24 v%d, 3072, v%d" % (vT + 5, vT + 5))
        I("v_add_u32 v%d, v%d, v%d" % (vWS, vT + 4, vT + 5))
        sXO, sWO_, sRB = sAB, sAO, 93
        I("s_lshl_b32 s%d, s%d, 7" % (sWO_, sC))
        I("v_add_u32 v%d, s%d, v%d" % (vWS, sWO_, vWS))
        if self.diag:
            b.wait(lg=0)
            I("s_mov_b32 s91, s92")
        I("s_add_u32 s%d, s%d, 0x%x" % (sRB, sW2K, L_RING - 1024))
        I("s_lshl_b32 s%d, s%d, 7" % (sXO, sROT))
        I("s_mul_i32 s%d, s%d, %d" % (sWO_, sROT, 64 * 3072))
        if self.diag:
            I("v_mov_b32 v%d, 0" % vSTAMP)
        b.wait(lg=0)
        if self.diag:
            I("v_writelane_b32 v%d, s91, 61" % vSTAMP)
        self.stamp("start")
        I("s_add_u32 s88, s%d, 0x%x" % (S_WS, WS_EP))
        I("s_addc_u32 s89, s%d, 0" % (S_WS + 1))
        I("s_load_dword s%d, s[88:89], 0" % sEP)
        self.srd(R_WQ, S_WQ, 512 * 3072)
        I("s_add_u32 s%d, s%d, s%d" % (R_X, S_X, sRG64))
        I("s_addc_u32 s%d, s%d, 0" % (R_X + 1, S_X + 1))
        I("s_and_b32 s%d, s%d, 0xffff" % (R_X + 1, R_X + 1))
        I("s_mov_b32 s%d, 0x10000" % (R_X + 2))
        I("s_mov_b32 s%d, 0x20000" % (R_X + 3))
        tokA, tokW = {}, {}

        def issue_thunks(ks):
            th = []
            if ks % 2 == 0:
                ds = ks // 2
                tokA[ds] = []
                pre = ["s_add_u32 m0, s%d, 0x%x" % (sW2K, ds * 8192)]
                if ds:
                    pre += ["s_add_u32 s%d, s%d, 128" % (sXO, sXO), "s_and_b32 s%d, s%d, 0x380" % (sXO, sXO)]
                th.append((pre, lambda: tokA[ds].append(
                    I("buffer_load_dwordx4 v%d, s[%d:%d], s%d offen lds" % (vXS0, R_X, R_X + 3, sXO)))))
                th.append(([], lambda: tokA[ds].append(
                    I("buffer_load_dwordx4 v%d, s[%d:%d], s%d offen offset:1024 lds" % (vXS1, R_X, R_X + 3, sXO)))))
            tokW[ks] = []
            for p in range(2):
                pre = []
                if p == 0:
                    if ks:
                        pre.append("s_add_u32 s%d, s%d, %d" % (sWO_, sWO_, 32 * 3072))
                        if ks % 2 == 0:
                            pre += ["s_cmp_eq_u32 s%d, %d" % (sWO_, 512 * 3072), "s_cselect_b32 s%d, 0, s%d" % (sWO_, sWO_)]
                    pre.append("s_add_u32 m0, s%d, 0x%x" % (sRB, (ks % NR) * 8192))
                th.append((pre, lambda p=p: tokW[ks].append(I("buffer_load_dwordx4 v%d, s[%d:%d], s%d offen offset:%d lds" % (
                    vWS, R_WQ, R_WQ + 3, sWO_, (p + 1) * 1024)))))
            return th

        tokQ = []

        def rq_base(ks):
            return L_PACK + ks * 4096 if ks < 4 else L_WQ + (ks - 4) * 4096

        def q_thunk(ks):
            pre = ["s_add_u32 s%d, s%d, %d" % (sWO_, sWO_, 32 * 3072)]
            if ks % 2 == 0:
                pre += ["s_cmp_eq_u32 s%d, %d" % (sWO_, 512 * 3072), "s_cselect_b32 s%d, 0, s%d" % (sWO_, sWO_)]
            pre.append("s_add_u32 m0, s%d, 0x%x" % (sW1K, rq_base(ks)))
            return (pre, lambda: tokQ.append(I("buffer_load_dwordx4 v%d, s[%d:%d], s%d offen lds" % (vWS, R_WQ, R_WQ + 3, sWO_))))
        self.tokQ, self.rq_base = tokQ, rq_base

        def issue_now(ks):
            for pre, th in issue_thunks(ks):
                for t in pre:
                    I(t)
                th()

        if env("T0", 1):
            self.srd(R_PK, S_X, 2048 * 1024)
            for ptr, srd, v, mask in ((S_WQ, R_WQ, tw, 0xfff), (S_X, R_PK, tx, 3)):
                I("s_sub_u32 s%d, 0x180, s%d" % (sT, ptr))
                I("s_and_b32 s%d, s%d, 0x380" % (sT, sT))
                I("s_mov_b64 exec, 0x%x" % mask)
                I("buffer_load_dword v%d, v%d, s[%d:%d], s%d offen" % (vDUM, v, srd, srd + 3, sT))
            I("s_mov_b64 exec, -1")
        NFIRST = env("NFIRST", 4)
        for ks in range(NFIRST):
            issue_now(ks)
        if env("EARLYP", 0):
            ptk = self.pack_load(l3, q0)
        self.stamp("first")
        I("s_getreg_b32 s%d, hwreg(HW_REG_XCC_ID, 0, 4)" % sXCC)
        I("s_mov_b32 s%d, 0x100000" % sSPIN)
        self.srd(R_WS, S_WS, WS_SIZE)
        self.srd(R_OUT, S_OUT, 2048 * 1024)
        I("v_lshlrev_b32 v%d, 4, v0" % vL16)
        I("v_lshlrev_b32 v%d, 2, v0" % vL4)
        I("s_lshl_b32 s%d, s%d, 10" % (sW1K, sW))
        I("s_lshl_b32 s%d, s%d, 2" % (sT, sC))
        I("s_add_u32 s%d, s%d, s%d" % (sT, sT, sW))
        I("s_mul_i32 s%d, s%d, %d" % (sKV, sT, KVH))
        I("s_add_u32 s%d, s%d, 0x%x" % (sKV, sKV, WS_KV + KB0))
        I("v_mov_b32 v%d, 0" % vC2)
        I("s_and_b32 s%d, s%d, 15" % (sT + 1, sRG))
        I("s_mul_i32 s%d, s%d, %d" % (sT + 1, sT + 1, KVH // 16))
        I("s_add_u32 s%d, s%d, s%d" % (sT + 1, sT + 1, sKV))
        I("s_lshr_b32 s%d, s%d, 4" % (sT + 2, sRG))
        I("s_mul_i32 s%d, s%d, %d" % (sT + 2, sT + 2, KVL))
        I("s_add_u32 s%d, s%d, s%d" % (sT + 1, sT + 1, sT + 2))
        I("v_mov_b32 v%d, 0" % vPOLL)
        I("v_mov_b32 v%d, 0" % (vPOLL + 1))
        I("v_lshlrev_b32 v%d, 3, v0" % (vT + 4))
        assert KVH % 128 == 0 and KVH // 128 <= 64
        mask = (1 << (KVH // 128)) - 1
        I("s_mov_b32 exec_lo, 0x%x" % (mask & 0xffffffff))
        I("s_mov_b32 exec_hi, 0x%x" % (mask >> 32))
        ztok = I("buffer_store_dwordx2 %s, v%d, %s, s%d offen sc1" % (p2(vPOLL), vT + 4, self.ws(), sT + 1))
        I("s_mov_b64 exec, -1")
        I("s_mul_i32 s%d, s%d, %d" % (sPK, sT, PKW))
        I("s_lshl_b32 s%d, s%d, 7" % (sFL, sRG))
        I("s_lshl_b32 s%d, s%d, 12" % (sR1, sC))
        I("s_add_u32 s%d, s%d, 0x%x" % (sR1, sR1, WS_R2))
        I("s_add_u32 s%d, s%d, 0x%x" % (sFL, sFL, WS_FL))
        I("s_lshl_b32 s%d, s%d, 2" % (sMYF, sT))
        I("s_add_u32 s%d, s%d, s%d" % (sMYF, sMYF, sFL))
        I("s_lshl_b32 s%d, s%d, 14" % (sSTC, sRG))
        I("s_add_u32 s%d, s%d, 0x%x" % (sSTC, sSTC, WS_ST))
        I("s_lshl_b32 s%d, s%d, 8" % (sSTP, sT))
        I("s_add_u32 s%d, s%d, s%d" % (sSTP, sSTP, sSTC))
        I("s_add_u32 s%d, s%d, s%d" % (sSTC, sSTC, sW2K))
        I("s_mul_i32 s%d, s%d, %d" % (sRGH, sRG, HSZ))
        I("s_lshl_b32 s%d, s%d, 12" % (sSTO, sC))
        I("s_lshl_b32 s%d, s%d, 9" % (sT + 1, sW))
        I("s_add_u32 s%d, s%d, s%d" % (sSTO, sSTO, sT + 1))
        I("s_lshl_b32 s%d, s%d, 5" % (sOUT, sT))
        I("s_mul_i32 s%d, s%d, 3" % (sT, sT))
        for t in range(3):
            I("s_add_u32 s%d, s%d, %d" % (sT + 1, sT, t))
            I("s_lshr_b32 s%d, s%d, 2" % (sT + 2, sT + 1))
            I("s_lshl_b32 s%d, s%d, 12" % (sT + 2, sT + 2))
            I("s_and_b32 s%d, s%d, 3" % (sT + 3, sT + 1))
            I("s_lshl_b32 s%d, s%d, 9" % (sT + 3, sT + 3))
            I("s_add_u32 s%d, s%d, s%d" % (sT + 2, sT + 2, sT + 3))
            I("s_add_u32 s%d, s%d, s%d" % (sT + 2, sT + 2, sRGH))
            I("s_cmp_lt_u32 s%d, 86" % (sT + 1))
            I("s_cselect_b32 s%d, s%d, 0x%x" % (sH0 + t, sT + 2, OOB))
            I("s_cselect_b32 s%d, 0, 0x%x" % (sT + 2, OOB))
            I("v_add_u32 v%d, s%d, v%d" % (vW1 + t, sT + 2, vL16))
        I("v_add_u32 v%d, 0x10000, v%d" % (vA1, vL16))
        I("v_add_u32 v%d, s%d, v%d" % (vDMA, sW1K, vL16))
        I("v_add_u32 v%d, s%d, v%d" % (vDM2, sW2K, vL16))
        I("v_and_b32 v%d, 0x7c, v%d" % (vFL, vL4))
        I("v_lshrrev_b32 v%d, 1, v%d" % (vT + 4, g_))
        I("v_lshlrev_b32 v%d, 8, v%d" % (vT + 4, vT + 4))
        I("v_lshl_add_u32 v%d, v%d, 4, v%d" % (vT + 4, i_, vT + 4))
        I("v_and_b32 v%d, 1, v%d" % (vT + 5, g_))
        I("v_lshl_add_u32 v%d, v%d, 11, v%d" % (vST, vT + 5, vT + 4))
        I("v_lshlrev_b32 v%d, 4, v%d" % (vSTA, g_))
        I("v_add_u32 v%d, 0x%x, v%d" % (vSTA, L_STA, vSTA))
        I("v_lshlrev_b32 v%d, 3, v%d" % (vSTQ, i_))
        I("v_add_u32 v%d, 0x%x, v%d" % (vSTQ, L_STA + 512, vSTQ))
        I("s_lshl_b32 s%d, s%d, 6" % (sT, sW))
        I("s_add_u32 s%d, s%d, 0x%x" % (sT, sT, L_STA))
        I("v_lshlrev_b32 v%d, 2, v%d" % (vSW, i_))
        I("v_add_u32 v%d, s%d, v%d" % (vSW, sT, vSW))
        I("v_lshrrev_b32 v%d, 3, v%d" % (vT + 4, i_))
        I("v_lshlrev_b32 v%d, 10, v%d" % (vT + 4, vT + 4))
        I("v_and_b32 v%d, 7, v%d" % (vT + 5, i_))
        I("v_lshl_add_u32 v%d, v%d, 7, v%d" % (vT + 4, vT + 5, vT + 4))
        I("v_lshrrev_b32 v%d, 1, v%d" % (vT + 5, i_))
        I("v_xor_b32 v%d, v%d, v%d" % (vT + 5, vT + 5, g_))
        I("v_lshl_add_u32 v%d, v%d, 4, v%d" % (vX0, vT + 5, vT + 4))
        I("v_xor_b32 v%d, 64, v%d" % (vX1, vX0))
        I("v_add_u32 v%d, s%d, v%d" % (vOW0, sW2K, vX0))
        I("v_add_u32 v%d, s%d, v%d" % (vOW1, sW2K, vX1))
        I("v_bfe_u32 v%d, v0, 2, 2" % (vT + 4))
        I("v_bfe_u32 v%d, v0, 3, 1" % (vT + 5))
        I("v_lshlrev_b32 v%d, 1, v%d" % (vT + 5, vT + 5))
        I("v_bfe_u32 v%d, v0, 4, 1" % (vT + 10))
        I("v_lshl_add_u32 v%d, v%d, 2, v%d" % (vT + 5, vT + 10, vT + 5))
        I("v_bfe_u32 v%d, v0, 1, 1" % (vT + 10))
        I("v_xor_b32 v%d, v%d, v%d" % (vT + 5, vT + 5, vT + 10))
        I("v_lshlrev_b32 v%d, 4, v%d" % (vT + 5, vT + 5))
        I("v_lshl_add_u32 v%d, v%d, 7, v%d" % (tc, vT + 4, vT + 5))
        I("v_and_b32 v%d, 1, v0" % (vT + 10))
        I("v_lshl_add_u32 v%d, v%d, 3, v%d" % (tc, vT + 10, tc))
        I("s_lshl_b32 s%d, s%d, 5" % (sT + 1, sW))
        I("v_xor_b32 v%d, s%d, v%d" % (vT + 4, sT + 1, tc))
        I("v_lshl_add_u32 v%d, v%d, 10, v%d" % (vTQ, g_, vT + 4))
        I("v_add_u32 v%d, 0x%x, v%d" % (vTQ, L_WQ, vTQ))
        I("v_lshl_add_u32 v%d, v%d, 11, v%d" % (vT + 4, g_, vT + 4))
        I("v_add_u32 v%d, 0x%x, v%d" % (vTR, L_RING, vT + 4))
        for k in range(4):
            I("v_mov_b32 v%d, 0x3f803f80" % (vONE + k))
        I("v_mov_b32 v%d, 0x3fb8aa3b" % vK)
        I("v_mov_b32 v%d, 0x358637bd" % (vK + 1))
        I("s_mul_i32 s%d, s%d, 2560" % (sT, sW))
        I("s_add_u32 s%d, s%d, 0x%x" % (sT, sT, L_KVI))
        I("v_add_u32 v%d, s%d, v%d" % (vKVL, sT, vL4))
        for r in range(4):
            I("v_add_u32 v%d, %d, v0" % (vT + 4, 64 * r))
            I("v_mul_u32_u24 v%d, 4370, v%d" % (vT + 5, vT + 4))
            I("v_lshrrev_b32 v%d, 16, v%d" % (vT + 5, vT + 5))
            I("v_add_u32 v%d, v%d, v%d" % (vT + 4, vT + 4, vT + 5))
            I("v_lshlrev_b32 v%d, 2, v%d" % (vT + 4, vT + 4))
            I("v_add_u32 v%d, s%d, v%d" % (vPOS + r, sT, vT + 4))
        I("v_lshrrev_b32 v%d, 1, v%d" % (vT + 4, g_))
        I("v_add_u32 v%d, v%d, v%d" % (vT + 4, vT + 4, g_))
        I("v_lshlrev_b32 v%d, 4, v%d" % (vT + 4, vT + 4))
        I("s_add_u32 s%d, s%d, %d" % (sT, sT, 276 * 4))
        I("v_add_u32 v%d, s%d, v%d" % (vZP, sT, vT + 4))
        I("v_cmp_eq_u32 vcc, 15, v%d" % i_)
        I("v_cndmask_b32 v%d, 0, 1.0, vcc" % (vT + 4))
        b.wait(lg=0)
        for k in range(5):
            I("ds_write_b32 v%d, v%d offset:%d" % (vKVL, vT + 4, 256 * k))
        I("s_xor_b32 s%d, s%d, 0x80000000" % (sTAG, sEP))
        I("s_and_b32 s%d, s%d, 0xfffffff0" % (sTAG, sTAG))
        I("s_mov_b32 s%d, 0x358637bd" % sEPS)
        for r, val in ((sM1, 0x22222222), (sM2, 0x44444444), (sM3, 0x88888888)):
            I("s_mov_b32 s%d, 0x%x" % (r, val))
            I("s_mov_b32 s%d, 0x%x" % (r + 1, val))
        I("s_mov_b32 s%d, 0x00f0000f" % sDIAG)
        I("s_mov_b32 s%d, 0xf0000f00" % (sDIAG + 1))
        I("v_lshlrev_b32 v%d, 10, v%d" % (vT + 4, g_))
        I("s_lshl_b32 s%d, s%d, 12" % (sT, sW))
        I("v_add_u32 v%d, s%d, v%d" % (vT + 4, sT, vT + 4))
        for t in range(4):
            I("v_xor_b32 v%d, %d, v%d" % (vCS1 + 4 + t, 32 * t, tc))
            I("v_add_u32 v%d, v%d, v%d" % (vCS1 + 4 + t, vCS1 + 4 + t, vT + 4))
            I("v_add_u32 v%d, 0x%x, v%d" % (vCS1 + 4 + t, L_PACK, vCS1 + 4 + t))
        I("v_lshlrev_b32 v%d, 10, v%d" % (vT + 14, i_))
        I("v_lshl_add_u32 v%d, v%d, 3, v%d" % (vT + 14, g_, vT + 14))
        I("s_add_u32 s%d, s%d, s%d" % (sT, sTAG, sXCC))
        I("v_mov_b32 v%d, s%d" % (vT + 15, sT))
        for ks in range(NFIRST, env('NINIT', 6)):
            issue_now(ks)
        nxt = env('NINIT', 6)
        nq = 0
        if not env("EARLYP", 0):
            ptk = self.pack_load(l3, q0)
        I("s_mov_b64 exec, 1")
        I("buffer_load_dword v%d, off, %s, s%d sc1" % (vDUM, self.ws(), sFL))
        I("s_mov_b64 exec, -1")
        self.stamp("setup")

        tmp = [self.free.pop() for _ in range(6)]
        assert all(s[0] == "v" for s in tmp)
        cK, cV = tmp[4][1], tmp[5][1]
        res_toks = []
        KZ = env("KZ", 2)
        KP, KANN, KI, KC = env("KP", 4), env("KANN", 9), env("KI", 12), env("KC", 99)
        for ks in range(17):
            fill, dma, nrd = [], [], 0
            if ks < 16:
                b.wait(tokW[ks], tokA[ks // 2])
                if ks == KZ:
                    b.wait(ztok)
                if ks == KANN:
                    b.wait(pst)
                I("s_barrier")
                if ks == 0:
                    self.stamp("w0")
                elif env("LSTAMP", 0):
                    self.stamp("it%d" % ks)
                if ks == KC:
                    self.r1_check()
                    self.bg_w = len(self.free) - 2 * (16 - ks) - 16
                    self.last_bg = self.clock
                if ks in (KZ, KANN):
                    lx = b.newlabel("Lann")
                    I("s_cmp_lg_u32 s%d, 0" % sW)
                    I("s_cbranch_scc1 %s" % lx)
                    I("s_lshl_b32 s%d, s%d, 7" % (sT, sRG))
                    I("s_add_u32 s%d, s%d, s%d" % (sT, sT, sR1))
                    if ks == KANN:
                        I("s_add_u32 s%d, s%d, 0x%x" % (sT, sT, WS_R3 - WS_R2))
                    I("s_mov_b64 exec, 1")
                    self.Inc("buffer_store_dword v%d, off, %s, s%d sc1" % (vT + 15, self.ws(), sT))
                    I("s_mov_b64 exec, -1")
                    b.label(lx)
                for p in range(2):
                    s = self.free.pop(0)
                    self.wslot[("qkv", 0, 2 * ks + p)] = (s, None)
                    for hh in range(2):
                        fill.append(lambda s=s, hh=hh, p=p: I("ds_read_b64_tr_b16 %s, v%d offset:%d" % (
                            vr(s[1] + 2 * hh, 2, s[0]), vTR, (ks % NR) * 8192 + p * 1024 + hh * 512)))
                fb = vAF + (ks & 1) * 20
                ds, h = ks // 2, ks & 1
                for rt in range(4):
                    fill.append(lambda rt=rt: I("ds_read_b128 %s, v%d offset:%d" % (
                        vr(fb + 4 * rt, 4), (vX0, vX1)[h], ds * 8192 + rt * 2048)))
                fill.append(lambda: I("ds_read_b128 %s, v%d offset:%d" % (vr(fb + 16, 4), (vOW0, vOW1)[h], ds * 8192)))
                nrd = len(fill)
                k2 = 0
                while nxt < min(16, ks + NR) and k2 < 2:
                    dma += issue_thunks(nxt)
                    nxt += 1
                    k2 += 1
                if nxt == 16 and not dma and ks > KP + 1:
                    while nq < 16 and len(dma) < env("QPER", 3) and (nq < 4 or 10 + (nq - 4) // 2 < ks):
                        dma.append(q_thunk(nq))
                        nq += 1
                if ks == KI:
                    fill.append(self.r1_issue)
                if ks == env("KOX", 15) and FT:
                    def tch():
                        self.touch_ox(0)
                        I("v_and_b32 v%d, 1, v0" % vT)
                        I("v_lshrrev_b32 v%d, 1, v0" % (vT + 1))
                        I("v_lshlrev_b32 v%d, 13, v%d" % (vT + 1, vT + 1))
                        I("v_lshl_add_u32 v%d, v%d, 7, v%d" % (vT + 5, vT, vT + 1))
                        I("s_mov_b64 exec, 15")
                        I("buffer_load_dword v%d, v%d, %s, s%d offen sc1" % (vDUM, vT + 5, self.ws(), sSTP))
                        I("s_mov_b64 exec, -1")
                    fill.append(tch)
                if ks == KP:
                    def prd():
                        b.wait(ptk)
                        for t in range(4):
                            for hh in range(2):
                                I("ds_read_b64_tr_b16 %s, v%d offset:%d" % (p2(tmp[t][1] + 2 * hh), vCS1 + 4 + t, hh * 512))
                    fill.append(prd)
            mfs = []
            if ks >= 1:
                k1 = ks - 1
                fb1 = vAF + (k1 & 1) * 20
                c0 = "0" if k1 == 0 else None
                wk, wv = [slot_r(self.wslot[("qkv", 0, k)][0]) for k in (2 * k1, 2 * k1 + 1)]
                one = vr(vONE, 4)
                for rt in range(4):
                    mfs.append(self.mf(vACC + 4 * rt, vr(fb1 + 4 * rt, 4), wk, c0))
                    mfs.append(self.mf(vACC + 16 + 4 * rt, vr(fb1 + 4 * rt, 4), wv, c0))
                own = vr(fb1 + 16, 4)
                mfs += [self.mf(vS1, one, own, c0), self.mf(vS2, own, own, c0),
                        self.mf(cK, one, wk, c0), self.mf(cV, one, wv, c0)]
            rds, extra = fill[:nrd], fill[nrd:]
            for _ in range(min(3, len(rds))):
                rds.pop(0)()
            while mfs:
                mfs.pop(0)()
                if rds:
                    for _ in range(min(2, len(rds))):
                        rds.pop(0)()
                    if len(rds) <= 2 and dma and dma[0][0]:
                        I(dma[0][0].pop(0))
                elif dma:
                    if dma[0][0]:
                        while dma[0][0]:
                            I(dma[0][0].pop(0))
                    else:
                        dma.pop(0)[1]()
                elif extra:
                    extra.pop(0)()
            for f in rds:
                f()
            for pre, th in dma:
                for t in pre:
                    I(t)
                th()
            for f in extra:
                f()
            b.wait(lg=0)
            if ks == KP:
                pst = [I("buffer_store_dwordx4 %s, v%d, %s, s%d offen sc1" % (slot_r(tmp[t]), vL16, self.ws(), 80 + t))
                       for t in range(4)]
        I("s_sub_u32 s%d, s%d, s%d" % (sT, sC, sROT))
        I("s_and_b32 s%d, s%d, 7" % (sT, sT))
        I("s_lshl_b32 s%d, s%d, 13" % (sT, sT))
        I("v_lshrrev_b32 v%d, 4, v0" % vT)
        I("v_lshrrev_b32 v%d, 5, v0" % (vT + 1))
        I("v_xor_b32 v%d, v%d, v%d" % (vT + 1, vT + 1, vT))
        I("s_lshl_b32 s%d, s%d, 1" % (sT + 1, sW))
        I("v_xor_b32 v%d, s%d, v%d" % (vT + 1, sT + 1, vT + 1))
        I("v_lshlrev_b32 v%d, 4, v%d" % (vT + 1, vT + 1))
        I("v_xor_b32 v%d, v%d, v%d" % (vT + 1, vT + 1, vX0))
        I("v_and_b32 v%d, 1, v%d" % (vT, vT))
        I("v_lshl_add_u32 v%d, v%d, 3, v%d" % (vT + 1, vT, vT + 1))
        I("v_add_u32 v%d, s%d, v%d" % (vT + 1, sT, vT + 1))
        res = [I("ds_read_b64 %s, v%d offset:%d" % (p2(vS1 + 8 + 0) if False else p2(vACC + 32 + 2 * rt), vT + 1, rt * 2048)) for rt in range(4)]
        I("v_mov_b32 v%d, v%d" % (vOA, vT + 14))
        self.bg_w = 0
        self.stamp("kvpass")
        if KC > 16:
            self.r1_check()
        self.stats_startup()
        while nq < 16:
            pre, th = q_thunk(nq)
            for t in pre:
                I(t)
            th()
            nq += 1
        t1 = []
        for rt in range(4):
            t1.append(I("ds_read_b128 %s, v%d offset:%d" % (vr(vAF + 4 * rt, 4), vSTA, rt * 64)))
            t1.append(I("ds_read_b128 %s, v%d offset:%d" % (vr(vAF + 16 + 4 * rt, 4), vSTA, 256 + rt * 64)))
        for rt in range(4):
            t1.append(I("ds_read_b64 %s, v%d offset:%d" % (p2(vAB + 2 * rt), vSTQ, rt * 128)))
        for k in range(2):
            I("v_mov_b32 v%d, v%d" % (vCSK + k, cK))
            I("v_mov_b32 v%d, v%d" % (vCSV + k, cV))
        self.free += tmp
        I("v_add_u32 v%d, s%d, v%d" % (vSB, sW2K, vL4))
        I("v_add_u32 v%d, 0x%x, v%d" % (vEX, L_EX, vL4))
        I("s_lshl_b32 s%d, s%d, 8" % (sT, sW))
        I("v_add_u32 v%d, s%d, v%d" % (vSW, sT, vEX))
        I("v_and_b32 v%d, 15, v0" % vT)
        I("v_lshrrev_b32 v%d, 5, v0" % (vT + 1))
        I("v_lshlrev_b32 v%d, 6, v%d" % (vT + 1, vT + 1))
        I("v_lshl_add_u32 v%d, v%d, 2, v%d" % (vSWR, vT, vT + 1))
        I("s_add_u32 s%d, s%d, 0x%x" % (sT, sT, L_STA))
        I("v_add_u32 v%d, s%d, v%d" % (vSWR, sT, vSWR))
        for rt in range(4):
            for k in range(2):
                s = vACC + 32 + 2 * rt + k
                I("v_lshlrev_b32 v%d, 16, v%d" % (vX + 4 * rt + 2 * k, s))
                I("v_and_b32 v%d, 0xffff0000, v%d" % (vX + 4 * rt + 2 * k + 1, s))
        early = env("R3EARLY", 0)
        I("v_and_b32 v%d, 0xfff, v%d" % (vCS1, vTCH))
        I("s_add_u32 s%d, s%d, 0x%x" % (sR1, sR1, WS_R3 - WS_R2))
        self.r3_tok = I("buffer_load_dword v%d, v%d, %s, s%d offen sc1" % (vPOLL, vCS1, self.ws(), sR1))
        b.wait(t1)
        I("s_lshl_b32 s%d, s%d, 8" % (sT, sW))
        I("v_add_u32 v%d, s%d, v%d" % (vSTA, sT, vSTA))
        for hf in range(2):
            self.kv_epilogue(hf, vAF + 8 * hf, vAF + 16 + 8 * hf)

    def pack_load(self, l3, q0):
        b = self.b
        I = b.I
        dst = 80
        uid, src, strd = sT, sT + 1, sT + 2
        I("s_lshl_b32 s%d, s%d, 2" % (uid, sRG))
        I("s_add_u32 s%d, s%d, s%d" % (uid, uid, sW))
        lw1, lw2, lnone, lgo = [b.newlabel("Lpk") for _ in range(4)]
        I("s_mul_i32 s88, s%d, %d" % (sC, 4 * PKW))
        I("s_mov_b32 s%d, 0x20000" % (R_PK + 3))

        def setsrd(ptr, size, stride):
            I("s_mov_b32 s%d, s%d" % (R_PK, ptr))
            I("s_and_b32 s%d, s%d, 0xffff" % (R_PK + 1, ptr + 1))
            I("s_mov_b32 s%d, %d" % (R_PK + 2, size))
            I("s_movk_i32 s%d, %d" % (strd, stride))

        def simple(f0):
            I("s_lshl_b32 s%d, s%d, 15" % (src, uid))
            I("s_lshl_b32 s89, s%d, 7" % sC)
            I("s_add_u32 s%d, s%d, s89" % (src, src))
            I("s_add_u32 s89, s%d, %d" % (uid, f0))
            I("s_lshl_b32 s89, s89, 10")
            I("s_add_u32 s88, s88, s89")
            for t in range(4):
                I("s_add_u32 s%d, s88, %d" % (dst + t, t * PKW))
            I("s_branch %s" % lgo)

        I("s_cmp_ge_u32 s%d, 16" % uid)
        I("s_cbranch_scc1 %s" % lw1)
        setsrd(S_WO, 512 * 1024, 1024)
        simple(F_WO)
        b.label(lw1)
        I("s_cmp_ge_u32 s%d, 64" % uid)
        I("s_cbranch_scc1 %s" % lw2)
        I("s_sub_u32 s%d, s%d, 16" % (uid, uid))
        I("s_mul_i32 s89, s%d, 43" % uid)
        I("s_lshr_b32 s89, s89, 7")
        I("s_mul_i32 s92, s89, 3")
        I("s_sub_u32 s92, s%d, s92" % uid)
        setsrd(S_W1, 512 * 2752, 2752)
        I("s_mul_i32 s%d, s89, %d" % (src, 32 * 2752))
        I("s_mul_i32 s79, s%d, 384" % sC)
        I("s_add_u32 s%d, s%d, s79" % (src, src))
        I("s_lshl_b32 s79, s92, 7")
        I("s_add_u32 s%d, s%d, s79" % (src, src))
        I("s_mul_i32 s89, s89, 3072")
        I("s_add_u32 s88, s88, s89")
        I("s_add_u32 s88, s88, %d" % (F_W1 * 1024))
        for t in range(4):
            I("s_lshl_b32 s79, s92, 2")
            I("s_add_u32 s79, s79, %d" % t)
            I("s_mul_i32 s89, s79, 43")
            I("s_lshr_b32 s89, s89, 7")
            I("s_mul_i32 s%d, s89, %d" % (dst + t, PKW - 3072))
            I("s_lshl_b32 s79, s79, 10")
            I("s_add_u32 s%d, s%d, s79" % (dst + t, dst + t))
            I("s_add_u32 s%d, s%d, s88" % (dst + t, dst + t))
        I("s_mul_i32 s79, s%d, 3" % sC)
        I("s_add_u32 s79, s79, s92")
        I("s_cmp_ge_u32 s79, 22")
        I("s_cbranch_scc1 %s" % lnone)
        I("s_branch %s" % lgo)
        b.label(lw2)
        I("s_cmp_ge_u32 s%d, 107" % uid)
        I("s_cbranch_scc1 %s" % lnone)
        I("s_sub_u32 s%d, s%d, 64" % (uid, uid))
        setsrd(S_W2, 1376 * 1024, 1024)
        simple(F_W2)
        b.label(lnone)
        setsrd(S_WQ, 0, 1024)
        I("s_mov_b32 s%d, 0" % src)
        for t in range(4):
            I("s_mov_b32 s%d, 0x%x" % (dst + t, OOB))
        b.label(lgo)
        I("v_mul_lo_u32 v%d, v%d, s%d" % (vT + 4, l3, strd))
        I("v_add_u32 v%d, v%d, v%d" % (vT + 10, vT + 4, q0))
        I("v_xor_b32 v%d, 64, v%d" % (vT + 5, q0))
        I("v_add_u32 v%d, v%d, v%d" % (vT + 11, vT + 4, vT + 5))
        I("s_lshl_b32 s%d, s%d, 3" % (strd, strd))
        I("s_lshl_b32 s89, s%d, 12" % sW)
        I("s_add_u32 m0, s89, 0x%x" % L_PACK)
        toks = []
        for q in range(4):
            toks.append(I("buffer_load_dwordx4 v%d, s[%d:%d], s%d offen lds" % (vT + 10 + (q & 1), R_PK, R_PK + 3, src)))
            if q < 3:
                I("s_add_u32 s%d, s%d, s%d" % (src, src, strd))
                I("s_add_u32 m0, m0, 1024")
        return toks

    def r1_issue(self):
        I = self.b.I
        a = vCS1 + 2
        I("v_and_b32 v%d, 7, v0" % a)
        I("v_subrev_u32 v%d, s%d, v%d" % (a, sC, a))
        I("v_lshlrev_b32 v%d, 12, v%d" % (a, a))
        I("s_lshl_b32 s%d, s%d, 7" % (sT, sRG))
        I("s_add_u32 s%d, s%d, s%d" % (sT, sT, sR1))
        I("v_add_u32 v%d, s%d, v%d" % (a, sT, a))
        I("v_add_u32 v%d, s%d, v%d" % (vT + 5, sR1, vTCH))
        I("v_cmp_gt_u32 vcc, 32, v0")
        I("v_cndmask_b32 v%d, v%d, v%d, vcc" % (a, a, vT + 5))
        self.r1_tok = I("buffer_load_dword v%d, v%d, %s, 0 offen sc1" % (vPOLL, a, self.ws()))

    def r1_check(self):
        b = self.b
        I = b.I
        lp, ld, lc = b.newlabel("Ltag"), b.newlabel("Ltagd"), b.newlabel("Ltagc")
        b.wait(self.r1_tok)
        I("s_branch %s" % lc)
        b.label(lp)
        self.Inc("buffer_load_dword v%d, v%d, %s, 0 offen sc1" % (vPOLL, vCS1 + 2, self.ws()))
        I("s_waitcnt vmcnt(0)")
        b.label(lc)
        I("v_subrev_u32 v%d, s%d, v%d" % (vPOLL, sTAG, vPOLL))
        I("v_cmp_gt_u32 vcc, 16, v%d" % vPOLL)
        I("s_cmp_eq_u64 vcc, exec")
        I("s_cbranch_scc1 %s" % ld)
        self.spin_guard(lp)
        b.label(ld)
        I("v_cmp_eq_u32 vcc, s%d, v%d" % (sXCC, vPOLL))
        I("s_cmp_eq_u32 vcc_hi, -1")
        I("s_cselect_b32 s%d, 1, 0" % sFAST)

    def touch_w(self, f0, m):
        I = self.b.I
        I("s_mul_i32 s%d, s%d, %d" % (sTC, sQ, m * 1024))
        I("s_add_u32 s%d, s%d, s%d" % (sTC, sTC, sPK))
        I("s_add_u32 s%d, s%d, %d" % (sTC, sTC, f0 * 1024))
        mask = (1 << (8 * m)) - 1
        I("s_mov_b32 exec_lo, 0x%x" % (mask & 0xffffffff))
        I("s_mov_b32 exec_hi, 0x%x" % (mask >> 32))
        I("buffer_load_dword v%d, v%d, %s, s%d offen sc1" % (vDUM, vTCH, self.ws(), sTC))
        I("s_mov_b64 exec, -1")

    def touch_ox(self, layer):
        I = self.b.I
        I("s_and_b32 s%d, s%d, 1" % (sT + 2, sW))
        I("s_lshl_b32 s%d, s%d, 15" % (sT, sT + 2))
        I("s_add_u32 s%d, s%d, s%d" % (sT, sT, sRG64))
        I("s_add_u32 s%d, s%d, 0x%x" % (sT, sT, self.buf("X", 2 * layer)))
        I("s_mul_i32 s%d, s%d, %d" % (sT + 1, sT + 2, self.hstride("O")))
        I("s_add_u32 s%d, s%d, s%d" % (sT + 1, sT + 1, self.rgs("O")))
        I("s_add_u32 s%d, s%d, 0x%x" % (sT + 1, sT + 1, self.buf("O", layer)))
        I("s_bitcmp1_b32 s%d, 1" % sW)
        I("s_cselect_b32 s%d, s%d, s%d" % (sT, sT, sT + 1))
        I("s_lshl_b32 s%d, s%d, 12" % (sT + 1, sC))
        I("s_add_u32 s%d, s%d, s%d" % (sT, sT, sT + 1))
        I("s_mov_b32 exec_hi, 0")
        I("buffer_load_dword v%d, v%d, %s, s%d offen sc1" % (vDUM, vTCH, self.ws(), sT))
        I("s_mov_b32 exec_hi, -1")

    def touch_h(self, layer):
        I = self.b.I
        I("s_lshr_b32 s%d, s%d, 1" % (sT + 1, sW))
        I("s_mul_i32 s%d, s%d, %d" % (sT + 1, sT + 1, HSZ // 2 - 12288))
        I("s_mul_i32 s%d, s%d, 6144" % (sT + 2, sW))
        I("s_add_u32 s%d, s%d, s%d" % (sT + 1, sT + 1, sT + 2))
        I("s_mul_i32 s%d, s%d, 12288" % (sT + 2, sC))
        I("s_add_u32 s%d, s%d, s%d" % (sT + 1, sT + 1, sT + 2))
        I("s_add_u32 s%d, s%d, s%d" % (sT + 1, sT + 1, sRGH))
        I("s_add_u32 s%d, s%d, 0x%x" % (sT + 1, sT + 1, self.buf("H", layer)))
        I("s_cmp_lt_u32 s%d, 7" % sC)
        I("s_cselect_b32 s%d, s%d, 0x%x" % (sT + 1, sT + 1, OOB))
        I("s_mov_b32 exec_hi, 0xffff")
        I("buffer_load_dword v%d, v%d, %s, s%d offen sc1" % (vDUM, vTCH, self.ws(), sT + 1))
        I("s_mov_b32 exec_hi, -1")

    def kv_items(self, hf, seqs):
        items = []
        for ks in range(16):
            c0 = "0" if ks == 0 else None
            for r in range(2):
                def mfs(fr, ks=ks, r=r, c0=c0):
                    kk, kv_ = ("qkv", 0, 2 * ks), ("qkv", 0, 2 * ks + 1)
                    th = [self.mf(vACC + 8 * hf + 4 * r, fr, self.w_get(kk), c0),
                          self.mf(vACC + 16 + 8 * hf + 4 * r, fr, self.w_get(kv_), c0)]
                    if hf == 1 and r == 1:
                        th.append(lambda: (self.w_release(kk), self.w_release(kv_)))
                    return th
                a, off = self.frag_addr(seqs[ks // 2], r, ks & 1)
                items.append((a, off, seqs[ks // 2], mfs))
        self.pinned.update(seqs)
        return items

    def kv_finish(self, hf):
        b = self.b
        rd = [b.I("ds_read_b128 %s, v%d offset:%d" % (vr(vAF + 4 * k, 4), vSTA, (k & 1) * 64 + (k >> 1) * 128)) for k in range(4)]
        b.wait(rd)
        self.kv_epilogue(hf, vAF, vAF + 8)

    def attention(self, layer, xseqs):
        b = self.b
        I = self.I
        KVD, ZD = vS1, vS2
        one = vr(vONE, 4)
        self.bg_w = 0
        for p in range(2):
            c0 = "0" if p == 0 else None
            self.mf(KVD, vr(vACC + 8 * p, 4), vr(vACC + 16 + 8 * p, 4), c0)()
            self.mf(ZD, vr(vACC + 8 * p, 4), one, c0)()
        b.I("s_add_u32 s%d, s%d, %d" % (sKB, sKV, layer * KVL))
        b.I("s_and_b32 s%d, s%d, %d" % (sKB + 1, sRG, NC - 1))
        b.I("s_mul_i32 s%d, s%d, %d" % (sKB + 1, sKB + 1, KCS))
        b.I("s_add_u32 s%d, s%d, s%d" % (sKB + 1, sKB + 1, sKB))
        for r in range(4):
            b.I("ds_write_b32 v%d, v%d" % (vPOS + r, KVD + r))
        b.I("s_mov_b32 exec_lo, 0x00010001")
        b.I("s_mov_b32 exec_hi, 0x00010001")
        b.I("ds_write_b128 v%d, %s" % (vZP, vr(ZD, 4)))
        b.I("s_mov_b64 exec, -1")
        rd = [b.I("ds_read_b32 v%d, v%d offset:%d" % (vT + k, vKVL, 256 * k)) for k in range(5)]
        for k in range(5):
            b.wait(rd[k])
            if k == 4:
                b.I("s_mov_b32 exec_hi, 0xffff")
            b.I("buffer_atomic_add_f32 v%d, v%d, %s, s%d offen offset:%d" % (vT + k, vL4, self.ws(), sKB + 1, k * 256))
        b.I("s_mov_b64 exec, -1")
        self.stamp("atom")
        if layer:
            self.touch_ox(layer)
        else:
            lp, ld, lc = b.newlabel("Lr3"), b.newlabel("Lr3d"), b.newlabel("Lr3c")
            b.wait(self.r3_tok)
            b.I("s_branch %s" % lc)
            b.label(lp)
            self.Inc("buffer_load_dword v%d, v%d, %s, s%d offen sc1" % (vPOLL, vCS1, self.ws(), sR1))
            b.I("s_waitcnt vmcnt(0)")
            b.label(lc)
            b.I("v_subrev_u32 v%d, s%d, v%d" % (vPOLL, sTAG, vPOLL))
            b.I("v_cmp_gt_u32 vcc, 16, v%d" % vPOLL)
            b.I("s_cmp_eq_u64 vcc, exec")
            b.I("s_cbranch_scc1 %s" % ld)
            self.spin_guard(lp)
            b.label(ld)
            self.stamp("r3")
            b.wait(self.tokQ)
            b.I("s_barrier")
        self.w_burst(env("W_AT", [0, 0])[layer])
        self.last_bg = self.clock
        self.bg_w = env("W_Q", [99, 14])[layer]
        items = []
        for ks in range(16):
            ds, h = ks // 2, ks & 1
            c0 = "0" if ks == 0 else None
            def keep(fr):
                self.wq_reg = fr
                return []
            items.append(("tr", self.rq_base(ks) - L_WQ, None, keep))
            for rt in range(4):
                def mfs(fr, ks=ks, rt=rt, c0=c0):
                    w = self.wq_reg
                    th = [self.mf(vACC + 4 * rt, w, fr, c0)]
                    if layer == 0 and rt == 0:
                        th.append(self.mf(vCSQ, w, one, c0))
                    return th
                if layer == 0:
                    items.append(((vX0, vX1)[h], ds * 8192 + rt * 2048, None, mfs))
                else:
                    a, off = self.frag_addr(xseqs[rt >> 1][ds], rt & 1, h)
                    items.append((a, off, None, mfs))
        assert NC == 2
        KD = vACC + 32
        dst = [(KD, KD + 8), (KD + 4, KD + 12)]
        kvl = ["buffer_load_dwordx4 %s, v%d, %s, s%d offen offset:%d sc1" % (vr(dst[c][h], 4), (vL16, vC2)[h], self.ws(), sKB, c * KCS)
               for h in range(2) for c in range(NC)]
        b.I("v_add_u32 v%d, 0x400, v%d" % (vC2, vL16))
        b.I("v_cmp_gt_u32 vcc, 12, v0")
        b.I("v_mov_b32 v%d, 0x%x" % (vT + 8, OOB))
        b.I("v_cndmask_b32 v%d, v%d, v%d, vcc" % (vC2, vT + 8, vC2))
        kp = {}

        def kv_early():
            self.bg_w = 0
            kp["tok"] = [b.I(t) for t in kvl]
        j = env("H_KVP", [79, 99])[layer]
        self.gemm(items, None, 5, {j: [kv_early]})
        self.pinned = set()
        self.mine = self.seq - 1
        PQ = vACC + 16
        for rt in range(4):
            ab = vAB + 2 * rt
            for r in (0, 2):
                u = vT + 2 * ((rt * 2 + r // 2) % 8)
                I("v_pk_fma_f32 %s, %s, %s, %s op_sel:[0,1,1] op_sel_hi:[1,1,1]" % (p2(u), p2(vCSQ + r), p2(ab), p2(vK)))
        for rt in range(4):
            ab = vAB + 2 * rt
            for r in (0, 2):
                q_ = vACC + 4 * rt + r
                u = vT + 2 * ((rt * 2 + r // 2) % 8)
                I("v_pk_fma_f32 %s, %s, %s, %s op_sel:[0,0,0] op_sel_hi:[1,0,1]" % (p2(q_), p2(q_), p2(ab), p2(u)))
        if env("H_KVP", [79, 99])[layer] == 98:
            kv_early()
        self.phi_pairs([(vACC + 4 * rt + r, PQ + 2 * rt + r // 2) for rt in range(4) for r in (0, 2)])
        self.stamp("qpass")
        self.bg_w = 0
        self.w_burst(env("W_S1", [16, 0])[layer])
        b.I("s_add_u32 s%d, s%d, s%d" % (sT + 6, self.rgs("O"), sSTO))
        b.I("s_add_u32 s%d, s%d, 0x%x" % (sT + 6, sT + 6, self.buf("O", layer)))
        b.I("s_add_u32 s%d, s%d, %d" % (sT + 7, sT + 6, self.hstride("O")))
        lp, ld, lc = b.newlabel("Lkv"), b.newlabel("Lkvd"), b.newlabel("Lkvc")
        if kp:
            b.wait(kp["tok"])
            b.I("s_branch %s" % lc)
        b.label(lp)
        if kp:
            for t in kvl:
                self.Inc(t)
            b.I("s_waitcnt vmcnt(0)")
        else:
            for t in kvl:
                b.I(t)
            b.wait(vm=0)
        b.label(lc)
        for h in range(2):
            for k in (0, 2):
                b.I("v_pk_add_f32 %s, %s, %s" % (p2(vT + 8 * h + k), p2(dst[0][h] + k), p2(dst[1][h] + k)))
        b.I("v_cmp_eq_f32 vcc, 0x42000000, v%d" % (vT + 3))
        b.I("v_cmp_eq_f32 s[%d:%d], v%d, v%d" % (sT, sT + 1, vT + 11, vT + 3))
        b.I("s_and_b64 vcc, vcc, s[%d:%d]" % (sM3, sM3 + 1))
        b.I("s_and_b32 s%d, s%d, 0x888" % (sT, sT))
        b.I("s_xor_b32 s%d, s%d, 0x888" % (sT, sT))
        b.I("s_xor_b64 vcc, vcc, s[%d:%d]" % (sM3, sM3 + 1))
        b.I("s_or_b32 s%d, s%d, vcc_lo" % (sT, sT))
        b.I("s_or_b32 s%d, s%d, vcc_hi" % (sT, sT))
        b.I("s_cbranch_scc0 %s" % ld)
        self.spin_guard(lp)
        b.label(ld)
        self.stamp("kvsync")
        b.I("v_lshl_add_u32 v%d, v0, 4, v%d" % (vT + 4, vKVL))
        b.I("v_sub_u32 v%d, v%d, v%d" % (vT + 4, vT + 4, vL4))
        b.I("ds_write_b128 v%d, %s offset:1280" % (vT + 4, vr(vT, 4)))
        b.I("s_mov_b64 exec, 0xfff")
        b.I("ds_write_b128 v%d, %s offset:2304" % (vT + 4, vr(vT + 8, 4)))
        b.I("s_mov_b64 exec, -1")
        lz = b.I("ds_read_b128 %s, v%d offset:1280" % (vr(vT + 4, 4), vZP))
        lt = [b.I("ds_read_b32 v%d, v%d offset:1280" % (vT + 12 + r, vPOS + r)) for r in range(4)]
        b.wait(lz)
        I("v_cvt_pk_bf16_f32 v%d, v%d, v%d" % (vT + 10, vT + 4, vT + 5))
        I("v_cvt_pk_bf16_f32 v%d, v%d, v%d" % (vT + 11, vT + 6, vT + 7))
        NUM, DEN = vACC, vAF
        for rt in range(4):
            I("v_mfma_f32_16x16x16_bf16 %s, %s, %s, 0" % (vr(DEN + 4 * rt, 4), p2(vT + 10), p2(PQ + 2 * rt)))
        b.wait(lt)
        I("v_cvt_pk_bf16_f32 v%d, v%d, v%d" % (vT + 8, vT + 12, vT + 13))
        I("v_cvt_pk_bf16_f32 v%d, v%d, v%d" % (vT + 9, vT + 14, vT + 15))
        for rt in range(4):
            I("v_mfma_f32_16x16x16_bf16 %s, %s, %s, 0" % (vr(NUM + 4 * rt, 4), p2(vT + 8), p2(PQ + 2 * rt)))
        for rt in range(4):
            I("v_add_f32 v%d, s%d, v%d" % (DEN + 4 * rt, sEPS, DEN + 4 * rt))
        for rt in range(4):
            I("v_rcp_f32 v%d, v%d" % (DEN + 4 * rt, DEN + 4 * rt))
        for rt in range(4):
            for r in (0, 2):
                n_ = NUM + 4 * rt + r
                I("v_pk_mul_f32 %s, %s, %s op_sel_hi:[1,0]" % (p2(n_), p2(n_), p2(DEN + 4 * rt)))
        for rt in range(4):
            for r in (0, 2):
                I("v_cvt_pk_bf16_f32 v%d, v%d, v%d" % (vT + 2 * rt + r // 2, NUM + 4 * rt + r, NUM + 4 * rt + r + 1))
        return self.stores2([self.pair_store(vT + 4 * pr, sT + 6 + pr, 0) for pr in range(2)], layer == 0 or self.sep)

    def park_wq(self):
        b = self.b
        b.I("s_lshl_b32 s%d, s%d, 14" % (sT, sW))
        b.I("s_add_u32 s%d, s%d, 0x%x" % (sT, sT, L_WQ))
        b.I("v_add_u32 v%d, s%d, v%d" % (vWQ, sT, vL16))
        for ks in range(16):
            b.I("ds_write_b128 v%d, %s offset:%d" % (vWQ, slot_r(self.wslot[("qkv", 0, 32 + ks)][0]), ks * 1024))
        b.wait(lg=0)
        for ks in range(16):
            self.w_release(("qkv", 0, 32 + ks))

    def cs1_some(self, n):
        one = vr(vONE, 4)
        k = 0
        while k < n and self.ncs < 16 and all(("w1", 0, 3 * self.ncs + t) in self.wslot and
                                             (self.wslot[("w1", 0, 3 * self.ncs + t)][1] is None or
                                              self.wslot[("w1", 0, 3 * self.ncs + t)][1][1] < self.b.vm_done) for t in range(3)):
            for t in range(3):
                self.mf(vCS1 + 4 * t, slot_r(self.wslot[("w1", 0, 3 * self.ncs + t)][0]), one, "0" if self.ncs == 0 else None)()
            self.ncs += 1
            k += 1

    def n16_items(self, name, layer, nks, hf, seqs):
        items = []
        for ks in range(nks):
            for r in range(2):
                def mfs(fr, ks=ks, r=r):
                    th = [self.mf(vX + 8 * hf + 4 * r, self.w_get((name, layer, ks)), fr)]
                    if hf == 1 and r == 1:
                        th.append(lambda: self.w_release((name, layer, ks)))
                    return th
                a, off = self.frag_addr(seqs[ks // 2], r, ks & 1)
                items.append((a, off, seqs[ks // 2], mfs))
        return items

    def n16_full(self, name, layer, nks, seqs):
        items = []
        for ks in range(nks):
            for rt in range(4):
                def mfs(fr, ks=ks, rt=rt):
                    th = [self.mf(vX + 4 * rt, self.w_get((name, layer, ks)), fr)]
                    if rt == 3:
                        th.append(lambda: self.w_release((name, layer, ks)))
                    return th
                sq = seqs[rt >> 1][ks // 2]
                a, off = self.frag_addr(sq, rt & 1, ks & 1)
                items.append((a, off, sq, mfs))
        return items

    def x_full_store(self, idx, wt):
        I = self.b.I
        for hf in range(2):
            I("s_add_u32 s%d, s%d, s%d" % (sT + 6 + hf, sRG64, sSTO))
            I("s_add_u32 s%d, s%d, 0x%x" % (sT + 6 + hf, sT + 6 + hf, self.buf("X", idx) + hf * 32768))
        I("s_add_u32 s%d, s%d, 8192" % (sT + 8, sSTP))
        for j in range(8):
            I("v_cvt_pk_bf16_f32 v%d, v%d, v%d" % (vT + j, vX + 2 * j, vX + 2 * j + 1))
        s = vAF
        tk = self.stores2([self.pair_store(vT + 4 * hf, sT + 6 + hf, 0) for hf in range(2)], wt)
        for rt in range(4):
            I("v_pk_add_f32 %s, %s, %s" % (p2(s + 4 * rt), p2(vX + 4 * rt), p2(vX + 4 * rt + 2)))
            I("v_pk_mul_f32 %s, %s, %s" % (p2(s + 4 * rt + 2), p2(vX + 4 * rt), p2(vX + 4 * rt)))
        for rt in range(4):
            I("v_pk_fma_f32 %s, %s, %s, %s" % (p2(s + 4 * rt + 2), p2(vX + 4 * rt + 2), p2(vX + 4 * rt + 2), p2(s + 4 * rt + 2)))
        for rt in range(4):
            I("v_add_f32 v%d, v%d, v%d" % (s + 4 * rt, s + 4 * rt, s + 4 * rt + 1))
            I("v_add_f32 v%d, v%d, v%d" % (s + 4 * rt + 2, s + 4 * rt + 2, s + 4 * rt + 3))
        for hf in range(2):
            q = s + 8 * hf
            I("v_permlane32_swap_b32 v%d, v%d" % (q, q + 4))
            I("v_permlane32_swap_b32 v%d, v%d" % (q + 2, q + 6))
        for hf in range(2):
            q = s + 8 * hf
            I("v_add_f32 v%d, v%d, v%d" % (q, q, q + 4))
            I("v_add_f32 v%d, v%d, v%d" % (q + 2, q + 2, q + 6))
        for hf in range(2):
            I("v_permlane16_swap_b32 v%d, v%d" % (s + 8 * hf, s + 8 * hf + 2))
        for hf in range(2):
            I("v_add_f32 v%d, v%d, v%d" % (s + 8 * hf, s + 8 * hf, s + 8 * hf + 2))
        tk2 = self.stores2(["buffer_store_dword v%d, v%d, %s, s%d offen" % (s + 8 * hf, vL4, self.ws(), (sSTP, sT + 8)[hf])
                            for hf in range(2)], wt)
        return tk, tk2

    def x_half_now(self, idx, hf, wt):
        I = self.b.I
        x = vX + 8 * hf
        o = vT + 2
        s = o + 4
        I("s_add_u32 s%d, s%d, s%d" % (sT + 6, sRG64, sSTO))
        I("s_add_u32 s%d, s%d, 0x%x" % (sT + 6, sT + 6, self.buf("X", idx) + hf * 32768))
        I("s_add_u32 s%d, s%d, %d" % (sT + 7, sSTP, hf * 8192))
        for j in range(4):
            I("v_cvt_pk_bf16_f32 v%d, v%d, v%d" % (o + j, x + 2 * j, x + 2 * j + 1))
        for r in range(2):
            I("v_pk_add_f32 %s, %s, %s" % (p2(s + 4 * r), p2(x + 4 * r), p2(x + 4 * r + 2)))
            I("v_pk_mul_f32 %s, %s, %s" % (p2(s + 4 * r + 2), p2(x + 4 * r), p2(x + 4 * r)))
        tk = self.stores2([self.pair_store(o, sT + 6, 0)], wt)
        for r in range(2):
            I("v_pk_fma_f32 %s, %s, %s, %s" % (p2(s + 4 * r + 2), p2(x + 4 * r + 2), p2(x + 4 * r + 2), p2(s + 4 * r + 2)))
            I("v_add_f32 v%d, v%d, v%d" % (s + 4 * r, s + 4 * r, s + 4 * r + 1))
        for r in range(2):
            I("v_add_f32 v%d, v%d, v%d" % (s + 4 * r + 2, s + 4 * r + 2, s + 4 * r + 3))
        I("v_permlane32_swap_b32 v%d, v%d" % (s, s + 4))
        I("v_permlane32_swap_b32 v%d, v%d" % (s + 2, s + 6))
        I("v_add_f32 v%d, v%d, v%d" % (s, s, s + 4))
        I("v_add_f32 v%d, v%d, v%d" % (s + 2, s + 2, s + 6))
        I("v_permlane16_swap_b32 v%d, v%d" % (s, s + 2))
        I("v_add_f32 v%d, v%d, v%d" % (s, s, s + 2))
        tk += self.stores2(["buffer_store_dword v%d, v%d, %s, s%d offen" % (s, vL4, self.ws(), sT + 7)], wt)
        return self.new_pub(tk)

    def x_half_store(self, idx, hf, wt, delay):
        x = vX + 8 * hf
        o = vT + 1
        o += o & 1
        tk = []
        k, fl = self.new_pub(tk)
        s = o + 4
        e = ["s_add_u32 s%d, s%d, s%d" % (sT + 6, sRG64, sSTO),
             "s_add_u32 s%d, s%d, 0x%x" % (sT + 6, sT + 6, self.buf("X", idx) + hf * 32768),
             "s_add_u32 s%d, s%d, %d" % (sT + 7, sSTP, hf * 8192), 2]
        e += ["v_cvt_pk_bf16_f32 v%d, v%d, v%d" % (o + j, x + 2 * j, x + 2 * j + 1) for j in range(4)]
        for r in range(2):
            e += ["v_add_f32 v%d, v%d, v%d" % (s + 2 * r, x + 4 * r, x + 4 * r + 1),
                  "v_mul_f32 v%d, v%d, v%d" % (s + 2 * r + 1, x + 4 * r, x + 4 * r)]
        e.append(lambda: tk.extend(self.stores2([self.pair_store(o, sT + 6, 0)], wt)))
        for q in (1, 2, 3):
            for r in range(2):
                if q > 1:
                    e.append("v_add_f32 v%d, v%d, v%d" % (s + 2 * r, s + 2 * r, x + 4 * r + q))
                e.append("v_fmac_f32 v%d, v%d, v%d" % (s + 2 * r + 1, x + 4 * r + q, x + 4 * r + q))
        e += [1, "v_permlane32_swap_b32 v%d, v%d" % (s, s + 2), "v_permlane32_swap_b32 v%d, v%d" % (s + 1, s + 3), 1,
              "v_add_f32 v%d, v%d, v%d" % (s, s, s + 2), "v_add_f32 v%d, v%d, v%d" % (s + 1, s + 1, s + 3), 1,
              "v_permlane16_swap_b32 v%d, v%d" % (s, s + 1), 1, "v_add_f32 v%d, v%d, v%d" % (s, s, s + 1),
              lambda: tk.extend(self.stores2(["buffer_store_dword v%d, v%d, %s, s%d offen" % (s, vL4, self.ws(), sT + 7)], wt))]
        if delay is not None:
            e += [delay, fl]
        return k, e, fl

    def out_half_store(self, hf):
        x = vX + 8 * hf
        e = ["s_add_u32 s%d, s%d, s%d" % (sT + 6, sRG64, sOUT), "s_add_u32 s%d, s%d, %d" % (sT + 6, sT + 6, hf * 32768),
             "s_add_u32 s%d, s%d, 16384" % (sT + 7, sT + 6), 2]
        e += ["v_cvt_pk_bf16_f32 v%d, v%d, v%d" % (vT + 4 * hf + j, x + 2 * j, x + 2 * j + 1) for j in range(4)]
        e += ["buffer_store_dwordx2 %s, v%d, s[%d:%d], s%d offen" % (p2(vT + 4 * hf + 2 * r), vOA, R_OUT, R_OUT + 3, sT + 6 + r)
              for r in range(2)]
        return e

    def p3_items(self, layer, seqs):
        items = []
        one = vr(vONE, 4)
        for ks in range(16):
            c0 = "0" if ks == 0 else None
            for rt in range(4):
                def mfs(fr, ks=ks, rt=rt, c0=c0):
                    th = []
                    for t in range(3):
                        w = self.w_get(("w1", layer, 3 * ks + t))
                        th.append(self.mf(vACC + 24 * (rt >> 1) + 8 * t + 4 * (rt & 1), w, fr, c0))
                        if layer == 0 and rt == 0 and ks >= self.ncs:
                            th.append(self.mf(vCS1 + 4 * t, w, one, c0))
                    if rt == 3:
                        th.append(lambda: [self.w_release(("w1", layer, 3 * ks + t)) for t in range(3)])
                    return th
                sq = seqs[rt >> 1][ks // 2]
                a, off = self.frag_addr(sq, rt & 1, ks & 1)
                items.append((a, off, sq, mfs))
        return items

    def silu(self, layer, hf, mid=None):
        b = self.b
        I = self.I
        for t in range(3):
            b.I("s_add_u32 s%d, s%d, 0x%x" % (sT + 6 + t, sH0 + t, self.buf("H", layer) + hf * (HSZ // 2)))
        sts = []
        for t in range(3):
            A = vACC + 24 * hf + 8 * t
            u = vT + 8 * (t & 1)
            if mid and t == mid[0]:
                mid[1]()
            for j in range(4):
                I("v_pk_mul_f32 %s, %s, %s op_sel:[0,1] op_sel_hi:[1,1]" % (
                    p2(u + 2 * j), p2(vCS1 + 4 * t + 2 * (j & 1)), p2(vAB + 4 * hf + 2 * (j >> 1))))
            for j in range(4):
                I("v_pk_fma_f32 %s, %s, %s, %s op_sel:[0,0,0] op_sel_hi:[1,0,1]" % (
                    p2(A + 2 * j), p2(A + 2 * j), p2(vAB + 4 * hf + 2 * (j >> 1)), p2(u + 2 * j)))
            for k in range(8):
                I("v_exp_f32_e64 v%d, -v%d" % (u + k, A + k))
            for j in range(4):
                I("v_pk_fma_f32 %s, %s, %s, %s op_sel:[0,0,0] op_sel_hi:[1,0,0]" % (p2(u + 2 * j), p2(u + 2 * j), p2(vK), p2(vK)))
            for k in range(8):
                I("v_rcp_f32 v%d, v%d" % (u + k, u + k))
            for j in range(4):
                I("v_pk_mul_f32 %s, %s, %s" % (p2(A + 2 * j), p2(A + 2 * j), p2(u + 2 * j)))
            for j in range(4):
                I("v_cvt_pk_bf16_f32 v%d, v%d, v%d" % (A + j, A + 2 * j, A + 2 * j + 1))
            sts += self.stores2([self.pair_store(A, sT + 6 + t, 0)], layer == 0 or self.sep)
        return sts

    def body(self):
        b = self.b
        for layer in range(2):
            R1, R2 = env("REV", (12, 43))
            if layer == 0:
                R1, R2 = 48, 43
            self.w_enqueue("w1", layer, F_W1, 48, range(47, R1 - 1, -1))
            self.w_enqueue("wo", layer, F_WO, 16)
            self.w_enqueue("w1", layer, F_W1, 48, range(R1))
            self.w_enqueue("w2", layer, F_W2, 43, range(42, R2 - 1, -1))
            self.w_enqueue("w2", layer, F_W2, 43, range(R2))
        AF = env("AFIRST", 12)
        G8c = env("G8C", [2, 2, 2, 2])
        G8w = env("G8W", [4, 4])
        G22 = env("G22", [2, 2, 2, 4, 4, 4, 4])
        st = {}
        PA, PB = env("PA", [60, 62]), env("PB", [75, 62])
        self.pace_w = PA[0]
        self.startup()
        xs = None
        for layer in range(2):
            self.pace_w = PA[layer]
            tk = self.attention(layer, xs)
            k_o, fl = self.new_pub(tk)
            self.w_burst(env("W_PUB", [0, 0])[layer])
            fl()
            if layer == 0:
                self.cs1_some(env("NCS", [0, 0])[0])
            self.stamp("o_pub")
            self.poll_check(k_o)
            self.stamp("o_rdy")
            wt = layer == 0 or self.sep
            D16, PW = env("D16", 9), env("PAIRW", True)
            n0 = self.seq
            oo = self.queue_both("O", layer, 8, self.aq)
            self.a_burst(AF)
            self.bg_w = env("W_P2", 14)
            self.gemm(self.n16_full("wo", layer, 16, oo), self.split(list(range(n0, n0 + 16)), env("G16", [4, 4, 4, 4])), D16,
                      pairw=PW)
            self.bg_w = 0
            self.stamp("p2")
            tk1, tk2 = self.x_full_store(2 * layer, wt)
            k_x, fl_x = self.new_pub(tk1)
            k_s, fl_s = self.new_pub(tk2)
            self.w_burst(env("W_PUB2", [0, 0])[layer])
            fl_x()
            if layer == 0:
                self.cs1_some(env("NCS", [0, 0])[1])
            self.stamp("x_pub")
            self.poll_check(k_x)
            self.stamp("x_rdy")
            poll = lambda: st.update(tok=self.poll_issue())

            def when(k, plan, burst=0):
                def f():
                    self.poll_check(k() if callable(k) else k, st["tok"])
                    self.aq += plan
                    self.a_burst(burst)
                return f
            n0 = self.seq
            xx = self.queue_both("X", 2 * layer, 8, self.aq)
            hold = self.seq
            pl_s = []
            sa = self.queue_stats(0, pl_s)
            sb = self.queue_stats(1, pl_s)
            if layer or FT:
                th = lambda: self.touch_h(layer)
                th.seq = -1
                th.prep = []
                pl_s.append(th)
            self.a_burst(4)
            fl_s()
            self.a_burst(AF - 4)
            self.bg_w = 0
            self.pace_w = PB[layer]
            groups = self.split(list(range(n0, n0 + 16)), env("G3", [4, 4, 8])) + [[hold]]
            hooks, pre, post = {}, {}, {}
            s1a, bba = self.stats_stage1(sa, 0)
            s1b, bbb = self.stats_stage1(sb, 1)
            j = env("H_ST", 8)
            hooks[j] = [poll]
            hooks[j + 6] = [when(k_s, pl_s), lambda: setattr(self, "bg_w", 99)]
            hooks[j + 18] = [lambda: self.side.extend(s1a + s1b)]

            def exch():
                bba()
                bbb()
                b.I("s_barrier")
                self.side.extend(self.stats_stage2(0, True, False) + self.stats_stage2(1, True, False))
            hooks[env("H_EX", 46)] = [exch]
            groups.pop()
            self.gemm(self.p3_items(layer, xx), groups, 6, hooks, pre, post, pairw=True)
            self.pinned = set()
            self.mine = self.seq - 1
            self.bg_w = env("W_SILU", 0)
            self.stamp("p3")
            k_ha, fl_ha = self.new_pub(self.silu(layer, 0))
            self.bg_w = 0
            tkb = self.silu(layer, 1, (env("MID", 2), fl_ha))
            k_hb, fl_hb = self.new_pub(tkb)
            self.stamp("silu")
            self.poll_check(k_ha)
            self.stamp("ha_rdy")
            self.gstamp = layer == 1 and env("GST", 0)
            pl_hb, pl_ya = [], []
            ha = self.queue_half("H", layer, 0, 22, self.aq)
            hb = self.queue_half("H", layer, 1, 22, pl_hb)
            self.a_burst(4)
            fl_hb()
            self.a_burst(AF - 4)
            self.bg_w = 99
            j = env("H_P4A", 24)
            self.alead = env("ALEAD4", 16)
            self.pace_w = PA[1]
            items = self.n16_items("w2", layer, 43, 0, ha) + self.n16_items("w2", layer, 43, 1, hb)
            groups = self.split(ha, env("G22C", [2, 2, 4, 4, 4, 6])) + self.split(hb, G22)
            hooks = {j: [poll], j + env('CK4', 12): [when(k_hb, pl_hb, env('BU_HB', 4))]}
            pre, post = {}, {}
            if layer == 0:
                sa = self.queue_stats(0, pl_ya)
                ya = self.queue_half("X", 1, 0, 8, pl_ya, rot=True)

                def y_out(hf, delay):
                    def f():
                        self.stamp("p4a" if hf == 0 else "p4b")
                        st["k_y%d" % hf], st["fl_y%d" % hf] = self.x_half_now(1, hf, self.sep)
                        self.pace_w = PA[1]
                        if hf:
                            self.alead = env("ALEAD", 99)
                    return f
                j = 86 + env("H_P4B", 44)
                hooks.update({87: [y_out(0, 0)], 87 + env("D_Y0", 22): [lambda: st["fl_y0"]()],
                              172 + env("D_Y1", 12): [lambda: st["fl_y1"]()], j: [poll], j + env('CK4', 12): [when(lambda: st["k_y0"], pl_ya, env("BU_YA", 6))], 172: [y_out(1, 0)],
                              172 + env("H_P1A", 28): [poll]})
                ng = len(groups)
                groups += self.split(ya, env("G8K", [3, 3, 2]))
                self.stats_hooks(sa, 0, False, True, 173, ng + 2, hooks, pre, post)
                items += self.kv_items(0, ya)
            else:
                hooks[85] = [lambda: (self.stamp("p4a"), self.side.extend(self.out_half_store(0)))]
            self.gemm(items, groups, D16, hooks, pre, post, pairw=PW)
            if layer == 0:
                self.stamp("p1a")
                self.poll_check(st["k_y1"], st["tok"])
                self.stamp("yb_rdy")
                sb = self.queue_stats(1, self.aq)
                yb = self.queue_half("X", 1, 1, 8, self.aq, rot=True)
                self.a_burst(env('AF1', 10))
                self.kv_finish(0)
                hooks, pre, post = {}, {}, {}
                self.stats_hooks(sb, 1, False, True, 0, 1, hooks, pre, post)
                self.gemm(self.kv_items(1, yb), self.split(yb, G8w), 8, hooks, pre, post, pairw=True)
                self.kv_finish(1)
                self.stamp("p1b")
                xs = [ya, yb]
            else:
                self.stamp("p4b")
                self.side = self.out_half_store(1)
                self.side_flush()
                lx = b.newlabel("Lep")
                b.I("s_or_b32 s%d, s2, s%d" % (sT, sW))
                b.I("s_cbranch_scc1 %s" % lx)
                b.I("s_add_u32 s%d, s%d, 16" % (sT, sEP))
                b.I("v_mov_b32 v%d, s%d" % (vT + 9, sT))
                b.I("s_mov_b32 s%d, 0x%x" % (sT, WS_EP))
                b.I("s_mov_b64 exec, 1")
                self.Inc("buffer_store_dword v%d, off, %s, s%d sc1" % (vT + 9, self.ws(), sT))
                b.I("s_mov_b64 exec, -1")
                b.label(lx)
                self.stamp("end")
        if self.diag:
            b.I("s_lshl_b32 s%d, s2, 2" % sT)
            b.I("s_add_u32 s%d, s%d, s%d" % (sT, sT, sW))
            b.I("s_lshl_b32 s%d, s%d, 8" % (sT, sT))
            b.I("s_add_u32 s%d, s%d, 0x%x" % (sT, sT, WS_STAMP))
            b.I("buffer_store_dword v%d, v%d, %s, s%d offen" % (vSTAMP, vL4, self.ws(), sT))
        if self.diag and env("PROBE", 0):
            lx, lp = b.newlabel("Lpr"), b.newlabel("Lprl")
            i0, i1 = [61 if n == "entry" else [i for i, m in enumerate(self.stamp_names) if m == n[0]][n[1]] for n in env("PROBE", 0)]
            b.I("s_cmp_lg_u32 s2, %d" % env("PWG", 100))
            b.I("s_cbranch_scc1 %s" % lx)
            b.I("v_readlane_b32 s%d, v%d, %d" % (sT, vSTAMP, i0))
            b.I("v_readlane_b32 s%d, v%d, %d" % (sT + 1, vSTAMP, i1))
            b.I("v_readlane_b32 s%d, v%d, %d" % (sT + 2, vSTAMP, len(self.stamp_names) - 1))
            b.I("s_sub_u32 s%d, s%d, s%d" % (sT + 1, sT + 1, sT))
            b.I("s_mul_i32 s%d, s%d, %d" % (sT + 1, sT + 1, env("PMUL", 1)))
            b.I("s_add_u32 s%d, s%d, 4800" % (sT + 1, sT + 1))
            b.label(lp)
            b.I("s_memtime s[94:95]")
            b.I("s_waitcnt lgkmcnt(0)")
            b.I("s_sub_u32 s%d, s94, s%d" % (sT, sT + 2))
            b.I("s_cmp_lt_u32 s%d, s%d" % (sT, sT + 1))
            b.I("s_cbranch_scc1 %s" % lp)
            b.label(lx)
        b.label("L_end")
        b.I("s_endpgm")
        for t in self.cold:
            b.raw(t)

    def emit(self):
        self.body()
        head = """; @launch grid=(256,1,1) block=(256,1,1) lds=%d
; persistent fused kernel: 32 row groups (64 rows) x 8 column groups (generated by my own script)
.amdgcn_target "amdgcn-amd-amdhsa--gfx950"
.text
.globl %s_kernel
.p2align 8
.type %s_kernel,@function
%s_kernel:
""" % (LDS_BYTES, NAME, NAME, NAME)
        tail = """.section .rodata,"a"
.p2align 6
.amdhsa_kernel %s_kernel
  .amdhsa_next_free_vgpr 512
  .amdhsa_next_free_sgpr 102
  .amdhsa_accum_offset 256
  .amdhsa_group_segment_fixed_size 0
  .amdhsa_kernarg_size 72
  .amdhsa_user_sgpr_count 2
  .amdhsa_user_sgpr_kernarg_segment_ptr 1
  .amdhsa_system_sgpr_workgroup_id_x 1
.end_amdhsa_kernel
""" % NAME
        return head + self.b.text() + tail


if __name__ == "__main__":
    import argparse
    ap = argparse.ArgumentParser()
    ap.add_argument("-o", default="cdna_kernels/%s.s" % NAME)
    ap.add_argument("--diag", action="store_true")
    ap.add_argument("--sep", action="store_true")
    a = ap.parse_args()
    g = Gen(a.diag, a.sep)
    txt = g.emit()
    if a.diag:
        txt = txt.replace(".amdgcn_target", "; stamps: " + ",".join(g.stamp_names) + "\n.amdgcn_target", 1)
    open(a.o, "w").write(txt)
    print("instructions", g.b.nins, "nops", g.b.nops, file=sys.stderr)
```

```python
import sys
import os
sys.path.insert(0, os.path.dirname(os.path.abspath(__file__)))
from asmb import Builder, vr

NAME = "interleave_layers__linear_attn_block__dense_activation_silu__prompt"


def env(name, default):
    v = os.environ.get(name)
    return default if v is None else eval(v)


PKW = 107 * 1024
WS_FL = 0x380000
WS_EP = 0x390000
WS_R2 = 0x398000
WS_KV = 0x480000
NC = env('NC', 2)
KCS = env('KCS', 1344)
KVH = NC * KCS
KVL = 32 * KVH
KB0 = env('KB0', 0)
WS_R3 = 0x3D0000
WS_ST = 0x400000
WS_O = 0x600000
WS_X = 0x800000
WS_H = 0xA00000
HSZ = 22 * 8192
WS_STAMP = 0x3000000
WS_SIZE = 0x3100000 if '--diag' in sys.argv else 0x1000000
OOB = 0x4000000 if '--diag' in sys.argv else 0x1000000
F_WO, F_W1, F_W2 = 0, 16, 64

L_RING = 65536
L_RQ = 106496
L_WQ = 81920
L_PACK = 131072
L_KVI = 147456
L_STA = 157696
L_EX = 158720
NR = env('NR', 8)
NSLOT = 20
LDS_BYTES = 163840

S_X, S_WQ, S_WO, S_W1, S_W2, S_OUT, S_DBG, S_WS = 4, 6, 8, 12, 14, 16, 18, 20
R_X, R_WQ, R_WS, R_OUT, R_PK = 24, 28, 32, 36, 44
sR1, sQ, sTC, sTAG, sEP = 3, 10, 11, 22, 23
sROT, sSTP, sSTC, sW1K = 40, 41, 42, 43
sRG, sC, sW, sFAST, sPK, sKV, sFL, sRG64, sRGH, sSTO = 48, 49, 50, 51, 52, 53, 54, 55, 56, 57
sH0 = 58
sSPIN = 61
sEPS = 62
sOUT = 63
sXS = 64
sRB2, sRO2 = 65, 66
sM1, sM2, sM3, sDIAG = 68, 70, 72, 74
sT = 76
sKB = 88
sPKC, sXCC, sMYF, sW2K, sAB, sAO = 96, 97, 98, 99, 100, 101

vL16, vA1, vKVL, vDMA, vST = 1, 2, 3, 4, 5
vX0, vX1, vOW0, vOW1, vTR, vXS0, vXS1, vWS = 6, 7, 8, 9, 10, 11, 12, 13
vWQ = 13
vSB, vEX, vSWR, vOA = 8, 9, 10, 11
vFL, vL4, vSTAMP, vSTA, vSTQ, vC2 = 14, 15, 16, 17, 18, 19
vX = 20
vCSQ, vCSK, vCSV = 36, 40, 42
vCS1 = 44
vONE = 56
vACC = 60
vAF = 108
NAF = 10
vAB = 148
vT = 156
vPOS = 172
vZP, vSW, vDUM, vTCH, vPOLL, vDM2 = 176, 177, 178, 179, 180, 181
vK = 182
vS1, vS2 = 184, 188
vTQ = 195
vW1 = 192
SLOTS = [("a", 4 * i) for i in range(64)] + [("v", 196 + 4 * i) for i in range(15)]
PACE = env("PACE", 36)
FT = env("FTOUCH", 1)
WMIN = env("WMIN", 10)
AMIN = env("AMIN", 5)
RDSLACK = env("RDSLACK", 2)
SIDEMIN = env("SIDEMIN", 1)
COST = {"mfma": 16, "trans": 8, "ds": 4, "valu": 4, "perm": 4, "dpp": 4, "rdlane": 4, "wrlane": 4, "salu": 2, "vmem": 8}
K_L2E = "op_sel:[0,0] op_sel_hi:[1,0]"


def slot_r(s):
    return vr(s[1], 4, s[0])


def p2(r):
    return "v[%d:%d]" % (r, r + 1)


class Gen:
    def __init__(self, diag=False, sep=False):
        self.b = Builder()
        self.diag = diag
        self.sep = sep
        self.free = list(SLOTS)
        self.wq = []
        self.wslot = {}
        self.pk_cur = None
        self.nstamp = 0
        self.stamp_names = []
        self.aq = []
        self.atok = {}
        self.seq = 0
        self.consumed = -1
        self.mine = -1
        self.pub_mine = {}
        self.clock = 0
        self.last_bg = -1000
        self.bg_w = 0
        self.pace_w = 70
        self.in_bg = False
        self.npub = 0
        self.ncs = 0
        self.gstamp = False
        self.vclock = {}
        bI, bw = self.b.I, self.b.wait

        def I2(t):
            tok = bI(t)
            if tok and tok[0] == "vm":
                self.vclock[tok[1]] = self.clock
            return tok

        def w2(*toks, **kw):
            if os.environ.get("SLACK"):
                flat = []
                for t in toks:
                    if t is None:
                        continue
                    flat += t if isinstance(t, list) else [t]
                v = [i for k, i in flat if k == "vm" and i >= self.b.vm_done]
                if v:
                    d = self.clock - self.vclock.get(max(v), 0)
                    if d < int(os.environ["SLACK"]):
                        print("   slack %4d at clock %d (after %s)" % (d, self.clock, self.last_stamp), file=sys.stderr)
            return bw(*toks, **kw)
        self.b.I, self.b.wait = I2, w2
        self.last_stamp = ""
        self.flagged = set()
        self.cold = []
        self.slotted = False
        self.prepped = None
        self.wprep = []
        self.pinned = set()
        self.side = []
        self.side_rate = 2
        self.w_issued = 0
        self.w_need = 0
        self.w_cur = None
        self.w_index = {}
        self.wlead = env('WLEAD', 14)
        self.cur_seq = 0
        self.alead = env('ALEAD', 99)

    def I(self, t):
        tok = self.b.I(t)
        k = self.b.hists[0][-1].kind if self.b.hists and self.b.hists[0] else "salu"
        self.clock += COST.get(k, 4)
        if not self.in_bg and not self.slotted and k in ("mfma", "valu", "trans"):
            c = self.bg_pick()
            if c is not None and c[1]:
                self.bg_emit(c[0], True)
        return tok

    def side_step(self, n):
        self.in_bg = True
        done = 0
        while n > 0 and self.side:
            e = self.side[0]
            if isinstance(e, int):
                if e <= 1:
                    self.side.pop(0)
                else:
                    self.side[0] = e - 1
                break
            self.side.pop(0)
            if isinstance(e, str):
                self.b.I(e)
            else:
                e()
            n -= 1
            done += 1
        self.in_bg = False
        return done

    def side_flush(self):
        while self.side:
            self.side_step(1000)

    def bg_pick(self):
        a_ok = self.aq and self.aq[0].seq - NSLOT <= self.consumed
        w_ok = self.bg_w > 0 and self.wq and self.free
        same = w_ok and self.wq[0][0][:2] == self.w_cur
        el = self.clock - self.last_bg
        if self.prepped == "A" and a_ok:
            return "A", el >= PACE or self.aq[0].seq - self.cur_seq < AMIN
        if a_ok and getattr(self.aq[0], "urgent", False):
            return "A", True
        if same and self.w_issued - self.w_need < WMIN:
            return "W", True
        if a_ok and w_ok:
            a_lead = self.aq[0].seq - self.cur_seq
            if a_lead > self.alead or (same and self.w_issued - self.w_need < self.wlead and a_lead > 3):
                a_ok = False
        if a_ok:
            return "A", el >= PACE or self.aq[0].seq - self.cur_seq < AMIN
        if w_ok:
            return "W", el >= self.pace_w
        return None

    def bg_prep_list(self, kind):
        if kind == "A":
            return self.aq[0].prep
        grp = self.wq[0][1] // 4
        if self.pk_cur != grp and not os.environ.get("NOW"):
            self.pk_cur = grp
            self.wprep = ["s_add_u32 s%d, s%d, 0x%x" % (sPKC, sPK, grp * 4096)]
        return self.wprep

    def bg_emit(self, kind, inline):
        self.in_bg = True
        if kind == "A":
            self.a_pop()
        else:
            self.w_issue()
            self.bg_w -= 1
        self.last_bg = self.clock
        self.in_bg = False

    def a_pop(self):
        th = self.aq.pop(0)
        while th.prep:
            self.b.I(th.prep.pop(0))
        th()
        self.prepped = None

    def slot_fill(self, rd_lag, issue_read):
        c = self.bg_pick()
        if c is not None and c[1] and rd_lag <= RDSLACK and not self.bg_prep_list(c[0]):
            self.bg_emit(c[0], False)
            self.clock += 8
            return
        budget = 2
        if rd_lag > 0:
            issue_read()
            budget -= 1
            if rd_lag > 1:
                issue_read()
                budget -= 1
        if c is not None:
            pl = self.bg_prep_list(c[0])
            while budget > 0 and pl:
                self.b.I(pl.pop(0))
                budget -= 1
                if c[0] == "A":
                    self.prepped = "A"
        self.side_step(max(budget, SIDEMIN))

    def Inc(self, t):
        self.b.I(t)
        self.b.vm_issued -= 1

    def stamp(self, name):
        self.last_stamp = name
        if os.environ.get("WLOG"):
            print("%-8s clock %6d  wq left %3d next %s free %d aq %d" % (
                name, self.clock, len(self.wq), self.wq[0][0] if self.wq else None, len(self.free), len(self.aq)), file=sys.stderr)
        if not self.diag:
            return
        b = self.b
        k = self.nstamp
        self.nstamp += 1
        assert k < 62
        b.comment("stamp %d %s" % (k, name))
        b.I("s_memtime s[94:95]")
        b.wait(lg=0)
        b.I("v_writelane_b32 v%d, s94, %d" % (vSTAMP, k))
        if name in ("start", "end"):
            b.I("s_memrealtime s[94:95]")
            b.wait(lg=0)
            b.I("v_writelane_b32 v%d, s94, %d" % (vSTAMP, 62 if name == "start" else 63))
        self.stamp_names.append(name)

    def buf(self, kind, idx):
        base = {"O": WS_O if self.sep else WS_H, "X": WS_X, "H": WS_H}[kind]
        return base + (idx * 0x1000000 if self.sep else 0)

    def hstride(self, kind):
        return HSZ // 2 if self.rgs(kind) == sRGH else 32768

    def rgs(self, kind):
        return sRGH if kind == "H" or (kind == "O" and not self.sep) else sRG64

    def srd(self, r, ptr, size):
        I = self.b.I
        I("s_mov_b32 s%d, s%d" % (r, ptr))
        I("s_and_b32 s%d, s%d, 0xffff" % (r + 1, ptr + 1))
        I("s_mov_b32 s%d, 0x%x" % (r + 2, size))
        I("s_mov_b32 s%d, 0x20000" % (r + 3))

    def ws(self):
        return "s[%d:%d]" % (R_WS, R_WS + 3)

    def w_enqueue(self, name, layer, f0, n, order=None):
        for i in (range(n) if order is None else order):
            self.w_index[(name, layer, i)] = len(self.w_index)
            self.wq.append(((name, layer, i), f0 + i))

    def w_issue(self):
        key, f = self.wq.pop(0)
        s = self.free.pop(0)
        self.w_issued += 1
        if os.environ.get("NOW"):
            self.wslot[key] = (s, None)
            return
        grp = f // 4
        while self.wprep:
            self.b.I(self.wprep.pop(0))
        if self.pk_cur != grp:
            self.b.I("s_add_u32 s%d, s%d, 0x%x" % (sPKC, sPK, grp * 4096))
            self.pk_cur = grp
        va = vW1 + key[2] % 3 if key[0] == "w1" and env("SKIPW1", 1) else vL16
        if os.environ.get("FAKEW"):
            self.b.I("s_mov_b32 s%d, s%d" % (sPKC, sPK))
        tok = self.b.I("buffer_load_dwordx4 %s, v%d, %s, s%d offen offset:%d sc1%s" % (
            slot_r(s), va, self.ws(), sPKC, (f % 4) * 1024, " nt" if env("NT", lambda k: False)(key) else ""))
        self.wslot[key] = (s, tok)

    def w_burst(self, n):
        k = 0
        while k < n and self.wq and self.free:
            self.w_issue()
            k += 1
        self.last_bg = self.clock

    def w_get(self, key):
        self.w_need = max(self.w_need, self.w_index.get(key, 0))
        self.w_cur = key[:2]
        if key not in self.wslot:
            print("WARNING: late W load", key, file=sys.stderr)
        while key not in self.wslot:
            assert self.wq and self.free, "no free slot for %s" % (key,)
            self.w_issue()
        s, tok = self.wslot[key]
        self.b.wait(tok)
        return slot_r(s)

    def w_release(self, key):
        s, _ = self.wslot.pop(key)
        self.free.append(s)

    def stores2(self, texts, wt=False):
        b = self.b
        if wt and not FT:
            return [b.I(t + " sc1") for t in texts]
        ls, lj = b.newlabel("Lslow"), b.newlabel("Ljoin")
        b.I("s_cmp_eq_u32 s%d, 1" % sFAST)
        b.I("s_cbranch_scc0 %s" % ls)
        b.saved.pop(ls)
        toks = [b.I(t) for t in texts]
        b.raw(lj + ":")
        self.cold += [ls + ":"] + ["    " + t + " sc1" for t in texts] + ["    s_branch " + lj]
        return toks

    def pair_store(self, p, sreg, off):
        for k in range(2):
            self.b.I("v_permlane16_swap_b32 v%d, v%d" % (p + k, p + 2 + k))
        return "buffer_store_dwordx4 %s, v%d, %s, s%d offen offset:%d" % (vr(p, 4), vST, self.ws(), sreg, off)

    def spin_guard(self, lab_loop):
        b = self.b
        b.I("s_sub_u32 s%d, s%d, 1" % (sSPIN, sSPIN))
        b.I("s_cmp_lg_u32 s%d, 0" % sSPIN)
        b.I("s_cbranch_scc1 %s" % lab_loop)
        b.I("s_branch L_end")

    def new_pub(self, toks):
        self.npub += 1
        k = self.npub
        self.pub_mine[k] = self.mine

        def flag():
            b = self.b
            b.I("s_add_u32 s%d, s%d, %d" % (sT, sTAG, k))
            b.I("v_mov_b32 v%d, s%d" % (vC2, sT))
            b.wait(toks)
            b.I("s_mov_b64 exec, 1")
            self.stores2(["buffer_store_dword v%d, off, %s, s%d" % (vC2, self.ws(), sMYF)])
            b.I("s_mov_b64 exec, -1")
            self.flagged.add(k)
        return k, flag

    def poll_issue(self):
        return self.b.I("buffer_load_dword v%d, v%d, %s, s%d offen sc1" % (vPOLL, vFL, self.ws(), sFL))

    def poll_shadow(self, k, ncs):
        if not ncs:
            return self.poll_check(k)
        tok = self.poll_issue()
        self.cs1_some(ncs)
        self.poll_check(k, tok)
        self.b.wait(vm=0)

    def poll_check(self, k, tok=None):
        b = self.b
        if k not in self.flagged:
            print("WARNING: side stream late for flag", k, file=sys.stderr)
        while k not in self.flagged:
            assert self.side, "flag %d never raised before its poll" % k
            self.side_step(1)
        lp, ld, lc = b.newlabel("Lpoll"), b.newlabel("Lpd"), b.newlabel("Lpc")
        b.I("s_add_u32 s%d, s%d, %d" % (sT, sTAG, k))
        if tok is not None:
            b.wait(tok)
            b.I("s_branch %s" % lc)
        b.label(lp)
        self.Inc("buffer_load_dword v%d, v%d, %s, s%d offen sc1" % (vPOLL, vFL, self.ws(), sFL))
        if tok is None:
            b.wait(vm=0)
        else:
            b.I("s_waitcnt vmcnt(0)")
        b.label(lc)
        b.I("v_subrev_u32 v%d, s%d, v%d" % (vPOLL, sT, vPOLL))
        b.I("v_cmp_gt_u32 vcc, %d, v%d" % (16 - k, vPOLL))
        b.I("s_cmp_eq_u64 vcc, exec")
        b.I("s_cbranch_scc1 %s" % ld)
        self.spin_guard(lp)
        b.label(ld)
        self.consumed = max(self.consumed, self.pub_mine[k])

    def queue_stats(self, hf, plan):
        b = self.b
        s0 = self.seq
        assert s0 % 2 == 0
        self.seq += 2
        for j in range(2):
            def th(j=j):
                assert s0 + 1 - NSLOT <= self.consumed
                self.atok.setdefault(s0, []).append(b.I(
                    "buffer_load_dwordx4 v%d, %s, s%d offen offset:%d sc1 lds" % (vL16, self.ws(), sAO, j * 1024)))
            th.seq = s0 + 1
            th.urgent = True
            th.prep = [] if j else ["s_add_u32 m0, s%d, 0x%x" % (sW2K, (s0 % NSLOT) * 4096),
                                    "s_add_u32 s%d, s%d, 0x%x" % (sAO, sSTC, hf * 8192)]
            plan.append(th)
        return s0

    def queue_half(self, kind, idx, hf, nds, plan, rot=False, ds0=0):
        b = self.b
        seqs = []
        base = self.buf(kind, idx) + hf * self.hstride(kind)
        rg = self.rgs(kind)
        assert self.seq % 2 == 0 and nds % 2 == 0
        for ds in range(ds0, ds0 + nds):
            sq = self.seq
            self.seq += 1
            seqs.append(sq)
            s0 = sq & ~1

            def th(sq=sq, s0=s0):
                assert s0 + 1 - NSLOT <= self.consumed, "ring slot busy"
                tk = b.I("buffer_load_dwordx4 v%d, %s, s%d offen offset:%d sc1 lds" % (vDM2, self.ws(), sAO, (sq & 1) * 1024))
                if sq & 1:
                    self.atok[s0] = self.atok[s0 + 1] = [tk]
            th.seq = s0 + 1
            m0 = "s_add_u32 m0, s%d, 0x%x" % (sW2K, (sq % NSLOT) * 4096)
            if sq & 1:
                th.prep = []
            elif not rot:
                th.prep = [m0, "s_add_u32 s%d, s%d, 0x%x" % (sAO, rg, base + ds * 4096)]
            else:
                if ds == 0:
                    th.prep = ["s_add_u32 s%d, s%d, 0x%x" % (sAB, sRB2, base), "s_mov_b32 s%d, s%d" % (sXS, sRO2)]
                else:
                    th.prep = ["s_add_u32 s%d, s%d, 0x2000" % (sXS, sXS), "s_and_b32 s%d, s%d, 0x7fff" % (sXS, sXS)]
                th.prep += [m0, "s_add_u32 s%d, s%d, s%d" % (sAO, sAB, sXS)]
            plan.append(th)
        return seqs

    def queue_both(self, kind, idx, nds, plan):
        out = ([], [])
        for d0 in range(0, nds, 2):
            for hf in range(2):
                out[hf].extend(self.queue_half(kind, idx, hf, 2, plan, ds0=d0))
        return out

    def seq_issued(self):
        return self.aq[0].seq if self.aq else self.seq

    def a_burst(self, n):
        k = 0
        while k < n and self.aq and self.aq[0].seq - NSLOT <= self.consumed:
            self.a_pop()
            k += 1
        self.last_bg = self.clock

    def frag_addr(self, sq, r, h):
        off = (sq % NSLOT) * 4096 + r * 2048 + h * 1024
        return ((vL16, vA1)[off >> 16], off & 0xffff)

    def gemm_prep(self, items, groups=None, depth=8, hooks=None, pre=None, post=None, pairw=False, buf0=0):
        b = self.b
        hooks, pre, post = hooks or {}, pre or {}, post or {}
        n = len(items)
        toks = [None] * n
        grp_of = {}
        for gi, g in enumerate(groups or []):
            for sq in g:
                grp_of[sq] = gi
        opened = set()
        st = {"ip": 0}

        rem = [1 << 30] * (n + 1)
        for k in range(n - 1, -1, -1):
            rem[k] = min(rem[k + 1], items[k][2] if items[k][2] is not None else 1 << 30)

        def reg(k):
            return vr(vAF + 4 * ((k + buf0) % NAF), 4)

        def issue():
            k = st["ip"]
            a, off, sq, _ = items[k]
            if sq in grp_of and grp_of[sq] not in opened:
                gi = grp_of[sq]
                opened.add(gi)
                while any(s not in self.atok for s in groups[gi]):
                    self.a_pop()
                    self.last_bg = self.clock
                for f in pre.get(gi, []):
                    f()
                if self.gstamp:
                    self.stamp("g%d?" % gi)
                b.wait(*[self.atok[s] for s in groups[gi]])
                b.I("s_barrier")
                if self.gstamp:
                    self.stamp("g%d!" % gi)
                self.consumed = max(self.consumed, self.mine)
                for f in post.get(gi, []):
                    f()
            if a == "tr":
                r0 = vAF + 4 * ((k + buf0) % NAF)
                self.I("ds_read_b64_tr_b16 %s, v%d offset:%d" % (p2(r0), vTQ, off))
                toks[k] = self.I("ds_read_b64_tr_b16 %s, v%d offset:%d" % (p2(r0 + 2), vTQ, off + 512))
            else:
                toks[k] = self.I("ds_read_b128 %s, v%d offset:%d" % (reg(k), a, off))
            st["ip"] += 1

        def prestart(m=None):
            while st["ip"] < min(depth if m is None else m, n):
                issue()

        def run():
            prestart()
            self.slotted = True
            for j in range(n):
                thunks = items[j][3](reg(j))
                while st["ip"] <= min(j + (1 if pairw else 0), n - 1):
                    issue()
                if pairw and j % 2 == 0 and j + 1 < st["ip"]:
                    b.wait(toks[j + 1])
                b.wait(toks[j])
                if items[j][2] is not None:
                    self.cur_seq = items[j][2]
                    lim = min(self.pinned) - 3 if self.pinned else 1 << 30
                    self.mine = max(self.mine, min(rem[j] - 1, lim))
                if not thunks and st["ip"] < min(n, j + 1 + depth):
                    issue()
                for th in thunks:
                    n0 = b.nins
                    th()
                    if b.nins > n0:
                        self.slot_fill(min(n, j + 1 + depth) - st["ip"], issue)
                for f in hooks.get(j, []):
                    f()
            self.slotted = False
            self.side_flush()
            sq = [it[2] for it in items if it[2] is not None]
            if sq:
                self.cur_seq = max(sq) + 1
                lim = min(self.pinned) - 3 if self.pinned else 1 << 30
                self.mine = max(self.mine, min(max(sq), lim))
        return prestart, run

    def gemm(self, *a, **k):
        self.gemm_prep(*a, **k)[1]()

    def mf(self, d, a, bb, c=None):
        dd = vr(d, 4)
        cc = dd if c is None else c
        return lambda: self.I("v_mfma_f32_16x16x32_bf16 %s, %s, %s, %s" % (dd, a, bb, cc))

    @staticmethod
    def split(seqs, sizes):
        out, k = [], 0
        for s in sizes:
            out.append(seqs[k:k + s])
            k += s
        assert k == len(seqs)
        return out

    def stats_stage1(self, s0, hf):
        b = self.b
        t = vS1
        tk = {}
        def landed():
            while len(self.atok.get(s0, [])) < 2:
                self.a_pop()
            b.wait(self.atok[s0])
        out = ["v_add_u32 v%d, 0x%x, v%d" % (vT, (s0 % NSLOT) * 4096, vSB), landed]
        for k in range(4):
            out.append(lambda k=k: tk.__setitem__(k, b.I("ds_read2st64_b32 %s, v%d offset0:%d offset1:%d" % (
                p2(t + 2 * k), vT, 2 * k, 2 * k + 1))))
        out += [6, lambda: b.wait(tk[3])]
        out += ["v_add_f32 v%d, v%d, v%d" % (t + k, t + k, t + 4 + k) for k in range(4)]
        out += ["v_add_f32 v%d, v%d, v%d" % (t + k, t + k, t + 2 + k) for k in range(2)]
        out += ["v_add_f32 v%d, v%d, v%d" % (t, t, t + 1)]
        out.append(lambda: tk.__setitem__("w", b.I("ds_write_b32 v%d, v%d offset:%d" % (vSW, t, hf * 1024))))

        def before_barrier():
            self.side_flush()
            b.wait(tk["w"])
        return out, before_barrier

    def stats_stage2(self, hf, scale, kv):
        b = self.b
        t = vS1
        tk = {}
        out = []
        for k in range(2):
            out.append(lambda k=k: tk.__setitem__(k, b.I("ds_read2st64_b32 %s, v%d offset0:%d offset1:%d" % (
                p2(t + 2 * k), vEX, hf * 4 + 2 * k, hf * 4 + 2 * k + 1))))
        a0, b0, a1, b1 = [vAB + 4 * hf + k for k in range(4)]
        out += [6, lambda: b.wait(tk[1]),
                "v_add_f32 v%d, v%d, v%d" % (t, t, t + 2), "v_add_f32 v%d, v%d, v%d" % (t + 1, t + 1, t + 3),
                "v_add_f32 v%d, v%d, v%d" % (t, t, t + 1), "v_mul_f32 v%d, 0x3b000000, v%d" % (t, t),
                "v_mov_b32 v%d, v%d" % (t + 1, t), 1,
                "v_permlane16_swap_b32 v%d, v%d" % (t, t + 1), 1,
                "v_fma_f32 v%d, -v%d, v%d, v%d" % (t + 1, t, t, t + 1), "v_max_f32 v%d, 0, v%d" % (t + 1, t + 1),
                "v_add_f32 v%d, 0x3727c5ac, v%d" % (t + 1, t + 1), "v_rsq_f32 v%d, v%d" % (a0, t + 1), 1]
        if scale:
            out.append("v_mul_f32 v%d, v%d, v%d" % (a0, a0, vK))
        out.append("v_mul_f32_e64 v%d, -v%d, v%d" % (b0, t, a0))
        if kv:
            def wr():
                b.I("s_mov_b32 exec_lo, 0xffff")
                b.I("s_mov_b32 exec_hi, 0xffff")
                b.I("ds_write_b32 v%d, v%d" % (vSWR, a0))
                b.I("ds_write_b32 v%d, v%d offset:128" % (vSWR, b0))
                b.I("s_mov_b64 exec, -1")
            out.append(wr)
        out += ["v_mov_b32 v%d, v%d" % (a1, a0), "v_mov_b32 v%d, v%d" % (b1, b0), 1,
                "v_permlane32_swap_b32 v%d, v%d" % (a0, a1), "v_permlane32_swap_b32 v%d, v%d" % (b0, b1)]
        return out

    def stats_hooks(self, s0, hf, scale, kv, j1, gi, hooks, pre, post):
        s1, bb = self.stats_stage1(s0, hf)
        hooks.setdefault(j1, []).append(lambda: self.side.extend(s1))
        pre.setdefault(gi, []).append(bb)
        post.setdefault(gi, []).append(lambda: self.side.extend(self.stats_stage2(hf, scale, kv)))

    def stats_startup(self):
        b = self.b
        I = b.I
        t = vT
        I("v_mul_f32 v%d, 0x3b000000, v%d" % (t + 1, vS1))
        I("v_cndmask_b32 v%d, v%d, v%d, s[%d:%d]" % (t, vS2, vS2 + 1, sM1, sM1 + 1))
        I("v_cndmask_b32 v%d, v%d, v%d, s[%d:%d]" % (t, t, vS2 + 2, sM2, sM2 + 1))
        I("v_cndmask_b32 v%d, v%d, v%d, s[%d:%d]" % (t, t, vS2 + 3, sM3, sM3 + 1))
        I("v_mul_f32 v%d, 0x3b000000, v%d" % (t, t))
        I("v_fma_f32 v%d, -v%d, v%d, v%d" % (t, t + 1, t + 1, t))
        I("v_max_f32 v%d, 0, v%d" % (t, t))
        I("v_add_f32 v%d, 0x3727c5ac, v%d" % (t, t))
        I("v_rsq_f32 v%d, v%d" % (t + 2, t))
        I("v_lshlrev_b32 v%d, 1, v%d" % (t + 4, vSW))
        I("v_mul_f32_e64 v%d, -v%d, v%d" % (t + 3, t + 1, t + 2))
        I("v_subrev_u32 v%d, 0x%x, v%d" % (t + 4, L_STA - 512, t + 4))
        I("s_mov_b64 exec, s[%d:%d]" % (sDIAG, sDIAG + 1))
        I("ds_write_b32 v%d, v%d" % (vSW, t + 2))
        I("ds_write_b32 v%d, v%d offset:256" % (vSW, t + 3))
        I("ds_write_b64 v%d, v[%d:%d]" % (t + 4, t + 2, t + 3))
        I("s_mov_b64 exec, -1")
        b.wait(lg=0)
        I("s_barrier")

    def phi_pairs(self, pairs):
        I = self.I
        for c0 in range(0, len(pairs), 4):
            grp = pairs[c0:c0 + 4]
            for k, (t, d) in enumerate(grp):
                I("v_pk_mul_f32 %s, %s, %s %s" % (p2(vT + 2 * k), p2(t), p2(vK), K_L2E))
            for k, (t, d) in enumerate(grp):
                I("v_exp_f32_e64 v%d, v%d clamp" % (vT + 2 * k, vT + 2 * k))
                I("v_max_f32 v%d, v%d, v%d" % (t, vK + 1, t))
                I("v_exp_f32_e64 v%d, v%d clamp" % (vT + 2 * k + 1, vT + 2 * k + 1))
                I("v_max_f32 v%d, v%d, v%d" % (t + 1, vK + 1, t + 1))
            for k, (t, d) in enumerate(grp):
                I("v_pk_add_f32 %s, %s, %s" % (p2(t), p2(t), p2(vT + 2 * k)))
            for k, (t, d) in enumerate(grp):
                I("v_cvt_pk_bf16_f32 v%d, v%d, v%d" % (d, t, t + 1))

    def kv_epilogue(self, hf, ra, rb):
        I = self.I
        K, V = vACC + 8 * hf, vACC + 16 + 8 * hf
        for j in range(4):
            I("v_pk_fma_f32 %s, %s, %s, %s op_sel:[0,0,1] op_sel_hi:[1,1,1]" % (p2(vT + 2 * j), p2(rb + 2 * j), p2(vCSK), p2(vK)))
            I("v_pk_mul_f32 %s, %s, %s" % (p2(vT + 8 + 2 * j), p2(rb + 2 * j), p2(vCSV)))
        for j in range(4):
            I("v_pk_fma_f32 %s, %s, %s, %s" % (p2(K + 2 * j), p2(ra + 2 * j), p2(K + 2 * j), p2(vT + 2 * j)))
            I("v_pk_fma_f32 %s, %s, %s, %s" % (p2(V + 2 * j), p2(ra + 2 * j), p2(V + 2 * j), p2(vT + 8 + 2 * j)))
        for j in range(4):
            I("v_cvt_pk_bf16_f32 v%d, v%d, v%d" % (V + j, V + 2 * j, V + 2 * j + 1))
        self.phi_pairs([(K + 2 * j, K + j) for j in range(4)])

    def startup(self):
        b = self.b
        I = b.I
        i_, g_, l3, l7, q0, tc = vT + 2, vT + 3, vT + 6, vT + 7, vT + 8, vT + 9
        if self.diag:
            I("s_memtime s[92:93]")
        I("s_cmp_ge_u32 s2, 256")
        I("s_cbranch_scc1 L_end")
        I("s_load_dwordx4 s[4:7], s[0:1], 0")
        I("s_load_dwordx2 s[20:21], s[0:1], 64")
        I("s_load_dwordx2 s[8:9], s[0:1], 16")
        I("s_load_dwordx4 s[12:15], s[0:1], 32")
        I("s_load_dwordx4 s[16:19], s[0:1], 48")
        I("s_getpc_b64 s[90:91]")
        b.label("L_pc")
        I("v_lshrrev_b32 v%d, 6, v0" % vT)
        I("v_and_b32 v0, 63, v0")
        I("v_readfirstlane_b32 s%d, v%d" % (sW, vT))
        I("s_lshr_b32 s%d, s2, 3" % (sT + 1))
        I("s_lshl_b32 s%d, s%d, 2" % (sT + 3, sT + 1))
        I("s_add_u32 s%d, s%d, s%d" % (sT + 3, sT + 3, sW))
        I("s_and_b32 s%d, s%d, 31" % (sT, sT + 3))
        I("s_lshl_b32 s%d, s%d, 11" % (sT, sT))
        I("v_lshlrev_b32 v%d, 7, v0" % vTCH)
        I("v_add_u32 v%d, s%d, v%d" % (vT, sT, vTCH))
        I("v_min_u32 v%d, L_end-L_pc, v%d" % (vT, vT))
        I("s_mov_b64 exec, 0xffff")
        I("global_load_dword v%d, v%d, s[90:91]" % (vDUM, vT))
        I("s_mov_b64 exec, -1")
        I("s_and_b32 s%d, s2, 7" % sROT)
        I("s_and_b32 s%d, s%d, 7" % (sC, sT + 1))
        I("s_lshr_b32 s%d, s%d, 3" % (sQ, sT + 1))
        I("s_lshl_b32 s%d, s%d, 2" % (sT, sROT))
        I("s_add_u32 s%d, s%d, s%d" % (sRG, sT, sQ))
        I("s_lshl_b32 s%d, s%d, 16" % (sRG64, sRG))
        I("s_lshl_b32 s%d, s%d, 11" % (sW2K, sW))
        I("v_lshrrev_b32 v%d, 4, v0" % g_)
        I("v_and_b32 v%d, 15, v0" % i_)
        tw, tx = vT + 12, vT + 13
        I("s_mul_i32 s%d, s%d, %d" % (sT + 2, sT + 3, 4 * 3072))
        I("v_lshlrev_b32 v%d, 10, v0" % tx)
        I("v_add_u32 v%d, s%d, v%d" % (tw, sT + 2, tx))
        I("s_lshl_b32 s%d, s%d, 18" % (sT + 2, sROT))
        I("s_lshl_b32 s%d, s%d, 11" % (sT, sT + 3))
        I("s_add_u32 s%d, s%d, s%d" % (sT, sT, sT + 2))
        I("v_add_u32 v%d, s%d, v%d" % (tx, sT, tx))
        I("v_lshrrev_b32 v%d, 3, v0" % l3)
        I("v_and_b32 v%d, 7, v0" % l7)
        I("v_xor_b32 v%d, v%d, v%d" % (vT + 4, l7, g_))
        I("v_lshlrev_b32 v%d, 4, v%d" % (vT + 4, vT + 4))
        I("v_lshl_add_u32 v%d, v%d, 10, v%d" % (vT + 4, l3, vT + 4))
        I("s_lshl_b32 s%d, s%d, 14" % (sT + 1, sW))
        I("v_add_u32 v%d, s%d, v%d" % (vXS0, sT + 1, vT + 4))
        I("v_xor_b32 v%d, 64, v%d" % (vXS1, vXS0))
        I("v_add_u32 v%d, 7168, v%d" % (vXS1, vXS1))
        I("v_and_b32 v%d, 1, v%d" % (vT + 4, g_))
        I("v_lshlrev_b32 v%d, 1, v%d" % (vT + 4, vT + 4))
        I("v_xor_b32 v%d, v%d, v%d" % (q0, l7, vT + 4))
        I("v_lshlrev_b32 v%d, 4, v%d" % (q0, q0))
        I("s_and_b32 s%d, s%d, 1" % (sT + 1, sW))
        I("s_lshl_b32 s%d, s%d, 6" % (sT + 1, sT + 1))
        I("v_xor_b32 v%d, s%d, v%d" % (vT + 4, sT + 1, q0))
        I("s_lshl_b32 s%d, s%d, 3" % (sT + 1, sW))
        I("v_add_u32 v%d, s%d, v%d" % (vT + 5, sT + 1, l3))
        I("v_mul_u32_u24 v%d, 3072, v%d" % (vT + 5, vT + 5))
        I("v_add_u32 v%d, v%d, v%d" % (vWS, vT + 4, vT + 5))
        sXO, sWO_, sRB = sAB, sAO, 93
        I("s_lshl_b32 s%d, s%d, 7" % (sWO_, sC))
        I("v_add_u32 v%d, s%d, v%d" % (vWS, sWO_, vWS))
        if self.diag:
            b.wait(lg=0)
            I("s_mov_b32 s91, s92")
        I("s_add_u32 s%d, s%d, 0x%x" % (sRB, sW2K, L_RING - 1024))
        I("s_lshl_b32 s%d, s%d, 7" % (sXO, sROT))
        I("s_mul_i32 s%d, s%d, %d" % (sWO_, sROT, 64 * 3072))
        if self.diag:
            I("v_mov_b32 v%d, 0" % vSTAMP)
        b.wait(lg=0)
        if self.diag:
            I("v_writelane_b32 v%d, s91, 61" % vSTAMP)
        self.stamp("start")
        I("s_add_u32 s88, s%d, 0x%x" % (S_WS, WS_EP))
        I("s_addc_u32 s89, s%d, 0" % (S_WS + 1))
        I("s_load_dword s%d, s[88:89], 0" % sEP)
        self.srd(R_WQ, S_WQ, 512 * 3072)
        I("s_add_u32 s%d, s%d, s%d" % (R_X, S_X, sRG64))
        I("s_addc_u32 s%d, s%d, 0" % (R_X + 1, S_X + 1))
        I("s_and_b32 s%d, s%d, 0xffff" % (R_X + 1, R_X + 1))
        I("s_mov_b32 s%d, 0x10000" % (R_X + 2))
        I("s_mov_b32 s%d, 0x20000" % (R_X + 3))
        tokA, tokW = {}, {}

        def issue_thunks(ks):
            th = []
            if ks % 2 == 0:
                ds = ks // 2
                tokA[ds] = []
                pre = ["s_add_u32 m0, s%d, 0x%x" % (sW2K, ds * 8192)]
                if ds:
                    pre += ["s_add_u32 s%d, s%d, 128" % (sXO, sXO), "s_and_b32 s%d, s%d, 0x380" % (sXO, sXO)]
                th.append((pre, lambda: tokA[ds].append(
                    I("buffer_load_dwordx4 v%d, s[%d:%d], s%d offen lds" % (vXS0, R_X, R_X + 3, sXO)))))
                th.append(([], lambda: tokA[ds].append(
                    I("buffer_load_dwordx4 v%d, s[%d:%d], s%d offen offset:1024 lds" % (vXS1, R_X, R_X + 3, sXO)))))
            tokW[ks] = []
            for p in range(2):
                pre = []
                if p == 0:
                    if ks:
                        pre.append("s_add_u32 s%d, s%d, %d" % (sWO_, sWO_, 32 * 3072))
                        if ks % 2 == 0:
                            pre += ["s_cmp_eq_u32 s%d, %d" % (sWO_, 512 * 3072), "s_cselect_b32 s%d, 0, s%d" % (sWO_, sWO_)]
                    pre.append("s_add_u32 m0, s%d, 0x%x" % (sRB, (ks % NR) * 8192))
                th.append((pre, lambda p=p: tokW[ks].append(I("buffer_load_dwordx4 v%d, s[%d:%d], s%d offen offset:%d lds" % (
                    vWS, R_WQ, R_WQ + 3, sWO_, (p + 1) * 1024)))))
            return th

        tokQ = []

        def rq_base(ks):
            return L_PACK + ks * 4096 if ks < 4 else L_WQ + (ks - 4) * 4096

        def q_thunk(ks):
            pre = ["s_add_u32 s%d, s%d, %d" % (sWO_, sWO_, 32 * 3072)]
            if ks % 2 == 0:
                pre += ["s_cmp_eq_u32 s%d, %d" % (sWO_, 512 * 3072), "s_cselect_b32 s%d, 0, s%d" % (sWO_, sWO_)]
            pre.append("s_add_u32 m0, s%d, 0x%x" % (sW1K, rq_base(ks)))
            return (pre, lambda: tokQ.append(I("buffer_load_dwordx4 v%d, s[%d:%d], s%d offen lds" % (vWS, R_WQ, R_WQ + 3, sWO_))))
        self.tokQ, self.rq_base = tokQ, rq_base

        def issue_now(ks):
            for pre, th in issue_thunks(ks):
                for t in pre:
                    I(t)
                th()

        if env("T0", 1):
            self.srd(R_PK, S_X, 2048 * 1024)
            for ptr, srd, v, mask in ((S_WQ, R_WQ, tw, 0xfff), (S_X, R_PK, tx, 3)):
                I("s_sub_u32 s%d, 0x180, s%d" % (sT, ptr))
                I("s_and_b32 s%d, s%d, 0x380" % (sT, sT))
                I("s_mov_b64 exec, 0x%x" % mask)
                I("buffer_load_dword v%d, v%d, s[%d:%d], s%d offen" % (vDUM, v, srd, srd + 3, sT))
            I("s_mov_b64 exec, -1")
        NFIRST = env("NFIRST", 4)
        for ks in range(NFIRST):
            issue_now(ks)
        if env("EARLYP", 0):
            ptk = self.pack_load(l3, q0)
        self.stamp("first")
        I("s_getreg_b32 s%d, hwreg(HW_REG_XCC_ID, 0, 4)" % sXCC)
        I("s_mov_b32 s%d, 0x100000" % sSPIN)
        self.srd(R_WS, S_WS, WS_SIZE)
        self.srd(R_OUT, S_OUT, 2048 * 1024)
        I("v_lshlrev_b32 v%d, 4, v0" % vL16)
        I("v_lshlrev_b32 v%d, 2, v0" % vL4)
        I("s_lshl_b32 s%d, s%d, 10" % (sW1K, sW))
        I("s_lshl_b32 s%d, s%d, 2" % (sT, sC))
        I("s_add_u32 s%d, s%d, s%d" % (sT, sT, sW))
        I("s_mul_i32 s%d, s%d, %d" % (sKV, sT, KVH))
        I("s_add_u32 s%d, s%d, 0x%x" % (sKV, sKV, WS_KV + KB0))
        I("v_mov_b32 v%d, 0" % vC2)
        I("s_and_b32 s%d, s%d, 15" % (sT + 1, sRG))
        I("s_mul_i32 s%d, s%d, %d" % (sT + 1, sT + 1, KVH // 16))
        I("s_add_u32 s%d, s%d, s%d" % (sT + 1, sT + 1, sKV))
        I("s_lshr_b32 s%d, s%d, 4" % (sT + 2, sRG))
        I("s_mul_i32 s%d, s%d, %d" % (sT + 2, sT + 2, KVL))
        I("s_add_u32 s%d, s%d, s%d" % (sT + 1, sT + 1, sT + 2))
        I("v_mov_b32 v%d, 0" % vPOLL)
        I("v_mov_b32 v%d, 0" % (vPOLL + 1))
        I("v_lshlrev_b32 v%d, 3, v0" % (vT + 4))
        assert KVH % 128 == 0 and KVH // 128 <= 64
        mask = (1 << (KVH // 128)) - 1
        I("s_mov_b32 exec_lo, 0x%x" % (mask & 0xffffffff))
        I("s_mov_b32 exec_hi, 0x%x" % (mask >> 32))
        ztok = I("buffer_store_dwordx2 %s, v%d, %s, s%d offen sc1" % (p2(vPOLL), vT + 4, self.ws(), sT + 1))
        I("s_mov_b64 exec, -1")
        I("s_mul_i32 s%d, s%d, %d" % (sPK, sT, PKW))
        I("s_lshl_b32 s%d, s%d, 7" % (sFL, sRG))
        I("s_lshl_b32 s%d, s%d, 12" % (sR1, sC))
        I("s_add_u32 s%d, s%d, 0x%x" % (sR1, sR1, WS_R2))
        I("s_add_u32 s%d, s%d, 0x%x" % (sFL, sFL, WS_FL))
        I("s_lshl_b32 s%d, s%d, 2" % (sMYF, sT))
        I("s_add_u32 s%d, s%d, s%d" % (sMYF, sMYF, sFL))
        I("s_lshl_b32 s%d, s%d, 14" % (sSTC, sRG))
        I("s_add_u32 s%d, s%d, 0x%x" % (sSTC, sSTC, WS_ST))
        I("s_lshl_b32 s%d, s%d, 8" % (sSTP, sT))
        I("s_add_u32 s%d, s%d, s%d" % (sSTP, sSTP, sSTC))
        I("s_add_u32 s%d, s%d, s%d" % (sSTC, sSTC, sW2K))
        I("s_mul_i32 s%d, s%d, %d" % (sRGH, sRG, HSZ))
        I("s_lshl_b32 s%d, s%d, 12" % (sSTO, sC))
        I("s_lshl_b32 s%d, s%d, 9" % (sT + 1, sW))
        I("s_add_u32 s%d, s%d, s%d" % (sSTO, sSTO, sT + 1))
        I("s_lshl_b32 s%d, s%d, 5" % (sOUT, sT))
        I("s_mul_i32 s%d, s%d, 3" % (sT, sT))
        for t in range(3):
            I("s_add_u32 s%d, s%d, %d" % (sT + 1, sT, t))
            I("s_lshr_b32 s%d, s%d, 2" % (sT + 2, sT + 1))
            I("s_lshl_b32 s%d, s%d, 12" % (sT + 2, sT + 2))
            I("s_and_b32 s%d, s%d, 3" % (sT + 3, sT + 1))
            I("s_lshl_b32 s%d, s%d, 9" % (sT + 3, sT + 3))
            I("s_add_u32 s%d, s%d, s%d" % (sT + 2, sT + 2, sT + 3))
            I("s_add_u32 s%d, s%d, s%d" % (sT + 2, sT + 2, sRGH))
            I("s_cmp_lt_u32 s%d, 86" % (sT + 1))
            I("s_cselect_b32 s%d, s%d, 0x%x" % (sH0 + t, sT + 2, OOB))
            I("s_cselect_b32 s%d, 0, 0x%x" % (sT + 2, OOB))
            I("v_add_u32 v%d, s%d, v%d" % (vW1 + t, sT + 2, vL16))
        I("v_add_u32 v%d, 0x10000, v%d" % (vA1, vL16))
        I("v_add_u32 v%d, s%d, v%d" % (vDMA, sW1K, vL16))
        I("v_add_u32 v%d, s%d, v%d" % (vDM2, sW2K, vL16))
        I("s_lshr_b32 s%d, s%d, 1" % (sT + 1, sW))
        I("s_add_u32 s%d, s%d, s%d" % (sRO2, sROT, sT + 1))
        I("s_and_b32 s%d, s%d, 7" % (sRO2, sRO2))
        I("s_lshl_b32 s%d, s%d, 12" % (sRO2, sRO2))
        I("s_lshl_b32 s%d, s%d, 12" % (sT + 1, sT + 1))
        I("s_sub_u32 s%d, s%d, s%d" % (sRB2, sRG64, sT + 1))
        I("v_and_b32 v%d, 0x7c, v%d" % (vFL, vL4))
        I("v_lshrrev_b32 v%d, 1, v%d" % (vT + 4, g_))
        I("v_lshlrev_b32 v%d, 8, v%d" % (vT + 4, vT + 4))
        I("v_lshl_add_u32 v%d, v%d, 4, v%d" % (vT + 4, i_, vT + 4))
        I("v_and_b32 v%d, 1, v%d" % (vT + 5, g_))
        I("v_lshl_add_u32 v%d, v%d, 11, v%d" % (vST, vT + 5, vT + 4))
        I("v_lshlrev_b32 v%d, 4, v%d" % (vSTA, g_))
        I("v_add_u32 v%d, 0x%x, v%d" % (vSTA, L_STA, vSTA))
        I("v_lshlrev_b32 v%d, 3, v%d" % (vSTQ, i_))
        I("v_add_u32 v%d, 0x%x, v%d" % (vSTQ, L_STA + 512, vSTQ))
        I("s_lshl_b32 s%d, s%d, 6" % (sT, sW))
        I("s_add_u32 s%d, s%d, 0x%x" % (sT, sT, L_STA))
        I("v_lshlrev_b32 v%d, 2, v%d" % (vSW, i_))
        I("v_add_u32 v%d, s%d, v%d" % (vSW, sT, vSW))
        I("v_lshrrev_b32 v%d, 3, v%d" % (vT + 4, i_))
        I("v_lshlrev_b32 v%d, 10, v%d" % (vT + 4, vT + 4))
        I("v_and_b32 v%d, 7, v%d" % (vT + 5, i_))
        I("v_lshl_add_u32 v%d, v%d, 7, v%d" % (vT + 4, vT + 5, vT + 4))
        I("v_lshrrev_b32 v%d, 1, v%d" % (vT + 5, i_))
        I("v_xor_b32 v%d, v%d, v%d" % (vT + 5, vT + 5, g_))
        I("v_lshl_add_u32 v%d, v%d, 4, v%d" % (vX0, vT + 5, vT + 4))
        I("v_xor_b32 v%d, 64, v%d" % (vX1, vX0))
        I("v_add_u32 v%d, s%d, v%d" % (vOW0, sW2K, vX0))
        I("v_add_u32 v%d, s%d, v%d" % (vOW1, sW2K, vX1))
        I("v_bfe_u32 v%d, v0, 2, 2" % (vT + 4))
        I("v_bfe_u32 v%d, v0, 3, 1" % (vT + 5))
        I("v_lshlrev_b32 v%d, 1, v%d" % (vT + 5, vT + 5))
        I("v_bfe_u32 v%d, v0, 4, 1" % (vT + 10))
        I("v_lshl_add_u32 v%d, v%d, 2, v%d" % (vT + 5, vT + 10, vT + 5))
        I("v_bfe_u32 v%d, v0, 1, 1" % (vT + 10))
        I("v_xor_b32 v%d, v%d, v%d" % (vT + 5, vT + 5, vT + 10))
        I("v_lshlrev_b32 v%d, 4, v%d" % (vT + 5, vT + 5))
        I("v_lshl_add_u32 v%d, v%d, 7, v%d" % (tc, vT + 4, vT + 5))
        I("v_and_b32 v%d, 1, v0" % (vT + 10))
        I("v_lshl_add_u32 v%d, v%d, 3, v%d" % (tc, vT + 10, tc))
        I("s_lshl_b32 s%d, s%d, 5" % (sT + 1, sW))
        I("v_xor_b32 v%d, s%d, v%d" % (vT + 4, sT + 1, tc))
        I("v_lshl_add_u32 v%d, v%d, 10, v%d" % (vTQ, g_, vT + 4))
        I("v_add_u32 v%d, 0x%x, v%d" % (vTQ, L_WQ, vTQ))
        I("v_lshl_add_u32 v%d, v%d, 11, v%d" % (vT + 4, g_, vT + 4))
        I("v_add_u32 v%d, 0x%x, v%d" % (vTR, L_RING, vT + 4))
        for k in range(4):
            I("v_mov_b32 v%d, 0x3f803f80" % (vONE + k))
        I("v_mov_b32 v%d, 0x3fb8aa3b" % vK)
        I("v_mov_b32 v%d, 0x358637bd" % (vK + 1))
        I("s_mul_i32 s%d, s%d, 2560" % (sT, sW))
        I("s_add_u32 s%d, s%d, 0x%x" % (sT, sT, L_KVI))
        I("v_add_u32 v%d, s%d, v%d" % (vKVL, sT, vL4))
        for r in range(4):
            I("v_add_u32 v%d, %d, v0" % (vT + 4, 64 * r))
            I("v_mul_u32_u24 v%d, 4370, v%d" % (vT + 5, vT + 4))
            I("v_lshrrev_b32 v%d, 16, v%d" % (vT + 5, vT + 5))
            I("v_add_u32 v%d, v%d, v%d" % (vT + 4, vT + 4, vT + 5))
            I("v_lshlrev_b32 v%d, 2, v%d" % (vT + 4, vT + 4))
            I("v_add_u32 v%d, s%d, v%d" % (vPOS + r, sT, vT + 4))
        I("v_lshrrev_b32 v%d, 1, v%d" % (vT + 4, g_))
        I("v_add_u32 v%d, v%d, v%d" % (vT + 4, vT + 4, g_))
        I("v_lshlrev_b32 v%d, 4, v%d" % (vT + 4, vT + 4))
        I("s_add_u32 s%d, s%d, %d" % (sT, sT, 276 * 4))
        I("v_add_u32 v%d, s%d, v%d" % (vZP, sT, vT + 4))
        I("v_cmp_eq_u32 vcc, 15, v%d" % i_)
        I("v_cndmask_b32 v%d, 0, 1.0, vcc" % (vT + 4))
        b.wait(lg=0)
        for k in range(5):
            I("ds_write_b32 v%d, v%d offset:%d" % (vKVL, vT + 4, 256 * k))
        I("s_xor_b32 s%d, s%d, 0x80000000" % (sTAG, sEP))
        I("s_and_b32 s%d, s%d, 0xfffffff0" % (sTAG, sTAG))
        I("s_mov_b32 s%d, 0x358637bd" % sEPS)
        for r, val in ((sM1, 0x22222222), (sM2, 0x44444444), (sM3, 0x88888888)):
            I("s_mov_b32 s%d, 0x%x" % (r, val))
            I("s_mov_b32 s%d, 0x%x" % (r + 1, val))
        I("s_mov_b32 s%d, 0x00f0000f" % sDIAG)
        I("s_mov_b32 s%d, 0xf0000f00" % (sDIAG + 1))
        I("v_lshlrev_b32 v%d, 10, v%d" % (vT + 4, g_))
        I("s_lshl_b32 s%d, s%d, 12" % (sT, sW))
        I("v_add_u32 v%d, s%d, v%d" % (vT + 4, sT, vT + 4))
        for t in range(4):
            I("v_xor_b32 v%d, %d, v%d" % (vCS1 + 4 + t, 32 * t, tc))
            I("v_add_u32 v%d, v%d, v%d" % (vCS1 + 4 + t, vCS1 + 4 + t, vT + 4))
            I("v_add_u32 v%d, 0x%x, v%d" % (vCS1 + 4 + t, L_PACK, vCS1 + 4 + t))
        I("v_lshlrev_b32 v%d, 10, v%d" % (vT + 14, i_))
        I("v_lshl_add_u32 v%d, v%d, 3, v%d" % (vT + 14, g_, vT + 14))
        I("s_add_u32 s%d, s%d, s%d" % (sT, sTAG, sXCC))
        I("v_mov_b32 v%d, s%d" % (vT + 15, sT))
        for ks in range(NFIRST, env('NINIT', 6)):
            issue_now(ks)
        nxt = env('NINIT', 6)
        nq = 0
        if not env("EARLYP", 0):
            ptk = self.pack_load(l3, q0)
        I("s_mov_b64 exec, 1")
        I("buffer_load_dword v%d, off, %s, s%d sc1" % (vDUM, self.ws(), sFL))
        I("s_mov_b64 exec, -1")
        self.stamp("setup")

        tmp = [self.free.pop() for _ in range(6)]
        assert all(s[0] == "v" for s in tmp)
        cK, cV = tmp[4][1], tmp[5][1]
        res_toks = []
        KZ = env("KZ", 2)
        KP, KANN, KI, KC = env("KP", 4), env("KANN", 9), env("KI", 12), env("KC", 99)
        for ks in range(17):
            fill, dma, nrd = [], [], 0
            if ks < 16:
                b.wait(tokW[ks], tokA[ks // 2])
                if ks == KZ:
                    b.wait(ztok)
                if ks == KANN:
                    b.wait(pst)
                I("s_barrier")
                if ks == 0:
                    self.stamp("w0")
                elif env("LSTAMP", 0):
                    self.stamp("it%d" % ks)
                if ks == KC:
                    self.r1_check()
                    self.bg_w = len(self.free) - 2 * (16 - ks) - 16
                    self.last_bg = self.clock
                if ks in (KZ, KANN):
                    lx = b.newlabel("Lann")
                    I("s_cmp_lg_u32 s%d, 0" % sW)
                    I("s_cbranch_scc1 %s" % lx)
                    I("s_lshl_b32 s%d, s%d, 7" % (sT, sRG))
                    I("s_add_u32 s%d, s%d, s%d" % (sT, sT, sR1))
                    if ks == KANN:
                        I("s_add_u32 s%d, s%d, 0x%x" % (sT, sT, WS_R3 - WS_R2))
                    I("s_mov_b64 exec, 1")
                    self.Inc("buffer_store_dword v%d, off, %s, s%d sc1" % (vT + 15, self.ws(), sT))
                    I("s_mov_b64 exec, -1")
                    b.label(lx)
                for p in range(2):
                    s = self.free.pop(0)
                    self.wslot[("qkv", 0, 2 * ks + p)] = (s, None)
                    for hh in range(2):
                        fill.append(lambda s=s, hh=hh, p=p: I("ds_read_b64_tr_b16 %s, v%d offset:%d" % (
                            vr(s[1] + 2 * hh, 2, s[0]), vTR, (ks % NR) * 8192 + p * 1024 + hh * 512)))
                fb = vAF + (ks & 1) * 20
                ds, h = ks // 2, ks & 1
                for rt in range(4):
                    fill.append(lambda rt=rt: I("ds_read_b128 %s, v%d offset:%d" % (
                        vr(fb + 4 * rt, 4), (vX0, vX1)[h], ds * 8192 + rt * 2048)))
                fill.append(lambda: I("ds_read_b128 %s, v%d offset:%d" % (vr(fb + 16, 4), (vOW0, vOW1)[h], ds * 8192)))
                nrd = len(fill)
                k2 = 0
                while nxt < min(16, ks + NR) and k2 < 2:
                    dma += issue_thunks(nxt)
                    nxt += 1
                    k2 += 1
                if nxt == 16 and not dma and ks > KP + 1:
                    while nq < 16 and len(dma) < env("QPER", 3) and (nq < 4 or 10 + (nq - 4) // 2 < ks):
                        dma.append(q_thunk(nq))
                        nq += 1
                if ks == KI:
                    fill.append(self.r1_issue)
                if ks == env("KOX", 15) and FT:
                    def tch():
                        self.touch_ox(0)
                        I("v_and_b32 v%d, 1, v0" % vT)
                        I("v_lshrrev_b32 v%d, 1, v0" % (vT + 1))
                        I("v_lshlrev_b32 v%d, 13, v%d" % (vT + 1, vT + 1))
                        I("v_lshl_add_u32 v%d, v%d, 7, v%d" % (vT + 5, vT, vT + 1))
                        I("s_mov_b64 exec, 15")
                        I("buffer_load_dword v%d, v%d, %s, s%d offen sc1" % (vDUM, vT + 5, self.ws(), sSTP))
                        I("s_mov_b64 exec, -1")
                    fill.append(tch)
                if ks == KP:
                    def prd():
                        b.wait(ptk)
                        for t in range(4):
                            for hh in range(2):
                                I("ds_read_b64_tr_b16 %s, v%d offset:%d" % (p2(tmp[t][1] + 2 * hh), vCS1 + 4 + t, hh * 512))
                    fill.append(prd)
            mfs = []
            if ks >= 1:
                k1 = ks - 1
                fb1 = vAF + (k1 & 1) * 20
                c0 = "0" if k1 == 0 else None
                wk, wv = [slot_r(self.wslot[("qkv", 0, k)][0]) for k in (2 * k1, 2 * k1 + 1)]
                one = vr(vONE, 4)
                for rt in range(4):
                    mfs.append(self.mf(vACC + 4 * rt, vr(fb1 + 4 * rt, 4), wk, c0))
                    mfs.append(self.mf(vACC + 16 + 4 * rt, vr(fb1 + 4 * rt, 4), wv, c0))
                own = vr(fb1 + 16, 4)
                mfs += [self.mf(vS1, one, own, c0), self.mf(vS2, own, own, c0),
                        self.mf(cK, one, wk, c0), self.mf(cV, one, wv, c0)]
            rds, extra = fill[:nrd], fill[nrd:]
            for _ in range(min(3, len(rds))):
                rds.pop(0)()
            while mfs:
                mfs.pop(0)()
                if rds:
                    for _ in range(min(2, len(rds))):
                        rds.pop(0)()
                    if len(rds) <= 2 and dma and dma[0][0]:
                        I(dma[0][0].pop(0))
                elif dma:
                    if dma[0][0]:
                        while dma[0][0]:
                            I(dma[0][0].pop(0))
                    else:
                        dma.pop(0)[1]()
                elif extra:
                    extra.pop(0)()
            for f in rds:
                f()
            for pre, th in dma:
                for t in pre:
                    I(t)
                th()
            for f in extra:
                f()
            b.wait(lg=0)
            if ks == KP:
                pst = [I("buffer_store_dwordx4 %s, v%d, %s, s%d offen sc1" % (slot_r(tmp[t]), vL16, self.ws(), 80 + t))
                       for t in range(4)]
        I("s_sub_u32 s%d, s%d, s%d" % (sT, sC, sROT))
        I("s_and_b32 s%d, s%d, 7" % (sT, sT))
        I("s_lshl_b32 s%d, s%d, 13" % (sT, sT))
        I("v_lshrrev_b32 v%d, 4, v0" % vT)
        I("v_lshrrev_b32 v%d, 5, v0" % (vT + 1))
        I("v_xor_b32 v%d, v%d, v%d" % (vT + 1, vT + 1, vT))
        I("s_lshl_b32 s%d, s%d, 1" % (sT + 1, sW))
        I("v_xor_b32 v%d, s%d, v%d" % (vT + 1, sT + 1, vT + 1))
        I("v_lshlrev_b32 v%d, 4, v%d" % (vT + 1, vT + 1))
        I("v_xor_b32 v%d, v%d, v%d" % (vT + 1, vT + 1, vX0))
        I("v_and_b32 v%d, 1, v%d" % (vT, vT))
        I("v_lshl_add_u32 v%d, v%d, 3, v%d" % (vT + 1, vT, vT + 1))
        I("v_add_u32 v%d, s%d, v%d" % (vT + 1, sT, vT + 1))
        res = [I("ds_read_b64 %s, v%d offset:%d" % (p2(vS1 + 8 + 0) if False else p2(vACC + 32 + 2 * rt), vT + 1, rt * 2048)) for rt in range(4)]
        I("v_mov_b32 v%d, v%d" % (vOA, vT + 14))
        self.bg_w = 0
        self.stamp("kvpass")
        if KC > 16:
            self.r1_check()
        self.stats_startup()
        while nq < 16:
            pre, th = q_thunk(nq)
            for t in pre:
                I(t)
            th()
            nq += 1
        t1 = []
        for rt in range(4):
            t1.append(I("ds_read_b128 %s, v%d offset:%d" % (vr(vAF + 4 * rt, 4), vSTA, rt * 64)))
            t1.append(I("ds_read_b128 %s, v%d offset:%d" % (vr(vAF + 16 + 4 * rt, 4), vSTA, 256 + rt * 64)))
        for rt in range(4):
            t1.append(I("ds_read_b64 %s, v%d offset:%d" % (p2(vAB + 2 * rt), vSTQ, rt * 128)))
        for k in range(2):
            I("v_mov_b32 v%d, v%d" % (vCSK + k, cK))
            I("v_mov_b32 v%d, v%d" % (vCSV + k, cV))
        self.free += tmp
        I("v_add_u32 v%d, s%d, v%d" % (vSB, sW2K, vL4))
        I("v_add_u32 v%d, 0x%x, v%d" % (vEX, L_EX, vL4))
        I("s_lshl_b32 s%d, s%d, 8" % (sT, sW))
        I("v_add_u32 v%d, s%d, v%d" % (vSW, sT, vEX))
        I("v_and_b32 v%d, 15, v0" % vT)
        I("v_lshrrev_b32 v%d, 5, v0" % (vT + 1))
        I("v_lshlrev_b32 v%d, 6, v%d" % (vT + 1, vT + 1))
        I("v_lshl_add_u32 v%d, v%d, 2, v%d" % (vSWR, vT, vT + 1))
        I("s_add_u32 s%d, s%d, 0x%x" % (sT, sT, L_STA))
        I("v_add_u32 v%d, s%d, v%d" % (vSWR, sT, vSWR))
        for rt in range(4):
            for k in range(2):
                s = vACC + 32 + 2 * rt + k
                I("v_lshlrev_b32 v%d, 16, v%d" % (vX + 4 * rt + 2 * k, s))
                I("v_and_b32 v%d, 0xffff0000, v%d" % (vX + 4 * rt + 2 * k + 1, s))
        early = env("R3EARLY", 0)
        I("v_and_b32 v%d, 0xfff, v%d" % (vCS1, vTCH))
        I("s_add_u32 s%d, s%d, 0x%x" % (sR1, sR1, WS_R3 - WS_R2))
        self.r3_tok = I("buffer_load_dword v%d, v%d, %s, s%d offen sc1" % (vPOLL, vCS1, self.ws(), sR1))
        b.wait(t1)
        I("s_lshl_b32 s%d, s%d, 8" % (sT, sW))
        I("v_add_u32 v%d, s%d, v%d" % (vSTA, sT, vSTA))
        for hf in range(2):
            self.kv_epilogue(hf, vAF + 8 * hf, vAF + 16 + 8 * hf)

    def pack_load(self, l3, q0):
        b = self.b
        I = b.I
        dst = 80
        uid, src, strd = sT, sT + 1, sT + 2
        I("s_lshl_b32 s%d, s%d, 2" % (uid, sRG))
        I("s_add_u32 s%d, s%d, s%d" % (uid, uid, sW))
        lw1, lw2, lnone, lgo = [b.newlabel("Lpk") for _ in range(4)]
        I("s_mul_i32 s88, s%d, %d" % (sC, 4 * PKW))
        I("s_mov_b32 s%d, 0x20000" % (R_PK + 3))

        def setsrd(ptr, size, stride):
            I("s_mov_b32 s%d, s%d" % (R_PK, ptr))
            I("s_and_b32 s%d, s%d, 0xffff" % (R_PK + 1, ptr + 1))
            I("s_mov_b32 s%d, %d" % (R_PK + 2, size))
            I("s_movk_i32 s%d, %d" % (strd, stride))

        def simple(f0):
            I("s_lshl_b32 s%d, s%d, 15" % (src, uid))
            I("s_lshl_b32 s89, s%d, 7" % sC)
            I("s_add_u32 s%d, s%d, s89" % (src, src))
            I("s_add_u32 s89, s%d, %d" % (uid, f0))
            I("s_lshl_b32 s89, s89, 10")
            I("s_add_u32 s88, s88, s89")
            for t in range(4):
                I("s_add_u32 s%d, s88, %d" % (dst + t, t * PKW))
            I("s_branch %s" % lgo)

        I("s_cmp_ge_u32 s%d, 16" % uid)
        I("s_cbranch_scc1 %s" % lw1)
        setsrd(S_WO, 512 * 1024, 1024)
        simple(F_WO)
        b.label(lw1)
        I("s_cmp_ge_u32 s%d, 64" % uid)
        I("s_cbranch_scc1 %s" % lw2)
        I("s_sub_u32 s%d, s%d, 16" % (uid, uid))
        I("s_mul_i32 s89, s%d, 43" % uid)
        I("s_lshr_b32 s89, s89, 7")
        I("s_mul_i32 s92, s89, 3")
        I("s_sub_u32 s92, s%d, s92" % uid)
        setsrd(S_W1, 512 * 2752, 2752)
        I("s_mul_i32 s%d, s89, %d" % (src, 32 * 2752))
        I("s_mul_i32 s79, s%d, 384" % sC)
        I("s_add_u32 s%d, s%d, s79" % (src, src))
        I("s_lshl_b32 s79, s92, 7")
        I("s_add_u32 s%d, s%d, s79" % (src, src))
        I("s_mul_i32 s89, s89, 3072")
        I("s_add_u32 s88, s88, s89")
        I("s_add_u32 s88, s88, %d" % (F_W1 * 1024))
        for t in range(4):
            I("s_lshl_b32 s79, s92, 2")
            I("s_add_u32 s79, s79, %d" % t)
            I("s_mul_i32 s89, s79, 43")
            I("s_lshr_b32 s89, s89, 7")
            I("s_mul_i32 s%d, s89, %d" % (dst + t, PKW - 3072))
            I("s_lshl_b32 s79, s79, 10")
            I("s_add_u32 s%d, s%d, s79" % (dst + t, dst + t))
            I("s_add_u32 s%d, s%d, s88" % (dst + t, dst + t))
        I("s_mul_i32 s79, s%d, 3" % sC)
        I("s_add_u32 s79, s79, s92")
        I("s_cmp_ge_u32 s79, 22")
        I("s_cbranch_scc1 %s" % lnone)
        I("s_branch %s" % lgo)
        b.label(lw2)
        I("s_cmp_ge_u32 s%d, 107" % uid)
        I("s_cbranch_scc1 %s" % lnone)
        I("s_sub_u32 s%d, s%d, 64" % (uid, uid))
        setsrd(S_W2, 1376 * 1024, 1024)
        simple(F_W2)
        b.label(lnone)
        setsrd(S_WQ, 0, 1024)
        I("s_mov_b32 s%d, 0" % src)
        for t in range(4):
            I("s_mov_b32 s%d, 0x%x" % (dst + t, OOB))
        b.label(lgo)
        I("v_mul_lo_u32 v%d, v%d, s%d" % (vT + 4, l3, strd))
        I("v_add_u32 v%d, v%d, v%d" % (vT + 10, vT + 4, q0))
        I("v_xor_b32 v%d, 64, v%d" % (vT + 5, q0))
        I("v_add_u32 v%d, v%d, v%d" % (vT + 11, vT + 4, vT + 5))
        I("s_lshl_b32 s%d, s%d, 3" % (strd, strd))
        I("s_lshl_b32 s89, s%d, 12" % sW)
        I("s_add_u32 m0, s89, 0x%x" % L_PACK)
        toks = []
        for q in range(4):
            toks.append(I("buffer_load_dwordx4 v%d, s[%d:%d], s%d offen lds" % (vT + 10 + (q & 1), R_PK, R_PK + 3, src)))
            if q < 3:
                I("s_add_u32 s%d, s%d, s%d" % (src, src, strd))
                I("s_add_u32 m0, m0, 1024")
        return toks

    def r1_issue(self):
        I = self.b.I
        a = vCS1 + 2
        I("v_and_b32 v%d, 7, v0" % a)
        I("v_subrev_u32 v%d, s%d, v%d" % (a, sC, a))
        I("v_lshlrev_b32 v%d, 12, v%d" % (a, a))
        I("s_lshl_b32 s%d, s%d, 7" % (sT, sRG))
        I("s_add_u32 s%d, s%d, s%d" % (sT, sT, sR1))
        I("v_add_u32 v%d, s%d, v%d" % (a, sT, a))
        I("v_add_u32 v%d, s%d, v%d" % (vT + 5, sR1, vTCH))
        I("v_cmp_gt_u32 vcc, 32, v0")
        I("v_cndmask_b32 v%d, v%d, v%d, vcc" % (a, a, vT + 5))
        self.r1_tok = I("buffer_load_dword v%d, v%d, %s, 0 offen sc1" % (vPOLL, a, self.ws()))

    def r1_check(self):
        b = self.b
        I = b.I
        lp, ld, lc = b.newlabel("Ltag"), b.newlabel("Ltagd"), b.newlabel("Ltagc")
        b.wait(self.r1_tok)
        I("s_branch %s" % lc)
        b.label(lp)
        self.Inc("buffer_load_dword v%d, v%d, %s, 0 offen sc1" % (vPOLL, vCS1 + 2, self.ws()))
        I("s_waitcnt vmcnt(0)")
        b.label(lc)
        I("v_subrev_u32 v%d, s%d, v%d" % (vPOLL, sTAG, vPOLL))
        I("v_cmp_gt_u32 vcc, 16, v%d" % vPOLL)
        I("s_cmp_eq_u64 vcc, exec")
        I("s_cbranch_scc1 %s" % ld)
        self.spin_guard(lp)
        b.label(ld)
        I("v_cmp_eq_u32 vcc, s%d, v%d" % (sXCC, vPOLL))
        I("s_cmp_eq_u32 vcc_hi, -1")
        I("s_cselect_b32 s%d, 1, 0" % sFAST)

    def touch_w(self, f0, m):
        I = self.b.I
        I("s_mul_i32 s%d, s%d, %d" % (sTC, sQ, m * 1024))
        I("s_add_u32 s%d, s%d, s%d" % (sTC, sTC, sPK))
        I("s_add_u32 s%d, s%d, %d" % (sTC, sTC, f0 * 1024))
        mask = (1 << (8 * m)) - 1
        I("s_mov_b32 exec_lo, 0x%x" % (mask & 0xffffffff))
        I("s_mov_b32 exec_hi, 0x%x" % (mask >> 32))
        I("buffer_load_dword v%d, v%d, %s, s%d offen sc1" % (vDUM, vTCH, self.ws(), sTC))
        I("s_mov_b64 exec, -1")

    def touch_ox(self, layer):
        I = self.b.I
        I("s_and_b32 s%d, s%d, 1" % (sT + 2, sW))
        I("s_lshl_b32 s%d, s%d, 15" % (sT, sT + 2))
        I("s_add_u32 s%d, s%d, s%d" % (sT, sT, sRG64))
        I("s_add_u32 s%d, s%d, 0x%x" % (sT, sT, self.buf("X", 2 * layer)))
        I("s_mul_i32 s%d, s%d, %d" % (sT + 1, sT + 2, self.hstride("O")))
        I("s_add_u32 s%d, s%d, s%d" % (sT + 1, sT + 1, self.rgs("O")))
        I("s_add_u32 s%d, s%d, 0x%x" % (sT + 1, sT + 1, self.buf("O", layer)))
        I("s_bitcmp1_b32 s%d, 1" % sW)
        I("s_cselect_b32 s%d, s%d, s%d" % (sT, sT, sT + 1))
        I("s_lshl_b32 s%d, s%d, 12" % (sT + 1, sC))
        I("s_add_u32 s%d, s%d, s%d" % (sT, sT, sT + 1))
        I("s_mov_b32 exec_hi, 0")
        I("buffer_load_dword v%d, v%d, %s, s%d offen sc1" % (vDUM, vTCH, self.ws(), sT))
        I("s_mov_b32 exec_hi, -1")

    def touch_h(self, layer):
        I = self.b.I
        I("s_lshr_b32 s%d, s%d, 1" % (sT + 1, sW))
        I("s_mul_i32 s%d, s%d, %d" % (sT + 1, sT + 1, HSZ // 2 - 12288))
        I("s_mul_i32 s%d, s%d, 6144" % (sT + 2, sW))
        I("s_add_u32 s%d, s%d, s%d" % (sT + 1, sT + 1, sT + 2))
        I("s_mul_i32 s%d, s%d, 12288" % (sT + 2, sC))
        I("s_add_u32 s%d, s%d, s%d" % (sT + 1, sT + 1, sT + 2))
        I("s_add_u32 s%d, s%d, s%d" % (sT + 1, sT + 1, sRGH))
        I("s_add_u32 s%d, s%d, 0x%x" % (sT + 1, sT + 1, self.buf("H", layer)))
        I("s_cmp_lt_u32 s%d, 7" % sC)
        I("s_cselect_b32 s%d, s%d, 0x%x" % (sT + 1, sT + 1, OOB))
        I("s_mov_b32 exec_hi, 0xffff")
        I("buffer_load_dword v%d, v%d, %s, s%d offen sc1" % (vDUM, vTCH, self.ws(), sT + 1))
        I("s_mov_b32 exec_hi, -1")

    def kv_items(self, hf, seqs):
        items = []
        for ks in range(16):
            c0 = "0" if ks == 0 else None
            for r in range(2):
                def mfs(fr, ks=ks, r=r, c0=c0):
                    kk, kv_ = ("qkv", 0, 2 * ks), ("qkv", 0, 2 * ks + 1)
                    th = [self.mf(vACC + 8 * hf + 4 * r, fr, self.w_get(kk), c0),
                          self.mf(vACC + 16 + 8 * hf + 4 * r, fr, self.w_get(kv_), c0)]
                    if hf == 1 and r == 1:
                        th.append(lambda: (self.w_release(kk), self.w_release(kv_)))
                    return th
                a, off = self.frag_addr(seqs[ks // 2], r, ks & 1)
                items.append((a, off, seqs[ks // 2], mfs))
        self.pinned.update(seqs)
        return items

    def kv_finish(self, hf, between=None):
        b = self.b
        rd = [b.I("ds_read_b128 %s, v%d offset:%d" % (vr(vAF + 4 * k, 4), vSTA, (k & 1) * 64 + (k >> 1) * 128)) for k in range(4)]
        if between:
            between()
        b.wait(rd)
        self.kv_epilogue(hf, vAF, vAF + 8)

    def attention(self, layer, xseqs):
        b = self.b
        I = self.I
        KVD, ZD = vS1, vS2
        one = vr(vONE, 4)
        self.bg_w = 0
        for p in range(2):
            c0 = "0" if p == 0 else None
            self.mf(KVD, vr(vACC + 8 * p, 4), vr(vACC + 16 + 8 * p, 4), c0)()
            self.mf(ZD, vr(vACC + 8 * p, 4), one, c0)()
        b.I("s_add_u32 s%d, s%d, %d" % (sKB, sKV, layer * KVL))
        b.I("s_and_b32 s%d, s%d, %d" % (sKB + 1, sRG, NC - 1))
        b.I("s_mul_i32 s%d, s%d, %d" % (sKB + 1, sKB + 1, KCS))
        b.I("s_add_u32 s%d, s%d, s%d" % (sKB + 1, sKB + 1, sKB))
        for r in range(4):
            b.I("ds_write_b32 v%d, v%d" % (vPOS + r, KVD + r))
        b.I("s_mov_b32 exec_lo, 0x00010001")
        b.I("s_mov_b32 exec_hi, 0x00010001")
        b.I("ds_write_b128 v%d, %s" % (vZP, vr(ZD, 4)))
        b.I("s_mov_b64 exec, -1")
        rd = [b.I("ds_read_b32 v%d, v%d offset:%d" % (vT + k, vKVL, 256 * k)) for k in range(5)]
        for k in range(5):
            b.wait(rd[k])
            if k == 4:
                b.I("s_mov_b32 exec_hi, 0xffff")
            b.I("buffer_atomic_add_f32 v%d, v%d, %s, s%d offen offset:%d" % (vT + k, vL4, self.ws(), sKB + 1, k * 256))
        b.I("s_mov_b64 exec, -1")
        self.stamp("atom")
        if layer:
            self.touch_ox(layer)
        else:
            lp, ld, lc = b.newlabel("Lr3"), b.newlabel("Lr3d"), b.newlabel("Lr3c")
            b.wait(self.r3_tok)
            b.I("s_branch %s" % lc)
            b.label(lp)
            self.Inc("buffer_load_dword v%d, v%d, %s, s%d offen sc1" % (vPOLL, vCS1, self.ws(), sR1))
            b.I("s_waitcnt vmcnt(0)")
            b.label(lc)
            b.I("v_subrev_u32 v%d, s%d, v%d" % (vPOLL, sTAG, vPOLL))
            b.I("v_cmp_gt_u32 vcc, 16, v%d" % vPOLL)
            b.I("s_cmp_eq_u64 vcc, exec")
            b.I("s_cbranch_scc1 %s" % ld)
            self.spin_guard(lp)
            b.label(ld)
            self.stamp("r3")
            b.wait(self.tokQ)
            b.I("s_barrier")
        self.w_burst(env("W_AT", [0, 0])[layer])
        self.last_bg = self.clock
        self.bg_w = env("W_Q", [99, 14])[layer]
        items = []
        for ks in range(16):
            ds, h = ks // 2, ks & 1
            c0 = "0" if ks == 0 else None
            def keep(fr):
                self.wq_reg = fr
                return []
            items.append(("tr", self.rq_base(ks) - L_WQ, None, keep))
            for rt in range(4):
                def mfs(fr, ks=ks, rt=rt, c0=c0):
                    w = self.wq_reg
                    th = [self.mf(vACC + 4 * rt, w, fr, c0)]
                    if layer == 0 and rt == 0:
                        th.append(self.mf(vCSQ, w, one, c0))
                    return th
                if layer == 0:
                    items.append(((vX0, vX1)[h], ds * 8192 + rt * 2048, None, mfs))
                else:
                    a, off = self.frag_addr(xseqs[rt >> 1][ds], rt & 1, h)
                    items.append((a, off, None, mfs))
        assert NC == 2
        KD = vACC + 32
        dst = [(KD, KD + 8), (KD + 4, KD + 12)]
        kvl = ["buffer_load_dwordx4 %s, v%d, %s, s%d offen offset:%d sc1" % (vr(dst[c][h], 4), (vL16, vC2)[h], self.ws(), sKB, c * KCS)
               for h in range(2) for c in range(NC)]
        b.I("v_add_u32 v%d, 0x400, v%d" % (vC2, vL16))
        b.I("v_cmp_gt_u32 vcc, 12, v0")
        b.I("v_mov_b32 v%d, 0x%x" % (vT + 8, OOB))
        b.I("v_cndmask_b32 v%d, v%d, v%d, vcc" % (vC2, vT + 8, vC2))
        kp = {}

        def kv_early():
            self.bg_w = 0
            kp["tok"] = [b.I(t) for t in kvl]
        j = env("H_KVP", [79, 99])[layer]
        self.gemm(items, None, 5, {j: [kv_early]})
        self.pinned = set()
        self.mine = self.seq - 1
        PQ = vACC + 16
        for rt in range(4):
            ab = vAB + 2 * rt
            for r in (0, 2):
                u = vT + 2 * ((rt * 2 + r // 2) % 8)
                I("v_pk_fma_f32 %s, %s, %s, %s op_sel:[0,1,1] op_sel_hi:[1,1,1]" % (p2(u), p2(vCSQ + r), p2(ab), p2(vK)))
        for rt in range(4):
            ab = vAB + 2 * rt
            for r in (0, 2):
                q_ = vACC + 4 * rt + r
                u = vT + 2 * ((rt * 2 + r // 2) % 8)
                I("v_pk_fma_f32 %s, %s, %s, %s op_sel:[0,0,0] op_sel_hi:[1,0,1]" % (p2(q_), p2(q_), p2(ab), p2(u)))
        if env("H_KVP", [79, 99])[layer] == 98:
            kv_early()
        self.phi_pairs([(vACC + 4 * rt + r, PQ + 2 * rt + r // 2) for rt in range(4) for r in (0, 2)])
        self.stamp("qpass")
        self.bg_w = 0
        self.w_burst(env("W_S1", [16, 0])[layer])
        b.I("s_add_u32 s%d, s%d, s%d" % (sT + 6, self.rgs("O"), sSTO))
        b.I("s_add_u32 s%d, s%d, 0x%x" % (sT + 6, sT + 6, self.buf("O", layer)))
        b.I("s_add_u32 s%d, s%d, %d" % (sT + 7, sT + 6, self.hstride("O")))
        lp, ld, lc = b.newlabel("Lkv"), b.newlabel("Lkvd"), b.newlabel("Lkvc")
        if kp:
            b.wait(kp["tok"])
            b.I("s_branch %s" % lc)
        b.label(lp)
        if kp:
            for t in kvl:
                self.Inc(t)
            b.I("s_waitcnt vmcnt(0)")
        else:
            for t in kvl:
                b.I(t)
            b.wait(vm=0)
        b.label(lc)
        for h in range(2):
            for k in (0, 2):
                b.I("v_pk_add_f32 %s, %s, %s" % (p2(vT + 8 * h + k), p2(dst[0][h] + k), p2(dst[1][h] + k)))
        b.I("v_cmp_eq_f32 vcc, 0x42000000, v%d" % (vT + 3))
        b.I("v_cmp_eq_f32 s[%d:%d], v%d, v%d" % (sT, sT + 1, vT + 11, vT + 3))
        b.I("s_and_b64 vcc, vcc, s[%d:%d]" % (sM3, sM3 + 1))
        b.I("s_and_b32 s%d, s%d, 0x888" % (sT, sT))
        b.I("s_xor_b32 s%d, s%d, 0x888" % (sT, sT))
        b.I("s_xor_b64 vcc, vcc, s[%d:%d]" % (sM3, sM3 + 1))
        b.I("s_or_b32 s%d, s%d, vcc_lo" % (sT, sT))
        b.I("s_or_b32 s%d, s%d, vcc_hi" % (sT, sT))
        b.I("s_cbranch_scc0 %s" % ld)
        self.spin_guard(lp)
        b.label(ld)
        self.stamp("kvsync")
        b.I("v_lshl_add_u32 v%d, v0, 4, v%d" % (vT + 4, vKVL))
        b.I("v_sub_u32 v%d, v%d, v%d" % (vT + 4, vT + 4, vL4))
        b.I("ds_write_b128 v%d, %s offset:1280" % (vT + 4, vr(vT, 4)))
        b.I("s_mov_b64 exec, 0xfff")
        b.I("ds_write_b128 v%d, %s offset:2304" % (vT + 4, vr(vT + 8, 4)))
        b.I("s_mov_b64 exec, -1")
        lz = b.I("ds_read_b128 %s, v%d offset:1280" % (vr(vT + 4, 4), vZP))
        lt = [b.I("ds_read_b32 v%d, v%d offset:1280" % (vT + 12 + r, vPOS + r)) for r in range(4)]
        b.wait(lz)
        I("v_cvt_pk_bf16_f32 v%d, v%d, v%d" % (vT + 10, vT + 4, vT + 5))
        I("v_cvt_pk_bf16_f32 v%d, v%d, v%d" % (vT + 11, vT + 6, vT + 7))
        NUM, DEN = vACC, vAF
        for rt in range(4):
            I("v_mfma_f32_16x16x16_bf16 %s, %s, %s, 0" % (vr(DEN + 4 * rt, 4), p2(vT + 10), p2(PQ + 2 * rt)))
        b.wait(lt)
        I("v_cvt_pk_bf16_f32 v%d, v%d, v%d" % (vT + 8, vT + 12, vT + 13))
        I("v_cvt_pk_bf16_f32 v%d, v%d, v%d" % (vT + 9, vT + 14, vT + 15))
        for rt in range(4):
            I("v_mfma_f32_16x16x16_bf16 %s, %s, %s, 0" % (vr(NUM + 4 * rt, 4), p2(vT + 8), p2(PQ + 2 * rt)))
        for rt in range(4):
            I("v_add_f32 v%d, s%d, v%d" % (DEN + 4 * rt, sEPS, DEN + 4 * rt))
        for rt in range(4):
            I("v_rcp_f32 v%d, v%d" % (DEN + 4 * rt, DEN + 4 * rt))
        for rt in range(4):
            for r in (0, 2):
                n_ = NUM + 4 * rt + r
                I("v_pk_mul_f32 %s, %s, %s op_sel_hi:[1,0]" % (p2(n_), p2(n_), p2(DEN + 4 * rt)))
        for rt in range(4):
            for r in (0, 2):
                I("v_cvt_pk_bf16_f32 v%d, v%d, v%d" % (vT + 2 * rt + r // 2, NUM + 4 * rt + r, NUM + 4 * rt + r + 1))
        return self.stores2([self.pair_store(vT + 4 * pr, sT + 6 + pr, 0) for pr in range(2)], layer == 0 or self.sep)

    def park_wq(self):
        b = self.b
        b.I("s_lshl_b32 s%d, s%d, 14" % (sT, sW))
        b.I("s_add_u32 s%d, s%d, 0x%x" % (sT, sT, L_WQ))
        b.I("v_add_u32 v%d, s%d, v%d" % (vWQ, sT, vL16))
        for ks in range(16):
            b.I("ds_write_b128 v%d, %s offset:%d" % (vWQ, slot_r(self.wslot[("qkv", 0, 32 + ks)][0]), ks * 1024))
        b.wait(lg=0)
        for ks in range(16):
            self.w_release(("qkv", 0, 32 + ks))

    def cs1_some(self, n):
        one = vr(vONE, 4)
        k = 0
        while k < n and self.ncs < 16 and all(("w1", 0, 3 * self.ncs + t) in self.wslot and
                                             (self.wslot[("w1", 0, 3 * self.ncs + t)][1] is None or
                                              self.wslot[("w1", 0, 3 * self.ncs + t)][1][1] < self.b.vm_done) for t in range(3)):
            for t in range(3):
                self.mf(vCS1 + 4 * t, slot_r(self.wslot[("w1", 0, 3 * self.ncs + t)][0]), one, "0" if self.ncs == 0 else None)()
            self.ncs += 1
            k += 1

    def n16_items(self, name, layer, nks, hf, seqs):
        items = []
        for ks in range(nks):
            for r in range(2):
                def mfs(fr, ks=ks, r=r):
                    th = [self.mf(vX + 8 * hf + 4 * r, self.w_get((name, layer, ks)), fr)]
                    if hf == 1 and r == 1:
                        th.append(lambda: self.w_release((name, layer, ks)))
                    return th
                a, off = self.frag_addr(seqs[ks // 2], r, ks & 1)
                items.append((a, off, seqs[ks // 2], mfs))
        return items

    def n16_full(self, name, layer, nks, seqs):
        items = []
        for ks in range(nks):
            for rt in range(4):
                def mfs(fr, ks=ks, rt=rt):
                    th = [self.mf(vX + 4 * rt, self.w_get((name, layer, ks)), fr)]
                    if rt == 3:
                        th.append(lambda: self.w_release((name, layer, ks)))
                    return th
                sq = seqs[rt >> 1][ks // 2]
                a, off = self.frag_addr(sq, rt & 1, ks & 1)
                items.append((a, off, sq, mfs))
        return items

    def x_full_store(self, idx, wt):
        I = self.b.I
        for hf in range(2):
            I("s_add_u32 s%d, s%d, s%d" % (sT + 6 + hf, sRG64, sSTO))
            I("s_add_u32 s%d, s%d, 0x%x" % (sT + 6 + hf, sT + 6 + hf, self.buf("X", idx) + hf * 32768))
        I("s_add_u32 s%d, s%d, 8192" % (sT + 8, sSTP))
        for j in range(8):
            I("v_cvt_pk_bf16_f32 v%d, v%d, v%d" % (vT + j, vX + 2 * j, vX + 2 * j + 1))
        s = vAF
        tk = self.stores2([self.pair_store(vT + 4 * hf, sT + 6 + hf, 0) for hf in range(2)], wt)
        for rt in range(4):
            I("v_pk_add_f32 %s, %s, %s" % (p2(s + 4 * rt), p2(vX + 4 * rt), p2(vX + 4 * rt + 2)))
            I("v_pk_mul_f32 %s, %s, %s" % (p2(s + 4 * rt + 2), p2(vX + 4 * rt), p2(vX + 4 * rt)))
        for rt in range(4):
            I("v_pk_fma_f32 %s, %s, %s, %s" % (p2(s + 4 * rt + 2), p2(vX + 4 * rt + 2), p2(vX + 4 * rt + 2), p2(s + 4 * rt + 2)))
        for rt in range(4):
            I("v_add_f32 v%d, v%d, v%d" % (s + 4 * rt, s + 4 * rt, s + 4 * rt + 1))
            I("v_add_f32 v%d, v%d, v%d" % (s + 4 * rt + 2, s + 4 * rt + 2, s + 4 * rt + 3))
        for hf in range(2):
            q = s + 8 * hf
            I("v_permlane32_swap_b32 v%d, v%d" % (q, q + 4))
            I("v_permlane32_swap_b32 v%d, v%d" % (q + 2, q + 6))
        for hf in range(2):
            q = s + 8 * hf
            I("v_add_f32 v%d, v%d, v%d" % (q, q, q + 4))
            I("v_add_f32 v%d, v%d, v%d" % (q + 2, q + 2, q + 6))
        for hf in range(2):
            I("v_permlane16_swap_b32 v%d, v%d" % (s + 8 * hf, s + 8 * hf + 2))
        for hf in range(2):
            I("v_add_f32 v%d, v%d, v%d" % (s + 8 * hf, s + 8 * hf, s + 8 * hf + 2))
        tk2 = self.stores2(["buffer_store_dword v%d, v%d, %s, s%d offen" % (s + 8 * hf, vL4, self.ws(), (sSTP, sT + 8)[hf])
                            for hf in range(2)], wt)
        return tk, tk2

    def x_half_now(self, idx, hf, wt):
        I = self.b.I
        x = vX + 8 * hf
        o = vT + 2
        s = o + 4
        I("s_add_u32 s%d, s%d, s%d" % (sT + 6, sRG64, sSTO))
        I("s_add_u32 s%d, s%d, 0x%x" % (sT + 6, sT + 6, self.buf("X", idx) + hf * 32768))
        I("s_add_u32 s%d, s%d, %d" % (sT + 7, sSTP, hf * 8192))
        for j in range(4):
            I("v_cvt_pk_bf16_f32 v%d, v%d, v%d" % (o + j, x + 2 * j, x + 2 * j + 1))
        for r in range(2):
            I("v_pk_add_f32 %s, %s, %s" % (p2(s + 4 * r), p2(x + 4 * r), p2(x + 4 * r + 2)))
            I("v_pk_mul_f32 %s, %s, %s" % (p2(s + 4 * r + 2), p2(x + 4 * r), p2(x + 4 * r)))
        tk = self.stores2([self.pair_store(o, sT + 6, 0)], wt)
        for r in range(2):
            I("v_pk_fma_f32 %s, %s, %s, %s" % (p2(s + 4 * r + 2), p2(x + 4 * r + 2), p2(x + 4 * r + 2), p2(s + 4 * r + 2)))
            I("v_add_f32 v%d, v%d, v%d" % (s + 4 * r, s + 4 * r, s + 4 * r + 1))
        for r in range(2):
            I("v_add_f32 v%d, v%d, v%d" % (s + 4 * r + 2, s + 4 * r + 2, s + 4 * r + 3))
        I("v_permlane32_swap_b32 v%d, v%d" % (s, s + 4))
        I("v_permlane32_swap_b32 v%d, v%d" % (s + 2, s + 6))
        I("v_add_f32 v%d, v%d, v%d" % (s, s, s + 4))
        I("v_add_f32 v%d, v%d, v%d" % (s + 2, s + 2, s + 6))
        I("v_permlane16_swap_b32 v%d, v%d" % (s, s + 2))
        I("v_add_f32 v%d, v%d, v%d" % (s, s, s + 2))
        tk += self.stores2(["buffer_store_dword v%d, v%d, %s, s%d offen" % (s, vL4, self.ws(), sT + 7)], wt)
        return self.new_pub(tk)

    def x_half_store(self, idx, hf, wt, delay):
        x = vX + 8 * hf
        o = vT + 1
        o += o & 1
        tk = []
        k, fl = self.new_pub(tk)
        s = o + 4
        e = ["s_add_u32 s%d, s%d, s%d" % (sT + 6, sRG64, sSTO),
             "s_add_u32 s%d, s%d, 0x%x" % (sT + 6, sT + 6, self.buf("X", idx) + hf * 32768),
             "s_add_u32 s%d, s%d, %d" % (sT + 7, sSTP, hf * 8192), 2]
        e += ["v_cvt_pk_bf16_f32 v%d, v%d, v%d" % (o + j, x + 2 * j, x + 2 * j + 1) for j in range(4)]
        for r in range(2):
            e += ["v_add_f32 v%d, v%d, v%d" % (s + 2 * r, x + 4 * r, x + 4 * r + 1),
                  "v_mul_f32 v%d, v%d, v%d" % (s + 2 * r + 1, x + 4 * r, x + 4 * r)]
        e.append(lambda: tk.extend(self.stores2([self.pair_store(o, sT + 6, 0)], wt)))
        for q in (1, 2, 3):
            for r in range(2):
                if q > 1:
                    e.append("v_add_f32 v%d, v%d, v%d" % (s + 2 * r, s + 2 * r, x + 4 * r + q))
                e.append("v_fmac_f32 v%d, v%d, v%d" % (s + 2 * r + 1, x + 4 * r + q, x + 4 * r + q))
        e += [1, "v_permlane32_swap_b32 v%d, v%d" % (s, s + 2), "v_permlane32_swap_b32 v%d, v%d" % (s + 1, s + 3), 1,
              "v_add_f32 v%d, v%d, v%d" % (s, s, s + 2), "v_add_f32 v%d, v%d, v%d" % (s + 1, s + 1, s + 3), 1,
              "v_permlane16_swap_b32 v%d, v%d" % (s, s + 1), 1, "v_add_f32 v%d, v%d, v%d" % (s, s, s + 1),
              lambda: tk.extend(self.stores2(["buffer_store_dword v%d, v%d, %s, s%d offen" % (s, vL4, self.ws(), sT + 7)], wt))]
        if delay is not None:
            e += [delay, fl]
        return k, e, fl

    def out_half_store(self, hf):
        x = vX + 8 * hf
        e = ["s_add_u32 s%d, s%d, s%d" % (sT + 6, sRG64, sOUT), "s_add_u32 s%d, s%d, %d" % (sT + 6, sT + 6, hf * 32768),
             "s_add_u32 s%d, s%d, 16384" % (sT + 7, sT + 6), 2]
        e += ["v_cvt_pk_bf16_f32 v%d, v%d, v%d" % (vT + 4 * hf + j, x + 2 * j, x + 2 * j + 1) for j in range(4)]
        e += ["buffer_store_dwordx2 %s, v%d, s[%d:%d], s%d offen" % (p2(vT + 4 * hf + 2 * r), vOA, R_OUT, R_OUT + 3, sT + 6 + r)
              for r in range(2)]
        return e

    def p3_items(self, layer, seqs):
        items = []
        one = vr(vONE, 4)
        for ks in range(16):
            c0 = "0" if ks == 0 else None
            for rt in range(4):
                def mfs(fr, ks=ks, rt=rt, c0=c0):
                    th = []
                    for t in range(3):
                        w = self.w_get(("w1", layer, 3 * ks + t))
                        th.append(self.mf(vACC + 24 * (rt >> 1) + 8 * t + 4 * (rt & 1), w, fr, c0))
                        if layer == 0 and rt == 0 and ks >= self.ncs:
                            th.append(self.mf(vCS1 + 4 * t, w, one, c0))
                    if rt == 3:
                        th.append(lambda: [self.w_release(("w1", layer, 3 * ks + t)) for t in range(3)])
                    return th
                sq = seqs[rt >> 1][ks // 2]
                a, off = self.frag_addr(sq, rt & 1, ks & 1)
                items.append((a, off, sq, mfs))
        return items

    def silu(self, layer, hf, mid=None):
        b = self.b
        I = self.I
        for t in range(3):
            b.I("s_add_u32 s%d, s%d, 0x%x" % (sT + 6 + t, sH0 + t, self.buf("H", layer) + hf * (HSZ // 2)))
        sts = []
        for t in range(3):
            A = vACC + 24 * hf + 8 * t
            u = vT + 8 * (t & 1)
            for f in (mid or {}).get(t, []):
                f()
            for j in range(4):
                I("v_pk_mul_f32 %s, %s, %s op_sel:[0,1] op_sel_hi:[1,1]" % (
                    p2(u + 2 * j), p2(vCS1 + 4 * t + 2 * (j & 1)), p2(vAB + 4 * hf + 2 * (j >> 1))))
            for j in range(4):
                I("v_pk_fma_f32 %s, %s, %s, %s op_sel:[0,0,0] op_sel_hi:[1,0,1]" % (
                    p2(A + 2 * j), p2(A + 2 * j), p2(vAB + 4 * hf + 2 * (j >> 1)), p2(u + 2 * j)))
            for k in range(8):
                I("v_exp_f32_e64 v%d, -v%d" % (u + k, A + k))
            for j in range(4):
                I("v_pk_fma_f32 %s, %s, %s, %s op_sel:[0,0,0] op_sel_hi:[1,0,0]" % (p2(u + 2 * j), p2(u + 2 * j), p2(vK), p2(vK)))
            for k in range(8):
                I("v_rcp_f32 v%d, v%d" % (u + k, u + k))
            for j in range(4):
                I("v_pk_mul_f32 %s, %s, %s" % (p2(A + 2 * j), p2(A + 2 * j), p2(u + 2 * j)))
            for j in range(4):
                I("v_cvt_pk_bf16_f32 v%d, v%d, v%d" % (A + j, A + 2 * j, A + 2 * j + 1))
            sts += self.stores2([self.pair_store(A, sT + 6 + t, 0)], layer == 0 or self.sep)
        return sts

    def body(self):
        b = self.b
        for layer in range(2):
            R1, R2 = env("REV", (12, 43))
            if layer == 0:
                R1, R2 = 48, 43
            self.w_enqueue("w1", layer, F_W1, 48, range(47, R1 - 1, -1))
            self.w_enqueue("wo", layer, F_WO, 16)
            self.w_enqueue("w1", layer, F_W1, 48, range(R1))
            self.w_enqueue("w2", layer, F_W2, 43, range(42, R2 - 1, -1))
            self.w_enqueue("w2", layer, F_W2, 43, range(R2))
        AF = env("AFIRST", 12)
        G8c = env("G8C", [2, 2, 2, 2])
        G8w = env("G8W", [4, 4])
        G22 = env("G22", [2, 2, 2, 4, 4, 4, 4])
        st = {}
        PA, PB = env("PA", [60, 62]), env("PB", [75, 62])
        self.pace_w = PA[0]
        self.startup()
        xs = None
        for layer in range(2):
            self.pace_w = PA[layer]
            tk = self.attention(layer, xs)
            k_o, fl = self.new_pub(tk)
            self.w_burst(env("W_PUB", [0, 0])[layer])
            fl()
            self.stamp("o_pub")
            self.poll_shadow(k_o, env("NCS", [5, 5])[0] if layer == 0 else 0)
            self.stamp("o_rdy")
            wt = layer == 0 or self.sep
            D16, PW = env("D16", 9), env("PAIRW", True)
            n0 = self.seq
            oo = self.queue_both("O", layer, 8, self.aq)
            self.a_burst(AF)
            self.bg_w = env("W_P2", 14)
            self.gemm(self.n16_full("wo", layer, 16, oo), self.split(list(range(n0, n0 + 16)), env("G16", [4, 4, 4, 4])), D16,
                      pairw=PW)
            self.bg_w = 0
            self.stamp("p2")
            tk1, tk2 = self.x_full_store(2 * layer, wt)
            k_x, fl_x = self.new_pub(tk1)
            k_s, fl_s = self.new_pub(tk2)
            self.w_burst(env("W_PUB2", [0, 0])[layer])
            fl_x()
            self.stamp("x_pub")
            self.poll_shadow(k_x, env("NCS", [5, 5])[1] if layer == 0 else 0)
            self.stamp("x_rdy")
            poll = lambda: st.update(tok=self.poll_issue())

            def when(k, plan, burst=0):
                def f():
                    self.poll_check(k() if callable(k) else k, st["tok"])
                    self.aq += plan
                    self.a_burst(burst)
                return f
            n0 = self.seq
            xx = self.queue_both("X", 2 * layer, 8, self.aq)
            hold = self.seq
            pl_s = []
            sa = self.queue_stats(0, pl_s)
            sb = self.queue_stats(1, pl_s)
            if layer or FT:
                th = lambda: self.touch_h(layer)
                th.seq = -1
                th.prep = []
                pl_s.append(th)
            self.a_burst(4)
            fl_s()
            self.a_burst(AF - 4)
            self.bg_w = 0
            self.pace_w = PB[layer]
            groups = self.split(list(range(n0, n0 + 16)), env("G3", [4, 4, 8])) + [[hold]]
            hooks, pre, post = {}, {}, {}
            s1a, bba = self.stats_stage1(sa, 0)
            s1b, bbb = self.stats_stage1(sb, 1)
            j = env("H_ST", 8)
            hooks[j] = [poll]
            hooks[j + 6] = [when(k_s, pl_s), lambda: setattr(self, "bg_w", 99)]
            hooks[j + 18] = [lambda: self.side.extend(s1a + s1b)]

            def exch():
                bba()
                bbb()
                b.I("s_barrier")
                self.side.extend(self.stats_stage2(0, True, False) + self.stats_stage2(1, True, False))
            hooks[env("H_EX", 46)] = [exch]
            groups.pop()
            self.gemm(self.p3_items(layer, xx), groups, 6, hooks, pre, post, pairw=True)
            self.pinned = set()
            self.mine = self.seq - 1
            self.bg_w = env("W_SILU", 0)
            self.stamp("p3")
            k_ha, fl_ha = self.new_pub(self.silu(layer, 0))
            self.bg_w = 0
            pl_ha, pl_hb, pl_ya = [], [], []
            ha = self.queue_half("H", layer, 0, 22, pl_ha)
            hb = self.queue_half("H", layer, 1, 22, pl_hb)

            def ha_go():
                self.stamp("silu")
                self.poll_check(k_ha)
                self.stamp("ha_rdy")
                self.aq += pl_ha
                self.a_burst(env("AF4", 4))
            SPL = env("SPLIT", 0)
            mid = {env("MID", 1): [fl_ha]}
            if SPL:
                mid.setdefault(2, []).append(ha_go)
            tkb = self.silu(layer, 1, mid)
            k_hb, fl_hb = self.new_pub(tkb)
            if not SPL:
                ha_go()
                fl_hb()
            self.a_burst(AF - (self.seq_issued() - ha[0]))
            self.bg_w = 99
            j = env("H_P4A", 24)
            self.alead = env("ALEAD4", 16)
            self.pace_w = PA[1]
            items = self.n16_items("w2", layer, 43, 0, ha) + self.n16_items("w2", layer, 43, 1, hb)
            groups = self.split(ha, env("G22C", [2, 2, 4, 4, 4, 6])) + self.split(hb, G22)
            hooks = {j: [poll], j + env('CK4', 12): [when(k_hb, pl_hb, env('BU_HB', 4))]}
            if SPL:
                hooks[env("H_FLB", 6)] = [fl_hb]
            pre, post = {}, {}
            if layer == 0:
                sa = self.queue_stats(0, pl_ya)
                ya = self.queue_half("X", 1, 0, 8, pl_ya, rot=True)

                def y_out(hf, delay):
                    def f():
                        self.stamp("p4a" if hf == 0 else "p4b")
                        st["k_y%d" % hf], st["fl_y%d" % hf] = self.x_half_now(1, hf, self.sep)
                        self.pace_w = PA[1]
                        if hf:
                            self.alead = env("ALEAD", 99)
                    return f
                j = 86 + env("H_P4B", 44)
                hooks.update({87: [y_out(0, 0)], 87 + env("D_Y0", 22): [lambda: st["fl_y0"]()],
                              172 + env("D_Y1", 10): [lambda: st["fl_y1"]()], j: [poll], j + env('CK4', 12): [when(lambda: st["k_y0"], pl_ya, env("BU_YA", 6))], 172: [y_out(1, 0)],
                              172 + env("H_P1A", 24): [poll]})
                ng = len(groups)
                groups += self.split(ya, env("G8K", [2, 4, 2]))
                self.stats_hooks(sa, 0, False, True, 173, ng + 2, hooks, pre, post)
                items += self.kv_items(0, ya)
            else:
                hooks[85] = [lambda: (self.stamp("p4a"), self.side.extend(self.out_half_store(0)))]
            self.gemm(items, groups, D16, hooks, pre, post, pairw=PW)
            if layer == 0:
                self.stamp("p1a")
                pl = []
                sb = self.queue_stats(1, pl)
                yb = self.queue_half("X", 1, 1, 8, pl, rot=True)
                pl = pl[2:6] + pl[:2] + pl[6:]

                def go():
                    self.poll_check(st["k_y1"], st["tok"])
                    self.stamp("yb_rdy")
                    self.aq += pl
                    self.a_burst(env('AF1', 6))
                self.kv_finish(0, go)
                hooks, pre, post = {}, {}, {}
                self.stats_hooks(sb, 1, False, True, 0, 1, hooks, pre, post)
                self.gemm(self.kv_items(1, yb), self.split(yb, env('G1B', [4, 4])), 8, hooks, pre, post, pairw=True)
                self.kv_finish(1)
                self.stamp("p1b")
                xs = [ya, yb]
            else:
                self.stamp("p4b")
                self.side = self.out_half_store(1)
                self.side_flush()
                lx = b.newlabel("Lep")
                b.I("s_or_b32 s%d, s2, s%d" % (sT, sW))
                b.I("s_cbranch_scc1 %s" % lx)
                b.I("s_add_u32 s%d, s%d, 16" % (sT, sEP))
                b.I("v_mov_b32 v%d, s%d" % (vT + 9, sT))
                b.I("s_mov_b32 s%d, 0x%x" % (sT, WS_EP))
                b.I("s_mov_b64 exec, 1")
                self.Inc("buffer_store_dword v%d, off, %s, s%d sc1" % (vT + 9, self.ws(), sT))
                b.I("s_mov_b64 exec, -1")
                b.label(lx)
                self.stamp("end")
        if self.diag:
            b.I("s_lshl_b32 s%d, s2, 2" % sT)
            b.I("s_add_u32 s%d, s%d, s%d" % (sT, sT, sW))
            b.I("s_lshl_b32 s%d, s%d, 8" % (sT, sT))
            b.I("s_add_u32 s%d, s%d, 0x%x" % (sT, sT, WS_STAMP))
            b.I("buffer_store_dword v%d, v%d, %s, s%d offen" % (vSTAMP, vL4, self.ws(), sT))
        if self.diag and env("PROBE", 0):
            lx, lp = b.newlabel("Lpr"), b.newlabel("Lprl")
            i0, i1 = [61 if n == "entry" else [i for i, m in enumerate(self.stamp_names) if m == n[0]][n[1]] for n in env("PROBE", 0)]
            b.I("s_cmp_lg_u32 s2, %d" % env("PWG", 100))
            b.I("s_cbranch_scc1 %s" % lx)
            b.I("v_readlane_b32 s%d, v%d, %d" % (sT, vSTAMP, i0))
            b.I("v_readlane_b32 s%d, v%d, %d" % (sT + 1, vSTAMP, i1))
            b.I("v_readlane_b32 s%d, v%d, %d" % (sT + 2, vSTAMP, len(self.stamp_names) - 1))
            b.I("s_sub_u32 s%d, s%d, s%d" % (sT + 1, sT + 1, sT))
            b.I("s_mul_i32 s%d, s%d, %d" % (sT + 1, sT + 1, env("PMUL", 1)))
            b.I("s_add_u32 s%d, s%d, 4800" % (sT + 1, sT + 1))
            b.label(lp)
            b.I("s_memtime s[94:95]")
            b.I("s_waitcnt lgkmcnt(0)")
            b.I("s_sub_u32 s%d, s94, s%d" % (sT, sT + 2))
            b.I("s_cmp_lt_u32 s%d, s%d" % (sT, sT + 1))
            b.I("s_cbranch_scc1 %s" % lp)
            b.label(lx)
        b.label("L_end")
        b.I("s_endpgm")
        for t in self.cold:
            b.raw(t)

    def emit(self):
        self.body()
        head = """; @launch grid=(256,1,1) block=(256,1,1) lds=%d
; persistent fused kernel: 32 row groups (64 rows) x 8 column groups (generated by my own script)
.amdgcn_target "amdgcn-amd-amdhsa--gfx950"
.text
.globl %s_kernel
.p2align 8
.type %s_kernel,@function
%s_kernel:
""" % (LDS_BYTES, NAME, NAME, NAME)
        tail = """.section .rodata,"a"
.p2align 6
.amdhsa_kernel %s_kernel
  .amdhsa_next_free_vgpr 512
  .amdhsa_next_free_sgpr 102
  .amdhsa_accum_offset 256
  .amdhsa_group_segment_fixed_size 0
  .amdhsa_kernarg_size 72
  .amdhsa_user_sgpr_count 2
  .amdhsa_user_sgpr_kernarg_segment_ptr 1
  .amdhsa_system_sgpr_workgroup_id_x 1
.end_amdhsa_kernel
""" % NAME
        return head + self.b.text() + tail


if __name__ == "__main__":
    import argparse
    ap = argparse.ArgumentParser()
    ap.add_argument("-o", default="cdna_kernels/%s.s" % NAME)
    ap.add_argument("--diag", action="store_true")
    ap.add_argument("--sep", action="store_true")
    a = ap.parse_args()
    g = Gen(a.diag, a.sep)
    txt = g.emit()
    if a.diag:
        txt = txt.replace(".amdgcn_target", "; stamps: " + ",".join(g.stamp_names) + "\n.amdgcn_target", 1)
    open(a.o, "w").write(txt)
    print("instructions", g.b.nins, "nops", g.b.nops, file=sys.stderr)
```

```python
import sys
import os
sys.path.insert(0, os.path.dirname(os.path.abspath(__file__)))
from asmb import Builder, vr

NAME = "interleave_layers__linear_attn_block__dense_activation_silu__prompt"


def env(name, default):
    v = os.environ.get(name)
    return default if v is None else eval(v)


PKW = 107 * 1024
WS_FL = 0x380000
WS_EP = 0x390000
WS_R2 = 0x398000
WS_KV = 0x480000
NC = env('NC', 2)
KCS = env('KCS', 1344)
KVH = NC * KCS
KVL = 32 * KVH
KB0 = env('KB0', 0)
WS_R3 = 0x3D0000
WS_ST = 0x400000
WS_O = 0x600000
WS_X = 0x800000
WS_H = 0xA00000
HSZ = 22 * 8192
WS_STAMP = 0x3000000
WS_SIZE = 0x3100000 if '--diag' in sys.argv else 0x1000000
OOB = 0x4000000 if '--diag' in sys.argv else 0x1000000
F_WO, F_W1, F_W2 = 0, 16, 64

L_RING = 65536
L_RQ = 106496
L_WQ = 81920
L_PACK = 131072
L_KVI = 147456
L_STA = 157696
L_EX = 158720
NR = env('NR', 8)
NSLOT = 20
LDS_BYTES = 163840

S_X, S_WQ, S_WO, S_W1, S_W2, S_OUT, S_DBG, S_WS = 4, 6, 8, 12, 14, 16, 18, 20
R_X, R_WQ, R_WS, R_OUT, R_PK = 24, 28, 32, 36, 44
sR1, sQ, sTC, sTAG, sEP = 3, 10, 11, 22, 23
sROT, sSTP, sSTC, sW1K = 40, 41, 42, 43
sRG, sC, sW, sFAST, sPK, sKV, sFL, sRG64, sRGH, sSTO = 48, 49, 50, 51, 52, 53, 54, 55, 56, 57
sH0 = 58
sSPIN = 61
sEPS = 62
sOUT = 63
sXS = 64
sRB2, sRO2 = 65, 66
sM1, sM2, sM3, sDIAG = 68, 70, 72, 74
sT = 76
sKB = 88
sPKC, sXCC, sMYF, sW2K, sAB, sAO = 96, 97, 98, 99, 100, 101

vL16, vA1, vKVL, vDMA, vST = 1, 2, 3, 4, 5
vX0, vX1, vOW0, vOW1, vTR, vXS0, vXS1, vWS = 6, 7, 8, 9, 10, 11, 12, 13
vWQ = 13
vSB, vEX, vSWR, vOA = 8, 9, 10, 11
vFL, vL4, vSTAMP, vSTA, vSTQ, vC2 = 14, 15, 16, 17, 18, 19
vX = 20
vCSQ, vCSK, vCSV = 36, 40, 42
vCS1 = 44
vONE = 56
vACC = 60
vAF = 108
NAF = 10
vAB = 148
vT = 156
vPOS = 172
vZP, vSW, vDUM, vTCH, vPOLL, vDM2 = 176, 177, 178, 179, 180, 181
vK = 182
vS1, vS2 = 184, 188
vTQ = 195
vW1 = 192
SLOTS = [("a", 4 * i) for i in range(64)] + [("v", 196 + 4 * i) for i in range(15)]
PACE = env("PACE", 36)
FT = env("FTOUCH", 1)
WMIN = env("WMIN", 10)
AMIN = env("AMIN", 5)
RDSLACK = env("RDSLACK", 2)
SIDEMIN = env("SIDEMIN", 1)
COST = {"mfma": 16, "trans": 8, "ds": 4, "valu": 4, "perm": 4, "dpp": 4, "rdlane": 4, "wrlane": 4, "salu": 2, "vmem": 8}
K_L2E = "op_sel:[0,0] op_sel_hi:[1,0]"


def slot_r(s):
    return vr(s[1], 4, s[0])


def p2(r):
    return "v[%d:%d]" % (r, r + 1)


class Gen:
    def __init__(self, diag=False, sep=False):
        self.b = Builder()
        self.diag = diag
        self.sep = sep
        self.free = list(SLOTS[:-1] if env('RT', 0) else SLOTS)
        self.wq = []
        self.wslot = {}
        self.pk_cur = None
        self.nstamp = 0
        self.stamp_names = []
        self.aq = []
        self.atok = {}
        self.seq = 0
        self.consumed = -1
        self.mine = -1
        self.pub_mine = {}
        self.clock = 0
        self.last_bg = -1000
        self.bg_w = 0
        self.pace_w = 70
        self.in_bg = False
        self.npub = 0
        self.ncs = 0
        self.gstamp = False
        self.vclock = {}
        bI, bw = self.b.I, self.b.wait

        def I2(t):
            tok = bI(t)
            if tok and tok[0] == "vm":
                self.vclock[tok[1]] = self.clock
            return tok

        def w2(*toks, **kw):
            if os.environ.get("SLACK"):
                flat = []
                for t in toks:
                    if t is None:
                        continue
                    flat += t if isinstance(t, list) else [t]
                v = [i for k, i in flat if k == "vm" and i >= self.b.vm_done]
                if v:
                    d = self.clock - self.vclock.get(max(v), 0)
                    if d < int(os.environ["SLACK"]):
                        print("   slack %4d at clock %d (after %s)" % (d, self.clock, self.last_stamp), file=sys.stderr)
            return bw(*toks, **kw)
        self.b.I, self.b.wait = I2, w2
        self.last_stamp = ""
        self.flagged = set()
        self.cold = []
        self.slotted = False
        self.prepped = None
        self.wprep = []
        self.pinned = set()
        self.side = []
        self.side_rate = 2
        self.w_issued = 0
        self.w_need = 0
        self.w_cur = None
        self.w_index = {}
        self.wlead = env('WLEAD', 14)
        self.cur_seq = 0
        self.alead = env('ALEAD', 99)

    def I(self, t):
        tok = self.b.I(t)
        k = self.b.hists[0][-1].kind if self.b.hists and self.b.hists[0] else "salu"
        self.clock += COST.get(k, 4)
        if not self.in_bg and not self.slotted and k in ("mfma", "valu", "trans"):
            c = self.bg_pick()
            if c is not None and c[1]:
                self.bg_emit(c[0], True)
        return tok

    def side_step(self, n):
        self.in_bg = True
        done = 0
        while n > 0 and self.side:
            e = self.side[0]
            if isinstance(e, int):
                if e <= 1:
                    self.side.pop(0)
                else:
                    self.side[0] = e - 1
                break
            self.side.pop(0)
            if isinstance(e, str):
                self.b.I(e)
            else:
                e()
            n -= 1
            done += 1
        self.in_bg = False
        return done

    def side_flush(self):
        while self.side:
            self.side_step(1000)

    def bg_pick(self):
        a_ok = self.aq and self.aq[0].seq - NSLOT <= self.consumed
        w_ok = self.bg_w > 0 and self.wq and self.free
        same = w_ok and self.wq[0][0][:2] == self.w_cur
        el = self.clock - self.last_bg
        if self.prepped == "A" and a_ok:
            return "A", el >= PACE or self.aq[0].seq - self.cur_seq < AMIN
        if a_ok and getattr(self.aq[0], "urgent", False):
            return "A", True
        if same and self.w_issued - self.w_need < WMIN:
            return "W", True
        if a_ok and w_ok:
            a_lead = self.aq[0].seq - self.cur_seq
            if a_lead > self.alead or (same and self.w_issued - self.w_need < self.wlead and a_lead > 3):
                a_ok = False
        if a_ok:
            return "A", el >= PACE or self.aq[0].seq - self.cur_seq < AMIN
        if w_ok:
            return "W", el >= self.pace_w
        return None

    def bg_prep_list(self, kind):
        if kind == "A":
            return self.aq[0].prep
        grp = self.wq[0][1] // 4
        if self.pk_cur != grp and not os.environ.get("NOW"):
            self.pk_cur = grp
            self.wprep = ["s_add_u32 s%d, s%d, 0x%x" % (sPKC, sPK, grp * 4096)]
        return self.wprep

    def bg_emit(self, kind, inline):
        self.in_bg = True
        if kind == "A":
            self.a_pop()
        else:
            self.w_issue()
            self.bg_w -= 1
        self.last_bg = self.clock
        self.in_bg = False

    def a_pop(self):
        th = self.aq.pop(0)
        while th.prep:
            self.b.I(th.prep.pop(0))
        th()
        self.prepped = None

    def slot_fill(self, rd_lag, issue_read):
        c = self.bg_pick()
        if c is not None and c[1] and rd_lag <= RDSLACK and not self.bg_prep_list(c[0]):
            self.bg_emit(c[0], False)
            self.clock += 8
            return
        budget = 2
        if rd_lag > 0:
            issue_read()
            budget -= 1
            if rd_lag > 1:
                issue_read()
                budget -= 1
        if c is not None:
            pl = self.bg_prep_list(c[0])
            while budget > 0 and pl:
                self.b.I(pl.pop(0))
                budget -= 1
                if c[0] == "A":
                    self.prepped = "A"
        self.side_step(max(budget, SIDEMIN))

    def Inc(self, t):
        self.b.I(t)
        self.b.vm_issued -= 1

    def stamp(self, name):
        self.last_stamp = name
        if os.environ.get("WLOG"):
            print("%-8s clock %6d  wq left %3d next %s free %d aq %d" % (
                name, self.clock, len(self.wq), self.wq[0][0] if self.wq else None, len(self.free), len(self.aq)), file=sys.stderr)
        if not self.diag:
            return
        b = self.b
        k = self.nstamp
        self.nstamp += 1
        assert k < 62
        b.comment("stamp %d %s" % (k, name))
        b.I("s_memtime s[94:95]")
        b.wait(lg=0)
        b.I("v_writelane_b32 v%d, s94, %d" % (vSTAMP, k))
        if env("RT", 0):
            b.I("s_memrealtime s[94:95]")
            b.wait(lg=0)
            b.I("v_writelane_b32 v255, s94, %d" % k)
        if name in ("start", "end"):
            b.I("s_memrealtime s[94:95]")
            b.wait(lg=0)
            b.I("v_writelane_b32 v%d, s94, %d" % (vSTAMP, 62 if name == "start" else 63))
        self.stamp_names.append(name)

    def buf(self, kind, idx):
        base = {"O": WS_O if self.sep else WS_H, "X": WS_X, "H": WS_H}[kind]
        return base + (idx * 0x1000000 if self.sep else 0)

    def hstride(self, kind):
        return HSZ // 2 if self.rgs(kind) == sRGH else 32768

    def rgs(self, kind):
        return sRGH if kind == "H" or (kind == "O" and not self.sep) else sRG64

    def srd(self, r, ptr, size):
        I = self.b.I
        I("s_mov_b32 s%d, s%d" % (r, ptr))
        I("s_and_b32 s%d, s%d, 0xffff" % (r + 1, ptr + 1))
        I("s_mov_b32 s%d, 0x%x" % (r + 2, size))
        I("s_mov_b32 s%d, 0x20000" % (r + 3))

    def ws(self):
        return "s[%d:%d]" % (R_WS, R_WS + 3)

    def w_enqueue(self, name, layer, f0, n, order=None):
        for i in (range(n) if order is None else order):
            self.w_index[(name, layer, i)] = len(self.w_index)
            self.wq.append(((name, layer, i), f0 + i))

    def w_issue(self):
        key, f = self.wq.pop(0)
        s = self.free.pop(0)
        self.w_issued += 1
        if os.environ.get("NOW"):
            self.wslot[key] = (s, None)
            return
        grp = f // 4
        while self.wprep:
            self.b.I(self.wprep.pop(0))
        if self.pk_cur != grp:
            self.b.I("s_add_u32 s%d, s%d, 0x%x" % (sPKC, sPK, grp * 4096))
            self.pk_cur = grp
        va = vW1 + key[2] % 3 if key[0] == "w1" and env("SKIPW1", 1) else vL16
        if os.environ.get("FAKEW"):
            self.b.I("s_mov_b32 s%d, s%d" % (sPKC, sPK))
        tok = self.b.I("buffer_load_dwordx4 %s, v%d, %s, s%d offen offset:%d sc1%s" % (
            slot_r(s), va, self.ws(), sPKC, (f % 4) * 1024, " nt" if env("NT", lambda k: False)(key) else ""))
        self.wslot[key] = (s, tok)

    def w_burst(self, n):
        k = 0
        while k < n and self.wq and self.free:
            self.w_issue()
            k += 1
        self.last_bg = self.clock

    def w_get(self, key):
        self.w_need = max(self.w_need, self.w_index.get(key, 0))
        self.w_cur = key[:2]
        if key not in self.wslot:
            print("WARNING: late W load", key, file=sys.stderr)
        while key not in self.wslot:
            assert self.wq and self.free, "no free slot for %s" % (key,)
            self.w_issue()
        s, tok = self.wslot[key]
        self.b.wait(tok)
        return slot_r(s)

    def w_release(self, key):
        s, _ = self.wslot.pop(key)
        self.free.append(s)

    def stores2(self, texts, wt=False):
        b = self.b
        if wt and not FT:
            return [b.I(t + " sc1") for t in texts]
        ls, lj = b.newlabel("Lslow"), b.newlabel("Ljoin")
        b.I("s_cmp_eq_u32 s%d, 1" % sFAST)
        b.I("s_cbranch_scc0 %s" % ls)
        b.saved.pop(ls)
        toks = [b.I(t) for t in texts]
        b.raw(lj + ":")
        self.cold += [ls + ":"] + ["    " + t + " sc1" for t in texts] + ["    s_branch " + lj]
        return toks

    def pair_store(self, p, sreg, off):
        for k in range(2):
            self.b.I("v_permlane16_swap_b32 v%d, v%d" % (p + k, p + 2 + k))
        return "buffer_store_dwordx4 %s, v%d, %s, s%d offen offset:%d" % (vr(p, 4), vST, self.ws(), sreg, off)

    def spin_guard(self, lab_loop):
        b = self.b
        b.I("s_sub_u32 s%d, s%d, 1" % (sSPIN, sSPIN))
        b.I("s_cmp_lg_u32 s%d, 0" % sSPIN)
        b.I("s_cbranch_scc1 %s" % lab_loop)
        b.I("s_branch L_end")

    def new_pub(self, toks):
        self.npub += 1
        k = self.npub
        self.pub_mine[k] = self.mine

        def flag():
            b = self.b
            b.I("s_add_u32 s%d, s%d, %d" % (sT, sTAG, k))
            b.I("v_mov_b32 v%d, s%d" % (vC2, sT))
            b.wait(toks)
            b.I("s_mov_b64 exec, 1")
            self.stores2(["buffer_store_dword v%d, off, %s, s%d" % (vC2, self.ws(), sMYF)])
            b.I("s_mov_b64 exec, -1")
            self.flagged.add(k)
        return k, flag

    def poll_issue(self):
        return self.b.I("buffer_load_dword v%d, v%d, %s, s%d offen sc1" % (vPOLL, vFL, self.ws(), sFL))

    def poll_shadow(self, k, ncs):
        if not ncs:
            return self.poll_check(k)
        tok = self.poll_issue()
        self.cs1_some(ncs)
        self.poll_check(k, tok)
        self.b.wait(vm=0)

    def poll_check(self, k, tok=None):
        b = self.b
        if k not in self.flagged:
            print("WARNING: side stream late for flag", k, file=sys.stderr)
        while k not in self.flagged:
            assert self.side, "flag %d never raised before its poll" % k
            self.side_step(1)
        lp, ld, lc = b.newlabel("Lpoll"), b.newlabel("Lpd"), b.newlabel("Lpc")
        b.I("s_add_u32 s%d, s%d, %d" % (sT, sTAG, k))
        if tok is not None:
            b.wait(tok)
            b.I("s_branch %s" % lc)
        b.label(lp)
        self.Inc("buffer_load_dword v%d, v%d, %s, s%d offen sc1" % (vPOLL, vFL, self.ws(), sFL))
        if tok is None:
            b.wait(vm=0)
        else:
            b.I("s_waitcnt vmcnt(0)")
        b.label(lc)
        b.I("v_subrev_u32 v%d, s%d, v%d" % (vPOLL, sT, vPOLL))
        b.I("v_cmp_gt_u32 vcc, %d, v%d" % (16 - k, vPOLL))
        b.I("s_cmp_eq_u64 vcc, exec")
        b.I("s_cbranch_scc1 %s" % ld)
        self.spin_guard(lp)
        b.label(ld)
        self.consumed = max(self.consumed, self.pub_mine[k])

    def queue_stats(self, hf, plan):
        b = self.b
        s0 = self.seq
        assert s0 % 2 == 0
        self.seq += 2
        for j in range(2):
            def th(j=j):
                assert s0 + 1 - NSLOT <= self.consumed
                self.atok.setdefault(s0, []).append(b.I(
                    "buffer_load_dwordx4 v%d, %s, s%d offen offset:%d sc1 lds" % (vL16, self.ws(), sAO, j * 1024)))
            th.seq = s0 + 1
            th.urgent = True
            th.prep = [] if j else ["s_add_u32 m0, s%d, 0x%x" % (sW2K, (s0 % NSLOT) * 4096),
                                    "s_add_u32 s%d, s%d, 0x%x" % (sAO, sSTC, hf * 8192)]
            plan.append(th)
        return s0

    def queue_half(self, kind, idx, hf, nds, plan, rot=False, ds0=0):
        b = self.b
        seqs = []
        base = self.buf(kind, idx) + hf * self.hstride(kind)
        rg = self.rgs(kind)
        assert self.seq % 2 == 0 and nds % 2 == 0
        for ds in range(ds0, ds0 + nds):
            sq = self.seq
            self.seq += 1
            seqs.append(sq)
            s0 = sq & ~1

            def th(sq=sq, s0=s0):
                assert s0 + 1 - NSLOT <= self.consumed, "ring slot busy"
                tk = b.I("buffer_load_dwordx4 v%d, %s, s%d offen offset:%d sc1 lds" % (vDM2, self.ws(), sAO, (sq & 1) * 1024))
                if sq & 1:
                    self.atok[s0] = self.atok[s0 + 1] = [tk]
            th.seq = s0 + 1
            m0 = "s_add_u32 m0, s%d, 0x%x" % (sW2K, (sq % NSLOT) * 4096)
            if sq & 1:
                th.prep = []
            elif not rot:
                th.prep = [m0, "s_add_u32 s%d, s%d, 0x%x" % (sAO, rg, base + ds * 4096)]
            else:
                if ds == 0:
                    th.prep = ["s_add_u32 s%d, s%d, 0x%x" % (sAB, sRB2, base), "s_mov_b32 s%d, s%d" % (sXS, sRO2)]
                else:
                    th.prep = ["s_add_u32 s%d, s%d, 0x2000" % (sXS, sXS), "s_and_b32 s%d, s%d, 0x7fff" % (sXS, sXS)]
                th.prep += [m0, "s_add_u32 s%d, s%d, s%d" % (sAO, sAB, sXS)]
            plan.append(th)
        return seqs

    def queue_both(self, kind, idx, nds, plan):
        out = ([], [])
        for d0 in range(0, nds, 2):
            for hf in range(2):
                out[hf].extend(self.queue_half(kind, idx, hf, 2, plan, ds0=d0))
        return out

    def seq_issued(self):
        return self.aq[0].seq if self.aq else self.seq

    def a_burst(self, n):
        k = 0
        while k < n and self.aq and self.aq[0].seq - NSLOT <= self.consumed:
            self.a_pop()
            k += 1
        self.last_bg = self.clock

    def frag_addr(self, sq, r, h):
        off = (sq % NSLOT) * 4096 + r * 2048 + h * 1024
        return ((vL16, vA1)[off >> 16], off & 0xffff)

    def gemm_prep(self, items, groups=None, depth=8, hooks=None, pre=None, post=None, pairw=False, buf0=0):
        b = self.b
        hooks, pre, post = hooks or {}, pre or {}, post or {}
        n = len(items)
        toks = [None] * n
        grp_of = {}
        for gi, g in enumerate(groups or []):
            for sq in g:
                grp_of[sq] = gi
        opened = set()
        st = {"ip": 0}

        rem = [1 << 30] * (n + 1)
        for k in range(n - 1, -1, -1):
            rem[k] = min(rem[k + 1], items[k][2] if items[k][2] is not None else 1 << 30)

        def reg(k):
            return vr(vAF + 4 * ((k + buf0) % NAF), 4)

        def issue():
            k = st["ip"]
            a, off, sq, _ = items[k]
            if sq in grp_of and grp_of[sq] not in opened:
                gi = grp_of[sq]
                opened.add(gi)
                while any(s not in self.atok for s in groups[gi]):
                    self.a_pop()
                    self.last_bg = self.clock
                for f in pre.get(gi, []):
                    f()
                if self.gstamp:
                    self.stamp("g%d?" % gi)
                b.wait(*[self.atok[s] for s in groups[gi]])
                b.I("s_barrier")
                if self.gstamp:
                    self.stamp("g%d!" % gi)
                self.consumed = max(self.consumed, self.mine)
                for f in post.get(gi, []):
                    f()
            if a == "tr":
                r0 = vAF + 4 * ((k + buf0) % NAF)
                self.I("ds_read_b64_tr_b16 %s, v%d offset:%d" % (p2(r0), vTQ, off))
                toks[k] = self.I("ds_read_b64_tr_b16 %s, v%d offset:%d" % (p2(r0 + 2), vTQ, off + 512))
            else:
                toks[k] = self.I("ds_read_b128 %s, v%d offset:%d" % (reg(k), a, off))
            st["ip"] += 1

        def prestart(m=None):
            while st["ip"] < min(depth if m is None else m, n):
                issue()

        def run():
            prestart()
            self.slotted = True
            for j in range(n):
                thunks = items[j][3](reg(j))
                while st["ip"] <= min(j + (1 if pairw else 0), n - 1):
                    issue()
                if pairw and j % 2 == 0 and j + 1 < st["ip"]:
                    b.wait(toks[j + 1])
                b.wait(toks[j])
                if items[j][2] is not None:
                    self.cur_seq = items[j][2]
                    lim = min(self.pinned) - 3 if self.pinned else 1 << 30
                    self.mine = max(self.mine, min(rem[j] - 1, lim))
                if not thunks and st["ip"] < min(n, j + 1 + depth):
                    issue()
                for th in thunks:
                    n0 = b.nins
                    th()
                    if b.nins > n0:
                        self.slot_fill(min(n, j + 1 + depth) - st["ip"], issue)
                for f in hooks.get(j, []):
                    f()
            self.slotted = False
            self.side_flush()
            sq = [it[2] for it in items if it[2] is not None]
            if sq:
                self.cur_seq = max(sq) + 1
                lim = min(self.pinned) - 3 if self.pinned else 1 << 30
                self.mine = max(self.mine, min(max(sq), lim))
        return prestart, run

    def gemm(self, *a, **k):
        self.gemm_prep(*a, **k)[1]()

    def mf(self, d, a, bb, c=None):
        dd = vr(d, 4)
        cc = dd if c is None else c
        return lambda: self.I("v_mfma_f32_16x16x32_bf16 %s, %s, %s, %s" % (dd, a, bb, cc))

    @staticmethod
    def split(seqs, sizes):
        out, k = [], 0
        for s in sizes:
            out.append(seqs[k:k + s])
            k += s
        assert k == len(seqs)
        return out

    def stats_stage1(self, s0, hf):
        b = self.b
        t = vS1
        tk = {}
        def landed():
            while len(self.atok.get(s0, [])) < 2:
                self.a_pop()
            b.wait(self.atok[s0])
        out = ["v_add_u32 v%d, 0x%x, v%d" % (vT, (s0 % NSLOT) * 4096, vSB), landed]
        for k in range(4):
            out.append(lambda k=k: tk.__setitem__(k, b.I("ds_read2st64_b32 %s, v%d offset0:%d offset1:%d" % (
                p2(t + 2 * k), vT, 2 * k, 2 * k + 1))))
        out += [6, lambda: b.wait(tk[3])]
        out += ["v_add_f32 v%d, v%d, v%d" % (t + k, t + k, t + 4 + k) for k in range(4)]
        out += ["v_add_f32 v%d, v%d, v%d" % (t + k, t + k, t + 2 + k) for k in range(2)]
        out += ["v_add_f32 v%d, v%d, v%d" % (t, t, t + 1)]
        out.append(lambda: tk.__setitem__("w", b.I("ds_write_b32 v%d, v%d offset:%d" % (vSW, t, hf * 1024))))

        def before_barrier():
            self.side_flush()
            b.wait(tk["w"])
        return out, before_barrier

    def stats_stage2(self, hf, scale, kv):
        b = self.b
        t = vS1
        tk = {}
        out = []
        for k in range(2):
            out.append(lambda k=k: tk.__setitem__(k, b.I("ds_read2st64_b32 %s, v%d offset0:%d offset1:%d" % (
                p2(t + 2 * k), vEX, hf * 4 + 2 * k, hf * 4 + 2 * k + 1))))
        a0, b0, a1, b1 = [vAB + 4 * hf + k for k in range(4)]
        out += [6, lambda: b.wait(tk[1]),
                "v_add_f32 v%d, v%d, v%d" % (t, t, t + 2), "v_add_f32 v%d, v%d, v%d" % (t + 1, t + 1, t + 3),
                "v_add_f32 v%d, v%d, v%d" % (t, t, t + 1), "v_mul_f32 v%d, 0x3b000000, v%d" % (t, t),
                "v_mov_b32 v%d, v%d" % (t + 1, t), 1,
                "v_permlane16_swap_b32 v%d, v%d" % (t, t + 1), 1,
                "v_fma_f32 v%d, -v%d, v%d, v%d" % (t + 1, t, t, t + 1), "v_max_f32 v%d, 0, v%d" % (t + 1, t + 1),
                "v_add_f32 v%d, 0x3727c5ac, v%d" % (t + 1, t + 1), "v_rsq_f32 v%d, v%d" % (a0, t + 1), 1]
        if scale:
            out.append("v_mul_f32 v%d, v%d, v%d" % (a0, a0, vK))
        out.append("v_mul_f32_e64 v%d, -v%d, v%d" % (b0, t, a0))
        if kv:
            def wr():
                b.I("s_mov_b32 exec_lo, 0xffff")
                b.I("s_mov_b32 exec_hi, 0xffff")
                b.I("ds_write_b32 v%d, v%d" % (vSWR, a0))
                b.I("ds_write_b32 v%d, v%d offset:128" % (vSWR, b0))
                b.I("s_mov_b64 exec, -1")
            out.append(wr)
        out += ["v_mov_b32 v%d, v%d" % (a1, a0), "v_mov_b32 v%d, v%d" % (b1, b0), 1,
                "v_permlane32_swap_b32 v%d, v%d" % (a0, a1), "v_permlane32_swap_b32 v%d, v%d" % (b0, b1)]
        return out

    def stats_hooks(self, s0, hf, scale, kv, j1, gi, hooks, pre, post):
        s1, bb = self.stats_stage1(s0, hf)
        hooks.setdefault(j1, []).append(lambda: self.side.extend(s1))
        pre.setdefault(gi, []).append(bb)
        post.setdefault(gi, []).append(lambda: self.side.extend(self.stats_stage2(hf, scale, kv)))

    def stats_startup(self):
        b = self.b
        I = b.I
        t = vT
        I("v_mul_f32 v%d, 0x3b000000, v%d" % (t + 1, vS1))
        I("v_cndmask_b32 v%d, v%d, v%d, s[%d:%d]" % (t, vS2, vS2 + 1, sM1, sM1 + 1))
        I("v_cndmask_b32 v%d, v%d, v%d, s[%d:%d]" % (t, t, vS2 + 2, sM2, sM2 + 1))
        I("v_cndmask_b32 v%d, v%d, v%d, s[%d:%d]" % (t, t, vS2 + 3, sM3, sM3 + 1))
        I("v_mul_f32 v%d, 0x3b000000, v%d" % (t, t))
        I("v_fma_f32 v%d, -v%d, v%d, v%d" % (t, t + 1, t + 1, t))
        I("v_max_f32 v%d, 0, v%d" % (t, t))
        I("v_add_f32 v%d, 0x3727c5ac, v%d" % (t, t))
        I("v_rsq_f32 v%d, v%d" % (t + 2, t))
        I("v_lshlrev_b32 v%d, 1, v%d" % (t + 4, vSW))
        I("v_mul_f32_e64 v%d, -v%d, v%d" % (t + 3, t + 1, t + 2))
        I("v_subrev_u32 v%d, 0x%x, v%d" % (t + 4, L_STA - 512, t + 4))
        I("s_mov_b64 exec, s[%d:%d]" % (sDIAG, sDIAG + 1))
        I("ds_write_b32 v%d, v%d" % (vSW, t + 2))
        I("ds_write_b32 v%d, v%d offset:256" % (vSW, t + 3))
        I("ds_write_b64 v%d, v[%d:%d]" % (t + 4, t + 2, t + 3))
        I("s_mov_b64 exec, -1")
        b.wait(lg=0)
        I("s_barrier")

    def phi_pairs(self, pairs):
        I = self.I
        for c0 in range(0, len(pairs), 4):
            grp = pairs[c0:c0 + 4]
            for k, (t, d) in enumerate(grp):
                I("v_pk_mul_f32 %s, %s, %s %s" % (p2(vT + 2 * k), p2(t), p2(vK), K_L2E))
            for k, (t, d) in enumerate(grp):
                I("v_exp_f32_e64 v%d, v%d clamp" % (vT + 2 * k, vT + 2 * k))
                I("v_max_f32 v%d, v%d, v%d" % (t, vK + 1, t))
                I("v_exp_f32_e64 v%d, v%d clamp" % (vT + 2 * k + 1, vT + 2 * k + 1))
                I("v_max_f32 v%d, v%d, v%d" % (t + 1, vK + 1, t + 1))
            for k, (t, d) in enumerate(grp):
                I("v_pk_add_f32 %s, %s, %s" % (p2(t), p2(t), p2(vT + 2 * k)))
            for k, (t, d) in enumerate(grp):
                I("v_cvt_pk_bf16_f32 v%d, v%d, v%d" % (d, t, t + 1))

    def kv_epilogue(self, hf, ra, rb):
        I = self.I
        K, V = vACC + 8 * hf, vACC + 16 + 8 * hf
        for j in range(4):
            I("v_pk_fma_f32 %s, %s, %s, %s op_sel:[0,0,1] op_sel_hi:[1,1,1]" % (p2(vT + 2 * j), p2(rb + 2 * j), p2(vCSK), p2(vK)))
            I("v_pk_mul_f32 %s, %s, %s" % (p2(vT + 8 + 2 * j), p2(rb + 2 * j), p2(vCSV)))
        for j in range(4):
            I("v_pk_fma_f32 %s, %s, %s, %s" % (p2(K + 2 * j), p2(ra + 2 * j), p2(K + 2 * j), p2(vT + 2 * j)))
            I("v_pk_fma_f32 %s, %s, %s, %s" % (p2(V + 2 * j), p2(ra + 2 * j), p2(V + 2 * j), p2(vT + 8 + 2 * j)))
        for j in range(4):
            I("v_cvt_pk_bf16_f32 v%d, v%d, v%d" % (V + j, V + 2 * j, V + 2 * j + 1))
        self.phi_pairs([(K + 2 * j, K + j) for j in range(4)])

    def startup(self):
        b = self.b
        I = b.I
        i_, g_, l3, l7, q0, tc = vT + 2, vT + 3, vT + 6, vT + 7, vT + 8, vT + 9
        if self.diag:
            I("s_memtime s[92:93]")
        I("s_cmp_ge_u32 s2, 256")
        I("s_cbranch_scc1 L_end")
        I("s_load_dwordx4 s[4:7], s[0:1], 0")
        I("s_load_dwordx2 s[20:21], s[0:1], 64")
        I("s_load_dwordx2 s[8:9], s[0:1], 16")
        I("s_load_dwordx4 s[12:15], s[0:1], 32")
        I("s_load_dwordx4 s[16:19], s[0:1], 48")
        I("s_getpc_b64 s[90:91]")
        b.label("L_pc")
        I("v_lshrrev_b32 v%d, 6, v0" % vT)
        I("v_and_b32 v0, 63, v0")
        I("v_readfirstlane_b32 s%d, v%d" % (sW, vT))
        I("s_lshr_b32 s%d, s2, 3" % (sT + 1))
        I("s_lshl_b32 s%d, s%d, 2" % (sT + 3, sT + 1))
        I("s_add_u32 s%d, s%d, s%d" % (sT + 3, sT + 3, sW))
        I("s_and_b32 s%d, s%d, 31" % (sT, sT + 3))
        I("s_lshl_b32 s%d, s%d, 11" % (sT, sT))
        I("v_lshlrev_b32 v%d, 7, v0" % vTCH)
        I("v_add_u32 v%d, s%d, v%d" % (vT, sT, vTCH))
        I("v_min_u32 v%d, L_end-L_pc, v%d" % (vT, vT))
        I("s_mov_b64 exec, 0xffff")
        I("global_load_dword v%d, v%d, s[90:91]" % (vDUM, vT))
        I("s_mov_b64 exec, -1")
        I("s_and_b32 s%d, s2, 7" % sROT)
        I("s_and_b32 s%d, s%d, 7" % (sC, sT + 1))
        I("s_lshr_b32 s%d, s%d, 3" % (sQ, sT + 1))
        I("s_lshl_b32 s%d, s%d, 2" % (sT, sROT))
        I("s_add_u32 s%d, s%d, s%d" % (sRG, sT, sQ))
        I("s_lshl_b32 s%d, s%d, 16" % (sRG64, sRG))
        I("s_lshl_b32 s%d, s%d, 11" % (sW2K, sW))
        I("v_lshrrev_b32 v%d, 4, v0" % g_)
        I("v_and_b32 v%d, 15, v0" % i_)
        tw, tx = vT + 12, vT + 13
        I("s_mul_i32 s%d, s%d, %d" % (sT + 2, sT + 3, 4 * 3072))
        I("v_lshlrev_b32 v%d, 10, v0" % tx)
        I("v_add_u32 v%d, s%d, v%d" % (tw, sT + 2, tx))
        I("s_lshl_b32 s%d, s%d, 18" % (sT + 2, sROT))
        I("s_lshl_b32 s%d, s%d, 11" % (sT, sT + 3))
        I("s_add_u32 s%d, s%d, s%d" % (sT, sT, sT + 2))
        I("v_add_u32 v%d, s%d, v%d" % (tx, sT, tx))
        I("v_lshrrev_b32 v%d, 3, v0" % l3)
        I("v_and_b32 v%d, 7, v0" % l7)
        I("v_xor_b32 v%d, v%d, v%d" % (vT + 4, l7, g_))
        I("v_lshlrev_b32 v%d, 4, v%d" % (vT + 4, vT + 4))
        I("v_lshl_add_u32 v%d, v%d, 10, v%d" % (vT + 4, l3, vT + 4))
        I("s_lshl_b32 s%d, s%d, 14" % (sT + 1, sW))
        I("v_add_u32 v%d, s%d, v%d" % (vXS0, sT + 1, vT + 4))
        I("v_xor_b32 v%d, 64, v%d" % (vXS1, vXS0))
        I("v_add_u32 v%d, 7168, v%d" % (vXS1, vXS1))
        I("v_and_b32 v%d, 1, v%d" % (vT + 4, g_))
        I("v_lshlrev_b32 v%d, 1, v%d" % (vT + 4, vT + 4))
        I("v_xor_b32 v%d, v%d, v%d" % (q0, l7, vT + 4))
        I("v_lshlrev_b32 v%d, 4, v%d" % (q0, q0))
        I("s_and_b32 s%d, s%d, 1" % (sT + 1, sW))
        I("s_lshl_b32 s%d, s%d, 6" % (sT + 1, sT + 1))
        I("v_xor_b32 v%d, s%d, v%d" % (vT + 4, sT + 1, q0))
        I("s_lshl_b32 s%d, s%d, 3" % (sT + 1, sW))
        I("v_add_u32 v%d, s%d, v%d" % (vT + 5, sT + 1, l3))
        I("v_mul_u32_u24 v%d, 3072, v%d" % (vT + 5, vT + 5))
        I("v_add_u32 v%d, v%d, v%d" % (vWS, vT + 4, vT + 5))
        sXO, sWO_, sRB = sAB, sAO, 93
        I("s_lshl_b32 s%d, s%d, 7" % (sWO_, sC))
        I("v_add_u32 v%d, s%d, v%d" % (vWS, sWO_, vWS))
        if self.diag:
            b.wait(lg=0)
            I("s_mov_b32 s91, s92")
        I("s_add_u32 s%d, s%d, 0x%x" % (sRB, sW2K, L_RING - 1024))
        I("s_lshl_b32 s%d, s%d, 7" % (sXO, sROT))
        I("s_mul_i32 s%d, s%d, %d" % (sWO_, sROT, 64 * 3072))
        if self.diag:
            I("v_mov_b32 v%d, 0" % vSTAMP)
        b.wait(lg=0)
        if self.diag:
            I("v_writelane_b32 v%d, s91, 61" % vSTAMP)
        self.stamp("start")
        I("s_add_u32 s88, s%d, 0x%x" % (S_WS, WS_EP))
        I("s_addc_u32 s89, s%d, 0" % (S_WS + 1))
        I("s_load_dword s%d, s[88:89], 0" % sEP)
        self.srd(R_WQ, S_WQ, 512 * 3072)
        I("s_add_u32 s%d, s%d, s%d" % (R_X, S_X, sRG64))
        I("s_addc_u32 s%d, s%d, 0" % (R_X + 1, S_X + 1))
        I("s_and_b32 s%d, s%d, 0xffff" % (R_X + 1, R_X + 1))
        I("s_mov_b32 s%d, 0x10000" % (R_X + 2))
        I("s_mov_b32 s%d, 0x20000" % (R_X + 3))
        tokA, tokW = {}, {}

        def issue_thunks(ks):
            th = []
            if ks % 2 == 0:
                ds = ks // 2
                tokA[ds] = []
                pre = ["s_add_u32 m0, s%d, 0x%x" % (sW2K, ds * 8192)]
                if ds:
                    pre += ["s_add_u32 s%d, s%d, 128" % (sXO, sXO), "s_and_b32 s%d, s%d, 0x380" % (sXO, sXO)]
                th.append((pre, lambda: tokA[ds].append(
                    I("buffer_load_dwordx4 v%d, s[%d:%d], s%d offen lds" % (vXS0, R_X, R_X + 3, sXO)))))
                th.append(([], lambda: tokA[ds].append(
                    I("buffer_load_dwordx4 v%d, s[%d:%d], s%d offen offset:1024 lds" % (vXS1, R_X, R_X + 3, sXO)))))
            tokW[ks] = []
            for p in range(2):
                pre = []
                if p == 0:
                    if ks:
                        pre.append("s_add_u32 s%d, s%d, %d" % (sWO_, sWO_, 32 * 3072))
                        if ks % 2 == 0:
                            pre += ["s_cmp_eq_u32 s%d, %d" % (sWO_, 512 * 3072), "s_cselect_b32 s%d, 0, s%d" % (sWO_, sWO_)]
                    pre.append("s_add_u32 m0, s%d, 0x%x" % (sRB, (ks % NR) * 8192))
                th.append((pre, lambda p=p: tokW[ks].append(I("buffer_load_dwordx4 v%d, s[%d:%d], s%d offen offset:%d lds" % (
                    vWS, R_WQ, R_WQ + 3, sWO_, (p + 1) * 1024)))))
            return th

        tokQ = []

        def rq_base(ks):
            return L_PACK + ks * 4096 if ks < 4 else L_WQ + (ks - 4) * 4096

        def q_thunk(ks):
            pre = ["s_add_u32 s%d, s%d, %d" % (sWO_, sWO_, 32 * 3072)]
            if ks % 2 == 0:
                pre += ["s_cmp_eq_u32 s%d, %d" % (sWO_, 512 * 3072), "s_cselect_b32 s%d, 0, s%d" % (sWO_, sWO_)]
            pre.append("s_add_u32 m0, s%d, 0x%x" % (sW1K, rq_base(ks)))
            return (pre, lambda: tokQ.append(I("buffer_load_dwordx4 v%d, s[%d:%d], s%d offen lds" % (vWS, R_WQ, R_WQ + 3, sWO_))))
        self.tokQ, self.rq_base = tokQ, rq_base

        def issue_now(ks):
            for pre, th in issue_thunks(ks):
                for t in pre:
                    I(t)
                th()

        if env("T0", 1):
            self.srd(R_PK, S_X, 2048 * 1024)
            for ptr, srd, v, mask in ((S_WQ, R_WQ, tw, 0xfff), (S_X, R_PK, tx, 3)):
                I("s_sub_u32 s%d, 0x180, s%d" % (sT, ptr))
                I("s_and_b32 s%d, s%d, 0x380" % (sT, sT))
                I("s_mov_b64 exec, 0x%x" % mask)
                I("buffer_load_dword v%d, v%d, s[%d:%d], s%d offen" % (vDUM, v, srd, srd + 3, sT))
            I("s_mov_b64 exec, -1")
        NFIRST = env("NFIRST", 4)
        for ks in range(NFIRST):
            issue_now(ks)
        if env("EARLYP", 0):
            ptk = self.pack_load(l3, q0)
        self.stamp("first")
        I("s_getreg_b32 s%d, hwreg(HW_REG_XCC_ID, 0, 4)" % sXCC)
        I("s_mov_b32 s%d, 0x100000" % sSPIN)
        self.srd(R_WS, S_WS, WS_SIZE)
        self.srd(R_OUT, S_OUT, 2048 * 1024)
        I("v_lshlrev_b32 v%d, 4, v0" % vL16)
        I("v_lshlrev_b32 v%d, 2, v0" % vL4)
        I("s_lshl_b32 s%d, s%d, 10" % (sW1K, sW))
        I("s_lshl_b32 s%d, s%d, 2" % (sT, sC))
        I("s_add_u32 s%d, s%d, s%d" % (sT, sT, sW))
        I("s_mul_i32 s%d, s%d, %d" % (sKV, sT, KVH))
        I("s_add_u32 s%d, s%d, 0x%x" % (sKV, sKV, WS_KV + KB0))
        I("v_mov_b32 v%d, 0" % vC2)
        I("s_and_b32 s%d, s%d, 15" % (sT + 1, sRG))
        I("s_mul_i32 s%d, s%d, %d" % (sT + 1, sT + 1, KVH // 16))
        I("s_add_u32 s%d, s%d, s%d" % (sT + 1, sT + 1, sKV))
        I("s_lshr_b32 s%d, s%d, 4" % (sT + 2, sRG))
        I("s_mul_i32 s%d, s%d, %d" % (sT + 2, sT + 2, KVL))
        I("s_add_u32 s%d, s%d, s%d" % (sT + 1, sT + 1, sT + 2))
        I("v_mov_b32 v%d, 0" % vPOLL)
        I("v_mov_b32 v%d, 0" % (vPOLL + 1))
        I("v_lshlrev_b32 v%d, 3, v0" % (vT + 4))
        assert KVH % 128 == 0 and KVH // 128 <= 64
        mask = (1 << (KVH // 128)) - 1
        I("s_mov_b32 exec_lo, 0x%x" % (mask & 0xffffffff))
        I("s_mov_b32 exec_hi, 0x%x" % (mask >> 32))
        ztok = I("buffer_store_dwordx2 %s, v%d, %s, s%d offen sc1" % (p2(vPOLL), vT + 4, self.ws(), sT + 1))
        I("s_mov_b64 exec, -1")
        I("s_mul_i32 s%d, s%d, %d" % (sPK, sT, PKW))
        I("s_lshl_b32 s%d, s%d, 7" % (sFL, sRG))
        I("s_lshl_b32 s%d, s%d, 12" % (sR1, sC))
        I("s_add_u32 s%d, s%d, 0x%x" % (sR1, sR1, WS_R2))
        I("s_add_u32 s%d, s%d, 0x%x" % (sFL, sFL, WS_FL))
        I("s_lshl_b32 s%d, s%d, 2" % (sMYF, sT))
        I("s_add_u32 s%d, s%d, s%d" % (sMYF, sMYF, sFL))
        I("s_lshl_b32 s%d, s%d, 14" % (sSTC, sRG))
        I("s_add_u32 s%d, s%d, 0x%x" % (sSTC, sSTC, WS_ST))
        I("s_lshl_b32 s%d, s%d, 8" % (sSTP, sT))
        I("s_add_u32 s%d, s%d, s%d" % (sSTP, sSTP, sSTC))
        I("s_add_u32 s%d, s%d, s%d" % (sSTC, sSTC, sW2K))
        I("s_mul_i32 s%d, s%d, %d" % (sRGH, sRG, HSZ))
        I("s_lshl_b32 s%d, s%d, 12" % (sSTO, sC))
        I("s_lshl_b32 s%d, s%d, 9" % (sT + 1, sW))
        I("s_add_u32 s%d, s%d, s%d" % (sSTO, sSTO, sT + 1))
        I("s_lshl_b32 s%d, s%d, 5" % (sOUT, sT))
        I("s_mul_i32 s%d, s%d, 3" % (sT, sT))
        for t in range(3):
            I("s_add_u32 s%d, s%d, %d" % (sT + 1, sT, t))
            I("s_lshr_b32 s%d, s%d, 2" % (sT + 2, sT + 1))
            I("s_lshl_b32 s%d, s%d, 12" % (sT + 2, sT + 2))
            I("s_and_b32 s%d, s%d, 3" % (sT + 3, sT + 1))
            I("s_lshl_b32 s%d, s%d, 9" % (sT + 3, sT + 3))
            I("s_add_u32 s%d, s%d, s%d" % (sT + 2, sT + 2, sT + 3))
            I("s_add_u32 s%d, s%d, s%d" % (sT + 2, sT + 2, sRGH))
            I("s_cmp_lt_u32 s%d, 86" % (sT + 1))
            I("s_cselect_b32 s%d, s%d, 0x%x" % (sH0 + t, sT + 2, OOB))
            I("s_cselect_b32 s%d, 0, 0x%x" % (sT + 2, OOB))
            I("v_add_u32 v%d, s%d, v%d" % (vW1 + t, sT + 2, vL16))
        I("v_add_u32 v%d, 0x10000, v%d" % (vA1, vL16))
        I("v_add_u32 v%d, s%d, v%d" % (vDMA, sW1K, vL16))
        I("v_add_u32 v%d, s%d, v%d" % (vDM2, sW2K, vL16))
        I("s_lshr_b32 s%d, s%d, 1" % (sT + 1, sW))
        I("s_add_u32 s%d, s%d, s%d" % (sRO2, sROT, sT + 1))
        I("s_and_b32 s%d, s%d, 7" % (sRO2, sRO2))
        I("s_lshl_b32 s%d, s%d, 12" % (sRO2, sRO2))
        I("s_lshl_b32 s%d, s%d, 12" % (sT + 1, sT + 1))
        I("s_sub_u32 s%d, s%d, s%d" % (sRB2, sRG64, sT + 1))
        I("v_and_b32 v%d, 0x7c, v%d" % (vFL, vL4))
        I("v_lshrrev_b32 v%d, 1, v%d" % (vT + 4, g_))
        I("v_lshlrev_b32 v%d, 8, v%d" % (vT + 4, vT + 4))
        I("v_lshl_add_u32 v%d, v%d, 4, v%d" % (vT + 4, i_, vT + 4))
        I("v_and_b32 v%d, 1, v%d" % (vT + 5, g_))
        I("v_lshl_add_u32 v%d, v%d, 11, v%d" % (vST, vT + 5, vT + 4))
        I("v_lshlrev_b32 v%d, 4, v%d" % (vSTA, g_))
        I("v_add_u32 v%d, 0x%x, v%d" % (vSTA, L_STA, vSTA))
        I("v_lshlrev_b32 v%d, 3, v%d" % (vSTQ, i_))
        I("v_add_u32 v%d, 0x%x, v%d" % (vSTQ, L_STA + 512, vSTQ))
        I("s_lshl_b32 s%d, s%d, 6" % (sT, sW))
        I("s_add_u32 s%d, s%d, 0x%x" % (sT, sT, L_STA))
        I("v_lshlrev_b32 v%d, 2, v%d" % (vSW, i_))
        I("v_add_u32 v%d, s%d, v%d" % (vSW, sT, vSW))
        I("v_lshrrev_b32 v%d, 3, v%d" % (vT + 4, i_))
        I("v_lshlrev_b32 v%d, 10, v%d" % (vT + 4, vT + 4))
        I("v_and_b32 v%d, 7, v%d" % (vT + 5, i_))
        I("v_lshl_add_u32 v%d, v%d, 7, v%d" % (vT + 4, vT + 5, vT + 4))
        I("v_lshrrev_b32 v%d, 1, v%d" % (vT + 5, i_))
        I("v_xor_b32 v%d, v%d, v%d" % (vT + 5, vT + 5, g_))
        I("v_lshl_add_u32 v%d, v%d, 4, v%d" % (vX0, vT + 5, vT + 4))
        I("v_xor_b32 v%d, 64, v%d" % (vX1, vX0))
        I("v_add_u32 v%d, s%d, v%d" % (vOW0, sW2K, vX0))
        I("v_add_u32 v%d, s%d, v%d" % (vOW1, sW2K, vX1))
        I("v_bfe_u32 v%d, v0, 2, 2" % (vT + 4))
        I("v_bfe_u32 v%d, v0, 3, 1" % (vT + 5))
        I("v_lshlrev_b32 v%d, 1, v%d" % (vT + 5, vT + 5))
        I("v_bfe_u32 v%d, v0, 4, 1" % (vT + 10))
        I("v_lshl_add_u32 v%d, v%d, 2, v%d" % (vT + 5, vT + 10, vT + 5))
        I("v_bfe_u32 v%d, v0, 1, 1" % (vT + 10))
        I("v_xor_b32 v%d, v%d, v%d" % (vT + 5, vT + 5, vT + 10))
        I("v_lshlrev_b32 v%d, 4, v%d" % (vT + 5, vT + 5))
        I("v_lshl_add_u32 v%d, v%d, 7, v%d" % (tc, vT + 4, vT + 5))
        I("v_and_b32 v%d, 1, v0" % (vT + 10))
        I("v_lshl_add_u32 v%d, v%d, 3, v%d" % (tc, vT + 10, tc))
        I("s_lshl_b32 s%d, s%d, 5" % (sT + 1, sW))
        I("v_xor_b32 v%d, s%d, v%d" % (vT + 4, sT + 1, tc))
        I("v_lshl_add_u32 v%d, v%d, 10, v%d" % (vTQ, g_, vT + 4))
        I("v_add_u32 v%d, 0x%x, v%d" % (vTQ, L_WQ, vTQ))
        I("v_lshl_add_u32 v%d, v%d, 11, v%d" % (vT + 4, g_, vT + 4))
        I("v_add_u32 v%d, 0x%x, v%d" % (vTR, L_RING, vT + 4))
        for k in range(4):
            I("v_mov_b32 v%d, 0x3f803f80" % (vONE + k))
        I("v_mov_b32 v%d, 0x3fb8aa3b" % vK)
        I("v_mov_b32 v%d, 0x358637bd" % (vK + 1))
        I("s_mul_i32 s%d, s%d, 2560" % (sT, sW))
        I("s_add_u32 s%d, s%d, 0x%x" % (sT, sT, L_KVI))
        I("v_add_u32 v%d, s%d, v%d" % (vKVL, sT, vL4))
        for r in range(4):
            I("v_add_u32 v%d, %d, v0" % (vT + 4, 64 * r))
            I("v_mul_u32_u24 v%d, 4370, v%d" % (vT + 5, vT + 4))
            I("v_lshrrev_b32 v%d, 16, v%d" % (vT + 5, vT + 5))
            I("v_add_u32 v%d, v%d, v%d" % (vT + 4, vT + 4, vT + 5))
            I("v_lshlrev_b32 v%d, 2, v%d" % (vT + 4, vT + 4))
            I("v_add_u32 v%d, s%d, v%d" % (vPOS + r, sT, vT + 4))
        I("v_lshrrev_b32 v%d, 1, v%d" % (vT + 4, g_))
        I("v_add_u32 v%d, v%d, v%d" % (vT + 4, vT + 4, g_))
        I("v_lshlrev_b32 v%d, 4, v%d" % (vT + 4, vT + 4))
        I("s_add_u32 s%d, s%d, %d" % (sT, sT, 276 * 4))
        I("v_add_u32 v%d, s%d, v%d" % (vZP, sT, vT + 4))
        I("v_cmp_eq_u32 vcc, 15, v%d" % i_)
        I("v_cndmask_b32 v%d, 0, 1.0, vcc" % (vT + 4))
        b.wait(lg=0)
        for k in range(5):
            I("ds_write_b32 v%d, v%d offset:%d" % (vKVL, vT + 4, 256 * k))
        I("s_xor_b32 s%d, s%d, 0x80000000" % (sTAG, sEP))
        I("s_and_b32 s%d, s%d, 0xfffffff0" % (sTAG, sTAG))
        I("s_mov_b32 s%d, 0x358637bd" % sEPS)
        for r, val in ((sM1, 0x22222222), (sM2, 0x44444444), (sM3, 0x88888888)):
            I("s_mov_b32 s%d, 0x%x" % (r, val))
            I("s_mov_b32 s%d, 0x%x" % (r + 1, val))
        I("s_mov_b32 s%d, 0x00f0000f" % sDIAG)
        I("s_mov_b32 s%d, 0xf0000f00" % (sDIAG + 1))
        I("v_lshlrev_b32 v%d, 10, v%d" % (vT + 4, g_))
        I("s_lshl_b32 s%d, s%d, 12" % (sT, sW))
        I("v_add_u32 v%d, s%d, v%d" % (vT + 4, sT, vT + 4))
        for t in range(4):
            I("v_xor_b32 v%d, %d, v%d" % (vCS1 + 4 + t, 32 * t, tc))
            I("v_add_u32 v%d, v%d, v%d" % (vCS1 + 4 + t, vCS1 + 4 + t, vT + 4))
            I("v_add_u32 v%d, 0x%x, v%d" % (vCS1 + 4 + t, L_PACK, vCS1 + 4 + t))
        I("v_lshlrev_b32 v%d, 10, v%d" % (vT + 14, i_))
        I("v_lshl_add_u32 v%d, v%d, 3, v%d" % (vT + 14, g_, vT + 14))
        I("s_add_u32 s%d, s%d, s%d" % (sT, sTAG, sXCC))
        I("v_mov_b32 v%d, s%d" % (vT + 15, sT))
        for ks in range(NFIRST, env('NINIT', 6)):
            issue_now(ks)
        nxt = env('NINIT', 6)
        nq = 0
        if not env("EARLYP", 0):
            ptk = self.pack_load(l3, q0)
        I("s_mov_b64 exec, 1")
        I("buffer_load_dword v%d, off, %s, s%d sc1" % (vDUM, self.ws(), sFL))
        I("s_mov_b64 exec, -1")
        self.stamp("setup")

        tmp = [self.free.pop() for _ in range(6)]
        assert all(s[0] == "v" for s in tmp)
        cK, cV = tmp[4][1], tmp[5][1]
        res_toks = []
        KZ = env("KZ", 2)
        KP, KANN, KI, KC = env("KP", 4), env("KANN", 9), env("KI", 12), env("KC", 99)
        for ks in range(17):
            fill, dma, nrd = [], [], 0
            if ks < 16:
                b.wait(tokW[ks], tokA[ks // 2])
                if ks == KZ:
                    b.wait(ztok)
                if ks == KANN:
                    b.wait(pst)
                I("s_barrier")
                if ks == 0:
                    self.stamp("w0")
                elif env("LSTAMP", 0):
                    self.stamp("it%d" % ks)
                if ks == KC:
                    self.r1_check()
                    self.bg_w = len(self.free) - 2 * (16 - ks) - 16
                    self.last_bg = self.clock
                if ks in (KZ, KANN):
                    lx = b.newlabel("Lann")
                    I("s_cmp_lg_u32 s%d, 0" % sW)
                    I("s_cbranch_scc1 %s" % lx)
                    I("s_lshl_b32 s%d, s%d, 7" % (sT, sRG))
                    I("s_add_u32 s%d, s%d, s%d" % (sT, sT, sR1))
                    if ks == KANN:
                        I("s_add_u32 s%d, s%d, 0x%x" % (sT, sT, WS_R3 - WS_R2))
                    I("s_mov_b64 exec, 1")
                    self.Inc("buffer_store_dword v%d, off, %s, s%d sc1" % (vT + 15, self.ws(), sT))
                    I("s_mov_b64 exec, -1")
                    b.label(lx)
                for p in range(2):
                    s = self.free.pop(0)
                    self.wslot[("qkv", 0, 2 * ks + p)] = (s, None)
                    for hh in range(2):
                        fill.append(lambda s=s, hh=hh, p=p: I("ds_read_b64_tr_b16 %s, v%d offset:%d" % (
                            vr(s[1] + 2 * hh, 2, s[0]), vTR, (ks % NR) * 8192 + p * 1024 + hh * 512)))
                fb = vAF + (ks & 1) * 20
                ds, h = ks // 2, ks & 1
                for rt in range(4):
                    fill.append(lambda rt=rt: I("ds_read_b128 %s, v%d offset:%d" % (
                        vr(fb + 4 * rt, 4), (vX0, vX1)[h], ds * 8192 + rt * 2048)))
                fill.append(lambda: I("ds_read_b128 %s, v%d offset:%d" % (vr(fb + 16, 4), (vOW0, vOW1)[h], ds * 8192)))
                nrd = len(fill)
                k2 = 0
                while nxt < min(16, ks + NR) and k2 < 2:
                    dma += issue_thunks(nxt)
                    nxt += 1
                    k2 += 1
                if nxt == 16 and not dma and ks > KP + 1:
                    while nq < 16 and len(dma) < env("QPER", 3) and (nq < 4 or 10 + (nq - 4) // 2 < ks):
                        dma.append(q_thunk(nq))
                        nq += 1
                if ks == KI:
                    fill.append(self.r1_issue)
                if ks == env("KOX", 15) and FT:
                    def tch():
                        self.touch_ox(0)
                        I("v_and_b32 v%d, 1, v0" % vT)
                        I("v_lshrrev_b32 v%d, 1, v0" % (vT + 1))
                        I("v_lshlrev_b32 v%d, 13, v%d" % (vT + 1, vT + 1))
                        I("v_lshl_add_u32 v%d, v%d, 7, v%d" % (vT + 5, vT, vT + 1))
                        I("s_mov_b64 exec, 15")
                        I("buffer_load_dword v%d, v%d, %s, s%d offen sc1" % (vDUM, vT + 5, self.ws(), sSTP))
                        I("s_mov_b64 exec, -1")
                    fill.append(tch)
                if ks == KP:
                    def prd():
                        b.wait(ptk)
                        for t in range(4):
                            for hh in range(2):
                                I("ds_read_b64_tr_b16 %s, v%d offset:%d" % (p2(tmp[t][1] + 2 * hh), vCS1 + 4 + t, hh * 512))
                    fill.append(prd)
            mfs = []
            if ks >= 1:
                k1 = ks - 1
                fb1 = vAF + (k1 & 1) * 20
                c0 = "0" if k1 == 0 else None
                wk, wv = [slot_r(self.wslot[("qkv", 0, k)][0]) for k in (2 * k1, 2 * k1 + 1)]
                one = vr(vONE, 4)
                for rt in range(4):
                    mfs.append(self.mf(vACC + 4 * rt, vr(fb1 + 4 * rt, 4), wk, c0))
                    mfs.append(self.mf(vACC + 16 + 4 * rt, vr(fb1 + 4 * rt, 4), wv, c0))
                own = vr(fb1 + 16, 4)
                mfs += [self.mf(vS1, one, own, c0), self.mf(vS2, own, own, c0),
                        self.mf(cK, one, wk, c0), self.mf(cV, one, wv, c0)]
            rds, extra = fill[:nrd], fill[nrd:]
            for _ in range(min(3, len(rds))):
                rds.pop(0)()
            while mfs:
                mfs.pop(0)()
                if rds:
                    for _ in range(min(2, len(rds))):
                        rds.pop(0)()
                    if len(rds) <= 2 and dma and dma[0][0]:
                        I(dma[0][0].pop(0))
                elif dma:
                    if dma[0][0]:
                        while dma[0][0]:
                            I(dma[0][0].pop(0))
                    else:
                        dma.pop(0)[1]()
                elif extra:
                    extra.pop(0)()
            for f in rds:
                f()
            for pre, th in dma:
                for t in pre:
                    I(t)
                th()
            for f in extra:
                f()
            b.wait(lg=0)
            if ks == KP:
                pst = [I("buffer_store_dwordx4 %s, v%d, %s, s%d offen sc1" % (slot_r(tmp[t]), vL16, self.ws(), 80 + t))
                       for t in range(4)]
        I("s_sub_u32 s%d, s%d, s%d" % (sT, sC, sROT))
        I("s_and_b32 s%d, s%d, 7" % (sT, sT))
        I("s_lshl_b32 s%d, s%d, 13" % (sT, sT))
        I("v_lshrrev_b32 v%d, 4, v0" % vT)
        I("v_lshrrev_b32 v%d, 5, v0" % (vT + 1))
        I("v_xor_b32 v%d, v%d, v%d" % (vT + 1, vT + 1, vT))
        I("s_lshl_b32 s%d, s%d, 1" % (sT + 1, sW))
        I("v_xor_b32 v%d, s%d, v%d" % (vT + 1, sT + 1, vT + 1))
        I("v_lshlrev_b32 v%d, 4, v%d" % (vT + 1, vT + 1))
        I("v_xor_b32 v%d, v%d, v%d" % (vT + 1, vT + 1, vX0))
        I("v_and_b32 v%d, 1, v%d" % (vT, vT))
        I("v_lshl_add_u32 v%d, v%d, 3, v%d" % (vT + 1, vT, vT + 1))
        I("v_add_u32 v%d, s%d, v%d" % (vT + 1, sT, vT + 1))
        res = [I("ds_read_b64 %s, v%d offset:%d" % (p2(vS1 + 8 + 0) if False else p2(vACC + 32 + 2 * rt), vT + 1, rt * 2048)) for rt in range(4)]
        I("v_mov_b32 v%d, v%d" % (vOA, vT + 14))
        self.bg_w = 0
        self.stamp("kvpass")
        if KC > 16:
            self.r1_check()
        self.stats_startup()
        while nq < 16:
            pre, th = q_thunk(nq)
            for t in pre:
                I(t)
            th()
            nq += 1
        t1 = []
        for rt in range(4):
            t1.append(I("ds_read_b128 %s, v%d offset:%d" % (vr(vAF + 4 * rt, 4), vSTA, rt * 64)))
            t1.append(I("ds_read_b128 %s, v%d offset:%d" % (vr(vAF + 16 + 4 * rt, 4), vSTA, 256 + rt * 64)))
        for rt in range(4):
            t1.append(I("ds_read_b64 %s, v%d offset:%d" % (p2(vAB + 2 * rt), vSTQ, rt * 128)))
        for k in range(2):
            I("v_mov_b32 v%d, v%d" % (vCSK + k, cK))
            I("v_mov_b32 v%d, v%d" % (vCSV + k, cV))
        self.free += tmp
        I("v_add_u32 v%d, s%d, v%d" % (vSB, sW2K, vL4))
        I("v_add_u32 v%d, 0x%x, v%d" % (vEX, L_EX, vL4))
        I("s_lshl_b32 s%d, s%d, 8" % (sT, sW))
        I("v_add_u32 v%d, s%d, v%d" % (vSW, sT, vEX))
        I("v_and_b32 v%d, 15, v0" % vT)
        I("v_lshrrev_b32 v%d, 5, v0" % (vT + 1))
        I("v_lshlrev_b32 v%d, 6, v%d" % (vT + 1, vT + 1))
        I("v_lshl_add_u32 v%d, v%d, 2, v%d" % (vSWR, vT, vT + 1))
        I("s_add_u32 s%d, s%d, 0x%x" % (sT, sT, L_STA))
        I("v_add_u32 v%d, s%d, v%d" % (vSWR, sT, vSWR))
        for rt in range(4):
            for k in range(2):
                s = vACC + 32 + 2 * rt + k
                I("v_lshlrev_b32 v%d, 16, v%d" % (vX + 4 * rt + 2 * k, s))
                I("v_and_b32 v%d, 0xffff0000, v%d" % (vX + 4 * rt + 2 * k + 1, s))
        early = env("R3EARLY", 0)
        I("v_and_b32 v%d, 0xfff, v%d" % (vCS1, vTCH))
        I("s_add_u32 s%d, s%d, 0x%x" % (sR1, sR1, WS_R3 - WS_R2))
        self.r3_tok = I("buffer_load_dword v%d, v%d, %s, s%d offen sc1" % (vPOLL, vCS1, self.ws(), sR1))
        b.wait(t1)
        I("s_lshl_b32 s%d, s%d, 8" % (sT, sW))
        I("v_add_u32 v%d, s%d, v%d" % (vSTA, sT, vSTA))
        for hf in range(2):
            self.kv_epilogue(hf, vAF + 8 * hf, vAF + 16 + 8 * hf)

    def pack_load(self, l3, q0):
        b = self.b
        I = b.I
        dst = 80
        uid, src, strd = sT, sT + 1, sT + 2
        I("s_lshl_b32 s%d, s%d, 2" % (uid, sRG))
        I("s_add_u32 s%d, s%d, s%d" % (uid, uid, sW))
        lw1, lw2, lnone, lgo = [b.newlabel("Lpk") for _ in range(4)]
        I("s_mul_i32 s88, s%d, %d" % (sC, 4 * PKW))
        I("s_mov_b32 s%d, 0x20000" % (R_PK + 3))

        def setsrd(ptr, size, stride):
            I("s_mov_b32 s%d, s%d" % (R_PK, ptr))
            I("s_and_b32 s%d, s%d, 0xffff" % (R_PK + 1, ptr + 1))
            I("s_mov_b32 s%d, %d" % (R_PK + 2, size))
            I("s_movk_i32 s%d, %d" % (strd, stride))

        def simple(f0):
            I("s_lshl_b32 s%d, s%d, 15" % (src, uid))
            I("s_lshl_b32 s89, s%d, 7" % sC)
            I("s_add_u32 s%d, s%d, s89" % (src, src))
            I("s_add_u32 s89, s%d, %d" % (uid, f0))
            I("s_lshl_b32 s89, s89, 10")
            I("s_add_u32 s88, s88, s89")
            for t in range(4):
                I("s_add_u32 s%d, s88, %d" % (dst + t, t * PKW))
            I("s_branch %s" % lgo)

        I("s_cmp_ge_u32 s%d, 16" % uid)
        I("s_cbranch_scc1 %s" % lw1)
        setsrd(S_WO, 512 * 1024, 1024)
        simple(F_WO)
        b.label(lw1)
        I("s_cmp_ge_u32 s%d, 64" % uid)
        I("s_cbranch_scc1 %s" % lw2)
        I("s_sub_u32 s%d, s%d, 16" % (uid, uid))
        I("s_mul_i32 s89, s%d, 43" % uid)
        I("s_lshr_b32 s89, s89, 7")
        I("s_mul_i32 s92, s89, 3")
        I("s_sub_u32 s92, s%d, s92" % uid)
        setsrd(S_W1, 512 * 2752, 2752)
        I("s_mul_i32 s%d, s89, %d" % (src, 32 * 2752))
        I("s_mul_i32 s79, s%d, 384" % sC)
        I("s_add_u32 s%d, s%d, s79" % (src, src))
        I("s_lshl_b32 s79, s92, 7")
        I("s_add_u32 s%d, s%d, s79" % (src, src))
        I("s_mul_i32 s89, s89, 3072")
        I("s_add_u32 s88, s88, s89")
        I("s_add_u32 s88, s88, %d" % (F_W1 * 1024))
        for t in range(4):
            I("s_lshl_b32 s79, s92, 2")
            I("s_add_u32 s79, s79, %d" % t)
            I("s_mul_i32 s89, s79, 43")
            I("s_lshr_b32 s89, s89, 7")
            I("s_mul_i32 s%d, s89, %d" % (dst + t, PKW - 3072))
            I("s_lshl_b32 s79, s79, 10")
            I("s_add_u32 s%d, s%d, s79" % (dst + t, dst + t))
            I("s_add_u32 s%d, s%d, s88" % (dst + t, dst + t))
        I("s_mul_i32 s79, s%d, 3" % sC)
        I("s_add_u32 s79, s79, s92")
        I("s_cmp_ge_u32 s79, 22")
        I("s_cbranch_scc1 %s" % lnone)
        I("s_branch %s" % lgo)
        b.label(lw2)
        I("s_cmp_ge_u32 s%d, 107" % uid)
        I("s_cbranch_scc1 %s" % lnone)
        I("s_sub_u32 s%d, s%d, 64" % (uid, uid))
        setsrd(S_W2, 1376 * 1024, 1024)
        simple(F_W2)
        b.label(lnone)
        setsrd(S_WQ, 0, 1024)
        I("s_mov_b32 s%d, 0" % src)
        for t in range(4):
            I("s_mov_b32 s%d, 0x%x" % (dst + t, OOB))
        b.label(lgo)
        I("v_mul_lo_u32 v%d, v%d, s%d" % (vT + 4, l3, strd))
        I("v_add_u32 v%d, v%d, v%d" % (vT + 10, vT + 4, q0))
        I("v_xor_b32 v%d, 64, v%d" % (vT + 5, q0))
        I("v_add_u32 v%d, v%d, v%d" % (vT + 11, vT + 4, vT + 5))
        I("s_lshl_b32 s%d, s%d, 3" % (strd, strd))
        I("s_lshl_b32 s89, s%d, 12" % sW)
        I("s_add_u32 m0, s89, 0x%x" % L_PACK)
        toks = []
        for q in range(4):
            toks.append(I("buffer_load_dwordx4 v%d, s[%d:%d], s%d offen lds" % (vT + 10 + (q & 1), R_PK, R_PK + 3, src)))
            if q < 3:
                I("s_add_u32 s%d, s%d, s%d" % (src, src, strd))
                I("s_add_u32 m0, m0, 1024")
        return toks

    def r1_issue(self):
        I = self.b.I
        a = vCS1 + 2
        I("v_and_b32 v%d, 7, v0" % a)
        I("v_subrev_u32 v%d, s%d, v%d" % (a, sC, a))
        I("v_lshlrev_b32 v%d, 12, v%d" % (a, a))
        I("s_lshl_b32 s%d, s%d, 7" % (sT, sRG))
        I("s_add_u32 s%d, s%d, s%d" % (sT, sT, sR1))
        I("v_add_u32 v%d, s%d, v%d" % (a, sT, a))
        I("v_add_u32 v%d, s%d, v%d" % (vT + 5, sR1, vTCH))
        I("v_cmp_gt_u32 vcc, 32, v0")
        I("v_cndmask_b32 v%d, v%d, v%d, vcc" % (a, a, vT + 5))
        self.r1_tok = I("buffer_load_dword v%d, v%d, %s, 0 offen sc1" % (vPOLL, a, self.ws()))

    def r1_check(self):
        b = self.b
        I = b.I
        lp, ld, lc = b.newlabel("Ltag"), b.newlabel("Ltagd"), b.newlabel("Ltagc")
        b.wait(self.r1_tok)
        I("s_branch %s" % lc)
        b.label(lp)
        self.Inc("buffer_load_dword v%d, v%d, %s, 0 offen sc1" % (vPOLL, vCS1 + 2, self.ws()))
        I("s_waitcnt vmcnt(0)")
        b.label(lc)
        I("v_subrev_u32 v%d, s%d, v%d" % (vPOLL, sTAG, vPOLL))
        I("v_cmp_gt_u32 vcc, 16, v%d" % vPOLL)
        I("s_cmp_eq_u64 vcc, exec")
        I("s_cbranch_scc1 %s" % ld)
        self.spin_guard(lp)
        b.label(ld)
        I("v_cmp_eq_u32 vcc, s%d, v%d" % (sXCC, vPOLL))
        I("s_cmp_eq_u32 vcc_hi, -1")
        I("s_cselect_b32 s%d, 1, 0" % sFAST)

    def touch_w(self, f0, m):
        I = self.b.I
        I("s_mul_i32 s%d, s%d, %d" % (sTC, sQ, m * 1024))
        I("s_add_u32 s%d, s%d, s%d" % (sTC, sTC, sPK))
        I("s_add_u32 s%d, s%d, %d" % (sTC, sTC, f0 * 1024))
        mask = (1 << (8 * m)) - 1
        I("s_mov_b32 exec_lo, 0x%x" % (mask & 0xffffffff))
        I("s_mov_b32 exec_hi, 0x%x" % (mask >> 32))
        I("buffer_load_dword v%d, v%d, %s, s%d offen sc1" % (vDUM, vTCH, self.ws(), sTC))
        I("s_mov_b64 exec, -1")

    def touch_ox(self, layer):
        I = self.b.I
        I("s_and_b32 s%d, s%d, 1" % (sT + 2, sW))
        I("s_lshl_b32 s%d, s%d, 15" % (sT, sT + 2))
        I("s_add_u32 s%d, s%d, s%d" % (sT, sT, sRG64))
        I("s_add_u32 s%d, s%d, 0x%x" % (sT, sT, self.buf("X", 2 * layer)))
        I("s_mul_i32 s%d, s%d, %d" % (sT + 1, sT + 2, self.hstride("O")))
        I("s_add_u32 s%d, s%d, s%d" % (sT + 1, sT + 1, self.rgs("O")))
        I("s_add_u32 s%d, s%d, 0x%x" % (sT + 1, sT + 1, self.buf("O", layer)))
        I("s_bitcmp1_b32 s%d, 1" % sW)
        I("s_cselect_b32 s%d, s%d, s%d" % (sT, sT, sT + 1))
        I("s_lshl_b32 s%d, s%d, 12" % (sT + 1, sC))
        I("s_add_u32 s%d, s%d, s%d" % (sT, sT, sT + 1))
        I("s_mov_b32 exec_hi, 0")
        I("buffer_load_dword v%d, v%d, %s, s%d offen sc1" % (vDUM, vTCH, self.ws(), sT))
        I("s_mov_b32 exec_hi, -1")

    def touch_h(self, layer):
        I = self.b.I
        I("s_lshr_b32 s%d, s%d, 1" % (sT + 1, sW))
        I("s_mul_i32 s%d, s%d, %d" % (sT + 1, sT + 1, HSZ // 2 - 12288))
        I("s_mul_i32 s%d, s%d, 6144" % (sT + 2, sW))
        I("s_add_u32 s%d, s%d, s%d" % (sT + 1, sT + 1, sT + 2))
        I("s_mul_i32 s%d, s%d, 12288" % (sT + 2, sC))
        I("s_add_u32 s%d, s%d, s%d" % (sT + 1, sT + 1, sT + 2))
        I("s_add_u32 s%d, s%d, s%d" % (sT + 1, sT + 1, sRGH))
        I("s_add_u32 s%d, s%d, 0x%x" % (sT + 1, sT + 1, self.buf("H", layer)))
        I("s_cmp_lt_u32 s%d, 7" % sC)
        I("s_cselect_b32 s%d, s%d, 0x%x" % (sT + 1, sT + 1, OOB))
        I("s_mov_b32 exec_hi, 0xffff")
        I("buffer_load_dword v%d, v%d, %s, s%d offen sc1" % (vDUM, vTCH, self.ws(), sT + 1))
        I("s_mov_b32 exec_hi, -1")

    def kv_items(self, hf, seqs):
        items = []
        for ks in range(16):
            c0 = "0" if ks == 0 else None
            for r in range(2):
                def mfs(fr, ks=ks, r=r, c0=c0):
                    kk, kv_ = ("qkv", 0, 2 * ks), ("qkv", 0, 2 * ks + 1)
                    th = [self.mf(vACC + 8 * hf + 4 * r, fr, self.w_get(kk), c0),
                          self.mf(vACC + 16 + 8 * hf + 4 * r, fr, self.w_get(kv_), c0)]
                    if hf == 1 and r == 1:
                        th.append(lambda: (self.w_release(kk), self.w_release(kv_)))
                    return th
                a, off = self.frag_addr(seqs[ks // 2], r, ks & 1)
                items.append((a, off, seqs[ks // 2], mfs))
        self.pinned.update(seqs)
        return items

    def kv_finish(self, hf, between=None):
        b = self.b
        rd = [b.I("ds_read_b128 %s, v%d offset:%d" % (vr(vAF + 4 * k, 4), vSTA, (k & 1) * 64 + (k >> 1) * 128)) for k in range(4)]
        if between:
            between()
        b.wait(rd)
        self.kv_epilogue(hf, vAF, vAF + 8)

    def attention(self, layer, xseqs):
        b = self.b
        I = self.I
        KVD, ZD = vS1, vS2
        one = vr(vONE, 4)
        self.bg_w = 0
        for p in range(2):
            c0 = "0" if p == 0 else None
            self.mf(KVD, vr(vACC + 8 * p, 4), vr(vACC + 16 + 8 * p, 4), c0)()
            self.mf(ZD, vr(vACC + 8 * p, 4), one, c0)()
        b.I("s_add_u32 s%d, s%d, %d" % (sKB, sKV, layer * KVL))
        b.I("s_and_b32 s%d, s%d, %d" % (sKB + 1, sRG, NC - 1))
        b.I("s_mul_i32 s%d, s%d, %d" % (sKB + 1, sKB + 1, KCS))
        b.I("s_add_u32 s%d, s%d, s%d" % (sKB + 1, sKB + 1, sKB))
        for r in range(4):
            b.I("ds_write_b32 v%d, v%d" % (vPOS + r, KVD + r))
        b.I("s_mov_b32 exec_lo, 0x00010001")
        b.I("s_mov_b32 exec_hi, 0x00010001")
        b.I("ds_write_b128 v%d, %s" % (vZP, vr(ZD, 4)))
        b.I("s_mov_b64 exec, -1")
        rd = [b.I("ds_read_b32 v%d, v%d offset:%d" % (vT + k, vKVL, 256 * k)) for k in range(5)]
        for k in range(5):
            b.wait(rd[k])
            if k == 4:
                b.I("s_mov_b32 exec_hi, 0xffff")
            b.I("buffer_atomic_add_f32 v%d, v%d, %s, s%d offen offset:%d" % (vT + k, vL4, self.ws(), sKB + 1, k * 256))
        b.I("s_mov_b64 exec, -1")
        self.stamp("atom")
        if layer:
            self.touch_ox(layer)
        else:
            lp, ld, lc = b.newlabel("Lr3"), b.newlabel("Lr3d"), b.newlabel("Lr3c")
            b.wait(self.r3_tok)
            b.I("s_branch %s" % lc)
            b.label(lp)
            self.Inc("buffer_load_dword v%d, v%d, %s, s%d offen sc1" % (vPOLL, vCS1, self.ws(), sR1))
            b.I("s_waitcnt vmcnt(0)")
            b.label(lc)
            b.I("v_subrev_u32 v%d, s%d, v%d" % (vPOLL, sTAG, vPOLL))
            b.I("v_cmp_gt_u32 vcc, 16, v%d" % vPOLL)
            b.I("s_cmp_eq_u64 vcc, exec")
            b.I("s_cbranch_scc1 %s" % ld)
            self.spin_guard(lp)
            b.label(ld)
            self.stamp("r3")
            b.wait(self.tokQ)
            b.I("s_barrier")
        self.w_burst(env("W_AT", [0, 0])[layer])
        self.last_bg = self.clock
        self.bg_w = env("W_Q", [99, 14])[layer]
        items = []
        for ks in range(16):
            ds, h = ks // 2, ks & 1
            c0 = "0" if ks == 0 else None
            def keep(fr):
                self.wq_reg = fr
                return []
            items.append(("tr", self.rq_base(ks) - L_WQ, None, keep))
            for rt in range(4):
                def mfs(fr, ks=ks, rt=rt, c0=c0):
                    w = self.wq_reg
                    th = [self.mf(vACC + 4 * rt, w, fr, c0)]
                    if layer == 0 and rt == 0:
                        th.append(self.mf(vCSQ, w, one, c0))
                    return th
                if layer == 0:
                    items.append(((vX0, vX1)[h], ds * 8192 + rt * 2048, None, mfs))
                else:
                    a, off = self.frag_addr(xseqs[rt >> 1][ds], rt & 1, h)
                    items.append((a, off, None, mfs))
        assert NC == 2
        KD = vACC + 32
        dst = [(KD, KD + 8), (KD + 4, KD + 12)]
        kvl = ["buffer_load_dwordx4 %s, v%d, %s, s%d offen offset:%d sc1" % (vr(dst[c][h], 4), (vL16, vC2)[h], self.ws(), sKB, c * KCS)
               for h in range(2) for c in range(NC)]
        b.I("v_add_u32 v%d, 0x400, v%d" % (vC2, vL16))
        b.I("v_cmp_gt_u32 vcc, 12, v0")
        b.I("v_mov_b32 v%d, 0x%x" % (vT + 8, OOB))
        b.I("v_cndmask_b32 v%d, v%d, v%d, vcc" % (vC2, vT + 8, vC2))
        kp = {}

        def kv_early():
            self.bg_w = 0
            kp["tok"] = [b.I(t) for t in kvl]
        j = env("H_KVP", [79, 99])[layer]
        self.gemm(items, None, 5, {j: [kv_early]})
        self.pinned = set()
        self.mine = self.seq - 1
        PQ = vACC + 16
        for rt in range(4):
            ab = vAB + 2 * rt
            for r in (0, 2):
                u = vT + 2 * ((rt * 2 + r // 2) % 8)
                I("v_pk_fma_f32 %s, %s, %s, %s op_sel:[0,1,1] op_sel_hi:[1,1,1]" % (p2(u), p2(vCSQ + r), p2(ab), p2(vK)))
        for rt in range(4):
            ab = vAB + 2 * rt
            for r in (0, 2):
                q_ = vACC + 4 * rt + r
                u = vT + 2 * ((rt * 2 + r // 2) % 8)
                I("v_pk_fma_f32 %s, %s, %s, %s op_sel:[0,0,0] op_sel_hi:[1,0,1]" % (p2(q_), p2(q_), p2(ab), p2(u)))
        if env("H_KVP", [79, 99])[layer] == 98:
            kv_early()
        self.phi_pairs([(vACC + 4 * rt + r, PQ + 2 * rt + r // 2) for rt in range(4) for r in (0, 2)])
        self.stamp("qpass")
        self.bg_w = 0
        self.w_burst(env("W_S1", [16, 0])[layer])
        b.I("s_add_u32 s%d, s%d, s%d" % (sT + 6, self.rgs("O"), sSTO))
        b.I("s_add_u32 s%d, s%d, 0x%x" % (sT + 6, sT + 6, self.buf("O", layer)))
        b.I("s_add_u32 s%d, s%d, %d" % (sT + 7, sT + 6, self.hstride("O")))
        lp, ld, lc = b.newlabel("Lkv"), b.newlabel("Lkvd"), b.newlabel("Lkvc")
        if kp:
            b.wait(kp["tok"])
            b.I("s_branch %s" % lc)
        b.label(lp)
        if kp:
            for t in kvl:
                self.Inc(t)
            b.I("s_waitcnt vmcnt(0)")
        else:
            for t in kvl:
                b.I(t)
            b.wait(vm=0)
        b.label(lc)
        for h in range(2):
            for k in (0, 2):
                b.I("v_pk_add_f32 %s, %s, %s" % (p2(vT + 8 * h + k), p2(dst[0][h] + k), p2(dst[1][h] + k)))
        b.I("v_cmp_eq_f32 vcc, 0x42000000, v%d" % (vT + 3))
        b.I("v_cmp_eq_f32 s[%d:%d], v%d, v%d" % (sT, sT + 1, vT + 11, vT + 3))
        b.I("s_and_b64 vcc, vcc, s[%d:%d]" % (sM3, sM3 + 1))
        b.I("s_and_b32 s%d, s%d, 0x888" % (sT, sT))
        b.I("s_xor_b32 s%d, s%d, 0x888" % (sT, sT))
        b.I("s_xor_b64 vcc, vcc, s[%d:%d]" % (sM3, sM3 + 1))
        b.I("s_or_b32 s%d, s%d, vcc_lo" % (sT, sT))
        b.I("s_or_b32 s%d, s%d, vcc_hi" % (sT, sT))
        b.I("s_cbranch_scc0 %s" % ld)
        self.spin_guard(lp)
        b.label(ld)
        self.stamp("kvsync")
        b.I("v_lshl_add_u32 v%d, v0, 4, v%d" % (vT + 4, vKVL))
        b.I("v_sub_u32 v%d, v%d, v%d" % (vT + 4, vT + 4, vL4))
        b.I("ds_write_b128 v%d, %s offset:1280" % (vT + 4, vr(vT, 4)))
        b.I("s_mov_b64 exec, 0xfff")
        b.I("ds_write_b128 v%d, %s offset:2304" % (vT + 4, vr(vT + 8, 4)))
        b.I("s_mov_b64 exec, -1")
        lz = b.I("ds_read_b128 %s, v%d offset:1280" % (vr(vT + 4, 4), vZP))
        lt = [b.I("ds_read_b32 v%d, v%d offset:1280" % (vT + 12 + r, vPOS + r)) for r in range(4)]
        b.wait(lz)
        I("v_cvt_pk_bf16_f32 v%d, v%d, v%d" % (vT + 10, vT + 4, vT + 5))
        I("v_cvt_pk_bf16_f32 v%d, v%d, v%d" % (vT + 11, vT + 6, vT + 7))
        NUM, DEN = vACC, vAF
        for rt in range(4):
            I("v_mfma_f32_16x16x16_bf16 %s, %s, %s, 0" % (vr(DEN + 4 * rt, 4), p2(vT + 10), p2(PQ + 2 * rt)))
        b.wait(lt)
        I("v_cvt_pk_bf16_f32 v%d, v%d, v%d" % (vT + 8, vT + 12, vT + 13))
        I("v_cvt_pk_bf16_f32 v%d, v%d, v%d" % (vT + 9, vT + 14, vT + 15))
        for rt in range(4):
            I("v_mfma_f32_16x16x16_bf16 %s, %s, %s, 0" % (vr(NUM + 4 * rt, 4), p2(vT + 8), p2(PQ + 2 * rt)))
        for rt in range(4):
            I("v_add_f32 v%d, s%d, v%d" % (DEN + 4 * rt, sEPS, DEN + 4 * rt))
        for rt in range(4):
            I("v_rcp_f32 v%d, v%d" % (DEN + 4 * rt, DEN + 4 * rt))
        for rt in range(4):
            for r in (0, 2):
                n_ = NUM + 4 * rt + r
                I("v_pk_mul_f32 %s, %s, %s op_sel_hi:[1,0]" % (p2(n_), p2(n_), p2(DEN + 4 * rt)))
        for rt in range(4):
            for r in (0, 2):
                I("v_cvt_pk_bf16_f32 v%d, v%d, v%d" % (vT + 2 * rt + r // 2, NUM + 4 * rt + r, NUM + 4 * rt + r + 1))
        return self.stores2([self.pair_store(vT + 4 * pr, sT + 6 + pr, 0) for pr in range(2)], layer == 0 or self.sep)

    def park_wq(self):
        b = self.b
        b.I("s_lshl_b32 s%d, s%d, 14" % (sT, sW))
        b.I("s_add_u32 s%d, s%d, 0x%x" % (sT, sT, L_WQ))
        b.I("v_add_u32 v%d, s%d, v%d" % (vWQ, sT, vL16))
        for ks in range(16):
            b.I("ds_write_b128 v%d, %s offset:%d" % (vWQ, slot_r(self.wslot[("qkv", 0, 32 + ks)][0]), ks * 1024))
        b.wait(lg=0)
        for ks in range(16):
            self.w_release(("qkv", 0, 32 + ks))

    def cs1_some(self, n):
        one = vr(vONE, 4)
        k = 0
        while k < n and self.ncs < 16 and all(("w1", 0, 3 * self.ncs + t) in self.wslot and
                                             (self.wslot[("w1", 0, 3 * self.ncs + t)][1] is None or
                                              self.wslot[("w1", 0, 3 * self.ncs + t)][1][1] < self.b.vm_done) for t in range(3)):
            for t in range(3):
                self.mf(vCS1 + 4 * t, slot_r(self.wslot[("w1", 0, 3 * self.ncs + t)][0]), one, "0" if self.ncs == 0 else None)()
            self.ncs += 1
            k += 1

    def n16_items(self, name, layer, nks, hf, seqs):
        items = []
        for ks in range(nks):
            for r in range(2):
                def mfs(fr, ks=ks, r=r):
                    th = [self.mf(vX + 8 * hf + 4 * r, self.w_get((name, layer, ks)), fr)]
                    if hf == 1 and r == 1:
                        th.append(lambda: self.w_release((name, layer, ks)))
                    return th
                a, off = self.frag_addr(seqs[ks // 2], r, ks & 1)
                items.append((a, off, seqs[ks // 2], mfs))
        return items

    def n16_full(self, name, layer, nks, seqs):
        items = []
        for ks in range(nks):
            for rt in range(4):
                def mfs(fr, ks=ks, rt=rt):
                    th = [self.mf(vX + 4 * rt, self.w_get((name, layer, ks)), fr)]
                    if rt == 3:
                        th.append(lambda: self.w_release((name, layer, ks)))
                    return th
                sq = seqs[rt >> 1][ks // 2]
                a, off = self.frag_addr(sq, rt & 1, ks & 1)
                items.append((a, off, sq, mfs))
        return items

    def x_full_store(self, idx, wt):
        I = self.b.I
        for hf in range(2):
            I("s_add_u32 s%d, s%d, s%d" % (sT + 6 + hf, sRG64, sSTO))
            I("s_add_u32 s%d, s%d, 0x%x" % (sT + 6 + hf, sT + 6 + hf, self.buf("X", idx) + hf * 32768))
        I("s_add_u32 s%d, s%d, 8192" % (sT + 8, sSTP))
        for j in range(8):
            I("v_cvt_pk_bf16_f32 v%d, v%d, v%d" % (vT + j, vX + 2 * j, vX + 2 * j + 1))
        s = vAF
        tk = self.stores2([self.pair_store(vT + 4 * hf, sT + 6 + hf, 0) for hf in range(2)], wt)
        for rt in range(4):
            I("v_pk_add_f32 %s, %s, %s" % (p2(s + 4 * rt), p2(vX + 4 * rt), p2(vX + 4 * rt + 2)))
            I("v_pk_mul_f32 %s, %s, %s" % (p2(s + 4 * rt + 2), p2(vX + 4 * rt), p2(vX + 4 * rt)))
        for rt in range(4):
            I("v_pk_fma_f32 %s, %s, %s, %s" % (p2(s + 4 * rt + 2), p2(vX + 4 * rt + 2), p2(vX + 4 * rt + 2), p2(s + 4 * rt + 2)))
        for rt in range(4):
            I("v_add_f32 v%d, v%d, v%d" % (s + 4 * rt, s + 4 * rt, s + 4 * rt + 1))
            I("v_add_f32 v%d, v%d, v%d" % (s + 4 * rt + 2, s + 4 * rt + 2, s + 4 * rt + 3))
        for hf in range(2):
            q = s + 8 * hf
            I("v_permlane32_swap_b32 v%d, v%d" % (q, q + 4))
            I("v_permlane32_swap_b32 v%d, v%d" % (q + 2, q + 6))
        for hf in range(2):
            q = s + 8 * hf
            I("v_add_f32 v%d, v%d, v%d" % (q, q, q + 4))
            I("v_add_f32 v%d, v%d, v%d" % (q + 2, q + 2, q + 6))
        for hf in range(2):
            I("v_permlane16_swap_b32 v%d, v%d" % (s + 8 * hf, s + 8 * hf + 2))
        for hf in range(2):
            I("v_add_f32 v%d, v%d, v%d" % (s + 8 * hf, s + 8 * hf, s + 8 * hf + 2))
        tk2 = self.stores2(["buffer_store_dword v%d, v%d, %s, s%d offen" % (s + 8 * hf, vL4, self.ws(), (sSTP, sT + 8)[hf])
                            for hf in range(2)], wt)
        return tk, tk2

    def x_half_now(self, idx, hf, wt):
        I = self.b.I
        x = vX + 8 * hf
        o = vT + 2
        s = o + 4
        I("s_add_u32 s%d, s%d, s%d" % (sT + 6, sRG64, sSTO))
        I("s_add_u32 s%d, s%d, 0x%x" % (sT + 6, sT + 6, self.buf("X", idx) + hf * 32768))
        I("s_add_u32 s%d, s%d, %d" % (sT + 7, sSTP, hf * 8192))
        for j in range(4):
            I("v_cvt_pk_bf16_f32 v%d, v%d, v%d" % (o + j, x + 2 * j, x + 2 * j + 1))
        for r in range(2):
            I("v_pk_add_f32 %s, %s, %s" % (p2(s + 4 * r), p2(x + 4 * r), p2(x + 4 * r + 2)))
            I("v_pk_mul_f32 %s, %s, %s" % (p2(s + 4 * r + 2), p2(x + 4 * r), p2(x + 4 * r)))
        tk = self.stores2([self.pair_store(o, sT + 6, 0)], wt)
        for r in range(2):
            I("v_pk_fma_f32 %s, %s, %s, %s" % (p2(s + 4 * r + 2), p2(x + 4 * r + 2), p2(x + 4 * r + 2), p2(s + 4 * r + 2)))
            I("v_add_f32 v%d, v%d, v%d" % (s + 4 * r, s + 4 * r, s + 4 * r + 1))
        for r in range(2):
            I("v_add_f32 v%d, v%d, v%d" % (s + 4 * r + 2, s + 4 * r + 2, s + 4 * r + 3))
        I("v_permlane32_swap_b32 v%d, v%d" % (s, s + 4))
        I("v_permlane32_swap_b32 v%d, v%d" % (s + 2, s + 6))
        I("v_add_f32 v%d, v%d, v%d" % (s, s, s + 4))
        I("v_add_f32 v%d, v%d, v%d" % (s + 2, s + 2, s + 6))
        I("v_permlane16_swap_b32 v%d, v%d" % (s, s + 2))
        I("v_add_f32 v%d, v%d, v%d" % (s, s, s + 2))
        tk += self.stores2(["buffer_store_dword v%d, v%d, %s, s%d offen" % (s, vL4, self.ws(), sT + 7)], wt)
        return self.new_pub(tk)

    def x_half_store(self, idx, hf, wt, delay):
        x = vX + 8 * hf
        o = vT + 1
        o += o & 1
        tk = []
        k, fl = self.new_pub(tk)
        s = o + 4
        e = ["s_add_u32 s%d, s%d, s%d" % (sT + 6, sRG64, sSTO),
             "s_add_u32 s%d, s%d, 0x%x" % (sT + 6, sT + 6, self.buf("X", idx) + hf * 32768),
             "s_add_u32 s%d, s%d, %d" % (sT + 7, sSTP, hf * 8192), 2]
        e += ["v_cvt_pk_bf16_f32 v%d, v%d, v%d" % (o + j, x + 2 * j, x + 2 * j + 1) for j in range(4)]
        for r in range(2):
            e += ["v_add_f32 v%d, v%d, v%d" % (s + 2 * r, x + 4 * r, x + 4 * r + 1),
                  "v_mul_f32 v%d, v%d, v%d" % (s + 2 * r + 1, x + 4 * r, x + 4 * r)]
        e.append(lambda: tk.extend(self.stores2([self.pair_store(o, sT + 6, 0)], wt)))
        for q in (1, 2, 3):
            for r in range(2):
                if q > 1:
                    e.append("v_add_f32 v%d, v%d, v%d" % (s + 2 * r, s + 2 * r, x + 4 * r + q))
                e.append("v_fmac_f32 v%d, v%d, v%d" % (s + 2 * r + 1, x + 4 * r + q, x + 4 * r + q))
        e += [1, "v_permlane32_swap_b32 v%d, v%d" % (s, s + 2), "v_permlane32_swap_b32 v%d, v%d" % (s + 1, s + 3), 1,
              "v_add_f32 v%d, v%d, v%d" % (s, s, s + 2), "v_add_f32 v%d, v%d, v%d" % (s + 1, s + 1, s + 3), 1,
              "v_permlane16_swap_b32 v%d, v%d" % (s, s + 1), 1, "v_add_f32 v%d, v%d, v%d" % (s, s, s + 1),
              lambda: tk.extend(self.stores2(["buffer_store_dword v%d, v%d, %s, s%d offen" % (s, vL4, self.ws(), sT + 7)], wt))]
        if delay is not None:
            e += [delay, fl]
        return k, e, fl

    def out_half_store(self, hf):
        x = vX + 8 * hf
        e = ["s_add_u32 s%d, s%d, s%d" % (sT + 6, sRG64, sOUT), "s_add_u32 s%d, s%d, %d" % (sT + 6, sT + 6, hf * 32768),
             "s_add_u32 s%d, s%d, 16384" % (sT + 7, sT + 6), 2]
        e += ["v_cvt_pk_bf16_f32 v%d, v%d, v%d" % (vT + 4 * hf + j, x + 2 * j, x + 2 * j + 1) for j in range(4)]
        e += ["buffer_store_dwordx2 %s, v%d, s[%d:%d], s%d offen" % (p2(vT + 4 * hf + 2 * r), vOA, R_OUT, R_OUT + 3, sT + 6 + r)
              for r in range(2)]
        return e

    def p3_items(self, layer, seqs):
        items = []
        one = vr(vONE, 4)
        for ks in range(16):
            c0 = "0" if ks == 0 else None
            for rt in range(4):
                def mfs(fr, ks=ks, rt=rt, c0=c0):
                    th = []
                    for t in range(3):
                        w = self.w_get(("w1", layer, 3 * ks + t))
                        th.append(self.mf(vACC + 24 * (rt >> 1) + 8 * t + 4 * (rt & 1), w, fr, c0))
                        if layer == 0 and rt == 0 and ks >= self.ncs:
                            th.append(self.mf(vCS1 + 4 * t, w, one, c0))
                    if rt == 3:
                        th.append(lambda: [self.w_release(("w1", layer, 3 * ks + t)) for t in range(3)])
                    return th
                sq = seqs[rt >> 1][ks // 2]
                a, off = self.frag_addr(sq, rt & 1, ks & 1)
                items.append((a, off, sq, mfs))
        return items

    def silu(self, layer, hf, mid=None):
        b = self.b
        I = self.I
        for t in range(3):
            b.I("s_add_u32 s%d, s%d, 0x%x" % (sT + 6 + t, sH0 + t, self.buf("H", layer) + hf * (HSZ // 2)))
        sts = []
        for t in range(3):
            A = vACC + 24 * hf + 8 * t
            u = vT + 8 * (t & 1)
            for f in (mid or {}).get(t, []):
                f()
            for j in range(4):
                I("v_pk_mul_f32 %s, %s, %s op_sel:[0,1] op_sel_hi:[1,1]" % (
                    p2(u + 2 * j), p2(vCS1 + 4 * t + 2 * (j & 1)), p2(vAB + 4 * hf + 2 * (j >> 1))))
            for j in range(4):
                I("v_pk_fma_f32 %s, %s, %s, %s op_sel:[0,0,0] op_sel_hi:[1,0,1]" % (
                    p2(A + 2 * j), p2(A + 2 * j), p2(vAB + 4 * hf + 2 * (j >> 1)), p2(u + 2 * j)))
            for k in range(8):
                I("v_exp_f32_e64 v%d, -v%d" % (u + k, A + k))
            for j in range(4):
                I("v_pk_fma_f32 %s, %s, %s, %s op_sel:[0,0,0] op_sel_hi:[1,0,0]" % (p2(u + 2 * j), p2(u + 2 * j), p2(vK), p2(vK)))
            for k in range(8):
                I("v_rcp_f32 v%d, v%d" % (u + k, u + k))
            for j in range(4):
                I("v_pk_mul_f32 %s, %s, %s" % (p2(A + 2 * j), p2(A + 2 * j), p2(u + 2 * j)))
            for j in range(4):
                I("v_cvt_pk_bf16_f32 v%d, v%d, v%d" % (A + j, A + 2 * j, A + 2 * j + 1))
            sts += self.stores2([self.pair_store(A, sT + 6 + t, 0)], layer == 0 or self.sep)
        return sts

    def body(self):
        b = self.b
        for layer in range(2):
            R1, R2 = env("REV", (12, 43))
            if layer == 0:
                R1, R2 = 48, 43
            self.w_enqueue("w1", layer, F_W1, 48, range(47, R1 - 1, -1))
            self.w_enqueue("wo", layer, F_WO, 16)
            self.w_enqueue("w1", layer, F_W1, 48, range(R1))
            self.w_enqueue("w2", layer, F_W2, 43, range(42, R2 - 1, -1))
            self.w_enqueue("w2", layer, F_W2, 43, range(R2))
        AF = env("AFIRST", 12)
        G8c = env("G8C", [2, 2, 2, 2])
        G8w = env("G8W", [4, 4])
        G22 = env("G22", [2, 2, 2, 4, 4, 4, 4])
        st = {}
        PA, PB = env("PA", [60, 62]), env("PB", [75, 62])
        self.pace_w = PA[0]
        self.startup()
        xs = None
        for layer in range(2):
            self.pace_w = PA[layer]
            tk = self.attention(layer, xs)
            k_o, fl = self.new_pub(tk)
            self.w_burst(env("W_PUB", [0, 0])[layer])
            fl()
            self.stamp("o_pub")
            self.poll_shadow(k_o, env("NCS", [0, 0])[0] if layer == 0 else 0)
            self.stamp("o_rdy")
            wt = layer == 0 or self.sep
            D16, PW = env("D16", 9), env("PAIRW", True)
            n0 = self.seq
            oo = self.queue_both("O", layer, 8, self.aq)
            self.a_burst(AF)
            self.bg_w = env("W_P2", 14)
            self.gemm(self.n16_full("wo", layer, 16, oo), self.split(list(range(n0, n0 + 16)), env("G16", [4, 4, 4, 4])), D16,
                      pairw=PW)
            self.bg_w = 0
            self.stamp("p2")
            tk1, tk2 = self.x_full_store(2 * layer, wt)
            k_x, fl_x = self.new_pub(tk1)
            k_s, fl_s = self.new_pub(tk2)
            self.w_burst(env("W_PUB2", [0, 0])[layer])
            fl_x()
            self.stamp("x_pub")
            self.poll_shadow(k_x, env("NCS", [0, 0])[1] if layer == 0 else 0)
            self.stamp("x_rdy")
            poll = lambda: st.update(tok=self.poll_issue())

            def when(k, plan, burst=0):
                def f():
                    self.poll_check(k() if callable(k) else k, st["tok"])
                    self.aq += plan
                    self.a_burst(burst)
                return f
            n0 = self.seq
            xx = self.queue_both("X", 2 * layer, 8, self.aq)
            hold = self.seq
            pl_s = []
            sa = self.queue_stats(0, pl_s)
            sb = self.queue_stats(1, pl_s)
            if layer or FT:
                th = lambda: self.touch_h(layer)
                th.seq = -1
                th.prep = []
                pl_s.append(th)
            self.a_burst(4)
            fl_s()
            self.a_burst(AF - 4)
            self.bg_w = 0
            self.pace_w = PB[layer]
            groups = self.split(list(range(n0, n0 + 16)), env("G3", [4, 4, 8])) + [[hold]]
            hooks, pre, post = {}, {}, {}
            s1a, bba = self.stats_stage1(sa, 0)
            s1b, bbb = self.stats_stage1(sb, 1)
            j = env("H_ST", 8)
            hooks[j] = [poll]
            hooks[j + 6] = [when(k_s, pl_s), lambda: setattr(self, "bg_w", 99)]
            hooks[j + 18] = [lambda: self.side.extend(s1a + s1b)]

            def exch():
                bba()
                bbb()
                b.I("s_barrier")
                self.side.extend(self.stats_stage2(0, True, False) + self.stats_stage2(1, True, False))
            hooks[env("H_EX", 46)] = [exch]
            groups.pop()
            self.gemm(self.p3_items(layer, xx), groups, 6, hooks, pre, post, pairw=True)
            self.pinned = set()
            self.mine = self.seq - 1
            self.bg_w = env("W_SILU", 0)
            self.stamp("p3")
            k_ha, fl_ha = self.new_pub(self.silu(layer, 0))
            self.bg_w = 0
            pl_ha, pl_hb, pl_ya = [], [], []
            ha = self.queue_half("H", layer, 0, 22, pl_ha)
            hb = self.queue_half("H", layer, 1, 22, pl_hb)

            def ha_go():
                self.stamp("silu")
                self.poll_check(k_ha)
                self.stamp("ha_rdy")
                self.aq += pl_ha
                self.a_burst(env("AF4", 4))
            SPL = env("SPLIT", 0)
            mid = {env("MID", 1): [fl_ha]}
            if SPL:
                mid.setdefault(2, []).append(ha_go)
            tkb = self.silu(layer, 1, mid)
            k_hb, fl_hb = self.new_pub(tkb)
            if not SPL:
                ha_go()
                fl_hb()
            self.a_burst(AF - (self.seq_issued() - ha[0]))
            self.bg_w = 99
            j = env("H_P4A", 24)
            self.alead = env("ALEAD4", 16)
            self.pace_w = PA[1]
            items = self.n16_items("w2", layer, 43, 0, ha) + self.n16_items("w2", layer, 43, 1, hb)
            groups = self.split(ha, env("G22C", [2, 2, 4, 4, 4, 6])) + self.split(hb, G22)
            hooks = {j: [poll], j + env('CK4', 12): [when(k_hb, pl_hb, env('BU_HB', 4))]}
            if SPL:
                hooks[env("H_FLB", 6)] = [fl_hb]
            pre, post = {}, {}
            if layer == 0:
                sa = self.queue_stats(0, pl_ya)
                ya = self.queue_half("X", 1, 0, 8, pl_ya, rot=True)

                def y_out(hf, delay):
                    def f():
                        self.stamp("p4a" if hf == 0 else "p4b")
                        st["k_y%d" % hf], st["fl_y%d" % hf] = self.x_half_now(1, hf, self.sep)
                        self.pace_w = PA[1]
                        if hf:
                            self.alead = env("ALEAD", 99)
                    return f
                j = 86 + env("H_P4B", 44)
                hooks.update({87: [y_out(0, 0)], 87 + env("D_Y0", 22): [lambda: st["fl_y0"]()],
                              172 + env("D_Y1", 10): [lambda: st["fl_y1"]()], j: [poll], j + env('CK4', 12): [when(lambda: st["k_y0"], pl_ya, env("BU_YA", 6))], 172: [y_out(1, 0)],
                              172 + env("H_P1A", 24): [poll]})
                ng = len(groups)
                groups += self.split(ya, env("G8K", [2, 4, 2]))
                self.stats_hooks(sa, 0, False, True, 173, ng + 2, hooks, pre, post)
                items += self.kv_items(0, ya)
            else:
                hooks[85] = [lambda: (self.stamp("p4a"), self.side.extend(self.out_half_store(0)))]
            self.gemm(items, groups, D16, hooks, pre, post, pairw=PW)
            if layer == 0:
                self.stamp("p1a")
                pl = []
                sb = self.queue_stats(1, pl)
                yb = self.queue_half("X", 1, 1, 8, pl, rot=True)
                pl = pl[2:6] + pl[:2] + pl[6:]

                def go():
                    self.poll_check(st["k_y1"], st["tok"])
                    self.stamp("yb_rdy")
                    self.aq += pl
                    self.a_burst(env('AF1', 6))
                self.kv_finish(0, go)
                hooks, pre, post = {}, {}, {}
                self.stats_hooks(sb, 1, False, True, 0, 1, hooks, pre, post)
                self.gemm(self.kv_items(1, yb), self.split(yb, env('G1B', [4, 4])), 8, hooks, pre, post, pairw=True)
                self.kv_finish(1)
                self.stamp("p1b")
                xs = [ya, yb]
            else:
                self.stamp("p4b")
                self.side = self.out_half_store(1)
                self.side_flush()
                lx = b.newlabel("Lep")
                b.I("s_or_b32 s%d, s2, s%d" % (sT, sW))
                b.I("s_cbranch_scc1 %s" % lx)
                b.I("s_add_u32 s%d, s%d, 16" % (sT, sEP))
                b.I("v_mov_b32 v%d, s%d" % (vT + 9, sT))
                b.I("s_mov_b32 s%d, 0x%x" % (sT, WS_EP))
                b.I("s_mov_b64 exec, 1")
                self.Inc("buffer_store_dword v%d, off, %s, s%d sc1" % (vT + 9, self.ws(), sT))
                b.I("s_mov_b64 exec, -1")
                b.label(lx)
                self.stamp("end")
        if self.diag:
            b.I("s_lshl_b32 s%d, s2, 2" % sT)
            b.I("s_add_u32 s%d, s%d, s%d" % (sT, sT, sW))
            b.I("s_lshl_b32 s%d, s%d, 8" % (sT, sT))
            b.I("s_add_u32 s%d, s%d, 0x%x" % (sT, sT, WS_STAMP))
            b.I("buffer_store_dword v%d, v%d, %s, s%d offen" % (vSTAMP, vL4, self.ws(), sT))
            if env("RT", 0):
                b.I("s_add_u32 s%d, s%d, 0x40000" % (sT, sT))
                b.I("buffer_store_dword v255, v%d, %s, s%d offen" % (vL4, self.ws(), sT))
        if self.diag and env("PROBE", 0):
            lx, lp = b.newlabel("Lpr"), b.newlabel("Lprl")
            i0, i1 = [61 if n == "entry" else [i for i, m in enumerate(self.stamp_names) if m == n[0]][n[1]] for n in env("PROBE", 0)]
            b.I("s_cmp_lg_u32 s2, %d" % env("PWG", 100))
            b.I("s_cbranch_scc1 %s" % lx)
            b.I("v_readlane_b32 s%d, v%d, %d" % (sT, vSTAMP, i0))
            b.I("v_readlane_b32 s%d, v%d, %d" % (sT + 1, vSTAMP, i1))
            b.I("v_readlane_b32 s%d, v%d, %d" % (sT + 2, vSTAMP, len(self.stamp_names) - 1))
            b.I("s_sub_u32 s%d, s%d, s%d" % (sT + 1, sT + 1, sT))
            b.I("s_mul_i32 s%d, s%d, %d" % (sT + 1, sT + 1, env("PMUL", 1)))
            b.I("s_add_u32 s%d, s%d, 4800" % (sT + 1, sT + 1))
            b.label(lp)
            b.I("s_memtime s[94:95]")
            b.I("s_waitcnt lgkmcnt(0)")
            b.I("s_sub_u32 s%d, s94, s%d" % (sT, sT + 2))
            b.I("s_cmp_lt_u32 s%d, s%d" % (sT, sT + 1))
            b.I("s_cbranch_scc1 %s" % lp)
            b.label(lx)
        b.label("L_end")
        b.I("s_endpgm")
        for t in self.cold:
            b.raw(t)

    def emit(self):
        self.body()
        head = """; @launch grid=(256,1,1) block=(256,1,1) lds=%d
; persistent fused kernel: 32 row groups (64 rows) x 8 column groups (generated by my own script)
.amdgcn_target "amdgcn-amd-amdhsa--gfx950"
.text
.globl %s_kernel
.p2align 8
.type %s_kernel,@function
%s_kernel:
""" % (LDS_BYTES, NAME, NAME, NAME)
        tail = """.section .rodata,"a"
.p2align 6
.amdhsa_kernel %s_kernel
  .amdhsa_next_free_vgpr 512
  .amdhsa_next_free_sgpr 102
  .amdhsa_accum_offset 256
  .amdhsa_group_segment_fixed_size 0
  .amdhsa_kernarg_size 72
  .amdhsa_user_sgpr_count 2
  .amdhsa_user_sgpr_kernarg_segment_ptr 1
  .amdhsa_system_sgpr_workgroup_id_x 1
.end_amdhsa_kernel
""" % NAME
        return head + self.b.text() + tail


if __name__ == "__main__":
    import argparse
    ap = argparse.ArgumentParser()
    ap.add_argument("-o", default="cdna_kernels/%s.s" % NAME)
    ap.add_argument("--diag", action="store_true")
    ap.add_argument("--sep", action="store_true")
    a = ap.parse_args()
    g = Gen(a.diag, a.sep)
    txt = g.emit()
    if a.diag:
        txt = txt.replace(".amdgcn_target", "; stamps: " + ",".join(g.stamp_names) + "\n.amdgcn_target", 1)
    open(a.o, "w").write(txt)
    print("instructions", g.b.nins, "nops", g.b.nops, file=sys.stderr)
```

```python
import sys
import os
sys.path.insert(0, os.path.dirname(os.path.abspath(__file__)))
from asmb import Builder, vr

NAME = "interleave_layers__linear_attn_block__dense_activation_silu__prompt"


def env(name, default):
    v = os.environ.get(name)
    return default if v is None else eval(v)


PKW = 107 * 1024
WS_FL = 0x380000
WS_EP = 0x390000
WS_R2 = 0x398000
WS_KV = 0x480000
NC = env('NC', 2)
KCS = env('KCS', 1344)
KVH = NC * KCS
KVL = 32 * KVH
KB0 = env('KB0', 0)
WS_R3 = 0x3D0000
WS_ST = 0x400000
WS_O = 0x600000
WS_X = 0x800000
WS_H = 0xA00000
HSZ = 22 * 8192
WS_STAMP = 0x3000000
WS_SIZE = 0x3100000 if '--diag' in sys.argv else 0x1000000
OOB = 0x4000000 if '--diag' in sys.argv else 0x1000000
F_WO, F_W1, F_W2 = 0, 16, 64

L_RING = 65536
L_RQ = 106496
L_WQ = 81920
L_PACK = 131072
L_KVI = 147456
L_STA = 157696
L_EX = 158720
NR = env('NR', 8)
NSLOT = 20
LDS_BYTES = 163840

S_X, S_WQ, S_WO, S_W1, S_W2, S_OUT, S_DBG, S_WS = 4, 6, 8, 12, 14, 16, 18, 20
R_X, R_WQ, R_WS, R_OUT, R_PK = 24, 28, 32, 36, 44
sR1, sQ, sTC, sTAG, sEP = 3, 10, 11, 22, 23
sROT, sSTP, sSTC, sW1K = 40, 41, 42, 43
sRG, sC, sW, sFAST, sPK, sKV, sFL, sRG64, sRGH, sSTO = 48, 49, 50, 51, 52, 53, 54, 55, 56, 57
sH0 = 58
sSPIN = 61
sEPS = 62
sOUT = 63
sXS = 64
sRB2, sRO2 = 65, 66
sM1, sM2, sM3, sDIAG = 68, 70, 72, 74
sT = 76
sKB = 88
sPKC, sXCC, sMYF, sW2K, sAB, sAO = 96, 97, 98, 99, 100, 101

vL16, vA1, vKVL, vDMA, vST = 1, 2, 3, 4, 5
vX0, vX1, vOW0, vOW1, vTR, vXS0, vXS1, vWS = 6, 7, 8, 9, 10, 11, 12, 13
vWQ = 13
vSB, vEX, vSWR, vOA = 8, 9, 10, 11
vFL, vL4, vSTAMP, vSTA, vSTQ, vC2 = 14, 15, 16, 17, 18, 19
vX = 20
vCSQ, vCSK, vCSV = 36, 40, 42
vCS1 = 44
vONE = 56
vACC = 60
vAF = 108
NAF = 10
vAB = 148
vT = 156
vPOS = 172
vZP, vSW, vDUM, vTCH, vPOLL, vDM2 = 176, 177, 178, 179, 180, 181
vK = 182
vS1, vS2 = 184, 188
vTQ = 195
vW1 = 192
SLOTS = [("a", 4 * i) for i in range(64)] + [("v", 196 + 4 * i) for i in range(15)]
PACE = env("PACE", 36)
FT = env("FTOUCH", 1)
WMIN = env("WMIN", 10)
AMIN = env("AMIN", 5)
RDSLACK = env("RDSLACK", 2)
SIDEMIN = env("SIDEMIN", 1)
COST = {"mfma": 16, "trans": 8, "ds": 4, "valu": 4, "perm": 4, "dpp": 4, "rdlane": 4, "wrlane": 4, "salu": 2, "vmem": 8}
K_L2E = "op_sel:[0,0] op_sel_hi:[1,0]"


def slot_r(s):
    return vr(s[1], 4, s[0])


def p2(r):
    return "v[%d:%d]" % (r, r + 1)


class Gen:
    def __init__(self, diag=False, sep=False):
        self.b = Builder()
        self.diag = diag
        self.sep = sep
        self.free = list(SLOTS[:-1] if env('RT', 0) else SLOTS)
        self.wq = []
        self.wslot = {}
        self.pk_cur = None
        self.nstamp = 0
        self.stamp_names = []
        self.aq = []
        self.atok = {}
        self.seq = 0
        self.consumed = -1
        self.mine = -1
        self.pub_mine = {}
        self.clock = 0
        self.last_bg = -1000
        self.bg_w = 0
        self.pace_w = 70
        self.in_bg = False
        self.npub = 0
        self.ncs = 0
        self.gstamp = False
        self.vclock = {}
        bI, bw = self.b.I, self.b.wait

        def I2(t):
            tok = bI(t)
            if tok and tok[0] == "vm":
                self.vclock[tok[1]] = self.clock
            return tok

        def w2(*toks, **kw):
            if os.environ.get("SLACK"):
                flat = []
                for t in toks:
                    if t is None:
                        continue
                    flat += t if isinstance(t, list) else [t]
                v = [i for k, i in flat if k == "vm" and i >= self.b.vm_done]
                if v:
                    d = self.clock - self.vclock.get(max(v), 0)
                    if d < int(os.environ["SLACK"]):
                        print("   slack %4d at clock %d (after %s)" % (d, self.clock, self.last_stamp), file=sys.stderr)
            return bw(*toks, **kw)
        self.b.I, self.b.wait = I2, w2
        self.last_stamp = ""
        self.flagged = set()
        self.cold = []
        self.slotted = False
        self.prepped = None
        self.wprep = []
        self.pinned = set()
        self.side = []
        self.side_rate = 2
        self.w_issued = 0
        self.w_need = 0
        self.w_cur = None
        self.w_index = {}
        self.wlead = env('WLEAD', 14)
        self.cur_seq = 0
        self.alead = env('ALEAD', 99)

    def I(self, t):
        tok = self.b.I(t)
        k = self.b.hists[0][-1].kind if self.b.hists and self.b.hists[0] else "salu"
        self.clock += COST.get(k, 4)
        if not self.in_bg and not self.slotted and k in ("mfma", "valu", "trans"):
            c = self.bg_pick()
            if c is not None and c[1]:
                self.bg_emit(c[0], True)
        return tok

    def side_step(self, n):
        self.in_bg = True
        done = 0
        while n > 0 and self.side:
            e = self.side[0]
            if isinstance(e, int):
                if e <= 1:
                    self.side.pop(0)
                else:
                    self.side[0] = e - 1
                break
            self.side.pop(0)
            if isinstance(e, str):
                self.b.I(e)
            else:
                e()
            n -= 1
            done += 1
        self.in_bg = False
        return done

    def side_flush(self):
        while self.side:
            self.side_step(1000)

    def bg_pick(self):
        a_ok = self.aq and self.aq[0].seq - NSLOT <= self.consumed
        w_ok = self.bg_w > 0 and self.wq and self.free
        same = w_ok and self.wq[0][0][:2] == self.w_cur
        el = self.clock - self.last_bg
        if self.prepped == "A" and a_ok:
            return "A", el >= PACE or self.aq[0].seq - self.cur_seq < AMIN
        if a_ok and getattr(self.aq[0], "urgent", False):
            return "A", True
        if same and self.w_issued - self.w_need < WMIN:
            return "W", True
        if a_ok and w_ok:
            a_lead = self.aq[0].seq - self.cur_seq
            if a_lead > self.alead or (same and self.w_issued - self.w_need < self.wlead and a_lead > 3):
                a_ok = False
        if a_ok:
            return "A", el >= PACE or self.aq[0].seq - self.cur_seq < AMIN
        if w_ok:
            return "W", el >= self.pace_w
        return None

    def bg_prep_list(self, kind):
        if kind == "A":
            return self.aq[0].prep
        grp = self.wq[0][1] // 4
        if self.pk_cur != grp and not os.environ.get("NOW"):
            self.pk_cur = grp
            self.wprep = ["s_add_u32 s%d, s%d, 0x%x" % (sPKC, sPK, grp * 4096)]
        return self.wprep

    def bg_emit(self, kind, inline):
        self.in_bg = True
        if kind == "A":
            self.a_pop()
        else:
            self.w_issue()
            self.bg_w -= 1
        self.last_bg = self.clock
        self.in_bg = False

    def a_pop(self):
        th = self.aq.pop(0)
        while th.prep:
            self.b.I(th.prep.pop(0))
        th()
        self.prepped = None

    def slot_fill(self, rd_lag, issue_read):
        c = self.bg_pick()
        if c is not None and c[1] and rd_lag <= RDSLACK and not self.bg_prep_list(c[0]):
            self.bg_emit(c[0], False)
            self.clock += 8
            return
        budget = 2
        if rd_lag > 0:
            issue_read()
            budget -= 1
            if rd_lag > 1:
                issue_read()
                budget -= 1
        if c is not None:
            pl = self.bg_prep_list(c[0])
            while budget > 0 and pl:
                self.b.I(pl.pop(0))
                budget -= 1
                if c[0] == "A":
                    self.prepped = "A"
        self.side_step(max(budget, SIDEMIN))

    def Inc(self, t):
        self.b.I(t)
        self.b.vm_issued -= 1

    def stamp(self, name):
        self.last_stamp = name
        if os.environ.get("WLOG"):
            print("%-8s clock %6d  wq left %3d next %s free %d aq %d" % (
                name, self.clock, len(self.wq), self.wq[0][0] if self.wq else None, len(self.free), len(self.aq)), file=sys.stderr)
        if not self.diag:
            return
        b = self.b
        k = self.nstamp
        self.nstamp += 1
        assert k < 62
        b.comment("stamp %d %s" % (k, name))
        b.I("s_memtime s[94:95]")
        b.wait(lg=0)
        b.I("v_writelane_b32 v%d, s94, %d" % (vSTAMP, k))
        if env("RT", 0):
            b.I("s_memrealtime s[94:95]")
            b.wait(lg=0)
            b.I("v_writelane_b32 v255, s94, %d" % k)
        if name in ("start", "end"):
            b.I("s_memrealtime s[94:95]")
            b.wait(lg=0)
            b.I("v_writelane_b32 v%d, s94, %d" % (vSTAMP, 62 if name == "start" else 63))
        self.stamp_names.append(name)

    def buf(self, kind, idx):
        base = {"O": WS_O if self.sep else WS_H, "X": WS_X, "H": WS_H}[kind]
        return base + (idx * 0x1000000 if self.sep else 0)

    def hstride(self, kind):
        return HSZ // 2 if self.rgs(kind) == sRGH else 32768

    def rgs(self, kind):
        return sRGH if kind == "H" or (kind == "O" and not self.sep) else sRG64

    def srd(self, r, ptr, size):
        I = self.b.I
        I("s_mov_b32 s%d, s%d" % (r, ptr))
        I("s_and_b32 s%d, s%d, 0xffff" % (r + 1, ptr + 1))
        I("s_mov_b32 s%d, 0x%x" % (r + 2, size))
        I("s_mov_b32 s%d, 0x20000" % (r + 3))

    def ws(self):
        return "s[%d:%d]" % (R_WS, R_WS + 3)

    def w_enqueue(self, name, layer, f0, n, order=None):
        for i in (range(n) if order is None else order):
            self.w_index[(name, layer, i)] = len(self.w_index)
            self.wq.append(((name, layer, i), f0 + i))

    def w_issue(self):
        key, f = self.wq.pop(0)
        s = self.free.pop(0)
        self.w_issued += 1
        if os.environ.get("NOW"):
            self.wslot[key] = (s, None)
            return
        grp = f // 4
        while self.wprep:
            self.b.I(self.wprep.pop(0))
        if self.pk_cur != grp:
            self.b.I("s_add_u32 s%d, s%d, 0x%x" % (sPKC, sPK, grp * 4096))
            self.pk_cur = grp
        va = vW1 + key[2] % 3 if key[0] == "w1" and env("SKIPW1", 1) else vL16
        if os.environ.get("FAKEW"):
            self.b.I("s_mov_b32 s%d, s%d" % (sPKC, sPK))
        tok = self.b.I("buffer_load_dwordx4 %s, v%d, %s, s%d offen offset:%d sc1%s" % (
            slot_r(s), va, self.ws(), sPKC, (f % 4) * 1024, " nt" if env("NT", lambda k: False)(key) else ""))
        self.wslot[key] = (s, tok)

    def w_burst(self, n):
        k = 0
        while k < n and self.wq and self.free:
            self.w_issue()
            k += 1
        self.last_bg = self.clock

    def w_get(self, key):
        self.w_need = max(self.w_need, self.w_index.get(key, 0))
        self.w_cur = key[:2]
        if key not in self.wslot:
            print("WARNING: late W load", key, file=sys.stderr)
        while key not in self.wslot:
            assert self.wq and self.free, "no free slot for %s" % (key,)
            self.w_issue()
        s, tok = self.wslot[key]
        self.b.wait(tok)
        return slot_r(s)

    def w_release(self, key):
        s, _ = self.wslot.pop(key)
        self.free.append(s)

    def stores2(self, texts, wt=False):
        b = self.b
        if wt and not FT:
            return [b.I(t + " sc1") for t in texts]
        ls, lj = b.newlabel("Lslow"), b.newlabel("Ljoin")
        b.I("s_cmp_eq_u32 s%d, 1" % sFAST)
        b.I("s_cbranch_scc0 %s" % ls)
        b.saved.pop(ls)
        toks = [b.I(t) for t in texts]
        b.raw(lj + ":")
        self.cold += [ls + ":"] + ["    " + t + " sc1" for t in texts] + ["    s_branch " + lj]
        return toks

    def pair_store(self, p, sreg, off):
        for k in range(2):
            self.b.I("v_permlane16_swap_b32 v%d, v%d" % (p + k, p + 2 + k))
        return "buffer_store_dwordx4 %s, v%d, %s, s%d offen offset:%d" % (vr(p, 4), vST, self.ws(), sreg, off)

    def spin_guard(self, lab_loop):
        b = self.b
        b.I("s_sub_u32 s%d, s%d, 1" % (sSPIN, sSPIN))
        b.I("s_cmp_lg_u32 s%d, 0" % sSPIN)
        b.I("s_cbranch_scc1 %s" % lab_loop)
        b.I("s_branch L_end")

    def new_pub(self, toks):
        self.npub += 1
        k = self.npub
        self.pub_mine[k] = self.mine

        def flag():
            b = self.b
            b.I("s_add_u32 s%d, s%d, %d" % (sT, sTAG, k))
            b.I("v_mov_b32 v%d, s%d" % (vC2, sT))
            b.wait(toks)
            b.I("s_mov_b64 exec, 1")
            self.stores2(["buffer_store_dword v%d, off, %s, s%d" % (vC2, self.ws(), sMYF)])
            b.I("s_mov_b64 exec, -1")
            self.flagged.add(k)
        return k, flag

    def poll_issue(self):
        return self.b.I("buffer_load_dword v%d, v%d, %s, s%d offen sc1" % (vPOLL, vFL, self.ws(), sFL))

    def poll_shadow(self, k, ncs):
        if not ncs:
            return self.poll_check(k)
        tok = self.poll_issue()
        self.cs1_some(ncs)
        self.poll_check(k, tok)
        self.b.wait(vm=0)

    def poll_check(self, k, tok=None):
        b = self.b
        if k not in self.flagged:
            print("WARNING: side stream late for flag", k, file=sys.stderr)
        while k not in self.flagged:
            assert self.side, "flag %d never raised before its poll" % k
            self.side_step(1)
        lp, ld, lc = b.newlabel("Lpoll"), b.newlabel("Lpd"), b.newlabel("Lpc")
        b.I("s_add_u32 s%d, s%d, %d" % (sT, sTAG, k))
        if tok is None and env("DPOLL", 0):
            ld_ = "buffer_load_dword v%%d, v%d, %s, s%d offen sc1" % (vFL, self.ws(), sFL)
            b.I(ld_ % vPOLL)
            for _ in range(env("DPOLL", 0)):
                b.I("s_nop 15")
            b.label(lp)
            for r0, r1 in ((vPOLL, vT), (vT, vPOLL)):
                self.Inc(ld_ % r1)
                b.I("s_waitcnt vmcnt(1)")
                b.I("v_subrev_u32 v%d, s%d, v%d" % (r0, sT, r0))
                b.I("v_cmp_gt_u32 vcc, %d, v%d" % (16 - k, r0))
                b.I("s_cmp_eq_u64 vcc, exec")
                b.I("s_cbranch_scc1 %s" % ld)
            self.spin_guard(lp)
            b.label(ld)
            b.vm_done = b.vm_issued
            self.consumed = max(self.consumed, self.pub_mine[k])
            return
        if tok is not None:
            b.wait(tok)
            b.I("s_branch %s" % lc)
        b.label(lp)
        self.Inc("buffer_load_dword v%d, v%d, %s, s%d offen sc1" % (vPOLL, vFL, self.ws(), sFL))
        if tok is None:
            b.wait(vm=0)
        else:
            b.I("s_waitcnt vmcnt(0)")
        b.label(lc)
        b.I("v_subrev_u32 v%d, s%d, v%d" % (vPOLL, sT, vPOLL))
        b.I("v_cmp_gt_u32 vcc, %d, v%d" % (16 - k, vPOLL))
        b.I("s_cmp_eq_u64 vcc, exec")
        b.I("s_cbranch_scc1 %s" % ld)
        self.spin_guard(lp)
        b.label(ld)
        self.consumed = max(self.consumed, self.pub_mine[k])

    def queue_stats(self, hf, plan):
        b = self.b
        s0 = self.seq
        assert s0 % 2 == 0
        self.seq += 2
        for j in range(2):
            def th(j=j):
                assert s0 + 1 - NSLOT <= self.consumed
                self.atok.setdefault(s0, []).append(b.I(
                    "buffer_load_dwordx4 v%d, %s, s%d offen offset:%d sc1 lds" % (vL16, self.ws(), sAO, j * 1024)))
            th.seq = s0 + 1
            th.urgent = True
            th.prep = [] if j else ["s_add_u32 m0, s%d, 0x%x" % (sW2K, (s0 % NSLOT) * 4096),
                                    "s_add_u32 s%d, s%d, 0x%x" % (sAO, sSTC, hf * 8192)]
            plan.append(th)
        return s0

    def queue_half(self, kind, idx, hf, nds, plan, rot=False, ds0=0):
        b = self.b
        seqs = []
        base = self.buf(kind, idx) + hf * self.hstride(kind)
        rg = self.rgs(kind)
        assert self.seq % 2 == 0 and nds % 2 == 0
        for ds in range(ds0, ds0 + nds):
            sq = self.seq
            self.seq += 1
            seqs.append(sq)
            s0 = sq & ~1

            def th(sq=sq, s0=s0):
                assert s0 + 1 - NSLOT <= self.consumed, "ring slot busy"
                tk = b.I("buffer_load_dwordx4 v%d, %s, s%d offen offset:%d sc1 lds" % (vDM2, self.ws(), sAO, (sq & 1) * 1024))
                if sq & 1:
                    self.atok[s0] = self.atok[s0 + 1] = [tk]
            th.seq = s0 + 1
            m0 = "s_add_u32 m0, s%d, 0x%x" % (sW2K, (sq % NSLOT) * 4096)
            if sq & 1:
                th.prep = []
            elif not rot:
                th.prep = [m0, "s_add_u32 s%d, s%d, 0x%x" % (sAO, rg, base + ds * 4096)]
            else:
                if ds == 0:
                    th.prep = ["s_add_u32 s%d, s%d, 0x%x" % (sAB, sRB2, base), "s_mov_b32 s%d, s%d" % (sXS, sRO2)]
                else:
                    th.prep = ["s_add_u32 s%d, s%d, 0x2000" % (sXS, sXS), "s_and_b32 s%d, s%d, 0x7fff" % (sXS, sXS)]
                th.prep += [m0, "s_add_u32 s%d, s%d, s%d" % (sAO, sAB, sXS)]
            plan.append(th)
        return seqs

    def queue_both(self, kind, idx, nds, plan):
        out = ([], [])
        for d0 in range(0, nds, 2):
            for hf in range(2):
                out[hf].extend(self.queue_half(kind, idx, hf, 2, plan, ds0=d0))
        return out

    def seq_issued(self):
        return self.aq[0].seq if self.aq else self.seq

    def a_burst(self, n):
        k = 0
        while k < n and self.aq and self.aq[0].seq - NSLOT <= self.consumed:
            self.a_pop()
            k += 1
        self.last_bg = self.clock

    def frag_addr(self, sq, r, h):
        off = (sq % NSLOT) * 4096 + r * 2048 + h * 1024
        return ((vL16, vA1)[off >> 16], off & 0xffff)

    def gemm_prep(self, items, groups=None, depth=8, hooks=None, pre=None, post=None, pairw=False, buf0=0):
        b = self.b
        hooks, pre, post = hooks or {}, pre or {}, post or {}
        n = len(items)
        toks = [None] * n
        grp_of = {}
        for gi, g in enumerate(groups or []):
            for sq in g:
                grp_of[sq] = gi
        opened = set()
        st = {"ip": 0}

        rem = [1 << 30] * (n + 1)
        for k in range(n - 1, -1, -1):
            rem[k] = min(rem[k + 1], items[k][2] if items[k][2] is not None else 1 << 30)

        def reg(k):
            return vr(vAF + 4 * ((k + buf0) % NAF), 4)

        def issue():
            k = st["ip"]
            a, off, sq, _ = items[k]
            if sq in grp_of and grp_of[sq] not in opened:
                gi = grp_of[sq]
                opened.add(gi)
                while any(s not in self.atok for s in groups[gi]):
                    self.a_pop()
                    self.last_bg = self.clock
                for f in pre.get(gi, []):
                    f()
                if self.gstamp:
                    self.stamp("g%d?" % gi)
                b.wait(*[self.atok[s] for s in groups[gi]])
                b.I("s_barrier")
                if self.gstamp:
                    self.stamp("g%d!" % gi)
                self.consumed = max(self.consumed, self.mine)
                for f in post.get(gi, []):
                    f()
            if a == "tr":
                r0 = vAF + 4 * ((k + buf0) % NAF)
                self.I("ds_read_b64_tr_b16 %s, v%d offset:%d" % (p2(r0), vTQ, off))
                toks[k] = self.I("ds_read_b64_tr_b16 %s, v%d offset:%d" % (p2(r0 + 2), vTQ, off + 512))
            else:
                toks[k] = self.I("ds_read_b128 %s, v%d offset:%d" % (reg(k), a, off))
            st["ip"] += 1

        def prestart(m=None):
            while st["ip"] < min(depth if m is None else m, n):
                issue()

        def run():
            prestart()
            self.slotted = True
            for j in range(n):
                thunks = items[j][3](reg(j))
                while st["ip"] <= min(j + (1 if pairw else 0), n - 1):
                    issue()
                if pairw and j % 2 == 0 and j + 1 < st["ip"]:
                    b.wait(toks[j + 1])
                b.wait(toks[j])
                if items[j][2] is not None:
                    self.cur_seq = items[j][2]
                    lim = min(self.pinned) - 3 if self.pinned else 1 << 30
                    self.mine = max(self.mine, min(rem[j] - 1, lim))
                if not thunks and st["ip"] < min(n, j + 1 + depth):
                    issue()
                for th in thunks:
                    n0 = b.nins
                    th()
                    if b.nins > n0:
                        self.slot_fill(min(n, j + 1 + depth) - st["ip"], issue)
                for f in hooks.get(j, []):
                    f()
            self.slotted = False
            self.side_flush()
            sq = [it[2] for it in items if it[2] is not None]
            if sq:
                self.cur_seq = max(sq) + 1
                lim = min(self.pinned) - 3 if self.pinned else 1 << 30
                self.mine = max(self.mine, min(max(sq), lim))
        return prestart, run

    def gemm(self, *a, **k):
        self.gemm_prep(*a, **k)[1]()

    def mf(self, d, a, bb, c=None):
        dd = vr(d, 4)
        cc = dd if c is None else c
        return lambda: self.I("v_mfma_f32_16x16x32_bf16 %s, %s, %s, %s" % (dd, a, bb, cc))

    @staticmethod
    def split(seqs, sizes):
        out, k = [], 0
        for s in sizes:
            out.append(seqs[k:k + s])
            k += s
        assert k == len(seqs)
        return out

    def stats_stage1(self, s0, hf):
        b = self.b
        t = vS1
        tk = {}
        def landed():
            while len(self.atok.get(s0, [])) < 2:
                self.a_pop()
            b.wait(self.atok[s0])
        out = ["v_add_u32 v%d, 0x%x, v%d" % (vT, (s0 % NSLOT) * 4096, vSB), landed]
        for k in range(4):
            out.append(lambda k=k: tk.__setitem__(k, b.I("ds_read2st64_b32 %s, v%d offset0:%d offset1:%d" % (
                p2(t + 2 * k), vT, 2 * k, 2 * k + 1))))
        out += [6, lambda: b.wait(tk[3])]
        out += ["v_add_f32 v%d, v%d, v%d" % (t + k, t + k, t + 4 + k) for k in range(4)]
        out += ["v_add_f32 v%d, v%d, v%d" % (t + k, t + k, t + 2 + k) for k in range(2)]
        out += ["v_add_f32 v%d, v%d, v%d" % (t, t, t + 1)]
        out.append(lambda: tk.__setitem__("w", b.I("ds_write_b32 v%d, v%d offset:%d" % (vSW, t, hf * 1024))))

        def before_barrier():
            self.side_flush()
            b.wait(tk["w"])
        return out, before_barrier

    def stats_stage2(self, hf, scale, kv):
        b = self.b
        t = vS1
        tk = {}
        out = []
        for k in range(2):
            out.append(lambda k=k: tk.__setitem__(k, b.I("ds_read2st64_b32 %s, v%d offset0:%d offset1:%d" % (
                p2(t + 2 * k), vEX, hf * 4 + 2 * k, hf * 4 + 2 * k + 1))))
        a0, b0, a1, b1 = [vAB + 4 * hf + k for k in range(4)]
        out += [6, lambda: b.wait(tk[1]),
                "v_add_f32 v%d, v%d, v%d" % (t, t, t + 2), "v_add_f32 v%d, v%d, v%d" % (t + 1, t + 1, t + 3),
                "v_add_f32 v%d, v%d, v%d" % (t, t, t + 1), "v_mul_f32 v%d, 0x3b000000, v%d" % (t, t),
                "v_mov_b32 v%d, v%d" % (t + 1, t), 1,
                "v_permlane16_swap_b32 v%d, v%d" % (t, t + 1), 1,
                "v_fma_f32 v%d, -v%d, v%d, v%d" % (t + 1, t, t, t + 1), "v_max_f32 v%d, 0, v%d" % (t + 1, t + 1),
                "v_add_f32 v%d, 0x3727c5ac, v%d" % (t + 1, t + 1), "v_rsq_f32 v%d, v%d" % (a0, t + 1), 1]
        if scale:
            out.append("v_mul_f32_e64 v%d, -v%d, v%d" % (a0, a0, vK))
        out.append("v_mul_f32_e64 v%d, -v%d, v%d" % (b0, t, a0))
        if kv:
            def wr():
                b.I("s_mov_b32 exec_lo, 0xffff")
                b.I("s_mov_b32 exec_hi, 0xffff")
                b.I("ds_write_b32 v%d, v%d" % (vSWR, a0))
                b.I("ds_write_b32 v%d, v%d offset:128" % (vSWR, b0))
                b.I("s_mov_b64 exec, -1")
            out.append(wr)
        out += ["v_mov_b32 v%d, v%d" % (a1, a0), "v_mov_b32 v%d, v%d" % (b1, b0), 1,
                "v_permlane32_swap_b32 v%d, v%d" % (a0, a1), "v_permlane32_swap_b32 v%d, v%d" % (b0, b1)]
        return out

    def stats_hooks(self, s0, hf, scale, kv, j1, gi, hooks, pre, post):
        s1, bb = self.stats_stage1(s0, hf)
        hooks.setdefault(j1, []).append(lambda: self.side.extend(s1))
        pre.setdefault(gi, []).append(bb)
        post.setdefault(gi, []).append(lambda: self.side.extend(self.stats_stage2(hf, scale, kv)))

    def stats_startup(self):
        b = self.b
        I = b.I
        t = vT
        I("v_mul_f32 v%d, 0x3b000000, v%d" % (t + 1, vS1))
        I("v_cndmask_b32 v%d, v%d, v%d, s[%d:%d]" % (t, vS2, vS2 + 1, sM1, sM1 + 1))
        I("v_cndmask_b32 v%d, v%d, v%d, s[%d:%d]" % (t, t, vS2 + 2, sM2, sM2 + 1))
        I("v_cndmask_b32 v%d, v%d, v%d, s[%d:%d]" % (t, t, vS2 + 3, sM3, sM3 + 1))
        I("v_mul_f32 v%d, 0x3b000000, v%d" % (t, t))
        I("v_fma_f32 v%d, -v%d, v%d, v%d" % (t, t + 1, t + 1, t))
        I("v_max_f32 v%d, 0, v%d" % (t, t))
        I("v_add_f32 v%d, 0x3727c5ac, v%d" % (t, t))
        I("v_rsq_f32 v%d, v%d" % (t + 2, t))
        I("v_lshlrev_b32 v%d, 1, v%d" % (t + 4, vSW))
        I("v_mul_f32_e64 v%d, -v%d, v%d" % (t + 3, t + 1, t + 2))
        I("v_subrev_u32 v%d, 0x%x, v%d" % (t + 4, L_STA - 512, t + 4))
        I("s_mov_b64 exec, s[%d:%d]" % (sDIAG, sDIAG + 1))
        I("ds_write_b32 v%d, v%d" % (vSW, t + 2))
        I("ds_write_b32 v%d, v%d offset:256" % (vSW, t + 3))
        I("ds_write_b64 v%d, v[%d:%d]" % (t + 4, t + 2, t + 3))
        I("s_mov_b64 exec, -1")
        b.wait(lg=0)
        I("s_barrier")

    def phi_pairs(self, pairs):
        I = self.I
        for c0 in range(0, len(pairs), 4):
            grp = pairs[c0:c0 + 4]
            for k, (t, d) in enumerate(grp):
                I("v_pk_mul_f32 %s, %s, %s %s" % (p2(vT + 2 * k), p2(t), p2(vK), K_L2E))
            for k, (t, d) in enumerate(grp):
                I("v_exp_f32_e64 v%d, v%d clamp" % (vT + 2 * k, vT + 2 * k))
                I("v_max_f32 v%d, v%d, v%d" % (t, vK + 1, t))
                I("v_exp_f32_e64 v%d, v%d clamp" % (vT + 2 * k + 1, vT + 2 * k + 1))
                I("v_max_f32 v%d, v%d, v%d" % (t + 1, vK + 1, t + 1))
            for k, (t, d) in enumerate(grp):
                I("v_pk_add_f32 %s, %s, %s" % (p2(t), p2(t), p2(vT + 2 * k)))
            for k, (t, d) in enumerate(grp):
                I("v_cvt_pk_bf16_f32 v%d, v%d, v%d" % (d, t, t + 1))

    def kv_epilogue(self, hf, ra, rb):
        I = self.I
        K, V = vACC + 8 * hf, vACC + 16 + 8 * hf
        for j in range(4):
            I("v_pk_fma_f32 %s, %s, %s, %s op_sel:[0,0,1] op_sel_hi:[1,1,1]" % (p2(vT + 2 * j), p2(rb + 2 * j), p2(vCSK), p2(vK)))
            I("v_pk_mul_f32 %s, %s, %s" % (p2(vT + 8 + 2 * j), p2(rb + 2 * j), p2(vCSV)))
        for j in range(4):
            I("v_pk_fma_f32 %s, %s, %s, %s" % (p2(K + 2 * j), p2(ra + 2 * j), p2(K + 2 * j), p2(vT + 2 * j)))
            I("v_pk_fma_f32 %s, %s, %s, %s" % (p2(V + 2 * j), p2(ra + 2 * j), p2(V + 2 * j), p2(vT + 8 + 2 * j)))
        for j in range(4):
            I("v_cvt_pk_bf16_f32 v%d, v%d, v%d" % (V + j, V + 2 * j, V + 2 * j + 1))
        self.phi_pairs([(K + 2 * j, K + j) for j in range(4)])

    def startup(self):
        b = self.b
        I = b.I
        i_, g_, l3, l7, q0, tc = vT + 2, vT + 3, vT + 6, vT + 7, vT + 8, vT + 9
        if self.diag:
            I("s_memtime s[92:93]")
        I("s_cmp_ge_u32 s2, 256")
        I("s_cbranch_scc1 L_end")
        I("s_load_dwordx4 s[4:7], s[0:1], 0")
        I("s_load_dwordx2 s[20:21], s[0:1], 64")
        I("s_load_dwordx2 s[8:9], s[0:1], 16")
        I("s_load_dwordx4 s[12:15], s[0:1], 32")
        I("s_load_dwordx4 s[16:19], s[0:1], 48")
        I("s_getpc_b64 s[90:91]")
        b.label("L_pc")
        I("v_lshrrev_b32 v%d, 6, v0" % vT)
        I("v_and_b32 v0, 63, v0")
        I("v_readfirstlane_b32 s%d, v%d" % (sW, vT))
        I("s_lshr_b32 s%d, s2, 3" % (sT + 1))
        I("s_lshl_b32 s%d, s%d, 2" % (sT + 3, sT + 1))
        I("s_add_u32 s%d, s%d, s%d" % (sT + 3, sT + 3, sW))
        I("s_and_b32 s%d, s%d, 31" % (sT, sT + 3))
        I("s_lshl_b32 s%d, s%d, 11" % (sT, sT))
        I("v_lshlrev_b32 v%d, 7, v0" % vTCH)
        I("v_add_u32 v%d, s%d, v%d" % (vT, sT, vTCH))
        I("v_min_u32 v%d, L_end-L_pc, v%d" % (vT, vT))
        I("s_mov_b64 exec, 0xffff")
        I("global_load_dword v%d, v%d, s[90:91]" % (vDUM, vT))
        I("s_mov_b64 exec, -1")
        I("s_and_b32 s%d, s2, 7" % sROT)
        I("s_and_b32 s%d, s%d, 7" % (sC, sT + 1))
        I("s_lshr_b32 s%d, s%d, 3" % (sQ, sT + 1))
        I("s_lshl_b32 s%d, s%d, 2" % (sT, sROT))
        I("s_add_u32 s%d, s%d, s%d" % (sRG, sT, sQ))
        I("s_lshl_b32 s%d, s%d, 16" % (sRG64, sRG))
        I("s_lshl_b32 s%d, s%d, 11" % (sW2K, sW))
        I("v_lshrrev_b32 v%d, 4, v0" % g_)
        I("v_and_b32 v%d, 15, v0" % i_)
        tw, tx = vT + 12, vT + 13
        I("s_mul_i32 s%d, s%d, %d" % (sT + 2, sT + 3, 4 * 3072))
        I("v_lshlrev_b32 v%d, 10, v0" % tx)
        I("v_add_u32 v%d, s%d, v%d" % (tw, sT + 2, tx))
        I("s_lshl_b32 s%d, s%d, 18" % (sT + 2, sROT))
        I("s_lshl_b32 s%d, s%d, 11" % (sT, sT + 3))
        I("s_add_u32 s%d, s%d, s%d" % (sT, sT, sT + 2))
        I("v_add_u32 v%d, s%d, v%d" % (tx, sT, tx))
        I("v_lshrrev_b32 v%d, 3, v0" % l3)
        I("v_and_b32 v%d, 7, v0" % l7)
        I("v_xor_b32 v%d, v%d, v%d" % (vT + 4, l7, g_))
        I("v_lshlrev_b32 v%d, 4, v%d" % (vT + 4, vT + 4))
        I("v_lshl_add_u32 v%d, v%d, 10, v%d" % (vT + 4, l3, vT + 4))
        I("s_lshl_b32 s%d, s%d, 14" % (sT + 1, sW))
        I("v_add_u32 v%d, s%d, v%d" % (vXS0, sT + 1, vT + 4))
        I("v_xor_b32 v%d, 64, v%d" % (vXS1, vXS0))
        I("v_add_u32 v%d, 7168, v%d" % (vXS1, vXS1))
        I("v_and_b32 v%d, 1, v%d" % (vT + 4, g_))
        I("v_lshlrev_b32 v%d, 1, v%d" % (vT + 4, vT + 4))
        I("v_xor_b32 v%d, v%d, v%d" % (q0, l7, vT + 4))
        I("v_lshlrev_b32 v%d, 4, v%d" % (q0, q0))
        I("s_and_b32 s%d, s%d, 1" % (sT + 1, sW))
        I("s_lshl_b32 s%d, s%d, 6" % (sT + 1, sT + 1))
        I("v_xor_b32 v%d, s%d, v%d" % (vT + 4, sT + 1, q0))
        I("s_lshl_b32 s%d, s%d, 3" % (sT + 1, sW))
        I("v_add_u32 v%d, s%d, v%d" % (vT + 5, sT + 1, l3))
        I("v_mul_u32_u24 v%d, 3072, v%d" % (vT + 5, vT + 5))
        I("v_add_u32 v%d, v%d, v%d" % (vWS, vT + 4, vT + 5))
        sXO, sWO_, sRB = sAB, sAO, 93
        I("s_lshl_b32 s%d, s%d, 7" % (sWO_, sC))
        I("v_add_u32 v%d, s%d, v%d" % (vWS, sWO_, vWS))
        if self.diag:
            b.wait(lg=0)
            I("s_mov_b32 s91, s92")
        I("s_add_u32 s%d, s%d, 0x%x" % (sRB, sW2K, L_RING - 1024))
        I("s_lshl_b32 s%d, s%d, 7" % (sXO, sROT))
        I("s_mul_i32 s%d, s%d, %d" % (sWO_, sROT, 64 * 3072))
        if self.diag:
            I("v_mov_b32 v%d, 0" % vSTAMP)
        b.wait(lg=0)
        if self.diag:
            I("v_writelane_b32 v%d, s91, 61" % vSTAMP)
        self.stamp("start")
        I("s_add_u32 s88, s%d, 0x%x" % (S_WS, WS_EP))
        I("s_addc_u32 s89, s%d, 0" % (S_WS + 1))
        I("s_load_dword s%d, s[88:89], 0" % sEP)
        self.srd(R_WQ, S_WQ, 512 * 3072)
        I("s_add_u32 s%d, s%d, s%d" % (R_X, S_X, sRG64))
        I("s_addc_u32 s%d, s%d, 0" % (R_X + 1, S_X + 1))
        I("s_and_b32 s%d, s%d, 0xffff" % (R_X + 1, R_X + 1))
        I("s_mov_b32 s%d, 0x10000" % (R_X + 2))
        I("s_mov_b32 s%d, 0x20000" % (R_X + 3))
        tokA, tokW = {}, {}

        def issue_thunks(ks):
            th = []
            if ks % 2 == 0:
                ds = ks // 2
                tokA[ds] = []
                pre = ["s_add_u32 m0, s%d, 0x%x" % (sW2K, ds * 8192)]
                if ds:
                    pre += ["s_add_u32 s%d, s%d, 128" % (sXO, sXO), "s_and_b32 s%d, s%d, 0x380" % (sXO, sXO)]
                th.append((pre, lambda: tokA[ds].append(
                    I("buffer_load_dwordx4 v%d, s[%d:%d], s%d offen lds" % (vXS0, R_X, R_X + 3, sXO)))))
                th.append(([], lambda: tokA[ds].append(
                    I("buffer_load_dwordx4 v%d, s[%d:%d], s%d offen offset:1024 lds" % (vXS1, R_X, R_X + 3, sXO)))))
            tokW[ks] = []
            for p in range(2):
                pre = []
                if p == 0:
                    if ks:
                        pre.append("s_add_u32 s%d, s%d, %d" % (sWO_, sWO_, 32 * 3072))
                        if ks % 2 == 0:
                            pre += ["s_cmp_eq_u32 s%d, %d" % (sWO_, 512 * 3072), "s_cselect_b32 s%d, 0, s%d" % (sWO_, sWO_)]
                    pre.append("s_add_u32 m0, s%d, 0x%x" % (sRB, (ks % NR) * 8192))
                th.append((pre, lambda p=p: tokW[ks].append(I("buffer_load_dwordx4 v%d, s[%d:%d], s%d offen offset:%d lds" % (
                    vWS, R_WQ, R_WQ + 3, sWO_, (p + 1) * 1024)))))
            return th

        tokQ = []

        def rq_base(ks):
            return L_PACK + ks * 4096 if ks < 4 else L_WQ + (ks - 4) * 4096

        def q_thunk(ks):
            pre = ["s_add_u32 s%d, s%d, %d" % (sWO_, sWO_, 32 * 3072)]
            if ks % 2 == 0:
                pre += ["s_cmp_eq_u32 s%d, %d" % (sWO_, 512 * 3072), "s_cselect_b32 s%d, 0, s%d" % (sWO_, sWO_)]
            pre.append("s_add_u32 m0, s%d, 0x%x" % (sW1K, rq_base(ks)))
            return (pre, lambda: tokQ.append(I("buffer_load_dwordx4 v%d, s[%d:%d], s%d offen lds" % (vWS, R_WQ, R_WQ + 3, sWO_))))
        self.tokQ, self.rq_base = tokQ, rq_base

        def issue_now(ks):
            for pre, th in issue_thunks(ks):
                for t in pre:
                    I(t)
                th()

        if env("T0", 1):
            self.srd(R_PK, S_X, 2048 * 1024)
            if env("XT", 1):
                I("v_lshrrev_b32 v%d, 3, v%d" % (vT + 4, tx))
                I("v_lshlrev_b32 v%d, 10, v0" % (vT + 4))
                I("v_sub_u32 v%d, v%d, v%d" % (tx, tx, vT + 4))
                I("v_add_u32 v%d, v%d, v%d" % (tx, tx, vTCH))
            for ptr, srd, v, mask in ((S_WQ, R_WQ, tw, 0xdb6 if env('TQ', -1) >= 0 else 0xfff), (S_X, R_PK, tx, 0xffff if env("XT", 1) else 3)):
                I("s_sub_u32 s%d, 0x180, s%d" % (sT, ptr))
                I("s_and_b32 s%d, s%d, 0x%x" % (sT, sT, 0 if env("XT", 1) and ptr == S_X else 0x380))
                I("s_mov_b64 exec, 0x%x" % mask)
                I("buffer_load_dword v%d, v%d, s[%d:%d], s%d offen" % (vDUM, v, srd, srd + 3, sT))
            I("s_mov_b64 exec, -1")
        NFIRST = env("NFIRST", 4)
        for ks in range(NFIRST):
            issue_now(ks)
        self.stamp("first")
        I("s_getreg_b32 s%d, hwreg(HW_REG_XCC_ID, 0, 4)" % sXCC)
        I("s_mov_b32 s%d, 0x100000" % sSPIN)
        self.srd(R_WS, S_WS, WS_SIZE)
        self.srd(R_OUT, S_OUT, 2048 * 1024)
        I("v_lshlrev_b32 v%d, 4, v0" % vL16)
        I("v_lshlrev_b32 v%d, 2, v0" % vL4)
        I("s_lshl_b32 s%d, s%d, 10" % (sW1K, sW))
        I("s_lshl_b32 s%d, s%d, 2" % (sT, sC))
        I("s_add_u32 s%d, s%d, s%d" % (sT, sT, sW))
        I("s_mul_i32 s%d, s%d, %d" % (sKV, sT, KVH))
        I("s_add_u32 s%d, s%d, 0x%x" % (sKV, sKV, WS_KV + KB0))
        I("v_mov_b32 v%d, 0" % vC2)
        I("s_and_b32 s%d, s%d, 15" % (sT + 1, sRG))
        I("s_mul_i32 s%d, s%d, %d" % (sT + 1, sT + 1, KVH // 16))
        I("s_add_u32 s%d, s%d, s%d" % (sT + 1, sT + 1, sKV))
        I("s_lshr_b32 s%d, s%d, 4" % (sT + 2, sRG))
        I("s_mul_i32 s%d, s%d, %d" % (sT + 2, sT + 2, KVL))
        I("s_add_u32 s%d, s%d, s%d" % (sT + 1, sT + 1, sT + 2))
        I("v_mov_b32 v%d, 0" % vPOLL)
        I("v_mov_b32 v%d, 0" % (vPOLL + 1))
        I("v_lshlrev_b32 v%d, 3, v0" % (vT + 4))
        assert KVH % 128 == 0 and KVH // 128 <= 64
        mask = (1 << (KVH // 128)) - 1
        I("s_mov_b32 exec_lo, 0x%x" % (mask & 0xffffffff))
        I("s_mov_b32 exec_hi, 0x%x" % (mask >> 32))
        ztok = I("buffer_store_dwordx2 %s, v%d, %s, s%d offen sc1" % (p2(vPOLL), vT + 4, self.ws(), sT + 1))
        I("s_mov_b64 exec, -1")
        I("s_mul_i32 s%d, s%d, %d" % (sPK, sT, PKW))
        I("s_lshl_b32 s%d, s%d, 7" % (sFL, sRG))
        I("s_lshl_b32 s%d, s%d, 12" % (sR1, sC))
        I("s_add_u32 s%d, s%d, 0x%x" % (sR1, sR1, WS_R2))
        I("s_add_u32 s%d, s%d, 0x%x" % (sFL, sFL, WS_FL))
        I("s_lshl_b32 s%d, s%d, 2" % (sMYF, sT))
        I("s_add_u32 s%d, s%d, s%d" % (sMYF, sMYF, sFL))
        I("s_lshl_b32 s%d, s%d, 14" % (sSTC, sRG))
        I("s_add_u32 s%d, s%d, 0x%x" % (sSTC, sSTC, WS_ST))
        I("s_lshl_b32 s%d, s%d, 8" % (sSTP, sT))
        I("s_add_u32 s%d, s%d, s%d" % (sSTP, sSTP, sSTC))
        I("s_add_u32 s%d, s%d, s%d" % (sSTC, sSTC, sW2K))
        I("s_mul_i32 s%d, s%d, %d" % (sRGH, sRG, HSZ))
        I("s_lshl_b32 s%d, s%d, 12" % (sSTO, sC))
        I("s_lshl_b32 s%d, s%d, 9" % (sT + 1, sW))
        I("s_add_u32 s%d, s%d, s%d" % (sSTO, sSTO, sT + 1))
        I("s_lshl_b32 s%d, s%d, 5" % (sOUT, sT))
        I("s_mul_i32 s%d, s%d, 3" % (sT, sT))
        for t in range(3):
            I("s_add_u32 s%d, s%d, %d" % (sT + 1, sT, t))
            I("s_lshr_b32 s%d, s%d, 2" % (sT + 2, sT + 1))
            I("s_lshl_b32 s%d, s%d, 12" % (sT + 2, sT + 2))
            I("s_and_b32 s%d, s%d, 3" % (sT + 3, sT + 1))
            I("s_lshl_b32 s%d, s%d, 9" % (sT + 3, sT + 3))
            I("s_add_u32 s%d, s%d, s%d" % (sT + 2, sT + 2, sT + 3))
            I("s_add_u32 s%d, s%d, s%d" % (sT + 2, sT + 2, sRGH))
            I("s_cmp_lt_u32 s%d, 86" % (sT + 1))
            I("s_cselect_b32 s%d, s%d, 0x%x" % (sH0 + t, sT + 2, OOB))
            I("s_cselect_b32 s%d, 0, 0x%x" % (sT + 2, OOB))
            I("v_add_u32 v%d, s%d, v%d" % (vW1 + t, sT + 2, vL16))
        I("v_add_u32 v%d, 0x10000, v%d" % (vA1, vL16))
        I("v_add_u32 v%d, s%d, v%d" % (vDMA, sW1K, vL16))
        I("v_add_u32 v%d, s%d, v%d" % (vDM2, sW2K, vL16))
        I("s_lshr_b32 s%d, s%d, 1" % (sT + 1, sW))
        I("s_add_u32 s%d, s%d, s%d" % (sRO2, sROT, sT + 1))
        I("s_and_b32 s%d, s%d, 7" % (sRO2, sRO2))
        I("s_lshl_b32 s%d, s%d, 12" % (sRO2, sRO2))
        I("s_lshl_b32 s%d, s%d, 12" % (sT + 1, sT + 1))
        I("s_sub_u32 s%d, s%d, s%d" % (sRB2, sRG64, sT + 1))
        I("v_and_b32 v%d, 0x7c, v%d" % (vFL, vL4))
        I("v_lshrrev_b32 v%d, 1, v%d" % (vT + 4, g_))
        I("v_lshlrev_b32 v%d, 8, v%d" % (vT + 4, vT + 4))
        I("v_lshl_add_u32 v%d, v%d, 4, v%d" % (vT + 4, i_, vT + 4))
        I("v_and_b32 v%d, 1, v%d" % (vT + 5, g_))
        I("v_lshl_add_u32 v%d, v%d, 11, v%d" % (vST, vT + 5, vT + 4))
        I("v_lshlrev_b32 v%d, 4, v%d" % (vSTA, g_))
        I("v_add_u32 v%d, 0x%x, v%d" % (vSTA, L_STA, vSTA))
        I("v_lshlrev_b32 v%d, 3, v%d" % (vSTQ, i_))
        I("v_add_u32 v%d, 0x%x, v%d" % (vSTQ, L_STA + 512, vSTQ))
        I("s_lshl_b32 s%d, s%d, 6" % (sT, sW))
        I("s_add_u32 s%d, s%d, 0x%x" % (sT, sT, L_STA))
        I("v_lshlrev_b32 v%d, 2, v%d" % (vSW, i_))
        I("v_add_u32 v%d, s%d, v%d" % (vSW, sT, vSW))
        I("v_lshrrev_b32 v%d, 3, v%d" % (vT + 4, i_))
        I("v_lshlrev_b32 v%d, 10, v%d" % (vT + 4, vT + 4))
        I("v_and_b32 v%d, 7, v%d" % (vT + 5, i_))
        I("v_lshl_add_u32 v%d, v%d, 7, v%d" % (vT + 4, vT + 5, vT + 4))
        I("v_lshrrev_b32 v%d, 1, v%d" % (vT + 5, i_))
        I("v_xor_b32 v%d, v%d, v%d" % (vT + 5, vT + 5, g_))
        I("v_lshl_add_u32 v%d, v%d, 4, v%d" % (vX0, vT + 5, vT + 4))
        I("v_xor_b32 v%d, 64, v%d" % (vX1, vX0))
        I("v_add_u32 v%d, s%d, v%d" % (vOW0, sW2K, vX0))
        I("v_add_u32 v%d, s%d, v%d" % (vOW1, sW2K, vX1))
        I("v_bfe_u32 v%d, v0, 2, 2" % (vT + 4))
        I("v_bfe_u32 v%d, v0, 3, 1" % (vT + 5))
        I("v_lshlrev_b32 v%d, 1, v%d" % (vT + 5, vT + 5))
        I("v_bfe_u32 v%d, v0, 4, 1" % (vT + 10))
        I("v_lshl_add_u32 v%d, v%d, 2, v%d" % (vT + 5, vT + 10, vT + 5))
        I("v_bfe_u32 v%d, v0, 1, 1" % (vT + 10))
        I("v_xor_b32 v%d, v%d, v%d" % (vT + 5, vT + 5, vT + 10))
        I("v_lshlrev_b32 v%d, 4, v%d" % (vT + 5, vT + 5))
        I("v_lshl_add_u32 v%d, v%d, 7, v%d" % (tc, vT + 4, vT + 5))
        I("v_and_b32 v%d, 1, v0" % (vT + 10))
        I("v_lshl_add_u32 v%d, v%d, 3, v%d" % (tc, vT + 10, tc))
        I("s_lshl_b32 s%d, s%d, 5" % (sT + 1, sW))
        I("v_xor_b32 v%d, s%d, v%d" % (vT + 4, sT + 1, tc))
        I("v_lshl_add_u32 v%d, v%d, 10, v%d" % (vTQ, g_, vT + 4))
        I("v_add_u32 v%d, 0x%x, v%d" % (vTQ, L_WQ, vTQ))
        I("v_lshl_add_u32 v%d, v%d, 11, v%d" % (vT + 4, g_, vT + 4))
        I("v_add_u32 v%d, 0x%x, v%d" % (vTR, L_RING, vT + 4))
        for k in range(4):
            I("v_mov_b32 v%d, 0x3f803f80" % (vONE + k))
        I("v_mov_b32 v%d, 0x3fb8aa3b" % vK)
        I("v_mov_b32 v%d, 0x358637bd" % (vK + 1))
        I("s_mul_i32 s%d, s%d, 2560" % (sT, sW))
        I("s_add_u32 s%d, s%d, 0x%x" % (sT, sT, L_KVI))
        I("v_add_u32 v%d, s%d, v%d" % (vKVL, sT, vL4))
        for r in range(4):
            I("v_add_u32 v%d, %d, v0" % (vT + 4, 64 * r))
            I("v_mul_u32_u24 v%d, 4370, v%d" % (vT + 5, vT + 4))
            I("v_lshrrev_b32 v%d, 16, v%d" % (vT + 5, vT + 5))
            I("v_add_u32 v%d, v%d, v%d" % (vT + 4, vT + 4, vT + 5))
            I("v_lshlrev_b32 v%d, 2, v%d" % (vT + 4, vT + 4))
            I("v_add_u32 v%d, s%d, v%d" % (vPOS + r, sT, vT + 4))
        I("v_lshrrev_b32 v%d, 1, v%d" % (vT + 4, g_))
        I("v_add_u32 v%d, v%d, v%d" % (vT + 4, vT + 4, g_))
        I("v_lshlrev_b32 v%d, 4, v%d" % (vT + 4, vT + 4))
        I("s_add_u32 s%d, s%d, %d" % (sT, sT, 276 * 4))
        I("v_add_u32 v%d, s%d, v%d" % (vZP, sT, vT + 4))
        I("v_cmp_eq_u32 vcc, 15, v%d" % i_)
        I("v_cndmask_b32 v%d, 0, 1.0, vcc" % (vT + 4))
        b.wait(lg=0)
        for k in range(5):
            I("ds_write_b32 v%d, v%d offset:%d" % (vKVL, vT + 4, 256 * k))
        I("s_xor_b32 s%d, s%d, 0x80000000" % (sTAG, sEP))
        I("s_and_b32 s%d, s%d, 0xfffffff0" % (sTAG, sTAG))
        I("s_mov_b32 s%d, 0x358637bd" % sEPS)
        for r, val in ((sM1, 0x22222222), (sM2, 0x44444444), (sM3, 0x88888888)):
            I("s_mov_b32 s%d, 0x%x" % (r, val))
            I("s_mov_b32 s%d, 0x%x" % (r + 1, val))
        I("s_mov_b32 s%d, 0x00f0000f" % sDIAG)
        I("s_mov_b32 s%d, 0xf0000f00" % (sDIAG + 1))
        I("v_lshlrev_b32 v%d, 10, v%d" % (vT + 4, g_))
        I("s_lshl_b32 s%d, s%d, 12" % (sT, sW))
        I("v_add_u32 v%d, s%d, v%d" % (vT + 4, sT, vT + 4))
        for t in range(4):
            I("v_xor_b32 v%d, %d, v%d" % (vCS1 + 4 + t, 32 * t, tc))
            I("v_add_u32 v%d, v%d, v%d" % (vCS1 + 4 + t, vCS1 + 4 + t, vT + 4))
            I("v_add_u32 v%d, 0x%x, v%d" % (vCS1 + 4 + t, L_PACK, vCS1 + 4 + t))
        I("v_and_b32 v%d, 31, v0" % (vT + 14))
        I("v_lshlrev_b32 v%d, 10, v%d" % (vT + 14, vT + 14))
        I("v_lshrrev_b32 v%d, 5, v0" % (vT + 4))
        I("v_lshl_add_u32 v%d, v%d, 4, v%d" % (vT + 14, vT + 4, vT + 14))
        I("s_add_u32 s%d, s%d, s%d" % (sT, sTAG, sXCC))
        I("v_mov_b32 v%d, s%d" % (vT + 15, sT))
        ptk, pth = self.pack_load(l3, q0)
        KL = env("KL", -1)
        for ks in range(NFIRST, env('NINIT', 6)):
            issue_now(ks)
        nxt = env('NINIT', 6)
        nq = 0
        if KL < 0:
            for pre, th in pth:
                for t in pre:
                    I(t)
                th()
        I("s_mov_b64 exec, 1")
        I("buffer_load_dword v%d, off, %s, s%d sc1" % (vDUM, self.ws(), sFL))
        I("s_mov_b64 exec, -1")
        self.stamp("setup")

        tmp = [self.free.pop() for _ in range(6)]
        assert all(s[0] == "v" for s in tmp)
        cK, cV = tmp[4][1], tmp[5][1]
        res_toks = []
        KZ = env("KZ", 2)
        KP, KANN, KI, KC = env("KP", 4), env("KANN", 9), env("KI", 12), env("KC", 99)
        for ks in range(17):
            fill, dma, nrd = [], [], 0
            if ks < 16:
                b.wait(tokW[ks], tokA[ks // 2])
                if ks == KZ:
                    b.wait(ztok)
                if ks == KANN:
                    b.wait(pst)
                I("s_barrier")
                if ks == 0:
                    self.stamp("w0")
                elif env("LSTAMP", 0):
                    self.stamp("it%d" % ks)
                if ks == KC:
                    self.r1_check()
                    self.bg_w = len(self.free) - 2 * (16 - ks) - 16
                    self.last_bg = self.clock
                if ks in (KZ, KANN):
                    lx = b.newlabel("Lann")
                    I("s_cmp_lg_u32 s%d, 0" % sW)
                    I("s_cbranch_scc1 %s" % lx)
                    I("s_lshl_b32 s%d, s%d, 7" % (sT, sRG))
                    I("s_add_u32 s%d, s%d, s%d" % (sT, sT, sR1))
                    if ks == KANN:
                        I("s_add_u32 s%d, s%d, 0x%x" % (sT, sT, WS_R3 - WS_R2))
                    I("s_mov_b64 exec, 1")
                    self.Inc("buffer_store_dword v%d, off, %s, s%d sc1" % (vT + 15, self.ws(), sT))
                    I("s_mov_b64 exec, -1")
                    b.label(lx)
                for p in range(2):
                    s = self.free.pop(0)
                    self.wslot[("qkv", 0, 2 * ks + p)] = (s, None)
                    for hh in range(2):
                        fill.append(lambda s=s, hh=hh, p=p: I("ds_read_b64_tr_b16 %s, v%d offset:%d" % (
                            vr(s[1] + 2 * hh, 2, s[0]), vTR, (ks % NR) * 8192 + p * 1024 + hh * 512)))
                fb = vAF + (ks & 1) * 20
                ds, h = ks // 2, ks & 1
                for rt in range(4):
                    fill.append(lambda rt=rt: I("ds_read_b128 %s, v%d offset:%d" % (
                        vr(fb + 4 * rt, 4), (vX0, vX1)[h], ds * 8192 + rt * 2048)))
                fill.append(lambda: I("ds_read_b128 %s, v%d offset:%d" % (vr(fb + 16, 4), (vOW0, vOW1)[h], ds * 8192)))
                nrd = len(fill)
                k2 = 0
                while nxt < min(16, ks + NR) and k2 < 2:
                    dma += issue_thunks(nxt)
                    nxt += 1
                    k2 += 1
                if ks == KL:
                    dma += pth
                if nxt == 16 and not dma and ks > KP + 1:
                    while nq < 16 and len(dma) < env("QPER", 3) and (nq < 4 or 10 + (nq - 4) // 2 < ks):
                        dma.append(q_thunk(nq))
                        nq += 1
                if ks == env("TQ", -1) and env("T0", 1):
                    def tq():
                        I("s_sub_u32 s%d, 0x180, s%d" % (sT, S_WQ))
                        I("s_and_b32 s%d, s%d, 0x380" % (sT, sT))
                        I("s_mov_b64 exec, 0x249")
                        I("buffer_load_dword v%d, v%d, s[%d:%d], s%d offen" % (vDUM, tw, R_WQ, R_WQ + 3, sT))
                        I("s_mov_b64 exec, -1")
                    fill.append(tq)
                if ks == KI:
                    fill.append(self.r1_issue)
                if ks == env("KOX", 15) and FT:
                    def tch():
                        self.touch_ox(0)
                        I("v_and_b32 v%d, 1, v0" % vT)
                        I("v_lshrrev_b32 v%d, 1, v0" % (vT + 1))
                        I("v_lshlrev_b32 v%d, 13, v%d" % (vT + 1, vT + 1))
                        I("v_lshl_add_u32 v%d, v%d, 7, v%d" % (vT + 5, vT, vT + 1))
                        I("s_mov_b64 exec, 15")
                        I("buffer_load_dword v%d, v%d, %s, s%d offen sc1" % (vDUM, vT + 5, self.ws(), sSTP))
                        I("s_mov_b64 exec, -1")
                    fill.append(tch)
                if ks == KP:
                    def prd():
                        b.wait(ptk)
                        for t in range(4):
                            for hh in range(2):
                                I("ds_read_b64_tr_b16 %s, v%d offset:%d" % (p2(tmp[t][1] + 2 * hh), vCS1 + 4 + t, hh * 512))
                    fill.append(prd)
            mfs = []
            if ks >= 1:
                k1 = ks - 1
                fb1 = vAF + (k1 & 1) * 20
                c0 = "0" if k1 == 0 else None
                wk, wv = [slot_r(self.wslot[("qkv", 0, k)][0]) for k in (2 * k1, 2 * k1 + 1)]
                one = vr(vONE, 4)
                for rt in range(4):
                    mfs.append(self.mf(vACC + 4 * rt, vr(fb1 + 4 * rt, 4), wk, c0))
                    mfs.append(self.mf(vACC + 16 + 4 * rt, vr(fb1 + 4 * rt, 4), wv, c0))
                own = vr(fb1 + 16, 4)
                mfs += [self.mf(vS1, one, own, c0), self.mf(vS2, own, own, c0),
                        self.mf(cK, one, wk, c0), self.mf(cV, one, wv, c0)]
            rds, extra = fill[:nrd], fill[nrd:]
            for _ in range(min(3, len(rds))):
                rds.pop(0)()
            while mfs:
                mfs.pop(0)()
                if rds:
                    for _ in range(min(2, len(rds))):
                        rds.pop(0)()
                    if len(rds) <= 2 and dma and dma[0][0]:
                        I(dma[0][0].pop(0))
                elif dma:
                    if dma[0][0]:
                        while dma[0][0]:
                            I(dma[0][0].pop(0))
                    else:
                        dma.pop(0)[1]()
                elif extra:
                    extra.pop(0)()
            for f in rds:
                f()
            for pre, th in dma:
                for t in pre:
                    I(t)
                th()
            for f in extra:
                f()
            b.wait(lg=0)
            if ks == KP:
                pst = [I("buffer_store_dwordx4 %s, v%d, %s, s%d offen sc1" % (slot_r(tmp[t]), vL16, self.ws(), 80 + t))
                       for t in range(4)]
        I("s_sub_u32 s%d, s%d, s%d" % (sT, sC, sROT))
        I("s_and_b32 s%d, s%d, 7" % (sT, sT))
        I("s_lshl_b32 s%d, s%d, 13" % (sT, sT))
        I("v_lshrrev_b32 v%d, 4, v0" % vT)
        I("v_lshrrev_b32 v%d, 5, v0" % (vT + 1))
        I("v_xor_b32 v%d, v%d, v%d" % (vT + 1, vT + 1, vT))
        I("s_lshl_b32 s%d, s%d, 1" % (sT + 1, sW))
        I("v_xor_b32 v%d, s%d, v%d" % (vT + 1, sT + 1, vT + 1))
        I("v_lshlrev_b32 v%d, 4, v%d" % (vT + 1, vT + 1))
        I("v_xor_b32 v%d, v%d, v%d" % (vT + 1, vT + 1, vX0))
        I("v_and_b32 v%d, 1, v%d" % (vT, vT))
        I("v_lshl_add_u32 v%d, v%d, 3, v%d" % (vT + 1, vT, vT + 1))
        I("v_add_u32 v%d, s%d, v%d" % (vT + 1, sT, vT + 1))
        res = [I("ds_read_b64 %s, v%d offset:%d" % (p2(vS1 + 8 + 0) if False else p2(vACC + 32 + 2 * rt), vT + 1, rt * 2048)) for rt in range(4)]
        I("v_mov_b32 v%d, v%d" % (vOA, vT + 14))
        self.bg_w = 0
        self.stamp("kvpass")
        if KC > 16:
            self.r1_check()
        if KANN == 16:
            b.wait(pst)
        self.stats_startup()
        if KANN == 16:
            lx = b.newlabel("Lann")
            I("s_cmp_lg_u32 s%d, 0" % sW)
            I("s_cbranch_scc1 %s" % lx)
            I("s_lshl_b32 s%d, s%d, 7" % (sT, sRG))
            I("s_add_u32 s%d, s%d, s%d" % (sT, sT, sR1))
            I("s_add_u32 s%d, s%d, 0x%x" % (sT, sT, WS_R3 - WS_R2))
            I("s_mov_b64 exec, 1")
            self.Inc("buffer_store_dword v%d, off, %s, s%d sc1" % (vT + 15, self.ws(), sT))
            I("s_mov_b64 exec, -1")
            b.label(lx)
        while nq < 16:
            pre, th = q_thunk(nq)
            for t in pre:
                I(t)
            th()
            nq += 1
        t1 = []
        for rt in range(4):
            t1.append(I("ds_read_b128 %s, v%d offset:%d" % (vr(vAF + 4 * rt, 4), vSTA, rt * 64)))
            t1.append(I("ds_read_b128 %s, v%d offset:%d" % (vr(vAF + 16 + 4 * rt, 4), vSTA, 256 + rt * 64)))
        for rt in range(4):
            t1.append(I("ds_read_b64 %s, v%d offset:%d" % (p2(vAB + 2 * rt), vSTQ, rt * 128)))
        for k in range(2):
            I("v_mov_b32 v%d, v%d" % (vCSK + k, cK))
            I("v_mov_b32 v%d, v%d" % (vCSV + k, cV))
        self.free += tmp
        I("v_add_u32 v%d, s%d, v%d" % (vSB, sW2K, vL4))
        I("v_add_u32 v%d, 0x%x, v%d" % (vEX, L_EX, vL4))
        I("s_lshl_b32 s%d, s%d, 8" % (sT, sW))
        I("v_add_u32 v%d, s%d, v%d" % (vSW, sT, vEX))
        I("v_and_b32 v%d, 15, v0" % vT)
        I("v_lshrrev_b32 v%d, 5, v0" % (vT + 1))
        I("v_lshlrev_b32 v%d, 6, v%d" % (vT + 1, vT + 1))
        I("v_lshl_add_u32 v%d, v%d, 2, v%d" % (vSWR, vT, vT + 1))
        I("s_add_u32 s%d, s%d, 0x%x" % (sT, sT, L_STA))
        I("v_add_u32 v%d, s%d, v%d" % (vSWR, sT, vSWR))
        for rt in range(4):
            for k in range(2):
                s = vACC + 32 + 2 * rt + k
                I("v_lshlrev_b32 v%d, 16, v%d" % (vX + 4 * rt + 2 * k, s))
                I("v_and_b32 v%d, 0xffff0000, v%d" % (vX + 4 * rt + 2 * k + 1, s))
        early = env("R3EARLY", 0)
        I("v_and_b32 v%d, 0xfff, v%d" % (vCS1, vTCH))
        I("s_add_u32 s%d, s%d, 0x%x" % (sR1, sR1, WS_R3 - WS_R2))
        self.r3_tok = I("buffer_load_dword v%d, v%d, %s, s%d offen sc1" % (vPOLL, vCS1, self.ws(), sR1))
        b.wait(t1)
        I("s_lshl_b32 s%d, s%d, 8" % (sT, sW))
        I("v_add_u32 v%d, s%d, v%d" % (vSTA, sT, vSTA))
        for hf in range(2):
            self.kv_epilogue(hf, vAF + 8 * hf, vAF + 16 + 8 * hf)

    def pack_load(self, l3, q0):
        b = self.b
        I = b.I
        dst = 80
        uid, src, strd = sT, sT + 1, sT + 2
        I("s_lshl_b32 s%d, s%d, 2" % (uid, sRG))
        I("s_add_u32 s%d, s%d, s%d" % (uid, uid, sW))
        lw1, lw2, lnone, lgo = [b.newlabel("Lpk") for _ in range(4)]
        I("s_mul_i32 s88, s%d, %d" % (sC, 4 * PKW))
        I("s_mov_b32 s%d, 0x20000" % (R_PK + 3))

        def setsrd(ptr, size, stride):
            I("s_mov_b32 s%d, s%d" % (R_PK, ptr))
            I("s_and_b32 s%d, s%d, 0xffff" % (R_PK + 1, ptr + 1))
            I("s_mov_b32 s%d, %d" % (R_PK + 2, size))
            I("s_movk_i32 s%d, %d" % (strd, stride))

        def simple(f0):
            I("s_lshl_b32 s%d, s%d, 15" % (src, uid))
            I("s_lshl_b32 s89, s%d, 7" % sC)
            I("s_add_u32 s%d, s%d, s89" % (src, src))
            I("s_add_u32 s89, s%d, %d" % (uid, f0))
            I("s_lshl_b32 s89, s89, 10")
            I("s_add_u32 s88, s88, s89")
            for t in range(4):
                I("s_add_u32 s%d, s88, %d" % (dst + t, t * PKW))
            I("s_branch %s" % lgo)

        I("s_cmp_ge_u32 s%d, 16" % uid)
        I("s_cbranch_scc1 %s" % lw1)
        setsrd(S_WO, 512 * 1024, 1024)
        simple(F_WO)
        b.label(lw1)
        I("s_cmp_ge_u32 s%d, 64" % uid)
        I("s_cbranch_scc1 %s" % lw2)
        I("s_sub_u32 s%d, s%d, 16" % (uid, uid))
        I("s_mul_i32 s89, s%d, 43" % uid)
        I("s_lshr_b32 s89, s89, 7")
        I("s_mul_i32 s92, s89, 3")
        I("s_sub_u32 s92, s%d, s92" % uid)
        setsrd(S_W1, 512 * 2752, 2752)
        I("s_mul_i32 s%d, s89, %d" % (src, 32 * 2752))
        I("s_mul_i32 s79, s%d, 384" % sC)
        I("s_add_u32 s%d, s%d, s79" % (src, src))
        I("s_lshl_b32 s79, s92, 7")
        I("s_add_u32 s%d, s%d, s79" % (src, src))
        I("s_mul_i32 s89, s89, 3072")
        I("s_add_u32 s88, s88, s89")
        I("s_add_u32 s88, s88, %d" % (F_W1 * 1024))
        for t in range(4):
            I("s_lshl_b32 s79, s92, 2")
            I("s_add_u32 s79, s79, %d" % t)
            I("s_mul_i32 s89, s79, 43")
            I("s_lshr_b32 s89, s89, 7")
            I("s_mul_i32 s%d, s89, %d" % (dst + t, PKW - 3072))
            I("s_lshl_b32 s79, s79, 10")
            I("s_add_u32 s%d, s%d, s79" % (dst + t, dst + t))
            I("s_add_u32 s%d, s%d, s88" % (dst + t, dst + t))
        I("s_mul_i32 s79, s%d, 3" % sC)
        I("s_add_u32 s79, s79, s92")
        I("s_cmp_ge_u32 s79, 22")
        I("s_cbranch_scc1 %s" % lnone)
        I("s_branch %s" % lgo)
        b.label(lw2)
        I("s_cmp_ge_u32 s%d, 107" % uid)
        I("s_cbranch_scc1 %s" % lnone)
        I("s_sub_u32 s%d, s%d, 64" % (uid, uid))
        setsrd(S_W2, 1376 * 1024, 1024)
        simple(F_W2)
        b.label(lnone)
        setsrd(S_WQ, 0, 1024)
        I("s_mov_b32 s%d, 0" % src)
        for t in range(4):
            I("s_mov_b32 s%d, 0x%x" % (dst + t, OOB))
        b.label(lgo)
        I("v_mul_lo_u32 v%d, v%d, s%d" % (vT + 4, l3, strd))
        I("v_add_u32 v%d, v%d, v%d" % (vT + 10, vT + 4, q0))
        I("v_xor_b32 v%d, 64, v%d" % (vT + 5, q0))
        I("v_add_u32 v%d, v%d, v%d" % (vT + 11, vT + 4, vT + 5))
        I("s_lshl_b32 s%d, s%d, 3" % (strd, strd))
        I("s_lshl_b32 s86, s%d, 12" % sW)
        I("s_mov_b32 s84, s%d" % src)
        I("s_mov_b32 s85, s%d" % strd)
        toks = []
        th = []
        for q in range(4):
            pre = ["s_add_u32 m0, s86, 0x%x" % (L_PACK + q * 1024)]
            if q:
                pre.append("s_add_u32 s84, s84, s85")
            th.append((pre, lambda q=q: toks.append(I("buffer_load_dwordx4 v%d, s[%d:%d], s84 offen lds" % (
                vT + 10 + (q & 1), R_PK, R_PK + 3)))))
        return toks, th

    def r1_issue(self):
        I = self.b.I
        a = vCS1 + 2
        I("v_and_b32 v%d, 7, v0" % a)
        I("v_subrev_u32 v%d, s%d, v%d" % (a, sC, a))
        I("v_lshlrev_b32 v%d, 12, v%d" % (a, a))
        I("s_lshl_b32 s%d, s%d, 7" % (sT, sRG))
        I("s_add_u32 s%d, s%d, s%d" % (sT, sT, sR1))
        I("v_add_u32 v%d, s%d, v%d" % (a, sT, a))
        I("v_add_u32 v%d, s%d, v%d" % (vT + 5, sR1, vTCH))
        I("v_cmp_gt_u32 vcc, 32, v0")
        I("v_cndmask_b32 v%d, v%d, v%d, vcc" % (a, a, vT + 5))
        self.r1_tok = I("buffer_load_dword v%d, v%d, %s, 0 offen sc1" % (vPOLL, a, self.ws()))

    def r1_check(self):
        b = self.b
        I = b.I
        lp, ld, lc = b.newlabel("Ltag"), b.newlabel("Ltagd"), b.newlabel("Ltagc")
        b.wait(self.r1_tok)
        I("s_branch %s" % lc)
        b.label(lp)
        self.Inc("buffer_load_dword v%d, v%d, %s, 0 offen sc1" % (vPOLL, vCS1 + 2, self.ws()))
        I("s_waitcnt vmcnt(0)")
        b.label(lc)
        I("v_subrev_u32 v%d, s%d, v%d" % (vPOLL, sTAG, vPOLL))
        I("v_cmp_gt_u32 vcc, 16, v%d" % vPOLL)
        I("s_cmp_eq_u64 vcc, exec")
        I("s_cbranch_scc1 %s" % ld)
        self.spin_guard(lp)
        b.label(ld)
        I("v_cmp_eq_u32 vcc, s%d, v%d" % (sXCC, vPOLL))
        I("s_cmp_eq_u32 vcc_hi, -1")
        I("s_cselect_b32 s%d, 1, 0" % sFAST)

    def touch_w(self, f0, m):
        I = self.b.I
        I("s_mul_i32 s%d, s%d, %d" % (sTC, sQ, m * 1024))
        I("s_add_u32 s%d, s%d, s%d" % (sTC, sTC, sPK))
        I("s_add_u32 s%d, s%d, %d" % (sTC, sTC, f0 * 1024))
        mask = (1 << (8 * m)) - 1
        I("s_mov_b32 exec_lo, 0x%x" % (mask & 0xffffffff))
        I("s_mov_b32 exec_hi, 0x%x" % (mask >> 32))
        I("buffer_load_dword v%d, v%d, %s, s%d offen sc1" % (vDUM, vTCH, self.ws(), sTC))
        I("s_mov_b64 exec, -1")

    def touch_ox(self, layer):
        I = self.b.I
        I("s_and_b32 s%d, s%d, 1" % (sT + 2, sW))
        I("s_lshl_b32 s%d, s%d, 15" % (sT, sT + 2))
        I("s_add_u32 s%d, s%d, s%d" % (sT, sT, sRG64))
        I("s_add_u32 s%d, s%d, 0x%x" % (sT, sT, self.buf("X", 2 * layer)))
        I("s_mul_i32 s%d, s%d, %d" % (sT + 1, sT + 2, self.hstride("O")))
        I("s_add_u32 s%d, s%d, s%d" % (sT + 1, sT + 1, self.rgs("O")))
        I("s_add_u32 s%d, s%d, 0x%x" % (sT + 1, sT + 1, self.buf("O", layer)))
        I("s_bitcmp1_b32 s%d, 1" % sW)
        I("s_cselect_b32 s%d, s%d, s%d" % (sT, sT, sT + 1))
        I("s_lshl_b32 s%d, s%d, 12" % (sT + 1, sC))
        I("s_add_u32 s%d, s%d, s%d" % (sT, sT, sT + 1))
        I("s_mov_b32 exec_hi, 0")
        I("buffer_load_dword v%d, v%d, %s, s%d offen sc1" % (vDUM, vTCH, self.ws(), sT))
        I("s_mov_b32 exec_hi, -1")

    def touch_h(self, layer):
        I = self.b.I
        I("s_lshr_b32 s%d, s%d, 1" % (sT + 1, sW))
        I("s_mul_i32 s%d, s%d, %d" % (sT + 1, sT + 1, HSZ // 2 - 12288))
        I("s_mul_i32 s%d, s%d, 6144" % (sT + 2, sW))
        I("s_add_u32 s%d, s%d, s%d" % (sT + 1, sT + 1, sT + 2))
        I("s_mul_i32 s%d, s%d, 12288" % (sT + 2, sC))
        I("s_add_u32 s%d, s%d, s%d" % (sT + 1, sT + 1, sT + 2))
        I("s_add_u32 s%d, s%d, s%d" % (sT + 1, sT + 1, sRGH))
        I("s_add_u32 s%d, s%d, 0x%x" % (sT + 1, sT + 1, self.buf("H", layer)))
        I("s_cmp_lt_u32 s%d, 7" % sC)
        I("s_cselect_b32 s%d, s%d, 0x%x" % (sT + 1, sT + 1, OOB))
        I("s_mov_b32 exec_hi, 0xffff")
        I("buffer_load_dword v%d, v%d, %s, s%d offen sc1" % (vDUM, vTCH, self.ws(), sT + 1))
        I("s_mov_b32 exec_hi, -1")

    def kv_items(self, hf, seqs):
        items = []
        for ks in range(16):
            c0 = "0" if ks == 0 else None
            for r in range(2):
                def mfs(fr, ks=ks, r=r, c0=c0):
                    kk, kv_ = ("qkv", 0, 2 * ks), ("qkv", 0, 2 * ks + 1)
                    th = [self.mf(vACC + 8 * hf + 4 * r, fr, self.w_get(kk), c0),
                          self.mf(vACC + 16 + 8 * hf + 4 * r, fr, self.w_get(kv_), c0)]
                    if hf == 1 and r == 1:
                        th.append(lambda: (self.w_release(kk), self.w_release(kv_)))
                    return th
                a, off = self.frag_addr(seqs[ks // 2], r, ks & 1)
                items.append((a, off, seqs[ks // 2], mfs))
        self.pinned.update(seqs)
        return items

    def kv_finish(self, hf, between=None):
        b = self.b
        rd = [b.I("ds_read_b128 %s, v%d offset:%d" % (vr(vAF + 4 * k, 4), vSTA, (k & 1) * 64 + (k >> 1) * 128)) for k in range(4)]
        if between:
            between()
        b.wait(rd)
        self.kv_epilogue(hf, vAF, vAF + 8)

    def attention(self, layer, xseqs):
        b = self.b
        I = self.I
        KVD, ZD = vS1, vS2
        one = vr(vONE, 4)
        self.bg_w = 0
        for p in range(2):
            c0 = "0" if p == 0 else None
            self.mf(KVD, vr(vACC + 8 * p, 4), vr(vACC + 16 + 8 * p, 4), c0)()
            self.mf(ZD, vr(vACC + 8 * p, 4), one, c0)()
        b.I("s_add_u32 s%d, s%d, %d" % (sKB, sKV, layer * KVL))
        b.I("s_and_b32 s%d, s%d, %d" % (sKB + 1, sRG, NC - 1))
        b.I("s_mul_i32 s%d, s%d, %d" % (sKB + 1, sKB + 1, KCS))
        b.I("s_add_u32 s%d, s%d, s%d" % (sKB + 1, sKB + 1, sKB))
        for r in range(4):
            b.I("ds_write_b32 v%d, v%d" % (vPOS + r, KVD + r))
        b.I("s_mov_b32 exec_lo, 0x00010001")
        b.I("s_mov_b32 exec_hi, 0x00010001")
        b.I("ds_write_b128 v%d, %s" % (vZP, vr(ZD, 4)))
        b.I("s_mov_b64 exec, -1")
        rd = [b.I("ds_read_b32 v%d, v%d offset:%d" % (vT + k, vKVL, 256 * k)) for k in range(5)]
        for k in range(5):
            b.wait(rd[k])
            if k == 4:
                b.I("s_mov_b32 exec_hi, 0xffff")
            b.I("buffer_atomic_add_f32 v%d, v%d, %s, s%d offen offset:%d" % (vT + k, vL4, self.ws(), sKB + 1, k * 256))
        b.I("s_mov_b64 exec, -1")
        self.stamp("atom")
        if layer:
            self.touch_ox(layer)
        else:
            lp, ld, lc = b.newlabel("Lr3"), b.newlabel("Lr3d"), b.newlabel("Lr3c")
            b.wait(self.r3_tok)
            b.I("s_branch %s" % lc)
            b.label(lp)
            self.Inc("buffer_load_dword v%d, v%d, %s, s%d offen sc1" % (vPOLL, vCS1, self.ws(), sR1))
            b.I("s_waitcnt vmcnt(0)")
            b.label(lc)
            b.I("v_subrev_u32 v%d, s%d, v%d" % (vPOLL, sTAG, vPOLL))
            b.I("v_cmp_gt_u32 vcc, 16, v%d" % vPOLL)
            b.I("s_cmp_eq_u64 vcc, exec")
            b.I("s_cbranch_scc1 %s" % ld)
            self.spin_guard(lp)
            b.label(ld)
            self.stamp("r3")
            b.wait(self.tokQ)
            b.I("s_barrier")
        self.w_burst(env("W_AT", [0, 0])[layer])
        self.last_bg = self.clock
        self.bg_w = env("W_Q", [99, 16])[layer]
        items = []
        for ks in range(16):
            ds, h = ks // 2, ks & 1
            c0 = "0" if ks == 0 else None
            def keep(fr):
                self.wq_reg = fr
                return []
            items.append(("tr", self.rq_base(ks) - L_WQ, None, keep))
            for rt in range(4):
                def mfs(fr, ks=ks, rt=rt, c0=c0):
                    w = self.wq_reg
                    th = [self.mf(vACC + 4 * rt, w, fr, c0)]
                    if layer == 0 and rt == 0:
                        th.append(self.mf(vCSQ, w, one, c0))
                    return th
                if layer == 0:
                    items.append(((vX0, vX1)[h], ds * 8192 + rt * 2048, None, mfs))
                else:
                    a, off = self.frag_addr(xseqs[rt >> 1][ds], rt & 1, h)
                    items.append((a, off, None, mfs))
        assert NC == 2
        KD = vACC + 32
        dst = [(KD, KD + 8), (KD + 4, KD + 12)]
        kvl = ["buffer_load_dwordx4 %s, v%d, %s, s%d offen offset:%d sc1" % (vr(dst[c][h], 4), (vL16, vC2)[h], self.ws(), sKB, c * KCS)
               for h in range(2) for c in range(NC)]
        b.I("v_add_u32 v%d, 0x400, v%d" % (vC2, vL16))
        b.I("v_cmp_gt_u32 vcc, 12, v0")
        b.I("v_mov_b32 v%d, 0x%x" % (vT + 8, OOB))
        b.I("v_cndmask_b32 v%d, v%d, v%d, vcc" % (vC2, vT + 8, vC2))
        kp = {}

        def kv_early():
            self.bg_w = 0
            kp["tok"] = [b.I(t) for t in kvl]
        j = env("H_KVP", [79, 99])[layer]
        self.gemm(items, None, 5, {j: [kv_early]})
        self.pinned = set()
        self.mine = self.seq - 1
        PQ = vACC + 16
        for rt in range(4):
            ab = vAB + 2 * rt
            for r in (0, 2):
                u = vT + 2 * ((rt * 2 + r // 2) % 8)
                I("v_pk_fma_f32 %s, %s, %s, %s op_sel:[0,1,1] op_sel_hi:[1,1,1]" % (p2(u), p2(vCSQ + r), p2(ab), p2(vK)))
        for rt in range(4):
            ab = vAB + 2 * rt
            for r in (0, 2):
                q_ = vACC + 4 * rt + r
                u = vT + 2 * ((rt * 2 + r // 2) % 8)
                I("v_pk_fma_f32 %s, %s, %s, %s op_sel:[0,0,0] op_sel_hi:[1,0,1]" % (p2(q_), p2(q_), p2(ab), p2(u)))
        if env("H_KVP", [79, 99])[layer] == 98:
            kv_early()
        self.phi_pairs([(vACC + 4 * rt + r, PQ + 2 * rt + r // 2) for rt in range(4) for r in (0, 2)])
        self.stamp("qpass")
        self.bg_w = 0
        self.w_burst(env("W_S1", [16, 0])[layer])
        b.I("s_add_u32 s%d, s%d, s%d" % (sT + 6, self.rgs("O"), sSTO))
        b.I("s_add_u32 s%d, s%d, 0x%x" % (sT + 6, sT + 6, self.buf("O", layer)))
        b.I("s_add_u32 s%d, s%d, %d" % (sT + 7, sT + 6, self.hstride("O")))
        lp, ld, lc = b.newlabel("Lkv"), b.newlabel("Lkvd"), b.newlabel("Lkvc")
        if kp:
            b.wait(kp["tok"])
            b.I("s_branch %s" % lc)
        b.label(lp)
        if kp:
            for t in kvl:
                self.Inc(t)
            b.I("s_waitcnt vmcnt(0)")
        else:
            for t in kvl:
                b.I(t)
            b.wait(vm=0)
        b.label(lc)
        for h in range(2):
            for k in (0, 2):
                b.I("v_pk_add_f32 %s, %s, %s" % (p2(vT + 8 * h + k), p2(dst[0][h] + k), p2(dst[1][h] + k)))
        b.I("v_cmp_eq_f32 vcc, 0x42000000, v%d" % (vT + 3))
        b.I("v_cmp_eq_f32 s[%d:%d], v%d, v%d" % (sT, sT + 1, vT + 11, vT + 3))
        b.I("s_and_b64 vcc, vcc, s[%d:%d]" % (sM3, sM3 + 1))
        b.I("s_and_b32 s%d, s%d, 0x888" % (sT, sT))
        b.I("s_xor_b32 s%d, s%d, 0x888" % (sT, sT))
        b.I("s_xor_b64 vcc, vcc, s[%d:%d]" % (sM3, sM3 + 1))
        b.I("s_or_b32 s%d, s%d, vcc_lo" % (sT, sT))
        b.I("s_or_b32 s%d, s%d, vcc_hi" % (sT, sT))
        b.I("s_cbranch_scc0 %s" % ld)
        self.spin_guard(lp)
        b.label(ld)
        self.stamp("kvsync")
        b.I("v_lshl_add_u32 v%d, v0, 4, v%d" % (vT + 4, vKVL))
        b.I("v_sub_u32 v%d, v%d, v%d" % (vT + 4, vT + 4, vL4))
        b.I("ds_write_b128 v%d, %s offset:1280" % (vT + 4, vr(vT, 4)))
        b.I("s_mov_b64 exec, 0xfff")
        b.I("ds_write_b128 v%d, %s offset:2304" % (vT + 4, vr(vT + 8, 4)))
        b.I("s_mov_b64 exec, -1")
        lz = b.I("ds_read_b128 %s, v%d offset:1280" % (vr(vT + 4, 4), vZP))
        lt = [b.I("ds_read_b32 v%d, v%d offset:1280" % (vT + 12 + r, vPOS + r)) for r in range(4)]
        b.wait(lz)
        I("v_cvt_pk_bf16_f32 v%d, v%d, v%d" % (vT + 10, vT + 4, vT + 5))
        I("v_cvt_pk_bf16_f32 v%d, v%d, v%d" % (vT + 11, vT + 6, vT + 7))
        NUM, DEN = vACC, vAF
        for rt in range(4):
            I("v_mfma_f32_16x16x16_bf16 %s, %s, %s, 0" % (vr(DEN + 4 * rt, 4), p2(vT + 10), p2(PQ + 2 * rt)))
        b.wait(lt)
        I("v_cvt_pk_bf16_f32 v%d, v%d, v%d" % (vT + 8, vT + 12, vT + 13))
        I("v_cvt_pk_bf16_f32 v%d, v%d, v%d" % (vT + 9, vT + 14, vT + 15))
        for rt in range(4):
            I("v_mfma_f32_16x16x16_bf16 %s, %s, %s, 0" % (vr(NUM + 4 * rt, 4), p2(vT + 8), p2(PQ + 2 * rt)))
        for rt in range(4):
            I("v_add_f32 v%d, s%d, v%d" % (DEN + 4 * rt, sEPS, DEN + 4 * rt))
        for rt in range(4):
            I("v_rcp_f32 v%d, v%d" % (DEN + 4 * rt, DEN + 4 * rt))
        for rt in range(4):
            for r in (0, 2):
                n_ = NUM + 4 * rt + r
                I("v_pk_mul_f32 %s, %s, %s op_sel_hi:[1,0]" % (p2(n_), p2(n_), p2(DEN + 4 * rt)))
        for rt in range(4):
            for r in (0, 2):
                I("v_cvt_pk_bf16_f32 v%d, v%d, v%d" % (vT + 2 * rt + r // 2, NUM + 4 * rt + r, NUM + 4 * rt + r + 1))
        return self.stores2([self.pair_store(vT + 4 * pr, sT + 6 + pr, 0) for pr in range(2)], layer == 0 or self.sep)

    def park_wq(self):
        b = self.b
        b.I("s_lshl_b32 s%d, s%d, 14" % (sT, sW))
        b.I("s_add_u32 s%d, s%d, 0x%x" % (sT, sT, L_WQ))
        b.I("v_add_u32 v%d, s%d, v%d" % (vWQ, sT, vL16))
        for ks in range(16):
            b.I("ds_write_b128 v%d, %s offset:%d" % (vWQ, slot_r(self.wslot[("qkv", 0, 32 + ks)][0]), ks * 1024))
        b.wait(lg=0)
        for ks in range(16):
            self.w_release(("qkv", 0, 32 + ks))

    def cs1_some(self, n):
        one = vr(vONE, 4)
        k = 0
        while k < n and self.ncs < 16 and all(("w1", 0, 3 * self.ncs + t) in self.wslot and
                                             (self.wslot[("w1", 0, 3 * self.ncs + t)][1] is None or
                                              self.wslot[("w1", 0, 3 * self.ncs + t)][1][1] < self.b.vm_done) for t in range(3)):
            for t in range(3):
                self.mf(vCS1 + 4 * t, slot_r(self.wslot[("w1", 0, 3 * self.ncs + t)][0]), one, "0" if self.ncs == 0 else None)()
            self.ncs += 1
            k += 1

    def n16_items(self, name, layer, nks, hf, seqs):
        items = []
        for ks in range(nks):
            for r in range(2):
                def mfs(fr, ks=ks, r=r):
                    th = [self.mf(vX + 8 * hf + 4 * r, self.w_get((name, layer, ks)), fr)]
                    if hf == 1 and r == 1:
                        th.append(lambda: self.w_release((name, layer, ks)))
                    return th
                a, off = self.frag_addr(seqs[ks // 2], r, ks & 1)
                items.append((a, off, seqs[ks // 2], mfs))
        return items

    def n16_full(self, name, layer, nks, seqs):
        items = []
        for ks in range(nks):
            for rt in range(4):
                def mfs(fr, ks=ks, rt=rt):
                    th = [self.mf(vX + 4 * rt, self.w_get((name, layer, ks)), fr)]
                    if rt == 3:
                        th.append(lambda: self.w_release((name, layer, ks)))
                    return th
                sq = seqs[rt >> 1][ks // 2]
                a, off = self.frag_addr(sq, rt & 1, ks & 1)
                items.append((a, off, sq, mfs))
        return items

    def x_full_store(self, idx, wt):
        I = self.b.I
        for hf in range(2):
            I("s_add_u32 s%d, s%d, s%d" % (sT + 6 + hf, sRG64, sSTO))
            I("s_add_u32 s%d, s%d, 0x%x" % (sT + 6 + hf, sT + 6 + hf, self.buf("X", idx) + hf * 32768))
        I("s_add_u32 s%d, s%d, 8192" % (sT + 8, sSTP))
        for j in range(8):
            I("v_cvt_pk_bf16_f32 v%d, v%d, v%d" % (vT + j, vX + 2 * j, vX + 2 * j + 1))
        s = vAF
        tk = self.stores2([self.pair_store(vT + 4 * hf, sT + 6 + hf, 0) for hf in range(2)], wt)
        for rt in range(4):
            I("v_pk_add_f32 %s, %s, %s" % (p2(s + 4 * rt), p2(vX + 4 * rt), p2(vX + 4 * rt + 2)))
            I("v_pk_mul_f32 %s, %s, %s" % (p2(s + 4 * rt + 2), p2(vX + 4 * rt), p2(vX + 4 * rt)))
        for rt in range(4):
            I("v_pk_fma_f32 %s, %s, %s, %s" % (p2(s + 4 * rt + 2), p2(vX + 4 * rt + 2), p2(vX + 4 * rt + 2), p2(s + 4 * rt + 2)))
        for rt in range(4):
            I("v_add_f32 v%d, v%d, v%d" % (s + 4 * rt, s + 4 * rt, s + 4 * rt + 1))
            I("v_add_f32 v%d, v%d, v%d" % (s + 4 * rt + 2, s + 4 * rt + 2, s + 4 * rt + 3))
        for hf in range(2):
            q = s + 8 * hf
            I("v_permlane32_swap_b32 v%d, v%d" % (q, q + 4))
            I("v_permlane32_swap_b32 v%d, v%d" % (q + 2, q + 6))
        for hf in range(2):
            q = s + 8 * hf
            I("v_add_f32 v%d, v%d, v%d" % (q, q, q + 4))
            I("v_add_f32 v%d, v%d, v%d" % (q + 2, q + 2, q + 6))
        for hf in range(2):
            I("v_permlane16_swap_b32 v%d, v%d" % (s + 8 * hf, s + 8 * hf + 2))
        for hf in range(2):
            I("v_add_f32 v%d, v%d, v%d" % (s + 8 * hf, s + 8 * hf, s + 8 * hf + 2))
        tk2 = self.stores2(["buffer_store_dword v%d, v%d, %s, s%d offen" % (s + 8 * hf, vL4, self.ws(), (sSTP, sT + 8)[hf])
                            for hf in range(2)], wt)
        return tk, tk2

    def x_half_now(self, idx, hf, wt):
        I = self.b.I
        x = vX + 8 * hf
        o = vT + 2
        s = o + 4
        I("s_add_u32 s%d, s%d, s%d" % (sT + 6, sRG64, sSTO))
        I("s_add_u32 s%d, s%d, 0x%x" % (sT + 6, sT + 6, self.buf("X", idx) + hf * 32768))
        I("s_add_u32 s%d, s%d, %d" % (sT + 7, sSTP, hf * 8192))
        for j in range(4):
            I("v_cvt_pk_bf16_f32 v%d, v%d, v%d" % (o + j, x + 2 * j, x + 2 * j + 1))
        for r in range(2):
            I("v_pk_add_f32 %s, %s, %s" % (p2(s + 4 * r), p2(x + 4 * r), p2(x + 4 * r + 2)))
            I("v_pk_mul_f32 %s, %s, %s" % (p2(s + 4 * r + 2), p2(x + 4 * r), p2(x + 4 * r)))
        tk = self.stores2([self.pair_store(o, sT + 6, 0)], wt)
        for r in range(2):
            I("v_pk_fma_f32 %s, %s, %s, %s" % (p2(s + 4 * r + 2), p2(x + 4 * r + 2), p2(x + 4 * r + 2), p2(s + 4 * r + 2)))
            I("v_add_f32 v%d, v%d, v%d" % (s + 4 * r, s + 4 * r, s + 4 * r + 1))
        for r in range(2):
            I("v_add_f32 v%d, v%d, v%d" % (s + 4 * r + 2, s + 4 * r + 2, s + 4 * r + 3))
        I("v_permlane32_swap_b32 v%d, v%d" % (s, s + 4))
        I("v_permlane32_swap_b32 v%d, v%d" % (s + 2, s + 6))
        I("v_add_f32 v%d, v%d, v%d" % (s, s, s + 4))
        I("v_add_f32 v%d, v%d, v%d" % (s + 2, s + 2, s + 6))
        I("v_permlane16_swap_b32 v%d, v%d" % (s, s + 2))
        I("v_add_f32 v%d, v%d, v%d" % (s, s, s + 2))
        tk += self.stores2(["buffer_store_dword v%d, v%d, %s, s%d offen" % (s, vL4, self.ws(), sT + 7)], wt)
        return self.new_pub(tk)

    def x_half_store(self, idx, hf, wt, delay):
        x = vX + 8 * hf
        o = vT + 1
        o += o & 1
        tk = []
        k, fl = self.new_pub(tk)
        s = o + 4
        e = ["s_add_u32 s%d, s%d, s%d" % (sT + 6, sRG64, sSTO),
             "s_add_u32 s%d, s%d, 0x%x" % (sT + 6, sT + 6, self.buf("X", idx) + hf * 32768),
             "s_add_u32 s%d, s%d, %d" % (sT + 7, sSTP, hf * 8192), 2]
        e += ["v_cvt_pk_bf16_f32 v%d, v%d, v%d" % (o + j, x + 2 * j, x + 2 * j + 1) for j in range(4)]
        for r in range(2):
            e += ["v_add_f32 v%d, v%d, v%d" % (s + 2 * r, x + 4 * r, x + 4 * r + 1),
                  "v_mul_f32 v%d, v%d, v%d" % (s + 2 * r + 1, x + 4 * r, x + 4 * r)]
        e.append(lambda: tk.extend(self.stores2([self.pair_store(o, sT + 6, 0)], wt)))
        for q in (1, 2, 3):
            for r in range(2):
                if q > 1:
                    e.append("v_add_f32 v%d, v%d, v%d" % (s + 2 * r, s + 2 * r, x + 4 * r + q))
                e.append("v_fmac_f32 v%d, v%d, v%d" % (s + 2 * r + 1, x + 4 * r + q, x + 4 * r + q))
        e += [1, "v_permlane32_swap_b32 v%d, v%d" % (s, s + 2), "v_permlane32_swap_b32 v%d, v%d" % (s + 1, s + 3), 1,
              "v_add_f32 v%d, v%d, v%d" % (s, s, s + 2), "v_add_f32 v%d, v%d, v%d" % (s + 1, s + 1, s + 3), 1,
              "v_permlane16_swap_b32 v%d, v%d" % (s, s + 1), 1, "v_add_f32 v%d, v%d, v%d" % (s, s, s + 1),
              lambda: tk.extend(self.stores2(["buffer_store_dword v%d, v%d, %s, s%d offen" % (s, vL4, self.ws(), sT + 7)], wt))]
        if delay is not None:
            e += [delay, fl]
        return k, e, fl

    def out_half_store(self, hf):
        x = vX + 8 * hf
        o = vT + 4 * hf
        e = ["s_add_u32 s%d, s%d, s%d" % (sT + 6, sRG64, sOUT), "s_add_u32 s%d, s%d, %d" % (sT + 6, sT + 6, hf * 32768), 2]
        e += ["v_cvt_pk_bf16_f32 v%d, v%d, v%d" % (o + j, x + 2 * j, x + 2 * j + 1) for j in range(4)]
        e += [1, "v_permlane16_swap_b32 v%d, v%d" % (o, o + 2), "v_permlane16_swap_b32 v%d, v%d" % (o + 1, o + 3),
              "buffer_store_dwordx4 %s, v%d, s[%d:%d], s%d offen" % (vr(o, 4), vOA, R_OUT, R_OUT + 3, sT + 6)]
        return e

    def p3_items(self, layer, seqs):
        items = []
        one = vr(vONE, 4)
        for ks in range(16):
            c0 = "0" if ks == 0 else None
            for rt in range(4):
                def mfs(fr, ks=ks, rt=rt, c0=c0):
                    th = []
                    for t in range(3):
                        w = self.w_get(("w1", layer, 3 * ks + t))
                        th.append(self.mf(vACC + 24 * (rt >> 1) + 8 * t + 4 * (rt & 1), w, fr, c0))
                        if layer == 0 and rt == 0 and ks >= self.ncs:
                            th.append(self.mf(vCS1 + 4 * t, w, one, c0))
                    if rt == 3:
                        th.append(lambda: [self.w_release(("w1", layer, 3 * ks + t)) for t in range(3)])
                    return th
                sq = seqs[rt >> 1][ks // 2]
                a, off = self.frag_addr(sq, rt & 1, ks & 1)
                items.append((a, off, sq, mfs))
        return items

    def silu(self, layer, hf, mid=None):
        b = self.b
        I = self.I
        for t in range(3):
            b.I("s_add_u32 s%d, s%d, 0x%x" % (sT + 6 + t, sH0 + t, self.buf("H", layer) + hf * (HSZ // 2)))
        sts = []
        for t in range(3):
            A = vACC + 24 * hf + 8 * t
            u = vT + 8 * (t & 1)
            for f in (mid or {}).get(t, []):
                f()
            for j in range(4):
                I("v_pk_mul_f32 %s, %s, %s op_sel:[0,1] op_sel_hi:[1,1]" % (
                    p2(u + 2 * j), p2(vCS1 + 4 * t + 2 * (j & 1)), p2(vAB + 4 * hf + 2 * (j >> 1))))
            for j in range(4):
                I("v_pk_fma_f32 %s, %s, %s, %s op_sel:[0,0,0] op_sel_hi:[1,0,1]" % (
                    p2(A + 2 * j), p2(A + 2 * j), p2(vAB + 4 * hf + 2 * (j >> 1)), p2(u + 2 * j)))
            for k in range(8):
                I("v_exp_f32 v%d, v%d" % (u + k, A + k))
            for j in range(4):
                I("v_pk_fma_f32 %s, %s, %s, %s op_sel:[0,0,0] op_sel_hi:[1,0,0] neg_lo:[0,1,1] neg_hi:[0,1,1]" % (
                    p2(u + 2 * j), p2(u + 2 * j), p2(vK), p2(vK)))
            for k in range(8):
                I("v_rcp_f32 v%d, v%d" % (u + k, u + k))
            for j in range(4):
                I("v_pk_mul_f32 %s, %s, %s" % (p2(A + 2 * j), p2(A + 2 * j), p2(u + 2 * j)))
            for j in range(4):
                I("v_cvt_pk_bf16_f32 v%d, v%d, v%d" % (A + j, A + 2 * j, A + 2 * j + 1))
            sts += self.stores2([self.pair_store(A, sT + 6 + t, 0)], layer == 0 or self.sep)
        return sts

    def body(self):
        b = self.b
        for layer in range(2):
            R1, R2 = env("REV", (6, 43))
            if layer == 0:
                R1, R2 = 48, 43
            self.w_enqueue("w1", layer, F_W1, 48, range(47, R1 - 1, -1))
            self.w_enqueue("wo", layer, F_WO, 16)
            self.w_enqueue("w1", layer, F_W1, 48, range(R1))
            self.w_enqueue("w2", layer, F_W2, 43, range(42, R2 - 1, -1))
            self.w_enqueue("w2", layer, F_W2, 43, range(R2))
        AF = env("AFIRST", 12)
        G8c = env("G8C", [2, 2, 2, 2])
        G8w = env("G8W", [4, 4])
        G22 = env("G22", [2, 2, 2, 2, 2, 4, 4, 4])
        st = {}
        PA, PB = env("PA", [60, 62]), env("PB", [75, 82])
        self.pace_w = PA[0]
        self.startup()
        xs = None
        for layer in range(2):
            self.pace_w = PA[layer]
            tk = self.attention(layer, xs)
            k_o, fl = self.new_pub(tk)
            self.w_burst(env("W_PUB", [0, 0])[layer])
            fl()
            self.stamp("o_pub")
            self.poll_shadow(k_o, env("NCS", [0, 0])[0] if layer == 0 else 0)
            self.stamp("o_rdy")
            wt = layer == 0 or self.sep
            D16, PW = env("D16", 9), env("PAIRW", True)
            n0 = self.seq
            oo = self.queue_both("O", layer, 8, self.aq)
            self.a_burst(env("AF2", 12))
            self.bg_w = env("W_P2", [14, 12])[layer]
            self.gemm(self.n16_full("wo", layer, 16, oo), self.split(list(range(n0, n0 + 16)), env("G16", [4, 4, 4, 4])), D16,
                      pairw=PW)
            self.bg_w = 0
            self.stamp("p2")
            tk1, tk2 = self.x_full_store(2 * layer, wt)
            k_x, fl_x = self.new_pub(tk1)
            k_s, fl_s = self.new_pub(tk2)
            self.w_burst(env("W_PUB2", [4, 0])[layer])
            fl_x()
            self.stamp("x_pub")
            self.poll_shadow(k_x, env("NCS", [0, 0])[1] if layer == 0 else 0)
            self.stamp("x_rdy")
            poll = lambda: st.update(tok=self.poll_issue())

            def when(k, plan, burst=0):
                def f():
                    self.poll_check(k() if callable(k) else k, st["tok"])
                    self.aq += plan
                    self.a_burst(burst)
                return f
            n0 = self.seq
            xx = self.queue_both("X", 2 * layer, 8, self.aq)
            hold = self.seq
            pl_s = []
            sa = self.queue_stats(0, pl_s)
            sb = self.queue_stats(1, pl_s)
            if layer or FT:
                th = lambda: self.touch_h(layer)
                th.seq = -1
                th.prep = []
                pl_s.append(th)
            self.a_burst(4)
            fl_s()
            self.a_burst(env("AF3", 8) - 4)
            self.bg_w = 0
            self.pace_w = PB[layer]
            groups = self.split(list(range(n0, n0 + 16)), env("G3", [4, 4, 8])) + [[hold]]
            hooks, pre, post = {}, {}, {}
            s1a, bba = self.stats_stage1(sa, 0)
            s1b, bbb = self.stats_stage1(sb, 1)
            j = env("H_ST", 8)
            hooks[j] = [poll]
            hooks[j + 6] = [when(k_s, pl_s), lambda: setattr(self, "bg_w", 99)]
            hooks[j + 18] = [lambda: self.side.extend(s1a + s1b)]

            def exch():
                bba()
                bbb()
                b.I("s_barrier")
                self.side.extend(self.stats_stage2(0, True, False) + self.stats_stage2(1, True, False))
            hooks[env("H_EX", 46)] = [exch]
            groups.pop()
            self.gemm(self.p3_items(layer, xx), groups, 6, hooks, pre, post, pairw=True)
            self.pinned = set()
            self.mine = self.seq - 1
            self.bg_w = env("W_SILU", [0, 0])[layer]
            self.stamp("p3")
            k_ha, fl_ha = self.new_pub(self.silu(layer, 0))
            self.bg_w = 0
            pl_ha, pl_hb, pl_ya = [], [], []
            ha = self.queue_half("H", layer, 0, 22, pl_ha)
            hb = self.queue_half("H", layer, 1, 22, pl_hb)

            def ha_go():
                self.stamp("silu")
                self.poll_check(k_ha)
                self.stamp("ha_rdy")
                self.aq += pl_ha
                self.a_burst(env("AF4", 4))
            SPL = env("SPLIT", 0)
            mid = {env("MID", 1): [fl_ha]}
            if SPL:
                mid.setdefault(2, []).append(ha_go)
            tkb = self.silu(layer, 1, mid)
            k_hb, fl_hb = self.new_pub(tkb)
            if not SPL:
                ha_go()
                fl_hb()
            self.a_burst(AF - (self.seq_issued() - ha[0]))
            self.bg_w = 99
            j = env("H_P4A", 24)
            self.alead = env("ALEAD4", 16)
            self.pace_w = PA[1]
            items = self.n16_items("w2", layer, 43, 0, ha) + self.n16_items("w2", layer, 43, 1, hb)
            groups = self.split(ha, env("G22C", [2, 2, 4, 4, 4, 6])) + self.split(hb, G22)
            hooks = {j: [poll], j + env('CK4', 12): [when(k_hb, pl_hb, env('BU_HB', 4))]}
            if SPL:
                hooks[env("H_FLB", 6)] = [fl_hb]
            pre, post = {}, {}
            if layer == 0:
                sa = self.queue_stats(0, pl_ya)
                ya = self.queue_half("X", 1, 0, 8, pl_ya, rot=True)

                def y_out(hf, delay):
                    def f():
                        self.stamp("p4a" if hf == 0 else "p4b")
                        st["k_y%d" % hf], st["fl_y%d" % hf] = self.x_half_now(1, hf, self.sep)
                        self.pace_w = PA[1]
                        if hf:
                            self.alead = env("ALEAD", 99)
                    return f
                j = 86 + env("H_P4B", 44)
                hooks.update({87: [y_out(0, 0)], 87 + env("D_Y0", 22): [lambda: st["fl_y0"]()],
                              172 + env("D_Y1", 10): [lambda: st["fl_y1"]()], j: [poll], j + env('CK4', 12): [when(lambda: st["k_y0"], pl_ya, env("BU_YA", 6))], 172: [y_out(1, 0)],
                              172 + env("H_P1A", 24): [poll]})
                ng = len(groups)
                groups += self.split(ya, env("G8K", [2, 4, 2]))
                self.stats_hooks(sa, 0, False, True, 173, ng + 2, hooks, pre, post)
                items += self.kv_items(0, ya)
            else:
                hooks[85] = [lambda: (self.stamp("p4a"), self.side.extend(self.out_half_store(0)))]
            self.gemm(items, groups, D16, hooks, pre, post, pairw=PW)
            if layer == 0:
                self.stamp("p1a")
                pl = []
                sb = self.queue_stats(1, pl)
                yb = self.queue_half("X", 1, 1, 8, pl, rot=True)
                pl = pl[2:6] + pl[:2] + pl[6:]

                def go():
                    self.poll_check(st["k_y1"], st["tok"])
                    self.stamp("yb_rdy")
                    self.aq += pl
                    self.a_burst(env('AF1', 6))
                self.kv_finish(0, go)
                hooks, pre, post = {}, {}, {}
                self.stats_hooks(sb, 1, False, True, 0, 1, hooks, pre, post)
                self.gemm(self.kv_items(1, yb), self.split(yb, env('G1B', [4, 4])), 8, hooks, pre, post, pairw=True)
                self.kv_finish(1)
                self.stamp("p1b")
                xs = [ya, yb]
            else:
                self.stamp("p4b")
                self.side = self.out_half_store(1)
                self.side_flush()
                lx = b.newlabel("Lep")
                b.I("s_or_b32 s%d, s2, s%d" % (sT, sW))
                b.I("s_cbranch_scc1 %s" % lx)
                b.I("s_add_u32 s%d, s%d, 16" % (sT, sEP))
                b.I("v_mov_b32 v%d, s%d" % (vT + 9, sT))
                b.I("s_mov_b32 s%d, 0x%x" % (sT, WS_EP))
                b.I("s_mov_b64 exec, 1")
                self.Inc("buffer_store_dword v%d, off, %s, s%d sc1" % (vT + 9, self.ws(), sT))
                b.I("s_mov_b64 exec, -1")
                b.label(lx)
                self.stamp("end")
        if self.diag:
            b.I("s_lshl_b32 s%d, s2, 2" % sT)
            b.I("s_add_u32 s%d, s%d, s%d" % (sT, sT, sW))
            b.I("s_lshl_b32 s%d, s%d, 8" % (sT, sT))
            b.I("s_add_u32 s%d, s%d, 0x%x" % (sT, sT, WS_STAMP))
            b.I("buffer_store_dword v%d, v%d, %s, s%d offen" % (vSTAMP, vL4, self.ws(), sT))
            if env("RT", 0):
                b.I("s_add_u32 s%d, s%d, 0x40000" % (sT, sT))
                b.I("buffer_store_dword v255, v%d, %s, s%d offen" % (vL4, self.ws(), sT))
        if self.diag and env("PROBE", 0):
            lx, lp = b.newlabel("Lpr"), b.newlabel("Lprl")
            i0, i1 = [61 if n == "entry" else [i for i, m in enumerate(self.stamp_names) if m == n[0]][n[1]] for n in env("PROBE", 0)]
            b.I("s_cmp_lg_u32 s2, %d" % env("PWG", 100))
            b.I("s_cbranch_scc1 %s" % lx)
            b.I("v_readlane_b32 s%d, v%d, %d" % (sT, vSTAMP, i0))
            b.I("v_readlane_b32 s%d, v%d, %d" % (sT + 1, vSTAMP, i1))
            b.I("v_readlane_b32 s%d, v%d, %d" % (sT + 2, vSTAMP, len(self.stamp_names) - 1))
            b.I("s_sub_u32 s%d, s%d, s%d" % (sT + 1, sT + 1, sT))
            b.I("s_mul_i32 s%d, s%d, %d" % (sT + 1, sT + 1, env("PMUL", 1)))
            b.I("s_add_u32 s%d, s%d, 4800" % (sT + 1, sT + 1))
            b.label(lp)
            b.I("s_memtime s[94:95]")
            b.I("s_waitcnt lgkmcnt(0)")
            b.I("s_sub_u32 s%d, s94, s%d" % (sT, sT + 2))
            b.I("s_cmp_lt_u32 s%d, s%d" % (sT, sT + 1))
            b.I("s_cbranch_scc1 %s" % lp)
            b.label(lx)
        b.label("L_end")
        b.I("s_endpgm")
        for t in self.cold:
            b.raw(t)

    def emit(self):
        self.body()
        head = """; @launch grid=(256,1,1) block=(256,1,1) lds=%d
; persistent fused kernel: 32 row groups (64 rows) x 8 column groups (generated by my own script)
.amdgcn_target "amdgcn-amd-amdhsa--gfx950"
.text
.globl %s_kernel
.p2align 8
.type %s_kernel,@function
%s_kernel:
""" % (LDS_BYTES, NAME, NAME, NAME)
        tail = """.section .rodata,"a"
.p2align 6
.amdhsa_kernel %s_kernel
  .amdhsa_next_free_vgpr 512
  .amdhsa_next_free_sgpr 102
  .amdhsa_accum_offset 256
  .amdhsa_group_segment_fixed_size 0
  .amdhsa_kernarg_size 72
  .amdhsa_user_sgpr_count 2
  .amdhsa_user_sgpr_kernarg_segment_ptr 1
  .amdhsa_system_sgpr_workgroup_id_x 1
.end_amdhsa_kernel
""" % NAME
        return head + self.b.text() + tail


if __name__ == "__main__":
    import argparse
    ap = argparse.ArgumentParser()
    ap.add_argument("-o", default="cdna_kernels/%s.s" % NAME)
    ap.add_argument("--diag", action="store_true")
    ap.add_argument("--sep", action="store_true")
    a = ap.parse_args()
    g = Gen(a.diag, a.sep)
    txt = g.emit()
    if a.diag:
        txt = txt.replace(".amdgcn_target", "; stamps: " + ",".join(g.stamp_names) + "\n.amdgcn_target", 1)
    open(a.o, "w").write(txt)
    print("instructions", g.b.nins, "nops", g.b.nops, file=sys.stderr)
```

```python
import sys
import os
sys.path.insert(0, os.path.dirname(os.path.abspath(__file__)))
from asmb import Builder, vr

NAME = "interleave_layers__linear_attn_block__dense_activation_silu__prompt"


def env(name, default):
    v = os.environ.get(name)
    return default if v is None else eval(v)


PKW = 107 * 1024
WS_FL = 0x380000
WS_EP = 0x390000
WS_R2 = 0x398000
WS_KV = 0x480000
NC = env('NC', 2)
KCS = env('KCS', 1344)
KVH = NC * KCS
KVL = 32 * KVH
KB0 = env('KB0', 0)
WS_R3 = 0x3D0000
WS_ST = 0x400000
WS_O = 0x600000
WS_X = 0x800000
WS_H = 0xA00000
HSZ = 22 * 8192
WS_STAMP = 0x3000000
WS_SIZE = 0x3100000 if '--diag' in sys.argv else 0x1000000
OOB = 0x4000000 if '--diag' in sys.argv else 0x1000000
F_WO, F_W1, F_W2 = 0, 16, 64

L_RING = 65536
L_RQ = 106496
L_WQ = 81920
L_PACK = 131072
L_KVI = 147456
L_STA = 157696
L_EX = 158720
NR = env('NR', 8)
NSLOT = 20
LDS_BYTES = 163840

S_X, S_WQ, S_WO, S_W1, S_W2, S_OUT, S_DBG, S_WS = 4, 6, 8, 12, 14, 16, 18, 20
R_X, R_WQ, R_WS, R_OUT, R_PK = 24, 28, 32, 36, 44
sR1, sQ, sTC, sTAG, sEP = 3, 10, 11, 22, 23
sROT, sSTP, sSTC, sW1K = 40, 41, 42, 43
sRG, sC, sW, sFAST, sPK, sKV, sFL, sRG64, sRGH, sSTO = 48, 49, 50, 51, 52, 53, 54, 55, 56, 57
sH0 = 58
sSPIN = 61
sEPS = 62
sOUT = 63
sXS = 64
sRB2, sRO2 = 65, 66
sM1, sM2, sM3, sDIAG = 68, 70, 72, 74
sT = 76
sKB = 88
sPKC, sXCC, sMYF, sW2K, sAB, sAO = 96, 97, 98, 99, 100, 101

vL16, vA1, vKVL, vDMA, vST = 1, 2, 3, 4, 5
vX0, vX1, vOW0, vOW1, vTR, vXS0, vXS1, vWS = 6, 7, 8, 9, 10, 11, 12, 13
vWQ = 13
vSB, vEX, vSWR, vOA = 8, 9, 10, 11
vFL, vL4, vSTAMP, vSTA, vSTQ, vC2 = 14, 15, 16, 17, 18, 19
vX = 20
vCSQ, vCSK, vCSV = 36, 40, 42
vCS1 = 44
vONE = 56
vACC = 60
vAF = 108
NAF = 10
vAB = 148
vT = 156
vPOS = 172
vZP, vSW, vDUM, vTCH, vPOLL, vDM2 = 176, 177, 178, 179, 180, 181
vK = 182
vS1, vS2 = 184, 188
vTQ = 195
vW1 = 192
SLOTS = [("a", 4 * i) for i in range(64)] + [("v", 196 + 4 * i) for i in range(15)]
PACE = env("PACE", 36)
FT = env("FTOUCH", 1)
WMIN = env("WMIN", 10)
AMIN = env("AMIN", 5)
RDSLACK = env("RDSLACK", 2)
SIDEMIN = env("SIDEMIN", 1)
COST = {"mfma": 16, "trans": 8, "ds": 4, "valu": 4, "perm": 4, "dpp": 4, "rdlane": 4, "wrlane": 4, "salu": 2, "vmem": 8}
K_L2E = "op_sel:[0,0] op_sel_hi:[1,0]"


def slot_r(s):
    return vr(s[1], 4, s[0])


def p2(r):
    return "v[%d:%d]" % (r, r + 1)


class Gen:
    def __init__(self, diag=False, sep=False):
        self.b = Builder()
        self.diag = diag
        self.sep = sep
        self.free = list(SLOTS[:-1] if env('RT', 0) else SLOTS)
        self.wq = []
        self.wslot = {}
        self.pk_cur = None
        self.nstamp = 0
        self.stamp_names = []
        self.aq = []
        self.atok = {}
        self.seq = 0
        self.consumed = -1
        self.mine = -1
        self.pub_mine = {}
        self.clock = 0
        self.last_bg = -1000
        self.bg_w = 0
        self.pace_w = 70
        self.in_bg = False
        self.npub = 0
        self.ncs = 0
        self.gstamp = False
        self.vclock = {}
        bI, bw = self.b.I, self.b.wait

        def I2(t):
            tok = bI(t)
            if tok and tok[0] == "vm":
                self.vclock[tok[1]] = self.clock
            return tok

        def w2(*toks, **kw):
            if os.environ.get("SLACK"):
                flat = []
                for t in toks:
                    if t is None:
                        continue
                    flat += t if isinstance(t, list) else [t]
                v = [i for k, i in flat if k == "vm" and i >= self.b.vm_done]
                if v:
                    d = self.clock - self.vclock.get(max(v), 0)
                    if d < int(os.environ["SLACK"]):
                        print("   slack %4d at clock %d (after %s)" % (d, self.clock, self.last_stamp), file=sys.stderr)
            return bw(*toks, **kw)
        self.b.I, self.b.wait = I2, w2
        self.last_stamp = ""
        self.flagged = set()
        self.cold = []
        self.slotted = False
        self.prepped = None
        self.wprep = []
        self.pinned = set()
        self.side = []
        self.side_rate = 2
        self.w_issued = 0
        self.w_need = 0
        self.w_cur = None
        self.w_index = {}
        self.wlead = env('WLEAD', 14)
        self.cur_seq = 0
        self.alead = env('ALEAD', 99)

    def I(self, t):
        tok = self.b.I(t)
        k = self.b.hists[0][-1].kind if self.b.hists and self.b.hists[0] else "salu"
        self.clock += COST.get(k, 4)
        if not self.in_bg and not self.slotted and k in ("mfma", "valu", "trans"):
            c = self.bg_pick()
            if c is not None and c[1]:
                self.bg_emit(c[0], True)
        return tok

    def side_step(self, n):
        self.in_bg = True
        done = 0
        while n > 0 and self.side:
            e = self.side[0]
            if isinstance(e, int):
                if e <= 1:
                    self.side.pop(0)
                else:
                    self.side[0] = e - 1
                break
            self.side.pop(0)
            if isinstance(e, str):
                self.b.I(e)
            else:
                e()
            n -= 1
            done += 1
        self.in_bg = False
        return done

    def side_flush(self):
        while self.side:
            self.side_step(1000)

    def bg_pick(self):
        a_ok = self.aq and self.aq[0].seq - NSLOT <= self.consumed
        w_ok = self.bg_w > 0 and self.wq and self.free
        same = w_ok and self.wq[0][0][:2] == self.w_cur
        el = self.clock - self.last_bg
        if self.prepped == "A" and a_ok:
            return "A", el >= PACE or self.aq[0].seq - self.cur_seq < AMIN
        if a_ok and getattr(self.aq[0], "urgent", False):
            return "A", True
        if same and self.w_issued - self.w_need < WMIN:
            return "W", True
        if a_ok and w_ok:
            a_lead = self.aq[0].seq - self.cur_seq
            if a_lead > self.alead or (same and self.w_issued - self.w_need < self.wlead and a_lead > 3):
                a_ok = False
        if a_ok:
            return "A", el >= PACE or self.aq[0].seq - self.cur_seq < AMIN
        if w_ok:
            return "W", el >= self.pace_w
        return None

    def bg_prep_list(self, kind):
        if kind == "A":
            return self.aq[0].prep
        grp = self.wq[0][1] // 4
        if self.pk_cur != grp and not os.environ.get("NOW"):
            self.pk_cur = grp
            self.wprep = ["s_add_u32 s%d, s%d, 0x%x" % (sPKC, sPK, grp * 4096)]
        return self.wprep

    def bg_emit(self, kind, inline):
        self.in_bg = True
        if kind == "A":
            self.a_pop()
        else:
            self.w_issue()
            self.bg_w -= 1
        self.last_bg = self.clock
        self.in_bg = False

    def a_pop(self):
        th = self.aq.pop(0)
        while th.prep:
            self.b.I(th.prep.pop(0))
        th()
        self.prepped = None

    def slot_fill(self, rd_lag, issue_read):
        c = self.bg_pick()
        if c is not None and c[1] and rd_lag <= RDSLACK and not self.bg_prep_list(c[0]):
            self.bg_emit(c[0], False)
            self.clock += 8
            return
        budget = 2
        if rd_lag > 0:
            issue_read()
            budget -= 1
            if rd_lag > 1:
                issue_read()
                budget -= 1
        if c is not None:
            pl = self.bg_prep_list(c[0])
            while budget > 0 and pl:
                self.b.I(pl.pop(0))
                budget -= 1
                if c[0] == "A":
                    self.prepped = "A"
        self.side_step(max(budget, SIDEMIN))

    def Inc(self, t):
        self.b.I(t)
        self.b.vm_issued -= 1

    def stamp(self, name):
        self.last_stamp = name
        if os.environ.get("WLOG"):
            print("%-8s clock %6d  wq left %3d next %s free %d aq %d" % (
                name, self.clock, len(self.wq), self.wq[0][0] if self.wq else None, len(self.free), len(self.aq)), file=sys.stderr)
        if not self.diag:
            return
        b = self.b
        k = self.nstamp
        self.nstamp += 1
        assert k < 62
        b.comment("stamp %d %s" % (k, name))
        b.I("s_memtime s[94:95]")
        b.wait(lg=0)
        b.I("v_writelane_b32 v%d, s94, %d" % (vSTAMP, k))
        if env("RT", 0):
            b.I("s_memrealtime s[94:95]")
            b.wait(lg=0)
            b.I("v_writelane_b32 v255, s94, %d" % k)
        if name in ("start", "end"):
            b.I("s_memrealtime s[94:95]")
            b.wait(lg=0)
            b.I("v_writelane_b32 v%d, s94, %d" % (vSTAMP, 62 if name == "start" else 63))
        self.stamp_names.append(name)

    def buf(self, kind, idx):
        base = {"O": WS_O if self.sep else WS_H, "X": WS_X, "H": WS_H}[kind]
        return base + (idx * 0x1000000 if self.sep else 0)

    def hstride(self, kind):
        return HSZ // 2 if self.rgs(kind) == sRGH else 32768

    def rgs(self, kind):
        return sRGH if kind == "H" or (kind == "O" and not self.sep) else sRG64

    def srd(self, r, ptr, size):
        I = self.b.I
        I("s_mov_b32 s%d, s%d" % (r, ptr))
        I("s_and_b32 s%d, s%d, 0xffff" % (r + 1, ptr + 1))
        I("s_mov_b32 s%d, 0x%x" % (r + 2, size))
        I("s_mov_b32 s%d, 0x20000" % (r + 3))

    def ws(self):
        return "s[%d:%d]" % (R_WS, R_WS + 3)

    def w_enqueue(self, name, layer, f0, n, order=None):
        for i in (range(n) if order is None else order):
            self.w_index[(name, layer, i)] = len(self.w_index)
            self.wq.append(((name, layer, i), f0 + i))

    def w_issue(self):
        key, f = self.wq.pop(0)
        s = self.free.pop(0)
        self.w_issued += 1
        if os.environ.get("NOW"):
            self.wslot[key] = (s, None)
            return
        grp = f // 4
        while self.wprep:
            self.b.I(self.wprep.pop(0))
        if self.pk_cur != grp:
            self.b.I("s_add_u32 s%d, s%d, 0x%x" % (sPKC, sPK, grp * 4096))
            self.pk_cur = grp
        va = vW1 + key[2] % 3 if key[0] == "w1" and env("SKIPW1", 1) else vL16
        if os.environ.get("FAKEW"):
            self.b.I("s_mov_b32 s%d, s%d" % (sPKC, sPK))
        tok = self.b.I("buffer_load_dwordx4 %s, v%d, %s, s%d offen offset:%d sc1%s" % (
            slot_r(s), va, self.ws(), sPKC, (f % 4) * 1024, " nt" if env("NT", lambda k: False)(key) else ""))
        self.wslot[key] = (s, tok)

    def w_burst(self, n):
        k = 0
        while k < n and self.wq and self.free:
            self.w_issue()
            k += 1
        self.last_bg = self.clock

    def w_get(self, key):
        self.w_need = max(self.w_need, self.w_index.get(key, 0))
        self.w_cur = key[:2]
        if key not in self.wslot:
            print("WARNING: late W load", key, file=sys.stderr)
        while key not in self.wslot:
            assert self.wq and self.free, "no free slot for %s" % (key,)
            self.w_issue()
        s, tok = self.wslot[key]
        self.b.wait(tok)
        return slot_r(s)

    def w_release(self, key):
        s, _ = self.wslot.pop(key)
        self.free.append(s)

    def stores2(self, texts, wt=False):
        b = self.b
        if wt == 2 or (wt and not FT):
            return [b.I(t + " sc1") for t in texts]
        ls, lj = b.newlabel("Lslow"), b.newlabel("Ljoin")
        b.I("s_cmp_eq_u32 s%d, 1" % sFAST)
        b.I("s_cbranch_scc0 %s" % ls)
        b.saved.pop(ls)
        toks = [b.I(t) for t in texts]
        b.raw(lj + ":")
        self.cold += [ls + ":"] + ["    " + t + " sc1" for t in texts] + ["    s_branch " + lj]
        return toks

    def pair_store(self, p, sreg, off):
        for k in range(2):
            self.b.I("v_permlane16_swap_b32 v%d, v%d" % (p + k, p + 2 + k))
        return "buffer_store_dwordx4 %s, v%d, %s, s%d offen offset:%d" % (vr(p, 4), vST, self.ws(), sreg, off)

    def spin_guard(self, lab_loop):
        b = self.b
        b.I("s_sub_u32 s%d, s%d, 1" % (sSPIN, sSPIN))
        b.I("s_cmp_lg_u32 s%d, 0" % sSPIN)
        b.I("s_cbranch_scc1 %s" % lab_loop)
        b.I("s_branch L_end")

    def new_pub(self, toks):
        self.npub += 1
        k = self.npub
        self.pub_mine[k] = self.mine

        def flag():
            b = self.b
            b.I("s_add_u32 s%d, s%d, %d" % (sT, sTAG, k))
            b.I("v_mov_b32 v%d, s%d" % (vC2, sT))
            b.wait(toks)
            b.I("s_mov_b64 exec, 1")
            self.stores2(["buffer_store_dword v%d, off, %s, s%d" % (vC2, self.ws(), sMYF)])
            b.I("s_mov_b64 exec, -1")
            self.flagged.add(k)
        return k, flag

    def poll_issue(self):
        return self.b.I("buffer_load_dword v%d, v%d, %s, s%d offen sc1" % (vPOLL, vFL, self.ws(), sFL))

    def poll_shadow(self, k, ncs):
        if not ncs:
            return self.poll_check(k)
        tok = self.poll_issue()
        self.cs1_some(ncs)
        self.poll_check(k, tok)
        self.b.wait(vm=0)

    def poll_check(self, k, tok=None):
        b = self.b
        if k not in self.flagged:
            print("WARNING: side stream late for flag", k, file=sys.stderr)
        while k not in self.flagged:
            assert self.side, "flag %d never raised before its poll" % k
            self.side_step(1)
        lp, ld, lc = b.newlabel("Lpoll"), b.newlabel("Lpd"), b.newlabel("Lpc")
        b.I("s_add_u32 s%d, s%d, %d" % (sT, sTAG, k))
        if tok is None and env("DPOLL", 0):
            ld_ = "buffer_load_dword v%%d, v%d, %s, s%d offen sc1" % (vFL, self.ws(), sFL)
            b.I(ld_ % vPOLL)
            for _ in range(env("DPOLL", 0)):
                b.I("s_nop 15")
            b.label(lp)
            for r0, r1 in ((vPOLL, vT), (vT, vPOLL)):
                self.Inc(ld_ % r1)
                b.I("s_waitcnt vmcnt(1)")
                b.I("v_subrev_u32 v%d, s%d, v%d" % (r0, sT, r0))
                b.I("v_cmp_gt_u32 vcc, %d, v%d" % (16 - k, r0))
                b.I("s_cmp_eq_u64 vcc, exec")
                b.I("s_cbranch_scc1 %s" % ld)
            self.spin_guard(lp)
            b.label(ld)
            b.vm_done = b.vm_issued
            self.consumed = max(self.consumed, self.pub_mine[k])
            return
        if tok is not None:
            b.wait(tok)
            b.I("s_branch %s" % lc)
        b.label(lp)
        self.Inc("buffer_load_dword v%d, v%d, %s, s%d offen sc1" % (vPOLL, vFL, self.ws(), sFL))
        if tok is None:
            b.wait(vm=0)
        else:
            b.I("s_waitcnt vmcnt(0)")
        b.label(lc)
        b.I("v_subrev_u32 v%d, s%d, v%d" % (vPOLL, sT, vPOLL))
        b.I("v_cmp_gt_u32 vcc, %d, v%d" % (16 - k, vPOLL))
        b.I("s_cmp_eq_u64 vcc, exec")
        b.I("s_cbranch_scc1 %s" % ld)
        self.spin_guard(lp)
        b.label(ld)
        self.consumed = max(self.consumed, self.pub_mine[k])

    def queue_stats(self, hf, plan):
        b = self.b
        s0 = self.seq
        assert s0 % 2 == 0
        self.seq += 2
        for j in range(2):
            def th(j=j):
                assert s0 + 1 - NSLOT <= self.consumed
                self.atok.setdefault(s0, []).append(b.I(
                    "buffer_load_dwordx4 v%d, %s, s%d offen offset:%d sc1 lds" % (vL16, self.ws(), sAO, j * 1024)))
            th.seq = s0 + 1
            th.urgent = True
            th.prep = [] if j else ["s_add_u32 m0, s%d, 0x%x" % (sW2K, (s0 % NSLOT) * 4096),
                                    "s_add_u32 s%d, s%d, 0x%x" % (sAO, sSTC, hf * 8192)]
            plan.append(th)
        return s0

    def queue_half(self, kind, idx, hf, nds, plan, rot=False, ds0=0):
        b = self.b
        seqs = []
        base = self.buf(kind, idx) + hf * self.hstride(kind)
        rg = self.rgs(kind)
        assert self.seq % 2 == 0 and nds % 2 == 0
        for ds in range(ds0, ds0 + nds):
            sq = self.seq
            self.seq += 1
            seqs.append(sq)
            s0 = sq & ~1

            def th(sq=sq, s0=s0):
                assert s0 + 1 - NSLOT <= self.consumed, "ring slot busy"
                tk = b.I("buffer_load_dwordx4 v%d, %s, s%d offen offset:%d sc1 lds" % (vDM2, self.ws(), sAO, (sq & 1) * 1024))
                if sq & 1:
                    self.atok[s0] = self.atok[s0 + 1] = [tk]
            th.seq = s0 + 1
            m0 = "s_add_u32 m0, s%d, 0x%x" % (sW2K, (sq % NSLOT) * 4096)
            if sq & 1:
                th.prep = []
            elif not rot:
                th.prep = [m0, "s_add_u32 s%d, s%d, 0x%x" % (sAO, rg, base + ds * 4096)]
            else:
                if ds == 0:
                    th.prep = ["s_add_u32 s%d, s%d, 0x%x" % (sAB, sRB2, base), "s_mov_b32 s%d, s%d" % (sXS, sRO2)]
                else:
                    th.prep = ["s_add_u32 s%d, s%d, 0x2000" % (sXS, sXS), "s_and_b32 s%d, s%d, 0x7fff" % (sXS, sXS)]
                th.prep += [m0, "s_add_u32 s%d, s%d, s%d" % (sAO, sAB, sXS)]
            plan.append(th)
        return seqs

    def queue_both(self, kind, idx, nds, plan):
        out = ([], [])
        for d0 in range(0, nds, 2):
            for hf in range(2):
                out[hf].extend(self.queue_half(kind, idx, hf, 2, plan, ds0=d0))
        return out

    def seq_issued(self):
        return self.aq[0].seq if self.aq else self.seq

    def a_burst(self, n):
        k = 0
        while k < n and self.aq and self.aq[0].seq - NSLOT <= self.consumed:
            self.a_pop()
            k += 1
        self.last_bg = self.clock

    def frag_addr(self, sq, r, h):
        off = (sq % NSLOT) * 4096 + r * 2048 + h * 1024
        return ((vL16, vA1)[off >> 16], off & 0xffff)

    def gemm_prep(self, items, groups=None, depth=8, hooks=None, pre=None, post=None, pairw=False, buf0=0):
        b = self.b
        hooks, pre, post = hooks or {}, pre or {}, post or {}
        n = len(items)
        toks = [None] * n
        grp_of = {}
        for gi, g in enumerate(groups or []):
            for sq in g:
                grp_of[sq] = gi
        opened = set()
        st = {"ip": 0}

        rem = [1 << 30] * (n + 1)
        for k in range(n - 1, -1, -1):
            rem[k] = min(rem[k + 1], items[k][2] if items[k][2] is not None else 1 << 30)

        def reg(k):
            return vr(vAF + 4 * ((k + buf0) % NAF), 4)

        def issue():
            k = st["ip"]
            a, off, sq, _ = items[k]
            if sq in grp_of and grp_of[sq] not in opened:
                gi = grp_of[sq]
                opened.add(gi)
                while any(s not in self.atok for s in groups[gi]):
                    self.a_pop()
                    self.last_bg = self.clock
                for f in pre.get(gi, []):
                    f()
                if self.gstamp:
                    self.stamp("g%d?" % gi)
                b.wait(*[self.atok[s] for s in groups[gi]])
                b.I("s_barrier")
                if self.gstamp:
                    self.stamp("g%d!" % gi)
                self.consumed = max(self.consumed, self.mine)
                for f in post.get(gi, []):
                    f()
            if a == "tr":
                r0 = vAF + 4 * ((k + buf0) % NAF)
                self.I("ds_read_b64_tr_b16 %s, v%d offset:%d" % (p2(r0), vTQ, off))
                toks[k] = self.I("ds_read_b64_tr_b16 %s, v%d offset:%d" % (p2(r0 + 2), vTQ, off + 512))
            else:
                toks[k] = self.I("ds_read_b128 %s, v%d offset:%d" % (reg(k), a, off))
            st["ip"] += 1

        def prestart(m=None):
            while st["ip"] < min(depth if m is None else m, n):
                issue()

        def run():
            prestart()
            self.slotted = True
            for j in range(n):
                thunks = items[j][3](reg(j))
                while st["ip"] <= min(j + (1 if pairw else 0), n - 1):
                    issue()
                if pairw and j % 2 == 0 and j + 1 < st["ip"]:
                    b.wait(toks[j + 1])
                b.wait(toks[j])
                if items[j][2] is not None:
                    self.cur_seq = items[j][2]
                    lim = min(self.pinned) - 3 if self.pinned else 1 << 30
                    self.mine = max(self.mine, min(rem[j] - 1, lim))
                if not thunks and st["ip"] < min(n, j + 1 + depth):
                    issue()
                for th in thunks:
                    n0 = b.nins
                    th()
                    if b.nins > n0:
                        self.slot_fill(min(n, j + 1 + depth) - st["ip"], issue)
                for f in hooks.get(j, []):
                    f()
            self.slotted = False
            self.side_flush()
            sq = [it[2] for it in items if it[2] is not None]
            if sq:
                self.cur_seq = max(sq) + 1
                lim = min(self.pinned) - 3 if self.pinned else 1 << 30
                self.mine = max(self.mine, min(max(sq), lim))
        return prestart, run

    def gemm(self, *a, **k):
        self.gemm_prep(*a, **k)[1]()

    def mf(self, d, a, bb, c=None):
        dd = vr(d, 4)
        cc = dd if c is None else c
        return lambda: self.I("v_mfma_f32_16x16x32_bf16 %s, %s, %s, %s" % (dd, a, bb, cc))

    @staticmethod
    def split(seqs, sizes):
        out, k = [], 0
        for s in sizes:
            out.append(seqs[k:k + s])
            k += s
        assert k == len(seqs)
        return out

    def stats_stage1(self, s0, hf):
        b = self.b
        t = vS1
        tk = {}
        def landed():
            while len(self.atok.get(s0, [])) < 2:
                self.a_pop()
            b.wait(self.atok[s0])
        out = ["v_add_u32 v%d, 0x%x, v%d" % (vT, (s0 % NSLOT) * 4096, vSB), landed]
        for k in range(4):
            out.append(lambda k=k: tk.__setitem__(k, b.I("ds_read2st64_b32 %s, v%d offset0:%d offset1:%d" % (
                p2(t + 2 * k), vT, 2 * k, 2 * k + 1))))
        out += [6, lambda: b.wait(tk[3])]
        out += ["v_add_f32 v%d, v%d, v%d" % (t + k, t + k, t + 4 + k) for k in range(4)]
        out += ["v_add_f32 v%d, v%d, v%d" % (t + k, t + k, t + 2 + k) for k in range(2)]
        out += ["v_add_f32 v%d, v%d, v%d" % (t, t, t + 1)]
        out.append(lambda: tk.__setitem__("w", b.I("ds_write_b32 v%d, v%d offset:%d" % (vSW, t, hf * 1024))))

        def before_barrier():
            self.side_flush()
            b.wait(tk["w"])
        return out, before_barrier

    def stats_stage2(self, hf, scale, kv):
        b = self.b
        t = vS1
        tk = {}
        out = []
        for k in range(2):
            out.append(lambda k=k: tk.__setitem__(k, b.I("ds_read2st64_b32 %s, v%d offset0:%d offset1:%d" % (
                p2(t + 2 * k), vEX, hf * 4 + 2 * k, hf * 4 + 2 * k + 1))))
        a0, b0, a1, b1 = [vAB + 4 * hf + k for k in range(4)]
        out += [6, lambda: b.wait(tk[1]),
                "v_add_f32 v%d, v%d, v%d" % (t, t, t + 2), "v_add_f32 v%d, v%d, v%d" % (t + 1, t + 1, t + 3),
                "v_add_f32 v%d, v%d, v%d" % (t, t, t + 1), "v_mul_f32 v%d, 0x3b000000, v%d" % (t, t),
                "v_mov_b32 v%d, v%d" % (t + 1, t), 1,
                "v_permlane16_swap_b32 v%d, v%d" % (t, t + 1), 1,
                "v_fma_f32 v%d, -v%d, v%d, v%d" % (t + 1, t, t, t + 1), "v_max_f32 v%d, 0, v%d" % (t + 1, t + 1),
                "v_add_f32 v%d, 0x3727c5ac, v%d" % (t + 1, t + 1), "v_rsq_f32 v%d, v%d" % (a0, t + 1), 1]
        if scale:
            out.append("v_mul_f32_e64 v%d, -v%d, v%d" % (a0, a0, vK))
        out.append("v_mul_f32_e64 v%d, -v%d, v%d" % (b0, t, a0))
        if kv:
            def wr():
                b.I("s_mov_b32 exec_lo, 0xffff")
                b.I("s_mov_b32 exec_hi, 0xffff")
                b.I("ds_write_b32 v%d, v%d" % (vSWR, a0))
                b.I("ds_write_b32 v%d, v%d offset:128" % (vSWR, b0))
                b.I("s_mov_b64 exec, -1")
            out.append(wr)
        out += ["v_mov_b32 v%d, v%d" % (a1, a0), "v_mov_b32 v%d, v%d" % (b1, b0), 1,
                "v_permlane32_swap_b32 v%d, v%d" % (a0, a1), "v_permlane32_swap_b32 v%d, v%d" % (b0, b1)]
        return out

    def stats_hooks(self, s0, hf, scale, kv, j1, gi, hooks, pre, post):
        s1, bb = self.stats_stage1(s0, hf)
        hooks.setdefault(j1, []).append(lambda: self.side.extend(s1))
        pre.setdefault(gi, []).append(bb)
        post.setdefault(gi, []).append(lambda: self.side.extend(self.stats_stage2(hf, scale, kv)))

    def stats_startup(self):
        b = self.b
        I = b.I
        t = vT
        I("v_mul_f32 v%d, 0x3b000000, v%d" % (t + 1, vS1))
        I("v_cndmask_b32 v%d, v%d, v%d, s[%d:%d]" % (t, vS2, vS2 + 1, sM1, sM1 + 1))
        I("v_cndmask_b32 v%d, v%d, v%d, s[%d:%d]" % (t, t, vS2 + 2, sM2, sM2 + 1))
        I("v_cndmask_b32 v%d, v%d, v%d, s[%d:%d]" % (t, t, vS2 + 3, sM3, sM3 + 1))
        I("v_mul_f32 v%d, 0x3b000000, v%d" % (t, t))
        I("v_fma_f32 v%d, -v%d, v%d, v%d" % (t, t + 1, t + 1, t))
        I("v_max_f32 v%d, 0, v%d" % (t, t))
        I("v_add_f32 v%d, 0x3727c5ac, v%d" % (t, t))
        I("v_rsq_f32 v%d, v%d" % (t + 2, t))
        I("v_lshlrev_b32 v%d, 1, v%d" % (t + 4, vSW))
        I("v_mul_f32_e64 v%d, -v%d, v%d" % (t + 3, t + 1, t + 2))
        I("v_subrev_u32 v%d, 0x%x, v%d" % (t + 4, L_STA - 512, t + 4))
        I("s_mov_b64 exec, s[%d:%d]" % (sDIAG, sDIAG + 1))
        I("ds_write_b32 v%d, v%d" % (vSW, t + 2))
        I("ds_write_b32 v%d, v%d offset:256" % (vSW, t + 3))
        I("ds_write_b64 v%d, v[%d:%d]" % (t + 4, t + 2, t + 3))
        I("s_mov_b64 exec, -1")
        b.wait(lg=0)
        I("s_barrier")

    def phi_pairs(self, pairs):
        I = self.I
        for c0 in range(0, len(pairs), 4):
            grp = pairs[c0:c0 + 4]
            for k, (t, d) in enumerate(grp):
                I("v_pk_mul_f32 %s, %s, %s %s" % (p2(vT + 2 * k), p2(t), p2(vK), K_L2E))
            for k, (t, d) in enumerate(grp):
                I("v_exp_f32_e64 v%d, v%d clamp" % (vT + 2 * k, vT + 2 * k))
                I("v_max_f32 v%d, v%d, v%d" % (t, vK + 1, t))
                I("v_exp_f32_e64 v%d, v%d clamp" % (vT + 2 * k + 1, vT + 2 * k + 1))
                I("v_max_f32 v%d, v%d, v%d" % (t + 1, vK + 1, t + 1))
            for k, (t, d) in enumerate(grp):
                I("v_pk_add_f32 %s, %s, %s" % (p2(t), p2(t), p2(vT + 2 * k)))
            for k, (t, d) in enumerate(grp):
                I("v_cvt_pk_bf16_f32 v%d, v%d, v%d" % (d, t, t + 1))

    def kv_epilogue(self, hf, ra, rb):
        I = self.I
        K, V = vACC + 8 * hf, vACC + 16 + 8 * hf
        for j in range(4):
            I("v_pk_fma_f32 %s, %s, %s, %s op_sel:[0,0,1] op_sel_hi:[1,1,1]" % (p2(vT + 2 * j), p2(rb + 2 * j), p2(vCSK), p2(vK)))
            I("v_pk_mul_f32 %s, %s, %s" % (p2(vT + 8 + 2 * j), p2(rb + 2 * j), p2(vCSV)))
        for j in range(4):
            I("v_pk_fma_f32 %s, %s, %s, %s" % (p2(K + 2 * j), p2(ra + 2 * j), p2(K + 2 * j), p2(vT + 2 * j)))
            I("v_pk_fma_f32 %s, %s, %s, %s" % (p2(V + 2 * j), p2(ra + 2 * j), p2(V + 2 * j), p2(vT + 8 + 2 * j)))
        for j in range(4):
            I("v_cvt_pk_bf16_f32 v%d, v%d, v%d" % (V + j, V + 2 * j, V + 2 * j + 1))
        self.phi_pairs([(K + 2 * j, K + j) for j in range(4)])

    def startup(self):
        b = self.b
        I = b.I
        i_, g_, l3, l7, q0, tc = vT + 2, vT + 3, vT + 6, vT + 7, vT + 8, vT + 9
        if self.diag:
            I("s_memtime s[92:93]")
        I("s_cmp_ge_u32 s2, 256")
        I("s_cbranch_scc1 L_end")
        I("s_load_dwordx4 s[4:7], s[0:1], 0")
        I("s_load_dwordx2 s[20:21], s[0:1], 64")
        I("s_load_dwordx2 s[8:9], s[0:1], 16")
        I("s_load_dwordx4 s[12:15], s[0:1], 32")
        I("s_load_dwordx4 s[16:19], s[0:1], 48")
        I("s_getpc_b64 s[90:91]")
        b.label("L_pc")
        I("v_lshrrev_b32 v%d, 6, v0" % vT)
        I("v_and_b32 v0, 63, v0")
        I("v_readfirstlane_b32 s%d, v%d" % (sW, vT))
        I("s_lshr_b32 s%d, s2, 3" % (sT + 1))
        I("s_lshl_b32 s%d, s%d, 2" % (sT + 3, sT + 1))
        I("s_add_u32 s%d, s%d, s%d" % (sT + 3, sT + 3, sW))
        I("s_and_b32 s%d, s%d, 31" % (sT, sT + 3))
        I("s_lshl_b32 s%d, s%d, 11" % (sT, sT))
        I("v_lshlrev_b32 v%d, 7, v0" % vTCH)
        I("v_add_u32 v%d, s%d, v%d" % (vT, sT, vTCH))
        I("v_min_u32 v%d, L_end-L_pc, v%d" % (vT, vT))
        I("s_mov_b64 exec, 0xffff")
        I("global_load_dword v%d, v%d, s[90:91]" % (vDUM, vT))
        I("s_mov_b64 exec, -1")
        I("s_and_b32 s%d, s2, 7" % sROT)
        I("s_and_b32 s%d, s%d, 7" % (sC, sT + 1))
        I("s_lshr_b32 s%d, s%d, 3" % (sQ, sT + 1))
        I("s_lshl_b32 s%d, s%d, 2" % (sT, sROT))
        I("s_add_u32 s%d, s%d, s%d" % (sRG, sT, sQ))
        I("s_lshl_b32 s%d, s%d, 16" % (sRG64, sRG))
        I("s_lshl_b32 s%d, s%d, 11" % (sW2K, sW))
        I("v_lshrrev_b32 v%d, 4, v0" % g_)
        I("v_and_b32 v%d, 15, v0" % i_)
        tw, tx = vT + 12, vT + 13
        I("s_mul_i32 s%d, s%d, %d" % (sT + 2, sT + 3, 4 * 3072))
        I("v_lshlrev_b32 v%d, 10, v0" % tx)
        I("v_add_u32 v%d, s%d, v%d" % (tw, sT + 2, tx))
        I("s_lshl_b32 s%d, s%d, 18" % (sT + 2, sROT))
        I("s_lshl_b32 s%d, s%d, 11" % (sT, sT + 3))
        I("s_add_u32 s%d, s%d, s%d" % (sT, sT, sT + 2))
        I("v_add_u32 v%d, s%d, v%d" % (tx, sT, tx))
        I("v_lshrrev_b32 v%d, 3, v0" % l3)
        I("v_and_b32 v%d, 7, v0" % l7)
        I("v_xor_b32 v%d, v%d, v%d" % (vT + 4, l7, g_))
        I("v_lshlrev_b32 v%d, 4, v%d" % (vT + 4, vT + 4))
        I("v_lshl_add_u32 v%d, v%d, 10, v%d" % (vT + 4, l3, vT + 4))
        I("s_lshl_b32 s%d, s%d, 14" % (sT + 1, sW))
        I("v_add_u32 v%d, s%d, v%d" % (vXS0, sT + 1, vT + 4))
        I("v_xor_b32 v%d, 64, v%d" % (vXS1, vXS0))
        I("v_add_u32 v%d, 7168, v%d" % (vXS1, vXS1))
        I("v_and_b32 v%d, 1, v%d" % (vT + 4, g_))
        I("v_lshlrev_b32 v%d, 1, v%d" % (vT + 4, vT + 4))
        I("v_xor_b32 v%d, v%d, v%d" % (q0, l7, vT + 4))
        I("v_lshlrev_b32 v%d, 4, v%d" % (q0, q0))
        I("s_and_b32 s%d, s%d, 1" % (sT + 1, sW))
        I("s_lshl_b32 s%d, s%d, 6" % (sT + 1, sT + 1))
        I("v_xor_b32 v%d, s%d, v%d" % (vT + 4, sT + 1, q0))
        I("s_lshl_b32 s%d, s%d, 3" % (sT + 1, sW))
        I("v_add_u32 v%d, s%d, v%d" % (vT + 5, sT + 1, l3))
        I("v_mul_u32_u24 v%d, 3072, v%d" % (vT + 5, vT + 5))
        I("v_add_u32 v%d, v%d, v%d" % (vWS, vT + 4, vT + 5))
        sXO, sWO_, sRB = sAB, sAO, 93
        I("s_lshl_b32 s%d, s%d, 7" % (sWO_, sC))
        I("v_add_u32 v%d, s%d, v%d" % (vWS, sWO_, vWS))
        if self.diag:
            b.wait(lg=0)
            I("s_mov_b32 s91, s92")
        I("s_add_u32 s%d, s%d, 0x%x" % (sRB, sW2K, L_RING - 1024))
        I("s_lshl_b32 s%d, s%d, 7" % (sXO, sROT))
        I("s_mul_i32 s%d, s%d, %d" % (sWO_, sROT, 64 * 3072))
        if self.diag:
            I("v_mov_b32 v%d, 0" % vSTAMP)
        b.wait(lg=0)
        if self.diag:
            I("v_writelane_b32 v%d, s91, 61" % vSTAMP)
        self.stamp("start")
        I("s_add_u32 s88, s%d, 0x%x" % (S_WS, WS_EP))
        I("s_addc_u32 s89, s%d, 0" % (S_WS + 1))
        I("s_load_dword s%d, s[88:89], 0" % sEP)
        self.srd(R_WQ, S_WQ, 512 * 3072)
        I("s_add_u32 s%d, s%d, s%d" % (R_X, S_X, sRG64))
        I("s_addc_u32 s%d, s%d, 0" % (R_X + 1, S_X + 1))
        I("s_and_b32 s%d, s%d, 0xffff" % (R_X + 1, R_X + 1))
        I("s_mov_b32 s%d, 0x10000" % (R_X + 2))
        I("s_mov_b32 s%d, 0x20000" % (R_X + 3))
        tokA, tokW = {}, {}

        def issue_thunks(ks):
            th = []
            if ks % 2 == 0:
                ds = ks // 2
                tokA[ds] = []
                pre = ["s_add_u32 m0, s%d, 0x%x" % (sW2K, ds * 8192)]
                if ds:
                    pre += ["s_add_u32 s%d, s%d, 128" % (sXO, sXO), "s_and_b32 s%d, s%d, 0x380" % (sXO, sXO)]
                th.append((pre, lambda: tokA[ds].append(
                    I("buffer_load_dwordx4 v%d, s[%d:%d], s%d offen lds" % (vXS0, R_X, R_X + 3, sXO)))))
                th.append(([], lambda: tokA[ds].append(
                    I("buffer_load_dwordx4 v%d, s[%d:%d], s%d offen offset:1024 lds" % (vXS1, R_X, R_X + 3, sXO)))))
            tokW[ks] = []
            for p in range(2):
                pre = []
                if p == 0:
                    if ks:
                        pre.append("s_add_u32 s%d, s%d, %d" % (sWO_, sWO_, 32 * 3072))
                        if ks % 2 == 0:
                            pre += ["s_cmp_eq_u32 s%d, %d" % (sWO_, 512 * 3072), "s_cselect_b32 s%d, 0, s%d" % (sWO_, sWO_)]
                    pre.append("s_add_u32 m0, s%d, 0x%x" % (sRB, (ks % NR) * 8192))
                th.append((pre, lambda p=p: tokW[ks].append(I("buffer_load_dwordx4 v%d, s[%d:%d], s%d offen offset:%d lds" % (
                    vWS, R_WQ, R_WQ + 3, sWO_, (p + 1) * 1024)))))
            return th

        tokQ = []

        def rq_base(ks):
            return L_PACK + ks * 4096 if ks < 4 else L_WQ + (ks - 4) * 4096

        def q_thunk(ks):
            pre = ["s_add_u32 s%d, s%d, %d" % (sWO_, sWO_, 32 * 3072)]
            if ks % 2 == 0:
                pre += ["s_cmp_eq_u32 s%d, %d" % (sWO_, 512 * 3072), "s_cselect_b32 s%d, 0, s%d" % (sWO_, sWO_)]
            pre.append("s_add_u32 m0, s%d, 0x%x" % (sW1K, rq_base(ks)))
            return (pre, lambda: tokQ.append(I("buffer_load_dwordx4 v%d, s[%d:%d], s%d offen lds" % (vWS, R_WQ, R_WQ + 3, sWO_))))
        self.tokQ, self.rq_base = tokQ, rq_base

        def issue_now(ks):
            for pre, th in issue_thunks(ks):
                for t in pre:
                    I(t)
                th()

        if env("T0", 1):
            self.srd(R_PK, S_X, 2048 * 1024)
            if env("XT", 1):
                I("v_lshrrev_b32 v%d, 3, v%d" % (vT + 4, tx))
                I("v_lshlrev_b32 v%d, 10, v0" % (vT + 4))
                I("v_sub_u32 v%d, v%d, v%d" % (tx, tx, vT + 4))
                I("v_add_u32 v%d, v%d, v%d" % (tx, tx, vTCH))
            for ptr, srd, v, mask in ((S_WQ, R_WQ, tw, 0xdb6 if env('TQ', -1) >= 0 else 0xfff), (S_X, R_PK, tx, 0xffff if env("XT", 1) else 3)):
                I("s_sub_u32 s%d, 0x180, s%d" % (sT, ptr))
                I("s_and_b32 s%d, s%d, 0x%x" % (sT, sT, 0 if env("XT", 1) and ptr == S_X else 0x380))
                I("s_mov_b64 exec, 0x%x" % mask)
                I("buffer_load_dword v%d, v%d, s[%d:%d], s%d offen" % (vDUM, v, srd, srd + 3, sT))
            I("s_mov_b64 exec, -1")
        NFIRST = env("NFIRST", 4)
        for ks in range(NFIRST):
            issue_now(ks)
        self.stamp("first")
        I("s_getreg_b32 s%d, hwreg(HW_REG_XCC_ID, 0, 4)" % sXCC)
        I("s_mov_b32 s%d, 0x100000" % sSPIN)
        self.srd(R_WS, S_WS, WS_SIZE)
        self.srd(R_OUT, S_OUT, 2048 * 1024)
        I("v_lshlrev_b32 v%d, 4, v0" % vL16)
        I("v_lshlrev_b32 v%d, 2, v0" % vL4)
        I("s_lshl_b32 s%d, s%d, 10" % (sW1K, sW))
        I("s_lshl_b32 s%d, s%d, 2" % (sT, sC))
        I("s_add_u32 s%d, s%d, s%d" % (sT, sT, sW))
        I("s_mul_i32 s%d, s%d, %d" % (sKV, sT, KVH))
        I("s_add_u32 s%d, s%d, 0x%x" % (sKV, sKV, WS_KV + KB0))
        I("v_mov_b32 v%d, 0" % vC2)
        I("s_and_b32 s%d, s%d, 15" % (sT + 1, sRG))
        I("s_mul_i32 s%d, s%d, %d" % (sT + 1, sT + 1, KVH // 16))
        I("s_add_u32 s%d, s%d, s%d" % (sT + 1, sT + 1, sKV))
        I("s_lshr_b32 s%d, s%d, 4" % (sT + 2, sRG))
        I("s_mul_i32 s%d, s%d, %d" % (sT + 2, sT + 2, KVL))
        I("s_add_u32 s%d, s%d, s%d" % (sT + 1, sT + 1, sT + 2))
        I("v_mov_b32 v%d, 0" % vPOLL)
        I("v_mov_b32 v%d, 0" % (vPOLL + 1))
        I("v_lshlrev_b32 v%d, 3, v0" % (vT + 4))
        assert KVH % 128 == 0 and KVH // 128 <= 64
        mask = (1 << (KVH // 128)) - 1
        I("s_mov_b32 exec_lo, 0x%x" % (mask & 0xffffffff))
        I("s_mov_b32 exec_hi, 0x%x" % (mask >> 32))
        ztok = I("buffer_store_dwordx2 %s, v%d, %s, s%d offen sc1" % (p2(vPOLL), vT + 4, self.ws(), sT + 1))
        I("s_mov_b64 exec, -1")
        I("s_mul_i32 s%d, s%d, %d" % (sPK, sT, PKW))
        I("s_lshl_b32 s%d, s%d, 7" % (sFL, sRG))
        I("s_lshl_b32 s%d, s%d, 12" % (sR1, sC))
        I("s_add_u32 s%d, s%d, 0x%x" % (sR1, sR1, WS_R2))
        I("s_add_u32 s%d, s%d, 0x%x" % (sFL, sFL, WS_FL))
        I("s_lshl_b32 s%d, s%d, 2" % (sMYF, sT))
        I("s_add_u32 s%d, s%d, s%d" % (sMYF, sMYF, sFL))
        I("s_lshl_b32 s%d, s%d, 14" % (sSTC, sRG))
        I("s_add_u32 s%d, s%d, 0x%x" % (sSTC, sSTC, WS_ST))
        I("s_lshl_b32 s%d, s%d, 8" % (sSTP, sT))
        I("s_add_u32 s%d, s%d, s%d" % (sSTP, sSTP, sSTC))
        I("s_add_u32 s%d, s%d, s%d" % (sSTC, sSTC, sW2K))
        I("s_mul_i32 s%d, s%d, %d" % (sRGH, sRG, HSZ))
        I("s_lshl_b32 s%d, s%d, 12" % (sSTO, sC))
        I("s_lshl_b32 s%d, s%d, 9" % (sT + 1, sW))
        I("s_add_u32 s%d, s%d, s%d" % (sSTO, sSTO, sT + 1))
        I("s_lshl_b32 s%d, s%d, 5" % (sOUT, sT))
        I("s_mul_i32 s%d, s%d, 3" % (sT, sT))
        for t in range(3):
            I("s_add_u32 s%d, s%d, %d" % (sT + 1, sT, t))
            I("s_lshr_b32 s%d, s%d, 2" % (sT + 2, sT + 1))
            I("s_lshl_b32 s%d, s%d, 12" % (sT + 2, sT + 2))
            I("s_and_b32 s%d, s%d, 3" % (sT + 3, sT + 1))
            I("s_lshl_b32 s%d, s%d, 9" % (sT + 3, sT + 3))
            I("s_add_u32 s%d, s%d, s%d" % (sT + 2, sT + 2, sT + 3))
            I("s_add_u32 s%d, s%d, s%d" % (sT + 2, sT + 2, sRGH))
            I("s_cmp_lt_u32 s%d, 86" % (sT + 1))
            I("s_cselect_b32 s%d, s%d, 0x%x" % (sH0 + t, sT + 2, OOB))
            I("s_cselect_b32 s%d, 0, 0x%x" % (sT + 2, OOB))
            I("v_add_u32 v%d, s%d, v%d" % (vW1 + t, sT + 2, vL16))
        I("v_add_u32 v%d, 0x10000, v%d" % (vA1, vL16))
        I("v_add_u32 v%d, s%d, v%d" % (vDMA, sW1K, vL16))
        I("v_add_u32 v%d, s%d, v%d" % (vDM2, sW2K, vL16))
        I("s_lshr_b32 s%d, s%d, 1" % (sT + 1, sW))
        I("s_add_u32 s%d, s%d, s%d" % (sRO2, sROT, sT + 1))
        I("s_and_b32 s%d, s%d, 7" % (sRO2, sRO2))
        I("s_lshl_b32 s%d, s%d, 12" % (sRO2, sRO2))
        I("s_lshl_b32 s%d, s%d, 12" % (sT + 1, sT + 1))
        I("s_sub_u32 s%d, s%d, s%d" % (sRB2, sRG64, sT + 1))
        I("v_and_b32 v%d, 0x7c, v%d" % (vFL, vL4))
        I("v_lshrrev_b32 v%d, 1, v%d" % (vT + 4, g_))
        I("v_lshlrev_b32 v%d, 8, v%d" % (vT + 4, vT + 4))
        I("v_lshl_add_u32 v%d, v%d, 4, v%d" % (vT + 4, i_, vT + 4))
        I("v_and_b32 v%d, 1, v%d" % (vT + 5, g_))
        I("v_lshl_add_u32 v%d, v%d, 11, v%d" % (vST, vT + 5, vT + 4))
        I("v_lshlrev_b32 v%d, 4, v%d" % (vSTA, g_))
        I("v_add_u32 v%d, 0x%x, v%d" % (vSTA, L_STA, vSTA))
        I("v_lshlrev_b32 v%d, 3, v%d" % (vSTQ, i_))
        I("v_add_u32 v%d, 0x%x, v%d" % (vSTQ, L_STA + 512, vSTQ))
        I("s_lshl_b32 s%d, s%d, 6" % (sT, sW))
        I("s_add_u32 s%d, s%d, 0x%x" % (sT, sT, L_STA))
        I("v_lshlrev_b32 v%d, 2, v%d" % (vSW, i_))
        I("v_add_u32 v%d, s%d, v%d" % (vSW, sT, vSW))
        I("v_lshrrev_b32 v%d, 3, v%d" % (vT + 4, i_))
        I("v_lshlrev_b32 v%d, 10, v%d" % (vT + 4, vT + 4))
        I("v_and_b32 v%d, 7, v%d" % (vT + 5, i_))
        I("v_lshl_add_u32 v%d, v%d, 7, v%d" % (vT + 4, vT + 5, vT + 4))
        I("v_lshrrev_b32 v%d, 1, v%d" % (vT + 5, i_))
        I("v_xor_b32 v%d, v%d, v%d" % (vT + 5, vT + 5, g_))
        I("v_lshl_add_u32 v%d, v%d, 4, v%d" % (vX0, vT + 5, vT + 4))
        I("v_xor_b32 v%d, 64, v%d" % (vX1, vX0))
        I("v_add_u32 v%d, s%d, v%d" % (vOW0, sW2K, vX0))
        I("v_add_u32 v%d, s%d, v%d" % (vOW1, sW2K, vX1))
        I("v_bfe_u32 v%d, v0, 2, 2" % (vT + 4))
        I("v_bfe_u32 v%d, v0, 3, 1" % (vT + 5))
        I("v_lshlrev_b32 v%d, 1, v%d" % (vT + 5, vT + 5))
        I("v_bfe_u32 v%d, v0, 4, 1" % (vT + 10))
        I("v_lshl_add_u32 v%d, v%d, 2, v%d" % (vT + 5, vT + 10, vT + 5))
        I("v_bfe_u32 v%d, v0, 1, 1" % (vT + 10))
        I("v_xor_b32 v%d, v%d, v%d" % (vT + 5, vT + 5, vT + 10))
        I("v_lshlrev_b32 v%d, 4, v%d" % (vT + 5, vT + 5))
        I("v_lshl_add_u32 v%d, v%d, 7, v%d" % (tc, vT + 4, vT + 5))
        I("v_and_b32 v%d, 1, v0" % (vT + 10))
        I("v_lshl_add_u32 v%d, v%d, 3, v%d" % (tc, vT + 10, tc))
        I("s_lshl_b32 s%d, s%d, 5" % (sT + 1, sW))
        I("v_xor_b32 v%d, s%d, v%d" % (vT + 4, sT + 1, tc))
        I("v_lshl_add_u32 v%d, v%d, 10, v%d" % (vTQ, g_, vT + 4))
        I("v_add_u32 v%d, 0x%x, v%d" % (vTQ, L_WQ, vTQ))
        I("v_lshl_add_u32 v%d, v%d, 11, v%d" % (vT + 4, g_, vT + 4))
        I("v_add_u32 v%d, 0x%x, v%d" % (vTR, L_RING, vT + 4))
        for k in range(4):
            I("v_mov_b32 v%d, 0x3f803f80" % (vONE + k))
        I("v_mov_b32 v%d, 0x3fb8aa3b" % vK)
        I("v_mov_b32 v%d, 0x358637bd" % (vK + 1))
        I("s_mul_i32 s%d, s%d, 2560" % (sT, sW))
        I("s_add_u32 s%d, s%d, 0x%x" % (sT, sT, L_KVI))
        I("v_add_u32 v%d, s%d, v%d" % (vKVL, sT, vL4))
        for r in range(4):
            I("v_add_u32 v%d, %d, v0" % (vT + 4, 64 * r))
            I("v_mul_u32_u24 v%d, 4370, v%d" % (vT + 5, vT + 4))
            I("v_lshrrev_b32 v%d, 16, v%d" % (vT + 5, vT + 5))
            I("v_add_u32 v%d, v%d, v%d" % (vT + 4, vT + 4, vT + 5))
            I("v_lshlrev_b32 v%d, 2, v%d" % (vT + 4, vT + 4))
            I("v_add_u32 v%d, s%d, v%d" % (vPOS + r, sT, vT + 4))
        I("v_lshrrev_b32 v%d, 1, v%d" % (vT + 4, g_))
        I("v_add_u32 v%d, v%d, v%d" % (vT + 4, vT + 4, g_))
        I("v_lshlrev_b32 v%d, 4, v%d" % (vT + 4, vT + 4))
        I("s_add_u32 s%d, s%d, %d" % (sT, sT, 276 * 4))
        I("v_add_u32 v%d, s%d, v%d" % (vZP, sT, vT + 4))
        I("v_cmp_eq_u32 vcc, 15, v%d" % i_)
        I("v_cndmask_b32 v%d, 0, 1.0, vcc" % (vT + 4))
        b.wait(lg=0)
        for k in range(5):
            I("ds_write_b32 v%d, v%d offset:%d" % (vKVL, vT + 4, 256 * k))
        I("s_xor_b32 s%d, s%d, 0x80000000" % (sTAG, sEP))
        I("s_and_b32 s%d, s%d, 0xfffffff0" % (sTAG, sTAG))
        I("s_mov_b32 s%d, 0x358637bd" % sEPS)
        for r, val in ((sM1, 0x22222222), (sM2, 0x44444444), (sM3, 0x88888888)):
            I("s_mov_b32 s%d, 0x%x" % (r, val))
            I("s_mov_b32 s%d, 0x%x" % (r + 1, val))
        I("s_mov_b32 s%d, 0x00f0000f" % sDIAG)
        I("s_mov_b32 s%d, 0xf0000f00" % (sDIAG + 1))
        I("v_lshlrev_b32 v%d, 10, v%d" % (vT + 4, g_))
        I("s_lshl_b32 s%d, s%d, 12" % (sT, sW))
        I("v_add_u32 v%d, s%d, v%d" % (vT + 4, sT, vT + 4))
        for t in range(4):
            I("v_xor_b32 v%d, %d, v%d" % (vCS1 + 4 + t, 32 * t, tc))
            I("v_add_u32 v%d, v%d, v%d" % (vCS1 + 4 + t, vCS1 + 4 + t, vT + 4))
            I("v_add_u32 v%d, 0x%x, v%d" % (vCS1 + 4 + t, L_PACK, vCS1 + 4 + t))
        I("v_and_b32 v%d, 31, v0" % (vT + 14))
        I("v_lshlrev_b32 v%d, 10, v%d" % (vT + 14, vT + 14))
        I("v_lshrrev_b32 v%d, 5, v0" % (vT + 4))
        I("v_lshl_add_u32 v%d, v%d, 4, v%d" % (vT + 14, vT + 4, vT + 14))
        I("s_add_u32 s%d, s%d, s%d" % (sT, sTAG, sXCC))
        I("v_mov_b32 v%d, s%d" % (vT + 15, sT))
        ptk, pth = self.pack_load(l3, q0)
        KL = env("KL", -1)
        for ks in range(NFIRST, env('NINIT', 6)):
            issue_now(ks)
        nxt = env('NINIT', 6)
        nq = 0
        if KL < 0:
            for pre, th in pth:
                for t in pre:
                    I(t)
                th()
        I("s_mov_b64 exec, 1")
        I("buffer_load_dword v%d, off, %s, s%d sc1" % (vDUM, self.ws(), sFL))
        I("s_mov_b64 exec, -1")
        self.stamp("setup")

        tmp = [self.free.pop() for _ in range(6)]
        assert all(s[0] == "v" for s in tmp)
        cK, cV = tmp[4][1], tmp[5][1]
        res_toks = []
        KZ = env("KZ", 2)
        KP, KANN, KI, KC = env("KP", 4), env("KANN", 9), env("KI", 12), env("KC", 99)
        for ks in range(17):
            fill, dma, nrd = [], [], 0
            if ks < 16:
                b.wait(tokW[ks], tokA[ks // 2])
                if ks == KZ:
                    b.wait(ztok)
                if ks == KANN:
                    b.wait(pst)
                I("s_barrier")
                if ks == 0:
                    self.stamp("w0")
                elif env("LSTAMP", 0):
                    self.stamp("it%d" % ks)
                if ks == KC:
                    self.r1_check()
                    self.bg_w = len(self.free) - 2 * (16 - ks) - 16
                    self.last_bg = self.clock
                if ks in (KZ, KANN):
                    lx = b.newlabel("Lann")
                    I("s_cmp_lg_u32 s%d, 0" % sW)
                    I("s_cbranch_scc1 %s" % lx)
                    I("s_lshl_b32 s%d, s%d, 7" % (sT, sRG))
                    I("s_add_u32 s%d, s%d, s%d" % (sT, sT, sR1))
                    if ks == KANN:
                        I("s_add_u32 s%d, s%d, 0x%x" % (sT, sT, WS_R3 - WS_R2))
                    I("s_mov_b64 exec, 1")
                    self.Inc("buffer_store_dword v%d, off, %s, s%d sc1" % (vT + 15, self.ws(), sT))
                    I("s_mov_b64 exec, -1")
                    b.label(lx)
                for p in range(2):
                    s = self.free.pop(0)
                    self.wslot[("qkv", 0, 2 * ks + p)] = (s, None)
                    for hh in range(2):
                        fill.append(lambda s=s, hh=hh, p=p: I("ds_read_b64_tr_b16 %s, v%d offset:%d" % (
                            vr(s[1] + 2 * hh, 2, s[0]), vTR, (ks % NR) * 8192 + p * 1024 + hh * 512)))
                fb = vAF + (ks & 1) * 20
                ds, h = ks // 2, ks & 1
                for rt in range(4):
                    fill.append(lambda rt=rt: I("ds_read_b128 %s, v%d offset:%d" % (
                        vr(fb + 4 * rt, 4), (vX0, vX1)[h], ds * 8192 + rt * 2048)))
                fill.append(lambda: I("ds_read_b128 %s, v%d offset:%d" % (vr(fb + 16, 4), (vOW0, vOW1)[h], ds * 8192)))
                nrd = len(fill)
                k2 = 0
                while nxt < min(16, ks + NR) and k2 < 2:
                    dma += issue_thunks(nxt)
                    nxt += 1
                    k2 += 1
                if ks == KL:
                    dma += pth
                if nxt == 16 and not dma and ks > KP + 1:
                    while nq < 16 and len(dma) < env("QPER", 3) and (nq < 4 or 10 + (nq - 4) // 2 < ks):
                        dma.append(q_thunk(nq))
                        nq += 1
                if ks == env("TQ", -1) and env("T0", 1):
                    def tq():
                        I("s_sub_u32 s%d, 0x180, s%d" % (sT, S_WQ))
                        I("s_and_b32 s%d, s%d, 0x380" % (sT, sT))
                        I("s_mov_b64 exec, 0x249")
                        I("buffer_load_dword v%d, v%d, s[%d:%d], s%d offen" % (vDUM, tw, R_WQ, R_WQ + 3, sT))
                        I("s_mov_b64 exec, -1")
                    fill.append(tq)
                if ks == KI:
                    fill.append(self.r1_issue)
                if ks == env("KOX", 15) and FT:
                    def tch():
                        self.touch_ox(0)
                        I("v_and_b32 v%d, 1, v0" % vT)
                        I("v_lshrrev_b32 v%d, 1, v0" % (vT + 1))
                        I("v_lshlrev_b32 v%d, 13, v%d" % (vT + 1, vT + 1))
                        I("v_lshl_add_u32 v%d, v%d, 7, v%d" % (vT + 5, vT, vT + 1))
                        I("s_mov_b64 exec, 15")
                        I("buffer_load_dword v%d, v%d, %s, s%d offen sc1" % (vDUM, vT + 5, self.ws(), sSTP))
                        I("s_mov_b64 exec, -1")
                    fill.append(tch)
                if ks == KP:
                    def prd():
                        b.wait(ptk)
                        for t in range(4):
                            for hh in range(2):
                                I("ds_read_b64_tr_b16 %s, v%d offset:%d" % (p2(tmp[t][1] + 2 * hh), vCS1 + 4 + t, hh * 512))
                    fill.append(prd)
            mfs = []
            if ks >= 1:
                k1 = ks - 1
                fb1 = vAF + (k1 & 1) * 20
                c0 = "0" if k1 == 0 else None
                wk, wv = [slot_r(self.wslot[("qkv", 0, k)][0]) for k in (2 * k1, 2 * k1 + 1)]
                one = vr(vONE, 4)
                for rt in range(4):
                    mfs.append(self.mf(vACC + 4 * rt, vr(fb1 + 4 * rt, 4), wk, c0))
                    mfs.append(self.mf(vACC + 16 + 4 * rt, vr(fb1 + 4 * rt, 4), wv, c0))
                own = vr(fb1 + 16, 4)
                mfs += [self.mf(vS1, one, own, c0), self.mf(vS2, own, own, c0),
                        self.mf(cK, one, wk, c0), self.mf(cV, one, wv, c0)]
            rds, extra = fill[:nrd], fill[nrd:]
            for _ in range(min(3, len(rds))):
                rds.pop(0)()
            while mfs:
                mfs.pop(0)()
                if rds:
                    for _ in range(min(2, len(rds))):
                        rds.pop(0)()
                    if len(rds) <= 2 and dma and dma[0][0]:
                        I(dma[0][0].pop(0))
                elif dma:
                    if dma[0][0]:
                        while dma[0][0]:
                            I(dma[0][0].pop(0))
                    else:
                        dma.pop(0)[1]()
                elif extra:
                    extra.pop(0)()
            for f in rds:
                f()
            for pre, th in dma:
                for t in pre:
                    I(t)
                th()
            for f in extra:
                f()
            b.wait(lg=0)
            if ks == KP:
                pst = [I("buffer_store_dwordx4 %s, v%d, %s, s%d offen sc1" % (slot_r(tmp[t]), vL16, self.ws(), 80 + t))
                       for t in range(4)]
        I("s_sub_u32 s%d, s%d, s%d" % (sT, sC, sROT))
        I("s_and_b32 s%d, s%d, 7" % (sT, sT))
        I("s_lshl_b32 s%d, s%d, 13" % (sT, sT))
        I("v_lshrrev_b32 v%d, 4, v0" % vT)
        I("v_lshrrev_b32 v%d, 5, v0" % (vT + 1))
        I("v_xor_b32 v%d, v%d, v%d" % (vT + 1, vT + 1, vT))
        I("s_lshl_b32 s%d, s%d, 1" % (sT + 1, sW))
        I("v_xor_b32 v%d, s%d, v%d" % (vT + 1, sT + 1, vT + 1))
        I("v_lshlrev_b32 v%d, 4, v%d" % (vT + 1, vT + 1))
        I("v_xor_b32 v%d, v%d, v%d" % (vT + 1, vT + 1, vX0))
        I("v_and_b32 v%d, 1, v%d" % (vT, vT))
        I("v_lshl_add_u32 v%d, v%d, 3, v%d" % (vT + 1, vT, vT + 1))
        I("v_add_u32 v%d, s%d, v%d" % (vT + 1, sT, vT + 1))
        res = [I("ds_read_b64 %s, v%d offset:%d" % (p2(vS1 + 8 + 0) if False else p2(vACC + 32 + 2 * rt), vT + 1, rt * 2048)) for rt in range(4)]
        I("v_mov_b32 v%d, v%d" % (vOA, vT + 14))
        self.bg_w = 0
        self.stamp("kvpass")
        if KC > 16:
            self.r1_check()
        if KANN == 16:
            b.wait(pst)
        self.stats_startup()
        if KANN == 16:
            lx = b.newlabel("Lann")
            I("s_cmp_lg_u32 s%d, 0" % sW)
            I("s_cbranch_scc1 %s" % lx)
            I("s_lshl_b32 s%d, s%d, 7" % (sT, sRG))
            I("s_add_u32 s%d, s%d, s%d" % (sT, sT, sR1))
            I("s_add_u32 s%d, s%d, 0x%x" % (sT, sT, WS_R3 - WS_R2))
            I("s_mov_b64 exec, 1")
            self.Inc("buffer_store_dword v%d, off, %s, s%d sc1" % (vT + 15, self.ws(), sT))
            I("s_mov_b64 exec, -1")
            b.label(lx)
        while nq < 16:
            pre, th = q_thunk(nq)
            for t in pre:
                I(t)
            th()
            nq += 1
        t1 = []
        for rt in range(4):
            t1.append(I("ds_read_b128 %s, v%d offset:%d" % (vr(vAF + 4 * rt, 4), vSTA, rt * 64)))
            t1.append(I("ds_read_b128 %s, v%d offset:%d" % (vr(vAF + 16 + 4 * rt, 4), vSTA, 256 + rt * 64)))
        for rt in range(4):
            t1.append(I("ds_read_b64 %s, v%d offset:%d" % (p2(vAB + 2 * rt), vSTQ, rt * 128)))
        for k in range(2):
            I("v_mov_b32 v%d, v%d" % (vCSK + k, cK))
            I("v_mov_b32 v%d, v%d" % (vCSV + k, cV))
        self.free += tmp
        I("v_add_u32 v%d, s%d, v%d" % (vSB, sW2K, vL4))
        I("v_add_u32 v%d, 0x%x, v%d" % (vEX, L_EX, vL4))
        I("s_lshl_b32 s%d, s%d, 8" % (sT, sW))
        I("v_add_u32 v%d, s%d, v%d" % (vSW, sT, vEX))
        I("v_and_b32 v%d, 15, v0" % vT)
        I("v_lshrrev_b32 v%d, 5, v0" % (vT + 1))
        I("v_lshlrev_b32 v%d, 6, v%d" % (vT + 1, vT + 1))
        I("v_lshl_add_u32 v%d, v%d, 2, v%d" % (vSWR, vT, vT + 1))
        I("s_add_u32 s%d, s%d, 0x%x" % (sT, sT, L_STA))
        I("v_add_u32 v%d, s%d, v%d" % (vSWR, sT, vSWR))
        for rt in range(4):
            for k in range(2):
                s = vACC + 32 + 2 * rt + k
                I("v_lshlrev_b32 v%d, 16, v%d" % (vX + 4 * rt + 2 * k, s))
                I("v_and_b32 v%d, 0xffff0000, v%d" % (vX + 4 * rt + 2 * k + 1, s))
        early = env("R3EARLY", 0)
        I("v_and_b32 v%d, 0xfff, v%d" % (vCS1, vTCH))
        I("s_add_u32 s%d, s%d, 0x%x" % (sR1, sR1, WS_R3 - WS_R2))
        self.r3_tok = I("buffer_load_dword v%d, v%d, %s, s%d offen sc1" % (vPOLL, vCS1, self.ws(), sR1))
        b.wait(t1)
        I("s_lshl_b32 s%d, s%d, 8" % (sT, sW))
        I("v_add_u32 v%d, s%d, v%d" % (vSTA, sT, vSTA))
        for hf in range(2):
            self.kv_epilogue(hf, vAF + 8 * hf, vAF + 16 + 8 * hf)

    def pack_load(self, l3, q0):
        b = self.b
        I = b.I
        dst = 80
        uid, src, strd = sT, sT + 1, sT + 2
        I("s_lshl_b32 s%d, s%d, 2" % (uid, sRG))
        I("s_add_u32 s%d, s%d, s%d" % (uid, uid, sW))
        lw1, lw2, lnone, lgo = [b.newlabel("Lpk") for _ in range(4)]
        I("s_mul_i32 s88, s%d, %d" % (sC, 4 * PKW))
        I("s_mov_b32 s%d, 0x20000" % (R_PK + 3))

        def setsrd(ptr, size, stride):
            I("s_mov_b32 s%d, s%d" % (R_PK, ptr))
            I("s_and_b32 s%d, s%d, 0xffff" % (R_PK + 1, ptr + 1))
            I("s_mov_b32 s%d, %d" % (R_PK + 2, size))
            I("s_movk_i32 s%d, %d" % (strd, stride))

        def simple(f0):
            I("s_lshl_b32 s%d, s%d, 15" % (src, uid))
            I("s_lshl_b32 s89, s%d, 7" % sC)
            I("s_add_u32 s%d, s%d, s89" % (src, src))
            I("s_add_u32 s89, s%d, %d" % (uid, f0))
            I("s_lshl_b32 s89, s89, 10")
            I("s_add_u32 s88, s88, s89")
            for t in range(4):
                I("s_add_u32 s%d, s88, %d" % (dst + t, t * PKW))
            I("s_branch %s" % lgo)

        I("s_cmp_ge_u32 s%d, 16" % uid)
        I("s_cbranch_scc1 %s" % lw1)
        setsrd(S_WO, 512 * 1024, 1024)
        simple(F_WO)
        b.label(lw1)
        I("s_cmp_ge_u32 s%d, 64" % uid)
        I("s_cbranch_scc1 %s" % lw2)
        I("s_sub_u32 s%d, s%d, 16" % (uid, uid))
        I("s_mul_i32 s89, s%d, 43" % uid)
        I("s_lshr_b32 s89, s89, 7")
        I("s_mul_i32 s92, s89, 3")
        I("s_sub_u32 s92, s%d, s92" % uid)
        setsrd(S_W1, 512 * 2752, 2752)
        I("s_mul_i32 s%d, s89, %d" % (src, 32 * 2752))
        I("s_mul_i32 s79, s%d, 384" % sC)
        I("s_add_u32 s%d, s%d, s79" % (src, src))
        I("s_lshl_b32 s79, s92, 7")
        I("s_add_u32 s%d, s%d, s79" % (src, src))
        I("s_mul_i32 s89, s89, 3072")
        I("s_add_u32 s88, s88, s89")
        I("s_add_u32 s88, s88, %d" % (F_W1 * 1024))
        for t in range(4):
            I("s_lshl_b32 s79, s92, 2")
            I("s_add_u32 s79, s79, %d" % t)
            I("s_mul_i32 s89, s79, 43")
            I("s_lshr_b32 s89, s89, 7")
            I("s_mul_i32 s%d, s89, %d" % (dst + t, PKW - 3072))
            I("s_lshl_b32 s79, s79, 10")
            I("s_add_u32 s%d, s%d, s79" % (dst + t, dst + t))
            I("s_add_u32 s%d, s%d, s88" % (dst + t, dst + t))
        I("s_mul_i32 s79, s%d, 3" % sC)
        I("s_add_u32 s79, s79, s92")
        I("s_cmp_ge_u32 s79, 22")
        I("s_cbranch_scc1 %s" % lnone)
        I("s_branch %s" % lgo)
        b.label(lw2)
        I("s_cmp_ge_u32 s%d, 107" % uid)
        I("s_cbranch_scc1 %s" % lnone)
        I("s_sub_u32 s%d, s%d, 64" % (uid, uid))
        setsrd(S_W2, 1376 * 1024, 1024)
        simple(F_W2)
        b.label(lnone)
        setsrd(S_WQ, 0, 1024)
        I("s_mov_b32 s%d, 0" % src)
        for t in range(4):
            I("s_mov_b32 s%d, 0x%x" % (dst + t, OOB))
        b.label(lgo)
        I("v_mul_lo_u32 v%d, v%d, s%d" % (vT + 4, l3, strd))
        I("v_add_u32 v%d, v%d, v%d" % (vT + 10, vT + 4, q0))
        I("v_xor_b32 v%d, 64, v%d" % (vT + 5, q0))
        I("v_add_u32 v%d, v%d, v%d" % (vT + 11, vT + 4, vT + 5))
        I("s_lshl_b32 s%d, s%d, 3" % (strd, strd))
        I("s_lshl_b32 s86, s%d, 12" % sW)
        I("s_mov_b32 s84, s%d" % src)
        I("s_mov_b32 s85, s%d" % strd)
        toks = []
        th = []
        for q in range(4):
            pre = ["s_add_u32 m0, s86, 0x%x" % (L_PACK + q * 1024)]
            if q:
                pre.append("s_add_u32 s84, s84, s85")
            th.append((pre, lambda q=q: toks.append(I("buffer_load_dwordx4 v%d, s[%d:%d], s84 offen lds" % (
                vT + 10 + (q & 1), R_PK, R_PK + 3)))))
        return toks, th

    def r1_issue(self):
        I = self.b.I
        a = vCS1 + 2
        I("v_and_b32 v%d, 7, v0" % a)
        I("v_subrev_u32 v%d, s%d, v%d" % (a, sC, a))
        I("v_lshlrev_b32 v%d, 12, v%d" % (a, a))
        I("s_lshl_b32 s%d, s%d, 7" % (sT, sRG))
        I("s_add_u32 s%d, s%d, s%d" % (sT, sT, sR1))
        I("v_add_u32 v%d, s%d, v%d" % (a, sT, a))
        I("v_add_u32 v%d, s%d, v%d" % (vT + 5, sR1, vTCH))
        I("v_cmp_gt_u32 vcc, 32, v0")
        I("v_cndmask_b32 v%d, v%d, v%d, vcc" % (a, a, vT + 5))
        self.r1_tok = I("buffer_load_dword v%d, v%d, %s, 0 offen sc1" % (vPOLL, a, self.ws()))

    def r1_check(self):
        b = self.b
        I = b.I
        lp, ld, lc = b.newlabel("Ltag"), b.newlabel("Ltagd"), b.newlabel("Ltagc")
        b.wait(self.r1_tok)
        I("s_branch %s" % lc)
        b.label(lp)
        self.Inc("buffer_load_dword v%d, v%d, %s, 0 offen sc1" % (vPOLL, vCS1 + 2, self.ws()))
        I("s_waitcnt vmcnt(0)")
        b.label(lc)
        I("v_subrev_u32 v%d, s%d, v%d" % (vPOLL, sTAG, vPOLL))
        I("v_cmp_gt_u32 vcc, 16, v%d" % vPOLL)
        I("s_cmp_eq_u64 vcc, exec")
        I("s_cbranch_scc1 %s" % ld)
        self.spin_guard(lp)
        b.label(ld)
        I("v_cmp_eq_u32 vcc, s%d, v%d" % (sXCC, vPOLL))
        I("s_cmp_eq_u32 vcc_hi, -1")
        I("s_cselect_b32 s%d, 1, 0" % sFAST)

    def touch_w(self, f0, m):
        I = self.b.I
        I("s_mul_i32 s%d, s%d, %d" % (sTC, sQ, m * 1024))
        I("s_add_u32 s%d, s%d, s%d" % (sTC, sTC, sPK))
        I("s_add_u32 s%d, s%d, %d" % (sTC, sTC, f0 * 1024))
        mask = (1 << (8 * m)) - 1
        I("s_mov_b32 exec_lo, 0x%x" % (mask & 0xffffffff))
        I("s_mov_b32 exec_hi, 0x%x" % (mask >> 32))
        I("buffer_load_dword v%d, v%d, %s, s%d offen sc1" % (vDUM, vTCH, self.ws(), sTC))
        I("s_mov_b64 exec, -1")

    def touch_ox(self, layer):
        I = self.b.I
        I("s_and_b32 s%d, s%d, 1" % (sT + 2, sW))
        I("s_lshl_b32 s%d, s%d, 15" % (sT, sT + 2))
        I("s_add_u32 s%d, s%d, s%d" % (sT, sT, sRG64))
        I("s_add_u32 s%d, s%d, 0x%x" % (sT, sT, self.buf("X", 2 * layer)))
        I("s_mul_i32 s%d, s%d, %d" % (sT + 1, sT + 2, self.hstride("O")))
        I("s_add_u32 s%d, s%d, s%d" % (sT + 1, sT + 1, self.rgs("O")))
        I("s_add_u32 s%d, s%d, 0x%x" % (sT + 1, sT + 1, self.buf("O", layer)))
        I("s_bitcmp1_b32 s%d, 1" % sW)
        I("s_cselect_b32 s%d, s%d, s%d" % (sT, sT, sT + 1))
        I("s_lshl_b32 s%d, s%d, 12" % (sT + 1, sC))
        I("s_add_u32 s%d, s%d, s%d" % (sT, sT, sT + 1))
        I("s_mov_b32 exec_hi, 0")
        I("buffer_load_dword v%d, v%d, %s, s%d offen sc1" % (vDUM, vTCH, self.ws(), sT))
        I("s_mov_b32 exec_hi, -1")

    def touch_h(self, layer):
        I = self.b.I
        I("s_lshr_b32 s%d, s%d, 1" % (sT + 1, sW))
        I("s_mul_i32 s%d, s%d, %d" % (sT + 1, sT + 1, HSZ // 2 - 12288))
        I("s_mul_i32 s%d, s%d, 6144" % (sT + 2, sW))
        I("s_add_u32 s%d, s%d, s%d" % (sT + 1, sT + 1, sT + 2))
        I("s_mul_i32 s%d, s%d, 12288" % (sT + 2, sC))
        I("s_add_u32 s%d, s%d, s%d" % (sT + 1, sT + 1, sT + 2))
        I("s_add_u32 s%d, s%d, s%d" % (sT + 1, sT + 1, sRGH))
        I("s_add_u32 s%d, s%d, 0x%x" % (sT + 1, sT + 1, self.buf("H", layer)))
        I("s_cmp_lt_u32 s%d, 7" % sC)
        I("s_cselect_b32 s%d, s%d, 0x%x" % (sT + 1, sT + 1, OOB))
        I("s_mov_b32 exec_hi, 0xffff")
        I("buffer_load_dword v%d, v%d, %s, s%d offen sc1" % (vDUM, vTCH, self.ws(), sT + 1))
        I("s_mov_b32 exec_hi, -1")

    def kv_items(self, hf, seqs):
        items = []
        for ks in range(16):
            c0 = "0" if ks == 0 else None
            for r in range(2):
                def mfs(fr, ks=ks, r=r, c0=c0):
                    kk, kv_ = ("qkv", 0, 2 * ks), ("qkv", 0, 2 * ks + 1)
                    th = [self.mf(vACC + 8 * hf + 4 * r, fr, self.w_get(kk), c0),
                          self.mf(vACC + 16 + 8 * hf + 4 * r, fr, self.w_get(kv_), c0)]
                    if hf == 1 and r == 1:
                        th.append(lambda: (self.w_release(kk), self.w_release(kv_)))
                    return th
                a, off = self.frag_addr(seqs[ks // 2], r, ks & 1)
                items.append((a, off, seqs[ks // 2], mfs))
        self.pinned.update(seqs)
        return items

    def kv_finish(self, hf, between=None):
        b = self.b
        rd = [b.I("ds_read_b128 %s, v%d offset:%d" % (vr(vAF + 4 * k, 4), vSTA, (k & 1) * 64 + (k >> 1) * 128)) for k in range(4)]
        if between:
            between()
        b.wait(rd)
        self.kv_epilogue(hf, vAF, vAF + 8)

    def attention(self, layer, xseqs):
        b = self.b
        I = self.I
        KVD, ZD = vS1, vS2
        one = vr(vONE, 4)
        self.bg_w = 0
        for p in range(2):
            c0 = "0" if p == 0 else None
            self.mf(KVD, vr(vACC + 8 * p, 4), vr(vACC + 16 + 8 * p, 4), c0)()
            self.mf(ZD, vr(vACC + 8 * p, 4), one, c0)()
        b.I("s_add_u32 s%d, s%d, %d" % (sKB, sKV, layer * KVL))
        b.I("s_and_b32 s%d, s%d, %d" % (sKB + 1, sRG, NC - 1))
        b.I("s_mul_i32 s%d, s%d, %d" % (sKB + 1, sKB + 1, KCS))
        b.I("s_add_u32 s%d, s%d, s%d" % (sKB + 1, sKB + 1, sKB))
        for r in range(4):
            b.I("ds_write_b32 v%d, v%d" % (vPOS + r, KVD + r))
        b.I("s_mov_b32 exec_lo, 0x00010001")
        b.I("s_mov_b32 exec_hi, 0x00010001")
        b.I("ds_write_b128 v%d, %s" % (vZP, vr(ZD, 4)))
        b.I("s_mov_b64 exec, -1")
        rd = [b.I("ds_read_b32 v%d, v%d offset:%d" % (vT + k, vKVL, 256 * k)) for k in range(5)]
        for k in range(5):
            b.wait(rd[k])
            if k == 4:
                b.I("s_mov_b32 exec_hi, 0xffff")
            b.I("buffer_atomic_add_f32 v%d, v%d, %s, s%d offen offset:%d" % (vT + k, vL4, self.ws(), sKB + 1, k * 256))
        b.I("s_mov_b64 exec, -1")
        self.stamp("atom")
        if layer:
            self.touch_ox(layer)
        else:
            lp, ld, lc = b.newlabel("Lr3"), b.newlabel("Lr3d"), b.newlabel("Lr3c")
            b.wait(self.r3_tok)
            b.I("s_branch %s" % lc)
            b.label(lp)
            self.Inc("buffer_load_dword v%d, v%d, %s, s%d offen sc1" % (vPOLL, vCS1, self.ws(), sR1))
            b.I("s_waitcnt vmcnt(0)")
            b.label(lc)
            b.I("v_subrev_u32 v%d, s%d, v%d" % (vPOLL, sTAG, vPOLL))
            b.I("v_cmp_gt_u32 vcc, 16, v%d" % vPOLL)
            b.I("s_cmp_eq_u64 vcc, exec")
            b.I("s_cbranch_scc1 %s" % ld)
            self.spin_guard(lp)
            b.label(ld)
            self.stamp("r3")
            b.wait(self.tokQ)
            b.I("s_barrier")
        self.w_burst(env("W_AT", [0, 0])[layer])
        self.last_bg = self.clock
        self.bg_w = env("W_Q", [99, 16])[layer]
        items = []
        for ks in range(16):
            ds, h = ks // 2, ks & 1
            c0 = "0" if ks == 0 else None
            def keep(fr):
                self.wq_reg = fr
                return []
            items.append(("tr", self.rq_base(ks) - L_WQ, None, keep))
            for rt in range(4):
                def mfs(fr, ks=ks, rt=rt, c0=c0):
                    w = self.wq_reg
                    th = [self.mf(vACC + 4 * rt, w, fr, c0)]
                    if layer == 0 and rt == 0:
                        th.append(self.mf(vCSQ, w, one, c0))
                    return th
                if layer == 0:
                    items.append(((vX0, vX1)[h], ds * 8192 + rt * 2048, None, mfs))
                else:
                    a, off = self.frag_addr(xseqs[rt >> 1][ds], rt & 1, h)
                    items.append((a, off, None, mfs))
        assert NC == 2
        KD = vACC + 32
        dst = [(KD, KD + 8), (KD + 4, KD + 12)]
        kvl = ["buffer_load_dwordx4 %s, v%d, %s, s%d offen offset:%d sc1" % (vr(dst[c][h], 4), (vL16, vC2)[h], self.ws(), sKB, c * KCS)
               for h in range(2) for c in range(NC)]
        b.I("v_add_u32 v%d, 0x400, v%d" % (vC2, vL16))
        b.I("v_cmp_gt_u32 vcc, 12, v0")
        b.I("v_mov_b32 v%d, 0x%x" % (vT + 8, OOB))
        b.I("v_cndmask_b32 v%d, v%d, v%d, vcc" % (vC2, vT + 8, vC2))
        kp = {}

        def kv_early():
            self.bg_w = 0
            kp["tok"] = [b.I(t) for t in kvl]
        j = env("H_KVP", [79, 99])[layer]
        self.gemm(items, None, 5, {j: [kv_early]})
        self.pinned = set()
        self.mine = self.seq - 1
        PQ = vACC + 16
        for rt in range(4):
            ab = vAB + 2 * rt
            for r in (0, 2):
                u = vT + 2 * ((rt * 2 + r // 2) % 8)
                I("v_pk_fma_f32 %s, %s, %s, %s op_sel:[0,1,1] op_sel_hi:[1,1,1]" % (p2(u), p2(vCSQ + r), p2(ab), p2(vK)))
        for rt in range(4):
            ab = vAB + 2 * rt
            for r in (0, 2):
                q_ = vACC + 4 * rt + r
                u = vT + 2 * ((rt * 2 + r // 2) % 8)
                I("v_pk_fma_f32 %s, %s, %s, %s op_sel:[0,0,0] op_sel_hi:[1,0,1]" % (p2(q_), p2(q_), p2(ab), p2(u)))
        if env("H_KVP", [79, 99])[layer] == 98:
            kv_early()
        self.phi_pairs([(vACC + 4 * rt + r, PQ + 2 * rt + r // 2) for rt in range(4) for r in (0, 2)])
        self.stamp("qpass")
        self.bg_w = 0
        self.w_burst(env("W_S1", [16, 0])[layer])
        b.I("s_add_u32 s%d, s%d, s%d" % (sT + 6, self.rgs("O"), sSTO))
        b.I("s_add_u32 s%d, s%d, 0x%x" % (sT + 6, sT + 6, self.buf("O", layer)))
        b.I("s_add_u32 s%d, s%d, %d" % (sT + 7, sT + 6, self.hstride("O")))
        b.I("v_lshl_add_u32 v%d, v0, 4, v%d" % (vAF + 16, vKVL))
        b.I("v_sub_u32 v%d, v%d, v%d" % (vAF + 16, vAF + 16, vL4))
        lp, ld, lc = b.newlabel("Lkv"), b.newlabel("Lkvd"), b.newlabel("Lkvc")
        if kp:
            b.wait(kp["tok"])
            b.I("s_branch %s" % lc)
        b.label(lp)
        if kp:
            for t in kvl:
                self.Inc(t)
            b.I("s_waitcnt vmcnt(0)")
        else:
            for t in kvl:
                b.I(t)
            b.wait(vm=0)
        b.label(lc)
        for h in range(2):
            for k in (0, 2):
                b.I("v_pk_add_f32 %s, %s, %s" % (p2(vT + 8 * h + k), p2(dst[0][h] + k), p2(dst[1][h] + k)))
        b.I("ds_write_b128 v%d, %s offset:1280" % (vAF + 16, vr(vT, 4)))
        b.I("s_mov_b64 exec, 0xfff")
        b.I("ds_write_b128 v%d, %s offset:2304" % (vAF + 16, vr(vT + 8, 4)))
        b.I("s_mov_b64 exec, -1")
        lz = b.I("ds_read_b128 %s, v%d offset:1280" % (vr(vT + 4, 4), vZP))
        lt = [b.I("ds_read_b32 v%d, v%d offset:1280" % (vT + 12 + r, vPOS + r)) for r in range(4)]
        b.I("v_cmp_eq_f32 vcc, 0x42000000, v%d" % (vT + 3))
        b.I("v_cmp_eq_f32 s[%d:%d], v%d, v%d" % (sT, sT + 1, vT + 11, vT + 3))
        b.I("s_and_b64 vcc, vcc, s[%d:%d]" % (sM3, sM3 + 1))
        b.I("s_and_b32 s%d, s%d, 0x888" % (sT, sT))
        b.I("s_xor_b32 s%d, s%d, 0x888" % (sT, sT))
        b.I("s_xor_b64 vcc, vcc, s[%d:%d]" % (sM3, sM3 + 1))
        b.I("s_or_b32 s%d, s%d, vcc_lo" % (sT, sT))
        b.I("s_or_b32 s%d, s%d, vcc_hi" % (sT, sT))
        b.I("s_cbranch_scc0 %s" % ld)
        b.I("s_waitcnt lgkmcnt(0)")
        self.spin_guard(lp)
        b.label(ld)
        self.stamp("kvsync")
        b.wait(lz)
        I("v_cvt_pk_bf16_f32 v%d, v%d, v%d" % (vT + 10, vT + 4, vT + 5))
        I("v_cvt_pk_bf16_f32 v%d, v%d, v%d" % (vT + 11, vT + 6, vT + 7))
        NUM, DEN = vACC, vAF
        for rt in range(4):
            I("v_mfma_f32_16x16x16_bf16 %s, %s, %s, 0" % (vr(DEN + 4 * rt, 4), p2(vT + 10), p2(PQ + 2 * rt)))
        b.wait(lt)
        I("v_cvt_pk_bf16_f32 v%d, v%d, v%d" % (vT + 8, vT + 12, vT + 13))
        I("v_cvt_pk_bf16_f32 v%d, v%d, v%d" % (vT + 9, vT + 14, vT + 15))
        for rt in range(4):
            I("v_mfma_f32_16x16x16_bf16 %s, %s, %s, 0" % (vr(NUM + 4 * rt, 4), p2(vT + 8), p2(PQ + 2 * rt)))
        for rt in range(4):
            I("v_add_f32 v%d, s%d, v%d" % (DEN + 4 * rt, sEPS, DEN + 4 * rt))
        for rt in range(4):
            I("v_rcp_f32 v%d, v%d" % (DEN + 4 * rt, DEN + 4 * rt))
        for rt in range(4):
            for r in (0, 2):
                n_ = NUM + 4 * rt + r
                I("v_pk_mul_f32 %s, %s, %s op_sel_hi:[1,0]" % (p2(n_), p2(n_), p2(DEN + 4 * rt)))
        for rt in range(4):
            for r in (0, 2):
                I("v_cvt_pk_bf16_f32 v%d, v%d, v%d" % (vT + 2 * rt + r // 2, NUM + 4 * rt + r, NUM + 4 * rt + r + 1))
        return self.stores2([self.pair_store(vT + 4 * pr, sT + 6 + pr, 0) for pr in range(2)], layer == 0 or self.sep)

    def park_wq(self):
        b = self.b
        b.I("s_lshl_b32 s%d, s%d, 14" % (sT, sW))
        b.I("s_add_u32 s%d, s%d, 0x%x" % (sT, sT, L_WQ))
        b.I("v_add_u32 v%d, s%d, v%d" % (vWQ, sT, vL16))
        for ks in range(16):
            b.I("ds_write_b128 v%d, %s offset:%d" % (vWQ, slot_r(self.wslot[("qkv", 0, 32 + ks)][0]), ks * 1024))
        b.wait(lg=0)
        for ks in range(16):
            self.w_release(("qkv", 0, 32 + ks))

    def cs1_some(self, n):
        one = vr(vONE, 4)
        k = 0
        while k < n and self.ncs < 16 and all(("w1", 0, 3 * self.ncs + t) in self.wslot and
                                             (self.wslot[("w1", 0, 3 * self.ncs + t)][1] is None or
                                              self.wslot[("w1", 0, 3 * self.ncs + t)][1][1] < self.b.vm_done) for t in range(3)):
            for t in range(3):
                self.mf(vCS1 + 4 * t, slot_r(self.wslot[("w1", 0, 3 * self.ncs + t)][0]), one, "0" if self.ncs == 0 else None)()
            self.ncs += 1
            k += 1

    def n16_items(self, name, layer, nks, hf, seqs):
        items = []
        for ks in range(nks):
            for r in range(2):
                def mfs(fr, ks=ks, r=r):
                    th = [self.mf(vX + 8 * hf + 4 * r, self.w_get((name, layer, ks)), fr)]
                    if hf == 1 and r == 1:
                        th.append(lambda: self.w_release((name, layer, ks)))
                    return th
                a, off = self.frag_addr(seqs[ks // 2], r, ks & 1)
                items.append((a, off, seqs[ks // 2], mfs))
        return items

    def n16_full(self, name, layer, nks, seqs):
        items = []
        for k0 in range(0, nks, 4):
            for hf in range(2):
                for ks in range(k0, k0 + 4):
                    for r in range(2):
                        rt = 2 * hf + r

                        def mfs(fr, ks=ks, rt=rt):
                            th = [self.mf(vX + 4 * rt, self.w_get((name, layer, ks)), fr)]
                            if rt == 3:
                                th.append(lambda: self.w_release((name, layer, ks)))
                            return th
                        sq = seqs[hf][ks // 2]
                        a, off = self.frag_addr(sq, r, ks & 1)
                        items.append((a, off, sq, mfs))
        return items

    def x_full_store(self, idx, wt):
        I = self.b.I
        for hf in range(2):
            I("s_add_u32 s%d, s%d, s%d" % (sT + 6 + hf, sRG64, sSTO))
            I("s_add_u32 s%d, s%d, 0x%x" % (sT + 6 + hf, sT + 6 + hf, self.buf("X", idx) + hf * 32768))
        I("s_add_u32 s%d, s%d, 8192" % (sT + 8, sSTP))
        for j in range(8):
            I("v_cvt_pk_bf16_f32 v%d, v%d, v%d" % (vT + j, vX + 2 * j, vX + 2 * j + 1))
        s = vAF
        tk = self.stores2([self.pair_store(vT + 4 * hf, sT + 6 + hf, 0) for hf in range(2)], wt)
        for rt in range(4):
            I("v_pk_add_f32 %s, %s, %s" % (p2(s + 4 * rt), p2(vX + 4 * rt), p2(vX + 4 * rt + 2)))
            I("v_pk_mul_f32 %s, %s, %s" % (p2(s + 4 * rt + 2), p2(vX + 4 * rt), p2(vX + 4 * rt)))
        for rt in range(4):
            I("v_pk_fma_f32 %s, %s, %s, %s" % (p2(s + 4 * rt + 2), p2(vX + 4 * rt + 2), p2(vX + 4 * rt + 2), p2(s + 4 * rt + 2)))
        for rt in range(4):
            I("v_add_f32 v%d, v%d, v%d" % (s + 4 * rt, s + 4 * rt, s + 4 * rt + 1))
            I("v_add_f32 v%d, v%d, v%d" % (s + 4 * rt + 2, s + 4 * rt + 2, s + 4 * rt + 3))
        for hf in range(2):
            q = s + 8 * hf
            I("v_permlane32_swap_b32 v%d, v%d" % (q, q + 4))
            I("v_permlane32_swap_b32 v%d, v%d" % (q + 2, q + 6))
        for hf in range(2):
            q = s + 8 * hf
            I("v_add_f32 v%d, v%d, v%d" % (q, q, q + 4))
            I("v_add_f32 v%d, v%d, v%d" % (q + 2, q + 2, q + 6))
        for hf in range(2):
            I("v_permlane16_swap_b32 v%d, v%d" % (s + 8 * hf, s + 8 * hf + 2))
        for hf in range(2):
            I("v_add_f32 v%d, v%d, v%d" % (s + 8 * hf, s + 8 * hf, s + 8 * hf + 2))
        tk2 = self.stores2(["buffer_store_dword v%d, v%d, %s, s%d offen" % (s + 8 * hf, vL4, self.ws(), (sSTP, sT + 8)[hf])
                            for hf in range(2)], wt)
        return tk, tk2

    def x_half_now(self, idx, hf, wt):
        I = self.b.I
        x = vX + 8 * hf
        o = vT + 2
        s = o + 4
        I("s_add_u32 s%d, s%d, s%d" % (sT + 6, sRG64, sSTO))
        I("s_add_u32 s%d, s%d, 0x%x" % (sT + 6, sT + 6, self.buf("X", idx) + hf * 32768))
        I("s_add_u32 s%d, s%d, %d" % (sT + 7, sSTP, hf * 8192))
        for j in range(4):
            I("v_cvt_pk_bf16_f32 v%d, v%d, v%d" % (o + j, x + 2 * j, x + 2 * j + 1))
        for r in range(2):
            I("v_pk_add_f32 %s, %s, %s" % (p2(s + 4 * r), p2(x + 4 * r), p2(x + 4 * r + 2)))
            I("v_pk_mul_f32 %s, %s, %s" % (p2(s + 4 * r + 2), p2(x + 4 * r), p2(x + 4 * r)))
        tk = self.stores2([self.pair_store(o, sT + 6, 0)], wt)
        for r in range(2):
            I("v_pk_fma_f32 %s, %s, %s, %s" % (p2(s + 4 * r + 2), p2(x + 4 * r + 2), p2(x + 4 * r + 2), p2(s + 4 * r + 2)))
            I("v_add_f32 v%d, v%d, v%d" % (s + 4 * r, s + 4 * r, s + 4 * r + 1))
        for r in range(2):
            I("v_add_f32 v%d, v%d, v%d" % (s + 4 * r + 2, s + 4 * r + 2, s + 4 * r + 3))
        I("v_permlane32_swap_b32 v%d, v%d" % (s, s + 4))
        I("v_permlane32_swap_b32 v%d, v%d" % (s + 2, s + 6))
        I("v_add_f32 v%d, v%d, v%d" % (s, s, s + 4))
        I("v_add_f32 v%d, v%d, v%d" % (s + 2, s + 2, s + 6))
        I("v_permlane16_swap_b32 v%d, v%d" % (s, s + 2))
        I("v_add_f32 v%d, v%d, v%d" % (s, s, s + 2))
        tk += self.stores2(["buffer_store_dword v%d, v%d, %s, s%d offen" % (s, vL4, self.ws(), sT + 7)], wt)
        return self.new_pub(tk)

    def x_half_store(self, idx, hf, wt, delay):
        x = vX + 8 * hf
        o = vT + 1
        o += o & 1
        tk = []
        k, fl = self.new_pub(tk)
        s = o + 4
        e = ["s_add_u32 s%d, s%d, s%d" % (sT + 6, sRG64, sSTO),
             "s_add_u32 s%d, s%d, 0x%x" % (sT + 6, sT + 6, self.buf("X", idx) + hf * 32768),
             "s_add_u32 s%d, s%d, %d" % (sT + 7, sSTP, hf * 8192), 2]
        e += ["v_cvt_pk_bf16_f32 v%d, v%d, v%d" % (o + j, x + 2 * j, x + 2 * j + 1) for j in range(4)]
        for r in range(2):
            e += ["v_add_f32 v%d, v%d, v%d" % (s + 2 * r, x + 4 * r, x + 4 * r + 1),
                  "v_mul_f32 v%d, v%d, v%d" % (s + 2 * r + 1, x + 4 * r, x + 4 * r)]
        e.append(lambda: tk.extend(self.stores2([self.pair_store(o, sT + 6, 0)], wt)))
        for q in (1, 2, 3):
            for r in range(2):
                if q > 1:
                    e.append("v_add_f32 v%d, v%d, v%d" % (s + 2 * r, s + 2 * r, x + 4 * r + q))
                e.append("v_fmac_f32 v%d, v%d, v%d" % (s + 2 * r + 1, x + 4 * r + q, x + 4 * r + q))
        e += [1, "v_permlane32_swap_b32 v%d, v%d" % (s, s + 2), "v_permlane32_swap_b32 v%d, v%d" % (s + 1, s + 3), 1,
              "v_add_f32 v%d, v%d, v%d" % (s, s, s + 2), "v_add_f32 v%d, v%d, v%d" % (s + 1, s + 1, s + 3), 1,
              "v_permlane16_swap_b32 v%d, v%d" % (s, s + 1), 1, "v_add_f32 v%d, v%d, v%d" % (s, s, s + 1),
              lambda: tk.extend(self.stores2(["buffer_store_dword v%d, v%d, %s, s%d offen" % (s, vL4, self.ws(), sT + 7)], wt))]
        if delay is not None:
            e += [delay, fl]
        return k, e, fl

    def out_half_store(self, hf):
        x = vX + 8 * hf
        o = vT + 4 * hf
        e = ["s_add_u32 s%d, s%d, s%d" % (sT + 6, sRG64, sOUT), "s_add_u32 s%d, s%d, %d" % (sT + 6, sT + 6, hf * 32768), 2]
        e += ["v_cvt_pk_bf16_f32 v%d, v%d, v%d" % (o + j, x + 2 * j, x + 2 * j + 1) for j in range(4)]
        e += [1, "v_permlane16_swap_b32 v%d, v%d" % (o, o + 2), "v_permlane16_swap_b32 v%d, v%d" % (o + 1, o + 3),
              "buffer_store_dwordx4 %s, v%d, s[%d:%d], s%d offen%s" % (vr(o, 4), vOA, R_OUT, R_OUT + 3, sT + 6, env("OUTPOL", ""))]
        return e

    def p3_items(self, layer, seqs):
        items = []
        one = vr(vONE, 4)
        for ks in range(16):
            c0 = "0" if ks == 0 else None
            for rt in range(4):
                def mfs(fr, ks=ks, rt=rt, c0=c0):
                    th = []
                    for t in range(3):
                        w = self.w_get(("w1", layer, 3 * ks + t))
                        th.append(self.mf(vACC + 24 * (rt >> 1) + 8 * t + 4 * (rt & 1), w, fr, c0))
                        if layer == 0 and rt == 0 and ks >= self.ncs:
                            th.append(self.mf(vCS1 + 4 * t, w, one, c0))
                    if rt == 3:
                        th.append(lambda: [self.w_release(("w1", layer, 3 * ks + t)) for t in range(3)])
                    return th
                sq = seqs[rt >> 1][ks // 2]
                a, off = self.frag_addr(sq, rt & 1, ks & 1)
                items.append((a, off, sq, mfs))
        return items

    def silu(self, layer, hf, mid=None):
        b = self.b
        I = self.I
        for t in range(3):
            b.I("s_add_u32 s%d, s%d, 0x%x" % (sT + 6 + t, sH0 + t, self.buf("H", layer) + hf * (HSZ // 2)))
        sts = []
        for t in range(3):
            A = vACC + 24 * hf + 8 * t
            u = vT + 8 * (t & 1)
            for f in (mid or {}).get(t, []):
                f()
            for j in range(4):
                I("v_pk_mul_f32 %s, %s, %s op_sel:[0,1] op_sel_hi:[1,1]" % (
                    p2(u + 2 * j), p2(vCS1 + 4 * t + 2 * (j & 1)), p2(vAB + 4 * hf + 2 * (j >> 1))))
            for j in range(4):
                I("v_pk_fma_f32 %s, %s, %s, %s op_sel:[0,0,0] op_sel_hi:[1,0,1]" % (
                    p2(A + 2 * j), p2(A + 2 * j), p2(vAB + 4 * hf + 2 * (j >> 1)), p2(u + 2 * j)))
            for k in range(8):
                I("v_exp_f32 v%d, v%d" % (u + k, A + k))
            for j in range(4):
                I("v_pk_fma_f32 %s, %s, %s, %s op_sel:[0,0,0] op_sel_hi:[1,0,0] neg_lo:[0,1,1] neg_hi:[0,1,1]" % (
                    p2(u + 2 * j), p2(u + 2 * j), p2(vK), p2(vK)))
            for k in range(8):
                I("v_rcp_f32 v%d, v%d" % (u + k, u + k))
            for j in range(4):
                I("v_pk_mul_f32 %s, %s, %s" % (p2(A + 2 * j), p2(A + 2 * j), p2(u + 2 * j)))
            for j in range(4):
                I("v_cvt_pk_bf16_f32 v%d, v%d, v%d" % (A + j, A + 2 * j, A + 2 * j + 1))
            sts += self.stores2([self.pair_store(A, sT + 6 + t, 0)], 2 if layer == 1 and hf in env('WTH', []) else layer == 0 or self.sep)
        return sts

    def body(self):
        b = self.b
        for layer in range(2):
            R1, R2 = env("REV", (6, 43))
            if layer == 0:
                R1, R2 = 48, 43
            self.w_enqueue("w1", layer, F_W1, 48, range(47, R1 - 1, -1))
            self.w_enqueue("wo", layer, F_WO, 16)
            self.w_enqueue("w1", layer, F_W1, 48, range(R1))
            self.w_enqueue("w2", layer, F_W2, 43, range(42, R2 - 1, -1))
            self.w_enqueue("w2", layer, F_W2, 43, range(R2))
        AF = env("AFIRST", 12)
        G8c = env("G8C", [2, 2, 2, 2])
        G8w = env("G8W", [4, 4])
        G22 = env("G22", [2, 2, 2, 2, 2, 4, 4, 4])
        st = {}
        PA, PB = env("PA", [60, 62]), env("PB", [75, 78])
        self.pace_w = PA[0]
        self.startup()
        xs = None
        for layer in range(2):
            self.pace_w = PA[layer]
            tk = self.attention(layer, xs)
            k_o, fl = self.new_pub(tk)
            self.w_burst(env("W_PUB", [0, 0])[layer])
            fl()
            self.stamp("o_pub")
            self.poll_shadow(k_o, env("NCS", [0, 0])[0] if layer == 0 else 0)
            self.stamp("o_rdy")
            wt = 2 if layer == 1 and env('WTX', 0) else layer == 0 or self.sep
            D16, PW = env("D16", 9), env("PAIRW", True)
            n0 = self.seq
            oo = self.queue_both("O", layer, 8, self.aq)
            self.a_burst(env("AF2", 10))
            self.bg_w = env("W_P2", [12, 10])[layer]
            self.gemm(self.n16_full("wo", layer, 16, oo), self.split(list(range(n0, n0 + 16)), env("G16", [2, 2, 4, 4, 4])), D16,
                      pairw=PW)
            self.bg_w = 0
            self.stamp("p2")
            tk1, tk2 = self.x_full_store(2 * layer, wt)
            k_x, fl_x = self.new_pub(tk1)
            k_s, fl_s = self.new_pub(tk2)
            self.w_burst(env("W_PUB2", [4, 0])[layer])
            fl_x()
            self.stamp("x_pub")
            self.poll_shadow(k_x, env("NCS", [0, 0])[1] if layer == 0 else 0)
            self.stamp("x_rdy")
            poll = lambda: st.update(tok=self.poll_issue())

            def when(k, plan, burst=0):
                def f():
                    self.poll_check(k() if callable(k) else k, st["tok"])
                    self.aq += plan
                    self.a_burst(burst)
                return f
            n0 = self.seq
            xx = self.queue_both("X", 2 * layer, 8, self.aq)
            hold = self.seq
            pl_s = []
            sa = self.queue_stats(0, pl_s)
            sb = self.queue_stats(1, pl_s)
            if layer or FT:
                th = lambda: self.touch_h(layer)
                th.seq = -1
                th.prep = []
                pl_s.append(th)
            if layer and env("TOUT", 0):
                def tout():
                    b.I("v_lshlrev_b32 v%d, 10, v0" % vT)
                    b.I("s_lshl_b32 s%d, s%d, 7" % (sT + 1, sC))
                    b.I("s_lshl_b32 s%d, s%d, 14" % (sT + 2, sW))
                    b.I("s_add_u32 s%d, s%d, s%d" % (sT + 1, sT + 1, sT + 2))
                    b.I("s_add_u32 s%d, s%d, s%d" % (sT + 1, sT + 1, sRG64))
                    b.I("s_mov_b64 exec, 0xffff")
                    b.I("buffer_load_dword v%d, v%d, s[%d:%d], s%d offen sc1" % (vDUM, vT, R_OUT, R_OUT + 3, sT + 1))
                    b.I("s_mov_b64 exec, -1")
                tout.seq = -1
                tout.prep = []
                pl_s.insert(0, tout)
            self.a_burst(4)
            fl_s()
            self.a_burst(env("AF3", 8) - 4)
            self.bg_w = 0
            self.pace_w = PB[layer]
            groups = self.split(list(range(n0, n0 + 16)), env("G3", [4, 4, 8])) + [[hold]]
            hooks, pre, post = {}, {}, {}
            s1a, bba = self.stats_stage1(sa, 0)
            s1b, bbb = self.stats_stage1(sb, 1)
            j = env("H_ST", 8)
            hooks[j] = [poll]
            hooks[j + 6] = [when(k_s, pl_s), lambda: setattr(self, "bg_w", 99)]
            hooks[j + 18] = [lambda: self.side.extend(s1a + s1b)]

            def exch():
                bba()
                bbb()
                b.I("s_barrier")
                self.side.extend(self.stats_stage2(0, True, False) + self.stats_stage2(1, True, False))
            hooks[env("H_EX", 46)] = [exch]
            groups.pop()
            self.gemm(self.p3_items(layer, xx), groups, 6, hooks, pre, post, pairw=True)
            self.pinned = set()
            self.mine = self.seq - 1
            self.bg_w = env("W_SILU", [0, 0])[layer]
            self.stamp("p3")
            k_ha, fl_ha = self.new_pub(self.silu(layer, 0))
            self.bg_w = 0
            pl_ha, pl_hb, pl_ya = [], [], []
            ha = self.queue_half("H", layer, 0, 22, pl_ha)
            hb = self.queue_half("H", layer, 1, 22, pl_hb)

            def ha_go():
                self.stamp("silu")
                self.poll_check(k_ha)
                self.stamp("ha_rdy")
                self.aq += pl_ha
                self.a_burst(env("AF4", 4))
            SPL = env("SPLIT", 0)
            mid = {env("MID", 1): [fl_ha]}
            if SPL:
                mid.setdefault(2, []).append(ha_go)
            tkb = self.silu(layer, 1, mid)
            k_hb, fl_hb = self.new_pub(tkb)
            if not SPL:
                ha_go()
                fl_hb()
            if layer == 1 and "x" in env("CLEAN", ""):
                for j in range(8):
                    b.I("v_cvt_pk_bf16_f32 v%d, v%d, v%d" % (vT + j, vX + 2 * j, vX + 2 * j + 1))
                st["cx"] = []
                for hf in range(2):
                    b.I("s_add_u32 s%d, s%d, s%d" % (sT + 9 + hf, sRG64, sSTO))
                    b.I("s_add_u32 s%d, s%d, 0x%x" % (sT + 9 + hf, sT + 9 + hf, self.buf("X", 2) + hf * 32768))
                    st["cx"] += [self.pair_store(vT + 4 * hf, sT + 9 + hf, 0) + " sc1", 6]
                self.side += [30] + st["cx"]
            self.a_burst(AF - (self.seq_issued() - ha[0]))
            self.bg_w = 99
            j = env("H_P4A", 24)
            self.alead = env("ALEAD4", 16)
            self.pace_w = PA[1]
            items = self.n16_items("w2", layer, 43, 0, ha) + self.n16_items("w2", layer, 43, 1, hb)
            groups = self.split(ha, env("G22C", [2, 2, 4, 4, 4, 6])) + self.split(hb, G22)
            hooks = {j: [poll], j + env('CK4', 12): [when(k_hb, pl_hb, env('BU_HB', 4))]}
            if SPL:
                hooks[env("H_FLB", 6)] = [fl_hb]
            pre, post = {}, {}
            if layer == 0:
                sa = self.queue_stats(0, pl_ya)
                ya = self.queue_half("X", 1, 0, 8, pl_ya, rot=True)

                def y_out(hf, delay):
                    def f():
                        self.stamp("p4a" if hf == 0 else "p4b")
                        st["k_y%d" % hf], st["fl_y%d" % hf] = self.x_half_now(1, hf, self.sep)
                        self.pace_w = PA[1]
                        if hf:
                            self.alead = env("ALEAD", 99)
                    return f
                j = 86 + env("H_P4B", 44)
                hooks.update({87: [y_out(0, 0)], 87 + env("D_Y0", 22): [lambda: st["fl_y0"]()],
                              172 + env("D_Y1", 10): [lambda: st["fl_y1"]()], j: [poll], j + env('CK4', 12): [when(lambda: st["k_y0"], pl_ya, env("BU_YA", 6))], 172: [y_out(1, 0)],
                              172 + env("H_P1A", 24): [poll]})
                ng = len(groups)
                groups += self.split(ya, env("G8K", [2, 4, 2]))
                self.stats_hooks(sa, 0, False, True, 173, ng + 2, hooks, pre, post)
                items += self.kv_items(0, ya)
            else:
                hooks[85] = [lambda: (self.stamp("p4a"), self.side.extend(self.out_half_store(0)))]
                CL = env("CLEAN", "")

                def clean_h(hf):
                    e = []
                    for t in range(3):
                        e += ["s_add_u32 s%d, s%d, 0x%x" % (sT + 8, sH0 + t, self.buf("H", layer) + hf * (HSZ // 2)),
                              "buffer_store_dwordx4 %s, v%d, %s, s%d offen sc1" % (vr(vACC + 24 * hf + 8 * t, 4), vST, self.ws(), sT + 8), 4]
                    return lambda: self.side.extend(e)
                if "a" in CL:
                    hooks.setdefault(86 + env("H_CLA", 12), []).append(clean_h(0))
                if "b" in CL:
                    hooks.setdefault(86 + env("H_CLB", 60), []).append(clean_h(1))
            self.gemm(items, groups, D16, hooks, pre, post, pairw=PW)
            if layer == 0:
                self.stamp("p1a")
                pl = []
                sb = self.queue_stats(1, pl)
                yb = self.queue_half("X", 1, 1, 8, pl, rot=True)
                pl = pl[2:6] + pl[:2] + pl[6:]

                def go():
                    self.poll_check(st["k_y1"], st["tok"])
                    self.stamp("yb_rdy")
                    self.aq += pl
                    self.a_burst(env('AF1', 6))
                self.kv_finish(0, go)
                hooks, pre, post = {}, {}, {}
                self.stats_hooks(sb, 1, False, True, 0, 1, hooks, pre, post)
                self.gemm(self.kv_items(1, yb), self.split(yb, env('G1B', [4, 4])), 8, hooks, pre, post, pairw=True)
                self.kv_finish(1)
                self.stamp("p1b")
                xs = [ya, yb]
            else:
                self.stamp("p4b")
                self.side = self.out_half_store(1)
                self.side_flush()
                lx = b.newlabel("Lep")
                b.I("s_or_b32 s%d, s2, s%d" % (sT, sW))
                b.I("s_cbranch_scc1 %s" % lx)
                b.I("s_add_u32 s%d, s%d, 16" % (sT, sEP))
                b.I("v_mov_b32 v%d, s%d" % (vT + 9, sT))
                b.I("s_mov_b32 s%d, 0x%x" % (sT, WS_EP))
                b.I("s_mov_b64 exec, 1")
                self.Inc("buffer_store_dword v%d, off, %s, s%d sc1" % (vT + 9, self.ws(), sT))
                b.I("s_mov_b64 exec, -1")
                b.label(lx)
                self.stamp("end")
        if self.diag:
            b.I("s_lshl_b32 s%d, s2, 2" % sT)
            b.I("s_add_u32 s%d, s%d, s%d" % (sT, sT, sW))
            b.I("s_lshl_b32 s%d, s%d, 8" % (sT, sT))
            b.I("s_add_u32 s%d, s%d, 0x%x" % (sT, sT, WS_STAMP))
            b.I("buffer_store_dword v%d, v%d, %s, s%d offen" % (vSTAMP, vL4, self.ws(), sT))
            if env("RT", 0):
                b.I("s_add_u32 s%d, s%d, 0x40000" % (sT, sT))
                b.I("buffer_store_dword v255, v%d, %s, s%d offen" % (vL4, self.ws(), sT))
        if self.diag and env("PROBE", 0):
            lx, lp = b.newlabel("Lpr"), b.newlabel("Lprl")
            i0, i1 = [61 if n == "entry" else [i for i, m in enumerate(self.stamp_names) if m == n[0]][n[1]] for n in env("PROBE", 0)]
            b.I("s_cmp_lg_u32 s2, %d" % env("PWG", 100))
            b.I("s_cbranch_scc1 %s" % lx)
            b.I("v_readlane_b32 s%d, v%d, %d" % (sT, vSTAMP, i0))
            b.I("v_readlane_b32 s%d, v%d, %d" % (sT + 1, vSTAMP, i1))
            b.I("v_readlane_b32 s%d, v%d, %d" % (sT + 2, vSTAMP, len(self.stamp_names) - 1))
            b.I("s_sub_u32 s%d, s%d, s%d" % (sT + 1, sT + 1, sT))
            b.I("s_mul_i32 s%d, s%d, %d" % (sT + 1, sT + 1, env("PMUL", 1)))
            b.I("s_add_u32 s%d, s%d, 4800" % (sT + 1, sT + 1))
            b.label(lp)
            b.I("s_memtime s[94:95]")
            b.I("s_waitcnt lgkmcnt(0)")
            b.I("s_sub_u32 s%d, s94, s%d" % (sT, sT + 2))
            b.I("s_cmp_lt_u32 s%d, s%d" % (sT, sT + 1))
            b.I("s_cbranch_scc1 %s" % lp)
            b.label(lx)
        b.label("L_end")
        b.I("s_endpgm")
        for t in self.cold:
            b.raw(t)

    def emit(self):
        self.body()
        head = """; @launch grid=(256,1,1) block=(256,1,1) lds=%d
; persistent fused kernel: 32 row groups (64 rows) x 8 column groups (generated by my own script)
.amdgcn_target "amdgcn-amd-amdhsa--gfx950"
.text
.globl %s_kernel
.p2align 8
.type %s_kernel,@function
%s_kernel:
""" % (LDS_BYTES, NAME, NAME, NAME)
        tail = """.section .rodata,"a"
.p2align 6
.amdhsa_kernel %s_kernel
  .amdhsa_next_free_vgpr 512
  .amdhsa_next_free_sgpr 102
  .amdhsa_accum_offset 256
  .amdhsa_group_segment_fixed_size 0
  .amdhsa_kernarg_size 72
  .amdhsa_user_sgpr_count 2
  .amdhsa_user_sgpr_kernarg_segment_ptr 1
  .amdhsa_system_sgpr_workgroup_id_x 1
.end_amdhsa_kernel
""" % NAME
        return head + self.b.text() + tail


if __name__ == "__main__":
    import argparse
    ap = argparse.ArgumentParser()
    ap.add_argument("-o", default="cdna_kernels/%s.s" % NAME)
    ap.add_argument("--diag", action="store_true")
    ap.add_argument("--sep", action="store_true")
    a = ap.parse_args()
    g = Gen(a.diag, a.sep)
    txt = g.emit()
    if a.diag:
        txt = txt.replace(".amdgcn_target", "; stamps: " + ",".join(g.stamp_names) + "\n.amdgcn_target", 1)
    open(a.o, "w").write(txt)
    print("instructions", g.b.nins, "nops", g.b.nops, file=sys.stderr)
```

```python
import sys
import os
sys.path.insert(0, os.path.dirname(os.path.abspath(__file__)))
from asmb import Builder, vr

NAME = "interleave_layers__linear_attn_block__dense_activation_silu__prompt"


def env(name, default):
    v = os.environ.get(name)
    return default if v is None else eval(v)


PKW = 107 * 1024
WS_FL = 0x380000
WS_EP = 0x390000
WS_R2 = 0x398000
WS_KV = 0x480000
NC = env('NC', 2)
KCS = env('KCS', 1344)
KVH = NC * KCS
KVL = 32 * KVH
KB0 = env('KB0', 0)
WS_R3 = 0x3D0000
WS_ST = 0x400000
WS_O = 0x600000
WS_X = 0x800000
WS_H = 0xA00000
HSZ = 22 * 8192
WS_STAMP = 0x3000000
WS_SIZE = 0x3100000 if '--diag' in sys.argv else 0x1000000
OOB = 0x4000000 if '--diag' in sys.argv else 0x1000000
F_WO, F_W1, F_W2 = 0, 16, 64

L_RING = 65536
L_RQ = 106496
L_WQ = 81920
L_PACK = 131072
L_KVI = 147456
L_STA = 157696
L_EX = 158720
NR = env('NR', 8)
NSLOT = 20
LDS_BYTES = 163840

S_X, S_WQ, S_WO, S_W1, S_W2, S_OUT, S_DBG, S_WS = 4, 6, 8, 12, 14, 16, 18, 20
R_X, R_WQ, R_WS, R_OUT, R_PK = 24, 28, 32, 36, 44
sR1, sQ, sTC, sTAG, sEP = 3, 10, 11, 22, 23
sROT, sSTP, sSTC, sW1K = 40, 41, 42, 43
sRG, sC, sW, sFAST, sPK, sKV, sFL, sRG64, sRGH, sSTO = 48, 49, 50, 51, 52, 53, 54, 55, 56, 57
sH0 = 58
sSPIN = 61
sEPS = 62
sOUT = 63
sXS = 64
sRB2, sRO2 = 65, 66
sM1, sM2, sM3, sDIAG = 68, 70, 72, 74
sT = 76
sKB = 88
sPKC, sXCC, sMYF, sW2K, sAB, sAO = 96, 97, 98, 99, 100, 101

vL16, vA1, vKVL, vDMA, vST = 1, 2, 3, 4, 5
vX0, vX1, vOW0, vOW1, vTR, vXS0, vXS1, vWS = 6, 7, 8, 9, 10, 11, 12, 13
vWQ = 13
vSB, vEX, vSWR, vOA = 8, 9, 10, 11
vFL, vL4, vSTAMP, vSTA, vSTQ, vC2 = 14, 15, 16, 17, 18, 19
vX = 20
vCSQ, vCSK, vCSV = 36, 40, 42
vCS1 = 44
vONE = 56
vACC = 60
vAF = 108
NAF = 10
vAB = 148
vT = 156
vPOS = 172
vZP, vSW, vDUM, vTCH, vPOLL, vDM2 = 176, 177, 178, 179, 180, 181
vK = 182
vS1, vS2 = 184, 188
vTQ = 195
vW1 = 192
SLOTS = [("a", 4 * i) for i in range(64)] + [("v", 196 + 4 * i) for i in range(15)]
PACE = env("PACE", 36)
FT = env("FTOUCH", 1)
WMIN = env("WMIN", 10)
AMIN = env("AMIN", 5)
RDSLACK = env("RDSLACK", 2)
SIDEMIN = env("SIDEMIN", 1)
COST = {"mfma": 16, "trans": 8, "ds": 4, "valu": 4, "perm": 4, "dpp": 4, "rdlane": 4, "wrlane": 4, "salu": 2, "vmem": 8}
K_L2E = "op_sel:[0,0] op_sel_hi:[1,0]"


def slot_r(s):
    return vr(s[1], 4, s[0])


def p2(r):
    return "v[%d:%d]" % (r, r + 1)


class Gen:
    def __init__(self, diag=False, sep=False):
        self.b = Builder()
        self.diag = diag
        self.sep = sep
        self.free = list(SLOTS[:-1] if env('RT', 0) else SLOTS)
        self.wq = []
        self.wslot = {}
        self.pk_cur = None
        self.nstamp = 0
        self.stamp_names = []
        self.aq = []
        self.atok = {}
        self.seq = 0
        self.consumed = -1
        self.mine = -1
        self.pub_mine = {}
        self.clock = 0
        self.last_bg = -1000
        self.bg_w = 0
        self.pace_w = 70
        self.in_bg = False
        self.npub = 0
        self.ncs = 0
        self.gstamp = False
        self.vclock = {}
        bI, bw = self.b.I, self.b.wait

        def I2(t):
            tok = bI(t)
            if tok and tok[0] == "vm":
                self.vclock[tok[1]] = self.clock
            return tok

        def w2(*toks, **kw):
            if os.environ.get("SLACK"):
                flat = []
                for t in toks:
                    if t is None:
                        continue
                    flat += t if isinstance(t, list) else [t]
                v = [i for k, i in flat if k == "vm" and i >= self.b.vm_done]
                if v:
                    d = self.clock - self.vclock.get(max(v), 0)
                    if d < int(os.environ["SLACK"]):
                        print("   slack %4d at clock %d (after %s)" % (d, self.clock, self.last_stamp), file=sys.stderr)
            return bw(*toks, **kw)
        self.b.I, self.b.wait = I2, w2
        self.last_stamp = ""
        self.flagged = set()
        self.cold = []
        self.slotted = False
        self.prepped = None
        self.wprep = []
        self.pinned = set()
        self.side = []
        self.side_rate = 2
        self.w_issued = 0
        self.w_need = 0
        self.w_cur = None
        self.w_index = {}
        self.wlead = env('WLEAD', 14)
        self.cur_seq = 0
        self.alead = env('ALEAD', 99)

    def I(self, t):
        tok = self.b.I(t)
        k = self.b.hists[0][-1].kind if self.b.hists and self.b.hists[0] else "salu"
        self.clock += COST.get(k, 4)
        if not self.in_bg and not self.slotted and k in ("mfma", "valu", "trans"):
            c = self.bg_pick()
            if c is not None and c[1]:
                self.bg_emit(c[0], True)
        return tok

    def side_step(self, n):
        self.in_bg = True
        done = 0
        while n > 0 and self.side:
            e = self.side[0]
            if isinstance(e, int):
                if e <= 1:
                    self.side.pop(0)
                else:
                    self.side[0] = e - 1
                break
            self.side.pop(0)
            if isinstance(e, str):
                self.b.I(e)
            else:
                e()
            n -= 1
            done += 1
        self.in_bg = False
        return done

    def side_flush(self):
        while self.side:
            self.side_step(1000)

    def bg_pick(self):
        a_ok = self.aq and self.aq[0].seq - NSLOT <= self.consumed
        w_ok = self.bg_w > 0 and self.wq and self.free
        same = w_ok and self.wq[0][0][:2] == self.w_cur
        el = self.clock - self.last_bg
        if self.prepped == "A" and a_ok:
            return "A", el >= PACE or self.aq[0].seq - self.cur_seq < AMIN
        if a_ok and getattr(self.aq[0], "urgent", False):
            return "A", True
        if same and self.w_issued - self.w_need < WMIN:
            return "W", True
        if a_ok and w_ok:
            a_lead = self.aq[0].seq - self.cur_seq
            if a_lead > self.alead or (same and self.w_issued - self.w_need < self.wlead and a_lead > 3):
                a_ok = False
        if a_ok:
            return "A", el >= PACE or self.aq[0].seq - self.cur_seq < AMIN
        if w_ok:
            return "W", el >= self.pace_w
        return None

    def bg_prep_list(self, kind):
        if kind == "A":
            return self.aq[0].prep
        grp = self.wq[0][1] // 4
        if self.pk_cur != grp and not os.environ.get("NOW"):
            self.pk_cur = grp
            self.wprep = ["s_add_u32 s%d, s%d, 0x%x" % (sPKC, sPK, grp * 4096)]
        return self.wprep

    def bg_emit(self, kind, inline):
        self.in_bg = True
        if kind == "A":
            self.a_pop()
        else:
            self.w_issue()
            self.bg_w -= 1
        self.last_bg = self.clock
        self.in_bg = False

    def a_pop(self):
        th = self.aq.pop(0)
        while th.prep:
            self.b.I(th.prep.pop(0))
        th()
        self.prepped = None

    def slot_fill(self, rd_lag, issue_read):
        c = self.bg_pick()
        if c is not None and c[1] and rd_lag <= RDSLACK and not self.bg_prep_list(c[0]):
            self.bg_emit(c[0], False)
            self.clock += 8
            return
        budget = 2
        if rd_lag > 0:
            issue_read()
            budget -= 1
            if rd_lag > 1:
                issue_read()
                budget -= 1
        if c is not None:
            pl = self.bg_prep_list(c[0])
            while budget > 0 and pl:
                self.b.I(pl.pop(0))
                budget -= 1
                if c[0] == "A":
                    self.prepped = "A"
        self.side_step(max(budget, SIDEMIN))

    def Inc(self, t):
        self.b.I(t)
        self.b.vm_issued -= 1

    def stamp(self, name):
        self.last_stamp = name
        if os.environ.get("WLOG"):
            print("%-8s clock %6d  wq left %3d next %s free %d aq %d" % (
                name, self.clock, len(self.wq), self.wq[0][0] if self.wq else None, len(self.free), len(self.aq)), file=sys.stderr)
        if not self.diag:
            return
        b = self.b
        k = self.nstamp
        self.nstamp += 1
        assert k < 62
        b.comment("stamp %d %s" % (k, name))
        b.I("s_memtime s[94:95]")
        b.wait(lg=0)
        b.I("v_writelane_b32 v%d, s94, %d" % (vSTAMP, k))
        if env("RT", 0):
            b.I("s_memrealtime s[94:95]")
            b.wait(lg=0)
            b.I("v_writelane_b32 v255, s94, %d" % k)
        if name in ("start", "end"):
            b.I("s_memrealtime s[94:95]")
            b.wait(lg=0)
            b.I("v_writelane_b32 v%d, s94, %d" % (vSTAMP, 62 if name == "start" else 63))
        self.stamp_names.append(name)

    def buf(self, kind, idx):
        base = {"O": WS_O if self.sep else WS_H, "X": WS_X, "H": WS_H}[kind]
        return base + (idx * 0x1000000 if self.sep else 0)

    def hstride(self, kind):
        return HSZ // 2 if self.rgs(kind) == sRGH else 32768

    def rgs(self, kind):
        return sRGH if kind == "H" or (kind == "O" and not self.sep) else sRG64

    def srd(self, r, ptr, size):
        I = self.b.I
        I("s_mov_b32 s%d, s%d" % (r, ptr))
        I("s_and_b32 s%d, s%d, 0xffff" % (r + 1, ptr + 1))
        I("s_mov_b32 s%d, 0x%x" % (r + 2, size))
        I("s_mov_b32 s%d, 0x20000" % (r + 3))

    def ws(self):
        return "s[%d:%d]" % (R_WS, R_WS + 3)

    def w_enqueue(self, name, layer, f0, n, order=None):
        for i in (range(n) if order is None else order):
            self.w_index[(name, layer, i)] = len(self.w_index)
            self.wq.append(((name, layer, i), f0 + i))

    def w_issue(self):
        key, f = self.wq.pop(0)
        s = self.free.pop(0)
        self.w_issued += 1
        if os.environ.get("NOW"):
            self.wslot[key] = (s, None)
            return
        grp = f // 4
        while self.wprep:
            self.b.I(self.wprep.pop(0))
        if self.pk_cur != grp:
            self.b.I("s_add_u32 s%d, s%d, 0x%x" % (sPKC, sPK, grp * 4096))
            self.pk_cur = grp
        va = vW1 + key[2] % 3 if key[0] == "w1" and env("SKIPW1", 1) else vL16
        if os.environ.get("FAKEW"):
            self.b.I("s_mov_b32 s%d, s%d" % (sPKC, sPK))
        tok = self.b.I("buffer_load_dwordx4 %s, v%d, %s, s%d offen offset:%d sc1%s" % (
            slot_r(s), va, self.ws(), sPKC, (f % 4) * 1024, " nt" if env("NT", lambda k: False)(key) else ""))
        self.wslot[key] = (s, tok)

    def w_burst(self, n):
        k = 0
        while k < n and self.wq and self.free:
            self.w_issue()
            k += 1
        self.last_bg = self.clock

    def w_get(self, key):
        self.w_need = max(self.w_need, self.w_index.get(key, 0))
        self.w_cur = key[:2]
        if key not in self.wslot:
            print("WARNING: late W load", key, file=sys.stderr)
        while key not in self.wslot:
            assert self.wq and self.free, "no free slot for %s" % (key,)
            self.w_issue()
        s, tok = self.wslot[key]
        self.b.wait(tok)
        return slot_r(s)

    def w_release(self, key):
        s, _ = self.wslot.pop(key)
        self.free.append(s)

    def stores2(self, texts, wt=False):
        b = self.b
        if wt == 2 or (wt and not FT):
            return [b.I(t + " sc1") for t in texts]
        ls, lj = b.newlabel("Lslow"), b.newlabel("Ljoin")
        b.I("s_cmp_eq_u32 s%d, 1" % sFAST)
        b.I("s_cbranch_scc0 %s" % ls)
        b.saved.pop(ls)
        toks = [b.I(t) for t in texts]
        b.raw(lj + ":")
        self.cold += [ls + ":"] + ["    " + t + " sc1" for t in texts] + ["    s_branch " + lj]
        return toks

    def pair_store(self, p, sreg, off):
        for k in range(2):
            self.b.I("v_permlane16_swap_b32 v%d, v%d" % (p + k, p + 2 + k))
        return "buffer_store_dwordx4 %s, v%d, %s, s%d offen offset:%d" % (vr(p, 4), vST, self.ws(), sreg, off)

    def spin_guard(self, lab_loop):
        b = self.b
        b.I("s_sub_u32 s%d, s%d, 1" % (sSPIN, sSPIN))
        b.I("s_cmp_lg_u32 s%d, 0" % sSPIN)
        b.I("s_cbranch_scc1 %s" % lab_loop)
        b.I("s_branch L_end")

    def new_pub(self, toks):
        self.npub += 1
        k = self.npub
        self.pub_mine[k] = self.mine

        def flag():
            b = self.b
            b.I("s_add_u32 s%d, s%d, %d" % (sT, sTAG, k))
            b.I("v_mov_b32 v%d, s%d" % (vC2, sT))
            b.wait(toks)
            b.I("s_mov_b64 exec, 1")
            self.stores2(["buffer_store_dword v%d, off, %s, s%d" % (vC2, self.ws(), sMYF)])
            b.I("s_mov_b64 exec, -1")
            self.flagged.add(k)
        return k, flag

    def poll_issue(self):
        return self.b.I("buffer_load_dword v%d, v%d, %s, s%d offen sc1" % (vPOLL, vFL, self.ws(), sFL))

    def poll_shadow(self, k, ncs):
        if not ncs:
            return self.poll_check(k)
        tok = self.poll_issue()
        self.cs1_some(ncs)
        self.poll_check(k, tok)
        self.b.wait(vm=0)

    def poll_check(self, k, tok=None):
        b = self.b
        if k not in self.flagged:
            print("WARNING: side stream late for flag", k, file=sys.stderr)
        while k not in self.flagged:
            assert self.side, "flag %d never raised before its poll" % k
            self.side_step(1)
        lp, ld, lc = b.newlabel("Lpoll"), b.newlabel("Lpd"), b.newlabel("Lpc")
        b.I("s_add_u32 s%d, s%d, %d" % (sT, sTAG, k))
        if tok is None and env("DPOLL", 0):
            ld_ = "buffer_load_dword v%%d, v%d, %s, s%d offen sc1" % (vFL, self.ws(), sFL)
            b.I(ld_ % vPOLL)
            for _ in range(env("DPOLL", 0)):
                b.I("s_nop 15")
            b.label(lp)
            for r0, r1 in ((vPOLL, vT), (vT, vPOLL)):
                self.Inc(ld_ % r1)
                b.I("s_waitcnt vmcnt(1)")
                b.I("v_subrev_u32 v%d, s%d, v%d" % (r0, sT, r0))
                b.I("v_cmp_gt_u32 vcc, %d, v%d" % (16 - k, r0))
                b.I("s_cmp_eq_u64 vcc, exec")
                b.I("s_cbranch_scc1 %s" % ld)
            self.spin_guard(lp)
            b.label(ld)
            b.vm_done = b.vm_issued
            self.consumed = max(self.consumed, self.pub_mine[k])
            return
        if tok is not None:
            b.wait(tok)
            b.I("s_branch %s" % lc)
        b.label(lp)
        self.Inc("buffer_load_dword v%d, v%d, %s, s%d offen sc1" % (vPOLL, vFL, self.ws(), sFL))
        if tok is None:
            b.wait(vm=0)
        else:
            b.I("s_waitcnt vmcnt(0)")
        b.label(lc)
        b.I("v_subrev_u32 v%d, s%d, v%d" % (vPOLL, sT, vPOLL))
        b.I("v_cmp_gt_u32 vcc, %d, v%d" % (16 - k, vPOLL))
        b.I("s_cmp_eq_u64 vcc, exec")
        b.I("s_cbranch_scc1 %s" % ld)
        self.spin_guard(lp)
        b.label(ld)
        self.consumed = max(self.consumed, self.pub_mine[k])

    def queue_stats(self, hf, plan):
        b = self.b
        s0 = self.seq
        assert s0 % 2 == 0
        self.seq += 2
        for j in range(2):
            def th(j=j):
                assert s0 + 1 - NSLOT <= self.consumed
                self.atok.setdefault(s0, []).append(b.I(
                    "buffer_load_dwordx4 v%d, %s, s%d offen offset:%d sc1 lds" % (vL16, self.ws(), sAO, j * 1024)))
            th.seq = s0 + 1
            th.urgent = True
            th.prep = [] if j else ["s_add_u32 m0, s%d, 0x%x" % (sW2K, (s0 % NSLOT) * 4096),
                                    "s_add_u32 s%d, s%d, 0x%x" % (sAO, sSTC, hf * 8192)]
            plan.append(th)
        return s0

    def queue_half(self, kind, idx, hf, nds, plan, rot=False, ds0=0):
        b = self.b
        seqs = []
        base = self.buf(kind, idx) + hf * self.hstride(kind)
        rg = self.rgs(kind)
        assert self.seq % 2 == 0 and nds % 2 == 0
        for ds in range(ds0, ds0 + nds):
            sq = self.seq
            self.seq += 1
            seqs.append(sq)
            s0 = sq & ~1

            def th(sq=sq, s0=s0):
                assert s0 + 1 - NSLOT <= self.consumed, "ring slot busy"
                tk = b.I("buffer_load_dwordx4 v%d, %s, s%d offen offset:%d sc1 lds" % (vDM2, self.ws(), sAO, (sq & 1) * 1024))
                if sq & 1:
                    self.atok[s0] = self.atok[s0 + 1] = [tk]
            th.seq = s0 + 1
            m0 = "s_add_u32 m0, s%d, 0x%x" % (sW2K, (sq % NSLOT) * 4096)
            if sq & 1:
                th.prep = []
            elif not rot:
                th.prep = [m0, "s_add_u32 s%d, s%d, 0x%x" % (sAO, rg, base + ds * 4096)]
            else:
                if ds == 0:
                    th.prep = ["s_add_u32 s%d, s%d, 0x%x" % (sAB, sRB2, base), "s_mov_b32 s%d, s%d" % (sXS, sRO2)]
                else:
                    th.prep = ["s_add_u32 s%d, s%d, 0x2000" % (sXS, sXS), "s_and_b32 s%d, s%d, 0x7fff" % (sXS, sXS)]
                th.prep += [m0, "s_add_u32 s%d, s%d, s%d" % (sAO, sAB, sXS)]
            plan.append(th)
        return seqs

    def queue_both(self, kind, idx, nds, plan):
        out = ([], [])
        for d0 in range(0, nds, 2):
            for hf in range(2):
                out[hf].extend(self.queue_half(kind, idx, hf, 2, plan, ds0=d0))
        return out

    def seq_issued(self):
        return self.aq[0].seq if self.aq else self.seq

    def a_burst(self, n):
        k = 0
        while k < n and self.aq and self.aq[0].seq - NSLOT <= self.consumed:
            self.a_pop()
            k += 1
        self.last_bg = self.clock

    def frag_addr(self, sq, r, h):
        off = (sq % NSLOT) * 4096 + r * 2048 + h * 1024
        return ((vL16, vA1)[off >> 16], off & 0xffff)

    def gemm_prep(self, items, groups=None, depth=8, hooks=None, pre=None, post=None, pairw=False, buf0=0):
        b = self.b
        hooks, pre, post = hooks or {}, pre or {}, post or {}
        n = len(items)
        toks = [None] * n
        grp_of = {}
        for gi, g in enumerate(groups or []):
            for sq in g:
                grp_of[sq] = gi
        opened = set()
        st = {"ip": 0}

        rem = [1 << 30] * (n + 1)
        for k in range(n - 1, -1, -1):
            rem[k] = min(rem[k + 1], items[k][2] if items[k][2] is not None else 1 << 30)

        def reg(k):
            return vr(vAF + 4 * ((k + buf0) % NAF), 4)

        def issue():
            k = st["ip"]
            a, off, sq, _ = items[k]
            if sq in grp_of and grp_of[sq] not in opened:
                gi = grp_of[sq]
                opened.add(gi)
                while any(s not in self.atok for s in groups[gi]):
                    self.a_pop()
                    self.last_bg = self.clock
                for f in pre.get(gi, []):
                    f()
                if self.gstamp:
                    self.stamp("g%d?" % gi)
                b.wait(*[self.atok[s] for s in groups[gi]])
                b.I("s_barrier")
                if self.gstamp:
                    self.stamp("g%d!" % gi)
                self.consumed = max(self.consumed, self.mine)
                for f in post.get(gi, []):
                    f()
            if a == "tr":
                r0 = vAF + 4 * ((k + buf0) % NAF)
                self.I("ds_read_b64_tr_b16 %s, v%d offset:%d" % (p2(r0), vTQ, off))
                toks[k] = self.I("ds_read_b64_tr_b16 %s, v%d offset:%d" % (p2(r0 + 2), vTQ, off + 512))
            else:
                toks[k] = self.I("ds_read_b128 %s, v%d offset:%d" % (reg(k), a, off))
            st["ip"] += 1

        def prestart(m=None):
            while st["ip"] < min(depth if m is None else m, n):
                issue()

        def run():
            prestart()
            self.slotted = True
            for j in range(n):
                thunks = items[j][3](reg(j))
                while st["ip"] <= min(j + (1 if pairw else 0), n - 1):
                    issue()
                if pairw and j % 2 == 0 and j + 1 < st["ip"]:
                    b.wait(toks[j + 1])
                b.wait(toks[j])
                if items[j][2] is not None:
                    self.cur_seq = items[j][2]
                    lim = min(self.pinned) - 3 if self.pinned else 1 << 30
                    self.mine = max(self.mine, min(rem[j] - 1, lim))
                if not thunks and st["ip"] < min(n, j + 1 + depth):
                    issue()
                for th in thunks:
                    n0 = b.nins
                    th()
                    if b.nins > n0:
                        self.slot_fill(min(n, j + 1 + depth) - st["ip"], issue)
                for f in hooks.get(j, []):
                    f()
            self.slotted = False
            self.side_flush()
            sq = [it[2] for it in items if it[2] is not None]
            if sq:
                self.cur_seq = max(sq) + 1
                lim = min(self.pinned) - 3 if self.pinned else 1 << 30
                self.mine = max(self.mine, min(max(sq), lim))
        return prestart, run

    def gemm(self, *a, **k):
        self.gemm_prep(*a, **k)[1]()

    def mf(self, d, a, bb, c=None):
        dd = vr(d, 4)
        cc = dd if c is None else c
        return lambda: self.I("v_mfma_f32_16x16x32_bf16 %s, %s, %s, %s" % (dd, a, bb, cc))

    @staticmethod
    def split(seqs, sizes):
        out, k = [], 0
        for s in sizes:
            out.append(seqs[k:k + s])
            k += s
        assert k == len(seqs)
        return out

    def stats_stage1(self, s0, hf):
        b = self.b
        t = vS1
        tk = {}
        def landed():
            while len(self.atok.get(s0, [])) < 2:
                self.a_pop()
            b.wait(self.atok[s0])
        out = ["v_add_u32 v%d, 0x%x, v%d" % (vT, (s0 % NSLOT) * 4096, vSB), landed]
        for k in range(4):
            out.append(lambda k=k: tk.__setitem__(k, b.I("ds_read2st64_b32 %s, v%d offset0:%d offset1:%d" % (
                p2(t + 2 * k), vT, 2 * k, 2 * k + 1))))
        out += [6, lambda: b.wait(tk[3])]
        out += ["v_add_f32 v%d, v%d, v%d" % (t + k, t + k, t + 4 + k) for k in range(4)]
        out += ["v_add_f32 v%d, v%d, v%d" % (t + k, t + k, t + 2 + k) for k in range(2)]
        out += ["v_add_f32 v%d, v%d, v%d" % (t, t, t + 1)]
        out.append(lambda: tk.__setitem__("w", b.I("ds_write_b32 v%d, v%d offset:%d" % (vSW, t, hf * 1024))))

        def before_barrier():
            self.side_flush()
            b.wait(tk["w"])
        return out, before_barrier

    def stats_stage2(self, hf, scale, kv):
        b = self.b
        t = vS1
        tk = {}
        out = []
        for k in range(2):
            out.append(lambda k=k: tk.__setitem__(k, b.I("ds_read2st64_b32 %s, v%d offset0:%d offset1:%d" % (
                p2(t + 2 * k), vEX, hf * 4 + 2 * k, hf * 4 + 2 * k + 1))))
        a0, b0, a1, b1 = [vAB + 4 * hf + k for k in range(4)]
        out += [6, lambda: b.wait(tk[1]),
                "v_add_f32 v%d, v%d, v%d" % (t, t, t + 2), "v_add_f32 v%d, v%d, v%d" % (t + 1, t + 1, t + 3),
                "v_add_f32 v%d, v%d, v%d" % (t, t, t + 1), "v_mul_f32 v%d, 0x3b000000, v%d" % (t, t),
                "v_mov_b32 v%d, v%d" % (t + 1, t), 1,
                "v_permlane16_swap_b32 v%d, v%d" % (t, t + 1), 1,
                "v_fma_f32 v%d, -v%d, v%d, v%d" % (t + 1, t, t, t + 1), "v_max_f32 v%d, 0, v%d" % (t + 1, t + 1),
                "v_add_f32 v%d, 0x3727c5ac, v%d" % (t + 1, t + 1), "v_rsq_f32 v%d, v%d" % (a0, t + 1), 1]
        if scale:
            out.append("v_mul_f32_e64 v%d, -v%d, v%d" % (a0, a0, vK))
        out.append("v_mul_f32_e64 v%d, -v%d, v%d" % (b0, t, a0))
        if kv:
            def wr():
                b.I("s_mov_b32 exec_lo, 0xffff")
                b.I("s_mov_b32 exec_hi, 0xffff")
                b.I("ds_write_b32 v%d, v%d" % (vSWR, a0))
                b.I("ds_write_b32 v%d, v%d offset:128" % (vSWR, b0))
                b.I("s_mov_b64 exec, -1")
            out.append(wr)
        out += ["v_mov_b32 v%d, v%d" % (a1, a0), "v_mov_b32 v%d, v%d" % (b1, b0), 1,
                "v_permlane32_swap_b32 v%d, v%d" % (a0, a1), "v_permlane32_swap_b32 v%d, v%d" % (b0, b1)]
        return out

    def stats_hooks(self, s0, hf, scale, kv, j1, gi, hooks, pre, post):
        s1, bb = self.stats_stage1(s0, hf)
        hooks.setdefault(j1, []).append(lambda: self.side.extend(s1))
        pre.setdefault(gi, []).append(bb)
        post.setdefault(gi, []).append(lambda: self.side.extend(self.stats_stage2(hf, scale, kv)))

    def stats_startup(self):
        b = self.b
        I = b.I
        t = vT
        I("v_mul_f32 v%d, 0x3b000000, v%d" % (t + 1, vS1))
        I("v_cndmask_b32 v%d, v%d, v%d, s[%d:%d]" % (t, vS2, vS2 + 1, sM1, sM1 + 1))
        I("v_cndmask_b32 v%d, v%d, v%d, s[%d:%d]" % (t, t, vS2 + 2, sM2, sM2 + 1))
        I("v_cndmask_b32 v%d, v%d, v%d, s[%d:%d]" % (t, t, vS2 + 3, sM3, sM3 + 1))
        I("v_mul_f32 v%d, 0x3b000000, v%d" % (t, t))
        I("v_fma_f32 v%d, -v%d, v%d, v%d" % (t, t + 1, t + 1, t))
        I("v_max_f32 v%d, 0, v%d" % (t, t))
        I("v_add_f32 v%d, 0x3727c5ac, v%d" % (t, t))
        I("v_rsq_f32 v%d, v%d" % (t + 2, t))
        I("v_lshlrev_b32 v%d, 1, v%d" % (t + 4, vSW))
        I("v_mul_f32_e64 v%d, -v%d, v%d" % (t + 3, t + 1, t + 2))
        I("v_subrev_u32 v%d, 0x%x, v%d" % (t + 4, L_STA - 512, t + 4))
        I("s_mov_b64 exec, s[%d:%d]" % (sDIAG, sDIAG + 1))
        I("ds_write_b32 v%d, v%d" % (vSW, t + 2))
        I("ds_write_b32 v%d, v%d offset:256" % (vSW, t + 3))
        I("ds_write_b64 v%d, v[%d:%d]" % (t + 4, t + 2, t + 3))
        I("s_mov_b64 exec, -1")
        b.wait(lg=0)
        I("s_barrier")

    def phi_pairs(self, pairs):
        I = self.I
        for c0 in range(0, len(pairs), 4):
            grp = pairs[c0:c0 + 4]
            for k, (t, d) in enumerate(grp):
                I("v_pk_mul_f32 %s, %s, %s %s" % (p2(vT + 2 * k), p2(t), p2(vK), K_L2E))
            for k, (t, d) in enumerate(grp):
                I("v_exp_f32_e64 v%d, v%d clamp" % (vT + 2 * k, vT + 2 * k))
                I("v_max_f32 v%d, v%d, v%d" % (t, vK + 1, t))
                I("v_exp_f32_e64 v%d, v%d clamp" % (vT + 2 * k + 1, vT + 2 * k + 1))
                I("v_max_f32 v%d, v%d, v%d" % (t + 1, vK + 1, t + 1))
            for k, (t, d) in enumerate(grp):
                I("v_pk_add_f32 %s, %s, %s" % (p2(t), p2(t), p2(vT + 2 * k)))
            for k, (t, d) in enumerate(grp):
                I("v_cvt_pk_bf16_f32 v%d, v%d, v%d" % (d, t, t + 1))

    def kv_epilogue(self, hf, ra, rb):
        I = self.I
        K, V = vACC + 8 * hf, vACC + 16 + 8 * hf
        for j in range(4):
            I("v_pk_fma_f32 %s, %s, %s, %s op_sel:[0,0,1] op_sel_hi:[1,1,1]" % (p2(vT + 2 * j), p2(rb + 2 * j), p2(vCSK), p2(vK)))
            I("v_pk_mul_f32 %s, %s, %s" % (p2(vT + 8 + 2 * j), p2(rb + 2 * j), p2(vCSV)))
        for j in range(4):
            I("v_pk_fma_f32 %s, %s, %s, %s" % (p2(K + 2 * j), p2(ra + 2 * j), p2(K + 2 * j), p2(vT + 2 * j)))
            I("v_pk_fma_f32 %s, %s, %s, %s" % (p2(V + 2 * j), p2(ra + 2 * j), p2(V + 2 * j), p2(vT + 8 + 2 * j)))
        for j in range(4):
            I("v_cvt_pk_bf16_f32 v%d, v%d, v%d" % (V + j, V + 2 * j, V + 2 * j + 1))
        self.phi_pairs([(K + 2 * j, K + j) for j in range(4)])

    def startup(self):
        b = self.b
        I = b.I
        i_, g_, l3, l7, q0, tc = vT + 2, vT + 3, vT + 6, vT + 7, vT + 8, vT + 9
        if self.diag:
            I("s_memtime s[92:93]")
        I("s_cmp_ge_u32 s2, 256")
        I("s_cbranch_scc1 L_end")
        I("s_load_dwordx4 s[4:7], s[0:1], 0")
        I("s_load_dwordx2 s[20:21], s[0:1], 64")
        I("s_load_dwordx2 s[8:9], s[0:1], 16")
        I("s_load_dwordx4 s[12:15], s[0:1], 32")
        I("s_load_dwordx4 s[16:19], s[0:1], 48")
        I("s_getpc_b64 s[90:91]")
        b.label("L_pc")
        I("v_lshrrev_b32 v%d, 6, v0" % vT)
        I("v_and_b32 v0, 63, v0")
        I("v_readfirstlane_b32 s%d, v%d" % (sW, vT))
        I("s_lshr_b32 s%d, s2, 3" % (sT + 1))
        I("s_lshl_b32 s%d, s%d, 2" % (sT + 3, sT + 1))
        I("s_add_u32 s%d, s%d, s%d" % (sT + 3, sT + 3, sW))
        I("s_and_b32 s%d, s%d, 31" % (sT, sT + 3))
        I("s_lshl_b32 s%d, s%d, 11" % (sT, sT))
        I("v_lshlrev_b32 v%d, 7, v0" % vTCH)
        I("v_add_u32 v%d, s%d, v%d" % (vT, sT, vTCH))
        I("v_min_u32 v%d, L_end-L_pc, v%d" % (vT, vT))
        I("s_mov_b64 exec, 0xffff")
        I("global_load_dword v%d, v%d, s[90:91]" % (vDUM, vT))
        I("s_mov_b64 exec, -1")
        I("s_and_b32 s%d, s2, 7" % sROT)
        I("s_and_b32 s%d, s%d, 7" % (sC, sT + 1))
        I("s_lshr_b32 s%d, s%d, 3" % (sQ, sT + 1))
        I("s_lshl_b32 s%d, s%d, 2" % (sT, sROT))
        I("s_add_u32 s%d, s%d, s%d" % (sRG, sT, sQ))
        I("s_lshl_b32 s%d, s%d, 16" % (sRG64, sRG))
        I("s_lshl_b32 s%d, s%d, 11" % (sW2K, sW))
        I("v_lshrrev_b32 v%d, 4, v0" % g_)
        I("v_and_b32 v%d, 15, v0" % i_)
        tw, tx = vT + 12, vT + 13
        I("s_mul_i32 s%d, s%d, %d" % (sT + 2, sT + 3, 4 * 3072))
        I("v_lshlrev_b32 v%d, 10, v0" % tx)
        I("v_add_u32 v%d, s%d, v%d" % (tw, sT + 2, tx))
        I("s_lshl_b32 s%d, s%d, 18" % (sT + 2, sROT))
        I("s_lshl_b32 s%d, s%d, 11" % (sT, sT + 3))
        I("s_add_u32 s%d, s%d, s%d" % (sT, sT, sT + 2))
        I("v_add_u32 v%d, s%d, v%d" % (tx, sT, tx))
        I("v_lshrrev_b32 v%d, 3, v0" % l3)
        I("v_and_b32 v%d, 7, v0" % l7)
        I("v_xor_b32 v%d, v%d, v%d" % (vT + 4, l7, g_))
        I("v_lshlrev_b32 v%d, 4, v%d" % (vT + 4, vT + 4))
        I("v_lshl_add_u32 v%d, v%d, 10, v%d" % (vT + 4, l3, vT + 4))
        I("s_lshl_b32 s%d, s%d, 14" % (sT + 1, sW))
        I("v_add_u32 v%d, s%d, v%d" % (vXS0, sT + 1, vT + 4))
        I("v_xor_b32 v%d, 64, v%d" % (vXS1, vXS0))
        I("v_add_u32 v%d, 7168, v%d" % (vXS1, vXS1))
        I("v_and_b32 v%d, 1, v%d" % (vT + 4, g_))
        I("v_lshlrev_b32 v%d, 1, v%d" % (vT + 4, vT + 4))
        I("v_xor_b32 v%d, v%d, v%d" % (q0, l7, vT + 4))
        I("v_lshlrev_b32 v%d, 4, v%d" % (q0, q0))
        I("s_and_b32 s%d, s%d, 1" % (sT + 1, sW))
        I("s_lshl_b32 s%d, s%d, 6" % (sT + 1, sT + 1))
        I("v_xor_b32 v%d, s%d, v%d" % (vT + 4, sT + 1, q0))
        I("s_lshl_b32 s%d, s%d, 3" % (sT + 1, sW))
        I("v_add_u32 v%d, s%d, v%d" % (vT + 5, sT + 1, l3))
        I("v_mul_u32_u24 v%d, 3072, v%d" % (vT + 5, vT + 5))
        I("v_add_u32 v%d, v%d, v%d" % (vWS, vT + 4, vT + 5))
        sXO, sWO_, sRB = sAB, sAO, 93
        I("s_lshl_b32 s%d, s%d, 7" % (sWO_, sC))
        I("v_add_u32 v%d, s%d, v%d" % (vWS, sWO_, vWS))
        if self.diag:
            b.wait(lg=0)
            I("s_mov_b32 s91, s92")
        I("s_add_u32 s%d, s%d, 0x%x" % (sRB, sW2K, L_RING - 1024))
        I("s_lshl_b32 s%d, s%d, 7" % (sXO, sROT))
        I("s_mul_i32 s%d, s%d, %d" % (sWO_, sROT, 64 * 3072))
        if self.diag:
            I("v_mov_b32 v%d, 0" % vSTAMP)
        b.wait(lg=0)
        if self.diag:
            I("v_writelane_b32 v%d, s91, 61" % vSTAMP)
        self.stamp("start")
        I("s_add_u32 s88, s%d, 0x%x" % (S_WS, WS_EP))
        I("s_addc_u32 s89, s%d, 0" % (S_WS + 1))
        I("s_load_dword s%d, s[88:89], 0" % sEP)
        self.srd(R_WQ, S_WQ, 512 * 3072)
        I("s_add_u32 s%d, s%d, s%d" % (R_X, S_X, sRG64))
        I("s_addc_u32 s%d, s%d, 0" % (R_X + 1, S_X + 1))
        I("s_and_b32 s%d, s%d, 0xffff" % (R_X + 1, R_X + 1))
        I("s_mov_b32 s%d, 0x10000" % (R_X + 2))
        I("s_mov_b32 s%d, 0x20000" % (R_X + 3))
        tokA, tokW = {}, {}

        def issue_thunks(ks):
            th = []
            if ks % 2 == 0:
                ds = ks // 2
                tokA[ds] = []
                pre = ["s_add_u32 m0, s%d, 0x%x" % (sW2K, ds * 8192)]
                if ds:
                    pre += ["s_add_u32 s%d, s%d, 128" % (sXO, sXO), "s_and_b32 s%d, s%d, 0x380" % (sXO, sXO)]
                th.append((pre, lambda: tokA[ds].append(
                    I("buffer_load_dwordx4 v%d, s[%d:%d], s%d offen lds" % (vXS0, R_X, R_X + 3, sXO)))))
                th.append(([], lambda: tokA[ds].append(
                    I("buffer_load_dwordx4 v%d, s[%d:%d], s%d offen offset:1024 lds" % (vXS1, R_X, R_X + 3, sXO)))))
            tokW[ks] = []
            for p in range(2):
                pre = []
                if p == 0:
                    if ks:
                        pre.append("s_add_u32 s%d, s%d, %d" % (sWO_, sWO_, 32 * 3072))
                        if ks % 2 == 0:
                            pre += ["s_cmp_eq_u32 s%d, %d" % (sWO_, 512 * 3072), "s_cselect_b32 s%d, 0, s%d" % (sWO_, sWO_)]
                    pre.append("s_add_u32 m0, s%d, 0x%x" % (sRB, (ks % NR) * 8192))
                th.append((pre, lambda p=p: tokW[ks].append(I("buffer_load_dwordx4 v%d, s[%d:%d], s%d offen offset:%d lds" % (
                    vWS, R_WQ, R_WQ + 3, sWO_, (p + 1) * 1024)))))
            return th

        tokQ = []

        def rq_base(ks):
            return L_PACK + ks * 4096 if ks < 4 else L_WQ + (ks - 4) * 4096

        def q_thunk(ks):
            pre = ["s_add_u32 s%d, s%d, %d" % (sWO_, sWO_, 32 * 3072)]
            if ks % 2 == 0:
                pre += ["s_cmp_eq_u32 s%d, %d" % (sWO_, 512 * 3072), "s_cselect_b32 s%d, 0, s%d" % (sWO_, sWO_)]
            pre.append("s_add_u32 m0, s%d, 0x%x" % (sW1K, rq_base(ks)))
            return (pre, lambda: tokQ.append(I("buffer_load_dwordx4 v%d, s[%d:%d], s%d offen lds" % (vWS, R_WQ, R_WQ + 3, sWO_))))
        self.tokQ, self.rq_base = tokQ, rq_base

        def issue_now(ks):
            for pre, th in issue_thunks(ks):
                for t in pre:
                    I(t)
                th()

        if env("T0", 1):
            self.srd(R_PK, S_X, 2048 * 1024)
            if env("XT", 1):
                I("v_lshrrev_b32 v%d, 3, v%d" % (vT + 4, tx))
                I("v_lshlrev_b32 v%d, 10, v0" % (vT + 4))
                I("v_sub_u32 v%d, v%d, v%d" % (tx, tx, vT + 4))
                I("v_add_u32 v%d, v%d, v%d" % (tx, tx, vTCH))
            for ptr, srd, v, mask in ((S_WQ, R_WQ, tw, 0xdb6 if env('TQ', -1) >= 0 else 0xfff), (S_X, R_PK, tx, 0xffff if env("XT", 1) else 3)):
                I("s_sub_u32 s%d, 0x180, s%d" % (sT, ptr))
                I("s_and_b32 s%d, s%d, 0x%x" % (sT, sT, 0 if env("XT", 1) and ptr == S_X else 0x380))
                I("s_mov_b64 exec, 0x%x" % mask)
                I("buffer_load_dword v%d, v%d, s[%d:%d], s%d offen" % (vDUM, v, srd, srd + 3, sT))
            I("s_mov_b64 exec, -1")
        NFIRST = env("NFIRST", 4)
        for ks in range(NFIRST):
            issue_now(ks)
        self.stamp("first")
        I("s_getreg_b32 s%d, hwreg(HW_REG_XCC_ID, 0, 4)" % sXCC)
        I("s_mov_b32 s%d, 0x100000" % sSPIN)
        self.srd(R_WS, S_WS, WS_SIZE)
        self.srd(R_OUT, S_OUT, 2048 * 1024)
        I("v_lshlrev_b32 v%d, 4, v0" % vL16)
        I("v_lshlrev_b32 v%d, 2, v0" % vL4)
        I("s_lshl_b32 s%d, s%d, 10" % (sW1K, sW))
        I("s_lshl_b32 s%d, s%d, 2" % (sT, sC))
        I("s_add_u32 s%d, s%d, s%d" % (sT, sT, sW))
        I("s_mul_i32 s%d, s%d, %d" % (sKV, sT, KVH))
        I("s_add_u32 s%d, s%d, 0x%x" % (sKV, sKV, WS_KV + KB0))
        I("v_mov_b32 v%d, 0" % vC2)
        I("s_and_b32 s%d, s%d, 15" % (sT + 1, sRG))
        I("s_mul_i32 s%d, s%d, %d" % (sT + 1, sT + 1, KVH // 16))
        I("s_add_u32 s%d, s%d, s%d" % (sT + 1, sT + 1, sKV))
        I("s_lshr_b32 s%d, s%d, 4" % (sT + 2, sRG))
        I("s_mul_i32 s%d, s%d, %d" % (sT + 2, sT + 2, KVL))
        I("s_add_u32 s%d, s%d, s%d" % (sT + 1, sT + 1, sT + 2))
        I("v_mov_b32 v%d, 0" % vPOLL)
        I("v_mov_b32 v%d, 0" % (vPOLL + 1))
        I("v_lshlrev_b32 v%d, 3, v0" % (vT + 4))
        assert KVH % 128 == 0 and KVH // 128 <= 64
        mask = (1 << (KVH // 128)) - 1
        I("s_mov_b32 exec_lo, 0x%x" % (mask & 0xffffffff))
        I("s_mov_b32 exec_hi, 0x%x" % (mask >> 32))
        ztok = I("buffer_store_dwordx2 %s, v%d, %s, s%d offen sc1" % (p2(vPOLL), vT + 4, self.ws(), sT + 1))
        I("s_mov_b64 exec, -1")
        I("s_mul_i32 s%d, s%d, %d" % (sPK, sT, PKW))
        I("s_lshl_b32 s%d, s%d, 7" % (sFL, sRG))
        I("s_lshl_b32 s%d, s%d, 12" % (sR1, sC))
        I("s_add_u32 s%d, s%d, 0x%x" % (sR1, sR1, WS_R2))
        I("s_add_u32 s%d, s%d, 0x%x" % (sFL, sFL, WS_FL))
        I("s_lshl_b32 s%d, s%d, 2" % (sMYF, sT))
        I("s_add_u32 s%d, s%d, s%d" % (sMYF, sMYF, sFL))
        I("s_lshl_b32 s%d, s%d, 14" % (sSTC, sRG))
        I("s_add_u32 s%d, s%d, 0x%x" % (sSTC, sSTC, WS_ST))
        I("s_lshl_b32 s%d, s%d, 8" % (sSTP, sT))
        I("s_add_u32 s%d, s%d, s%d" % (sSTP, sSTP, sSTC))
        I("s_add_u32 s%d, s%d, s%d" % (sSTC, sSTC, sW2K))
        I("s_mul_i32 s%d, s%d, %d" % (sRGH, sRG, HSZ))
        I("s_lshl_b32 s%d, s%d, 12" % (sSTO, sC))
        I("s_lshl_b32 s%d, s%d, 9" % (sT + 1, sW))
        I("s_add_u32 s%d, s%d, s%d" % (sSTO, sSTO, sT + 1))
        I("s_lshl_b32 s%d, s%d, 5" % (sOUT, sT))
        I("s_mul_i32 s%d, s%d, 3" % (sT, sT))
        for t in range(3):
            I("s_add_u32 s%d, s%d, %d" % (sT + 1, sT, t))
            I("s_lshr_b32 s%d, s%d, 2" % (sT + 2, sT + 1))
            I("s_lshl_b32 s%d, s%d, 12" % (sT + 2, sT + 2))
            I("s_and_b32 s%d, s%d, 3" % (sT + 3, sT + 1))
            I("s_lshl_b32 s%d, s%d, 9" % (sT + 3, sT + 3))
            I("s_add_u32 s%d, s%d, s%d" % (sT + 2, sT + 2, sT + 3))
            I("s_add_u32 s%d, s%d, s%d" % (sT + 2, sT + 2, sRGH))
            I("s_cmp_lt_u32 s%d, 86" % (sT + 1))
            I("s_cselect_b32 s%d, s%d, 0x%x" % (sH0 + t, sT + 2, OOB))
            I("s_cselect_b32 s%d, 0, 0x%x" % (sT + 2, OOB))
            I("v_add_u32 v%d, s%d, v%d" % (vW1 + t, sT + 2, vL16))
        I("v_add_u32 v%d, 0x10000, v%d" % (vA1, vL16))
        I("v_add_u32 v%d, s%d, v%d" % (vDMA, sW1K, vL16))
        I("v_add_u32 v%d, s%d, v%d" % (vDM2, sW2K, vL16))
        I("s_lshr_b32 s%d, s%d, 1" % (sT + 1, sW))
        I("s_add_u32 s%d, s%d, s%d" % (sRO2, sROT, sT + 1))
        I("s_and_b32 s%d, s%d, 7" % (sRO2, sRO2))
        I("s_lshl_b32 s%d, s%d, 12" % (sRO2, sRO2))
        I("s_lshl_b32 s%d, s%d, 12" % (sT + 1, sT + 1))
        I("s_sub_u32 s%d, s%d, s%d" % (sRB2, sRG64, sT + 1))
        I("v_and_b32 v%d, 0x7c, v%d" % (vFL, vL4))
        I("v_lshrrev_b32 v%d, 1, v%d" % (vT + 4, g_))
        I("v_lshlrev_b32 v%d, 8, v%d" % (vT + 4, vT + 4))
        I("v_lshl_add_u32 v%d, v%d, 4, v%d" % (vT + 4, i_, vT + 4))
        I("v_and_b32 v%d, 1, v%d" % (vT + 5, g_))
        I("v_lshl_add_u32 v%d, v%d, 11, v%d" % (vST, vT + 5, vT + 4))
        I("v_lshlrev_b32 v%d, 4, v%d" % (vSTA, g_))
        I("v_add_u32 v%d, 0x%x, v%d" % (vSTA, L_STA, vSTA))
        I("v_lshlrev_b32 v%d, 3, v%d" % (vSTQ, i_))
        I("v_add_u32 v%d, 0x%x, v%d" % (vSTQ, L_STA + 512, vSTQ))
        I("s_lshl_b32 s%d, s%d, 6" % (sT, sW))
        I("s_add_u32 s%d, s%d, 0x%x" % (sT, sT, L_STA))
        I("v_lshlrev_b32 v%d, 2, v%d" % (vSW, i_))
        I("v_add_u32 v%d, s%d, v%d" % (vSW, sT, vSW))
        I("v_lshrrev_b32 v%d, 3, v%d" % (vT + 4, i_))
        I("v_lshlrev_b32 v%d, 10, v%d" % (vT + 4, vT + 4))
        I("v_and_b32 v%d, 7, v%d" % (vT + 5, i_))
        I("v_lshl_add_u32 v%d, v%d, 7, v%d" % (vT + 4, vT + 5, vT + 4))
        I("v_lshrrev_b32 v%d, 1, v%d" % (vT + 5, i_))
        I("v_xor_b32 v%d, v%d, v%d" % (vT + 5, vT + 5, g_))
        I("v_lshl_add_u32 v%d, v%d, 4, v%d" % (vX0, vT + 5, vT + 4))
        I("v_xor_b32 v%d, 64, v%d" % (vX1, vX0))
        I("v_add_u32 v%d, s%d, v%d" % (vOW0, sW2K, vX0))
        I("v_add_u32 v%d, s%d, v%d" % (vOW1, sW2K, vX1))
        I("v_bfe_u32 v%d, v0, 2, 2" % (vT + 4))
        I("v_bfe_u32 v%d, v0, 3, 1" % (vT + 5))
        I("v_lshlrev_b32 v%d, 1, v%d" % (vT + 5, vT + 5))
        I("v_bfe_u32 v%d, v0, 4, 1" % (vT + 10))
        I("v_lshl_add_u32 v%d, v%d, 2, v%d" % (vT + 5, vT + 10, vT + 5))
        I("v_bfe_u32 v%d, v0, 1, 1" % (vT + 10))
        I("v_xor_b32 v%d, v%d, v%d" % (vT + 5, vT + 5, vT + 10))
        I("v_lshlrev_b32 v%d, 4, v%d" % (vT + 5, vT + 5))
        I("v_lshl_add_u32 v%d, v%d, 7, v%d" % (tc, vT + 4, vT + 5))
        I("v_and_b32 v%d, 1, v0" % (vT + 10))
        I("v_lshl_add_u32 v%d, v%d, 3, v%d" % (tc, vT + 10, tc))
        I("s_lshl_b32 s%d, s%d, 5" % (sT + 1, sW))
        I("v_xor_b32 v%d, s%d, v%d" % (vT + 4, sT + 1, tc))
        I("v_lshl_add_u32 v%d, v%d, 10, v%d" % (vTQ, g_, vT + 4))
        I("v_add_u32 v%d, 0x%x, v%d" % (vTQ, L_WQ, vTQ))
        I("v_lshl_add_u32 v%d, v%d, 11, v%d" % (vT + 4, g_, vT + 4))
        I("v_add_u32 v%d, 0x%x, v%d" % (vTR, L_RING, vT + 4))
        for k in range(4):
            I("v_mov_b32 v%d, 0x3f803f80" % (vONE + k))
        I("v_mov_b32 v%d, 0x3fb8aa3b" % vK)
        I("v_mov_b32 v%d, 0x358637bd" % (vK + 1))
        I("s_mul_i32 s%d, s%d, 2560" % (sT, sW))
        I("s_add_u32 s%d, s%d, 0x%x" % (sT, sT, L_KVI))
        I("v_add_u32 v%d, s%d, v%d" % (vKVL, sT, vL4))
        for r in range(4):
            I("v_add_u32 v%d, %d, v0" % (vT + 4, 64 * r))
            I("v_mul_u32_u24 v%d, 4370, v%d" % (vT + 5, vT + 4))
            I("v_lshrrev_b32 v%d, 16, v%d" % (vT + 5, vT + 5))
            I("v_add_u32 v%d, v%d, v%d" % (vT + 4, vT + 4, vT + 5))
            I("v_lshlrev_b32 v%d, 2, v%d" % (vT + 4, vT + 4))
            I("v_add_u32 v%d, s%d, v%d" % (vPOS + r, sT, vT + 4))
        I("v_lshrrev_b32 v%d, 1, v%d" % (vT + 4, g_))
        I("v_add_u32 v%d, v%d, v%d" % (vT + 4, vT + 4, g_))
        I("v_lshlrev_b32 v%d, 4, v%d" % (vT + 4, vT + 4))
        I("s_add_u32 s%d, s%d, %d" % (sT, sT, 276 * 4))
        I("v_add_u32 v%d, s%d, v%d" % (vZP, sT, vT + 4))
        I("v_cmp_eq_u32 vcc, 15, v%d" % i_)
        I("v_cndmask_b32 v%d, 0, 1.0, vcc" % (vT + 4))
        b.wait(lg=0)
        for k in range(5):
            I("ds_write_b32 v%d, v%d offset:%d" % (vKVL, vT + 4, 256 * k))
        I("s_xor_b32 s%d, s%d, 0x80000000" % (sTAG, sEP))
        I("s_and_b32 s%d, s%d, 0xfffffff0" % (sTAG, sTAG))
        I("s_mov_b32 s%d, 0x358637bd" % sEPS)
        for r, val in ((sM1, 0x22222222), (sM2, 0x44444444), (sM3, 0x88888888)):
            I("s_mov_b32 s%d, 0x%x" % (r, val))
            I("s_mov_b32 s%d, 0x%x" % (r + 1, val))
        I("s_mov_b32 s%d, 0x00f0000f" % sDIAG)
        I("s_mov_b32 s%d, 0xf0000f00" % (sDIAG + 1))
        I("v_lshlrev_b32 v%d, 10, v%d" % (vT + 4, g_))
        I("s_lshl_b32 s%d, s%d, 12" % (sT, sW))
        I("v_add_u32 v%d, s%d, v%d" % (vT + 4, sT, vT + 4))
        for t in range(4):
            I("v_xor_b32 v%d, %d, v%d" % (vCS1 + 4 + t, 32 * t, tc))
            I("v_add_u32 v%d, v%d, v%d" % (vCS1 + 4 + t, vCS1 + 4 + t, vT + 4))
            I("v_add_u32 v%d, 0x%x, v%d" % (vCS1 + 4 + t, L_PACK, vCS1 + 4 + t))
        I("v_and_b32 v%d, 31, v0" % (vT + 14))
        I("v_lshlrev_b32 v%d, 10, v%d" % (vT + 14, vT + 14))
        I("v_lshrrev_b32 v%d, 5, v0" % (vT + 4))
        I("v_lshl_add_u32 v%d, v%d, 4, v%d" % (vT + 14, vT + 4, vT + 14))
        I("s_add_u32 s%d, s%d, s%d" % (sT, sTAG, sXCC))
        I("v_mov_b32 v%d, s%d" % (vT + 15, sT))
        ptk, pth = self.pack_load(l3, q0)
        KL = env("KL", -1)
        for ks in range(NFIRST, env('NINIT', 6)):
            issue_now(ks)
        nxt = env('NINIT', 6)
        nq = 0
        if KL < 0:
            for pre, th in pth:
                for t in pre:
                    I(t)
                th()
        I("s_mov_b64 exec, 1")
        I("buffer_load_dword v%d, off, %s, s%d sc1" % (vDUM, self.ws(), sFL))
        I("s_mov_b64 exec, -1")
        self.stamp("setup")

        tmp = [self.free.pop() for _ in range(6)]
        assert all(s[0] == "v" for s in tmp)
        cK, cV = tmp[4][1], tmp[5][1]
        res_toks = []
        KZ = env("KZ", 2)
        KP, KANN, KI, KC = env("KP", 4), env("KANN", 9), env("KI", 12), env("KC", 99)
        for ks in range(17):
            fill, dma, nrd = [], [], 0
            if ks < 16:
                b.wait(tokW[ks], tokA[ks // 2])
                if ks == KZ:
                    b.wait(ztok)
                if ks == KANN:
                    b.wait(pst)
                I("s_barrier")
                if ks == 0:
                    self.stamp("w0")
                elif env("LSTAMP", 0):
                    self.stamp("it%d" % ks)
                if ks == KC:
                    self.r1_check()
                    self.bg_w = len(self.free) - 2 * (16 - ks) - 16
                    self.last_bg = self.clock
                if ks in (KZ, KANN):
                    lx = b.newlabel("Lann")
                    I("s_cmp_lg_u32 s%d, 0" % sW)
                    I("s_cbranch_scc1 %s" % lx)
                    I("s_lshl_b32 s%d, s%d, 7" % (sT, sRG))
                    I("s_add_u32 s%d, s%d, s%d" % (sT, sT, sR1))
                    if ks == KANN:
                        I("s_add_u32 s%d, s%d, 0x%x" % (sT, sT, WS_R3 - WS_R2))
                    I("s_mov_b64 exec, 1")
                    self.Inc("buffer_store_dword v%d, off, %s, s%d sc1" % (vT + 15, self.ws(), sT))
                    I("s_mov_b64 exec, -1")
                    b.label(lx)
                for p in range(2):
                    s = self.free.pop(0)
                    self.wslot[("qkv", 0, 2 * ks + p)] = (s, None)
                    for hh in range(2):
                        fill.append(lambda s=s, hh=hh, p=p: I("ds_read_b64_tr_b16 %s, v%d offset:%d" % (
                            vr(s[1] + 2 * hh, 2, s[0]), vTR, (ks % NR) * 8192 + p * 1024 + hh * 512)))
                fb = vAF + (ks & 1) * 20
                ds, h = ks // 2, ks & 1
                for rt in range(4):
                    fill.append(lambda rt=rt: I("ds_read_b128 %s, v%d offset:%d" % (
                        vr(fb + 4 * rt, 4), (vX0, vX1)[h], ds * 8192 + rt * 2048)))
                fill.append(lambda: I("ds_read_b128 %s, v%d offset:%d" % (vr(fb + 16, 4), (vOW0, vOW1)[h], ds * 8192)))
                nrd = len(fill)
                k2 = 0
                while nxt < min(16, ks + NR) and k2 < 2:
                    dma += issue_thunks(nxt)
                    nxt += 1
                    k2 += 1
                if ks == KL:
                    dma += pth
                if nxt == 16 and not dma and ks > KP + 1:
                    while nq < 16 and len(dma) < env("QPER", 3) and (nq < 4 or 10 + (nq - 4) // 2 < ks):
                        dma.append(q_thunk(nq))
                        nq += 1
                if ks == env("TQ", -1) and env("T0", 1):
                    def tq():
                        I("s_sub_u32 s%d, 0x180, s%d" % (sT, S_WQ))
                        I("s_and_b32 s%d, s%d, 0x380" % (sT, sT))
                        I("s_mov_b64 exec, 0x249")
                        I("buffer_load_dword v%d, v%d, s[%d:%d], s%d offen" % (vDUM, tw, R_WQ, R_WQ + 3, sT))
                        I("s_mov_b64 exec, -1")
                    fill.append(tq)
                if ks == KI:
                    fill.append(self.r1_issue)
                if ks == env("KOX", 15) and FT:
                    def tch():
                        self.touch_ox(0)
                        I("v_and_b32 v%d, 1, v0" % vT)
                        I("v_lshrrev_b32 v%d, 1, v0" % (vT + 1))
                        I("v_lshlrev_b32 v%d, 13, v%d" % (vT + 1, vT + 1))
                        I("v_lshl_add_u32 v%d, v%d, 7, v%d" % (vT + 5, vT, vT + 1))
                        I("s_mov_b64 exec, 15")
                        I("buffer_load_dword v%d, v%d, %s, s%d offen sc1" % (vDUM, vT + 5, self.ws(), sSTP))
                        I("s_mov_b64 exec, -1")
                    fill.append(tch)
                if ks == KP:
                    def prd():
                        b.wait(ptk)
                        for t in range(4):
                            for hh in range(2):
                                I("ds_read_b64_tr_b16 %s, v%d offset:%d" % (p2(tmp[t][1] + 2 * hh), vCS1 + 4 + t, hh * 512))
                    fill.append(prd)
            mfs = []
            if ks >= 1:
                k1 = ks - 1
                fb1 = vAF + (k1 & 1) * 20
                c0 = "0" if k1 == 0 else None
                wk, wv = [slot_r(self.wslot[("qkv", 0, k)][0]) for k in (2 * k1, 2 * k1 + 1)]
                one = vr(vONE, 4)
                for rt in range(4):
                    mfs.append(self.mf(vACC + 4 * rt, vr(fb1 + 4 * rt, 4), wk, c0))
                    mfs.append(self.mf(vACC + 16 + 4 * rt, vr(fb1 + 4 * rt, 4), wv, c0))
                own = vr(fb1 + 16, 4)
                mfs += [self.mf(vS1, one, own, c0), self.mf(vS2, own, own, c0),
                        self.mf(cK, one, wk, c0), self.mf(cV, one, wv, c0)]
            rds, extra = fill[:nrd], fill[nrd:]
            for _ in range(min(3, len(rds))):
                rds.pop(0)()
            while mfs:
                mfs.pop(0)()
                if rds:
                    for _ in range(min(2, len(rds))):
                        rds.pop(0)()
                    if len(rds) <= 2 and dma and dma[0][0]:
                        I(dma[0][0].pop(0))
                elif dma:
                    if dma[0][0]:
                        while dma[0][0]:
                            I(dma[0][0].pop(0))
                    else:
                        dma.pop(0)[1]()
                elif extra:
                    extra.pop(0)()
            for f in rds:
                f()
            for pre, th in dma:
                for t in pre:
                    I(t)
                th()
            for f in extra:
                f()
            b.wait(lg=0)
            if ks == KP:
                pst = [I("buffer_store_dwordx4 %s, v%d, %s, s%d offen sc1" % (slot_r(tmp[t]), vL16, self.ws(), 80 + t))
                       for t in range(4)]
        I("s_sub_u32 s%d, s%d, s%d" % (sT, sC, sROT))
        I("s_and_b32 s%d, s%d, 7" % (sT, sT))
        I("s_lshl_b32 s%d, s%d, 13" % (sT, sT))
        I("v_lshrrev_b32 v%d, 4, v0" % vT)
        I("v_lshrrev_b32 v%d, 5, v0" % (vT + 1))
        I("v_xor_b32 v%d, v%d, v%d" % (vT + 1, vT + 1, vT))
        I("s_lshl_b32 s%d, s%d, 1" % (sT + 1, sW))
        I("v_xor_b32 v%d, s%d, v%d" % (vT + 1, sT + 1, vT + 1))
        I("v_lshlrev_b32 v%d, 4, v%d" % (vT + 1, vT + 1))
        I("v_xor_b32 v%d, v%d, v%d" % (vT + 1, vT + 1, vX0))
        I("v_and_b32 v%d, 1, v%d" % (vT, vT))
        I("v_lshl_add_u32 v%d, v%d, 3, v%d" % (vT + 1, vT, vT + 1))
        I("v_add_u32 v%d, s%d, v%d" % (vT + 1, sT, vT + 1))
        res = [I("ds_read_b64 %s, v%d offset:%d" % (p2(vS1 + 8 + 0) if False else p2(vACC + 32 + 2 * rt), vT + 1, rt * 2048)) for rt in range(4)]
        I("v_mov_b32 v%d, v%d" % (vOA, vT + 14))
        self.bg_w = 0
        self.stamp("kvpass")
        if KC > 16:
            self.r1_check()
        if KANN == 16:
            b.wait(pst)
        self.stats_startup()
        if KANN == 16:
            lx = b.newlabel("Lann")
            I("s_cmp_lg_u32 s%d, 0" % sW)
            I("s_cbranch_scc1 %s" % lx)
            I("s_lshl_b32 s%d, s%d, 7" % (sT, sRG))
            I("s_add_u32 s%d, s%d, s%d" % (sT, sT, sR1))
            I("s_add_u32 s%d, s%d, 0x%x" % (sT, sT, WS_R3 - WS_R2))
            I("s_mov_b64 exec, 1")
            self.Inc("buffer_store_dword v%d, off, %s, s%d sc1" % (vT + 15, self.ws(), sT))
            I("s_mov_b64 exec, -1")
            b.label(lx)
        while nq < 16:
            pre, th = q_thunk(nq)
            for t in pre:
                I(t)
            th()
            nq += 1
        t1 = []
        for rt in range(4):
            t1.append(I("ds_read_b128 %s, v%d offset:%d" % (vr(vAF + 4 * rt, 4), vSTA, rt * 64)))
            t1.append(I("ds_read_b128 %s, v%d offset:%d" % (vr(vAF + 16 + 4 * rt, 4), vSTA, 256 + rt * 64)))
        for rt in range(4):
            t1.append(I("ds_read_b64 %s, v%d offset:%d" % (p2(vAB + 2 * rt), vSTQ, rt * 128)))
        for k in range(2):
            I("v_mov_b32 v%d, v%d" % (vCSK + k, cK))
            I("v_mov_b32 v%d, v%d" % (vCSV + k, cV))
        self.free += tmp
        I("v_add_u32 v%d, s%d, v%d" % (vSB, sW2K, vL4))
        I("v_add_u32 v%d, 0x%x, v%d" % (vEX, L_EX, vL4))
        I("s_lshl_b32 s%d, s%d, 8" % (sT, sW))
        I("v_add_u32 v%d, s%d, v%d" % (vSW, sT, vEX))
        I("v_and_b32 v%d, 15, v0" % vT)
        I("v_lshrrev_b32 v%d, 5, v0" % (vT + 1))
        I("v_lshlrev_b32 v%d, 6, v%d" % (vT + 1, vT + 1))
        I("v_lshl_add_u32 v%d, v%d, 2, v%d" % (vSWR, vT, vT + 1))
        I("s_add_u32 s%d, s%d, 0x%x" % (sT, sT, L_STA))
        I("v_add_u32 v%d, s%d, v%d" % (vSWR, sT, vSWR))
        for rt in range(4):
            for k in range(2):
                s = vACC + 32 + 2 * rt + k
                I("v_lshlrev_b32 v%d, 16, v%d" % (vX + 4 * rt + 2 * k, s))
                I("v_and_b32 v%d, 0xffff0000, v%d" % (vX + 4 * rt + 2 * k + 1, s))
        early = env("R3EARLY", 0)
        I("v_and_b32 v%d, 0xfff, v%d" % (vCS1, vTCH))
        I("s_add_u32 s%d, s%d, 0x%x" % (sR1, sR1, WS_R3 - WS_R2))
        self.r3_tok = I("buffer_load_dword v%d, v%d, %s, s%d offen sc1" % (vPOLL, vCS1, self.ws(), sR1))
        b.wait(t1)
        I("s_lshl_b32 s%d, s%d, 8" % (sT, sW))
        I("v_add_u32 v%d, s%d, v%d" % (vSTA, sT, vSTA))
        for hf in range(2):
            self.kv_epilogue(hf, vAF + 8 * hf, vAF + 16 + 8 * hf)

    def pack_load(self, l3, q0):
        b = self.b
        I = b.I
        dst = 80
        uid, src, strd = sT, sT + 1, sT + 2
        I("s_lshl_b32 s%d, s%d, 2" % (uid, sRG))
        I("s_add_u32 s%d, s%d, s%d" % (uid, uid, sW))
        lw1, lw2, lnone, lgo = [b.newlabel("Lpk") for _ in range(4)]
        I("s_mul_i32 s88, s%d, %d" % (sC, 4 * PKW))
        I("s_mov_b32 s%d, 0x20000" % (R_PK + 3))

        def setsrd(ptr, size, stride):
            I("s_mov_b32 s%d, s%d" % (R_PK, ptr))
            I("s_and_b32 s%d, s%d, 0xffff" % (R_PK + 1, ptr + 1))
            I("s_mov_b32 s%d, %d" % (R_PK + 2, size))
            I("s_movk_i32 s%d, %d" % (strd, stride))

        def simple(f0):
            I("s_lshl_b32 s%d, s%d, 15" % (src, uid))
            I("s_lshl_b32 s89, s%d, 7" % sC)
            I("s_add_u32 s%d, s%d, s89" % (src, src))
            I("s_add_u32 s89, s%d, %d" % (uid, f0))
            I("s_lshl_b32 s89, s89, 10")
            I("s_add_u32 s88, s88, s89")
            for t in range(4):
                I("s_add_u32 s%d, s88, %d" % (dst + t, t * PKW))
            I("s_branch %s" % lgo)

        I("s_cmp_ge_u32 s%d, 16" % uid)
        I("s_cbranch_scc1 %s" % lw1)
        setsrd(S_WO, 512 * 1024, 1024)
        simple(F_WO)
        b.label(lw1)
        I("s_cmp_ge_u32 s%d, 64" % uid)
        I("s_cbranch_scc1 %s" % lw2)
        I("s_sub_u32 s%d, s%d, 16" % (uid, uid))
        I("s_mul_i32 s89, s%d, 43" % uid)
        I("s_lshr_b32 s89, s89, 7")
        I("s_mul_i32 s92, s89, 3")
        I("s_sub_u32 s92, s%d, s92" % uid)
        setsrd(S_W1, 512 * 2752, 2752)
        I("s_mul_i32 s%d, s89, %d" % (src, 32 * 2752))
        I("s_mul_i32 s79, s%d, 384" % sC)
        I("s_add_u32 s%d, s%d, s79" % (src, src))
        I("s_lshl_b32 s79, s92, 7")
        I("s_add_u32 s%d, s%d, s79" % (src, src))
        I("s_mul_i32 s89, s89, 3072")
        I("s_add_u32 s88, s88, s89")
        I("s_add_u32 s88, s88, %d" % (F_W1 * 1024))
        for t in range(4):
            I("s_lshl_b32 s79, s92, 2")
            I("s_add_u32 s79, s79, %d" % t)
            I("s_mul_i32 s89, s79, 43")
            I("s_lshr_b32 s89, s89, 7")
            I("s_mul_i32 s%d, s89, %d" % (dst + t, PKW - 3072))
            I("s_lshl_b32 s79, s79, 10")
            I("s_add_u32 s%d, s%d, s79" % (dst + t, dst + t))
            I("s_add_u32 s%d, s%d, s88" % (dst + t, dst + t))
        I("s_mul_i32 s79, s%d, 3" % sC)
        I("s_add_u32 s79, s79, s92")
        I("s_cmp_ge_u32 s79, 22")
        I("s_cbranch_scc1 %s" % lnone)
        I("s_branch %s" % lgo)
        b.label(lw2)
        I("s_cmp_ge_u32 s%d, 107" % uid)
        I("s_cbranch_scc1 %s" % lnone)
        I("s_sub_u32 s%d, s%d, 64" % (uid, uid))
        setsrd(S_W2, 1376 * 1024, 1024)
        simple(F_W2)
        b.label(lnone)
        setsrd(S_WQ, 0, 1024)
        I("s_mov_b32 s%d, 0" % src)
        for t in range(4):
            I("s_mov_b32 s%d, 0x%x" % (dst + t, OOB))
        b.label(lgo)
        I("v_mul_lo_u32 v%d, v%d, s%d" % (vT + 4, l3, strd))
        I("v_add_u32 v%d, v%d, v%d" % (vT + 10, vT + 4, q0))
        I("v_xor_b32 v%d, 64, v%d" % (vT + 5, q0))
        I("v_add_u32 v%d, v%d, v%d" % (vT + 11, vT + 4, vT + 5))
        I("s_lshl_b32 s%d, s%d, 3" % (strd, strd))
        I("s_lshl_b32 s86, s%d, 12" % sW)
        I("s_mov_b32 s84, s%d" % src)
        I("s_mov_b32 s85, s%d" % strd)
        toks = []
        th = []
        for q in range(4):
            pre = ["s_add_u32 m0, s86, 0x%x" % (L_PACK + q * 1024)]
            if q:
                pre.append("s_add_u32 s84, s84, s85")
            th.append((pre, lambda q=q: toks.append(I("buffer_load_dwordx4 v%d, s[%d:%d], s84 offen lds" % (
                vT + 10 + (q & 1), R_PK, R_PK + 3)))))
        return toks, th

    def r1_issue(self):
        I = self.b.I
        a = vCS1 + 2
        I("v_and_b32 v%d, 7, v0" % a)
        I("v_subrev_u32 v%d, s%d, v%d" % (a, sC, a))
        I("v_lshlrev_b32 v%d, 12, v%d" % (a, a))
        I("s_lshl_b32 s%d, s%d, 7" % (sT, sRG))
        I("s_add_u32 s%d, s%d, s%d" % (sT, sT, sR1))
        I("v_add_u32 v%d, s%d, v%d" % (a, sT, a))
        I("v_add_u32 v%d, s%d, v%d" % (vT + 5, sR1, vTCH))
        I("v_cmp_gt_u32 vcc, 32, v0")
        I("v_cndmask_b32 v%d, v%d, v%d, vcc" % (a, a, vT + 5))
        self.r1_tok = I("buffer_load_dword v%d, v%d, %s, 0 offen sc1" % (vPOLL, a, self.ws()))

    def r1_check(self):
        b = self.b
        I = b.I
        lp, ld, lc = b.newlabel("Ltag"), b.newlabel("Ltagd"), b.newlabel("Ltagc")
        b.wait(self.r1_tok)
        I("s_branch %s" % lc)
        b.label(lp)
        self.Inc("buffer_load_dword v%d, v%d, %s, 0 offen sc1" % (vPOLL, vCS1 + 2, self.ws()))
        I("s_waitcnt vmcnt(0)")
        b.label(lc)
        I("v_subrev_u32 v%d, s%d, v%d" % (vPOLL, sTAG, vPOLL))
        I("v_cmp_gt_u32 vcc, 16, v%d" % vPOLL)
        I("s_cmp_eq_u64 vcc, exec")
        I("s_cbranch_scc1 %s" % ld)
        self.spin_guard(lp)
        b.label(ld)
        I("v_cmp_eq_u32 vcc, s%d, v%d" % (sXCC, vPOLL))
        I("s_cmp_eq_u32 vcc_hi, -1")
        I("s_cselect_b32 s%d, 1, 0" % sFAST)

    def touch_w(self, f0, m):
        I = self.b.I
        I("s_mul_i32 s%d, s%d, %d" % (sTC, sQ, m * 1024))
        I("s_add_u32 s%d, s%d, s%d" % (sTC, sTC, sPK))
        I("s_add_u32 s%d, s%d, %d" % (sTC, sTC, f0 * 1024))
        mask = (1 << (8 * m)) - 1
        I("s_mov_b32 exec_lo, 0x%x" % (mask & 0xffffffff))
        I("s_mov_b32 exec_hi, 0x%x" % (mask >> 32))
        I("buffer_load_dword v%d, v%d, %s, s%d offen sc1" % (vDUM, vTCH, self.ws(), sTC))
        I("s_mov_b64 exec, -1")

    def touch_ox(self, layer):
        I = self.b.I
        I("s_and_b32 s%d, s%d, 1" % (sT + 2, sW))
        I("s_lshl_b32 s%d, s%d, 15" % (sT, sT + 2))
        I("s_add_u32 s%d, s%d, s%d" % (sT, sT, sRG64))
        I("s_add_u32 s%d, s%d, 0x%x" % (sT, sT, self.buf("X", 2 * layer)))
        I("s_mul_i32 s%d, s%d, %d" % (sT + 1, sT + 2, self.hstride("O")))
        I("s_add_u32 s%d, s%d, s%d" % (sT + 1, sT + 1, self.rgs("O")))
        I("s_add_u32 s%d, s%d, 0x%x" % (sT + 1, sT + 1, self.buf("O", layer)))
        I("s_bitcmp1_b32 s%d, 1" % sW)
        I("s_cselect_b32 s%d, s%d, s%d" % (sT, sT, sT + 1))
        I("s_lshl_b32 s%d, s%d, 12" % (sT + 1, sC))
        I("s_add_u32 s%d, s%d, s%d" % (sT, sT, sT + 1))
        I("s_mov_b32 exec_hi, 0")
        I("buffer_load_dword v%d, v%d, %s, s%d offen sc1" % (vDUM, vTCH, self.ws(), sT))
        I("s_mov_b32 exec_hi, -1")

    def touch_h(self, layer):
        I = self.b.I
        I("s_lshr_b32 s%d, s%d, 1" % (sT + 1, sW))
        I("s_mul_i32 s%d, s%d, %d" % (sT + 1, sT + 1, HSZ // 2 - 12288))
        I("s_mul_i32 s%d, s%d, 6144" % (sT + 2, sW))
        I("s_add_u32 s%d, s%d, s%d" % (sT + 1, sT + 1, sT + 2))
        I("s_mul_i32 s%d, s%d, 12288" % (sT + 2, sC))
        I("s_add_u32 s%d, s%d, s%d" % (sT + 1, sT + 1, sT + 2))
        I("s_add_u32 s%d, s%d, s%d" % (sT + 1, sT + 1, sRGH))
        I("s_add_u32 s%d, s%d, 0x%x" % (sT + 1, sT + 1, self.buf("H", layer)))
        I("s_cmp_lt_u32 s%d, 7" % sC)
        I("s_cselect_b32 s%d, s%d, 0x%x" % (sT + 1, sT + 1, OOB))
        I("s_mov_b32 exec_hi, 0xffff")
        I("buffer_load_dword v%d, v%d, %s, s%d offen sc1" % (vDUM, vTCH, self.ws(), sT + 1))
        I("s_mov_b32 exec_hi, -1")

    def kv_items(self, hf, seqs):
        items = []
        for ks in range(16):
            c0 = "0" if ks == 0 else None
            for r in range(2):
                def mfs(fr, ks=ks, r=r, c0=c0):
                    kk, kv_ = ("qkv", 0, 2 * ks), ("qkv", 0, 2 * ks + 1)
                    th = [self.mf(vACC + 8 * hf + 4 * r, fr, self.w_get(kk), c0),
                          self.mf(vACC + 16 + 8 * hf + 4 * r, fr, self.w_get(kv_), c0)]
                    if hf == 1 and r == 1:
                        th.append(lambda: (self.w_release(kk), self.w_release(kv_)))
                    return th
                a, off = self.frag_addr(seqs[ks // 2], r, ks & 1)
                items.append((a, off, seqs[ks // 2], mfs))
        self.pinned.update(seqs)
        return items

    def kv_finish(self, hf, between=None):
        b = self.b
        rd = [b.I("ds_read_b128 %s, v%d offset:%d" % (vr(vAF + 4 * k, 4), vSTA, (k & 1) * 64 + (k >> 1) * 128)) for k in range(4)]
        if between:
            between()
        b.wait(rd)
        self.kv_epilogue(hf, vAF, vAF + 8)

    def attention(self, layer, xseqs):
        b = self.b
        I = self.I
        KVD, ZD = vS1, vS2
        one = vr(vONE, 4)
        self.bg_w = 0
        for p in range(2):
            c0 = "0" if p == 0 else None
            self.mf(KVD, vr(vACC + 8 * p, 4), vr(vACC + 16 + 8 * p, 4), c0)()
            self.mf(ZD, vr(vACC + 8 * p, 4), one, c0)()
        b.I("s_add_u32 s%d, s%d, %d" % (sKB, sKV, layer * KVL))
        b.I("s_and_b32 s%d, s%d, %d" % (sKB + 1, sRG, NC - 1))
        b.I("s_mul_i32 s%d, s%d, %d" % (sKB + 1, sKB + 1, KCS))
        b.I("s_add_u32 s%d, s%d, s%d" % (sKB + 1, sKB + 1, sKB))
        for r in range(4):
            b.I("ds_write_b32 v%d, v%d" % (vPOS + r, KVD + r))
        b.I("s_mov_b32 exec_lo, 0x00010001")
        b.I("s_mov_b32 exec_hi, 0x00010001")
        b.I("ds_write_b128 v%d, %s" % (vZP, vr(ZD, 4)))
        b.I("s_mov_b64 exec, -1")
        rd = [b.I("ds_read_b32 v%d, v%d offset:%d" % (vT + k, vKVL, 256 * k)) for k in range(5)]
        for k in range(5):
            b.wait(rd[k])
            if k == 4:
                b.I("s_mov_b32 exec_hi, 0xffff")
            b.I("buffer_atomic_add_f32 v%d, v%d, %s, s%d offen offset:%d" % (vT + k, vL4, self.ws(), sKB + 1, k * 256))
        b.I("s_mov_b64 exec, -1")
        self.stamp("atom")
        if layer:
            self.touch_ox(layer)
        else:
            lp, ld, lc = b.newlabel("Lr3"), b.newlabel("Lr3d"), b.newlabel("Lr3c")
            b.wait(self.r3_tok)
            b.I("s_branch %s" % lc)
            b.label(lp)
            self.Inc("buffer_load_dword v%d, v%d, %s, s%d offen sc1" % (vPOLL, vCS1, self.ws(), sR1))
            b.I("s_waitcnt vmcnt(0)")
            b.label(lc)
            b.I("v_subrev_u32 v%d, s%d, v%d" % (vPOLL, sTAG, vPOLL))
            b.I("v_cmp_gt_u32 vcc, 16, v%d" % vPOLL)
            b.I("s_cmp_eq_u64 vcc, exec")
            b.I("s_cbranch_scc1 %s" % ld)
            self.spin_guard(lp)
            b.label(ld)
            self.stamp("r3")
            b.wait(self.tokQ)
            b.I("s_barrier")
        self.w_burst(env("W_AT", [0, 0])[layer])
        self.last_bg = self.clock
        self.bg_w = env("W_Q", [99, 16])[layer]
        items = []
        for ks in range(16):
            ds, h = ks // 2, ks & 1
            c0 = "0" if ks == 0 else None
            def keep(fr):
                self.wq_reg = fr
                return []
            items.append(("tr", self.rq_base(ks) - L_WQ, None, keep))
            for rt in range(4):
                def mfs(fr, ks=ks, rt=rt, c0=c0):
                    w = self.wq_reg
                    th = [self.mf(vACC + 4 * rt, w, fr, c0)]
                    if layer == 0 and rt == 0:
                        th.append(self.mf(vCSQ, w, one, c0))
                    return th
                if layer == 0:
                    items.append(((vX0, vX1)[h], ds * 8192 + rt * 2048, None, mfs))
                else:
                    a, off = self.frag_addr(xseqs[rt >> 1][ds], rt & 1, h)
                    items.append((a, off, None, mfs))
        assert NC == 2
        KD = vACC + 32
        dst = [(KD, KD + 8), (KD + 4, KD + 12)]
        kvl = ["buffer_load_dwordx4 %s, v%d, %s, s%d offen offset:%d sc1" % (vr(dst[c][h], 4), (vL16, vC2)[h], self.ws(), sKB, c * KCS)
               for h in range(2) for c in range(NC)]
        b.I("v_add_u32 v%d, 0x400, v%d" % (vC2, vL16))
        b.I("v_cmp_gt_u32 vcc, 12, v0")
        b.I("v_mov_b32 v%d, 0x%x" % (vT + 8, OOB))
        b.I("v_cndmask_b32 v%d, v%d, v%d, vcc" % (vC2, vT + 8, vC2))
        kp = {}

        def kv_early():
            self.bg_w = 0
            kp["tok"] = [b.I(t) for t in kvl]
        j = env("H_KVP", [79, 99])[layer]
        self.gemm(items, None, 5, {j: [kv_early]})
        self.pinned = set()
        self.mine = self.seq - 1
        PQ = vACC + 16
        for rt in range(4):
            ab = vAB + 2 * rt
            for r in (0, 2):
                u = vT + 2 * ((rt * 2 + r // 2) % 8)
                I("v_pk_fma_f32 %s, %s, %s, %s op_sel:[0,1,1] op_sel_hi:[1,1,1]" % (p2(u), p2(vCSQ + r), p2(ab), p2(vK)))
        for rt in range(4):
            ab = vAB + 2 * rt
            for r in (0, 2):
                q_ = vACC + 4 * rt + r
                u = vT + 2 * ((rt * 2 + r // 2) % 8)
                I("v_pk_fma_f32 %s, %s, %s, %s op_sel:[0,0,0] op_sel_hi:[1,0,1]" % (p2(q_), p2(q_), p2(ab), p2(u)))
        if env("H_KVP", [79, 99])[layer] == 98:
            kv_early()
        self.phi_pairs([(vACC + 4 * rt + r, PQ + 2 * rt + r // 2) for rt in range(4) for r in (0, 2)])
        self.stamp("qpass")
        self.bg_w = 0
        self.w_burst(env("W_S1", [16, 0])[layer])
        b.I("s_add_u32 s%d, s%d, s%d" % (sT + 6, self.rgs("O"), sSTO))
        b.I("s_add_u32 s%d, s%d, 0x%x" % (sT + 6, sT + 6, self.buf("O", layer)))
        b.I("s_add_u32 s%d, s%d, %d" % (sT + 7, sT + 6, self.hstride("O")))
        b.I("v_lshl_add_u32 v%d, v0, 4, v%d" % (vAF + 16, vKVL))
        b.I("v_sub_u32 v%d, v%d, v%d" % (vAF + 16, vAF + 16, vL4))
        lp, ld, lc = b.newlabel("Lkv"), b.newlabel("Lkvd"), b.newlabel("Lkvc")
        if kp:
            b.wait(kp["tok"])
            b.I("s_branch %s" % lc)
        b.label(lp)
        if kp:
            for t in kvl:
                self.Inc(t)
            b.I("s_waitcnt vmcnt(0)")
        else:
            for t in kvl:
                b.I(t)
            b.wait(vm=0)
        b.label(lc)
        for h in range(2):
            for k in (0, 2):
                b.I("v_pk_add_f32 %s, %s, %s" % (p2(vT + 8 * h + k), p2(dst[0][h] + k), p2(dst[1][h] + k)))
        b.I("ds_write_b128 v%d, %s offset:1280" % (vAF + 16, vr(vT, 4)))
        b.I("s_mov_b64 exec, 0xfff")
        b.I("ds_write_b128 v%d, %s offset:2304" % (vAF + 16, vr(vT + 8, 4)))
        b.I("s_mov_b64 exec, -1")
        lz = b.I("ds_read_b128 %s, v%d offset:1280" % (vr(vT + 4, 4), vZP))
        lt = [b.I("ds_read_b32 v%d, v%d offset:1280" % (vT + 12 + r, vPOS + r)) for r in range(4)]
        b.I("v_cmp_eq_f32 vcc, 0x42000000, v%d" % (vT + 3))
        b.I("v_cmp_eq_f32 s[%d:%d], v%d, v%d" % (sT, sT + 1, vT + 11, vT + 3))
        b.I("s_and_b64 vcc, vcc, s[%d:%d]" % (sM3, sM3 + 1))
        b.I("s_and_b32 s%d, s%d, 0x888" % (sT, sT))
        b.I("s_xor_b32 s%d, s%d, 0x888" % (sT, sT))
        b.I("s_xor_b64 vcc, vcc, s[%d:%d]" % (sM3, sM3 + 1))
        b.I("s_or_b32 s%d, s%d, vcc_lo" % (sT, sT))
        b.I("s_or_b32 s%d, s%d, vcc_hi" % (sT, sT))
        b.I("s_cbranch_scc0 %s" % ld)
        b.I("s_waitcnt lgkmcnt(0)")
        self.spin_guard(lp)
        b.label(ld)
        self.stamp("kvsync")
        b.wait(lz)
        I("v_cvt_pk_bf16_f32 v%d, v%d, v%d" % (vT + 10, vT + 4, vT + 5))
        I("v_cvt_pk_bf16_f32 v%d, v%d, v%d" % (vT + 11, vT + 6, vT + 7))
        NUM, DEN = vACC, vAF
        for rt in range(4):
            I("v_mfma_f32_16x16x16_bf16 %s, %s, %s, 0" % (vr(DEN + 4 * rt, 4), p2(vT + 10), p2(PQ + 2 * rt)))
        b.wait(lt)
        I("v_cvt_pk_bf16_f32 v%d, v%d, v%d" % (vT + 8, vT + 12, vT + 13))
        I("v_cvt_pk_bf16_f32 v%d, v%d, v%d" % (vT + 9, vT + 14, vT + 15))
        for rt in range(4):
            I("v_mfma_f32_16x16x16_bf16 %s, %s, %s, 0" % (vr(NUM + 4 * rt, 4), p2(vT + 8), p2(PQ + 2 * rt)))
        for rt in range(4):
            I("v_add_f32 v%d, s%d, v%d" % (DEN + 4 * rt, sEPS, DEN + 4 * rt))
        for rt in range(4):
            I("v_rcp_f32 v%d, v%d" % (DEN + 4 * rt, DEN + 4 * rt))
        for rt in range(4):
            for r in (0, 2):
                n_ = NUM + 4 * rt + r
                I("v_pk_mul_f32 %s, %s, %s op_sel_hi:[1,0]" % (p2(n_), p2(n_), p2(DEN + 4 * rt)))
        for rt in range(4):
            for r in (0, 2):
                I("v_cvt_pk_bf16_f32 v%d, v%d, v%d" % (vT + 2 * rt + r // 2, NUM + 4 * rt + r, NUM + 4 * rt + r + 1))
        return self.stores2([self.pair_store(vT + 4 * pr, sT + 6 + pr, 0) for pr in range(2)], layer == 0 or self.sep)

    def park_wq(self):
        b = self.b
        b.I("s_lshl_b32 s%d, s%d, 14" % (sT, sW))
        b.I("s_add_u32 s%d, s%d, 0x%x" % (sT, sT, L_WQ))
        b.I("v_add_u32 v%d, s%d, v%d" % (vWQ, sT, vL16))
        for ks in range(16):
            b.I("ds_write_b128 v%d, %s offset:%d" % (vWQ, slot_r(self.wslot[("qkv", 0, 32 + ks)][0]), ks * 1024))
        b.wait(lg=0)
        for ks in range(16):
            self.w_release(("qkv", 0, 32 + ks))

    def cs1_some(self, n):
        one = vr(vONE, 4)
        k = 0
        while k < n and self.ncs < 16 and all(("w1", 0, 3 * self.ncs + t) in self.wslot and
                                             (self.wslot[("w1", 0, 3 * self.ncs + t)][1] is None or
                                              self.wslot[("w1", 0, 3 * self.ncs + t)][1][1] < self.b.vm_done) for t in range(3)):
            for t in range(3):
                self.mf(vCS1 + 4 * t, slot_r(self.wslot[("w1", 0, 3 * self.ncs + t)][0]), one, "0" if self.ncs == 0 else None)()
            self.ncs += 1
            k += 1

    def n16_items(self, name, layer, nks, hf, seqs):
        items = []
        for ks in range(nks):
            for r in range(2):
                def mfs(fr, ks=ks, r=r):
                    th = [self.mf(vX + 8 * hf + 4 * r, self.w_get((name, layer, ks)), fr)]
                    if hf == 1 and r == 1:
                        th.append(lambda: self.w_release((name, layer, ks)))
                    return th
                a, off = self.frag_addr(seqs[ks // 2], r, ks & 1)
                items.append((a, off, seqs[ks // 2], mfs))
        return items

    def n16_full(self, name, layer, nks, seqs):
        items = []
        for k0 in range(0, nks, 4):
            for hf in range(2):
                for ks in range(k0, k0 + 4):
                    for r in range(2):
                        rt = 2 * hf + r

                        def mfs(fr, ks=ks, rt=rt):
                            th = [self.mf(vX + 4 * rt, self.w_get((name, layer, ks)), fr)]
                            if rt == 3:
                                th.append(lambda: self.w_release((name, layer, ks)))
                            return th
                        sq = seqs[hf][ks // 2]
                        a, off = self.frag_addr(sq, r, ks & 1)
                        items.append((a, off, sq, mfs))
        return items

    def x_payload(self, idx, hf, wt):
        I = self.b.I
        o = vT + 2 + 4 * hf
        I("s_add_u32 s%d, s%d, s%d" % (sT + 6, sRG64, sSTO))
        I("s_add_u32 s%d, s%d, 0x%x" % (sT + 6, sT + 6, self.buf("X", idx) + hf * 32768))
        for j in range(4):
            I("v_cvt_pk_bf16_f32 v%d, v%d, v%d" % (o + j, vX + 8 * hf + 2 * j, vX + 8 * hf + 2 * j + 1))
        return self.stores2([self.pair_store(o, sT + 6, 0)], wt)

    def x_stats(self, wt):
        I = self.b.I
        I("s_add_u32 s%d, s%d, 8192" % (sT + 8, sSTP))
        s = vAF
        for rt in range(4):
            I("v_pk_add_f32 %s, %s, %s" % (p2(s + 4 * rt), p2(vX + 4 * rt), p2(vX + 4 * rt + 2)))
            I("v_pk_mul_f32 %s, %s, %s" % (p2(s + 4 * rt + 2), p2(vX + 4 * rt), p2(vX + 4 * rt)))
        for rt in range(4):
            I("v_pk_fma_f32 %s, %s, %s, %s" % (p2(s + 4 * rt + 2), p2(vX + 4 * rt + 2), p2(vX + 4 * rt + 2), p2(s + 4 * rt + 2)))
        for rt in range(4):
            I("v_add_f32 v%d, v%d, v%d" % (s + 4 * rt, s + 4 * rt, s + 4 * rt + 1))
            I("v_add_f32 v%d, v%d, v%d" % (s + 4 * rt + 2, s + 4 * rt + 2, s + 4 * rt + 3))
        for hf in range(2):
            q = s + 8 * hf
            I("v_permlane32_swap_b32 v%d, v%d" % (q, q + 4))
            I("v_permlane32_swap_b32 v%d, v%d" % (q + 2, q + 6))
        for hf in range(2):
            q = s + 8 * hf
            I("v_add_f32 v%d, v%d, v%d" % (q, q, q + 4))
            I("v_add_f32 v%d, v%d, v%d" % (q + 2, q + 2, q + 6))
        for hf in range(2):
            I("v_permlane16_swap_b32 v%d, v%d" % (s + 8 * hf, s + 8 * hf + 2))
        for hf in range(2):
            I("v_add_f32 v%d, v%d, v%d" % (s + 8 * hf, s + 8 * hf, s + 8 * hf + 2))
        tk2 = self.stores2(["buffer_store_dword v%d, v%d, %s, s%d offen" % (s + 8 * hf, vL4, self.ws(), (sSTP, sT + 8)[hf])
                            for hf in range(2)], wt)
        return tk2

    def x_half_now(self, idx, hf, wt):
        I = self.b.I
        x = vX + 8 * hf
        o = vT + 2
        s = o + 4
        I("s_add_u32 s%d, s%d, s%d" % (sT + 6, sRG64, sSTO))
        I("s_add_u32 s%d, s%d, 0x%x" % (sT + 6, sT + 6, self.buf("X", idx) + hf * 32768))
        I("s_add_u32 s%d, s%d, %d" % (sT + 7, sSTP, hf * 8192))
        for j in range(4):
            I("v_cvt_pk_bf16_f32 v%d, v%d, v%d" % (o + j, x + 2 * j, x + 2 * j + 1))
        for r in range(2):
            I("v_pk_add_f32 %s, %s, %s" % (p2(s + 4 * r), p2(x + 4 * r), p2(x + 4 * r + 2)))
            I("v_pk_mul_f32 %s, %s, %s" % (p2(s + 4 * r + 2), p2(x + 4 * r), p2(x + 4 * r)))
        tk = self.stores2([self.pair_store(o, sT + 6, 0)], wt)
        for r in range(2):
            I("v_pk_fma_f32 %s, %s, %s, %s" % (p2(s + 4 * r + 2), p2(x + 4 * r + 2), p2(x + 4 * r + 2), p2(s + 4 * r + 2)))
            I("v_add_f32 v%d, v%d, v%d" % (s + 4 * r, s + 4 * r, s + 4 * r + 1))
        for r in range(2):
            I("v_add_f32 v%d, v%d, v%d" % (s + 4 * r + 2, s + 4 * r + 2, s + 4 * r + 3))
        I("v_permlane32_swap_b32 v%d, v%d" % (s, s + 4))
        I("v_permlane32_swap_b32 v%d, v%d" % (s + 2, s + 6))
        I("v_add_f32 v%d, v%d, v%d" % (s, s, s + 4))
        I("v_add_f32 v%d, v%d, v%d" % (s + 2, s + 2, s + 6))
        I("v_permlane16_swap_b32 v%d, v%d" % (s, s + 2))
        I("v_add_f32 v%d, v%d, v%d" % (s, s, s + 2))
        tk += self.stores2(["buffer_store_dword v%d, v%d, %s, s%d offen" % (s, vL4, self.ws(), sT + 7)], wt)
        return self.new_pub(tk)

    def x_half_store(self, idx, hf, wt, delay):
        x = vX + 8 * hf
        o = vT + 1
        o += o & 1
        tk = []
        k, fl = self.new_pub(tk)
        s = o + 4
        e = ["s_add_u32 s%d, s%d, s%d" % (sT + 6, sRG64, sSTO),
             "s_add_u32 s%d, s%d, 0x%x" % (sT + 6, sT + 6, self.buf("X", idx) + hf * 32768),
             "s_add_u32 s%d, s%d, %d" % (sT + 7, sSTP, hf * 8192), 2]
        e += ["v_cvt_pk_bf16_f32 v%d, v%d, v%d" % (o + j, x + 2 * j, x + 2 * j + 1) for j in range(4)]
        for r in range(2):
            e += ["v_add_f32 v%d, v%d, v%d" % (s + 2 * r, x + 4 * r, x + 4 * r + 1),
                  "v_mul_f32 v%d, v%d, v%d" % (s + 2 * r + 1, x + 4 * r, x + 4 * r)]
        e.append(lambda: tk.extend(self.stores2([self.pair_store(o, sT + 6, 0)], wt)))
        for q in (1, 2, 3):
            for r in range(2):
                if q > 1:
                    e.append("v_add_f32 v%d, v%d, v%d" % (s + 2 * r, s + 2 * r, x + 4 * r + q))
                e.append("v_fmac_f32 v%d, v%d, v%d" % (s + 2 * r + 1, x + 4 * r + q, x + 4 * r + q))
        e += [1, "v_permlane32_swap_b32 v%d, v%d" % (s, s + 2), "v_permlane32_swap_b32 v%d, v%d" % (s + 1, s + 3), 1,
              "v_add_f32 v%d, v%d, v%d" % (s, s, s + 2), "v_add_f32 v%d, v%d, v%d" % (s + 1, s + 1, s + 3), 1,
              "v_permlane16_swap_b32 v%d, v%d" % (s, s + 1), 1, "v_add_f32 v%d, v%d, v%d" % (s, s, s + 1),
              lambda: tk.extend(self.stores2(["buffer_store_dword v%d, v%d, %s, s%d offen" % (s, vL4, self.ws(), sT + 7)], wt))]
        if delay is not None:
            e += [delay, fl]
        return k, e, fl

    def out_half_store(self, hf):
        x = vX + 8 * hf
        o = vT + 4 * hf
        e = ["s_add_u32 s%d, s%d, s%d" % (sT + 6, sRG64, sOUT), "s_add_u32 s%d, s%d, %d" % (sT + 6, sT + 6, hf * 32768), 2]
        e += ["v_cvt_pk_bf16_f32 v%d, v%d, v%d" % (o + j, x + 2 * j, x + 2 * j + 1) for j in range(4)]
        e += [1, "v_permlane16_swap_b32 v%d, v%d" % (o, o + 2), "v_permlane16_swap_b32 v%d, v%d" % (o + 1, o + 3),
              "buffer_store_dwordx4 %s, v%d, s[%d:%d], s%d offen%s" % (vr(o, 4), vOA, R_OUT, R_OUT + 3, sT + 6, env("OUTPOL", ""))]
        return e

    def p3_items(self, layer, seqs):
        items = []
        one = vr(vONE, 4)
        NA = env("NA", [8, 8])[layer]
        order = [(ks, rt) for ks in range(NA) for rt in (0, 1)] + [(ks, rt) for ks in range(NA) for rt in (2, 3)]
        order += [(ks, rt) for ks in range(NA, 16) for rt in range(4)]
        for ks, rt in order:
            c0 = "0" if ks == 0 else None
            if True:
                def mfs(fr, ks=ks, rt=rt, c0=c0):
                    th = []
                    for t in range(3):
                        w = self.w_get(("w1", layer, 3 * ks + t))
                        th.append(self.mf(vACC + 24 * (rt >> 1) + 8 * t + 4 * (rt & 1), w, fr, c0))
                        if layer == 0 and rt == 0 and ks >= self.ncs:
                            th.append(self.mf(vCS1 + 4 * t, w, one, c0))
                    if rt == 3:
                        th.append(lambda: [self.w_release(("w1", layer, 3 * ks + t)) for t in range(3)])
                    return th
                sq = seqs[rt >> 1][ks // 2]
                a, off = self.frag_addr(sq, rt & 1, ks & 1)
                items.append((a, off, sq, mfs))
        return items

    def silu(self, layer, hf, mid=None):
        b = self.b
        I = self.I
        for t in range(3):
            b.I("s_add_u32 s%d, s%d, 0x%x" % (sT + 6 + t, sH0 + t, self.buf("H", layer) + hf * (HSZ // 2)))
        sts = []
        for t in range(3):
            A = vACC + 24 * hf + 8 * t
            u = vT + 8 * (t & 1)
            for f in (mid or {}).get(t, []):
                f()
            for j in range(4):
                I("v_pk_mul_f32 %s, %s, %s op_sel:[0,1] op_sel_hi:[1,1]" % (
                    p2(u + 2 * j), p2(vCS1 + 4 * t + 2 * (j & 1)), p2(vAB + 4 * hf + 2 * (j >> 1))))
            for j in range(4):
                I("v_pk_fma_f32 %s, %s, %s, %s op_sel:[0,0,0] op_sel_hi:[1,0,1]" % (
                    p2(A + 2 * j), p2(A + 2 * j), p2(vAB + 4 * hf + 2 * (j >> 1)), p2(u + 2 * j)))
            for k in range(8):
                I("v_exp_f32 v%d, v%d" % (u + k, A + k))
            for j in range(4):
                I("v_pk_fma_f32 %s, %s, %s, %s op_sel:[0,0,0] op_sel_hi:[1,0,0] neg_lo:[0,1,1] neg_hi:[0,1,1]" % (
                    p2(u + 2 * j), p2(u + 2 * j), p2(vK), p2(vK)))
            for k in range(8):
                I("v_rcp_f32 v%d, v%d" % (u + k, u + k))
            for j in range(4):
                I("v_pk_mul_f32 %s, %s, %s" % (p2(A + 2 * j), p2(A + 2 * j), p2(u + 2 * j)))
            for j in range(4):
                I("v_cvt_pk_bf16_f32 v%d, v%d, v%d" % (A + j, A + 2 * j, A + 2 * j + 1))
            sts += self.stores2([self.pair_store(A, sT + 6 + t, 0)], 2 if layer == 1 and hf in env('WTH', []) else layer == 0 or self.sep)
        return sts

    def body(self):
        b = self.b
        for layer in range(2):
            R1, R2 = env("REV", (6, 43))
            if layer == 0:
                R1, R2 = 48, 43
            self.w_enqueue("w1", layer, F_W1, 48, range(47, R1 - 1, -1))
            self.w_enqueue("wo", layer, F_WO, 16)
            self.w_enqueue("w1", layer, F_W1, 48, range(R1))
            self.w_enqueue("w2", layer, F_W2, 43, range(42, R2 - 1, -1))
            self.w_enqueue("w2", layer, F_W2, 43, range(R2))
        AF = env("AFIRST", 12)
        G8c = env("G8C", [2, 2, 2, 2])
        G8w = env("G8W", [4, 4])
        G22 = env("G22", [2, 2, 2, 2, 2, 4, 4, 4])
        st = {}
        PA, PB = env("PA", [60, 62]), env("PB", [75, 78])
        self.pace_w = PA[0]
        self.startup()
        xs = None
        for layer in range(2):
            self.pace_w = PA[layer]
            tk = self.attention(layer, xs)
            k_o, fl = self.new_pub(tk)
            self.w_burst(env("W_PUB", [0, 0])[layer])
            fl()
            self.stamp("o_pub")
            self.poll_shadow(k_o, env("NCS", [0, 0])[0] if layer == 0 else 0)
            self.stamp("o_rdy")
            wt = 2 if layer == 1 and env('WTX', 0) else layer == 0 or self.sep
            D16, PW = env("D16", 9), env("PAIRW", True)
            oa = self.queue_half("O", layer, 0, 8, self.aq)
            ob = self.queue_half("O", layer, 1, 8, self.aq)
            self.a_burst(env("AF2", 10))
            self.bg_w = env("W_P2", [12, 10])[layer]

            def xa_out():
                st["k_xa"], st["fl_xa"] = self.new_pub(self.x_payload(2 * layer, 0, wt))
            self.gemm(self.n16_items("wo", layer, 16, 0, oa) + self.n16_items("wo", layer, 16, 1, ob),
                      self.split(oa, env("G2A", [2, 2, 4])) + self.split(ob, env("G2B", [4, 4])), D16,
                      {33: [xa_out], 33 + env("D_XA", 20): [lambda: st["fl_xa"]()]}, pairw=PW)
            self.bg_w = 0
            self.stamp("p2")
            tk = self.x_payload(2 * layer, 1, wt)
            k_s, fl_s = self.new_pub(tk + self.x_stats(wt))
            self.stamp("x_pub")
            self.poll_check(st["k_xa"])
            self.stamp("x_rdy")
            poll = lambda: st.update(tok=self.poll_issue())

            def when(k, plan, burst=0):
                def f():
                    self.poll_check(k() if callable(k) else k, st["tok"])
                    self.aq += plan
                    self.a_burst(burst)
                return f
            fl_s()
            xa = self.queue_half("X", 2 * layer, 0, 8, self.aq)
            pl_s = []
            xb = self.queue_half("X", 2 * layer, 1, 8, pl_s)
            xx = (xa, xb)
            sa = self.queue_stats(0, pl_s)
            sb = self.queue_stats(1, pl_s)
            if layer or FT:
                th = lambda: self.touch_h(layer)
                th.seq = -1
                th.prep = []
                pl_s.append(th)
            self.a_burst(env("AF3", 6))
            self.bg_w = 0
            self.pace_w = PB[layer]
            NA = env("NA", [8, 8])[layer]
            h = NA // 2
            groups = [xa[:2], xa[2:h], xb[:2], xb[2:h], xa[h:] + xb[h:]] if h > 2 else [xa[:2], xb[:2], xa[2:4] + xb[2:4], xa[4:] + xb[4:]]
            hooks, pre, post = {}, {}, {}
            s1a, bba = self.stats_stage1(sa, 0)
            s1b, bbb = self.stats_stage1(sb, 1)
            j = env("H_ST", 1)
            hooks[j] = [poll]
            hooks[j + env("CK3", 6)] = [when(k_s, pl_s, env("BU3", 4)), lambda: setattr(self, "bg_w", 99)]
            hooks[env("H_S1", 28)] = [lambda: self.side.extend(s1a + s1b)]

            def exch():
                bba()
                bbb()
                b.I("s_barrier")
                self.side.extend(self.stats_stage2(0, True, False) + self.stats_stage2(1, True, False))
            hooks[env("H_EX", 48)] = [exch]
            self.gemm(self.p3_items(layer, xx), groups, 6, hooks, pre, post, pairw=True)
            self.pinned = set()
            self.mine = self.seq - 1
            self.bg_w = env("W_SILU", [0, 0])[layer]
            self.stamp("p3")
            k_ha, fl_ha = self.new_pub(self.silu(layer, 0))
            self.bg_w = 0
            pl_ha, pl_hb, pl_ya = [], [], []
            ha = self.queue_half("H", layer, 0, 22, pl_ha)
            hb = self.queue_half("H", layer, 1, 22, pl_hb)

            def ha_go():
                self.stamp("silu")
                self.poll_check(k_ha)
                self.stamp("ha_rdy")
                self.aq += pl_ha
                self.a_burst(env("AF4", 4))
            SPL = env("SPLIT", 0)
            mid = {env("MID", 1): [fl_ha]}
            if SPL:
                mid.setdefault(2, []).append(ha_go)
            tkb = self.silu(layer, 1, mid)
            k_hb, fl_hb = self.new_pub(tkb)
            if not SPL:
                ha_go()
                fl_hb()
            if layer == 1 and "x" in env("CLEAN", ""):
                for j in range(8):
                    b.I("v_cvt_pk_bf16_f32 v%d, v%d, v%d" % (vT + j, vX + 2 * j, vX + 2 * j + 1))
                st["cx"] = []
                for hf in range(2):
                    b.I("s_add_u32 s%d, s%d, s%d" % (sT + 9 + hf, sRG64, sSTO))
                    b.I("s_add_u32 s%d, s%d, 0x%x" % (sT + 9 + hf, sT + 9 + hf, self.buf("X", 2) + hf * 32768))
                    st["cx"] += [self.pair_store(vT + 4 * hf, sT + 9 + hf, 0) + " sc1", 6]
                self.side += [30] + st["cx"]
            self.a_burst(AF - (self.seq_issued() - ha[0]))
            self.bg_w = 99
            j = env("H_P4A", 24)
            self.alead = env("ALEAD4", 16)
            self.pace_w = PA[1]
            items = self.n16_items("w2", layer, 43, 0, ha) + self.n16_items("w2", layer, 43, 1, hb)
            groups = self.split(ha, env("G22C", [2, 2, 4, 4, 4, 6])) + self.split(hb, G22)
            hooks = {j: [poll], j + env('CK4', 12): [when(k_hb, pl_hb, env('BU_HB', 4))]}
            if SPL:
                hooks[env("H_FLB", 6)] = [fl_hb]
            pre, post = {}, {}
            if layer == 0:
                sa = self.queue_stats(0, pl_ya)
                ya = self.queue_half("X", 1, 0, 8, pl_ya, rot=True)

                def y_out(hf, delay):
                    def f():
                        self.stamp("p4a" if hf == 0 else "p4b")
                        st["k_y%d" % hf], st["fl_y%d" % hf] = self.x_half_now(1, hf, self.sep)
                        self.pace_w = PA[1]
                        if hf:
                            self.alead = env("ALEAD", 99)
                    return f
                j = 86 + env("H_P4B", 44)
                hooks.update({87: [y_out(0, 0)], 87 + env("D_Y0", 22): [lambda: st["fl_y0"]()],
                              172 + env("D_Y1", 10): [lambda: st["fl_y1"]()], j: [poll], j + env('CK4', 12): [when(lambda: st["k_y0"], pl_ya, env("BU_YA", 6))], 172: [y_out(1, 0)],
                              172 + env("H_P1A", 24): [poll]})
                ng = len(groups)
                groups += self.split(ya, env("G8K", [2, 4, 2]))
                self.stats_hooks(sa, 0, False, True, 173, ng + 2, hooks, pre, post)
                items += self.kv_items(0, ya)
            else:
                hooks[85] = [lambda: (self.stamp("p4a"), self.side.extend(self.out_half_store(0)))]
                CL = env("CLEAN", "")

                def clean_h(hf):
                    e = []
                    for t in range(3):
                        e += ["s_add_u32 s%d, s%d, 0x%x" % (sT + 8, sH0 + t, self.buf("H", layer) + hf * (HSZ // 2)),
                              "buffer_store_dwordx4 %s, v%d, %s, s%d offen sc1" % (vr(vACC + 24 * hf + 8 * t, 4), vST, self.ws(), sT + 8), 4]
                    return lambda: self.side.extend(e)
                if "a" in CL:
                    hooks.setdefault(86 + env("H_CLA", 12), []).append(clean_h(0))
                if "b" in CL:
                    hooks.setdefault(86 + env("H_CLB", 60), []).append(clean_h(1))
            self.gemm(items, groups, D16, hooks, pre, post, pairw=PW)
            if layer == 0:
                self.stamp("p1a")
                pl = []
                sb = self.queue_stats(1, pl)
                yb = self.queue_half("X", 1, 1, 8, pl, rot=True)
                pl = pl[2:6] + pl[:2] + pl[6:]

                def go():
                    self.poll_check(st["k_y1"], st["tok"])
                    self.stamp("yb_rdy")
                    self.aq += pl
                    self.a_burst(env('AF1', 6))
                self.kv_finish(0, go)
                hooks, pre, post = {}, {}, {}
                self.stats_hooks(sb, 1, False, True, 0, 1, hooks, pre, post)
                self.gemm(self.kv_items(1, yb), self.split(yb, env('G1B', [4, 4])), 8, hooks, pre, post, pairw=True)
                self.kv_finish(1)
                self.stamp("p1b")
                xs = [ya, yb]
            else:
                self.stamp("p4b")
                self.side = self.out_half_store(1)
                self.side_flush()
                lx = b.newlabel("Lep")
                b.I("s_or_b32 s%d, s2, s%d" % (sT, sW))
                b.I("s_cbranch_scc1 %s" % lx)
                b.I("s_add_u32 s%d, s%d, 16" % (sT, sEP))
                b.I("v_mov_b32 v%d, s%d" % (vT + 9, sT))
                b.I("s_mov_b32 s%d, 0x%x" % (sT, WS_EP))
                b.I("s_mov_b64 exec, 1")
                self.Inc("buffer_store_dword v%d, off, %s, s%d sc1" % (vT + 9, self.ws(), sT))
                b.I("s_mov_b64 exec, -1")
                b.label(lx)
                self.stamp("end")
        if self.diag:
            b.I("s_lshl_b32 s%d, s2, 2" % sT)
            b.I("s_add_u32 s%d, s%d, s%d" % (sT, sT, sW))
            b.I("s_lshl_b32 s%d, s%d, 8" % (sT, sT))
            b.I("s_add_u32 s%d, s%d, 0x%x" % (sT, sT, WS_STAMP))
            b.I("buffer_store_dword v%d, v%d, %s, s%d offen" % (vSTAMP, vL4, self.ws(), sT))
            if env("RT", 0):
                b.I("s_add_u32 s%d, s%d, 0x40000" % (sT, sT))
                b.I("buffer_store_dword v255, v%d, %s, s%d offen" % (vL4, self.ws(), sT))
        if self.diag and env("PROBE", 0):
            lx, lp = b.newlabel("Lpr"), b.newlabel("Lprl")
            i0, i1 = [61 if n == "entry" else [i for i, m in enumerate(self.stamp_names) if m == n[0]][n[1]] for n in env("PROBE", 0)]
            b.I("s_cmp_lg_u32 s2, %d" % env("PWG", 100))
            b.I("s_cbranch_scc1 %s" % lx)
            b.I("v_readlane_b32 s%d, v%d, %d" % (sT, vSTAMP, i0))
            b.I("v_readlane_b32 s%d, v%d, %d" % (sT + 1, vSTAMP, i1))
            b.I("v_readlane_b32 s%d, v%d, %d" % (sT + 2, vSTAMP, len(self.stamp_names) - 1))
            b.I("s_sub_u32 s%d, s%d, s%d" % (sT + 1, sT + 1, sT))
            b.I("s_mul_i32 s%d, s%d, %d" % (sT + 1, sT + 1, env("PMUL", 1)))
            b.I("s_add_u32 s%d, s%d, 4800" % (sT + 1, sT + 1))
            b.label(lp)
            b.I("s_memtime s[94:95]")
            b.I("s_waitcnt lgkmcnt(0)")
            b.I("s_sub_u32 s%d, s94, s%d" % (sT, sT + 2))
            b.I("s_cmp_lt_u32 s%d, s%d" % (sT, sT + 1))
            b.I("s_cbranch_scc1 %s" % lp)
            b.label(lx)
        b.label("L_end")
        b.I("s_endpgm")
        for t in self.cold:
            b.raw(t)

    def emit(self):
        self.body()
        head = """; @launch grid=(256,1,1) block=(256,1,1) lds=%d
; persistent fused kernel: 32 row groups (64 rows) x 8 column groups (generated by my own script)
.amdgcn_target "amdgcn-amd-amdhsa--gfx950"
.text
.globl %s_kernel
.p2align 8
.type %s_kernel,@function
%s_kernel:
""" % (LDS_BYTES, NAME, NAME, NAME)
        tail = """.section .rodata,"a"
.p2align 6
.amdhsa_kernel %s_kernel
  .amdhsa_next_free_vgpr 512
  .amdhsa_next_free_sgpr 102
  .amdhsa_accum_offset 256
  .amdhsa_group_segment_fixed_size 0
  .amdhsa_kernarg_size 72
  .amdhsa_user_sgpr_count 2
  .amdhsa_user_sgpr_kernarg_segment_ptr 1
  .amdhsa_system_sgpr_workgroup_id_x 1
.end_amdhsa_kernel
""" % NAME
        return head + self.b.text() + tail


if __name__ == "__main__":
    import argparse
    ap = argparse.ArgumentParser()
    ap.add_argument("-o", default="cdna_kernels/%s.s" % NAME)
    ap.add_argument("--diag", action="store_true")
    ap.add_argument("--sep", action="store_true")
    a = ap.parse_args()
    g = Gen(a.diag, a.sep)
    txt = g.emit()
    if a.diag:
        txt = txt.replace(".amdgcn_target", "; stamps: " + ",".join(g.stamp_names) + "\n.amdgcn_target", 1)
    open(a.o, "w").write(txt)
    print("instructions", g.b.nins, "nops", g.b.nops, file=sys.stderr)
```

```python
import sys
import os
sys.path.insert(0, os.path.dirname(os.path.abspath(__file__)))
from asmb import Builder, vr

NAME = "interleave_layers__linear_attn_block__dense_activation_silu__prompt"


def env(name, default):
    v = os.environ.get(name)
    return default if v is None else eval(v)


PKW = 107 * 1024
WS_FL = 0x380000
WS_EP = 0x390000
WS_R2 = 0x398000
WS_KV = 0x480000
NC = env('NC', 2)
KCS = env('KCS', 1344)
KVH = NC * KCS
KVL = 32 * KVH
KB0 = env('KB0', 0)
WS_R3 = 0x3D0000
WS_ST = 0x400000
WS_O = 0x600000
WS_X = 0x800000
WS_H = 0xA00000
HSZ = 22 * 8192
WS_STAMP = 0x3000000
WS_SIZE = 0x3100000 if '--diag' in sys.argv else 0x1000000
OOB = 0x4000000 if '--diag' in sys.argv else 0x1000000
F_WO, F_W1, F_W2 = 0, 16, 64

L_RING = 65536
L_RQ = 106496
L_WQ = 81920
L_PACK = 131072
L_KVI = 147456
L_STA = 157696
L_EX = 158720
NR = env('NR', 8)
NSLOT = 20
LDS_BYTES = 163840

S_X, S_WQ, S_WO, S_W1, S_W2, S_OUT, S_DBG, S_WS = 4, 6, 8, 12, 14, 16, 18, 20
R_X, R_WQ, R_WS, R_OUT, R_PK = 24, 28, 32, 36, 44
sR1, sQ, sTC, sTAG, sEP = 3, 10, 11, 22, 23
sROT, sSTP, sSTC, sW1K = 40, 41, 42, 43
sRG, sC, sW, sFAST, sPK, sKV, sFL, sRG64, sRGH, sSTO = 48, 49, 50, 51, 52, 53, 54, 55, 56, 57
sH0 = 58
sSPIN = 61
sEPS = 62
sOUT = 63
sXS = 64
sRB2, sRO2 = 65, 66
sM1, sM2, sM3, sDIAG = 68, 70, 72, 74
sT = 76
sKB = 88
sPKC, sXCC, sMYF, sW2K, sAB, sAO = 96, 97, 98, 99, 100, 101

vL16, vA1, vKVL, vDMA, vST = 1, 2, 3, 4, 5
vX0, vX1, vOW0, vOW1, vTR, vXS0, vXS1, vWS = 6, 7, 8, 9, 10, 11, 12, 13
vWQ = 13
vSB, vEX, vSWR, vOA = 8, 9, 10, 11
vFL, vL4, vSTAMP, vSTA, vSTQ, vC2 = 14, 15, 16, 17, 18, 19
vX = 20
vCSQ, vCSK, vCSV = 36, 40, 42
vCS1 = 44
vONE = 56
vACC = 60
vAF = 108
NAF = 10
vAB = 148
vT = 156
vPOS = 172
vZP, vSW, vDUM, vTCH, vPOLL, vDM2 = 176, 177, 178, 179, 180, 181
vK = 182
vS1, vS2 = 184, 188
vTQ = 195
vW1 = 192
SLOTS = [("a", 4 * i) for i in range(64)] + [("v", 196 + 4 * i) for i in range(15)]
PACE = env("PACE", 36)
FT = env("FTOUCH", 1)
WMIN = env("WMIN", 10)
AMIN = env("AMIN", 5)
RDSLACK = env("RDSLACK", 2)
SIDEMIN = env("SIDEMIN", 1)
COST = {"mfma": 16, "trans": 8, "ds": 4, "valu": 4, "perm": 4, "dpp": 4, "rdlane": 4, "wrlane": 4, "salu": 2, "vmem": 8}
K_L2E = "op_sel:[0,0] op_sel_hi:[1,0]"


def slot_r(s):
    return vr(s[1], 4, s[0])


def p2(r):
    return "v[%d:%d]" % (r, r + 1)


class Gen:
    def __init__(self, diag=False, sep=False):
        self.b = Builder()
        self.diag = diag
        self.sep = sep
        self.free = list(SLOTS[:-1] if env('RT', 0) else SLOTS)
        self.wq = []
        self.wslot = {}
        self.pk_cur = None
        self.nstamp = 0
        self.stamp_names = []
        self.aq = []
        self.atok = {}
        self.seq = 0
        self.consumed = -1
        self.mine = -1
        self.pub_mine = {}
        self.clock = 0
        self.last_bg = -1000
        self.bg_w = 0
        self.pace_w = 70
        self.in_bg = False
        self.npub = 0
        self.ncs = 0
        self.gstamp = False
        self.vclock = {}
        bI, bw = self.b.I, self.b.wait

        def I2(t):
            tok = bI(t)
            if tok and tok[0] == "vm":
                self.vclock[tok[1]] = self.clock
            return tok

        def w2(*toks, **kw):
            if os.environ.get("SLACK"):
                flat = []
                for t in toks:
                    if t is None:
                        continue
                    flat += t if isinstance(t, list) else [t]
                v = [i for k, i in flat if k == "vm" and i >= self.b.vm_done]
                if v:
                    d = self.clock - self.vclock.get(max(v), 0)
                    if d < int(os.environ["SLACK"]):
                        print("   slack %4d at clock %d (after %s)" % (d, self.clock, self.last_stamp), file=sys.stderr)
            return bw(*toks, **kw)
        self.b.I, self.b.wait = I2, w2
        self.last_stamp = ""
        self.flagged = set()
        self.cold = []
        self.slotted = False
        self.prepped = None
        self.wprep = []
        self.pinned = set()
        self.side = []
        self.side_rate = 2
        self.w_issued = 0
        self.w_need = 0
        self.w_cur = None
        self.w_index = {}
        self.wlead = env('WLEAD', 14)
        self.cur_seq = 0
        self.alead = env('ALEAD', 99)

    def I(self, t):
        tok = self.b.I(t)
        k = self.b.hists[0][-1].kind if self.b.hists and self.b.hists[0] else "salu"
        self.clock += COST.get(k, 4)
        if not self.in_bg and not self.slotted and k in ("mfma", "valu", "trans"):
            c = self.bg_pick()
            if c is not None and c[1]:
                self.bg_emit(c[0], True)
        return tok

    def side_step(self, n):
        self.in_bg = True
        done = 0
        while n > 0 and self.side:
            e = self.side[0]
            if isinstance(e, int):
                if e <= 1:
                    self.side.pop(0)
                else:
                    self.side[0] = e - 1
                break
            self.side.pop(0)
            if isinstance(e, str):
                self.b.I(e)
            else:
                e()
            n -= 1
            done += 1
        self.in_bg = False
        return done

    def side_flush(self):
        while self.side:
            self.side_step(1000)

    def bg_pick(self):
        a_ok = self.aq and self.aq[0].seq - NSLOT <= self.consumed
        w_ok = self.bg_w > 0 and self.wq and self.free
        same = w_ok and self.wq[0][0][:2] == self.w_cur
        el = self.clock - self.last_bg
        if not self.slotted and a_ok:
            return "A", el >= env("PACEV", 60)
        if self.prepped == "A" and a_ok:
            return "A", el >= PACE or self.aq[0].seq - self.cur_seq < AMIN
        if a_ok and getattr(self.aq[0], "urgent", False):
            return "A", True
        if same and self.w_issued - self.w_need < WMIN:
            return "W", True
        if a_ok and w_ok:
            a_lead = self.aq[0].seq - self.cur_seq
            if a_lead > self.alead or (same and self.w_issued - self.w_need < self.wlead and a_lead > 3):
                a_ok = False
        if a_ok:
            return "A", el >= PACE or self.aq[0].seq - self.cur_seq < AMIN
        if w_ok:
            return "W", el >= self.pace_w
        return None

    def bg_prep_list(self, kind):
        if kind == "A":
            return self.aq[0].prep
        grp = self.wq[0][1] // 4
        if self.pk_cur != grp and not os.environ.get("NOW"):
            self.pk_cur = grp
            self.wprep = ["s_add_u32 s%d, s%d, 0x%x" % (sPKC, sPK, grp * 4096)]
        return self.wprep

    def bg_emit(self, kind, inline):
        self.in_bg = True
        if kind == "A":
            self.a_pop()
        else:
            self.w_issue()
            self.bg_w -= 1
        self.last_bg = self.clock
        self.in_bg = False

    def a_pop(self):
        th = self.aq.pop(0)
        while th.prep:
            self.b.I(th.prep.pop(0))
        th()
        self.prepped = None

    def slot_fill(self, rd_lag, issue_read):
        c = self.bg_pick()
        if c is not None and c[1] and rd_lag <= RDSLACK and not self.bg_prep_list(c[0]):
            self.bg_emit(c[0], False)
            self.clock += 8
            return
        budget = 2
        if rd_lag > 0:
            issue_read()
            budget -= 1
            if rd_lag > 1:
                issue_read()
                budget -= 1
        if c is not None:
            pl = self.bg_prep_list(c[0])
            while budget > 0 and pl:
                self.b.I(pl.pop(0))
                budget -= 1
                if c[0] == "A":
                    self.prepped = "A"
        self.side_step(max(budget, SIDEMIN))

    def Inc(self, t):
        self.b.I(t)
        self.b.vm_issued -= 1

    def stamp(self, name):
        self.last_stamp = name
        if os.environ.get("WLOG"):
            print("%-8s clock %6d  wq left %3d next %s free %d aq %d" % (
                name, self.clock, len(self.wq), self.wq[0][0] if self.wq else None, len(self.free), len(self.aq)), file=sys.stderr)
        if not self.diag:
            return
        b = self.b
        k = self.nstamp
        self.nstamp += 1
        assert k < 62
        b.comment("stamp %d %s" % (k, name))
        b.I("s_memtime s[94:95]")
        b.wait(lg=0)
        b.I("v_writelane_b32 v%d, s94, %d" % (vSTAMP, k))
        if env("RT", 0):
            b.I("s_memrealtime s[94:95]")
            b.wait(lg=0)
            b.I("v_writelane_b32 v255, s94, %d" % k)
        if name in ("start", "end"):
            b.I("s_memrealtime s[94:95]")
            b.wait(lg=0)
            b.I("v_writelane_b32 v%d, s94, %d" % (vSTAMP, 62 if name == "start" else 63))
        self.stamp_names.append(name)

    def buf(self, kind, idx):
        base = {"O": WS_O if self.sep else WS_H, "X": WS_X, "H": WS_H}[kind]
        return base + (idx * 0x1000000 if self.sep else 0)

    def hstride(self, kind):
        return HSZ // 2 if self.rgs(kind) == sRGH else 32768

    def rgs(self, kind):
        return sRGH if kind == "H" or (kind == "O" and not self.sep) else sRG64

    def srd(self, r, ptr, size):
        I = self.b.I
        I("s_mov_b32 s%d, s%d" % (r, ptr))
        I("s_and_b32 s%d, s%d, 0xffff" % (r + 1, ptr + 1))
        I("s_mov_b32 s%d, 0x%x" % (r + 2, size))
        I("s_mov_b32 s%d, 0x20000" % (r + 3))

    def ws(self):
        return "s[%d:%d]" % (R_WS, R_WS + 3)

    def w_enqueue(self, name, layer, f0, n, order=None):
        for i in (range(n) if order is None else order):
            self.w_index[(name, layer, i)] = len(self.w_index)
            self.wq.append(((name, layer, i), f0 + i))

    def w_issue(self):
        key, f = self.wq.pop(0)
        s = self.free.pop(0)
        self.w_issued += 1
        if os.environ.get("NOW"):
            self.wslot[key] = (s, None)
            return
        grp = f // 4
        while self.wprep:
            self.b.I(self.wprep.pop(0))
        if self.pk_cur != grp:
            self.b.I("s_add_u32 s%d, s%d, 0x%x" % (sPKC, sPK, grp * 4096))
            self.pk_cur = grp
        va = vW1 + key[2] % 3 if key[0] == "w1" and env("SKIPW1", 1) else vL16
        if os.environ.get("FAKEW"):
            self.b.I("s_mov_b32 s%d, s%d" % (sPKC, sPK))
        tok = self.b.I("buffer_load_dwordx4 %s, v%d, %s, s%d offen offset:%d sc1%s" % (
            slot_r(s), va, self.ws(), sPKC, (f % 4) * 1024, " nt" if env("NT", lambda k: False)(key) else ""))
        self.wslot[key] = (s, tok)

    def w_burst(self, n):
        k = 0
        while k < n and self.wq and self.free:
            self.w_issue()
            k += 1
        self.last_bg = self.clock

    def w_get(self, key):
        self.w_need = max(self.w_need, self.w_index.get(key, 0))
        self.w_cur = key[:2]
        if key not in self.wslot:
            print("WARNING: late W load", key, file=sys.stderr)
        while key not in self.wslot:
            assert self.wq and self.free, "no free slot for %s" % (key,)
            self.w_issue()
        s, tok = self.wslot[key]
        self.b.wait(tok)
        return slot_r(s)

    def w_release(self, key):
        s, _ = self.wslot.pop(key)
        self.free.append(s)

    def stores2(self, texts, wt=False):
        b = self.b
        if wt == 2 or (wt and not FT):
            return [b.I(t + " sc1") for t in texts]
        ls, lj = b.newlabel("Lslow"), b.newlabel("Ljoin")
        b.I("s_cmp_eq_u32 s%d, 1" % sFAST)
        b.I("s_cbranch_scc0 %s" % ls)
        b.saved.pop(ls)
        toks = [b.I(t) for t in texts]
        b.raw(lj + ":")
        self.cold += [ls + ":"] + ["    " + t + " sc1" for t in texts] + ["    s_branch " + lj]
        return toks

    def pair_store(self, p, sreg, off):
        for k in range(2):
            self.b.I("v_permlane16_swap_b32 v%d, v%d" % (p + k, p + 2 + k))
        return "buffer_store_dwordx4 %s, v%d, %s, s%d offen offset:%d" % (vr(p, 4), vST, self.ws(), sreg, off)

    def spin_guard(self, lab_loop):
        b = self.b
        b.I("s_sub_u32 s%d, s%d, 1" % (sSPIN, sSPIN))
        b.I("s_cmp_lg_u32 s%d, 0" % sSPIN)
        b.I("s_cbranch_scc1 %s" % lab_loop)
        b.I("s_branch L_end")

    def new_pub(self, toks):
        self.npub += 1
        k = self.npub
        self.pub_mine[k] = self.mine

        def flag():
            b = self.b
            b.I("s_add_u32 s%d, s%d, %d" % (sT, sTAG, k))
            b.I("v_mov_b32 v%d, s%d" % (vC2, sT))
            b.wait(toks)
            b.I("s_mov_b64 exec, 1")
            self.stores2(["buffer_store_dword v%d, off, %s, s%d" % (vC2, self.ws(), sMYF)])
            b.I("s_mov_b64 exec, -1")
            self.flagged.add(k)
        return k, flag

    def poll_issue(self):
        return self.b.I("buffer_load_dword v%d, v%d, %s, s%d offen sc1" % (vPOLL, vFL, self.ws(), sFL))

    def poll_shadow(self, k, ncs):
        if not ncs:
            return self.poll_check(k)
        tok = self.poll_issue()
        self.cs1_some(ncs)
        self.poll_check(k, tok)
        self.b.wait(vm=0)

    def poll_check(self, k, tok=None):
        b = self.b
        if k not in self.flagged:
            print("WARNING: side stream late for flag", k, file=sys.stderr)
        while k not in self.flagged:
            assert self.side, "flag %d never raised before its poll" % k
            self.side_step(1)
        lp, ld, lc = b.newlabel("Lpoll"), b.newlabel("Lpd"), b.newlabel("Lpc")
        b.I("s_add_u32 s%d, s%d, %d" % (sT, sTAG, k))
        if tok is None and env("DPOLL", 0):
            ld_ = "buffer_load_dword v%%d, v%d, %s, s%d offen sc1" % (vFL, self.ws(), sFL)
            b.I(ld_ % vPOLL)
            for _ in range(env("DPOLL", 0)):
                b.I("s_nop 15")
            b.label(lp)
            for r0, r1 in ((vPOLL, vT), (vT, vPOLL)):
                self.Inc(ld_ % r1)
                b.I("s_waitcnt vmcnt(1)")
                b.I("v_subrev_u32 v%d, s%d, v%d" % (r0, sT, r0))
                b.I("v_cmp_gt_u32 vcc, %d, v%d" % (16 - k, r0))
                b.I("s_cmp_eq_u64 vcc, exec")
                b.I("s_cbranch_scc1 %s" % ld)
            self.spin_guard(lp)
            b.label(ld)
            b.vm_done = b.vm_issued
            self.consumed = max(self.consumed, self.pub_mine[k])
            return
        if tok is not None:
            b.wait(tok)
            b.I("s_branch %s" % lc)
        b.label(lp)
        self.Inc("buffer_load_dword v%d, v%d, %s, s%d offen sc1" % (vPOLL, vFL, self.ws(), sFL))
        if tok is None:
            b.wait(vm=0)
        else:
            b.I("s_waitcnt vmcnt(0)")
        b.label(lc)
        b.I("v_subrev_u32 v%d, s%d, v%d" % (vPOLL, sT, vPOLL))
        b.I("v_cmp_gt_u32 vcc, %d, v%d" % (16 - k, vPOLL))
        b.I("s_cmp_eq_u64 vcc, exec")
        b.I("s_cbranch_scc1 %s" % ld)
        self.spin_guard(lp)
        b.label(ld)
        self.consumed = max(self.consumed, self.pub_mine[k])

    def queue_stats(self, hf, plan):
        b = self.b
        s0 = self.seq
        assert s0 % 2 == 0
        self.seq += 2
        for j in range(2):
            def th(j=j):
                assert s0 + 1 - NSLOT <= self.consumed
                self.atok.setdefault(s0, []).append(b.I(
                    "buffer_load_dwordx4 v%d, %s, s%d offen offset:%d sc1 lds" % (vL16, self.ws(), sAO, j * 1024)))
            th.seq = s0 + 1
            th.urgent = True
            th.prep = [] if j else ["s_add_u32 m0, s%d, 0x%x" % (sW2K, (s0 % NSLOT) * 4096),
                                    "s_add_u32 s%d, s%d, 0x%x" % (sAO, sSTC, hf * 8192)]
            plan.append(th)
        return s0

    def queue_half(self, kind, idx, hf, nds, plan, rot=False, ds0=0):
        b = self.b
        seqs = []
        base = self.buf(kind, idx) + hf * self.hstride(kind)
        rg = self.rgs(kind)
        assert self.seq % 2 == 0 and nds % 2 == 0
        for ds in range(ds0, ds0 + nds):
            sq = self.seq
            self.seq += 1
            seqs.append(sq)
            s0 = sq & ~1

            def th(sq=sq, s0=s0):
                assert s0 + 1 - NSLOT <= self.consumed, "ring slot busy"
                tk = b.I("buffer_load_dwordx4 v%d, %s, s%d offen offset:%d sc1 lds" % (vDM2, self.ws(), sAO, (sq & 1) * 1024))
                if sq & 1:
                    self.atok[s0] = self.atok[s0 + 1] = [tk]
            th.seq = s0 + 1
            m0 = "s_add_u32 m0, s%d, 0x%x" % (sW2K, (sq % NSLOT) * 4096)
            if sq & 1:
                th.prep = []
            elif not rot:
                th.prep = [m0, "s_add_u32 s%d, s%d, 0x%x" % (sAO, rg, base + ds * 4096)]
            else:
                if ds == 0:
                    th.prep = ["s_add_u32 s%d, s%d, 0x%x" % (sAB, sRB2, base), "s_mov_b32 s%d, s%d" % (sXS, sRO2)]
                else:
                    th.prep = ["s_add_u32 s%d, s%d, 0x2000" % (sXS, sXS), "s_and_b32 s%d, s%d, 0x7fff" % (sXS, sXS)]
                th.prep += [m0, "s_add_u32 s%d, s%d, s%d" % (sAO, sAB, sXS)]
            plan.append(th)
        return seqs

    def queue_both(self, kind, idx, nds, plan):
        out = ([], [])
        for d0 in range(0, nds, 2):
            for hf in range(2):
                out[hf].extend(self.queue_half(kind, idx, hf, 2, plan, ds0=d0))
        return out

    def seq_issued(self):
        return self.aq[0].seq if self.aq else self.seq

    def a_burst(self, n):
        k = 0
        while k < n and self.aq and self.aq[0].seq - NSLOT <= self.consumed:
            self.a_pop()
            k += 1
        self.last_bg = self.clock

    def frag_addr(self, sq, r, h):
        off = (sq % NSLOT) * 4096 + r * 2048 + h * 1024
        return ((vL16, vA1)[off >> 16], off & 0xffff)

    def gemm_prep(self, items, groups=None, depth=8, hooks=None, pre=None, post=None, pairw=False, buf0=0):
        b = self.b
        hooks, pre, post = hooks or {}, pre or {}, post or {}
        n = len(items)
        toks = [None] * n
        grp_of = {}
        for gi, g in enumerate(groups or []):
            for sq in g:
                grp_of[sq] = gi
        opened = set()
        st = {"ip": 0}

        rem = [1 << 30] * (n + 1)
        for k in range(n - 1, -1, -1):
            rem[k] = min(rem[k + 1], items[k][2] if items[k][2] is not None else 1 << 30)

        def reg(k):
            return vr(vAF + 4 * ((k + buf0) % NAF), 4)

        def issue():
            k = st["ip"]
            a, off, sq, _ = items[k]
            if sq in grp_of and grp_of[sq] not in opened:
                gi = grp_of[sq]
                opened.add(gi)
                while any(s not in self.atok for s in groups[gi]):
                    self.a_pop()
                    self.last_bg = self.clock
                for f in pre.get(gi, []):
                    f()
                if self.gstamp:
                    self.stamp("g%d?" % gi)
                b.wait(*[self.atok[s] for s in groups[gi]])
                b.I("s_barrier")
                if self.gstamp:
                    self.stamp("g%d!" % gi)
                self.consumed = max(self.consumed, self.mine)
                for f in post.get(gi, []):
                    f()
            if a == "tr":
                r0 = vAF + 4 * ((k + buf0) % NAF)
                self.I("ds_read_b64_tr_b16 %s, v%d offset:%d" % (p2(r0), vTQ, off))
                toks[k] = self.I("ds_read_b64_tr_b16 %s, v%d offset:%d" % (p2(r0 + 2), vTQ, off + 512))
            else:
                toks[k] = self.I("ds_read_b128 %s, v%d offset:%d" % (reg(k), a, off))
            st["ip"] += 1

        def prestart(m=None):
            while st["ip"] < min(depth if m is None else m, n):
                issue()

        def run():
            prestart()
            self.slotted = True
            for j in range(n):
                thunks = items[j][3](reg(j))
                while st["ip"] <= min(j + (1 if pairw else 0), n - 1):
                    issue()
                if pairw and j % 2 == 0 and j + 1 < st["ip"]:
                    b.wait(toks[j + 1])
                b.wait(toks[j])
                if items[j][2] is not None:
                    self.cur_seq = items[j][2]
                    lim = min(self.pinned) - 3 if self.pinned else 1 << 30
                    self.mine = max(self.mine, min(rem[j] - 1, lim))
                if not thunks and st["ip"] < min(n, j + 1 + depth):
                    issue()
                for th in thunks:
                    n0 = b.nins
                    th()
                    if b.nins > n0:
                        self.slot_fill(min(n, j + 1 + depth) - st["ip"], issue)
                for f in hooks.get(j, []):
                    f()
            self.slotted = False
            self.side_flush()
            sq = [it[2] for it in items if it[2] is not None]
            if sq:
                self.cur_seq = max(sq) + 1
                lim = min(self.pinned) - 3 if self.pinned else 1 << 30
                self.mine = max(self.mine, min(max(sq), lim))
        return prestart, run

    def gemm(self, *a, **k):
        self.gemm_prep(*a, **k)[1]()

    def mf(self, d, a, bb, c=None):
        dd = vr(d, 4)
        cc = dd if c is None else c
        return lambda: self.I("v_mfma_f32_16x16x32_bf16 %s, %s, %s, %s" % (dd, a, bb, cc))

    @staticmethod
    def split(seqs, sizes):
        out, k = [], 0
        for s in sizes:
            out.append(seqs[k:k + s])
            k += s
        assert k == len(seqs)
        return out

    def stats_stage1(self, s0, hf):
        b = self.b
        t = vS1
        tk = {}
        def landed():
            while len(self.atok.get(s0, [])) < 2:
                self.a_pop()
            b.wait(self.atok[s0])
        out = ["v_add_u32 v%d, 0x%x, v%d" % (vT, (s0 % NSLOT) * 4096, vSB), landed]
        for k in range(4):
            out.append(lambda k=k: tk.__setitem__(k, b.I("ds_read2st64_b32 %s, v%d offset0:%d offset1:%d" % (
                p2(t + 2 * k), vT, 2 * k, 2 * k + 1))))
        out += [6, lambda: b.wait(tk[3])]
        out += ["v_add_f32 v%d, v%d, v%d" % (t + k, t + k, t + 4 + k) for k in range(4)]
        out += ["v_add_f32 v%d, v%d, v%d" % (t + k, t + k, t + 2 + k) for k in range(2)]
        out += ["v_add_f32 v%d, v%d, v%d" % (t, t, t + 1)]
        out.append(lambda: tk.__setitem__("w", b.I("ds_write_b32 v%d, v%d offset:%d" % (vSW, t, hf * 1024))))

        def before_barrier():
            self.side_flush()
            b.wait(tk["w"])
        return out, before_barrier

    def stats_stage2(self, hf, scale, kv):
        b = self.b
        t = vS1
        tk = {}
        out = []
        for k in range(2):
            out.append(lambda k=k: tk.__setitem__(k, b.I("ds_read2st64_b32 %s, v%d offset0:%d offset1:%d" % (
                p2(t + 2 * k), vEX, hf * 4 + 2 * k, hf * 4 + 2 * k + 1))))
        a0, b0, a1, b1 = [vAB + 4 * hf + k for k in range(4)]
        out += [6, lambda: b.wait(tk[1]),
                "v_add_f32 v%d, v%d, v%d" % (t, t, t + 2), "v_add_f32 v%d, v%d, v%d" % (t + 1, t + 1, t + 3),
                "v_add_f32 v%d, v%d, v%d" % (t, t, t + 1), "v_mul_f32 v%d, 0x3b000000, v%d" % (t, t),
                "v_mov_b32 v%d, v%d" % (t + 1, t), 1,
                "v_permlane16_swap_b32 v%d, v%d" % (t, t + 1), 1,
                "v_fma_f32 v%d, -v%d, v%d, v%d" % (t + 1, t, t, t + 1), "v_max_f32 v%d, 0, v%d" % (t + 1, t + 1),
                "v_add_f32 v%d, 0x3727c5ac, v%d" % (t + 1, t + 1), "v_rsq_f32 v%d, v%d" % (a0, t + 1), 1]
        if scale:
            out.append("v_mul_f32_e64 v%d, -v%d, v%d" % (a0, a0, vK))
        out.append("v_mul_f32_e64 v%d, -v%d, v%d" % (b0, t, a0))
        if kv:
            def wr():
                b.I("s_mov_b32 exec_lo, 0xffff")
                b.I("s_mov_b32 exec_hi, 0xffff")
                b.I("ds_write_b32 v%d, v%d" % (vSWR, a0))
                b.I("ds_write_b32 v%d, v%d offset:128" % (vSWR, b0))
                b.I("s_mov_b64 exec, -1")
            out.append(wr)
        out += ["v_mov_b32 v%d, v%d" % (a1, a0), "v_mov_b32 v%d, v%d" % (b1, b0), 1,
                "v_permlane32_swap_b32 v%d, v%d" % (a0, a1), "v_permlane32_swap_b32 v%d, v%d" % (b0, b1)]
        return out

    def stats_hooks(self, s0, hf, scale, kv, j1, gi, hooks, pre, post):
        s1, bb = self.stats_stage1(s0, hf)
        hooks.setdefault(j1, []).append(lambda: self.side.extend(s1))
        pre.setdefault(gi, []).append(bb)
        post.setdefault(gi, []).append(lambda: self.side.extend(self.stats_stage2(hf, scale, kv)))

    def stats_startup(self):
        b = self.b
        I = b.I
        t = vT
        I("v_mul_f32 v%d, 0x3b000000, v%d" % (t + 1, vS1))
        I("v_cndmask_b32 v%d, v%d, v%d, s[%d:%d]" % (t, vS2, vS2 + 1, sM1, sM1 + 1))
        I("v_cndmask_b32 v%d, v%d, v%d, s[%d:%d]" % (t, t, vS2 + 2, sM2, sM2 + 1))
        I("v_cndmask_b32 v%d, v%d, v%d, s[%d:%d]" % (t, t, vS2 + 3, sM3, sM3 + 1))
        I("v_mul_f32 v%d, 0x3b000000, v%d" % (t, t))
        I("v_fma_f32 v%d, -v%d, v%d, v%d" % (t, t + 1, t + 1, t))
        I("v_max_f32 v%d, 0, v%d" % (t, t))
        I("v_add_f32 v%d, 0x3727c5ac, v%d" % (t, t))
        I("v_rsq_f32 v%d, v%d" % (t + 2, t))
        I("v_lshlrev_b32 v%d, 1, v%d" % (t + 4, vSW))
        I("v_mul_f32_e64 v%d, -v%d, v%d" % (t + 3, t + 1, t + 2))
        I("v_subrev_u32 v%d, 0x%x, v%d" % (t + 4, L_STA - 512, t + 4))
        I("s_mov_b64 exec, s[%d:%d]" % (sDIAG, sDIAG + 1))
        I("ds_write_b32 v%d, v%d" % (vSW, t + 2))
        I("ds_write_b32 v%d, v%d offset:256" % (vSW, t + 3))
        I("ds_write_b64 v%d, v[%d:%d]" % (t + 4, t + 2, t + 3))
        I("s_mov_b64 exec, -1")
        b.wait(lg=0)
        I("s_barrier")

    def phi_pairs(self, pairs):
        I = self.I
        for c0 in range(0, len(pairs), 4):
            grp = pairs[c0:c0 + 4]
            for k, (t, d) in enumerate(grp):
                I("v_pk_mul_f32 %s, %s, %s %s" % (p2(vT + 2 * k), p2(t), p2(vK), K_L2E))
            for k, (t, d) in enumerate(grp):
                I("v_exp_f32_e64 v%d, v%d clamp" % (vT + 2 * k, vT + 2 * k))
                I("v_max_f32 v%d, v%d, v%d" % (t, vK + 1, t))
                I("v_exp_f32_e64 v%d, v%d clamp" % (vT + 2 * k + 1, vT + 2 * k + 1))
                I("v_max_f32 v%d, v%d, v%d" % (t + 1, vK + 1, t + 1))
            for k, (t, d) in enumerate(grp):
                I("v_pk_add_f32 %s, %s, %s" % (p2(t), p2(t), p2(vT + 2 * k)))
            for k, (t, d) in enumerate(grp):
                I("v_cvt_pk_bf16_f32 v%d, v%d, v%d" % (d, t, t + 1))

    def kv_epilogue(self, hf, ra, rb):
        I = self.I
        K, V = vACC + 8 * hf, vACC + 16 + 8 * hf
        for j in range(4):
            I("v_pk_fma_f32 %s, %s, %s, %s op_sel:[0,0,1] op_sel_hi:[1,1,1]" % (p2(vT + 2 * j), p2(rb + 2 * j), p2(vCSK), p2(vK)))
            I("v_pk_mul_f32 %s, %s, %s" % (p2(vT + 8 + 2 * j), p2(rb + 2 * j), p2(vCSV)))
        for j in range(4):
            I("v_pk_fma_f32 %s, %s, %s, %s" % (p2(K + 2 * j), p2(ra + 2 * j), p2(K + 2 * j), p2(vT + 2 * j)))
            I("v_pk_fma_f32 %s, %s, %s, %s" % (p2(V + 2 * j), p2(ra + 2 * j), p2(V + 2 * j), p2(vT + 8 + 2 * j)))
        for j in range(4):
            I("v_cvt_pk_bf16_f32 v%d, v%d, v%d" % (V + j, V + 2 * j, V + 2 * j + 1))
        self.phi_pairs([(K + 2 * j, K + j) for j in range(4)])

    def startup(self):
        b = self.b
        I = b.I
        i_, g_, l3, l7, q0, tc = vT + 2, vT + 3, vT + 6, vT + 7, vT + 8, vT + 9
        if self.diag:
            I("s_memtime s[92:93]")
        I("s_cmp_ge_u32 s2, 256")
        I("s_cbranch_scc1 L_end")
        I("s_load_dwordx4 s[4:7], s[0:1], 0")
        I("s_load_dwordx2 s[20:21], s[0:1], 64")
        I("s_load_dwordx2 s[8:9], s[0:1], 16")
        I("s_load_dwordx4 s[12:15], s[0:1], 32")
        I("s_load_dwordx4 s[16:19], s[0:1], 48")
        I("s_getpc_b64 s[90:91]")
        b.label("L_pc")
        I("v_lshrrev_b32 v%d, 6, v0" % vT)
        I("v_and_b32 v0, 63, v0")
        I("v_readfirstlane_b32 s%d, v%d" % (sW, vT))
        I("s_lshr_b32 s%d, s2, 3" % (sT + 1))
        I("s_lshl_b32 s%d, s%d, 2" % (sT + 3, sT + 1))
        I("s_add_u32 s%d, s%d, s%d" % (sT + 3, sT + 3, sW))
        I("s_and_b32 s%d, s%d, 31" % (sT, sT + 3))
        I("s_lshl_b32 s%d, s%d, 11" % (sT, sT))
        I("v_lshlrev_b32 v%d, 7, v0" % vTCH)
        I("v_add_u32 v%d, s%d, v%d" % (vT, sT, vTCH))
        I("v_min_u32 v%d, L_end-L_pc, v%d" % (vT, vT))
        I("s_mov_b64 exec, 0xffff")
        I("global_load_dword v%d, v%d, s[90:91]" % (vDUM, vT))
        I("s_mov_b64 exec, -1")
        I("s_and_b32 s%d, s2, 7" % sROT)
        I("s_and_b32 s%d, s%d, 7" % (sC, sT + 1))
        I("s_lshr_b32 s%d, s%d, 3" % (sQ, sT + 1))
        I("s_lshl_b32 s%d, s%d, 2" % (sT, sROT))
        I("s_add_u32 s%d, s%d, s%d" % (sRG, sT, sQ))
        I("s_lshl_b32 s%d, s%d, 16" % (sRG64, sRG))
        I("s_lshl_b32 s%d, s%d, 11" % (sW2K, sW))
        I("v_lshrrev_b32 v%d, 4, v0" % g_)
        I("v_and_b32 v%d, 15, v0" % i_)
        tw, tx = vT + 12, vT + 13
        I("s_mul_i32 s%d, s%d, %d" % (sT + 2, sT + 3, 4 * 3072))
        I("v_lshlrev_b32 v%d, 10, v0" % tx)
        I("v_add_u32 v%d, s%d, v%d" % (tw, sT + 2, tx))
        I("s_lshl_b32 s%d, s%d, 18" % (sT + 2, sROT))
        I("s_lshl_b32 s%d, s%d, 11" % (sT, sT + 3))
        I("s_add_u32 s%d, s%d, s%d" % (sT, sT, sT + 2))
        I("v_add_u32 v%d, s%d, v%d" % (tx, sT, tx))
        I("v_lshrrev_b32 v%d, 3, v0" % l3)
        I("v_and_b32 v%d, 7, v0" % l7)
        I("v_xor_b32 v%d, v%d, v%d" % (vT + 4, l7, g_))
        I("v_lshlrev_b32 v%d, 4, v%d" % (vT + 4, vT + 4))
        I("v_lshl_add_u32 v%d, v%d, 10, v%d" % (vT + 4, l3, vT + 4))
        I("s_lshl_b32 s%d, s%d, 14" % (sT + 1, sW))
        I("v_add_u32 v%d, s%d, v%d" % (vXS0, sT + 1, vT + 4))
        I("v_xor_b32 v%d, 64, v%d" % (vXS1, vXS0))
        I("v_add_u32 v%d, 7168, v%d" % (vXS1, vXS1))
        I("v_and_b32 v%d, 1, v%d" % (vT + 4, g_))
        I("v_lshlrev_b32 v%d, 1, v%d" % (vT + 4, vT + 4))
        I("v_xor_b32 v%d, v%d, v%d" % (q0, l7, vT + 4))
        I("v_lshlrev_b32 v%d, 4, v%d" % (q0, q0))
        I("s_and_b32 s%d, s%d, 1" % (sT + 1, sW))
        I("s_lshl_b32 s%d, s%d, 6" % (sT + 1, sT + 1))
        I("v_xor_b32 v%d, s%d, v%d" % (vT + 4, sT + 1, q0))
        I("s_lshl_b32 s%d, s%d, 3" % (sT + 1, sW))
        I("v_add_u32 v%d, s%d, v%d" % (vT + 5, sT + 1, l3))
        I("v_mul_u32_u24 v%d, 3072, v%d" % (vT + 5, vT + 5))
        I("v_add_u32 v%d, v%d, v%d" % (vWS, vT + 4, vT + 5))
        sXO, sWO_, sRB = sAB, sAO, 93
        I("s_lshl_b32 s%d, s%d, 7" % (sWO_, sC))
        I("v_add_u32 v%d, s%d, v%d" % (vWS, sWO_, vWS))
        if self.diag:
            b.wait(lg=0)
            I("s_mov_b32 s91, s92")
        I("s_add_u32 s%d, s%d, 0x%x" % (sRB, sW2K, L_RING - 1024))
        I("s_lshl_b32 s%d, s%d, 7" % (sXO, sROT))
        I("s_mul_i32 s%d, s%d, %d" % (sWO_, sROT, 64 * 3072))
        if self.diag:
            I("v_mov_b32 v%d, 0" % vSTAMP)
        b.wait(lg=0)
        if self.diag:
            I("v_writelane_b32 v%d, s91, 61" % vSTAMP)
        self.stamp("start")
        I("s_add_u32 s88, s%d, 0x%x" % (S_WS, WS_EP))
        I("s_addc_u32 s89, s%d, 0" % (S_WS + 1))
        I("s_load_dword s%d, s[88:89], 0" % sEP)
        self.srd(R_WQ, S_WQ, 512 * 3072)
        I("s_add_u32 s%d, s%d, s%d" % (R_X, S_X, sRG64))
        I("s_addc_u32 s%d, s%d, 0" % (R_X + 1, S_X + 1))
        I("s_and_b32 s%d, s%d, 0xffff" % (R_X + 1, R_X + 1))
        I("s_mov_b32 s%d, 0x10000" % (R_X + 2))
        I("s_mov_b32 s%d, 0x20000" % (R_X + 3))
        tokA, tokW = {}, {}

        def issue_thunks(ks):
            th = []
            if ks % 2 == 0:
                ds = ks // 2
                tokA[ds] = []
                pre = ["s_add_u32 m0, s%d, 0x%x" % (sW2K, ds * 8192)]
                if ds:
                    pre += ["s_add_u32 s%d, s%d, 128" % (sXO, sXO), "s_and_b32 s%d, s%d, 0x380" % (sXO, sXO)]
                th.append((pre, lambda: tokA[ds].append(
                    I("buffer_load_dwordx4 v%d, s[%d:%d], s%d offen lds" % (vXS0, R_X, R_X + 3, sXO)))))
                th.append(([], lambda: tokA[ds].append(
                    I("buffer_load_dwordx4 v%d, s[%d:%d], s%d offen offset:1024 lds" % (vXS1, R_X, R_X + 3, sXO)))))
            tokW[ks] = []
            for p in range(2):
                pre = []
                if p == 0:
                    if ks:
                        pre.append("s_add_u32 s%d, s%d, %d" % (sWO_, sWO_, 32 * 3072))
                        if ks % 2 == 0:
                            pre += ["s_cmp_eq_u32 s%d, %d" % (sWO_, 512 * 3072), "s_cselect_b32 s%d, 0, s%d" % (sWO_, sWO_)]
                    pre.append("s_add_u32 m0, s%d, 0x%x" % (sRB, (ks % NR) * 8192))
                th.append((pre, lambda p=p: tokW[ks].append(I("buffer_load_dwordx4 v%d, s[%d:%d], s%d offen offset:%d lds" % (
                    vWS, R_WQ, R_WQ + 3, sWO_, (p + 1) * 1024)))))
            return th

        tokQ = []

        def rq_base(ks):
            return L_PACK + ks * 4096 if ks < 4 else L_WQ + (ks - 4) * 4096

        def q_thunk(ks):
            pre = ["s_add_u32 s%d, s%d, %d" % (sWO_, sWO_, 32 * 3072)]
            if ks % 2 == 0:
                pre += ["s_cmp_eq_u32 s%d, %d" % (sWO_, 512 * 3072), "s_cselect_b32 s%d, 0, s%d" % (sWO_, sWO_)]
            pre.append("s_add_u32 m0, s%d, 0x%x" % (sW1K, rq_base(ks)))
            return (pre, lambda: tokQ.append(I("buffer_load_dwordx4 v%d, s[%d:%d], s%d offen lds" % (vWS, R_WQ, R_WQ + 3, sWO_))))
        self.tokQ, self.rq_base = tokQ, rq_base

        def issue_now(ks):
            for pre, th in issue_thunks(ks):
                for t in pre:
                    I(t)
                th()

        if env("T0", 1):
            self.srd(R_PK, S_X, 2048 * 1024)
            if env("XT", 1):
                I("v_lshrrev_b32 v%d, 3, v%d" % (vT + 4, tx))
                I("v_lshlrev_b32 v%d, 10, v0" % (vT + 4))
                I("v_sub_u32 v%d, v%d, v%d" % (tx, tx, vT + 4))
                I("v_add_u32 v%d, v%d, v%d" % (tx, tx, vTCH))
            for ptr, srd, v, mask in ((S_WQ, R_WQ, tw, 0xdb6 if env('TQ', -1) >= 0 else 0xfff), (S_X, R_PK, tx, 0xffff if env("XT", 1) else 3)):
                I("s_sub_u32 s%d, 0x180, s%d" % (sT, ptr))
                I("s_and_b32 s%d, s%d, 0x%x" % (sT, sT, 0 if env("XT", 1) and ptr == S_X else 0x380))
                I("s_mov_b64 exec, 0x%x" % mask)
                I("buffer_load_dword v%d, v%d, s[%d:%d], s%d offen" % (vDUM, v, srd, srd + 3, sT))
            I("s_mov_b64 exec, -1")
        NFIRST = env("NFIRST", 4)
        for ks in range(NFIRST):
            issue_now(ks)
        self.stamp("first")
        I("s_getreg_b32 s%d, hwreg(HW_REG_XCC_ID, 0, 4)" % sXCC)
        I("s_mov_b32 s%d, 0x100000" % sSPIN)
        self.srd(R_WS, S_WS, WS_SIZE)
        self.srd(R_OUT, S_OUT, 2048 * 1024)
        I("v_lshlrev_b32 v%d, 4, v0" % vL16)
        I("v_lshlrev_b32 v%d, 2, v0" % vL4)
        I("s_lshl_b32 s%d, s%d, 10" % (sW1K, sW))
        I("s_lshl_b32 s%d, s%d, 2" % (sT, sC))
        I("s_add_u32 s%d, s%d, s%d" % (sT, sT, sW))
        I("s_mul_i32 s%d, s%d, %d" % (sKV, sT, KVH))
        I("s_add_u32 s%d, s%d, 0x%x" % (sKV, sKV, WS_KV + KB0))
        I("v_mov_b32 v%d, 0" % vC2)
        I("s_and_b32 s%d, s%d, 15" % (sT + 1, sRG))
        I("s_mul_i32 s%d, s%d, %d" % (sT + 1, sT + 1, KVH // 16))
        I("s_add_u32 s%d, s%d, s%d" % (sT + 1, sT + 1, sKV))
        I("s_lshr_b32 s%d, s%d, 4" % (sT + 2, sRG))
        I("s_mul_i32 s%d, s%d, %d" % (sT + 2, sT + 2, KVL))
        I("s_add_u32 s%d, s%d, s%d" % (sT + 1, sT + 1, sT + 2))
        I("v_mov_b32 v%d, 0" % vPOLL)
        I("v_mov_b32 v%d, 0" % (vPOLL + 1))
        I("v_lshlrev_b32 v%d, 3, v0" % (vT + 4))
        assert KVH % 128 == 0 and KVH // 128 <= 64
        mask = (1 << (KVH // 128)) - 1
        I("s_mov_b32 exec_lo, 0x%x" % (mask & 0xffffffff))
        I("s_mov_b32 exec_hi, 0x%x" % (mask >> 32))
        ztok = I("buffer_store_dwordx2 %s, v%d, %s, s%d offen sc1" % (p2(vPOLL), vT + 4, self.ws(), sT + 1))
        I("s_mov_b64 exec, -1")
        I("s_mul_i32 s%d, s%d, %d" % (sPK, sT, PKW))
        I("s_lshl_b32 s%d, s%d, 7" % (sFL, sRG))
        I("s_lshl_b32 s%d, s%d, 12" % (sR1, sC))
        I("s_add_u32 s%d, s%d, 0x%x" % (sR1, sR1, WS_R2))
        I("s_add_u32 s%d, s%d, 0x%x" % (sFL, sFL, WS_FL))
        I("s_lshl_b32 s%d, s%d, 2" % (sMYF, sT))
        I("s_add_u32 s%d, s%d, s%d" % (sMYF, sMYF, sFL))
        I("s_lshl_b32 s%d, s%d, 14" % (sSTC, sRG))
        I("s_add_u32 s%d, s%d, 0x%x" % (sSTC, sSTC, WS_ST))
        I("s_lshl_b32 s%d, s%d, 8" % (sSTP, sT))
        I("s_add_u32 s%d, s%d, s%d" % (sSTP, sSTP, sSTC))
        I("s_add_u32 s%d, s%d, s%d" % (sSTC, sSTC, sW2K))
        I("s_mul_i32 s%d, s%d, %d" % (sRGH, sRG, HSZ))
        I("s_lshl_b32 s%d, s%d, 12" % (sSTO, sC))
        I("s_lshl_b32 s%d, s%d, 9" % (sT + 1, sW))
        I("s_add_u32 s%d, s%d, s%d" % (sSTO, sSTO, sT + 1))
        I("s_lshl_b32 s%d, s%d, 5" % (sOUT, sT))
        I("s_mul_i32 s%d, s%d, 3" % (sT, sT))
        for t in range(3):
            I("s_add_u32 s%d, s%d, %d" % (sT + 1, sT, t))
            I("s_lshr_b32 s%d, s%d, 2" % (sT + 2, sT + 1))
            I("s_lshl_b32 s%d, s%d, 12" % (sT + 2, sT + 2))
            I("s_and_b32 s%d, s%d, 3" % (sT + 3, sT + 1))
            I("s_lshl_b32 s%d, s%d, 9" % (sT + 3, sT + 3))
            I("s_add_u32 s%d, s%d, s%d" % (sT + 2, sT + 2, sT + 3))
            I("s_add_u32 s%d, s%d, s%d" % (sT + 2, sT + 2, sRGH))
            I("s_cmp_lt_u32 s%d, 86" % (sT + 1))
            I("s_cselect_b32 s%d, s%d, 0x%x" % (sH0 + t, sT + 2, OOB))
            I("s_cselect_b32 s%d, 0, 0x%x" % (sT + 2, OOB))
            I("v_add_u32 v%d, s%d, v%d" % (vW1 + t, sT + 2, vL16))
        I("v_add_u32 v%d, 0x10000, v%d" % (vA1, vL16))
        I("v_add_u32 v%d, s%d, v%d" % (vDMA, sW1K, vL16))
        I("v_add_u32 v%d, s%d, v%d" % (vDM2, sW2K, vL16))
        I("s_lshr_b32 s%d, s%d, 1" % (sT + 1, sW))
        I("s_add_u32 s%d, s%d, s%d" % (sRO2, sROT, sT + 1))
        I("s_and_b32 s%d, s%d, 7" % (sRO2, sRO2))
        I("s_lshl_b32 s%d, s%d, 12" % (sRO2, sRO2))
        I("s_lshl_b32 s%d, s%d, 12" % (sT + 1, sT + 1))
        I("s_sub_u32 s%d, s%d, s%d" % (sRB2, sRG64, sT + 1))
        I("v_and_b32 v%d, 0x7c, v%d" % (vFL, vL4))
        I("v_lshrrev_b32 v%d, 1, v%d" % (vT + 4, g_))
        I("v_lshlrev_b32 v%d, 8, v%d" % (vT + 4, vT + 4))
        I("v_lshl_add_u32 v%d, v%d, 4, v%d" % (vT + 4, i_, vT + 4))
        I("v_and_b32 v%d, 1, v%d" % (vT + 5, g_))
        I("v_lshl_add_u32 v%d, v%d, 11, v%d" % (vST, vT + 5, vT + 4))
        I("v_lshlrev_b32 v%d, 4, v%d" % (vSTA, g_))
        I("v_add_u32 v%d, 0x%x, v%d" % (vSTA, L_STA, vSTA))
        I("v_lshlrev_b32 v%d, 3, v%d" % (vSTQ, i_))
        I("v_add_u32 v%d, 0x%x, v%d" % (vSTQ, L_STA + 512, vSTQ))
        I("s_lshl_b32 s%d, s%d, 6" % (sT, sW))
        I("s_add_u32 s%d, s%d, 0x%x" % (sT, sT, L_STA))
        I("v_lshlrev_b32 v%d, 2, v%d" % (vSW, i_))
        I("v_add_u32 v%d, s%d, v%d" % (vSW, sT, vSW))
        I("v_lshrrev_b32 v%d, 3, v%d" % (vT + 4, i_))
        I("v_lshlrev_b32 v%d, 10, v%d" % (vT + 4, vT + 4))
        I("v_and_b32 v%d, 7, v%d" % (vT + 5, i_))
        I("v_lshl_add_u32 v%d, v%d, 7, v%d" % (vT + 4, vT + 5, vT + 4))
        I("v_lshrrev_b32 v%d, 1, v%d" % (vT + 5, i_))
        I("v_xor_b32 v%d, v%d, v%d" % (vT + 5, vT + 5, g_))
        I("v_lshl_add_u32 v%d, v%d, 4, v%d" % (vX0, vT + 5, vT + 4))
        I("v_xor_b32 v%d, 64, v%d" % (vX1, vX0))
        I("v_add_u32 v%d, s%d, v%d" % (vOW0, sW2K, vX0))
        I("v_add_u32 v%d, s%d, v%d" % (vOW1, sW2K, vX1))
        I("v_bfe_u32 v%d, v0, 2, 2" % (vT + 4))
        I("v_bfe_u32 v%d, v0, 3, 1" % (vT + 5))
        I("v_lshlrev_b32 v%d, 1, v%d" % (vT + 5, vT + 5))
        I("v_bfe_u32 v%d, v0, 4, 1" % (vT + 10))
        I("v_lshl_add_u32 v%d, v%d, 2, v%d" % (vT + 5, vT + 10, vT + 5))
        I("v_bfe_u32 v%d, v0, 1, 1" % (vT + 10))
        I("v_xor_b32 v%d, v%d, v%d" % (vT + 5, vT + 5, vT + 10))
        I("v_lshlrev_b32 v%d, 4, v%d" % (vT + 5, vT + 5))
        I("v_lshl_add_u32 v%d, v%d, 7, v%d" % (tc, vT + 4, vT + 5))
        I("v_and_b32 v%d, 1, v0" % (vT + 10))
        I("v_lshl_add_u32 v%d, v%d, 3, v%d" % (tc, vT + 10, tc))
        I("s_lshl_b32 s%d, s%d, 5" % (sT + 1, sW))
        I("v_xor_b32 v%d, s%d, v%d" % (vT + 4, sT + 1, tc))
        I("v_lshl_add_u32 v%d, v%d, 10, v%d" % (vTQ, g_, vT + 4))
        I("v_add_u32 v%d, 0x%x, v%d" % (vTQ, L_WQ, vTQ))
        I("v_lshl_add_u32 v%d, v%d, 11, v%d" % (vT + 4, g_, vT + 4))
        I("v_add_u32 v%d, 0x%x, v%d" % (vTR, L_RING, vT + 4))
        for k in range(4):
            I("v_mov_b32 v%d, 0x3f803f80" % (vONE + k))
        I("v_mov_b32 v%d, 0x3fb8aa3b" % vK)
        I("v_mov_b32 v%d, 0x358637bd" % (vK + 1))
        I("s_mul_i32 s%d, s%d, 2560" % (sT, sW))
        I("s_add_u32 s%d, s%d, 0x%x" % (sT, sT, L_KVI))
        I("v_add_u32 v%d, s%d, v%d" % (vKVL, sT, vL4))
        for r in range(4):
            I("v_add_u32 v%d, %d, v0" % (vT + 4, 64 * r))
            I("v_mul_u32_u24 v%d, 4370, v%d" % (vT + 5, vT + 4))
            I("v_lshrrev_b32 v%d, 16, v%d" % (vT + 5, vT + 5))
            I("v_add_u32 v%d, v%d, v%d" % (vT + 4, vT + 4, vT + 5))
            I("v_lshlrev_b32 v%d, 2, v%d" % (vT + 4, vT + 4))
            I("v_add_u32 v%d, s%d, v%d" % (vPOS + r, sT, vT + 4))
        I("v_lshrrev_b32 v%d, 1, v%d" % (vT + 4, g_))
        I("v_add_u32 v%d, v%d, v%d" % (vT + 4, vT + 4, g_))
        I("v_lshlrev_b32 v%d, 4, v%d" % (vT + 4, vT + 4))
        I("s_add_u32 s%d, s%d, %d" % (sT, sT, 276 * 4))
        I("v_add_u32 v%d, s%d, v%d" % (vZP, sT, vT + 4))
        I("v_cmp_eq_u32 vcc, 15, v%d" % i_)
        I("v_cndmask_b32 v%d, 0, 1.0, vcc" % (vT + 4))
        b.wait(lg=0)
        for k in range(5):
            I("ds_write_b32 v%d, v%d offset:%d" % (vKVL, vT + 4, 256 * k))
        I("s_xor_b32 s%d, s%d, 0x80000000" % (sTAG, sEP))
        I("s_and_b32 s%d, s%d, 0xfffffff0" % (sTAG, sTAG))
        I("s_mov_b32 s%d, 0x358637bd" % sEPS)
        for r, val in ((sM1, 0x22222222), (sM2, 0x44444444), (sM3, 0x88888888)):
            I("s_mov_b32 s%d, 0x%x" % (r, val))
            I("s_mov_b32 s%d, 0x%x" % (r + 1, val))
        I("s_mov_b32 s%d, 0x00f0000f" % sDIAG)
        I("s_mov_b32 s%d, 0xf0000f00" % (sDIAG + 1))
        I("v_lshlrev_b32 v%d, 10, v%d" % (vT + 4, g_))
        I("s_lshl_b32 s%d, s%d, 12" % (sT, sW))
        I("v_add_u32 v%d, s%d, v%d" % (vT + 4, sT, vT + 4))
        for t in range(4):
            I("v_xor_b32 v%d, %d, v%d" % (vCS1 + 4 + t, 32 * t, tc))
            I("v_add_u32 v%d, v%d, v%d" % (vCS1 + 4 + t, vCS1 + 4 + t, vT + 4))
            I("v_add_u32 v%d, 0x%x, v%d" % (vCS1 + 4 + t, L_PACK, vCS1 + 4 + t))
        I("v_and_b32 v%d, 31, v0" % (vT + 14))
        I("v_lshlrev_b32 v%d, 10, v%d" % (vT + 14, vT + 14))
        I("v_lshrrev_b32 v%d, 5, v0" % (vT + 4))
        I("v_lshl_add_u32 v%d, v%d, 4, v%d" % (vT + 14, vT + 4, vT + 14))
        I("s_add_u32 s%d, s%d, s%d" % (sT, sTAG, sXCC))
        I("v_mov_b32 v%d, s%d" % (vT + 15, sT))
        ptk, pth = self.pack_load(l3, q0)
        KL = env("KL", -1)
        for ks in range(NFIRST, env('NINIT', 6)):
            issue_now(ks)
        nxt = env('NINIT', 6)
        nq = 0
        if KL < 0:
            for pre, th in pth:
                for t in pre:
                    I(t)
                th()
        I("s_mov_b64 exec, 1")
        I("buffer_load_dword v%d, off, %s, s%d sc1" % (vDUM, self.ws(), sFL))
        I("s_mov_b64 exec, -1")
        self.stamp("setup")

        tmp = [self.free.pop() for _ in range(6)]
        assert all(s[0] == "v" for s in tmp)
        cK, cV = tmp[4][1], tmp[5][1]
        res_toks = []
        KZ = env("KZ", 2)
        KP, KANN, KI, KC = env("KP", 4), env("KANN", 9), env("KI", 12), env("KC", 99)
        for ks in range(17):
            fill, dma, nrd = [], [], 0
            if ks < 16:
                b.wait(tokW[ks], tokA[ks // 2])
                if ks == KZ:
                    b.wait(ztok)
                if ks == KANN:
                    b.wait(pst)
                I("s_barrier")
                if ks == 0:
                    self.stamp("w0")
                elif env("LSTAMP", 0):
                    self.stamp("it%d" % ks)
                if ks == KC:
                    self.r1_check()
                    self.bg_w = len(self.free) - 2 * (16 - ks) - 16
                    self.last_bg = self.clock
                if ks in (KZ, KANN):
                    lx = b.newlabel("Lann")
                    I("s_cmp_lg_u32 s%d, 0" % sW)
                    I("s_cbranch_scc1 %s" % lx)
                    I("s_lshl_b32 s%d, s%d, 7" % (sT, sRG))
                    I("s_add_u32 s%d, s%d, s%d" % (sT, sT, sR1))
                    if ks == KANN:
                        I("s_add_u32 s%d, s%d, 0x%x" % (sT, sT, WS_R3 - WS_R2))
                    I("s_mov_b64 exec, 1")
                    self.Inc("buffer_store_dword v%d, off, %s, s%d sc1" % (vT + 15, self.ws(), sT))
                    I("s_mov_b64 exec, -1")
                    b.label(lx)
                for p in range(2):
                    s = self.free.pop(0)
                    self.wslot[("qkv", 0, 2 * ks + p)] = (s, None)
                    for hh in range(2):
                        fill.append(lambda s=s, hh=hh, p=p: I("ds_read_b64_tr_b16 %s, v%d offset:%d" % (
                            vr(s[1] + 2 * hh, 2, s[0]), vTR, (ks % NR) * 8192 + p * 1024 + hh * 512)))
                fb = vAF + (ks & 1) * 20
                ds, h = ks // 2, ks & 1
                for rt in range(4):
                    fill.append(lambda rt=rt: I("ds_read_b128 %s, v%d offset:%d" % (
                        vr(fb + 4 * rt, 4), (vX0, vX1)[h], ds * 8192 + rt * 2048)))
                fill.append(lambda: I("ds_read_b128 %s, v%d offset:%d" % (vr(fb + 16, 4), (vOW0, vOW1)[h], ds * 8192)))
                nrd = len(fill)
                k2 = 0
                while nxt < min(16, ks + NR) and k2 < 2:
                    dma += issue_thunks(nxt)
                    nxt += 1
                    k2 += 1
                if ks == KL:
                    dma += pth
                if nxt == 16 and not dma and ks > KP + 1:
                    while nq < 16 and len(dma) < env("QPER", 3) and (nq < 4 or 10 + (nq - 4) // 2 < ks):
                        dma.append(q_thunk(nq))
                        nq += 1
                if ks == env("TQ", -1) and env("T0", 1):
                    def tq():
                        I("s_sub_u32 s%d, 0x180, s%d" % (sT, S_WQ))
                        I("s_and_b32 s%d, s%d, 0x380" % (sT, sT))
                        I("s_mov_b64 exec, 0x249")
                        I("buffer_load_dword v%d, v%d, s[%d:%d], s%d offen" % (vDUM, tw, R_WQ, R_WQ + 3, sT))
                        I("s_mov_b64 exec, -1")
                    fill.append(tq)
                if ks == KI:
                    fill.append(self.r1_issue)
                if ks == env("KOX", 15) and FT:
                    def tch():
                        self.touch_ox(0)
                        I("v_and_b32 v%d, 1, v0" % vT)
                        I("v_lshrrev_b32 v%d, 1, v0" % (vT + 1))
                        I("v_lshlrev_b32 v%d, 13, v%d" % (vT + 1, vT + 1))
                        I("v_lshl_add_u32 v%d, v%d, 7, v%d" % (vT + 5, vT, vT + 1))
                        I("s_mov_b64 exec, 15")
                        I("buffer_load_dword v%d, v%d, %s, s%d offen sc1" % (vDUM, vT + 5, self.ws(), sSTP))
                        I("s_mov_b64 exec, -1")
                    fill.append(tch)
                if ks == KP:
                    def prd():
                        b.wait(ptk)
                        for t in range(4):
                            for hh in range(2):
                                I("ds_read_b64_tr_b16 %s, v%d offset:%d" % (p2(tmp[t][1] + 2 * hh), vCS1 + 4 + t, hh * 512))
                    fill.append(prd)
            mfs = []
            if ks >= 1:
                k1 = ks - 1
                fb1 = vAF + (k1 & 1) * 20
                c0 = "0" if k1 == 0 else None
                wk, wv = [slot_r(self.wslot[("qkv", 0, k)][0]) for k in (2 * k1, 2 * k1 + 1)]
                one = vr(vONE, 4)
                for rt in range(4):
                    mfs.append(self.mf(vACC + 4 * rt, vr(fb1 + 4 * rt, 4), wk, c0))
                    mfs.append(self.mf(vACC + 16 + 4 * rt, vr(fb1 + 4 * rt, 4), wv, c0))
                own = vr(fb1 + 16, 4)
                mfs += [self.mf(vS1, one, own, c0), self.mf(vS2, own, own, c0),
                        self.mf(cK, one, wk, c0), self.mf(cV, one, wv, c0)]
            rds, extra = fill[:nrd], fill[nrd:]
            for _ in range(min(3, len(rds))):
                rds.pop(0)()
            while mfs:
                mfs.pop(0)()
                if rds:
                    for _ in range(min(2, len(rds))):
                        rds.pop(0)()
                    if len(rds) <= 2 and dma and dma[0][0]:
                        I(dma[0][0].pop(0))
                elif dma:
                    if dma[0][0]:
                        while dma[0][0]:
                            I(dma[0][0].pop(0))
                    else:
                        dma.pop(0)[1]()
                elif extra:
                    extra.pop(0)()
            for f in rds:
                f()
            for pre, th in dma:
                for t in pre:
                    I(t)
                th()
            for f in extra:
                f()
            b.wait(lg=0)
            if ks == KP:
                pst = [I("buffer_store_dwordx4 %s, v%d, %s, s%d offen sc1" % (slot_r(tmp[t]), vL16, self.ws(), 80 + t))
                       for t in range(4)]
        I("s_sub_u32 s%d, s%d, s%d" % (sT, sC, sROT))
        I("s_and_b32 s%d, s%d, 7" % (sT, sT))
        I("s_lshl_b32 s%d, s%d, 13" % (sT, sT))
        I("v_lshrrev_b32 v%d, 4, v0" % vT)
        I("v_lshrrev_b32 v%d, 5, v0" % (vT + 1))
        I("v_xor_b32 v%d, v%d, v%d" % (vT + 1, vT + 1, vT))
        I("s_lshl_b32 s%d, s%d, 1" % (sT + 1, sW))
        I("v_xor_b32 v%d, s%d, v%d" % (vT + 1, sT + 1, vT + 1))
        I("v_lshlrev_b32 v%d, 4, v%d" % (vT + 1, vT + 1))
        I("v_xor_b32 v%d, v%d, v%d" % (vT + 1, vT + 1, vX0))
        I("v_and_b32 v%d, 1, v%d" % (vT, vT))
        I("v_lshl_add_u32 v%d, v%d, 3, v%d" % (vT + 1, vT, vT + 1))
        I("v_add_u32 v%d, s%d, v%d" % (vT + 1, sT, vT + 1))
        res = [I("ds_read_b64 %s, v%d offset:%d" % (p2(vS1 + 8 + 0) if False else p2(vACC + 32 + 2 * rt), vT + 1, rt * 2048)) for rt in range(4)]
        I("v_mov_b32 v%d, v%d" % (vOA, vT + 14))
        self.bg_w = 0
        self.stamp("kvpass")
        if KC > 16:
            self.r1_check()
        if KANN == 16:
            b.wait(pst)
        self.stats_startup()
        if KANN == 16:
            lx = b.newlabel("Lann")
            I("s_cmp_lg_u32 s%d, 0" % sW)
            I("s_cbranch_scc1 %s" % lx)
            I("s_lshl_b32 s%d, s%d, 7" % (sT, sRG))
            I("s_add_u32 s%d, s%d, s%d" % (sT, sT, sR1))
            I("s_add_u32 s%d, s%d, 0x%x" % (sT, sT, WS_R3 - WS_R2))
            I("s_mov_b64 exec, 1")
            self.Inc("buffer_store_dword v%d, off, %s, s%d sc1" % (vT + 15, self.ws(), sT))
            I("s_mov_b64 exec, -1")
            b.label(lx)
        while nq < 16:
            pre, th = q_thunk(nq)
            for t in pre:
                I(t)
            th()
            nq += 1
        t1 = []
        for rt in range(4):
            t1.append(I("ds_read_b128 %s, v%d offset:%d" % (vr(vAF + 4 * rt, 4), vSTA, rt * 64)))
            t1.append(I("ds_read_b128 %s, v%d offset:%d" % (vr(vAF + 16 + 4 * rt, 4), vSTA, 256 + rt * 64)))
        for rt in range(4):
            t1.append(I("ds_read_b64 %s, v%d offset:%d" % (p2(vAB + 2 * rt), vSTQ, rt * 128)))
        for k in range(2):
            I("v_mov_b32 v%d, v%d" % (vCSK + k, cK))
            I("v_mov_b32 v%d, v%d" % (vCSV + k, cV))
        self.free += tmp
        I("v_add_u32 v%d, s%d, v%d" % (vSB, sW2K, vL4))
        I("v_add_u32 v%d, 0x%x, v%d" % (vEX, L_EX, vL4))
        I("s_lshl_b32 s%d, s%d, 8" % (sT, sW))
        I("v_add_u32 v%d, s%d, v%d" % (vSW, sT, vEX))
        I("v_and_b32 v%d, 15, v0" % vT)
        I("v_lshrrev_b32 v%d, 5, v0" % (vT + 1))
        I("v_lshlrev_b32 v%d, 6, v%d" % (vT + 1, vT + 1))
        I("v_lshl_add_u32 v%d, v%d, 2, v%d" % (vSWR, vT, vT + 1))
        I("s_add_u32 s%d, s%d, 0x%x" % (sT, sT, L_STA))
        I("v_add_u32 v%d, s%d, v%d" % (vSWR, sT, vSWR))
        for rt in range(4):
            for k in range(2):
                s = vACC + 32 + 2 * rt + k
                I("v_lshlrev_b32 v%d, 16, v%d" % (vX + 4 * rt + 2 * k, s))
                I("v_and_b32 v%d, 0xffff0000, v%d" % (vX + 4 * rt + 2 * k + 1, s))
        early = env("R3EARLY", 0)
        I("v_and_b32 v%d, 0xfff, v%d" % (vCS1, vTCH))
        I("s_add_u32 s%d, s%d, 0x%x" % (sR1, sR1, WS_R3 - WS_R2))
        self.r3_tok = I("buffer_load_dword v%d, v%d, %s, s%d offen sc1" % (vPOLL, vCS1, self.ws(), sR1))
        b.wait(t1)
        I("s_lshl_b32 s%d, s%d, 8" % (sT, sW))
        I("v_add_u32 v%d, s%d, v%d" % (vSTA, sT, vSTA))
        for hf in range(2):
            self.kv_epilogue(hf, vAF + 8 * hf, vAF + 16 + 8 * hf)

    def pack_load(self, l3, q0):
        b = self.b
        I = b.I
        dst = 80
        uid, src, strd = sT, sT + 1, sT + 2
        I("s_lshl_b32 s%d, s%d, 2" % (uid, sRG))
        I("s_add_u32 s%d, s%d, s%d" % (uid, uid, sW))
        lw1, lw2, lnone, lgo = [b.newlabel("Lpk") for _ in range(4)]
        I("s_mul_i32 s88, s%d, %d" % (sC, 4 * PKW))
        I("s_mov_b32 s%d, 0x20000" % (R_PK + 3))

        def setsrd(ptr, size, stride):
            I("s_mov_b32 s%d, s%d" % (R_PK, ptr))
            I("s_and_b32 s%d, s%d, 0xffff" % (R_PK + 1, ptr + 1))
            I("s_mov_b32 s%d, %d" % (R_PK + 2, size))
            I("s_movk_i32 s%d, %d" % (strd, stride))

        def simple(f0):
            I("s_lshl_b32 s%d, s%d, 15" % (src, uid))
            I("s_lshl_b32 s89, s%d, 7" % sC)
            I("s_add_u32 s%d, s%d, s89" % (src, src))
            I("s_add_u32 s89, s%d, %d" % (uid, f0))
            I("s_lshl_b32 s89, s89, 10")
            I("s_add_u32 s88, s88, s89")
            for t in range(4):
                I("s_add_u32 s%d, s88, %d" % (dst + t, t * PKW))
            I("s_branch %s" % lgo)

        I("s_cmp_ge_u32 s%d, 16" % uid)
        I("s_cbranch_scc1 %s" % lw1)
        setsrd(S_WO, 512 * 1024, 1024)
        simple(F_WO)
        b.label(lw1)
        I("s_cmp_ge_u32 s%d, 64" % uid)
        I("s_cbranch_scc1 %s" % lw2)
        I("s_sub_u32 s%d, s%d, 16" % (uid, uid))
        I("s_mul_i32 s89, s%d, 43" % uid)
        I("s_lshr_b32 s89, s89, 7")
        I("s_mul_i32 s92, s89, 3")
        I("s_sub_u32 s92, s%d, s92" % uid)
        setsrd(S_W1, 512 * 2752, 2752)
        I("s_mul_i32 s%d, s89, %d" % (src, 32 * 2752))
        I("s_mul_i32 s79, s%d, 384" % sC)
        I("s_add_u32 s%d, s%d, s79" % (src, src))
        I("s_lshl_b32 s79, s92, 7")
        I("s_add_u32 s%d, s%d, s79" % (src, src))
        I("s_mul_i32 s89, s89, 3072")
        I("s_add_u32 s88, s88, s89")
        I("s_add_u32 s88, s88, %d" % (F_W1 * 1024))
        for t in range(4):
            I("s_lshl_b32 s79, s92, 2")
            I("s_add_u32 s79, s79, %d" % t)
            I("s_mul_i32 s89, s79, 43")
            I("s_lshr_b32 s89, s89, 7")
            I("s_mul_i32 s%d, s89, %d" % (dst + t, PKW - 3072))
            I("s_lshl_b32 s79, s79, 10")
            I("s_add_u32 s%d, s%d, s79" % (dst + t, dst + t))
            I("s_add_u32 s%d, s%d, s88" % (dst + t, dst + t))
        I("s_mul_i32 s79, s%d, 3" % sC)
        I("s_add_u32 s79, s79, s92")
        I("s_cmp_ge_u32 s79, 22")
        I("s_cbranch_scc1 %s" % lnone)
        I("s_branch %s" % lgo)
        b.label(lw2)
        I("s_cmp_ge_u32 s%d, 107" % uid)
        I("s_cbranch_scc1 %s" % lnone)
        I("s_sub_u32 s%d, s%d, 64" % (uid, uid))
        setsrd(S_W2, 1376 * 1024, 1024)
        simple(F_W2)
        b.label(lnone)
        setsrd(S_WQ, 0, 1024)
        I("s_mov_b32 s%d, 0" % src)
        for t in range(4):
            I("s_mov_b32 s%d, 0x%x" % (dst + t, OOB))
        b.label(lgo)
        I("v_mul_lo_u32 v%d, v%d, s%d" % (vT + 4, l3, strd))
        I("v_add_u32 v%d, v%d, v%d" % (vT + 10, vT + 4, q0))
        I("v_xor_b32 v%d, 64, v%d" % (vT + 5, q0))
        I("v_add_u32 v%d, v%d, v%d" % (vT + 11, vT + 4, vT + 5))
        I("s_lshl_b32 s%d, s%d, 3" % (strd, strd))
        I("s_lshl_b32 s86, s%d, 12" % sW)
        I("s_mov_b32 s84, s%d" % src)
        I("s_mov_b32 s85, s%d" % strd)
        toks = []
        th = []
        for q in range(4):
            pre = ["s_add_u32 m0, s86, 0x%x" % (L_PACK + q * 1024)]
            if q:
                pre.append("s_add_u32 s84, s84, s85")
            th.append((pre, lambda q=q: toks.append(I("buffer_load_dwordx4 v%d, s[%d:%d], s84 offen lds" % (
                vT + 10 + (q & 1), R_PK, R_PK + 3)))))
        return toks, th

    def r1_issue(self):
        I = self.b.I
        a = vCS1 + 2
        I("v_and_b32 v%d, 7, v0" % a)
        I("v_subrev_u32 v%d, s%d, v%d" % (a, sC, a))
        I("v_lshlrev_b32 v%d, 12, v%d" % (a, a))
        I("s_lshl_b32 s%d, s%d, 7" % (sT, sRG))
        I("s_add_u32 s%d, s%d, s%d" % (sT, sT, sR1))
        I("v_add_u32 v%d, s%d, v%d" % (a, sT, a))
        I("v_add_u32 v%d, s%d, v%d" % (vT + 5, sR1, vTCH))
        I("v_cmp_gt_u32 vcc, 32, v0")
        I("v_cndmask_b32 v%d, v%d, v%d, vcc" % (a, a, vT + 5))
        self.r1_tok = I("buffer_load_dword v%d, v%d, %s, 0 offen sc1" % (vPOLL, a, self.ws()))

    def r1_check(self):
        b = self.b
        I = b.I
        lp, ld, lc = b.newlabel("Ltag"), b.newlabel("Ltagd"), b.newlabel("Ltagc")
        b.wait(self.r1_tok)
        I("s_branch %s" % lc)
        b.label(lp)
        self.Inc("buffer_load_dword v%d, v%d, %s, 0 offen sc1" % (vPOLL, vCS1 + 2, self.ws()))
        I("s_waitcnt vmcnt(0)")
        b.label(lc)
        I("v_subrev_u32 v%d, s%d, v%d" % (vPOLL, sTAG, vPOLL))
        I("v_cmp_gt_u32 vcc, 16, v%d" % vPOLL)
        I("s_cmp_eq_u64 vcc, exec")
        I("s_cbranch_scc1 %s" % ld)
        self.spin_guard(lp)
        b.label(ld)
        I("v_cmp_eq_u32 vcc, s%d, v%d" % (sXCC, vPOLL))
        I("s_cmp_eq_u32 vcc_hi, -1")
        I("s_cselect_b32 s%d, 1, 0" % sFAST)

    def touch_w(self, f0, m):
        I = self.b.I
        I("s_mul_i32 s%d, s%d, %d" % (sTC, sQ, m * 1024))
        I("s_add_u32 s%d, s%d, s%d" % (sTC, sTC, sPK))
        I("s_add_u32 s%d, s%d, %d" % (sTC, sTC, f0 * 1024))
        mask = (1 << (8 * m)) - 1
        I("s_mov_b32 exec_lo, 0x%x" % (mask & 0xffffffff))
        I("s_mov_b32 exec_hi, 0x%x" % (mask >> 32))
        I("buffer_load_dword v%d, v%d, %s, s%d offen sc1" % (vDUM, vTCH, self.ws(), sTC))
        I("s_mov_b64 exec, -1")

    def touch_ox(self, layer):
        I = self.b.I
        I("s_and_b32 s%d, s%d, 1" % (sT + 2, sW))
        I("s_lshl_b32 s%d, s%d, 15" % (sT, sT + 2))
        I("s_add_u32 s%d, s%d, s%d" % (sT, sT, sRG64))
        I("s_add_u32 s%d, s%d, 0x%x" % (sT, sT, self.buf("X", 2 * layer)))
        I("s_mul_i32 s%d, s%d, %d" % (sT + 1, sT + 2, self.hstride("O")))
        I("s_add_u32 s%d, s%d, s%d" % (sT + 1, sT + 1, self.rgs("O")))
        I("s_add_u32 s%d, s%d, 0x%x" % (sT + 1, sT + 1, self.buf("O", layer)))
        I("s_bitcmp1_b32 s%d, 1" % sW)
        I("s_cselect_b32 s%d, s%d, s%d" % (sT, sT, sT + 1))
        I("s_lshl_b32 s%d, s%d, 12" % (sT + 1, sC))
        I("s_add_u32 s%d, s%d, s%d" % (sT, sT, sT + 1))
        I("s_mov_b32 exec_hi, 0")
        I("buffer_load_dword v%d, v%d, %s, s%d offen sc1" % (vDUM, vTCH, self.ws(), sT))
        I("s_mov_b32 exec_hi, -1")

    def touch_h(self, layer):
        I = self.b.I
        I("s_lshr_b32 s%d, s%d, 1" % (sT + 1, sW))
        I("s_mul_i32 s%d, s%d, %d" % (sT + 1, sT + 1, HSZ // 2 - 12288))
        I("s_mul_i32 s%d, s%d, 6144" % (sT + 2, sW))
        I("s_add_u32 s%d, s%d, s%d" % (sT + 1, sT + 1, sT + 2))
        I("s_mul_i32 s%d, s%d, 12288" % (sT + 2, sC))
        I("s_add_u32 s%d, s%d, s%d" % (sT + 1, sT + 1, sT + 2))
        I("s_add_u32 s%d, s%d, s%d" % (sT + 1, sT + 1, sRGH))
        I("s_add_u32 s%d, s%d, 0x%x" % (sT + 1, sT + 1, self.buf("H", layer)))
        I("s_cmp_lt_u32 s%d, 7" % sC)
        I("s_cselect_b32 s%d, s%d, 0x%x" % (sT + 1, sT + 1, OOB))
        I("s_mov_b32 exec_hi, 0xffff")
        I("buffer_load_dword v%d, v%d, %s, s%d offen sc1" % (vDUM, vTCH, self.ws(), sT + 1))
        I("s_mov_b32 exec_hi, -1")

    def kv_items(self, hf, seqs):
        items = []
        for ks in range(16):
            c0 = "0" if ks == 0 else None
            for r in range(2):
                def mfs(fr, ks=ks, r=r, c0=c0):
                    kk, kv_ = ("qkv", 0, 2 * ks), ("qkv", 0, 2 * ks + 1)
                    th = [self.mf(vACC + 8 * hf + 4 * r, fr, self.w_get(kk), c0),
                          self.mf(vACC + 16 + 8 * hf + 4 * r, fr, self.w_get(kv_), c0)]
                    if hf == 1 and r == 1:
                        th.append(lambda: (self.w_release(kk), self.w_release(kv_)))
                    return th
                a, off = self.frag_addr(seqs[ks // 2], r, ks & 1)
                items.append((a, off, seqs[ks // 2], mfs))
        self.pinned.update(seqs)
        return items

    def kv_finish(self, hf, between=None):
        b = self.b
        rd = [b.I("ds_read_b128 %s, v%d offset:%d" % (vr(vAF + 4 * k, 4), vSTA, (k & 1) * 64 + (k >> 1) * 128)) for k in range(4)]
        if between:
            between()
        b.wait(rd)
        self.kv_epilogue(hf, vAF, vAF + 8)

    def attention(self, layer, xseqs):
        b = self.b
        I = self.I
        KVD, ZD = vS1, vS2
        one = vr(vONE, 4)
        self.bg_w = 0
        for p in range(2):
            c0 = "0" if p == 0 else None
            self.mf(KVD, vr(vACC + 8 * p, 4), vr(vACC + 16 + 8 * p, 4), c0)()
            self.mf(ZD, vr(vACC + 8 * p, 4), one, c0)()
        b.I("s_add_u32 s%d, s%d, %d" % (sKB, sKV, layer * KVL))
        b.I("s_and_b32 s%d, s%d, %d" % (sKB + 1, sRG, NC - 1))
        b.I("s_mul_i32 s%d, s%d, %d" % (sKB + 1, sKB + 1, KCS))
        b.I("s_add_u32 s%d, s%d, s%d" % (sKB + 1, sKB + 1, sKB))
        for r in range(4):
            b.I("ds_write_b32 v%d, v%d" % (vPOS + r, KVD + r))
        b.I("s_mov_b32 exec_lo, 0x00010001")
        b.I("s_mov_b32 exec_hi, 0x00010001")
        b.I("ds_write_b128 v%d, %s" % (vZP, vr(ZD, 4)))
        b.I("s_mov_b64 exec, -1")
        rd = [b.I("ds_read_b32 v%d, v%d offset:%d" % (vT + k, vKVL, 256 * k)) for k in range(5)]
        for k in range(5):
            b.wait(rd[k])
            if k == 4:
                b.I("s_mov_b32 exec_hi, 0xffff")
            b.I("buffer_atomic_add_f32 v%d, v%d, %s, s%d offen offset:%d" % (vT + k, vL4, self.ws(), sKB + 1, k * 256))
        b.I("s_mov_b64 exec, -1")
        self.stamp("atom")
        if layer:
            self.touch_ox(layer)
        else:
            lp, ld, lc = b.newlabel("Lr3"), b.newlabel("Lr3d"), b.newlabel("Lr3c")
            b.wait(self.r3_tok)
            b.I("s_branch %s" % lc)
            b.label(lp)
            self.Inc("buffer_load_dword v%d, v%d, %s, s%d offen sc1" % (vPOLL, vCS1, self.ws(), sR1))
            b.I("s_waitcnt vmcnt(0)")
            b.label(lc)
            b.I("v_subrev_u32 v%d, s%d, v%d" % (vPOLL, sTAG, vPOLL))
            b.I("v_cmp_gt_u32 vcc, 16, v%d" % vPOLL)
            b.I("s_cmp_eq_u64 vcc, exec")
            b.I("s_cbranch_scc1 %s" % ld)
            self.spin_guard(lp)
            b.label(ld)
            self.stamp("r3")
            b.wait(self.tokQ)
            b.I("s_barrier")
        self.w_burst(env("W_AT", [0, 0])[layer])
        self.last_bg = self.clock
        self.bg_w = env("W_Q", [99, 99])[layer]
        items = []
        for ks in range(16):
            ds, h = ks // 2, ks & 1
            c0 = "0" if ks == 0 else None
            def keep(fr):
                self.wq_reg = fr
                return []
            items.append(("tr", self.rq_base(ks) - L_WQ, None, keep))
            for rt in range(4):
                def mfs(fr, ks=ks, rt=rt, c0=c0):
                    w = self.wq_reg
                    th = [self.mf(vACC + 4 * rt, w, fr, c0)]
                    if layer == 0 and rt == 0:
                        th.append(self.mf(vCSQ, w, one, c0))
                    return th
                if layer == 0:
                    items.append(((vX0, vX1)[h], ds * 8192 + rt * 2048, None, mfs))
                else:
                    a, off = self.frag_addr(xseqs[rt >> 1][ds], rt & 1, h)
                    items.append((a, off, None, mfs))
        assert NC == 2
        KD = vACC + 32
        dst = [(KD, KD + 8), (KD + 4, KD + 12)]
        kvl = ["buffer_load_dwordx4 %s, v%d, %s, s%d offen offset:%d sc1" % (vr(dst[c][h], 4), (vL16, vC2)[h], self.ws(), sKB, c * KCS)
               for h in range(2) for c in range(NC)]
        b.I("v_add_u32 v%d, 0x400, v%d" % (vC2, vL16))
        b.I("v_cmp_gt_u32 vcc, 12, v0")
        b.I("v_mov_b32 v%d, 0x%x" % (vT + 8, OOB))
        b.I("v_cndmask_b32 v%d, v%d, v%d, vcc" % (vC2, vT + 8, vC2))
        kp = {}

        def kv_early():
            self.bg_w = 0
            kp["tok"] = [b.I(t) for t in kvl]
        j = env("H_KVP", [79, 99])[layer]
        self.gemm(items, None, 5, {j: [kv_early]})
        self.pinned = set()
        self.mine = self.seq - 1
        PQ = vACC + 16
        for rt in range(4):
            ab = vAB + 2 * rt
            for r in (0, 2):
                u = vT + 2 * ((rt * 2 + r // 2) % 8)
                I("v_pk_fma_f32 %s, %s, %s, %s op_sel:[0,1,1] op_sel_hi:[1,1,1]" % (p2(u), p2(vCSQ + r), p2(ab), p2(vK)))
        for rt in range(4):
            ab = vAB + 2 * rt
            for r in (0, 2):
                q_ = vACC + 4 * rt + r
                u = vT + 2 * ((rt * 2 + r // 2) % 8)
                I("v_pk_fma_f32 %s, %s, %s, %s op_sel:[0,0,0] op_sel_hi:[1,0,1]" % (p2(q_), p2(q_), p2(ab), p2(u)))
        if env("H_KVP", [79, 99])[layer] == 98:
            kv_early()
        self.phi_pairs([(vACC + 4 * rt + r, PQ + 2 * rt + r // 2) for rt in range(4) for r in (0, 2)])
        self.stamp("qpass")
        self.bg_w = 0
        self.w_burst(env("W_S1", [16, 0])[layer])
        b.I("s_add_u32 s%d, s%d, s%d" % (sT + 6, self.rgs("O"), sSTO))
        b.I("s_add_u32 s%d, s%d, 0x%x" % (sT + 6, sT + 6, self.buf("O", layer)))
        b.I("s_add_u32 s%d, s%d, %d" % (sT + 7, sT + 6, self.hstride("O")))
        b.I("v_lshl_add_u32 v%d, v0, 4, v%d" % (vAF + 16, vKVL))
        b.I("v_sub_u32 v%d, v%d, v%d" % (vAF + 16, vAF + 16, vL4))
        lp, ld, lc = b.newlabel("Lkv"), b.newlabel("Lkvd"), b.newlabel("Lkvc")
        if kp:
            b.wait(kp["tok"])
            b.I("s_branch %s" % lc)
        b.label(lp)
        if kp:
            for t in kvl:
                self.Inc(t)
            b.I("s_waitcnt vmcnt(0)")
        else:
            for t in kvl:
                b.I(t)
            b.wait(vm=0)
        b.label(lc)
        for h in range(2):
            for k in (0, 2):
                b.I("v_pk_add_f32 %s, %s, %s" % (p2(vT + 8 * h + k), p2(dst[0][h] + k), p2(dst[1][h] + k)))
        b.I("ds_write_b128 v%d, %s offset:1280" % (vAF + 16, vr(vT, 4)))
        b.I("s_mov_b64 exec, 0xfff")
        b.I("ds_write_b128 v%d, %s offset:2304" % (vAF + 16, vr(vT + 8, 4)))
        b.I("s_mov_b64 exec, -1")
        lz = b.I("ds_read_b128 %s, v%d offset:1280" % (vr(vT + 4, 4), vZP))
        lt = [b.I("ds_read_b32 v%d, v%d offset:1280" % (vT + 12 + r, vPOS + r)) for r in range(4)]
        b.I("v_cmp_eq_f32 vcc, 0x42000000, v%d" % (vT + 3))
        b.I("v_cmp_eq_f32 s[%d:%d], v%d, v%d" % (sT, sT + 1, vT + 11, vT + 3))
        b.I("s_and_b64 vcc, vcc, s[%d:%d]" % (sM3, sM3 + 1))
        b.I("s_and_b32 s%d, s%d, 0x888" % (sT, sT))
        b.I("s_xor_b32 s%d, s%d, 0x888" % (sT, sT))
        b.I("s_xor_b64 vcc, vcc, s[%d:%d]" % (sM3, sM3 + 1))
        b.I("s_or_b32 s%d, s%d, vcc_lo" % (sT, sT))
        b.I("s_or_b32 s%d, s%d, vcc_hi" % (sT, sT))
        b.I("s_cbranch_scc0 %s" % ld)
        b.I("s_waitcnt lgkmcnt(0)")
        self.spin_guard(lp)
        b.label(ld)
        self.stamp("kvsync")
        b.wait(lz)
        I("v_cvt_pk_bf16_f32 v%d, v%d, v%d" % (vT + 10, vT + 4, vT + 5))
        I("v_cvt_pk_bf16_f32 v%d, v%d, v%d" % (vT + 11, vT + 6, vT + 7))
        NUM, DEN = vACC, vAF
        for rt in range(4):
            I("v_mfma_f32_16x16x16_bf16 %s, %s, %s, 0" % (vr(DEN + 4 * rt, 4), p2(vT + 10), p2(PQ + 2 * rt)))
        b.wait(lt)
        I("v_cvt_pk_bf16_f32 v%d, v%d, v%d" % (vT + 8, vT + 12, vT + 13))
        I("v_cvt_pk_bf16_f32 v%d, v%d, v%d" % (vT + 9, vT + 14, vT + 15))
        for rt in range(4):
            I("v_mfma_f32_16x16x16_bf16 %s, %s, %s, 0" % (vr(NUM + 4 * rt, 4), p2(vT + 8), p2(PQ + 2 * rt)))
        for rt in range(4):
            I("v_add_f32 v%d, s%d, v%d" % (DEN + 4 * rt, sEPS, DEN + 4 * rt))
        for rt in range(4):
            I("v_rcp_f32 v%d, v%d" % (DEN + 4 * rt, DEN + 4 * rt))
        for rt in range(4):
            for r in (0, 2):
                n_ = NUM + 4 * rt + r
                I("v_pk_mul_f32 %s, %s, %s op_sel_hi:[1,0]" % (p2(n_), p2(n_), p2(DEN + 4 * rt)))
        for rt in range(4):
            for r in (0, 2):
                I("v_cvt_pk_bf16_f32 v%d, v%d, v%d" % (vT + 2 * rt + r // 2, NUM + 4 * rt + r, NUM + 4 * rt + r + 1))
        return self.stores2([self.pair_store(vT + 4 * pr, sT + 6 + pr, 0) for pr in range(2)], layer == 0 or self.sep)

    def park_wq(self):
        b = self.b
        b.I("s_lshl_b32 s%d, s%d, 14" % (sT, sW))
        b.I("s_add_u32 s%d, s%d, 0x%x" % (sT, sT, L_WQ))
        b.I("v_add_u32 v%d, s%d, v%d" % (vWQ, sT, vL16))
        for ks in range(16):
            b.I("ds_write_b128 v%d, %s offset:%d" % (vWQ, slot_r(self.wslot[("qkv", 0, 32 + ks)][0]), ks * 1024))
        b.wait(lg=0)
        for ks in range(16):
            self.w_release(("qkv", 0, 32 + ks))

    def cs1_some(self, n):
        one = vr(vONE, 4)
        k = 0
        while k < n and self.ncs < 16 and all(("w1", 0, 3 * self.ncs + t) in self.wslot and
                                             (self.wslot[("w1", 0, 3 * self.ncs + t)][1] is None or
                                              self.wslot[("w1", 0, 3 * self.ncs + t)][1][1] < self.b.vm_done) for t in range(3)):
            for t in range(3):
                self.mf(vCS1 + 4 * t, slot_r(self.wslot[("w1", 0, 3 * self.ncs + t)][0]), one, "0" if self.ncs == 0 else None)()
            self.ncs += 1
            k += 1

    def n16_items(self, name, layer, nks, hf, seqs):
        items = []
        for ks in range(nks):
            for r in range(2):
                def mfs(fr, ks=ks, r=r):
                    th = [self.mf(vX + 8 * hf + 4 * r, self.w_get((name, layer, ks)), fr)]
                    if hf == 1 and r == 1 and name != "w2":
                        th.append(lambda: self.w_release((name, layer, ks)))
                    return th
                a, off = self.frag_addr(seqs[ks // 2], r, ks & 1)
                items.append((a, off, seqs[ks // 2], mfs))
        return items

    def n16_full(self, name, layer, nks, seqs):
        items = []
        for k0 in range(0, nks, 4):
            for hf in range(2):
                for ks in range(k0, k0 + 4):
                    for r in range(2):
                        rt = 2 * hf + r

                        def mfs(fr, ks=ks, rt=rt):
                            th = [self.mf(vX + 4 * rt, self.w_get((name, layer, ks)), fr)]
                            if rt == 3:
                                th.append(lambda: self.w_release((name, layer, ks)))
                            return th
                        sq = seqs[hf][ks // 2]
                        a, off = self.frag_addr(sq, r, ks & 1)
                        items.append((a, off, sq, mfs))
        return items

    def x_payload(self, idx, hf, wt):
        I = self.b.I
        o = vT + 2 + 4 * hf
        I("s_add_u32 s%d, s%d, s%d" % (sT + 6, sRG64, sSTO))
        I("s_add_u32 s%d, s%d, 0x%x" % (sT + 6, sT + 6, self.buf("X", idx) + hf * 32768))
        for j in range(4):
            I("v_cvt_pk_bf16_f32 v%d, v%d, v%d" % (o + j, vX + 8 * hf + 2 * j, vX + 8 * hf + 2 * j + 1))
        return self.stores2([self.pair_store(o, sT + 6, 0)], wt)

    def x_stats(self, wt):
        I = self.b.I
        I("s_add_u32 s%d, s%d, 8192" % (sT + 8, sSTP))
        s = vAF
        for rt in range(4):
            I("v_pk_add_f32 %s, %s, %s" % (p2(s + 4 * rt), p2(vX + 4 * rt), p2(vX + 4 * rt + 2)))
            I("v_pk_mul_f32 %s, %s, %s" % (p2(s + 4 * rt + 2), p2(vX + 4 * rt), p2(vX + 4 * rt)))
        for rt in range(4):
            I("v_pk_fma_f32 %s, %s, %s, %s" % (p2(s + 4 * rt + 2), p2(vX + 4 * rt + 2), p2(vX + 4 * rt + 2), p2(s + 4 * rt + 2)))
        for rt in range(4):
            I("v_add_f32 v%d, v%d, v%d" % (s + 4 * rt, s + 4 * rt, s + 4 * rt + 1))
            I("v_add_f32 v%d, v%d, v%d" % (s + 4 * rt + 2, s + 4 * rt + 2, s + 4 * rt + 3))
        for hf in range(2):
            q = s + 8 * hf
            I("v_permlane32_swap_b32 v%d, v%d" % (q, q + 4))
            I("v_permlane32_swap_b32 v%d, v%d" % (q + 2, q + 6))
        for hf in range(2):
            q = s + 8 * hf
            I("v_add_f32 v%d, v%d, v%d" % (q, q, q + 4))
            I("v_add_f32 v%d, v%d, v%d" % (q + 2, q + 2, q + 6))
        for hf in range(2):
            I("v_permlane16_swap_b32 v%d, v%d" % (s + 8 * hf, s + 8 * hf + 2))
        for hf in range(2):
            I("v_add_f32 v%d, v%d, v%d" % (s + 8 * hf, s + 8 * hf, s + 8 * hf + 2))
        tk2 = self.stores2(["buffer_store_dword v%d, v%d, %s, s%d offen" % (s + 8 * hf, vL4, self.ws(), (sSTP, sT + 8)[hf])
                            for hf in range(2)], wt)
        return tk2

    def x_half_now(self, idx, hf, wt):
        I = self.b.I
        x = vX + 8 * hf
        o = vT + 2
        s = o + 4
        I("s_add_u32 s%d, s%d, s%d" % (sT + 6, sRG64, sSTO))
        I("s_add_u32 s%d, s%d, 0x%x" % (sT + 6, sT + 6, self.buf("X", idx) + hf * 32768))
        I("s_add_u32 s%d, s%d, %d" % (sT + 7, sSTP, hf * 8192))
        for j in range(4):
            I("v_cvt_pk_bf16_f32 v%d, v%d, v%d" % (o + j, x + 2 * j, x + 2 * j + 1))
        for r in range(2):
            I("v_pk_add_f32 %s, %s, %s" % (p2(s + 4 * r), p2(x + 4 * r), p2(x + 4 * r + 2)))
            I("v_pk_mul_f32 %s, %s, %s" % (p2(s + 4 * r + 2), p2(x + 4 * r), p2(x + 4 * r)))
        tk = self.stores2([self.pair_store(o, sT + 6, 0)], wt)
        for r in range(2):
            I("v_pk_fma_f32 %s, %s, %s, %s" % (p2(s + 4 * r + 2), p2(x + 4 * r + 2), p2(x + 4 * r + 2), p2(s + 4 * r + 2)))
            I("v_add_f32 v%d, v%d, v%d" % (s + 4 * r, s + 4 * r, s + 4 * r + 1))
        for r in range(2):
            I("v_add_f32 v%d, v%d, v%d" % (s + 4 * r + 2, s + 4 * r + 2, s + 4 * r + 3))
        I("v_permlane32_swap_b32 v%d, v%d" % (s, s + 4))
        I("v_permlane32_swap_b32 v%d, v%d" % (s + 2, s + 6))
        I("v_add_f32 v%d, v%d, v%d" % (s, s, s + 4))
        I("v_add_f32 v%d, v%d, v%d" % (s + 2, s + 2, s + 6))
        I("v_permlane16_swap_b32 v%d, v%d" % (s, s + 2))
        I("v_add_f32 v%d, v%d, v%d" % (s, s, s + 2))
        tk += self.stores2(["buffer_store_dword v%d, v%d, %s, s%d offen" % (s, vL4, self.ws(), sT + 7)], wt)
        return self.new_pub(tk)

    def x_half_store(self, idx, hf, wt, delay):
        x = vX + 8 * hf
        o = vT + 1
        o += o & 1
        tk = []
        k, fl = self.new_pub(tk)
        s = o + 4
        e = ["s_add_u32 s%d, s%d, s%d" % (sT + 6, sRG64, sSTO),
             "s_add_u32 s%d, s%d, 0x%x" % (sT + 6, sT + 6, self.buf("X", idx) + hf * 32768),
             "s_add_u32 s%d, s%d, %d" % (sT + 7, sSTP, hf * 8192), 2]
        e += ["v_cvt_pk_bf16_f32 v%d, v%d, v%d" % (o + j, x + 2 * j, x + 2 * j + 1) for j in range(4)]
        for r in range(2):
            e += ["v_add_f32 v%d, v%d, v%d" % (s + 2 * r, x + 4 * r, x + 4 * r + 1),
                  "v_mul_f32 v%d, v%d, v%d" % (s + 2 * r + 1, x + 4 * r, x + 4 * r)]
        e.append(lambda: tk.extend(self.stores2([self.pair_store(o, sT + 6, 0)], wt)))
        for q in (1, 2, 3):
            for r in range(2):
                if q > 1:
                    e.append("v_add_f32 v%d, v%d, v%d" % (s + 2 * r, s + 2 * r, x + 4 * r + q))
                e.append("v_fmac_f32 v%d, v%d, v%d" % (s + 2 * r + 1, x + 4 * r + q, x + 4 * r + q))
        e += [1, "v_permlane32_swap_b32 v%d, v%d" % (s, s + 2), "v_permlane32_swap_b32 v%d, v%d" % (s + 1, s + 3), 1,
              "v_add_f32 v%d, v%d, v%d" % (s, s, s + 2), "v_add_f32 v%d, v%d, v%d" % (s + 1, s + 1, s + 3), 1,
              "v_permlane16_swap_b32 v%d, v%d" % (s, s + 1), 1, "v_add_f32 v%d, v%d, v%d" % (s, s, s + 1),
              lambda: tk.extend(self.stores2(["buffer_store_dword v%d, v%d, %s, s%d offen" % (s, vL4, self.ws(), sT + 7)], wt))]
        if delay is not None:
            e += [delay, fl]
        return k, e, fl

    def out_half_store(self, hf):
        x = vX + 8 * hf
        o = vT + 4 * hf
        e = ["s_add_u32 s%d, s%d, s%d" % (sT + 6, sRG64, sOUT), "s_add_u32 s%d, s%d, %d" % (sT + 6, sT + 6, hf * 32768), 2]
        e += ["v_cvt_pk_bf16_f32 v%d, v%d, v%d" % (o + j, x + 2 * j, x + 2 * j + 1) for j in range(4)]
        e += [1, "v_permlane16_swap_b32 v%d, v%d" % (o, o + 2), "v_permlane16_swap_b32 v%d, v%d" % (o + 1, o + 3),
              "buffer_store_dwordx4 %s, v%d, s[%d:%d], s%d offen%s" % (vr(o, 4), vOA, R_OUT, R_OUT + 3, sT + 6, env("OUTPOL", ""))]
        return e

    def p3_items(self, layer, seqs):
        items = []
        one = vr(vONE, 4)
        NA = env("NA", [8, 0])[layer]
        order = [(ks, rt) for ks in range(NA) for rt in (0, 1)] + [(ks, rt) for ks in range(NA) for rt in (2, 3)]
        NB = env("NB", [0, 6])[layer]
        order += [(ks, rt) for ks in range(NA, 16 - NB) for rt in range(4)]
        order += [(ks, rt) for ks in range(16 - NB, 16) for rt in (0, 1)] + [(ks, rt) for ks in range(16 - NB, 16) for rt in (2, 3)]
        for pos, rt in order:
            c0 = "0" if pos == 0 else None
            ks = self.ksord[layer][pos]
            if True:
                def mfs(fr, ks=ks, rt=rt, c0=c0):
                    th = []
                    for t in range(3):
                        w = self.w_get(("w1", layer, 3 * ks + t))
                        th.append(self.mf(vACC + 24 * (rt >> 1) + 8 * t + 4 * (rt & 1), w, fr, c0))
                        if layer == 0 and rt == 0 and ks >= self.ncs:
                            th.append(self.mf(vCS1 + 4 * t, w, one, c0))
                    if rt == 3:
                        th.append(lambda: [self.w_release(("w1", layer, 3 * ks + t)) for t in range(3)])
                    return th
                sq = seqs[rt >> 1][pos // 2]
                a, off = self.frag_addr(sq, rt & 1, ks & 1)
                items.append((a, off, sq, mfs))
        return items

    def silu(self, layer, hf, mid=None):
        b = self.b
        I = self.I
        for t in range(3):
            b.I("s_add_u32 s%d, s%d, 0x%x" % (sT + 6 + t, sH0 + t, self.buf("H", layer) + hf * (HSZ // 2)))
        sts = []
        for t in range(3):
            A = vACC + 24 * hf + 8 * t
            u = vT + 8 * (t & 1)
            for f in (mid or {}).get(t, []):
                f()
            for j in range(4):
                I("v_pk_mul_f32 %s, %s, %s op_sel:[0,1] op_sel_hi:[1,1]" % (
                    p2(u + 2 * j), p2(vCS1 + 4 * t + 2 * (j & 1)), p2(vAB + 4 * hf + 2 * (j >> 1))))
            for j in range(4):
                I("v_pk_fma_f32 %s, %s, %s, %s op_sel:[0,0,0] op_sel_hi:[1,0,1]" % (
                    p2(A + 2 * j), p2(A + 2 * j), p2(vAB + 4 * hf + 2 * (j >> 1)), p2(u + 2 * j)))
            for k in range(8):
                I("v_exp_f32 v%d, v%d" % (u + k, A + k))
            for j in range(4):
                I("v_pk_fma_f32 %s, %s, %s, %s op_sel:[0,0,0] op_sel_hi:[1,0,0] neg_lo:[0,1,1] neg_hi:[0,1,1]" % (
                    p2(u + 2 * j), p2(u + 2 * j), p2(vK), p2(vK)))
            for k in range(8):
                I("v_rcp_f32 v%d, v%d" % (u + k, u + k))
            for j in range(4):
                I("v_pk_mul_f32 %s, %s, %s" % (p2(A + 2 * j), p2(A + 2 * j), p2(u + 2 * j)))
            for j in range(4):
                I("v_cvt_pk_bf16_f32 v%d, v%d, v%d" % (A + j, A + 2 * j, A + 2 * j + 1))
            sts += self.stores2([self.pair_store(A, sT + 6 + t, 0)], 2 if layer == 1 and hf in env('WTH', []) else layer == 0 or self.sep)
        return sts

    def body(self):
        b = self.b
        self.ksord = [list(range(16)), [4 * p + k for p in (3, 2, 1, 0) for k in range(4)]]
        for layer in range(2):
            self.w_enqueue("wo", layer, F_WO, 16)
            self.w_enqueue("w1", layer, F_W1, 48, [3 * ks + t for ks in self.ksord[layer] for t in range(3)])
            if layer == 0:
                self.w_enqueue("w2", 0, F_W2, 43)
        AF = env("AFIRST", 12)
        G8c = env("G8C", [2, 2, 2, 2])
        G8w = env("G8W", [4, 4])
        G22 = env("G22", [2, 2, 2, 2, 2, 4, 4, 4])
        st = {}
        PA, PB = env("PA", [60, 62]), env("PB", [75, 55])
        self.pace_w = PA[0]
        self.startup()
        xs = None
        for layer in range(2):
            self.pace_w = PA[layer]
            tk = self.attention(layer, xs)
            k_o, fl = self.new_pub(tk)
            self.w_burst(env("W_PUB", [0, 0])[layer])
            fl()
            self.stamp("o_pub")
            self.poll_shadow(k_o, env("NCS", [0, 0])[0] if layer == 0 else 0)
            self.stamp("o_rdy")
            wt = 2 if layer == 1 and env('WTX', 0) else layer == 0 or self.sep
            D16, PW = env("D16", 9), env("PAIRW", True)
            if env("NA", [8, 0])[layer]:
                oa = self.queue_half("O", layer, 0, 8, self.aq)
                ob = self.queue_half("O", layer, 1, 8, self.aq)
                self.a_burst(env("AF2", 10))
                self.bg_w = env("W_P2", [12, 12])[layer]

                def xa_out():
                    st["k_xa"], st["fl_xa"] = self.new_pub(self.x_payload(2 * layer, 0, wt))
                self.gemm(self.n16_items("wo", layer, 16, 0, oa) + self.n16_items("wo", layer, 16, 1, ob),
                          self.split(oa, env("G2A", [2, 2, 4])) + self.split(ob, env("G2B", [4, 4])), D16,
                          {33: [xa_out], 33 + env("D_XA", 20): [lambda: st["fl_xa"]()]}, pairw=PW)
                self.bg_w = 0
                self.stamp("p2")
                tk = self.x_payload(2 * layer, 1, wt)
                k_s, fl_s = self.new_pub(tk + self.x_stats(wt))
                self.stamp("x_pub")
                self.poll_check(st["k_xa"])
                self.stamp("x_rdy")
                poll = lambda: st.update(tok=self.poll_issue())

                def when(k, plan, burst=0):
                    def f():
                        self.poll_check(k() if callable(k) else k, st["tok"])
                        self.aq += plan
                        self.a_burst(burst)
                    return f
                fl_s()
                dso = [k // 2 for k in self.ksord[layer][::4]]
                xa = sum([self.queue_half("X", 2 * layer, 0, 2, self.aq, ds0=d) for d in dso], [])
                pl_s = []
                xb = sum([self.queue_half("X", 2 * layer, 1, 2, pl_s, ds0=d) for d in dso], [])
                xx = (xa, xb)
                sa = self.queue_stats(0, pl_s)
                sb = self.queue_stats(1, pl_s)
                if layer or FT:
                    th = lambda: self.touch_h(layer)
                    th.seq = -1
                    th.prep = []
                    pl_s.append(th)
                self.a_burst(env("AF3", 6))
                self.bg_w = 0
                self.pace_w = PB[layer]
                NA = env("NA", [8, 0])[layer]
                h = NA // 2
                groups = [xa[:2], xa[2:h], xb[:2], xb[2:h], xa[h:] + xb[h:]] if h > 2 else [xa[:2], xb[:2], xa[2:4] + xb[2:4], xa[4:] + xb[4:]]
                hooks, pre, post = {}, {}, {}
                s1a, bba = self.stats_stage1(sa, 0)
                s1b, bbb = self.stats_stage1(sb, 1)
                j = env("H_ST", 1)
                hooks[j] = [poll, lambda: self.w_burst(env("W_P3S", [0, 0])[layer])]
                hooks[j + env("CK3", 6)] = [when(k_s, pl_s, env("BU3", 4)), lambda: setattr(self, "bg_w", 99)]
                hooks[env("H_S1", [28, 24])[layer]] = [lambda: self.side.extend(s1a + s1b)]

            else:
                n0 = self.seq
                oo = self.queue_both("O", layer, 8, self.aq)
                self.a_burst(env("AF2", 10))
                self.bg_w = env("W_P2", [12, 12])[layer]
                self.gemm(self.n16_full("wo", layer, 16, oo), self.split(list(range(n0, n0 + 16)), env("G16", [2, 2, 4, 4, 4])), D16,
                          pairw=PW)
                self.bg_w = 0
                self.stamp("p2")
                tk1 = self.x_payload(2 * layer, 0, wt) + self.x_payload(2 * layer, 1, wt)
                tk2 = self.x_stats(wt)
                k_x, fl_x = self.new_pub(tk1)
                k_s, fl_s = self.new_pub(tk2)
                self.w_burst(env("W_PUB2", [4, 0])[layer])
                fl_x()
                self.stamp("x_pub")
                self.poll_shadow(k_x, env("NCS", [0, 0])[1] if layer == 0 else 0)
                self.stamp("x_rdy")
                poll = lambda: st.update(tok=self.poll_issue())

                def when(k, plan, burst=0):
                    def f():
                        self.poll_check(k() if callable(k) else k, st["tok"])
                        self.aq += plan
                        self.a_burst(burst)
                    return f
                n0 = self.seq
                xx = ([], [])
                for d in [k // 2 for k in self.ksord[layer][::4]]:
                    for hf in range(2):
                        xx[hf].extend(self.queue_half("X", 2 * layer, hf, 2, self.aq, ds0=d))
                hold = self.seq
                pl_s = []
                sa = self.queue_stats(0, pl_s)
                sb = self.queue_stats(1, pl_s)
                self.a_burst(4)
                fl_s()
                self.a_burst(env("AF3F", 8) - 4)
                self.bg_w = env("W_P3E", 0)
                self.pace_w = PB[layer]
                groups = self.split(list(range(n0, n0 + 16)), env("G3", [4, 4, 8]))
                hooks, pre, post = {}, {}, {}
                s1a, bba = self.stats_stage1(sa, 0)
                s1b, bbb = self.stats_stage1(sb, 1)
                j = env("H_STF", 8)
                hooks[j] = [poll, lambda: self.w_burst(env("W_P3S", [0, 0])[layer])]
                hooks[j + 6] = [when(k_s, pl_s), lambda: setattr(self, "bg_w", 99)]
                hooks[j + 18] = [lambda: self.side.extend(s1a + s1b)]
                hooks.setdefault(env("H_TH", 36), []).append(lambda: self.touch_h(layer))

            def exch():
                bba()
                bbb()
                b.I("s_barrier")
                self.side.extend(self.stats_stage2(0, True, False) + self.stats_stage2(1, True, False))
            hooks[env("H_EX", [48, 42])[layer]] = [exch]
            if env("NB", [0, 6])[layer]:
                it3 = self.p3_items(layer, xx)
                NB = env("NB", [0, 6])[layer]
                tail = it3[64 - 2 * NB:]
                lim = min(t[2] for t in tail)
                self.pinned = {lim + 2}
                self.gemm(it3[:64 - 2 * NB], groups, 6, hooks, pre, post, pairw=True)
                self.stamp("p3")
                pl_ha, pl_hb, pl_ya = [], [], []
                ha = self.queue_half("H", layer, 0, 22, pl_ha)
                hb = self.queue_half("H", layer, 1, 22, pl_hb)
                tka = []
                k_ha, fl_ha = self.new_pub(tka)
                hk = {env("H_FLA", 8): [fl_ha]}
                if env("M_PI", 1) < 0:
                    hk.setdefault(2 * NB - 1, []).append(poll)
                j3 = self.gemm_prep(tail, None, 6, hk, pairw=True)
                j3[0]()
                self.bg_w = env("W_SILU", [0, 0])[layer]
                tka += self.silu(layer, 0)
                self.stamp("silu_a")
                self.pinned = set()
                self.bg_w = env("W_P3T", [0, 0])[layer]
                j3[1]()
                self.mine = ha[0] - 1
                self.bg_w = 0
                self.stamp("p3t")
                mid = {}
                mid.setdefault(env("M_PI", 1), []).append(poll)
                mid.setdefault(env("M_PC", 2), []).append(when(k_ha, pl_ha, env("AF4", 4)))
                tkb = self.silu(layer, 1, mid)
                k_hb, fl_hb = self.new_pub(tkb)
                self.stamp("ha_rdy")
                self.a_burst(AF - (self.seq_issued() - ha[0]))
                SPL = 1
            else:
                self.gemm(self.p3_items(layer, xx), groups, 6, hooks, pre, post, pairw=True)
                self.pinned = set()
                self.mine = self.seq - 1
                self.bg_w = env("W_SILU", [0, 0])[layer]
                self.stamp("p3")
                k_ha, fl_ha = self.new_pub(self.silu(layer, 0))
                self.bg_w = 0
                pl_ha, pl_hb, pl_ya = [], [], []
                ha = self.queue_half("H", layer, 0, 22, pl_ha)
                hb = self.queue_half("H", layer, 1, 22, pl_hb)

                def ha_go():
                    self.stamp("silu")
                    self.poll_check(k_ha)
                    self.stamp("ha_rdy")
                    self.aq += pl_ha
                    self.a_burst(env("AF4", 4))
                SPL = env("SPLIT", 0)
                mid = {env("MID", 1): [fl_ha]}
                if SPL:
                    mid.setdefault(2, []).append(ha_go)
                tkb = self.silu(layer, 1, mid)
                k_hb, fl_hb = self.new_pub(tkb)
                if not SPL:
                    ha_go()
                    fl_hb()
                if layer == 1 and "x" in env("CLEAN", ""):
                    for j in range(8):
                        b.I("v_cvt_pk_bf16_f32 v%d, v%d, v%d" % (vT + j, vX + 2 * j, vX + 2 * j + 1))
                    st["cx"] = []
                    for hf in range(2):
                        b.I("s_add_u32 s%d, s%d, s%d" % (sT + 9 + hf, sRG64, sSTO))
                        b.I("s_add_u32 s%d, s%d, 0x%x" % (sT + 9 + hf, sT + 9 + hf, self.buf("X", 2) + hf * 32768))
                        st["cx"] += [self.pair_store(vT + 4 * hf, sT + 9 + hf, 0) + " sc1", 6]
                    self.side += [30] + st["cx"]
                self.a_burst(AF - (self.seq_issued() - ha[0]))
            self.bg_w = 99
            j = env("H_P4A", [24, 34])[layer]
            self.alead = env("ALEAD4", 16)
            self.pace_w = PA[1]
            items = self.n16_items("w2", 0, 43, 0, ha) + self.n16_items("w2", 0, 43, 1, hb)
            groups = self.split(ha, env("G22C", [2, 2, 4, 4, 4, 6])) + self.split(hb, G22)
            hooks = {j: [poll], j + env('CK4', 12): [when(k_hb, pl_hb, env('BU_HB', 4))]}
            if SPL:
                hooks[env("H_FLB", 14)] = [fl_hb]
            pre, post = {}, {}
            if layer == 0:
                sa = self.queue_stats(0, pl_ya)
                ya = self.queue_half("X", 1, 0, 8, pl_ya, rot=True)

                def y_out(hf, delay):
                    def f():
                        self.stamp("p4a" if hf == 0 else "p4b")
                        st["k_y%d" % hf], st["fl_y%d" % hf] = self.x_half_now(1, hf, self.sep)
                        self.pace_w = PA[1]
                        if hf:
                            self.alead = env("ALEAD", 99)
                    return f
                j = 86 + env("H_P4B", 44)
                hooks.update({87: [y_out(0, 0)], 87 + env("D_Y0", 22): [lambda: st["fl_y0"]()],
                              172 + env("D_Y1", 10): [lambda: st["fl_y1"]()], j: [poll], j + env('CK4', 12): [when(lambda: st["k_y0"], pl_ya, env("BU_YA", 6))], 172: [y_out(1, 0)],
                              172 + env("H_P1A", 24): [poll]})
                ng = len(groups)
                groups += self.split(ya, env("G8K", [2, 4, 2]))
                self.stats_hooks(sa, 0, False, True, 173, ng + 2, hooks, pre, post)
                items += self.kv_items(0, ya)
            else:
                hooks[85] = [lambda: (self.stamp("p4a"), self.side.extend(self.out_half_store(0)))]
                CL = env("CLEAN", "")

                def clean_h(hf):
                    e = []
                    for t in range(3):
                        e += ["s_add_u32 s%d, s%d, 0x%x" % (sT + 8, sH0 + t, self.buf("H", layer) + hf * (HSZ // 2)),
                              "buffer_store_dwordx4 %s, v%d, %s, s%d offen sc1" % (vr(vACC + 24 * hf + 8 * t, 4), vST, self.ws(), sT + 8), 4]
                    return lambda: self.side.extend(e)
                if "a" in CL:
                    hooks.setdefault(86 + env("H_CLA", 12), []).append(clean_h(0))
                if "b" in CL:
                    hooks.setdefault(86 + env("H_CLB", 60), []).append(clean_h(1))
            self.gemm(items, groups, D16, hooks, pre, post, pairw=PW)
            if layer == 0:
                self.stamp("p1a")
                pl = []
                sb = self.queue_stats(1, pl)
                yb = self.queue_half("X", 1, 1, 8, pl, rot=True)
                pl = pl[2:6] + pl[:2] + pl[6:]

                def go():
                    self.poll_check(st["k_y1"], st["tok"])
                    self.stamp("yb_rdy")
                    self.aq += pl
                    self.a_burst(env('AF1', 6))
                self.kv_finish(0, go)
                hooks, pre, post = {}, {}, {}
                self.stats_hooks(sb, 1, False, True, 0, 1, hooks, pre, post)
                self.gemm(self.kv_items(1, yb), self.split(yb, env('G1B', [4, 4])), 8, hooks, pre, post, pairw=True)
                self.kv_finish(1)
                self.stamp("p1b")
                xs = [ya, yb]
            else:
                self.stamp("p4b")
                self.side = self.out_half_store(1)
                self.side_flush()
                lx = b.newlabel("Lep")
                b.I("s_or_b32 s%d, s2, s%d" % (sT, sW))
                b.I("s_cbranch_scc1 %s" % lx)
                b.I("s_add_u32 s%d, s%d, 16" % (sT, sEP))
                b.I("v_mov_b32 v%d, s%d" % (vT + 9, sT))
                b.I("s_mov_b32 s%d, 0x%x" % (sT, WS_EP))
                b.I("s_mov_b64 exec, 1")
                self.Inc("buffer_store_dword v%d, off, %s, s%d sc1" % (vT + 9, self.ws(), sT))
                b.I("s_mov_b64 exec, -1")
                b.label(lx)
                self.stamp("end")
        if self.diag:
            b.I("s_lshl_b32 s%d, s2, 2" % sT)
            b.I("s_add_u32 s%d, s%d, s%d" % (sT, sT, sW))
            b.I("s_lshl_b32 s%d, s%d, 8" % (sT, sT))
            b.I("s_add_u32 s%d, s%d, 0x%x" % (sT, sT, WS_STAMP))
            b.I("buffer_store_dword v%d, v%d, %s, s%d offen" % (vSTAMP, vL4, self.ws(), sT))
            if env("RT", 0):
                b.I("s_add_u32 s%d, s%d, 0x40000" % (sT, sT))
                b.I("buffer_store_dword v255, v%d, %s, s%d offen" % (vL4, self.ws(), sT))
        if self.diag and env("PROBE", 0):
            lx, lp = b.newlabel("Lpr"), b.newlabel("Lprl")
            i0, i1 = [61 if n == "entry" else [i for i, m in enumerate(self.stamp_names) if m == n[0]][n[1]] for n in env("PROBE", 0)]
            b.I("s_cmp_lg_u32 s2, %d" % env("PWG", 100))
            b.I("s_cbranch_scc1 %s" % lx)
            b.I("v_readlane_b32 s%d, v%d, %d" % (sT, vSTAMP, i0))
            b.I("v_readlane_b32 s%d, v%d, %d" % (sT + 1, vSTAMP, i1))
            b.I("v_readlane_b32 s%d, v%d, %d" % (sT + 2, vSTAMP, len(self.stamp_names) - 1))
            b.I("s_sub_u32 s%d, s%d, s%d" % (sT + 1, sT + 1, sT))
            b.I("s_mul_i32 s%d, s%d, %d" % (sT + 1, sT + 1, env("PMUL", 1)))
            b.I("s_add_u32 s%d, s%d, 4800" % (sT + 1, sT + 1))
            b.label(lp)
            b.I("s_memtime s[94:95]")
            b.I("s_waitcnt lgkmcnt(0)")
            b.I("s_sub_u32 s%d, s94, s%d" % (sT, sT + 2))
            b.I("s_cmp_lt_u32 s%d, s%d" % (sT, sT + 1))
            b.I("s_cbranch_scc1 %s" % lp)
            b.label(lx)
        b.label("L_end")
        b.I("s_endpgm")
        for t in self.cold:
            b.raw(t)

    def emit(self):
        self.body()
        head = """; @launch grid=(256,1,1) block=(256,1,1) lds=%d
; persistent fused kernel: 32 row groups (64 rows) x 8 column groups (generated by my own script)
.amdgcn_target "amdgcn-amd-amdhsa--gfx950"
.text
.globl %s_kernel
.p2align 8
.type %s_kernel,@function
%s_kernel:
""" % (LDS_BYTES, NAME, NAME, NAME)
        tail = """.section .rodata,"a"
.p2align 6
.amdhsa_kernel %s_kernel
  .amdhsa_next_free_vgpr 512
  .amdhsa_next_free_sgpr 102
  .amdhsa_accum_offset 256
  .amdhsa_group_segment_fixed_size 0
  .amdhsa_kernarg_size 72
  .amdhsa_user_sgpr_count 2
  .amdhsa_user_sgpr_kernarg_segment_ptr 1
  .amdhsa_system_sgpr_workgroup_id_x 1
.end_amdhsa_kernel
""" % NAME
        return head + self.b.text() + tail


if __name__ == "__main__":
    import argparse
    ap = argparse.ArgumentParser()
    ap.add_argument("-o", default="cdna_kernels/%s.s" % NAME)
    ap.add_argument("--diag", action="store_true")
    ap.add_argument("--sep", action="store_true")
    a = ap.parse_args()
    g = Gen(a.diag, a.sep)
    txt = g.emit()
    if a.diag:
        txt = txt.replace(".amdgcn_target", "; stamps: " + ",".join(g.stamp_names) + "\n.amdgcn_target", 1)
    open(a.o, "w").write(txt)
    print("instructions", g.b.nins, "nops", g.b.nops, file=sys.stderr)
```

```python
import sys
import os
sys.path.insert(0, os.path.dirname(os.path.abspath(__file__)))
from asmb import Builder, vr

NAME = "interleave_layers__linear_attn_block__dense_activation_silu__prompt"


def env(name, default):
    v = os.environ.get(name)
    return default if v is None else eval(v)


PKW = 107 * 1024
WS_FL = 0x380000
WS_EP = 0x390000
WS_R2 = 0x398000
WS_KV = 0x480000
NC = env('NC', 2)
KCS = env('KCS', 1344)
KVH = NC * KCS
KVL = 32 * KVH
KB0 = env('KB0', 0)
WS_R3 = 0x3D0000
WS_ST = 0x400000
WS_O = 0x600000
WS_X = 0x800000
WS_H = 0xA00000
HSZ = 22 * 8192
WS_STAMP = 0x3000000
WS_SIZE = 0x3100000 if '--diag' in sys.argv else 0x1000000
OOB = 0x4000000 if '--diag' in sys.argv else 0x1000000
F_WO, F_W1, F_W2 = 0, 16, 64

L_RING = 65536
L_RQ = 106496
L_WQ = 81920
L_PACK = 131072
L_KVI = 147456
L_STA = 157696
L_EX = 158720
NR = env('NR', 8)
NSLOT = 20
LDS_BYTES = 163840

S_X, S_WQ, S_WO, S_W1, S_W2, S_OUT, S_DBG, S_WS = 4, 6, 8, 12, 14, 16, 18, 20
R_X, R_WQ, R_WS, R_OUT, R_PK = 24, 28, 32, 36, 44
sR1, sQ, sTC, sTAG, sEP = 3, 10, 11, 22, 23
sROT, sSTP, sSTC, sW1K = 40, 41, 42, 43
sRG, sC, sW, sFAST, sPK, sKV, sFL, sRG64, sRGH, sSTO = 48, 49, 50, 51, 52, 53, 54, 55, 56, 57
sH0 = 58
sSPIN = 61
sEPS = 62
sOUT = 63
sXS = 64
sRB2, sRO2 = 65, 66
sM1, sM2, sM3, sDIAG = 68, 70, 72, 74
sT = 76
sKB = 88
sPKC, sXCC, sMYF, sW2K, sAB, sAO = 96, 97, 98, 99, 100, 101

vL16, vA1, vKVL, vDMA, vST = 1, 2, 3, 4, 5
vX0, vX1, vOW0, vOW1, vTR, vXS0, vXS1, vWS = 6, 7, 8, 9, 10, 11, 12, 13
vWQ = 13
vSB, vEX, vSWR, vOA = 8, 9, 10, 11
vFL, vL4, vSTAMP, vSTA, vSTQ, vC2 = 14, 15, 16, 17, 18, 19
vX = 20
vCSQ, vCSK, vCSV = 36, 40, 42
vCS1 = 44
vONE = 56
vACC = 60
vAF = 108
NAF = 10
vAB = 148
vT = 156
vPOS = 172
vZP, vSW, vDUM, vTCH, vPOLL, vDM2 = 176, 177, 178, 179, 180, 181
vK = 182
vS1, vS2 = 184, 188
vTQ = 195
vW1 = 192
SLOTS = [("a", 4 * i) for i in range(64)] + [("v", 196 + 4 * i) for i in range(15)]
PACE = env("PACE", 36)
FT = env("FTOUCH", 1)
WMIN = env("WMIN", 10)
AMIN = env("AMIN", 5)
RDSLACK = env("RDSLACK", 2)
SIDEMIN = env("SIDEMIN", 1)
COST = {"mfma": 16, "trans": 8, "ds": 4, "valu": 4, "perm": 4, "dpp": 4, "rdlane": 4, "wrlane": 4, "salu": 2, "vmem": 8}
K_L2E = "op_sel:[0,0] op_sel_hi:[1,0]"


def slot_r(s):
    return vr(s[1], 4, s[0])


def p2(r):
    return "v[%d:%d]" % (r, r + 1)


class Gen:
    def __init__(self, diag=False, sep=False):
        self.b = Builder()
        self.diag = diag
        self.sep = sep
        self.free = list(SLOTS[:-1] if env('RT', 0) else SLOTS)
        self.wq = []
        self.wslot = {}
        self.pk_cur = None
        self.nstamp = 0
        self.stamp_names = []
        self.aq = []
        self.atok = {}
        self.seq = 0
        self.consumed = -1
        self.mine = -1
        self.pub_mine = {}
        self.clock = 0
        self.last_bg = -1000
        self.bg_w = 0
        self.pace_w = 70
        self.in_bg = False
        self.npub = 0
        self.ncs = 0
        self.gstamp = False
        self.vclock = {}
        bI, bw = self.b.I, self.b.wait

        def I2(t):
            tok = bI(t)
            if tok and tok[0] == "vm":
                self.vclock[tok[1]] = self.clock
            return tok

        def w2(*toks, **kw):
            if os.environ.get("SLACK"):
                flat = []
                for t in toks:
                    if t is None:
                        continue
                    flat += t if isinstance(t, list) else [t]
                v = [i for k, i in flat if k == "vm" and i >= self.b.vm_done]
                if v:
                    d = self.clock - self.vclock.get(max(v), 0)
                    if d < int(os.environ["SLACK"]):
                        print("   slack %4d at clock %d (after %s)" % (d, self.clock, self.last_stamp), file=sys.stderr)
            return bw(*toks, **kw)
        self.b.I, self.b.wait = I2, w2
        self.last_stamp = ""
        self.flagged = set()
        self.cold = []
        self.slotted = False
        self.prepped = None
        self.wprep = []
        self.pinned = set()
        self.side = []
        self.side_rate = 2
        self.w_issued = 0
        self.w_need = 0
        self.w_cur = None
        self.w_index = {}
        self.wlead = env('WLEAD', 14)
        self.cur_seq = 0
        self.alead = env('ALEAD', 99)

    def I(self, t):
        tok = self.b.I(t)
        k = self.b.hists[0][-1].kind if self.b.hists and self.b.hists[0] else "salu"
        self.clock += COST.get(k, 4)
        if not self.in_bg and not self.slotted and k in ("mfma", "valu", "trans"):
            c = self.bg_pick()
            if c is not None and c[1]:
                self.bg_emit(c[0], True)
        return tok

    def side_step(self, n):
        self.in_bg = True
        done = 0
        while n > 0 and self.side:
            e = self.side[0]
            if isinstance(e, int):
                if e <= 1:
                    self.side.pop(0)
                else:
                    self.side[0] = e - 1
                break
            self.side.pop(0)
            if isinstance(e, str):
                self.b.I(e)
            else:
                e()
            n -= 1
            done += 1
        self.in_bg = False
        return done

    def side_flush(self):
        while self.side:
            self.side_step(1000)

    def bg_pick(self):
        a_ok = self.aq and self.aq[0].seq - NSLOT <= self.consumed
        w_ok = self.bg_w > 0 and self.wq and self.free
        same = w_ok and self.wq[0][0][:2] == self.w_cur
        el = self.clock - self.last_bg
        if not self.slotted and a_ok:
            return "A", el >= env("PACEV", 60)
        if self.prepped == "A" and a_ok:
            return "A", el >= PACE or self.aq[0].seq - self.cur_seq < AMIN
        if a_ok and getattr(self.aq[0], "urgent", False):
            return "A", True
        if same and self.w_issued - self.w_need < WMIN:
            return "W", True
        if a_ok and w_ok:
            a_lead = self.aq[0].seq - self.cur_seq
            if a_lead > self.alead or (same and self.w_issued - self.w_need < self.wlead and a_lead > 3):
                a_ok = False
        if a_ok:
            return "A", el >= PACE or self.aq[0].seq - self.cur_seq < AMIN
        if w_ok:
            return "W", el >= self.pace_w
        return None

    def bg_prep_list(self, kind):
        if kind == "A":
            return self.aq[0].prep
        grp = self.wq[0][1] // 4
        if self.pk_cur != grp and not os.environ.get("NOW"):
            self.pk_cur = grp
            self.wprep = ["s_add_u32 s%d, s%d, 0x%x" % (sPKC, sPK, grp * 4096)]
        return self.wprep

    def bg_emit(self, kind, inline):
        self.in_bg = True
        if kind == "A":
            self.a_pop()
        else:
            self.w_issue()
            self.bg_w -= 1
        self.last_bg = self.clock
        self.in_bg = False

    def a_pop(self):
        th = self.aq.pop(0)
        while th.prep:
            self.b.I(th.prep.pop(0))
        th()
        self.prepped = None

    def slot_fill(self, rd_lag, issue_read):
        c = self.bg_pick()
        if c is not None and c[1] and rd_lag <= RDSLACK and not self.bg_prep_list(c[0]):
            self.bg_emit(c[0], False)
            self.clock += 8
            return
        budget = 2
        if rd_lag > 0:
            issue_read()
            budget -= 1
            if rd_lag > 1:
                issue_read()
                budget -= 1
        if c is not None:
            pl = self.bg_prep_list(c[0])
            while budget > 0 and pl:
                self.b.I(pl.pop(0))
                budget -= 1
                if c[0] == "A":
                    self.prepped = "A"
        self.side_step(max(budget, SIDEMIN))

    def Inc(self, t):
        self.b.I(t)
        self.b.vm_issued -= 1

    def stamp(self, name):
        self.last_stamp = name
        if os.environ.get("WLOG"):
            print("%-8s clock %6d  wq left %3d next %s free %d aq %d" % (
                name, self.clock, len(self.wq), self.wq[0][0] if self.wq else None, len(self.free), len(self.aq)), file=sys.stderr)
        if not self.diag:
            return
        b = self.b
        k = self.nstamp
        self.nstamp += 1
        assert k < 62
        b.comment("stamp %d %s" % (k, name))
        b.I("s_memtime s[94:95]")
        b.wait(lg=0)
        b.I("v_writelane_b32 v%d, s94, %d" % (vSTAMP, k))
        if env("RT", 0):
            b.I("s_memrealtime s[94:95]")
            b.wait(lg=0)
            b.I("v_writelane_b32 v255, s94, %d" % k)
        if name in ("start", "end"):
            b.I("s_memrealtime s[94:95]")
            b.wait(lg=0)
            b.I("v_writelane_b32 v%d, s94, %d" % (vSTAMP, 62 if name == "start" else 63))
        self.stamp_names.append(name)

    def buf(self, kind, idx):
        base = {"O": WS_O if self.sep else WS_H, "X": WS_X, "H": WS_H}[kind]
        return base + (idx * 0x1000000 if self.sep else 0)

    def hstride(self, kind):
        return HSZ // 2 if self.rgs(kind) == sRGH else 32768

    def rgs(self, kind):
        return sRGH if kind == "H" or (kind == "O" and not self.sep) else sRG64

    def srd(self, r, ptr, size):
        I = self.b.I
        I("s_mov_b32 s%d, s%d" % (r, ptr))
        I("s_and_b32 s%d, s%d, 0xffff" % (r + 1, ptr + 1))
        I("s_mov_b32 s%d, 0x%x" % (r + 2, size))
        I("s_mov_b32 s%d, 0x20000" % (r + 3))

    def ws(self):
        return "s[%d:%d]" % (R_WS, R_WS + 3)

    def w_enqueue(self, name, layer, f0, n, order=None):
        for i in (range(n) if order is None else order):
            self.w_index[(name, layer, i)] = len(self.w_index)
            self.wq.append(((name, layer, i), f0 + i))

    def w_issue(self):
        key, f = self.wq.pop(0)
        s = self.free.pop(0)
        self.w_issued += 1
        if os.environ.get("NOW"):
            self.wslot[key] = (s, None)
            return
        grp = f // 4
        while self.wprep:
            self.b.I(self.wprep.pop(0))
        if self.pk_cur != grp:
            self.b.I("s_add_u32 s%d, s%d, 0x%x" % (sPKC, sPK, grp * 4096))
            self.pk_cur = grp
        va = vW1 + key[2] % 3 if key[0] == "w1" and env("SKIPW1", 1) else vL16
        if os.environ.get("FAKEW"):
            self.b.I("s_mov_b32 s%d, s%d" % (sPKC, sPK))
        tok = self.b.I("buffer_load_dwordx4 %s, v%d, %s, s%d offen offset:%d sc1%s" % (
            slot_r(s), va, self.ws(), sPKC, (f % 4) * 1024, " nt" if env("NT", lambda k: False)(key) else ""))
        self.wslot[key] = (s, tok)

    def w_burst(self, n):
        k = 0
        while k < n and self.wq and self.free:
            self.w_issue()
            k += 1
        self.last_bg = self.clock

    def w_get(self, key):
        self.w_need = max(self.w_need, self.w_index.get(key, 0))
        self.w_cur = key[:2]
        if key not in self.wslot:
            print("WARNING: late W load", key, file=sys.stderr)
        while key not in self.wslot:
            assert self.wq and self.free, "no free slot for %s" % (key,)
            self.w_issue()
        s, tok = self.wslot[key]
        self.b.wait(tok)
        return slot_r(s)

    def w_release(self, key):
        s, _ = self.wslot.pop(key)
        self.free.append(s)

    def stores2(self, texts, wt=False):
        b = self.b
        if wt == 2 or (wt and not FT):
            return [b.I(t + " sc1") for t in texts]
        ls, lj = b.newlabel("Lslow"), b.newlabel("Ljoin")
        b.I("s_cmp_eq_u32 s%d, 1" % sFAST)
        b.I("s_cbranch_scc0 %s" % ls)
        b.saved.pop(ls)
        toks = [b.I(t) for t in texts]
        b.raw(lj + ":")
        self.cold += [ls + ":"] + ["    " + t + " sc1" for t in texts] + ["    s_branch " + lj]
        return toks

    def pair_store(self, p, sreg, off):
        for k in range(2):
            self.b.I("v_permlane16_swap_b32 v%d, v%d" % (p + k, p + 2 + k))
        return "buffer_store_dwordx4 %s, v%d, %s, s%d offen offset:%d" % (vr(p, 4), vST, self.ws(), sreg, off)

    def spin_guard(self, lab_loop):
        b = self.b
        b.I("s_sub_u32 s%d, s%d, 1" % (sSPIN, sSPIN))
        b.I("s_cmp_lg_u32 s%d, 0" % sSPIN)
        b.I("s_cbranch_scc1 %s" % lab_loop)
        b.I("s_branch L_end")

    def new_pub(self, toks):
        self.npub += 1
        k = self.npub
        self.pub_mine[k] = self.mine

        def flag():
            b = self.b
            b.I("s_add_u32 s%d, s%d, %d" % (sT, sTAG, k))
            b.I("v_mov_b32 v%d, s%d" % (vC2, sT))
            b.wait(toks)
            b.I("s_mov_b64 exec, 1")
            self.stores2(["buffer_store_dword v%d, off, %s, s%d" % (vC2, self.ws(), sMYF)])
            b.I("s_mov_b64 exec, -1")
            self.flagged.add(k)
        return k, flag

    def poll_issue(self):
        return self.b.I("buffer_load_dword v%d, v%d, %s, s%d offen sc1" % (vPOLL, vFL, self.ws(), sFL))

    def poll_shadow(self, k, ncs):
        if not ncs:
            return self.poll_check(k)
        tok = self.poll_issue()
        self.cs1_some(ncs)
        self.poll_check(k, tok)
        self.b.wait(vm=0)

    def poll_check(self, k, tok=None):
        b = self.b
        if k not in self.flagged:
            print("WARNING: side stream late for flag", k, file=sys.stderr)
        while k not in self.flagged:
            assert self.side, "flag %d never raised before its poll" % k
            self.side_step(1)
        lp, ld, lc = b.newlabel("Lpoll"), b.newlabel("Lpd"), b.newlabel("Lpc")
        b.I("s_add_u32 s%d, s%d, %d" % (sT, sTAG, k))
        if tok is None and env("DPOLL", 0):
            ld_ = "buffer_load_dword v%%d, v%d, %s, s%d offen sc1" % (vFL, self.ws(), sFL)
            b.I(ld_ % vPOLL)
            for _ in range(env("DPOLL", 0)):
                b.I("s_nop 15")
            b.label(lp)
            for r0, r1 in ((vPOLL, vT), (vT, vPOLL)):
                self.Inc(ld_ % r1)
                b.I("s_waitcnt vmcnt(1)")
                b.I("v_subrev_u32 v%d, s%d, v%d" % (r0, sT, r0))
                b.I("v_cmp_gt_u32 vcc, %d, v%d" % (16 - k, r0))
                b.I("s_cmp_eq_u64 vcc, exec")
                b.I("s_cbranch_scc1 %s" % ld)
            self.spin_guard(lp)
            b.label(ld)
            b.vm_done = b.vm_issued
            self.consumed = max(self.consumed, self.pub_mine[k])
            return
        if tok is not None:
            b.wait(tok)
            b.I("s_branch %s" % lc)
        b.label(lp)
        self.Inc("buffer_load_dword v%d, v%d, %s, s%d offen sc1" % (vPOLL, vFL, self.ws(), sFL))
        if tok is None:
            b.wait(vm=0)
        else:
            b.I("s_waitcnt vmcnt(0)")
        b.label(lc)
        b.I("v_subrev_u32 v%d, s%d, v%d" % (vPOLL, sT, vPOLL))
        b.I("v_cmp_gt_u32 vcc, %d, v%d" % (16 - k, vPOLL))
        b.I("s_cmp_eq_u64 vcc, exec")
        b.I("s_cbranch_scc1 %s" % ld)
        self.spin_guard(lp)
        b.label(ld)
        self.consumed = max(self.consumed, self.pub_mine[k])

    def queue_stats(self, hf, plan):
        b = self.b
        s0 = self.seq
        assert s0 % 2 == 0
        self.seq += 2
        for j in range(2):
            def th(j=j):
                assert s0 + 1 - NSLOT <= self.consumed
                self.atok.setdefault(s0, []).append(b.I(
                    "buffer_load_dwordx4 v%d, %s, s%d offen offset:%d sc1 lds" % (vL16, self.ws(), sAO, j * 1024)))
            th.seq = s0 + 1
            th.urgent = True
            th.prep = [] if j else ["s_add_u32 m0, s%d, 0x%x" % (sW2K, (s0 % NSLOT) * 4096),
                                    "s_add_u32 s%d, s%d, 0x%x" % (sAO, sSTC, hf * 8192)]
            plan.append(th)
        return s0

    def queue_half(self, kind, idx, hf, nds, plan, rot=False, ds0=0):
        b = self.b
        seqs = []
        base = self.buf(kind, idx) + hf * self.hstride(kind)
        rg = self.rgs(kind)
        assert self.seq % 2 == 0 and nds % 2 == 0
        for ds in range(ds0, ds0 + nds):
            sq = self.seq
            self.seq += 1
            seqs.append(sq)
            s0 = sq & ~1

            def th(sq=sq, s0=s0):
                assert s0 + 1 - NSLOT <= self.consumed, "ring slot busy"
                tk = b.I("buffer_load_dwordx4 v%d, %s, s%d offen offset:%d sc1 lds" % (vDM2, self.ws(), sAO, (sq & 1) * 1024))
                if sq & 1:
                    self.atok[s0] = self.atok[s0 + 1] = [tk]
            th.seq = s0 + 1
            m0 = "s_add_u32 m0, s%d, 0x%x" % (sW2K, (sq % NSLOT) * 4096)
            if sq & 1:
                th.prep = []
            elif not rot:
                th.prep = [m0, "s_add_u32 s%d, s%d, 0x%x" % (sAO, rg, base + ds * 4096)]
            else:
                if ds == 0:
                    th.prep = ["s_add_u32 s%d, s%d, 0x%x" % (sAB, sRB2, base), "s_mov_b32 s%d, s%d" % (sXS, sRO2)]
                else:
                    th.prep = ["s_add_u32 s%d, s%d, 0x2000" % (sXS, sXS), "s_and_b32 s%d, s%d, 0x7fff" % (sXS, sXS)]
                th.prep += [m0, "s_add_u32 s%d, s%d, s%d" % (sAO, sAB, sXS)]
            plan.append(th)
        return seqs

    def queue_both(self, kind, idx, nds, plan):
        out = ([], [])
        for d0 in range(0, nds, 2):
            for hf in range(2):
                out[hf].extend(self.queue_half(kind, idx, hf, 2, plan, ds0=d0))
        return out

    def seq_issued(self):
        return self.aq[0].seq if self.aq else self.seq

    def a_burst(self, n):
        k = 0
        while k < n and self.aq and self.aq[0].seq - NSLOT <= self.consumed:
            self.a_pop()
            k += 1
        self.last_bg = self.clock

    def frag_addr(self, sq, r, h):
        off = (sq % NSLOT) * 4096 + r * 2048 + h * 1024
        return ((vL16, vA1)[off >> 16], off & 0xffff)

    def gemm_prep(self, items, groups=None, depth=8, hooks=None, pre=None, post=None, pairw=False, buf0=0):
        b = self.b
        hooks, pre, post = hooks or {}, pre or {}, post or {}
        n = len(items)
        toks = [None] * n
        grp_of = {}
        for gi, g in enumerate(groups or []):
            for sq in g:
                grp_of[sq] = gi
        opened = set()
        st = {"ip": 0}

        rem = [1 << 30] * (n + 1)
        for k in range(n - 1, -1, -1):
            rem[k] = min(rem[k + 1], items[k][2] if items[k][2] is not None else 1 << 30)

        def reg(k):
            return vr(vAF + 4 * ((k + buf0) % NAF), 4)

        def issue():
            k = st["ip"]
            a, off, sq, _ = items[k]
            if sq in grp_of and grp_of[sq] not in opened:
                gi = grp_of[sq]
                opened.add(gi)
                while any(s not in self.atok for s in groups[gi]):
                    self.a_pop()
                    self.last_bg = self.clock
                for f in pre.get(gi, []):
                    f()
                if self.gstamp:
                    self.stamp("g%d?" % gi)
                b.wait(*[self.atok[s] for s in groups[gi]])
                b.I("s_barrier")
                if self.gstamp:
                    self.stamp("g%d!" % gi)
                self.consumed = max(self.consumed, self.mine)
                for f in post.get(gi, []):
                    f()
            if a == "tr":
                r0 = vAF + 4 * ((k + buf0) % NAF)
                self.I("ds_read_b64_tr_b16 %s, v%d offset:%d" % (p2(r0), vTQ, off))
                toks[k] = self.I("ds_read_b64_tr_b16 %s, v%d offset:%d" % (p2(r0 + 2), vTQ, off + 512))
            else:
                toks[k] = self.I("ds_read_b128 %s, v%d offset:%d" % (reg(k), a, off))
            st["ip"] += 1

        def prestart(m=None):
            while st["ip"] < min(depth if m is None else m, n):
                issue()

        def run():
            prestart()
            self.slotted = True
            for j in range(n):
                thunks = items[j][3](reg(j))
                while st["ip"] <= min(j + (1 if pairw else 0), n - 1):
                    issue()
                if pairw and j % 2 == 0 and j + 1 < st["ip"]:
                    b.wait(toks[j + 1])
                b.wait(toks[j])
                if items[j][2] is not None:
                    self.cur_seq = items[j][2]
                    lim = min(self.pinned) - 3 if self.pinned else 1 << 30
                    self.mine = max(self.mine, min(rem[j] - 1, lim))
                if not thunks and st["ip"] < min(n, j + 1 + depth):
                    issue()
                for th in thunks:
                    n0 = b.nins
                    th()
                    if b.nins > n0:
                        self.slot_fill(min(n, j + 1 + depth) - st["ip"], issue)
                for f in hooks.get(j, []):
                    f()
            self.slotted = False
            self.side_flush()
            sq = [it[2] for it in items if it[2] is not None]
            if sq:
                self.cur_seq = max(sq) + 1
                lim = min(self.pinned) - 3 if self.pinned else 1 << 30
                self.mine = max(self.mine, min(max(sq), lim))
        return prestart, run

    def gemm(self, *a, **k):
        self.gemm_prep(*a, **k)[1]()

    def mf(self, d, a, bb, c=None):
        dd = vr(d, 4)
        cc = dd if c is None else c
        return lambda: self.I("v_mfma_f32_16x16x32_bf16 %s, %s, %s, %s" % (dd, a, bb, cc))

    @staticmethod
    def split(seqs, sizes):
        out, k = [], 0
        for s in sizes:
            out.append(seqs[k:k + s])
            k += s
        assert k == len(seqs)
        return out

    def stats_stage1(self, s0, hf):
        b = self.b
        t = vS1
        tk = {}
        def landed():
            while len(self.atok.get(s0, [])) < 2:
                self.a_pop()
            b.wait(self.atok[s0])
        out = ["v_add_u32 v%d, 0x%x, v%d" % (vT, (s0 % NSLOT) * 4096, vSB), landed]
        for k in range(4):
            out.append(lambda k=k: tk.__setitem__(k, b.I("ds_read2st64_b32 %s, v%d offset0:%d offset1:%d" % (
                p2(t + 2 * k), vT, 2 * k, 2 * k + 1))))
        out += [6, lambda: b.wait(tk[3])]
        out += ["v_add_f32 v%d, v%d, v%d" % (t + k, t + k, t + 4 + k) for k in range(4)]
        out += ["v_add_f32 v%d, v%d, v%d" % (t + k, t + k, t + 2 + k) for k in range(2)]
        out += ["v_add_f32 v%d, v%d, v%d" % (t, t, t + 1)]
        out.append(lambda: tk.__setitem__("w", b.I("ds_write_b32 v%d, v%d offset:%d" % (vSW, t, hf * 1024))))

        def before_barrier():
            self.side_flush()
            b.wait(tk["w"])
        return out, before_barrier

    def stats_stage2(self, hf, scale, kv):
        b = self.b
        t = vS1
        tk = {}
        out = []
        for k in range(2):
            out.append(lambda k=k: tk.__setitem__(k, b.I("ds_read2st64_b32 %s, v%d offset0:%d offset1:%d" % (
                p2(t + 2 * k), vEX, hf * 4 + 2 * k, hf * 4 + 2 * k + 1))))
        a0, b0, a1, b1 = [vAB + 4 * hf + k for k in range(4)]
        out += [6, lambda: b.wait(tk[1]),
                "v_add_f32 v%d, v%d, v%d" % (t, t, t + 2), "v_add_f32 v%d, v%d, v%d" % (t + 1, t + 1, t + 3),
                "v_add_f32 v%d, v%d, v%d" % (t, t, t + 1), "v_mul_f32 v%d, 0x3b000000, v%d" % (t, t),
                "v_mov_b32 v%d, v%d" % (t + 1, t), 1,
                "v_permlane16_swap_b32 v%d, v%d" % (t, t + 1), 1,
                "v_fma_f32 v%d, -v%d, v%d, v%d" % (t + 1, t, t, t + 1), "v_max_f32 v%d, 0, v%d" % (t + 1, t + 1),
                "v_add_f32 v%d, 0x3727c5ac, v%d" % (t + 1, t + 1), "v_rsq_f32 v%d, v%d" % (a0, t + 1), 1]
        if scale:
            out.append("v_mul_f32_e64 v%d, -v%d, v%d" % (a0, a0, vK))
        out.append("v_mul_f32_e64 v%d, -v%d, v%d" % (b0, t, a0))
        if kv:
            def wr():
                b.I("s_mov_b32 exec_lo, 0xffff")
                b.I("s_mov_b32 exec_hi, 0xffff")
                b.I("ds_write_b32 v%d, v%d" % (vSWR, a0))
                b.I("ds_write_b32 v%d, v%d offset:128" % (vSWR, b0))
                b.I("s_mov_b64 exec, -1")
            out.append(wr)
        out += ["v_mov_b32 v%d, v%d" % (a1, a0), "v_mov_b32 v%d, v%d" % (b1, b0), 1,
                "v_permlane32_swap_b32 v%d, v%d" % (a0, a1), "v_permlane32_swap_b32 v%d, v%d" % (b0, b1)]
        return out

    def stats_hooks(self, s0, hf, scale, kv, j1, gi, hooks, pre, post):
        s1, bb = self.stats_stage1(s0, hf)
        hooks.setdefault(j1, []).append(lambda: self.side.extend(s1))
        pre.setdefault(gi, []).append(bb)
        post.setdefault(gi, []).append(lambda: self.side.extend(self.stats_stage2(hf, scale, kv)))

    def stats_startup(self):
        b = self.b
        I = b.I
        t = vT
        I("v_mul_f32 v%d, 0x3b000000, v%d" % (t + 1, vS1))
        I("v_cndmask_b32 v%d, v%d, v%d, s[%d:%d]" % (t, vS2, vS2 + 1, sM1, sM1 + 1))
        I("v_cndmask_b32 v%d, v%d, v%d, s[%d:%d]" % (t, t, vS2 + 2, sM2, sM2 + 1))
        I("v_cndmask_b32 v%d, v%d, v%d, s[%d:%d]" % (t, t, vS2 + 3, sM3, sM3 + 1))
        I("v_mul_f32 v%d, 0x3b000000, v%d" % (t, t))
        I("v_fma_f32 v%d, -v%d, v%d, v%d" % (t, t + 1, t + 1, t))
        I("v_max_f32 v%d, 0, v%d" % (t, t))
        I("v_add_f32 v%d, 0x3727c5ac, v%d" % (t, t))
        I("v_rsq_f32 v%d, v%d" % (t + 2, t))
        I("v_lshlrev_b32 v%d, 1, v%d" % (t + 4, vSW))
        I("v_mul_f32_e64 v%d, -v%d, v%d" % (t + 3, t + 1, t + 2))
        I("v_subrev_u32 v%d, 0x%x, v%d" % (t + 4, L_STA - 512, t + 4))
        I("s_mov_b64 exec, s[%d:%d]" % (sDIAG, sDIAG + 1))
        I("ds_write_b32 v%d, v%d" % (vSW, t + 2))
        I("ds_write_b32 v%d, v%d offset:256" % (vSW, t + 3))
        I("ds_write_b64 v%d, v[%d:%d]" % (t + 4, t + 2, t + 3))
        I("s_mov_b64 exec, -1")
        b.wait(lg=0)
        I("s_barrier")

    def phi_pairs(self, pairs):
        I = self.I
        for c0 in range(0, len(pairs), 4):
            grp = pairs[c0:c0 + 4]
            for k, (t, d) in enumerate(grp):
                I("v_pk_mul_f32 %s, %s, %s %s" % (p2(vT + 2 * k), p2(t), p2(vK), K_L2E))
            for k, (t, d) in enumerate(grp):
                I("v_exp_f32_e64 v%d, v%d clamp" % (vT + 2 * k, vT + 2 * k))
                I("v_max_f32 v%d, v%d, v%d" % (t, vK + 1, t))
                I("v_exp_f32_e64 v%d, v%d clamp" % (vT + 2 * k + 1, vT + 2 * k + 1))
                I("v_max_f32 v%d, v%d, v%d" % (t + 1, vK + 1, t + 1))
            for k, (t, d) in enumerate(grp):
                I("v_pk_add_f32 %s, %s, %s" % (p2(t), p2(t), p2(vT + 2 * k)))
            for k, (t, d) in enumerate(grp):
                I("v_cvt_pk_bf16_f32 v%d, v%d, v%d" % (d, t, t + 1))

    def kv_epilogue(self, hf, ra, rb):
        I = self.I
        K, V = vACC + 8 * hf, vACC + 16 + 8 * hf
        for j in range(4):
            I("v_pk_fma_f32 %s, %s, %s, %s op_sel:[0,0,1] op_sel_hi:[1,1,1]" % (p2(vT + 2 * j), p2(rb + 2 * j), p2(vCSK), p2(vK)))
            I("v_pk_mul_f32 %s, %s, %s" % (p2(vT + 8 + 2 * j), p2(rb + 2 * j), p2(vCSV)))
        for j in range(4):
            I("v_pk_fma_f32 %s, %s, %s, %s" % (p2(K + 2 * j), p2(ra + 2 * j), p2(K + 2 * j), p2(vT + 2 * j)))
            I("v_pk_fma_f32 %s, %s, %s, %s" % (p2(V + 2 * j), p2(ra + 2 * j), p2(V + 2 * j), p2(vT + 8 + 2 * j)))
        for j in range(4):
            I("v_cvt_pk_bf16_f32 v%d, v%d, v%d" % (V + j, V + 2 * j, V + 2 * j + 1))
        self.phi_pairs([(K + 2 * j, K + j) for j in range(4)])

    def startup(self):
        b = self.b
        I = b.I
        i_, g_, l3, l7, q0, tc = vT + 2, vT + 3, vT + 6, vT + 7, vT + 8, vT + 9
        if self.diag:
            I("s_memtime s[92:93]")
        I("s_cmp_ge_u32 s2, 256")
        I("s_cbranch_scc1 L_end")
        I("s_load_dwordx4 s[4:7], s[0:1], 0")
        I("s_load_dwordx2 s[20:21], s[0:1], 64")
        I("s_load_dwordx2 s[8:9], s[0:1], 16")
        I("s_load_dwordx4 s[12:15], s[0:1], 32")
        I("s_load_dwordx4 s[16:19], s[0:1], 48")
        I("s_getpc_b64 s[90:91]")
        b.label("L_pc")
        I("v_lshrrev_b32 v%d, 6, v0" % vT)
        I("v_and_b32 v0, 63, v0")
        I("v_readfirstlane_b32 s%d, v%d" % (sW, vT))
        I("s_lshr_b32 s%d, s2, 3" % (sT + 1))
        I("s_lshl_b32 s%d, s%d, 2" % (sT + 3, sT + 1))
        I("s_add_u32 s%d, s%d, s%d" % (sT + 3, sT + 3, sW))
        I("s_and_b32 s%d, s%d, 31" % (sT, sT + 3))
        I("s_lshl_b32 s%d, s%d, 11" % (sT, sT))
        I("v_lshlrev_b32 v%d, 7, v0" % vTCH)
        I("v_add_u32 v%d, s%d, v%d" % (vT, sT, vTCH))
        I("v_min_u32 v%d, L_end-L_pc, v%d" % (vT, vT))
        I("s_mov_b64 exec, 0xffff")
        I("global_load_dword v%d, v%d, s[90:91]" % (vDUM, vT))
        I("s_mov_b64 exec, -1")
        I("s_and_b32 s%d, s2, 7" % sROT)
        I("s_and_b32 s%d, s%d, 7" % (sC, sT + 1))
        I("s_lshr_b32 s%d, s%d, 3" % (sQ, sT + 1))
        I("s_lshl_b32 s%d, s%d, 2" % (sT, sROT))
        I("s_add_u32 s%d, s%d, s%d" % (sRG, sT, sQ))
        I("s_lshl_b32 s%d, s%d, 16" % (sRG64, sRG))
        I("s_lshl_b32 s%d, s%d, 11" % (sW2K, sW))
        I("v_lshrrev_b32 v%d, 4, v0" % g_)
        I("v_and_b32 v%d, 15, v0" % i_)
        tw, tx = vT + 12, vT + 13
        I("s_mul_i32 s%d, s%d, %d" % (sT + 2, sT + 3, 4 * 3072))
        I("v_lshlrev_b32 v%d, 10, v0" % tx)
        I("v_add_u32 v%d, s%d, v%d" % (tw, sT + 2, tx))
        I("s_lshl_b32 s%d, s%d, 18" % (sT + 2, sROT))
        I("s_lshl_b32 s%d, s%d, 11" % (sT, sT + 3))
        I("s_add_u32 s%d, s%d, s%d" % (sT, sT, sT + 2))
        I("v_add_u32 v%d, s%d, v%d" % (tx, sT, tx))
        I("v_lshrrev_b32 v%d, 3, v0" % l3)
        I("v_and_b32 v%d, 7, v0" % l7)
        I("v_xor_b32 v%d, v%d, v%d" % (vT + 4, l7, g_))
        I("v_lshlrev_b32 v%d, 4, v%d" % (vT + 4, vT + 4))
        I("v_lshl_add_u32 v%d, v%d, 10, v%d" % (vT + 4, l3, vT + 4))
        I("s_lshl_b32 s%d, s%d, 14" % (sT + 1, sW))
        I("v_add_u32 v%d, s%d, v%d" % (vXS0, sT + 1, vT + 4))
        I("v_xor_b32 v%d, 64, v%d" % (vXS1, vXS0))
        I("v_add_u32 v%d, 7168, v%d" % (vXS1, vXS1))
        I("v_and_b32 v%d, 1, v%d" % (vT + 4, g_))
        I("v_lshlrev_b32 v%d, 1, v%d" % (vT + 4, vT + 4))
        I("v_xor_b32 v%d, v%d, v%d" % (q0, l7, vT + 4))
        I("v_lshlrev_b32 v%d, 4, v%d" % (q0, q0))
        I("s_and_b32 s%d, s%d, 1" % (sT + 1, sW))
        I("s_lshl_b32 s%d, s%d, 6" % (sT + 1, sT + 1))
        I("v_xor_b32 v%d, s%d, v%d" % (vT + 4, sT + 1, q0))
        I("s_lshl_b32 s%d, s%d, 3" % (sT + 1, sW))
        I("v_add_u32 v%d, s%d, v%d" % (vT + 5, sT + 1, l3))
        I("v_mul_u32_u24 v%d, 3072, v%d" % (vT + 5, vT + 5))
        I("v_add_u32 v%d, v%d, v%d" % (vWS, vT + 4, vT + 5))
        sXO, sWO_, sRB = sAB, sAO, 93
        I("s_lshl_b32 s%d, s%d, 7" % (sWO_, sC))
        I("v_add_u32 v%d, s%d, v%d" % (vWS, sWO_, vWS))
        if self.diag:
            b.wait(lg=0)
            I("s_mov_b32 s91, s92")
        I("s_add_u32 s%d, s%d, 0x%x" % (sRB, sW2K, L_RING - 1024))
        I("s_lshl_b32 s%d, s%d, 7" % (sXO, sROT))
        I("s_mul_i32 s%d, s%d, %d" % (sWO_, sROT, 64 * 3072))
        if self.diag:
            I("v_mov_b32 v%d, 0" % vSTAMP)
        b.wait(lg=0)
        if self.diag:
            I("v_writelane_b32 v%d, s91, 61" % vSTAMP)
        self.stamp("start")
        I("s_add_u32 s88, s%d, 0x%x" % (S_WS, WS_EP))
        I("s_addc_u32 s89, s%d, 0" % (S_WS + 1))
        I("s_load_dword s%d, s[88:89], 0" % sEP)
        self.srd(R_WQ, S_WQ, 512 * 3072)
        I("s_add_u32 s%d, s%d, s%d" % (R_X, S_X, sRG64))
        I("s_addc_u32 s%d, s%d, 0" % (R_X + 1, S_X + 1))
        I("s_and_b32 s%d, s%d, 0xffff" % (R_X + 1, R_X + 1))
        I("s_mov_b32 s%d, 0x10000" % (R_X + 2))
        I("s_mov_b32 s%d, 0x20000" % (R_X + 3))
        tokA, tokW = {}, {}

        def issue_thunks(ks):
            th = []
            if ks % 2 == 0:
                ds = ks // 2
                tokA[ds] = []
                pre = ["s_add_u32 m0, s%d, 0x%x" % (sW2K, ds * 8192)]
                if ds:
                    pre += ["s_add_u32 s%d, s%d, 128" % (sXO, sXO), "s_and_b32 s%d, s%d, 0x380" % (sXO, sXO)]
                th.append((pre, lambda: tokA[ds].append(
                    I("buffer_load_dwordx4 v%d, s[%d:%d], s%d offen lds" % (vXS0, R_X, R_X + 3, sXO)))))
                th.append(([], lambda: tokA[ds].append(
                    I("buffer_load_dwordx4 v%d, s[%d:%d], s%d offen offset:1024 lds" % (vXS1, R_X, R_X + 3, sXO)))))
            tokW[ks] = []
            for p in range(2):
                pre = []
                if p == 0:
                    if ks:
                        pre.append("s_add_u32 s%d, s%d, %d" % (sWO_, sWO_, 32 * 3072))
                        if ks % 2 == 0:
                            pre += ["s_cmp_eq_u32 s%d, %d" % (sWO_, 512 * 3072), "s_cselect_b32 s%d, 0, s%d" % (sWO_, sWO_)]
                    pre.append("s_add_u32 m0, s%d, 0x%x" % (sRB, (ks % NR) * 8192))
                th.append((pre, lambda p=p: tokW[ks].append(I("buffer_load_dwordx4 v%d, s[%d:%d], s%d offen offset:%d lds" % (
                    vWS, R_WQ, R_WQ + 3, sWO_, (p + 1) * 1024)))))
            return th

        tokQ = []

        def rq_base(ks):
            return L_PACK + ks * 4096 if ks < 4 else L_WQ + (ks - 4) * 4096

        def q_thunk(ks):
            pre = ["s_add_u32 s%d, s%d, %d" % (sWO_, sWO_, 32 * 3072)]
            if ks % 2 == 0:
                pre += ["s_cmp_eq_u32 s%d, %d" % (sWO_, 512 * 3072), "s_cselect_b32 s%d, 0, s%d" % (sWO_, sWO_)]
            pre.append("s_add_u32 m0, s%d, 0x%x" % (sW1K, rq_base(ks)))
            return (pre, lambda: tokQ.append(I("buffer_load_dwordx4 v%d, s[%d:%d], s%d offen lds" % (vWS, R_WQ, R_WQ + 3, sWO_))))
        self.tokQ, self.rq_base = tokQ, rq_base

        def issue_now(ks):
            for pre, th in issue_thunks(ks):
                for t in pre:
                    I(t)
                th()

        if env("T0", 1):
            self.srd(R_PK, S_X, 2048 * 1024)
            if env("XT", 1):
                I("v_lshrrev_b32 v%d, 3, v%d" % (vT + 4, tx))
                I("v_lshlrev_b32 v%d, 10, v0" % (vT + 4))
                I("v_sub_u32 v%d, v%d, v%d" % (tx, tx, vT + 4))
                I("v_add_u32 v%d, v%d, v%d" % (tx, tx, vTCH))
            for ptr, srd, v, mask in ((S_WQ, R_WQ, tw, 0xdb6 if env('TQ', -1) >= 0 else 0xfff), (S_X, R_PK, tx, 0xffff if env("XT", 1) else 3)):
                I("s_sub_u32 s%d, 0x180, s%d" % (sT, ptr))
                I("s_and_b32 s%d, s%d, 0x%x" % (sT, sT, 0 if env("XT", 1) and ptr == S_X else 0x380))
                I("s_mov_b64 exec, 0x%x" % mask)
                I("buffer_load_dword v%d, v%d, s[%d:%d], s%d offen" % (vDUM, v, srd, srd + 3, sT))
            I("s_mov_b64 exec, -1")
        NFIRST = env("NFIRST", 4)
        for ks in range(NFIRST):
            issue_now(ks)
        self.stamp("first")
        I("s_getreg_b32 s%d, hwreg(HW_REG_XCC_ID, 0, 4)" % sXCC)
        I("s_mov_b32 s%d, 0x100000" % sSPIN)
        self.srd(R_WS, S_WS, WS_SIZE)
        self.srd(R_OUT, S_OUT, 2048 * 1024)
        I("v_lshlrev_b32 v%d, 4, v0" % vL16)
        I("v_lshlrev_b32 v%d, 2, v0" % vL4)
        I("s_lshl_b32 s%d, s%d, 10" % (sW1K, sW))
        I("s_lshl_b32 s%d, s%d, 2" % (sT, sC))
        I("s_add_u32 s%d, s%d, s%d" % (sT, sT, sW))
        I("s_mul_i32 s%d, s%d, %d" % (sKV, sT, KVH))
        I("s_add_u32 s%d, s%d, 0x%x" % (sKV, sKV, WS_KV + KB0))
        I("v_mov_b32 v%d, 0" % vC2)
        I("s_and_b32 s%d, s%d, 15" % (sT + 1, sRG))
        I("s_mul_i32 s%d, s%d, %d" % (sT + 1, sT + 1, KVH // 16))
        I("s_add_u32 s%d, s%d, s%d" % (sT + 1, sT + 1, sKV))
        I("s_lshr_b32 s%d, s%d, 4" % (sT + 2, sRG))
        I("s_mul_i32 s%d, s%d, %d" % (sT + 2, sT + 2, KVL))
        I("s_add_u32 s%d, s%d, s%d" % (sT + 1, sT + 1, sT + 2))
        I("v_mov_b32 v%d, 0" % vPOLL)
        I("v_mov_b32 v%d, 0" % (vPOLL + 1))
        I("v_lshlrev_b32 v%d, 3, v0" % (vT + 4))
        assert KVH % 128 == 0 and KVH // 128 <= 64
        mask = (1 << (KVH // 128)) - 1
        I("s_mov_b32 exec_lo, 0x%x" % (mask & 0xffffffff))
        I("s_mov_b32 exec_hi, 0x%x" % (mask >> 32))
        ztok = I("buffer_store_dwordx2 %s, v%d, %s, s%d offen sc1" % (p2(vPOLL), vT + 4, self.ws(), sT + 1))
        I("s_mov_b64 exec, -1")
        I("s_mul_i32 s%d, s%d, %d" % (sPK, sT, PKW))
        I("s_lshl_b32 s%d, s%d, 7" % (sFL, sRG))
        I("s_lshl_b32 s%d, s%d, 12" % (sR1, sC))
        I("s_add_u32 s%d, s%d, 0x%x" % (sR1, sR1, WS_R2))
        I("s_add_u32 s%d, s%d, 0x%x" % (sFL, sFL, WS_FL))
        I("s_lshl_b32 s%d, s%d, 2" % (sMYF, sT))
        I("s_add_u32 s%d, s%d, s%d" % (sMYF, sMYF, sFL))
        I("s_lshl_b32 s%d, s%d, 14" % (sSTC, sRG))
        I("s_add_u32 s%d, s%d, 0x%x" % (sSTC, sSTC, WS_ST))
        I("s_lshl_b32 s%d, s%d, 8" % (sSTP, sT))
        I("s_add_u32 s%d, s%d, s%d" % (sSTP, sSTP, sSTC))
        I("s_add_u32 s%d, s%d, s%d" % (sSTC, sSTC, sW2K))
        I("s_mul_i32 s%d, s%d, %d" % (sRGH, sRG, HSZ))
        I("s_lshl_b32 s%d, s%d, 12" % (sSTO, sC))
        I("s_lshl_b32 s%d, s%d, 9" % (sT + 1, sW))
        I("s_add_u32 s%d, s%d, s%d" % (sSTO, sSTO, sT + 1))
        I("s_lshl_b32 s%d, s%d, 5" % (sOUT, sT))
        I("s_mul_i32 s%d, s%d, 3" % (sT, sT))
        for t in range(3):
            I("s_add_u32 s%d, s%d, %d" % (sT + 1, sT, t))
            I("s_lshr_b32 s%d, s%d, 2" % (sT + 2, sT + 1))
            I("s_lshl_b32 s%d, s%d, 12" % (sT + 2, sT + 2))
            I("s_and_b32 s%d, s%d, 3" % (sT + 3, sT + 1))
            I("s_lshl_b32 s%d, s%d, 9" % (sT + 3, sT + 3))
            I("s_add_u32 s%d, s%d, s%d" % (sT + 2, sT + 2, sT + 3))
            I("s_add_u32 s%d, s%d, s%d" % (sT + 2, sT + 2, sRGH))
            I("s_cmp_lt_u32 s%d, 86" % (sT + 1))
            I("s_cselect_b32 s%d, s%d, 0x%x" % (sH0 + t, sT + 2, OOB))
            I("s_cselect_b32 s%d, 0, 0x%x" % (sT + 2, OOB))
            I("v_add_u32 v%d, s%d, v%d" % (vW1 + t, sT + 2, vL16))
        I("v_add_u32 v%d, 0x10000, v%d" % (vA1, vL16))
        I("v_add_u32 v%d, s%d, v%d" % (vDMA, sW1K, vL16))
        I("v_add_u32 v%d, s%d, v%d" % (vDM2, sW2K, vL16))
        I("s_lshr_b32 s%d, s%d, 1" % (sT + 1, sW))
        I("s_add_u32 s%d, s%d, s%d" % (sRO2, sROT, sT + 1))
        I("s_and_b32 s%d, s%d, 7" % (sRO2, sRO2))
        I("s_lshl_b32 s%d, s%d, 12" % (sRO2, sRO2))
        I("s_lshl_b32 s%d, s%d, 12" % (sT + 1, sT + 1))
        I("s_sub_u32 s%d, s%d, s%d" % (sRB2, sRG64, sT + 1))
        I("v_and_b32 v%d, 0x7c, v%d" % (vFL, vL4))
        I("v_lshrrev_b32 v%d, 1, v%d" % (vT + 4, g_))
        I("v_lshlrev_b32 v%d, 8, v%d" % (vT + 4, vT + 4))
        I("v_lshl_add_u32 v%d, v%d, 4, v%d" % (vT + 4, i_, vT + 4))
        I("v_and_b32 v%d, 1, v%d" % (vT + 5, g_))
        I("v_lshl_add_u32 v%d, v%d, 11, v%d" % (vST, vT + 5, vT + 4))
        I("v_lshlrev_b32 v%d, 4, v%d" % (vSTA, g_))
        I("v_add_u32 v%d, 0x%x, v%d" % (vSTA, L_STA, vSTA))
        I("v_lshlrev_b32 v%d, 3, v%d" % (vSTQ, i_))
        I("v_add_u32 v%d, 0x%x, v%d" % (vSTQ, L_STA + 512, vSTQ))
        I("s_lshl_b32 s%d, s%d, 6" % (sT, sW))
        I("s_add_u32 s%d, s%d, 0x%x" % (sT, sT, L_STA))
        I("v_lshlrev_b32 v%d, 2, v%d" % (vSW, i_))
        I("v_add_u32 v%d, s%d, v%d" % (vSW, sT, vSW))
        I("v_lshrrev_b32 v%d, 3, v%d" % (vT + 4, i_))
        I("v_lshlrev_b32 v%d, 10, v%d" % (vT + 4, vT + 4))
        I("v_and_b32 v%d, 7, v%d" % (vT + 5, i_))
        I("v_lshl_add_u32 v%d, v%d, 7, v%d" % (vT + 4, vT + 5, vT + 4))
        I("v_lshrrev_b32 v%d, 1, v%d" % (vT + 5, i_))
        I("v_xor_b32 v%d, v%d, v%d" % (vT + 5, vT + 5, g_))
        I("v_lshl_add_u32 v%d, v%d, 4, v%d" % (vX0, vT + 5, vT + 4))
        I("v_xor_b32 v%d, 64, v%d" % (vX1, vX0))
        I("v_add_u32 v%d, s%d, v%d" % (vOW0, sW2K, vX0))
        I("v_add_u32 v%d, s%d, v%d" % (vOW1, sW2K, vX1))
        I("v_bfe_u32 v%d, v0, 2, 2" % (vT + 4))
        I("v_bfe_u32 v%d, v0, 3, 1" % (vT + 5))
        I("v_lshlrev_b32 v%d, 1, v%d" % (vT + 5, vT + 5))
        I("v_bfe_u32 v%d, v0, 4, 1" % (vT + 10))
        I("v_lshl_add_u32 v%d, v%d, 2, v%d" % (vT + 5, vT + 10, vT + 5))
        I("v_bfe_u32 v%d, v0, 1, 1" % (vT + 10))
        I("v_xor_b32 v%d, v%d, v%d" % (vT + 5, vT + 5, vT + 10))
        I("v_lshlrev_b32 v%d, 4, v%d" % (vT + 5, vT + 5))
        I("v_lshl_add_u32 v%d, v%d, 7, v%d" % (tc, vT + 4, vT + 5))
        I("v_and_b32 v%d, 1, v0" % (vT + 10))
        I("v_lshl_add_u32 v%d, v%d, 3, v%d" % (tc, vT + 10, tc))
        I("s_lshl_b32 s%d, s%d, 5" % (sT + 1, sW))
        I("v_xor_b32 v%d, s%d, v%d" % (vT + 4, sT + 1, tc))
        I("v_lshl_add_u32 v%d, v%d, 10, v%d" % (vTQ, g_, vT + 4))
        I("v_add_u32 v%d, 0x%x, v%d" % (vTQ, L_WQ, vTQ))
        I("v_lshl_add_u32 v%d, v%d, 11, v%d" % (vT + 4, g_, vT + 4))
        I("v_add_u32 v%d, 0x%x, v%d" % (vTR, L_RING, vT + 4))
        for k in range(4):
            I("v_mov_b32 v%d, 0x3f803f80" % (vONE + k))
        I("v_mov_b32 v%d, 0x3fb8aa3b" % vK)
        I("v_mov_b32 v%d, 0x358637bd" % (vK + 1))
        I("s_mul_i32 s%d, s%d, 2560" % (sT, sW))
        I("s_add_u32 s%d, s%d, 0x%x" % (sT, sT, L_KVI))
        I("v_add_u32 v%d, s%d, v%d" % (vKVL, sT, vL4))
        for r in range(4):
            I("v_add_u32 v%d, %d, v0" % (vT + 4, 64 * r))
            I("v_mul_u32_u24 v%d, 4370, v%d" % (vT + 5, vT + 4))
            I("v_lshrrev_b32 v%d, 16, v%d" % (vT + 5, vT + 5))
            I("v_add_u32 v%d, v%d, v%d" % (vT + 4, vT + 4, vT + 5))
            I("v_lshlrev_b32 v%d, 2, v%d" % (vT + 4, vT + 4))
            I("v_add_u32 v%d, s%d, v%d" % (vPOS + r, sT, vT + 4))
        I("v_lshrrev_b32 v%d, 1, v%d" % (vT + 4, g_))
        I("v_add_u32 v%d, v%d, v%d" % (vT + 4, vT + 4, g_))
        I("v_lshlrev_b32 v%d, 4, v%d" % (vT + 4, vT + 4))
        I("s_add_u32 s%d, s%d, %d" % (sT, sT, 276 * 4))
        I("v_add_u32 v%d, s%d, v%d" % (vZP, sT, vT + 4))
        I("v_cmp_eq_u32 vcc, 15, v%d" % i_)
        I("v_cndmask_b32 v%d, 0, 1.0, vcc" % (vT + 4))
        b.wait(lg=0)
        for k in range(5):
            I("ds_write_b32 v%d, v%d offset:%d" % (vKVL, vT + 4, 256 * k))
        I("s_xor_b32 s%d, s%d, 0x80000000" % (sTAG, sEP))
        I("s_and_b32 s%d, s%d, 0xfffffff0" % (sTAG, sTAG))
        I("s_mov_b32 s%d, 0x358637bd" % sEPS)
        for r, val in ((sM1, 0x22222222), (sM2, 0x44444444), (sM3, 0x88888888)):
            I("s_mov_b32 s%d, 0x%x" % (r, val))
            I("s_mov_b32 s%d, 0x%x" % (r + 1, val))
        I("s_mov_b32 s%d, 0x00f0000f" % sDIAG)
        I("s_mov_b32 s%d, 0xf0000f00" % (sDIAG + 1))
        I("v_lshlrev_b32 v%d, 10, v%d" % (vT + 4, g_))
        I("s_lshl_b32 s%d, s%d, 12" % (sT, sW))
        I("v_add_u32 v%d, s%d, v%d" % (vT + 4, sT, vT + 4))
        for t in range(4):
            I("v_xor_b32 v%d, %d, v%d" % (vCS1 + 4 + t, 32 * t, tc))
            I("v_add_u32 v%d, v%d, v%d" % (vCS1 + 4 + t, vCS1 + 4 + t, vT + 4))
            I("v_add_u32 v%d, 0x%x, v%d" % (vCS1 + 4 + t, L_PACK, vCS1 + 4 + t))
        I("v_and_b32 v%d, 31, v0" % (vT + 14))
        I("v_lshlrev_b32 v%d, 10, v%d" % (vT + 14, vT + 14))
        I("v_lshrrev_b32 v%d, 5, v0" % (vT + 4))
        I("v_lshl_add_u32 v%d, v%d, 4, v%d" % (vT + 14, vT + 4, vT + 14))
        I("s_add_u32 s%d, s%d, s%d" % (sT, sTAG, sXCC))
        I("v_mov_b32 v%d, s%d" % (vT + 15, sT))
        ptk, pth = self.pack_load(l3, q0)
        KL = env("KL", -1)
        for ks in range(NFIRST, env('NINIT', 6)):
            issue_now(ks)
        nxt = env('NINIT', 6)
        nq = 0
        if KL < 0:
            for pre, th in pth:
                for t in pre:
                    I(t)
                th()
        I("s_mov_b64 exec, 1")
        I("buffer_load_dword v%d, off, %s, s%d sc1" % (vDUM, self.ws(), sFL))
        I("s_mov_b64 exec, -1")
        self.stamp("setup")

        tmp = [self.free.pop() for _ in range(6)]
        assert all(s[0] == "v" for s in tmp)
        cK, cV = tmp[4][1], tmp[5][1]
        res_toks = []
        KZ = env("KZ", 2)
        KP, KANN, KI, KC = env("KP", 4), env("KANN", 9), env("KI", 12), env("KC", 99)
        for ks in range(17):
            fill, dma, nrd = [], [], 0
            if ks < 16:
                b.wait(tokW[ks], tokA[ks // 2])
                if ks == KZ:
                    b.wait(ztok)
                if ks == KANN:
                    b.wait(pst)
                I("s_barrier")
                if ks == 0:
                    self.stamp("w0")
                elif env("LSTAMP", 0):
                    self.stamp("it%d" % ks)
                if ks == KC:
                    self.r1_check()
                    self.bg_w = len(self.free) - 2 * (16 - ks) - 16
                    self.last_bg = self.clock
                if ks in (KZ, KANN):
                    lx = b.newlabel("Lann")
                    I("s_cmp_lg_u32 s%d, 0" % sW)
                    I("s_cbranch_scc1 %s" % lx)
                    I("s_lshl_b32 s%d, s%d, 7" % (sT, sRG))
                    I("s_add_u32 s%d, s%d, s%d" % (sT, sT, sR1))
                    if ks == KANN:
                        I("s_add_u32 s%d, s%d, 0x%x" % (sT, sT, WS_R3 - WS_R2))
                    I("s_mov_b64 exec, 1")
                    self.Inc("buffer_store_dword v%d, off, %s, s%d sc1" % (vT + 15, self.ws(), sT))
                    I("s_mov_b64 exec, -1")
                    b.label(lx)
                for p in range(2):
                    s = self.free.pop(0)
                    self.wslot[("qkv", 0, 2 * ks + p)] = (s, None)
                    for hh in range(2):
                        fill.append(lambda s=s, hh=hh, p=p: I("ds_read_b64_tr_b16 %s, v%d offset:%d" % (
                            vr(s[1] + 2 * hh, 2, s[0]), vTR, (ks % NR) * 8192 + p * 1024 + hh * 512)))
                fb = vAF + (ks & 1) * 20
                ds, h = ks // 2, ks & 1
                for rt in range(4):
                    fill.append(lambda rt=rt: I("ds_read_b128 %s, v%d offset:%d" % (
                        vr(fb + 4 * rt, 4), (vX0, vX1)[h], ds * 8192 + rt * 2048)))
                fill.append(lambda: I("ds_read_b128 %s, v%d offset:%d" % (vr(fb + 16, 4), (vOW0, vOW1)[h], ds * 8192)))
                nrd = len(fill)
                k2 = 0
                while nxt < min(16, ks + NR) and k2 < 2:
                    dma += issue_thunks(nxt)
                    nxt += 1
                    k2 += 1
                if ks == KL:
                    dma += pth
                if nxt == 16 and not dma and ks > KP + 1:
                    while nq < 16 and len(dma) < env("QPER", 3) and (nq < 4 or 10 + (nq - 4) // 2 < ks):
                        dma.append(q_thunk(nq))
                        nq += 1
                if ks == env("TQ", -1) and env("T0", 1):
                    def tq():
                        I("s_sub_u32 s%d, 0x180, s%d" % (sT, S_WQ))
                        I("s_and_b32 s%d, s%d, 0x380" % (sT, sT))
                        I("s_mov_b64 exec, 0x249")
                        I("buffer_load_dword v%d, v%d, s[%d:%d], s%d offen" % (vDUM, tw, R_WQ, R_WQ + 3, sT))
                        I("s_mov_b64 exec, -1")
                    fill.append(tq)
                if ks == KI:
                    fill.append(self.r1_issue)
                if ks == env("KOX", 15) and FT:
                    def tch():
                        self.touch_ox(0)
                        I("v_and_b32 v%d, 1, v0" % vT)
                        I("v_lshrrev_b32 v%d, 1, v0" % (vT + 1))
                        I("v_lshlrev_b32 v%d, 13, v%d" % (vT + 1, vT + 1))
                        I("v_lshl_add_u32 v%d, v%d, 7, v%d" % (vT + 5, vT, vT + 1))
                        I("s_mov_b64 exec, 15")
                        I("buffer_load_dword v%d, v%d, %s, s%d offen sc1" % (vDUM, vT + 5, self.ws(), sSTP))
                        I("s_mov_b64 exec, -1")
                    fill.append(tch)
                if ks == KP:
                    def prd():
                        b.wait(ptk)
                        for t in range(4):
                            for hh in range(2):
                                I("ds_read_b64_tr_b16 %s, v%d offset:%d" % (p2(tmp[t][1] + 2 * hh), vCS1 + 4 + t, hh * 512))
                    fill.append(prd)
            mfs = []
            if ks >= 1:
                k1 = ks - 1
                fb1 = vAF + (k1 & 1) * 20
                c0 = "0" if k1 == 0 else None
                wk, wv = [slot_r(self.wslot[("qkv", 0, k)][0]) for k in (2 * k1, 2 * k1 + 1)]
                one = vr(vONE, 4)
                for rt in range(4):
                    mfs.append(self.mf(vACC + 4 * rt, vr(fb1 + 4 * rt, 4), wk, c0))
                    mfs.append(self.mf(vACC + 16 + 4 * rt, vr(fb1 + 4 * rt, 4), wv, c0))
                own = vr(fb1 + 16, 4)
                mfs += [self.mf(vS1, one, own, c0), self.mf(vS2, own, own, c0),
                        self.mf(cK, one, wk, c0), self.mf(cV, one, wv, c0)]
            rds, extra = fill[:nrd], fill[nrd:]
            for _ in range(min(3, len(rds))):
                rds.pop(0)()
            while mfs:
                mfs.pop(0)()
                if rds:
                    for _ in range(min(2, len(rds))):
                        rds.pop(0)()
                    if len(rds) <= 2 and dma and dma[0][0]:
                        I(dma[0][0].pop(0))
                elif dma:
                    if dma[0][0]:
                        while dma[0][0]:
                            I(dma[0][0].pop(0))
                    else:
                        dma.pop(0)[1]()
                elif extra:
                    extra.pop(0)()
            for f in rds:
                f()
            for pre, th in dma:
                for t in pre:
                    I(t)
                th()
            for f in extra:
                f()
            b.wait(lg=0)
            if ks == KP:
                pst = [I("buffer_store_dwordx4 %s, v%d, %s, s%d offen sc1" % (slot_r(tmp[t]), vL16, self.ws(), 80 + t))
                       for t in range(4)]
        I("s_sub_u32 s%d, s%d, s%d" % (sT, sC, sROT))
        I("s_and_b32 s%d, s%d, 7" % (sT, sT))
        I("s_lshl_b32 s%d, s%d, 13" % (sT, sT))
        I("v_lshrrev_b32 v%d, 4, v0" % vT)
        I("v_lshrrev_b32 v%d, 5, v0" % (vT + 1))
        I("v_xor_b32 v%d, v%d, v%d" % (vT + 1, vT + 1, vT))
        I("s_lshl_b32 s%d, s%d, 1" % (sT + 1, sW))
        I("v_xor_b32 v%d, s%d, v%d" % (vT + 1, sT + 1, vT + 1))
        I("v_lshlrev_b32 v%d, 4, v%d" % (vT + 1, vT + 1))
        I("v_xor_b32 v%d, v%d, v%d" % (vT + 1, vT + 1, vX0))
        I("v_and_b32 v%d, 1, v%d" % (vT, vT))
        I("v_lshl_add_u32 v%d, v%d, 3, v%d" % (vT + 1, vT, vT + 1))
        I("v_add_u32 v%d, s%d, v%d" % (vT + 1, sT, vT + 1))
        res = [I("ds_read_b64 %s, v%d offset:%d" % (p2(vS1 + 8 + 0) if False else p2(vACC + 32 + 2 * rt), vT + 1, rt * 2048)) for rt in range(4)]
        I("v_mov_b32 v%d, v%d" % (vOA, vT + 14))
        self.bg_w = 0
        self.stamp("kvpass")
        if KC > 16:
            self.r1_check()
        if KANN == 16:
            b.wait(pst)
        self.stats_startup()
        if KANN == 16:
            lx = b.newlabel("Lann")
            I("s_cmp_lg_u32 s%d, 0" % sW)
            I("s_cbranch_scc1 %s" % lx)
            I("s_lshl_b32 s%d, s%d, 7" % (sT, sRG))
            I("s_add_u32 s%d, s%d, s%d" % (sT, sT, sR1))
            I("s_add_u32 s%d, s%d, 0x%x" % (sT, sT, WS_R3 - WS_R2))
            I("s_mov_b64 exec, 1")
            self.Inc("buffer_store_dword v%d, off, %s, s%d sc1" % (vT + 15, self.ws(), sT))
            I("s_mov_b64 exec, -1")
            b.label(lx)
        while nq < 16:
            pre, th = q_thunk(nq)
            for t in pre:
                I(t)
            th()
            nq += 1
        t1 = []
        for rt in range(4):
            t1.append(I("ds_read_b128 %s, v%d offset:%d" % (vr(vAF + 4 * rt, 4), vSTA, rt * 64)))
            t1.append(I("ds_read_b128 %s, v%d offset:%d" % (vr(vAF + 16 + 4 * rt, 4), vSTA, 256 + rt * 64)))
        for rt in range(4):
            t1.append(I("ds_read_b64 %s, v%d offset:%d" % (p2(vAB + 2 * rt), vSTQ, rt * 128)))
        for k in range(2):
            I("v_mov_b32 v%d, v%d" % (vCSK + k, cK))
            I("v_mov_b32 v%d, v%d" % (vCSV + k, cV))
        self.free += tmp
        I("v_add_u32 v%d, s%d, v%d" % (vSB, sW2K, vL4))
        I("v_add_u32 v%d, 0x%x, v%d" % (vEX, L_EX, vL4))
        I("s_lshl_b32 s%d, s%d, 8" % (sT, sW))
        I("v_add_u32 v%d, s%d, v%d" % (vSW, sT, vEX))
        I("v_and_b32 v%d, 15, v0" % vT)
        I("v_lshrrev_b32 v%d, 5, v0" % (vT + 1))
        I("v_lshlrev_b32 v%d, 6, v%d" % (vT + 1, vT + 1))
        I("v_lshl_add_u32 v%d, v%d, 2, v%d" % (vSWR, vT, vT + 1))
        I("s_add_u32 s%d, s%d, 0x%x" % (sT, sT, L_STA))
        I("v_add_u32 v%d, s%d, v%d" % (vSWR, sT, vSWR))
        for rt in range(4):
            for k in range(2):
                s = vACC + 32 + 2 * rt + k
                I("v_lshlrev_b32 v%d, 16, v%d" % (vX + 4 * rt + 2 * k, s))
                I("v_and_b32 v%d, 0xffff0000, v%d" % (vX + 4 * rt + 2 * k + 1, s))
        early = env("R3EARLY", 0)
        I("v_and_b32 v%d, 0xfff, v%d" % (vCS1, vTCH))
        I("s_add_u32 s%d, s%d, 0x%x" % (sR1, sR1, WS_R3 - WS_R2))
        self.r3_tok = I("buffer_load_dword v%d, v%d, %s, s%d offen sc1" % (vPOLL, vCS1, self.ws(), sR1))
        b.wait(t1)
        I("s_lshl_b32 s%d, s%d, 8" % (sT, sW))
        I("v_add_u32 v%d, s%d, v%d" % (vSTA, sT, vSTA))
        for hf in range(2):
            self.kv_epilogue(hf, vAF + 8 * hf, vAF + 16 + 8 * hf)

    def pack_load(self, l3, q0):
        b = self.b
        I = b.I
        dst = 80
        uid, src, strd = sT, sT + 1, sT + 2
        I("s_lshl_b32 s%d, s%d, 2" % (uid, sRG))
        I("s_add_u32 s%d, s%d, s%d" % (uid, uid, sW))
        lw1, lw2, lnone, lgo = [b.newlabel("Lpk") for _ in range(4)]
        I("s_mul_i32 s88, s%d, %d" % (sC, 4 * PKW))
        I("s_mov_b32 s%d, 0x20000" % (R_PK + 3))

        def setsrd(ptr, size, stride):
            I("s_mov_b32 s%d, s%d" % (R_PK, ptr))
            I("s_and_b32 s%d, s%d, 0xffff" % (R_PK + 1, ptr + 1))
            I("s_mov_b32 s%d, %d" % (R_PK + 2, size))
            I("s_movk_i32 s%d, %d" % (strd, stride))

        def simple(f0):
            I("s_lshl_b32 s%d, s%d, 15" % (src, uid))
            I("s_lshl_b32 s89, s%d, 7" % sC)
            I("s_add_u32 s%d, s%d, s89" % (src, src))
            I("s_add_u32 s89, s%d, %d" % (uid, f0))
            I("s_lshl_b32 s89, s89, 10")
            I("s_add_u32 s88, s88, s89")
            for t in range(4):
                I("s_add_u32 s%d, s88, %d" % (dst + t, t * PKW))
            I("s_branch %s" % lgo)

        I("s_cmp_ge_u32 s%d, 16" % uid)
        I("s_cbranch_scc1 %s" % lw1)
        setsrd(S_WO, 512 * 1024, 1024)
        simple(F_WO)
        b.label(lw1)
        I("s_cmp_ge_u32 s%d, 64" % uid)
        I("s_cbranch_scc1 %s" % lw2)
        I("s_sub_u32 s%d, s%d, 16" % (uid, uid))
        I("s_mul_i32 s89, s%d, 43" % uid)
        I("s_lshr_b32 s89, s89, 7")
        I("s_mul_i32 s92, s89, 3")
        I("s_sub_u32 s92, s%d, s92" % uid)
        setsrd(S_W1, 512 * 2752, 2752)
        I("s_mul_i32 s%d, s89, %d" % (src, 32 * 2752))
        I("s_mul_i32 s79, s%d, 384" % sC)
        I("s_add_u32 s%d, s%d, s79" % (src, src))
        I("s_lshl_b32 s79, s92, 7")
        I("s_add_u32 s%d, s%d, s79" % (src, src))
        I("s_mul_i32 s89, s89, 3072")
        I("s_add_u32 s88, s88, s89")
        I("s_add_u32 s88, s88, %d" % (F_W1 * 1024))
        for t in range(4):
            I("s_lshl_b32 s79, s92, 2")
            I("s_add_u32 s79, s79, %d" % t)
            I("s_mul_i32 s89, s79, 43")
            I("s_lshr_b32 s89, s89, 7")
            I("s_mul_i32 s%d, s89, %d" % (dst + t, PKW - 3072))
            I("s_lshl_b32 s79, s79, 10")
            I("s_add_u32 s%d, s%d, s79" % (dst + t, dst + t))
            I("s_add_u32 s%d, s%d, s88" % (dst + t, dst + t))
        I("s_mul_i32 s79, s%d, 3" % sC)
        I("s_add_u32 s79, s79, s92")
        I("s_cmp_ge_u32 s79, 22")
        I("s_cbranch_scc1 %s" % lnone)
        I("s_branch %s" % lgo)
        b.label(lw2)
        I("s_cmp_ge_u32 s%d, 107" % uid)
        I("s_cbranch_scc1 %s" % lnone)
        I("s_sub_u32 s%d, s%d, 64" % (uid, uid))
        setsrd(S_W2, 1376 * 1024, 1024)
        simple(F_W2)
        b.label(lnone)
        setsrd(S_WQ, 0, 1024)
        I("s_mov_b32 s%d, 0" % src)
        for t in range(4):
            I("s_mov_b32 s%d, 0x%x" % (dst + t, OOB))
        b.label(lgo)
        I("v_mul_lo_u32 v%d, v%d, s%d" % (vT + 4, l3, strd))
        I("v_add_u32 v%d, v%d, v%d" % (vT + 10, vT + 4, q0))
        I("v_xor_b32 v%d, 64, v%d" % (vT + 5, q0))
        I("v_add_u32 v%d, v%d, v%d" % (vT + 11, vT + 4, vT + 5))
        I("s_lshl_b32 s%d, s%d, 3" % (strd, strd))
        I("s_lshl_b32 s86, s%d, 12" % sW)
        I("s_mov_b32 s84, s%d" % src)
        I("s_mov_b32 s85, s%d" % strd)
        toks = []
        th = []
        for q in range(4):
            pre = ["s_add_u32 m0, s86, 0x%x" % (L_PACK + q * 1024)]
            if q:
                pre.append("s_add_u32 s84, s84, s85")
            th.append((pre, lambda q=q: toks.append(I("buffer_load_dwordx4 v%d, s[%d:%d], s84 offen lds" % (
                vT + 10 + (q & 1), R_PK, R_PK + 3)))))
        return toks, th

    def r1_issue(self):
        I = self.b.I
        a = vCS1 + 2
        I("v_and_b32 v%d, 7, v0" % a)
        I("v_subrev_u32 v%d, s%d, v%d" % (a, sC, a))
        I("v_lshlrev_b32 v%d, 12, v%d" % (a, a))
        I("s_lshl_b32 s%d, s%d, 7" % (sT, sRG))
        I("s_add_u32 s%d, s%d, s%d" % (sT, sT, sR1))
        I("v_add_u32 v%d, s%d, v%d" % (a, sT, a))
        I("v_add_u32 v%d, s%d, v%d" % (vT + 5, sR1, vTCH))
        I("v_cmp_gt_u32 vcc, 32, v0")
        I("v_cndmask_b32 v%d, v%d, v%d, vcc" % (a, a, vT + 5))
        self.r1_tok = I("buffer_load_dword v%d, v%d, %s, 0 offen sc1" % (vPOLL, a, self.ws()))

    def r1_check(self):
        b = self.b
        I = b.I
        lp, ld, lc = b.newlabel("Ltag"), b.newlabel("Ltagd"), b.newlabel("Ltagc")
        b.wait(self.r1_tok)
        I("s_branch %s" % lc)
        b.label(lp)
        self.Inc("buffer_load_dword v%d, v%d, %s, 0 offen sc1" % (vPOLL, vCS1 + 2, self.ws()))
        I("s_waitcnt vmcnt(0)")
        b.label(lc)
        I("v_subrev_u32 v%d, s%d, v%d" % (vPOLL, sTAG, vPOLL))
        I("v_cmp_gt_u32 vcc, 16, v%d" % vPOLL)
        I("s_cmp_eq_u64 vcc, exec")
        I("s_cbranch_scc1 %s" % ld)
        self.spin_guard(lp)
        b.label(ld)
        I("v_cmp_eq_u32 vcc, s%d, v%d" % (sXCC, vPOLL))
        I("s_cmp_eq_u32 vcc_hi, -1")
        I("s_cselect_b32 s%d, 1, 0" % sFAST)

    def touch_w(self, f0, m):
        I = self.b.I
        I("s_mul_i32 s%d, s%d, %d" % (sTC, sQ, m * 1024))
        I("s_add_u32 s%d, s%d, s%d" % (sTC, sTC, sPK))
        I("s_add_u32 s%d, s%d, %d" % (sTC, sTC, f0 * 1024))
        mask = (1 << (8 * m)) - 1
        I("s_mov_b32 exec_lo, 0x%x" % (mask & 0xffffffff))
        I("s_mov_b32 exec_hi, 0x%x" % (mask >> 32))
        I("buffer_load_dword v%d, v%d, %s, s%d offen sc1" % (vDUM, vTCH, self.ws(), sTC))
        I("s_mov_b64 exec, -1")

    def touch_ox(self, layer):
        I = self.b.I
        I("s_and_b32 s%d, s%d, 1" % (sT + 2, sW))
        I("s_lshl_b32 s%d, s%d, 15" % (sT, sT + 2))
        I("s_add_u32 s%d, s%d, s%d" % (sT, sT, sRG64))
        I("s_add_u32 s%d, s%d, 0x%x" % (sT, sT, self.buf("X", 2 * layer)))
        I("s_mul_i32 s%d, s%d, %d" % (sT + 1, sT + 2, self.hstride("O")))
        I("s_add_u32 s%d, s%d, s%d" % (sT + 1, sT + 1, self.rgs("O")))
        I("s_add_u32 s%d, s%d, 0x%x" % (sT + 1, sT + 1, self.buf("O", layer)))
        I("s_bitcmp1_b32 s%d, 1" % sW)
        I("s_cselect_b32 s%d, s%d, s%d" % (sT, sT, sT + 1))
        I("s_lshl_b32 s%d, s%d, 12" % (sT + 1, sC))
        I("s_add_u32 s%d, s%d, s%d" % (sT, sT, sT + 1))
        I("s_mov_b32 exec_hi, 0")
        I("buffer_load_dword v%d, v%d, %s, s%d offen sc1" % (vDUM, vTCH, self.ws(), sT))
        I("s_mov_b32 exec_hi, -1")

    def touch_h(self, layer):
        I = self.b.I
        I("s_lshr_b32 s%d, s%d, 1" % (sT + 1, sW))
        I("s_mul_i32 s%d, s%d, %d" % (sT + 1, sT + 1, HSZ // 2 - 12288))
        I("s_mul_i32 s%d, s%d, 6144" % (sT + 2, sW))
        I("s_add_u32 s%d, s%d, s%d" % (sT + 1, sT + 1, sT + 2))
        I("s_mul_i32 s%d, s%d, 12288" % (sT + 2, sC))
        I("s_add_u32 s%d, s%d, s%d" % (sT + 1, sT + 1, sT + 2))
        I("s_add_u32 s%d, s%d, s%d" % (sT + 1, sT + 1, sRGH))
        I("s_add_u32 s%d, s%d, 0x%x" % (sT + 1, sT + 1, self.buf("H", layer)))
        I("s_cmp_lt_u32 s%d, 7" % sC)
        I("s_cselect_b32 s%d, s%d, 0x%x" % (sT + 1, sT + 1, OOB))
        I("s_mov_b32 exec_hi, 0xffff")
        I("buffer_load_dword v%d, v%d, %s, s%d offen sc1" % (vDUM, vTCH, self.ws(), sT + 1))
        I("s_mov_b32 exec_hi, -1")

    def kv_items(self, hf, seqs):
        items = []
        for ks in range(16):
            c0 = "0" if ks == 0 else None
            for r in range(2):
                def mfs(fr, ks=ks, r=r, c0=c0):
                    kk, kv_ = ("qkv", 0, 2 * ks), ("qkv", 0, 2 * ks + 1)
                    th = [self.mf(vACC + 8 * hf + 4 * r, fr, self.w_get(kk), c0),
                          self.mf(vACC + 16 + 8 * hf + 4 * r, fr, self.w_get(kv_), c0)]
                    if hf == 1 and r == 1:
                        th.append(lambda: (self.w_release(kk), self.w_release(kv_)))
                    return th
                a, off = self.frag_addr(seqs[ks // 2], r, ks & 1)
                items.append((a, off, seqs[ks // 2], mfs))
        self.pinned.update(seqs)
        return items

    def kv_finish(self, hf, between=None):
        b = self.b
        rd = [b.I("ds_read_b128 %s, v%d offset:%d" % (vr(vAF + 4 * k, 4), vSTA, (k & 1) * 64 + (k >> 1) * 128)) for k in range(4)]
        if between:
            between()
        b.wait(rd)
        self.kv_epilogue(hf, vAF, vAF + 8)

    def attention(self, layer, xseqs):
        b = self.b
        I = self.I
        KVD, ZD = vS1, vS2
        one = vr(vONE, 4)
        self.bg_w = 0
        for p in range(2):
            c0 = "0" if p == 0 else None
            self.mf(KVD, vr(vACC + 8 * p, 4), vr(vACC + 16 + 8 * p, 4), c0)()
            self.mf(ZD, vr(vACC + 8 * p, 4), one, c0)()
        b.I("s_add_u32 s%d, s%d, %d" % (sKB, sKV, layer * KVL))
        b.I("s_and_b32 s%d, s%d, %d" % (sKB + 1, sRG, NC - 1))
        b.I("s_mul_i32 s%d, s%d, %d" % (sKB + 1, sKB + 1, KCS))
        b.I("s_add_u32 s%d, s%d, s%d" % (sKB + 1, sKB + 1, sKB))
        for r in range(4):
            b.I("ds_write_b32 v%d, v%d" % (vPOS + r, KVD + r))
        b.I("s_mov_b32 exec_lo, 0x00010001")
        b.I("s_mov_b32 exec_hi, 0x00010001")
        b.I("ds_write_b128 v%d, %s" % (vZP, vr(ZD, 4)))
        b.I("s_mov_b64 exec, -1")
        rd = [b.I("ds_read_b32 v%d, v%d offset:%d" % (vT + k, vKVL, 256 * k)) for k in range(5)]
        for k in range(5):
            b.wait(rd[k])
            if k == 4:
                b.I("s_mov_b32 exec_hi, 0xffff")
            b.I("buffer_atomic_add_f32 v%d, v%d, %s, s%d offen offset:%d" % (vT + k, vL4, self.ws(), sKB + 1, k * 256))
        b.I("s_mov_b64 exec, -1")
        self.stamp("atom")
        if layer:
            self.touch_ox(layer)
        else:
            lp, ld, lc = b.newlabel("Lr3"), b.newlabel("Lr3d"), b.newlabel("Lr3c")
            b.wait(self.r3_tok)
            b.I("s_branch %s" % lc)
            b.label(lp)
            self.Inc("buffer_load_dword v%d, v%d, %s, s%d offen sc1" % (vPOLL, vCS1, self.ws(), sR1))
            b.I("s_waitcnt vmcnt(0)")
            b.label(lc)
            b.I("v_subrev_u32 v%d, s%d, v%d" % (vPOLL, sTAG, vPOLL))
            b.I("v_cmp_gt_u32 vcc, 16, v%d" % vPOLL)
            b.I("s_cmp_eq_u64 vcc, exec")
            b.I("s_cbranch_scc1 %s" % ld)
            self.spin_guard(lp)
            b.label(ld)
            self.stamp("r3")
            b.wait(self.tokQ)
            b.I("s_barrier")
        self.w_burst(env("W_AT", [0, 0])[layer])
        self.last_bg = self.clock
        self.bg_w = env("W_Q", [99, 99])[layer]
        items = []
        for ks in range(16):
            ds, h = ks // 2, ks & 1
            c0 = "0" if ks == 0 else None
            def keep(fr):
                self.wq_reg = fr
                return []
            items.append(("tr", self.rq_base(ks) - L_WQ, None, keep))
            for rt in range(4):
                def mfs(fr, ks=ks, rt=rt, c0=c0):
                    w = self.wq_reg
                    th = [self.mf(vACC + 4 * rt, w, fr, c0)]
                    if layer == 0 and rt == 0:
                        th.append(self.mf(vCSQ, w, one, c0))
                    return th
                if layer == 0:
                    items.append(((vX0, vX1)[h], ds * 8192 + rt * 2048, None, mfs))
                else:
                    a, off = self.frag_addr(xseqs[rt >> 1][ds], rt & 1, h)
                    items.append((a, off, None, mfs))
        assert NC == 2
        KD = vACC + 32
        dst = [(KD, KD + 8), (KD + 4, KD + 12)]
        kvl = ["buffer_load_dwordx4 %s, v%d, %s, s%d offen offset:%d sc1" % (vr(dst[c][h], 4), (vL16, vC2)[h], self.ws(), sKB, c * KCS)
               for h in range(2) for c in range(NC)]
        b.I("v_add_u32 v%d, 0x400, v%d" % (vC2, vL16))
        b.I("v_cmp_gt_u32 vcc, 12, v0")
        b.I("v_mov_b32 v%d, 0x%x" % (vT + 8, OOB))
        b.I("v_cndmask_b32 v%d, v%d, v%d, vcc" % (vC2, vT + 8, vC2))
        kp = {}

        def kv_early():
            self.bg_w = 0
            kp["tok"] = [b.I(t) for t in kvl]
        j = env("H_KVP", [79, 99])[layer]
        self.gemm(items, None, 5, {j: [kv_early]})
        self.pinned = set()
        self.mine = self.seq - 1
        PQ = vACC + 16
        for rt in range(4):
            ab = vAB + 2 * rt
            for r in (0, 2):
                u = vT + 2 * ((rt * 2 + r // 2) % 8)
                I("v_pk_fma_f32 %s, %s, %s, %s op_sel:[0,1,1] op_sel_hi:[1,1,1]" % (p2(u), p2(vCSQ + r), p2(ab), p2(vK)))
        for rt in range(4):
            ab = vAB + 2 * rt
            for r in (0, 2):
                q_ = vACC + 4 * rt + r
                u = vT + 2 * ((rt * 2 + r // 2) % 8)
                I("v_pk_fma_f32 %s, %s, %s, %s op_sel:[0,0,0] op_sel_hi:[1,0,1]" % (p2(q_), p2(q_), p2(ab), p2(u)))
        if env("H_KVP", [79, 99])[layer] == 98:
            kv_early()
        self.phi_pairs([(vACC + 4 * rt + r, PQ + 2 * rt + r // 2) for rt in range(4) for r in (0, 2)])
        self.stamp("qpass")
        self.bg_w = 0
        self.w_burst(env("W_S1", [16, 0])[layer])
        b.I("s_add_u32 s%d, s%d, s%d" % (sT + 6, self.rgs("O"), sSTO))
        b.I("s_add_u32 s%d, s%d, 0x%x" % (sT + 6, sT + 6, self.buf("O", layer)))
        b.I("s_add_u32 s%d, s%d, %d" % (sT + 7, sT + 6, self.hstride("O")))
        b.I("v_lshl_add_u32 v%d, v0, 4, v%d" % (vAF + 16, vKVL))
        b.I("v_sub_u32 v%d, v%d, v%d" % (vAF + 16, vAF + 16, vL4))
        lp, ld, lc = b.newlabel("Lkv"), b.newlabel("Lkvd"), b.newlabel("Lkvc")
        if kp:
            b.wait(kp["tok"])
            b.I("s_branch %s" % lc)
        b.label(lp)
        if kp:
            for t in kvl:
                self.Inc(t)
            b.I("s_waitcnt vmcnt(0)")
        else:
            for t in kvl:
                b.I(t)
            b.wait(vm=0)
        b.label(lc)
        for h in range(2):
            for k in (0, 2):
                b.I("v_pk_add_f32 %s, %s, %s" % (p2(vT + 8 * h + k), p2(dst[0][h] + k), p2(dst[1][h] + k)))
        b.I("ds_write_b128 v%d, %s offset:1280" % (vAF + 16, vr(vT, 4)))
        b.I("s_mov_b64 exec, 0xfff")
        b.I("ds_write_b128 v%d, %s offset:2304" % (vAF + 16, vr(vT + 8, 4)))
        b.I("s_mov_b64 exec, -1")
        lz = b.I("ds_read_b128 %s, v%d offset:1280" % (vr(vT + 4, 4), vZP))
        lt = [b.I("ds_read_b32 v%d, v%d offset:1280" % (vT + 12 + r, vPOS + r)) for r in range(4)]
        b.I("v_cmp_eq_f32 vcc, 0x42000000, v%d" % (vT + 3))
        b.I("v_cmp_eq_f32 s[%d:%d], v%d, v%d" % (sT, sT + 1, vT + 11, vT + 3))
        b.I("s_and_b64 vcc, vcc, s[%d:%d]" % (sM3, sM3 + 1))
        b.I("s_and_b32 s%d, s%d, 0x888" % (sT, sT))
        b.I("s_xor_b32 s%d, s%d, 0x888" % (sT, sT))
        b.I("s_xor_b64 vcc, vcc, s[%d:%d]" % (sM3, sM3 + 1))
        b.I("s_or_b32 s%d, s%d, vcc_lo" % (sT, sT))
        b.I("s_or_b32 s%d, s%d, vcc_hi" % (sT, sT))
        b.I("s_cbranch_scc0 %s" % ld)
        b.I("s_waitcnt lgkmcnt(0)")
        self.spin_guard(lp)
        b.label(ld)
        self.stamp("kvsync")
        b.wait(lz)
        I("v_cvt_pk_bf16_f32 v%d, v%d, v%d" % (vT + 10, vT + 4, vT + 5))
        I("v_cvt_pk_bf16_f32 v%d, v%d, v%d" % (vT + 11, vT + 6, vT + 7))
        NUM, DEN = vACC, vAF
        for rt in range(4):
            I("v_mfma_f32_16x16x16_bf16 %s, %s, %s, 0" % (vr(DEN + 4 * rt, 4), p2(vT + 10), p2(PQ + 2 * rt)))
        b.wait(lt)
        I("v_cvt_pk_bf16_f32 v%d, v%d, v%d" % (vT + 8, vT + 12, vT + 13))
        I("v_cvt_pk_bf16_f32 v%d, v%d, v%d" % (vT + 9, vT + 14, vT + 15))
        for rt in range(4):
            I("v_mfma_f32_16x16x16_bf16 %s, %s, %s, 0" % (vr(NUM + 4 * rt, 4), p2(vT + 8), p2(PQ + 2 * rt)))
        for rt in range(4):
            I("v_add_f32 v%d, s%d, v%d" % (DEN + 4 * rt, sEPS, DEN + 4 * rt))
        for rt in range(4):
            I("v_rcp_f32 v%d, v%d" % (DEN + 4 * rt, DEN + 4 * rt))
        for rt in range(4):
            for r in (0, 2):
                n_ = NUM + 4 * rt + r
                I("v_pk_mul_f32 %s, %s, %s op_sel_hi:[1,0]" % (p2(n_), p2(n_), p2(DEN + 4 * rt)))
        for rt in range(4):
            for r in (0, 2):
                I("v_cvt_pk_bf16_f32 v%d, v%d, v%d" % (vT + 2 * rt + r // 2, NUM + 4 * rt + r, NUM + 4 * rt + r + 1))
        return self.stores2([self.pair_store(vT + 4 * pr, sT + 6 + pr, 0) for pr in range(2)], layer == 0 or self.sep)

    def park_wq(self):
        b = self.b
        b.I("s_lshl_b32 s%d, s%d, 14" % (sT, sW))
        b.I("s_add_u32 s%d, s%d, 0x%x" % (sT, sT, L_WQ))
        b.I("v_add_u32 v%d, s%d, v%d" % (vWQ, sT, vL16))
        for ks in range(16):
            b.I("ds_write_b128 v%d, %s offset:%d" % (vWQ, slot_r(self.wslot[("qkv", 0, 32 + ks)][0]), ks * 1024))
        b.wait(lg=0)
        for ks in range(16):
            self.w_release(("qkv", 0, 32 + ks))

    def cs1_some(self, n):
        one = vr(vONE, 4)
        k = 0
        while k < n and self.ncs < 16 and all(("w1", 0, 3 * self.ncs + t) in self.wslot and
                                             (self.wslot[("w1", 0, 3 * self.ncs + t)][1] is None or
                                              self.wslot[("w1", 0, 3 * self.ncs + t)][1][1] < self.b.vm_done) for t in range(3)):
            for t in range(3):
                self.mf(vCS1 + 4 * t, slot_r(self.wslot[("w1", 0, 3 * self.ncs + t)][0]), one, "0" if self.ncs == 0 else None)()
            self.ncs += 1
            k += 1

    def n16_items(self, name, layer, nks, hf, seqs):
        items = []
        for ks in range(nks):
            for r in range(2):
                def mfs(fr, ks=ks, r=r):
                    th = [self.mf(vX + 8 * hf + 4 * r, self.w_get((name, layer, ks)), fr)]
                    if hf == 1 and r == 1 and name != "w2":
                        th.append(lambda: self.w_release((name, layer, ks)))
                    return th
                a, off = self.frag_addr(seqs[ks // 2], r, ks & 1)
                items.append((a, off, seqs[ks // 2], mfs))
        return items

    def n16_full(self, name, layer, nks, seqs):
        items = []
        for k0 in range(0, nks, 4):
            for hf in range(2):
                for ks in range(k0, k0 + 4):
                    for r in range(2):
                        rt = 2 * hf + r

                        def mfs(fr, ks=ks, rt=rt):
                            th = [self.mf(vX + 4 * rt, self.w_get((name, layer, ks)), fr)]
                            if rt == 3:
                                th.append(lambda: self.w_release((name, layer, ks)))
                            return th
                        sq = seqs[hf][ks // 2]
                        a, off = self.frag_addr(sq, r, ks & 1)
                        items.append((a, off, sq, mfs))
        return items

    def x_payload(self, idx, hf, wt):
        I = self.b.I
        o = vT + 2 + 4 * hf
        I("s_add_u32 s%d, s%d, s%d" % (sT + 6, sRG64, sSTO))
        I("s_add_u32 s%d, s%d, 0x%x" % (sT + 6, sT + 6, self.buf("X", idx) + hf * 32768))
        for j in range(4):
            I("v_cvt_pk_bf16_f32 v%d, v%d, v%d" % (o + j, vX + 8 * hf + 2 * j, vX + 8 * hf + 2 * j + 1))
        return self.stores2([self.pair_store(o, sT + 6, 0)], wt)

    def x_stats(self, wt):
        I = self.b.I
        I("s_add_u32 s%d, s%d, 8192" % (sT + 8, sSTP))
        s = vAF
        for rt in range(4):
            I("v_pk_add_f32 %s, %s, %s" % (p2(s + 4 * rt), p2(vX + 4 * rt), p2(vX + 4 * rt + 2)))
            I("v_pk_mul_f32 %s, %s, %s" % (p2(s + 4 * rt + 2), p2(vX + 4 * rt), p2(vX + 4 * rt)))
        for rt in range(4):
            I("v_pk_fma_f32 %s, %s, %s, %s" % (p2(s + 4 * rt + 2), p2(vX + 4 * rt + 2), p2(vX + 4 * rt + 2), p2(s + 4 * rt + 2)))
        for rt in range(4):
            I("v_add_f32 v%d, v%d, v%d" % (s + 4 * rt, s + 4 * rt, s + 4 * rt + 1))
            I("v_add_f32 v%d, v%d, v%d" % (s + 4 * rt + 2, s + 4 * rt + 2, s + 4 * rt + 3))
        for hf in range(2):
            q = s + 8 * hf
            I("v_permlane32_swap_b32 v%d, v%d" % (q, q + 4))
            I("v_permlane32_swap_b32 v%d, v%d" % (q + 2, q + 6))
        for hf in range(2):
            q = s + 8 * hf
            I("v_add_f32 v%d, v%d, v%d" % (q, q, q + 4))
            I("v_add_f32 v%d, v%d, v%d" % (q + 2, q + 2, q + 6))
        for hf in range(2):
            I("v_permlane16_swap_b32 v%d, v%d" % (s + 8 * hf, s + 8 * hf + 2))
        for hf in range(2):
            I("v_add_f32 v%d, v%d, v%d" % (s + 8 * hf, s + 8 * hf, s + 8 * hf + 2))
        tk2 = self.stores2(["buffer_store_dword v%d, v%d, %s, s%d offen" % (s + 8 * hf, vL4, self.ws(), (sSTP, sT + 8)[hf])
                            for hf in range(2)], wt)
        return tk2

    def x_half_now(self, idx, hf, wt):
        I = self.b.I
        x = vX + 8 * hf
        o = vT + 2
        s = o + 4
        I("s_add_u32 s%d, s%d, s%d" % (sT + 6, sRG64, sSTO))
        I("s_add_u32 s%d, s%d, 0x%x" % (sT + 6, sT + 6, self.buf("X", idx) + hf * 32768))
        I("s_add_u32 s%d, s%d, %d" % (sT + 7, sSTP, hf * 8192))
        for j in range(4):
            I("v_cvt_pk_bf16_f32 v%d, v%d, v%d" % (o + j, x + 2 * j, x + 2 * j + 1))
        for r in range(2):
            I("v_pk_add_f32 %s, %s, %s" % (p2(s + 4 * r), p2(x + 4 * r), p2(x + 4 * r + 2)))
            I("v_pk_mul_f32 %s, %s, %s" % (p2(s + 4 * r + 2), p2(x + 4 * r), p2(x + 4 * r)))
        tk = self.stores2([self.pair_store(o, sT + 6, 0)], wt)
        for r in range(2):
            I("v_pk_fma_f32 %s, %s, %s, %s" % (p2(s + 4 * r + 2), p2(x + 4 * r + 2), p2(x + 4 * r + 2), p2(s + 4 * r + 2)))
            I("v_add_f32 v%d, v%d, v%d" % (s + 4 * r, s + 4 * r, s + 4 * r + 1))
        for r in range(2):
            I("v_add_f32 v%d, v%d, v%d" % (s + 4 * r + 2, s + 4 * r + 2, s + 4 * r + 3))
        I("v_permlane32_swap_b32 v%d, v%d" % (s, s + 4))
        I("v_permlane32_swap_b32 v%d, v%d" % (s + 2, s + 6))
        I("v_add_f32 v%d, v%d, v%d" % (s, s, s + 4))
        I("v_add_f32 v%d, v%d, v%d" % (s + 2, s + 2, s + 6))
        I("v_permlane16_swap_b32 v%d, v%d" % (s, s + 2))
        I("v_add_f32 v%d, v%d, v%d" % (s, s, s + 2))
        tk += self.stores2(["buffer_store_dword v%d, v%d, %s, s%d offen" % (s, vL4, self.ws(), sT + 7)], wt)
        return self.new_pub(tk)

    def x_half_store(self, idx, hf, wt, delay):
        x = vX + 8 * hf
        o = vT + 1
        o += o & 1
        tk = []
        k, fl = self.new_pub(tk)
        s = o + 4
        e = ["s_add_u32 s%d, s%d, s%d" % (sT + 6, sRG64, sSTO),
             "s_add_u32 s%d, s%d, 0x%x" % (sT + 6, sT + 6, self.buf("X", idx) + hf * 32768),
             "s_add_u32 s%d, s%d, %d" % (sT + 7, sSTP, hf * 8192), 2]
        e += ["v_cvt_pk_bf16_f32 v%d, v%d, v%d" % (o + j, x + 2 * j, x + 2 * j + 1) for j in range(4)]
        for r in range(2):
            e += ["v_add_f32 v%d, v%d, v%d" % (s + 2 * r, x + 4 * r, x + 4 * r + 1),
                  "v_mul_f32 v%d, v%d, v%d" % (s + 2 * r + 1, x + 4 * r, x + 4 * r)]
        e.append(lambda: tk.extend(self.stores2([self.pair_store(o, sT + 6, 0)], wt)))
        for q in (1, 2, 3):
            for r in range(2):
                if q > 1:
                    e.append("v_add_f32 v%d, v%d, v%d" % (s + 2 * r, s + 2 * r, x + 4 * r + q))
                e.append("v_fmac_f32 v%d, v%d, v%d" % (s + 2 * r + 1, x + 4 * r + q, x + 4 * r + q))
        e += [1, "v_permlane32_swap_b32 v%d, v%d" % (s, s + 2), "v_permlane32_swap_b32 v%d, v%d" % (s + 1, s + 3), 1,
              "v_add_f32 v%d, v%d, v%d" % (s, s, s + 2), "v_add_f32 v%d, v%d, v%d" % (s + 1, s + 1, s + 3), 1,
              "v_permlane16_swap_b32 v%d, v%d" % (s, s + 1), 1, "v_add_f32 v%d, v%d, v%d" % (s, s, s + 1),
              lambda: tk.extend(self.stores2(["buffer_store_dword v%d, v%d, %s, s%d offen" % (s, vL4, self.ws(), sT + 7)], wt))]
        if delay is not None:
            e += [delay, fl]
        return k, e, fl

    def out_half_store(self, hf):
        x = vX + 8 * hf
        o = vT + 4 * hf
        e = ["s_add_u32 s%d, s%d, s%d" % (sT + 6, sRG64, sOUT), "s_add_u32 s%d, s%d, %d" % (sT + 6, sT + 6, hf * 32768), 2]
        e += ["v_cvt_pk_bf16_f32 v%d, v%d, v%d" % (o + j, x + 2 * j, x + 2 * j + 1) for j in range(4)]
        e += [1, "v_permlane16_swap_b32 v%d, v%d" % (o, o + 2), "v_permlane16_swap_b32 v%d, v%d" % (o + 1, o + 3),
              "buffer_store_dwordx4 %s, v%d, s[%d:%d], s%d offen%s" % (vr(o, 4), vOA, R_OUT, R_OUT + 3, sT + 6, env("OUTPOL", ""))]
        return e

    def p3_items(self, layer, seqs):
        items = []
        one = vr(vONE, 4)
        NA = env("NA", [8, 0])[layer]
        order = [(ks, rt) for ks in range(NA) for rt in (0, 1)] + [(ks, rt) for ks in range(NA) for rt in (2, 3)]
        NB = env("NB", [0, 6])[layer]
        order += [(ks, rt) for ks in range(NA, 16 - NB) for rt in range(4)]
        order += [(ks, rt) for ks in range(16 - NB, 16) for rt in (0, 1)] + [(ks, rt) for ks in range(16 - NB, 16) for rt in (2, 3)]
        for pos, rt in order:
            c0 = "0" if pos == 0 else None
            ks = self.ksord[layer][pos]
            if True:
                def mfs(fr, ks=ks, rt=rt, c0=c0):
                    th = []
                    for t in range(3):
                        w = self.w_get(("w1", layer, 3 * ks + t))
                        th.append(self.mf(vACC + 24 * (rt >> 1) + 8 * t + 4 * (rt & 1), w, fr, c0))
                        if layer == 0 and rt == 0 and ks >= self.ncs:
                            th.append(self.mf(vCS1 + 4 * t, w, one, c0))
                    if rt == 3:
                        th.append(lambda: [self.w_release(("w1", layer, 3 * ks + t)) for t in range(3)])
                    return th
                sq = seqs[rt >> 1][pos // 2]
                a, off = self.frag_addr(sq, rt & 1, ks & 1)
                items.append((a, off, sq, mfs))
        return items

    def silu(self, layer, hf, mid=None):
        b = self.b
        I = self.I
        for t in range(3):
            b.I("s_add_u32 s%d, s%d, 0x%x" % (sT + 6 + t, sH0 + t, self.buf("H", layer) + hf * (HSZ // 2)))
        sts = []
        for t in range(3):
            A = vACC + 24 * hf + 8 * t
            u = vT + 8 * (t & 1)
            for f in (mid or {}).get(t, []):
                f()
            for j in range(4):
                I("v_pk_mul_f32 %s, %s, %s op_sel:[0,1] op_sel_hi:[1,1]" % (
                    p2(u + 2 * j), p2(vCS1 + 4 * t + 2 * (j & 1)), p2(vAB + 4 * hf + 2 * (j >> 1))))
            for j in range(4):
                I("v_pk_fma_f32 %s, %s, %s, %s op_sel:[0,0,0] op_sel_hi:[1,0,1]" % (
                    p2(A + 2 * j), p2(A + 2 * j), p2(vAB + 4 * hf + 2 * (j >> 1)), p2(u + 2 * j)))
            for k in range(8):
                I("v_exp_f32 v%d, v%d" % (u + k, A + k))
            for j in range(4):
                I("v_pk_fma_f32 %s, %s, %s, %s op_sel:[0,0,0] op_sel_hi:[1,0,0] neg_lo:[0,1,1] neg_hi:[0,1,1]" % (
                    p2(u + 2 * j), p2(u + 2 * j), p2(vK), p2(vK)))
            for k in range(8):
                I("v_rcp_f32 v%d, v%d" % (u + k, u + k))
            for j in range(4):
                I("v_pk_mul_f32 %s, %s, %s" % (p2(A + 2 * j), p2(A + 2 * j), p2(u + 2 * j)))
            for j in range(4):
                I("v_cvt_pk_bf16_f32 v%d, v%d, v%d" % (A + j, A + 2 * j, A + 2 * j + 1))
            sts += self.stores2([self.pair_store(A, sT + 6 + t, 0)], 2 if layer == 1 and hf in env('WTH', []) else layer == 0 or self.sep)
        return sts

    def body(self):
        b = self.b
        self.ksord = [list(range(16)), [4 * p + k for p in (3, 2, 1, 0) for k in range(4)]]
        for layer in range(2):
            self.w_enqueue("wo", layer, F_WO, 16)
            self.w_enqueue("w1", layer, F_W1, 48, [3 * ks + t for ks in self.ksord[layer] for t in range(3)])
            if layer == 0:
                self.w_enqueue("w2", 0, F_W2, 43)
        AF = env("AFIRST", 12)
        G8c = env("G8C", [2, 2, 2, 2])
        G8w = env("G8W", [4, 4])
        G22 = env("G22", [2, 2, 2, 2, 2, 4, 4, 4])
        st = {}
        PA, PB = env("PA", [60, 62]), env("PB", [75, 55])
        self.pace_w = PA[0]
        self.startup()
        xs = None
        for layer in range(2):
            self.pace_w = PA[layer]
            tk = self.attention(layer, xs)
            k_o, fl = self.new_pub(tk)
            self.w_burst(env("W_PUB", [0, 0])[layer])
            fl()
            self.stamp("o_pub")
            self.poll_shadow(k_o, env("NCS", [0, 0])[0] if layer == 0 else 0)
            self.stamp("o_rdy")
            wt = 2 if layer == 1 and env('WTX', 0) else layer == 0 or self.sep
            D16, PW = env("D16", 9), env("PAIRW", True)
            if env("NA", [8, 0])[layer]:
                oa = self.queue_half("O", layer, 0, 8, self.aq)
                ob = self.queue_half("O", layer, 1, 8, self.aq)
                self.a_burst(env("AF2", 10))
                self.bg_w = env("W_P2", [12, 12])[layer]

                def xa_out():
                    st["k_xa"], st["fl_xa"] = self.new_pub(self.x_payload(2 * layer, 0, wt))
                self.gemm(self.n16_items("wo", layer, 16, 0, oa) + self.n16_items("wo", layer, 16, 1, ob),
                          self.split(oa, env("G2A", [2, 2, 4])) + self.split(ob, env("G2B", [4, 4])), D16,
                          {33: [xa_out], 33 + env("D_XA", 20): [lambda: st["fl_xa"]()]}, pairw=PW)
                self.bg_w = 0
                self.stamp("p2")
                tk = self.x_payload(2 * layer, 1, wt)
                k_s, fl_s = self.new_pub(tk + self.x_stats(wt))
                self.stamp("x_pub")
                self.poll_check(st["k_xa"])
                self.stamp("x_rdy")
                poll = lambda: st.update(tok=self.poll_issue())

                def when(k, plan, burst=0):
                    def f():
                        self.poll_check(k() if callable(k) else k, st["tok"])
                        self.aq += plan
                        self.a_burst(burst)
                    return f
                fl_s()
                dso = [k // 2 for k in self.ksord[layer][::4]]
                xa = sum([self.queue_half("X", 2 * layer, 0, 2, self.aq, ds0=d) for d in dso], [])
                pl_s = []
                xb = sum([self.queue_half("X", 2 * layer, 1, 2, pl_s, ds0=d) for d in dso], [])
                xx = (xa, xb)
                sa = self.queue_stats(0, pl_s)
                sb = self.queue_stats(1, pl_s)
                if layer or FT:
                    th = lambda: self.touch_h(layer)
                    th.seq = -1
                    th.prep = []
                    pl_s.append(th)
                self.a_burst(env("AF3", 6))
                self.bg_w = 0
                self.pace_w = PB[layer]
                NA = env("NA", [8, 0])[layer]
                h = NA // 2
                groups = [xa[:2], xa[2:h], xb[:2], xb[2:h], xa[h:] + xb[h:]] if h > 2 else [xa[:2], xb[:2], xa[2:4] + xb[2:4], xa[4:] + xb[4:]]
                hooks, pre, post = {}, {}, {}
                s1a, bba = self.stats_stage1(sa, 0)
                s1b, bbb = self.stats_stage1(sb, 1)
                j = env("H_ST", 1)
                hooks[j] = [poll, lambda: self.w_burst(env("W_P3S", [0, 0])[layer])]
                hooks[j + env("CK3", 6)] = [when(k_s, pl_s, env("BU3", 4)), lambda: setattr(self, "bg_w", 99)]
                hooks[env("H_S1", [28, 24])[layer]] = [lambda: self.side.extend(s1a + s1b)]

            else:
                n0 = self.seq
                oo = self.queue_both("O", layer, 8, self.aq)
                self.a_burst(env("AF2", 10))
                self.bg_w = env("W_P2", [12, 12])[layer]
                self.gemm(self.n16_full("wo", layer, 16, oo), self.split(list(range(n0, n0 + 16)), env("G16", [2, 2, 4, 4, 4])), D16,
                          pairw=PW)
                self.bg_w = 0
                self.stamp("p2")
                tk1 = self.x_payload(2 * layer, 0, wt) + self.x_payload(2 * layer, 1, wt)
                tk2 = self.x_stats(wt)
                k_x, fl_x = self.new_pub(tk1)
                k_s, fl_s = self.new_pub(tk2)
                self.w_burst(env("W_PUB2", [4, 0])[layer])
                fl_x()
                self.stamp("x_pub")
                self.poll_shadow(k_x, env("NCS", [0, 0])[1] if layer == 0 else 0)
                self.stamp("x_rdy")
                poll = lambda: st.update(tok=self.poll_issue())

                def when(k, plan, burst=0):
                    def f():
                        self.poll_check(k() if callable(k) else k, st["tok"])
                        self.aq += plan
                        self.a_burst(burst)
                    return f
                n0 = self.seq
                xx = ([], [])
                for d in [k // 2 for k in self.ksord[layer][::4]]:
                    for hf in range(2):
                        xx[hf].extend(self.queue_half("X", 2 * layer, hf, 2, self.aq, ds0=d))
                hold = self.seq
                pl_s = []
                sa = self.queue_stats(0, pl_s)
                sb = self.queue_stats(1, pl_s)
                self.a_burst(4)
                fl_s()
                self.a_burst(env("AF3F", 8) - 4)
                self.bg_w = env("W_P3E", 0)
                self.pace_w = PB[layer]
                groups = self.split(list(range(n0, n0 + 16)), env("G3", [4, 4, 8]))
                hooks, pre, post = {}, {}, {}
                s1a, bba = self.stats_stage1(sa, 0)
                s1b, bbb = self.stats_stage1(sb, 1)
                j = env("H_STF", 8)
                hooks[j] = [poll, lambda: self.w_burst(env("W_P3S", [0, 0])[layer])]
                hooks[j + 6] = [when(k_s, pl_s), lambda: setattr(self, "bg_w", 99)]
                hooks[j + 18] = [lambda: self.side.extend(s1a + s1b)]
                hooks.setdefault(env("H_TH", 36), []).append(lambda: self.touch_h(layer))

            def exch():
                bba()
                bbb()
                b.I("s_barrier")
                self.side.extend(self.stats_stage2(0, True, False) + self.stats_stage2(1, True, False))
            hooks[env("H_EX", [48, 42])[layer]] = [exch]
            if env("NB", [0, 6])[layer]:
                it3 = self.p3_items(layer, xx)
                NB = env("NB", [0, 6])[layer]
                tail = it3[64 - 2 * NB:]
                lim = min(t[2] for t in tail)
                self.pinned = {lim + 2}
                self.gemm(it3[:64 - 2 * NB], groups, 6, hooks, pre, post, pairw=True)
                self.stamp("p3")
                pl_ha, pl_hb, pl_ya = [], [], []
                ha = self.queue_half("H", layer, 0, 22, pl_ha)
                hb = self.queue_half("H", layer, 1, 22, pl_hb)
                tka = []
                k_ha, fl_ha = self.new_pub(tka)
                hk = {env("H_FLA", 8): [fl_ha]}
                if env("M_PI", 1) < 0:
                    hk.setdefault(2 * NB - 1, []).append(poll)
                j3 = self.gemm_prep(tail, None, 6, hk, pairw=True)
                j3[0]()
                self.bg_w = env("W_SILU", [0, 0])[layer]
                tka += self.silu(layer, 0)
                self.stamp("silu_a")
                self.pinned = set()
                self.bg_w = env("W_P3T", [0, 0])[layer]
                j3[1]()
                self.mine = ha[0] - 1
                self.bg_w = 0
                self.stamp("p3t")
                mid = {}
                mid.setdefault(env("M_PI", 1), []).append(poll)
                mid.setdefault(env("M_PC", 2), []).append(when(k_ha, pl_ha, env("AF4", 4)))
                tkb = self.silu(layer, 1, mid)
                k_hb, fl_hb = self.new_pub(tkb)
                self.stamp("ha_rdy")
                self.a_burst(AF - (self.seq_issued() - ha[0]))
                SPL = 1
            else:
                self.gemm(self.p3_items(layer, xx), groups, 6, hooks, pre, post, pairw=True)
                self.pinned = set()
                self.mine = self.seq - 1
                self.bg_w = env("W_SILU", [0, 0])[layer]
                self.stamp("p3")
                k_ha, fl_ha = self.new_pub(self.silu(layer, 0))
                self.bg_w = 0
                pl_ha, pl_hb, pl_ya = [], [], []
                ha = self.queue_half("H", layer, 0, 22, pl_ha)
                hb = self.queue_half("H", layer, 1, 22, pl_hb)

                def ha_go():
                    self.stamp("silu")
                    self.poll_check(k_ha)
                    self.stamp("ha_rdy")
                    self.aq += pl_ha
                    self.a_burst(env("AF4", 4))
                SPL = env("SPLIT", 0)
                mid = {env("MID", 1): [fl_ha]}
                if SPL:
                    mid.setdefault(2, []).append(ha_go)
                tkb = self.silu(layer, 1, mid)
                k_hb, fl_hb = self.new_pub(tkb)
                if not SPL:
                    ha_go()
                    fl_hb()
                if layer == 1 and "x" in env("CLEAN", ""):
                    for j in range(8):
                        b.I("v_cvt_pk_bf16_f32 v%d, v%d, v%d" % (vT + j, vX + 2 * j, vX + 2 * j + 1))
                    st["cx"] = []
                    for hf in range(2):
                        b.I("s_add_u32 s%d, s%d, s%d" % (sT + 9 + hf, sRG64, sSTO))
                        b.I("s_add_u32 s%d, s%d, 0x%x" % (sT + 9 + hf, sT + 9 + hf, self.buf("X", 2) + hf * 32768))
                        st["cx"] += [self.pair_store(vT + 4 * hf, sT + 9 + hf, 0) + " sc1", 6]
                    self.side += [30] + st["cx"]
                self.a_burst(AF - (self.seq_issued() - ha[0]))
            self.bg_w = 99
            j = env("H_P4A", [24, 34])[layer]
            self.alead = env("ALEAD4", 16)
            self.pace_w = PA[1]
            items = self.n16_items("w2", 0, 43, 0, ha) + self.n16_items("w2", 0, 43, 1, hb)
            groups = self.split(ha, env("G22C", [2, 2, 4, 4, 4, 6])) + self.split(hb, G22)
            hooks = {j: [poll], j + env('CK4', 12): [when(k_hb, pl_hb, env('BU_HB', 4))]}
            if SPL:
                hooks[env("H_FLB", 14)] = [fl_hb]
            pre, post = {}, {}
            if layer == 0:
                sa = self.queue_stats(0, pl_ya)
                ya = self.queue_half("X", 1, 0, 8, pl_ya, rot=True)

                def y_out(hf, delay):
                    def f():
                        self.stamp("p4a" if hf == 0 else "p4b")
                        st["k_y%d" % hf], st["fl_y%d" % hf] = self.x_half_now(1, hf, self.sep)
                        self.pace_w = PA[1]
                        if hf:
                            self.alead = env("ALEAD", 99)
                    return f
                j = 86 + env("H_P4B", 44)
                hooks.update({87: [y_out(0, 0)], 87 + env("D_Y0", 22): [lambda: st["fl_y0"]()],
                              172 + env("D_Y1", 10): [lambda: st["fl_y1"]()], j: [poll], j + env('CK4', 12): [when(lambda: st["k_y0"], pl_ya, env("BU_YA", 6))], 172: [y_out(1, 0)],
                              172 + env("H_P1A", 24): [poll]})
                if env("RFR", 0) and not os.environ.get("NOW"):
                    j = 86 + env("H_RFR", 36)
                    hooks.setdefault(j, []).append(lambda: self.touch_w(F_W1 + 28, 5))
                    hooks.setdefault(j + 4, []).append(lambda: self.touch_w(F_W1 + 8, 5))
                ng = len(groups)
                groups += self.split(ya, env("G8K", [2, 4, 2]))
                self.stats_hooks(sa, 0, False, True, 173, ng + 2, hooks, pre, post)
                items += self.kv_items(0, ya)
            else:
                hooks[85] = [lambda: (self.stamp("p4a"), self.side.extend(self.out_half_store(0)))]
                CL = env("CLEAN", "")

                def clean_h(hf):
                    e = []
                    for t in range(3):
                        e += ["s_add_u32 s%d, s%d, 0x%x" % (sT + 8, sH0 + t, self.buf("H", layer) + hf * (HSZ // 2)),
                              "buffer_store_dwordx4 %s, v%d, %s, s%d offen sc1" % (vr(vACC + 24 * hf + 8 * t, 4), vST, self.ws(), sT + 8), 4]
                    return lambda: self.side.extend(e)
                if "a" in CL:
                    hooks.setdefault(86 + env("H_CLA", 12), []).append(clean_h(0))
                if "b" in CL:
                    hooks.setdefault(86 + env("H_CLB", 60), []).append(clean_h(1))
            self.gemm(items, groups, D16, hooks, pre, post, pairw=PW)
            if layer == 0:
                self.stamp("p1a")
                pl = []
                sb = self.queue_stats(1, pl)
                yb = self.queue_half("X", 1, 1, 8, pl, rot=True)
                pl = pl[2:6] + pl[:2] + pl[6:]
                if env("RFR", 0) > 1 and not os.environ.get("NOW"):
                    th = lambda: self.touch_w(F_WO, 6)
                    th.seq = -1
                    th.prep = []
                    pl.append(th)

                def go():
                    self.poll_check(st["k_y1"], st["tok"])
                    self.stamp("yb_rdy")
                    self.aq += pl
                    self.a_burst(env('AF1', 6))
                self.kv_finish(0, go)
                hooks, pre, post = {}, {}, {}
                self.stats_hooks(sb, 1, False, True, 0, 1, hooks, pre, post)
                self.gemm(self.kv_items(1, yb), self.split(yb, env('G1B', [4, 4])), 8, hooks, pre, post, pairw=True)
                self.kv_finish(1)
                self.stamp("p1b")
                xs = [ya, yb]
            else:
                self.stamp("p4b")
                self.side = self.out_half_store(1)
                self.side_flush()
                lx = b.newlabel("Lep")
                b.I("s_or_b32 s%d, s2, s%d" % (sT, sW))
                b.I("s_cbranch_scc1 %s" % lx)
                b.I("s_add_u32 s%d, s%d, 16" % (sT, sEP))
                b.I("v_mov_b32 v%d, s%d" % (vT + 9, sT))
                b.I("s_mov_b32 s%d, 0x%x" % (sT, WS_EP))
                b.I("s_mov_b64 exec, 1")
                self.Inc("buffer_store_dword v%d, off, %s, s%d sc1" % (vT + 9, self.ws(), sT))
                b.I("s_mov_b64 exec, -1")
                b.label(lx)
                self.stamp("end")
        if self.diag:
            b.I("s_lshl_b32 s%d, s2, 2" % sT)
            b.I("s_add_u32 s%d, s%d, s%d" % (sT, sT, sW))
            b.I("s_lshl_b32 s%d, s%d, 8" % (sT, sT))
            b.I("s_add_u32 s%d, s%d, 0x%x" % (sT, sT, WS_STAMP))
            b.I("buffer_store_dword v%d, v%d, %s, s%d offen" % (vSTAMP, vL4, self.ws(), sT))
            if env("RT", 0):
                b.I("s_add_u32 s%d, s%d, 0x40000" % (sT, sT))
                b.I("buffer_store_dword v255, v%d, %s, s%d offen" % (vL4, self.ws(), sT))
        if self.diag and env("PROBE", 0):
            lx, lp = b.newlabel("Lpr"), b.newlabel("Lprl")
            i0, i1 = [61 if n == "entry" else [i for i, m in enumerate(self.stamp_names) if m == n[0]][n[1]] for n in env("PROBE", 0)]
            b.I("s_cmp_lg_u32 s2, %d" % env("PWG", 100))
            b.I("s_cbranch_scc1 %s" % lx)
            b.I("v_readlane_b32 s%d, v%d, %d" % (sT, vSTAMP, i0))
            b.I("v_readlane_b32 s%d, v%d, %d" % (sT + 1, vSTAMP, i1))
            b.I("v_readlane_b32 s%d, v%d, %d" % (sT + 2, vSTAMP, len(self.stamp_names) - 1))
            b.I("s_sub_u32 s%d, s%d, s%d" % (sT + 1, sT + 1, sT))
            b.I("s_mul_i32 s%d, s%d, %d" % (sT + 1, sT + 1, env("PMUL", 1)))
            b.I("s_add_u32 s%d, s%d, 4800" % (sT + 1, sT + 1))
            b.label(lp)
            b.I("s_memtime s[94:95]")
            b.I("s_waitcnt lgkmcnt(0)")
            b.I("s_sub_u32 s%d, s94, s%d" % (sT, sT + 2))
            b.I("s_cmp_lt_u32 s%d, s%d" % (sT, sT + 1))
            b.I("s_cbranch_scc1 %s" % lp)
            b.label(lx)
        b.label("L_end")
        b.I("s_endpgm")
        for t in self.cold:
            b.raw(t)

    def emit(self):
        self.body()
        head = """; @launch grid=(256,1,1) block=(256,1,1) lds=%d
; One persistent launch, one workgroup per CU: 32 row groups (64 rows) x 8 column groups (own generator script).
; kernarg: 0 A_x, 8 A_wqkv, 16 A_wo, 24 B_x (unused), 32 B_w1, 40 B_w2, 48 out, 56 debug (unused), 64 ws.
; Per layer: LN+QKV GEMM (LN folded into the epilogue) -> phi -> per-head kv/z partials, float atomics with in-line arrival
; counters -> o -> o@wo + x -> LN+w1 GEMM + SiLU -> h@w2 + x.  Tiles travel between the 8 workgroups of a row group through ws
; in MFMA-fragment order with tagged flags; stores are write-through unless all 8 report the same XCC id at run time.
.amdgcn_target "amdgcn-amd-amdhsa--gfx950"
.text
.globl %s_kernel
.p2align 8
.type %s_kernel,@function
%s_kernel:
""" % (LDS_BYTES, NAME, NAME, NAME)
        tail = """.section .rodata,"a"
.p2align 6
.amdhsa_kernel %s_kernel
  .amdhsa_next_free_vgpr 512
  .amdhsa_next_free_sgpr 102
  .amdhsa_accum_offset 256
  .amdhsa_group_segment_fixed_size 0
  .amdhsa_kernarg_size 72
  .amdhsa_user_sgpr_count 2
  .amdhsa_user_sgpr_kernarg_segment_ptr 1
  .amdhsa_system_sgpr_workgroup_id_x 1
.end_amdhsa_kernel
""" % NAME
        return head + self.b.text() + tail


if __name__ == "__main__":
    import argparse
    ap = argparse.ArgumentParser()
    ap.add_argument("-o", default="cdna_kernels/%s.s" % NAME)
    ap.add_argument("--diag", action="store_true")
    ap.add_argument("--sep", action="store_true")
    a = ap.parse_args()
    g = Gen(a.diag, a.sep)
    txt = g.emit()
    if a.diag:
        txt = txt.replace(".amdgcn_target", "; stamps: " + ",".join(g.stamp_names) + "\n.amdgcn_target", 1)
    open(a.o, "w").write(txt)
    print("instructions", g.b.nins, "nops", g.b.nops, file=sys.stderr)
```

```python
import sys
import os
sys.path.insert(0, os.path.dirname(os.path.abspath(__file__)))
from asmb import Builder, vr

NAME = "interleave_layers__linear_attn_block__dense_activation_silu__prompt"


def env(name, default):
    v = os.environ.get(name)
    return default if v is None else eval(v)


PKW = 107 * 1024
WS_FL = 0x380000
WS_EP = 0x390000
WS_R2 = 0x398000
WS_KV = 0x480000
NC = env('NC', 2)
KCS = env('KCS', 1344)
KVH = NC * KCS
KVL = 32 * KVH
KB0 = env('KB0', 0)
WS_R3 = 0x3D0000
WS_ST = 0x400000
WS_O = 0x600000
WS_X = 0x800000
WS_H = 0xA00000
HSZ = 22 * 8192
WS_STAMP = 0x3000000
WS_SIZE = 0x3100000 if '--diag' in sys.argv else 0x1000000
OOB = 0x4000000 if '--diag' in sys.argv else 0x1000000
F_WO, F_W1, F_W2 = 0, 16, 64

L_RING = 65536
L_RQ = 106496
L_WQ = 81920
L_PACK = 131072
L_KVI = 147456
L_STA = 157696
L_EX = 158720
NR = env('NR', 8)
NSLOT = 20
LDS_BYTES = 163840

S_X, S_WQ, S_WO, S_W1, S_W2, S_OUT, S_DBG, S_WS = 4, 6, 8, 12, 14, 16, 18, 20
R_X, R_WQ, R_WS, R_OUT, R_PK = 24, 28, 32, 36, 44
sR1, sQ, sTC, sTAG, sEP = 3, 10, 11, 22, 23
sROT, sSTP, sSTC, sW1K = 40, 41, 42, 43
sRG, sC, sW, sFAST, sPK, sKV, sFL, sRG64, sRGH, sSTO = 48, 49, 50, 51, 52, 53, 54, 55, 56, 57
sH0 = 58
sSPIN = 61
sEPS = 62
sOUT = 63
sXS = 64
sRB2, sRO2 = 65, 66
sM1, sM2, sM3, sDIAG = 68, 70, 72, 74
sT = 76
sKB = 88
sPKC, sXCC, sMYF, sW2K, sAB, sAO = 96, 97, 98, 99, 100, 101

vL16, vA1, vKVL, vDMA, vST = 1, 2, 3, 4, 5
vX0, vX1, vOW0, vOW1, vTR, vXS0, vXS1, vWS = 6, 7, 8, 9, 10, 11, 12, 13
vWQ = 13
vSB, vEX, vSWR, vOA = 8, 9, 10, 11
vFL, vL4, vSTAMP, vSTA, vSTQ, vC2 = 14, 15, 16, 17, 18, 19
vX = 20
vCSQ, vCSK, vCSV = 36, 40, 42
vCS1 = 44
vONE = 56
vACC = 60
vAF = 108
NAF = 10
vAB = 148
vT = 156
vPOS = 172
vZP, vSW, vDUM, vTCH, vPOLL, vDM2 = 176, 177, 178, 179, 180, 181
vK = 182
vS1, vS2 = 184, 188
vTQ = 195
vW1 = 192
SLOTS = [("a", 4 * i) for i in range(64)] + [("v", 196 + 4 * i) for i in range(15)]
PACE = env("PACE", 36)
FT = env("FTOUCH", 1)
WMIN = env("WMIN", 10)
AMIN = env("AMIN", 5)
RDSLACK = env("RDSLACK", 2)
SIDEMIN = env("SIDEMIN", 1)
COST = {"mfma": 16, "trans": 8, "ds": 4, "valu": 4, "perm": 4, "dpp": 4, "rdlane": 4, "wrlane": 4, "salu": 2, "vmem": 8}
K_L2E = "op_sel:[0,0] op_sel_hi:[1,0]"


def slot_r(s):
    return vr(s[1], 4, s[0])


def p2(r):
    return "v[%d:%d]" % (r, r + 1)


class Gen:
    def __init__(self, diag=False, sep=False):
        self.b = Builder()
        self.diag = diag
        self.sep = sep
        self.free = list(SLOTS[:-1] if env('RT', 0) else SLOTS)
        self.wq = []
        self.wslot = {}
        self.pk_cur = None
        self.nstamp = 0
        self.stamp_names = []
        self.aq = []
        self.atok = {}
        self.seq = 0
        self.consumed = -1
        self.mine = -1
        self.pub_mine = {}
        self.clock = 0
        self.last_bg = -1000
        self.bg_w = 0
        self.pace_w = 70
        self.in_bg = False
        self.npub = 0
        self.wmin = WMIN
        self.ncs = 0
        self.gstamp = False
        self.vclock = {}
        bI, bw = self.b.I, self.b.wait

        def I2(t):
            tok = bI(t)
            if tok and tok[0] == "vm":
                self.vclock[tok[1]] = self.clock
            return tok

        def w2(*toks, **kw):
            if os.environ.get("SLACK"):
                flat = []
                for t in toks:
                    if t is None:
                        continue
                    flat += t if isinstance(t, list) else [t]
                v = [i for k, i in flat if k == "vm" and i >= self.b.vm_done]
                if v:
                    d = self.clock - self.vclock.get(max(v), 0)
                    if d < int(os.environ["SLACK"]):
                        print("   slack %4d at clock %d (after %s)" % (d, self.clock, self.last_stamp), file=sys.stderr)
            return bw(*toks, **kw)
        self.b.I, self.b.wait = I2, w2
        self.last_stamp = ""
        self.flagged = set()
        self.cold = []
        self.slotted = False
        self.prepped = None
        self.wprep = []
        self.pinned = set()
        self.side = []
        self.side_rate = 2
        self.w_issued = 0
        self.w_need = 0
        self.w_cur = None
        self.w_index = {}
        self.wlead = env('WLEAD', 14)
        self.cur_seq = 0
        self.alead = env('ALEAD', 99)

    def I(self, t):
        tok = self.b.I(t)
        k = self.b.hists[0][-1].kind if self.b.hists and self.b.hists[0] else "salu"
        self.clock += COST.get(k, 4)
        if not self.in_bg and not self.slotted and k in ("mfma", "valu", "trans"):
            c = self.bg_pick()
            if c is not None and c[1]:
                self.bg_emit(c[0], True)
        return tok

    def side_step(self, n):
        self.in_bg = True
        done = 0
        while n > 0 and self.side:
            e = self.side[0]
            if isinstance(e, int):
                if e <= 1:
                    self.side.pop(0)
                else:
                    self.side[0] = e - 1
                break
            self.side.pop(0)
            if isinstance(e, str):
                self.b.I(e)
            else:
                e()
            n -= 1
            done += 1
        self.in_bg = False
        return done

    def side_flush(self):
        while self.side:
            self.side_step(1000)

    def bg_pick(self):
        a_ok = self.aq and self.aq[0].seq - NSLOT <= self.consumed
        w_ok = self.bg_w > 0 and self.wq and self.free
        same = w_ok and self.wq[0][0][:2] == self.w_cur
        el = self.clock - self.last_bg
        if not self.slotted and a_ok:
            return "A", el >= env("PACEV", 60)
        if self.prepped == "A" and a_ok:
            return "A", el >= PACE or self.aq[0].seq - self.cur_seq < AMIN
        if a_ok and getattr(self.aq[0], "urgent", False):
            return "A", True
        if same and self.w_issued - self.w_need < self.wmin:
            return "W", True
        if a_ok and w_ok:
            a_lead = self.aq[0].seq - self.cur_seq
            if a_lead > self.alead or (same and self.w_issued - self.w_need < self.wlead and a_lead > 3):
                a_ok = False
        if a_ok:
            return "A", el >= PACE or self.aq[0].seq - self.cur_seq < AMIN
        if w_ok:
            return "W", el >= self.pace_w
        return None

    def bg_prep_list(self, kind):
        if kind == "A":
            return self.aq[0].prep
        grp = self.wq[0][1] // 4
        if self.pk_cur != grp and not os.environ.get("NOW"):
            self.pk_cur = grp
            self.wprep = ["s_add_u32 s%d, s%d, 0x%x" % (sPKC, sPK, grp * 4096)]
        return self.wprep

    def bg_emit(self, kind, inline):
        self.in_bg = True
        if kind == "A":
            self.a_pop()
        else:
            self.w_issue()
            self.bg_w -= 1
        self.last_bg = self.clock
        self.in_bg = False

    def a_pop(self):
        th = self.aq.pop(0)
        while th.prep:
            self.b.I(th.prep.pop(0))
        th()
        self.prepped = None

    def slot_fill(self, rd_lag, issue_read):
        c = self.bg_pick()
        if c is not None and c[1] and rd_lag <= RDSLACK and not self.bg_prep_list(c[0]):
            self.bg_emit(c[0], False)
            self.clock += 8
            return
        budget = 2
        if rd_lag > 0:
            issue_read()
            budget -= 1
            if rd_lag > 1:
                issue_read()
                budget -= 1
        if c is not None:
            pl = self.bg_prep_list(c[0])
            while budget > 0 and pl:
                self.b.I(pl.pop(0))
                budget -= 1
                if c[0] == "A":
                    self.prepped = "A"
        self.side_step(max(budget, SIDEMIN))

    def Inc(self, t):
        self.b.I(t)
        self.b.vm_issued -= 1

    def stamp(self, name):
        self.last_stamp = name
        if os.environ.get("WLOG"):
            print("%-8s clock %6d  wq left %3d next %s free %d aq %d" % (
                name, self.clock, len(self.wq), self.wq[0][0] if self.wq else None, len(self.free), len(self.aq)), file=sys.stderr)
        if not self.diag:
            return
        b = self.b
        k = self.nstamp
        self.nstamp += 1
        assert k < 62
        b.comment("stamp %d %s" % (k, name))
        b.I("s_memtime s[94:95]")
        b.wait(lg=0)
        b.I("v_writelane_b32 v%d, s94, %d" % (vSTAMP, k))
        if env("RT", 0):
            b.I("s_memrealtime s[94:95]")
            b.wait(lg=0)
            b.I("v_writelane_b32 v255, s94, %d" % k)
        if name in ("start", "end"):
            b.I("s_memrealtime s[94:95]")
            b.wait(lg=0)
            b.I("v_writelane_b32 v%d, s94, %d" % (vSTAMP, 62 if name == "start" else 63))
        self.stamp_names.append(name)

    def buf(self, kind, idx):
        base = {"O": WS_O if self.sep else WS_H, "X": WS_X, "H": WS_H}[kind]
        return base + (idx * 0x1000000 if self.sep else 0)

    def hstride(self, kind):
        return HSZ // 2 if self.rgs(kind) == sRGH else 32768

    def rgs(self, kind):
        return sRGH if kind == "H" or (kind == "O" and not self.sep) else sRG64

    def srd(self, r, ptr, size):
        I = self.b.I
        I("s_mov_b32 s%d, s%d" % (r, ptr))
        I("s_and_b32 s%d, s%d, 0xffff" % (r + 1, ptr + 1))
        I("s_mov_b32 s%d, 0x%x" % (r + 2, size))
        I("s_mov_b32 s%d, 0x20000" % (r + 3))

    def ws(self):
        return "s[%d:%d]" % (R_WS, R_WS + 3)

    def w_enqueue(self, name, layer, f0, n, order=None):
        for i in (range(n) if order is None else order):
            self.w_index[(name, layer, i)] = len(self.w_index)
            self.wq.append(((name, layer, i), f0 + i))

    def w_issue(self):
        key, f = self.wq.pop(0)
        s = self.free.pop(0)
        self.w_issued += 1
        if os.environ.get("NOW"):
            self.wslot[key] = (s, None)
            return
        grp = f // 4
        while self.wprep:
            self.b.I(self.wprep.pop(0))
        if self.pk_cur != grp:
            self.b.I("s_add_u32 s%d, s%d, 0x%x" % (sPKC, sPK, grp * 4096))
            self.pk_cur = grp
        va = vW1 + key[2] % 3 if key[0] == "w1" and env("SKIPW1", 1) else vL16
        if os.environ.get("FAKEW"):
            self.b.I("s_mov_b32 s%d, s%d" % (sPKC, sPK))
        tok = self.b.I("buffer_load_dwordx4 %s, v%d, %s, s%d offen offset:%d sc1%s" % (
            slot_r(s), va, self.ws(), sPKC, (f % 4) * 1024, " nt" if env("NT", lambda k: False)(key) else ""))
        self.wslot[key] = (s, tok)

    def w_burst(self, n):
        k = 0
        while k < n and self.wq and self.free:
            self.w_issue()
            k += 1
        self.last_bg = self.clock

    def w_get(self, key):
        self.w_need = max(self.w_need, self.w_index.get(key, 0))
        self.w_cur = key[:2]
        if key not in self.wslot:
            print("WARNING: late W load", key, file=sys.stderr)
        while key not in self.wslot:
            assert self.wq and self.free, "no free slot for %s" % (key,)
            self.w_issue()
        s, tok = self.wslot[key]
        self.b.wait(tok)
        return slot_r(s)

    def w_release(self, key):
        s, _ = self.wslot.pop(key)
        self.free.append(s)

    def stores2(self, texts, wt=False):
        b = self.b
        if wt == 2 or (wt and not FT):
            return [b.I(t + " sc1") for t in texts]
        ls, lj = b.newlabel("Lslow"), b.newlabel("Ljoin")
        b.I("s_cmp_eq_u32 s%d, 1" % sFAST)
        b.I("s_cbranch_scc0 %s" % ls)
        b.saved.pop(ls)
        toks = [b.I(t) for t in texts]
        b.raw(lj + ":")
        self.cold += [ls + ":"] + ["    " + t + " sc1" for t in texts] + ["    s_branch " + lj]
        return toks

    def pair_store(self, p, sreg, off):
        for k in range(2):
            self.b.I("v_permlane16_swap_b32 v%d, v%d" % (p + k, p + 2 + k))
        return "buffer_store_dwordx4 %s, v%d, %s, s%d offen offset:%d" % (vr(p, 4), vST, self.ws(), sreg, off)

    def spin_guard(self, lab_loop):
        b = self.b
        b.I("s_sub_u32 s%d, s%d, 1" % (sSPIN, sSPIN))
        b.I("s_cmp_lg_u32 s%d, 0" % sSPIN)
        b.I("s_cbranch_scc1 %s" % lab_loop)
        b.I("s_branch L_end")

    def new_pub(self, toks):
        self.npub += 1
        k = self.npub
        self.pub_mine[k] = self.mine

        def flag():
            b = self.b
            b.I("s_add_u32 s%d, s%d, %d" % (sT, sTAG, k))
            b.I("v_mov_b32 v%d, s%d" % (vC2, sT))
            b.wait(toks)
            b.I("s_mov_b64 exec, 1")
            self.stores2(["buffer_store_dword v%d, off, %s, s%d" % (vC2, self.ws(), sMYF)])
            b.I("s_mov_b64 exec, -1")
            self.flagged.add(k)
        return k, flag

    def poll_issue(self):
        return self.b.I("buffer_load_dword v%d, v%d, %s, s%d offen sc1" % (vPOLL, vFL, self.ws(), sFL))

    def poll_shadow(self, k, ncs):
        if not ncs:
            return self.poll_check(k)
        tok = self.poll_issue()
        self.cs1_some(ncs)
        self.poll_check(k, tok)
        self.b.wait(vm=0)

    def poll_check(self, k, tok=None):
        b = self.b
        if k not in self.flagged:
            print("WARNING: side stream late for flag", k, file=sys.stderr)
        while k not in self.flagged:
            assert self.side, "flag %d never raised before its poll" % k
            self.side_step(1)
        lp, ld, lc = b.newlabel("Lpoll"), b.newlabel("Lpd"), b.newlabel("Lpc")
        b.I("s_add_u32 s%d, s%d, %d" % (sT, sTAG, k))
        if tok is None and env("DPOLL", 0):
            ld_ = "buffer_load_dword v%%d, v%d, %s, s%d offen sc1" % (vFL, self.ws(), sFL)
            b.I(ld_ % vPOLL)
            for _ in range(env("DPOLL", 0)):
                b.I("s_nop 15")
            b.label(lp)
            for r0, r1 in ((vPOLL, vT), (vT, vPOLL)):
                self.Inc(ld_ % r1)
                b.I("s_waitcnt vmcnt(1)")
                b.I("v_subrev_u32 v%d, s%d, v%d" % (r0, sT, r0))
                b.I("v_cmp_gt_u32 vcc, %d, v%d" % (16 - k, r0))
                b.I("s_cmp_eq_u64 vcc, exec")
                b.I("s_cbranch_scc1 %s" % ld)
            self.spin_guard(lp)
            b.label(ld)
            b.vm_done = b.vm_issued
            self.consumed = max(self.consumed, self.pub_mine[k])
            return
        if tok is not None:
            b.wait(tok)
            b.I("s_branch %s" % lc)
        b.label(lp)
        self.Inc("buffer_load_dword v%d, v%d, %s, s%d offen sc1" % (vPOLL, vFL, self.ws(), sFL))
        if tok is None:
            b.wait(vm=0)
        else:
            b.I("s_waitcnt vmcnt(0)")
        b.label(lc)
        b.I("v_subrev_u32 v%d, s%d, v%d" % (vPOLL, sT, vPOLL))
        b.I("v_cmp_gt_u32 vcc, %d, v%d" % (16 - k, vPOLL))
        b.I("s_cmp_eq_u64 vcc, exec")
        b.I("s_cbranch_scc1 %s" % ld)
        self.spin_guard(lp)
        b.label(ld)
        self.consumed = max(self.consumed, self.pub_mine[k])

    def queue_stats(self, hf, plan):
        b = self.b
        s0 = self.seq
        assert s0 % 2 == 0
        self.seq += 2
        for j in range(2):
            def th(j=j):
                assert s0 + 1 - NSLOT <= self.consumed
                self.atok.setdefault(s0, []).append(b.I(
                    "buffer_load_dwordx4 v%d, %s, s%d offen offset:%d sc1 lds" % (vL16, self.ws(), sAO, j * 1024)))
            th.seq = s0 + 1
            th.urgent = True
            th.prep = [] if j else ["s_add_u32 m0, s%d, 0x%x" % (sW2K, (s0 % NSLOT) * 4096),
                                    "s_add_u32 s%d, s%d, 0x%x" % (sAO, sSTC, hf * 8192)]
            plan.append(th)
        return s0

    def queue_half(self, kind, idx, hf, nds, plan, rot=False, ds0=0):
        b = self.b
        seqs = []
        base = self.buf(kind, idx) + hf * self.hstride(kind)
        rg = self.rgs(kind)
        assert self.seq % 2 == 0 and nds % 2 == 0
        for ds in range(ds0, ds0 + nds):
            sq = self.seq
            self.seq += 1
            seqs.append(sq)
            s0 = sq & ~1

            def th(sq=sq, s0=s0):
                assert s0 + 1 - NSLOT <= self.consumed, "ring slot busy"
                tk = b.I("buffer_load_dwordx4 v%d, %s, s%d offen offset:%d sc1 lds" % (vDM2, self.ws(), sAO, (sq & 1) * 1024))
                if sq & 1:
                    self.atok[s0] = self.atok[s0 + 1] = [tk]
            th.seq = s0 + 1
            m0 = "s_add_u32 m0, s%d, 0x%x" % (sW2K, (sq % NSLOT) * 4096)
            if sq & 1:
                th.prep = []
            elif not rot:
                th.prep = [m0, "s_add_u32 s%d, s%d, 0x%x" % (sAO, rg, base + ds * 4096)]
            else:
                if ds == 0:
                    th.prep = ["s_add_u32 s%d, s%d, 0x%x" % (sAB, sRB2, base), "s_mov_b32 s%d, s%d" % (sXS, sRO2)]
                else:
                    th.prep = ["s_add_u32 s%d, s%d, 0x2000" % (sXS, sXS), "s_and_b32 s%d, s%d, 0x7fff" % (sXS, sXS)]
                th.prep += [m0, "s_add_u32 s%d, s%d, s%d" % (sAO, sAB, sXS)]
            plan.append(th)
        return seqs

    def queue_both(self, kind, idx, nds, plan):
        out = ([], [])
        for d0 in range(0, nds, 2):
            for hf in range(2):
                out[hf].extend(self.queue_half(kind, idx, hf, 2, plan, ds0=d0))
        return out

    def seq_issued(self):
        return self.aq[0].seq if self.aq else self.seq

    def a_burst(self, n):
        k = 0
        while k < n and self.aq and self.aq[0].seq - NSLOT <= self.consumed:
            self.a_pop()
            k += 1
        self.last_bg = self.clock

    def frag_addr(self, sq, r, h):
        off = (sq % NSLOT) * 4096 + r * 2048 + h * 1024
        return ((vL16, vA1)[off >> 16], off & 0xffff)

    def gemm_prep(self, items, groups=None, depth=8, hooks=None, pre=None, post=None, pairw=False, buf0=0):
        b = self.b
        hooks, pre, post = hooks or {}, pre or {}, post or {}
        n = len(items)
        toks = [None] * n
        grp_of = {}
        for gi, g in enumerate(groups or []):
            for sq in g:
                grp_of[sq] = gi
        opened = set()
        st = {"ip": 0}

        rem = [1 << 30] * (n + 1)
        for k in range(n - 1, -1, -1):
            rem[k] = min(rem[k + 1], items[k][2] if items[k][2] is not None else 1 << 30)

        def reg(k):
            return vr(vAF + 4 * ((k + buf0) % NAF), 4)

        def issue():
            k = st["ip"]
            a, off, sq, _ = items[k]
            if sq in grp_of and grp_of[sq] not in opened:
                gi = grp_of[sq]
                opened.add(gi)
                while any(s not in self.atok for s in groups[gi]):
                    self.a_pop()
                    self.last_bg = self.clock
                for f in pre.get(gi, []):
                    f()
                if self.gstamp:
                    self.stamp("g%d?" % gi)
                b.wait(*[self.atok[s] for s in groups[gi]])
                b.I("s_barrier")
                if self.gstamp:
                    self.stamp("g%d!" % gi)
                self.consumed = max(self.consumed, self.mine)
                for f in post.get(gi, []):
                    f()
            if a == "tr":
                r0 = vAF + 4 * ((k + buf0) % NAF)
                self.I("ds_read_b64_tr_b16 %s, v%d offset:%d" % (p2(r0), vTQ, off))
                toks[k] = self.I("ds_read_b64_tr_b16 %s, v%d offset:%d" % (p2(r0 + 2), vTQ, off + 512))
            else:
                toks[k] = self.I("ds_read_b128 %s, v%d offset:%d" % (reg(k), a, off))
            st["ip"] += 1

        def prestart(m=None):
            while st["ip"] < min(depth if m is None else m, n):
                issue()

        def run():
            prestart()
            self.slotted = True
            for j in range(n):
                thunks = items[j][3](reg(j))
                while st["ip"] <= min(j + (1 if pairw else 0), n - 1):
                    issue()
                if pairw and j % 2 == 0 and j + 1 < st["ip"]:
                    b.wait(toks[j + 1])
                b.wait(toks[j])
                if items[j][2] is not None:
                    self.cur_seq = items[j][2]
                    lim = min(self.pinned) - 3 if self.pinned else 1 << 30
                    self.mine = max(self.mine, min(rem[j] - 1, lim))
                if not thunks and st["ip"] < min(n, j + 1 + depth):
                    issue()
                for th in thunks:
                    n0 = b.nins
                    th()
                    if b.nins > n0:
                        self.slot_fill(min(n, j + 1 + depth) - st["ip"], issue)
                for f in hooks.get(j, []):
                    f()
            self.slotted = False
            self.side_flush()
            sq = [it[2] for it in items if it[2] is not None]
            if sq:
                self.cur_seq = max(sq) + 1
                lim = min(self.pinned) - 3 if self.pinned else 1 << 30
                self.mine = max(self.mine, min(max(sq), lim))
        return prestart, run

    def gemm(self, *a, **k):
        self.gemm_prep(*a, **k)[1]()

    def mf(self, d, a, bb, c=None):
        dd = vr(d, 4)
        cc = dd if c is None else c
        return lambda: self.I("v_mfma_f32_16x16x32_bf16 %s, %s, %s, %s" % (dd, a, bb, cc))

    @staticmethod
    def split(seqs, sizes):
        out, k = [], 0
        for s in sizes:
            out.append(seqs[k:k + s])
            k += s
        assert k == len(seqs)
        return out

    def stats_stage1(self, s0, hf):
        b = self.b
        t = vS1
        tk = {}
        def landed():
            while len(self.atok.get(s0, [])) < 2:
                self.a_pop()
            b.wait(self.atok[s0])
        out = ["v_add_u32 v%d, 0x%x, v%d" % (vT, (s0 % NSLOT) * 4096, vSB), landed]
        for k in range(4):
            out.append(lambda k=k: tk.__setitem__(k, b.I("ds_read2st64_b32 %s, v%d offset0:%d offset1:%d" % (
                p2(t + 2 * k), vT, 2 * k, 2 * k + 1))))
        out += [6, lambda: b.wait(tk[3])]
        out += ["v_add_f32 v%d, v%d, v%d" % (t + k, t + k, t + 4 + k) for k in range(4)]
        out += ["v_add_f32 v%d, v%d, v%d" % (t + k, t + k, t + 2 + k) for k in range(2)]
        out += ["v_add_f32 v%d, v%d, v%d" % (t, t, t + 1)]
        out.append(lambda: tk.__setitem__("w", b.I("ds_write_b32 v%d, v%d offset:%d" % (vSW, t, hf * 1024))))

        def before_barrier():
            self.side_flush()
            b.wait(tk["w"])
        return out, before_barrier

    def stats_stage2(self, hf, scale, kv):
        b = self.b
        t = vS1
        tk = {}
        out = []
        for k in range(2):
            out.append(lambda k=k: tk.__setitem__(k, b.I("ds_read2st64_b32 %s, v%d offset0:%d offset1:%d" % (
                p2(t + 2 * k), vEX, hf * 4 + 2 * k, hf * 4 + 2 * k + 1))))
        a0, b0, a1, b1 = [vAB + 4 * hf + k for k in range(4)]
        out += [6, lambda: b.wait(tk[1]),
                "v_add_f32 v%d, v%d, v%d" % (t, t, t + 2), "v_add_f32 v%d, v%d, v%d" % (t + 1, t + 1, t + 3),
                "v_add_f32 v%d, v%d, v%d" % (t, t, t + 1), "v_mul_f32 v%d, 0x3b000000, v%d" % (t, t),
                "v_mov_b32 v%d, v%d" % (t + 1, t), 1,
                "v_permlane16_swap_b32 v%d, v%d" % (t, t + 1), 1,
                "v_fma_f32 v%d, -v%d, v%d, v%d" % (t + 1, t, t, t + 1), "v_max_f32 v%d, 0, v%d" % (t + 1, t + 1),
                "v_add_f32 v%d, 0x3727c5ac, v%d" % (t + 1, t + 1), "v_rsq_f32 v%d, v%d" % (a0, t + 1), 1]
        if scale:
            out.append("v_mul_f32_e64 v%d, -v%d, v%d" % (a0, a0, vK))
        out.append("v_mul_f32_e64 v%d, -v%d, v%d" % (b0, t, a0))
        if kv:
            def wr():
                b.I("s_mov_b32 exec_lo, 0xffff")
                b.I("s_mov_b32 exec_hi, 0xffff")
                b.I("ds_write_b32 v%d, v%d" % (vSWR, a0))
                b.I("ds_write_b32 v%d, v%d offset:128" % (vSWR, b0))
                b.I("s_mov_b64 exec, -1")
            out.append(wr)
        out += ["v_mov_b32 v%d, v%d" % (a1, a0), "v_mov_b32 v%d, v%d" % (b1, b0), 1,
                "v_permlane32_swap_b32 v%d, v%d" % (a0, a1), "v_permlane32_swap_b32 v%d, v%d" % (b0, b1)]
        return out

    def stats_hooks(self, s0, hf, scale, kv, j1, gi, hooks, pre, post):
        s1, bb = self.stats_stage1(s0, hf)
        hooks.setdefault(j1, []).append(lambda: self.side.extend(s1))
        pre.setdefault(gi, []).append(bb)
        post.setdefault(gi, []).append(lambda: self.side.extend(self.stats_stage2(hf, scale, kv)))

    def stats_startup(self):
        b = self.b
        I = b.I
        t = vT
        I("v_mul_f32 v%d, 0x3b000000, v%d" % (t + 1, vS1))
        I("v_cndmask_b32 v%d, v%d, v%d, s[%d:%d]" % (t, vS2, vS2 + 1, sM1, sM1 + 1))
        I("v_cndmask_b32 v%d, v%d, v%d, s[%d:%d]" % (t, t, vS2 + 2, sM2, sM2 + 1))
        I("v_cndmask_b32 v%d, v%d, v%d, s[%d:%d]" % (t, t, vS2 + 3, sM3, sM3 + 1))
        I("v_mul_f32 v%d, 0x3b000000, v%d" % (t, t))
        I("v_fma_f32 v%d, -v%d, v%d, v%d" % (t, t + 1, t + 1, t))
        I("v_max_f32 v%d, 0, v%d" % (t, t))
        I("v_add_f32 v%d, 0x3727c5ac, v%d" % (t, t))
        I("v_rsq_f32 v%d, v%d" % (t + 2, t))
        I("v_lshlrev_b32 v%d, 1, v%d" % (t + 4, vSW))
        I("v_mul_f32_e64 v%d, -v%d, v%d" % (t + 3, t + 1, t + 2))
        I("v_subrev_u32 v%d, 0x%x, v%d" % (t + 4, L_STA - 512, t + 4))
        I("s_mov_b64 exec, s[%d:%d]" % (sDIAG, sDIAG + 1))
        I("ds_write_b32 v%d, v%d" % (vSW, t + 2))
        I("ds_write_b32 v%d, v%d offset:256" % (vSW, t + 3))
        I("ds_write_b64 v%d, v[%d:%d]" % (t + 4, t + 2, t + 3))
        I("s_mov_b64 exec, -1")
        b.wait(lg=0)
        I("s_barrier")

    def phi_pairs(self, pairs):
        I = self.I
        for c0 in range(0, len(pairs), 4):
            grp = pairs[c0:c0 + 4]
            for k, (t, d) in enumerate(grp):
                I("v_pk_mul_f32 %s, %s, %s %s" % (p2(vT + 2 * k), p2(t), p2(vK), K_L2E))
            for k, (t, d) in enumerate(grp):
                I("v_exp_f32_e64 v%d, v%d clamp" % (vT + 2 * k, vT + 2 * k))
                I("v_max_f32 v%d, v%d, v%d" % (t, vK + 1, t))
                I("v_exp_f32_e64 v%d, v%d clamp" % (vT + 2 * k + 1, vT + 2 * k + 1))
                I("v_max_f32 v%d, v%d, v%d" % (t + 1, vK + 1, t + 1))
            for k, (t, d) in enumerate(grp):
                I("v_pk_add_f32 %s, %s, %s" % (p2(t), p2(t), p2(vT + 2 * k)))
            for k, (t, d) in enumerate(grp):
                I("v_cvt_pk_bf16_f32 v%d, v%d, v%d" % (d, t, t + 1))

    def kv_epilogue(self, hf, ra, rb):
        I = self.I
        K, V = vACC + 8 * hf, vACC + 16 + 8 * hf
        for j in range(4):
            I("v_pk_fma_f32 %s, %s, %s, %s op_sel:[0,0,1] op_sel_hi:[1,1,1]" % (p2(vT + 2 * j), p2(rb + 2 * j), p2(vCSK), p2(vK)))
            I("v_pk_mul_f32 %s, %s, %s" % (p2(vT + 8 + 2 * j), p2(rb + 2 * j), p2(vCSV)))
        for j in range(4):
            I("v_pk_fma_f32 %s, %s, %s, %s" % (p2(K + 2 * j), p2(ra + 2 * j), p2(K + 2 * j), p2(vT + 2 * j)))
            I("v_pk_fma_f32 %s, %s, %s, %s" % (p2(V + 2 * j), p2(ra + 2 * j), p2(V + 2 * j), p2(vT + 8 + 2 * j)))
        for j in range(4):
            I("v_cvt_pk_bf16_f32 v%d, v%d, v%d" % (V + j, V + 2 * j, V + 2 * j + 1))
        self.phi_pairs([(K + 2 * j, K + j) for j in range(4)])

    def startup(self):
        b = self.b
        I = b.I
        i_, g_, l3, l7, q0, tc = vT + 2, vT + 3, vT + 6, vT + 7, vT + 8, vT + 9
        if self.diag:
            I("s_memtime s[92:93]")
        I("s_cmp_ge_u32 s2, 256")
        I("s_cbranch_scc1 L_end")
        I("s_load_dwordx4 s[4:7], s[0:1], 0")
        I("s_load_dwordx2 s[20:21], s[0:1], 64")
        I("s_load_dwordx2 s[8:9], s[0:1], 16")
        I("s_load_dwordx4 s[12:15], s[0:1], 32")
        I("s_load_dwordx4 s[16:19], s[0:1], 48")
        I("s_getpc_b64 s[90:91]")
        b.label("L_pc")
        I("v_lshrrev_b32 v%d, 6, v0" % vT)
        I("v_and_b32 v0, 63, v0")
        I("v_readfirstlane_b32 s%d, v%d" % (sW, vT))
        I("s_lshr_b32 s%d, s2, 3" % (sT + 1))
        I("s_lshl_b32 s%d, s%d, 2" % (sT + 3, sT + 1))
        I("s_add_u32 s%d, s%d, s%d" % (sT + 3, sT + 3, sW))
        I("s_and_b32 s%d, s%d, 31" % (sT, sT + 3))
        I("s_lshl_b32 s%d, s%d, 11" % (sT, sT))
        I("v_lshlrev_b32 v%d, 7, v0" % vTCH)
        I("v_add_u32 v%d, s%d, v%d" % (vT, sT, vTCH))
        I("v_min_u32 v%d, L_end-L_pc, v%d" % (vT, vT))
        I("s_mov_b64 exec, 0xffff")
        I("global_load_dword v%d, v%d, s[90:91]" % (vDUM, vT))
        I("s_mov_b64 exec, -1")
        I("s_and_b32 s%d, s2, 7" % sROT)
        I("s_and_b32 s%d, s%d, 7" % (sC, sT + 1))
        I("s_lshr_b32 s%d, s%d, 3" % (sQ, sT + 1))
        I("s_lshl_b32 s%d, s%d, 2" % (sT, sROT))
        I("s_add_u32 s%d, s%d, s%d" % (sRG, sT, sQ))
        I("s_lshl_b32 s%d, s%d, 16" % (sRG64, sRG))
        I("s_lshl_b32 s%d, s%d, 11" % (sW2K, sW))
        I("v_lshrrev_b32 v%d, 4, v0" % g_)
        I("v_and_b32 v%d, 15, v0" % i_)
        tw, tx = vT + 12, vT + 13
        I("s_mul_i32 s%d, s%d, %d" % (sT + 2, sT + 3, 4 * 3072))
        I("v_lshlrev_b32 v%d, 10, v0" % tx)
        I("v_add_u32 v%d, s%d, v%d" % (tw, sT + 2, tx))
        I("s_lshl_b32 s%d, s%d, 18" % (sT + 2, sROT))
        I("s_lshl_b32 s%d, s%d, 11" % (sT, sT + 3))
        I("s_add_u32 s%d, s%d, s%d" % (sT, sT, sT + 2))
        I("v_add_u32 v%d, s%d, v%d" % (tx, sT, tx))
        I("v_lshrrev_b32 v%d, 3, v0" % l3)
        I("v_and_b32 v%d, 7, v0" % l7)
        I("v_xor_b32 v%d, v%d, v%d" % (vT + 4, l7, g_))
        I("v_lshlrev_b32 v%d, 4, v%d" % (vT + 4, vT + 4))
        I("v_lshl_add_u32 v%d, v%d, 10, v%d" % (vT + 4, l3, vT + 4))
        I("s_lshl_b32 s%d, s%d, 14" % (sT + 1, sW))
        I("v_add_u32 v%d, s%d, v%d" % (vXS0, sT + 1, vT + 4))
        I("v_xor_b32 v%d, 64, v%d" % (vXS1, vXS0))
        I("v_add_u32 v%d, 7168, v%d" % (vXS1, vXS1))
        I("v_and_b32 v%d, 1, v%d" % (vT + 4, g_))
        I("v_lshlrev_b32 v%d, 1, v%d" % (vT + 4, vT + 4))
        I("v_xor_b32 v%d, v%d, v%d" % (q0, l7, vT + 4))
        I("v_lshlrev_b32 v%d, 4, v%d" % (q0, q0))
        I("s_and_b32 s%d, s%d, 1" % (sT + 1, sW))
        I("s_lshl_b32 s%d, s%d, 6" % (sT + 1, sT + 1))
        I("v_xor_b32 v%d, s%d, v%d" % (vT + 4, sT + 1, q0))
        I("s_lshl_b32 s%d, s%d, 3" % (sT + 1, sW))
        I("v_add_u32 v%d, s%d, v%d" % (vT + 5, sT + 1, l3))
        I("v_mul_u32_u24 v%d, 3072, v%d" % (vT + 5, vT + 5))
        I("v_add_u32 v%d, v%d, v%d" % (vWS, vT + 4, vT + 5))
        sXO, sWO_, sRB = sAB, sAO, 93
        I("s_lshl_b32 s%d, s%d, 7" % (sWO_, sC))
        I("v_add_u32 v%d, s%d, v%d" % (vWS, sWO_, vWS))
        if self.diag:
            b.wait(lg=0)
            I("s_mov_b32 s91, s92")
        I("s_add_u32 s%d, s%d, 0x%x" % (sRB, sW2K, L_RING - 1024))
        I("s_lshl_b32 s%d, s%d, 7" % (sXO, sROT))
        I("s_mul_i32 s%d, s%d, %d" % (sWO_, sROT, 64 * 3072))
        if self.diag:
            I("v_mov_b32 v%d, 0" % vSTAMP)
        b.wait(lg=0)
        if self.diag:
            I("v_writelane_b32 v%d, s91, 61" % vSTAMP)
        self.stamp("start")
        I("s_add_u32 s88, s%d, 0x%x" % (S_WS, WS_EP))
        I("s_addc_u32 s89, s%d, 0" % (S_WS + 1))
        I("s_load_dword s%d, s[88:89], 0" % sEP)
        self.srd(R_WQ, S_WQ, 512 * 3072)
        I("s_add_u32 s%d, s%d, s%d" % (R_X, S_X, sRG64))
        I("s_addc_u32 s%d, s%d, 0" % (R_X + 1, S_X + 1))
        I("s_and_b32 s%d, s%d, 0xffff" % (R_X + 1, R_X + 1))
        I("s_mov_b32 s%d, 0x10000" % (R_X + 2))
        I("s_mov_b32 s%d, 0x20000" % (R_X + 3))
        tokA, tokW = {}, {}

        def issue_thunks(ks):
            th = []
            if ks % 2 == 0:
                ds = ks // 2
                tokA[ds] = []
                pre = ["s_add_u32 m0, s%d, 0x%x" % (sW2K, ds * 8192)]
                if ds:
                    pre += ["s_add_u32 s%d, s%d, 128" % (sXO, sXO), "s_and_b32 s%d, s%d, 0x380" % (sXO, sXO)]
                th.append((pre, lambda: tokA[ds].append(
                    I("buffer_load_dwordx4 v%d, s[%d:%d], s%d offen lds" % (vXS0, R_X, R_X + 3, sXO)))))
                th.append(([], lambda: tokA[ds].append(
                    I("buffer_load_dwordx4 v%d, s[%d:%d], s%d offen offset:1024 lds" % (vXS1, R_X, R_X + 3, sXO)))))
            tokW[ks] = []
            for p in range(2):
                pre = []
                if p == 0:
                    if ks:
                        pre.append("s_add_u32 s%d, s%d, %d" % (sWO_, sWO_, 32 * 3072))
                        if ks % 2 == 0:
                            pre += ["s_cmp_eq_u32 s%d, %d" % (sWO_, 512 * 3072), "s_cselect_b32 s%d, 0, s%d" % (sWO_, sWO_)]
                    pre.append("s_add_u32 m0, s%d, 0x%x" % (sRB, (ks % NR) * 8192))
                th.append((pre, lambda p=p: tokW[ks].append(I("buffer_load_dwordx4 v%d, s[%d:%d], s%d offen offset:%d lds" % (
                    vWS, R_WQ, R_WQ + 3, sWO_, (p + 1) * 1024)))))
            return th

        tokQ = []

        def rq_base(ks):
            return L_PACK + ks * 4096 if ks < 4 else L_WQ + (ks - 4) * 4096

        def q_thunk(ks):
            pre = ["s_add_u32 s%d, s%d, %d" % (sWO_, sWO_, 32 * 3072)]
            if ks % 2 == 0:
                pre += ["s_cmp_eq_u32 s%d, %d" % (sWO_, 512 * 3072), "s_cselect_b32 s%d, 0, s%d" % (sWO_, sWO_)]
            pre.append("s_add_u32 m0, s%d, 0x%x" % (sW1K, rq_base(ks)))
            return (pre, lambda: tokQ.append(I("buffer_load_dwordx4 v%d, s[%d:%d], s%d offen lds" % (vWS, R_WQ, R_WQ + 3, sWO_))))
        self.tokQ, self.rq_base = tokQ, rq_base

        def issue_now(ks):
            for pre, th in issue_thunks(ks):
                for t in pre:
                    I(t)
                th()

        if env("T0", 1):
            self.srd(R_PK, S_X, 2048 * 1024)
            if env("XT", 1):
                I("v_lshrrev_b32 v%d, 3, v%d" % (vT + 4, tx))
                I("v_lshlrev_b32 v%d, 10, v0" % (vT + 4))
                I("v_sub_u32 v%d, v%d, v%d" % (tx, tx, vT + 4))
                I("v_add_u32 v%d, v%d, v%d" % (tx, tx, vTCH))
            for ptr, srd, v, mask in ((S_WQ, R_WQ, tw, 0xdb6 if env('TQ', -1) >= 0 else 0xfff), (S_X, R_PK, tx, 0xffff if env("XT", 1) else 3)):
                I("s_sub_u32 s%d, 0x180, s%d" % (sT, ptr))
                I("s_and_b32 s%d, s%d, 0x%x" % (sT, sT, 0 if env("XT", 1) and ptr == S_X else 0x380))
                I("s_mov_b64 exec, 0x%x" % mask)
                I("buffer_load_dword v%d, v%d, s[%d:%d], s%d offen" % (vDUM, v, srd, srd + 3, sT))
            I("s_mov_b64 exec, -1")
        NFIRST = env("NFIRST", 4)
        for ks in range(NFIRST):
            issue_now(ks)
        self.stamp("first")
        I("s_getreg_b32 s%d, hwreg(HW_REG_XCC_ID, 0, 4)" % sXCC)
        I("s_mov_b32 s%d, 0x100000" % sSPIN)
        self.srd(R_WS, S_WS, WS_SIZE)
        self.srd(R_OUT, S_OUT, 2048 * 1024)
        I("v_lshlrev_b32 v%d, 4, v0" % vL16)
        I("v_lshlrev_b32 v%d, 2, v0" % vL4)
        I("s_lshl_b32 s%d, s%d, 10" % (sW1K, sW))
        I("s_lshl_b32 s%d, s%d, 2" % (sT, sC))
        I("s_add_u32 s%d, s%d, s%d" % (sT, sT, sW))
        I("s_mul_i32 s%d, s%d, %d" % (sKV, sT, KVH))
        I("s_add_u32 s%d, s%d, 0x%x" % (sKV, sKV, WS_KV + KB0))
        I("v_mov_b32 v%d, 0" % vC2)
        I("s_and_b32 s%d, s%d, 15" % (sT + 1, sRG))
        I("s_mul_i32 s%d, s%d, %d" % (sT + 1, sT + 1, KVH // 16))
        I("s_add_u32 s%d, s%d, s%d" % (sT + 1, sT + 1, sKV))
        I("s_lshr_b32 s%d, s%d, 4" % (sT + 2, sRG))
        I("s_mul_i32 s%d, s%d, %d" % (sT + 2, sT + 2, KVL))
        I("s_add_u32 s%d, s%d, s%d" % (sT + 1, sT + 1, sT + 2))
        I("v_mov_b32 v%d, 0" % vPOLL)
        I("v_mov_b32 v%d, 0" % (vPOLL + 1))
        I("v_lshlrev_b32 v%d, 3, v0" % (vT + 4))
        assert KVH % 128 == 0 and KVH // 128 <= 64
        mask = (1 << (KVH // 128)) - 1
        I("s_mov_b32 exec_lo, 0x%x" % (mask & 0xffffffff))
        I("s_mov_b32 exec_hi, 0x%x" % (mask >> 32))
        ztok = I("buffer_store_dwordx2 %s, v%d, %s, s%d offen sc1" % (p2(vPOLL), vT + 4, self.ws(), sT + 1))
        I("s_mov_b64 exec, -1")
        I("s_mul_i32 s%d, s%d, %d" % (sPK, sT, PKW))
        I("s_lshl_b32 s%d, s%d, 7" % (sFL, sRG))
        I("s_lshl_b32 s%d, s%d, 12" % (sR1, sC))
        I("s_add_u32 s%d, s%d, 0x%x" % (sR1, sR1, WS_R2))
        I("s_add_u32 s%d, s%d, 0x%x" % (sFL, sFL, WS_FL))
        I("s_lshl_b32 s%d, s%d, 2" % (sMYF, sT))
        I("s_add_u32 s%d, s%d, s%d" % (sMYF, sMYF, sFL))
        I("s_lshl_b32 s%d, s%d, 14" % (sSTC, sRG))
        I("s_add_u32 s%d, s%d, 0x%x" % (sSTC, sSTC, WS_ST))
        I("s_lshl_b32 s%d, s%d, 8" % (sSTP, sT))
        I("s_add_u32 s%d, s%d, s%d" % (sSTP, sSTP, sSTC))
        I("s_add_u32 s%d, s%d, s%d" % (sSTC, sSTC, sW2K))
        I("s_mul_i32 s%d, s%d, %d" % (sRGH, sRG, HSZ))
        I("s_lshl_b32 s%d, s%d, 12" % (sSTO, sC))
        I("s_lshl_b32 s%d, s%d, 9" % (sT + 1, sW))
        I("s_add_u32 s%d, s%d, s%d" % (sSTO, sSTO, sT + 1))
        I("s_lshl_b32 s%d, s%d, 5" % (sOUT, sT))
        I("s_mul_i32 s%d, s%d, 3" % (sT, sT))
        for t in range(3):
            I("s_add_u32 s%d, s%d, %d" % (sT + 1, sT, t))
            I("s_lshr_b32 s%d, s%d, 2" % (sT + 2, sT + 1))
            I("s_lshl_b32 s%d, s%d, 12" % (sT + 2, sT + 2))
            I("s_and_b32 s%d, s%d, 3" % (sT + 3, sT + 1))
            I("s_lshl_b32 s%d, s%d, 9" % (sT + 3, sT + 3))
            I("s_add_u32 s%d, s%d, s%d" % (sT + 2, sT + 2, sT + 3))
            I("s_add_u32 s%d, s%d, s%d" % (sT + 2, sT + 2, sRGH))
            I("s_cmp_lt_u32 s%d, 86" % (sT + 1))
            I("s_cselect_b32 s%d, s%d, 0x%x" % (sH0 + t, sT + 2, OOB))
            I("s_cselect_b32 s%d, 0, 0x%x" % (sT + 2, OOB))
            I("v_add_u32 v%d, s%d, v%d" % (vW1 + t, sT + 2, vL16))
        I("v_add_u32 v%d, 0x10000, v%d" % (vA1, vL16))
        I("v_add_u32 v%d, s%d, v%d" % (vDMA, sW1K, vL16))
        I("v_add_u32 v%d, s%d, v%d" % (vDM2, sW2K, vL16))
        I("s_lshr_b32 s%d, s%d, 1" % (sT + 1, sW))
        I("s_add_u32 s%d, s%d, s%d" % (sRO2, sROT, sT + 1))
        I("s_and_b32 s%d, s%d, 7" % (sRO2, sRO2))
        I("s_lshl_b32 s%d, s%d, 12" % (sRO2, sRO2))
        I("s_lshl_b32 s%d, s%d, 12" % (sT + 1, sT + 1))
        I("s_sub_u32 s%d, s%d, s%d" % (sRB2, sRG64, sT + 1))
        I("v_and_b32 v%d, 0x7c, v%d" % (vFL, vL4))
        I("v_lshrrev_b32 v%d, 1, v%d" % (vT + 4, g_))
        I("v_lshlrev_b32 v%d, 8, v%d" % (vT + 4, vT + 4))
        I("v_lshl_add_u32 v%d, v%d, 4, v%d" % (vT + 4, i_, vT + 4))
        I("v_and_b32 v%d, 1, v%d" % (vT + 5, g_))
        I("v_lshl_add_u32 v%d, v%d, 11, v%d" % (vST, vT + 5, vT + 4))
        I("v_lshlrev_b32 v%d, 4, v%d" % (vSTA, g_))
        I("v_add_u32 v%d, 0x%x, v%d" % (vSTA, L_STA, vSTA))
        I("v_lshlrev_b32 v%d, 3, v%d" % (vSTQ, i_))
        I("v_add_u32 v%d, 0x%x, v%d" % (vSTQ, L_STA + 512, vSTQ))
        I("s_lshl_b32 s%d, s%d, 6" % (sT, sW))
        I("s_add_u32 s%d, s%d, 0x%x" % (sT, sT, L_STA))
        I("v_lshlrev_b32 v%d, 2, v%d" % (vSW, i_))
        I("v_add_u32 v%d, s%d, v%d" % (vSW, sT, vSW))
        I("v_lshrrev_b32 v%d, 3, v%d" % (vT + 4, i_))
        I("v_lshlrev_b32 v%d, 10, v%d" % (vT + 4, vT + 4))
        I("v_and_b32 v%d, 7, v%d" % (vT + 5, i_))
        I("v_lshl_add_u32 v%d, v%d, 7, v%d" % (vT + 4, vT + 5, vT + 4))
        I("v_lshrrev_b32 v%d, 1, v%d" % (vT + 5, i_))
        I("v_xor_b32 v%d, v%d, v%d" % (vT + 5, vT + 5, g_))
        I("v_lshl_add_u32 v%d, v%d, 4, v%d" % (vX0, vT + 5, vT + 4))
        I("v_xor_b32 v%d, 64, v%d" % (vX1, vX0))
        I("v_add_u32 v%d, s%d, v%d" % (vOW0, sW2K, vX0))
        I("v_add_u32 v%d, s%d, v%d" % (vOW1, sW2K, vX1))
        I("v_bfe_u32 v%d, v0, 2, 2" % (vT + 4))
        I("v_bfe_u32 v%d, v0, 3, 1" % (vT + 5))
        I("v_lshlrev_b32 v%d, 1, v%d" % (vT + 5, vT + 5))
        I("v_bfe_u32 v%d, v0, 4, 1" % (vT + 10))
        I("v_lshl_add_u32 v%d, v%d, 2, v%d" % (vT + 5, vT + 10, vT + 5))
        I("v_bfe_u32 v%d, v0, 1, 1" % (vT + 10))
        I("v_xor_b32 v%d, v%d, v%d" % (vT + 5, vT + 5, vT + 10))
        I("v_lshlrev_b32 v%d, 4, v%d" % (vT + 5, vT + 5))
        I("v_lshl_add_u32 v%d, v%d, 7, v%d" % (tc, vT + 4, vT + 5))
        I("v_and_b32 v%d, 1, v0" % (vT + 10))
        I("v_lshl_add_u32 v%d, v%d, 3, v%d" % (tc, vT + 10, tc))
        I("s_lshl_b32 s%d, s%d, 5" % (sT + 1, sW))
        I("v_xor_b32 v%d, s%d, v%d" % (vT + 4, sT + 1, tc))
        I("v_lshl_add_u32 v%d, v%d, 10, v%d" % (vTQ, g_, vT + 4))
        I("v_add_u32 v%d, 0x%x, v%d" % (vTQ, L_WQ, vTQ))
        I("v_lshl_add_u32 v%d, v%d, 11, v%d" % (vT + 4, g_, vT + 4))
        I("v_add_u32 v%d, 0x%x, v%d" % (vTR, L_RING, vT + 4))
        for k in range(4):
            I("v_mov_b32 v%d, 0x3f803f80" % (vONE + k))
        I("v_mov_b32 v%d, 0x3fb8aa3b" % vK)
        I("v_mov_b32 v%d, 0x358637bd" % (vK + 1))
        I("s_mul_i32 s%d, s%d, 2560" % (sT, sW))
        I("s_add_u32 s%d, s%d, 0x%x" % (sT, sT, L_KVI))
        I("v_add_u32 v%d, s%d, v%d" % (vKVL, sT, vL4))
        for r in range(4):
            I("v_add_u32 v%d, %d, v0" % (vT + 4, 64 * r))
            I("v_mul_u32_u24 v%d, 4370, v%d" % (vT + 5, vT + 4))
            I("v_lshrrev_b32 v%d, 16, v%d" % (vT + 5, vT + 5))
            I("v_add_u32 v%d, v%d, v%d" % (vT + 4, vT + 4, vT + 5))
            I("v_lshlrev_b32 v%d, 2, v%d" % (vT + 4, vT + 4))
            I("v_add_u32 v%d, s%d, v%d" % (vPOS + r, sT, vT + 4))
        I("v_lshrrev_b32 v%d, 1, v%d" % (vT + 4, g_))
        I("v_add_u32 v%d, v%d, v%d" % (vT + 4, vT + 4, g_))
        I("v_lshlrev_b32 v%d, 4, v%d" % (vT + 4, vT + 4))
        I("s_add_u32 s%d, s%d, %d" % (sT, sT, 276 * 4))
        I("v_add_u32 v%d, s%d, v%d" % (vZP, sT, vT + 4))
        I("v_cmp_eq_u32 vcc, 15, v%d" % i_)
        I("v_cndmask_b32 v%d, 0, 1.0, vcc" % (vT + 4))
        b.wait(lg=0)
        for k in range(5):
            I("ds_write_b32 v%d, v%d offset:%d" % (vKVL, vT + 4, 256 * k))
        I("s_xor_b32 s%d, s%d, 0x80000000" % (sTAG, sEP))
        I("s_and_b32 s%d, s%d, 0xfffffff0" % (sTAG, sTAG))
        I("s_mov_b32 s%d, 0x358637bd" % sEPS)
        for r, val in ((sM1, 0x22222222), (sM2, 0x44444444), (sM3, 0x88888888)):
            I("s_mov_b32 s%d, 0x%x" % (r, val))
            I("s_mov_b32 s%d, 0x%x" % (r + 1, val))
        I("s_mov_b32 s%d, 0x00f0000f" % sDIAG)
        I("s_mov_b32 s%d, 0xf0000f00" % (sDIAG + 1))
        I("v_lshlrev_b32 v%d, 10, v%d" % (vT + 4, g_))
        I("s_lshl_b32 s%d, s%d, 12" % (sT, sW))
        I("v_add_u32 v%d, s%d, v%d" % (vT + 4, sT, vT + 4))
        for t in range(4):
            I("v_xor_b32 v%d, %d, v%d" % (vCS1 + 4 + t, 32 * t, tc))
            I("v_add_u32 v%d, v%d, v%d" % (vCS1 + 4 + t, vCS1 + 4 + t, vT + 4))
            I("v_add_u32 v%d, 0x%x, v%d" % (vCS1 + 4 + t, L_PACK, vCS1 + 4 + t))
        I("v_and_b32 v%d, 31, v0" % (vT + 14))
        I("v_lshlrev_b32 v%d, 10, v%d" % (vT + 14, vT + 14))
        I("v_lshrrev_b32 v%d, 5, v0" % (vT + 4))
        I("v_lshl_add_u32 v%d, v%d, 4, v%d" % (vT + 14, vT + 4, vT + 14))
        I("s_add_u32 s%d, s%d, s%d" % (sT, sTAG, sXCC))
        I("v_mov_b32 v%d, s%d" % (vT + 15, sT))
        ptk, pth = self.pack_load(l3, q0)
        KL = env("KL", -1)
        for ks in range(NFIRST, env('NINIT', 6)):
            issue_now(ks)
        nxt = env('NINIT', 6)
        nq = 0
        if KL < 0:
            for pre, th in pth:
                for t in pre:
                    I(t)
                th()
        I("s_mov_b64 exec, 1")
        I("buffer_load_dword v%d, off, %s, s%d sc1" % (vDUM, self.ws(), sFL))
        I("s_mov_b64 exec, -1")
        self.stamp("setup")

        tmp = [self.free.pop() for _ in range(6)]
        assert all(s[0] == "v" for s in tmp)
        cK, cV = tmp[4][1], tmp[5][1]
        res_toks = []
        KZ = env("KZ", 2)
        KP, KANN, KI, KC = env("KP", 4), env("KANN", 9), env("KI", 12), env("KC", 99)
        for ks in range(17):
            fill, dma, nrd = [], [], 0
            if ks < 16:
                b.wait(tokW[ks], tokA[ks // 2])
                if ks == KZ:
                    b.wait(ztok)
                if ks == KANN:
                    b.wait(pst)
                I("s_barrier")
                if ks == 0:
                    self.stamp("w0")
                elif env("LSTAMP", 0):
                    self.stamp("it%d" % ks)
                if ks == KC:
                    self.r1_check()
                    self.bg_w = len(self.free) - 2 * (16 - ks) - 16
                    self.last_bg = self.clock
                if ks in (KZ, KANN):
                    lx = b.newlabel("Lann")
                    I("s_cmp_lg_u32 s%d, 0" % sW)
                    I("s_cbranch_scc1 %s" % lx)
                    I("s_lshl_b32 s%d, s%d, 7" % (sT, sRG))
                    I("s_add_u32 s%d, s%d, s%d" % (sT, sT, sR1))
                    if ks == KANN:
                        I("s_add_u32 s%d, s%d, 0x%x" % (sT, sT, WS_R3 - WS_R2))
                    I("s_mov_b64 exec, 1")
                    self.Inc("buffer_store_dword v%d, off, %s, s%d sc1" % (vT + 15, self.ws(), sT))
                    I("s_mov_b64 exec, -1")
                    b.label(lx)
                for p in range(2):
                    s = self.free.pop(0)
                    self.wslot[("qkv", 0, 2 * ks + p)] = (s, None)
                    for hh in range(2):
                        fill.append(lambda s=s, hh=hh, p=p: I("ds_read_b64_tr_b16 %s, v%d offset:%d" % (
                            vr(s[1] + 2 * hh, 2, s[0]), vTR, (ks % NR) * 8192 + p * 1024 + hh * 512)))
                fb = vAF + (ks & 1) * 20
                ds, h = ks // 2, ks & 1
                for rt in range(4):
                    fill.append(lambda rt=rt: I("ds_read_b128 %s, v%d offset:%d" % (
                        vr(fb + 4 * rt, 4), (vX0, vX1)[h], ds * 8192 + rt * 2048)))
                fill.append(lambda: I("ds_read_b128 %s, v%d offset:%d" % (vr(fb + 16, 4), (vOW0, vOW1)[h], ds * 8192)))
                nrd = len(fill)
                k2 = 0
                while nxt < min(16, ks + NR) and k2 < 2:
                    dma += issue_thunks(nxt)
                    nxt += 1
                    k2 += 1
                if ks == KL:
                    dma += pth
                if nxt == 16 and not dma and ks > KP + 1:
                    while nq < 16 and len(dma) < env("QPER", 3) and (nq < 4 or 10 + (nq - 4) // 2 < ks):
                        dma.append(q_thunk(nq))
                        nq += 1
                if ks == env("TQ", -1) and env("T0", 1):
                    def tq():
                        I("s_sub_u32 s%d, 0x180, s%d" % (sT, S_WQ))
                        I("s_and_b32 s%d, s%d, 0x380" % (sT, sT))
                        I("s_mov_b64 exec, 0x249")
                        I("buffer_load_dword v%d, v%d, s[%d:%d], s%d offen" % (vDUM, tw, R_WQ, R_WQ + 3, sT))
                        I("s_mov_b64 exec, -1")
                    fill.append(tq)
                if ks == KI:
                    fill.append(self.r1_issue)
                if ks == env("KOX", 15) and FT:
                    def tch():
                        self.touch_ox(0)
                        I("v_and_b32 v%d, 1, v0" % vT)
                        I("v_lshrrev_b32 v%d, 1, v0" % (vT + 1))
                        I("v_lshlrev_b32 v%d, 13, v%d" % (vT + 1, vT + 1))
                        I("v_lshl_add_u32 v%d, v%d, 7, v%d" % (vT + 5, vT, vT + 1))
                        I("s_mov_b64 exec, 15")
                        I("buffer_load_dword v%d, v%d, %s, s%d offen sc1" % (vDUM, vT + 5, self.ws(), sSTP))
                        I("s_mov_b64 exec, -1")
                    fill.append(tch)
                if ks == KP:
                    def prd():
                        b.wait(ptk)
                        for t in range(4):
                            for hh in range(2):
                                I("ds_read_b64_tr_b16 %s, v%d offset:%d" % (p2(tmp[t][1] + 2 * hh), vCS1 + 4 + t, hh * 512))
                    fill.append(prd)
            mfs = []
            if ks >= 1:
                k1 = ks - 1
                fb1 = vAF + (k1 & 1) * 20
                c0 = "0" if k1 == 0 else None
                wk, wv = [slot_r(self.wslot[("qkv", 0, k)][0]) for k in (2 * k1, 2 * k1 + 1)]
                one = vr(vONE, 4)
                for rt in range(4):
                    mfs.append(self.mf(vACC + 4 * rt, vr(fb1 + 4 * rt, 4), wk, c0))
                    mfs.append(self.mf(vACC + 16 + 4 * rt, vr(fb1 + 4 * rt, 4), wv, c0))
                own = vr(fb1 + 16, 4)
                mfs += [self.mf(vS1, one, own, c0), self.mf(vS2, own, own, c0),
                        self.mf(cK, one, wk, c0), self.mf(cV, one, wv, c0)]
            rds, extra = fill[:nrd], fill[nrd:]
            for _ in range(min(3, len(rds))):
                rds.pop(0)()
            while mfs:
                mfs.pop(0)()
                if rds:
                    for _ in range(min(2, len(rds))):
                        rds.pop(0)()
                    if len(rds) <= 2 and dma and dma[0][0]:
                        I(dma[0][0].pop(0))
                elif dma:
                    if dma[0][0]:
                        while dma[0][0]:
                            I(dma[0][0].pop(0))
                    else:
                        dma.pop(0)[1]()
                elif extra:
                    extra.pop(0)()
            for f in rds:
                f()
            for pre, th in dma:
                for t in pre:
                    I(t)
                th()
            for f in extra:
                f()
            b.wait(lg=0)
            if ks == KP:
                pst = [I("buffer_store_dwordx4 %s, v%d, %s, s%d offen sc1" % (slot_r(tmp[t]), vL16, self.ws(), 80 + t))
                       for t in range(4)]
        I("s_sub_u32 s%d, s%d, s%d" % (sT, sC, sROT))
        I("s_and_b32 s%d, s%d, 7" % (sT, sT))
        I("s_lshl_b32 s%d, s%d, 13" % (sT, sT))
        I("v_lshrrev_b32 v%d, 4, v0" % vT)
        I("v_lshrrev_b32 v%d, 5, v0" % (vT + 1))
        I("v_xor_b32 v%d, v%d, v%d" % (vT + 1, vT + 1, vT))
        I("s_lshl_b32 s%d, s%d, 1" % (sT + 1, sW))
        I("v_xor_b32 v%d, s%d, v%d" % (vT + 1, sT + 1, vT + 1))
        I("v_lshlrev_b32 v%d, 4, v%d" % (vT + 1, vT + 1))
        I("v_xor_b32 v%d, v%d, v%d" % (vT + 1, vT + 1, vX0))
        I("v_and_b32 v%d, 1, v%d" % (vT, vT))
        I("v_lshl_add_u32 v%d, v%d, 3, v%d" % (vT + 1, vT, vT + 1))
        I("v_add_u32 v%d, s%d, v%d" % (vT + 1, sT, vT + 1))
        res = [I("ds_read_b64 %s, v%d offset:%d" % (p2(vS1 + 8 + 0) if False else p2(vACC + 32 + 2 * rt), vT + 1, rt * 2048)) for rt in range(4)]
        I("v_mov_b32 v%d, v%d" % (vOA, vT + 14))
        self.bg_w = 0
        self.stamp("kvpass")
        if KC > 16:
            self.r1_check()
        if KANN == 16:
            b.wait(pst)
        self.stats_startup()
        if KANN == 16:
            lx = b.newlabel("Lann")
            I("s_cmp_lg_u32 s%d, 0" % sW)
            I("s_cbranch_scc1 %s" % lx)
            I("s_lshl_b32 s%d, s%d, 7" % (sT, sRG))
            I("s_add_u32 s%d, s%d, s%d" % (sT, sT, sR1))
            I("s_add_u32 s%d, s%d, 0x%x" % (sT, sT, WS_R3 - WS_R2))
            I("s_mov_b64 exec, 1")
            self.Inc("buffer_store_dword v%d, off, %s, s%d sc1" % (vT + 15, self.ws(), sT))
            I("s_mov_b64 exec, -1")
            b.label(lx)
        while nq < 16:
            pre, th = q_thunk(nq)
            for t in pre:
                I(t)
            th()
            nq += 1
        t1 = []
        for rt in range(4):
            t1.append(I("ds_read_b128 %s, v%d offset:%d" % (vr(vAF + 4 * rt, 4), vSTA, rt * 64)))
            t1.append(I("ds_read_b128 %s, v%d offset:%d" % (vr(vAF + 16 + 4 * rt, 4), vSTA, 256 + rt * 64)))
        for rt in range(4):
            t1.append(I("ds_read_b64 %s, v%d offset:%d" % (p2(vAB + 2 * rt), vSTQ, rt * 128)))
        for k in range(2):
            I("v_mov_b32 v%d, v%d" % (vCSK + k, cK))
            I("v_mov_b32 v%d, v%d" % (vCSV + k, cV))
        self.free += tmp
        I("v_add_u32 v%d, s%d, v%d" % (vSB, sW2K, vL4))
        I("v_add_u32 v%d, 0x%x, v%d" % (vEX, L_EX, vL4))
        I("s_lshl_b32 s%d, s%d, 8" % (sT, sW))
        I("v_add_u32 v%d, s%d, v%d" % (vSW, sT, vEX))
        I("v_and_b32 v%d, 15, v0" % vT)
        I("v_lshrrev_b32 v%d, 5, v0" % (vT + 1))
        I("v_lshlrev_b32 v%d, 6, v%d" % (vT + 1, vT + 1))
        I("v_lshl_add_u32 v%d, v%d, 2, v%d" % (vSWR, vT, vT + 1))
        I("s_add_u32 s%d, s%d, 0x%x" % (sT, sT, L_STA))
        I("v_add_u32 v%d, s%d, v%d" % (vSWR, sT, vSWR))
        for rt in range(4):
            for k in range(2):
                s = vACC + 32 + 2 * rt + k
                I("v_lshlrev_b32 v%d, 16, v%d" % (vX + 4 * rt + 2 * k, s))
                I("v_and_b32 v%d, 0xffff0000, v%d" % (vX + 4 * rt + 2 * k + 1, s))
        early = env("R3EARLY", 0)
        I("v_and_b32 v%d, 0xfff, v%d" % (vCS1, vTCH))
        I("s_add_u32 s%d, s%d, 0x%x" % (sR1, sR1, WS_R3 - WS_R2))
        self.r3_tok = I("buffer_load_dword v%d, v%d, %s, s%d offen sc1" % (vPOLL, vCS1, self.ws(), sR1))
        b.wait(t1)
        I("s_lshl_b32 s%d, s%d, 8" % (sT, sW))
        I("v_add_u32 v%d, s%d, v%d" % (vSTA, sT, vSTA))
        for hf in range(2):
            self.kv_epilogue(hf, vAF + 8 * hf, vAF + 16 + 8 * hf)

    def pack_load(self, l3, q0):
        b = self.b
        I = b.I
        dst = 80
        uid, src, strd = sT, sT + 1, sT + 2
        I("s_lshl_b32 s%d, s%d, 2" % (uid, sRG))
        I("s_add_u32 s%d, s%d, s%d" % (uid, uid, sW))
        lw1, lw2, lnone, lgo = [b.newlabel("Lpk") for _ in range(4)]
        I("s_mul_i32 s88, s%d, %d" % (sC, 4 * PKW))
        I("s_mov_b32 s%d, 0x20000" % (R_PK + 3))

        def setsrd(ptr, size, stride):
            I("s_mov_b32 s%d, s%d" % (R_PK, ptr))
            I("s_and_b32 s%d, s%d, 0xffff" % (R_PK + 1, ptr + 1))
            I("s_mov_b32 s%d, %d" % (R_PK + 2, size))
            I("s_movk_i32 s%d, %d" % (strd, stride))

        def simple(f0):
            I("s_lshl_b32 s%d, s%d, 15" % (src, uid))
            I("s_lshl_b32 s89, s%d, 7" % sC)
            I("s_add_u32 s%d, s%d, s89" % (src, src))
            I("s_add_u32 s89, s%d, %d" % (uid, f0))
            I("s_lshl_b32 s89, s89, 10")
            I("s_add_u32 s88, s88, s89")
            for t in range(4):
                I("s_add_u32 s%d, s88, %d" % (dst + t, t * PKW))
            I("s_branch %s" % lgo)

        I("s_cmp_ge_u32 s%d, 16" % uid)
        I("s_cbranch_scc1 %s" % lw1)
        setsrd(S_WO, 512 * 1024, 1024)
        simple(F_WO)
        b.label(lw1)
        I("s_cmp_ge_u32 s%d, 64" % uid)
        I("s_cbranch_scc1 %s" % lw2)
        I("s_sub_u32 s%d, s%d, 16" % (uid, uid))
        I("s_mul_i32 s89, s%d, 43" % uid)
        I("s_lshr_b32 s89, s89, 7")
        I("s_mul_i32 s92, s89, 3")
        I("s_sub_u32 s92, s%d, s92" % uid)
        setsrd(S_W1, 512 * 2752, 2752)
        I("s_mul_i32 s%d, s89, %d" % (src, 32 * 2752))
        I("s_mul_i32 s79, s%d, 384" % sC)
        I("s_add_u32 s%d, s%d, s79" % (src, src))
        I("s_lshl_b32 s79, s92, 7")
        I("s_add_u32 s%d, s%d, s79" % (src, src))
        I("s_mul_i32 s89, s89, 3072")
        I("s_add_u32 s88, s88, s89")
        I("s_add_u32 s88, s88, %d" % (F_W1 * 1024))
        for t in range(4):
            I("s_lshl_b32 s79, s92, 2")
            I("s_add_u32 s79, s79, %d" % t)
            I("s_mul_i32 s89, s79, 43")
            I("s_lshr_b32 s89, s89, 7")
            I("s_mul_i32 s%d, s89, %d" % (dst + t, PKW - 3072))
            I("s_lshl_b32 s79, s79, 10")
            I("s_add_u32 s%d, s%d, s79" % (dst + t, dst + t))
            I("s_add_u32 s%d, s%d, s88" % (dst + t, dst + t))
        I("s_mul_i32 s79, s%d, 3" % sC)
        I("s_add_u32 s79, s79, s92")
        I("s_cmp_ge_u32 s79, 22")
        I("s_cbranch_scc1 %s" % lnone)
        I("s_branch %s" % lgo)
        b.label(lw2)
        I("s_cmp_ge_u32 s%d, 107" % uid)
        I("s_cbranch_scc1 %s" % lnone)
        I("s_sub_u32 s%d, s%d, 64" % (uid, uid))
        setsrd(S_W2, 1376 * 1024, 1024)
        simple(F_W2)
        b.label(lnone)
        setsrd(S_WQ, 0, 1024)
        I("s_mov_b32 s%d, 0" % src)
        for t in range(4):
            I("s_mov_b32 s%d, 0x%x" % (dst + t, OOB))
        b.label(lgo)
        I("v_mul_lo_u32 v%d, v%d, s%d" % (vT + 4, l3, strd))
        I("v_add_u32 v%d, v%d, v%d" % (vT + 10, vT + 4, q0))
        I("v_xor_b32 v%d, 64, v%d" % (vT + 5, q0))
        I("v_add_u32 v%d, v%d, v%d" % (vT + 11, vT + 4, vT + 5))
        I("s_lshl_b32 s%d, s%d, 3" % (strd, strd))
        I("s_lshl_b32 s86, s%d, 12" % sW)
        I("s_mov_b32 s84, s%d" % src)
        I("s_mov_b32 s85, s%d" % strd)
        toks = []
        th = []
        for q in range(4):
            pre = ["s_add_u32 m0, s86, 0x%x" % (L_PACK + q * 1024)]
            if q:
                pre.append("s_add_u32 s84, s84, s85")
            th.append((pre, lambda q=q: toks.append(I("buffer_load_dwordx4 v%d, s[%d:%d], s84 offen lds" % (
                vT + 10 + (q & 1), R_PK, R_PK + 3)))))
        return toks, th

    def r1_issue(self):
        I = self.b.I
        a = vCS1 + 2
        I("v_and_b32 v%d, 7, v0" % a)
        I("v_subrev_u32 v%d, s%d, v%d" % (a, sC, a))
        I("v_lshlrev_b32 v%d, 12, v%d" % (a, a))
        I("s_lshl_b32 s%d, s%d, 7" % (sT, sRG))
        I("s_add_u32 s%d, s%d, s%d" % (sT, sT, sR1))
        I("v_add_u32 v%d, s%d, v%d" % (a, sT, a))
        I("v_add_u32 v%d, s%d, v%d" % (vT + 5, sR1, vTCH))
        I("v_cmp_gt_u32 vcc, 32, v0")
        I("v_cndmask_b32 v%d, v%d, v%d, vcc" % (a, a, vT + 5))
        self.r1_tok = I("buffer_load_dword v%d, v%d, %s, 0 offen sc1" % (vPOLL, a, self.ws()))

    def r1_check(self):
        b = self.b
        I = b.I
        lp, ld, lc = b.newlabel("Ltag"), b.newlabel("Ltagd"), b.newlabel("Ltagc")
        b.wait(self.r1_tok)
        I("s_branch %s" % lc)
        b.label(lp)
        self.Inc("buffer_load_dword v%d, v%d, %s, 0 offen sc1" % (vPOLL, vCS1 + 2, self.ws()))
        I("s_waitcnt vmcnt(0)")
        b.label(lc)
        I("v_subrev_u32 v%d, s%d, v%d" % (vPOLL, sTAG, vPOLL))
        I("v_cmp_gt_u32 vcc, 16, v%d" % vPOLL)
        I("s_cmp_eq_u64 vcc, exec")
        I("s_cbranch_scc1 %s" % ld)
        self.spin_guard(lp)
        b.label(ld)
        I("v_cmp_eq_u32 vcc, s%d, v%d" % (sXCC, vPOLL))
        I("s_cmp_eq_u32 vcc_hi, -1")
        I("s_cselect_b32 s%d, 1, 0" % sFAST)

    def touch_w(self, f0, m):
        I = self.b.I
        I("s_mul_i32 s%d, s%d, %d" % (sTC, sQ, m * 1024))
        I("s_add_u32 s%d, s%d, s%d" % (sTC, sTC, sPK))
        I("s_add_u32 s%d, s%d, %d" % (sTC, sTC, f0 * 1024))
        mask = (1 << (8 * m)) - 1
        I("s_mov_b32 exec_lo, 0x%x" % (mask & 0xffffffff))
        I("s_mov_b32 exec_hi, 0x%x" % (mask >> 32))
        I("buffer_load_dword v%d, v%d, %s, s%d offen sc1" % (vDUM, vTCH, self.ws(), sTC))
        I("s_mov_b64 exec, -1")

    def touch_ox(self, layer):
        I = self.b.I
        I("s_and_b32 s%d, s%d, 1" % (sT + 2, sW))
        I("s_lshl_b32 s%d, s%d, 15" % (sT, sT + 2))
        I("s_add_u32 s%d, s%d, s%d" % (sT, sT, sRG64))
        I("s_add_u32 s%d, s%d, 0x%x" % (sT, sT, self.buf("X", 2 * layer)))
        I("s_mul_i32 s%d, s%d, %d" % (sT + 1, sT + 2, self.hstride("O")))
        I("s_add_u32 s%d, s%d, s%d" % (sT + 1, sT + 1, self.rgs("O")))
        I("s_add_u32 s%d, s%d, 0x%x" % (sT + 1, sT + 1, self.buf("O", layer)))
        I("s_bitcmp1_b32 s%d, 1" % sW)
        I("s_cselect_b32 s%d, s%d, s%d" % (sT, sT, sT + 1))
        I("s_lshl_b32 s%d, s%d, 12" % (sT + 1, sC))
        I("s_add_u32 s%d, s%d, s%d" % (sT, sT, sT + 1))
        I("s_mov_b32 exec_hi, 0")
        I("buffer_load_dword v%d, v%d, %s, s%d offen sc1" % (vDUM, vTCH, self.ws(), sT))
        I("s_mov_b32 exec_hi, -1")

    def touch_h(self, layer):
        I = self.b.I
        I("s_lshr_b32 s%d, s%d, 1" % (sT + 1, sW))
        I("s_mul_i32 s%d, s%d, %d" % (sT + 1, sT + 1, HSZ // 2 - 12288))
        I("s_mul_i32 s%d, s%d, 6144" % (sT + 2, sW))
        I("s_add_u32 s%d, s%d, s%d" % (sT + 1, sT + 1, sT + 2))
        I("s_mul_i32 s%d, s%d, 12288" % (sT + 2, sC))
        I("s_add_u32 s%d, s%d, s%d" % (sT + 1, sT + 1, sT + 2))
        I("s_add_u32 s%d, s%d, s%d" % (sT + 1, sT + 1, sRGH))
        I("s_add_u32 s%d, s%d, 0x%x" % (sT + 1, sT + 1, self.buf("H", layer)))
        I("s_cmp_lt_u32 s%d, 7" % sC)
        I("s_cselect_b32 s%d, s%d, 0x%x" % (sT + 1, sT + 1, OOB))
        I("s_mov_b32 exec_hi, 0xffff")
        I("buffer_load_dword v%d, v%d, %s, s%d offen sc1" % (vDUM, vTCH, self.ws(), sT + 1))
        I("s_mov_b32 exec_hi, -1")

    def kv_items(self, hf, seqs):
        items = []
        for ks in range(16):
            c0 = "0" if ks == 0 else None
            for r in range(2):
                def mfs(fr, ks=ks, r=r, c0=c0):
                    kk, kv_ = ("qkv", 0, 2 * ks), ("qkv", 0, 2 * ks + 1)
                    th = [self.mf(vACC + 8 * hf + 4 * r, fr, self.w_get(kk), c0),
                          self.mf(vACC + 16 + 8 * hf + 4 * r, fr, self.w_get(kv_), c0)]
                    if hf == 1 and r == 1:
                        th.append(lambda: (self.w_release(kk), self.w_release(kv_)))
                    return th
                a, off = self.frag_addr(seqs[ks // 2], r, ks & 1)
                items.append((a, off, seqs[ks // 2], mfs))
        self.pinned.update(seqs)
        return items

    def kv_finish(self, hf, between=None):
        b = self.b
        rd = [b.I("ds_read_b128 %s, v%d offset:%d" % (vr(vAF + 4 * k, 4), vSTA, (k & 1) * 64 + (k >> 1) * 128)) for k in range(4)]
        if between:
            between()
        b.wait(rd)
        self.kv_epilogue(hf, vAF, vAF + 8)

    def attention(self, layer, xseqs):
        b = self.b
        I = self.I
        KVD, ZD = vS1, vS2
        one = vr(vONE, 4)
        self.bg_w = 0
        for p in range(2):
            c0 = "0" if p == 0 else None
            self.mf(KVD, vr(vACC + 8 * p, 4), vr(vACC + 16 + 8 * p, 4), c0)()
            self.mf(ZD, vr(vACC + 8 * p, 4), one, c0)()
        b.I("s_add_u32 s%d, s%d, %d" % (sKB, sKV, layer * KVL))
        b.I("s_and_b32 s%d, s%d, %d" % (sKB + 1, sRG, NC - 1))
        b.I("s_mul_i32 s%d, s%d, %d" % (sKB + 1, sKB + 1, KCS))
        b.I("s_add_u32 s%d, s%d, s%d" % (sKB + 1, sKB + 1, sKB))
        for r in range(4):
            b.I("ds_write_b32 v%d, v%d" % (vPOS + r, KVD + r))
        b.I("s_mov_b32 exec_lo, 0x00010001")
        b.I("s_mov_b32 exec_hi, 0x00010001")
        b.I("ds_write_b128 v%d, %s" % (vZP, vr(ZD, 4)))
        b.I("s_mov_b64 exec, -1")
        rd = [b.I("ds_read_b32 v%d, v%d offset:%d" % (vT + k, vKVL, 256 * k)) for k in range(5)]
        for k in range(5):
            b.wait(rd[k])
            if k == 4:
                b.I("s_mov_b32 exec_hi, 0xffff")
            b.I("buffer_atomic_add_f32 v%d, v%d, %s, s%d offen offset:%d" % (vT + k, vL4, self.ws(), sKB + 1, k * 256))
        b.I("s_mov_b64 exec, -1")
        self.stamp("atom")
        if layer:
            self.touch_ox(layer)
        else:
            lp, ld, lc = b.newlabel("Lr3"), b.newlabel("Lr3d"), b.newlabel("Lr3c")
            b.wait(self.r3_tok)
            b.I("s_branch %s" % lc)
            b.label(lp)
            self.Inc("buffer_load_dword v%d, v%d, %s, s%d offen sc1" % (vPOLL, vCS1, self.ws(), sR1))
            b.I("s_waitcnt vmcnt(0)")
            b.label(lc)
            b.I("v_subrev_u32 v%d, s%d, v%d" % (vPOLL, sTAG, vPOLL))
            b.I("v_cmp_gt_u32 vcc, 16, v%d" % vPOLL)
            b.I("s_cmp_eq_u64 vcc, exec")
            b.I("s_cbranch_scc1 %s" % ld)
            self.spin_guard(lp)
            b.label(ld)
            self.stamp("r3")
            b.wait(self.tokQ)
            b.I("s_barrier")
        self.w_burst(env("W_AT", [0, 0])[layer])
        self.last_bg = self.clock
        self.bg_w = env("W_Q", [99, 99])[layer]
        items = []
        for ks in range(16):
            ds, h = ks // 2, ks & 1
            c0 = "0" if ks == 0 else None
            def keep(fr):
                self.wq_reg = fr
                return []
            items.append(("tr", self.rq_base(ks) - L_WQ, None, keep))
            for rt in range(4):
                def mfs(fr, ks=ks, rt=rt, c0=c0):
                    w = self.wq_reg
                    th = [self.mf(vACC + 4 * rt, w, fr, c0)]
                    if layer == 0 and rt == 0:
                        th.append(self.mf(vCSQ, w, one, c0))
                    return th
                if layer == 0:
                    items.append(((vX0, vX1)[h], ds * 8192 + rt * 2048, None, mfs))
                else:
                    a, off = self.frag_addr(xseqs[rt >> 1][ds], rt & 1, h)
                    items.append((a, off, None, mfs))
        assert NC == 2
        KD = vACC + 32
        dst = [(KD, KD + 8), (KD + 4, KD + 12)]
        kvl = ["buffer_load_dwordx4 %s, v%d, %s, s%d offen offset:%d sc1" % (vr(dst[c][h], 4), (vL16, vC2)[h], self.ws(), sKB, c * KCS)
               for h in range(2) for c in range(NC)]
        b.I("v_add_u32 v%d, 0x400, v%d" % (vC2, vL16))
        b.I("v_cmp_gt_u32 vcc, 12, v0")
        b.I("v_mov_b32 v%d, 0x%x" % (vT + 8, OOB))
        b.I("v_cndmask_b32 v%d, v%d, v%d, vcc" % (vC2, vT + 8, vC2))
        kp = {}

        def kv_early():
            self.bg_w = 0
            kp["tok"] = [b.I(t) for t in kvl]
        j = env("H_KVP", [79, 99])[layer]
        self.gemm(items, None, 5, {j: [kv_early]})
        self.pinned = set()
        self.mine = self.seq - 1
        PQ = vACC + 16
        for rt in range(4):
            ab = vAB + 2 * rt
            for r in (0, 2):
                u = vT + 2 * ((rt * 2 + r // 2) % 8)
                I("v_pk_fma_f32 %s, %s, %s, %s op_sel:[0,1,1] op_sel_hi:[1,1,1]" % (p2(u), p2(vCSQ + r), p2(ab), p2(vK)))
        for rt in range(4):
            ab = vAB + 2 * rt
            for r in (0, 2):
                q_ = vACC + 4 * rt + r
                u = vT + 2 * ((rt * 2 + r // 2) % 8)
                I("v_pk_fma_f32 %s, %s, %s, %s op_sel:[0,0,0] op_sel_hi:[1,0,1]" % (p2(q_), p2(q_), p2(ab), p2(u)))
        if env("H_KVP", [79, 99])[layer] == 98:
            kv_early()
        self.phi_pairs([(vACC + 4 * rt + r, PQ + 2 * rt + r // 2) for rt in range(4) for r in (0, 2)])
        self.stamp("qpass")
        self.bg_w = 0
        self.w_burst(env("W_S1", [12, 0])[layer])
        b.I("s_add_u32 s%d, s%d, s%d" % (sT + 6, self.rgs("O"), sSTO))
        b.I("s_add_u32 s%d, s%d, 0x%x" % (sT + 6, sT + 6, self.buf("O", layer)))
        b.I("s_add_u32 s%d, s%d, %d" % (sT + 7, sT + 6, self.hstride("O")))
        b.I("v_lshl_add_u32 v%d, v0, 4, v%d" % (vAF + 16, vKVL))
        b.I("v_sub_u32 v%d, v%d, v%d" % (vAF + 16, vAF + 16, vL4))
        lp, ld, lc = b.newlabel("Lkv"), b.newlabel("Lkvd"), b.newlabel("Lkvc")
        if kp:
            b.wait(kp["tok"])
            b.I("s_branch %s" % lc)
        b.label(lp)
        if kp:
            for t in kvl:
                self.Inc(t)
            b.I("s_waitcnt vmcnt(0)")
        else:
            for t in kvl:
                b.I(t)
            b.wait(vm=0)
        b.label(lc)
        for h in range(2):
            for k in (0, 2):
                b.I("v_pk_add_f32 %s, %s, %s" % (p2(vT + 8 * h + k), p2(dst[0][h] + k), p2(dst[1][h] + k)))
        b.I("ds_write_b128 v%d, %s offset:1280" % (vAF + 16, vr(vT, 4)))
        b.I("s_mov_b64 exec, 0xfff")
        b.I("ds_write_b128 v%d, %s offset:2304" % (vAF + 16, vr(vT + 8, 4)))
        b.I("s_mov_b64 exec, -1")
        lz = b.I("ds_read_b128 %s, v%d offset:1280" % (vr(vT + 4, 4), vZP))
        lt = [b.I("ds_read_b32 v%d, v%d offset:1280" % (vT + 12 + r, vPOS + r)) for r in range(4)]
        b.I("v_cmp_eq_f32 vcc, 0x42000000, v%d" % (vT + 3))
        b.I("v_cmp_eq_f32 s[%d:%d], v%d, v%d" % (sT, sT + 1, vT + 11, vT + 3))
        b.I("s_and_b64 vcc, vcc, s[%d:%d]" % (sM3, sM3 + 1))
        b.I("s_and_b32 s%d, s%d, 0x888" % (sT, sT))
        b.I("s_xor_b32 s%d, s%d, 0x888" % (sT, sT))
        b.I("s_xor_b64 vcc, vcc, s[%d:%d]" % (sM3, sM3 + 1))
        b.I("s_or_b32 s%d, s%d, vcc_lo" % (sT, sT))
        b.I("s_or_b32 s%d, s%d, vcc_hi" % (sT, sT))
        b.I("s_cbranch_scc0 %s" % ld)
        b.I("s_waitcnt lgkmcnt(0)")
        self.spin_guard(lp)
        b.label(ld)
        self.stamp("kvsync")
        b.wait(lz)
        I("v_cvt_pk_bf16_f32 v%d, v%d, v%d" % (vT + 10, vT + 4, vT + 5))
        I("v_cvt_pk_bf16_f32 v%d, v%d, v%d" % (vT + 11, vT + 6, vT + 7))
        NUM, DEN = vACC, vAF
        for rt in range(4):
            I("v_mfma_f32_16x16x16_bf16 %s, %s, %s, 0" % (vr(DEN + 4 * rt, 4), p2(vT + 10), p2(PQ + 2 * rt)))
        b.wait(lt)
        I("v_cvt_pk_bf16_f32 v%d, v%d, v%d" % (vT + 8, vT + 12, vT + 13))
        I("v_cvt_pk_bf16_f32 v%d, v%d, v%d" % (vT + 9, vT + 14, vT + 15))
        for rt in range(4):
            I("v_mfma_f32_16x16x16_bf16 %s, %s, %s, 0" % (vr(NUM + 4 * rt, 4), p2(vT + 8), p2(PQ + 2 * rt)))
        for rt in range(4):
            I("v_add_f32 v%d, s%d, v%d" % (DEN + 4 * rt, sEPS, DEN + 4 * rt))
        for rt in range(4):
            I("v_rcp_f32 v%d, v%d" % (DEN + 4 * rt, DEN + 4 * rt))
        for rt in range(4):
            for r in (0, 2):
                n_ = NUM + 4 * rt + r
                I("v_pk_mul_f32 %s, %s, %s op_sel_hi:[1,0]" % (p2(n_), p2(n_), p2(DEN + 4 * rt)))
        for rt in range(4):
            for r in (0, 2):
                I("v_cvt_pk_bf16_f32 v%d, v%d, v%d" % (vT + 2 * rt + r // 2, NUM + 4 * rt + r, NUM + 4 * rt + r + 1))
        return self.stores2([self.pair_store(vT + 4 * pr, sT + 6 + pr, 0) for pr in range(2)], layer == 0 or self.sep)

    def park_wq(self):
        b = self.b
        b.I("s_lshl_b32 s%d, s%d, 14" % (sT, sW))
        b.I("s_add_u32 s%d, s%d, 0x%x" % (sT, sT, L_WQ))
        b.I("v_add_u32 v%d, s%d, v%d" % (vWQ, sT, vL16))
        for ks in range(16):
            b.I("ds_write_b128 v%d, %s offset:%d" % (vWQ, slot_r(self.wslot[("qkv", 0, 32 + ks)][0]), ks * 1024))
        b.wait(lg=0)
        for ks in range(16):
            self.w_release(("qkv", 0, 32 + ks))

    def cs1_some(self, n):
        one = vr(vONE, 4)
        k = 0
        while k < n and self.ncs < 16 and all(("w1", 0, 3 * self.ncs + t) in self.wslot and
                                             (self.wslot[("w1", 0, 3 * self.ncs + t)][1] is None or
                                              self.wslot[("w1", 0, 3 * self.ncs + t)][1][1] < self.b.vm_done) for t in range(3)):
            for t in range(3):
                self.mf(vCS1 + 4 * t, slot_r(self.wslot[("w1", 0, 3 * self.ncs + t)][0]), one, "0" if self.ncs == 0 else None)()
            self.ncs += 1
            k += 1

    def n16_items(self, name, layer, nks, hf, seqs):
        items = []
        for ks in range(nks):
            for r in range(2):
                def mfs(fr, ks=ks, r=r):
                    th = [self.mf(vX + 8 * hf + 4 * r, self.w_get((name, layer, ks)), fr)]
                    if hf == 1 and r == 1 and name != "w2":
                        th.append(lambda: self.w_release((name, layer, ks)))
                    return th
                a, off = self.frag_addr(seqs[ks // 2], r, ks & 1)
                items.append((a, off, seqs[ks // 2], mfs))
        return items

    def n16_full(self, name, layer, nks, seqs):
        items = []
        for k0 in range(0, nks, 4):
            for hf in range(2):
                for ks in range(k0, k0 + 4):
                    for r in range(2):
                        rt = 2 * hf + r

                        def mfs(fr, ks=ks, rt=rt):
                            th = [self.mf(vX + 4 * rt, self.w_get((name, layer, ks)), fr)]
                            if rt == 3:
                                th.append(lambda: self.w_release((name, layer, ks)))
                            return th
                        sq = seqs[hf][ks // 2]
                        a, off = self.frag_addr(sq, r, ks & 1)
                        items.append((a, off, sq, mfs))
        return items

    def x_payload(self, idx, hf, wt):
        I = self.b.I
        o = vT + 2 + 4 * hf
        I("s_add_u32 s%d, s%d, s%d" % (sT + 6, sRG64, sSTO))
        I("s_add_u32 s%d, s%d, 0x%x" % (sT + 6, sT + 6, self.buf("X", idx) + hf * 32768))
        for j in range(4):
            I("v_cvt_pk_bf16_f32 v%d, v%d, v%d" % (o + j, vX + 8 * hf + 2 * j, vX + 8 * hf + 2 * j + 1))
        return self.stores2([self.pair_store(o, sT + 6, 0)], wt)

    def x_stats(self, wt):
        I = self.b.I
        I("s_add_u32 s%d, s%d, 8192" % (sT + 8, sSTP))
        s = vAF
        for rt in range(4):
            I("v_pk_add_f32 %s, %s, %s" % (p2(s + 4 * rt), p2(vX + 4 * rt), p2(vX + 4 * rt + 2)))
            I("v_pk_mul_f32 %s, %s, %s" % (p2(s + 4 * rt + 2), p2(vX + 4 * rt), p2(vX + 4 * rt)))
        for rt in range(4):
            I("v_pk_fma_f32 %s, %s, %s, %s" % (p2(s + 4 * rt + 2), p2(vX + 4 * rt + 2), p2(vX + 4 * rt + 2), p2(s + 4 * rt + 2)))
        for rt in range(4):
            I("v_add_f32 v%d, v%d, v%d" % (s + 4 * rt, s + 4 * rt, s + 4 * rt + 1))
            I("v_add_f32 v%d, v%d, v%d" % (s + 4 * rt + 2, s + 4 * rt + 2, s + 4 * rt + 3))
        for hf in range(2):
            q = s + 8 * hf
            I("v_permlane32_swap_b32 v%d, v%d" % (q, q + 4))
            I("v_permlane32_swap_b32 v%d, v%d" % (q + 2, q + 6))
        for hf in range(2):
            q = s + 8 * hf
            I("v_add_f32 v%d, v%d, v%d" % (q, q, q + 4))
            I("v_add_f32 v%d, v%d, v%d" % (q + 2, q + 2, q + 6))
        for hf in range(2):
            I("v_permlane16_swap_b32 v%d, v%d" % (s + 8 * hf, s + 8 * hf + 2))
        for hf in range(2):
            I("v_add_f32 v%d, v%d, v%d" % (s + 8 * hf, s + 8 * hf, s + 8 * hf + 2))
        tk2 = self.stores2(["buffer_store_dword v%d, v%d, %s, s%d offen" % (s + 8 * hf, vL4, self.ws(), (sSTP, sT + 8)[hf])
                            for hf in range(2)], wt)
        return tk2

    def x_half_now(self, idx, hf, wt):
        I = self.b.I
        x = vX + 8 * hf
        o = vT + 2
        s = o + 4
        I("s_add_u32 s%d, s%d, s%d" % (sT + 6, sRG64, sSTO))
        I("s_add_u32 s%d, s%d, 0x%x" % (sT + 6, sT + 6, self.buf("X", idx) + hf * 32768))
        I("s_add_u32 s%d, s%d, %d" % (sT + 7, sSTP, hf * 8192))
        for j in range(4):
            I("v_cvt_pk_bf16_f32 v%d, v%d, v%d" % (o + j, x + 2 * j, x + 2 * j + 1))
        for r in range(2):
            I("v_pk_add_f32 %s, %s, %s" % (p2(s + 4 * r), p2(x + 4 * r), p2(x + 4 * r + 2)))
            I("v_pk_mul_f32 %s, %s, %s" % (p2(s + 4 * r + 2), p2(x + 4 * r), p2(x + 4 * r)))
        tk = self.stores2([self.pair_store(o, sT + 6, 0)], wt)
        for r in range(2):
            I("v_pk_fma_f32 %s, %s, %s, %s" % (p2(s + 4 * r + 2), p2(x + 4 * r + 2), p2(x + 4 * r + 2), p2(s + 4 * r + 2)))
            I("v_add_f32 v%d, v%d, v%d" % (s + 4 * r, s + 4 * r, s + 4 * r + 1))
        for r in range(2):
            I("v_add_f32 v%d, v%d, v%d" % (s + 4 * r + 2, s + 4 * r + 2, s + 4 * r + 3))
        I("v_permlane32_swap_b32 v%d, v%d" % (s, s + 4))
        I("v_permlane32_swap_b32 v%d, v%d" % (s + 2, s + 6))
        I("v_add_f32 v%d, v%d, v%d" % (s, s, s + 4))
        I("v_add_f32 v%d, v%d, v%d" % (s + 2, s + 2, s + 6))
        I("v_permlane16_swap_b32 v%d, v%d" % (s, s + 2))
        I("v_add_f32 v%d, v%d, v%d" % (s, s, s + 2))
        tk += self.stores2(["buffer_store_dword v%d, v%d, %s, s%d offen" % (s, vL4, self.ws(), sT + 7)], wt)
        return self.new_pub(tk)

    def x_half_store(self, idx, hf, wt, delay):
        x = vX + 8 * hf
        o = vT + 1
        o += o & 1
        tk = []
        k, fl = self.new_pub(tk)
        s = o + 4
        e = ["s_add_u32 s%d, s%d, s%d" % (sT + 6, sRG64, sSTO),
             "s_add_u32 s%d, s%d, 0x%x" % (sT + 6, sT + 6, self.buf("X", idx) + hf * 32768),
             "s_add_u32 s%d, s%d, %d" % (sT + 7, sSTP, hf * 8192), 2]
        e += ["v_cvt_pk_bf16_f32 v%d, v%d, v%d" % (o + j, x + 2 * j, x + 2 * j + 1) for j in range(4)]
        for r in range(2):
            e += ["v_add_f32 v%d, v%d, v%d" % (s + 2 * r, x + 4 * r, x + 4 * r + 1),
                  "v_mul_f32 v%d, v%d, v%d" % (s + 2 * r + 1, x + 4 * r, x + 4 * r)]
        e.append(lambda: tk.extend(self.stores2([self.pair_store(o, sT + 6, 0)], wt)))
        for q in (1, 2, 3):
            for r in range(2):
                if q > 1:
                    e.append("v_add_f32 v%d, v%d, v%d" % (s + 2 * r, s + 2 * r, x + 4 * r + q))
                e.append("v_fmac_f32 v%d, v%d, v%d" % (s + 2 * r + 1, x + 4 * r + q, x + 4 * r + q))
        e += [1, "v_permlane32_swap_b32 v%d, v%d" % (s, s + 2), "v_permlane32_swap_b32 v%d, v%d" % (s + 1, s + 3), 1,
              "v_add_f32 v%d, v%d, v%d" % (s, s, s + 2), "v_add_f32 v%d, v%d, v%d" % (s + 1, s + 1, s + 3), 1,
              "v_permlane16_swap_b32 v%d, v%d" % (s, s + 1), 1, "v_add_f32 v%d, v%d, v%d" % (s, s, s + 1),
              lambda: tk.extend(self.stores2(["buffer_store_dword v%d, v%d, %s, s%d offen" % (s, vL4, self.ws(), sT + 7)], wt))]
        if delay is not None:
            e += [delay, fl]
        return k, e, fl

    def out_half_store(self, hf):
        x = vX + 8 * hf
        o = vT + 4 * hf
        e = ["s_add_u32 s%d, s%d, s%d" % (sT + 6, sRG64, sOUT), "s_add_u32 s%d, s%d, %d" % (sT + 6, sT + 6, hf * 32768), 2]
        e += ["v_cvt_pk_bf16_f32 v%d, v%d, v%d" % (o + j, x + 2 * j, x + 2 * j + 1) for j in range(4)]
        e += [1, "v_permlane16_swap_b32 v%d, v%d" % (o, o + 2), "v_permlane16_swap_b32 v%d, v%d" % (o + 1, o + 3),
              "buffer_store_dwordx4 %s, v%d, s[%d:%d], s%d offen%s" % (vr(o, 4), vOA, R_OUT, R_OUT + 3, sT + 6, env("OUTPOL", ""))]
        return e

    def p3_items(self, layer, seqs):
        items = []
        one = vr(vONE, 4)
        NA = env("NA", [8, 0])[layer]
        order = [(ks, rt) for ks in range(NA) for rt in (0, 1)] + [(ks, rt) for ks in range(NA) for rt in (2, 3)]
        NB = env("NB", [0, 6])[layer]
        order += [(ks, rt) for ks in range(NA, 16 - NB) for rt in range(4)]
        order += [(ks, rt) for ks in range(16 - NB, 16) for rt in (0, 1)] + [(ks, rt) for ks in range(16 - NB, 16) for rt in (2, 3)]
        for pos, rt in order:
            c0 = "0" if pos == 0 else None
            ks = self.ksord[layer][pos]
            if True:
                def mfs(fr, ks=ks, rt=rt, c0=c0):
                    th = []
                    for t in range(3):
                        w = self.w_get(("w1", layer, 3 * ks + t))
                        th.append(self.mf(vACC + 24 * (rt >> 1) + 8 * t + 4 * (rt & 1), w, fr, c0))
                        if layer == 0 and rt == 0 and ks >= self.ncs:
                            th.append(self.mf(vCS1 + 4 * t, w, one, c0))
                    if rt == 3:
                        th.append(lambda: [self.w_release(("w1", layer, 3 * ks + t)) for t in range(3)])
                    return th
                sq = seqs[rt >> 1][pos // 2]
                a, off = self.frag_addr(sq, rt & 1, ks & 1)
                items.append((a, off, sq, mfs))
        return items

    def silu(self, layer, hf, mid=None):
        b = self.b
        I = self.I
        for t in range(3):
            b.I("s_add_u32 s%d, s%d, 0x%x" % (sT + 6 + t, sH0 + t, self.buf("H", layer) + hf * (HSZ // 2)))
        sts = []
        for t in range(3):
            A = vACC + 24 * hf + 8 * t
            u = vT + 8 * (t & 1)
            for f in (mid or {}).get(t, []):
                f()
            for j in range(4):
                I("v_pk_mul_f32 %s, %s, %s op_sel:[0,1] op_sel_hi:[1,1]" % (
                    p2(u + 2 * j), p2(vCS1 + 4 * t + 2 * (j & 1)), p2(vAB + 4 * hf + 2 * (j >> 1))))
            for j in range(4):
                I("v_pk_fma_f32 %s, %s, %s, %s op_sel:[0,0,0] op_sel_hi:[1,0,1]" % (
                    p2(A + 2 * j), p2(A + 2 * j), p2(vAB + 4 * hf + 2 * (j >> 1)), p2(u + 2 * j)))
            for k in range(8):
                I("v_exp_f32 v%d, v%d" % (u + k, A + k))
            for j in range(4):
                I("v_pk_fma_f32 %s, %s, %s, %s op_sel:[0,0,0] op_sel_hi:[1,0,0] neg_lo:[0,1,1] neg_hi:[0,1,1]" % (
                    p2(u + 2 * j), p2(u + 2 * j), p2(vK), p2(vK)))
            for k in range(8):
                I("v_rcp_f32 v%d, v%d" % (u + k, u + k))
            for j in range(4):
                I("v_pk_mul_f32 %s, %s, %s" % (p2(A + 2 * j), p2(A + 2 * j), p2(u + 2 * j)))
            for j in range(4):
                I("v_cvt_pk_bf16_f32 v%d, v%d, v%d" % (A + j, A + 2 * j, A + 2 * j + 1))
            sts += self.stores2([self.pair_store(A, sT + 6 + t, 0)], 2 if layer == 1 and hf in env('WTH', []) else layer == 0 or self.sep)
        return sts

    def body(self):
        b = self.b
        self.ksord = [list(range(16)), [4 * p + k for p in (3, 2, 1, 0) for k in range(4)]]
        for layer in range(2):
            self.w_enqueue("wo", layer, F_WO, 16)
            self.w_enqueue("w1", layer, F_W1, 48, [3 * ks + t for ks in self.ksord[layer] for t in range(3)])
            if layer == 0:
                self.w_enqueue("w2", 0, F_W2, 43)
        AF = env("AFIRST", 12)
        G8c = env("G8C", [2, 2, 2, 2])
        G8w = env("G8W", [4, 4])
        G22 = env("G22", [2, 2, 2, 2, 2, 4, 4, 4])
        st = {}
        PA, PB = env("PA", [52, 62]), env("PB", [70, 55])
        self.pace_w = PA[0]
        self.startup()
        xs = None
        for layer in range(2):
            self.pace_w = PA[layer]
            tk = self.attention(layer, xs)
            k_o, fl = self.new_pub(tk)
            self.w_burst(env("W_PUB", [0, 0])[layer])
            fl()
            self.stamp("o_pub")
            self.poll_shadow(k_o, env("NCS", [0, 0])[0] if layer == 0 else 0)
            self.stamp("o_rdy")
            wt = 2 if layer == 1 and env('WTX', 0) else layer == 0 or self.sep
            D16, PW = env("D16", 9), env("PAIRW", True)
            if env("NA", [8, 0])[layer]:
                oa = self.queue_half("O", layer, 0, 8, self.aq)
                ob = self.queue_half("O", layer, 1, 8, self.aq)
                self.a_burst(env("AF2", 10))
                self.bg_w = env("W_P2", [12, 12])[layer]

                def xa_out():
                    st["k_xa"], st["fl_xa"] = self.new_pub(self.x_payload(2 * layer, 0, wt))
                self.gemm(self.n16_items("wo", layer, 16, 0, oa) + self.n16_items("wo", layer, 16, 1, ob),
                          self.split(oa, env("G2A", [2, 2, 4])) + self.split(ob, env("G2B", [4, 4])), D16,
                          {33: [xa_out], 33 + env("D_XA", 20): [lambda: st["fl_xa"]()]}, pairw=PW)
                self.bg_w = 0
                self.stamp("p2")
                tk = self.x_payload(2 * layer, 1, wt)
                k_s, fl_s = self.new_pub(tk + self.x_stats(wt))
                self.stamp("x_pub")
                self.poll_check(st["k_xa"])
                self.stamp("x_rdy")
                poll = lambda: st.update(tok=self.poll_issue())

                def when(k, plan, burst=0):
                    def f():
                        self.poll_check(k() if callable(k) else k, st["tok"])
                        self.aq += plan
                        self.a_burst(burst)
                    return f
                fl_s()
                dso = [k // 2 for k in self.ksord[layer][::4]]
                xa = sum([self.queue_half("X", 2 * layer, 0, 2, self.aq, ds0=d) for d in dso], [])
                pl_s = []
                xb = sum([self.queue_half("X", 2 * layer, 1, 2, pl_s, ds0=d) for d in dso], [])
                xx = (xa, xb)
                sa = self.queue_stats(0, pl_s)
                sb = self.queue_stats(1, pl_s)
                if layer or FT:
                    th = lambda: self.touch_h(layer)
                    th.seq = -1
                    th.prep = []
                    pl_s.append(th)
                self.a_burst(env("AF3", 6))
                self.bg_w = 0
                self.pace_w = PB[layer]
                NA = env("NA", [8, 0])[layer]
                h = NA // 2
                groups = [xa[:2], xa[2:h], xb[:2], xb[2:h], xa[h:] + xb[h:]] if h > 2 else [xa[:2], xb[:2], xa[2:4] + xb[2:4], xa[4:] + xb[4:]]
                hooks, pre, post = {}, {}, {}
                s1a, bba = self.stats_stage1(sa, 0)
                s1b, bbb = self.stats_stage1(sb, 1)
                j = env("H_ST", 1)
                hooks[j] = [poll, lambda: self.w_burst(env("W_P3S", [5, 0])[layer])]
                hooks[j + env("CK3", 6)] = [when(k_s, pl_s, env("BU3", 4)), lambda: setattr(self, "bg_w", 99)]
                hooks[env("H_S1", [28, 24])[layer]] = [lambda: self.side.extend(s1a + s1b)]

            else:
                n0 = self.seq
                oo = self.queue_both("O", layer, 8, self.aq)
                self.a_burst(env("AF2", 10))
                self.bg_w = env("W_P2", [12, 12])[layer]
                self.gemm(self.n16_full("wo", layer, 16, oo), self.split(list(range(n0, n0 + 16)), env("G16", [2, 2, 4, 4, 4])), D16,
                          pairw=PW)
                self.bg_w = 0
                self.stamp("p2")
                tk1 = self.x_payload(2 * layer, 0, wt) + self.x_payload(2 * layer, 1, wt)
                tk2 = self.x_stats(wt)
                k_x, fl_x = self.new_pub(tk1)
                k_s, fl_s = self.new_pub(tk2)
                self.w_burst(env("W_PUB2", [4, 0])[layer])
                fl_x()
                self.stamp("x_pub")
                self.poll_shadow(k_x, env("NCS", [0, 0])[1] if layer == 0 else 0)
                self.stamp("x_rdy")
                poll = lambda: st.update(tok=self.poll_issue())

                def when(k, plan, burst=0):
                    def f():
                        self.poll_check(k() if callable(k) else k, st["tok"])
                        self.aq += plan
                        self.a_burst(burst)
                    return f
                n0 = self.seq
                xx = ([], [])
                for d in [k // 2 for k in self.ksord[layer][::4]]:
                    for hf in range(2):
                        xx[hf].extend(self.queue_half("X", 2 * layer, hf, 2, self.aq, ds0=d))
                hold = self.seq
                pl_s = []
                sa = self.queue_stats(0, pl_s)
                sb = self.queue_stats(1, pl_s)
                self.a_burst(4)
                fl_s()
                self.a_burst(env("AF3F", 8) - 4)
                self.bg_w = env("W_P3E", 0)
                self.pace_w = PB[layer]
                groups = self.split(list(range(n0, n0 + 16)), env("G3", [4, 4, 8]))
                hooks, pre, post = {}, {}, {}
                s1a, bba = self.stats_stage1(sa, 0)
                s1b, bbb = self.stats_stage1(sb, 1)
                j = env("H_STF", 8)
                hooks[j] = [poll, lambda: self.w_burst(env("W_P3S", [5, 0])[layer])]
                hooks[j + 6] = [when(k_s, pl_s), lambda: setattr(self, "bg_w", 99)]
                hooks[j + 18] = [lambda: self.side.extend(s1a + s1b)]
                hooks.setdefault(env("H_TH", 36), []).append(lambda: self.touch_h(layer))

            def exch():
                bba()
                bbb()
                b.I("s_barrier")
                self.side.extend(self.stats_stage2(0, True, False) + self.stats_stage2(1, True, False))
            hooks[env("H_EX", [48, 42])[layer]] = [exch]
            if env("NB", [0, 6])[layer]:
                it3 = self.p3_items(layer, xx)
                NB = env("NB", [0, 6])[layer]
                tail = it3[64 - 2 * NB:]
                lim = min(t[2] for t in tail)
                self.pinned = {lim + 2}
                self.gemm(it3[:64 - 2 * NB], groups, 6, hooks, pre, post, pairw=True)
                self.stamp("p3")
                pl_ha, pl_hb, pl_ya = [], [], []
                ha = self.queue_half("H", layer, 0, 22, pl_ha)
                hb = self.queue_half("H", layer, 1, 22, pl_hb)
                tka = []
                k_ha, fl_ha = self.new_pub(tka)
                hk = {env("H_FLA", 8): [fl_ha]}
                if env("M_PI", 1) < 0:
                    hk.setdefault(2 * NB - 1, []).append(poll)
                j3 = self.gemm_prep(tail, None, 6, hk, pairw=True)
                j3[0]()
                self.bg_w = env("W_SILU", [0, 0])[layer]
                tka += self.silu(layer, 0)
                self.stamp("silu_a")
                self.pinned = set()
                self.bg_w = env("W_P3T", [0, 0])[layer]
                j3[1]()
                self.mine = ha[0] - 1
                self.bg_w = 0
                self.stamp("p3t")
                mid = {}
                mid.setdefault(env("M_PI", 1), []).append(poll)
                mid.setdefault(env("M_PC", 2), []).append(when(k_ha, pl_ha, env("AF4", 4)))
                tkb = self.silu(layer, 1, mid)
                k_hb, fl_hb = self.new_pub(tkb)
                self.stamp("ha_rdy")
                self.a_burst(AF - (self.seq_issued() - ha[0]))
                SPL = 1
            else:
                self.gemm(self.p3_items(layer, xx), groups, 6, hooks, pre, post, pairw=True)
                self.pinned = set()
                self.mine = self.seq - 1
                self.bg_w = env("W_SILU", [0, 0])[layer]
                self.stamp("p3")
                k_ha, fl_ha = self.new_pub(self.silu(layer, 0))
                self.bg_w = 0
                pl_ha, pl_hb, pl_ya = [], [], []
                ha = self.queue_half("H", layer, 0, 22, pl_ha)
                hb = self.queue_half("H", layer, 1, 22, pl_hb)

                def ha_go():
                    self.stamp("silu")
                    self.poll_check(k_ha)
                    self.stamp("ha_rdy")
                    self.aq += pl_ha
                    self.a_burst(env("AF4", 4))
                SPL = env("SPLIT", 0)
                mid = {env("MID", 1): [fl_ha]}
                if SPL:
                    mid.setdefault(2, []).append(ha_go)
                tkb = self.silu(layer, 1, mid)
                k_hb, fl_hb = self.new_pub(tkb)
                if not SPL:
                    ha_go()
                    fl_hb()
                if layer == 1 and "x" in env("CLEAN", ""):
                    for j in range(8):
                        b.I("v_cvt_pk_bf16_f32 v%d, v%d, v%d" % (vT + j, vX + 2 * j, vX + 2 * j + 1))
                    st["cx"] = []
                    for hf in range(2):
                        b.I("s_add_u32 s%d, s%d, s%d" % (sT + 9 + hf, sRG64, sSTO))
                        b.I("s_add_u32 s%d, s%d, 0x%x" % (sT + 9 + hf, sT + 9 + hf, self.buf("X", 2) + hf * 32768))
                        st["cx"] += [self.pair_store(vT + 4 * hf, sT + 9 + hf, 0) + " sc1", 6]
                    self.side += [30] + st["cx"]
                self.a_burst(AF - (self.seq_issued() - ha[0]))
            self.bg_w = sum(1 for k, _ in self.wq if k[0] == "w2") + env("W_P4X", 0)
            self.wmin = env("WMIN4", 20)
            j = env("H_P4A", [24, 34])[layer]
            self.alead = env("ALEAD4", 16)
            self.pace_w = PA[1]
            items = self.n16_items("w2", 0, 43, 0, ha) + self.n16_items("w2", 0, 43, 1, hb)
            groups = self.split(ha, env("G22C", [2, 2, 4, 4, 4, 6])) + self.split(hb, G22)
            hooks = {j: [poll], j + env('CK4', 12): [when(k_hb, pl_hb, env('BU_HB', 4))]}
            if SPL:
                hooks[env("H_FLB", 14)] = [fl_hb]
            pre, post = {}, {}
            if layer == 0:
                sa = self.queue_stats(0, pl_ya)
                ya = self.queue_half("X", 1, 0, 8, pl_ya, rot=True)

                def y_out(hf, delay):
                    def f():
                        self.stamp("p4a" if hf == 0 else "p4b")
                        st["k_y%d" % hf], st["fl_y%d" % hf] = self.x_half_now(1, hf, self.sep)
                        self.pace_w = PA[1]
                        if hf:
                            self.alead = env("ALEAD", 99)
                    return f
                j = 86 + env("H_P4B", 40)
                hooks.update({87: [y_out(0, 0)], 87 + env("D_Y0", 20): [lambda: st["fl_y0"]()],
                              172 + env("D_Y1", 10): [lambda: st["fl_y1"]()], j: [poll], j + env('CK4', 12): [when(lambda: st["k_y0"], pl_ya, env("BU_YA", 6))], 172: [y_out(1, 0)],
                              172 + env("H_P1A", 24): [poll]})
                if env("RFR", 0) and not os.environ.get("NOW"):
                    j = 86 + env("H_RFR", 36)
                    hooks.setdefault(j, []).append(lambda: self.touch_w(F_W1 + 28, 5))
                    hooks.setdefault(j + 4, []).append(lambda: self.touch_w(F_W1 + 8, 5))
                ng = len(groups)
                groups += self.split(ya, env("G8K", [2, 4, 2]))
                self.stats_hooks(sa, 0, False, True, 173, ng + 2, hooks, pre, post)
                items += self.kv_items(0, ya)
            else:
                hooks[85] = [lambda: (self.stamp("p4a"), self.side.extend(self.out_half_store(0)))]
                CL = env("CLEAN", "")

                def clean_h(hf):
                    e = []
                    for t in range(3):
                        e += ["s_add_u32 s%d, s%d, 0x%x" % (sT + 8, sH0 + t, self.buf("H", layer) + hf * (HSZ // 2)),
                              "buffer_store_dwordx4 %s, v%d, %s, s%d offen sc1" % (vr(vACC + 24 * hf + 8 * t, 4), vST, self.ws(), sT + 8), 4]
                    return lambda: self.side.extend(e)
                if "a" in CL:
                    hooks.setdefault(86 + env("H_CLA", 12), []).append(clean_h(0))
                if "b" in CL:
                    hooks.setdefault(86 + env("H_CLB", 60), []).append(clean_h(1))
            self.gemm(items, groups, D16, hooks, pre, post, pairw=PW)
            if layer == 0:
                self.stamp("p1a")
                pl = []
                sb = self.queue_stats(1, pl)
                yb = self.queue_half("X", 1, 1, 8, pl, rot=True)
                pl = pl[2:6] + pl[:2] + pl[6:]
                if env("RFR", 0) > 1 and not os.environ.get("NOW"):
                    th = lambda: self.touch_w(F_WO, 6)
                    th.seq = -1
                    th.prep = []
                    pl.append(th)

                def go():
                    self.poll_check(st["k_y1"], st["tok"])
                    self.stamp("yb_rdy")
                    self.aq += pl
                    self.a_burst(env('AF1', 6))
                self.wmin = WMIN
                self.bg_w = 99
                self.kv_finish(0, go)
                hooks, pre, post = {}, {}, {}
                self.stats_hooks(sb, 1, False, True, 0, 1, hooks, pre, post)
                self.gemm(self.kv_items(1, yb), self.split(yb, env('G1B', [4, 4])), 8, hooks, pre, post, pairw=True)
                self.kv_finish(1)
                self.stamp("p1b")
                xs = [ya, yb]
            else:
                self.stamp("p4b")
                self.side = self.out_half_store(1)
                self.side_flush()
                lx = b.newlabel("Lep")
                b.I("s_or_b32 s%d, s2, s%d" % (sT, sW))
                b.I("s_cbranch_scc1 %s" % lx)
                b.I("s_add_u32 s%d, s%d, 16" % (sT, sEP))
                b.I("v_mov_b32 v%d, s%d" % (vT + 9, sT))
                b.I("s_mov_b32 s%d, 0x%x" % (sT, WS_EP))
                b.I("s_mov_b64 exec, 1")
                self.Inc("buffer_store_dword v%d, off, %s, s%d sc1" % (vT + 9, self.ws(), sT))
                b.I("s_mov_b64 exec, -1")
                b.label(lx)
                self.stamp("end")
        if self.diag:
            b.I("s_lshl_b32 s%d, s2, 2" % sT)
            b.I("s_add_u32 s%d, s%d, s%d" % (sT, sT, sW))
            b.I("s_lshl_b32 s%d, s%d, 8" % (sT, sT))
            b.I("s_add_u32 s%d, s%d, 0x%x" % (sT, sT, WS_STAMP))
            b.I("buffer_store_dword v%d, v%d, %s, s%d offen" % (vSTAMP, vL4, self.ws(), sT))
            if env("RT", 0):
                b.I("s_add_u32 s%d, s%d, 0x40000" % (sT, sT))
                b.I("buffer_store_dword v255, v%d, %s, s%d offen" % (vL4, self.ws(), sT))
        if self.diag and env("PROBE", 0):
            lx, lp = b.newlabel("Lpr"), b.newlabel("Lprl")
            i0, i1 = [61 if n == "entry" else [i for i, m in enumerate(self.stamp_names) if m == n[0]][n[1]] for n in env("PROBE", 0)]
            b.I("s_cmp_lg_u32 s2, %d" % env("PWG", 100))
            b.I("s_cbranch_scc1 %s" % lx)
            b.I("v_readlane_b32 s%d, v%d, %d" % (sT, vSTAMP, i0))
            b.I("v_readlane_b32 s%d, v%d, %d" % (sT + 1, vSTAMP, i1))
            b.I("v_readlane_b32 s%d, v%d, %d" % (sT + 2, vSTAMP, len(self.stamp_names) - 1))
            b.I("s_sub_u32 s%d, s%d, s%d" % (sT + 1, sT + 1, sT))
            b.I("s_mul_i32 s%d, s%d, %d" % (sT + 1, sT + 1, env("PMUL", 1)))
            b.I("s_add_u32 s%d, s%d, 4800" % (sT + 1, sT + 1))
            b.label(lp)
            b.I("s_memtime s[94:95]")
            b.I("s_waitcnt lgkmcnt(0)")
            b.I("s_sub_u32 s%d, s94, s%d" % (sT, sT + 2))
            b.I("s_cmp_lt_u32 s%d, s%d" % (sT, sT + 1))
            b.I("s_cbranch_scc1 %s" % lp)
            b.label(lx)
        b.label("L_end")
        b.I("s_endpgm")
        for t in self.cold:
            b.raw(t)

    def emit(self):
        self.body()
        head = """; @launch grid=(256,1,1) block=(256,1,1) lds=%d
; One persistent launch, one workgroup per CU: 32 row groups (64 rows) x 8 column groups (own generator script).
; kernarg: 0 A_x, 8 A_wqkv, 16 A_wo, 24 B_x (unused), 32 B_w1, 40 B_w2, 48 out, 56 debug (unused), 64 ws.
; Per layer: LN+QKV GEMM (LN folded into the epilogue) -> phi -> per-head kv/z partials, float atomics with in-line arrival
; counters -> o -> o@wo + x -> LN+w1 GEMM + SiLU -> h@w2 + x.  Tiles travel between the 8 workgroups of a row group through ws
; in MFMA-fragment order with tagged flags; stores are write-through unless all 8 report the same XCC id at run time.
.amdgcn_target "amdgcn-amd-amdhsa--gfx950"
.text
.globl %s_kernel
.p2align 8
.type %s_kernel,@function
%s_kernel:
""" % (LDS_BYTES, NAME, NAME, NAME)
        tail = """.section .rodata,"a"
.p2align 6
.amdhsa_kernel %s_kernel
  .amdhsa_next_free_vgpr 512
  .amdhsa_next_free_sgpr 102
  .amdhsa_accum_offset 256
  .amdhsa_group_segment_fixed_size 0
  .amdhsa_kernarg_size 72
  .amdhsa_user_sgpr_count 2
  .amdhsa_user_sgpr_kernarg_segment_ptr 1
  .amdhsa_system_sgpr_workgroup_id_x 1
.end_amdhsa_kernel
""" % NAME
        return head + self.b.text() + tail


if __name__ == "__main__":
    import argparse
    ap = argparse.ArgumentParser()
    ap.add_argument("-o", default="cdna_kernels/%s.s" % NAME)
    ap.add_argument("--diag", action="store_true")
    ap.add_argument("--sep", action="store_true")
    a = ap.parse_args()
    g = Gen(a.diag, a.sep)
    txt = g.emit()
    if a.diag:
        txt = txt.replace(".amdgcn_target", "; stamps: " + ",".join(g.stamp_names) + "\n.amdgcn_target", 1)
    open(a.o, "w").write(txt)
    print("instructions", g.b.nins, "nops", g.b.nops, file=sys.stderr)
```

```python
import sys
import os
sys.path.insert(0, os.path.dirname(os.path.abspath(__file__)))
from asmb import Builder, vr

NAME = "interleave_layers__linear_attn_block__dense_activation_silu__prompt"


def env(name, default):
    v = os.environ.get(name)
    return default if v is None else eval(v)


PKW = 107 * 1024
WS_FL = 0x380000
WS_EP = 0x390000
WS_R2 = 0x398000
WS_KV = 0x480000
NC = env('NC', 2)
KCS = env('KCS', 1344)
KVH = NC * KCS
KVL = 32 * KVH
KB0 = env('KB0', 0)
WS_R3 = 0x3D0000
WS_ST = 0x400000
WS_O = 0x600000
WS_X = 0x800000
WS_H = 0xA00000
HSZ = 22 * 8192
WS_STAMP = 0x3000000
WS_SIZE = 0x3100000 if '--diag' in sys.argv else 0x1000000
OOB = 0x4000000 if '--diag' in sys.argv else 0x1000000
F_WO, F_W1, F_W2 = 0, 16, 64

L_RING = 65536
L_RQ = 106496
L_WQ = 81920
L_PACK = 131072
L_KVI = 147456
L_STA = 157696
L_EX = 158720
NR = env('NR', 8)
NSLOT = 20
LDS_BYTES = 163840

S_X, S_WQ, S_WO, S_W1, S_W2, S_OUT, S_DBG, S_WS = 4, 6, 8, 12, 14, 16, 18, 20
R_X, R_WQ, R_WS, R_OUT, R_PK = 24, 28, 32, 36, 44
sR1, sQ, sTC, sTAG, sEP = 3, 10, 11, 22, 23
sROT, sSTP, sSTC, sW1K = 40, 41, 42, 43
sRG, sC, sW, sFAST, sPK, sKV, sFL, sRG64, sRGH, sSTO = 48, 49, 50, 51, 52, 53, 54, 55, 56, 57
sH0 = 58
sSPIN = 61
sEPS = 62
sOUT = 63
sXS = 64
sRB2, sRO2 = 65, 66
sM1, sM2, sM3, sDIAG = 68, 70, 72, 74
sT = 76
sKB = 88
sPKC, sXCC, sMYF, sW2K, sAB, sAO = 96, 97, 98, 99, 100, 101

vL16, vA1, vKVL, vDMA, vST = 1, 2, 3, 4, 5
vX0, vX1, vOW0, vOW1, vTR, vXS0, vXS1, vWS = 6, 7, 8, 9, 10, 11, 12, 13
vWQ = 13
vSB, vEX, vSWR, vOA = 8, 9, 10, 11
vFL, vL4, vSTAMP, vSTA, vSTQ, vC2 = 14, 15, 16, 17, 18, 19
vX = 20
vCSQ, vCSK, vCSV = 36, 40, 42
vCS1 = 44
vONE = 56
vACC = 60
vAF = 108
NAF = 10
vAB = 148
vT = 156
vPOS = 172
vZP, vSW, vDUM, vTCH, vPOLL, vDM2 = 176, 177, 178, 179, 180, 181
vK = 182
vS1, vS2 = 184, 188
vTQ = 195
vW1 = 192
SLOTS = [("a", 4 * i) for i in range(64)] + [("v", 196 + 4 * i) for i in range(15)]
PACE = env("PACE", 36)
FT = env("FTOUCH", 1)
WMIN = env("WMIN", 10)
AMIN = env("AMIN", 5)
RDSLACK = env("RDSLACK", 2)
SIDEMIN = env("SIDEMIN", 1)
COST = {"mfma": 16, "trans": 8, "ds": 4, "valu": 4, "perm": 4, "dpp": 4, "rdlane": 4, "wrlane": 4, "salu": 2, "vmem": 8}
K_L2E = "op_sel:[0,0] op_sel_hi:[1,0]"


def slot_r(s):
    return vr(s[1], 4, s[0])


def p2(r):
    return "v[%d:%d]" % (r, r + 1)


class Gen:
    def __init__(self, diag=False, sep=False):
        self.b = Builder()
        self.diag = diag
        self.sep = sep
        self.free = list(SLOTS[:-1] if env('RT', 0) else SLOTS)
        self.wq = []
        self.wslot = {}
        self.pk_cur = None
        self.nstamp = 0
        self.stamp_names = []
        self.aq = []
        self.atok = {}
        self.seq = 0
        self.consumed = -1
        self.mine = -1
        self.pub_mine = {}
        self.clock = 0
        self.last_bg = -1000
        self.bg_w = 0
        self.pace_w = 70
        self.in_bg = False
        self.npub = 0
        self.wmin = WMIN
        self.ncs = 0
        self.gstamp = False
        self.vclock = {}
        bI, bw = self.b.I, self.b.wait

        def I2(t):
            tok = bI(t)
            if tok and tok[0] == "vm":
                self.vclock[tok[1]] = self.clock
            return tok

        def w2(*toks, **kw):
            if os.environ.get("SLACK"):
                flat = []
                for t in toks:
                    if t is None:
                        continue
                    flat += t if isinstance(t, list) else [t]
                v = [i for k, i in flat if k == "vm" and i >= self.b.vm_done]
                if v:
                    d = self.clock - self.vclock.get(max(v), 0)
                    if d < int(os.environ["SLACK"]):
                        print("   slack %4d at clock %d (after %s)" % (d, self.clock, self.last_stamp), file=sys.stderr)
            return bw(*toks, **kw)
        self.b.I, self.b.wait = I2, w2
        self.last_stamp = ""
        self.flagged = set()
        self.cold = []
        self.slotted = False
        self.prepped = None
        self.wprep = []
        self.pinned = set()
        self.side = []
        self.side_rate = 2
        self.w_issued = 0
        self.w_need = 0
        self.w_cur = None
        self.w_index = {}
        self.wlead = env('WLEAD', 14)
        self.cur_seq = 0
        self.alead = env('ALEAD', 99)

    def I(self, t):
        tok = self.b.I(t)
        k = self.b.hists[0][-1].kind if self.b.hists and self.b.hists[0] else "salu"
        self.clock += COST.get(k, 4)
        if not self.in_bg and not self.slotted and k in ("mfma", "valu", "trans"):
            c = self.bg_pick()
            if c is not None and c[1]:
                self.bg_emit(c[0], True)
        return tok

    def side_step(self, n):
        self.in_bg = True
        done = 0
        while n > 0 and self.side:
            e = self.side[0]
            if isinstance(e, int):
                if e <= 1:
                    self.side.pop(0)
                else:
                    self.side[0] = e - 1
                break
            self.side.pop(0)
            if isinstance(e, str):
                self.b.I(e)
            else:
                e()
            n -= 1
            done += 1
        self.in_bg = False
        return done

    def side_flush(self):
        while self.side:
            self.side_step(1000)

    def bg_pick(self):
        a_ok = self.aq and self.aq[0].seq - NSLOT <= self.consumed
        w_ok = self.bg_w > 0 and self.wq and self.free
        same = w_ok and self.wq[0][0][:2] == self.w_cur
        el = self.clock - self.last_bg
        if not self.slotted and a_ok:
            return "A", el >= env("PACEV", 60)
        if self.prepped == "A" and a_ok:
            return "A", el >= PACE or self.aq[0].seq - self.cur_seq < AMIN
        if a_ok and getattr(self.aq[0], "urgent", False):
            return "A", True
        if same and self.w_issued - self.w_need < self.wmin:
            return "W", True
        if a_ok and w_ok:
            a_lead = self.aq[0].seq - self.cur_seq
            if a_lead > self.alead or (same and self.w_issued - self.w_need < self.wlead and a_lead > 3):
                a_ok = False
        if a_ok:
            return "A", el >= PACE or self.aq[0].seq - self.cur_seq < AMIN
        if w_ok:
            return "W", el >= self.pace_w
        return None

    def bg_prep_list(self, kind):
        if kind == "A":
            return self.aq[0].prep
        grp = self.wq[0][1] // 4
        if self.pk_cur != grp and not os.environ.get("NOW"):
            self.pk_cur = grp
            self.wprep = ["s_add_u32 s%d, s%d, 0x%x" % (sPKC, sPK, grp * 4096)]
        return self.wprep

    def bg_emit(self, kind, inline):
        self.in_bg = True
        if kind == "A":
            self.a_pop()
        else:
            self.w_issue()
            self.bg_w -= 1
        self.last_bg = self.clock
        self.in_bg = False

    def a_pop(self):
        th = self.aq.pop(0)
        while th.prep:
            self.b.I(th.prep.pop(0))
        th()
        self.prepped = None

    def slot_fill(self, rd_lag, issue_read):
        c = self.bg_pick()
        if c is not None and c[1] and rd_lag <= RDSLACK and not self.bg_prep_list(c[0]):
            self.bg_emit(c[0], False)
            self.clock += 8
            return
        budget = 2
        if rd_lag > 0:
            issue_read()
            budget -= 1
            if rd_lag > 1:
                issue_read()
                budget -= 1
        if c is not None:
            pl = self.bg_prep_list(c[0])
            while budget > 0 and pl:
                self.b.I(pl.pop(0))
                budget -= 1
                if c[0] == "A":
                    self.prepped = "A"
        self.side_step(max(budget, SIDEMIN))

    def Inc(self, t):
        self.b.I(t)
        self.b.vm_issued -= 1

    def stamp(self, name):
        self.last_stamp = name
        if os.environ.get("WLOG"):
            print("%-8s clock %6d  wq left %3d next %s free %d aq %d" % (
                name, self.clock, len(self.wq), self.wq[0][0] if self.wq else None, len(self.free), len(self.aq)), file=sys.stderr)
        if not self.diag:
            return
        b = self.b
        k = self.nstamp
        self.nstamp += 1
        assert k < 62
        b.comment("stamp %d %s" % (k, name))
        b.I("s_memtime s[94:95]")
        b.wait(lg=0)
        b.I("v_writelane_b32 v%d, s94, %d" % (vSTAMP, k))
        if env("RT", 0):
            b.I("s_memrealtime s[94:95]")
            b.wait(lg=0)
            b.I("v_writelane_b32 v255, s94, %d" % k)
        if name in ("start", "end"):
            b.I("s_memrealtime s[94:95]")
            b.wait(lg=0)
            b.I("v_writelane_b32 v%d, s94, %d" % (vSTAMP, 62 if name == "start" else 63))
        self.stamp_names.append(name)

    def buf(self, kind, idx):
        base = {"O": WS_O if self.sep else WS_H, "X": WS_X, "H": WS_H}[kind]
        return base + (idx * 0x1000000 if self.sep else 0)

    def hstride(self, kind):
        return HSZ // 2 if self.rgs(kind) == sRGH else 32768

    def rgs(self, kind):
        return sRGH if kind == "H" or (kind == "O" and not self.sep) else sRG64

    def srd(self, r, ptr, size):
        I = self.b.I
        I("s_mov_b32 s%d, s%d" % (r, ptr))
        I("s_and_b32 s%d, s%d, 0xffff" % (r + 1, ptr + 1))
        I("s_mov_b32 s%d, 0x%x" % (r + 2, size))
        I("s_mov_b32 s%d, 0x20000" % (r + 3))

    def ws(self):
        return "s[%d:%d]" % (R_WS, R_WS + 3)

    def w_enqueue(self, name, layer, f0, n, order=None):
        for i in (range(n) if order is None else order):
            self.w_index[(name, layer, i)] = len(self.w_index)
            self.wq.append(((name, layer, i), f0 + i))

    def w_issue(self):
        key, f = self.wq.pop(0)
        s = self.free.pop(0)
        self.w_issued += 1
        if os.environ.get("NOW"):
            self.wslot[key] = (s, None)
            return
        grp = f // 4
        while self.wprep:
            self.b.I(self.wprep.pop(0))
        if self.pk_cur != grp:
            self.b.I("s_add_u32 s%d, s%d, 0x%x" % (sPKC, sPK, grp * 4096))
            self.pk_cur = grp
        va = vW1 + key[2] % 3 if key[0] == "w1" and env("SKIPW1", 1) else vL16
        if os.environ.get("FAKEW"):
            self.b.I("s_mov_b32 s%d, s%d" % (sPKC, sPK))
        tok = self.b.I("buffer_load_dwordx4 %s, v%d, %s, s%d offen offset:%d sc1%s" % (
            slot_r(s), va, self.ws(), sPKC, (f % 4) * 1024, " nt" if env("NT", lambda k: False)(key) else ""))
        self.wslot[key] = (s, tok)

    def w_burst(self, n):
        k = 0
        while k < n and self.wq and self.free:
            self.w_issue()
            k += 1
        self.last_bg = self.clock

    def w_get(self, key):
        self.w_need = max(self.w_need, self.w_index.get(key, 0))
        self.w_cur = key[:2]
        if key not in self.wslot:
            print("WARNING: late W load", key, file=sys.stderr)
        while key not in self.wslot:
            assert self.wq and self.free, "no free slot for %s" % (key,)
            self.w_issue()
        s, tok = self.wslot[key]
        self.b.wait(tok)
        return slot_r(s)

    def w_release(self, key):
        s, _ = self.wslot.pop(key)
        self.free.append(s)

    def stores2(self, texts, wt=False):
        b = self.b
        if wt == 2 or (wt and not FT):
            return [b.I(t + " sc1") for t in texts]
        ls, lj = b.newlabel("Lslow"), b.newlabel("Ljoin")
        b.I("s_cmp_eq_u32 s%d, 1" % sFAST)
        b.I("s_cbranch_scc0 %s" % ls)
        b.saved.pop(ls)
        toks = [b.I(t) for t in texts]
        b.raw(lj + ":")
        self.cold += [ls + ":"] + ["    " + t + " sc1" for t in texts] + ["    s_branch " + lj]
        return toks

    def pair_store(self, p, sreg, off):
        for k in range(2):
            self.b.I("v_permlane16_swap_b32 v%d, v%d" % (p + k, p + 2 + k))
        return "buffer_store_dwordx4 %s, v%d, %s, s%d offen offset:%d" % (vr(p, 4), vST, self.ws(), sreg, off)

    def spin_guard(self, lab_loop):
        b = self.b
        b.I("s_sub_u32 s%d, s%d, 1" % (sSPIN, sSPIN))
        b.I("s_cmp_lg_u32 s%d, 0" % sSPIN)
        b.I("s_cbranch_scc1 %s" % lab_loop)
        b.I("s_branch L_end")

    def new_pub(self, toks):
        self.npub += 1
        k = self.npub
        self.pub_mine[k] = self.mine

        def flag():
            b = self.b
            b.I("s_add_u32 s%d, s%d, %d" % (sT, sTAG, k))
            b.I("v_mov_b32 v%d, s%d" % (vC2, sT))
            b.wait(toks)
            b.I("s_mov_b64 exec, 1")
            self.stores2(["buffer_store_dword v%d, off, %s, s%d" % (vC2, self.ws(), sMYF)])
            b.I("s_mov_b64 exec, -1")
            self.flagged.add(k)
        return k, flag

    def poll_issue(self):
        return self.b.I("buffer_load_dword v%d, v%d, %s, s%d offen sc1" % (vPOLL, vFL, self.ws(), sFL))

    def poll_shadow(self, k, ncs):
        if not ncs:
            return self.poll_check(k)
        tok = self.poll_issue()
        self.cs1_some(ncs)
        self.poll_check(k, tok)
        self.b.wait(vm=0)

    def poll_check(self, k, tok=None):
        b = self.b
        if k not in self.flagged:
            print("WARNING: side stream late for flag", k, file=sys.stderr)
        while k not in self.flagged:
            assert self.side, "flag %d never raised before its poll" % k
            self.side_step(1)
        lp, ld, lc = b.newlabel("Lpoll"), b.newlabel("Lpd"), b.newlabel("Lpc")
        b.I("s_add_u32 s%d, s%d, %d" % (sT, sTAG, k))
        if tok is None and env("DPOLL", 0):
            ld_ = "buffer_load_dword v%%d, v%d, %s, s%d offen sc1" % (vFL, self.ws(), sFL)
            b.I(ld_ % vPOLL)
            for _ in range(env("DPOLL", 0)):
                b.I("s_nop 15")
            b.label(lp)
            for r0, r1 in ((vPOLL, vT), (vT, vPOLL)):
                self.Inc(ld_ % r1)
                b.I("s_waitcnt vmcnt(1)")
                b.I("v_subrev_u32 v%d, s%d, v%d" % (r0, sT, r0))
                b.I("v_cmp_gt_u32 vcc, %d, v%d" % (16 - k, r0))
                b.I("s_cmp_eq_u64 vcc, exec")
                b.I("s_cbranch_scc1 %s" % ld)
            self.spin_guard(lp)
            b.label(ld)
            b.vm_done = b.vm_issued
            self.consumed = max(self.consumed, self.pub_mine[k])
            return
        if tok is not None:
            b.wait(tok)
            b.I("s_branch %s" % lc)
        b.label(lp)
        self.Inc("buffer_load_dword v%d, v%d, %s, s%d offen sc1" % (vPOLL, vFL, self.ws(), sFL))
        if tok is None:
            b.wait(vm=0)
        else:
            b.I("s_waitcnt vmcnt(0)")
        b.label(lc)
        b.I("v_subrev_u32 v%d, s%d, v%d" % (vPOLL, sT, vPOLL))
        b.I("v_cmp_gt_u32 vcc, %d, v%d" % (16 - k, vPOLL))
        b.I("s_cmp_eq_u64 vcc, exec")
        b.I("s_cbranch_scc1 %s" % ld)
        self.spin_guard(lp)
        b.label(ld)
        self.consumed = max(self.consumed, self.pub_mine[k])

    def queue_stats(self, hf, plan):
        b = self.b
        s0 = self.seq
        assert s0 % 2 == 0
        self.seq += 2
        for j in range(2):
            def th(j=j):
                assert s0 + 1 - NSLOT <= self.consumed
                self.atok.setdefault(s0, []).append(b.I(
                    "buffer_load_dwordx4 v%d, %s, s%d offen offset:%d sc1 lds" % (vL16, self.ws(), sAO, j * 1024)))
            th.seq = s0 + 1
            th.urgent = True
            th.prep = [] if j else ["s_add_u32 m0, s%d, 0x%x" % (sW2K, (s0 % NSLOT) * 4096),
                                    "s_add_u32 s%d, s%d, 0x%x" % (sAO, sSTC, hf * 8192)]
            plan.append(th)
        return s0

    def queue_half(self, kind, idx, hf, nds, plan, rot=False, ds0=0):
        b = self.b
        seqs = []
        base = self.buf(kind, idx) + hf * self.hstride(kind)
        rg = self.rgs(kind)
        assert self.seq % 2 == 0 and nds % 2 == 0
        for ds in range(ds0, ds0 + nds):
            sq = self.seq
            self.seq += 1
            seqs.append(sq)
            s0 = sq & ~1

            def th(sq=sq, s0=s0):
                assert s0 + 1 - NSLOT <= self.consumed, "ring slot busy"
                tk = b.I("buffer_load_dwordx4 v%d, %s, s%d offen offset:%d sc1 lds" % (vDM2, self.ws(), sAO, (sq & 1) * 1024))
                if sq & 1:
                    self.atok[s0] = self.atok[s0 + 1] = [tk]
            th.seq = s0 + 1
            m0 = "s_add_u32 m0, s%d, 0x%x" % (sW2K, (sq % NSLOT) * 4096)
            if sq & 1:
                th.prep = []
            elif not rot:
                th.prep = [m0, "s_add_u32 s%d, s%d, 0x%x" % (sAO, rg, base + ds * 4096)]
            else:
                if ds == 0:
                    th.prep = ["s_add_u32 s%d, s%d, 0x%x" % (sAB, sRB2, base), "s_mov_b32 s%d, s%d" % (sXS, sRO2)]
                else:
                    th.prep = ["s_add_u32 s%d, s%d, 0x2000" % (sXS, sXS), "s_and_b32 s%d, s%d, 0x7fff" % (sXS, sXS)]
                th.prep += [m0, "s_add_u32 s%d, s%d, s%d" % (sAO, sAB, sXS)]
            plan.append(th)
        return seqs

    def queue_both(self, kind, idx, nds, plan):
        out = ([], [])
        for d0 in range(0, nds, 2):
            for hf in range(2):
                out[hf].extend(self.queue_half(kind, idx, hf, 2, plan, ds0=d0))
        return out

    def seq_issued(self):
        return self.aq[0].seq if self.aq else self.seq

    def a_burst(self, n):
        k = 0
        while k < n and self.aq and self.aq[0].seq - NSLOT <= self.consumed:
            self.a_pop()
            k += 1
        self.last_bg = self.clock

    def frag_addr(self, sq, r, h):
        off = (sq % NSLOT) * 4096 + r * 2048 + h * 1024
        return ((vL16, vA1)[off >> 16], off & 0xffff)

    def gemm_prep(self, items, groups=None, depth=8, hooks=None, pre=None, post=None, pairw=False, buf0=0):
        b = self.b
        hooks, pre, post = hooks or {}, pre or {}, post or {}
        n = len(items)
        toks = [None] * n
        grp_of = {}
        for gi, g in enumerate(groups or []):
            for sq in g:
                grp_of[sq] = gi
        opened = set()
        st = {"ip": 0}

        rem = [1 << 30] * (n + 1)
        for k in range(n - 1, -1, -1):
            rem[k] = min(rem[k + 1], items[k][2] if items[k][2] is not None else 1 << 30)

        def reg(k):
            return vr(vAF + 4 * ((k + buf0) % NAF), 4)

        def issue():
            k = st["ip"]
            a, off, sq, _ = items[k]
            if sq in grp_of and grp_of[sq] not in opened:
                gi = grp_of[sq]
                opened.add(gi)
                while any(s not in self.atok for s in groups[gi]):
                    self.a_pop()
                    self.last_bg = self.clock
                for f in pre.get(gi, []):
                    f()
                if self.gstamp:
                    self.stamp("g%d?" % gi)
                b.wait(*[self.atok[s] for s in groups[gi]])
                b.I("s_barrier")
                if self.gstamp:
                    self.stamp("g%d!" % gi)
                self.consumed = max(self.consumed, self.mine)
                for f in post.get(gi, []):
                    f()
            if a == "tr":
                r0 = vAF + 4 * ((k + buf0) % NAF)
                self.I("ds_read_b64_tr_b16 %s, v%d offset:%d" % (p2(r0), vTQ, off))
                toks[k] = self.I("ds_read_b64_tr_b16 %s, v%d offset:%d" % (p2(r0 + 2), vTQ, off + 512))
            else:
                toks[k] = self.I("ds_read_b128 %s, v%d offset:%d" % (reg(k), a, off))
            st["ip"] += 1

        def prestart(m=None):
            while st["ip"] < min(depth if m is None else m, n):
                issue()

        def run():
            prestart()
            self.slotted = True
            for j in range(n):
                thunks = items[j][3](reg(j))
                while st["ip"] <= min(j + (1 if pairw else 0), n - 1):
                    issue()
                if pairw and j % 2 == 0 and j + 1 < st["ip"]:
                    b.wait(toks[j + 1])
                b.wait(toks[j])
                if items[j][2] is not None:
                    self.cur_seq = items[j][2]
                    lim = min(self.pinned) - 3 if self.pinned else 1 << 30
                    self.mine = max(self.mine, min(rem[j] - 1, lim))
                if not thunks and st["ip"] < min(n, j + 1 + depth):
                    issue()
                for th in thunks:
                    n0 = b.nins
                    th()
                    if b.nins > n0:
                        self.slot_fill(min(n, j + 1 + depth) - st["ip"], issue)
                for f in hooks.get(j, []):
                    f()
            self.slotted = False
            self.side_flush()
            sq = [it[2] for it in items if it[2] is not None]
            if sq:
                self.cur_seq = max(sq) + 1
                lim = min(self.pinned) - 3 if self.pinned else 1 << 30
                self.mine = max(self.mine, min(max(sq), lim))
        return prestart, run

    def gemm(self, *a, **k):
        self.gemm_prep(*a, **k)[1]()

    def mf(self, d, a, bb, c=None):
        dd = vr(d, 4)
        cc = dd if c is None else c
        return lambda: self.I("v_mfma_f32_16x16x32_bf16 %s, %s, %s, %s" % (dd, a, bb, cc))

    @staticmethod
    def split(seqs, sizes):
        out, k = [], 0
        for s in sizes:
            out.append(seqs[k:k + s])
            k += s
        assert k == len(seqs)
        return out

    def stats_stage1(self, s0, hf):
        b = self.b
        t = vS1
        tk = {}
        def landed():
            while len(self.atok.get(s0, [])) < 2:
                self.a_pop()
            b.wait(self.atok[s0])
        out = ["v_add_u32 v%d, 0x%x, v%d" % (vT, (s0 % NSLOT) * 4096, vSB), landed]
        for k in range(4):
            out.append(lambda k=k: tk.__setitem__(k, b.I("ds_read2st64_b32 %s, v%d offset0:%d offset1:%d" % (
                p2(t + 2 * k), vT, 2 * k, 2 * k + 1))))
        out += [6, lambda: b.wait(tk[3])]
        out += ["v_add_f32 v%d, v%d, v%d" % (t + k, t + k, t + 4 + k) for k in range(4)]
        out += ["v_add_f32 v%d, v%d, v%d" % (t + k, t + k, t + 2 + k) for k in range(2)]
        out += ["v_add_f32 v%d, v%d, v%d" % (t, t, t + 1)]
        out.append(lambda: tk.__setitem__("w", b.I("ds_write_b32 v%d, v%d offset:%d" % (vSW, t, hf * 1024))))

        def before_barrier():
            self.side_flush()
            b.wait(tk["w"])
        return out, before_barrier

    def stats_stage2(self, hf, scale, kv):
        b = self.b
        t = vS1
        tk = {}
        out = []
        for k in range(2):
            out.append(lambda k=k: tk.__setitem__(k, b.I("ds_read2st64_b32 %s, v%d offset0:%d offset1:%d" % (
                p2(t + 2 * k), vEX, hf * 4 + 2 * k, hf * 4 + 2 * k + 1))))
        a0, b0, a1, b1 = [vAB + 4 * hf + k for k in range(4)]
        out += [6, lambda: b.wait(tk[1]),
                "v_add_f32 v%d, v%d, v%d" % (t, t, t + 2), "v_add_f32 v%d, v%d, v%d" % (t + 1, t + 1, t + 3),
                "v_add_f32 v%d, v%d, v%d" % (t, t, t + 1), "v_mul_f32 v%d, 0x3b000000, v%d" % (t, t),
                "v_mov_b32 v%d, v%d" % (t + 1, t), 1,
                "v_permlane16_swap_b32 v%d, v%d" % (t, t + 1), 1,
                "v_fma_f32 v%d, -v%d, v%d, v%d" % (t + 1, t, t, t + 1), "v_max_f32 v%d, 0, v%d" % (t + 1, t + 1),
                "v_add_f32 v%d, 0x3727c5ac, v%d" % (t + 1, t + 1), "v_rsq_f32 v%d, v%d" % (a0, t + 1), 1]
        if scale:
            out.append("v_mul_f32_e64 v%d, -v%d, v%d" % (a0, a0, vK))
        out.append("v_mul_f32_e64 v%d, -v%d, v%d" % (b0, t, a0))
        if kv:
            def wr():
                b.I("s_mov_b32 exec_lo, 0xffff")
                b.I("s_mov_b32 exec_hi, 0xffff")
                b.I("ds_write_b32 v%d, v%d" % (vSWR, a0))
                b.I("ds_write_b32 v%d, v%d offset:128" % (vSWR, b0))
                b.I("s_mov_b64 exec, -1")
            out.append(wr)
        out += ["v_mov_b32 v%d, v%d" % (a1, a0), "v_mov_b32 v%d, v%d" % (b1, b0), 1,
                "v_permlane32_swap_b32 v%d, v%d" % (a0, a1), "v_permlane32_swap_b32 v%d, v%d" % (b0, b1)]
        return out

    def stats_hooks(self, s0, hf, scale, kv, j1, gi, hooks, pre, post):
        s1, bb = self.stats_stage1(s0, hf)
        hooks.setdefault(j1, []).append(lambda: self.side.extend(s1))
        pre.setdefault(gi, []).append(bb)
        post.setdefault(gi, []).append(lambda: self.side.extend(self.stats_stage2(hf, scale, kv)))

    def stats_startup(self):
        b = self.b
        I = b.I
        t = vT
        I("v_mul_f32 v%d, 0x3b000000, v%d" % (t + 1, vS1))
        I("v_cndmask_b32 v%d, v%d, v%d, s[%d:%d]" % (t, vS2, vS2 + 1, sM1, sM1 + 1))
        I("v_cndmask_b32 v%d, v%d, v%d, s[%d:%d]" % (t, t, vS2 + 2, sM2, sM2 + 1))
        I("v_cndmask_b32 v%d, v%d, v%d, s[%d:%d]" % (t, t, vS2 + 3, sM3, sM3 + 1))
        I("v_mul_f32 v%d, 0x3b000000, v%d" % (t, t))
        I("v_fma_f32 v%d, -v%d, v%d, v%d" % (t, t + 1, t + 1, t))
        I("v_max_f32 v%d, 0, v%d" % (t, t))
        I("v_add_f32 v%d, 0x3727c5ac, v%d" % (t, t))
        I("v_rsq_f32 v%d, v%d" % (t + 2, t))
        I("v_lshlrev_b32 v%d, 1, v%d" % (t + 4, vSW))
        I("v_mul_f32_e64 v%d, -v%d, v%d" % (t + 3, t + 1, t + 2))
        I("v_subrev_u32 v%d, 0x%x, v%d" % (t + 4, L_STA - 512, t + 4))
        I("s_mov_b64 exec, s[%d:%d]" % (sDIAG, sDIAG + 1))
        I("ds_write_b32 v%d, v%d" % (vSW, t + 2))
        I("ds_write_b32 v%d, v%d offset:256" % (vSW, t + 3))
        I("ds_write_b64 v%d, v[%d:%d]" % (t + 4, t + 2, t + 3))
        I("s_mov_b64 exec, -1")
        b.wait(lg=0)
        I("s_barrier")

    def phi_pairs(self, pairs):
        I = self.I
        for c0 in range(0, len(pairs), 4):
            grp = pairs[c0:c0 + 4]
            for k, (t, d) in enumerate(grp):
                I("v_pk_mul_f32 %s, %s, %s %s" % (p2(vT + 2 * k), p2(t), p2(vK), K_L2E))
            for k, (t, d) in enumerate(grp):
                I("v_exp_f32_e64 v%d, v%d clamp" % (vT + 2 * k, vT + 2 * k))
                I("v_max_f32 v%d, v%d, v%d" % (t, vK + 1, t))
                I("v_exp_f32_e64 v%d, v%d clamp" % (vT + 2 * k + 1, vT + 2 * k + 1))
                I("v_max_f32 v%d, v%d, v%d" % (t + 1, vK + 1, t + 1))
            for k, (t, d) in enumerate(grp):
                I("v_pk_add_f32 %s, %s, %s" % (p2(t), p2(t), p2(vT + 2 * k)))
            for k, (t, d) in enumerate(grp):
                I("v_cvt_pk_bf16_f32 v%d, v%d, v%d" % (d, t, t + 1))

    def kv_epilogue(self, hf, ra, rb):
        I = self.I
        K, V = vACC + 8 * hf, vACC + 16 + 8 * hf
        for j in range(4):
            I("v_pk_fma_f32 %s, %s, %s, %s op_sel:[0,0,1] op_sel_hi:[1,1,1]" % (p2(vT + 2 * j), p2(rb + 2 * j), p2(vCSK), p2(vK)))
            I("v_pk_mul_f32 %s, %s, %s" % (p2(vT + 8 + 2 * j), p2(rb + 2 * j), p2(vCSV)))
        for j in range(4):
            I("v_pk_fma_f32 %s, %s, %s, %s" % (p2(K + 2 * j), p2(ra + 2 * j), p2(K + 2 * j), p2(vT + 2 * j)))
            I("v_pk_fma_f32 %s, %s, %s, %s" % (p2(V + 2 * j), p2(ra + 2 * j), p2(V + 2 * j), p2(vT + 8 + 2 * j)))
        for j in range(4):
            I("v_cvt_pk_bf16_f32 v%d, v%d, v%d" % (V + j, V + 2 * j, V + 2 * j + 1))
        self.phi_pairs([(K + 2 * j, K + j) for j in range(4)])

    def startup(self):
        b = self.b
        I = b.I
        i_, g_, l3, l7, q0, tc = vT + 2, vT + 3, vT + 6, vT + 7, vT + 8, vT + 9
        if self.diag:
            I("s_memtime s[92:93]")
        I("s_cmp_ge_u32 s2, 256")
        I("s_cbranch_scc1 L_end")
        I("s_load_dwordx4 s[4:7], s[0:1], 0")
        I("s_load_dwordx2 s[20:21], s[0:1], 64")
        I("s_load_dwordx2 s[8:9], s[0:1], 16")
        I("s_load_dwordx4 s[12:15], s[0:1], 32")
        I("s_load_dwordx4 s[16:19], s[0:1], 48")
        I("s_getpc_b64 s[90:91]")
        b.label("L_pc")
        I("v_lshrrev_b32 v%d, 6, v0" % vT)
        I("v_and_b32 v0, 63, v0")
        I("v_readfirstlane_b32 s%d, v%d" % (sW, vT))
        I("s_lshr_b32 s%d, s2, 3" % (sT + 1))
        I("s_lshl_b32 s%d, s%d, 2" % (sT + 3, sT + 1))
        I("s_add_u32 s%d, s%d, s%d" % (sT + 3, sT + 3, sW))
        I("s_and_b32 s%d, s%d, 31" % (sT, sT + 3))
        I("s_lshl_b32 s%d, s%d, 11" % (sT, sT))
        I("v_lshlrev_b32 v%d, 7, v0" % vTCH)
        I("v_add_u32 v%d, s%d, v%d" % (vT, sT, vTCH))
        I("v_min_u32 v%d, L_end-L_pc, v%d" % (vT, vT))
        I("s_mov_b64 exec, 0xffff")
        I("global_load_dword v%d, v%d, s[90:91]" % (vDUM, vT))
        I("s_mov_b64 exec, -1")
        I("s_and_b32 s%d, s2, 7" % sROT)
        I("s_and_b32 s%d, s%d, 7" % (sC, sT + 1))
        I("s_lshr_b32 s%d, s%d, 3" % (sQ, sT + 1))
        I("s_lshl_b32 s%d, s%d, 2" % (sT, sROT))
        I("s_add_u32 s%d, s%d, s%d" % (sRG, sT, sQ))
        I("s_lshl_b32 s%d, s%d, 16" % (sRG64, sRG))
        I("s_lshl_b32 s%d, s%d, 11" % (sW2K, sW))
        I("v_lshrrev_b32 v%d, 4, v0" % g_)
        I("v_and_b32 v%d, 15, v0" % i_)
        tw, tx = vT + 12, vT + 13
        I("s_mul_i32 s%d, s%d, %d" % (sT + 2, sT + 3, 4 * 3072))
        I("v_lshlrev_b32 v%d, 10, v0" % tx)
        I("v_add_u32 v%d, s%d, v%d" % (tw, sT + 2, tx))
        I("s_lshl_b32 s%d, s%d, 18" % (sT + 2, sROT))
        I("s_lshl_b32 s%d, s%d, 11" % (sT, sT + 3))
        I("s_add_u32 s%d, s%d, s%d" % (sT, sT, sT + 2))
        I("v_add_u32 v%d, s%d, v%d" % (tx, sT, tx))
        I("v_lshrrev_b32 v%d, 3, v0" % l3)
        I("v_and_b32 v%d, 7, v0" % l7)
        I("v_xor_b32 v%d, v%d, v%d" % (vT + 4, l7, g_))
        I("v_lshlrev_b32 v%d, 4, v%d" % (vT + 4, vT + 4))
        I("v_lshl_add_u32 v%d, v%d, 10, v%d" % (vT + 4, l3, vT + 4))
        I("s_lshl_b32 s%d, s%d, 14" % (sT + 1, sW))
        I("v_add_u32 v%d, s%d, v%d" % (vXS0, sT + 1, vT + 4))
        I("v_xor_b32 v%d, 64, v%d" % (vXS1, vXS0))
        I("v_add_u32 v%d, 7168, v%d" % (vXS1, vXS1))
        I("v_and_b32 v%d, 1, v%d" % (vT + 4, g_))
        I("v_lshlrev_b32 v%d, 1, v%d" % (vT + 4, vT + 4))
        I("v_xor_b32 v%d, v%d, v%d" % (q0, l7, vT + 4))
        I("v_lshlrev_b32 v%d, 4, v%d" % (q0, q0))
        I("s_and_b32 s%d, s%d, 1" % (sT + 1, sW))
        I("s_lshl_b32 s%d, s%d, 6" % (sT + 1, sT + 1))
        I("v_xor_b32 v%d, s%d, v%d" % (vT + 4, sT + 1, q0))
        I("s_lshl_b32 s%d, s%d, 3" % (sT + 1, sW))
        I("v_add_u32 v%d, s%d, v%d" % (vT + 5, sT + 1, l3))
        I("v_mul_u32_u24 v%d, 3072, v%d" % (vT + 5, vT + 5))
        I("v_add_u32 v%d, v%d, v%d" % (vWS, vT + 4, vT + 5))
        sXO, sWO_, sRB = sAB, sAO, 93
        I("s_lshl_b32 s%d, s%d, 7" % (sWO_, sC))
        I("v_add_u32 v%d, s%d, v%d" % (vWS, sWO_, vWS))
        if self.diag:
            b.wait(lg=0)
            I("s_mov_b32 s91, s92")
        I("s_add_u32 s%d, s%d, 0x%x" % (sRB, sW2K, L_RING - 1024))
        I("s_lshl_b32 s%d, s%d, 7" % (sXO, sROT))
        I("s_mul_i32 s%d, s%d, %d" % (sWO_, sROT, 64 * 3072))
        if self.diag:
            I("v_mov_b32 v%d, 0" % vSTAMP)
        b.wait(lg=0)
        if self.diag:
            I("v_writelane_b32 v%d, s91, 61" % vSTAMP)
        self.stamp("start")
        I("s_add_u32 s88, s%d, 0x%x" % (S_WS, WS_EP))
        I("s_addc_u32 s89, s%d, 0" % (S_WS + 1))
        I("s_load_dword s%d, s[88:89], 0" % sEP)
        self.srd(R_WQ, S_WQ, 512 * 3072)
        I("s_add_u32 s%d, s%d, s%d" % (R_X, S_X, sRG64))
        I("s_addc_u32 s%d, s%d, 0" % (R_X + 1, S_X + 1))
        I("s_and_b32 s%d, s%d, 0xffff" % (R_X + 1, R_X + 1))
        I("s_mov_b32 s%d, 0x10000" % (R_X + 2))
        I("s_mov_b32 s%d, 0x20000" % (R_X + 3))
        tokA, tokW = {}, {}

        def issue_thunks(ks):
            th = []
            if ks % 2 == 0:
                ds = ks // 2
                tokA[ds] = []
                pre = ["s_add_u32 m0, s%d, 0x%x" % (sW2K, ds * 8192)]
                if ds:
                    pre += ["s_add_u32 s%d, s%d, 128" % (sXO, sXO), "s_and_b32 s%d, s%d, 0x380" % (sXO, sXO)]
                th.append((pre, lambda: tokA[ds].append(
                    I("buffer_load_dwordx4 v%d, s[%d:%d], s%d offen lds" % (vXS0, R_X, R_X + 3, sXO)))))
                th.append(([], lambda: tokA[ds].append(
                    I("buffer_load_dwordx4 v%d, s[%d:%d], s%d offen offset:1024 lds" % (vXS1, R_X, R_X + 3, sXO)))))
            tokW[ks] = []
            for p in range(2):
                pre = []
                if p == 0:
                    if ks:
                        pre.append("s_add_u32 s%d, s%d, %d" % (sWO_, sWO_, 32 * 3072))
                        if ks % 2 == 0:
                            pre += ["s_cmp_eq_u32 s%d, %d" % (sWO_, 512 * 3072), "s_cselect_b32 s%d, 0, s%d" % (sWO_, sWO_)]
                    pre.append("s_add_u32 m0, s%d, 0x%x" % (sRB, (ks % NR) * 8192))
                th.append((pre, lambda p=p: tokW[ks].append(I("buffer_load_dwordx4 v%d, s[%d:%d], s%d offen offset:%d lds" % (
                    vWS, R_WQ, R_WQ + 3, sWO_, (p + 1) * 1024)))))
            return th

        tokQ = []

        def rq_base(ks):
            return L_PACK + ks * 4096 if ks < 4 else L_WQ + (ks - 4) * 4096

        def q_thunk(ks):
            pre = ["s_add_u32 s%d, s%d, %d" % (sWO_, sWO_, 32 * 3072)]
            if ks % 2 == 0:
                pre += ["s_cmp_eq_u32 s%d, %d" % (sWO_, 512 * 3072), "s_cselect_b32 s%d, 0, s%d" % (sWO_, sWO_)]
            pre.append("s_add_u32 m0, s%d, 0x%x" % (sW1K, rq_base(ks)))
            return (pre, lambda: tokQ.append(I("buffer_load_dwordx4 v%d, s[%d:%d], s%d offen lds" % (vWS, R_WQ, R_WQ + 3, sWO_))))
        self.tokQ, self.rq_base = tokQ, rq_base

        def issue_now(ks):
            for pre, th in issue_thunks(ks):
                for t in pre:
                    I(t)
                th()

        if env("T0", 1):
            self.srd(R_PK, S_X, 2048 * 1024)
            if env("XT", 1):
                I("v_lshrrev_b32 v%d, 3, v%d" % (vT + 4, tx))
                I("v_lshlrev_b32 v%d, 10, v0" % (vT + 4))
                I("v_sub_u32 v%d, v%d, v%d" % (tx, tx, vT + 4))
                I("v_add_u32 v%d, v%d, v%d" % (tx, tx, vTCH))
            for ptr, srd, v, mask in ((S_WQ, R_WQ, tw, 0xdb6 if env('TQ', -1) >= 0 else 0xfff), (S_X, R_PK, tx, 0xffff if env("XT", 1) else 3)):
                I("s_sub_u32 s%d, 0x180, s%d" % (sT, ptr))
                I("s_and_b32 s%d, s%d, 0x%x" % (sT, sT, 0 if env("XT", 1) and ptr == S_X else 0x380))
                I("s_mov_b64 exec, 0x%x" % mask)
                I("buffer_load_dword v%d, v%d, s[%d:%d], s%d offen" % (vDUM, v, srd, srd + 3, sT))
            I("s_mov_b64 exec, -1")
        NFIRST = env("NFIRST", 4)
        for ks in range(NFIRST):
            issue_now(ks)
        self.stamp("first")
        I("s_getreg_b32 s%d, hwreg(HW_REG_XCC_ID, 0, 4)" % sXCC)
        I("s_mov_b32 s%d, 0x100000" % sSPIN)
        self.srd(R_WS, S_WS, WS_SIZE)
        self.srd(R_OUT, S_OUT, 2048 * 1024)
        I("v_lshlrev_b32 v%d, 4, v0" % vL16)
        I("v_lshlrev_b32 v%d, 2, v0" % vL4)
        I("s_lshl_b32 s%d, s%d, 10" % (sW1K, sW))
        I("s_lshl_b32 s%d, s%d, 2" % (sT, sC))
        I("s_add_u32 s%d, s%d, s%d" % (sT, sT, sW))
        I("s_mul_i32 s%d, s%d, %d" % (sKV, sT, KVH))
        I("s_add_u32 s%d, s%d, 0x%x" % (sKV, sKV, WS_KV + KB0))
        I("v_mov_b32 v%d, 0" % vC2)
        I("s_and_b32 s%d, s%d, 15" % (sT + 1, sRG))
        I("s_mul_i32 s%d, s%d, %d" % (sT + 1, sT + 1, KVH // 16))
        I("s_add_u32 s%d, s%d, s%d" % (sT + 1, sT + 1, sKV))
        I("s_lshr_b32 s%d, s%d, 4" % (sT + 2, sRG))
        I("s_mul_i32 s%d, s%d, %d" % (sT + 2, sT + 2, KVL))
        I("s_add_u32 s%d, s%d, s%d" % (sT + 1, sT + 1, sT + 2))
        I("v_mov_b32 v%d, 0" % vPOLL)
        I("v_mov_b32 v%d, 0" % (vPOLL + 1))
        I("v_lshlrev_b32 v%d, 3, v0" % (vT + 4))
        assert KVH % 128 == 0 and KVH // 128 <= 64
        mask = (1 << (KVH // 128)) - 1
        I("s_mov_b32 exec_lo, 0x%x" % (mask & 0xffffffff))
        I("s_mov_b32 exec_hi, 0x%x" % (mask >> 32))
        ztok = I("buffer_store_dwordx2 %s, v%d, %s, s%d offen sc1" % (p2(vPOLL), vT + 4, self.ws(), sT + 1))
        I("s_mov_b64 exec, -1")
        I("s_mul_i32 s%d, s%d, %d" % (sPK, sT, PKW))
        I("s_lshl_b32 s%d, s%d, 7" % (sFL, sRG))
        I("s_lshl_b32 s%d, s%d, 12" % (sR1, sC))
        I("s_add_u32 s%d, s%d, 0x%x" % (sR1, sR1, WS_R2))
        I("s_add_u32 s%d, s%d, 0x%x" % (sFL, sFL, WS_FL))
        I("s_lshl_b32 s%d, s%d, 2" % (sMYF, sT))
        I("s_add_u32 s%d, s%d, s%d" % (sMYF, sMYF, sFL))
        I("s_lshl_b32 s%d, s%d, 14" % (sSTC, sRG))
        I("s_add_u32 s%d, s%d, 0x%x" % (sSTC, sSTC, WS_ST))
        I("s_lshl_b32 s%d, s%d, 8" % (sSTP, sT))
        I("s_add_u32 s%d, s%d, s%d" % (sSTP, sSTP, sSTC))
        I("s_add_u32 s%d, s%d, s%d" % (sSTC, sSTC, sW2K))
        I("s_mul_i32 s%d, s%d, %d" % (sRGH, sRG, HSZ))
        I("s_lshl_b32 s%d, s%d, 12" % (sSTO, sC))
        I("s_lshl_b32 s%d, s%d, 9" % (sT + 1, sW))
        I("s_add_u32 s%d, s%d, s%d" % (sSTO, sSTO, sT + 1))
        I("s_lshl_b32 s%d, s%d, 5" % (sOUT, sT))
        I("s_mul_i32 s%d, s%d, 3" % (sT, sT))
        for t in range(3):
            I("s_add_u32 s%d, s%d, %d" % (sT + 1, sT, t))
            I("s_lshr_b32 s%d, s%d, 2" % (sT + 2, sT + 1))
            I("s_lshl_b32 s%d, s%d, 12" % (sT + 2, sT + 2))
            I("s_and_b32 s%d, s%d, 3" % (sT + 3, sT + 1))
            I("s_lshl_b32 s%d, s%d, 9" % (sT + 3, sT + 3))
            I("s_add_u32 s%d, s%d, s%d" % (sT + 2, sT + 2, sT + 3))
            I("s_add_u32 s%d, s%d, s%d" % (sT + 2, sT + 2, sRGH))
            I("s_cmp_lt_u32 s%d, 86" % (sT + 1))
            I("s_cselect_b32 s%d, s%d, 0x%x" % (sH0 + t, sT + 2, OOB))
            I("s_cselect_b32 s%d, 0, 0x%x" % (sT + 2, OOB))
            I("v_add_u32 v%d, s%d, v%d" % (vW1 + t, sT + 2, vL16))
        I("v_add_u32 v%d, 0x10000, v%d" % (vA1, vL16))
        I("v_add_u32 v%d, s%d, v%d" % (vDMA, sW1K, vL16))
        I("v_add_u32 v%d, s%d, v%d" % (vDM2, sW2K, vL16))
        I("s_lshr_b32 s%d, s%d, 1" % (sT + 1, sW))
        I("s_add_u32 s%d, s%d, s%d" % (sRO2, sROT, sT + 1))
        I("s_and_b32 s%d, s%d, 7" % (sRO2, sRO2))
        I("s_lshl_b32 s%d, s%d, 12" % (sRO2, sRO2))
        I("s_lshl_b32 s%d, s%d, 12" % (sT + 1, sT + 1))
        I("s_sub_u32 s%d, s%d, s%d" % (sRB2, sRG64, sT + 1))
        I("v_and_b32 v%d, 0x7c, v%d" % (vFL, vL4))
        I("v_lshrrev_b32 v%d, 1, v%d" % (vT + 4, g_))
        I("v_lshlrev_b32 v%d, 8, v%d" % (vT + 4, vT + 4))
        I("v_lshl_add_u32 v%d, v%d, 4, v%d" % (vT + 4, i_, vT + 4))
        I("v_and_b32 v%d, 1, v%d" % (vT + 5, g_))
        I("v_lshl_add_u32 v%d, v%d, 11, v%d" % (vST, vT + 5, vT + 4))
        I("v_lshlrev_b32 v%d, 4, v%d" % (vSTA, g_))
        I("v_add_u32 v%d, 0x%x, v%d" % (vSTA, L_STA, vSTA))
        I("v_lshlrev_b32 v%d, 3, v%d" % (vSTQ, i_))
        I("v_add_u32 v%d, 0x%x, v%d" % (vSTQ, L_STA + 512, vSTQ))
        I("s_lshl_b32 s%d, s%d, 6" % (sT, sW))
        I("s_add_u32 s%d, s%d, 0x%x" % (sT, sT, L_STA))
        I("v_lshlrev_b32 v%d, 2, v%d" % (vSW, i_))
        I("v_add_u32 v%d, s%d, v%d" % (vSW, sT, vSW))
        I("v_lshrrev_b32 v%d, 3, v%d" % (vT + 4, i_))
        I("v_lshlrev_b32 v%d, 10, v%d" % (vT + 4, vT + 4))
        I("v_and_b32 v%d, 7, v%d" % (vT + 5, i_))
        I("v_lshl_add_u32 v%d, v%d, 7, v%d" % (vT + 4, vT + 5, vT + 4))
        I("v_lshrrev_b32 v%d, 1, v%d" % (vT + 5, i_))
        I("v_xor_b32 v%d, v%d, v%d" % (vT + 5, vT + 5, g_))
        I("v_lshl_add_u32 v%d, v%d, 4, v%d" % (vX0, vT + 5, vT + 4))
        I("v_xor_b32 v%d, 64, v%d" % (vX1, vX0))
        I("v_add_u32 v%d, s%d, v%d" % (vOW0, sW2K, vX0))
        I("v_add_u32 v%d, s%d, v%d" % (vOW1, sW2K, vX1))
        I("v_bfe_u32 v%d, v0, 2, 2" % (vT + 4))
        I("v_bfe_u32 v%d, v0, 3, 1" % (vT + 5))
        I("v_lshlrev_b32 v%d, 1, v%d" % (vT + 5, vT + 5))
        I("v_bfe_u32 v%d, v0, 4, 1" % (vT + 10))
        I("v_lshl_add_u32 v%d, v%d, 2, v%d" % (vT + 5, vT + 10, vT + 5))
        I("v_bfe_u32 v%d, v0, 1, 1" % (vT + 10))
        I("v_xor_b32 v%d, v%d, v%d" % (vT + 5, vT + 5, vT + 10))
        I("v_lshlrev_b32 v%d, 4, v%d" % (vT + 5, vT + 5))
        I("v_lshl_add_u32 v%d, v%d, 7, v%d" % (tc, vT + 4, vT + 5))
        I("v_and_b32 v%d, 1, v0" % (vT + 10))
        I("v_lshl_add_u32 v%d, v%d, 3, v%d" % (tc, vT + 10, tc))
        I("s_lshl_b32 s%d, s%d, 5" % (sT + 1, sW))
        I("v_xor_b32 v%d, s%d, v%d" % (vT + 4, sT + 1, tc))
        I("v_lshl_add_u32 v%d, v%d, 10, v%d" % (vTQ, g_, vT + 4))
        I("v_add_u32 v%d, 0x%x, v%d" % (vTQ, L_WQ, vTQ))
        I("v_lshl_add_u32 v%d, v%d, 11, v%d" % (vT + 4, g_, vT + 4))
        I("v_add_u32 v%d, 0x%x, v%d" % (vTR, L_RING, vT + 4))
        for k in range(4):
            I("v_mov_b32 v%d, 0x3f803f80" % (vONE + k))
        I("v_mov_b32 v%d, 0x3fb8aa3b" % vK)
        I("v_mov_b32 v%d, 0x358637bd" % (vK + 1))
        I("s_mul_i32 s%d, s%d, 2560" % (sT, sW))
        I("s_add_u32 s%d, s%d, 0x%x" % (sT, sT, L_KVI))
        I("v_add_u32 v%d, s%d, v%d" % (vKVL, sT, vL4))
        for r in range(4):
            I("v_add_u32 v%d, %d, v0" % (vT + 4, 64 * r))
            I("v_mul_u32_u24 v%d, 4370, v%d" % (vT + 5, vT + 4))
            I("v_lshrrev_b32 v%d, 16, v%d" % (vT + 5, vT + 5))
            I("v_add_u32 v%d, v%d, v%d" % (vT + 4, vT + 4, vT + 5))
            I("v_lshlrev_b32 v%d, 2, v%d" % (vT + 4, vT + 4))
            I("v_add_u32 v%d, s%d, v%d" % (vPOS + r, sT, vT + 4))
        I("v_lshrrev_b32 v%d, 1, v%d" % (vT + 4, g_))
        I("v_add_u32 v%d, v%d, v%d" % (vT + 4, vT + 4, g_))
        I("v_lshlrev_b32 v%d, 4, v%d" % (vT + 4, vT + 4))
        I("s_add_u32 s%d, s%d, %d" % (sT, sT, 276 * 4))
        I("v_add_u32 v%d, s%d, v%d" % (vZP, sT, vT + 4))
        I("v_cmp_eq_u32 vcc, 15, v%d" % i_)
        I("v_cndmask_b32 v%d, 0, 1.0, vcc" % (vT + 4))
        b.wait(lg=0)
        for k in range(5):
            I("ds_write_b32 v%d, v%d offset:%d" % (vKVL, vT + 4, 256 * k))
        I("s_xor_b32 s%d, s%d, 0x80000000" % (sTAG, sEP))
        I("s_and_b32 s%d, s%d, 0xfffffff0" % (sTAG, sTAG))
        I("s_mov_b32 s%d, 0x358637bd" % sEPS)
        for r, val in ((sM1, 0x22222222), (sM2, 0x44444444), (sM3, 0x88888888)):
            I("s_mov_b32 s%d, 0x%x" % (r, val))
            I("s_mov_b32 s%d, 0x%x" % (r + 1, val))
        I("s_mov_b32 s%d, 0x00f0000f" % sDIAG)
        I("s_mov_b32 s%d, 0xf0000f00" % (sDIAG + 1))
        I("v_lshlrev_b32 v%d, 10, v%d" % (vT + 4, g_))
        I("s_lshl_b32 s%d, s%d, 12" % (sT, sW))
        I("v_add_u32 v%d, s%d, v%d" % (vT + 4, sT, vT + 4))
        for t in range(4):
            I("v_xor_b32 v%d, %d, v%d" % (vCS1 + 4 + t, 32 * t, tc))
            I("v_add_u32 v%d, v%d, v%d" % (vCS1 + 4 + t, vCS1 + 4 + t, vT + 4))
            I("v_add_u32 v%d, 0x%x, v%d" % (vCS1 + 4 + t, L_PACK, vCS1 + 4 + t))
        I("v_and_b32 v%d, 31, v0" % (vT + 14))
        I("v_lshlrev_b32 v%d, 10, v%d" % (vT + 14, vT + 14))
        I("v_lshrrev_b32 v%d, 5, v0" % (vT + 4))
        I("v_lshl_add_u32 v%d, v%d, 4, v%d" % (vT + 14, vT + 4, vT + 14))
        I("s_add_u32 s%d, s%d, s%d" % (sT, sTAG, sXCC))
        I("v_mov_b32 v%d, s%d" % (vT + 15, sT))
        ptk, pth = self.pack_load(l3, q0)
        KL = env("KL", -1)
        for ks in range(NFIRST, env('NINIT', 6)):
            issue_now(ks)
        nxt = env('NINIT', 6)
        nq = 0
        if KL < 0:
            for pre, th in pth:
                for t in pre:
                    I(t)
                th()
        I("s_mov_b64 exec, 1")
        I("buffer_load_dword v%d, off, %s, s%d sc1" % (vDUM, self.ws(), sFL))
        I("s_mov_b64 exec, -1")
        self.stamp("setup")

        tmp = [self.free.pop() for _ in range(6)]
        assert all(s[0] == "v" for s in tmp)
        cK, cV = tmp[4][1], tmp[5][1]
        res_toks = []
        KZ = env("KZ", 2)
        KP, KANN, KI, KC = env("KP", 4), env("KANN", 9), env("KI", 12), env("KC", 99)
        for ks in range(17):
            fill, dma, nrd = [], [], 0
            if ks < 16:
                b.wait(tokW[ks], tokA[ks // 2])
                if ks == KZ:
                    b.wait(ztok)
                if ks == KANN:
                    b.wait(pst)
                I("s_barrier")
                if ks == 0:
                    self.stamp("w0")
                elif env("LSTAMP", 0):
                    self.stamp("it%d" % ks)
                if ks == KC:
                    self.r1_check()
                    self.bg_w = len(self.free) - 2 * (16 - ks) - 16
                    self.last_bg = self.clock
                if ks in (KZ, KANN):
                    lx = b.newlabel("Lann")
                    I("s_cmp_lg_u32 s%d, 0" % sW)
                    I("s_cbranch_scc1 %s" % lx)
                    I("s_lshl_b32 s%d, s%d, 7" % (sT, sRG))
                    I("s_add_u32 s%d, s%d, s%d" % (sT, sT, sR1))
                    if ks == KANN:
                        I("s_add_u32 s%d, s%d, 0x%x" % (sT, sT, WS_R3 - WS_R2))
                    I("s_mov_b64 exec, 1")
                    self.Inc("buffer_store_dword v%d, off, %s, s%d sc1" % (vT + 15, self.ws(), sT))
                    I("s_mov_b64 exec, -1")
                    b.label(lx)
                for p in range(2):
                    s = self.free.pop(0)
                    self.wslot[("qkv", 0, 2 * ks + p)] = (s, None)
                    for hh in range(2):
                        fill.append(lambda s=s, hh=hh, p=p: I("ds_read_b64_tr_b16 %s, v%d offset:%d" % (
                            vr(s[1] + 2 * hh, 2, s[0]), vTR, (ks % NR) * 8192 + p * 1024 + hh * 512)))
                fb = vAF + (ks & 1) * 20
                ds, h = ks // 2, ks & 1
                for rt in range(4):
                    fill.append(lambda rt=rt: I("ds_read_b128 %s, v%d offset:%d" % (
                        vr(fb + 4 * rt, 4), (vX0, vX1)[h], ds * 8192 + rt * 2048)))
                fill.append(lambda: I("ds_read_b128 %s, v%d offset:%d" % (vr(fb + 16, 4), (vOW0, vOW1)[h], ds * 8192)))
                nrd = len(fill)
                k2 = 0
                while nxt < min(16, ks + NR) and k2 < 2:
                    dma += issue_thunks(nxt)
                    nxt += 1
                    k2 += 1
                if ks == KL:
                    dma += pth
                if nxt == 16 and not dma and ks > KP + 1:
                    while nq < 16 and len(dma) < env("QPER", 3) and (nq < 4 or 10 + (nq - 4) // 2 < ks):
                        dma.append(q_thunk(nq))
                        nq += 1
                if ks == env("TQ", -1) and env("T0", 1):
                    def tq():
                        I("s_sub_u32 s%d, 0x180, s%d" % (sT, S_WQ))
                        I("s_and_b32 s%d, s%d, 0x380" % (sT, sT))
                        I("s_mov_b64 exec, 0x249")
                        I("buffer_load_dword v%d, v%d, s[%d:%d], s%d offen" % (vDUM, tw, R_WQ, R_WQ + 3, sT))
                        I("s_mov_b64 exec, -1")
                    fill.append(tq)
                if ks == KI:
                    fill.append(self.r1_issue)
                if ks == env("KOX", 15) and FT:
                    def tch():
                        self.touch_ox(0)
                        I("v_and_b32 v%d, 1, v0" % vT)
                        I("v_lshrrev_b32 v%d, 1, v0" % (vT + 1))
                        I("v_lshlrev_b32 v%d, 13, v%d" % (vT + 1, vT + 1))
                        I("v_lshl_add_u32 v%d, v%d, 7, v%d" % (vT + 5, vT, vT + 1))
                        I("s_mov_b64 exec, 15")
                        I("buffer_load_dword v%d, v%d, %s, s%d offen sc1" % (vDUM, vT + 5, self.ws(), sSTP))
                        I("s_mov_b64 exec, -1")
                    fill.append(tch)
                if ks == KP:
                    def prd():
                        b.wait(ptk)
                        for t in range(4):
                            for hh in range(2):
                                I("ds_read_b64_tr_b16 %s, v%d offset:%d" % (p2(tmp[t][1] + 2 * hh), vCS1 + 4 + t, hh * 512))
                    fill.append(prd)
            mfs = []
            if ks >= 1:
                k1 = ks - 1
                fb1 = vAF + (k1 & 1) * 20
                c0 = "0" if k1 == 0 else None
                wk, wv = [slot_r(self.wslot[("qkv", 0, k)][0]) for k in (2 * k1, 2 * k1 + 1)]
                one = vr(vONE, 4)
                for rt in range(4):
                    mfs.append(self.mf(vACC + 4 * rt, vr(fb1 + 4 * rt, 4), wk, c0))
                    mfs.append(self.mf(vACC + 16 + 4 * rt, vr(fb1 + 4 * rt, 4), wv, c0))
                own = vr(fb1 + 16, 4)
                mfs += [self.mf(vS1, one, own, c0), self.mf(vS2, own, own, c0),
                        self.mf(cK, one, wk, c0), self.mf(cV, one, wv, c0)]
            rds, extra = fill[:nrd], fill[nrd:]
            for _ in range(min(3, len(rds))):
                rds.pop(0)()
            while mfs:
                mfs.pop(0)()
                if rds:
                    for _ in range(min(2, len(rds))):
                        rds.pop(0)()
                    if len(rds) <= 2 and dma and dma[0][0]:
                        I(dma[0][0].pop(0))
                elif dma:
                    if dma[0][0]:
                        while dma[0][0]:
                            I(dma[0][0].pop(0))
                    else:
                        dma.pop(0)[1]()
                elif extra:
                    extra.pop(0)()
            for f in rds:
                f()
            for pre, th in dma:
                for t in pre:
                    I(t)
                th()
            for f in extra:
                f()
            b.wait(lg=0)
            if ks == KP:
                pst = [I("buffer_store_dwordx4 %s, v%d, %s, s%d offen sc1" % (slot_r(tmp[t]), vL16, self.ws(), 80 + t))
                       for t in range(4)]
        I("s_sub_u32 s%d, s%d, s%d" % (sT, sC, sROT))
        I("s_and_b32 s%d, s%d, 7" % (sT, sT))
        I("s_lshl_b32 s%d, s%d, 13" % (sT, sT))
        I("v_lshrrev_b32 v%d, 4, v0" % vT)
        I("v_lshrrev_b32 v%d, 5, v0" % (vT + 1))
        I("v_xor_b32 v%d, v%d, v%d" % (vT + 1, vT + 1, vT))
        I("s_lshl_b32 s%d, s%d, 1" % (sT + 1, sW))
        I("v_xor_b32 v%d, s%d, v%d" % (vT + 1, sT + 1, vT + 1))
        I("v_lshlrev_b32 v%d, 4, v%d" % (vT + 1, vT + 1))
        I("v_xor_b32 v%d, v%d, v%d" % (vT + 1, vT + 1, vX0))
        I("v_and_b32 v%d, 1, v%d" % (vT, vT))
        I("v_lshl_add_u32 v%d, v%d, 3, v%d" % (vT + 1, vT, vT + 1))
        I("v_add_u32 v%d, s%d, v%d" % (vT + 1, sT, vT + 1))
        res = [I("ds_read_b64 %s, v%d offset:%d" % (p2(vS1 + 8 + 0) if False else p2(vACC + 32 + 2 * rt), vT + 1, rt * 2048)) for rt in range(4)]
        I("v_mov_b32 v%d, v%d" % (vOA, vT + 14))
        self.bg_w = 0
        self.stamp("kvpass")
        if KC > 16:
            self.r1_check()
        if KANN == 16:
            b.wait(pst)
        self.stats_startup()
        if KANN == 16:
            lx = b.newlabel("Lann")
            I("s_cmp_lg_u32 s%d, 0" % sW)
            I("s_cbranch_scc1 %s" % lx)
            I("s_lshl_b32 s%d, s%d, 7" % (sT, sRG))
            I("s_add_u32 s%d, s%d, s%d" % (sT, sT, sR1))
            I("s_add_u32 s%d, s%d, 0x%x" % (sT, sT, WS_R3 - WS_R2))
            I("s_mov_b64 exec, 1")
            self.Inc("buffer_store_dword v%d, off, %s, s%d sc1" % (vT + 15, self.ws(), sT))
            I("s_mov_b64 exec, -1")
            b.label(lx)
        while nq < 16:
            pre, th = q_thunk(nq)
            for t in pre:
                I(t)
            th()
            nq += 1
        t1 = []
        for rt in range(4):
            t1.append(I("ds_read_b128 %s, v%d offset:%d" % (vr(vAF + 4 * rt, 4), vSTA, rt * 64)))
            t1.append(I("ds_read_b128 %s, v%d offset:%d" % (vr(vAF + 16 + 4 * rt, 4), vSTA, 256 + rt * 64)))
        for rt in range(4):
            t1.append(I("ds_read_b64 %s, v%d offset:%d" % (p2(vAB + 2 * rt), vSTQ, rt * 128)))
        for k in range(2):
            I("v_mov_b32 v%d, v%d" % (vCSK + k, cK))
            I("v_mov_b32 v%d, v%d" % (vCSV + k, cV))
        self.free += tmp
        I("v_add_u32 v%d, s%d, v%d" % (vSB, sW2K, vL4))
        I("v_add_u32 v%d, 0x%x, v%d" % (vEX, L_EX, vL4))
        I("s_lshl_b32 s%d, s%d, 8" % (sT, sW))
        I("v_add_u32 v%d, s%d, v%d" % (vSW, sT, vEX))
        I("v_and_b32 v%d, 15, v0" % vT)
        I("v_lshrrev_b32 v%d, 5, v0" % (vT + 1))
        I("v_lshlrev_b32 v%d, 6, v%d" % (vT + 1, vT + 1))
        I("v_lshl_add_u32 v%d, v%d, 2, v%d" % (vSWR, vT, vT + 1))
        I("s_add_u32 s%d, s%d, 0x%x" % (sT, sT, L_STA))
        I("v_add_u32 v%d, s%d, v%d" % (vSWR, sT, vSWR))
        for rt in range(4):
            for k in range(2):
                s = vACC + 32 + 2 * rt + k
                I("v_lshlrev_b32 v%d, 16, v%d" % (vX + 4 * rt + 2 * k, s))
                I("v_and_b32 v%d, 0xffff0000, v%d" % (vX + 4 * rt + 2 * k + 1, s))
        early = env("R3EARLY", 0)
        I("v_and_b32 v%d, 0xfff, v%d" % (vCS1, vTCH))
        I("s_add_u32 s%d, s%d, 0x%x" % (sR1, sR1, WS_R3 - WS_R2))
        self.r3_tok = I("buffer_load_dword v%d, v%d, %s, s%d offen sc1" % (vPOLL, vCS1, self.ws(), sR1))
        b.wait(t1)
        I("s_lshl_b32 s%d, s%d, 8" % (sT, sW))
        I("v_add_u32 v%d, s%d, v%d" % (vSTA, sT, vSTA))
        for hf in range(2):
            self.kv_epilogue(hf, vAF + 8 * hf, vAF + 16 + 8 * hf)

    def pack_load(self, l3, q0):
        b = self.b
        I = b.I
        dst = 80
        uid, src, strd = sT, sT + 1, sT + 2
        I("s_lshl_b32 s%d, s%d, 2" % (uid, sRG))
        I("s_add_u32 s%d, s%d, s%d" % (uid, uid, sW))
        lw1, lw2, lnone, lgo = [b.newlabel("Lpk") for _ in range(4)]
        I("s_mul_i32 s88, s%d, %d" % (sC, 4 * PKW))
        I("s_mov_b32 s%d, 0x20000" % (R_PK + 3))

        def setsrd(ptr, size, stride):
            I("s_mov_b32 s%d, s%d" % (R_PK, ptr))
            I("s_and_b32 s%d, s%d, 0xffff" % (R_PK + 1, ptr + 1))
            I("s_mov_b32 s%d, %d" % (R_PK + 2, size))
            I("s_movk_i32 s%d, %d" % (strd, stride))

        def simple(f0):
            I("s_lshl_b32 s%d, s%d, 15" % (src, uid))
            I("s_lshl_b32 s89, s%d, 7" % sC)
            I("s_add_u32 s%d, s%d, s89" % (src, src))
            I("s_add_u32 s89, s%d, %d" % (uid, f0))
            I("s_lshl_b32 s89, s89, 10")
            I("s_add_u32 s88, s88, s89")
            for t in range(4):
                I("s_add_u32 s%d, s88, %d" % (dst + t, t * PKW))
            I("s_branch %s" % lgo)

        I("s_cmp_ge_u32 s%d, 16" % uid)
        I("s_cbranch_scc1 %s" % lw1)
        setsrd(S_WO, 512 * 1024, 1024)
        simple(F_WO)
        b.label(lw1)
        I("s_cmp_ge_u32 s%d, 64" % uid)
        I("s_cbranch_scc1 %s" % lw2)
        I("s_sub_u32 s%d, s%d, 16" % (uid, uid))
        I("s_mul_i32 s89, s%d, 43" % uid)
        I("s_lshr_b32 s89, s89, 7")
        I("s_mul_i32 s92, s89, 3")
        I("s_sub_u32 s92, s%d, s92" % uid)
        setsrd(S_W1, 512 * 2752, 2752)
        I("s_mul_i32 s%d, s89, %d" % (src, 32 * 2752))
        I("s_mul_i32 s79, s%d, 384" % sC)
        I("s_add_u32 s%d, s%d, s79" % (src, src))
        I("s_lshl_b32 s79, s92, 7")
        I("s_add_u32 s%d, s%d, s79" % (src, src))
        I("s_mul_i32 s89, s89, 3072")
        I("s_add_u32 s88, s88, s89")
        I("s_add_u32 s88, s88, %d" % (F_W1 * 1024))
        for t in range(4):
            I("s_lshl_b32 s79, s92, 2")
            I("s_add_u32 s79, s79, %d" % t)
            I("s_mul_i32 s89, s79, 43")
            I("s_lshr_b32 s89, s89, 7")
            I("s_mul_i32 s%d, s89, %d" % (dst + t, PKW - 3072))
            I("s_lshl_b32 s79, s79, 10")
            I("s_add_u32 s%d, s%d, s79" % (dst + t, dst + t))
            I("s_add_u32 s%d, s%d, s88" % (dst + t, dst + t))
        I("s_mul_i32 s79, s%d, 3" % sC)
        I("s_add_u32 s79, s79, s92")
        I("s_cmp_ge_u32 s79, 22")
        I("s_cbranch_scc1 %s" % lnone)
        I("s_branch %s" % lgo)
        b.label(lw2)
        I("s_cmp_ge_u32 s%d, 107" % uid)
        I("s_cbranch_scc1 %s" % lnone)
        I("s_sub_u32 s%d, s%d, 64" % (uid, uid))
        setsrd(S_W2, 1376 * 1024, 1024)
        simple(F_W2)
        b.label(lnone)
        setsrd(S_WQ, 0, 1024)
        I("s_mov_b32 s%d, 0" % src)
        for t in range(4):
            I("s_mov_b32 s%d, 0x%x" % (dst + t, OOB))
        b.label(lgo)
        I("v_mul_lo_u32 v%d, v%d, s%d" % (vT + 4, l3, strd))
        I("v_add_u32 v%d, v%d, v%d" % (vT + 10, vT + 4, q0))
        I("v_xor_b32 v%d, 64, v%d" % (vT + 5, q0))
        I("v_add_u32 v%d, v%d, v%d" % (vT + 11, vT + 4, vT + 5))
        I("s_lshl_b32 s%d, s%d, 3" % (strd, strd))
        I("s_lshl_b32 s86, s%d, 12" % sW)
        I("s_mov_b32 s84, s%d" % src)
        I("s_mov_b32 s85, s%d" % strd)
        toks = []
        th = []
        for q in range(4):
            pre = ["s_add_u32 m0, s86, 0x%x" % (L_PACK + q * 1024)]
            if q:
                pre.append("s_add_u32 s84, s84, s85")
            th.append((pre, lambda q=q: toks.append(I("buffer_load_dwordx4 v%d, s[%d:%d], s84 offen lds" % (
                vT + 10 + (q & 1), R_PK, R_PK + 3)))))
        return toks, th

    def r1_issue(self):
        I = self.b.I
        a = vCS1 + 2
        I("v_and_b32 v%d, 7, v0" % a)
        I("v_subrev_u32 v%d, s%d, v%d" % (a, sC, a))
        I("v_lshlrev_b32 v%d, 12, v%d" % (a, a))
        I("s_lshl_b32 s%d, s%d, 7" % (sT, sRG))
        I("s_add_u32 s%d, s%d, s%d" % (sT, sT, sR1))
        I("v_add_u32 v%d, s%d, v%d" % (a, sT, a))
        I("v_add_u32 v%d, s%d, v%d" % (vT + 5, sR1, vTCH))
        I("v_cmp_gt_u32 vcc, 32, v0")
        I("v_cndmask_b32 v%d, v%d, v%d, vcc" % (a, a, vT + 5))
        self.r1_tok = I("buffer_load_dword v%d, v%d, %s, 0 offen sc1" % (vPOLL, a, self.ws()))

    def r1_check(self):
        b = self.b
        I = b.I
        lp, ld, lc = b.newlabel("Ltag"), b.newlabel("Ltagd"), b.newlabel("Ltagc")
        b.wait(self.r1_tok)
        I("s_branch %s" % lc)
        b.label(lp)
        self.Inc("buffer_load_dword v%d, v%d, %s, 0 offen sc1" % (vPOLL, vCS1 + 2, self.ws()))
        I("s_waitcnt vmcnt(0)")
        b.label(lc)
        I("v_subrev_u32 v%d, s%d, v%d" % (vPOLL, sTAG, vPOLL))
        I("v_cmp_gt_u32 vcc, 16, v%d" % vPOLL)
        I("s_cmp_eq_u64 vcc, exec")
        I("s_cbranch_scc1 %s" % ld)
        self.spin_guard(lp)
        b.label(ld)
        I("v_cmp_eq_u32 vcc, s%d, v%d" % (sXCC, vPOLL))
        I("s_cmp_eq_u32 vcc_hi, -1")
        I("s_cselect_b32 s%d, 1, 0" % sFAST)

    def touch_w(self, f0, m):
        I = self.b.I
        I("s_mul_i32 s%d, s%d, %d" % (sTC, sQ, m * 1024))
        I("s_add_u32 s%d, s%d, s%d" % (sTC, sTC, sPK))
        I("s_add_u32 s%d, s%d, %d" % (sTC, sTC, f0 * 1024))
        mask = (1 << (8 * m)) - 1
        I("s_mov_b32 exec_lo, 0x%x" % (mask & 0xffffffff))
        I("s_mov_b32 exec_hi, 0x%x" % (mask >> 32))
        I("buffer_load_dword v%d, v%d, %s, s%d offen sc1" % (vDUM, vTCH, self.ws(), sTC))
        I("s_mov_b64 exec, -1")

    def touch_ox(self, layer):
        I = self.b.I
        I("s_and_b32 s%d, s%d, 1" % (sT + 2, sW))
        I("s_lshl_b32 s%d, s%d, 15" % (sT, sT + 2))
        I("s_add_u32 s%d, s%d, s%d" % (sT, sT, sRG64))
        I("s_add_u32 s%d, s%d, 0x%x" % (sT, sT, self.buf("X", 2 * layer)))
        I("s_mul_i32 s%d, s%d, %d" % (sT + 1, sT + 2, self.hstride("O")))
        I("s_add_u32 s%d, s%d, s%d" % (sT + 1, sT + 1, self.rgs("O")))
        I("s_add_u32 s%d, s%d, 0x%x" % (sT + 1, sT + 1, self.buf("O", layer)))
        I("s_bitcmp1_b32 s%d, 1" % sW)
        I("s_cselect_b32 s%d, s%d, s%d" % (sT, sT, sT + 1))
        I("s_lshl_b32 s%d, s%d, 12" % (sT + 1, sC))
        I("s_add_u32 s%d, s%d, s%d" % (sT, sT, sT + 1))
        I("s_mov_b32 exec_hi, 0")
        I("buffer_load_dword v%d, v%d, %s, s%d offen sc1" % (vDUM, vTCH, self.ws(), sT))
        I("s_mov_b32 exec_hi, -1")

    def touch_h(self, layer):
        I = self.b.I
        I("s_lshr_b32 s%d, s%d, 1" % (sT + 1, sW))
        I("s_mul_i32 s%d, s%d, %d" % (sT + 1, sT + 1, HSZ // 2 - 12288))
        I("s_mul_i32 s%d, s%d, 6144" % (sT + 2, sW))
        I("s_add_u32 s%d, s%d, s%d" % (sT + 1, sT + 1, sT + 2))
        I("s_mul_i32 s%d, s%d, 12288" % (sT + 2, sC))
        I("s_add_u32 s%d, s%d, s%d" % (sT + 1, sT + 1, sT + 2))
        I("s_add_u32 s%d, s%d, s%d" % (sT + 1, sT + 1, sRGH))
        I("s_add_u32 s%d, s%d, 0x%x" % (sT + 1, sT + 1, self.buf("H", layer)))
        I("s_cmp_lt_u32 s%d, 7" % sC)
        I("s_cselect_b32 s%d, s%d, 0x%x" % (sT + 1, sT + 1, OOB))
        I("s_mov_b32 exec_hi, 0xffff")
        I("buffer_load_dword v%d, v%d, %s, s%d offen sc1" % (vDUM, vTCH, self.ws(), sT + 1))
        I("s_mov_b32 exec_hi, -1")

    def kv_items(self, hf, seqs):
        items = []
        for ks in range(16):
            c0 = "0" if ks == 0 else None
            for r in range(2):
                def mfs(fr, ks=ks, r=r, c0=c0):
                    kk, kv_ = ("qkv", 0, 2 * ks), ("qkv", 0, 2 * ks + 1)
                    th = [self.mf(vACC + 8 * hf + 4 * r, fr, self.w_get(kk), c0),
                          self.mf(vACC + 16 + 8 * hf + 4 * r, fr, self.w_get(kv_), c0)]
                    if hf == 1 and r == 1:
                        th.append(lambda: (self.w_release(kk), self.w_release(kv_)))
                    return th
                a, off = self.frag_addr(seqs[ks // 2], r, ks & 1)
                items.append((a, off, seqs[ks // 2], mfs))
        self.pinned.update(seqs)
        return items

    def kv_finish(self, hf, between=None):
        b = self.b
        rd = [b.I("ds_read_b128 %s, v%d offset:%d" % (vr(vAF + 4 * k, 4), vSTA, (k & 1) * 64 + (k >> 1) * 128)) for k in range(4)]
        if between:
            between()
        b.wait(rd)
        self.kv_epilogue(hf, vAF, vAF + 8)

    def attention(self, layer, xseqs):
        b = self.b
        I = self.I
        KVD, ZD = vS1, vS2
        one = vr(vONE, 4)
        self.bg_w = 0
        for p in range(2):
            c0 = "0" if p == 0 else None
            self.mf(KVD, vr(vACC + 8 * p, 4), vr(vACC + 16 + 8 * p, 4), c0)()
            self.mf(ZD, vr(vACC + 8 * p, 4), one, c0)()
        b.I("s_add_u32 s%d, s%d, %d" % (sKB, sKV, layer * KVL))
        b.I("s_and_b32 s%d, s%d, %d" % (sKB + 1, sRG, NC - 1))
        b.I("s_mul_i32 s%d, s%d, %d" % (sKB + 1, sKB + 1, KCS))
        b.I("s_add_u32 s%d, s%d, s%d" % (sKB + 1, sKB + 1, sKB))
        for r in range(4):
            b.I("ds_write_b32 v%d, v%d" % (vPOS + r, KVD + r))
        b.I("s_mov_b32 exec_lo, 0x00010001")
        b.I("s_mov_b32 exec_hi, 0x00010001")
        b.I("ds_write_b128 v%d, %s" % (vZP, vr(ZD, 4)))
        b.I("s_mov_b64 exec, -1")
        rd = [b.I("ds_read_b32 v%d, v%d offset:%d" % (vT + k, vKVL, 256 * k)) for k in range(5)]
        for k in range(5):
            b.wait(rd[k])
            if k == 4:
                b.I("s_mov_b32 exec_hi, 0xffff")
            b.I("buffer_atomic_add_f32 v%d, v%d, %s, s%d offen offset:%d" % (vT + k, vL4, self.ws(), sKB + 1, k * 256))
        b.I("s_mov_b64 exec, -1")
        self.stamp("atom")
        if layer:
            self.touch_ox(layer)
        else:
            lp, ld, lc = b.newlabel("Lr3"), b.newlabel("Lr3d"), b.newlabel("Lr3c")
            b.wait(self.r3_tok)
            b.I("s_branch %s" % lc)
            b.label(lp)
            self.Inc("buffer_load_dword v%d, v%d, %s, s%d offen sc1" % (vPOLL, vCS1, self.ws(), sR1))
            b.I("s_waitcnt vmcnt(0)")
            b.label(lc)
            b.I("v_subrev_u32 v%d, s%d, v%d" % (vPOLL, sTAG, vPOLL))
            b.I("v_cmp_gt_u32 vcc, 16, v%d" % vPOLL)
            b.I("s_cmp_eq_u64 vcc, exec")
            b.I("s_cbranch_scc1 %s" % ld)
            self.spin_guard(lp)
            b.label(ld)
            self.stamp("r3")
            b.wait(self.tokQ)
            b.I("s_barrier")
        self.w_burst(env("W_AT", [0, 0])[layer])
        self.last_bg = self.clock
        self.bg_w = env("W_Q", [99, 99])[layer]
        items = []
        for ks in range(16):
            ds, h = ks // 2, ks & 1
            c0 = "0" if ks == 0 else None
            def keep(fr):
                self.wq_reg = fr
                return []
            items.append(("tr", self.rq_base(ks) - L_WQ, None, keep))
            for rt in range(4):
                def mfs(fr, ks=ks, rt=rt, c0=c0):
                    w = self.wq_reg
                    th = [self.mf(vACC + 4 * rt, w, fr, c0)]
                    if layer == 0 and rt == 0:
                        th.append(self.mf(vCSQ, w, one, c0))
                    return th
                if layer == 0:
                    items.append(((vX0, vX1)[h], ds * 8192 + rt * 2048, None, mfs))
                else:
                    a, off = self.frag_addr(xseqs[rt >> 1][ds], rt & 1, h)
                    items.append((a, off, None, mfs))
        assert NC == 2
        KD = vACC + 32
        dst = [(KD, KD + 8), (KD + 4, KD + 12)]
        kvl = ["buffer_load_dwordx4 %s, v%d, %s, s%d offen offset:%d sc1" % (vr(dst[c][h], 4), (vL16, vC2)[h], self.ws(), sKB, c * KCS)
               for h in range(2) for c in range(NC)]
        b.I("v_add_u32 v%d, 0x400, v%d" % (vC2, vL16))
        b.I("v_cmp_gt_u32 vcc, 12, v0")
        b.I("v_mov_b32 v%d, 0x%x" % (vT + 8, OOB))
        b.I("v_cndmask_b32 v%d, v%d, v%d, vcc" % (vC2, vT + 8, vC2))
        kp = {}

        def kv_early():
            self.bg_w = 0
            kp["tok"] = [b.I(t) for t in kvl]
        j = env("H_KVP", [79, 99])[layer]
        self.gemm(items, None, 5, {j: [kv_early]})
        self.pinned = set()
        self.mine = self.seq - 1
        PQ = vACC + 16
        for rt in range(4):
            ab = vAB + 2 * rt
            for r in (0, 2):
                u = vT + 2 * ((rt * 2 + r // 2) % 8)
                I("v_pk_fma_f32 %s, %s, %s, %s op_sel:[0,1,1] op_sel_hi:[1,1,1]" % (p2(u), p2(vCSQ + r), p2(ab), p2(vK)))
        for rt in range(4):
            ab = vAB + 2 * rt
            for r in (0, 2):
                q_ = vACC + 4 * rt + r
                u = vT + 2 * ((rt * 2 + r // 2) % 8)
                I("v_pk_fma_f32 %s, %s, %s, %s op_sel:[0,0,0] op_sel_hi:[1,0,1]" % (p2(q_), p2(q_), p2(ab), p2(u)))
        if env("H_KVP", [79, 99])[layer] == 98:
            kv_early()
        self.phi_pairs([(vACC + 4 * rt + r, PQ + 2 * rt + r // 2) for rt in range(4) for r in (0, 2)])
        self.stamp("qpass")
        self.bg_w = 0
        self.w_burst(env("W_S1", [12, 0])[layer])
        b.I("s_add_u32 s%d, s%d, s%d" % (sT + 6, self.rgs("O"), sSTO))
        b.I("s_add_u32 s%d, s%d, 0x%x" % (sT + 6, sT + 6, self.buf("O", layer)))
        b.I("s_add_u32 s%d, s%d, %d" % (sT + 7, sT + 6, self.hstride("O")))
        b.I("v_lshl_add_u32 v%d, v0, 4, v%d" % (vAF + 16, vKVL))
        b.I("v_sub_u32 v%d, v%d, v%d" % (vAF + 16, vAF + 16, vL4))
        lp, ld, lc = b.newlabel("Lkv"), b.newlabel("Lkvd"), b.newlabel("Lkvc")
        if kp:
            b.wait(kp["tok"])
            b.I("s_branch %s" % lc)
        b.label(lp)
        if kp:
            for t in kvl:
                self.Inc(t)
            b.I("s_waitcnt vmcnt(0)")
        else:
            for t in kvl:
                b.I(t)
            b.wait(vm=0)
        b.label(lc)
        for h in range(2):
            for k in (0, 2):
                b.I("v_pk_add_f32 %s, %s, %s" % (p2(vT + 8 * h + k), p2(dst[0][h] + k), p2(dst[1][h] + k)))
        b.I("ds_write_b128 v%d, %s offset:1280" % (vAF + 16, vr(vT, 4)))
        b.I("s_mov_b64 exec, 0xfff")
        b.I("ds_write_b128 v%d, %s offset:2304" % (vAF + 16, vr(vT + 8, 4)))
        b.I("s_mov_b64 exec, -1")
        lz = b.I("ds_read_b128 %s, v%d offset:1280" % (vr(vT + 4, 4), vZP))
        lt = [b.I("ds_read_b32 v%d, v%d offset:1280" % (vT + 12 + r, vPOS + r)) for r in range(4)]
        b.I("v_cmp_eq_f32 vcc, 0x42000000, v%d" % (vT + 3))
        b.I("v_cmp_eq_f32 s[%d:%d], v%d, v%d" % (sT, sT + 1, vT + 11, vT + 3))
        b.I("s_and_b64 vcc, vcc, s[%d:%d]" % (sM3, sM3 + 1))
        b.I("s_and_b32 s%d, s%d, 0x888" % (sT, sT))
        b.I("s_xor_b32 s%d, s%d, 0x888" % (sT, sT))
        b.I("s_xor_b64 vcc, vcc, s[%d:%d]" % (sM3, sM3 + 1))
        b.I("s_or_b32 s%d, s%d, vcc_lo" % (sT, sT))
        b.I("s_or_b32 s%d, s%d, vcc_hi" % (sT, sT))
        b.I("s_cbranch_scc0 %s" % ld)
        b.I("s_waitcnt lgkmcnt(0)")
        self.spin_guard(lp)
        b.label(ld)
        self.stamp("kvsync")
        b.wait(lz)
        I("v_cvt_pk_bf16_f32 v%d, v%d, v%d" % (vT + 10, vT + 4, vT + 5))
        I("v_cvt_pk_bf16_f32 v%d, v%d, v%d" % (vT + 11, vT + 6, vT + 7))
        NUM, DEN = vACC, vAF
        for rt in range(4):
            I("v_mfma_f32_16x16x16_bf16 %s, %s, %s, 0" % (vr(DEN + 4 * rt, 4), p2(vT + 10), p2(PQ + 2 * rt)))
        b.wait(lt)
        I("v_cvt_pk_bf16_f32 v%d, v%d, v%d" % (vT + 8, vT + 12, vT + 13))
        I("v_cvt_pk_bf16_f32 v%d, v%d, v%d" % (vT + 9, vT + 14, vT + 15))
        for rt in range(4):
            I("v_mfma_f32_16x16x16_bf16 %s, %s, %s, 0" % (vr(NUM + 4 * rt, 4), p2(vT + 8), p2(PQ + 2 * rt)))
        for rt in range(4):
            I("v_add_f32 v%d, s%d, v%d" % (DEN + 4 * rt, sEPS, DEN + 4 * rt))
        for rt in range(4):
            I("v_rcp_f32 v%d, v%d" % (DEN + 4 * rt, DEN + 4 * rt))
        for rt in range(4):
            for r in (0, 2):
                n_ = NUM + 4 * rt + r
                I("v_pk_mul_f32 %s, %s, %s op_sel_hi:[1,0]" % (p2(n_), p2(n_), p2(DEN + 4 * rt)))
        for rt in range(4):
            for r in (0, 2):
                I("v_cvt_pk_bf16_f32 v%d, v%d, v%d" % (vT + 2 * rt + r // 2, NUM + 4 * rt + r, NUM + 4 * rt + r + 1))
        return self.stores2([self.pair_store(vT + 4 * pr, sT + 6 + pr, 0) for pr in range(2)], layer == 0 or self.sep)

    def park_wq(self):
        b = self.b
        b.I("s_lshl_b32 s%d, s%d, 14" % (sT, sW))
        b.I("s_add_u32 s%d, s%d, 0x%x" % (sT, sT, L_WQ))
        b.I("v_add_u32 v%d, s%d, v%d" % (vWQ, sT, vL16))
        for ks in range(16):
            b.I("ds_write_b128 v%d, %s offset:%d" % (vWQ, slot_r(self.wslot[("qkv", 0, 32 + ks)][0]), ks * 1024))
        b.wait(lg=0)
        for ks in range(16):
            self.w_release(("qkv", 0, 32 + ks))

    def cs1_some(self, n):
        one = vr(vONE, 4)
        k = 0
        while k < n and self.ncs < 16 and all(("w1", 0, 3 * self.ncs + t) in self.wslot and
                                             (self.wslot[("w1", 0, 3 * self.ncs + t)][1] is None or
                                              self.wslot[("w1", 0, 3 * self.ncs + t)][1][1] < self.b.vm_done) for t in range(3)):
            for t in range(3):
                self.mf(vCS1 + 4 * t, slot_r(self.wslot[("w1", 0, 3 * self.ncs + t)][0]), one, "0" if self.ncs == 0 else None)()
            self.ncs += 1
            k += 1

    def n16_items(self, name, layer, nks, hf, seqs):
        items = []
        for ks in range(nks):
            for r in range(2):
                def mfs(fr, ks=ks, r=r):
                    th = [self.mf(vX + 8 * hf + 4 * r, self.w_get((name, layer, ks)), fr)]
                    if hf == 1 and r == 1 and name != "w2":
                        th.append(lambda: self.w_release((name, layer, ks)))
                    return th
                a, off = self.frag_addr(seqs[ks // 2], r, ks & 1)
                items.append((a, off, seqs[ks // 2], mfs))
        return items

    def n16_full(self, name, layer, nks, seqs):
        items = []
        for k0 in range(0, nks, 4):
            for hf in range(2):
                for ks in range(k0, k0 + 4):
                    for r in range(2):
                        rt = 2 * hf + r

                        def mfs(fr, ks=ks, rt=rt):
                            th = [self.mf(vX + 4 * rt, self.w_get((name, layer, ks)), fr)]
                            if rt == 3:
                                th.append(lambda: self.w_release((name, layer, ks)))
                            return th
                        sq = seqs[hf][ks // 2]
                        a, off = self.frag_addr(sq, r, ks & 1)
                        items.append((a, off, sq, mfs))
        return items

    def x_payload(self, idx, hf, wt):
        I = self.b.I
        o = vT + 2 + 4 * hf
        I("s_add_u32 s%d, s%d, s%d" % (sT + 6, sRG64, sSTO))
        I("s_add_u32 s%d, s%d, 0x%x" % (sT + 6, sT + 6, self.buf("X", idx) + hf * 32768))
        for j in range(4):
            I("v_cvt_pk_bf16_f32 v%d, v%d, v%d" % (o + j, vX + 8 * hf + 2 * j, vX + 8 * hf + 2 * j + 1))
        return self.stores2([self.pair_store(o, sT + 6, 0)], wt)

    def x_stats(self, wt):
        I = self.b.I
        I("s_add_u32 s%d, s%d, 8192" % (sT + 8, sSTP))
        s, t, x = vAF, vAF + 16, vAF + 24
        for j in range(8):
            I("v_cvt_pk_bf16_f32 v%d, v%d, v%d" % (t + j, vX + 2 * j, vX + 2 * j + 1))
        for j in range(8):
            I("v_lshlrev_b32 v%d, 16, v%d" % (x + 2 * j, t + j))
            I("v_and_b32 v%d, 0xffff0000, v%d" % (x + 2 * j + 1, t + j))
        for rt in range(4):
            I("v_pk_add_f32 %s, %s, %s" % (p2(s + 4 * rt), p2(x + 4 * rt), p2(x + 4 * rt + 2)))
            I("v_pk_mul_f32 %s, %s, %s" % (p2(s + 4 * rt + 2), p2(x + 4 * rt), p2(x + 4 * rt)))
        for rt in range(4):
            I("v_pk_fma_f32 %s, %s, %s, %s" % (p2(s + 4 * rt + 2), p2(x + 4 * rt + 2), p2(x + 4 * rt + 2), p2(s + 4 * rt + 2)))
        for rt in range(4):
            I("v_add_f32 v%d, v%d, v%d" % (s + 4 * rt, s + 4 * rt, s + 4 * rt + 1))
            I("v_add_f32 v%d, v%d, v%d" % (s + 4 * rt + 2, s + 4 * rt + 2, s + 4 * rt + 3))
        for hf in range(2):
            q = s + 8 * hf
            I("v_permlane32_swap_b32 v%d, v%d" % (q, q + 4))
            I("v_permlane32_swap_b32 v%d, v%d" % (q + 2, q + 6))
        for hf in range(2):
            q = s + 8 * hf
            I("v_add_f32 v%d, v%d, v%d" % (q, q, q + 4))
            I("v_add_f32 v%d, v%d, v%d" % (q + 2, q + 2, q + 6))
        for hf in range(2):
            I("v_permlane16_swap_b32 v%d, v%d" % (s + 8 * hf, s + 8 * hf + 2))
        for hf in range(2):
            I("v_add_f32 v%d, v%d, v%d" % (s + 8 * hf, s + 8 * hf, s + 8 * hf + 2))
        tk2 = self.stores2(["buffer_store_dword v%d, v%d, %s, s%d offen" % (s + 8 * hf, vL4, self.ws(), (sSTP, sT + 8)[hf])
                            for hf in range(2)], wt)
        return tk2

    def x_half_now(self, idx, hf, wt):
        I = self.b.I
        x = vX + 8 * hf
        o = vT + 2
        s = o + 4
        I("s_add_u32 s%d, s%d, s%d" % (sT + 6, sRG64, sSTO))
        I("s_add_u32 s%d, s%d, 0x%x" % (sT + 6, sT + 6, self.buf("X", idx) + hf * 32768))
        I("s_add_u32 s%d, s%d, %d" % (sT + 7, sSTP, hf * 8192))
        for j in range(4):
            I("v_cvt_pk_bf16_f32 v%d, v%d, v%d" % (o + j, x + 2 * j, x + 2 * j + 1))
        x = vS1
        for j in range(4):
            I("v_lshlrev_b32 v%d, 16, v%d" % (x + 2 * j, o + j))
            I("v_and_b32 v%d, 0xffff0000, v%d" % (x + 2 * j + 1, o + j))
        tk = self.stores2([self.pair_store(o, sT + 6, 0)], wt)
        for r in range(2):
            I("v_pk_add_f32 %s, %s, %s" % (p2(s + 4 * r), p2(x + 4 * r), p2(x + 4 * r + 2)))
            I("v_pk_mul_f32 %s, %s, %s" % (p2(s + 4 * r + 2), p2(x + 4 * r), p2(x + 4 * r)))
        for r in range(2):
            I("v_pk_fma_f32 %s, %s, %s, %s" % (p2(s + 4 * r + 2), p2(x + 4 * r + 2), p2(x + 4 * r + 2), p2(s + 4 * r + 2)))
            I("v_add_f32 v%d, v%d, v%d" % (s + 4 * r, s + 4 * r, s + 4 * r + 1))
        for r in range(2):
            I("v_add_f32 v%d, v%d, v%d" % (s + 4 * r + 2, s + 4 * r + 2, s + 4 * r + 3))
        I("v_permlane32_swap_b32 v%d, v%d" % (s, s + 4))
        I("v_permlane32_swap_b32 v%d, v%d" % (s + 2, s + 6))
        I("v_add_f32 v%d, v%d, v%d" % (s, s, s + 4))
        I("v_add_f32 v%d, v%d, v%d" % (s + 2, s + 2, s + 6))
        I("v_permlane16_swap_b32 v%d, v%d" % (s, s + 2))
        I("v_add_f32 v%d, v%d, v%d" % (s, s, s + 2))
        tk += self.stores2(["buffer_store_dword v%d, v%d, %s, s%d offen" % (s, vL4, self.ws(), sT + 7)], wt)
        return self.new_pub(tk)

    def x_half_store(self, idx, hf, wt, delay):
        x = vX + 8 * hf
        o = vT + 1
        o += o & 1
        tk = []
        k, fl = self.new_pub(tk)
        s = o + 4
        e = ["s_add_u32 s%d, s%d, s%d" % (sT + 6, sRG64, sSTO),
             "s_add_u32 s%d, s%d, 0x%x" % (sT + 6, sT + 6, self.buf("X", idx) + hf * 32768),
             "s_add_u32 s%d, s%d, %d" % (sT + 7, sSTP, hf * 8192), 2]
        e += ["v_cvt_pk_bf16_f32 v%d, v%d, v%d" % (o + j, x + 2 * j, x + 2 * j + 1) for j in range(4)]
        for r in range(2):
            e += ["v_add_f32 v%d, v%d, v%d" % (s + 2 * r, x + 4 * r, x + 4 * r + 1),
                  "v_mul_f32 v%d, v%d, v%d" % (s + 2 * r + 1, x + 4 * r, x + 4 * r)]
        e.append(lambda: tk.extend(self.stores2([self.pair_store(o, sT + 6, 0)], wt)))
        for q in (1, 2, 3):
            for r in range(2):
                if q > 1:
                    e.append("v_add_f32 v%d, v%d, v%d" % (s + 2 * r, s + 2 * r, x + 4 * r + q))
                e.append("v_fmac_f32 v%d, v%d, v%d" % (s + 2 * r + 1, x + 4 * r + q, x + 4 * r + q))
        e += [1, "v_permlane32_swap_b32 v%d, v%d" % (s, s + 2), "v_permlane32_swap_b32 v%d, v%d" % (s + 1, s + 3), 1,
              "v_add_f32 v%d, v%d, v%d" % (s, s, s + 2), "v_add_f32 v%d, v%d, v%d" % (s + 1, s + 1, s + 3), 1,
              "v_permlane16_swap_b32 v%d, v%d" % (s, s + 1), 1, "v_add_f32 v%d, v%d, v%d" % (s, s, s + 1),
              lambda: tk.extend(self.stores2(["buffer_store_dword v%d, v%d, %s, s%d offen" % (s, vL4, self.ws(), sT + 7)], wt))]
        if delay is not None:
            e += [delay, fl]
        return k, e, fl

    def out_half_store(self, hf):
        x = vX + 8 * hf
        o = vT + 4 * hf
        e = ["s_add_u32 s%d, s%d, s%d" % (sT + 6, sRG64, sOUT), "s_add_u32 s%d, s%d, %d" % (sT + 6, sT + 6, hf * 32768), 2]
        e += ["v_cvt_pk_bf16_f32 v%d, v%d, v%d" % (o + j, x + 2 * j, x + 2 * j + 1) for j in range(4)]
        e += [1, "v_permlane16_swap_b32 v%d, v%d" % (o, o + 2), "v_permlane16_swap_b32 v%d, v%d" % (o + 1, o + 3),
              "buffer_store_dwordx4 %s, v%d, s[%d:%d], s%d offen%s" % (vr(o, 4), vOA, R_OUT, R_OUT + 3, sT + 6, env("OUTPOL", ""))]
        return e

    def p3_items(self, layer, seqs):
        items = []
        one = vr(vONE, 4)
        NA = env("NA", [8, 0])[layer]
        order = [(ks, rt) for ks in range(NA) for rt in (0, 1)] + [(ks, rt) for ks in range(NA) for rt in (2, 3)]
        NB = env("NB", [0, 6])[layer]
        order += [(ks, rt) for ks in range(NA, 16 - NB) for rt in range(4)]
        order += [(ks, rt) for ks in range(16 - NB, 16) for rt in (0, 1)] + [(ks, rt) for ks in range(16 - NB, 16) for rt in (2, 3)]
        for pos, rt in order:
            c0 = "0" if pos == 0 else None
            ks = self.ksord[layer][pos]
            if True:
                def mfs(fr, ks=ks, rt=rt, c0=c0):
                    th = []
                    for t in range(3):
                        w = self.w_get(("w1", layer, 3 * ks + t))
                        th.append(self.mf(vACC + 24 * (rt >> 1) + 8 * t + 4 * (rt & 1), w, fr, c0))
                        if layer == 0 and rt == 0 and ks >= self.ncs:
                            th.append(self.mf(vCS1 + 4 * t, w, one, c0))
                    if rt == 3:
                        th.append(lambda: [self.w_release(("w1", layer, 3 * ks + t)) for t in range(3)])
                    return th
                sq = seqs[rt >> 1][pos // 2]
                a, off = self.frag_addr(sq, rt & 1, ks & 1)
                items.append((a, off, sq, mfs))
        return items

    def silu(self, layer, hf, mid=None):
        b = self.b
        I = self.I
        for t in range(3):
            b.I("s_add_u32 s%d, s%d, 0x%x" % (sT + 6 + t, sH0 + t, self.buf("H", layer) + hf * (HSZ // 2)))
        sts = []
        for t in range(3):
            A = vACC + 24 * hf + 8 * t
            u = vT + 8 * (t & 1)
            for f in (mid or {}).get(t, []):
                f()
            for j in range(4):
                I("v_pk_mul_f32 %s, %s, %s op_sel:[0,1] op_sel_hi:[1,1]" % (
                    p2(u + 2 * j), p2(vCS1 + 4 * t + 2 * (j & 1)), p2(vAB + 4 * hf + 2 * (j >> 1))))
            for j in range(4):
                I("v_pk_fma_f32 %s, %s, %s, %s op_sel:[0,0,0] op_sel_hi:[1,0,1]" % (
                    p2(A + 2 * j), p2(A + 2 * j), p2(vAB + 4 * hf + 2 * (j >> 1)), p2(u + 2 * j)))
            for k in range(8):
                I("v_exp_f32 v%d, v%d" % (u + k, A + k))
            for j in range(4):
                I("v_pk_fma_f32 %s, %s, %s, %s op_sel:[0,0,0] op_sel_hi:[1,0,0] neg_lo:[0,1,1] neg_hi:[0,1,1]" % (
                    p2(u + 2 * j), p2(u + 2 * j), p2(vK), p2(vK)))
            for k in range(8):
                I("v_rcp_f32 v%d, v%d" % (u + k, u + k))
            for j in range(4):
                I("v_pk_mul_f32 %s, %s, %s" % (p2(A + 2 * j), p2(A + 2 * j), p2(u + 2 * j)))
            for j in range(4):
                I("v_cvt_pk_bf16_f32 v%d, v%d, v%d" % (A + j, A + 2 * j, A + 2 * j + 1))
            sts += self.stores2([self.pair_store(A, sT + 6 + t, 0)], 2 if layer == 1 and hf in env('WTH', []) else layer == 0 or self.sep)
        return sts

    def body(self):
        b = self.b
        self.ksord = [list(range(16)), [4 * p + k for p in (3, 2, 1, 0) for k in range(4)]]
        for layer in range(2):
            self.w_enqueue("wo", layer, F_WO, 16)
            self.w_enqueue("w1", layer, F_W1, 48, [3 * ks + t for ks in self.ksord[layer] for t in range(3)])
            if layer == 0:
                self.w_enqueue("w2", 0, F_W2, 43)
        AF = env("AFIRST", 12)
        G8c = env("G8C", [2, 2, 2, 2])
        G8w = env("G8W", [4, 4])
        G22 = env("G22", [2, 2, 2, 2, 2, 4, 4, 4])
        st = {}
        PA, PB = env("PA", [52, 62]), env("PB", [70, 55])
        self.pace_w = PA[0]
        self.startup()
        xs = None
        for layer in range(2):
            self.pace_w = PA[layer]
            tk = self.attention(layer, xs)
            k_o, fl = self.new_pub(tk)
            self.w_burst(env("W_PUB", [0, 0])[layer])
            fl()
            self.stamp("o_pub")
            self.poll_shadow(k_o, env("NCS", [0, 0])[0] if layer == 0 else 0)
            self.stamp("o_rdy")
            wt = 2 if layer == 1 and env('WTX', 0) else layer == 0 or self.sep
            D16, PW = env("D16", 9), env("PAIRW", True)
            if env("NA", [8, 0])[layer]:
                oa = self.queue_half("O", layer, 0, 8, self.aq)
                ob = self.queue_half("O", layer, 1, 8, self.aq)
                self.a_burst(env("AF2", 10))
                self.bg_w = env("W_P2", [12, 12])[layer]

                def xa_out():
                    st["k_xa"], st["fl_xa"] = self.new_pub(self.x_payload(2 * layer, 0, wt))
                self.gemm(self.n16_items("wo", layer, 16, 0, oa) + self.n16_items("wo", layer, 16, 1, ob),
                          self.split(oa, env("G2A", [2, 2, 4])) + self.split(ob, env("G2B", [4, 4])), D16,
                          {33: [xa_out], 33 + env("D_XA", 20): [lambda: st["fl_xa"]()]}, pairw=PW)
                self.bg_w = 0
                self.stamp("p2")
                tk = self.x_payload(2 * layer, 1, wt)
                k_s, fl_s = self.new_pub(tk + self.x_stats(wt))
                self.stamp("x_pub")
                self.poll_check(st["k_xa"])
                self.stamp("x_rdy")
                poll = lambda: st.update(tok=self.poll_issue())

                def when(k, plan, burst=0):
                    def f():
                        self.poll_check(k() if callable(k) else k, st["tok"])
                        self.aq += plan
                        self.a_burst(burst)
                    return f
                fl_s()
                dso = [k // 2 for k in self.ksord[layer][::4]]
                xa = sum([self.queue_half("X", 2 * layer, 0, 2, self.aq, ds0=d) for d in dso], [])
                pl_s = []
                xb = sum([self.queue_half("X", 2 * layer, 1, 2, pl_s, ds0=d) for d in dso], [])
                xx = (xa, xb)
                sa = self.queue_stats(0, pl_s)
                sb = self.queue_stats(1, pl_s)
                if layer or FT:
                    th = lambda: self.touch_h(layer)
                    th.seq = -1
                    th.prep = []
                    pl_s.append(th)
                self.a_burst(env("AF3", 6))
                self.bg_w = 0
                self.pace_w = PB[layer]
                NA = env("NA", [8, 0])[layer]
                h = NA // 2
                groups = [xa[:2], xa[2:h], xb[:2], xb[2:h], xa[h:] + xb[h:]] if h > 2 else [xa[:2], xb[:2], xa[2:4] + xb[2:4], xa[4:] + xb[4:]]
                hooks, pre, post = {}, {}, {}
                s1a, bba = self.stats_stage1(sa, 0)
                s1b, bbb = self.stats_stage1(sb, 1)
                j = env("H_ST", 1)
                hooks[j] = [poll, lambda: self.w_burst(env("W_P3S", [5, 0])[layer])]
                hooks[j + env("CK3", 6)] = [when(k_s, pl_s, env("BU3", 4)), lambda: setattr(self, "bg_w", 99)]
                hooks[env("H_S1", [28, 24])[layer]] = [lambda: self.side.extend(s1a + s1b)]

            else:
                n0 = self.seq
                oo = self.queue_both("O", layer, 8, self.aq)
                self.a_burst(env("AF2", 10))
                self.bg_w = env("W_P2", [12, 12])[layer]
                self.gemm(self.n16_full("wo", layer, 16, oo), self.split(list(range(n0, n0 + 16)), env("G16", [2, 2, 4, 4, 4])), D16,
                          pairw=PW)
                self.bg_w = 0
                self.stamp("p2")
                tk1 = self.x_payload(2 * layer, 0, wt) + self.x_payload(2 * layer, 1, wt)
                tk2 = self.x_stats(wt)
                k_x, fl_x = self.new_pub(tk1)
                k_s, fl_s = self.new_pub(tk2)
                self.w_burst(env("W_PUB2", [4, 0])[layer])
                fl_x()
                self.stamp("x_pub")
                self.poll_shadow(k_x, env("NCS", [0, 0])[1] if layer == 0 else 0)
                self.stamp("x_rdy")
                poll = lambda: st.update(tok=self.poll_issue())

                def when(k, plan, burst=0):
                    def f():
                        self.poll_check(k() if callable(k) else k, st["tok"])
                        self.aq += plan
                        self.a_burst(burst)
                    return f
                n0 = self.seq
                xx = ([], [])
                for d in [k // 2 for k in self.ksord[layer][::4]]:
                    for hf in range(2):
                        xx[hf].extend(self.queue_half("X", 2 * layer, hf, 2, self.aq, ds0=d))
                hold = self.seq
                pl_s = []
                sa = self.queue_stats(0, pl_s)
                sb = self.queue_stats(1, pl_s)
                self.a_burst(4)
                fl_s()
                self.a_burst(env("AF3F", 8) - 4)
                self.bg_w = env("W_P3E", 0)
                self.pace_w = PB[layer]
                groups = self.split(list(range(n0, n0 + 16)), env("G3", [4, 4, 8]))
                hooks, pre, post = {}, {}, {}
                s1a, bba = self.stats_stage1(sa, 0)
                s1b, bbb = self.stats_stage1(sb, 1)
                j = env("H_STF", 8)
                hooks[j] = [poll, lambda: self.w_burst(env("W_P3S", [5, 0])[layer])]
                hooks[j + 6] = [when(k_s, pl_s), lambda: setattr(self, "bg_w", 99)]
                hooks[j + 18] = [lambda: self.side.extend(s1a + s1b)]
                hooks.setdefault(env("H_TH", 36), []).append(lambda: self.touch_h(layer))

            def exch():
                bba()
                bbb()
                b.I("s_barrier")
                self.side.extend(self.stats_stage2(0, True, False) + self.stats_stage2(1, True, False))
            hooks[env("H_EX", [48, 42])[layer]] = [exch]
            if env("NB", [0, 6])[layer]:
                it3 = self.p3_items(layer, xx)
                NB = env("NB", [0, 6])[layer]
                tail = it3[64 - 2 * NB:]
                lim = min(t[2] for t in tail)
                self.pinned = {lim + 2}
                self.gemm(it3[:64 - 2 * NB], groups, 6, hooks, pre, post, pairw=True)
                self.stamp("p3")
                pl_ha, pl_hb, pl_ya = [], [], []
                ha = self.queue_half("H", layer, 0, 22, pl_ha)
                hb = self.queue_half("H", layer, 1, 22, pl_hb)
                tka = []
                k_ha, fl_ha = self.new_pub(tka)
                hk = {env("H_FLA", 8): [fl_ha]}
                if env("M_PI", 1) < 0:
                    hk.setdefault(2 * NB - 1, []).append(poll)
                j3 = self.gemm_prep(tail, None, 6, hk, pairw=True)
                j3[0]()
                self.bg_w = env("W_SILU", [0, 0])[layer]
                tka += self.silu(layer, 0)
                self.stamp("silu_a")
                self.pinned = set()
                self.bg_w = env("W_P3T", [0, 0])[layer]
                j3[1]()
                self.mine = ha[0] - 1
                self.bg_w = 0
                self.stamp("p3t")
                mid = {}
                mid.setdefault(env("M_PI", 1), []).append(poll)
                mid.setdefault(env("M_PC", 2), []).append(when(k_ha, pl_ha, env("AF4", 4)))
                tkb = self.silu(layer, 1, mid)
                k_hb, fl_hb = self.new_pub(tkb)
                self.stamp("ha_rdy")
                self.a_burst(AF - (self.seq_issued() - ha[0]))
                SPL = 1
            else:
                self.gemm(self.p3_items(layer, xx), groups, 6, hooks, pre, post, pairw=True)
                self.pinned = set()
                self.mine = self.seq - 1
                self.bg_w = env("W_SILU", [0, 0])[layer]
                self.stamp("p3")
                k_ha, fl_ha = self.new_pub(self.silu(layer, 0))
                self.bg_w = 0
                pl_ha, pl_hb, pl_ya = [], [], []
                ha = self.queue_half("H", layer, 0, 22, pl_ha)
                hb = self.queue_half("H", layer, 1, 22, pl_hb)

                def ha_go():
                    self.stamp("silu")
                    self.poll_check(k_ha)
                    self.stamp("ha_rdy")
                    self.aq += pl_ha
                    self.a_burst(env("AF4", 4))
                SPL = env("SPLIT", 0)
                mid = {env("MID", 1): [fl_ha]}
                if SPL:
                    mid.setdefault(2, []).append(ha_go)
                tkb = self.silu(layer, 1, mid)
                k_hb, fl_hb = self.new_pub(tkb)
                if not SPL:
                    ha_go()
                    fl_hb()
                if layer == 1 and "x" in env("CLEAN", ""):
                    for j in range(8):
                        b.I("v_cvt_pk_bf16_f32 v%d, v%d, v%d" % (vT + j, vX + 2 * j, vX + 2 * j + 1))
                    st["cx"] = []
                    for hf in range(2):
                        b.I("s_add_u32 s%d, s%d, s%d" % (sT + 9 + hf, sRG64, sSTO))
                        b.I("s_add_u32 s%d, s%d, 0x%x" % (sT + 9 + hf, sT + 9 + hf, self.buf("X", 2) + hf * 32768))
                        st["cx"] += [self.pair_store(vT + 4 * hf, sT + 9 + hf, 0) + " sc1", 6]
                    self.side += [30] + st["cx"]
                self.a_burst(AF - (self.seq_issued() - ha[0]))
            self.bg_w = sum(1 for k, _ in self.wq if k[0] == "w2") + env("W_P4X", 0)
            self.wmin = env("WMIN4", 20)
            j = env("H_P4A", [24, 34])[layer]
            self.alead = env("ALEAD4", 16)
            self.pace_w = PA[1]
            items = self.n16_items("w2", 0, 43, 0, ha) + self.n16_items("w2", 0, 43, 1, hb)
            groups = self.split(ha, env("G22C", [2, 2, 4, 4, 4, 6])) + self.split(hb, G22)
            hooks = {j: [poll], j + env('CK4', 12): [when(k_hb, pl_hb, env('BU_HB', 4))]}
            if SPL:
                hooks[env("H_FLB", 14)] = [fl_hb]
            pre, post = {}, {}
            if layer == 0:
                sa = self.queue_stats(0, pl_ya)
                ya = self.queue_half("X", 1, 0, 8, pl_ya, rot=True)

                def y_out(hf, delay):
                    def f():
                        self.stamp("p4a" if hf == 0 else "p4b")
                        st["k_y%d" % hf], st["fl_y%d" % hf] = self.x_half_now(1, hf, self.sep)
                        self.pace_w = PA[1]
                        if hf:
                            self.alead = env("ALEAD", 99)
                    return f
                j = 86 + env("H_P4B", 40)
                hooks.update({87: [y_out(0, 0)], 87 + env("D_Y0", 20): [lambda: st["fl_y0"]()],
                              172 + env("D_Y1", 10): [lambda: st["fl_y1"]()], j: [poll], j + env('CK4', 12): [when(lambda: st["k_y0"], pl_ya, env("BU_YA", 6))], 172: [y_out(1, 0)],
                              172 + env("H_P1A", 24): [poll]})
                if env("RFR", 0) and not os.environ.get("NOW"):
                    j = 86 + env("H_RFR", 36)
                    hooks.setdefault(j, []).append(lambda: self.touch_w(F_W1 + 28, 5))
                    hooks.setdefault(j + 4, []).append(lambda: self.touch_w(F_W1 + 8, 5))
                ng = len(groups)
                groups += self.split(ya, env("G8K", [2, 4, 2]))
                self.stats_hooks(sa, 0, False, True, 173, ng + 2, hooks, pre, post)
                items += self.kv_items(0, ya)
            else:
                hooks[85] = [lambda: (self.stamp("p4a"), self.side.extend(self.out_half_store(0)))]
                CL = env("CLEAN", "")

                def clean_h(hf):
                    e = []
                    for t in range(3):
                        e += ["s_add_u32 s%d, s%d, 0x%x" % (sT + 8, sH0 + t, self.buf("H", layer) + hf * (HSZ // 2)),
                              "buffer_store_dwordx4 %s, v%d, %s, s%d offen sc1" % (vr(vACC + 24 * hf + 8 * t, 4), vST, self.ws(), sT + 8), 4]
                    return lambda: self.side.extend(e)
                if "a" in CL:
                    hooks.setdefault(86 + env("H_CLA", 12), []).append(clean_h(0))
                if "b" in CL:
                    hooks.setdefault(86 + env("H_CLB", 60), []).append(clean_h(1))
            self.gemm(items, groups, D16, hooks, pre, post, pairw=PW)
            if layer == 0:
                self.stamp("p1a")
                pl = []
                sb = self.queue_stats(1, pl)
                yb = self.queue_half("X", 1, 1, 8, pl, rot=True)
                pl = pl[2:6] + pl[:2] + pl[6:]
                if env("RFR", 0) > 1 and not os.environ.get("NOW"):
                    th = lambda: self.touch_w(F_WO, 6)
                    th.seq = -1
                    th.prep = []
                    pl.append(th)

                def go():
                    self.poll_check(st["k_y1"], st["tok"])
                    self.stamp("yb_rdy")
                    self.aq += pl
                    self.a_burst(env('AF1', 6))
                self.wmin = WMIN
                self.bg_w = 99
                self.kv_finish(0, go)
                hooks, pre, post = {}, {}, {}
                self.stats_hooks(sb, 1, False, True, 0, 1, hooks, pre, post)
                self.gemm(self.kv_items(1, yb), self.split(yb, env('G1B', [4, 4])), 8, hooks, pre, post, pairw=True)
                self.kv_finish(1)
                self.stamp("p1b")
                xs = [ya, yb]
            else:
                self.stamp("p4b")
                self.side = self.out_half_store(1)
                self.side_flush()
                lx = b.newlabel("Lep")
                b.I("s_or_b32 s%d, s2, s%d" % (sT, sW))
                b.I("s_cbranch_scc1 %s" % lx)
                b.I("s_add_u32 s%d, s%d, 16" % (sT, sEP))
                b.I("v_mov_b32 v%d, s%d" % (vT + 9, sT))
                b.I("s_mov_b32 s%d, 0x%x" % (sT, WS_EP))
                b.I("s_mov_b64 exec, 1")
                self.Inc("buffer_store_dword v%d, off, %s, s%d sc1" % (vT + 9, self.ws(), sT))
                b.I("s_mov_b64 exec, -1")
                b.label(lx)
                self.stamp("end")
        if self.diag:
            b.I("s_lshl_b32 s%d, s2, 2" % sT)
            b.I("s_add_u32 s%d, s%d, s%d" % (sT, sT, sW))
            b.I("s_lshl_b32 s%d, s%d, 8" % (sT, sT))
            b.I("s_add_u32 s%d, s%d, 0x%x" % (sT, sT, WS_STAMP))
            b.I("buffer_store_dword v%d, v%d, %s, s%d offen" % (vSTAMP, vL4, self.ws(), sT))
            if env("RT", 0):
                b.I("s_add_u32 s%d, s%d, 0x40000" % (sT, sT))
                b.I("buffer_store_dword v255, v%d, %s, s%d offen" % (vL4, self.ws(), sT))
        if self.diag and env("PROBE", 0):
            lx, lp = b.newlabel("Lpr"), b.newlabel("Lprl")
            i0, i1 = [61 if n == "entry" else [i for i, m in enumerate(self.stamp_names) if m == n[0]][n[1]] for n in env("PROBE", 0)]
            b.I("s_cmp_lg_u32 s2, %d" % env("PWG", 100))
            b.I("s_cbranch_scc1 %s" % lx)
            b.I("v_readlane_b32 s%d, v%d, %d" % (sT, vSTAMP, i0))
            b.I("v_readlane_b32 s%d, v%d, %d" % (sT + 1, vSTAMP, i1))
            b.I("v_readlane_b32 s%d, v%d, %d" % (sT + 2, vSTAMP, len(self.stamp_names) - 1))
            b.I("s_sub_u32 s%d, s%d, s%d" % (sT + 1, sT + 1, sT))
            b.I("s_mul_i32 s%d, s%d, %d" % (sT + 1, sT + 1, env("PMUL", 1)))
            b.I("s_add_u32 s%d, s%d, 4800" % (sT + 1, sT + 1))
            b.label(lp)
            b.I("s_memtime s[94:95]")
            b.I("s_waitcnt lgkmcnt(0)")
            b.I("s_sub_u32 s%d, s94, s%d" % (sT, sT + 2))
            b.I("s_cmp_lt_u32 s%d, s%d" % (sT, sT + 1))
            b.I("s_cbranch_scc1 %s" % lp)
            b.label(lx)
        b.label("L_end")
        b.I("s_endpgm")
        for t in self.cold:
            b.raw(t)

    def emit(self):
        self.body()
        head = """; @launch grid=(256,1,1) block=(256,1,1) lds=%d
; One persistent launch, one workgroup per CU: 32 row groups (64 rows) x 8 column groups (own generator script).
; kernarg: 0 A_x, 8 A_wqkv, 16 A_wo, 24 B_x (unused), 32 B_w1, 40 B_w2, 48 out, 56 debug (unused), 64 ws.
; Per layer: LN+QKV GEMM (LN folded into the epilogue) -> phi -> per-head kv/z partials, float atomics with in-line arrival
; counters -> o -> o@wo + x -> LN+w1 GEMM + SiLU -> h@w2 + x.  Tiles travel between the 8 workgroups of a row group through ws
; in MFMA-fragment order with tagged flags; stores are write-through unless all 8 report the same XCC id at run time.
.amdgcn_target "amdgcn-amd-amdhsa--gfx950"
.text
.globl %s_kernel
.p2align 8
.type %s_kernel,@function
%s_kernel:
""" % (LDS_BYTES, NAME, NAME, NAME)
        tail = """.section .rodata,"a"
.p2align 6
.amdhsa_kernel %s_kernel
  .amdhsa_next_free_vgpr 512
  .amdhsa_next_free_sgpr 102
  .amdhsa_accum_offset 256
  .amdhsa_group_segment_fixed_size 0
  .amdhsa_kernarg_size 72
  .amdhsa_user_sgpr_count 2
  .amdhsa_user_sgpr_kernarg_segment_ptr 1
  .amdhsa_system_sgpr_workgroup_id_x 1
.end_amdhsa_kernel
""" % NAME
        return head + self.b.text() + tail


if __name__ == "__main__":
    import argparse
    ap = argparse.ArgumentParser()
    ap.add_argument("-o", default="cdna_kernels/%s.s" % NAME)
    ap.add_argument("--diag", action="store_true")
    ap.add_argument("--sep", action="store_true")
    a = ap.parse_args()
    g = Gen(a.diag, a.sep)
    txt = g.emit()
    if a.diag:
        txt = txt.replace(".amdgcn_target", "; stamps: " + ",".join(g.stamp_names) + "\n.amdgcn_target", 1)
    open(a.o, "w").write(txt)
    print("instructions", g.b.nins, "nops", g.b.nops, file=sys.stderr)
```
